```python
import torch

def _softmax(x, axis=-1):
    return torch.softmax(x, dim=axis)
def _gelu(x):
    return torch.nn.functional.gelu(x, approximate="tanh")
def _silu(x):
    return torch.nn.functional.silu(x)
def _sigmoid(x):
    return torch.sigmoid(x)
def _layernorm(x, axis=-1, eps=1e-5):
    m = x.mean(dim=axis, keepdim=True)
    v = x.var(dim=axis, keepdim=True, unbiased=False)
    return (x - m) / torch.sqrt(v + eps)
def _scatter_add(tgt, idx, src, axis=0):
    return tgt.clone().index_add_(axis, idx, src)
def _segment_sum(src, seg, n):
    out = torch.zeros((n,) + src.shape[1:], dtype=src.dtype)
    return out.index_add_(0, seg, src)
def _pad(x, pw):
    flat = tuple(v for pair in reversed(pw) for v in pair)
    return torch.nn.functional.pad(x, flat)

kernel_name = 'interleave_layers__grouped_kv_mqa__glu_gated_bilinear__prompt'

def setup_inputs():

    _w = (lambda a: (lambda t: t.to(torch.bfloat16) if t.is_floating_point() else t)(torch.as_tensor(a)))
    def _A_setup():
        B, S, D, H = 1, 2048, 512, 32
        Dh = D // H
        return {
            "x": _w((lambda *s: torch.randn(*s, dtype=torch.bfloat16) * 0.05)(B, S, D)),
            "wq": _w((lambda *s: torch.randn(*s, dtype=torch.bfloat16) * 0.05)(D, H * Dh)),
            "wk": _w((lambda *s: torch.randn(*s, dtype=torch.bfloat16) * 0.05)(D, Dh)),
            "wv": _w((lambda *s: torch.randn(*s, dtype=torch.bfloat16) * 0.05)(D, Dh)),
            "wo": _w((lambda *s: torch.randn(*s, dtype=torch.bfloat16) * 0.05)(H * Dh, D)),
        }
    _A_in = _A_setup()

    def _B_setup():
        B, S, D, F = 1, 2048, 512, 1792
        return {
            "x": _w((lambda *s: torch.randn(*s, dtype=torch.bfloat16) * 0.05)(B, S, D)),
            "w_gate": _w((lambda *s: torch.randn(*s, dtype=torch.bfloat16) * 0.4)(D, F) * (D ** -0.5)),
            "w_up": _w((lambda *s: torch.randn(*s, dtype=torch.bfloat16) * 0.4)(D, F) * (D ** -0.5)),
            "w_down": _w((lambda *s: torch.randn(*s, dtype=torch.bfloat16) * 0.4)(F, D) * (F ** -0.5)),
        }
    _B_in = _B_setup()

    return {
        "A_x": _A_in["x"],
        "A_wq": _A_in["wq"],
        "A_wk": _A_in["wk"],
        "A_wv": _A_in["wv"],
        "A_wo": _A_in["wo"],
        "B_x": _B_in["x"],
        "B_w_gate": _B_in["w_gate"],
        "B_w_up": _B_in["w_up"],
        "B_w_down": _B_in["w_down"],
    }

def reference(A_x, A_wq, A_wk, A_wv, A_wo, B_x, B_w_gate, B_w_up, B_w_down):
    def _A_ref(x, wq, wk, wv, wo):
        B, S, D = x.shape
        H = 32
        Dh = D // H
        q = (lambda x, *d: x.permute(*d))((x @ wq).reshape(B, S, H, Dh), 0, 2, 1, 3)
        k = x @ wk
        v = x @ wv
        scores = torch.einsum("bhqd,bkd->bhqk", q, k) * (Dh ** -0.5)
        p = _softmax(scores, axis=-1)
        o = torch.einsum("bhqk,bkd->bhqd", p, v)
        return (lambda x, *d: x.permute(*d))(o, 0, 2, 1, 3).reshape(B, S, H * Dh) @ wo

    def _B_ref(x, w_gate, w_up, w_down):
        g = torch.einsum("bsd,df->bsf", x, w_gate)
        u = torch.einsum("bsd,df->bsf", x, w_up)
        h = g * u
        return torch.einsum("bsf,fd->bsd", h, w_down)

    x = A_x
    x = x + _A_ref(_layernorm(x, axis=-1), A_wq, A_wk, A_wv, A_wo)
    x = x + _B_ref(_layernorm(x, axis=-1), B_w_gate, B_w_up, B_w_down)
    x = x + _A_ref(_layernorm(x, axis=-1), A_wq, A_wk, A_wv, A_wo)
    x = x + _B_ref(_layernorm(x, axis=-1), B_w_gate, B_w_up, B_w_down)
    return x
```

```python
import re


class Asm:
    def __init__(self):
        self.lines = []

    def __call__(self, s):
        for ln in s.split('\n'):
            ln = ln.strip()
            if ln:
                self.lines.append('    ' + ln)

    def label(self, l):
        self.lines.append(l + ':')

    def raw(self, s):
        self.lines.append(s)

    def comment(self, s):
        self.lines.append('    ; ' + s)

    def text(self):
        return '\n'.join(self.lines) + '\n'


def v(i, n=1):
    return f'v{i}' if n == 1 else f'v[{i}:{i + n - 1}]'


def a(i, n=1):
    return f'a{i}' if n == 1 else f'a[{i}:{i + n - 1}]'


def s(i, n=1):
    return f's{i}' if n == 1 else f's[{i}:{i + n - 1}]'


_REG = re.compile(r'\b([vas])(\d+)\b|\b([vas])\[(\d+):(\d+)\]|\b(vcc|exec|m0|scc)\b')
TRANS = ('v_exp_', 'v_log_', 'v_rcp_', 'v_rsq_', 'v_sqrt_', 'v_sin_', 'v_cos_')


def regs_of(op):
    out = []
    for m in _REG.finditer(op):
        if m.group(1):
            out.append((m.group(1), int(m.group(2))))
        elif m.group(3):
            for i in range(int(m.group(4)), int(m.group(5)) + 1):
                out.append((m.group(3), i))
        else:
            out.append((m.group(6), 0))
    return out


def split_ops(rest):
    ops, depth, cur = [], 0, ''
    for ch in rest:
        if ch == '[':
            depth += 1
        elif ch == ']':
            depth -= 1
        if ch == ',' and depth == 0:
            ops.append(cur.strip())
            cur = ''
        else:
            cur += ch
    if cur.strip():
        ops.append(cur.strip())
    return ops


class Ins:
    __slots__ = ('text', 'mn', 'reads', 'writes', 'kind', 'ws', 'passes', 'srcc', 'srcab', 'storedata', 'lds')


def parse(line):
    t = line.split(';')[0].strip()
    if not t or t.endswith(':') or t.startswith('.'):
        return None
    parts = t.split(None, 1)
    mn = parts[0]
    rest = parts[1] if len(parts) > 1 else ''
    ops = split_ops(rest)
    I = Ins()
    I.text, I.mn = t, mn
    I.reads, I.writes = [], []
    I.ws = 1
    I.passes = 0
    I.srcc, I.srcab, I.storedata = [], [], []
    I.lds = False
    if mn == 's_nop':
        I.kind = 'nop'
        I.ws = int(ops[0], 0) + 1
        return I
    if mn.startswith('v_mfma') or mn.startswith('v_smfmac'):
        I.kind = 'mfma'
        I.writes = regs_of(ops[0])
        I.srcab = regs_of(ops[1]) + regs_of(ops[2])
        I.srcc = regs_of(ops[3].split()[0])
        I.reads = I.srcab + I.srcc
        I.passes = 8 if '32x32' in mn else 4
        return I
    if mn.startswith('v_'):
        I.kind = 'trans' if mn.startswith(TRANS) else 'valu'
        if mn.startswith('v_cmp'):
            I.writes = regs_of(ops[0])
            if mn.startswith('v_cmpx'):
                I.writes.append(('exec', 0))
            for o in ops[1:]:
                I.reads += regs_of(o)
        elif mn.startswith('v_permlane') and 'swap' in mn:
            I.writes = regs_of(ops[0]) + regs_of(ops[1])
            I.reads = list(I.writes)
        elif '_co_' in mn or mn.startswith('v_div_scale') or mn.startswith('v_mad_u64'):
            I.writes = regs_of(ops[0]) + regs_of(ops[1])
            for o in ops[2:]:
                I.reads += regs_of(o)
        else:
            I.writes = regs_of(ops[0])
            for o in ops[1:]:
                I.reads += regs_of(o)
            if mn.startswith(('v_fmac', 'v_dot2c', 'v_writelane')) or 'UNUSED_PRESERVE' in t:
                I.reads += I.writes
            if mn.startswith('v_cndmask') and len(ops) == 3:
                I.reads.append(('vcc', 0))
        return I
    if mn.startswith(('buffer_', 'global_', 'flat_')):
        I.kind = 'vmem'
        words = rest.replace(',', ' ').split()
        I.lds = 'lds' in words or '_lds_' in mn
        isstore = 'store' in mn or 'atomic' in mn
        if mn.startswith('buffer_') and ops and (mn.startswith('buffer_load') or mn.startswith('buffer_store') or mn.startswith('buffer_atomic')):
            if I.lds:
                for o in ops:
                    I.reads += regs_of(o)
                I.reads.append(('m0', 0))
            elif isstore:
                I.storedata = regs_of(ops[0])
                for o in ops:
                    I.reads += regs_of(o)
            else:
                I.writes = regs_of(ops[0])
                for o in ops[1:]:
                    I.reads += regs_of(o)
                if 'd16' in mn:
                    I.reads += I.writes
        elif mn.startswith('global_') and ops:
            if I.lds:
                for o in ops:
                    I.reads += regs_of(o)
                I.reads.append(('m0', 0))
            elif isstore:
                I.storedata = regs_of(ops[1])
                for o in ops:
                    I.reads += regs_of(o)
            else:
                I.writes = regs_of(ops[0])
                for o in ops[1:]:
                    I.reads += regs_of(o)
        if not ('x4' in mn or 'x3' in mn):
            I.storedata = []
        return I
    if mn.startswith('ds_'):
        I.kind = 'ds'
        if mn.startswith(('ds_read', 'ds_bpermute', 'ds_permute', 'ds_swizzle')):
            I.writes = regs_of(ops[0])
            for o in ops[1:]:
                I.reads += regs_of(o)
        else:
            for o in ops:
                I.reads += regs_of(o)
        return I
    if mn.startswith('s_'):
        I.kind = 'salu'
        if mn.startswith(('s_cmp', 's_cbranch', 's_branch', 's_waitcnt', 's_barrier', 's_endpgm', 's_setprio', 's_sleep', 's_bitcmp')):
            for o in ops:
                I.reads += regs_of(o)
        else:
            if ops:
                I.writes = regs_of(ops[0])
            for o in ops[1:]:
                I.reads += regs_of(o)
            if 'saveexec' in mn:
                I.writes.append(('exec', 0))
        return I
    raise ValueError('cannot parse: ' + line)


def _need(p, c):
    n = 0
    pw = set(p.writes)
    cr = set(c.reads)
    cw = set(c.writes)
    valu_p = p.kind in ('valu', 'trans')
    valu_c = c.kind in ('valu', 'trans')
    vecw = {r for r in pw if r[0] in 'va' and len(r[0]) == 1}
    sgw = {r for r in pw if r[0] in ('s', 'vcc')}
    if valu_p:
        if c.kind == 'mfma' and vecw & cr:
            n = max(n, 2)
        if c.kind == 'vmem' and sgw & cr:
            n = max(n, 5)
        if valu_c and sgw & cr:
            n = max(n, 4 if c.mn.startswith(('v_readlane', 'v_writelane')) else 2)
        if c.mn.startswith(('v_readlane', 'v_readfirstlane')) and vecw & cr:
            n = max(n, 1)
        if c.mn.startswith('v_permlane') and vecw & cr:
            n = max(n, 2)
        if valu_c and ('dpp' in c.text or 'row_' in c.text or 'quad_perm' in c.text) and vecw & cr:
            n = max(n, 2)
        if p.kind == 'trans' and c.kind in ('valu', 'mfma') and vecw & cr:
            n = max(n, 1)
        if ('sdwa' in p.mn or 'op_sel' in p.text) and valu_c and vecw & (cr | cw):
            n = max(n, 1)
        if p.mn.startswith('v_dot') and valu_c and vecw & (cr | cw):
            same_c = (p.mn == c.mn)
            n = max(n, 0 if same_c else 3)
        if p.mn.startswith('v_dot') and c.kind in ('ds', 'vmem', 'mfma') and vecw & cr:
            n = max(n, 3)
        if ('exec', 0) in pw:
            if c.kind == 'mfma':
                n = max(n, 4)
            if c.mn.startswith(('v_readlane', 'v_readfirstlane', 'v_writelane', 'v_permlane')):
                n = max(n, 4)
            if valu_c and ('dpp' in c.text or 'row_' in c.text):
                n = max(n, 5)
    if p.kind == 'mfma':
        big = {8: 12, 4: 8}[p.passes]
        if c.kind == 'mfma':
            if pw & set(c.srcab):
                n = max(n, big)
            if pw & set(c.srcc):
                if not (list(p.writes) == list(c.srcc) and p.passes == c.passes):
                    n = max(n, {8: 10, 4: 6}[p.passes])
            elif pw & cw:
                n = max(n, {8: 10, 4: 6}[p.passes])
        elif c.kind in ('valu', 'trans', 'vmem', 'ds'):
            if pw & (cr | cw):
                n = max(n, big)
        if valu_c and set(p.srcc) & cw:
            n = max(n, {8: 7, 4: 3}[p.passes])
    if p.kind == 'vmem' and p.storedata and set(p.storedata) & cw:
        n = max(n, 2 if valu_c else 1)
    if p.kind == 'salu' and ('m0', 0) in pw and c.kind == 'vmem' and c.lds:
        n = max(n, 1)
    return n


def lint(text):
    lines = text.split('\n')
    labels = {}
    ins = []
    for ln in lines:
        t = ln.split(';')[0].strip()
        if t.endswith(':') and not t.startswith('.amd'):
            labels[t[:-1]] = len(ins)
            continue
        if t.startswith('.'):
            continue
        I = parse(ln)
        if I is not None:
            ins.append(I)
    problems = []

    def check_seq(seq):
        for j, c in enumerate(seq):
            dist = 0
            for i in range(j - 1, max(-1, j - 24), -1):
                p = seq[i]
                if p.mn in ('s_endpgm', 's_branch'):
                    break
                need = _need(p, c)
                if need > dist:
                    problems.append(f'need {need} ws, have {dist}: [{p.text}] -> [{c.text}]')
                dist += p.ws
                if dist > 20:
                    break

    check_seq(ins)
    for j, I in enumerate(ins):
        if I.mn.startswith(('s_cbranch', 's_branch')):
            tgt = I.text.split()[-1]
            if tgt in labels:
                k = labels[tgt]
                pre = ins[max(0, j - 24):j]
                for q in range(len(pre) - 1, -1, -1):
                    if pre[q].mn in ('s_endpgm', 's_branch'):
                        pre = pre[q + 1:]
                        break
                nopI = parse('s_nop 0')
                check_seq(pre + [nopI] + ins[k:k + 24])
    return sorted(set(problems))
```

```python
import sys
import math
import struct
from asmlib import Asm, v, a, s, lint

NAME = 'interleave_layers__grouped_kv_mqa__glu_gated_bilinear__prompt'

KB = 1024
WQKVP = 0
WOP = WQKVP + 17 * 32 * KB
WGUP = WOP + 16 * 32 * KB
WDP = WGUP + 112 * 32 * KB
CSQKV = WDP + 16 * 112 * KB
CSGU = CSQKV + 4 * KB
CSDUMMY = CSGU + 16 * KB
KVF = CSDUMMY + 4 * KB
XA = KVF + 144 * KB
XB = XA + 2048 * KB
QF = XB + 2048 * KB
OF = QF + 2048 * KB
HF = OF + 2048 * KB
WS_END = HF + 64 * 112 * KB
WS_SIZE = 268435456
KVT = 2080

QSCALE = 0.25 * math.log2(math.e)


def f32(x):
    return '0x%08x' % struct.unpack('<I', struct.pack('<f', x))[0]


def kernel_begin(A, name):
    A.raw('.p2align 8')
    A.raw(f'.globl {name}')
    A.raw(f'.type {name},@function')
    A.label(name)


def descriptor(name, nv, na=0, nsgpr=96):
    acc = (nv + 3) // 4 * 4
    total = acc + na if na else nv
    return f""".amdhsa_kernel {name}
  .amdhsa_next_free_vgpr {total}
  .amdhsa_next_free_sgpr {nsgpr}
  .amdhsa_accum_offset {acc}
  .amdhsa_group_segment_fixed_size 0
  .amdhsa_kernarg_size 96
  .amdhsa_user_sgpr_count 2
  .amdhsa_user_sgpr_kernarg_segment_ptr 1
  .amdhsa_system_sgpr_workgroup_id_x 1
  .amdhsa_float_denorm_mode_32 3
  .amdhsa_float_denorm_mode_16_64 3
.end_amdhsa_kernel
"""


def ws_srd(A, d):
    A(f's_load_dwordx2 {s(d, 2)}, s[0:1], 88')
    A(f's_mov_b32 {s(d + 2)}, {WS_SIZE}')
    A(f's_mov_b32 {s(d + 3)}, 0x20000')


def gen_pack(A):
    name = 'pack_kernel'
    NJOB = 274
    kernel_begin(A, name)
    A(f's_cmp_ge_u32 s2, {NJOB}')
    A('s_cbranch_scc1 pk_end')
    A('s_load_dwordx16 s[32:47], s[0:1], 0')
    A('s_load_dwordx2 s[48:49], s[0:1], 64')
    ws_srd(A, 8)
    A('s_mov_b32 s7, 0x20000')
    A('v_and_b32 v1, 63, v0')
    A('v_lshrrev_b32 v2, 6, v0')
    A('s_nop 0')
    A('v_readfirstlane_b32 s20, v2')
    A('s_waitcnt lgkmcnt(0)')
    A('s_mov_b32 s15, 256')
    A('s_mov_b32 s17, 64')
    A('s_mov_b32 s18, 4')
    A('s_mov_b32 s19, 8')
    A(f's_mov_b32 s16, {CSDUMMY}')
    A('s_cmp_lt_u32 s2, 16')
    A('s_cbranch_scc1 pk_wq')
    A('s_cmp_lt_u32 s2, 18')
    A('s_cbranch_scc1 pk_kv')
    A('s_cmp_lt_u32 s2, 34')
    A('s_cbranch_scc1 pk_wo')
    A('s_cmp_lt_u32 s2, 146')
    A('s_cbranch_scc1 pk_gu')
    A('s_cmp_lt_u32 s2, 210')
    A('s_cbranch_scc1 pk_dn')
    A('s_branch pk_x')

    A.label('pk_wq')
    A('s_mov_b64 s[4:5], s[34:35]')
    A(f's_mov_b32 s6, {512 * 512 * 2}')
    A('s_mov_b32 s12, 1024')
    A('s_lshl_b32 s13, s2, 6')
    A('s_lshl_b32 s14, s2, 15')
    A(f's_add_u32 s14, s14, {WQKVP}')
    A('s_lshl_b32 s16, s2, 7')
    A(f's_add_u32 s16, s16, {CSQKV}')
    A('s_branch pk_go')

    A.label('pk_kv')
    A('s_sub_u32 s21, s2, 16')
    A('s_cmp_eq_u32 s21, 0')
    A('s_cselect_b32 s4, s36, s38')
    A('s_cselect_b32 s5, s37, s39')
    A(f's_mov_b32 s6, {512 * 16 * 2}')
    A('s_mov_b32 s12, 32')
    A('s_mov_b32 s13, 0')
    A('s_lshl_b32 s14, s21, 8')
    A(f's_add_u32 s14, s14, {WQKVP + 16 * 32 * KB}')
    A('s_lshl_b32 s16, s21, 6')
    A(f's_add_u32 s16, s16, {CSQKV + 512 * 4}')
    A('s_mov_b32 s19, 4')
    A('s_branch pk_go')

    A.label('pk_wo')
    A('s_sub_u32 s21, s2, 18')
    A('s_mov_b64 s[4:5], s[40:41]')
    A(f's_mov_b32 s6, {512 * 512 * 2}')
    A('s_mov_b32 s12, 1024')
    A('s_lshl_b32 s13, s21, 6')
    A('s_lshl_b32 s14, s21, 15')
    A(f's_add_u32 s14, s14, {WOP}')
    A('s_branch pk_go')

    A.label('pk_gu')
    A('s_sub_u32 s21, s2, 34')
    A('s_cmp_ge_u32 s21, 56')
    A('s_cselect_b32 s4, s46, s44')
    A('s_cselect_b32 s5, s47, s45')
    A('s_cselect_b32 s22, 1, 0')
    A('s_cselect_b32 s23, 56, 0')
    A('s_sub_u32 s21, s21, s23')
    A(f's_mov_b32 s6, {512 * 1792 * 2}')
    A('s_mov_b32 s12, 3584')
    A('s_lshl_b32 s13, s21, 6')
    A('s_lshl_b32 s14, s21, 16')
    A('s_lshl_b32 s23, s22, 8')
    A('s_add_u32 s14, s14, s23')
    A(f's_add_u32 s14, s14, {WGUP}')
    A('s_mov_b32 s15, 32768')
    A('s_lshl_b32 s16, s21, 8')
    A('s_lshl_b32 s23, s22, 6')
    A('s_add_u32 s16, s16, s23')
    A(f's_add_u32 s16, s16, {CSGU}')
    A('s_mov_b32 s17, 128')
    A('s_branch pk_go')

    A.label('pk_dn')
    A('s_sub_u32 s21, s2, 146')
    A('s_and_b32 s22, s21, 15')
    A('s_lshr_b32 s23, s21, 4')
    A('s_mov_b64 s[4:5], s[48:49]')
    A(f's_mov_b32 s6, {1792 * 512 * 2}')
    A('s_mov_b32 s12, 1024')
    A('s_lshl_b32 s13, s22, 6')
    A('s_lshl_b32 s24, s23, 19')
    A('s_add_u32 s13, s13, s24')
    A(f's_mul_i32 s14, s22, {112 * KB}')
    A('s_lshl_b32 s24, s23, 15')
    A('s_add_u32 s14, s14, s24')
    A(f's_add_u32 s14, s14, {WDP}')
    A('s_cmp_eq_u32 s23, 3')
    A('s_cselect_b32 s18, 2, 4')

    A.label('pk_go')
    A('v_and_b32 v3, 7, v1')
    A('v_bfe_u32 v4, v1, 3, 2')
    A('v_lshrrev_b32 v5, 5, v1')
    A('v_mov_b32 v60, 0')
    A('v_mov_b32 v61, 0')
    A('v_mov_b32 v62, 0')
    A('v_mov_b32 v63, 0')
    A('v_lshlrev_b32 v12, 4, v0')
    A('s_cmp_ge_u32 s20, s18')
    A('s_cbranch_scc1 pk_cs')
    A('v_lshlrev_b32 v6, 4, v4')
    A('v_lshl_add_u32 v6, v5, 2, v6')
    A('v_lshl_add_u32 v6, v2, 7, v6')
    A('v_mul_lo_u32 v6, v6, s12')
    A('v_lshl_add_u32 v6, v3, 3, v6')
    A('v_lshrrev_b32 v7, 2, v3')
    A('v_mul_lo_u32 v7, v7, s15')
    A('v_and_b32 v8, 3, v3')
    A('v_lshl_add_u32 v7, v8, 6, v7')
    A('v_lshl_add_u32 v7, v5, 9, v7')
    A('v_lshl_add_u32 v7, v4, 10, v7')
    A('v_lshl_add_u32 v7, v2, 13, v7')
    A('v_cmp_gt_u32 vcc, s19, v3')
    A('s_and_saveexec_b64 s[26:27], vcc')
    A('s_mov_b32 s28, 0x05040100')
    A('s_mov_b32 s29, 0x07060302')
    A('v_mov_b32 v9, 0x3f803f80')
    rows = [0, 1, 2, 3, 8, 9, 10, 11]
    for pp in range(2):
        for j in range(8):
            r = pp * 64 + rows[j]
            A(f's_mul_i32 s21, s12, {r}')
            A('s_add_u32 s21, s21, s13')
            A(f'buffer_load_dwordx2 {v(16 + (pp * 8 + j) * 2, 2)}, v6, s[4:7], s21 offen')
    A('s_add_u32 s25, s14, 4096')
    for pp in range(2):
        A(f's_waitcnt vmcnt({8 if pp == 0 else 4})')
        for i in range(4):
            d, half = i // 2, i % 2
            o = 64 + (pp * 4 + i) * 4
            for m in range(4):
                lo = 16 + (pp * 8 + 2 * m) * 2 + d
                hi = 16 + (pp * 8 + 2 * m + 1) * 2 + d
                A(f'v_perm_b32 {v(o + m)}, {v(hi)}, {v(lo)}, {"s28" if half == 0 else "s29"}')
            A(f'buffer_store_dwordx4 {v(o, 4)}, v7, s[8:11], {"s14" if pp == 0 else "s25"} offen offset:{i * 16}')
            for m in range(4):
                A(f'v_dot2_f32_bf16 {v(60 + i)}, {v(o + m)}, v9, {v(60 + i)}')
    A('s_mov_b64 exec, s[26:27]')
    A.label('pk_cs')
    A('s_nop 3')
    A('ds_write_b128 v12, v[60:63]')
    A('s_waitcnt lgkmcnt(0)')
    A('s_barrier')
    A('s_cmp_lg_u32 s20, 0')
    A('s_cbranch_scc1 pk_end')
    A('s_lshl_b32 s19, s19, 2')
    A('v_cmp_gt_u32 vcc, s19, v1')
    A('s_and_saveexec_b64 s[26:27], vcc')
    A('v_lshlrev_b32 v12, 2, v1')
    for e in range(32):
        A(f'ds_read_b32 {v(16 + e)}, v12 offset:{e * 128}')
        if e == 14:
            A('s_waitcnt lgkmcnt(0)')
        if e == 29:
            A('s_waitcnt lgkmcnt(0)')
    A('v_lshrrev_b32 v13, 4, v1')
    A('v_mul_lo_u32 v13, v13, s17')
    A('v_and_b32 v14, 15, v1')
    A('v_lshl_add_u32 v13, v14, 2, v13')
    A('s_waitcnt lgkmcnt(0)')
    for st in (16, 8, 4, 2, 1):
        for e in range(st):
            A(f'v_add_f32 {v(16 + e)}, {v(16 + e)}, {v(16 + e + st)}')
    A('buffer_store_dword v16, v13, s[8:11], s16 offen')
    A('s_endpgm')

    A.label('pk_x')
    A('s_sub_u32 s21, s2, 210')
    A('s_mov_b64 s[4:5], s[32:33]')
    A(f's_mov_b32 s6, {2048 * 512 * 2}')
    A('v_and_b32 v3, 31, v1')
    A('v_lshrrev_b32 v5, 5, v1')
    A('v_lshlrev_b32 v6, 10, v3')
    A('v_lshl_add_u32 v6, v5, 3, v6')
    A('v_lshl_add_u32 v6, v2, 8, v6')
    A('s_lshl_b32 s13, s21, 15')
    A('v_lshlrev_b32 v7, 4, v1')
    A('v_lshl_add_u32 v7, v2, 13, v7')
    A(f's_add_u32 s14, s13, {XA}')
    A('s_add_u32 s25, s14, 4096')
    for j in range(8):
        A(f'buffer_load_dwordx2 {v(16 + j * 4, 2)}, v6, s[4:7], s13 offen offset:{j * 32}')
        A(f'buffer_load_dwordx2 {v(18 + j * 4, 2)}, v6, s[4:7], s13 offen offset:{j * 32 + 16}')
    for j in range(8):
        A(f's_waitcnt vmcnt({14 - 2 * j + j})')
        A(f'buffer_store_dwordx4 {v(16 + j * 4, 4)}, v7, s[8:11], {"s14" if j < 4 else "s25"} offen offset:{(j % 4) * 1024}')
    A.label('pk_end')
    A('s_endpgm')
    return dict(name=name, grid=NJOB, block=256, lds=4096, nv=96, na=0)


def gen_gemm(A, name, mode, KS, xbase, wbase, resbase=None, outbase=None, depth=None):
    NK = KS // 4
    D = min(depth or NK, NK)
    ncb = 9 if mode == 'qkv' else 8
    grid = 32 * ncb
    L = name[:-7]
    kernel_begin(A, name)
    A(f's_cmp_ge_u32 s2, {grid}')
    A(f's_cbranch_scc1 {L}_end')
    ws_srd(A, 8)
    if mode == 'out':
        A('s_load_dwordx2 s[12:13], s[0:1], 72')
        A(f's_mov_b32 s14, {2048 * 512 * 2}')
        A('s_mov_b32 s15, 0x20000')
    A('v_and_b32 v1, 63, v0')
    A('v_lshrrev_b32 v2, 6, v0')
    A('v_lshlrev_b32 v3, 4, v1')
    A('v_readfirstlane_b32 s20, v2')
    A('s_and_b32 s21, s2, 7')
    A('s_lshr_b32 s22, s2, 3')
    A('s_and_b32 s23, s22, 3')
    A('s_lshl_b32 s21, s21, 2')
    A('s_add_u32 s21, s21, s23')
    A('s_lshr_b32 s22, s22, 2')
    A('s_and_b32 s23, s20, 1')
    A('s_lshr_b32 s24, s20, 1')
    A('s_lshl_b32 s25, s21, 1')
    A('s_add_u32 s25, s25, s23')
    A('s_lshl_b32 s26, s22, 1')
    A('s_add_u32 s26, s26, s24')
    A('s_xor_b32 s27, s25, 1')
    A('s_xor_b32 s28, s26, 1')
    A(f's_mul_i32 s29, s20, {NK * KB}')
    for (reg, t, base) in ((4, 25, xbase), (5, 27, xbase), (6, 26, wbase), (7, 28, wbase)):
        A(f's_mul_i32 s30, {s(t)}, {KS * KB}')
        A('s_add_u32 s30, s30, s29')
        A(f's_add_u32 s30, s30, {base}')
        A(f'v_add_u32 {v(reg)}, s30, v3')
    ngrp = (NK + 3) // 4
    for g in range(1, ngrp):
        A(f's_mov_b32 {s(40 + g)}, {g * 4096}')
    ACC = 16
    RING = ACC + 64
    EX = RING + D * 16
    for r in range(64):
        A(f'v_mov_b32 {v(ACC + r)}, 0')
    if mode == 'qkv':
        for r in range(8, 12):
            A(f'v_mov_b32 {v(r)}, 0')
        A('v_mov_b32 v12, 0x3f803f80')
    A('s_waitcnt lgkmcnt(0)')

    def loads(i):
        slot = RING + (i % D) * 16
        so = '0' if i // 4 == 0 else s(40 + i // 4)
        off = (i % 4) * 1024
        for q in range(4):
            A(f'buffer_load_dwordx4 {v(slot + q * 4, 4)}, {v(4 + q)}, s[8:11], {so} offen offset:{off}')

    for i in range(D):
        loads(i)
    nex = 0
    if mode == 'qkv':
        A('v_lshrrev_b32 v13, 5, v1')
        A('v_lshlrev_b32 v13, 4, v13')
        A('s_lshl_b32 s30, s26, 7')
        A(f's_add_u32 s30, s30, {CSQKV}')
        exl = [f'buffer_load_dwordx4 {v(EX + g * 4, 4)}, v13, s[8:11], s30 offen offset:{g * 32}' for g in range(4)]
    else:
        A('s_lshl_b32 s30, s25, 15')
        A('s_lshl_b32 s31, s26, 11')
        A('s_add_u32 s30, s30, s31')
        A(f's_add_u32 s31, s30, {resbase}')
        exl = [f'buffer_load_dwordx4 {v(EX + e * 4, 4)}, v3, s[8:11], s31 offen offset:{e * 1024}' for e in range(2)]
    issued_ex = False
    for i in range(NK):
        later = (min(i + D - 1, NK - 1) - i) * 4
        if not issued_ex and i + D - 1 >= NK - 1:
            for x in exl:
                A(x)
            issued_ex = True
            nex = len(exl)
        A(f's_waitcnt vmcnt({later + nex})')
        slot = RING + (i % D) * 16
        X0, X1, W0, W1 = slot, slot + 4, slot + 8, slot + 12
        mf = [(0, W0, X0), (1, W0, X1), (2, W1, X0), (3, W1, X1)]
        for q, wv, xv in mf:
            A(f'v_mfma_f32_32x32x16_bf16 {v(ACC + q * 16, 16)}, {v(wv, 4)}, {v(xv, 4)}, {v(ACC + q * 16, 16)}')
            if mode == 'qkv' and q < 2:
                xs = X0 if q == 0 else X1
                for m in range(4):
                    A(f'v_dot2_f32_bf16 {v(8 + q * 2)}, {v(xs + m)}, v12, {v(8 + q * 2)}')
                    A(f'v_dot2_f32_bf16 {v(9 + q * 2)}, {v(xs + m)}, {v(xs + m)}, {v(9 + q * 2)}')
        if i + D < NK:
            loads(i + D)
    for q in range(1, 4):
        A(f's_xor_b32 s32, s20, {q}')
        A(f's_mul_i32 s32, s32, {12 * KB}')
        A(f's_add_u32 s32, s32, {(q - 1) * 4 * KB}')
        A(f'v_add_u32 {v(4 + q)}, s32, v3')
    A(f's_mul_i32 s32, s20, {12 * KB}')
    A('v_add_u32 v4, s32, v3')
    if mode == 'qkv':
        A('v_lshlrev_b32 v13, 3, v1')
        A('s_lshl_b32 s32, s20, 9')
        A('s_lshl_b32 s33, s23, 11')
        A('s_add_u32 s34, s32, s33')
        A('s_xor_b32 s35, s34, 2048')
        A('v_add_u32 v14, s34, v13')
        A('v_add_u32 v15, s35, v13')
        A(f'ds_write_b64 v14, v[8:9] offset:{48 * KB}')
        A(f'ds_write_b64 v15, v[10:11] offset:{48 * KB}')
        A('v_add_u32 v14, s33, v13')
        A('v_xor_b32 v15, 256, v14')
    A('s_nop 7')
    for q in range(1, 4):
        for g in range(4):
            A(f'ds_write_b128 {v(4 + q)}, {v(ACC + q * 16 + g * 4, 4)} offset:{g * 1024}')
    A('s_waitcnt lgkmcnt(0)')
    A('s_barrier')
    for q in range(1, 4):
        for g in range(4):
            A(f'ds_read_b128 {v(ACC + q * 16 + g * 4, 4)}, v4 offset:{(q - 1) * 4096 + g * 1024}')
    T = RING
    if mode == 'qkv':
        A('s_waitcnt lgkmcnt(6)')
        for ww in range(4):
            A(f'ds_read_b64 {v(T + ww * 4, 2)}, v14 offset:{48 * KB + ww * 512}')
            A(f'ds_read_b64 {v(T + ww * 4 + 2, 2)}, v15 offset:{48 * KB + ww * 512}')
    A('s_waitcnt lgkmcnt(0)')
    for r in range(16):
        A(f'v_add_f32 {v(ACC + r)}, {v(ACC + r)}, {v(ACC + 16 + r)}')
        A(f'v_add_f32 {v(ACC + 32 + r)}, {v(ACC + 32 + r)}, {v(ACC + 48 + r)}')
    for r in range(16):
        A(f'v_add_f32 {v(ACC + r)}, {v(ACC + r)}, {v(ACC + 32 + r)}')
    P = ACC + 16
    if mode == 'qkv':
        for st in (8, 4, 2):
            for e in range(st):
                A(f'v_add_f32 {v(T + e)}, {v(T + e)}, {v(T + e + st)}')
        A(f'v_mul_f32 {v(T)}, {f32(1.0 / 512)}, {v(T)}')
        A(f'v_mul_f32 {v(T + 1)}, {f32(1.0 / 512)}, {v(T + 1)}')
        A(f'v_fma_f32 {v(T + 1)}, -{v(T)}, {v(T)}, {v(T + 1)}')
        A(f'v_max_f32 {v(T + 1)}, 0, {v(T + 1)}')
        A(f'v_add_f32 {v(T + 1)}, {f32(1e-5)}, {v(T + 1)}')
        A(f'v_rsq_f32 {v(T + 1)}, {v(T + 1)}')
        A('s_cmp_eq_u32 s22, 8')
        A(f's_cselect_b32 s33, 1.0, {f32(QSCALE)}')
        A(f'v_mul_f32 {v(T + 1)}, s33, {v(T + 1)}')
        A('s_waitcnt vmcnt(0)')
        for r in range(16):
            A(f'v_fma_f32 {v(ACC + r)}, -{v(T)}, {v(EX + r)}, {v(ACC + r)}')
        for r in range(16):
            A(f'v_mul_f32 {v(ACC + r)}, {v(T + 1)}, {v(ACC + r)}')
        for m in range(8):
            A(f'v_cvt_pk_bf16_f32 {v(P + m)}, {v(ACC + 2 * m)}, {v(ACC + 2 * m + 1)}')
        A(f's_cbranch_scc1 {L}_kv')
        A('s_lshl_b32 s30, s25, 15')
        A('s_lshl_b32 s31, s26, 11')
        A('s_add_u32 s30, s30, s31')
        A(f's_add_u32 s30, s30, {QF}')
        A(f'buffer_store_dwordx4 {v(P, 4)}, v3, s[8:11], s30 offen')
        A(f'buffer_store_dwordx4 {v(P + 4, 4)}, v3, s[8:11], s30 offen offset:1024')
        A('s_endpgm')
        A.label(f'{L}_kv')
        A('s_cmp_lg_u32 s24, 0')
        A(f's_cbranch_scc1 {L}_end')
        A(f's_mul_i32 s30, s25, {KVT}')
        A(f's_add_u32 s30, s30, {KVF}')
        A(f'buffer_store_dwordx4 {v(P, 4)}, v3, s[8:11], s30 offen')
        A('v_bfe_u32 v4, v1, 4, 1')
        A('v_mul_u32_u24 v4, 528, v4')
        A('v_bfe_u32 v5, v1, 2, 1')
        A('v_lshl_add_u32 v4, v5, 8, v4')
        A('v_and_b32 v5, 3, v1')
        A('v_lshl_add_u32 v4, v5, 1, v4')
        A('v_bfe_u32 v5, v1, 3, 1')
        A('v_lshl_add_u32 v4, v5, 3, v4')
        A('v_lshrrev_b32 v5, 5, v1')
        A('v_lshl_add_u32 v4, v5, 6, v4')
        for r in range(8):
            d = (r % 4) + 8 * (r // 4)
            op = 'buffer_store_short' if r % 2 == 0 else 'buffer_store_short_d16_hi'
            A(f'{op} {v(P + 4 + r // 2)}, v4, s[8:11], s30 offen offset:{1024 + d * 16}')
        for r in range(4):
            A(f'v_mov_b32 {v(8 + r)}, 0x3f803f80')
        A('v_mul_u32_u24 v4, 528, v1')
        A('v_cmp_gt_u32 vcc, 2, v1')
        A('s_and_saveexec_b64 s[34:35], vcc')
        A(f'buffer_store_dwordx4 v[8:11], v4, s[8:11], s30 offen offset:{1024 + 512}')
    else:
        A('s_waitcnt vmcnt(0)')
        for m in range(8):
            A(f'v_lshlrev_b32 {v(T + 2 * m)}, 16, {v(EX + m)}')
            A(f'v_and_b32 {v(T + 2 * m + 1)}, 0xffff0000, {v(EX + m)}')
        for r in range(16):
            A(f'v_add_f32 {v(ACC + r)}, {v(ACC + r)}, {v(T + r)}')
        for m in range(8):
            A(f'v_cvt_pk_bf16_f32 {v(P + m)}, {v(ACC + 2 * m)}, {v(ACC + 2 * m + 1)}')
        if mode == 'res':
            A(f's_add_u32 s31, s30, {outbase}')
            A(f'buffer_store_dwordx4 {v(P, 4)}, v3, s[8:11], s31 offen')
            A(f'buffer_store_dwordx4 {v(P + 4, 4)}, v3, s[8:11], s31 offen offset:1024')
        else:
            A('v_and_b32 v4, 31, v1')
            A('v_lshlrev_b32 v4, 10, v4')
            A('v_lshrrev_b32 v5, 5, v1')
            A('v_lshl_add_u32 v4, v5, 4, v4')
            A('s_lshl_b32 s30, s25, 15')
            A('s_lshl_b32 s31, s26, 6')
            A('s_add_u32 s30, s30, s31')
            for e in range(2):
                A(f'v_permlane32_swap_b32 {v(P + e * 4)}, {v(P + e * 4 + 2)}')
                A(f'v_permlane32_swap_b32 {v(P + e * 4 + 1)}, {v(P + e * 4 + 3)}')
            for e in range(2):
                A(f'buffer_store_dwordx4 {v(P + e * 4, 4)}, v4, s[12:15], s30 offen offset:{e * 32}')
    A.label(f'{L}_end')
    A('s_endpgm')
    nv = EX + 16
    return dict(name=name, grid=grid, block=256, lds=52 * KB, nv=nv, na=0)


def gen_attn2(A):
    name = 'attn_kernel'
    kernel_begin(A, name)
    A('s_cmp_ge_u32 s2, 256')
    A('s_cbranch_scc1 at_end')
    ws_srd(A, 8)
    A('v_and_b32 v1, 63, v0')
    A('v_lshrrev_b32 v2, 6, v0')
    A('v_lshlrev_b32 v3, 4, v1')
    A('v_readfirstlane_b32 s20, v2')
    A('s_and_b32 s21, s2, 7')
    A('s_lshl_b32 s21, s21, 3')
    A('s_bfe_u32 s22, s2, 0x30003')
    A('s_add_u32 s21, s21, s22')
    A('s_lshr_b32 s22, s2, 6')
    A('s_lshl_b32 s22, s22, 3')
    A('s_add_u32 s22, s22, s20')
    A('s_lshl_b32 s23, s21, 5')
    A('s_add_u32 s23, s23, s22')
    A('s_lshl_b32 s23, s23, 10')
    A(f's_add_u32 s24, s23, {QF}')
    A(f's_add_u32 s25, s23, {OF}')
    Q, CN, S0, S1, O, P, KF, VF, VK, VV, T = 4, 8, 24, 40, 56, 72, 80, 88, 104, 105, 106
    S = [S0, S1]
    A('s_waitcnt lgkmcnt(0)')
    A(f'buffer_load_dwordx4 {v(Q, 4)}, v3, s[8:11], s24 offen')
    A('s_lshl_b32 s26, s20, 10')
    A(f's_add_u32 s27, s26, {KVF}')
    NR = 17
    for r in range(NR):
        A(f's_add_u32 m0, s26, {r * 8192}')
        A(f's_add_u32 s28, s27, {r * 8192}')
        A('buffer_load_dwordx4 v3, s[8:11], s28 offen lds')
    A(f'v_mov_b32 {v(VK)}, v3')
    A(f'v_and_b32 {v(T)}, 15, v1')
    A(f'v_lshrrev_b32 {v(T + 1)}, 5, v1')
    A(f'v_lshl_add_u32 {v(T)}, {v(T + 1)}, 4, {v(T)}')
    A(f'v_lshlrev_b32 {v(T)}, 4, {v(T)}')
    A(f'v_and_b32 {v(T + 1)}, 31, v1')
    A(f'v_cmp_eq_u32 vcc, 16, {v(T + 1)}')
    A(f'v_mov_b32 {v(T + 2)}, 512')
    A('s_nop 0')
    A(f'v_cndmask_b32 {v(T)}, {v(T)}, {v(T + 2)}, vcc')
    A(f'v_add_u32 {v(VV)}, 1024, {v(T)}')
    for r in range(16):
        A(f'v_mov_b32 {v(O + r)}, 0')
    A(f's_waitcnt vmcnt({NR - 3})')
    A('s_barrier')

    def rdK(buf, t):
        A(f'ds_read_b128 {v(KF + buf * 4, 4)}, {v(VK)} offset:{t * KVT}')

    def rdV(buf, t):
        A(f'ds_read_b128 {v(VF + buf * 8, 4)}, {v(VV)} offset:{t * KVT}')
        A(f'ds_read_b128 {v(VF + buf * 8 + 4, 4)}, {v(VV)} offset:{t * KVT + 528}')

    rdK(0, 0)
    rdK(1, 1)
    rdV(0, 0)
    A('s_waitcnt lgkmcnt(3)')
    A(f'v_mfma_f32_32x32x16_bf16 {v(S0, 16)}, {v(KF, 4)}, {v(Q, 4)}, 0')
    A('s_nop 11')
    A(f'v_max3_f32 {v(T)}, {v(S0)}, {v(S0 + 1)}, {v(S0 + 2)}')
    for r in range(3, 15, 2):
        A(f'v_max3_f32 {v(T)}, {v(T)}, {v(S0 + r)}, {v(S0 + r + 1)}')
    A(f'v_max_f32 {v(T)}, {v(T)}, {v(S0 + 15)}')
    A(f'v_mov_b32 {v(T + 1)}, {v(T)}')
    A('s_nop 1')
    A(f'v_permlane32_swap_b32 {v(T)}, {v(T + 1)}')
    A(f'v_max_f32 {v(T)}, {v(T)}, {v(T + 1)}')
    for r in range(16):
        A(f'v_sub_f32 {v(CN + r)}, 0, {v(T)}')
    for r in range(16):
        A(f'v_sub_f32 {v(S0 + r)}, {v(S0 + r)}, {v(T)}')

    def body(t, last=False):
        cur, nxt = t & 1, (t + 1) & 1
        Sc, Sn = S[cur], S[nxt]
        A('s_waitcnt lgkmcnt(2)')
        A(f'v_mfma_f32_32x32x16_bf16 {v(Sn, 16)}, {v(KF + nxt * 4, 4)}, {v(Q, 4)}, {v(CN, 16)}')
        rdK(cur, t + 2)
        for r in range(8):
            A(f'v_exp_f32 {v(Sc + r)}, {v(Sc + r)}')
        for m in range(3):
            A(f'v_cvt_pk_bf16_f32 {v(P + m)}, {v(Sc + 2 * m)}, {v(Sc + 2 * m + 1)}')
        A(f'v_cvt_pk_bf16_f32 {v(P + 3)}, {v(Sc + 6)}, {v(Sc + 7)}')
        A(f'v_exp_f32 {v(Sc + 8)}, {v(Sc + 8)}')
        A(f'v_exp_f32 {v(Sc + 9)}, {v(Sc + 9)}')
        A('s_waitcnt lgkmcnt(1)')
        A(f'v_mfma_f32_32x32x16_bf16 {v(O, 16)}, {v(VF + cur * 8, 4)}, {v(P, 4)}, {v(O, 16)}')
        rdV(nxt, t + 1)
        for r in range(10, 16):
            A(f'v_exp_f32 {v(Sc + r)}, {v(Sc + r)}')
        for m in range(4, 8):
            A(f'v_cvt_pk_bf16_f32 {v(P + m)}, {v(Sc + 2 * m)}, {v(Sc + 2 * m + 1)}')
        A('s_nop 1')
        A(f'v_mfma_f32_32x32x16_bf16 {v(O, 16)}, {v(VF + cur * 8 + 4, 4)}, {v(P + 4, 4)}, {v(O, 16)}')

    UN = 8
    A('s_mov_b32 s30, 0')
    A.label('at_loop')
    for t in range(UN):
        body(t)
    A(f'v_add_u32 {v(VK)}, {UN * KVT}, {v(VK)}')
    A(f'v_add_u32 {v(VV)}, {UN * KVT}, {v(VV)}')
    A('s_cmp_lg_u32 s30, 0')
    A('s_cbranch_scc1 at_nobar')
    A('s_waitcnt vmcnt(0)')
    A('s_barrier')
    A.label('at_nobar')
    A('s_add_u32 s30, s30, 1')
    A(f's_cmp_lt_u32 s30, {64 // UN}')
    A('s_cbranch_scc1 at_loop')
    A('s_waitcnt lgkmcnt(0)')
    A('s_nop 11')
    A.label('at_fin')
    A(f'v_mov_b32 {v(T)}, {v(O + 8)}')
    A(f'v_mov_b32 {v(T + 1)}, {v(O + 8)}')
    A('s_nop 1')
    A(f'v_permlane32_swap_b32 {v(T)}, {v(T + 1)}')
    A(f'v_mul_f32 {v(T + 2)}, 0, {v(O)}')
    for r in range(1, 8):
        A(f'v_fma_f32 {v(T + 2)}, {v(O + r)}, 0, {v(T + 2)}')
    A(f'v_add_f32 {v(T + 2)}, {v(T + 2)}, {v(T)}')
    A(f'v_mov_b32 {v(T + 3)}, {f32(2.0 ** 30)}')
    A(f'v_cmp_nle_f32 vcc, {v(T + 2)}, {v(T + 3)}')
    A('s_cmp_eq_u32 s30, 99')
    A('s_cbranch_scc1 at_store')
    A('s_nop 1')
    A('s_cbranch_vccnz at_slow')
    A.label('at_store')
    A(f'v_rcp_f32 {v(T)}, {v(T)}')
    A('s_nop 0')
    for r in range(8):
        A(f'v_mul_f32 {v(O + r)}, {v(T)}, {v(O + r)}')
    for m in range(4):
        A(f'v_cvt_pk_bf16_f32 {v(P + m)}, {v(O + 2 * m)}, {v(O + 2 * m + 1)}')
    A(f'buffer_store_dwordx4 {v(P, 4)}, v3, s[8:11], s25 offen')
    A.label('at_end')
    A('s_endpgm')

    A.label('at_slow')
    A(f'v_subrev_u32 {v(VK)}, {64 * KVT}, {v(VK)}')
    A(f'v_subrev_u32 {v(VV)}, {64 * KVT}, {v(VV)}')
    for r in range(16):
        A(f'v_mov_b32 {v(O + r)}, 0')
    M = T + 4
    A(f'v_sub_f32 {v(M)}, 0, {v(CN)}')
    A('s_mov_b32 s30, 0')
    A.label('at_sloop')
    rdK(0, 0)
    rdV(0, 0)
    A('s_waitcnt lgkmcnt(0)')
    A(f'v_mfma_f32_32x32x16_bf16 {v(S0, 16)}, {v(KF, 4)}, {v(Q, 4)}, 0')
    A('s_nop 11')
    A(f'v_max3_f32 {v(T)}, {v(S0)}, {v(S0 + 1)}, {v(S0 + 2)}')
    for r in range(3, 15, 2):
        A(f'v_max3_f32 {v(T)}, {v(T)}, {v(S0 + r)}, {v(S0 + r + 1)}')
    A(f'v_max3_f32 {v(T)}, {v(T)}, {v(S0 + 15)}, {v(M)}')
    A(f'v_mov_b32 {v(T + 1)}, {v(T)}')
    A('s_nop 1')
    A(f'v_permlane32_swap_b32 {v(T)}, {v(T + 1)}')
    A(f'v_max_f32 {v(T)}, {v(T)}, {v(T + 1)}')
    A(f'v_sub_f32 {v(T + 1)}, {v(M)}, {v(T)}')
    A(f'v_exp_f32 {v(T + 1)}, {v(T + 1)}')
    A(f'v_mov_b32 {v(M)}, {v(T)}')
    for r in range(16):
        A(f'v_sub_f32 {v(S0 + r)}, {v(S0 + r)}, {v(T)}')
    for r in range(16):
        A(f'v_exp_f32 {v(S0 + r)}, {v(S0 + r)}')
    for r in range(16):
        A(f'v_mul_f32 {v(O + r)}, {v(T + 1)}, {v(O + r)}')
    for m in range(8):
        A(f'v_cvt_pk_bf16_f32 {v(P + m)}, {v(S0 + 2 * m)}, {v(S0 + 2 * m + 1)}')
    A('s_nop 1')
    A(f'v_mfma_f32_32x32x16_bf16 {v(O, 16)}, {v(VF, 4)}, {v(P, 4)}, {v(O, 16)}')
    A(f'v_mfma_f32_32x32x16_bf16 {v(O, 16)}, {v(VF + 4, 4)}, {v(P + 4, 4)}, {v(O, 16)}')
    A(f'v_add_u32 {v(VK)}, {KVT}, {v(VK)}')
    A(f'v_add_u32 {v(VV)}, {KVT}, {v(VV)}')
    A('s_nop 11')
    A('s_add_u32 s30, s30, 1')
    A('s_cmp_lt_u32 s30, 64')
    A('s_cbranch_scc1 at_sloop')
    A('s_mov_b32 s30, 99')
    A('s_branch at_fin')
    return dict(name=name, grid=256, block=512, lds=139264 + 4096, nv=112, na=0)


def gen_gu(A):
    name = 'gu_kernel'
    grid = 224
    kernel_begin(A, name)
    A(f's_cmp_ge_u32 s2, {grid}')
    A('s_cbranch_scc1 gu_end')
    ws_srd(A, 8)
    A('v_and_b32 v1, 63, v0')
    A('v_lshrrev_b32 v2, 6, v0')
    A('v_lshlrev_b32 v3, 4, v1')
    A('v_readfirstlane_b32 s20, v2')
    A('s_and_b32 s21, s2, 7')
    A('s_lshr_b32 s22, s2, 3')
    A('s_and_b32 s23, s22, 1')
    A('s_lshl_b32 s21, s21, 1')
    A('s_add_u32 s21, s21, s23')
    A('s_lshr_b32 s22, s22, 1')
    A('s_lshl_b32 s23, s21, 2')
    A('s_lshl_b32 s24, s22, 3')
    A('s_lshl_b32 s25, s20, 1')
    A('s_add_u32 s24, s24, s25')
    A('s_add_u32 s25, s23, s20')
    A('s_lshl_b32 s25, s25, 15')
    A(f's_add_u32 s25, s25, {XB}')
    A('v_add_u32 v4, s25, v3')
    A('s_lshl_b32 s26, s24, 15')
    A(f's_add_u32 s26, s26, {WGUP}')
    A('v_add_u32 v5, s26, v3')
    A('v_add_u32 v6, 32768, v5')
    for g in range(1, 8):
        A(f's_mov_b32 {s(40 + g)}, {g * 4096}')
    A('s_lshl_b32 s27, s20, 15')
    for q in range(4):
        A(f's_xor_b32 s28, s20, {q}')
        A('s_lshl_b32 s28, s28, 15')
        A(f'v_add_u32 {v(8 + q)}, s28, v3')
    A('v_mov_b32 v12, 0')
    A('v_mov_b32 v13, 0')
    A('v_mov_b32 v14, 0x3f803f80')
    ACC = 16
    XF = ACC + 128
    CS = XF + 32
    T = CS + 32
    A('s_waitcnt lgkmcnt(0)')

    def chunk_loads(c):
        so = '0' if c == 0 else s(40 + c)
        A(f's_add_u32 m0, s27, {c * 4096}')
        A('s_nop 0')
        for k in range(4):
            A(f'buffer_load_dwordx4 v4, s[8:11], {so} offen offset:{k * 1024} lds')
        for k in range(4):
            ks = c * 4 + k
            A(f'buffer_load_dwordx4 {a(ks * 8, 4)}, v5, s[8:11], {so} offen offset:{k * 1024}')
            A(f'buffer_load_dwordx4 {a(ks * 8 + 4, 4)}, v6, s[8:11], {so} offen offset:{k * 1024}')

    PRE = 5
    for c in range(PRE):
        chunk_loads(c)
    for r in range(128):
        A(f'v_mov_b32 {v(ACC + r)}, 0')

    def rdX(buf, ks):
        for q in range(4):
            A(f'ds_read_b128 {v(XF + buf * 16 + q * 4, 4)}, {v(8 + q)} offset:{ks * 1024}')

    A('v_lshrrev_b32 v15, 5, v1')
    A('v_lshlrev_b32 v15, 4, v15')
    A('s_lshl_b32 s30, s24, 7')
    A(f's_add_u32 s30, s30, {CSGU}')
    issued = PRE
    for c in range(8):
        out_after = (issued - 1 - c) * 12 + (8 if issued == 8 and c >= 4 else 0)
        A(f's_waitcnt vmcnt({out_after})')
        A('s_barrier')
        if issued < 8:
            chunk_loads(issued)
            issued += 1
        if c == 3:
            for j in range(2):
                for g in range(4):
                    A(f'buffer_load_dwordx4 {v(CS + j * 16 + g * 4, 4)}, v15, s[8:11], s30 offen offset:{j * 128 + g * 32}')
        rdX(0, c * 4)
        for k in range(4):
            ks = c * 4 + k
            buf = k & 1
            if k < 3:
                rdX(buf ^ 1, ks + 1)
                A('s_waitcnt lgkmcnt(4)')
            else:
                A('s_waitcnt lgkmcnt(0)')
            for q in range(4):
                for j in range(2):
                    acc = ACC + (q * 2 + j) * 16
                    A(f'v_mfma_f32_32x32x16_bf16 {v(acc, 16)}, {a(ks * 8 + j * 4, 4)}, {v(XF + buf * 16 + q * 4, 4)}, {v(acc, 16)}')
                    if q < 2:
                        for m in range(2):
                            xs = XF + buf * 16 + (q * 2 + j) % 4
                            if m == 0:
                                A(f'v_dot2_f32_bf16 v12, {v(xs)}, v14, v12')
                            else:
                                A(f'v_dot2_f32_bf16 v13, {v(xs)}, {v(xs)}, v13')
    A('s_nop 2')
    A(f'v_mov_b32 {v(T)}, v12')
    A(f'v_mov_b32 {v(T + 1)}, v13')
    A('s_nop 1')
    A(f'v_permlane32_swap_b32 v12, {v(T)}')
    A(f'v_permlane32_swap_b32 v13, {v(T + 1)}')
    A(f'v_add_f32 v12, v12, {v(T)}')
    A(f'v_add_f32 v13, v13, {v(T + 1)}')
    A(f'v_mul_f32 v12, {f32(1.0 / 512)}, v12')
    A(f'v_mul_f32 v13, {f32(1.0 / 512)}, v13')
    A('v_fma_f32 v13, -v12, v12, v13')
    A('v_max_f32 v13, 0, v13')
    A(f'v_add_f32 v13, {f32(1e-5)}, v13')
    A('v_rcp_f32 v13, v13')
    A('v_sub_f32 v12, 0, v12')
    A(f'v_lshlrev_b32 {v(T)}, 3, v1')
    A('s_lshl_b32 s28, s20, 9')
    A(f's_add_u32 s28, s28, {128 * KB}')
    A(f'v_add_u32 {v(T + 1)}, s28, {v(T)}')
    A(f'ds_write_b64 {v(T + 1)}, v[12:13]')
    A('s_waitcnt lgkmcnt(0)')
    A('s_barrier')
    ST = T + 2
    for q in range(4):
        A(f'v_xor_b32 {v(T)}, {q * 512}, {v(T + 1)}')
        A(f'ds_read_b64 {v(ST + q * 2, 2)}, {v(T)}')
    A('s_waitcnt vmcnt(0) lgkmcnt(0)')
    P = XF
    for q in range(4):
        A(f's_xor_b32 s28, s20, {q}')
        A('s_add_u32 s28, s28, s23')
        A('s_mul_i32 s28, s28, 112')
        A('s_add_u32 s28, s28, s24')
        A('s_lshl_b32 s28, s28, 10')
        A(f's_add_u32 s28, s28, {HF}')
        for j in range(2):
            acc = ACC + (q * 2 + j) * 16
            st = v(ST + q * 2, 2)
            for r in range(0, 16, 2):
                A(f'v_pk_fma_f32 {v(acc + r, 2)}, {st}, {v(CS + j * 16 + r, 2)}, {v(acc + r, 2)} op_sel_hi:[0,1,1]')
            for r in range(0, 8, 2):
                A(f'v_pk_mul_f32 {v(acc + r, 2)}, {v(acc + r, 2)}, {v(acc + 8 + r, 2)}')
            for r in range(0, 8, 2):
                A(f'v_pk_mul_f32 {v(acc + r, 2)}, {v(acc + r, 2)}, {st} op_sel:[0,1] op_sel_hi:[1,1]')
            pp = P + ((q * 2 + j) % 8) * 4
            for m in range(4):
                A(f'v_cvt_pk_bf16_f32 {v(pp + m)}, {v(acc + 2 * m)}, {v(acc + 2 * m + 1)}')
            A(f'buffer_store_dwordx4 {v(pp, 4)}, v3, s[8:11], s28 offen offset:{j * 1024}')
    A.label('gu_end')
    A('s_endpgm')
    return dict(name=name, grid=grid, block=256, lds=130 * KB, nv=ST + 8, na=256)


def build():
    A = Asm()
    ks = {}
    ks['pack'] = gen_pack(A)
    ks['qkv'] = gen_gemm(A, 'qkv_kernel', 'qkv', 32, XA, WQKVP)
    ks['attn'] = gen_attn2(A)
    ks['wo'] = gen_gemm(A, 'wo_kernel', 'res', 32, OF, WOP, resbase=XA, outbase=XB)
    ks['gu'] = gen_gu(A)
    ks['dn'] = gen_gemm(A, 'dn_kernel', 'res', 112, HF, WDP, resbase=XB, outbase=XA, depth=10)
    ks['dno'] = gen_gemm(A, 'dno_kernel', 'out', 112, HF, WDP, resbase=XB, depth=10)
    order = ['pack', 'qkv', 'attn', 'wo', 'gu', 'dn', 'qkv', 'attn', 'wo', 'gu', 'dno']
    body = A.text()
    probs = lint(body)
    for p in probs:
        print('LINT:', p, file=sys.stderr)
    head = '; generated by gen/gen.py\n'
    for k in order:
        d = ks[k]
        head += f"; @launch kernel={d['name']} grid=({d['grid']},1,1) block=({d['block']},1,1) lds={d['lds']}\n"
    head += '.amdgcn_target "amdgcn-amd-amdhsa--gfx950"\n.text\n'
    tail = '.section .rodata,"a"\n'
    for k, d in ks.items():
        tail += '.p2align 6\n' + descriptor(d['name'], d['nv'], d['na'])
    return head + body + tail


if __name__ == '__main__':
    out = sys.argv[1] if len(sys.argv) > 1 else f'cdna_kernels/{NAME}.s'
    open(out, 'w').write(build())
    print('wrote', out)
```

```python
import re


class Asm:
    def __init__(self):
        self.lines = []

    def __call__(self, s):
        for ln in s.split('\n'):
            ln = ln.strip()
            if ln:
                self.lines.append('    ' + ln)

    def label(self, l):
        self.lines.append(l + ':')

    def raw(self, s):
        self.lines.append(s)

    def comment(self, s):
        self.lines.append('    ; ' + s)

    def text(self):
        return '\n'.join(self.lines) + '\n'


def v(i, n=1):
    return f'v{i}' if n == 1 else f'v[{i}:{i + n - 1}]'


def a(i, n=1):
    return f'a{i}' if n == 1 else f'a[{i}:{i + n - 1}]'


def s(i, n=1):
    return f's{i}' if n == 1 else f's[{i}:{i + n - 1}]'


_REG = re.compile(r'\b([vas])(\d+)\b|\b([vas])\[(\d+):(\d+)\]|\b(vcc|exec|m0|scc)\b')
TRANS = ('v_exp_', 'v_log_', 'v_rcp_', 'v_rsq_', 'v_sqrt_', 'v_sin_', 'v_cos_')


def regs_of(op):
    out = []
    for m in _REG.finditer(op):
        if m.group(1):
            out.append((m.group(1), int(m.group(2))))
        elif m.group(3):
            for i in range(int(m.group(4)), int(m.group(5)) + 1):
                out.append((m.group(3), i))
        else:
            out.append((m.group(6), 0))
    return out


def split_ops(rest):
    ops, depth, cur = [], 0, ''
    for ch in rest:
        if ch == '[':
            depth += 1
        elif ch == ']':
            depth -= 1
        if ch == ',' and depth == 0:
            ops.append(cur.strip())
            cur = ''
        else:
            cur += ch
    if cur.strip():
        ops.append(cur.strip())
    return ops


class Ins:
    __slots__ = ('text', 'mn', 'reads', 'writes', 'kind', 'ws', 'passes', 'srcc', 'srcab', 'storedata', 'lds')


def parse(line):
    t = line.split(';')[0].strip()
    if not t or t.endswith(':') or t.startswith('.'):
        return None
    parts = t.split(None, 1)
    mn = parts[0]
    rest = parts[1] if len(parts) > 1 else ''
    ops = split_ops(rest)
    I = Ins()
    I.text, I.mn = t, mn
    I.reads, I.writes = [], []
    I.ws = 1
    I.passes = 0
    I.srcc, I.srcab, I.storedata = [], [], []
    I.lds = False
    if mn == 's_nop':
        I.kind = 'nop'
        I.ws = int(ops[0], 0) + 1
        return I
    if mn.startswith('v_mfma') or mn.startswith('v_smfmac'):
        I.kind = 'mfma'
        I.writes = regs_of(ops[0])
        I.srcab = regs_of(ops[1]) + regs_of(ops[2])
        I.srcc = regs_of(ops[3].split()[0])
        I.reads = I.srcab + I.srcc
        I.passes = 8 if '32x32' in mn else 4
        return I
    if mn.startswith('v_'):
        I.kind = 'trans' if mn.startswith(TRANS) else 'valu'
        if mn.startswith('v_cmp'):
            I.writes = regs_of(ops[0])
            if mn.startswith('v_cmpx'):
                I.writes.append(('exec', 0))
            for o in ops[1:]:
                I.reads += regs_of(o)
        elif mn.startswith('v_permlane') and 'swap' in mn:
            I.writes = regs_of(ops[0]) + regs_of(ops[1])
            I.reads = list(I.writes)
        elif '_co_' in mn or mn.startswith('v_div_scale') or mn.startswith('v_mad_u64'):
            I.writes = regs_of(ops[0]) + regs_of(ops[1])
            for o in ops[2:]:
                I.reads += regs_of(o)
        else:
            I.writes = regs_of(ops[0])
            for o in ops[1:]:
                I.reads += regs_of(o)
            if mn.startswith(('v_fmac', 'v_dot2c', 'v_writelane')) or 'UNUSED_PRESERVE' in t:
                I.reads += I.writes
            if mn.startswith('v_cndmask') and len(ops) == 3:
                I.reads.append(('vcc', 0))
        return I
    if mn.startswith(('buffer_', 'global_', 'flat_')):
        I.kind = 'vmem'
        words = rest.replace(',', ' ').split()
        I.lds = 'lds' in words or '_lds_' in mn
        isstore = 'store' in mn or 'atomic' in mn
        if mn.startswith('buffer_') and ops and (mn.startswith('buffer_load') or mn.startswith('buffer_store') or mn.startswith('buffer_atomic')):
            if I.lds:
                for o in ops:
                    I.reads += regs_of(o)
                I.reads.append(('m0', 0))
            elif isstore:
                I.storedata = regs_of(ops[0])
                for o in ops:
                    I.reads += regs_of(o)
            else:
                I.writes = regs_of(ops[0])
                for o in ops[1:]:
                    I.reads += regs_of(o)
                if 'd16' in mn:
                    I.reads += I.writes
        elif mn.startswith('global_') and ops:
            if I.lds:
                for o in ops:
                    I.reads += regs_of(o)
                I.reads.append(('m0', 0))
            elif isstore:
                I.storedata = regs_of(ops[1])
                for o in ops:
                    I.reads += regs_of(o)
            else:
                I.writes = regs_of(ops[0])
                for o in ops[1:]:
                    I.reads += regs_of(o)
        if not ('x4' in mn or 'x3' in mn):
            I.storedata = []
        return I
    if mn.startswith('ds_'):
        I.kind = 'ds'
        if mn.startswith(('ds_read', 'ds_bpermute', 'ds_permute', 'ds_swizzle')) or '_rtn' in mn:
            I.writes = regs_of(ops[0])
            for o in ops[1:]:
                I.reads += regs_of(o)
        else:
            for o in ops:
                I.reads += regs_of(o)
        return I
    if mn.startswith('s_'):
        I.kind = 'salu'
        if mn.startswith(('s_cmp', 's_cbranch', 's_branch', 's_waitcnt', 's_barrier', 's_endpgm', 's_setprio', 's_sleep', 's_bitcmp', 's_setpc')):
            for o in ops:
                I.reads += regs_of(o)
        else:
            if ops:
                I.writes = regs_of(ops[0])
            for o in ops[1:]:
                I.reads += regs_of(o)
            if 'saveexec' in mn:
                I.writes.append(('exec', 0))
        return I
    raise ValueError('cannot parse: ' + line)


def _need(p, c):
    n = 0
    pw = set(p.writes)
    cr = set(c.reads)
    cw = set(c.writes)
    valu_p = p.kind in ('valu', 'trans')
    valu_c = c.kind in ('valu', 'trans')
    vecw = {r for r in pw if r[0] in 'va' and len(r[0]) == 1}
    sgw = {r for r in pw if r[0] in ('s', 'vcc')}
    if valu_p:
        if c.kind == 'mfma' and vecw & cr:
            n = max(n, 2)
        if c.kind == 'vmem' and sgw & cr:
            n = max(n, 5)
        if valu_c and sgw & cr:
            n = max(n, 4 if c.mn.startswith(('v_readlane', 'v_writelane')) else 2)
        if c.mn.startswith(('v_readlane', 'v_readfirstlane')) and vecw & cr:
            n = max(n, 1)
        if c.mn.startswith('v_permlane') and vecw & cr:
            n = max(n, 2)
        if valu_c and ('dpp' in c.text or 'row_' in c.text or 'quad_perm' in c.text) and vecw & cr:
            n = max(n, 2)
        if p.kind == 'trans' and c.kind in ('valu', 'mfma') and vecw & cr:
            n = max(n, 1)
        if ('sdwa' in p.mn or 'op_sel' in p.text) and valu_c and vecw & (cr | cw):
            n = max(n, 1)
        if p.mn.startswith('v_dot') and valu_c and vecw & (cr | cw):
            same_c = (p.mn == c.mn)
            n = max(n, 0 if same_c else 3)
        if p.mn.startswith('v_dot') and c.kind in ('ds', 'vmem', 'mfma') and vecw & cr:
            n = max(n, 3)
        if ('exec', 0) in pw:
            if c.kind == 'mfma':
                n = max(n, 4)
            if c.mn.startswith(('v_readlane', 'v_readfirstlane', 'v_writelane', 'v_permlane')):
                n = max(n, 4)
            if valu_c and ('dpp' in c.text or 'row_' in c.text):
                n = max(n, 5)
    if p.kind == 'mfma':
        big = {8: 12, 4: 8}[p.passes]
        if c.kind == 'mfma':
            if pw & set(c.srcab):
                n = max(n, big)
            if pw & set(c.srcc):
                if not (list(p.writes) == list(c.srcc) and p.passes == c.passes):
                    n = max(n, {8: 10, 4: 6}[p.passes])
            elif pw & cw:
                n = max(n, {8: 10, 4: 6}[p.passes])
        elif c.kind in ('valu', 'trans', 'vmem', 'ds'):
            if pw & (cr | cw):
                n = max(n, big)
        if valu_c and set(p.srcc) & cw:
            n = max(n, {8: 7, 4: 3}[p.passes])
    if p.kind == 'vmem' and p.storedata and set(p.storedata) & cw:
        n = max(n, 2 if valu_c else 1)
    if p.kind == 'salu' and ('m0', 0) in pw and c.kind == 'vmem' and c.lds:
        n = max(n, 1)
    return n


def lint(text):
    lines = text.split('\n')
    labels = {}
    ins = []
    for ln in lines:
        t = ln.split(';')[0].strip()
        if t.endswith(':') and not t.startswith('.amd'):
            labels[t[:-1]] = len(ins)
            continue
        if t.startswith('.'):
            continue
        I = parse(ln)
        if I is not None:
            ins.append(I)
    problems = []

    def check_seq(seq):
        for j, c in enumerate(seq):
            dist = 0
            for i in range(j - 1, max(-1, j - 24), -1):
                p = seq[i]
                if p.mn in ('s_endpgm', 's_branch', 's_setpc_b64'):
                    break
                need = _need(p, c)
                if need > dist:
                    problems.append(f'need {need} ws, have {dist}: [{p.text}] -> [{c.text}]')
                dist += p.ws
                if dist > 20:
                    break

    check_seq(ins)
    for j, I in enumerate(ins):
        if I.mn.startswith(('s_cbranch', 's_branch', 's_call')):
            tgt = I.text.split()[-1]
            if tgt in labels:
                k = labels[tgt]
                pre = ins[max(0, j - 24):j]
                for q in range(len(pre) - 1, -1, -1):
                    if pre[q].mn in ('s_endpgm', 's_branch', 's_setpc_b64'):
                        pre = pre[q + 1:]
                        break
                nopI = parse('s_nop 0')
                check_seq(pre + [nopI] + ins[k:k + 24])
    return sorted(set(problems))
```

```python
import sys
import math
import struct
from asmlib import Asm, v, a, s, lint

NAME = 'interleave_layers__grouped_kv_mqa__glu_gated_bilinear__prompt'

KB = 1024
WQKVP = 0
WOP = WQKVP + 17 * 32 * KB
WGUP = WOP + 16 * 32 * KB
WDP = WGUP + 112 * 32 * KB
CSQKV = WDP + 16 * 112 * KB
CSGU = CSQKV + 4 * KB
CSDUMMY = CSGU + 16 * KB
KVF = CSDUMMY + 4 * KB
XA = KVF + 144 * KB
XB = XA + 2048 * KB
QF = XB + 2048 * KB
OF = QF + 2048 * KB
HF = OF + 2048 * KB
WS_END = HF + 64 * 112 * KB
WS_SIZE = 268435456
VBS = 544
KVT = 1024 + 2 * VBS

QSCALE = 0.25 * math.log2(math.e)


def f32(x):
    return '0x%08x' % struct.unpack('<I', struct.pack('<f', x))[0]


def kernel_begin(A, name):
    A.raw('.p2align 8')
    A.raw(f'.globl {name}')
    A.raw(f'.type {name},@function')
    A.label(name)


def descriptor(name, nv, na=0, nsgpr=96):
    acc = (nv + 3) // 4 * 4
    total = acc + na if na else nv
    return f""".amdhsa_kernel {name}
  .amdhsa_next_free_vgpr {total}
  .amdhsa_next_free_sgpr {nsgpr}
  .amdhsa_accum_offset {acc}
  .amdhsa_group_segment_fixed_size 0
  .amdhsa_kernarg_size 96
  .amdhsa_user_sgpr_count 2
  .amdhsa_user_sgpr_kernarg_segment_ptr 1
  .amdhsa_system_sgpr_workgroup_id_x 1
  .amdhsa_float_denorm_mode_32 3
  .amdhsa_float_denorm_mode_16_64 3
.end_amdhsa_kernel
"""


STAMP = False
ATT_V = 2
ATT_PRIO = 2
ATT_ZROWS = 1
ATT_NOLDS = 0
ATT_ZQ = 0
ATT_NOMFMA = 0
STAMPS = 200 * 1024 * 1024
_kidx = [0]


def stamp(A, i):
    if STAMP:
        A('s_waitcnt lgkmcnt(0)')
        A(f's_memtime {s(64 + 2 * i, 2)}')
        A('s_waitcnt lgkmcnt(0)')


def stamp_begin(A):
    if STAMP:
        A('s_memrealtime s[92:93]')
        A('s_memtime s[64:65]')
        for i in range(1, 12):
            A(f's_mov_b32 {s(64 + 2 * i)}, 0')
        A('s_waitcnt lgkmcnt(0)')


def stamp_end(A, kidx, srd=8):
    if STAMP:
        A('s_waitcnt vmcnt(0) lgkmcnt(0)')
        A('s_memtime s[88:89]')
        A('s_memrealtime s[90:91]')
        A('s_waitcnt lgkmcnt(0)')
        A('s_mov_b64 exec, 1')
        A('s_lshl_b32 s94, s2, 10')
        A('s_lshl_b32 s95, s20, 6')
        A('s_add_u32 s94, s94, s95')
        A(f's_add_u32 s94, s94, {STAMPS + kidx * (1 << 20)}')
        A('v_mov_b32 v0, 0')
        for i in range(15):
            A(f'v_mov_b32 v1, {s(64 + 2 * i)}')
            A(f'buffer_store_dword v1, v0, {s(srd, 4)}, s94 offen offset:{i * 4}')
        A('s_waitcnt vmcnt(0)')


def ws_srd(A, d):
    A(f's_load_dwordx2 {s(d, 2)}, s[0:1], 88')
    A(f's_mov_b32 {s(d + 2)}, {WS_SIZE}')
    A(f's_mov_b32 {s(d + 3)}, 0x20000')


def gen_pack(A, zero=None, stats=None):
    name = 'pack_kernel'
    NJOB = 274
    kernel_begin(A, name)
    A(f's_cmp_ge_u32 s2, {NJOB}')
    A('s_cbranch_scc1 pk_end')
    A('s_load_dwordx16 s[32:47], s[0:1], 0')
    A('s_load_dwordx2 s[48:49], s[0:1], 64')
    ws_srd(A, 8)
    A('s_mov_b32 s7, 0x20000')
    A('v_and_b32 v1, 63, v0')
    A('v_lshrrev_b32 v2, 6, v0')
    A('s_nop 0')
    A('v_readfirstlane_b32 s20, v2')
    A('s_waitcnt lgkmcnt(0)')
    A('s_mov_b32 s15, 256')
    A('s_mov_b32 s17, 64')
    A('s_mov_b32 s18, 4')
    A('s_mov_b32 s19, 8')
    A(f's_mov_b32 s16, {CSDUMMY}')
    A('s_cmp_lt_u32 s2, 16')
    A('s_cbranch_scc1 pk_wq')
    A('s_cmp_lt_u32 s2, 18')
    A('s_cbranch_scc1 pk_kv')
    A('s_cmp_lt_u32 s2, 34')
    A('s_cbranch_scc1 pk_wo')
    A('s_cmp_lt_u32 s2, 146')
    A('s_cbranch_scc1 pk_gu')
    A('s_cmp_lt_u32 s2, 210')
    A('s_cbranch_scc1 pk_dn')
    A('s_branch pk_x')

    A.label('pk_wq')
    A('s_mov_b64 s[4:5], s[34:35]')
    A(f's_mov_b32 s6, {512 * 512 * 2}')
    A('s_mov_b32 s12, 1024')
    A('s_lshl_b32 s13, s2, 6')
    A('s_lshl_b32 s14, s2, 15')
    A(f's_add_u32 s14, s14, {WQKVP}')
    A('s_lshl_b32 s16, s2, 7')
    A(f's_add_u32 s16, s16, {CSQKV}')
    A('s_branch pk_go')

    A.label('pk_kv')
    A('s_sub_u32 s21, s2, 16')
    A('s_cmp_eq_u32 s21, 0')
    A('s_cselect_b32 s4, s36, s38')
    A('s_cselect_b32 s5, s37, s39')
    A(f's_mov_b32 s6, {512 * 16 * 2}')
    A('s_mov_b32 s12, 32')
    A('s_mov_b32 s13, 0')
    A('s_lshl_b32 s14, s21, 8')
    A(f's_add_u32 s14, s14, {WQKVP + 16 * 32 * KB}')
    A('s_lshl_b32 s16, s21, 6')
    A(f's_add_u32 s16, s16, {CSQKV + 512 * 4}')
    A('s_mov_b32 s19, 4')
    A('s_branch pk_go')

    A.label('pk_wo')
    A('s_sub_u32 s21, s2, 18')
    A('s_mov_b64 s[4:5], s[40:41]')
    A(f's_mov_b32 s6, {512 * 512 * 2}')
    A('s_mov_b32 s12, 1024')
    A('s_lshl_b32 s13, s21, 6')
    A('s_lshl_b32 s14, s21, 15')
    A(f's_add_u32 s14, s14, {WOP}')
    A('s_branch pk_go')

    A.label('pk_gu')
    A('s_sub_u32 s21, s2, 34')
    A('s_cmp_ge_u32 s21, 56')
    A('s_cselect_b32 s4, s46, s44')
    A('s_cselect_b32 s5, s47, s45')
    A('s_cselect_b32 s22, 1, 0')
    A('s_cselect_b32 s23, 56, 0')
    A('s_sub_u32 s21, s21, s23')
    A(f's_mov_b32 s6, {512 * 1792 * 2}')
    A('s_mov_b32 s12, 3584')
    A('s_lshl_b32 s13, s21, 6')
    A('s_lshl_b32 s14, s21, 16')
    A('s_lshl_b32 s23, s22, 8')
    A('s_add_u32 s14, s14, s23')
    A(f's_add_u32 s14, s14, {WGUP}')
    A('s_mov_b32 s15, 32768')
    A('s_lshl_b32 s16, s21, 8')
    A('s_lshl_b32 s23, s22, 6')
    A('s_add_u32 s16, s16, s23')
    A(f's_add_u32 s16, s16, {CSGU}')
    A('s_mov_b32 s17, 128')
    A('s_branch pk_go')

    A.label('pk_dn')
    A('s_sub_u32 s21, s2, 146')
    A('s_and_b32 s22, s21, 15')
    A('s_lshr_b32 s23, s21, 4')
    A('s_mov_b64 s[4:5], s[48:49]')
    A(f's_mov_b32 s6, {1792 * 512 * 2}')
    A('s_mov_b32 s12, 1024')
    A('s_lshl_b32 s13, s22, 6')
    A('s_lshl_b32 s24, s23, 19')
    A('s_add_u32 s13, s13, s24')
    A(f's_mul_i32 s14, s22, {112 * KB}')
    A('s_lshl_b32 s24, s23, 15')
    A('s_add_u32 s14, s14, s24')
    A(f's_add_u32 s14, s14, {WDP}')
    A('s_cmp_eq_u32 s23, 3')
    A('s_cselect_b32 s18, 2, 4')

    A.label('pk_go')
    A('v_and_b32 v3, 7, v1')
    A('v_bfe_u32 v4, v1, 3, 2')
    A('v_lshrrev_b32 v5, 5, v1')
    A('v_mov_b32 v60, 0')
    A('v_mov_b32 v61, 0')
    A('v_mov_b32 v62, 0')
    A('v_mov_b32 v63, 0')
    A('v_lshlrev_b32 v12, 4, v0')
    A('s_cmp_ge_u32 s20, s18')
    A('s_cbranch_scc1 pk_cs')
    A('v_lshlrev_b32 v6, 4, v4')
    A('v_lshl_add_u32 v6, v5, 2, v6')
    A('v_lshl_add_u32 v6, v2, 7, v6')
    A('v_mul_lo_u32 v6, v6, s12')
    A('v_lshl_add_u32 v6, v3, 3, v6')
    A('v_lshrrev_b32 v7, 2, v3')
    A('v_mul_lo_u32 v7, v7, s15')
    A('v_and_b32 v8, 3, v3')
    A('v_lshl_add_u32 v7, v8, 6, v7')
    A('v_lshl_add_u32 v7, v5, 9, v7')
    A('v_lshl_add_u32 v7, v4, 10, v7')
    A('v_lshl_add_u32 v7, v2, 13, v7')
    A('v_cmp_gt_u32 vcc, s19, v3')
    A('s_and_saveexec_b64 s[26:27], vcc')
    A('s_mov_b32 s28, 0x05040100')
    A('s_mov_b32 s29, 0x07060302')
    A('v_mov_b32 v9, 0x3f803f80')
    rows = [0, 1, 2, 3, 8, 9, 10, 11]
    for pp in range(2):
        for j in range(8):
            r = pp * 64 + rows[j]
            A(f's_mul_i32 s21, s12, {r}')
            A('s_add_u32 s21, s21, s13')
            A(f'buffer_load_dwordx2 {v(16 + (pp * 8 + j) * 2, 2)}, v6, s[4:7], s21 offen')
    A('s_add_u32 s25, s14, 4096')
    for pp in range(2):
        A(f's_waitcnt vmcnt({8 if pp == 0 else 4})')
        for i in range(4):
            d, half = i // 2, i % 2
            o = 64 + (pp * 4 + i) * 4
            for m in range(4):
                lo = 16 + (pp * 8 + 2 * m) * 2 + d
                hi = 16 + (pp * 8 + 2 * m + 1) * 2 + d
                A(f'v_perm_b32 {v(o + m)}, {v(hi)}, {v(lo)}, {"s28" if half == 0 else "s29"}')
            A(f'buffer_store_dwordx4 {v(o, 4)}, v7, s[8:11], {"s14" if pp == 0 else "s25"} offen offset:{i * 16}')
            for m in range(4):
                A(f'v_dot2_f32_bf16 {v(60 + i)}, {v(o + m)}, v9, {v(60 + i)}')
    A('s_mov_b64 exec, s[26:27]')
    A.label('pk_cs')
    A('s_nop 3')
    A('ds_write_b128 v12, v[60:63]')
    A('s_waitcnt lgkmcnt(0)')
    A('s_barrier')
    A('s_cmp_lg_u32 s20, 0')
    A('s_cbranch_scc1 pk_end')
    A('s_lshl_b32 s19, s19, 2')
    A('v_cmp_gt_u32 vcc, s19, v1')
    A('s_and_saveexec_b64 s[26:27], vcc')
    A('v_lshlrev_b32 v12, 2, v1')
    for e in range(32):
        A(f'ds_read_b32 {v(16 + e)}, v12 offset:{e * 128}')
        if e == 14:
            A('s_waitcnt lgkmcnt(0)')
        if e == 29:
            A('s_waitcnt lgkmcnt(0)')
    A('v_lshrrev_b32 v13, 4, v1')
    A('v_mul_lo_u32 v13, v13, s17')
    A('v_and_b32 v14, 15, v1')
    A('v_lshl_add_u32 v13, v14, 2, v13')
    A('s_waitcnt lgkmcnt(0)')
    for st in (16, 8, 4, 2, 1):
        for e in range(st):
            A(f'v_add_f32 {v(16 + e)}, {v(16 + e)}, {v(16 + e + st)}')
    A('buffer_store_dword v16, v13, s[8:11], s16 offen')
    A('s_endpgm')

    A.label('pk_x')
    A('s_sub_u32 s21, s2, 210')
    A('s_mov_b64 s[4:5], s[32:33]')
    A(f's_mov_b32 s6, {2048 * 512 * 2}')
    A('v_and_b32 v3, 31, v1')
    A('v_lshrrev_b32 v5, 5, v1')
    A('v_lshlrev_b32 v6, 10, v3')
    A('v_lshl_add_u32 v6, v5, 3, v6')
    A('v_lshl_add_u32 v6, v2, 8, v6')
    A('s_lshl_b32 s13, s21, 15')
    A('v_lshlrev_b32 v7, 4, v1')
    A('v_lshl_add_u32 v7, v2, 13, v7')
    A(f's_add_u32 s14, s13, {XA}')
    A('s_add_u32 s25, s14, 4096')
    for j in range(8):
        A(f'buffer_load_dwordx2 {v(16 + j * 4, 2)}, v6, s[4:7], s13 offen offset:{j * 32}')
        A(f'buffer_load_dwordx2 {v(18 + j * 4, 2)}, v6, s[4:7], s13 offen offset:{j * 32 + 16}')
    for j in range(8):
        A(f's_waitcnt vmcnt({14 - 2 * j + j})')
        A(f'buffer_store_dwordx4 {v(16 + j * 4, 4)}, v7, s[8:11], {"s14" if j < 4 else "s25"} offen offset:{(j % 4) * 1024}')
    if stats:
        sx, blk_stats, C = stats
        A('s_lshr_b32 s22, s13, 2')
        A('s_lshl_b32 s23, s20, 11')
        A('s_add_u32 s22, s22, s23')
        A(f's_add_u32 s22, s22, {sx}')
        A('v_lshlrev_b32 v12, 3, v1')
        for j in range(8):
            blk_stats(C, 16 + j * 4, 48 + j * 6)
        A('s_mov_b32 exec_hi, 0')
        for j in range(8):
            A(f'buffer_store_dwordx2 {v(48 + j * 6, 2)}, v12, s[8:11], s22 offen offset:{j * 256}')
        A('s_mov_b64 exec, -1')
    if zero:
        A('s_cmp_lg_u32 s20, 0')
        A('s_cbranch_scc1 pk_end')
        for r in range(4):
            A(f'v_mov_b32 {v(8 + r)}, 0')
        A('s_lshl_b32 s22, s21, 9')
        A(f's_add_u32 s22, s22, {zero[0]}')
        A('v_lshlrev_b32 v12, 3, v1')
        A('buffer_store_dwordx2 v[8:9], v12, s[8:11], s22 offen')
    A.label('pk_end')
    A('s_endpgm')
    return dict(name=name, grid=NJOB, block=256, lds=4096, nv=96, na=0)


def gen_gemm(A, name, mode, KS, xbase, wbase, resbase=None, outbase=None, depth=None, kidx=0):
    NK = KS // 4
    D = min(depth or NK, NK)
    ncb = 9 if mode == 'qkv' else 8
    grid = 32 * ncb
    L = name[:-7]
    kernel_begin(A, name)
    A(f's_cmp_ge_u32 s2, {grid}')
    A(f's_cbranch_scc1 {L}_end')
    stamp_begin(A)
    ws_srd(A, 8)
    if mode == 'out':
        A('s_load_dwordx2 s[12:13], s[0:1], 72')
        A(f's_mov_b32 s14, {2048 * 512 * 2}')
        A('s_mov_b32 s15, 0x20000')
    A('v_and_b32 v1, 63, v0')
    A('v_lshrrev_b32 v2, 6, v0')
    A('v_lshlrev_b32 v3, 4, v1')
    A('v_readfirstlane_b32 s20, v2')
    A('s_and_b32 s21, s2, 7')
    A('s_lshr_b32 s22, s2, 3')
    A('s_and_b32 s23, s22, 3')
    A('s_lshl_b32 s21, s21, 2')
    A('s_add_u32 s21, s21, s23')
    A('s_lshr_b32 s22, s22, 2')
    A('s_and_b32 s23, s20, 1')
    A('s_lshr_b32 s24, s20, 1')
    A('s_lshl_b32 s25, s21, 1')
    A('s_add_u32 s25, s25, s23')
    A('s_lshl_b32 s26, s22, 1')
    A('s_add_u32 s26, s26, s24')
    A('s_xor_b32 s27, s25, 1')
    A('s_xor_b32 s28, s26, 1')
    A(f's_mul_i32 s29, s20, {NK * KB}')
    for (reg, t, base) in ((4, 25, xbase), (5, 27, xbase), (6, 26, wbase), (7, 28, wbase)):
        A(f's_mul_i32 s30, {s(t)}, {KS * KB}')
        A('s_add_u32 s30, s30, s29')
        A(f's_add_u32 s30, s30, {base}')
        A(f'v_add_u32 {v(reg)}, s30, v3')
    ngrp = (NK + 3) // 4
    for g in range(1, ngrp):
        A(f's_mov_b32 {s(40 + g)}, {g * 4096}')
    ACC = 16
    RING = ACC + 64
    EX = RING + D * 16
    for r in range(64):
        A(f'v_mov_b32 {v(ACC + r)}, 0')
    if mode == 'qkv':
        for r in range(8, 12):
            A(f'v_mov_b32 {v(r)}, 0')
        A('v_mov_b32 v12, 0x3f803f80')
    A('s_waitcnt lgkmcnt(0)')

    def loads(i):
        slot = RING + (i % D) * 16
        so = '0' if i // 4 == 0 else s(40 + i // 4)
        off = (i % 4) * 1024
        for q in range(4):
            A(f'buffer_load_dwordx4 {v(slot + q * 4, 4)}, {v(4 + q)}, s[8:11], {so} offen offset:{off}')

    stamp(A, 1)
    for i in range(D):
        loads(i)
    stamp(A, 2)
    nex = 0
    if mode == 'qkv':
        A('v_lshrrev_b32 v13, 5, v1')
        A('v_lshlrev_b32 v13, 4, v13')
        A('s_lshl_b32 s30, s26, 7')
        A(f's_add_u32 s30, s30, {CSQKV}')
        exl = [f'buffer_load_dwordx4 {v(EX + g * 4, 4)}, v13, s[8:11], s30 offen offset:{g * 32}' for g in range(4)]
    else:
        A('s_lshl_b32 s30, s25, 15')
        A('s_lshl_b32 s31, s26, 11')
        A('s_add_u32 s30, s30, s31')
        A(f's_add_u32 s31, s30, {resbase}')
        exl = [f'buffer_load_dwordx4 {v(EX + e * 4, 4)}, v3, s[8:11], s31 offen offset:{e * 1024}' for e in range(2)]
    issued_ex = False
    for i in range(NK):
        later = (min(i + D - 1, NK - 1) - i) * 4
        if not issued_ex and i + D - 1 >= NK - 1:
            for x in exl:
                A(x)
            issued_ex = True
            nex = len(exl)
        A(f's_waitcnt vmcnt({later + nex})')
        if i == 0:
            stamp(A, 3)
        slot = RING + (i % D) * 16
        X0, X1, W0, W1 = slot, slot + 4, slot + 8, slot + 12
        mf = [(0, W0, X0), (1, W0, X1), (2, W1, X0), (3, W1, X1)]
        for q, wv, xv in mf:
            A(f'v_mfma_f32_32x32x16_bf16 {v(ACC + q * 16, 16)}, {v(wv, 4)}, {v(xv, 4)}, {v(ACC + q * 16, 16)}')
            if mode == 'qkv' and q < 2:
                xs = X0 if q == 0 else X1
                for m in range(4):
                    A(f'v_dot2_f32_bf16 {v(8 + q * 2)}, {v(xs + m)}, v12, {v(8 + q * 2)}')
                    A(f'v_dot2_f32_bf16 {v(9 + q * 2)}, {v(xs + m)}, {v(xs + m)}, {v(9 + q * 2)}')
        if i + D < NK:
            loads(i + D)
    stamp(A, 4)
    for q in range(1, 4):
        A(f's_xor_b32 s32, s20, {q}')
        A(f's_mul_i32 s32, s32, {12 * KB}')
        A(f's_add_u32 s32, s32, {(q - 1) * 4 * KB}')
        A(f'v_add_u32 {v(4 + q)}, s32, v3')
    A(f's_mul_i32 s32, s20, {12 * KB}')
    A('v_add_u32 v4, s32, v3')
    if mode == 'qkv':
        A('v_lshlrev_b32 v13, 3, v1')
        A('s_lshl_b32 s32, s20, 9')
        A('s_lshl_b32 s33, s23, 11')
        A('s_add_u32 s34, s32, s33')
        A('s_xor_b32 s35, s34, 2048')
        A('v_add_u32 v14, s34, v13')
        A('v_add_u32 v15, s35, v13')
        A(f'ds_write_b64 v14, v[8:9] offset:{48 * KB}')
        A(f'ds_write_b64 v15, v[10:11] offset:{48 * KB}')
        A('v_add_u32 v14, s33, v13')
        A('v_xor_b32 v15, 256, v14')
    A('s_nop 7')
    for q in range(1, 4):
        for g in range(4):
            A(f'ds_write_b128 {v(4 + q)}, {v(ACC + q * 16 + g * 4, 4)} offset:{g * 1024}')
    A('s_waitcnt lgkmcnt(0)')
    stamp(A, 5)
    A('s_barrier')
    stamp(A, 6)
    for q in range(1, 4):
        for g in range(4):
            A(f'ds_read_b128 {v(ACC + q * 16 + g * 4, 4)}, v4 offset:{(q - 1) * 4096 + g * 1024}')
    T = RING
    if mode == 'qkv':
        A('s_waitcnt lgkmcnt(6)')
        for ww in range(4):
            A(f'ds_read_b64 {v(T + ww * 4, 2)}, v14 offset:{48 * KB + ww * 512}')
            A(f'ds_read_b64 {v(T + ww * 4 + 2, 2)}, v15 offset:{48 * KB + ww * 512}')
    A('s_waitcnt lgkmcnt(0)')
    for r in range(16):
        A(f'v_add_f32 {v(ACC + r)}, {v(ACC + r)}, {v(ACC + 16 + r)}')
        A(f'v_add_f32 {v(ACC + 32 + r)}, {v(ACC + 32 + r)}, {v(ACC + 48 + r)}')
    for r in range(16):
        A(f'v_add_f32 {v(ACC + r)}, {v(ACC + r)}, {v(ACC + 32 + r)}')
    P = ACC + 16
    if mode == 'qkv':
        for st in (8, 4, 2):
            for e in range(st):
                A(f'v_add_f32 {v(T + e)}, {v(T + e)}, {v(T + e + st)}')
        A(f'v_mul_f32 {v(T)}, {f32(1.0 / 512)}, {v(T)}')
        A(f'v_mul_f32 {v(T + 1)}, {f32(1.0 / 512)}, {v(T + 1)}')
        A(f'v_fma_f32 {v(T + 1)}, -{v(T)}, {v(T)}, {v(T + 1)}')
        A(f'v_max_f32 {v(T + 1)}, 0, {v(T + 1)}')
        A(f'v_add_f32 {v(T + 1)}, {f32(1e-5)}, {v(T + 1)}')
        A(f'v_rsq_f32 {v(T + 1)}, {v(T + 1)}')
        A('s_cmp_eq_u32 s22, 8')
        A(f's_cselect_b32 s33, 1.0, {f32(QSCALE)}')
        A(f'v_mul_f32 {v(T + 1)}, s33, {v(T + 1)}')
        A('s_waitcnt vmcnt(0)')
        for r in range(16):
            A(f'v_fma_f32 {v(ACC + r)}, -{v(T)}, {v(EX + r)}, {v(ACC + r)}')
        for r in range(16):
            A(f'v_mul_f32 {v(ACC + r)}, {v(T + 1)}, {v(ACC + r)}')
        for m in range(8):
            A(f'v_cvt_pk_bf16_f32 {v(P + m)}, {v(ACC + 2 * m)}, {v(ACC + 2 * m + 1)}')
        A(f's_cbranch_scc1 {L}_kv')
        A('s_lshl_b32 s30, s25, 15')
        A('s_lshl_b32 s31, s26, 11')
        A('s_add_u32 s30, s30, s31')
        A(f's_add_u32 s30, s30, {QF}')
        A(f'buffer_store_dwordx4 {v(P, 4)}, v3, s[8:11], s30 offen')
        A(f'buffer_store_dwordx4 {v(P + 4, 4)}, v3, s[8:11], s30 offen offset:1024')
        stamp(A, 7)
        stamp_end(A, kidx)
        A('s_endpgm')
        A.label(f'{L}_kv')
        A('s_cmp_lg_u32 s24, 0')
        A(f's_cbranch_scc1 {L}_end')
        A(f's_mul_i32 s30, s25, {KVT}')
        A(f's_add_u32 s30, s30, {KVF}')
        A(f'buffer_store_dwordx4 {v(P, 4)}, v3, s[8:11], s30 offen')
        A('v_bfe_u32 v4, v1, 4, 1')
        A(f'v_mul_u32_u24 v4, {VBS}, v4')
        A('v_bfe_u32 v5, v1, 2, 1')
        A('v_lshl_add_u32 v4, v5, 8, v4')
        A('v_and_b32 v5, 3, v1')
        A('v_lshl_add_u32 v4, v5, 1, v4')
        A('v_bfe_u32 v5, v1, 3, 1')
        A('v_lshl_add_u32 v4, v5, 3, v4')
        A('v_lshrrev_b32 v5, 5, v1')
        A('v_lshl_add_u32 v4, v5, 6, v4')
        for r in range(8):
            d = (r % 4) + 8 * (r // 4)
            op = 'buffer_store_short' if r % 2 == 0 else 'buffer_store_short_d16_hi'
            A(f'{op} {v(P + 4 + r // 2)}, v4, s[8:11], s30 offen offset:{1024 + d * 16}')
        for r in range(4):
            A(f'v_mov_b32 {v(8 + r)}, 0x3f803f80')
        for r in range(4):
            A(f'v_mov_b32 {v(12 + r)}, 0')
        A(f'v_mul_u32_u24 v4, {VBS}, v1')
        A('v_cmp_gt_u32 vcc, 2, v1')
        A('s_and_saveexec_b64 s[34:35], vcc')
        A(f'buffer_store_dwordx4 v[8:11], v4, s[8:11], s30 offen offset:{1024 + 512}')
        A(f'buffer_store_dwordx4 v[12:15], v4, s[8:11], s30 offen offset:{1024 + 528}')
    else:
        A('s_waitcnt vmcnt(0)')
        for m in range(8):
            A(f'v_lshlrev_b32 {v(T + 2 * m)}, 16, {v(EX + m)}')
            A(f'v_and_b32 {v(T + 2 * m + 1)}, 0xffff0000, {v(EX + m)}')
        for r in range(16):
            A(f'v_add_f32 {v(ACC + r)}, {v(ACC + r)}, {v(T + r)}')
        for m in range(8):
            A(f'v_cvt_pk_bf16_f32 {v(P + m)}, {v(ACC + 2 * m)}, {v(ACC + 2 * m + 1)}')
        if mode == 'res':
            A(f's_add_u32 s31, s30, {outbase}')
            A(f'buffer_store_dwordx4 {v(P, 4)}, v3, s[8:11], s31 offen')
            A(f'buffer_store_dwordx4 {v(P + 4, 4)}, v3, s[8:11], s31 offen offset:1024')
        else:
            A('v_and_b32 v4, 31, v1')
            A('v_lshlrev_b32 v4, 10, v4')
            A('v_lshrrev_b32 v5, 5, v1')
            A('v_lshl_add_u32 v4, v5, 4, v4')
            A('s_lshl_b32 s30, s25, 15')
            A('s_lshl_b32 s31, s26, 6')
            A('s_add_u32 s30, s30, s31')
            for e in range(2):
                A(f'v_permlane32_swap_b32 {v(P + e * 4)}, {v(P + e * 4 + 2)}')
                A(f'v_permlane32_swap_b32 {v(P + e * 4 + 1)}, {v(P + e * 4 + 3)}')
            for e in range(2):
                A(f'buffer_store_dwordx4 {v(P + e * 4, 4)}, v4, s[12:15], s30 offen offset:{e * 32}')
    if mode != 'qkv':
        stamp(A, 7)
        stamp_end(A, kidx)
    A.label(f'{L}_end')
    A('s_endpgm')
    nv = EX + 16
    return dict(name=name, grid=grid, block=256, lds=52 * KB, nv=nv, na=0)


def gen_attn2(A):
    name = 'attn_kernel'
    kernel_begin(A, name)
    A('s_cmp_ge_u32 s2, 256')
    A('s_cbranch_scc1 at_end')
    stamp_begin(A)
    ws_srd(A, 8)
    A('v_and_b32 v1, 63, v0')
    A('v_lshrrev_b32 v2, 6, v0')
    A('v_lshlrev_b32 v3, 4, v1')
    A('v_readfirstlane_b32 s20, v2')
    A('s_and_b32 s21, s2, 7')
    A('s_lshl_b32 s21, s21, 3')
    A('s_bfe_u32 s22, s2, 0x30003')
    A('s_add_u32 s21, s21, s22')
    A('s_lshr_b32 s22, s2, 6')
    A('s_lshl_b32 s22, s22, 3')
    A('s_add_u32 s22, s22, s20')
    A('s_lshl_b32 s23, s21, 5')
    A('s_add_u32 s23, s23, s22')
    A('s_lshl_b32 s23, s23, 10')
    A(f's_add_u32 s24, s23, {QF}')
    A(f's_add_u32 s25, s23, {OF}')
    Q, CN, S0, S1, O, P, KF, VF, VK, VV, T = 4, 8, 24, 40, 56, 72, 80, 88, 104, 105, 106
    S = [S0, S1]
    A('s_waitcnt lgkmcnt(0)')
    A(f'buffer_load_dwordx4 {v(Q, 4)}, v3, s[8:11], s24 offen')
    A('s_lshl_b32 s26, s20, 10')
    A(f's_add_u32 s27, s26, {KVF}')
    NR = 17
    for r in range(NR):
        A(f's_add_u32 m0, s26, {r * 8192}')
        A(f's_add_u32 s28, s27, {r * 8192}')
        A('buffer_load_dwordx4 v3, s[8:11], s28 offen lds')
    A(f'v_mov_b32 {v(VK)}, v3')
    A(f'v_and_b32 {v(T)}, 15, v1')
    A(f'v_lshrrev_b32 {v(T + 1)}, 5, v1')
    A(f'v_lshl_add_u32 {v(T)}, {v(T + 1)}, 4, {v(T)}')
    A(f'v_lshlrev_b32 {v(T)}, 4, {v(T)}')
    A(f'v_and_b32 {v(T + 1)}, 31, v1')
    A(f'v_cmp_eq_u32 vcc, 16, {v(T + 1)}')
    A(f'v_mov_b32 {v(T + 2)}, 512')
    A('s_nop 0')
    A(f'v_cndmask_b32 {v(T)}, {v(T)}, {v(T + 2)}, vcc')
    if ATT_ZROWS:
        A(f'v_cmp_lt_u32 vcc, 16, {v(T + 1)}')
        A(f'v_mov_b32 {v(T + 2)}, 528')
        A('s_nop 0')
        A(f'v_cndmask_b32 {v(T)}, {v(T)}, {v(T + 2)}, vcc')
    A(f'v_add_u32 {v(VV)}, 1024, {v(T)}')
    for r in range(16):
        A(f'v_mov_b32 {v(O + r)}, 0')
    stamp(A, 1)
    A(f's_waitcnt vmcnt({NR - 3})')
    stamp(A, 2)
    A('s_barrier')
    stamp(A, 3)

    def rdK(buf, t):
        A(f'ds_read_b128 {v(KF + buf * 4, 4)}, {v(VK)} offset:{t * KVT}')

    def rdV(buf, t):
        A(f'ds_read_b128 {v(VF + buf * 8, 4)}, {v(VV)} offset:{t * KVT}')
        A(f'ds_read_b128 {v(VF + buf * 8 + 4, 4)}, {v(VV)} offset:{t * KVT + VBS}')

    rdK(0, 0)
    rdK(1, 1)
    rdV(0, 0)
    A('s_waitcnt lgkmcnt(3)')
    A(f'v_mfma_f32_32x32x16_bf16 {v(S0, 16)}, {v(KF, 4)}, {v(Q, 4)}, 0')
    A('s_nop 11')
    A(f'v_max3_f32 {v(T)}, {v(S0)}, {v(S0 + 1)}, {v(S0 + 2)}')
    for r in range(3, 15, 2):
        A(f'v_max3_f32 {v(T)}, {v(T)}, {v(S0 + r)}, {v(S0 + r + 1)}')
    A(f'v_max_f32 {v(T)}, {v(T)}, {v(S0 + 15)}')
    A(f'v_mov_b32 {v(T + 1)}, {v(T)}')
    A('s_nop 1')
    A(f'v_permlane32_swap_b32 {v(T)}, {v(T + 1)}')
    A(f'v_max_f32 {v(T)}, {v(T)}, {v(T + 1)}')
    for r in range(16):
        A(f'v_sub_f32 {v(CN + r)}, 0, {v(T)}')
    for r in range(16):
        A(f'v_sub_f32 {v(S0 + r)}, {v(S0 + r)}, {v(T)}')

    def body_v1(t, last=False):
        cur, nxt = t & 1, (t + 1) & 1
        Sc, Sn = S[cur], S[nxt]
        A('s_waitcnt lgkmcnt(2)')
        A(f'v_mfma_f32_32x32x16_bf16 {v(Sn, 16)}, {v(KF + nxt * 4, 4)}, {v(Q, 4)}, {v(CN, 16)}')
        rdK(cur, t + 2)
        for r in range(8):
            A(f'v_exp_f32 {v(Sc + r)}, {v(Sc + r)}')
        for m in range(3):
            A(f'v_cvt_pk_bf16_f32 {v(P + m)}, {v(Sc + 2 * m)}, {v(Sc + 2 * m + 1)}')
        A(f'v_cvt_pk_bf16_f32 {v(P + 3)}, {v(Sc + 6)}, {v(Sc + 7)}')
        A(f'v_exp_f32 {v(Sc + 8)}, {v(Sc + 8)}')
        A(f'v_exp_f32 {v(Sc + 9)}, {v(Sc + 9)}')
        A('s_waitcnt lgkmcnt(1)')
        A(f'v_mfma_f32_32x32x16_bf16 {v(O, 16)}, {v(VF + cur * 8, 4)}, {v(P, 4)}, {v(O, 16)}')
        rdV(nxt, t + 1)
        for r in range(10, 16):
            A(f'v_exp_f32 {v(Sc + r)}, {v(Sc + r)}')
        for m in range(4, 8):
            A(f'v_cvt_pk_bf16_f32 {v(P + m)}, {v(Sc + 2 * m)}, {v(Sc + 2 * m + 1)}')
        A('s_nop 1')
        A(f'v_mfma_f32_32x32x16_bf16 {v(O, 16)}, {v(VF + cur * 8 + 4, 4)}, {v(P + 4, 4)}, {v(O, 16)}')

    def body_v2(t, last=False):
        cur, nxt = t & 1, (t + 1) & 1
        Sc, Sn = S[cur], S[nxt]
        A('s_waitcnt lgkmcnt(2)')
        A(f'v_mfma_f32_32x32x16_bf16 {v(Sn, 16)}, {v(KF + nxt * 4, 4)}, {v(Q, 4)}, {v(CN, 16)}')
        rdK(cur, t + 2)
        for r in range(6):
            A(f'v_exp_f32 {v(Sc + r)}, {v(Sc + r)}')
        A(f'v_mfma_f32_32x32x16_bf16 {v(O, 16)}, {v(VF + nxt * 8 + 4, 4)}, {v(P + 4, 4)}, {v(O, 16)}')
        for r in range(6, 8):
            A(f'v_exp_f32 {v(Sc + r)}, {v(Sc + r)}')
        for m in range(4):
            A(f'v_cvt_pk_bf16_f32 {v(P + m)}, {v(Sc + 2 * m)}, {v(Sc + 2 * m + 1)}')
        A(f'v_exp_f32 {v(Sc + 8)}, {v(Sc + 8)}')
        A(f'v_exp_f32 {v(Sc + 9)}, {v(Sc + 9)}')
        A('s_waitcnt lgkmcnt(1)')
        A(f'v_mfma_f32_32x32x16_bf16 {v(O, 16)}, {v(VF + cur * 8, 4)}, {v(P, 4)}, {v(O, 16)}')
        rdV(nxt, t + 1)
        for r in range(10, 16):
            A(f'v_exp_f32 {v(Sc + r)}, {v(Sc + r)}')
        for m in range(4, 8):
            A(f'v_cvt_pk_bf16_f32 {v(P + m)}, {v(Sc + 2 * m)}, {v(Sc + 2 * m + 1)}')

    body0 = {1: body_v1, 2: body_v2}[ATT_V]

    def body(t):
        n0 = len(A.lines)
        body0(t)
        if ATT_NOLDS:
            A.lines[n0:] = [l for l in A.lines[n0:] if 'ds_read' not in l and 's_waitcnt' not in l]
        if ATT_NOMFMA:
            A.lines[n0:] = [l for l in A.lines[n0:] if 'mfma' not in l]
    if ATT_NOLDS:
        rdV(1, 1)
        A('s_waitcnt lgkmcnt(0)')
    if ATT_ZQ:
        for r in range(4):
            A(f'v_mov_b32 {v(Q + r)}, 0')
        for r in range(16):
            A(f'v_mov_b32 {v(CN + r)}, 0')
    if ATT_V == 2:
        for m in range(4, 8):
            A(f'v_mov_b32 {v(P + m)}, 0')
        for m in range(4):
            A(f'v_mov_b32 {v(VF + 12 + m)}, 0')
    if ATT_PRIO == 2:
        A('s_setprio 3')
    UN = 8
    A('s_mov_b32 s30, 0')
    stamp(A, 4)
    A.raw('.p2align 6')
    A.label('at_loop')
    for t in range(UN):
        body(t)
    A(f'v_add_u32 {v(VK)}, {UN * KVT}, {v(VK)}')
    A(f'v_add_u32 {v(VV)}, {UN * KVT}, {v(VV)}')
    A('s_add_u32 s30, s30, 1')
    A(f's_bitcmp1_b32 {hex(0b111010010)}, s30')
    A('s_cbranch_scc0 at_loop')
    A('s_cmp_eq_u32 s30, 1')
    A('s_cbranch_scc0 at_sp2')
    stamp(A, 5)
    A('s_waitcnt vmcnt(0)')
    A('s_barrier')
    stamp(A, 6)
    A('s_branch at_loop')
    A.label('at_sp2')
    for it, pr in ((4, 2), (6, 1), (7, 0)):
        A(f's_cmp_eq_u32 s30, {it}')
        A(f's_cbranch_scc0 at_sp{it}x')
        if ATT_PRIO == 2:
            A(f's_setprio {pr}')
        A('s_branch at_loop')
        A.label(f'at_sp{it}x')
    if ATT_V == 2:
        A(f'v_mfma_f32_32x32x16_bf16 {v(O, 16)}, {v(VF + 8 + 4, 4)}, {v(P + 4, 4)}, {v(O, 16)}')
    A('s_waitcnt lgkmcnt(0)')
    A('s_nop 11')
    stamp(A, 7)
    A.label('at_fin')
    A(f'v_mov_b32 {v(T)}, {v(O + 8)}')
    A(f'v_mov_b32 {v(T + 1)}, {v(O + 8)}')
    A('s_nop 1')
    A(f'v_permlane32_swap_b32 {v(T)}, {v(T + 1)}')
    A(f'v_mul_f32 {v(T + 2)}, 0, {v(O)}')
    for r in range(1, 8):
        A(f'v_fma_f32 {v(T + 2)}, {v(O + r)}, 0, {v(T + 2)}')
    A(f'v_add_f32 {v(T + 2)}, {v(T + 2)}, {v(T)}')
    A(f'v_mov_b32 {v(T + 3)}, {f32(2.0 ** 30)}')
    A(f'v_cmp_nle_f32 vcc, {v(T + 2)}, {v(T + 3)}')
    A('s_cmp_eq_u32 s30, 99')
    A('s_cbranch_scc1 at_store')
    A('s_nop 1')
    A('s_cbranch_vccnz at_slow')
    A.label('at_store')
    A(f'v_rcp_f32 {v(T)}, {v(T)}')
    A('s_nop 0')
    for r in range(8):
        A(f'v_mul_f32 {v(O + r)}, {v(T)}, {v(O + r)}')
    for m in range(4):
        A(f'v_cvt_pk_bf16_f32 {v(P + m)}, {v(O + 2 * m)}, {v(O + 2 * m + 1)}')
    A(f'buffer_store_dwordx4 {v(P, 4)}, v3, s[8:11], s25 offen')
    stamp(A, 8)
    stamp_end(A, 2)
    A.label('at_end')
    A('s_endpgm')

    A.label('at_slow')
    A(f'v_subrev_u32 {v(VK)}, {64 * KVT}, {v(VK)}')
    A(f'v_subrev_u32 {v(VV)}, {64 * KVT}, {v(VV)}')
    for r in range(16):
        A(f'v_mov_b32 {v(O + r)}, 0')
    M = T + 4
    A(f'v_sub_f32 {v(M)}, 0, {v(CN)}')
    A('s_mov_b32 s30, 0')
    A.label('at_sloop')
    rdK(0, 0)
    rdV(0, 0)
    A('s_waitcnt lgkmcnt(0)')
    A(f'v_mfma_f32_32x32x16_bf16 {v(S0, 16)}, {v(KF, 4)}, {v(Q, 4)}, 0')
    A('s_nop 11')
    A(f'v_max3_f32 {v(T)}, {v(S0)}, {v(S0 + 1)}, {v(S0 + 2)}')
    for r in range(3, 15, 2):
        A(f'v_max3_f32 {v(T)}, {v(T)}, {v(S0 + r)}, {v(S0 + r + 1)}')
    A(f'v_max3_f32 {v(T)}, {v(T)}, {v(S0 + 15)}, {v(M)}')
    A(f'v_mov_b32 {v(T + 1)}, {v(T)}')
    A('s_nop 1')
    A(f'v_permlane32_swap_b32 {v(T)}, {v(T + 1)}')
    A(f'v_max_f32 {v(T)}, {v(T)}, {v(T + 1)}')
    A(f'v_sub_f32 {v(T + 1)}, {v(M)}, {v(T)}')
    A(f'v_exp_f32 {v(T + 1)}, {v(T + 1)}')
    A(f'v_mov_b32 {v(M)}, {v(T)}')
    for r in range(16):
        A(f'v_sub_f32 {v(S0 + r)}, {v(S0 + r)}, {v(T)}')
    for r in range(16):
        A(f'v_exp_f32 {v(S0 + r)}, {v(S0 + r)}')
    for r in range(16):
        A(f'v_mul_f32 {v(O + r)}, {v(T + 1)}, {v(O + r)}')
    for m in range(8):
        A(f'v_cvt_pk_bf16_f32 {v(P + m)}, {v(S0 + 2 * m)}, {v(S0 + 2 * m + 1)}')
    A('s_nop 1')
    A(f'v_mfma_f32_32x32x16_bf16 {v(O, 16)}, {v(VF, 4)}, {v(P, 4)}, {v(O, 16)}')
    A(f'v_mfma_f32_32x32x16_bf16 {v(O, 16)}, {v(VF + 4, 4)}, {v(P + 4, 4)}, {v(O, 16)}')
    A(f'v_add_u32 {v(VK)}, {KVT}, {v(VK)}')
    A(f'v_add_u32 {v(VV)}, {KVT}, {v(VV)}')
    A('s_nop 11')
    A('s_add_u32 s30, s30, 1')
    A('s_cmp_lt_u32 s30, 64')
    A('s_cbranch_scc1 at_sloop')
    A('s_mov_b32 s30, 99')
    A('s_branch at_fin')
    return dict(name=name, grid=256, block=512, lds=139264 + 4096, nv=112, na=0)


def gen_gu(A):
    name = 'gu_kernel'
    grid = 224
    kernel_begin(A, name)
    A(f's_cmp_ge_u32 s2, {grid}')
    A('s_cbranch_scc1 gu_end')
    stamp_begin(A)
    ws_srd(A, 8)
    A('v_and_b32 v1, 63, v0')
    A('v_lshrrev_b32 v2, 6, v0')
    A('v_lshlrev_b32 v3, 4, v1')
    A('v_readfirstlane_b32 s20, v2')
    A('s_and_b32 s21, s2, 7')
    A('s_lshr_b32 s22, s2, 3')
    A('s_and_b32 s23, s22, 1')
    A('s_lshl_b32 s21, s21, 1')
    A('s_add_u32 s21, s21, s23')
    A('s_lshr_b32 s22, s22, 1')
    A('s_lshl_b32 s23, s21, 2')
    A('s_lshl_b32 s24, s22, 3')
    A('s_lshl_b32 s25, s20, 1')
    A('s_add_u32 s24, s24, s25')
    A('s_add_u32 s25, s23, s20')
    A('s_lshl_b32 s25, s25, 15')
    A(f's_add_u32 s25, s25, {XB}')
    A('v_add_u32 v4, s25, v3')
    A('s_lshl_b32 s26, s24, 15')
    A(f's_add_u32 s26, s26, {WGUP}')
    A('v_add_u32 v5, s26, v3')
    A('v_add_u32 v6, 32768, v5')
    for g in range(1, 8):
        A(f's_mov_b32 {s(40 + g)}, {g * 4096}')
    A('s_lshl_b32 s27, s20, 15')
    for q in range(4):
        A(f's_xor_b32 s28, s20, {q}')
        A('s_lshl_b32 s28, s28, 15')
        A(f'v_add_u32 {v(8 + q)}, s28, v3')
    A('v_mov_b32 v12, 0')
    A('v_mov_b32 v13, 0')
    A('v_mov_b32 v14, 0x3f803f80')
    ACC = 16
    XF = ACC + 128
    CS = XF + 32
    T = CS + 32
    A('s_waitcnt lgkmcnt(0)')

    def chunk_loads(c):
        so = '0' if c == 0 else s(40 + c)
        A(f's_add_u32 m0, s27, {c * 4096}')
        A('s_nop 0')
        for k in range(4):
            A(f'buffer_load_dwordx4 v4, s[8:11], {so} offen offset:{k * 1024} lds')
        for k in range(4):
            ks = c * 4 + k
            A(f'buffer_load_dwordx4 {a(ks * 8, 4)}, v5, s[8:11], {so} offen offset:{k * 1024}')
            A(f'buffer_load_dwordx4 {a(ks * 8 + 4, 4)}, v6, s[8:11], {so} offen offset:{k * 1024}')

    PRE = 5
    stamp(A, 1)
    for c in range(PRE):
        chunk_loads(c)
    stamp(A, 2)
    for r in range(128):
        A(f'v_mov_b32 {v(ACC + r)}, 0')

    def rdX(buf, ks):
        for q in range(4):
            A(f'ds_read_b128 {v(XF + buf * 16 + q * 4, 4)}, {v(8 + q)} offset:{ks * 1024}')

    A('v_lshrrev_b32 v15, 5, v1')
    A('v_lshlrev_b32 v15, 4, v15')
    A('s_lshl_b32 s30, s24, 7')
    A(f's_add_u32 s30, s30, {CSGU}')
    issued = PRE
    for c in range(8):
        out_after = (issued - 1 - c) * 12 + (8 if issued == 8 and c >= 4 else 0)
        if c == 0:
            stamp(A, 3)
        A(f's_waitcnt vmcnt({out_after})')
        A('s_barrier')
        if c in (0, 1, 4, 7):
            stamp(A, {0: 4, 1: 5, 4: 6, 7: 7}[c])
        if issued < 8:
            chunk_loads(issued)
            issued += 1
        if c == 3:
            for j in range(2):
                for g in range(4):
                    A(f'buffer_load_dwordx4 {v(CS + j * 16 + g * 4, 4)}, v15, s[8:11], s30 offen offset:{j * 128 + g * 32}')
        rdX(0, c * 4)
        for k in range(4):
            ks = c * 4 + k
            buf = k & 1
            if k < 3:
                rdX(buf ^ 1, ks + 1)
                A('s_waitcnt lgkmcnt(4)')
            else:
                A('s_waitcnt lgkmcnt(0)')
            for q in range(4):
                for j in range(2):
                    acc = ACC + (q * 2 + j) * 16
                    A(f'v_mfma_f32_32x32x16_bf16 {v(acc, 16)}, {a(ks * 8 + j * 4, 4)}, {v(XF + buf * 16 + q * 4, 4)}, {v(acc, 16)}')
                    if q < 2:
                        for m in range(2):
                            xs = XF + buf * 16 + (q * 2 + j) % 4
                            if m == 0:
                                A(f'v_dot2_f32_bf16 v12, {v(xs)}, v14, v12')
                            else:
                                A(f'v_dot2_f32_bf16 v13, {v(xs)}, {v(xs)}, v13')
    stamp(A, 8)
    A('s_nop 2')
    A(f'v_mov_b32 {v(T)}, v12')
    A(f'v_mov_b32 {v(T + 1)}, v13')
    A('s_nop 1')
    A(f'v_permlane32_swap_b32 v12, {v(T)}')
    A(f'v_permlane32_swap_b32 v13, {v(T + 1)}')
    A(f'v_add_f32 v12, v12, {v(T)}')
    A(f'v_add_f32 v13, v13, {v(T + 1)}')
    A(f'v_mul_f32 v12, {f32(1.0 / 512)}, v12')
    A(f'v_mul_f32 v13, {f32(1.0 / 512)}, v13')
    A('v_fma_f32 v13, -v12, v12, v13')
    A('v_max_f32 v13, 0, v13')
    A(f'v_add_f32 v13, {f32(1e-5)}, v13')
    A('v_rcp_f32 v13, v13')
    A('v_sub_f32 v12, 0, v12')
    A(f'v_lshlrev_b32 {v(T)}, 3, v1')
    A('s_lshl_b32 s28, s20, 9')
    A(f's_add_u32 s28, s28, {128 * KB}')
    A(f'v_add_u32 {v(T + 1)}, s28, {v(T)}')
    A(f'ds_write_b64 {v(T + 1)}, v[12:13]')
    A('s_waitcnt lgkmcnt(0)')
    A('s_barrier')
    ST = T + 2
    for q in range(4):
        A(f'v_xor_b32 {v(T)}, {q * 512}, {v(T + 1)}')
        A(f'ds_read_b64 {v(ST + q * 2, 2)}, {v(T)}')
    A('s_waitcnt vmcnt(0) lgkmcnt(0)')
    stamp(A, 9)
    P = XF
    for q in range(4):
        A(f's_xor_b32 s28, s20, {q}')
        A('s_add_u32 s28, s28, s23')
        A('s_mul_i32 s28, s28, 112')
        A('s_add_u32 s28, s28, s24')
        A('s_lshl_b32 s28, s28, 10')
        A(f's_add_u32 s28, s28, {HF}')
        for j in range(2):
            acc = ACC + (q * 2 + j) * 16
            st = v(ST + q * 2, 2)
            for r in range(0, 16, 2):
                A(f'v_pk_fma_f32 {v(acc + r, 2)}, {st}, {v(CS + j * 16 + r, 2)}, {v(acc + r, 2)} op_sel_hi:[0,1,1]')
            for r in range(0, 8, 2):
                A(f'v_pk_mul_f32 {v(acc + r, 2)}, {v(acc + r, 2)}, {v(acc + 8 + r, 2)}')
            for r in range(0, 8, 2):
                A(f'v_pk_mul_f32 {v(acc + r, 2)}, {v(acc + r, 2)}, {st} op_sel:[0,1] op_sel_hi:[1,1]')
            pp = P + ((q * 2 + j) % 8) * 4
            for m in range(4):
                A(f'v_cvt_pk_bf16_f32 {v(pp + m)}, {v(acc + 2 * m)}, {v(acc + 2 * m + 1)}')
            A(f'buffer_store_dwordx4 {v(pp, 4)}, v3, s[8:11], s28 offen offset:{j * 1024}')
    stamp(A, 10)
    stamp_end(A, 4)
    A.label('gu_end')
    A('s_endpgm')
    return dict(name=name, grid=grid, block=256, lds=130 * KB, nv=ST + 8, na=256)


def build():
    A = Asm()
    ks = {}
    ks['pack'] = gen_pack(A)
    ks['qkv'] = gen_gemm(A, 'qkv_kernel', 'qkv', 32, XA, WQKVP, kidx=1)
    ks['attn'] = gen_attn2(A)
    ks['wo'] = gen_gemm(A, 'wo_kernel', 'res', 32, OF, WOP, resbase=XA, outbase=XB, kidx=3)
    ks['gu'] = gen_gu(A)
    ks['dn'] = gen_gemm(A, 'dn_kernel', 'res', 112, HF, WDP, resbase=XB, outbase=XA, depth=10, kidx=5)
    ks['dno'] = gen_gemm(A, 'dno_kernel', 'out', 112, HF, WDP, resbase=XB, depth=10, kidx=6)
    order = ['pack', 'qkv', 'attn', 'wo', 'gu', 'dn', 'qkv', 'attn', 'wo', 'gu', 'dno']
    body = A.text()
    probs = lint(body)
    for p in probs:
        print('LINT:', p, file=sys.stderr)
    head = '; generated by gen/gen.py\n'
    for k in order:
        d = ks[k]
        head += f"; @launch kernel={d['name']} grid=({d['grid']},1,1) block=({d['block']},1,1) lds={d['lds']}\n"
    head += '.amdgcn_target "amdgcn-amd-amdhsa--gfx950"\n.text\n'
    tail = '.section .rodata,"a"\n'
    for k, d in ks.items():
        tail += '.p2align 6\n' + descriptor(d['name'], d['nv'], d['na'])
    return head + body + tail


if __name__ == '__main__':
    if 'stamp' in sys.argv:
        STAMP = True
    for arg in sys.argv[2:]:
        if '=' in arg:
            k, val = arg.split('=')
            globals()[k] = int(val)
    out = sys.argv[1] if len(sys.argv) > 1 else f'cdna_kernels/{NAME}.s'
    open(out, 'w').write(build())
    print('wrote', out)
```

```python
import sys
import math
import struct
from asmlib import Asm, v, a, s, lint
import gen as G1
from gen import f32, kernel_begin, descriptor, ws_srd, KB

NAME = G1.NAME
WQKVP, WOP, WGUP, WDP, CSQKV, CSGU = G1.WQKVP, G1.WOP, G1.WGUP, G1.WDP, G1.CSQKV, G1.CSGU
KVF, XA, XB, QF, OF, HF = G1.KVF, G1.XA, G1.XB, G1.QF, G1.OF, G1.HF
WS_SIZE, KVT, VBS, QSCALE = G1.WS_SIZE, G1.KVT, G1.VBS, G1.QSCALE
XC = G1.WS_END
KVF2 = XC + 2048 * KB
FLG = KVF2 + 144 * KB
SXA = FLG + 32 * KB
SXB = SXA + 512 * KB
SXC = SXB + 512 * KB
WS_END = SXC + 512 * KB
STAMPS = G1.STAMPS

STAMP = False
WT = ' sc0 sc1'
LDS_BYTES = 160 * KB
FINE = 0
G2_ST8 = [2, 2, 2, 2]
G2_ST28 = [2, 2, 4, 4, 4, 4, 4, 4]
G2_PRE8 = 4
G2_PRE28 = 6


class Ctx:
    def __init__(self, A, tag):
        self.A = A
        self.tag = tag
        self.vm = []
        self.nlab = 0
        self.nstamp = 1

    def lab(self, base):
        self.nlab += 1
        return f'{self.tag}_{base}{self.nlab}'

    def vmem(self, text, tag):
        self.A(text)
        self.vm.append(tag)
        assert len(self.vm) <= 63, 'vmcnt overflow'

    def wait(self, tag, extra=''):
        idx = [i for i, t in enumerate(self.vm) if t == tag]
        if not idx:
            if extra:
                self.A(f's_waitcnt {extra}')
            return
        n = len(self.vm) - 1 - idx[-1]
        self.A(f's_waitcnt vmcnt({n}) {extra}'.strip())
        self.vm = self.vm[idx[-1] + 1:]

    def stamp(self):
        if STAMP:
            i = self.nstamp
            self.nstamp += 1
            assert i < 28
            A = self.A
            A('s_waitcnt lgkmcnt(0)')
            A('s_memtime s[60:61]')
            A('s_waitcnt lgkmcnt(0)')
            A(f's_mov_b32 {s(64 + i)}, s60')


def stamp_begin(C):
    if STAMP:
        A = C.A
        A('s_memrealtime s[62:63]')
        A('s_memtime s[60:61]')
        for i in range(1, 30):
            A(f's_mov_b32 {s(64 + i)}, 0')
        A('s_waitcnt lgkmcnt(0)')
        A('s_mov_b32 s64, s60')
        A('s_mov_b32 s95, s62')


def stamp_end(C, kidx):
    if STAMP:
        A = C.A
        A('s_waitcnt vmcnt(0) lgkmcnt(0)')
        A('s_memtime s[60:61]')
        A('s_memrealtime s[62:63]')
        A('s_waitcnt lgkmcnt(0)')
        A('s_mov_b32 s93, s60')
        A('s_mov_b32 s94, s62')
        A('s_mov_b64 exec, 1')
        A('s_lshl_b32 s60, s2, 10')
        A('s_lshl_b32 s61, s20, 7')
        A('s_add_u32 s60, s60, s61')
        A(f's_add_u32 s60, s60, {STAMPS + kidx * (1 << 20)}')
        A('v_mov_b32 v0, 0')
        for i in range(32):
            A(f'v_mov_b32 v1, {s(64 + i)}')
            A(f'buffer_store_dword v1, v0, s[8:11], s60 offen offset:{i * 4}')
        A('s_waitcnt vmcnt(0)')


def setup(C, need_out, endlab):
    A = C.A
    A('s_cmp_ge_u32 s2, 256')
    A(f's_cbranch_scc1 {endlab}')
    stamp_begin(C)
    ws_srd(A, 8)
    if need_out:
        A('s_load_dwordx2 s[12:13], s[0:1], 72')
        A(f's_mov_b32 s14, {2048 * 512 * 2}')
        A('s_mov_b32 s15, 0x20000')
    A('v_and_b32 v1, 63, v0')
    A('v_lshrrev_b32 v2, 6, v0')
    A('v_lshlrev_b32 v3, 4, v1')
    A('v_readfirstlane_b32 s20, v2')
    A('s_and_b32 s21, s2, 7')
    A('s_lshl_b32 s21, s21, 1')
    A('s_bfe_u32 s22, s2, 0x10003')
    A('s_add_u32 s21, s21, s22')
    A('s_lshr_b32 s22, s2, 4')
    A('s_and_b32 s23, s22, 1')
    A('s_lshr_b32 s24, s22, 1')
    A('s_and_b32 s25, s20, 3')
    A('s_lshr_b32 s26, s20, 2')
    A('s_lshl_b32 s27, s21, 2')
    A('s_lshl_b32 s30, s23, 1')
    A('s_add_u32 s27, s27, s30')
    A('s_lshl_b32 s28, s24, 1')
    A('s_bfe_u32 s30, s20, 0x10001')
    A('s_add_u32 s28, s28, s30')
    A('s_and_b32 s29, s20, 1')
    A('s_add_u32 s30, s27, s29')
    A('s_lshl_b32 s49, s30, 15')
    A('s_lshl_b32 s31, s28, 11')
    A('s_add_u32 s49, s49, s31')
    A('s_lshl_b32 s31, s26, 10')
    A('s_add_u32 s49, s49, s31')
    for g in range(1, 8):
        A(f's_mov_b32 {s(40 + g)}, {g * 4096}')
    A('s_waitcnt lgkmcnt(0)')


def soff(i):
    return ('0' if i // 4 == 0 else s(40 + i // 4)), (i % 4) * 1024


def handoff(C, sync, endlab, need):
    A = C.A
    l1, l2, ld = C.lab('pa'), C.lab('pb'), C.lab('pd')
    need()
    A('s_mov_b32 s33, 0')
    A('v_lshlrev_b32 v0, 2, v1')
    A('s_lshl_b32 s30, s21, 8')
    A(f's_add_u32 s30, s30, {FLG + sync * 4096}')
    A('s_lshl_b32 s34, s22, 2')
    A('s_add_u32 s34, s34, s30')
    A('v_mov_b32 v4, 1')
    C.wait('st', 'lgkmcnt(0)')
    if FINE and sync >= 4:
        C.stamp()
    A('s_cmp_lg_u32 s20, 0')
    A('s_barrier')
    l, lb, lb2 = C.lab('sig'), C.lab('sb'), C.lab('sc')
    A(f's_cbranch_scc1 {l}')
    A('s_mov_b64 exec, 1')
    A('buffer_store_dword v4, v0, s[8:11], s34 offen')
    A.label(l)
    if FINE and sync >= 4:
        C.stamp()
    A('s_mov_b32 s31, 0')
    A('s_mov_b64 exec, s[32:33]')
    A.label(l1)
    A('buffer_load_dword v2, v0, s[8:11], s30 offen sc1')
    A('s_add_u32 s31, s31, 1')
    A('s_waitcnt vmcnt(0)')
    A('v_cmp_ne_u32 vcc, 0, v2')
    A('s_cmp_eq_u64 vcc, s[32:33]')
    A(f's_cbranch_scc1 {ld}')
    A('s_cmp_lt_u32 s31, 64')
    A(f's_cbranch_scc1 {l1}')
    A('s_cmp_lg_u32 s20, 0')
    A(f's_cbranch_scc1 {l2}')
    A('s_mov_b64 exec, 1')
    A('buffer_store_dword v4, v0, s[8:11], s34 offen offset:128 sc0 sc1')
    A('s_mov_b64 exec, s[32:33]')
    A.label(l2)
    A('buffer_load_dword v2, v0, s[8:11], s30 offen sc1')
    A('s_waitcnt vmcnt(0)')
    A('v_cmp_ne_u32 s[36:37], 0, v2')
    A('buffer_load_dword v2, v0, s[8:11], s30 offen offset:128 sc0 sc1')
    A('s_waitcnt vmcnt(0)')
    A('v_cmp_ne_u32 vcc, 0, v2')
    A('s_add_u32 s31, s31, 1')
    A('s_or_b64 vcc, vcc, s[36:37]')
    A('s_cmp_eq_u64 vcc, s[32:33]')
    A(f's_cbranch_scc1 {ld}')
    A('s_sleep 4')
    A(f's_cmp_lt_u32 s31, {1 << 20}')
    A(f's_cbranch_scc1 {l2}')
    A(f's_branch {endlab}')
    A.label(ld)
    A('s_mov_b64 exec, -1')
    C.vm = []
    C.flagb = True


def flag_b(C):
    if getattr(C, 'flagb', False):
        A = C.A
        A('s_cmp_eq_u32 s20, 0')
        A('s_cselect_b64 exec, 1, 0')
        C.vmem('buffer_store_dword v4, v0, s[8:11], s34 offen offset:128 sc0 sc1', 'fb')
        A('s_mov_b64 exec, -1')
        C.flagb = False


ACCB, ACCA = 16, 48
KVW, KACC, QSX = 160, 176, 240
KVRED, STAT = 112 * KB, 144 * KB


def blk_stats(C, P, T):
    A = C.A
    A(f'v_mov_b32 {v(T + 4)}, 0x3f803f80')
    A(f'v_dot2_f32_bf16 {v(T + 1)}, {v(P)}, {v(P)}, 0')
    A(f'v_dot2_f32_bf16 {v(T)}, {v(P)}, {v(T + 4)}, 0')
    for m in range(1, 4):
        A(f'v_dot2_f32_bf16 {v(T + 1)}, {v(P + m)}, {v(P + m)}, {v(T + 1)}')
        A(f'v_dot2_f32_bf16 {v(T)}, {v(P + m)}, {v(T + 4)}, {v(T)}')
    A('s_nop 2')
    A(f'v_mov_b32 {v(T + 2)}, {v(T)}')
    A(f'v_mov_b32 {v(T + 3)}, {v(T + 1)}')
    A('s_nop 1')
    A(f'v_permlane32_swap_b32 {v(T)}, {v(T + 2)}')
    A(f'v_permlane32_swap_b32 {v(T + 1)}, {v(T + 3)}')
    A(f'v_add_f32 {v(T)}, {v(T)}, {v(T + 2)}')
    A(f'v_add_f32 {v(T + 1)}, {v(T + 1)}, {v(T + 3)}')


def g3_waddr(C, vregs, KS, wbase):
    A = C.A
    NS = KS // 8
    A('s_lshl_b32 s30, s26, 8')
    A(f'v_xor_b32 {v(vregs[0])}, s30, v3')
    A(f's_mul_i32 s31, s20, {NS * KB}')
    A(f's_add_u32 s31, s31, {wbase}')
    A('s_xor_b32 s30, s28, 1')
    A(f's_mul_i32 s30, s30, {KS * KB}')
    A('s_add_u32 s30, s30, s31')
    A(f'v_add_u32 {v(vregs[1])}, s30, {v(vregs[0])}')
    A(f's_mul_i32 s30, s28, {KS * KB}')
    A('s_add_u32 s30, s30, s31')
    A(f'v_add_u32 {v(vregs[0])}, s30, {v(vregs[0])}')


def g3_wload(C, vregs, idx, wreg0, tag='w'):
    st, jj = idx // 2, idx % 2
    so, im = soff(st)
    C.vmem(f'buffer_load_dwordx4 {v(wreg0 + 4 * idx, 4)}, {v(vregs[jj])}, s[8:11], {so} offen offset:{im}', tag)


def g3_ex(mode, KS):
    return 252 if KS == 112 else (112 if mode == 'qkv' else 116)


def g3_pre(C, mode, KS, xbase, resbase=None):
    A = C.A
    NS = KS // 8
    EX = g3_ex(mode, KS)
    A(f's_mul_i32 s31, s20, {NS * KB}')
    A(f's_add_u32 s31, s31, {xbase}')
    A('s_add_u32 s30, s27, s29')
    A(f's_mul_i32 s32, s30, {KS * KB}')
    A('s_add_u32 s32, s32, s31')
    A('v_add_u32 v6, s32, v3')
    A('s_xor_b32 s30, s30, 1')
    A(f's_mul_i32 s32, s30, {KS * KB}')
    A('s_add_u32 s32, s32, s31')
    A('v_add_u32 v5, s32, v3')
    A('s_lshl_b32 s30, s20, 11')
    A('v_add_u32 v8, s30, v3')
    A('v_add_u32 v7, 0x10000, v8')
    for b in range(1, 8):
        A(f's_xor_b32 s30, s20, {b}')
        A('s_lshl_b32 s30, s30, 11')
        A(f's_add_u32 s30, s30, {(b - 1) * 16 * KB}')
        A(f'v_add_u32 {v(8 + b)}, s30, v3')
    if mode == 'qkv':
        A('v_lshrrev_b32 v2, 5, v1')
        A('v_lshlrev_b32 v4, 4, v2')
        A('s_lshl_b32 s31, s28, 7')
        A('s_lshl_b32 s30, s26, 6')
        A('s_add_u32 s31, s31, s30')
        A(f's_add_u32 s31, s31, {CSQKV}')
        C.vmem(f'buffer_load_dwordx4 {v(EX, 4)}, v4, s[8:11], s31 offen', 'ex')
        C.vmem(f'buffer_load_dwordx4 {v(EX + 4, 4)}, v4, s[8:11], s31 offen offset:32', 'ex')
        A('s_bfe_u32 s30, s20, 0x10001')
        A('s_lshl_b32 s30, s30, 6')
        A(f's_add_u32 s31, s30, {CSQKV + 2048}')
        C.vmem(f'buffer_load_dwordx4 {v(EX + 8, 4)}, v4, s[8:11], s31 offen', 'ex')
        C.vmem(f'buffer_load_dwordx4 {v(EX + 12, 4)}, v4, s[8:11], s31 offen offset:32', 'ex')
        A(f'v_and_b32 {v(QSX + 8)}, 31, v1')
        A(f'v_lshlrev_b32 {v(QSX + 8)}, 3, {v(QSX + 8)}')
        A(f'v_lshl_add_u32 {v(QSX + 8)}, v2, 13, {v(QSX + 8)}')
        A('s_lshl_b32 s30, s27, 13')
        A('s_lshl_b32 s31, s20, 10')
        A('s_add_u32 s30, s30, s31')
        A(f's_add_u32 s30, s30, {resbase}')
        A(f'v_add_u32 {v(QSX + 8)}, s30, {v(QSX + 8)}')
    else:
        A(f's_add_u32 s31, s49, {resbase}')
        C.vmem(f'buffer_load_dwordx4 {v(EX, 4)}, v3, s[8:11], s31 offen', 'ex')


def g3_main(C, mode, KS, wreg0, outbase=None, kvf=None, after_store=None, sxout=None, hook_b=None):
    A = C.A
    NS = KS // 8
    EX = g3_ex(mode, KS)
    if NS == 4:
        xreg = {(hh, st): 80 + (hh * 4 + st) * 4 for hh in range(2) for st in range(4)}
    else:
        slot = [80 + 4 * k for k in range(12)] + [240, 244]
        xreg = {(hh, st): slot[st] for hh in range(2) for st in range(NS)}

    def xload(hh, st):
        so, im = soff(st)
        C.vmem(f'buffer_load_dwordx4 {v(xreg[hh, st], 4)}, {v(5 + hh)}, s[8:11], {so} offen offset:{im}', f'x{hh}_{st}')

    for st in range(NS):
        xload(0, st)
    if NS == 4:
        xload(1, 0)
        xload(1, 1)
    C.wait('w')

    def wr(b):
        base = (ACCA if b & 1 else ACCB) + ((b >> 1) & 1) * 16 + (b >> 2) * 8
        return [f'ds_write_b128 {v(8 + b)}, {v(base + h2 * 4, 4)} offset:{h2 * 1024}' for h2 in range(2)]

    pend = []
    for hh in range(2):
        acc = ACCA if hh == 0 else ACCB
        for st in range(NS):
            C.wait(f'x{hh}_{st}')
            if hh == 0 and st == 0:
                C.stamp()
            for jj in range(2):
                c = '0' if st == 0 else v(acc + jj * 16, 16)
                A(f'v_mfma_f32_32x32x16_bf16 {v(acc + jj * 16, 16)}, {v(wreg0 + 4 * (2 * st + jj), 4)}, {v(xreg[hh, st], 4)}, {c}')
                if hh == 1 and (st >= 3 or (NS == 4 and st >= 2)):
                    for _ in range(2 if NS == 4 else 1):
                        if pend:
                            A(pend.pop(0))
            if hh == 0 and NS != 4:
                xload(1, st)
            if hh == 0 and NS == 4 and st < 2:
                xload(1, st + 2)
            if hh == 0 and NS == 4 and st == 2 and mode == 'qkv':
                for e in range(4):
                    C.vmem(f'buffer_load_dwordx2 {v(QSX + 2 * e, 2)}, {v(QSX + 8)}, s[8:11], 0 offen offset:{e * 256}', 'sx')
            if hh == 0 and st == NS - 1:
                flag_b(C)
            if hh == 1 and hook_b:
                hook_b(st)
            if hh == 1 and NS == 4 and st == 1:
                A('s_nop 5')
            if hh == 1 and NS != 4 and st == 2:
                A('s_nop 2')
        if hh == 0:
            pend = wr(1) + wr(5) + wr(3) + wr(7)
    assert not pend
    C.stamp()
    lkv = C.lab('nokv')
    if mode == 'qkv':
        la, lb = C.lab('ka'), C.lab('kb')
        A('s_cmp_ge_u32 s24, 2')
        A(f's_cbranch_scc1 {lb}')
        A('s_cmp_eq_u32 s24, s29')
        A(f's_cbranch_scc0 {la}')
        for hh in (1, 0):
            for st in range(4):
                c = '0' if st == 0 else v(KACC, 16)
                A(f'v_mfma_f32_32x32x16_bf16 {v(KACC, 16)}, {v(KVW + 4 * st, 4)}, {v(xreg[hh, st], 4)}, {c}')
            if hh == 1:
                A(f's_branch {lb}')
                A.label(la)
        A.label(lb)
        C.wait('sx')
        for e in range(4):
            A(f'v_add_f32 {v(QSX + e)}, {v(QSX + e)}, {v(QSX + 4 + e)}')
        for e in range(2):
            A(f'v_add_f32 {v(QSX + e)}, {v(QSX + e)}, {v(QSX + 2 + e)}')
        A('v_lshlrev_b32 v4, 3, v1')
        A('s_lshl_b32 s30, s20, 9')
        A(f's_add_u32 s30, s30, {STAT}')
        A('v_add_u32 v2, s30, v4')
        A(f'ds_write_b64 v2, {v(QSX, 2)}')
        A('v_and_b32 v4, 0xf8, v4')
        A('s_lshl_b32 s30, s29, 8')
        A(f's_add_u32 s30, s30, {STAT}')
        A('v_add_u32 v4, s30, v4')
    else:
        A('s_nop 10')
    for b in (4, 2, 6):
        for x in wr(b):
            A(x)
    if mode == 'qkv':
        A('s_cmp_ge_u32 s24, 2')
        A(f's_cbranch_scc1 {lkv}')
        A(f'v_add_u32 v2, {KVRED}, v8')
        for k4 in range(4):
            A(f'ds_write_b128 v2, {v(KACC + k4 * 4, 4)} offset:{(k4 >> 1) * 16 * KB + (k4 & 1) * 1024}')
        A.label(lkv)
    A('s_waitcnt lgkmcnt(0)')
    A('s_barrier')
    for b in range(1, 8):
        for h2 in range(2):
            base, off = ('v8', (b - 1) * 16 * KB) if b <= 4 else ('v7', (b - 5) * 16 * KB)
            A(f'ds_read_b128 {v(ACCB + b * 8 + h2 * 4, 4)}, {base} offset:{off + h2 * 1024}')
    T = 80

    def red(base, waits):
        for stp in (32, 16, 8):
            for r in range(stp):
                A(f'v_add_f32 {v(base + r)}, {v(base + r)}, {v(base + stp + r)}')
    if mode == 'qkv':
        A('s_waitcnt lgkmcnt(6)')
        for ww in range(8):
            A(f'ds_read_b64 {v(T + ww * 2, 2)}, v4 offset:{ww * 512}')
        A('s_waitcnt lgkmcnt(8)')
    else:
        C.wait('ex')
        for m in range(4):
            A(f'v_lshlrev_b32 {v(T + 2 * m)}, 16, {v(EX + m)}')
            A(f'v_and_b32 {v(T + 2 * m + 1)}, 0xffff0000, {v(EX + m)}')
        for r in range(8):
            A(f'v_add_f32 {v(ACCB + r)}, {v(ACCB + r)}, {v(T + r)}')
        A('s_waitcnt lgkmcnt(0)')
    red(ACCB, None)
    P = ACCB + 8
    if mode == 'qkv':
        A('s_waitcnt lgkmcnt(0)')
        for stp in (8, 4, 2):
            for e in range(stp):
                A(f'v_add_f32 {v(T + e)}, {v(T + e)}, {v(T + e + stp)}')
        A(f'v_mul_f32 {v(T)}, {f32(1.0 / 512)}, {v(T)}')
        A(f'v_mul_f32 {v(T + 1)}, {f32(1.0 / 512)}, {v(T + 1)}')
        A(f'v_fma_f32 {v(T + 1)}, -{v(T)}, {v(T)}, {v(T + 1)}')
        A(f'v_max_f32 {v(T + 1)}, 0, {v(T + 1)}')
        A(f'v_add_f32 {v(T + 1)}, {f32(1e-5)}, {v(T + 1)}')
        A(f'v_rsq_f32 {v(T + 1)}, {v(T + 1)}')
        C.wait('ex')
        for r in range(8):
            A(f'v_fma_f32 {v(ACCB + r)}, -{v(T)}, {v(EX + r)}, {v(ACCB + r)}')
        A(f'v_mul_f32 {v(T + 2)}, {f32(QSCALE)}, {v(T + 1)}')
        for r in range(8):
            A(f'v_mul_f32 {v(ACCB + r)}, {v(T + 2)}, {v(ACCB + r)}')
        for m in range(4):
            A(f'v_cvt_pk_bf16_f32 {v(P + m)}, {v(ACCB + 2 * m)}, {v(ACCB + 2 * m + 1)}')
        A(f's_add_u32 s31, s49, {QF}')
        C.vmem(f'buffer_store_dwordx4 {v(P, 4)}, v3, s[8:11], s31 offen', 'st')
        le, lv = C.lab('ke'), C.lab('v')
        A('s_cmp_ge_u32 s24, 2')
        A(f's_cbranch_scc1 {le}')
        A('s_and_b32 s30, s20, 5')
        A('s_cmp_lg_u32 s30, s24')
        A(f's_cbranch_scc1 {le}')
        A('s_bfe_u32 s34, s20, 0x10001')
        A('s_lshl_b32 s30, s34, 14')
        A(f's_add_u32 s30, s30, {KVRED}')
        A('v_add_u32 v4, s30, v3')
        KR = 128
        for ww in range(8):
            for h2 in range(2):
                A(f'ds_read_b128 {v(KR + ww * 8 + h2 * 4, 4)}, v4 offset:{ww * 2048 + h2 * 1024}')
            if ww == 6:
                A('s_waitcnt lgkmcnt(4)')
        A('s_waitcnt lgkmcnt(0)')
        red(KR, None)
        for r in range(8):
            A(f'v_fma_f32 {v(KR + r)}, -{v(T)}, {v(EX + 8 + r)}, {v(KR + r)}')
        for r in range(8):
            A(f'v_mul_f32 {v(KR + r)}, {v(T + 1)}, {v(KR + r)}')
        KP = KR + 8
        for m in range(4):
            A(f'v_cvt_pk_bf16_f32 {v(KP + m)}, {v(KR + 2 * m)}, {v(KR + 2 * m + 1)}')
        A('s_add_u32 s30, s27, s29')
        A(f's_mul_i32 s30, s30, {KVT}')
        A(f's_add_u32 s30, s30, {kvf}')
        A('s_cmp_lg_u32 s34, 0')
        A(f's_cbranch_scc1 {lv}')
        A(f'buffer_store_dwordx4 {v(KP, 4)}, v3, s[8:11], s30 offen')
        for r in range(4):
            A(f'v_mov_b32 {v(8 + r)}, 0x3f803f80')
            A(f'v_mov_b32 {v(12 + r)}, 0')
        A(f'v_mul_u32_u24 v4, {VBS}, v1')
        A('s_mov_b64 exec, 3')
        A(f'buffer_store_dwordx4 v[8:11], v4, s[8:11], s30 offen offset:{1024 + 512}')
        A(f'buffer_store_dwordx4 v[12:15], v4, s[8:11], s30 offen offset:{1024 + 528}')
        A('s_mov_b64 exec, -1')
        A(f's_branch {le}')
        A.label(lv)
        A('v_bfe_u32 v4, v1, 4, 1')
        A(f'v_mul_u32_u24 v4, {VBS}, v4')
        A('v_bfe_u32 v5, v1, 2, 1')
        A('v_lshl_add_u32 v4, v5, 8, v4')
        A('v_and_b32 v5, 3, v1')
        A('v_lshl_add_u32 v4, v5, 1, v4')
        A('v_bfe_u32 v5, v1, 3, 1')
        A('v_lshl_add_u32 v4, v5, 3, v4')
        A('v_lshrrev_b32 v5, 5, v1')
        A('v_lshl_add_u32 v4, v5, 6, v4')
        for r in range(8):
            d = (r % 4) + 8 * (r // 4)
            op = 'buffer_store_short' if r % 2 == 0 else 'buffer_store_short_d16_hi'
            A(f'{op} {v(KP + r // 2)}, v4, s[8:11], s30 offen offset:{1024 + d * 16}')
        A.label(le)
    else:
        for m in range(4):
            A(f'v_cvt_pk_bf16_f32 {v(P + m)}, {v(ACCB + 2 * m)}, {v(ACCB + 2 * m + 1)}')
        if mode == 'res':
            A(f's_add_u32 s31, s49, {outbase}')
            C.vmem(f'buffer_store_dwordx4 {v(P, 4)}, v3, s[8:11], s31 offen{WT}', 'st')
            blk_stats(C, P, T)
            A('s_lshr_b32 s31, s49, 2')
            A(f's_add_u32 s31, s31, {sxout}')
            A('v_lshlrev_b32 v4, 3, v1')
            A('s_mov_b32 exec_hi, 0')
            C.vmem(f'buffer_store_dwordx2 {v(T, 2)}, v4, s[8:11], s31 offen{WT}', 'st')
            A('s_mov_b64 exec, -1')
            if after_store:
                after_store()
        else:
            A('v_and_b32 v4, 31, v1')
            A('v_lshlrev_b32 v4, 10, v4')
            A('v_lshrrev_b32 v5, 5, v1')
            A('v_lshl_add_u32 v4, v5, 4, v4')
            A('s_add_u32 s30, s27, s29')
            A('s_lshl_b32 s30, s30, 15')
            A('s_lshl_b32 s31, s28, 6')
            A('s_add_u32 s30, s30, s31')
            A('s_lshl_b32 s31, s26, 5')
            A('s_add_u32 s30, s30, s31')
            A(f'v_permlane32_swap_b32 {v(P)}, {v(P + 2)}')
            A(f'v_permlane32_swap_b32 {v(P + 1)}, {v(P + 3)}')
            C.vmem(f'buffer_store_dwordx4 {v(P, 4)}, v4, s[12:15], s30 offen', 'st')


def qkv_wstep(C, st):
    A = C.A
    if st == 0:
        g3_waddr(C, (5, 6), 32, WQKVP)
    if st < 4:
        for i in (2 * st, 2 * st + 1):
            g3_wload(C, (5, 6), i, 128)
    if st == 5:
        A('s_lshl_b32 s30, s20, 12')
        A(f's_add_u32 s30, s30, {WQKVP + 16 * 32 * KB}')
        A('s_cmp_lt_u32 s24, 2')
        A('s_cselect_b64 exec, -1, 0')
        for k in range(4):
            C.vmem(f'buffer_load_dwordx4 {v(KVW + 4 * k, 4)}, v3, s[8:11], s30 offen offset:{k * 1024}', 'w')
        A('s_mov_b64 exec, -1')


def qkv_wloads(C):
    for st in range(6):
        qkv_wstep(C, st)


def att_phase(C, kvf, stubs):
    A = C.A
    tg = C.tag
    Q, CN, S0, S1, O, P, KF, VF, VK, VV, T = 4, 8, 24, 40, 56, 72, 80, 88, 104, 105, 106
    S = [S0, S1]
    A('s_and_b32 s30, s22, 3')
    A('s_lshl_b32 s31, s21, 2')
    A('s_add_u32 s30, s30, s31')
    A('s_lshl_b32 s30, s30, 5')
    A('s_lshr_b32 s31, s22, 2')
    A('s_lshl_b32 s31, s31, 3')
    A('s_add_u32 s30, s30, s31')
    A('s_add_u32 s30, s30, s20')
    A('s_lshl_b32 s30, s30, 10')
    A(f's_add_u32 s31, s30, {QF}')
    A(f's_add_u32 s36, s30, {OF}')
    A('s_lshl_b32 s37, s20, 10')
    A(f's_add_u32 s38, s37, {kvf}')

    def kvdma(r):
        A(f's_add_u32 m0, s37, {r * 8192}')
        A(f's_add_u32 s30, s38, {r * 8192}')
        C.vmem('buffer_load_dwordx4 v3, s[8:11], s30 offen lds', f'kv{r}')
    kvdma(0)
    C.vmem(f'buffer_load_dwordx4 {v(Q, 4)}, v3, s[8:11], s31 offen', 'q')
    for r in range(1, 5):
        kvdma(r)
    A(f'v_mov_b32 {v(VK)}, v3')
    A(f'v_and_b32 {v(T)}, 15, v1')
    A(f'v_lshrrev_b32 {v(T + 1)}, 5, v1')
    A(f'v_lshl_add_u32 {v(T)}, {v(T + 1)}, 4, {v(T)}')
    A(f'v_lshlrev_b32 {v(T)}, 4, {v(T)}')
    A(f'v_and_b32 {v(T + 1)}, 31, v1')
    A(f'v_cmp_eq_u32 vcc, 16, {v(T + 1)}')
    A(f'v_mov_b32 {v(T + 2)}, 512')
    A('s_nop 0')
    A(f'v_cndmask_b32 {v(T)}, {v(T)}, {v(T + 2)}, vcc')
    A(f'v_cmp_lt_u32 vcc, 16, {v(T + 1)}')
    A(f'v_mov_b32 {v(T + 2)}, 528')
    A('s_nop 0')
    A(f'v_cndmask_b32 {v(T)}, {v(T)}, {v(T + 2)}, vcc')
    A(f'v_add_u32 {v(VV)}, 1024, {v(T)}')
    for r in range(16):
        A(f'v_mov_b32 {v(O + r)}, 0')
    for m in range(4, 8):
        A(f'v_mov_b32 {v(P + m)}, 0')
    for m in range(4):
        A(f'v_mov_b32 {v(VF + 12 + m)}, 0')
    C.stamp()
    C.wait('kv2')
    A('s_barrier')
    C.stamp()

    def rdK(buf, t):
        A(f'ds_read_b128 {v(KF + buf * 4, 4)}, {v(VK)} offset:{t * KVT}')

    def rdV(buf, t):
        A(f'ds_read_b128 {v(VF + buf * 8, 4)}, {v(VV)} offset:{t * KVT}')
        A(f'ds_read_b128 {v(VF + buf * 8 + 4, 4)}, {v(VV)} offset:{t * KVT + VBS}')

    rdK(0, 0)
    rdK(1, 1)
    rdV(0, 0)
    A('s_waitcnt lgkmcnt(3)')
    A(f'v_mfma_f32_32x32x16_bf16 {v(S0, 16)}, {v(KF, 4)}, {v(Q, 4)}, 0')
    for r in range(5, 11):
        kvdma(r)
    A(f'v_max3_f32 {v(T)}, {v(S0)}, {v(S0 + 1)}, {v(S0 + 2)}')
    for r in range(3, 15, 2):
        A(f'v_max3_f32 {v(T)}, {v(T)}, {v(S0 + r)}, {v(S0 + r + 1)}')
    A(f'v_max_f32 {v(T)}, {v(T)}, {v(S0 + 15)}')
    A(f'v_mov_b32 {v(T + 1)}, {v(T)}')
    A('s_nop 1')
    A(f'v_permlane32_swap_b32 {v(T)}, {v(T + 1)}')
    A(f'v_max_f32 {v(T)}, {v(T)}, {v(T + 1)}')
    for r in range(16):
        A(f'v_sub_f32 {v(CN + r)}, 0, {v(T)}')
    for r in range(16):
        A(f'v_sub_f32 {v(S0 + r)}, {v(S0 + r)}, {v(T)}')
    A('s_setprio 3')
    C.stamp()
    UN = 8
    for it in range(8):
        if it == 1:
            for r in range(11, 17):
                kvdma(r)
            C.wait('kv10')
            A('s_barrier')
        if it == 4:
            C.wait('kv16')
            A('s_barrier')
            A('s_setprio 2')
        if it == 6:
            A('s_setprio 1')
        if it == 7:
            A('s_setprio 0')
        if stubs.get(it):
            stubs[it]()
        A(f's_call_b64 s[34:35], {tg}_body')
    A(f'v_mfma_f32_32x32x16_bf16 {v(O, 16)}, {v(VF + 8 + 4, 4)}, {v(P + 4, 4)}, {v(O, 16)}')
    A('s_mov_b32 s39, 0')
    C.stamp()
    A('s_waitcnt lgkmcnt(0)')
    A('s_nop 10')
    A.label(f'{tg}_fin')
    A(f'v_mov_b32 {v(T)}, {v(O + 8)}')
    A(f'v_mov_b32 {v(T + 1)}, {v(O + 8)}')
    A(f'v_mul_f32 {v(T + 2)}, 0, {v(O)}')
    A(f'v_fma_f32 {v(T + 2)}, {v(O + 1)}, 0, {v(T + 2)}')
    A(f'v_permlane32_swap_b32 {v(T)}, {v(T + 1)}')
    for r in range(2, 8):
        A(f'v_fma_f32 {v(T + 2)}, {v(O + r)}, 0, {v(T + 2)}')
    A(f'v_add_f32 {v(T + 2)}, {v(T + 2)}, {v(T)}')
    A(f'v_mov_b32 {v(T + 3)}, {f32(2.0 ** 30)}')
    A(f'v_cmp_nle_f32 vcc, {v(T + 2)}, {v(T + 3)}')
    A(f'v_rcp_f32 {v(T)}, {v(T)}')
    A('s_cmp_eq_u32 s39, 99')
    A(f's_cbranch_scc1 {tg}_store')
    A(f's_cbranch_vccnz {tg}_slow')
    A.label(f'{tg}_store')
    for r in range(8):
        A(f'v_mul_f32 {v(O + r)}, {v(T)}, {v(O + r)}')
    for m in range(4):
        A(f'v_cvt_pk_bf16_f32 {v(P + m)}, {v(O + 2 * m)}, {v(O + 2 * m + 1)}')
    C.vmem(f'buffer_store_dwordx4 {v(P, 4)}, v3, s[8:11], s36 offen{WT}', 'st')

    def tail():
        A.raw('.p2align 6')
        A.label(f'{tg}_body')
        for t in range(UN):
            cur, nxt = t & 1, (t + 1) & 1
            Sc, Sn = S[cur], S[nxt]
            A('s_waitcnt lgkmcnt(2)')
            A(f'v_mfma_f32_32x32x16_bf16 {v(Sn, 16)}, {v(KF + nxt * 4, 4)}, {v(Q, 4)}, {v(CN, 16)}')
            rdK(cur, t + 2)
            for r in range(6):
                A(f'v_exp_f32 {v(Sc + r)}, {v(Sc + r)}')
            A(f'v_mfma_f32_32x32x16_bf16 {v(O, 16)}, {v(VF + nxt * 8 + 4, 4)}, {v(P + 4, 4)}, {v(O, 16)}')
            for r in range(6, 8):
                A(f'v_exp_f32 {v(Sc + r)}, {v(Sc + r)}')
            for m in range(4):
                A(f'v_cvt_pk_bf16_f32 {v(P + m)}, {v(Sc + 2 * m)}, {v(Sc + 2 * m + 1)}')
            A(f'v_exp_f32 {v(Sc + 8)}, {v(Sc + 8)}')
            A(f'v_exp_f32 {v(Sc + 9)}, {v(Sc + 9)}')
            A('s_waitcnt lgkmcnt(1)')
            A(f'v_mfma_f32_32x32x16_bf16 {v(O, 16)}, {v(VF + cur * 8, 4)}, {v(P, 4)}, {v(O, 16)}')
            rdV(nxt, t + 1)
            for r in range(10, 16):
                A(f'v_exp_f32 {v(Sc + r)}, {v(Sc + r)}')
            for m in range(4, 8):
                A(f'v_cvt_pk_bf16_f32 {v(P + m)}, {v(Sc + 2 * m)}, {v(Sc + 2 * m + 1)}')
        A(f'v_add_u32 {v(VK)}, {UN * KVT}, {v(VK)}')
        A(f'v_add_u32 {v(VV)}, {UN * KVT}, {v(VV)}')
        A('s_setpc_b64 s[34:35]')
        A.label(f'{tg}_slow')
        A(f'v_subrev_u32 {v(VK)}, {64 * KVT}, {v(VK)}')
        A(f'v_subrev_u32 {v(VV)}, {64 * KVT}, {v(VV)}')
        for r in range(16):
            A(f'v_mov_b32 {v(O + r)}, 0')
        M = T + 4
        A(f'v_sub_f32 {v(M)}, 0, {v(CN)}')
        A.label(f'{tg}_sloop')
        rdK(0, 0)
        rdV(0, 0)
        A('s_waitcnt lgkmcnt(0)')
        A(f'v_mfma_f32_32x32x16_bf16 {v(S0, 16)}, {v(KF, 4)}, {v(Q, 4)}, 0')
        A('s_nop 11')
        A(f'v_max3_f32 {v(T)}, {v(S0)}, {v(S0 + 1)}, {v(S0 + 2)}')
        for r in range(3, 15, 2):
            A(f'v_max3_f32 {v(T)}, {v(T)}, {v(S0 + r)}, {v(S0 + r + 1)}')
        A(f'v_max3_f32 {v(T)}, {v(T)}, {v(S0 + 15)}, {v(M)}')
        A(f'v_mov_b32 {v(T + 1)}, {v(T)}')
        A('s_nop 1')
        A(f'v_permlane32_swap_b32 {v(T)}, {v(T + 1)}')
        A(f'v_max_f32 {v(T)}, {v(T)}, {v(T + 1)}')
        A(f'v_sub_f32 {v(T + 1)}, {v(M)}, {v(T)}')
        A(f'v_exp_f32 {v(T + 1)}, {v(T + 1)}')
        A(f'v_mov_b32 {v(M)}, {v(T)}')
        for r in range(16):
            A(f'v_sub_f32 {v(S0 + r)}, {v(S0 + r)}, {v(T)}')
        for r in range(16):
            A(f'v_exp_f32 {v(S0 + r)}, {v(S0 + r)}')
        for r in range(16):
            A(f'v_mul_f32 {v(O + r)}, {v(T + 1)}, {v(O + r)}')
        for m in range(8):
            A(f'v_cvt_pk_bf16_f32 {v(P + m)}, {v(S0 + 2 * m)}, {v(S0 + 2 * m + 1)}')
        A('s_nop 1')
        A(f'v_mfma_f32_32x32x16_bf16 {v(O, 16)}, {v(VF, 4)}, {v(P, 4)}, {v(O, 16)}')
        A(f'v_mfma_f32_32x32x16_bf16 {v(O, 16)}, {v(VF + 4, 4)}, {v(P + 4, 4)}, {v(O, 16)}')
        A(f'v_add_u32 {v(VK)}, {KVT}, {v(VK)}')
        A(f'v_add_u32 {v(VV)}, {KVT}, {v(VV)}')
        A('s_nop 11')
        A('s_add_u32 s39, s39, 1')
        A('s_cmp_lt_u32 s39, 64')
        A(f's_cbranch_scc1 {tg}_sloop')
        A('s_mov_b32 s39, 99')
        A(f's_branch {tg}_fin')
    return tail


V_WGU = 112


def gu_waddr(C):
    A = C.A
    A('s_mul_i32 s30, s22, 7')
    A('s_min_u32 s31, s20, 6')
    A('s_add_u32 s40, s30, s31')
    A('s_lshl_b32 s30, s40, 15')
    A(f's_add_u32 s30, s30, {WGUP}')
    A(f'v_add_u32 {v(V_WGU)}, s30, v3')


def gu_wload(C, ks):
    so, im = soff(ks)
    C.vmem(f'buffer_load_dwordx4 {v(128 + 4 * ks, 4)}, {v(V_WGU)}, s[8:11], {so} offen offset:{im}', 'wg')


def gu_pre(C):
    A = C.A
    CS = 112
    A('v_mov_b32 v15, v113')
    A('v_mov_b32 v9, v114')
    A(f'v_mov_b32 v14, {v(V_WGU)}')
    A('s_lshl_b32 s30, s21, 2')
    A('s_add_u32 s30, s30, s25')
    A('s_lshl_b32 s30, s30, 15')
    A('s_lshl_b32 s31, s26, 11')
    A('s_add_u32 s30, s30, s31')
    A(f's_add_u32 s30, s30, {XB}')
    A('v_add_u32 v13, s30, v3')
    A('s_lshl_b32 s48, s25, 15')
    A('s_add_u32 s48, s48, s31')
    A('v_add_u32 v7, 0x10000, v3')
    A('v_lshrrev_b32 v11, 5, v1')
    A('v_lshlrev_b32 v11, 4, v11')
    A('s_lshl_b32 s30, s40, 7')
    A(f's_add_u32 s30, s30, {CSGU}')
    for g in range(4):
        C.vmem(f'buffer_load_dwordx4 {v(CS + g * 4, 4)}, v11, s[8:11], s30 offen offset:{g * 32}', 'cs')
    A('v_and_b32 v12, 31, v1')
    A('v_lshlrev_b32 v12, 3, v12')
    A('v_lshl_add_u32 v12, v11, 8, v12')
    A('s_lshl_b32 s30, s21, 15')
    A(f's_add_u32 s30, s30, {SXB}')
    A('v_add_u32 v12, s30, v12')
    A('v_lshlrev_b32 v8, 3, v1')
    A(f'v_add_u32 v8, {128 * KB}, v8')


def gu_main(C, after_store=None):
    A = C.A
    ACC, XF, CS = 16, 80, 112

    def dma(c):
        A(f's_add_u32 m0, s48, {c * 4096}')
        so = '0' if c == 0 else s(40 + c)
        A('s_nop 0')
        for k in range(2):
            C.vmem(f'buffer_load_dwordx4 v13, s[8:11], {so} offen offset:{k * 1024} lds', f'x{c}')
    dma(0)
    dma(1)

    def rd(ks):
        buf = ks & 1
        for i in range(4):
            base = 'v3' if i < 2 else 'v7'
            A(f'ds_read_b128 {v(XF + buf * 16 + i * 4, 4)}, {base} offset:{(i & 1) * 32768 + ks * 1024}')

    def stats_load(i):
        for e in range(16):
            C.vmem(f'buffer_load_dwordx2 {v(ACC + (i & 1) * 32 + 2 * e, 2)}, v12, s[8:11], {"0" if i == 0 else s(40 + 2 * i)} offen offset:{e * 256}', f's{i}')

    def stats_sum(i):
        b = ACC + (i & 1) * 32
        C.wait(f's{i}')
        for stp in (16, 8, 4, 2):
            for e in range(stp):
                A(f'v_add_f32 {v(b + e)}, {v(b + e)}, {v(b + e + stp)}')
        A(f'v_mov_b32 {v(b + 2)}, {v(b)}')
        A(f'v_mov_b32 {v(b + 3)}, {v(b + 1)}')
        A('s_nop 1')
        A(f'v_permlane32_swap_b32 {v(b)}, {v(b + 2)}')
        A(f'v_permlane32_swap_b32 {v(b + 1)}, {v(b + 3)}')
        A(f'v_add_f32 {v(b)}, {v(b)}, {v(b + 2)}')
        A(f'v_add_f32 {v(b + 1)}, {v(b + 1)}, {v(b + 3)}')
        A(f'v_mul_f32 {v(b)}, {f32(-1.0 / 512)}, {v(b)}')
        A(f'v_mul_f32 {v(b + 1)}, {f32(1.0 / 512)}, {v(b + 1)}')
        A(f'v_fma_f32 {v(b + 1)}, -{v(b)}, {v(b)}, {v(b + 1)}')
        A(f'v_max_f32 {v(b + 1)}, 0, {v(b + 1)}')
        A(f'v_add_f32 {v(b + 1)}, {f32(1e-5)}, {v(b + 1)}')
        A(f'v_rcp_f32 {v(b + 1)}, {v(b + 1)}')
        A('s_nop 0')
        A(f'ds_write_b64 v8, {v(b, 2)} offset:{i * 512}')
        A('s_waitcnt lgkmcnt(0)')

    def loop(idle):
        C.wait('x0')
        A('s_barrier')
        C.stamp()
        if not idle:
            rd(0)
        for ks in range(32):
            if ks + 1 < 32:
                if (ks + 1) % 4 == 0:
                    C.wait(f'x{(ks + 1) // 4}')
                    A('s_barrier')
                if not idle:
                    rd(ks + 1)
                    if ks == 30:
                        for i in range(4):
                            A(f'ds_read_b64 {v(4 + 2 * i, 2)}, v8 offset:{i * 512}' if i < 2 else f'ds_read_b64 {v(10 + 2 * (i - 2), 2)}, v8 offset:{i * 512}')
                        A('s_waitcnt lgkmcnt(8)')
                    else:
                        A('s_waitcnt lgkmcnt(4)')
            elif not idle:
                A('s_waitcnt lgkmcnt(0)')
            buf = ks & 1
            if ks == 24 and not idle:
                C.wait('wg')
            todo = []
            if ks == 10:
                C.flagb = True
                flag_b(C)
            if ks < 6:
                todo.append(lambda: dma(ks + 2))
            if 6 <= ks < 10 and not idle:
                for k2 in (24 + 2 * (ks - 6), 25 + 2 * (ks - 6)):
                    so, im = soff(k2)
                    todo.append(lambda k2=k2, so=so, im=im: C.vmem(f'buffer_load_dwordx4 {v(128 + 4 * k2, 4)}, v14, s[8:11], {so} offen offset:{im}', 'wg'))
            if ks >= 10:
                for st in [st for st in range(28) if st < ks and st not in wdone][:2]:
                    todo.append(lambda st=st: g3_wload(C, (15, 9), st, 128))
                    wdone.add(st)
            for i in range(4):
                if not idle:
                    c = '0' if ks == 0 else v(ACC + i * 16, 16)
                    A(f'v_mfma_f32_32x32x16_bf16 {v(ACC + i * 16, 16)}, {v(128 + 4 * ks, 4)}, {v(XF + buf * 16 + i * 4, 4)}, {c}')
                if i % 2 == 0 and todo:
                    todo.pop(0)()
            if idle:
                if ks == 6:
                    stats_load(0)
                    stats_load(1)
                if ks == 8:
                    stats_sum(0)
                    stats_load(2)
                    stats_sum(1)
                    stats_load(3)
                if ks == 12:
                    stats_sum(2)
                    stats_sum(3)
        assert len(wdone) == 28
        C.stamp()
        if idle:
            if after_store:
                after_store()
            return
        C.wait('cs')
        P = XF
        A(f's_mul_i32 s30, s21, {4 * 112}')
        A('s_add_u32 s30, s30, s40')
        A('s_lshl_b32 s30, s30, 10')
        A(f's_add_u32 s30, s30, {HF}')
        A('s_nop 4')
        for i in range(4):
            acc = ACC + i * 16
            st = v(4 + 2 * i, 2) if i < 2 else v(10 + 2 * (i - 2), 2)
            for r in range(0, 16, 2):
                A(f'v_pk_fma_f32 {v(acc + r, 2)}, {st}, {v(CS + r, 2)}, {v(acc + r, 2)} op_sel_hi:[0,1,1]')
            for r in range(0, 8, 2):
                A(f'v_pk_mul_f32 {v(acc + r, 2)}, {v(acc + r, 2)}, {v(acc + 8 + r, 2)}')
            for r in range(0, 8, 2):
                A(f'v_pk_mul_f32 {v(acc + r, 2)}, {v(acc + r, 2)}, {st} op_sel:[0,1] op_sel_hi:[1,1]')
            pp = P + i * 4
            for m in range(4):
                A(f'v_cvt_pk_bf16_f32 {v(pp + m)}, {v(acc + 2 * m)}, {v(acc + 2 * m + 1)}')
            C.vmem(f'buffer_store_dwordx4 {v(pp, 4)}, v3, s[8:11], s30 offen{WT}', 'st')
            if i < 3:
                A(f's_add_u32 s30, s30, {112 * KB}')
        if after_store:
            after_store()

    ls, le = C.lab('gs'), C.lab('ge')
    A('s_cmp_eq_u32 s20, 7')
    A(f's_cbranch_scc1 {ls}')
    save, ns = list(C.vm), C.nstamp
    wdone = set()
    loop(False)
    A(f's_branch {le}')
    A.label(ls)
    C.vm, C.nstamp = list(save), ns
    wdone = set()
    loop(True)
    A.label(le)
    C.vm = ['st']


def gen_qkv1(A):
    name = 'qkv1_kernel'
    C = Ctx(A, 'q1')
    kernel_begin(A, name)
    setup(C, False, 'q1_end')
    C.stamp()
    qkv_wloads(C)
    g3_pre(C, 'qkv', 32, XA, resbase=SXA)
    g3_main(C, 'qkv', 32, 128, kvf=KVF)
    C.stamp()
    stamp_end(C, 1)
    A.label('q1_end')
    A('s_endpgm')
    return dict(name=name, grid=256, block=512, lds=LDS_BYTES, nv=256, na=0)


def gen_layer(A, layer):
    name = f'layer{layer}_kernel'
    tg = f'l{layer}'
    end = f'{tg}_end'
    C = Ctx(A, tg)
    last = layer == 1
    xin = XA if layer == 0 else XC
    kvf = KVF if layer == 0 else KVF2
    sy = 4 * layer
    kernel_begin(A, name)
    setup(C, last, end)

    def pre_addr():
        gu_waddr(C)
        g3_waddr(C, (113, 114), 112, WDP)
        g3_waddr(C, (116, 117), 32, WOP)

    def pf(lo, hi):
        def f():
            for ks in range(lo, hi):
                gu_wload(C, ks)
        return f

    def pf_wo():
        for i in range(8):
            g3_wload(C, (116, 117), i, 224)

    stubs = {2: lambda: (pre_addr(), pf(0, 8)()), 3: pf(8, 16), 5: pf(16, 24), 6: pf_wo}

    def need_wo():
        A('s_lshr_b32 s30, s20, 1')
        A('s_lshl_b32 s30, s30, 2')
        A('s_lshl_b32 s31, s23, 1')
        A('s_add_u32 s30, s30, s31')
        A('s_lshl_b32 s32, 3, s30')

    def need_gu():
        A('s_lshr_b32 s30, s25, 1')
        A('s_lshl_b32 s32, 0x5555, s30')
        A('s_cmp_eq_u32 s20, 7')
        A('s_cselect_b32 s32, 0xffff, s32')

    def need_dn():
        A('s_lshl_b32 s30, s20, 1')
        A('s_lshl_b32 s32, 3, s30')

    def need_qkv():
        A('s_lshl_b32 s30, s20, 1')
        A('s_add_u32 s30, s30, s23')
        A('s_lshl_b32 s32, 1, s30')

    tail = att_phase(C, kvf, stubs)
    C.stamp()
    g3_pre(C, 'res', 32, OF, resbase=xin)
    handoff(C, sy + 0, end, need_wo)
    C.stamp()
    g3_main(C, 'res', 32, 224, outbase=XB, sxout=SXB)
    C.stamp()
    gu_pre(C)
    handoff(C, sy + 1, end, need_gu)
    C.stamp()
    gu_main(C)
    C.stamp()
    g3_pre(C, 'res', 112, HF, resbase=XB)
    handoff(C, sy + 2, end, need_dn)
    C.stamp()
    if last:
        g3_main(C, 'out', 112, 128)
        C.stamp()
    else:
        g3_main(C, 'res', 112, 128, outbase=XC, sxout=SXC, hook_b=lambda st: qkv_wstep(C, st))
        C.stamp()
        g3_pre(C, 'qkv', 32, XC, resbase=SXC)
        handoff(C, sy + 3, end, need_qkv)
        C.stamp()
        g3_main(C, 'qkv', 32, 128, kvf=KVF2)
        C.stamp()
    stamp_end(C, 2 + layer)
    A.label(end)
    A('s_endpgm')
    tail()
    return dict(name=name, grid=256, block=512, lds=LDS_BYTES, nv=256, na=0)


def gen_zero_flags(A):
    pass


def build():
    A = Asm()
    ks = {}
    G1.STAMP = False
    ks['pack'] = G1.gen_pack(A, zero=(FLG, 32 * KB), stats=(SXA, blk_stats, Ctx(A, 'pk')))
    ks['qkv1'] = gen_qkv1(A)
    ks['l0'] = gen_layer(A, 0)
    ks['l1'] = gen_layer(A, 1)
    order = ['pack', 'qkv1', 'l0', 'l1']
    body = A.text()
    probs = lint(body)
    for p in probs:
        print('LINT:', p, file=sys.stderr)
    head = '; generated by gen/gen2.py\n'
    for k in order:
        d = ks[k]
        head += f"; @launch kernel={d['name']} grid=({d['grid']},1,1) block=({d['block']},1,1) lds={d['lds']}\n"
    head += '.amdgcn_target "amdgcn-amd-amdhsa--gfx950"\n.text\n'
    tail = '.section .rodata,"a"\n'
    for k, d in ks.items():
        tail += '.p2align 6\n' + descriptor(d['name'], d['nv'], d['na'], nsgpr=100)
    return head + body + tail


if __name__ == '__main__':
    if 'stamp' in sys.argv:
        STAMP = True
    for arg in sys.argv[2:]:
        if '=' in arg:
            k, val = arg.split('=')
            globals()[k] = int(val)
    out = sys.argv[1] if len(sys.argv) > 1 else f'cdna_kernels/{NAME}.s'
    open(out, 'w').write(build())
    print('wrote', out)
```

```python
import sys
import math
import struct
from asmlib import Asm, v, a, s, lint
import gen as G1
from gen import f32, kernel_begin, descriptor, ws_srd, KB

NAME = G1.NAME
WQKVP, WOP, WGUP, WDP, CSQKV, CSGU = G1.WQKVP, G1.WOP, G1.WGUP, G1.WDP, G1.CSQKV, G1.CSGU
KVF, XA, XB, QF, OF, HF = G1.KVF, G1.XA, G1.XB, G1.QF, G1.OF, G1.HF
WS_SIZE, KVT, VBS, QSCALE = G1.WS_SIZE, G1.KVT, G1.VBS, G1.QSCALE
XC = G1.WS_END
KVF2 = XC + 2048 * KB
FLG = KVF2 + 144 * KB
SXA = FLG + 32 * KB
SXB = SXA + 512 * KB
SXC = SXB + 512 * KB
CSP = SXC + 512 * KB
PFL = CSP + 128 * KB
WS_END = PFL + 4 * KB
STAMPS = G1.STAMPS

STAMP = False
WT = ' sc0 sc1'
LDS_BYTES = 160 * KB
FINE = 0
PK_I = 1
PK_C = 4
PK_F = 6
PK_P = 10
RT = 0
TOUCH = 1
ATT_UN = 4
ATT_PFEND = 1
G3_PR4 = 7
G3_PR14 = 6
G2_ST8 = [2, 2, 2, 2]
G2_ST28 = [2, 2, 4, 4, 4, 4, 4, 4]
G2_PRE8 = 4
G2_PRE28 = 6


class Ctx:
    def __init__(self, A, tag):
        self.A = A
        self.tag = tag
        self.vm = []
        self.nlab = 0
        self.nstamp = 1

    def lab(self, base):
        self.nlab += 1
        return f'{self.tag}_{base}{self.nlab}'

    def vmem(self, text, tag):
        self.A(text)
        self.vm.append(tag)
        assert len(self.vm) <= 63, 'vmcnt overflow'

    def wait(self, tag, extra=''):
        idx = [i for i, t in enumerate(self.vm) if t == tag]
        if not idx:
            if extra:
                self.A(f's_waitcnt {extra}')
            return
        n = len(self.vm) - 1 - idx[-1]
        self.A(f's_waitcnt vmcnt({n}) {extra}'.strip())
        self.vm = self.vm[idx[-1] + 1:]

    def stamp(self):
        if STAMP:
            i = self.nstamp
            self.nstamp += 1
            if i >= 28:
                return
            A = self.A
            A('s_waitcnt lgkmcnt(0)')
            A('s_memrealtime s[60:61]' if RT else 's_memtime s[60:61]')
            A('s_waitcnt lgkmcnt(0)')
            A(f's_mov_b32 {s(64 + i)}, s60')


def stamp_begin(C):
    if STAMP:
        A = C.A
        A('s_memrealtime s[62:63]')
        A('s_memtime s[60:61]')
        for i in range(1, 30):
            A(f's_mov_b32 {s(64 + i)}, 0')
        A('s_waitcnt lgkmcnt(0)')
        A('s_mov_b32 s64, s62' if RT else 's_mov_b32 s64, s60')
        A('s_mov_b32 s95, s62')


def stamp_end(C, kidx):
    if STAMP:
        A = C.A
        A('s_waitcnt vmcnt(0) lgkmcnt(0)')
        A('s_memtime s[60:61]')
        A('s_memrealtime s[62:63]')
        A('s_waitcnt lgkmcnt(0)')
        A('s_mov_b32 s93, s62' if RT else 's_mov_b32 s93, s60')
        A('s_mov_b32 s94, s62')
        A('s_mov_b64 exec, 1')
        A('s_lshl_b32 s60, s2, 10')
        A('s_lshl_b32 s61, s20, 7')
        A('s_add_u32 s60, s60, s61')
        A(f's_add_u32 s60, s60, {STAMPS + kidx * (1 << 20)}')
        A('v_mov_b32 v0, 0')
        for i in range(32):
            A(f'v_mov_b32 v1, {s(64 + i)}')
            A(f'buffer_store_dword v1, v0, s[8:11], s60 offen offset:{i * 4}')
        A('s_waitcnt vmcnt(0)')


def setup(C, need_out, endlab):
    A = C.A
    A('s_cmp_ge_u32 s2, 256')
    A(f's_cbranch_scc1 {endlab}')
    stamp_begin(C)
    ws_srd(A, 8)
    if need_out:
        A('s_load_dwordx2 s[12:13], s[0:1], 72')
        A(f's_mov_b32 s14, {2048 * 512 * 2}')
        A('s_mov_b32 s15, 0x20000')
    A('v_and_b32 v1, 63, v0')
    A('v_lshrrev_b32 v2, 6, v0')
    A('v_lshlrev_b32 v3, 4, v1')
    A('v_readfirstlane_b32 s20, v2')
    A('s_and_b32 s21, s2, 7')
    A('s_lshl_b32 s21, s21, 1')
    A('s_bfe_u32 s22, s2, 0x10003')
    A('s_add_u32 s21, s21, s22')
    A('s_lshr_b32 s22, s2, 4')
    A('s_and_b32 s23, s22, 1')
    A('s_lshr_b32 s24, s22, 1')
    A('s_and_b32 s25, s20, 3')
    A('s_lshr_b32 s26, s20, 2')
    A('s_lshl_b32 s27, s21, 2')
    A('s_lshl_b32 s30, s23, 1')
    A('s_add_u32 s27, s27, s30')
    A('s_lshl_b32 s28, s24, 1')
    A('s_bfe_u32 s30, s20, 0x10001')
    A('s_add_u32 s28, s28, s30')
    A('s_and_b32 s29, s20, 1')
    A('s_add_u32 s30, s27, s29')
    A('s_lshl_b32 s49, s30, 15')
    A('s_lshl_b32 s31, s28, 11')
    A('s_add_u32 s49, s49, s31')
    A('s_lshl_b32 s31, s26, 10')
    A('s_add_u32 s49, s49, s31')
    for g in range(1, 8):
        A(f's_mov_b32 {s(40 + g)}, {g * 4096}')
    A('s_waitcnt lgkmcnt(0)')


def soff(i):
    return ('0' if i // 4 == 0 else s(40 + i // 4)), (i % 4) * 1024


def handoff(C, sync, endlab, need):
    A = C.A
    l1, l2, ld = C.lab('pa'), C.lab('pb'), C.lab('pd')
    need()
    A('s_mov_b32 s33, 0')
    A('v_lshlrev_b32 v0, 2, v1')
    A('s_lshl_b32 s30, s21, 8')
    A(f's_add_u32 s30, s30, {FLG + sync * 4096}')
    A('s_lshl_b32 s34, s22, 2')
    A('s_add_u32 s34, s34, s30')
    A('v_mov_b32 v4, 1')
    C.wait('st', 'lgkmcnt(0)')
    if FINE and sync >= 4:
        C.stamp()
    A('s_cmp_lg_u32 s20, 0')
    A('s_barrier')
    l, lb, lb2 = C.lab('sig'), C.lab('sb'), C.lab('sc')
    A(f's_cbranch_scc1 {l}')
    A('s_mov_b64 exec, 1')
    A('buffer_store_dword v4, v0, s[8:11], s34 offen')
    A.label(l)
    if FINE and sync >= 4:
        C.stamp()
    A('s_mov_b32 s31, 0')
    A('s_mov_b64 exec, s[32:33]')
    A.label(l1)
    A('buffer_load_dword v2, v0, s[8:11], s30 offen sc1')
    A('s_add_u32 s31, s31, 1')
    A('s_waitcnt vmcnt(0)')
    A('v_cmp_ne_u32 vcc, 0, v2')
    A('s_cmp_eq_u64 vcc, s[32:33]')
    A(f's_cbranch_scc1 {ld}')
    A('s_cmp_lt_u32 s31, 64')
    A(f's_cbranch_scc1 {l1}')
    A('s_cmp_lg_u32 s20, 0')
    A(f's_cbranch_scc1 {l2}')
    A('s_mov_b64 exec, 1')
    A('buffer_store_dword v4, v0, s[8:11], s34 offen offset:128 sc0 sc1')
    A('s_mov_b64 exec, s[32:33]')
    A.label(l2)
    A('buffer_load_dword v2, v0, s[8:11], s30 offen sc1')
    A('s_waitcnt vmcnt(0)')
    A('v_cmp_ne_u32 s[36:37], 0, v2')
    A('buffer_load_dword v2, v0, s[8:11], s30 offen offset:128 sc0 sc1')
    A('s_waitcnt vmcnt(0)')
    A('v_cmp_ne_u32 vcc, 0, v2')
    A('s_add_u32 s31, s31, 1')
    A('s_or_b64 vcc, vcc, s[36:37]')
    A('s_cmp_eq_u64 vcc, s[32:33]')
    A(f's_cbranch_scc1 {ld}')
    A('s_sleep 4')
    A(f's_cmp_lt_u32 s31, {1 << 20}')
    A(f's_cbranch_scc1 {l2}')
    A(f's_branch {endlab}')
    A.label(ld)
    A('s_mov_b64 exec, -1')
    C.vm = []
    C.flagb = True


def flag_b(C):
    if getattr(C, 'flagb', False):
        A = C.A
        A('s_cmp_eq_u32 s20, 0')
        A('s_cselect_b64 exec, 1, 0')
        C.vmem('buffer_store_dword v4, v0, s[8:11], s34 offen offset:128 sc0 sc1', 'fb')
        A('s_mov_b64 exec, -1')
        C.flagb = False


ACCB, ACCA = 16, 48
KVW, KACC, QSX = 160, 176, 240
KVRED, STAT, CSX, CSK = 112 * KB, 144 * KB, 148 * KB, 150 * KB


def blk_stats(C, P, T):
    A = C.A
    A(f'v_mov_b32 {v(T + 4)}, 0x3f803f80')
    A(f'v_dot2_f32_bf16 {v(T + 1)}, {v(P)}, {v(P)}, 0')
    A(f'v_dot2_f32_bf16 {v(T)}, {v(P)}, {v(T + 4)}, 0')
    for m in range(1, 4):
        A(f'v_dot2_f32_bf16 {v(T + 1)}, {v(P + m)}, {v(P + m)}, {v(T + 1)}')
        A(f'v_dot2_f32_bf16 {v(T)}, {v(P + m)}, {v(T + 4)}, {v(T)}')
    A('s_nop 2')
    A(f'v_mov_b32 {v(T + 2)}, {v(T)}')
    A(f'v_mov_b32 {v(T + 3)}, {v(T + 1)}')
    A('s_nop 1')
    A(f'v_permlane32_swap_b32 {v(T)}, {v(T + 2)}')
    A(f'v_permlane32_swap_b32 {v(T + 1)}, {v(T + 3)}')
    A(f'v_add_f32 {v(T)}, {v(T)}, {v(T + 2)}')
    A(f'v_add_f32 {v(T + 1)}, {v(T + 1)}, {v(T + 3)}')


def g3_waddr(C, vregs, KS, wbase):
    A = C.A
    NS = KS // 8
    A('s_lshl_b32 s30, s26, 8')
    A(f'v_xor_b32 {v(vregs[0])}, s30, v3')
    A(f's_mul_i32 s31, s20, {NS * KB}')
    A(f's_add_u32 s31, s31, {wbase}')
    A('s_xor_b32 s30, s28, 1')
    A(f's_mul_i32 s30, s30, {KS * KB}')
    A('s_add_u32 s30, s30, s31')
    A(f'v_add_u32 {v(vregs[1])}, s30, {v(vregs[0])}')
    A(f's_mul_i32 s30, s28, {KS * KB}')
    A('s_add_u32 s30, s30, s31')
    A(f'v_add_u32 {v(vregs[0])}, s30, {v(vregs[0])}')


def g3_wload(C, vregs, idx, wreg0, tag='w'):
    st, jj = idx // 2, idx % 2
    so, im = soff(st)
    C.vmem(f'buffer_load_dwordx4 {v(wreg0 + 4 * idx, 4)}, {v(vregs[jj])}, s[8:11], {so} offen offset:{im}', tag)


def g3_ex(mode, KS):
    return 252 if KS == 112 else (112 if mode == 'qkv' else 116)


def g3_pre(C, mode, KS, xbase, resbase=None, raw=False):
    A = C.A
    NS = KS // 8
    EX = g3_ex(mode, KS)
    A(f's_mul_i32 s31, s20, {NS * KB}')
    A(f's_add_u32 s31, s31, {xbase}')
    A('s_add_u32 s30, s27, s29')
    A(f's_mul_i32 s32, s30, {KS * KB}')
    A('s_add_u32 s32, s32, s31')
    A('v_add_u32 v6, s32, v3')
    A('s_xor_b32 s30, s30, 1')
    A(f's_mul_i32 s32, s30, {KS * KB}')
    A('s_add_u32 s32, s32, s31')
    A('v_add_u32 v5, s32, v3')
    A('s_lshl_b32 s30, s20, 11')
    A('v_add_u32 v8, s30, v3')
    A('v_add_u32 v7, 0x10000, v8')
    for b in range(1, 8):
        A(f's_xor_b32 s30, s20, {b}')
        A('s_lshl_b32 s30, s30, 11')
        A(f's_add_u32 s30, s30, {(b - 1) * 16 * KB}')
        A(f'v_add_u32 {v(8 + b)}, s30, v3')
    if raw:
        return
    if mode == 'qkv':
        A('v_lshrrev_b32 v2, 5, v1')
        A('v_lshlrev_b32 v4, 4, v2')
        A('s_lshl_b32 s31, s28, 7')
        A('s_lshl_b32 s30, s26, 6')
        A('s_add_u32 s31, s31, s30')
        A(f's_add_u32 s31, s31, {CSQKV}')
        C.vmem(f'buffer_load_dwordx4 {v(EX, 4)}, v4, s[8:11], s31 offen', 'ex')
        C.vmem(f'buffer_load_dwordx4 {v(EX + 4, 4)}, v4, s[8:11], s31 offen offset:32', 'ex')
        A('s_bfe_u32 s30, s20, 0x10001')
        A('s_lshl_b32 s30, s30, 6')
        A(f's_add_u32 s31, s30, {CSQKV + 2048}')
        C.vmem(f'buffer_load_dwordx4 {v(EX + 8, 4)}, v4, s[8:11], s31 offen', 'ex')
        C.vmem(f'buffer_load_dwordx4 {v(EX + 12, 4)}, v4, s[8:11], s31 offen offset:32', 'ex')
        A(f'v_and_b32 {v(QSX + 8)}, 31, v1')
        A(f'v_lshlrev_b32 {v(QSX + 8)}, 3, {v(QSX + 8)}')
        A(f'v_lshl_add_u32 {v(QSX + 8)}, v2, 13, {v(QSX + 8)}')
        A('s_lshl_b32 s30, s27, 13')
        A('s_lshl_b32 s31, s20, 10')
        A('s_add_u32 s30, s30, s31')
        A(f's_add_u32 s30, s30, {resbase}')
        A(f'v_add_u32 {v(QSX + 8)}, s30, {v(QSX + 8)}')
    elif resbase is None:
        A('v_and_b32 v2, 31, v1')
        A('v_lshlrev_b32 v2, 10, v2')
        A('v_lshrrev_b32 v4, 5, v1')
        A('v_lshl_add_u32 v2, v4, 3, v2')
        A('s_add_u32 s30, s27, s29')
        A('s_lshl_b32 s30, s30, 15')
        A('s_lshl_b32 s31, s28, 6')
        A('s_add_u32 s30, s30, s31')
        A('s_lshl_b32 s31, s26, 5')
        A('s_add_u32 s30, s30, s31')
        C.vmem(f'buffer_load_dwordx2 {v(EX, 2)}, v2, s[12:15], s30 offen', 'ex')
        C.vmem(f'buffer_load_dwordx2 {v(EX + 2, 2)}, v2, s[12:15], s30 offen offset:16', 'ex')
    else:
        A(f's_add_u32 s31, s49, {resbase}')
        C.vmem(f'buffer_load_dwordx4 {v(EX, 4)}, v3, s[8:11], s31 offen', 'ex')


def g3_main(C, mode, KS, wreg0, outbase=None, kvf=None, after_store=None, sxout=None, hook_b=None, raw=False):
    A = C.A
    NS = KS // 8
    EX = g3_ex(mode, KS)
    if NS == 4:
        xreg = {(hh, st): 80 + (hh * 4 + st) * 4 for hh in range(2) for st in range(4)}
    else:
        slot = [80 + 4 * k for k in range(12)] + [240, 244]
        xreg = {(hh, st): slot[st] for hh in range(2) for st in range(NS)}

    def xload(hh, st):
        so, im = soff(st)
        C.vmem(f'buffer_load_dwordx4 {v(xreg[hh, st], 4)}, {v(5 + hh)}, s[8:11], {so} offen offset:{im}', f'x{hh}_{st}')

    seq = [(hh, st) for hh in range(2) for st in range(NS)]
    PR = G3_PR4 if NS == 4 else G3_PR14
    if raw:
        seq, PR = [], 0
    for x in seq[:PR]:
        xload(*x)
    nxt = PR
    C.wait('w')

    def wr(b):
        base = (ACCA if b & 1 else ACCB) + ((b >> 1) & 1) * 16 + (b >> 2) * 8
        return [f'ds_write_b128 {v(8 + b)}, {v(base + h2 * 4, 4)} offset:{h2 * 1024}' for h2 in range(2)]

    pend = []
    for hh in range(2):
        acc = ACCA if hh == 0 else ACCB
        for st in range(NS):
            C.wait(f'x{hh}_{st}')
            if hh == 0 and st == 0:
                C.stamp()
            for jj in range(2):
                c = '0' if st == 0 else v(acc + jj * 16, 16)
                A(f'v_mfma_f32_32x32x16_bf16 {v(acc + jj * 16, 16)}, {v(wreg0 + 4 * (2 * st + jj), 4)}, {v(xreg[hh, st], 4)}, {c}')
                if hh == 1 and (st >= 3 or (NS == 4 and st >= 2)):
                    for _ in range(2 if NS == 4 else 1):
                        if pend:
                            A(pend.pop(0))
            if nxt < len(seq):
                xload(*seq[nxt])
                nxt += 1
                if nxt == len(seq):
                    if mode == 'qkv':
                        for e in range(4):
                            C.vmem(f'buffer_load_dwordx2 {v(QSX + 2 * e, 2)}, {v(QSX + 8)}, s[8:11], 0 offen offset:{e * 256}', 'sx')
                    flag_b(C)
                    hb = 0
            elif hook_b:
                hb += 1
            if hook_b and nxt == len(seq):
                hook_b(hb, PR)
            if hh == 1 and NS == 4 and st == 1:
                A('s_nop 7' if raw else 's_nop 5')
            if hh == 1 and NS != 4 and st == 2:
                A('s_nop 2')
        if hh == 0:
            pend = wr(1) + wr(5) + wr(3) + wr(7)
    assert not pend
    C.stamp()
    lkv = C.lab('nokv')
    if mode == 'qkv':
        la, lb = C.lab('ka'), C.lab('kb')
        A('s_cmp_ge_u32 s24, 2')
        A(f's_cbranch_scc1 {lb}')
        A('s_cmp_eq_u32 s24, s29')
        A(f's_cbranch_scc0 {la}')
        for hh in (1, 0):
            for st in range(4):
                c = '0' if st == 0 else v(KACC, 16)
                A(f'v_mfma_f32_32x32x16_bf16 {v(KACC, 16)}, {v(KVW + 4 * st, 4)}, {v(xreg[hh, st], 4)}, {c}')
            if hh == 1:
                A(f's_branch {lb}')
                A.label(la)
        A.label(lb)
        A('v_lshlrev_b32 v4, 3, v1')
        if not raw:
            C.wait('sx')
            for e in range(4):
                A(f'v_add_f32 {v(QSX + e)}, {v(QSX + e)}, {v(QSX + 4 + e)}')
            for e in range(2):
                A(f'v_add_f32 {v(QSX + e)}, {v(QSX + e)}, {v(QSX + 2 + e)}')
            A('s_lshl_b32 s30, s20, 9')
            A(f's_add_u32 s30, s30, {STAT}')
            A('v_add_u32 v2, s30, v4')
            A(f'ds_write_b64 v2, {v(QSX, 2)}')
        else:
            A('v_lshrrev_b32 v112, 5, v1')
            A('v_lshlrev_b32 v112, 4, v112')
            A('s_and_b32 s30, s28, 1')
            A('s_lshl_b32 s30, s30, 7')
            A('s_lshl_b32 s31, s26, 6')
            A('s_add_u32 s30, s30, s31')
            A(f's_add_u32 s30, s30, {CSX}')
            A('v_add_u32 v113, s30, v112')
            A('s_nop 3')
        A('v_and_b32 v4, 0xf8, v4')
        A('s_lshl_b32 s30, s29, 8')
        A(f's_add_u32 s30, s30, {STAT}')
        A('v_add_u32 v4, s30, v4')
    else:
        A('s_nop 10')
    for b in (4, 2, 6):
        for x in wr(b):
            A(x)
    if mode == 'qkv':
        A('s_cmp_ge_u32 s24, 2')
        A(f's_cbranch_scc1 {lkv}')
        A(f'v_add_u32 v2, {KVRED}, v8')
        for k4 in range(4):
            A(f'ds_write_b128 v2, {v(KACC + k4 * 4, 4)} offset:{(k4 >> 1) * 16 * KB + (k4 & 1) * 1024}')
        A.label(lkv)
    A('s_waitcnt lgkmcnt(0)')
    A('s_barrier')
    for b in range(1, 8):
        for h2 in range(2):
            base, off = ('v8', (b - 1) * 16 * KB) if b <= 4 else ('v7', (b - 5) * 16 * KB)
            A(f'ds_read_b128 {v(ACCB + b * 8 + h2 * 4, 4)}, {base} offset:{off + h2 * 1024}')
    T = 80

    def red(base, waits):
        for stp in (32, 16, 8):
            for r in range(stp):
                A(f'v_add_f32 {v(base + r)}, {v(base + r)}, {v(base + stp + r)}')
    if mode == 'qkv':
        A('s_waitcnt lgkmcnt(6)')
        for ww in range(8):
            A(f'ds_read_b64 {v(T + ww * 2, 2)}, v4 offset:{ww * 512}')
        A('s_waitcnt lgkmcnt(8)')
        if raw:
            A('s_barrier')
            EX = 128
            A('s_waitcnt lgkmcnt(0)')
            for ww in range(8):
                for h2 in range(2):
                    A(f'ds_read_b128 {v(EX + ww * 8 + h2 * 4, 4)}, v113 offset:{ww * 256 + h2 * 32}')
                if ww == 6:
                    A('s_waitcnt lgkmcnt(4)')
    else:
        C.wait('ex')
        for m in range(4):
            A(f'v_lshlrev_b32 {v(T + 2 * m)}, 16, {v(EX + m)}')
            A(f'v_and_b32 {v(T + 2 * m + 1)}, 0xffff0000, {v(EX + m)}')
        for r in range(8):
            A(f'v_add_f32 {v(ACCB + r)}, {v(ACCB + r)}, {v(T + r)}')
        A('s_waitcnt lgkmcnt(0)')
    red(ACCB, None)
    P = ACCB + 8
    if mode == 'qkv':
        A('s_waitcnt lgkmcnt(0)')
        for stp in (8, 4, 2):
            for e in range(stp):
                A(f'v_add_f32 {v(T + e)}, {v(T + e)}, {v(T + e + stp)}')
        A(f'v_mul_f32 {v(T)}, {f32(1.0 / 512)}, {v(T)}')
        A(f'v_mul_f32 {v(T + 1)}, {f32(1.0 / 512)}, {v(T + 1)}')
        A(f'v_fma_f32 {v(T + 1)}, -{v(T)}, {v(T)}, {v(T + 1)}')
        A(f'v_max_f32 {v(T + 1)}, 0, {v(T + 1)}')
        A(f'v_add_f32 {v(T + 1)}, {f32(1e-5)}, {v(T + 1)}')
        A(f'v_rsq_f32 {v(T + 1)}, {v(T + 1)}')
        C.wait('ex')
        if raw:
            red(EX, None)
            lcs = C.lab('cs')
            A('s_add_u32 s30, s27, s29')
            A('s_cmp_lg_u32 s30, 0')
            A(f's_cbranch_scc1 {lcs}')
            A('s_lshl_b32 s31, s28, 7')
            A('s_lshl_b32 s30, s26, 6')
            A('s_add_u32 s31, s31, s30')
            A(f's_add_u32 s31, s31, {CSQKV}')
            A('s_mov_b32 exec_lo, 1')
            A('s_mov_b32 exec_hi, 1')
            A(f'buffer_store_dwordx4 {v(EX, 4)}, v112, s[8:11], s31 offen')
            A(f'buffer_store_dwordx4 {v(EX + 4, 4)}, v112, s[8:11], s31 offen offset:32')
            A('s_mov_b64 exec, -1')
            A.label(lcs)
        for r in range(8):
            A(f'v_fma_f32 {v(ACCB + r)}, -{v(T)}, {v(EX + r)}, {v(ACCB + r)}')
        A(f'v_mul_f32 {v(T + 2)}, {f32(QSCALE)}, {v(T + 1)}')
        for r in range(8):
            A(f'v_mul_f32 {v(ACCB + r)}, {v(T + 2)}, {v(ACCB + r)}')
        for m in range(4):
            A(f'v_cvt_pk_bf16_f32 {v(P + m)}, {v(ACCB + 2 * m)}, {v(ACCB + 2 * m + 1)}')
        A(f's_add_u32 s31, s49, {QF}')
        C.vmem(f'buffer_store_dwordx4 {v(P, 4)}, v3, s[8:11], s31 offen', 'st')
        le, lv = C.lab('ke'), C.lab('v')
        A('s_cmp_ge_u32 s24, 2')
        A(f's_cbranch_scc1 {le}')
        A('s_and_b32 s30, s20, 5')
        A('s_cmp_lg_u32 s30, s24')
        A(f's_cbranch_scc1 {le}')
        A('s_bfe_u32 s34, s20, 0x10001')
        A('s_lshl_b32 s30, s34, 14')
        A(f's_add_u32 s30, s30, {KVRED}')
        A('v_add_u32 v4, s30, v3')
        KR = 128
        for ww in range(8):
            for h2 in range(2):
                A(f'ds_read_b128 {v(KR + ww * 8 + h2 * 4, 4)}, v4 offset:{ww * 2048 + h2 * 1024}')
            if ww == 6:
                A('s_waitcnt lgkmcnt(4)')
        A('s_waitcnt lgkmcnt(0)')
        KX = EX + 8
        if raw:
            KX = 192
            A('s_lshl_b32 s30, s34, 6')
            A(f's_add_u32 s30, s30, {CSK}')
            A('v_add_u32 v113, s30, v112')
            for ww in range(8):
                for h2 in range(2):
                    A(f'ds_read_b128 {v(KX + ww * 8 + h2 * 4, 4)}, v113 offset:{ww * 128 + h2 * 32}')
                if ww == 6:
                    A('s_waitcnt lgkmcnt(4)')
        red(KR, None)
        if raw:
            A('s_waitcnt lgkmcnt(0)')
            red(KX, None)
            lcs = C.lab('ck')
            A('s_add_u32 s30, s27, s29')
            A('s_cmp_lg_u32 s30, 0')
            A(f's_cbranch_scc1 {lcs}')
            A('s_lshl_b32 s31, s34, 6')
            A(f's_add_u32 s31, s31, {CSQKV + 2048}')
            A('s_mov_b32 exec_lo, 1')
            A('s_mov_b32 exec_hi, 1')
            A(f'buffer_store_dwordx4 {v(KX, 4)}, v112, s[8:11], s31 offen')
            A(f'buffer_store_dwordx4 {v(KX + 4, 4)}, v112, s[8:11], s31 offen offset:32')
            A('s_mov_b64 exec, -1')
            A.label(lcs)
        for r in range(8):
            A(f'v_fma_f32 {v(KR + r)}, -{v(T)}, {v(KX + r)}, {v(KR + r)}')
        for r in range(8):
            A(f'v_mul_f32 {v(KR + r)}, {v(T + 1)}, {v(KR + r)}')
        KP = KR + 8
        for m in range(4):
            A(f'v_cvt_pk_bf16_f32 {v(KP + m)}, {v(KR + 2 * m)}, {v(KR + 2 * m + 1)}')
        A('s_add_u32 s30, s27, s29')
        A(f's_mul_i32 s30, s30, {KVT}')
        A(f's_add_u32 s30, s30, {kvf}')
        A('s_cmp_lg_u32 s34, 0')
        A(f's_cbranch_scc1 {lv}')
        A(f'buffer_store_dwordx4 {v(KP, 4)}, v3, s[8:11], s30 offen')
        for r in range(4):
            A(f'v_mov_b32 {v(8 + r)}, 0x3f803f80')
            A(f'v_mov_b32 {v(12 + r)}, 0')
        A(f'v_mul_u32_u24 v4, {VBS}, v1')
        A('s_mov_b64 exec, 3')
        A(f'buffer_store_dwordx4 v[8:11], v4, s[8:11], s30 offen offset:{1024 + 512}')
        A(f'buffer_store_dwordx4 v[12:15], v4, s[8:11], s30 offen offset:{1024 + 528}')
        A('s_mov_b64 exec, -1')
        A(f's_branch {le}')
        A.label(lv)
        A('v_bfe_u32 v4, v1, 4, 1')
        A(f'v_mul_u32_u24 v4, {VBS}, v4')
        A('v_bfe_u32 v5, v1, 2, 1')
        A('v_lshl_add_u32 v4, v5, 8, v4')
        A('v_and_b32 v5, 3, v1')
        A('v_lshl_add_u32 v4, v5, 1, v4')
        A('v_bfe_u32 v5, v1, 3, 1')
        A('v_lshl_add_u32 v4, v5, 3, v4')
        A('v_lshrrev_b32 v5, 5, v1')
        A('v_lshl_add_u32 v4, v5, 6, v4')
        for r in range(8):
            d = (r % 4) + 8 * (r // 4)
            op = 'buffer_store_short' if r % 2 == 0 else 'buffer_store_short_d16_hi'
            A(f'{op} {v(KP + r // 2)}, v4, s[8:11], s30 offen offset:{1024 + d * 16}')
        A.label(le)
    else:
        for m in range(4):
            A(f'v_cvt_pk_bf16_f32 {v(P + m)}, {v(ACCB + 2 * m)}, {v(ACCB + 2 * m + 1)}')
        if mode == 'res':
            A(f's_add_u32 s31, s49, {outbase}')
            C.vmem(f'buffer_store_dwordx4 {v(P, 4)}, v3, s[8:11], s31 offen{WT}', 'st')
            blk_stats(C, P, T)
            A('s_lshr_b32 s31, s49, 2')
            A(f's_add_u32 s31, s31, {sxout}')
            A('v_lshlrev_b32 v4, 3, v1')
            A('s_mov_b32 exec_hi, 0')
            C.vmem(f'buffer_store_dwordx2 {v(T, 2)}, v4, s[8:11], s31 offen{WT}', 'st')
            A('s_mov_b64 exec, -1')
            if after_store:
                after_store()
        else:
            A('v_and_b32 v4, 31, v1')
            A('v_lshlrev_b32 v4, 10, v4')
            A('v_lshrrev_b32 v5, 5, v1')
            A('v_lshl_add_u32 v4, v5, 4, v4')
            A('s_add_u32 s30, s27, s29')
            A('s_lshl_b32 s30, s30, 15')
            A('s_lshl_b32 s31, s28, 6')
            A('s_add_u32 s30, s30, s31')
            A('s_lshl_b32 s31, s26, 5')
            A('s_add_u32 s30, s30, s31')
            A(f'v_permlane32_swap_b32 {v(P)}, {v(P + 2)}')
            A(f'v_permlane32_swap_b32 {v(P + 1)}, {v(P + 3)}')
            C.vmem(f'buffer_store_dwordx4 {v(P, 4)}, v4, s[12:15], s30 offen', 'st')


def qkv_wstep(C, st, n=1):
    A = C.A
    if st == 0:
        g3_waddr(C, (5, 6), 32, WQKVP)
    per = -(-8 // n)
    for i in range(st * per, min(8, (st + 1) * per)):
        g3_wload(C, (5, 6), i, 128)
    if st == n:
        A('s_lshl_b32 s30, s20, 12')
        A(f's_add_u32 s30, s30, {WQKVP + 16 * 32 * KB}')
        A('s_cmp_lt_u32 s24, 2')
        A('s_cselect_b64 exec, -1, 0')
        for k in range(4):
            C.vmem(f'buffer_load_dwordx4 {v(KVW + 4 * k, 4)}, v3, s[8:11], s30 offen offset:{k * 1024}', 'w')
        A('s_mov_b64 exec, -1')


def qkv_wloads(C):
    qkv_wstep(C, 0)
    qkv_wstep(C, 1)


def att_phase(C, kvf, stubs, fixed={}, pf0=None):
    A = C.A
    tg = C.tag
    Q, CN, S0, S1, O, P, KF, VF, VK, VV, T = 4, 8, 24, 40, 56, 72, 80, 88, 104, 105, 106
    S = [S0, S1]
    A('s_and_b32 s30, s22, 3')
    A('s_lshl_b32 s31, s21, 2')
    A('s_add_u32 s30, s30, s31')
    A('s_lshl_b32 s30, s30, 5')
    A('s_lshr_b32 s31, s22, 2')
    A('s_lshl_b32 s31, s31, 3')
    A('s_add_u32 s30, s30, s31')
    A('s_add_u32 s30, s30, s20')
    A('s_lshl_b32 s30, s30, 10')
    A(f's_add_u32 s31, s30, {QF}')
    A(f's_add_u32 s36, s30, {OF}')
    A('s_lshl_b32 s37, s20, 10')
    A(f's_add_u32 s38, s37, {kvf}')

    def kvdma(r):
        A(f's_add_u32 m0, s37, {r * 8192}')
        A(f's_add_u32 s30, s38, {r * 8192}')
        C.vmem('buffer_load_dwordx4 v3, s[8:11], s30 offen lds', f'kv{r}')
    kvdma(0)
    C.vmem(f'buffer_load_dwordx4 {v(Q, 4)}, v3, s[8:11], s31 offen', 'q')
    for r in range(1, 5):
        kvdma(r)
    A(f'v_mov_b32 {v(VK)}, v3')
    A(f'v_and_b32 {v(T)}, 15, v1')
    A(f'v_lshrrev_b32 {v(T + 1)}, 5, v1')
    A(f'v_lshl_add_u32 {v(T)}, {v(T + 1)}, 4, {v(T)}')
    A(f'v_lshlrev_b32 {v(T)}, 4, {v(T)}')
    A(f'v_and_b32 {v(T + 1)}, 31, v1')
    A(f'v_cmp_eq_u32 vcc, 16, {v(T + 1)}')
    A(f'v_mov_b32 {v(T + 2)}, 512')
    A('s_nop 0')
    A(f'v_cndmask_b32 {v(T)}, {v(T)}, {v(T + 2)}, vcc')
    A(f'v_cmp_lt_u32 vcc, 16, {v(T + 1)}')
    A(f'v_mov_b32 {v(T + 2)}, 528')
    A('s_nop 0')
    A(f'v_cndmask_b32 {v(T)}, {v(T)}, {v(T + 2)}, vcc')
    A(f'v_add_u32 {v(VV)}, 1024, {v(T)}')
    for r in range(16):
        A(f'v_mov_b32 {v(O + r)}, 0')
    for m in range(4, 8):
        A(f'v_mov_b32 {v(P + m)}, 0')
    for m in range(4):
        A(f'v_mov_b32 {v(VF + 12 + m)}, 0')
    C.stamp()
    C.wait('kv2')
    A('s_barrier')
    C.stamp()

    def rdK(buf, t):
        A(f'ds_read_b128 {v(KF + buf * 4, 4)}, {v(VK)} offset:{t * KVT}')

    def rdV(buf, t):
        A(f'ds_read_b128 {v(VF + buf * 8, 4)}, {v(VV)} offset:{t * KVT}')
        A(f'ds_read_b128 {v(VF + buf * 8 + 4, 4)}, {v(VV)} offset:{t * KVT + VBS}')

    rdK(0, 0)
    rdK(1, 1)
    rdV(0, 0)
    A('s_waitcnt lgkmcnt(3)')
    A(f'v_mfma_f32_32x32x16_bf16 {v(S0, 16)}, {v(KF, 4)}, {v(Q, 4)}, 0')
    for r in range(5, 11):
        kvdma(r)
    A(f'v_max3_f32 {v(T)}, {v(S0)}, {v(S0 + 1)}, {v(S0 + 2)}')
    for r in range(3, 15, 2):
        A(f'v_max3_f32 {v(T)}, {v(T)}, {v(S0 + r)}, {v(S0 + r + 1)}')
    A(f'v_max_f32 {v(T)}, {v(T)}, {v(S0 + 15)}')
    A(f'v_mov_b32 {v(T + 1)}, {v(T)}')
    A('s_nop 1')
    A(f'v_permlane32_swap_b32 {v(T)}, {v(T + 1)}')
    A(f'v_max_f32 {v(T)}, {v(T)}, {v(T + 1)}')
    for r in range(16):
        A(f'v_sub_f32 {v(CN + r)}, 0, {v(T)}')
    for r in range(16):
        A(f'v_sub_f32 {v(S0 + r)}, {v(S0 + r)}, {v(T)}')
    A('s_setprio 3')
    C.stamp()
    UN = ATT_UN
    NIT = 64 // UN
    queue = list(stubs)
    first_pf = 8 // UN
    pf0 = pf0 or first_pf
    per = -(-len(queue) // (NIT - pf0 - ATT_PFEND))
    prio = {int(NIT * 0.5): 2, int(NIT * 0.78): 1, NIT - 1: 0}
    for it in range(NIT):
        if it == (1 if UN == 4 else 0):
            for r in range(11, 17):
                kvdma(r)
        if it == first_pf:
            C.wait('kv16')
            A('s_barrier')
        if it in prio:
            A(f's_setprio {prio[it]}')
        if it in fixed:
            if FINE == 2:
                C.stamp()
            fixed[it]()
            if FINE == 2:
                C.stamp()
        if it >= pf0:
            for _ in range(per):
                if queue:
                    queue.pop(0)()
        A(f's_call_b64 s[34:35], {tg}_body')
    assert not queue
    A(f'v_mfma_f32_32x32x16_bf16 {v(O, 16)}, {v(VF + 8 + 4, 4)}, {v(P + 4, 4)}, {v(O, 16)}')
    A('s_mov_b32 s39, 0')
    C.stamp()
    A('s_waitcnt lgkmcnt(0)')
    A('s_nop 10')
    A.label(f'{tg}_fin')
    A(f'v_mov_b32 {v(T)}, {v(O + 8)}')
    A(f'v_mov_b32 {v(T + 1)}, {v(O + 8)}')
    A(f'v_mul_f32 {v(T + 2)}, 0, {v(O)}')
    A(f'v_fma_f32 {v(T + 2)}, {v(O + 1)}, 0, {v(T + 2)}')
    A(f'v_permlane32_swap_b32 {v(T)}, {v(T + 1)}')
    for r in range(2, 8):
        A(f'v_fma_f32 {v(T + 2)}, {v(O + r)}, 0, {v(T + 2)}')
    A(f'v_add_f32 {v(T + 2)}, {v(T + 2)}, {v(T)}')
    A(f'v_mov_b32 {v(T + 3)}, {f32(2.0 ** 30)}')
    A(f'v_cmp_nle_f32 vcc, {v(T + 2)}, {v(T + 3)}')
    A(f'v_rcp_f32 {v(T)}, {v(T)}')
    A('s_cmp_eq_u32 s39, 99')
    A(f's_cbranch_scc1 {tg}_store')
    A(f's_cbranch_vccnz {tg}_slow')
    A.label(f'{tg}_store')
    for r in range(8):
        A(f'v_mul_f32 {v(O + r)}, {v(T)}, {v(O + r)}')
    for m in range(4):
        A(f'v_cvt_pk_bf16_f32 {v(P + m)}, {v(O + 2 * m)}, {v(O + 2 * m + 1)}')
    C.vmem(f'buffer_store_dwordx4 {v(P, 4)}, v3, s[8:11], s36 offen{WT}', 'st')

    def tail():
        A.raw('.p2align 6')
        A.label(f'{tg}_body')
        for t in range(UN):
            cur, nxt = t & 1, (t + 1) & 1
            Sc, Sn = S[cur], S[nxt]
            A('s_waitcnt lgkmcnt(2)')
            A(f'v_mfma_f32_32x32x16_bf16 {v(Sn, 16)}, {v(KF + nxt * 4, 4)}, {v(Q, 4)}, {v(CN, 16)}')
            rdK(cur, t + 2)
            for r in range(6):
                A(f'v_exp_f32 {v(Sc + r)}, {v(Sc + r)}')
            A(f'v_mfma_f32_32x32x16_bf16 {v(O, 16)}, {v(VF + nxt * 8 + 4, 4)}, {v(P + 4, 4)}, {v(O, 16)}')
            for r in range(6, 8):
                A(f'v_exp_f32 {v(Sc + r)}, {v(Sc + r)}')
            for m in range(4):
                A(f'v_cvt_pk_bf16_f32 {v(P + m)}, {v(Sc + 2 * m)}, {v(Sc + 2 * m + 1)}')
            A(f'v_exp_f32 {v(Sc + 8)}, {v(Sc + 8)}')
            A(f'v_exp_f32 {v(Sc + 9)}, {v(Sc + 9)}')
            A('s_waitcnt lgkmcnt(1)')
            A(f'v_mfma_f32_32x32x16_bf16 {v(O, 16)}, {v(VF + cur * 8, 4)}, {v(P, 4)}, {v(O, 16)}')
            rdV(nxt, t + 1)
            for r in range(10, 16):
                A(f'v_exp_f32 {v(Sc + r)}, {v(Sc + r)}')
            for m in range(4, 8):
                A(f'v_cvt_pk_bf16_f32 {v(P + m)}, {v(Sc + 2 * m)}, {v(Sc + 2 * m + 1)}')
        A(f'v_add_u32 {v(VK)}, {UN * KVT}, {v(VK)}')
        A(f'v_add_u32 {v(VV)}, {UN * KVT}, {v(VV)}')
        A('s_setpc_b64 s[34:35]')
        A.label(f'{tg}_slow')
        A(f'v_subrev_u32 {v(VK)}, {64 * KVT}, {v(VK)}')
        A(f'v_subrev_u32 {v(VV)}, {64 * KVT}, {v(VV)}')
        for r in range(16):
            A(f'v_mov_b32 {v(O + r)}, 0')
        M = T + 4
        A(f'v_sub_f32 {v(M)}, 0, {v(CN)}')
        A.label(f'{tg}_sloop')
        rdK(0, 0)
        rdV(0, 0)
        A('s_waitcnt lgkmcnt(0)')
        A(f'v_mfma_f32_32x32x16_bf16 {v(S0, 16)}, {v(KF, 4)}, {v(Q, 4)}, 0')
        A('s_nop 11')
        A(f'v_max3_f32 {v(T)}, {v(S0)}, {v(S0 + 1)}, {v(S0 + 2)}')
        for r in range(3, 15, 2):
            A(f'v_max3_f32 {v(T)}, {v(T)}, {v(S0 + r)}, {v(S0 + r + 1)}')
        A(f'v_max3_f32 {v(T)}, {v(T)}, {v(S0 + 15)}, {v(M)}')
        A(f'v_mov_b32 {v(T + 1)}, {v(T)}')
        A('s_nop 1')
        A(f'v_permlane32_swap_b32 {v(T)}, {v(T + 1)}')
        A(f'v_max_f32 {v(T)}, {v(T)}, {v(T + 1)}')
        A(f'v_sub_f32 {v(T + 1)}, {v(M)}, {v(T)}')
        A(f'v_exp_f32 {v(T + 1)}, {v(T + 1)}')
        A(f'v_mov_b32 {v(M)}, {v(T)}')
        for r in range(16):
            A(f'v_sub_f32 {v(S0 + r)}, {v(S0 + r)}, {v(T)}')
        for r in range(16):
            A(f'v_exp_f32 {v(S0 + r)}, {v(S0 + r)}')
        for r in range(16):
            A(f'v_mul_f32 {v(O + r)}, {v(T + 1)}, {v(O + r)}')
        for m in range(8):
            A(f'v_cvt_pk_bf16_f32 {v(P + m)}, {v(S0 + 2 * m)}, {v(S0 + 2 * m + 1)}')
        A('s_nop 1')
        A(f'v_mfma_f32_32x32x16_bf16 {v(O, 16)}, {v(VF, 4)}, {v(P, 4)}, {v(O, 16)}')
        A(f'v_mfma_f32_32x32x16_bf16 {v(O, 16)}, {v(VF + 4, 4)}, {v(P + 4, 4)}, {v(O, 16)}')
        A(f'v_add_u32 {v(VK)}, {KVT}, {v(VK)}')
        A(f'v_add_u32 {v(VV)}, {KVT}, {v(VV)}')
        A('s_nop 11')
        A('s_add_u32 s39, s39, 1')
        A('s_cmp_lt_u32 s39, 64')
        A(f's_cbranch_scc1 {tg}_sloop')
        A('s_mov_b32 s39, 99')
        A(f's_branch {tg}_fin')
    return tail


V_WGU = 112


def gu_waddr(C):
    A = C.A
    A('s_mul_i32 s30, s22, 7')
    A('s_min_u32 s31, s20, 6')
    A('s_add_u32 s40, s30, s31')
    A('s_lshl_b32 s30, s40, 15')
    A(f's_add_u32 s30, s30, {WGUP}')
    A(f'v_add_u32 {v(V_WGU)}, s30, v3')


def gu_wload(C, ks):
    so, im = soff(ks)
    C.vmem(f'buffer_load_dwordx4 {v(128 + 4 * ks, 4)}, {v(V_WGU)}, s[8:11], {so} offen offset:{im}', 'wg')


def gu_pre(C):
    A = C.A
    CS = 112
    A('v_mov_b32 v15, v113')
    A('v_mov_b32 v9, v114')
    A(f'v_mov_b32 v14, {v(V_WGU)}')
    A('s_lshl_b32 s30, s21, 2')
    A('s_add_u32 s30, s30, s25')
    A('s_lshl_b32 s30, s30, 15')
    A('s_lshl_b32 s31, s26, 11')
    A('s_add_u32 s30, s30, s31')
    A(f's_add_u32 s30, s30, {XB}')
    A('v_add_u32 v13, s30, v3')
    A('s_lshl_b32 s48, s25, 15')
    A('s_add_u32 s48, s48, s31')
    A('v_add_u32 v7, 0x10000, v3')
    A('v_lshrrev_b32 v11, 5, v1')
    A('v_lshlrev_b32 v11, 4, v11')
    A('s_min_u32 s30, s20, 6')
    A('s_lshl_b32 s30, s30, 7')
    A(f's_add_u32 s30, s30, {130 * KB}')
    A('v_add_u32 v10, s30, v11')
    A('v_and_b32 v12, 31, v1')
    A('v_lshlrev_b32 v12, 3, v12')
    A('v_lshl_add_u32 v12, v11, 8, v12')
    A('s_lshl_b32 s30, s21, 15')
    A(f's_add_u32 s30, s30, {SXB}')
    A('v_add_u32 v12, s30, v12')
    A('v_lshlrev_b32 v8, 3, v1')
    A(f'v_add_u32 v8, {128 * KB}, v8')


def gu_main(C, after_store=None):
    A = C.A
    ACC, XF, CS = 16, 80, 112

    def dma(c):
        A(f's_add_u32 m0, s48, {c * 4096}')
        so = '0' if c == 0 else s(40 + c)
        A('s_nop 0')
        for k in range(2):
            C.vmem(f'buffer_load_dwordx4 v13, s[8:11], {so} offen offset:{k * 1024} lds', f'x{c}')
    dma(0)
    dma(1)

    def rd(ks):
        buf = ks & 1
        for i in range(4):
            base = 'v3' if i < 2 else 'v7'
            A(f'ds_read_b128 {v(XF + buf * 16 + i * 4, 4)}, {base} offset:{(i & 1) * 32768 + ks * 1024}')

    def stats_load(i):
        for e in range(16):
            C.vmem(f'buffer_load_dwordx2 {v(ACC + (i & 1) * 32 + 2 * e, 2)}, v12, s[8:11], {"0" if i == 0 else s(40 + 2 * i)} offen offset:{e * 256}', f's{i}')

    def stats_sum(i):
        b = ACC + (i & 1) * 32
        C.wait(f's{i}')
        for stp in (16, 8, 4, 2):
            for e in range(stp):
                A(f'v_add_f32 {v(b + e)}, {v(b + e)}, {v(b + e + stp)}')
        A(f'v_mov_b32 {v(b + 2)}, {v(b)}')
        A(f'v_mov_b32 {v(b + 3)}, {v(b + 1)}')
        A('s_nop 1')
        A(f'v_permlane32_swap_b32 {v(b)}, {v(b + 2)}')
        A(f'v_permlane32_swap_b32 {v(b + 1)}, {v(b + 3)}')
        A(f'v_add_f32 {v(b)}, {v(b)}, {v(b + 2)}')
        A(f'v_add_f32 {v(b + 1)}, {v(b + 1)}, {v(b + 3)}')
        A(f'v_mul_f32 {v(b)}, {f32(-1.0 / 512)}, {v(b)}')
        A(f'v_mul_f32 {v(b + 1)}, {f32(1.0 / 512)}, {v(b + 1)}')
        A(f'v_fma_f32 {v(b + 1)}, -{v(b)}, {v(b)}, {v(b + 1)}')
        A(f'v_max_f32 {v(b + 1)}, 0, {v(b + 1)}')
        A(f'v_add_f32 {v(b + 1)}, {f32(1e-5)}, {v(b + 1)}')
        A(f'v_rcp_f32 {v(b + 1)}, {v(b + 1)}')
        A('s_nop 0')
        A(f'ds_write_b64 v8, {v(b, 2)} offset:{i * 512}')
        A('s_waitcnt lgkmcnt(0)')

    def loop(idle):
        C.wait('x0')
        A('s_barrier')
        C.stamp()
        if not idle:
            rd(0)
        for ks in range(32):
            if ks + 1 < 32:
                if (ks + 1) % 4 == 0:
                    C.wait(f'x{(ks + 1) // 4}')
                    A('s_barrier')
                if not idle:
                    rd(ks + 1)
                    if ks == 28:
                        for g in range(4):
                            A(f'ds_read_b128 {v(CS + g * 4, 4)}, v10 offset:{g * 32}')
                        A('s_waitcnt lgkmcnt(8)')
                    elif ks == 30:
                        for i in range(4):
                            A(f'ds_read_b64 {v(4 + 2 * i, 2)}, v8 offset:{i * 512}' if i < 2 else f'ds_read_b64 {v(10 + 2 * (i - 2), 2)}, v8 offset:{i * 512}')
                        A('s_waitcnt lgkmcnt(8)')
                    else:
                        A('s_waitcnt lgkmcnt(4)')
            elif not idle:
                A('s_waitcnt lgkmcnt(0)')
            buf = ks & 1
            if ks == 24 and not idle:
                C.wait('wg')
            todo = []
            if ks == 10:
                C.flagb = True
                flag_b(C)
            if ks < 6:
                todo.append(lambda: dma(ks + 2))
            if 6 <= ks < 10 and not idle:
                for k2 in (24 + 2 * (ks - 6), 25 + 2 * (ks - 6)):
                    so, im = soff(k2)
                    todo.append(lambda k2=k2, so=so, im=im: C.vmem(f'buffer_load_dwordx4 {v(128 + 4 * k2, 4)}, v14, s[8:11], {so} offen offset:{im}', 'wg'))
            if ks >= 10:
                for st in [st for st in range(28) if st < ks and st not in wdone][:2]:
                    todo.append(lambda st=st: g3_wload(C, (15, 9), st, 128))
                    wdone.add(st)
            for i in range(4):
                if not idle:
                    c = '0' if ks == 0 else v(ACC + i * 16, 16)
                    A(f'v_mfma_f32_32x32x16_bf16 {v(ACC + i * 16, 16)}, {v(128 + 4 * ks, 4)}, {v(XF + buf * 16 + i * 4, 4)}, {c}')
                if i % 2 == 0 and todo:
                    todo.pop(0)()
            if idle:
                if ks == 6:
                    stats_load(0)
                    stats_load(1)
                if ks == 8:
                    stats_sum(0)
                    stats_load(2)
                    stats_sum(1)
                    stats_load(3)
                if ks == 12:
                    stats_sum(2)
                    stats_sum(3)
                    A(f's_mul_i32 s30, s22, {7 * 128}')
                    A(f's_add_u32 s30, s30, {CSP}')
                    for kp in range(8):
                        C.vmem(f'buffer_load_dwordx4 {v(ACC + 4 * kp, 4)}, v3, s[8:11], s30 offen', 'cp')
                        if kp < 7:
                            A(f's_add_u32 s30, s30, {3584 * 4}')
                if ks == 16:
                    C.wait('cp')
                    for stp in (16, 8, 4):
                        for e in range(stp):
                            A(f'v_add_f32 {v(ACC + e)}, {v(ACC + e)}, {v(ACC + e + stp)}')
                    A(f'v_add_u32 v10, {130 * KB}, v3')
                    A(f'ds_write_b128 v10, {v(ACC, 4)}')
                    A('s_waitcnt lgkmcnt(0)')
        assert len(wdone) == 28
        C.stamp()
        if idle:
            if after_store:
                after_store()
            return
        P = XF
        A(f's_mul_i32 s30, s21, {4 * 112}')
        A('s_add_u32 s30, s30, s40')
        A('s_lshl_b32 s30, s30, 10')
        A(f's_add_u32 s30, s30, {HF}')
        A('s_nop 4')
        for i in range(4):
            acc = ACC + i * 16
            st = v(4 + 2 * i, 2) if i < 2 else v(10 + 2 * (i - 2), 2)
            for r in range(0, 16, 2):
                A(f'v_pk_fma_f32 {v(acc + r, 2)}, {st}, {v(CS + r, 2)}, {v(acc + r, 2)} op_sel_hi:[0,1,1]')
            for r in range(0, 8, 2):
                A(f'v_pk_mul_f32 {v(acc + r, 2)}, {v(acc + r, 2)}, {v(acc + 8 + r, 2)}')
            for r in range(0, 8, 2):
                A(f'v_pk_mul_f32 {v(acc + r, 2)}, {v(acc + r, 2)}, {st} op_sel:[0,1] op_sel_hi:[1,1]')
            pp = P + i * 4
            for m in range(4):
                A(f'v_cvt_pk_bf16_f32 {v(pp + m)}, {v(acc + 2 * m)}, {v(acc + 2 * m + 1)}')
            C.vmem(f'buffer_store_dwordx4 {v(pp, 4)}, v3, s[8:11], s30 offen{WT}', 'st')
            if i < 3:
                A(f's_add_u32 s30, s30, {112 * KB}')
        if after_store:
            after_store()

    ls, le = C.lab('gs'), C.lab('ge')
    A('s_cmp_eq_u32 s20, 7')
    A(f's_cbranch_scc1 {ls}')
    save, ns = list(C.vm), C.nstamp
    wdone = set()
    loop(False)
    A(f's_branch {le}')
    A.label(ls)
    C.vm, C.nstamp = list(save), ns
    wdone = set()
    loop(True)
    A.label(le)
    C.vm = ['st']


def swap_add(A, ra, rb):
    A(f'v_permlane32_swap_b32 {v(ra)}, {v(rb)}')
    A(f'v_add_f32 {v(ra)}, {v(ra)}, {v(rb)}')


def gen_pre(A):
    name = 'pre_kernel'
    C = Ctx(A, 'pr')
    kernel_begin(A, name)
    A('s_cmp_ge_u32 s2, 256')
    A('s_cbranch_scc1 pr_end')
    A('s_load_dwordx2 s[12:13], s[0:1], 0')
    A('s_load_dwordx2 s[16:17], s[0:1], 8')
    A('s_load_dwordx2 s[52:53], s[0:1], 16')
    A('s_load_dwordx2 s[56:57], s[0:1], 24')
    for d, sz in ((12, 2048 * 1024), (16, 512 * 1024), (52, 512 * 32), (56, 512 * 32)):
        A(f's_mov_b32 {s(d + 2)}, {sz}')
        A(f's_mov_b32 {s(d + 3)}, 0x20000')
    setup(C, False, 'pr_end')
    C.stamp()
    PK, KST = 192, 224
    A('s_lshl_b32 s48, s20, 14')
    A('v_lshrrev_b32 v4, 3, v1')
    A('v_and_b32 v5, 7, v1')
    A('v_lshrrev_b32 v6, 4, v1')
    A('v_xor_b32 v6, v6, v5')
    A('v_lshlrev_b32 v7, 10, v4')
    A('v_lshl_add_u32 v8, v6, 4, v7')
    A('v_xor_b32 v9, 64, v8')
    A('v_lshl_add_u32 v10, v5, 4, v7')
    A('s_lshl_b32 s30, s27, 15')
    A('s_lshl_b32 s31, s20, 7')
    A('s_add_u32 s30, s30, s31')
    A('s_lshl_b32 s31, s20, 16')
    A('s_lshl_b32 s32, s24, 7')
    A('s_add_u32 s31, s31, s32')
    for i in range(8):
        A(f's_add_u32 m0, s48, {i * 1024}')
        A('s_nop 0')
        C.vmem(f'buffer_load_dwordx4 {v(8 + (i & 1))}, s[12:15], s30 offen lds', 'x')
        A('s_add_u32 s30, s30, 8192')
    for i in range(8):
        A(f's_add_u32 m0, s48, {8192 + i * 1024}')
        A('s_nop 0')
        C.vmem('buffer_load_dwordx4 v10, s[16:19], s31 offen lds', 'wq')
        A('s_add_u32 s31, s31, 8192')
    A('s_lshl_b32 s30, s20, 11')
    A('s_cmp_lt_u32 s24, 2')
    A('s_cselect_b64 exec, -1, 0')
    for k in range(4):
        C.vmem(f'buffer_load_dwordx4 {v(KST + 4 * k, 4)}, v3, {"s[52:55]" if k < 2 else "s[56:59]"}, s30 offen offset:{(k & 1) * 1024}', 'kv')
    A('s_mov_b64 exec, -1')
    C.stamp()
    A('v_and_b32 v112, 31, v1')
    A('v_lshrrev_b32 v113, 5, v1')
    A('v_lshlrev_b32 v114, 7, v112')
    A('v_lshl_add_u32 v114, v113, 3, v114')
    A('v_bfe_u32 v115, v1, 1, 3')
    A('v_lshl_add_u32 v114, v115, 4, v114')
    A('s_lshl_b32 s30, s29, 12')
    A('s_add_u32 s30, s30, s48')
    A('v_add_u32 v115, s30, v114')
    A('v_xor_b32 v114, 4096, v115')
    A('v_bfe_u32 v116, v1, 2, 2')
    A('v_lshl_add_u32 v116, v113, 2, v116')
    A('v_and_b32 v117, 3, v1')
    A('v_lshlrev_b32 v117, 3, v117')
    A('v_bfe_u32 v118, v1, 4, 1')
    A('v_lshl_add_u32 v119, v116, 7, v117')
    A('v_lshl_add_u32 v119, v118, 5, v119')
    A('s_lshl_b32 s30, s26, 5')
    A('s_and_b32 s31, s28, 1')
    A('s_lshl_b32 s31, s31, 6')
    A('s_add_u32 s30, s30, s31')
    A('v_xor_b32 v120, s30, v119')
    A('s_add_u32 s30, s48, 8192')
    A('v_add_u32 v120, s30, v120')
    A('v_xor_b32 v121, 64, v120')
    A('v_lshl_add_u32 v122, v116, 5, v117')
    A('v_lshl_add_u32 v122, v118, 11, v122')
    A('v_add_u32 v122, s48, v122')
    A('v_add_u32 v123, s48, v3')
    A('v_mov_b32 v124, 0x3f803f80')
    g3_pre(C, 'qkv', 32, XA, raw=True)
    C.wait('x')
    C.stamp()
    for hh in range(2):
        for ch in range(8):
            A(f'v_xor_b32 {v(240 + ch)}, {ch << 4}, {v(114 + hh)}')
        for ch in range(8):
            A(f'ds_read_b64 {v(80 + hh * 16 + ch * 2, 2)}, {v(240 + ch)}')
        A('s_waitcnt lgkmcnt(0)' if hh else 's_waitcnt lgkmcnt(6)')
    SA = 248
    for hh in range(2):
        for r in range(16):
            x = v(80 + hh * 16 + r)
            A(f'v_dot2_f32_bf16 {v(SA + 2 * hh)}, {x}, v124, {"0" if r == 0 else v(SA + 2 * hh)}')
            A(f'v_dot2_f32_bf16 {v(SA + 2 * hh + 1)}, {x}, {x}, {"0" if r == 0 else v(SA + 2 * hh + 1)}')
    A('s_nop 2')
    swap_add(A, SA, SA + 2)
    swap_add(A, SA + 1, SA + 3)
    A('v_lshlrev_b32 v2, 3, v1')
    A('s_xor_b32 s30, s29, 1')
    A('s_lshl_b32 s30, s30, 8')
    A('v_xor_b32 v2, s30, v2')
    A('s_lshl_b32 s30, s20, 9')
    A(f's_add_u32 s30, s30, {STAT}')
    A('v_add_u32 v2, s30, v2')
    A(f'ds_write_b64 v2, {v(SA, 2)}')
    C.wait('kv')
    C.stamp()
    for k in range(4):
        A(f'ds_write_b128 v123, {v(KST + 4 * k, 4)} offset:{k * 1024}')
    for st in range(4):
        for jj in range(2):
            for h2 in range(2):
                A(f'ds_read_b64_tr_b16 {v(128 + 4 * (2 * st + jj) + 2 * h2, 2)}, {v(120 + jj)} offset:{st * 2048 + h2 * 1024}')
        if st == 1:
            A('s_waitcnt lgkmcnt(4)')
    A('s_waitcnt lgkmcnt(4)')
    for st in range(4):
        for h2 in range(2):
            A(f'ds_read_b64_tr_b16 {v(KVW + 4 * st + 2 * h2, 2)}, v122 offset:{st * 512 + h2 * 256}')
    A('s_waitcnt lgkmcnt(8)')
    for st in range(4):
        for jj in range(2):
            for r in range(4):
                first = st == 0 and r == 0
                A(f'v_dot2_f32_bf16 {v(SA + jj)}, {v(128 + 4 * (2 * st + jj) + r)}, v124, {"0" if first else v(SA + jj)}')
    A('s_waitcnt lgkmcnt(0)')
    A('s_barrier')
    for r in range(16):
        A(f'v_dot2_f32_bf16 {v(SA + 2)}, {v(KVW + r)}, v124, {"0" if r == 0 else v(SA + 2)}')
    g3_waddr(C, (125, 126), 32, WQKVP)
    A('s_cmp_eq_u32 s27, 0')
    A('s_cselect_b64 exec, -1, 0')
    for i in range(8):
        C.vmem(f'buffer_store_dwordx4 {v(128 + 4 * i, 4)}, {v(125 + i % 2)}, s[8:11], 0 offen offset:{(i // 2) * 1024}', 'so')
    A('s_lshl_b32 s30, s20, 12')
    A(f's_add_u32 s30, s30, {WQKVP + 16 * 32 * KB}')
    A('s_add_u32 s31, s27, s24')
    A('s_cmp_eq_u32 s31, 0')
    A('s_cselect_b64 exec, -1, 0')
    for k in range(4):
        C.vmem(f'buffer_store_dwordx4 {v(KVW + 4 * k, 4)}, v3, s[8:11], s30 offen offset:{k * 1024}', 'so')
    A('s_mov_b64 exec, -1')
    swap_add(A, SA, SA + 1)
    A(f'v_mov_b32 {v(SA + 3)}, {v(SA + 2)}')
    A('v_lshlrev_b32 v2, 2, v1')
    A('s_and_b32 s30, s28, 1')
    A('s_lshl_b32 s30, s30, 7')
    A('s_lshl_b32 s31, s26, 6')
    A('s_add_u32 s30, s30, s31')
    A('v_xor_b32 v4, s30, v2')
    A('s_lshl_b32 s30, s20, 8')
    A(f's_add_u32 s30, s30, {CSX}')
    A('v_add_u32 v4, s30, v4')
    A(f'ds_write_b32 v4, {v(SA)}')
    swap_add(A, SA + 2, SA + 3)
    A('v_and_b32 v2, 0x7c, v2')
    A('s_lshl_b32 s30, s20, 7')
    A(f's_add_u32 s30, s30, {CSK}')
    A('v_add_u32 v2, s30, v2')
    A(f'ds_write_b32 v2, {v(SA + 2)}')
    g3_main(C, 'qkv', 32, 128, kvf=KVF, raw=True)
    C.stamp()
    A('s_cmp_lg_u32 s20, 4')
    A('s_cbranch_scc1 pr_nz')
    A('v_mov_b32 v2, 0')
    A('v_lshlrev_b32 v4, 2, v1')
    A('s_lshl_b32 s30, s2, 7')
    A(f's_add_u32 s30, s30, {FLG}')
    A('s_mov_b32 exec_hi, 0')
    A('buffer_store_dword v2, v4, s[8:11], s30 offen')
    A('s_and_b32 s30, s2, 31')
    A('s_lshl_b32 s30, s30, 7')
    A(f's_add_u32 s30, s30, {PFL}')
    A('buffer_store_dword v2, v4, s[8:11], s30 offen')
    A('s_mov_b64 exec, -1')
    A.label('pr_nz')
    A.label('pr_fin')
    C.stamp()
    stamp_end(C, 1)
    A.label('pr_end')
    A('s_endpgm')
    return dict(name=name, grid=256, block=512, lds=LDS_BYTES, nv=256, na=0)


def pack_ptrs(A):
    A('s_load_dwordx2 s[12:13], s[0:1], 0')
    A('s_load_dwordx2 s[4:5], s[0:1], 32')
    A('s_load_dwordx4 s[52:55], s[0:1], 48')
    A('s_load_dwordx2 s[16:17], s[0:1], 64')
    A('s_mov_b32 s7, 0x20000')
    A(f's_mov_b32 s14, {2048 * 1024}')
    A('s_mov_b32 s15, 0x20000')


def pack_issue(C):
    A = C.A
    A('s_mul_i32 s30, s2, 3')
    A('s_add_u32 s30, s30, s20')
    A('s_mov_b32 s58, s30')
    A('s_cmp_lt_u32 s20, 3')
    A('s_cselect_b32 s57, 1, 0')
    A('s_cmp_lt_u32 s30, 736')
    A('s_cselect_b32 s57, s57, 0')
    A('s_cmp_eq_u32 s57, 0')
    A('s_cselect_b32 s30, 0, s30')
    A('s_cmp_lt_u32 s30, 64')
    A('s_cbranch_scc1 pk_jwo')
    A('s_cmp_lt_u32 s30, 512')
    A('s_cbranch_scc1 pk_jgu')
    A('s_sub_u32 s30, s30, 512')
    A('s_mov_b64 s[4:5], s[16:17]')
    A(f's_mov_b32 s6, {1792 * 1024}')
    A('s_mov_b32 s50, 1024')
    A('s_and_b32 s31, s30, 7')
    A('s_lshr_b32 s30, s30, 3')
    A('s_lshl_b32 s51, s30, 16')
    A('s_lshl_b32 s56, s31, 7')
    A('s_add_u32 s51, s51, s56')
    A(f's_mul_i32 s56, s31, {2 * 112 * KB}')
    A('s_lshl_b32 s30, s30, 12')
    A('s_add_u32 s56, s56, s30')
    A(f's_add_u32 s56, s56, {WDP}')
    A(f's_mov_b32 s52, {112 * KB}')
    A('s_mov_b32 s53, 256')
    A(f's_mov_b32 s54, {G1.CSDUMMY}')
    A('s_branch pk_jgo')
    A.label('pk_jwo')
    A(f's_mov_b32 s6, {512 * 1024}')
    A('s_mov_b32 s50, 1024')
    A('s_lshr_b32 s31, s30, 3')
    A('s_and_b32 s30, s30, 7')
    A('s_lshl_b32 s51, s30, 16')
    A('s_lshl_b32 s56, s31, 7')
    A('s_add_u32 s51, s51, s56')
    A('s_lshl_b32 s56, s31, 16')
    A('s_lshl_b32 s30, s30, 12')
    A('s_add_u32 s56, s56, s30')
    A(f's_add_u32 s56, s56, {WOP}')
    A(f's_mov_b32 s52, {32 * KB}')
    A('s_mov_b32 s53, 256')
    A(f's_mov_b32 s54, {G1.CSDUMMY}')
    A('s_branch pk_jgo')
    A.label('pk_jgu')
    A('s_sub_u32 s30, s30, 64')
    A('s_cmp_ge_u32 s30, 224')
    A('s_cselect_b32 s4, s54, s52')
    A('s_cselect_b32 s5, s55, s53')
    A('s_cselect_b32 s16, 1, 0')
    A('s_cselect_b32 s31, 224, 0')
    A('s_sub_u32 s30, s30, s31')
    A(f's_mov_b32 s6, {512 * 3584}')
    A('s_mov_b32 s50, 3584')
    A('s_lshr_b32 s31, s30, 3')
    A('s_and_b32 s30, s30, 7')
    A(f's_mul_i32 s51, s30, {64 * 3584}')
    A('s_lshl_b32 s56, s31, 7')
    A('s_add_u32 s51, s51, s56')
    A('s_lshl_b32 s56, s31, 17')
    A('s_lshl_b32 s17, s30, 12')
    A('s_add_u32 s56, s56, s17')
    A('s_lshl_b32 s17, s16, 8')
    A('s_add_u32 s56, s56, s17')
    A(f's_add_u32 s56, s56, {WGUP}')
    A(f's_mov_b32 s52, {64 * KB}')
    A(f's_mov_b32 s53, {32 * KB}')
    A(f's_mul_i32 s54, s30, {3584 * 4}')
    A('s_lshl_b32 s17, s31, 9')
    A('s_add_u32 s54, s54, s17')
    A('s_lshl_b32 s17, s16, 6')
    A('s_add_u32 s54, s54, s17')
    A(f's_add_u32 s54, s54, {CSP}')
    A.label('pk_jgo')
    A('v_lshrrev_b32 v112, 3, v1')
    A('v_and_b32 v113, 7, v1')
    A('v_mul_lo_u32 v112, v112, s50')
    A('v_lshl_add_u32 v112, v113, 4, v112')
    A('s_lshl_b32 s50, s50, 3')
    A('s_min_u32 s59, s20, 2')
    A('s_lshl_b32 s59, s59, 13')
    A(f's_add_u32 s59, s59, {136 * KB}')
    A('s_cmp_lg_u32 s57, 0')
    A('s_cselect_b64 exec, -1, 0')
    for i in range(8):
        A(f's_add_u32 m0, s59, {i * 1024}')
        A('s_nop 0')
        C.vmem('buffer_load_dwordx4 v112, s[4:7], s51 offen lds', 'pk')
        A('s_add_u32 s51, s51, s50')
    A('s_mov_b64 exec, -1')


def pack_convert(C):
    A = C.A
    A('s_cmp_eq_u32 s57, 0')
    A('s_cbranch_scc1 pk_c_end')
    A('v_lshrrev_b32 v112, 5, v1')
    A('v_bfe_u32 v113, v1, 2, 2')
    A('v_lshl_add_u32 v113, v112, 2, v113')
    A('v_and_b32 v114, 3, v1')
    A('v_lshlrev_b32 v114, 3, v114')
    A('v_lshl_add_u32 v113, v113, 7, v114')
    A('v_bfe_u32 v114, v1, 4, 1')
    A('v_lshl_add_u32 v113, v114, 5, v113')
    A('v_add_u32 v113, s59, v113')
    A('v_mul_lo_u32 v114, v114, s53')
    A('v_and_b32 v115, 15, v1')
    A('v_lshl_add_u32 v114, v115, 4, v114')
    A('v_lshl_add_u32 v114, v112, 9, v114')
    A('v_lshrrev_b32 v112, 4, v1')
    A('v_lshlrev_b32 v112, 7, v112')
    A('v_lshl_add_u32 v112, v115, 2, v112')
    A('v_mov_b32 v115, 0x3f803f80')
    A('s_add_u32 s52, s52, s56')
    A('s_waitcnt vmcnt(0)')
    for jj in range(2):
        for st in range(4):
            for h2 in range(2):
                A(f'ds_read_b64_tr_b16 {v(128 + 4 * (4 * jj + st) + 2 * h2, 2)}, v113 offset:{st * 2048 + h2 * 1024 + jj * 64}')
        A('s_waitcnt lgkmcnt(0)')
        for st in range(4):
            A(f'buffer_store_dwordx4 {v(128 + 4 * (4 * jj + st), 4)}, v114, s[8:11], {"s56" if jj == 0 else "s52"} offen offset:{st * 1024} sc0 sc1')
    for r in range(16):
        for jj in range(2):
            A(f'v_dot2_f32_bf16 {v(116 + jj)}, {v(128 + 16 * jj + r)}, v115, {"0" if r == 0 else v(116 + jj)}')
    A('s_nop 2')
    swap_add(A, 116, 117)
    A('buffer_store_dword v116, v112, s[8:11], s54 offen sc0 sc1')
    A.label('pk_c_end')


def pack_flag(C):
    A = C.A
    A('s_cmp_ge_u32 s20, 3')
    A('s_cbranch_scc1 pk_f_end')
    A('s_lshl_b32 s30, s58, 2')
    A(f's_add_u32 s30, s30, {PFL}')
    A('v_mov_b32 v112, 0')
    A('v_mov_b32 v113, 1')
    A('s_waitcnt vmcnt(0)')
    A('s_mov_b64 exec, 1')
    A('buffer_store_dword v113, v112, s[8:11], s30 offen sc0 sc1')
    A('s_mov_b64 exec, -1')
    A.label('pk_f_end')


def pack_poll(C, endlab):
    A = C.A
    A(f's_mov_b32 s30, {PFL}')
    A('s_mov_b32 s31, 0')
    A.label('pk_p')
    for k in range(3):
        A(f'buffer_load_dwordx4 {v(112 + 4 * k, 4)}, v3, s[8:11], s30 offen offset:{k * 1024} sc1')
    A('s_waitcnt vmcnt(0)')
    for k in range(1, 12):
        A(f'v_and_b32 v112, v112, {v(112 + k)}')
    A('v_cmp_eq_u32 vcc, 1, v112')
    A('s_add_u32 s31, s31, 1')
    A('s_cmp_eq_u64 vcc, -1')
    A('s_cbranch_scc1 pk_pd')
    A('s_sleep 24')
    A(f's_cmp_lt_u32 s31, {1 << 19}')
    A('s_cbranch_scc1 pk_p')
    A(f's_branch {endlab}')
    A.label('pk_pd')
    C.vm = []


def gen_layer(A, layer):
    name = f'layer{layer}_kernel'
    tg = f'l{layer}'
    end = f'{tg}_end'
    C = Ctx(A, tg)
    last = layer == 1
    xin = None if layer == 0 else XC
    kvf = KVF if layer == 0 else KVF2
    sy = 4 * layer
    kernel_begin(A, name)
    if layer == 0:
        pack_ptrs(A)
    setup(C, last, end)

    def pre_addr():
        gu_waddr(C)
        g3_waddr(C, (113, 114), 112, WDP)
        g3_waddr(C, (116, 117), 32, WOP)

    stubs = [lambda: (pre_addr(), gu_wload(C, 0))]
    stubs += [lambda ks=ks: gu_wload(C, ks) for ks in range(1, 24)]
    stubs += [lambda i=i: g3_wload(C, (116, 117), i, 224) for i in range(8)]
    if TOUCH and layer == 1:
        def t_addr():
            A('s_lshr_b32 s30, s2, 3')
            A('s_lshl_b32 s30, s30, 3')
            A('s_add_u32 s30, s30, s20')
            A(f's_mul_i32 s31, s30, {7 * KB}')
            A(f's_add_u32 s31, s31, {WDP}')
            A('v_add_u32 v118, s31, v3')
            A('s_lshl_b32 s31, s30, 11')
            A(f's_add_u32 s31, s31, {WQKVP}')
            A('v_add_u32 v119, s31, v3')

        def tch(vr, k):
            so, im = soff(k)
            C.vmem(f'buffer_load_dwordx4 v[120:123], {v(vr)}, s[8:11], {so} offen offset:{im}', 'tc')
        stubs += [lambda: (t_addr(), tch(V_WGU, 24))]
        stubs += [lambda ks=ks: tch(V_WGU, ks) for ks in range(25, 32)]
        stubs += [lambda k=k: tch(118, k) for k in range(7)]
        if not last:
            stubs += [lambda k=k: tch(119, k) for k in range(2)]

    def need_wo():
        A('s_lshr_b32 s30, s20, 1')
        A('s_lshl_b32 s30, s30, 2')
        A('s_lshl_b32 s31, s23, 1')
        A('s_add_u32 s30, s30, s31')
        A('s_lshl_b32 s32, 3, s30')

    def need_gu():
        A('s_lshr_b32 s30, s25, 1')
        A('s_lshl_b32 s32, 0x5555, s30')
        A('s_cmp_eq_u32 s20, 7')
        A('s_cselect_b32 s32, 0xffff, s32')

    def need_dn():
        A('s_lshl_b32 s30, s20, 1')
        A('s_lshl_b32 s32, 3, s30')

    def need_qkv():
        A('s_lshl_b32 s30, s20, 1')
        A('s_add_u32 s30, s30, s23')
        A('s_lshl_b32 s32, 1, s30')

    if layer == 0:
        fixed = {PK_I: lambda: pack_issue(C), PK_C: lambda: pack_convert(C), PK_F: lambda: pack_flag(C), PK_P: lambda: pack_poll(C, end)}
        tail = att_phase(C, kvf, stubs, fixed, PK_P)
    else:
        tail = att_phase(C, kvf, stubs)
    C.stamp()
    g3_pre(C, 'res', 32, OF, resbase=xin)
    handoff(C, sy + 0, end, need_wo)
    C.stamp()
    g3_main(C, 'res', 32, 224, outbase=XB, sxout=SXB)
    C.stamp()
    gu_pre(C)
    handoff(C, sy + 1, end, need_gu)
    C.stamp()
    gu_main(C)
    C.stamp()
    g3_pre(C, 'res', 112, HF, resbase=XB)
    handoff(C, sy + 2, end, need_dn)
    C.stamp()
    if last:
        g3_main(C, 'out', 112, 128)
        C.stamp()
    else:
        g3_main(C, 'res', 112, 128, outbase=XC, sxout=SXC, hook_b=lambda st, n: qkv_wstep(C, st, n))
        C.stamp()
        g3_pre(C, 'qkv', 32, XC, resbase=SXC)
        handoff(C, sy + 3, end, need_qkv)
        C.stamp()
        g3_main(C, 'qkv', 32, 128, kvf=KVF2)
        C.stamp()
    stamp_end(C, 2 + layer)
    A.label(end)
    A('s_endpgm')
    tail()
    return dict(name=name, grid=256, block=512, lds=LDS_BYTES, nv=256, na=0)


def gen_zero_flags(A):
    pass


def build():
    A = Asm()
    ks = {}
    G1.STAMP = False
    ks['pre'] = gen_pre(A)
    ks['l0'] = gen_layer(A, 0)
    ks['l1'] = gen_layer(A, 1)
    order = ['pre', 'l0', 'l1']
    body = A.text()
    probs = lint(body)
    for p in probs:
        print('LINT:', p, file=sys.stderr)
    head = '; generated by gen/gen2.py\n'
    for k in order:
        d = ks[k]
        head += f"; @launch kernel={d['name']} grid=({d['grid']},1,1) block=({d['block']},1,1) lds={d['lds']}\n"
    head += '.amdgcn_target "amdgcn-amd-amdhsa--gfx950"\n.text\n'
    tail = '.section .rodata,"a"\n'
    for k, d in ks.items():
        tail += '.p2align 6\n' + descriptor(d['name'], d['nv'], d['na'], nsgpr=100)
    return head + body + tail


if __name__ == '__main__':
    if 'stamp' in sys.argv:
        STAMP = True
    for arg in sys.argv[2:]:
        if '=' in arg:
            k, val = arg.split('=')
            globals()[k] = int(val) if val.lstrip('-').isdigit() else val.replace('_', ' ')
    out = sys.argv[1] if len(sys.argv) > 1 else f'cdna_kernels/{NAME}.s'
    open(out, 'w').write(build())
    print('wrote', out)
```

```python
import sys
import math
import struct
from asmlib import Asm, v, a, s, lint
import gen as G1
from gen import f32, kernel_begin, descriptor, ws_srd, KB

NAME = G1.NAME
WQKVP, WOP, WGUP, WDP, CSQKV, CSGU = G1.WQKVP, G1.WOP, G1.WGUP, G1.WDP, G1.CSQKV, G1.CSGU
KVF, XA, XB, QF, OF, HF = G1.KVF, G1.XA, G1.XB, G1.QF, G1.OF, G1.HF
WS_SIZE, KVT, VBS, QSCALE = G1.WS_SIZE, G1.KVT, G1.VBS, G1.QSCALE
XC = G1.WS_END
KVF2 = XC + 2048 * KB
FLG = KVF2 + 144 * KB
SXA = FLG + 32 * KB
SXB = SXA + 512 * KB
SXC = SXB + 512 * KB
CSP = SXC + 512 * KB
PFL = CSP + 128 * KB
WS_END = PFL + 96 * KB
STAMPS = G1.STAMPS

STAMP = False
WT = ' sc0 sc1'
LDS_BYTES = 160 * KB
FINE = 0
PK_I = 2
PK_C = 5
PK_F = 6
PK_P = 9
RT = 0
TOUCH = 1
ATT_UN = 4
ATT_PFEND = 1
G3_PR4 = 7
G3_PR14 = 6
G2_ST8 = [2, 2, 2, 2]
G2_ST28 = [2, 2, 4, 4, 4, 4, 4, 4]
G2_PRE8 = 4
G2_PRE28 = 6


class Ctx:
    def __init__(self, A, tag):
        self.A = A
        self.tag = tag
        self.vm = []
        self.nlab = 0
        self.nstamp = 1

    def lab(self, base):
        self.nlab += 1
        return f'{self.tag}_{base}{self.nlab}'

    def vmem(self, text, tag):
        self.A(text)
        self.vm.append(tag)
        assert len(self.vm) <= 63, 'vmcnt overflow'

    def wait(self, tag, extra=''):
        idx = [i for i, t in enumerate(self.vm) if t == tag]
        if not idx:
            if extra:
                self.A(f's_waitcnt {extra}')
            return
        n = len(self.vm) - 1 - idx[-1]
        self.A(f's_waitcnt vmcnt({n}) {extra}'.strip())
        self.vm = self.vm[idx[-1] + 1:]

    def stamp(self):
        if STAMP:
            i = self.nstamp
            self.nstamp += 1
            if i >= 28:
                return
            A = self.A
            A('s_waitcnt lgkmcnt(0)')
            A('s_memrealtime s[60:61]' if RT else 's_memtime s[60:61]')
            A('s_waitcnt lgkmcnt(0)')
            A(f's_mov_b32 {s(64 + i)}, s60')


def stamp_begin(C):
    if STAMP:
        A = C.A
        A('s_memrealtime s[62:63]')
        A('s_memtime s[60:61]')
        for i in range(1, 30):
            A(f's_mov_b32 {s(64 + i)}, 0')
        A('s_waitcnt lgkmcnt(0)')
        A('s_mov_b32 s64, s62' if RT else 's_mov_b32 s64, s60')
        A('s_mov_b32 s95, s62')


def stamp_end(C, kidx):
    if STAMP:
        A = C.A
        A('s_waitcnt vmcnt(0) lgkmcnt(0)')
        A('s_memtime s[60:61]')
        A('s_memrealtime s[62:63]')
        A('s_waitcnt lgkmcnt(0)')
        A('s_mov_b32 s93, s62' if RT else 's_mov_b32 s93, s60')
        A('s_mov_b32 s94, s62')
        A('s_mov_b64 exec, 1')
        A('s_lshl_b32 s60, s2, 10')
        A('s_lshl_b32 s61, s20, 7')
        A('s_add_u32 s60, s60, s61')
        A(f's_add_u32 s60, s60, {STAMPS + kidx * (1 << 20)}')
        A('v_mov_b32 v0, 0')
        for i in range(32):
            A(f'v_mov_b32 v1, {s(64 + i)}')
            A(f'buffer_store_dword v1, v0, s[8:11], s60 offen offset:{i * 4}')
        A('s_waitcnt vmcnt(0)')


def setup(C, need_out, endlab):
    A = C.A
    A('s_cmp_ge_u32 s2, 256')
    A(f's_cbranch_scc1 {endlab}')
    stamp_begin(C)
    ws_srd(A, 8)
    if need_out:
        A('s_load_dwordx2 s[12:13], s[0:1], 72')
        A(f's_mov_b32 s14, {2048 * 512 * 2}')
        A('s_mov_b32 s15, 0x20000')
    A('v_and_b32 v1, 63, v0')
    A('v_lshrrev_b32 v2, 6, v0')
    A('v_lshlrev_b32 v3, 4, v1')
    A('v_readfirstlane_b32 s20, v2')
    A('s_and_b32 s21, s2, 7')
    A('s_lshl_b32 s21, s21, 1')
    A('s_bfe_u32 s22, s2, 0x10003')
    A('s_add_u32 s21, s21, s22')
    A('s_lshr_b32 s22, s2, 4')
    A('s_and_b32 s23, s22, 1')
    A('s_lshr_b32 s24, s22, 1')
    A('s_and_b32 s25, s20, 3')
    A('s_lshr_b32 s26, s20, 2')
    A('s_lshl_b32 s27, s21, 2')
    A('s_lshl_b32 s30, s23, 1')
    A('s_add_u32 s27, s27, s30')
    A('s_lshl_b32 s28, s24, 1')
    A('s_bfe_u32 s30, s20, 0x10001')
    A('s_add_u32 s28, s28, s30')
    A('s_and_b32 s29, s20, 1')
    A('s_add_u32 s30, s27, s29')
    A('s_lshl_b32 s49, s30, 15')
    A('s_lshl_b32 s31, s28, 11')
    A('s_add_u32 s49, s49, s31')
    A('s_lshl_b32 s31, s26, 10')
    A('s_add_u32 s49, s49, s31')
    for g in range(1, 8):
        A(f's_mov_b32 {s(40 + g)}, {g * 4096}')
    A('s_waitcnt lgkmcnt(0)')


def soff(i):
    return ('0' if i // 4 == 0 else s(40 + i // 4)), (i % 4) * 1024


def handoff(C, sync, endlab, need):
    A = C.A
    l1, l2, ld = C.lab('pa'), C.lab('pb'), C.lab('pd')
    need()
    A('s_mov_b32 s33, 0')
    A('v_lshlrev_b32 v0, 2, v1')
    A('s_lshl_b32 s30, s21, 8')
    A(f's_add_u32 s30, s30, {FLG + sync * 4096}')
    A('s_lshl_b32 s34, s22, 2')
    A('s_add_u32 s34, s34, s30')
    A('v_mov_b32 v4, 1')
    C.wait('st', 'lgkmcnt(0)')
    if FINE and sync >= 4:
        C.stamp()
    A('s_cmp_lg_u32 s20, 0')
    A('s_barrier')
    l, lb, lb2 = C.lab('sig'), C.lab('sb'), C.lab('sc')
    A(f's_cbranch_scc1 {l}')
    A('s_mov_b64 exec, 1')
    A('buffer_store_dword v4, v0, s[8:11], s34 offen')
    A.label(l)
    if FINE and sync >= 4:
        C.stamp()
    A('s_mov_b32 s31, 0')
    A('s_mov_b64 exec, s[32:33]')
    A.label(l1)
    A('buffer_load_dword v2, v0, s[8:11], s30 offen sc1')
    A('s_add_u32 s31, s31, 1')
    A('s_waitcnt vmcnt(0)')
    A('v_cmp_ne_u32 vcc, 0, v2')
    A('s_cmp_eq_u64 vcc, s[32:33]')
    A(f's_cbranch_scc1 {ld}')
    A('s_cmp_lt_u32 s31, 64')
    A(f's_cbranch_scc1 {l1}')
    A('s_cmp_lg_u32 s20, 0')
    A(f's_cbranch_scc1 {l2}')
    A('s_mov_b64 exec, 1')
    A('buffer_store_dword v4, v0, s[8:11], s34 offen offset:128 sc0 sc1')
    A('s_mov_b64 exec, s[32:33]')
    A.label(l2)
    A('buffer_load_dword v2, v0, s[8:11], s30 offen sc1')
    A('s_waitcnt vmcnt(0)')
    A('v_cmp_ne_u32 s[36:37], 0, v2')
    A('buffer_load_dword v2, v0, s[8:11], s30 offen offset:128 sc0 sc1')
    A('s_waitcnt vmcnt(0)')
    A('v_cmp_ne_u32 vcc, 0, v2')
    A('s_add_u32 s31, s31, 1')
    A('s_or_b64 vcc, vcc, s[36:37]')
    A('s_cmp_eq_u64 vcc, s[32:33]')
    A(f's_cbranch_scc1 {ld}')
    A('s_sleep 4')
    A(f's_cmp_lt_u32 s31, {1 << 20}')
    A(f's_cbranch_scc1 {l2}')
    A(f's_branch {endlab}')
    A.label(ld)
    A('s_mov_b64 exec, -1')
    C.vm = []
    C.flagb = True


def flag_b(C):
    if getattr(C, 'flagb', False):
        A = C.A
        A('s_cmp_eq_u32 s20, 0')
        A('s_cselect_b64 exec, 1, 0')
        C.vmem('buffer_store_dword v4, v0, s[8:11], s34 offen offset:128 sc0 sc1', 'fb')
        A('s_mov_b64 exec, -1')
        C.flagb = False


ACCB, ACCA = 16, 48
KVW, KACC, QSX = 160, 176, 240
KVRED, STAT, CSX, CSK = 112 * KB, 144 * KB, 148 * KB, 150 * KB


def blk_stats(C, P, T):
    A = C.A
    A(f'v_mov_b32 {v(T + 4)}, 0x3f803f80')
    A(f'v_dot2_f32_bf16 {v(T + 1)}, {v(P)}, {v(P)}, 0')
    A(f'v_dot2_f32_bf16 {v(T)}, {v(P)}, {v(T + 4)}, 0')
    for m in range(1, 4):
        A(f'v_dot2_f32_bf16 {v(T + 1)}, {v(P + m)}, {v(P + m)}, {v(T + 1)}')
        A(f'v_dot2_f32_bf16 {v(T)}, {v(P + m)}, {v(T + 4)}, {v(T)}')
    A('s_nop 2')
    A(f'v_mov_b32 {v(T + 2)}, {v(T)}')
    A(f'v_mov_b32 {v(T + 3)}, {v(T + 1)}')
    A('s_nop 1')
    A(f'v_permlane32_swap_b32 {v(T)}, {v(T + 2)}')
    A(f'v_permlane32_swap_b32 {v(T + 1)}, {v(T + 3)}')
    A(f'v_add_f32 {v(T)}, {v(T)}, {v(T + 2)}')
    A(f'v_add_f32 {v(T + 1)}, {v(T + 1)}, {v(T + 3)}')


def g3_waddr(C, vregs, KS, wbase):
    A = C.A
    NS = KS // 8
    A('s_lshl_b32 s30, s26, 8')
    A(f'v_xor_b32 {v(vregs[0])}, s30, v3')
    A(f's_mul_i32 s31, s20, {NS * KB}')
    A(f's_add_u32 s31, s31, {wbase}')
    A('s_xor_b32 s30, s28, 1')
    A(f's_mul_i32 s30, s30, {KS * KB}')
    A('s_add_u32 s30, s30, s31')
    A(f'v_add_u32 {v(vregs[1])}, s30, {v(vregs[0])}')
    A(f's_mul_i32 s30, s28, {KS * KB}')
    A('s_add_u32 s30, s30, s31')
    A(f'v_add_u32 {v(vregs[0])}, s30, {v(vregs[0])}')


def g3_wload(C, vregs, idx, wreg0, tag='w'):
    st, jj = idx // 2, idx % 2
    so, im = soff(st)
    C.vmem(f'buffer_load_dwordx4 {v(wreg0 + 4 * idx, 4)}, {v(vregs[jj])}, s[8:11], {so} offen offset:{im}', tag)


def g3_ex(mode, KS):
    return 252 if KS == 112 else (112 if mode == 'qkv' else 116)


def g3_pre(C, mode, KS, xbase, resbase=None, raw=False):
    A = C.A
    NS = KS // 8
    EX = g3_ex(mode, KS)
    A(f's_mul_i32 s31, s20, {NS * KB}')
    A(f's_add_u32 s31, s31, {xbase}')
    A('s_add_u32 s30, s27, s29')
    A(f's_mul_i32 s32, s30, {KS * KB}')
    A('s_add_u32 s32, s32, s31')
    A('v_add_u32 v6, s32, v3')
    A('s_xor_b32 s30, s30, 1')
    A(f's_mul_i32 s32, s30, {KS * KB}')
    A('s_add_u32 s32, s32, s31')
    A('v_add_u32 v5, s32, v3')
    A('s_lshl_b32 s30, s20, 11')
    A('v_add_u32 v8, s30, v3')
    A('v_add_u32 v7, 0x10000, v8')
    for b in range(1, 8):
        A(f's_xor_b32 s30, s20, {b}')
        A('s_lshl_b32 s30, s30, 11')
        A(f's_add_u32 s30, s30, {(b - 1) * 16 * KB}')
        A(f'v_add_u32 {v(8 + b)}, s30, v3')
    if raw:
        return
    if mode == 'qkv':
        A('v_lshrrev_b32 v2, 5, v1')
        A('v_lshlrev_b32 v4, 4, v2')
        A('s_lshl_b32 s31, s28, 7')
        A('s_lshl_b32 s30, s26, 6')
        A('s_add_u32 s31, s31, s30')
        A(f's_add_u32 s31, s31, {CSQKV}')
        C.vmem(f'buffer_load_dwordx4 {v(EX, 4)}, v4, s[8:11], s31 offen', 'ex')
        C.vmem(f'buffer_load_dwordx4 {v(EX + 4, 4)}, v4, s[8:11], s31 offen offset:32', 'ex')
        A('s_bfe_u32 s30, s20, 0x10001')
        A('s_lshl_b32 s30, s30, 6')
        A(f's_add_u32 s31, s30, {CSQKV + 2048}')
        C.vmem(f'buffer_load_dwordx4 {v(EX + 8, 4)}, v4, s[8:11], s31 offen', 'ex')
        C.vmem(f'buffer_load_dwordx4 {v(EX + 12, 4)}, v4, s[8:11], s31 offen offset:32', 'ex')
        A(f'v_and_b32 {v(QSX + 8)}, 31, v1')
        A(f'v_lshlrev_b32 {v(QSX + 8)}, 3, {v(QSX + 8)}')
        A(f'v_lshl_add_u32 {v(QSX + 8)}, v2, 13, {v(QSX + 8)}')
        A('s_lshl_b32 s30, s27, 13')
        A('s_lshl_b32 s31, s20, 10')
        A('s_add_u32 s30, s30, s31')
        A(f's_add_u32 s30, s30, {resbase}')
        A(f'v_add_u32 {v(QSX + 8)}, s30, {v(QSX + 8)}')
    elif resbase is None:
        A('v_and_b32 v2, 31, v1')
        A('v_lshlrev_b32 v2, 10, v2')
        A('v_lshrrev_b32 v4, 5, v1')
        A('v_lshl_add_u32 v2, v4, 3, v2')
        A('s_add_u32 s30, s27, s29')
        A('s_lshl_b32 s30, s30, 15')
        A('s_lshl_b32 s31, s28, 6')
        A('s_add_u32 s30, s30, s31')
        A('s_lshl_b32 s31, s26, 5')
        A('s_add_u32 s30, s30, s31')
        C.vmem(f'buffer_load_dwordx2 {v(EX, 2)}, v2, s[12:15], s30 offen', 'ex')
        C.vmem(f'buffer_load_dwordx2 {v(EX + 2, 2)}, v2, s[12:15], s30 offen offset:16', 'ex')
    else:
        A(f's_add_u32 s31, s49, {resbase}')
        C.vmem(f'buffer_load_dwordx4 {v(EX, 4)}, v3, s[8:11], s31 offen', 'ex')


def g3_main(C, mode, KS, wreg0, outbase=None, kvf=None, after_store=None, sxout=None, hook_b=None, raw=False):
    A = C.A
    NS = KS // 8
    EX = g3_ex(mode, KS)
    if NS == 4:
        xreg = {(hh, st): 80 + (hh * 4 + st) * 4 for hh in range(2) for st in range(4)}
    else:
        slot = [80 + 4 * k for k in range(12)] + [240, 244]
        xreg = {(hh, st): slot[st] for hh in range(2) for st in range(NS)}

    def xload(hh, st):
        so, im = soff(st)
        C.vmem(f'buffer_load_dwordx4 {v(xreg[hh, st], 4)}, {v(5 + hh)}, s[8:11], {so} offen offset:{im}', f'x{hh}_{st}')

    seq = [(hh, st) for hh in range(2) for st in range(NS)]
    PR = G3_PR4 if NS == 4 else G3_PR14
    if raw:
        seq, PR = [], 0
    for x in seq[:PR]:
        xload(*x)
    nxt = PR
    C.wait('w')

    def wr(b):
        base = (ACCA if b & 1 else ACCB) + ((b >> 1) & 1) * 16 + (b >> 2) * 8
        return [f'ds_write_b128 {v(8 + b)}, {v(base + h2 * 4, 4)} offset:{h2 * 1024}' for h2 in range(2)]

    pend = []
    for hh in range(2):
        acc = ACCA if hh == 0 else ACCB
        for st in range(NS):
            C.wait(f'x{hh}_{st}')
            if hh == 0 and st == 0:
                C.stamp()
            for jj in range(2):
                c = '0' if st == 0 else v(acc + jj * 16, 16)
                A(f'v_mfma_f32_32x32x16_bf16 {v(acc + jj * 16, 16)}, {v(wreg0 + 4 * (2 * st + jj), 4)}, {v(xreg[hh, st], 4)}, {c}')
                if hh == 1 and (st >= 3 or (NS == 4 and st >= 2)):
                    for _ in range(2 if NS == 4 else 1):
                        if pend:
                            A(pend.pop(0))
            if nxt < len(seq):
                xload(*seq[nxt])
                nxt += 1
                if nxt == len(seq):
                    if mode == 'qkv':
                        for e in range(4):
                            C.vmem(f'buffer_load_dwordx2 {v(QSX + 2 * e, 2)}, {v(QSX + 8)}, s[8:11], 0 offen offset:{e * 256}', 'sx')
                    flag_b(C)
                    hb = 0
            elif hook_b:
                hb += 1
            if hook_b and nxt == len(seq):
                hook_b(hb, PR)
            if hh == 1 and NS == 4 and st == 1:
                A('s_nop 7' if raw else 's_nop 5')
            if hh == 1 and NS != 4 and st == 2:
                A('s_nop 2')
        if hh == 0:
            pend = wr(1) + wr(5) + wr(3) + wr(7)
    assert not pend
    C.stamp()
    lkv = C.lab('nokv')
    if mode == 'qkv':
        la, lb = C.lab('ka'), C.lab('kb')
        A('s_cmp_ge_u32 s24, 2')
        A(f's_cbranch_scc1 {lb}')
        A('s_cmp_eq_u32 s24, s29')
        A(f's_cbranch_scc0 {la}')
        for hh in (1, 0):
            for st in range(4):
                c = '0' if st == 0 else v(KACC, 16)
                A(f'v_mfma_f32_32x32x16_bf16 {v(KACC, 16)}, {v(KVW + 4 * st, 4)}, {v(xreg[hh, st], 4)}, {c}')
            if hh == 1:
                A(f's_branch {lb}')
                A.label(la)
        A.label(lb)
        A('v_lshlrev_b32 v4, 3, v1')
        if not raw:
            C.wait('sx')
            for e in range(4):
                A(f'v_add_f32 {v(QSX + e)}, {v(QSX + e)}, {v(QSX + 4 + e)}')
            for e in range(2):
                A(f'v_add_f32 {v(QSX + e)}, {v(QSX + e)}, {v(QSX + 2 + e)}')
            A('s_lshl_b32 s30, s20, 9')
            A(f's_add_u32 s30, s30, {STAT}')
            A('v_add_u32 v2, s30, v4')
            A(f'ds_write_b64 v2, {v(QSX, 2)}')
        else:
            A('v_lshrrev_b32 v112, 5, v1')
            A('v_lshlrev_b32 v112, 4, v112')
            A('s_and_b32 s30, s28, 1')
            A('s_lshl_b32 s30, s30, 7')
            A('s_lshl_b32 s31, s26, 6')
            A('s_add_u32 s30, s30, s31')
            A(f's_add_u32 s30, s30, {CSX}')
            A('v_add_u32 v113, s30, v112')
            A('s_nop 3')
        A('v_and_b32 v4, 0xf8, v4')
        A('s_lshl_b32 s30, s29, 8')
        A(f's_add_u32 s30, s30, {STAT}')
        A('v_add_u32 v4, s30, v4')
    else:
        A('s_nop 10')
    for b in (4, 2, 6):
        for x in wr(b):
            A(x)
    if mode == 'qkv':
        A('s_cmp_ge_u32 s24, 2')
        A(f's_cbranch_scc1 {lkv}')
        A(f'v_add_u32 v2, {KVRED}, v8')
        for k4 in range(4):
            A(f'ds_write_b128 v2, {v(KACC + k4 * 4, 4)} offset:{(k4 >> 1) * 16 * KB + (k4 & 1) * 1024}')
        A.label(lkv)
    A('s_waitcnt lgkmcnt(0)')
    A('s_barrier')
    for b in range(1, 8):
        for h2 in range(2):
            base, off = ('v8', (b - 1) * 16 * KB) if b <= 4 else ('v7', (b - 5) * 16 * KB)
            A(f'ds_read_b128 {v(ACCB + b * 8 + h2 * 4, 4)}, {base} offset:{off + h2 * 1024}')
    T = 80

    def red(base, waits):
        for stp in (32, 16, 8):
            for r in range(stp):
                A(f'v_add_f32 {v(base + r)}, {v(base + r)}, {v(base + stp + r)}')
    if mode == 'qkv':
        A('s_waitcnt lgkmcnt(6)')
        for ww in range(8):
            A(f'ds_read_b64 {v(T + ww * 2, 2)}, v4 offset:{ww * 512}')
        A('s_waitcnt lgkmcnt(8)')
        if raw:
            A('s_barrier')
            EX = 128
            A('s_waitcnt lgkmcnt(0)')
            for ww in range(8):
                for h2 in range(2):
                    A(f'ds_read_b128 {v(EX + ww * 8 + h2 * 4, 4)}, v113 offset:{ww * 256 + h2 * 32}')
                if ww == 6:
                    A('s_waitcnt lgkmcnt(4)')
    else:
        C.wait('ex')
        for m in range(4):
            A(f'v_lshlrev_b32 {v(T + 2 * m)}, 16, {v(EX + m)}')
            A(f'v_and_b32 {v(T + 2 * m + 1)}, 0xffff0000, {v(EX + m)}')
        for r in range(8):
            A(f'v_add_f32 {v(ACCB + r)}, {v(ACCB + r)}, {v(T + r)}')
        A('s_waitcnt lgkmcnt(0)')
    red(ACCB, None)
    P = ACCB + 8
    if mode == 'qkv':
        A('s_waitcnt lgkmcnt(0)')
        for stp in (8, 4, 2):
            for e in range(stp):
                A(f'v_add_f32 {v(T + e)}, {v(T + e)}, {v(T + e + stp)}')
        A(f'v_mul_f32 {v(T)}, {f32(1.0 / 512)}, {v(T)}')
        A(f'v_mul_f32 {v(T + 1)}, {f32(1.0 / 512)}, {v(T + 1)}')
        A(f'v_fma_f32 {v(T + 1)}, -{v(T)}, {v(T)}, {v(T + 1)}')
        A(f'v_max_f32 {v(T + 1)}, 0, {v(T + 1)}')
        A(f'v_add_f32 {v(T + 1)}, {f32(1e-5)}, {v(T + 1)}')
        A(f'v_rsq_f32 {v(T + 1)}, {v(T + 1)}')
        C.wait('ex')
        if raw:
            red(EX, None)
            lcs = C.lab('cs')
            A('s_add_u32 s30, s27, s29')
            A('s_cmp_lg_u32 s30, 0')
            A(f's_cbranch_scc1 {lcs}')
            A('s_lshl_b32 s31, s28, 7')
            A('s_lshl_b32 s30, s26, 6')
            A('s_add_u32 s31, s31, s30')
            A(f's_add_u32 s31, s31, {CSQKV}')
            A('s_mov_b32 exec_lo, 1')
            A('s_mov_b32 exec_hi, 1')
            A(f'buffer_store_dwordx4 {v(EX, 4)}, v112, s[8:11], s31 offen')
            A(f'buffer_store_dwordx4 {v(EX + 4, 4)}, v112, s[8:11], s31 offen offset:32')
            A('s_mov_b64 exec, -1')
            A.label(lcs)
        for r in range(8):
            A(f'v_fma_f32 {v(ACCB + r)}, -{v(T)}, {v(EX + r)}, {v(ACCB + r)}')
        A(f'v_mul_f32 {v(T + 2)}, {f32(QSCALE)}, {v(T + 1)}')
        for r in range(8):
            A(f'v_mul_f32 {v(ACCB + r)}, {v(T + 2)}, {v(ACCB + r)}')
        for m in range(4):
            A(f'v_cvt_pk_bf16_f32 {v(P + m)}, {v(ACCB + 2 * m)}, {v(ACCB + 2 * m + 1)}')
        A(f's_add_u32 s31, s49, {QF}')
        C.vmem(f'buffer_store_dwordx4 {v(P, 4)}, v3, s[8:11], s31 offen', 'st')
        le, lv = C.lab('ke'), C.lab('v')
        A('s_cmp_ge_u32 s24, 2')
        A(f's_cbranch_scc1 {le}')
        A('s_and_b32 s30, s20, 5')
        A('s_cmp_lg_u32 s30, s24')
        A(f's_cbranch_scc1 {le}')
        A('s_bfe_u32 s34, s20, 0x10001')
        A('s_lshl_b32 s30, s34, 14')
        A(f's_add_u32 s30, s30, {KVRED}')
        A('v_add_u32 v4, s30, v3')
        KR = 128
        for ww in range(8):
            for h2 in range(2):
                A(f'ds_read_b128 {v(KR + ww * 8 + h2 * 4, 4)}, v4 offset:{ww * 2048 + h2 * 1024}')
            if ww == 6:
                A('s_waitcnt lgkmcnt(4)')
        A('s_waitcnt lgkmcnt(0)')
        KX = EX + 8
        if raw:
            KX = 192
            A('s_lshl_b32 s30, s34, 6')
            A(f's_add_u32 s30, s30, {CSK}')
            A('v_add_u32 v113, s30, v112')
            for ww in range(8):
                for h2 in range(2):
                    A(f'ds_read_b128 {v(KX + ww * 8 + h2 * 4, 4)}, v113 offset:{ww * 128 + h2 * 32}')
                if ww == 6:
                    A('s_waitcnt lgkmcnt(4)')
        red(KR, None)
        if raw:
            A('s_waitcnt lgkmcnt(0)')
            red(KX, None)
            lcs = C.lab('ck')
            A('s_add_u32 s30, s27, s29')
            A('s_cmp_lg_u32 s30, 0')
            A(f's_cbranch_scc1 {lcs}')
            A('s_lshl_b32 s31, s34, 6')
            A(f's_add_u32 s31, s31, {CSQKV + 2048}')
            A('s_mov_b32 exec_lo, 1')
            A('s_mov_b32 exec_hi, 1')
            A(f'buffer_store_dwordx4 {v(KX, 4)}, v112, s[8:11], s31 offen')
            A(f'buffer_store_dwordx4 {v(KX + 4, 4)}, v112, s[8:11], s31 offen offset:32')
            A('s_mov_b64 exec, -1')
            A.label(lcs)
        for r in range(8):
            A(f'v_fma_f32 {v(KR + r)}, -{v(T)}, {v(KX + r)}, {v(KR + r)}')
        for r in range(8):
            A(f'v_mul_f32 {v(KR + r)}, {v(T + 1)}, {v(KR + r)}')
        KP = KR + 8
        for m in range(4):
            A(f'v_cvt_pk_bf16_f32 {v(KP + m)}, {v(KR + 2 * m)}, {v(KR + 2 * m + 1)}')
        A('s_add_u32 s30, s27, s29')
        A(f's_mul_i32 s30, s30, {KVT}')
        A(f's_add_u32 s30, s30, {kvf}')
        A('s_cmp_lg_u32 s34, 0')
        A(f's_cbranch_scc1 {lv}')
        A(f'buffer_store_dwordx4 {v(KP, 4)}, v3, s[8:11], s30 offen')
        for r in range(4):
            A(f'v_mov_b32 {v(8 + r)}, 0x3f803f80')
            A(f'v_mov_b32 {v(12 + r)}, 0')
        A(f'v_mul_u32_u24 v4, {VBS}, v1')
        A('s_mov_b64 exec, 3')
        A(f'buffer_store_dwordx4 v[8:11], v4, s[8:11], s30 offen offset:{1024 + 512}')
        A(f'buffer_store_dwordx4 v[12:15], v4, s[8:11], s30 offen offset:{1024 + 528}')
        A('s_mov_b64 exec, -1')
        A(f's_branch {le}')
        A.label(lv)
        A('v_bfe_u32 v4, v1, 4, 1')
        A(f'v_mul_u32_u24 v4, {VBS}, v4')
        A('v_bfe_u32 v5, v1, 2, 1')
        A('v_lshl_add_u32 v4, v5, 8, v4')
        A('v_and_b32 v5, 3, v1')
        A('v_lshl_add_u32 v4, v5, 1, v4')
        A('v_bfe_u32 v5, v1, 3, 1')
        A('v_lshl_add_u32 v4, v5, 3, v4')
        A('v_lshrrev_b32 v5, 5, v1')
        A('v_lshl_add_u32 v4, v5, 6, v4')
        for r in range(8):
            d = (r % 4) + 8 * (r // 4)
            op = 'buffer_store_short' if r % 2 == 0 else 'buffer_store_short_d16_hi'
            A(f'{op} {v(KP + r // 2)}, v4, s[8:11], s30 offen offset:{1024 + d * 16}')
        A.label(le)
    else:
        for m in range(4):
            A(f'v_cvt_pk_bf16_f32 {v(P + m)}, {v(ACCB + 2 * m)}, {v(ACCB + 2 * m + 1)}')
        if mode == 'res':
            A(f's_add_u32 s31, s49, {outbase}')
            C.vmem(f'buffer_store_dwordx4 {v(P, 4)}, v3, s[8:11], s31 offen{WT}', 'st')
            blk_stats(C, P, T)
            A('s_lshr_b32 s31, s49, 2')
            A(f's_add_u32 s31, s31, {sxout}')
            A('v_lshlrev_b32 v4, 3, v1')
            A('s_mov_b32 exec_hi, 0')
            C.vmem(f'buffer_store_dwordx2 {v(T, 2)}, v4, s[8:11], s31 offen{WT}', 'st')
            A('s_mov_b64 exec, -1')
            if after_store:
                after_store()
        else:
            A('v_and_b32 v4, 31, v1')
            A('v_lshlrev_b32 v4, 10, v4')
            A('v_lshrrev_b32 v5, 5, v1')
            A('v_lshl_add_u32 v4, v5, 4, v4')
            A('s_add_u32 s30, s27, s29')
            A('s_lshl_b32 s30, s30, 15')
            A('s_lshl_b32 s31, s28, 6')
            A('s_add_u32 s30, s30, s31')
            A('s_lshl_b32 s31, s26, 5')
            A('s_add_u32 s30, s30, s31')
            A(f'v_permlane32_swap_b32 {v(P)}, {v(P + 2)}')
            A(f'v_permlane32_swap_b32 {v(P + 1)}, {v(P + 3)}')
            C.vmem(f'buffer_store_dwordx4 {v(P, 4)}, v4, s[12:15], s30 offen', 'st')


def qkv_wstep(C, st, n=1):
    A = C.A
    if st == 0:
        g3_waddr(C, (5, 6), 32, WQKVP)
    per = -(-8 // n)
    for i in range(st * per, min(8, (st + 1) * per)):
        g3_wload(C, (5, 6), i, 128)
    if st == n:
        A('s_lshl_b32 s30, s20, 12')
        A(f's_add_u32 s30, s30, {WQKVP + 16 * 32 * KB}')
        A('s_cmp_lt_u32 s24, 2')
        A('s_cselect_b64 exec, -1, 0')
        for k in range(4):
            C.vmem(f'buffer_load_dwordx4 {v(KVW + 4 * k, 4)}, v3, s[8:11], s30 offen offset:{k * 1024}', 'w')
        A('s_mov_b64 exec, -1')


def qkv_wloads(C):
    qkv_wstep(C, 0)
    qkv_wstep(C, 1)


def att_phase(C, kvf, stubs, fixed={}, pf0=None):
    A = C.A
    tg = C.tag
    Q, CN, S0, S1, O, P, KF, VF, VK, VV, T = 4, 8, 24, 40, 56, 72, 80, 88, 104, 105, 106
    S = [S0, S1]
    A('s_and_b32 s30, s22, 3')
    A('s_lshl_b32 s31, s21, 2')
    A('s_add_u32 s30, s30, s31')
    A('s_lshl_b32 s30, s30, 5')
    A('s_lshr_b32 s31, s22, 2')
    A('s_lshl_b32 s31, s31, 3')
    A('s_add_u32 s30, s30, s31')
    A('s_add_u32 s30, s30, s20')
    A('s_lshl_b32 s30, s30, 10')
    A(f's_add_u32 s31, s30, {QF}')
    A(f's_add_u32 s36, s30, {OF}')
    A('s_lshl_b32 s37, s20, 10')
    A(f's_add_u32 s38, s37, {kvf}')

    def kvdma(r):
        A(f's_add_u32 m0, s37, {r * 8192}')
        A(f's_add_u32 s30, s38, {r * 8192}')
        C.vmem('buffer_load_dwordx4 v3, s[8:11], s30 offen lds', f'kv{r}')
    kvdma(0)
    C.vmem(f'buffer_load_dwordx4 {v(Q, 4)}, v3, s[8:11], s31 offen', 'q')
    for r in range(1, 5):
        kvdma(r)
    A(f'v_mov_b32 {v(VK)}, v3')
    A(f'v_and_b32 {v(T)}, 15, v1')
    A(f'v_lshrrev_b32 {v(T + 1)}, 5, v1')
    A(f'v_lshl_add_u32 {v(T)}, {v(T + 1)}, 4, {v(T)}')
    A(f'v_lshlrev_b32 {v(T)}, 4, {v(T)}')
    A(f'v_and_b32 {v(T + 1)}, 31, v1')
    A(f'v_cmp_eq_u32 vcc, 16, {v(T + 1)}')
    A(f'v_mov_b32 {v(T + 2)}, 512')
    A('s_nop 0')
    A(f'v_cndmask_b32 {v(T)}, {v(T)}, {v(T + 2)}, vcc')
    A(f'v_cmp_lt_u32 vcc, 16, {v(T + 1)}')
    A(f'v_mov_b32 {v(T + 2)}, 528')
    A('s_nop 0')
    A(f'v_cndmask_b32 {v(T)}, {v(T)}, {v(T + 2)}, vcc')
    A(f'v_add_u32 {v(VV)}, 1024, {v(T)}')
    for r in range(16):
        A(f'v_mov_b32 {v(O + r)}, 0')
    for m in range(4, 8):
        A(f'v_mov_b32 {v(P + m)}, 0')
    for m in range(4):
        A(f'v_mov_b32 {v(VF + 12 + m)}, 0')
    C.stamp()
    C.wait('kv2')
    A('s_barrier')
    C.stamp()

    def rdK(buf, t):
        A(f'ds_read_b128 {v(KF + buf * 4, 4)}, {v(VK)} offset:{t * KVT}')

    def rdV(buf, t):
        A(f'ds_read_b128 {v(VF + buf * 8, 4)}, {v(VV)} offset:{t * KVT}')
        A(f'ds_read_b128 {v(VF + buf * 8 + 4, 4)}, {v(VV)} offset:{t * KVT + VBS}')

    rdK(0, 0)
    rdK(1, 1)
    rdV(0, 0)
    A('s_waitcnt lgkmcnt(3)')
    A(f'v_mfma_f32_32x32x16_bf16 {v(S0, 16)}, {v(KF, 4)}, {v(Q, 4)}, 0')
    for r in range(5, 11):
        kvdma(r)
    A(f'v_max3_f32 {v(T)}, {v(S0)}, {v(S0 + 1)}, {v(S0 + 2)}')
    for r in range(3, 15, 2):
        A(f'v_max3_f32 {v(T)}, {v(T)}, {v(S0 + r)}, {v(S0 + r + 1)}')
    A(f'v_max_f32 {v(T)}, {v(T)}, {v(S0 + 15)}')
    A(f'v_mov_b32 {v(T + 1)}, {v(T)}')
    A('s_nop 1')
    A(f'v_permlane32_swap_b32 {v(T)}, {v(T + 1)}')
    A(f'v_max_f32 {v(T)}, {v(T)}, {v(T + 1)}')
    for r in range(16):
        A(f'v_sub_f32 {v(CN + r)}, 0, {v(T)}')
    for r in range(16):
        A(f'v_sub_f32 {v(S0 + r)}, {v(S0 + r)}, {v(T)}')
    A('s_setprio 3')
    C.stamp()
    UN = ATT_UN
    NIT = 64 // UN
    queue = list(stubs)
    first_pf = 8 // UN
    pf0 = pf0 or first_pf
    per = -(-len(queue) // (NIT - pf0 - ATT_PFEND))
    prio = {int(NIT * 0.5): 2, int(NIT * 0.78): 1, NIT - 1: 0}
    for it in range(NIT):
        if it == (1 if UN == 4 else 0):
            for r in range(11, 17):
                kvdma(r)
        if it == first_pf:
            C.wait('kv16')
            A('s_barrier')
        if it in prio:
            A(f's_setprio {prio[it]}')
        if it in fixed:
            if FINE == 2:
                C.stamp()
            fixed[it]()
            if FINE == 2:
                C.stamp()
        if it >= pf0:
            for _ in range(per):
                if queue:
                    queue.pop(0)()
        A(f's_call_b64 s[34:35], {tg}_body')
    assert not queue
    A(f'v_mfma_f32_32x32x16_bf16 {v(O, 16)}, {v(VF + 8 + 4, 4)}, {v(P + 4, 4)}, {v(O, 16)}')
    A('s_mov_b32 s39, 0')
    C.stamp()
    A('s_waitcnt lgkmcnt(0)')
    A('s_nop 10')
    A.label(f'{tg}_fin')
    A(f'v_mov_b32 {v(T)}, {v(O + 8)}')
    A(f'v_mov_b32 {v(T + 1)}, {v(O + 8)}')
    A(f'v_mul_f32 {v(T + 2)}, 0, {v(O)}')
    A(f'v_fma_f32 {v(T + 2)}, {v(O + 1)}, 0, {v(T + 2)}')
    A(f'v_permlane32_swap_b32 {v(T)}, {v(T + 1)}')
    for r in range(2, 8):
        A(f'v_fma_f32 {v(T + 2)}, {v(O + r)}, 0, {v(T + 2)}')
    A(f'v_add_f32 {v(T + 2)}, {v(T + 2)}, {v(T)}')
    A(f'v_mov_b32 {v(T + 3)}, {f32(2.0 ** 30)}')
    A(f'v_cmp_nle_f32 vcc, {v(T + 2)}, {v(T + 3)}')
    A(f'v_rcp_f32 {v(T)}, {v(T)}')
    A('s_cmp_eq_u32 s39, 99')
    A(f's_cbranch_scc1 {tg}_store')
    A(f's_cbranch_vccnz {tg}_slow')
    A.label(f'{tg}_store')
    for r in range(8):
        A(f'v_mul_f32 {v(O + r)}, {v(T)}, {v(O + r)}')
    for m in range(4):
        A(f'v_cvt_pk_bf16_f32 {v(P + m)}, {v(O + 2 * m)}, {v(O + 2 * m + 1)}')
    C.vmem(f'buffer_store_dwordx4 {v(P, 4)}, v3, s[8:11], s36 offen{WT}', 'st')

    def tail():
        A.raw('.p2align 6')
        A.label(f'{tg}_body')
        for t in range(UN):
            cur, nxt = t & 1, (t + 1) & 1
            Sc, Sn = S[cur], S[nxt]
            A('s_waitcnt lgkmcnt(2)')
            A(f'v_mfma_f32_32x32x16_bf16 {v(Sn, 16)}, {v(KF + nxt * 4, 4)}, {v(Q, 4)}, {v(CN, 16)}')
            rdK(cur, t + 2)
            for r in range(6):
                A(f'v_exp_f32 {v(Sc + r)}, {v(Sc + r)}')
            A(f'v_mfma_f32_32x32x16_bf16 {v(O, 16)}, {v(VF + nxt * 8 + 4, 4)}, {v(P + 4, 4)}, {v(O, 16)}')
            for r in range(6, 8):
                A(f'v_exp_f32 {v(Sc + r)}, {v(Sc + r)}')
            for m in range(4):
                A(f'v_cvt_pk_bf16_f32 {v(P + m)}, {v(Sc + 2 * m)}, {v(Sc + 2 * m + 1)}')
            A(f'v_exp_f32 {v(Sc + 8)}, {v(Sc + 8)}')
            A(f'v_exp_f32 {v(Sc + 9)}, {v(Sc + 9)}')
            A('s_waitcnt lgkmcnt(1)')
            A(f'v_mfma_f32_32x32x16_bf16 {v(O, 16)}, {v(VF + cur * 8, 4)}, {v(P, 4)}, {v(O, 16)}')
            rdV(nxt, t + 1)
            for r in range(10, 16):
                A(f'v_exp_f32 {v(Sc + r)}, {v(Sc + r)}')
            for m in range(4, 8):
                A(f'v_cvt_pk_bf16_f32 {v(P + m)}, {v(Sc + 2 * m)}, {v(Sc + 2 * m + 1)}')
        A(f'v_add_u32 {v(VK)}, {UN * KVT}, {v(VK)}')
        A(f'v_add_u32 {v(VV)}, {UN * KVT}, {v(VV)}')
        A('s_setpc_b64 s[34:35]')
        A.label(f'{tg}_slow')
        A(f'v_subrev_u32 {v(VK)}, {64 * KVT}, {v(VK)}')
        A(f'v_subrev_u32 {v(VV)}, {64 * KVT}, {v(VV)}')
        for r in range(16):
            A(f'v_mov_b32 {v(O + r)}, 0')
        M = T + 4
        A(f'v_sub_f32 {v(M)}, 0, {v(CN)}')
        A.label(f'{tg}_sloop')
        rdK(0, 0)
        rdV(0, 0)
        A('s_waitcnt lgkmcnt(0)')
        A(f'v_mfma_f32_32x32x16_bf16 {v(S0, 16)}, {v(KF, 4)}, {v(Q, 4)}, 0')
        A('s_nop 11')
        A(f'v_max3_f32 {v(T)}, {v(S0)}, {v(S0 + 1)}, {v(S0 + 2)}')
        for r in range(3, 15, 2):
            A(f'v_max3_f32 {v(T)}, {v(T)}, {v(S0 + r)}, {v(S0 + r + 1)}')
        A(f'v_max3_f32 {v(T)}, {v(T)}, {v(S0 + 15)}, {v(M)}')
        A(f'v_mov_b32 {v(T + 1)}, {v(T)}')
        A('s_nop 1')
        A(f'v_permlane32_swap_b32 {v(T)}, {v(T + 1)}')
        A(f'v_max_f32 {v(T)}, {v(T)}, {v(T + 1)}')
        A(f'v_sub_f32 {v(T + 1)}, {v(M)}, {v(T)}')
        A(f'v_exp_f32 {v(T + 1)}, {v(T + 1)}')
        A(f'v_mov_b32 {v(M)}, {v(T)}')
        for r in range(16):
            A(f'v_sub_f32 {v(S0 + r)}, {v(S0 + r)}, {v(T)}')
        for r in range(16):
            A(f'v_exp_f32 {v(S0 + r)}, {v(S0 + r)}')
        for r in range(16):
            A(f'v_mul_f32 {v(O + r)}, {v(T + 1)}, {v(O + r)}')
        for m in range(8):
            A(f'v_cvt_pk_bf16_f32 {v(P + m)}, {v(S0 + 2 * m)}, {v(S0 + 2 * m + 1)}')
        A('s_nop 1')
        A(f'v_mfma_f32_32x32x16_bf16 {v(O, 16)}, {v(VF, 4)}, {v(P, 4)}, {v(O, 16)}')
        A(f'v_mfma_f32_32x32x16_bf16 {v(O, 16)}, {v(VF + 4, 4)}, {v(P + 4, 4)}, {v(O, 16)}')
        A(f'v_add_u32 {v(VK)}, {KVT}, {v(VK)}')
        A(f'v_add_u32 {v(VV)}, {KVT}, {v(VV)}')
        A('s_nop 11')
        A('s_add_u32 s39, s39, 1')
        A('s_cmp_lt_u32 s39, 64')
        A(f's_cbranch_scc1 {tg}_sloop')
        A('s_mov_b32 s39, 99')
        A(f's_branch {tg}_fin')
    return tail


V_WGU = 112


def gu_waddr(C):
    A = C.A
    A('s_mul_i32 s30, s22, 7')
    A('s_min_u32 s31, s20, 6')
    A('s_add_u32 s40, s30, s31')
    A('s_lshl_b32 s30, s40, 15')
    A(f's_add_u32 s30, s30, {WGUP}')
    A(f'v_add_u32 {v(V_WGU)}, s30, v3')


def gu_wload(C, ks):
    so, im = soff(ks)
    C.vmem(f'buffer_load_dwordx4 {v(128 + 4 * ks, 4)}, {v(V_WGU)}, s[8:11], {so} offen offset:{im}', 'wg')


def gu_pre(C):
    A = C.A
    CS = 112
    A('v_mov_b32 v15, v113')
    A('v_mov_b32 v9, v114')
    A(f'v_mov_b32 v14, {v(V_WGU)}')
    A('s_lshl_b32 s30, s21, 2')
    A('s_add_u32 s30, s30, s25')
    A('s_lshl_b32 s30, s30, 15')
    A('s_lshl_b32 s31, s26, 11')
    A('s_add_u32 s30, s30, s31')
    A(f's_add_u32 s30, s30, {XB}')
    A('v_add_u32 v13, s30, v3')
    A('s_lshl_b32 s48, s25, 15')
    A('s_add_u32 s48, s48, s31')
    A('v_add_u32 v7, 0x10000, v3')
    A('v_lshrrev_b32 v11, 5, v1')
    A('v_lshlrev_b32 v11, 4, v11')
    A('s_min_u32 s30, s20, 6')
    A('s_lshl_b32 s30, s30, 7')
    A(f's_add_u32 s30, s30, {130 * KB}')
    A('v_add_u32 v10, s30, v11')
    A('v_and_b32 v12, 31, v1')
    A('v_lshlrev_b32 v12, 3, v12')
    A('v_lshl_add_u32 v12, v11, 8, v12')
    A('s_lshl_b32 s30, s21, 15')
    A(f's_add_u32 s30, s30, {SXB}')
    A('v_add_u32 v12, s30, v12')
    A('v_lshlrev_b32 v8, 3, v1')
    A(f'v_add_u32 v8, {128 * KB}, v8')


def gu_main(C, after_store=None):
    A = C.A
    ACC, XF, CS = 16, 80, 112

    def dma(c):
        A(f's_add_u32 m0, s48, {c * 4096}')
        so = '0' if c == 0 else s(40 + c)
        A('s_nop 0')
        for k in range(2):
            C.vmem(f'buffer_load_dwordx4 v13, s[8:11], {so} offen offset:{k * 1024} lds', f'x{c}')
    dma(0)
    dma(1)

    def rd(ks):
        buf = ks & 1
        for i in range(4):
            base = 'v3' if i < 2 else 'v7'
            A(f'ds_read_b128 {v(XF + buf * 16 + i * 4, 4)}, {base} offset:{(i & 1) * 32768 + ks * 1024}')

    def stats_load(i):
        for e in range(16):
            C.vmem(f'buffer_load_dwordx2 {v(ACC + (i & 1) * 32 + 2 * e, 2)}, v12, s[8:11], {"0" if i == 0 else s(40 + 2 * i)} offen offset:{e * 256}', f's{i}')

    def stats_sum(i):
        b = ACC + (i & 1) * 32
        C.wait(f's{i}')
        for stp in (16, 8, 4, 2):
            for e in range(stp):
                A(f'v_add_f32 {v(b + e)}, {v(b + e)}, {v(b + e + stp)}')
        A(f'v_mov_b32 {v(b + 2)}, {v(b)}')
        A(f'v_mov_b32 {v(b + 3)}, {v(b + 1)}')
        A('s_nop 1')
        A(f'v_permlane32_swap_b32 {v(b)}, {v(b + 2)}')
        A(f'v_permlane32_swap_b32 {v(b + 1)}, {v(b + 3)}')
        A(f'v_add_f32 {v(b)}, {v(b)}, {v(b + 2)}')
        A(f'v_add_f32 {v(b + 1)}, {v(b + 1)}, {v(b + 3)}')
        A(f'v_mul_f32 {v(b)}, {f32(-1.0 / 512)}, {v(b)}')
        A(f'v_mul_f32 {v(b + 1)}, {f32(1.0 / 512)}, {v(b + 1)}')
        A(f'v_fma_f32 {v(b + 1)}, -{v(b)}, {v(b)}, {v(b + 1)}')
        A(f'v_max_f32 {v(b + 1)}, 0, {v(b + 1)}')
        A(f'v_add_f32 {v(b + 1)}, {f32(1e-5)}, {v(b + 1)}')
        A(f'v_rcp_f32 {v(b + 1)}, {v(b + 1)}')
        A('s_nop 0')
        A(f'ds_write_b64 v8, {v(b, 2)} offset:{i * 512}')
        A('s_waitcnt lgkmcnt(0)')

    def loop(idle):
        C.wait('x0')
        A('s_barrier')
        C.stamp()
        if not idle:
            rd(0)
        for ks in range(32):
            if ks + 1 < 32:
                if (ks + 1) % 4 == 0:
                    C.wait(f'x{(ks + 1) // 4}')
                    A('s_barrier')
                if not idle:
                    rd(ks + 1)
                    if ks == 28:
                        for g in range(4):
                            A(f'ds_read_b128 {v(CS + g * 4, 4)}, v10 offset:{g * 32}')
                        A('s_waitcnt lgkmcnt(8)')
                    elif ks == 30:
                        for i in range(4):
                            A(f'ds_read_b64 {v(4 + 2 * i, 2)}, v8 offset:{i * 512}' if i < 2 else f'ds_read_b64 {v(10 + 2 * (i - 2), 2)}, v8 offset:{i * 512}')
                        A('s_waitcnt lgkmcnt(8)')
                    else:
                        A('s_waitcnt lgkmcnt(4)')
            elif not idle:
                A('s_waitcnt lgkmcnt(0)')
            buf = ks & 1
            if ks == 24 and not idle:
                C.wait('wg')
            todo = []
            if ks == 10:
                C.flagb = True
                flag_b(C)
            if ks < 6:
                todo.append(lambda: dma(ks + 2))
            if 6 <= ks < 10 and not idle:
                for k2 in (24 + 2 * (ks - 6), 25 + 2 * (ks - 6)):
                    so, im = soff(k2)
                    todo.append(lambda k2=k2, so=so, im=im: C.vmem(f'buffer_load_dwordx4 {v(128 + 4 * k2, 4)}, v14, s[8:11], {so} offen offset:{im}', 'wg'))
            if ks >= 10:
                for st in [st for st in range(28) if st < ks and st not in wdone][:2]:
                    todo.append(lambda st=st: g3_wload(C, (15, 9), st, 128))
                    wdone.add(st)
            for i in range(4):
                if not idle:
                    c = '0' if ks == 0 else v(ACC + i * 16, 16)
                    A(f'v_mfma_f32_32x32x16_bf16 {v(ACC + i * 16, 16)}, {v(128 + 4 * ks, 4)}, {v(XF + buf * 16 + i * 4, 4)}, {c}')
                if i % 2 == 0 and todo:
                    todo.pop(0)()
            if idle:
                if ks == 6:
                    stats_load(0)
                    stats_load(1)
                if ks == 8:
                    stats_sum(0)
                    stats_load(2)
                    stats_sum(1)
                    stats_load(3)
                if ks == 12:
                    stats_sum(2)
                    stats_sum(3)
                    A(f's_mul_i32 s30, s22, {7 * 128}')
                    A(f's_add_u32 s30, s30, {CSP}')
                    for kp in range(8):
                        C.vmem(f'buffer_load_dwordx4 {v(ACC + 4 * kp, 4)}, v3, s[8:11], s30 offen', 'cp')
                        if kp < 7:
                            A(f's_add_u32 s30, s30, {3584 * 4}')
                if ks == 16:
                    C.wait('cp')
                    for stp in (16, 8, 4):
                        for e in range(stp):
                            A(f'v_add_f32 {v(ACC + e)}, {v(ACC + e)}, {v(ACC + e + stp)}')
                    A(f'v_add_u32 v10, {130 * KB}, v3')
                    A(f'ds_write_b128 v10, {v(ACC, 4)}')
                    A('s_waitcnt lgkmcnt(0)')
        assert len(wdone) == 28
        C.stamp()
        if idle:
            if after_store:
                after_store()
            return
        P = XF
        A(f's_mul_i32 s30, s21, {4 * 112}')
        A('s_add_u32 s30, s30, s40')
        A('s_lshl_b32 s30, s30, 10')
        A(f's_add_u32 s30, s30, {HF}')
        A('s_nop 4')
        for i in range(4):
            acc = ACC + i * 16
            st = v(4 + 2 * i, 2) if i < 2 else v(10 + 2 * (i - 2), 2)
            for r in range(0, 16, 2):
                A(f'v_pk_fma_f32 {v(acc + r, 2)}, {st}, {v(CS + r, 2)}, {v(acc + r, 2)} op_sel_hi:[0,1,1]')
            for r in range(0, 8, 2):
                A(f'v_pk_mul_f32 {v(acc + r, 2)}, {v(acc + r, 2)}, {v(acc + 8 + r, 2)}')
            for r in range(0, 8, 2):
                A(f'v_pk_mul_f32 {v(acc + r, 2)}, {v(acc + r, 2)}, {st} op_sel:[0,1] op_sel_hi:[1,1]')
            pp = P + i * 4
            for m in range(4):
                A(f'v_cvt_pk_bf16_f32 {v(pp + m)}, {v(acc + 2 * m)}, {v(acc + 2 * m + 1)}')
            C.vmem(f'buffer_store_dwordx4 {v(pp, 4)}, v3, s[8:11], s30 offen{WT}', 'st')
            if i < 3:
                A(f's_add_u32 s30, s30, {112 * KB}')
        if after_store:
            after_store()

    ls, le = C.lab('gs'), C.lab('ge')
    A('s_cmp_eq_u32 s20, 7')
    A(f's_cbranch_scc1 {ls}')
    save, ns = list(C.vm), C.nstamp
    wdone = set()
    loop(False)
    A(f's_branch {le}')
    A.label(ls)
    C.vm, C.nstamp = list(save), ns
    wdone = set()
    loop(True)
    A.label(le)
    C.vm = ['st']


def swap_add(A, ra, rb):
    A(f'v_permlane32_swap_b32 {v(ra)}, {v(rb)}')
    A(f'v_add_f32 {v(ra)}, {v(ra)}, {v(rb)}')


def gen_pre(A):
    name = 'pre_kernel'
    C = Ctx(A, 'pr')
    kernel_begin(A, name)
    A('s_cmp_ge_u32 s2, 256')
    A('s_cbranch_scc1 pr_end')
    A('s_load_dwordx2 s[12:13], s[0:1], 0')
    A('s_load_dwordx2 s[16:17], s[0:1], 8')
    A('s_load_dwordx2 s[52:53], s[0:1], 16')
    A('s_load_dwordx2 s[56:57], s[0:1], 24')
    for d, sz in ((12, 2048 * 1024), (16, 512 * 1024), (52, 512 * 32), (56, 512 * 32)):
        A(f's_mov_b32 {s(d + 2)}, {sz}')
        A(f's_mov_b32 {s(d + 3)}, 0x20000')
    setup(C, False, 'pr_end')
    C.stamp()
    PK, KST = 192, 224
    A('s_lshl_b32 s48, s20, 14')
    A('v_lshrrev_b32 v4, 3, v1')
    A('v_and_b32 v5, 7, v1')
    A('v_lshrrev_b32 v6, 4, v1')
    A('v_xor_b32 v6, v6, v5')
    A('v_lshlrev_b32 v7, 10, v4')
    A('v_lshl_add_u32 v8, v6, 4, v7')
    A('v_xor_b32 v9, 64, v8')
    A('v_lshl_add_u32 v10, v5, 4, v7')
    A('s_lshl_b32 s30, s27, 15')
    A('s_lshl_b32 s31, s20, 7')
    A('s_add_u32 s30, s30, s31')
    A('s_lshl_b32 s31, s20, 16')
    A('s_lshl_b32 s32, s24, 7')
    A('s_add_u32 s31, s31, s32')
    for i in range(8):
        A(f's_add_u32 m0, s48, {i * 1024}')
        A('s_nop 0')
        C.vmem(f'buffer_load_dwordx4 {v(8 + (i & 1))}, s[12:15], s30 offen lds', 'x')
        A('s_add_u32 s30, s30, 8192')
    for i in range(8):
        A(f's_add_u32 m0, s48, {8192 + i * 1024}')
        A('s_nop 0')
        C.vmem('buffer_load_dwordx4 v10, s[16:19], s31 offen lds', 'wq')
        A('s_add_u32 s31, s31, 8192')
    A('s_lshl_b32 s30, s20, 11')
    A('s_cmp_lt_u32 s24, 2')
    A('s_cselect_b64 exec, -1, 0')
    for k in range(4):
        C.vmem(f'buffer_load_dwordx4 {v(KST + 4 * k, 4)}, v3, {"s[52:55]" if k < 2 else "s[56:59]"}, s30 offen offset:{(k & 1) * 1024}', 'kv')
    A('s_mov_b64 exec, -1')
    C.stamp()
    A('v_and_b32 v112, 31, v1')
    A('v_lshrrev_b32 v113, 5, v1')
    A('v_lshlrev_b32 v114, 7, v112')
    A('v_lshl_add_u32 v114, v113, 3, v114')
    A('v_bfe_u32 v115, v1, 1, 3')
    A('v_lshl_add_u32 v114, v115, 4, v114')
    A('s_lshl_b32 s30, s29, 12')
    A('s_add_u32 s30, s30, s48')
    A('v_add_u32 v115, s30, v114')
    A('v_xor_b32 v114, 4096, v115')
    A('v_bfe_u32 v116, v1, 2, 2')
    A('v_lshl_add_u32 v116, v113, 2, v116')
    A('v_and_b32 v117, 3, v1')
    A('v_lshlrev_b32 v117, 3, v117')
    A('v_bfe_u32 v118, v1, 4, 1')
    A('v_lshl_add_u32 v119, v116, 7, v117')
    A('v_lshl_add_u32 v119, v118, 5, v119')
    A('s_lshl_b32 s30, s26, 5')
    A('s_and_b32 s31, s28, 1')
    A('s_lshl_b32 s31, s31, 6')
    A('s_add_u32 s30, s30, s31')
    A('v_xor_b32 v120, s30, v119')
    A('s_add_u32 s30, s48, 8192')
    A('v_add_u32 v120, s30, v120')
    A('v_xor_b32 v121, 64, v120')
    A('v_lshl_add_u32 v122, v116, 5, v117')
    A('v_lshl_add_u32 v122, v118, 11, v122')
    A('v_add_u32 v122, s48, v122')
    A('v_add_u32 v123, s48, v3')
    A('v_mov_b32 v124, 0x3f803f80')
    g3_pre(C, 'qkv', 32, XA, raw=True)
    C.wait('x')
    C.stamp()
    for hh in range(2):
        for ch in range(8):
            A(f'v_xor_b32 {v(240 + ch)}, {ch << 4}, {v(114 + hh)}')
        for ch in range(8):
            A(f'ds_read_b64 {v(80 + hh * 16 + ch * 2, 2)}, {v(240 + ch)}')
        A('s_waitcnt lgkmcnt(0)' if hh else 's_waitcnt lgkmcnt(6)')
    SA = 248
    for hh in range(2):
        for r in range(16):
            x = v(80 + hh * 16 + r)
            A(f'v_dot2_f32_bf16 {v(SA + 2 * hh)}, {x}, v124, {"0" if r == 0 else v(SA + 2 * hh)}')
            A(f'v_dot2_f32_bf16 {v(SA + 2 * hh + 1)}, {x}, {x}, {"0" if r == 0 else v(SA + 2 * hh + 1)}')
    A('s_nop 2')
    swap_add(A, SA, SA + 2)
    swap_add(A, SA + 1, SA + 3)
    A('v_lshlrev_b32 v2, 3, v1')
    A('s_xor_b32 s30, s29, 1')
    A('s_lshl_b32 s30, s30, 8')
    A('v_xor_b32 v2, s30, v2')
    A('s_lshl_b32 s30, s20, 9')
    A(f's_add_u32 s30, s30, {STAT}')
    A('v_add_u32 v2, s30, v2')
    A(f'ds_write_b64 v2, {v(SA, 2)}')
    C.wait('kv')
    C.stamp()
    for k in range(4):
        A(f'ds_write_b128 v123, {v(KST + 4 * k, 4)} offset:{k * 1024}')
    for st in range(4):
        for jj in range(2):
            for h2 in range(2):
                A(f'ds_read_b64_tr_b16 {v(128 + 4 * (2 * st + jj) + 2 * h2, 2)}, {v(120 + jj)} offset:{st * 2048 + h2 * 1024}')
        if st == 1:
            A('s_waitcnt lgkmcnt(4)')
    A('s_waitcnt lgkmcnt(4)')
    for st in range(4):
        for h2 in range(2):
            A(f'ds_read_b64_tr_b16 {v(KVW + 4 * st + 2 * h2, 2)}, v122 offset:{st * 512 + h2 * 256}')
    A('s_waitcnt lgkmcnt(8)')
    for st in range(4):
        for jj in range(2):
            for r in range(4):
                first = st == 0 and r == 0
                A(f'v_dot2_f32_bf16 {v(SA + jj)}, {v(128 + 4 * (2 * st + jj) + r)}, v124, {"0" if first else v(SA + jj)}')
    A('s_waitcnt lgkmcnt(0)')
    A('s_barrier')
    for r in range(16):
        A(f'v_dot2_f32_bf16 {v(SA + 2)}, {v(KVW + r)}, v124, {"0" if r == 0 else v(SA + 2)}')
    g3_waddr(C, (125, 126), 32, WQKVP)
    A('s_cmp_eq_u32 s27, 0')
    A('s_cselect_b64 exec, -1, 0')
    for i in range(8):
        C.vmem(f'buffer_store_dwordx4 {v(128 + 4 * i, 4)}, {v(125 + i % 2)}, s[8:11], 0 offen offset:{(i // 2) * 1024}', 'so')
    A('s_lshl_b32 s30, s20, 12')
    A(f's_add_u32 s30, s30, {WQKVP + 16 * 32 * KB}')
    A('s_add_u32 s31, s27, s24')
    A('s_cmp_eq_u32 s31, 0')
    A('s_cselect_b64 exec, -1, 0')
    for k in range(4):
        C.vmem(f'buffer_store_dwordx4 {v(KVW + 4 * k, 4)}, v3, s[8:11], s30 offen offset:{k * 1024}', 'so')
    A('s_mov_b64 exec, -1')
    swap_add(A, SA, SA + 1)
    A(f'v_mov_b32 {v(SA + 3)}, {v(SA + 2)}')
    A('v_lshlrev_b32 v2, 2, v1')
    A('s_and_b32 s30, s28, 1')
    A('s_lshl_b32 s30, s30, 7')
    A('s_lshl_b32 s31, s26, 6')
    A('s_add_u32 s30, s30, s31')
    A('v_xor_b32 v4, s30, v2')
    A('s_lshl_b32 s30, s20, 8')
    A(f's_add_u32 s30, s30, {CSX}')
    A('v_add_u32 v4, s30, v4')
    A(f'ds_write_b32 v4, {v(SA)}')
    swap_add(A, SA + 2, SA + 3)
    A('v_and_b32 v2, 0x7c, v2')
    A('s_lshl_b32 s30, s20, 7')
    A(f's_add_u32 s30, s30, {CSK}')
    A('v_add_u32 v2, s30, v2')
    A(f'ds_write_b32 v2, {v(SA + 2)}')
    g3_main(C, 'qkv', 32, 128, kvf=KVF, raw=True)
    C.stamp()
    A('s_cmp_lg_u32 s20, 4')
    A('s_cbranch_scc1 pr_nz')
    A('v_mov_b32 v2, 0')
    A('v_lshlrev_b32 v4, 2, v1')
    A('s_lshl_b32 s30, s2, 7')
    A(f's_add_u32 s30, s30, {FLG}')
    A('s_mov_b32 exec_hi, 0')
    A('buffer_store_dword v2, v4, s[8:11], s30 offen')
    A('s_mul_i32 s30, s2, 384')
    A(f's_add_u32 s30, s30, {PFL}')
    A('v_lshlrev_b32 v4, 7, v1')
    A('s_mov_b64 exec, 7')
    A('buffer_store_dword v2, v4, s[8:11], s30 offen')
    A('s_mov_b64 exec, -1')
    A.label('pr_nz')
    A.label('pr_fin')
    C.stamp()
    stamp_end(C, 1)
    A.label('pr_end')
    A('s_endpgm')
    return dict(name=name, grid=256, block=512, lds=LDS_BYTES, nv=256, na=0)


def pack_ptrs(A):
    A('s_load_dwordx2 s[12:13], s[0:1], 0')
    A('s_load_dwordx2 s[4:5], s[0:1], 32')
    A('s_load_dwordx4 s[52:55], s[0:1], 48')
    A('s_load_dwordx2 s[16:17], s[0:1], 64')
    A('s_mov_b32 s7, 0x20000')
    A(f's_mov_b32 s14, {2048 * 1024}')
    A('s_mov_b32 s15, 0x20000')


def pack_issue(C):
    A = C.A
    A('s_mul_i32 s30, s2, 3')
    A('s_add_u32 s30, s30, s20')
    A('s_mov_b32 s58, s30')
    A('s_cmp_lt_u32 s20, 3')
    A('s_cselect_b32 s57, 1, 0')
    A('s_cmp_lt_u32 s30, 736')
    A('s_cselect_b32 s57, s57, 0')
    A('s_cmp_eq_u32 s57, 0')
    A('s_cselect_b32 s30, 0, s30')
    A('s_cmp_lt_u32 s30, 64')
    A('s_cbranch_scc1 pk_jwo')
    A('s_cmp_lt_u32 s30, 512')
    A('s_cbranch_scc1 pk_jgu')
    A('s_sub_u32 s30, s30, 512')
    A('s_mov_b64 s[4:5], s[16:17]')
    A(f's_mov_b32 s6, {1792 * 1024}')
    A('s_mov_b32 s50, 1024')
    A('s_and_b32 s31, s30, 7')
    A('s_lshr_b32 s30, s30, 3')
    A('s_lshl_b32 s51, s30, 16')
    A('s_lshl_b32 s56, s31, 7')
    A('s_add_u32 s51, s51, s56')
    A(f's_mul_i32 s56, s31, {2 * 112 * KB}')
    A('s_lshl_b32 s30, s30, 12')
    A('s_add_u32 s56, s56, s30')
    A(f's_add_u32 s56, s56, {WDP}')
    A(f's_mov_b32 s52, {112 * KB}')
    A('s_mov_b32 s53, 256')
    A(f's_mov_b32 s54, {G1.CSDUMMY}')
    A('s_branch pk_jgo')
    A.label('pk_jwo')
    A(f's_mov_b32 s6, {512 * 1024}')
    A('s_mov_b32 s50, 1024')
    A('s_lshr_b32 s31, s30, 3')
    A('s_and_b32 s30, s30, 7')
    A('s_lshl_b32 s51, s30, 16')
    A('s_lshl_b32 s56, s31, 7')
    A('s_add_u32 s51, s51, s56')
    A('s_lshl_b32 s56, s31, 16')
    A('s_lshl_b32 s30, s30, 12')
    A('s_add_u32 s56, s56, s30')
    A(f's_add_u32 s56, s56, {WOP}')
    A(f's_mov_b32 s52, {32 * KB}')
    A('s_mov_b32 s53, 256')
    A(f's_mov_b32 s54, {G1.CSDUMMY}')
    A('s_branch pk_jgo')
    A.label('pk_jgu')
    A('s_sub_u32 s30, s30, 64')
    A('s_cmp_ge_u32 s30, 224')
    A('s_cselect_b32 s4, s54, s52')
    A('s_cselect_b32 s5, s55, s53')
    A('s_cselect_b32 s16, 1, 0')
    A('s_cselect_b32 s31, 224, 0')
    A('s_sub_u32 s30, s30, s31')
    A(f's_mov_b32 s6, {512 * 3584}')
    A('s_mov_b32 s50, 3584')
    A('s_lshr_b32 s31, s30, 3')
    A('s_and_b32 s30, s30, 7')
    A(f's_mul_i32 s51, s30, {64 * 3584}')
    A('s_lshl_b32 s56, s31, 7')
    A('s_add_u32 s51, s51, s56')
    A('s_lshl_b32 s56, s31, 17')
    A('s_lshl_b32 s17, s30, 12')
    A('s_add_u32 s56, s56, s17')
    A('s_lshl_b32 s17, s16, 8')
    A('s_add_u32 s56, s56, s17')
    A(f's_add_u32 s56, s56, {WGUP}')
    A(f's_mov_b32 s52, {64 * KB}')
    A(f's_mov_b32 s53, {32 * KB}')
    A(f's_mul_i32 s54, s30, {3584 * 4}')
    A('s_lshl_b32 s17, s31, 9')
    A('s_add_u32 s54, s54, s17')
    A('s_lshl_b32 s17, s16, 6')
    A('s_add_u32 s54, s54, s17')
    A(f's_add_u32 s54, s54, {CSP}')
    A.label('pk_jgo')
    A('v_lshrrev_b32 v112, 3, v1')
    A('v_and_b32 v113, 7, v1')
    A('v_mul_lo_u32 v112, v112, s50')
    A('v_lshl_add_u32 v112, v113, 4, v112')
    A('s_lshl_b32 s50, s50, 3')
    A('s_min_u32 s59, s20, 2')
    A('s_lshl_b32 s59, s59, 13')
    A(f's_add_u32 s59, s59, {136 * KB}')
    A('s_cmp_eq_u32 s57, 0')
    A('s_cbranch_scc1 pk_i_end')
    for i in range(8):
        A(f's_add_u32 m0, s59, {i * 1024}')
        A('s_nop 0')
        A('buffer_load_dwordx4 v112, s[4:7], s51 offen lds')
        A('s_add_u32 s51, s51, s50')
    A.label('pk_i_end')


def pack_convert(C):
    A = C.A
    A('s_cmp_eq_u32 s57, 0')
    A('s_cbranch_scc1 pk_c_end')
    A('v_lshrrev_b32 v112, 5, v1')
    A('v_bfe_u32 v113, v1, 2, 2')
    A('v_lshl_add_u32 v113, v112, 2, v113')
    A('v_and_b32 v114, 3, v1')
    A('v_lshlrev_b32 v114, 3, v114')
    A('v_lshl_add_u32 v113, v113, 7, v114')
    A('v_bfe_u32 v114, v1, 4, 1')
    A('v_lshl_add_u32 v113, v114, 5, v113')
    A('v_add_u32 v113, s59, v113')
    A('v_mul_lo_u32 v114, v114, s53')
    A('v_and_b32 v115, 15, v1')
    A('v_lshl_add_u32 v114, v115, 4, v114')
    A('v_lshl_add_u32 v114, v112, 9, v114')
    A('v_lshrrev_b32 v112, 4, v1')
    A('v_lshlrev_b32 v112, 7, v112')
    A('v_lshl_add_u32 v112, v115, 2, v112')
    A('v_mov_b32 v115, 0x3f803f80')
    A('s_add_u32 s52, s52, s56')
    A('s_waitcnt vmcnt(0)')
    for jj in range(2):
        for st in range(4):
            for h2 in range(2):
                A(f'ds_read_b64_tr_b16 {v(128 + 4 * (4 * jj + st) + 2 * h2, 2)}, v113 offset:{st * 2048 + h2 * 1024 + jj * 64}')
        A('s_waitcnt lgkmcnt(0)')
        for st in range(4):
            A(f'buffer_store_dwordx4 {v(128 + 4 * (4 * jj + st), 4)}, v114, s[8:11], {"s56" if jj == 0 else "s52"} offen offset:{st * 1024} sc0 sc1')
    A('s_cmp_eq_u32 s53, 256')
    A('s_cbranch_scc1 pk_c_end')
    for r in range(16):
        for jj in range(2):
            A(f'v_dot2_f32_bf16 {v(116 + jj)}, {v(128 + 16 * jj + r)}, v115, {"0" if r == 0 else v(116 + jj)}')
    A('s_nop 2')
    swap_add(A, 116, 117)
    A('buffer_store_dword v116, v112, s[8:11], s54 offen sc0 sc1')
    A.label('pk_c_end')


def pack_flag(C):
    A = C.A
    A('s_cmp_ge_u32 s20, 3')
    A('s_cbranch_scc1 pk_f_end')
    A('s_lshl_b32 s30, s58, 7')
    A(f's_add_u32 s30, s30, {PFL}')
    A('v_mov_b32 v112, 0')
    A('v_mov_b32 v113, 1')
    A('s_waitcnt vmcnt(0)')
    A('s_mov_b64 exec, 1')
    A('buffer_store_dword v113, v112, s[8:11], s30 offen sc0 sc1')
    A('s_mov_b64 exec, -1')
    A.label('pk_f_end')


def pack_poll(C, endlab):
    A = C.A
    A('s_mul_i32 s30, s22, 7')
    A('s_lshr_b32 s30, s30, 2')
    A('v_lshrrev_b32 v112, 4, v1')
    A('v_add_u32 v112, s30, v112')
    A('v_min_u32 v112, 27, v112')
    A('v_and_b32 v113, 7, v1')
    A('v_lshl_add_u32 v112, v112, 3, v113')
    A('v_bfe_u32 v114, v1, 3, 1')
    A('v_mul_u32_u24 v114, 224, v114')
    A('v_add3_u32 v112, v112, v114, 64')
    A('s_mul_i32 s30, s20, 7')
    A('s_lshr_b32 s30, s30, 1')
    A('v_min_u32 v114, 4, v113')
    A('v_add_u32 v114, s30, v114')
    A('v_min_u32 v114, 27, v114')
    A('s_add_u32 s30, s24, 512')
    A('v_lshl_add_u32 v114, v114, 3, s30')
    A('v_cmp_le_u32 vcc, 48, v1')
    A('s_lshl_b32 s30, s24, 3')
    A('s_add_u32 s30, s30, s20')
    A('v_cndmask_b32 v112, v112, v114, vcc')
    A('v_mov_b32 v114, s30')
    A('v_cmp_le_u32 vcc, 56, v1')
    A(f's_mov_b32 s30, {PFL}')
    A('s_mov_b32 s31, 0')
    A('v_cndmask_b32 v112, v112, v114, vcc')
    A('v_lshlrev_b32 v112, 7, v112')
    A.label('pk_p')
    A('buffer_load_dword v113, v112, s[8:11], s30 offen sc1')
    A('s_waitcnt vmcnt(0)')
    A('v_cmp_eq_u32 vcc, 1, v113')
    A('s_add_u32 s31, s31, 1')
    A('s_cmp_eq_u64 vcc, -1')
    A('s_cbranch_scc1 pk_pd')
    A('s_sleep 16')
    A(f's_cmp_lt_u32 s31, {1 << 19}')
    A('s_cbranch_scc1 pk_p')
    A(f's_branch {endlab}')
    A.label('pk_pd')
    C.vm = []


def gen_layer(A, layer):
    name = f'layer{layer}_kernel'
    tg = f'l{layer}'
    end = f'{tg}_end'
    C = Ctx(A, tg)
    last = layer == 1
    xin = None if layer == 0 else XC
    kvf = KVF if layer == 0 else KVF2
    sy = 4 * layer
    kernel_begin(A, name)
    if layer == 0:
        pack_ptrs(A)
    setup(C, last, end)

    def pre_addr():
        gu_waddr(C)
        g3_waddr(C, (113, 114), 112, WDP)
        g3_waddr(C, (116, 117), 32, WOP)

    stubs = [lambda: (pre_addr(), gu_wload(C, 0))]
    stubs += [lambda ks=ks: gu_wload(C, ks) for ks in range(1, 24)]
    stubs += [lambda i=i: g3_wload(C, (116, 117), i, 224) for i in range(8)]
    if TOUCH and layer == 1:
        def t_addr():
            A('s_lshr_b32 s30, s2, 3')
            A('s_lshl_b32 s30, s30, 3')
            A('s_add_u32 s30, s30, s20')
            A(f's_mul_i32 s31, s30, {7 * KB}')
            A(f's_add_u32 s31, s31, {WDP}')
            A('v_add_u32 v118, s31, v3')
            A('s_lshl_b32 s31, s30, 11')
            A(f's_add_u32 s31, s31, {WQKVP}')
            A('v_add_u32 v119, s31, v3')

        def tch(vr, k):
            so, im = soff(k)
            C.vmem(f'buffer_load_dwordx4 v[120:123], {v(vr)}, s[8:11], {so} offen offset:{im}', 'tc')
        stubs += [lambda: (t_addr(), tch(V_WGU, 24))]
        stubs += [lambda ks=ks: tch(V_WGU, ks) for ks in range(25, 32)]
        stubs += [lambda k=k: tch(118, k) for k in range(7)]
        if not last:
            stubs += [lambda k=k: tch(119, k) for k in range(2)]

    def need_wo():
        A('s_lshr_b32 s30, s20, 1')
        A('s_lshl_b32 s30, s30, 2')
        A('s_lshl_b32 s31, s23, 1')
        A('s_add_u32 s30, s30, s31')
        A('s_lshl_b32 s32, 3, s30')

    def need_gu():
        A('s_lshr_b32 s30, s25, 1')
        A('s_lshl_b32 s32, 0x5555, s30')
        A('s_cmp_eq_u32 s20, 7')
        A('s_cselect_b32 s32, 0xffff, s32')

    def need_dn():
        A('s_lshl_b32 s30, s20, 1')
        A('s_lshl_b32 s32, 3, s30')

    def need_qkv():
        A('s_lshl_b32 s30, s20, 1')
        A('s_add_u32 s30, s30, s23')
        A('s_lshl_b32 s32, 1, s30')

    if layer == 0:
        fixed = {PK_I: lambda: pack_issue(C), PK_C: lambda: pack_convert(C), PK_F: lambda: pack_flag(C), PK_P: lambda: pack_poll(C, end)}
        tail = att_phase(C, kvf, stubs, fixed, PK_P)
    else:
        tail = att_phase(C, kvf, stubs)
    C.stamp()
    g3_pre(C, 'res', 32, OF, resbase=xin)
    handoff(C, sy + 0, end, need_wo)
    C.stamp()
    g3_main(C, 'res', 32, 224, outbase=XB, sxout=SXB)
    C.stamp()
    gu_pre(C)
    handoff(C, sy + 1, end, need_gu)
    C.stamp()
    gu_main(C)
    C.stamp()
    g3_pre(C, 'res', 112, HF, resbase=XB)
    handoff(C, sy + 2, end, need_dn)
    C.stamp()
    if last:
        g3_main(C, 'out', 112, 128)
        C.stamp()
    else:
        g3_main(C, 'res', 112, 128, outbase=XC, sxout=SXC, hook_b=lambda st, n: qkv_wstep(C, st, n))
        C.stamp()
        g3_pre(C, 'qkv', 32, XC, resbase=SXC)
        handoff(C, sy + 3, end, need_qkv)
        C.stamp()
        g3_main(C, 'qkv', 32, 128, kvf=KVF2)
        C.stamp()
    stamp_end(C, 2 + layer)
    A.label(end)
    A('s_endpgm')
    tail()
    return dict(name=name, grid=256, block=512, lds=LDS_BYTES, nv=256, na=0)


def gen_zero_flags(A):
    pass


def build():
    A = Asm()
    ks = {}
    G1.STAMP = False
    ks['pre'] = gen_pre(A)
    ks['l0'] = gen_layer(A, 0)
    ks['l1'] = gen_layer(A, 1)
    order = ['pre', 'l0', 'l1']
    body = A.text()
    probs = lint(body)
    for p in probs:
        print('LINT:', p, file=sys.stderr)
    head = '; generated by gen/gen2.py\n'
    for k in order:
        d = ks[k]
        head += f"; @launch kernel={d['name']} grid=({d['grid']},1,1) block=({d['block']},1,1) lds={d['lds']}\n"
    head += '.amdgcn_target "amdgcn-amd-amdhsa--gfx950"\n.text\n'
    tail = '.section .rodata,"a"\n'
    for k, d in ks.items():
        tail += '.p2align 6\n' + descriptor(d['name'], d['nv'], d['na'], nsgpr=100)
    return head + body + tail


if __name__ == '__main__':
    if 'stamp' in sys.argv:
        STAMP = True
    for arg in sys.argv[2:]:
        if '=' in arg:
            k, val = arg.split('=')
            globals()[k] = int(val) if val.lstrip('-').isdigit() else val.replace('_', ' ')
    out = sys.argv[1] if len(sys.argv) > 1 else f'cdna_kernels/{NAME}.s'
    open(out, 'w').write(build())
    print('wrote', out)
```

```python
import sys
import math
import struct
from asmlib import Asm, v, a, s, lint
import gen as G1
from gen import f32, kernel_begin, descriptor, ws_srd, KB

NAME = G1.NAME
WQKVP, WOP, WGUP, WDP, CSQKV, CSGU = G1.WQKVP, G1.WOP, G1.WGUP, G1.WDP, G1.CSQKV, G1.CSGU
KVF, XA, XB, QF, OF, HF = G1.KVF, G1.XA, G1.XB, G1.QF, G1.OF, G1.HF
WS_SIZE, KVT, VBS, QSCALE = G1.WS_SIZE, G1.KVT, G1.VBS, G1.QSCALE
XC = G1.WS_END
KVF2 = XC + 2048 * KB
FLG = KVF2 + 144 * KB
SXA = FLG + 32 * KB
SXB = SXA + 512 * KB
SXC = SXB + 512 * KB
CSP = SXC + 512 * KB
PFL = CSP + 128 * KB
WS_END = PFL + 96 * KB
STAMPS = G1.STAMPS

STAMP = False
WT = ' sc0 sc1'
LDS_BYTES = 160 * KB
FINE = 0
QWT = ''
GU16 = 0
GU_NOW = 0
GU_WD0 = 3
GU_BARS = {4: 1, 8: 2, 12: 7, 24: 7}
PK_I = 2
PK_C = 5
PK_F = 6
PK_P = 9
RT = 0
TOUCH = 1
ATT_UN = 4
ATT_PFEND = 1
G3_PR4 = 7
G3_PR14 = 6
G2_ST8 = [2, 2, 2, 2]
G2_ST28 = [2, 2, 4, 4, 4, 4, 4, 4]
G2_PRE8 = 4
G2_PRE28 = 6


class Ctx:
    def __init__(self, A, tag):
        self.A = A
        self.tag = tag
        self.vm = []
        self.nlab = 0
        self.nstamp = 1

    def lab(self, base):
        self.nlab += 1
        return f'{self.tag}_{base}{self.nlab}'

    def vmem(self, text, tag):
        self.A(text)
        self.vm.append(tag)
        assert len(self.vm) <= 63, 'vmcnt overflow'

    def wait(self, tag, extra=''):
        idx = [i for i, t in enumerate(self.vm) if t == tag]
        if not idx:
            if extra:
                self.A(f's_waitcnt {extra}')
            return
        n = len(self.vm) - 1 - idx[-1]
        self.A(f's_waitcnt vmcnt({n}) {extra}'.strip())
        self.vm = self.vm[idx[-1] + 1:]

    def stamp(self):
        if STAMP:
            i = self.nstamp
            self.nstamp += 1
            if i >= 28:
                return
            A = self.A
            A('s_waitcnt lgkmcnt(0)')
            A('s_memrealtime s[60:61]' if RT else 's_memtime s[60:61]')
            A('s_waitcnt lgkmcnt(0)')
            A(f's_mov_b32 {s(64 + i)}, s60')


def stamp_begin(C):
    if STAMP:
        A = C.A
        A('s_memrealtime s[62:63]')
        A('s_memtime s[60:61]')
        for i in range(1, 30):
            A(f's_mov_b32 {s(64 + i)}, 0')
        A('s_waitcnt lgkmcnt(0)')
        A('s_mov_b32 s64, s62' if RT else 's_mov_b32 s64, s60')
        A('s_mov_b32 s95, s62')


def stamp_end(C, kidx):
    if STAMP:
        A = C.A
        A('s_waitcnt vmcnt(0) lgkmcnt(0)')
        A('s_memtime s[60:61]')
        A('s_memrealtime s[62:63]')
        A('s_waitcnt lgkmcnt(0)')
        A('s_mov_b32 s93, s62' if RT else 's_mov_b32 s93, s60')
        A('s_mov_b32 s94, s62')
        A('s_mov_b64 exec, 1')
        A('s_lshl_b32 s60, s2, 10')
        A('s_lshl_b32 s61, s20, 7')
        A('s_add_u32 s60, s60, s61')
        A(f's_add_u32 s60, s60, {STAMPS + kidx * (1 << 20)}')
        A('v_mov_b32 v0, 0')
        for i in range(32):
            A(f'v_mov_b32 v1, {s(64 + i)}')
            A(f'buffer_store_dword v1, v0, s[8:11], s60 offen offset:{i * 4}')
        A('s_waitcnt vmcnt(0)')


def setup(C, need_out, endlab):
    A = C.A
    A('s_cmp_ge_u32 s2, 256')
    A(f's_cbranch_scc1 {endlab}')
    stamp_begin(C)
    ws_srd(A, 8)
    if need_out:
        A('s_load_dwordx2 s[12:13], s[0:1], 72')
        A(f's_mov_b32 s14, {2048 * 512 * 2}')
        A('s_mov_b32 s15, 0x20000')
    A('v_and_b32 v1, 63, v0')
    A('v_lshrrev_b32 v2, 6, v0')
    A('v_lshlrev_b32 v3, 4, v1')
    A('v_readfirstlane_b32 s20, v2')
    A('s_and_b32 s21, s2, 7')
    A('s_lshl_b32 s21, s21, 1')
    A('s_bfe_u32 s22, s2, 0x10003')
    A('s_add_u32 s21, s21, s22')
    A('s_lshr_b32 s22, s2, 4')
    A('s_and_b32 s23, s22, 1')
    A('s_lshr_b32 s24, s22, 1')
    A('s_and_b32 s25, s20, 3')
    A('s_lshr_b32 s26, s20, 2')
    A('s_lshl_b32 s27, s21, 2')
    A('s_lshl_b32 s30, s23, 1')
    A('s_add_u32 s27, s27, s30')
    A('s_lshl_b32 s28, s24, 1')
    A('s_bfe_u32 s30, s20, 0x10001')
    A('s_add_u32 s28, s28, s30')
    A('s_and_b32 s29, s20, 1')
    A('s_add_u32 s30, s27, s29')
    A('s_lshl_b32 s49, s30, 15')
    A('s_lshl_b32 s31, s28, 11')
    A('s_add_u32 s49, s49, s31')
    A('s_lshl_b32 s31, s26, 10')
    A('s_add_u32 s49, s49, s31')
    for g in range(1, 8):
        A(f's_mov_b32 {s(40 + g)}, {g * 4096}')
    A('s_waitcnt lgkmcnt(0)')


def soff(i):
    return ('0' if i // 4 == 0 else s(40 + i // 4)), (i % 4) * 1024


def handoff(C, sync, endlab, need):
    A = C.A
    l1, l2, ld = C.lab('pa'), C.lab('pb'), C.lab('pd')
    need()
    A('s_mov_b32 s33, 0')
    A('v_lshlrev_b32 v0, 2, v1')
    A('s_lshl_b32 s30, s21, 8')
    A(f's_add_u32 s30, s30, {FLG + sync * 4096}')
    A('s_lshl_b32 s34, s22, 2')
    A('s_add_u32 s34, s34, s30')
    A('v_mov_b32 v4, 1')
    C.wait('st', 'lgkmcnt(0)')
    if FINE and sync >= 4:
        C.stamp()
    A('s_cmp_lg_u32 s20, 0')
    A('s_barrier')
    l, lb, lb2 = C.lab('sig'), C.lab('sb'), C.lab('sc')
    A(f's_cbranch_scc1 {l}')
    A('s_mov_b64 exec, 1')
    A('buffer_store_dword v4, v0, s[8:11], s34 offen')
    A.label(l)
    if FINE and sync >= 4:
        C.stamp()
    A('s_mov_b32 s31, 0')
    A('s_mov_b64 exec, s[32:33]')
    A.label(l1)
    A('buffer_load_dword v2, v0, s[8:11], s30 offen sc1')
    A('s_add_u32 s31, s31, 1')
    A('s_waitcnt vmcnt(0)')
    A('v_cmp_ne_u32 vcc, 0, v2')
    A('s_cmp_eq_u64 vcc, s[32:33]')
    A(f's_cbranch_scc1 {ld}')
    A('s_cmp_lt_u32 s31, 64')
    A(f's_cbranch_scc1 {l1}')
    A('s_cmp_lg_u32 s20, 0')
    A(f's_cbranch_scc1 {l2}')
    A('s_mov_b64 exec, 1')
    A('buffer_store_dword v4, v0, s[8:11], s34 offen offset:128 sc0 sc1')
    A('s_mov_b64 exec, s[32:33]')
    A.label(l2)
    A('buffer_load_dword v2, v0, s[8:11], s30 offen sc1')
    A('s_waitcnt vmcnt(0)')
    A('v_cmp_ne_u32 s[36:37], 0, v2')
    A('buffer_load_dword v2, v0, s[8:11], s30 offen offset:128 sc0 sc1')
    A('s_waitcnt vmcnt(0)')
    A('v_cmp_ne_u32 vcc, 0, v2')
    A('s_add_u32 s31, s31, 1')
    A('s_or_b64 vcc, vcc, s[36:37]')
    A('s_cmp_eq_u64 vcc, s[32:33]')
    A(f's_cbranch_scc1 {ld}')
    A('s_sleep 4')
    A(f's_cmp_lt_u32 s31, {1 << 20}')
    A(f's_cbranch_scc1 {l2}')
    A(f's_branch {endlab}')
    A.label(ld)
    A('s_mov_b64 exec, -1')
    C.vm = []
    C.flagb = True


def flag_b(C):
    if getattr(C, 'flagb', False):
        A = C.A
        l = C.lab('fb')
        A('s_cmp_lg_u32 s20, 0')
        A(f's_cbranch_scc1 {l}')
        A('s_mov_b64 exec, 1')
        A('buffer_store_dword v4, v0, s[8:11], s34 offen offset:128 sc0 sc1')
        A('s_mov_b64 exec, -1')
        A.label(l)
        C.flagb = False


ACCB, ACCA = 16, 48
KVW, KACC, QSX = 160, 176, 240
KVRED, STAT, CSX, CSK = 112 * KB, 144 * KB, 148 * KB, 152 * KB


def blk_stats(C, P, T):
    A = C.A
    A(f'v_mov_b32 {v(T + 4)}, 0x3f803f80')
    A(f'v_dot2_f32_bf16 {v(T + 1)}, {v(P)}, {v(P)}, 0')
    A(f'v_dot2_f32_bf16 {v(T)}, {v(P)}, {v(T + 4)}, 0')
    for m in range(1, 4):
        A(f'v_dot2_f32_bf16 {v(T + 1)}, {v(P + m)}, {v(P + m)}, {v(T + 1)}')
        A(f'v_dot2_f32_bf16 {v(T)}, {v(P + m)}, {v(T + 4)}, {v(T)}')
    A('s_nop 2')
    A(f'v_mov_b32 {v(T + 2)}, {v(T)}')
    A(f'v_mov_b32 {v(T + 3)}, {v(T + 1)}')
    A('s_nop 1')
    A(f'v_permlane32_swap_b32 {v(T)}, {v(T + 2)}')
    A(f'v_permlane32_swap_b32 {v(T + 1)}, {v(T + 3)}')
    A(f'v_add_f32 {v(T)}, {v(T)}, {v(T + 2)}')
    A(f'v_add_f32 {v(T + 1)}, {v(T + 1)}, {v(T + 3)}')


def g3_waddr(C, vregs, KS, wbase):
    A = C.A
    NS = KS // 8
    A('s_lshl_b32 s30, s26, 8')
    A(f'v_xor_b32 {v(vregs[0])}, s30, v3')
    A(f's_mul_i32 s31, s20, {NS * KB}')
    A(f's_add_u32 s31, s31, {wbase}')
    A('s_xor_b32 s30, s28, 1')
    A(f's_mul_i32 s30, s30, {KS * KB}')
    A('s_add_u32 s30, s30, s31')
    A(f'v_add_u32 {v(vregs[1])}, s30, {v(vregs[0])}')
    A(f's_mul_i32 s30, s28, {KS * KB}')
    A('s_add_u32 s30, s30, s31')
    A(f'v_add_u32 {v(vregs[0])}, s30, {v(vregs[0])}')


def g3_wload(C, vregs, idx, wreg0, tag='w'):
    st, jj = idx // 2, idx % 2
    so, im = soff(st)
    C.vmem(f'buffer_load_dwordx4 {v(wreg0 + 4 * idx, 4)}, {v(vregs[jj])}, s[8:11], {so} offen offset:{im}', tag)


def g3_ex(mode, KS):
    return 252 if KS == 112 else (112 if mode == 'qkv' else 116)


def g3_pre(C, mode, KS, xbase, resbase=None, raw=False):
    A = C.A
    NS = KS // 8
    EX = g3_ex(mode, KS)
    A(f's_mul_i32 s31, s20, {NS * KB}')
    A(f's_add_u32 s31, s31, {xbase}')
    A('s_add_u32 s30, s27, s29')
    A(f's_mul_i32 s32, s30, {KS * KB}')
    A('s_add_u32 s32, s32, s31')
    A('v_add_u32 v6, s32, v3')
    A('s_xor_b32 s30, s30, 1')
    A(f's_mul_i32 s32, s30, {KS * KB}')
    A('s_add_u32 s32, s32, s31')
    A('v_add_u32 v5, s32, v3')
    A('s_lshl_b32 s30, s20, 11')
    A('v_add_u32 v8, s30, v3')
    A('v_add_u32 v7, 0x10000, v8')
    for b in range(1, 8):
        A(f's_xor_b32 s30, s20, {b}')
        A('s_lshl_b32 s30, s30, 11')
        A(f's_add_u32 s30, s30, {(b - 1) * 16 * KB}')
        A(f'v_add_u32 {v(8 + b)}, s30, v3')
    if raw:
        return
    if mode == 'qkv':
        A('v_lshrrev_b32 v2, 5, v1')
        A('v_lshlrev_b32 v4, 4, v2')
        A('s_lshl_b32 s31, s28, 7')
        A('s_lshl_b32 s30, s26, 6')
        A('s_add_u32 s31, s31, s30')
        A(f's_add_u32 s31, s31, {CSQKV}')
        C.vmem(f'buffer_load_dwordx4 {v(EX, 4)}, v4, s[8:11], s31 offen', 'ex')
        C.vmem(f'buffer_load_dwordx4 {v(EX + 4, 4)}, v4, s[8:11], s31 offen offset:32', 'ex')
        A('s_bfe_u32 s30, s20, 0x10001')
        A('s_lshl_b32 s30, s30, 6')
        A('s_lshl_b32 s31, s26, 5')
        A('s_add_u32 s30, s30, s31')
        A(f's_add_u32 s31, s30, {CSQKV + 2048}')
        C.vmem(f'buffer_load_dwordx4 {v(EX + 8, 4)}, v4, s[8:11], s31 offen', 'ex')
        A(f'v_and_b32 {v(QSX + 8)}, 31, v1')
        A(f'v_lshlrev_b32 {v(QSX + 8)}, 3, {v(QSX + 8)}')
        A(f'v_lshl_add_u32 {v(QSX + 8)}, v2, 13, {v(QSX + 8)}')
        A('s_lshl_b32 s30, s27, 13')
        A('s_lshl_b32 s31, s20, 10')
        A('s_add_u32 s30, s30, s31')
        A(f's_add_u32 s30, s30, {resbase}')
        A(f'v_add_u32 {v(QSX + 8)}, s30, {v(QSX + 8)}')
    elif resbase is None:
        A('v_and_b32 v2, 31, v1')
        A('v_lshlrev_b32 v2, 10, v2')
        A('v_lshrrev_b32 v4, 5, v1')
        A('v_lshl_add_u32 v2, v4, 3, v2')
        A('s_add_u32 s30, s27, s29')
        A('s_lshl_b32 s30, s30, 15')
        A('s_lshl_b32 s31, s28, 6')
        A('s_add_u32 s30, s30, s31')
        A('s_lshl_b32 s31, s26, 5')
        A('s_add_u32 s30, s30, s31')
        C.vmem(f'buffer_load_dwordx2 {v(EX, 2)}, v2, s[12:15], s30 offen', 'ex')
        C.vmem(f'buffer_load_dwordx2 {v(EX + 2, 2)}, v2, s[12:15], s30 offen offset:16', 'ex')
    else:
        A(f's_add_u32 s31, s49, {resbase}')
        C.vmem(f'buffer_load_dwordx4 {v(EX, 4)}, v3, s[8:11], s31 offen', 'ex')


def g3_main(C, mode, KS, wreg0, outbase=None, kvf=None, after_store=None, sxout=None, hook_b=None, raw=False, hook_red=None):
    A = C.A
    NS = KS // 8
    EX = g3_ex(mode, KS)
    if NS == 4:
        xreg = {(hh, st): 80 + (hh * 4 + st) * 4 for hh in range(2) for st in range(4)}
    else:
        slot = [80 + 4 * k for k in range(12)] + [240, 244]
        xreg = {(hh, st): slot[st] for hh in range(2) for st in range(NS)}

    def xload(hh, st):
        so, im = soff(st)
        C.vmem(f'buffer_load_dwordx4 {v(xreg[hh, st], 4)}, {v(5 + hh)}, s[8:11], {so} offen offset:{im}', f'x{hh}_{st}')

    seq = [(hh, st) for hh in range(2) for st in range(NS)]
    PR = G3_PR4 if NS == 4 else G3_PR14
    if raw:
        seq, PR = [], 0
    for x in seq[:PR]:
        xload(*x)
    nxt = PR
    C.wait('w')

    def wr(b):
        base = (ACCA if b & 1 else ACCB) + ((b >> 1) & 1) * 16 + (b >> 2) * 8
        return [f'ds_write_b128 {v(8 + b)}, {v(base + h2 * 4, 4)} offset:{h2 * 1024}' for h2 in range(2)]

    pend = []
    for hh in range(2):
        acc = ACCA if hh == 0 else ACCB
        for st in range(NS):
            C.wait(f'x{hh}_{st}')
            if hh == 0 and st == 0:
                C.stamp()
            for jj in range(2):
                c = '0' if st == 0 else v(acc + jj * 16, 16)
                A(f'v_mfma_f32_32x32x16_bf16 {v(acc + jj * 16, 16)}, {v(wreg0 + 4 * (2 * st + jj), 4)}, {v(xreg[hh, st], 4)}, {c}')
                if hh == 1 and (st >= 3 or (NS == 4 and st >= 2)):
                    for _ in range(2 if NS == 4 else 1):
                        if pend:
                            A(pend.pop(0))
            if nxt < len(seq):
                xload(*seq[nxt])
                nxt += 1
                if nxt == len(seq):
                    if mode == 'qkv':
                        for e in range(4):
                            C.vmem(f'buffer_load_dwordx2 {v(QSX + 2 * e, 2)}, {v(QSX + 8)}, s[8:11], 0 offen offset:{e * 256}', 'sx')
                    flag_b(C)
                    hb = 0
            elif hook_b:
                hb += 1
            if hook_b and nxt == len(seq):
                hook_b(hb, PR)
            if hh == 1 and NS == 4 and st == 1:
                A('s_nop 7' if raw else 's_nop 5')
            if hh == 1 and NS != 4 and st == 2:
                A('s_nop 2')
        if hh == 0:
            pend = wr(1) + wr(5) + wr(3) + wr(7)
    assert not pend
    C.stamp()
    lkv = C.lab('nokv')
    if mode == 'qkv':
        la, lb = C.lab('ka'), C.lab('kb')
        A('s_cmp_ge_u32 s24, 2')
        A(f's_cbranch_scc1 {lb}')
        A('s_cmp_eq_u32 s24, s29')
        A(f's_cbranch_scc0 {la}')
        for hh in (1, 0):
            for st in range(4):
                c = '0' if st == 0 else v(KACC, 16)
                A(f'v_mfma_f32_32x32x16_bf16 {v(KACC, 16)}, {v(KVW + 4 * st, 4)}, {v(xreg[hh, st], 4)}, {c}')
            if hh == 1:
                A(f's_branch {lb}')
                A.label(la)
        A.label(lb)
        A('v_lshlrev_b32 v4, 3, v1')
        if not raw:
            C.wait('sx')
            for e in range(4):
                A(f'v_add_f32 {v(QSX + e)}, {v(QSX + e)}, {v(QSX + 4 + e)}')
            for e in range(2):
                A(f'v_add_f32 {v(QSX + e)}, {v(QSX + e)}, {v(QSX + 2 + e)}')
            A('s_lshl_b32 s30, s20, 9')
            A(f's_add_u32 s30, s30, {STAT}')
            A('v_add_u32 v2, s30, v4')
            A(f'ds_write_b64 v2, {v(QSX, 2)}')
        else:
            A('v_lshrrev_b32 v112, 5, v1')
            A('v_lshlrev_b32 v112, 4, v112')
            A('s_and_b32 s30, s28, 1')
            A('s_lshl_b32 s30, s30, 7')
            A('s_lshl_b32 s31, s26, 6')
            A('s_add_u32 s30, s30, s31')
            A(f's_add_u32 s30, s30, {CSK}')
            A('v_add_u32 v113, s30, v112')
            A('s_nop 3')
        A('v_and_b32 v4, 0xf8, v4')
        A('s_lshl_b32 s30, s29, 8')
        A(f's_add_u32 s30, s30, {STAT}')
        A('v_add_u32 v4, s30, v4')
    else:
        A('s_nop 10')
    for b in (4, 2, 6):
        for x in wr(b):
            A(x)
    if mode == 'qkv':
        A('s_cmp_ge_u32 s24, 2')
        A(f's_cbranch_scc1 {lkv}')
        A(f'v_add_u32 v2, {KVRED}, v8')
        for k4 in range(4):
            A(f'ds_write_b128 v2, {v(KACC + k4 * 4, 4)} offset:{(k4 >> 1) * 16 * KB + (k4 & 1) * 1024}')
        A.label(lkv)
    if hook_red:
        hook_red()
    A('s_waitcnt lgkmcnt(0)')
    A('s_barrier')
    for b in range(1, 8):
        for h2 in range(2):
            base, off = ('v8', (b - 1) * 16 * KB) if b <= 4 else ('v7', (b - 5) * 16 * KB)
            A(f'ds_read_b128 {v(ACCB + b * 8 + h2 * 4, 4)}, {base} offset:{off + h2 * 1024}')
    T = 80

    def red(base, waits):
        for stp in (32, 16, 8):
            for r in range(stp):
                A(f'v_add_f32 {v(base + r)}, {v(base + r)}, {v(base + stp + r)}')
    if mode == 'qkv':
        A('s_waitcnt lgkmcnt(6)')
        for ww in range(8):
            A(f'ds_read_b64 {v(T + ww * 2, 2)}, v4 offset:{ww * 512}')
        A('s_waitcnt lgkmcnt(8)')
        if raw:
            EX = 192
            for h2 in range(2):
                A(f'ds_read_b128 {v(EX + h2 * 4, 4)}, v113 offset:{h2 * 32}')
    else:
        C.wait('ex')
        for m in range(4):
            A(f'v_lshlrev_b32 {v(T + 2 * m)}, 16, {v(EX + m)}')
            A(f'v_and_b32 {v(T + 2 * m + 1)}, 0xffff0000, {v(EX + m)}')
        for r in range(8):
            A(f'v_add_f32 {v(ACCB + r)}, {v(ACCB + r)}, {v(T + r)}')
        A('s_waitcnt lgkmcnt(0)')
    red(ACCB, None)
    P = ACCB + 8
    if mode == 'qkv':
        A('s_waitcnt lgkmcnt(0)')
        for stp in (8, 4, 2):
            for e in range(stp):
                A(f'v_add_f32 {v(T + e)}, {v(T + e)}, {v(T + e + stp)}')
        A(f'v_mul_f32 {v(T)}, {f32(1.0 / 512)}, {v(T)}')
        A(f'v_mul_f32 {v(T + 1)}, {f32(1.0 / 512)}, {v(T + 1)}')
        A(f'v_fma_f32 {v(T + 1)}, -{v(T)}, {v(T)}, {v(T + 1)}')
        A(f'v_max_f32 {v(T + 1)}, 0, {v(T + 1)}')
        A(f'v_add_f32 {v(T + 1)}, {f32(1e-5)}, {v(T + 1)}')
        A(f'v_rsq_f32 {v(T + 1)}, {v(T + 1)}')
        C.wait('ex')
        for r in range(8):
            A(f'v_fma_f32 {v(ACCB + r)}, -{v(T)}, {v(EX + r)}, {v(ACCB + r)}')
        A(f'v_mul_f32 {v(T + 2)}, {f32(QSCALE)}, {v(T + 1)}')
        for r in range(8):
            A(f'v_mul_f32 {v(ACCB + r)}, {v(T + 2)}, {v(ACCB + r)}')
        for m in range(4):
            A(f'v_cvt_pk_bf16_f32 {v(P + m)}, {v(ACCB + 2 * m)}, {v(ACCB + 2 * m + 1)}')
        A(f's_add_u32 s31, s49, {QF}')
        C.vmem(f'buffer_store_dwordx4 {v(P, 4)}, v3, s[8:11], s31 offen{QWT}', 'st')
        le, lv = C.lab('ke'), C.lab('v')
        A('s_cmp_lg_u32 s29, s24')
        A(f's_cbranch_scc1 {le}')
        A('s_bfe_u32 s34, s20, 0x10001')
        A('s_lshl_b32 s30, s34, 14')
        A('s_lshl_b32 s31, s26, 10')
        A('s_add_u32 s30, s30, s31')
        A(f's_add_u32 s30, s30, {KVRED}')
        A('v_add_u32 v4, s30, v3')
        KR = 208
        for ww in range(8):
            A(f'ds_read_b128 {v(KR + ww * 4, 4)}, v4 offset:{ww * 2048}')
        KX = EX + 8
        if raw:
            A('s_lshl_b32 s30, s34, 6')
            A('s_lshl_b32 s31, s26, 5')
            A('s_add_u32 s30, s30, s31')
            A(f's_add_u32 s30, s30, {CSK + 256}')
            A('v_add_u32 v113, s30, v112')
            A(f'ds_read_b128 {v(KX, 4)}, v113')
        A('s_add_u32 s30, s27, s29')
        A(f's_mul_i32 s30, s30, {KVT}')
        A(f's_add_u32 s30, s30, {kvf}')
        A('v_bfe_u32 v4, v1, 4, 1')
        A(f'v_mul_u32_u24 v4, {VBS}, v4')
        A('v_bfe_u32 v5, v1, 2, 1')
        A('v_lshl_add_u32 v4, v5, 8, v4')
        A('v_and_b32 v5, 3, v1')
        A('v_lshl_add_u32 v4, v5, 1, v4')
        A('v_bfe_u32 v5, v1, 3, 1')
        A('v_lshl_add_u32 v4, v5, 3, v4')
        A('v_lshrrev_b32 v5, 5, v1')
        A('v_lshl_add_u32 v4, v5, 6, v4')
        A('s_waitcnt lgkmcnt(0)')
        for stp in (16, 8, 4):
            for r in range(stp):
                A(f'v_add_f32 {v(KR + r)}, {v(KR + r)}, {v(KR + stp + r)}')
        for r in range(4):
            A(f'v_fma_f32 {v(KR + r)}, -{v(T)}, {v(KX + r)}, {v(KR + r)}')
        for r in range(4):
            A(f'v_mul_f32 {v(KR + r)}, {v(T + 1)}, {v(KR + r)}')
        KP = KR + 8
        for m in range(2):
            A(f'v_cvt_pk_bf16_f32 {v(KP + m)}, {v(KR + 2 * m)}, {v(KR + 2 * m + 1)}')
        A('s_cmp_lg_u32 s34, 0')
        A(f's_cbranch_scc1 {lv}')
        A('s_lshl_b32 s31, s26, 3')
        A('s_add_u32 s31, s31, s30')
        A(f'buffer_store_dwordx2 {v(KP, 2)}, v3, s[8:11], s31 offen{QWT}')
        A('s_cmp_eq_u32 s26, 0')
        A('s_cselect_b32 s31, 0x3f803f80, 0')
        for r in range(4):
            A(f'v_mov_b32 {v(8 + r)}, s31')
        A('s_lshl_b32 s31, s26, 4')
        A('s_add_u32 s31, s31, s30')
        A(f'v_mul_u32_u24 v4, {VBS}, v1')
        A('s_mov_b64 exec, 3')
        A(f'buffer_store_dwordx4 v[8:11], v4, s[8:11], s31 offen offset:{1024 + 512}{QWT}')
        A('s_mov_b64 exec, -1')
        A(f's_branch {le}')
        A.label(lv)
        A('s_lshl_b32 s31, s26, 7')
        A('s_add_u32 s31, s31, s30')
        for r in range(4):
            op = 'buffer_store_short' if r % 2 == 0 else 'buffer_store_short_d16_hi'
            A(f'{op} {v(KP + r // 2)}, v4, s[8:11], s31 offen offset:{1024 + r * 16}{QWT}')
        A.label(le)
    else:
        for m in range(4):
            A(f'v_cvt_pk_bf16_f32 {v(P + m)}, {v(ACCB + 2 * m)}, {v(ACCB + 2 * m + 1)}')
        if mode == 'res':
            A(f's_add_u32 s31, s49, {outbase}')
            C.vmem(f'buffer_store_dwordx4 {v(P, 4)}, v3, s[8:11], s31 offen{WT}', 'st')
            blk_stats(C, P, T)
            A('s_lshr_b32 s31, s49, 2')
            A(f's_add_u32 s31, s31, {sxout}')
            A('v_lshlrev_b32 v4, 3, v1')
            A('s_mov_b32 exec_hi, 0')
            C.vmem(f'buffer_store_dwordx2 {v(T, 2)}, v4, s[8:11], s31 offen{WT}', 'st')
            A('s_mov_b64 exec, -1')
            if after_store:
                after_store()
        else:
            A('v_and_b32 v4, 31, v1')
            A('v_lshlrev_b32 v4, 10, v4')
            A('v_lshrrev_b32 v5, 5, v1')
            A('v_lshl_add_u32 v4, v5, 4, v4')
            A('s_add_u32 s30, s27, s29')
            A('s_lshl_b32 s30, s30, 15')
            A('s_lshl_b32 s31, s28, 6')
            A('s_add_u32 s30, s30, s31')
            A('s_lshl_b32 s31, s26, 5')
            A('s_add_u32 s30, s30, s31')
            A(f'v_permlane32_swap_b32 {v(P)}, {v(P + 2)}')
            A(f'v_permlane32_swap_b32 {v(P + 1)}, {v(P + 3)}')
            C.vmem(f'buffer_store_dwordx4 {v(P, 4)}, v4, s[12:15], s30 offen', 'st')


def qkv_wstep(C, st, n=1):
    A = C.A
    if st == 0:
        g3_waddr(C, (5, 6), 32, WQKVP)
    per = -(-8 // n)
    for i in range(st * per, min(8, (st + 1) * per)):
        g3_wload(C, (5, 6), i, 128)
    if st == n:
        A('s_lshl_b32 s30, s20, 12')
        A(f's_add_u32 s30, s30, {WQKVP + 16 * 32 * KB}')
        l = C.lab('kw')
        A('s_cmp_ge_u32 s24, 2')
        A(f's_cbranch_scc1 {l}')
        for k in range(4):
            A(f'buffer_load_dwordx4 {v(KVW + 4 * k, 4)}, v3, s[8:11], s30 offen offset:{k * 1024}')
        A.label(l)


def qkv_wloads(C):
    qkv_wstep(C, 0)
    qkv_wstep(C, 1)


def att_phase(C, kvf, stubs, fixed={}, pf0=None):
    A = C.A
    tg = C.tag
    Q, CN, S0, S1, O, P, KF, VF, VK, VV, T = 4, 8, 24, 40, 56, 72, 80, 88, 104, 105, 106
    S = [S0, S1]
    A('s_and_b32 s30, s22, 3')
    A('s_lshl_b32 s31, s21, 2')
    A('s_add_u32 s30, s30, s31')
    A('s_lshl_b32 s30, s30, 5')
    A('s_lshr_b32 s31, s22, 2')
    A('s_lshl_b32 s31, s31, 3')
    A('s_add_u32 s30, s30, s31')
    A('s_add_u32 s30, s30, s20')
    A('s_lshl_b32 s30, s30, 10')
    A(f's_add_u32 s31, s30, {QF}')
    A(f's_add_u32 s36, s30, {OF}')
    A('s_lshl_b32 s37, s20, 10')
    A(f's_add_u32 s38, s37, {kvf}')

    def kvdma(r):
        A(f's_add_u32 m0, s37, {r * 8192}')
        A(f's_add_u32 s30, s38, {r * 8192}')
        C.vmem('buffer_load_dwordx4 v3, s[8:11], s30 offen lds', f'kv{r}')
    kvdma(0)
    C.vmem(f'buffer_load_dwordx4 {v(Q, 4)}, v3, s[8:11], s31 offen', 'q')
    for r in range(1, 5):
        kvdma(r)
    A(f'v_mov_b32 {v(VK)}, v3')
    A(f'v_and_b32 {v(T)}, 15, v1')
    A(f'v_lshrrev_b32 {v(T + 1)}, 5, v1')
    A(f'v_lshl_add_u32 {v(T)}, {v(T + 1)}, 4, {v(T)}')
    A(f'v_lshlrev_b32 {v(T)}, 4, {v(T)}')
    A(f'v_and_b32 {v(T + 1)}, 31, v1')
    A(f'v_cmp_eq_u32 vcc, 16, {v(T + 1)}')
    A(f'v_mov_b32 {v(T + 2)}, 512')
    A('s_nop 0')
    A(f'v_cndmask_b32 {v(T)}, {v(T)}, {v(T + 2)}, vcc')
    A(f'v_cmp_lt_u32 vcc, 16, {v(T + 1)}')
    A(f'v_mov_b32 {v(T + 2)}, 528')
    A('s_nop 0')
    A(f'v_cndmask_b32 {v(T)}, {v(T)}, {v(T + 2)}, vcc')
    A(f'v_add_u32 {v(VV)}, 1024, {v(T)}')
    for r in range(16):
        A(f'v_mov_b32 {v(O + r)}, 0')
    for m in range(4, 8):
        A(f'v_mov_b32 {v(P + m)}, 0')
    for m in range(4):
        A(f'v_mov_b32 {v(VF + 12 + m)}, 0')
    C.stamp()
    C.wait('kv2')
    A('s_barrier')
    C.stamp()

    def rdK(buf, t):
        A(f'ds_read_b128 {v(KF + buf * 4, 4)}, {v(VK)} offset:{t * KVT}')

    def rdV(buf, t):
        A(f'ds_read_b128 {v(VF + buf * 8, 4)}, {v(VV)} offset:{t * KVT}')
        A(f'ds_read_b128 {v(VF + buf * 8 + 4, 4)}, {v(VV)} offset:{t * KVT + VBS}')

    rdK(0, 0)
    rdK(1, 1)
    rdV(0, 0)
    A('s_waitcnt lgkmcnt(3)')
    A(f'v_mfma_f32_32x32x16_bf16 {v(S0, 16)}, {v(KF, 4)}, {v(Q, 4)}, 0')
    for r in range(5, 11):
        kvdma(r)
    A(f'v_max3_f32 {v(T)}, {v(S0)}, {v(S0 + 1)}, {v(S0 + 2)}')
    for r in range(3, 15, 2):
        A(f'v_max3_f32 {v(T)}, {v(T)}, {v(S0 + r)}, {v(S0 + r + 1)}')
    A(f'v_max_f32 {v(T)}, {v(T)}, {v(S0 + 15)}')
    A(f'v_mov_b32 {v(T + 1)}, {v(T)}')
    A('s_nop 1')
    A(f'v_permlane32_swap_b32 {v(T)}, {v(T + 1)}')
    A(f'v_max_f32 {v(T)}, {v(T)}, {v(T + 1)}')
    for r in range(16):
        A(f'v_sub_f32 {v(CN + r)}, 0, {v(T)}')
    for r in range(16):
        A(f'v_sub_f32 {v(S0 + r)}, {v(S0 + r)}, {v(T)}')
    A('s_setprio 3')
    C.stamp()
    UN = ATT_UN
    NIT = 64 // UN
    queue = list(stubs)
    first_pf = 8 // UN
    pf0 = pf0 or first_pf
    per = -(-len(queue) // (NIT - pf0 - ATT_PFEND))
    prio = {int(NIT * 0.5): 2, int(NIT * 0.78): 1, NIT - 1: 0}
    for it in range(NIT):
        if it == (1 if UN == 4 else 0):
            for r in range(11, 17):
                kvdma(r)
        if it == first_pf:
            C.wait('kv16')
            A('s_barrier')
        if it in prio:
            A(f's_setprio {prio[it]}')
        if it in fixed:
            if FINE == 2:
                C.stamp()
            fixed[it]()
            if FINE == 2:
                C.stamp()
        if it >= pf0:
            for _ in range(per):
                if queue:
                    queue.pop(0)()
        A(f's_call_b64 s[34:35], {tg}_body')
    assert not queue
    A(f'v_mfma_f32_32x32x16_bf16 {v(O, 16)}, {v(VF + 8 + 4, 4)}, {v(P + 4, 4)}, {v(O, 16)}')
    A('s_mov_b32 s39, 0')
    C.stamp()
    A('s_waitcnt lgkmcnt(0)')
    A('s_nop 10')
    A.label(f'{tg}_fin')
    A(f'v_mov_b32 {v(T)}, {v(O + 8)}')
    A(f'v_mov_b32 {v(T + 1)}, {v(O + 8)}')
    A(f'v_mul_f32 {v(T + 2)}, 0, {v(O)}')
    A(f'v_fma_f32 {v(T + 2)}, {v(O + 1)}, 0, {v(T + 2)}')
    A(f'v_permlane32_swap_b32 {v(T)}, {v(T + 1)}')
    for r in range(2, 8):
        A(f'v_fma_f32 {v(T + 2)}, {v(O + r)}, 0, {v(T + 2)}')
    A(f'v_add_f32 {v(T + 2)}, {v(T + 2)}, {v(T)}')
    A(f'v_mov_b32 {v(T + 3)}, {f32(2.0 ** 30)}')
    A(f'v_cmp_nle_f32 vcc, {v(T + 2)}, {v(T + 3)}')
    A(f'v_rcp_f32 {v(T)}, {v(T)}')
    A('s_cmp_eq_u32 s39, 99')
    A(f's_cbranch_scc1 {tg}_store')
    A(f's_cbranch_vccnz {tg}_slow')
    A.label(f'{tg}_store')
    for r in range(8):
        A(f'v_mul_f32 {v(O + r)}, {v(T)}, {v(O + r)}')
    for m in range(4):
        A(f'v_cvt_pk_bf16_f32 {v(P + m)}, {v(O + 2 * m)}, {v(O + 2 * m + 1)}')
    C.vmem(f'buffer_store_dwordx4 {v(P, 4)}, v3, s[8:11], s36 offen{WT}', 'st')

    def tail():
        A.raw('.p2align 6')
        A.label(f'{tg}_body')
        for t in range(UN):
            cur, nxt = t & 1, (t + 1) & 1
            Sc, Sn = S[cur], S[nxt]
            A('s_waitcnt lgkmcnt(2)')
            A(f'v_mfma_f32_32x32x16_bf16 {v(Sn, 16)}, {v(KF + nxt * 4, 4)}, {v(Q, 4)}, {v(CN, 16)}')
            rdK(cur, t + 2)
            for r in range(6):
                A(f'v_exp_f32 {v(Sc + r)}, {v(Sc + r)}')
            A(f'v_mfma_f32_32x32x16_bf16 {v(O, 16)}, {v(VF + nxt * 8 + 4, 4)}, {v(P + 4, 4)}, {v(O, 16)}')
            for r in range(6, 8):
                A(f'v_exp_f32 {v(Sc + r)}, {v(Sc + r)}')
            for m in range(4):
                A(f'v_cvt_pk_bf16_f32 {v(P + m)}, {v(Sc + 2 * m)}, {v(Sc + 2 * m + 1)}')
            A(f'v_exp_f32 {v(Sc + 8)}, {v(Sc + 8)}')
            A(f'v_exp_f32 {v(Sc + 9)}, {v(Sc + 9)}')
            A('s_waitcnt lgkmcnt(1)')
            A(f'v_mfma_f32_32x32x16_bf16 {v(O, 16)}, {v(VF + cur * 8, 4)}, {v(P, 4)}, {v(O, 16)}')
            rdV(nxt, t + 1)
            for r in range(10, 16):
                A(f'v_exp_f32 {v(Sc + r)}, {v(Sc + r)}')
            for m in range(4, 8):
                A(f'v_cvt_pk_bf16_f32 {v(P + m)}, {v(Sc + 2 * m)}, {v(Sc + 2 * m + 1)}')
        A(f'v_add_u32 {v(VK)}, {UN * KVT}, {v(VK)}')
        A(f'v_add_u32 {v(VV)}, {UN * KVT}, {v(VV)}')
        A('s_setpc_b64 s[34:35]')
        A.label(f'{tg}_slow')
        A(f'v_subrev_u32 {v(VK)}, {64 * KVT}, {v(VK)}')
        A(f'v_subrev_u32 {v(VV)}, {64 * KVT}, {v(VV)}')
        for r in range(16):
            A(f'v_mov_b32 {v(O + r)}, 0')
        M = T + 4
        A(f'v_sub_f32 {v(M)}, 0, {v(CN)}')
        A.label(f'{tg}_sloop')
        rdK(0, 0)
        rdV(0, 0)
        A('s_waitcnt lgkmcnt(0)')
        A(f'v_mfma_f32_32x32x16_bf16 {v(S0, 16)}, {v(KF, 4)}, {v(Q, 4)}, 0')
        A('s_nop 11')
        A(f'v_max3_f32 {v(T)}, {v(S0)}, {v(S0 + 1)}, {v(S0 + 2)}')
        for r in range(3, 15, 2):
            A(f'v_max3_f32 {v(T)}, {v(T)}, {v(S0 + r)}, {v(S0 + r + 1)}')
        A(f'v_max3_f32 {v(T)}, {v(T)}, {v(S0 + 15)}, {v(M)}')
        A(f'v_mov_b32 {v(T + 1)}, {v(T)}')
        A('s_nop 1')
        A(f'v_permlane32_swap_b32 {v(T)}, {v(T + 1)}')
        A(f'v_max_f32 {v(T)}, {v(T)}, {v(T + 1)}')
        A(f'v_sub_f32 {v(T + 1)}, {v(M)}, {v(T)}')
        A(f'v_exp_f32 {v(T + 1)}, {v(T + 1)}')
        A(f'v_mov_b32 {v(M)}, {v(T)}')
        for r in range(16):
            A(f'v_sub_f32 {v(S0 + r)}, {v(S0 + r)}, {v(T)}')
        for r in range(16):
            A(f'v_exp_f32 {v(S0 + r)}, {v(S0 + r)}')
        for r in range(16):
            A(f'v_mul_f32 {v(O + r)}, {v(T + 1)}, {v(O + r)}')
        for m in range(8):
            A(f'v_cvt_pk_bf16_f32 {v(P + m)}, {v(S0 + 2 * m)}, {v(S0 + 2 * m + 1)}')
        A('s_nop 1')
        A(f'v_mfma_f32_32x32x16_bf16 {v(O, 16)}, {v(VF, 4)}, {v(P, 4)}, {v(O, 16)}')
        A(f'v_mfma_f32_32x32x16_bf16 {v(O, 16)}, {v(VF + 4, 4)}, {v(P + 4, 4)}, {v(O, 16)}')
        A(f'v_add_u32 {v(VK)}, {KVT}, {v(VK)}')
        A(f'v_add_u32 {v(VV)}, {KVT}, {v(VV)}')
        A('s_nop 11')
        A('s_add_u32 s39, s39, 1')
        A('s_cmp_lt_u32 s39, 64')
        A(f's_cbranch_scc1 {tg}_sloop')
        A('s_mov_b32 s39, 99')
        A(f's_branch {tg}_fin')
    return tail


V_WGU = 112


def gu_waddr(C):
    A = C.A
    A('s_mul_i32 s30, s22, 7')
    A('s_min_u32 s31, s20, 6')
    A('s_add_u32 s40, s30, s31')
    A('s_lshl_b32 s30, s40, 15')
    A(f's_add_u32 s30, s30, {WGUP}')
    A(f'v_add_u32 {v(V_WGU)}, s30, v3')


def gu_wload(C, ks):
    so, im = soff(ks)
    C.vmem(f'buffer_load_dwordx4 {v(128 + 4 * ks, 4)}, {v(V_WGU)}, s[8:11], {so} offen offset:{im}', 'wg')


def gu_pre(C):
    A = C.A
    CS = 112
    A('v_mov_b32 v15, v113')
    A('v_mov_b32 v9, v114')
    A(f'v_mov_b32 v14, {v(V_WGU)}')
    A('s_lshl_b32 s30, s21, 2')
    A('s_add_u32 s30, s30, s25')
    A('s_lshl_b32 s30, s30, 15')
    A('s_lshl_b32 s31, s26, 11')
    A('s_add_u32 s30, s30, s31')
    A(f's_add_u32 s30, s30, {XB}')
    A('v_add_u32 v13, s30, v3')
    A('s_lshl_b32 s48, s25, 15')
    A('s_add_u32 s48, s48, s31')
    A('v_add_u32 v7, 0x10000, v3')
    A('v_lshrrev_b32 v11, 5, v1')
    A('v_lshlrev_b32 v11, 4, v11')
    A('s_min_u32 s30, s20, 6')
    A('s_lshl_b32 s30, s30, 7')
    A(f's_add_u32 s30, s30, {130 * KB}')
    A('v_add_u32 v10, s30, v11')
    A('v_and_b32 v12, 31, v1')
    A('v_lshlrev_b32 v12, 3, v12')
    A('v_lshl_add_u32 v12, v11, 8, v12')
    A('s_lshl_b32 s30, s21, 15')
    A(f's_add_u32 s30, s30, {SXB}')
    A('v_add_u32 v12, s30, v12')
    A('v_lshlrev_b32 v8, 3, v1')
    A(f'v_add_u32 v8, {128 * KB}, v8')


def gu_main(C, after_store=None):
    A = C.A
    ACC, XF, CS = 16, 80, 112

    def dma(c):
        A(f's_add_u32 m0, s48, {c * 4096}')
        so = '0' if c == 0 else s(40 + c)
        A('s_nop 0')
        for k in range(2):
            C.vmem(f'buffer_load_dwordx4 v13, s[8:11], {so} offen offset:{k * 1024} lds', f'x{c}')
    dma(0)
    dma(1)

    def rd(ks):
        buf = ks & 1
        for i in range(4):
            base = 'v3' if i < 2 else 'v7'
            A(f'ds_read_b128 {v(XF + buf * 16 + i * 4, 4)}, {base} offset:{(i & 1) * 32768 + ks * 1024}')

    def stats_load(i):
        for e in range(16):
            C.vmem(f'buffer_load_dwordx2 {v(ACC + (i & 1) * 32 + 2 * e, 2)}, v12, s[8:11], {"0" if i == 0 else s(40 + 2 * i)} offen offset:{e * 256}', f's{i}')

    def stats_sum(i):
        b = ACC + (i & 1) * 32
        C.wait(f's{i}')
        for stp in (16, 8, 4, 2):
            for e in range(stp):
                A(f'v_add_f32 {v(b + e)}, {v(b + e)}, {v(b + e + stp)}')
        A(f'v_mov_b32 {v(b + 2)}, {v(b)}')
        A(f'v_mov_b32 {v(b + 3)}, {v(b + 1)}')
        A('s_nop 1')
        A(f'v_permlane32_swap_b32 {v(b)}, {v(b + 2)}')
        A(f'v_permlane32_swap_b32 {v(b + 1)}, {v(b + 3)}')
        A(f'v_add_f32 {v(b)}, {v(b)}, {v(b + 2)}')
        A(f'v_add_f32 {v(b + 1)}, {v(b + 1)}, {v(b + 3)}')
        A(f'v_mul_f32 {v(b)}, {f32(-1.0 / 512)}, {v(b)}')
        A(f'v_mul_f32 {v(b + 1)}, {f32(1.0 / 512)}, {v(b + 1)}')
        A(f'v_fma_f32 {v(b + 1)}, -{v(b)}, {v(b)}, {v(b + 1)}')
        A(f'v_max_f32 {v(b + 1)}, 0, {v(b + 1)}')
        A(f'v_add_f32 {v(b + 1)}, {f32(1e-5)}, {v(b + 1)}')
        A(f'v_rcp_f32 {v(b + 1)}, {v(b + 1)}')
        A('s_nop 0')
        A(f'ds_write_b64 v8, {v(b, 2)} offset:{i * 512}')
        A('s_waitcnt lgkmcnt(0)')

    def loop(idle):
        C.wait('x0')
        A('s_barrier')
        C.stamp()
        if not idle:
            rd(0)
        for ks in range(32):
            if ks + 1 < 32:
                if (ks + 1) in GU_BARS:
                    C.wait(f'x{GU_BARS[ks + 1]}')
                    A('s_barrier')
                if not idle:
                    rd(ks + 1)
                    if ks == 28:
                        for g in range(4):
                            A(f'ds_read_b128 {v(CS + g * 4, 4)}, v10 offset:{g * 32}')
                        A('s_waitcnt lgkmcnt(8)')
                    elif ks == 30:
                        for i in range(4):
                            A(f'ds_read_b64 {v(4 + 2 * i, 2)}, v8 offset:{i * 512}' if i < 2 else f'ds_read_b64 {v(10 + 2 * (i - 2), 2)}, v8 offset:{i * 512}')
                        A('s_waitcnt lgkmcnt(8)')
                    else:
                        A('s_waitcnt lgkmcnt(4)')
            elif not idle:
                A('s_waitcnt lgkmcnt(0)')
            buf = ks & 1
            todo = []
            if ks == 10:
                C.flagb = True
                flag_b(C)
            if ks < 6:
                todo.append(lambda: dma(ks + 2))
            if ks >= GU_WD0:
                nleft = 28 - len(wdone)
                for st in [st for st in range(28) if st < ks and st not in wdone][:(2 if nleft > 31 - ks else 1)]:
                    todo.append(lambda st=st: g3_wload(C, (15, 9), st, 128))
                    wdone.add(st)
            for i in range(4):
                if not idle:
                    c = '0' if ks == 0 else v(ACC + i * 16, 16)
                    if GU16:
                        for t2 in range(2):
                            aa = ACC + i * 16 + ((ks & 1) * 2 + t2) * 4
                            A(f'v_mfma_f32_16x16x32_bf16 {v(aa, 4)}, {v(128 + 4 * (ks ^ t2 if ks > 1 else ks), 4)}, {v(XF + buf * 16 + i * 4, 4)}, {"0" if ks < 2 else v(aa, 4)}')
                    else:
                        A(f'v_mfma_f32_32x32x16_bf16 {v(ACC + i * 16, 16)}, {v(128 + 4 * ks, 4)}, {v(XF + buf * 16 + i * 4, 4)}, {c}')
                if i % 2 == 0 and todo:
                    f_ = todo.pop(0)
                    if not (GU_NOW and ks >= 6):
                        f_()
            if idle:
                if ks == 6:
                    stats_load(0)
                    stats_load(1)
                if ks == 8:
                    stats_sum(0)
                    stats_load(2)
                    stats_sum(1)
                    stats_load(3)
                if ks == 12:
                    stats_sum(2)
                    stats_sum(3)
                    A(f's_mul_i32 s30, s22, {7 * 128}')
                    A(f's_add_u32 s30, s30, {CSP}')
                    for kp in range(8):
                        C.vmem(f'buffer_load_dwordx4 {v(ACC + 4 * kp, 4)}, v3, s[8:11], s30 offen', 'cp')
                        if kp < 7:
                            A(f's_add_u32 s30, s30, {3584 * 4}')
                if ks == 16:
                    C.wait('cp')
                    for stp in (16, 8, 4):
                        for e in range(stp):
                            A(f'v_add_f32 {v(ACC + e)}, {v(ACC + e)}, {v(ACC + e + stp)}')
                    A(f'v_add_u32 v10, {130 * KB}, v3')
                    A(f'ds_write_b128 v10, {v(ACC, 4)}')
                    A('s_waitcnt lgkmcnt(0)')
        assert len(wdone) == 28
        C.stamp()
        if idle:
            if after_store:
                after_store()
            return
        P = XF
        A(f's_mul_i32 s30, s21, {4 * 112}')
        A('s_add_u32 s30, s30, s40')
        A('s_lshl_b32 s30, s30, 10')
        A(f's_add_u32 s30, s30, {HF}')
        A('s_nop 4')
        for i in range(4):
            acc = ACC + i * 16
            st = v(4 + 2 * i, 2) if i < 2 else v(10 + 2 * (i - 2), 2)
            for r in range(0, 16, 2):
                A(f'v_pk_fma_f32 {v(acc + r, 2)}, {st}, {v(CS + r, 2)}, {v(acc + r, 2)} op_sel_hi:[0,1,1]')
            for r in range(0, 8, 2):
                A(f'v_pk_mul_f32 {v(acc + r, 2)}, {v(acc + r, 2)}, {v(acc + 8 + r, 2)}')
            for r in range(0, 8, 2):
                A(f'v_pk_mul_f32 {v(acc + r, 2)}, {v(acc + r, 2)}, {st} op_sel:[0,1] op_sel_hi:[1,1]')
            pp = P + i * 4
            for m in range(4):
                A(f'v_cvt_pk_bf16_f32 {v(pp + m)}, {v(acc + 2 * m)}, {v(acc + 2 * m + 1)}')
            C.vmem(f'buffer_store_dwordx4 {v(pp, 4)}, v3, s[8:11], s30 offen{WT}', 'st')
            if i < 3:
                A(f's_add_u32 s30, s30, {112 * KB}')
        if after_store:
            after_store()

    ls, le = C.lab('gs'), C.lab('ge')
    A('s_cmp_eq_u32 s20, 7')
    A(f's_cbranch_scc1 {ls}')
    save, ns = list(C.vm), C.nstamp
    wdone = set()
    loop(False)
    A(f's_branch {le}')
    A.label(ls)
    C.vm, C.nstamp = list(save), ns
    wdone = set()
    loop(True)
    A.label(le)
    C.vm = ['st']


def swap_add(A, ra, rb):
    A(f'v_permlane32_swap_b32 {v(ra)}, {v(rb)}')
    A(f'v_add_f32 {v(ra)}, {v(ra)}, {v(rb)}')


def gen_pre(A):
    name = 'pre_kernel'
    C = Ctx(A, 'pr')
    kernel_begin(A, name)
    A('s_cmp_ge_u32 s2, 256')
    A('s_cbranch_scc1 pr_end')
    A('s_load_dwordx2 s[12:13], s[0:1], 0')
    A('s_load_dwordx2 s[16:17], s[0:1], 8')
    A('s_load_dwordx2 s[52:53], s[0:1], 16')
    A('s_load_dwordx2 s[56:57], s[0:1], 24')
    for d, sz in ((12, 2048 * 1024), (16, 512 * 1024), (52, 512 * 32), (56, 512 * 32)):
        A(f's_mov_b32 {s(d + 2)}, {sz}')
        A(f's_mov_b32 {s(d + 3)}, 0x20000')
    setup(C, False, 'pr_end')
    C.stamp()
    PK, KST = 192, 224
    A('s_lshl_b32 s48, s20, 14')
    A('v_lshrrev_b32 v4, 3, v1')
    A('v_and_b32 v5, 7, v1')
    A('v_lshrrev_b32 v6, 4, v1')
    A('v_xor_b32 v6, v6, v5')
    A('v_lshlrev_b32 v7, 10, v4')
    A('v_lshl_add_u32 v8, v6, 4, v7')
    A('v_xor_b32 v9, 64, v8')
    A('v_lshl_add_u32 v10, v5, 4, v7')
    A('s_lshl_b32 s30, s27, 15')
    A('s_lshl_b32 s31, s20, 7')
    A('s_add_u32 s30, s30, s31')
    A('s_lshl_b32 s31, s20, 16')
    A('s_lshl_b32 s32, s24, 7')
    A('s_add_u32 s31, s31, s32')
    for i in range(8):
        A(f's_add_u32 m0, s48, {i * 1024}')
        A('s_nop 0')
        C.vmem(f'buffer_load_dwordx4 {v(8 + (i & 1))}, s[12:15], s30 offen lds', 'x')
        A('s_add_u32 s30, s30, 8192')
    for i in range(8):
        A(f's_add_u32 m0, s48, {8192 + i * 1024}')
        A('s_nop 0')
        C.vmem('buffer_load_dwordx4 v10, s[16:19], s31 offen lds', 'wq')
        A('s_add_u32 s31, s31, 8192')
    A('s_lshl_b32 s30, s20, 11')
    A('s_cmp_ge_u32 s24, 2')
    A('s_cbranch_scc1 pr_k0')
    for k in range(4):
        A(f'buffer_load_dwordx4 {v(KST + 4 * k, 4)}, v3, {"s[52:55]" if k < 2 else "s[56:59]"}, s30 offen offset:{(k & 1) * 1024}')
    A.label('pr_k0')
    C.stamp()
    A('v_and_b32 v112, 31, v1')
    A('v_lshrrev_b32 v113, 5, v1')
    A('v_lshlrev_b32 v114, 7, v112')
    A('v_lshl_add_u32 v114, v113, 3, v114')
    A('v_bfe_u32 v115, v1, 1, 3')
    A('v_lshl_add_u32 v114, v115, 4, v114')
    A('s_lshl_b32 s30, s29, 12')
    A('s_add_u32 s30, s30, s48')
    A('v_add_u32 v115, s30, v114')
    A('v_xor_b32 v114, 4096, v115')
    A('v_bfe_u32 v116, v1, 2, 2')
    A('v_lshl_add_u32 v116, v113, 2, v116')
    A('v_and_b32 v117, 3, v1')
    A('v_lshlrev_b32 v117, 3, v117')
    A('v_bfe_u32 v118, v1, 4, 1')
    A('v_lshl_add_u32 v119, v116, 7, v117')
    A('v_lshl_add_u32 v119, v118, 5, v119')
    A('s_lshl_b32 s30, s26, 5')
    A('s_and_b32 s31, s28, 1')
    A('s_lshl_b32 s31, s31, 6')
    A('s_add_u32 s30, s30, s31')
    A('v_xor_b32 v120, s30, v119')
    A('s_add_u32 s30, s48, 8192')
    A('v_add_u32 v120, s30, v120')
    A('v_xor_b32 v121, 64, v120')
    A('v_lshl_add_u32 v122, v116, 5, v117')
    A('v_lshl_add_u32 v122, v118, 11, v122')
    A('v_add_u32 v122, s48, v122')
    A('v_add_u32 v123, s48, v3')
    A('v_mov_b32 v124, 0x3f803f80')
    g3_pre(C, 'qkv', 32, XA, raw=True)
    C.wait('x')
    C.stamp()
    for hh in range(2):
        for ch in range(8):
            A(f'v_xor_b32 {v(240 + ch)}, {ch << 4}, {v(114 + hh)}')
        for ch in range(8):
            A(f'ds_read_b64 {v(80 + hh * 16 + ch * 2, 2)}, {v(240 + ch)}')
        A('s_waitcnt lgkmcnt(0)' if hh else 's_waitcnt lgkmcnt(6)')
    SA = 248
    for r in range(16):
        for hh in range(2):
            x = v(80 + hh * 16 + r)
            A(f'v_dot2_f32_bf16 {v(SA + 2 * hh)}, {x}, v124, {"0" if r == 0 else v(SA + 2 * hh)}')
            A(f'v_dot2_f32_bf16 {v(SA + 2 * hh + 1)}, {x}, {x}, {"0" if r == 0 else v(SA + 2 * hh + 1)}')
    A('v_lshlrev_b32 v2, 3, v1')
    A('s_xor_b32 s30, s29, 1')
    A('s_lshl_b32 s30, s30, 8')
    A('v_xor_b32 v2, s30, v2')
    A('s_lshl_b32 s30, s20, 9')
    A(f's_add_u32 s30, s30, {STAT}')
    A('v_add_u32 v2, s30, v2')
    swap_add(A, SA, SA + 2)
    swap_add(A, SA + 1, SA + 3)
    A(f'ds_write_b64 v2, {v(SA, 2)}')
    A('v_lshlrev_b32 v127, 2, v1')
    A('s_and_b32 s30, s28, 1')
    A('s_lshl_b32 s30, s30, 7')
    A('s_lshl_b32 s31, s26, 6')
    A('s_add_u32 s30, s30, s31')
    A('v_xor_b32 v125, s30, v127')
    A('s_mul_i32 s30, s20, 384')
    A(f's_add_u32 s30, s30, {CSX}')
    A('v_add_u32 v125, s30, v125')
    A('v_and_b32 v126, 0x7c, v127')
    A('v_add_u32 v126, s30, v126')
    A(f'v_add_u32 v127, {CSX}, v127')
    A('s_waitcnt vmcnt(0)')
    C.vm = []
    C.stamp()
    for st in range(4):
        for jj in range(2):
            for h2 in range(2):
                A(f'ds_read_b64_tr_b16 {v(128 + 4 * (2 * st + jj) + 2 * h2, 2)}, {v(120 + jj)} offset:{st * 2048 + h2 * 1024}')
        if st == 2:
            A('s_waitcnt lgkmcnt(6)')
    A('s_cmp_ge_u32 s24, 2')
    A('s_cbranch_scc1 pr_k1')
    for k in range(4):
        A(f'ds_write_b128 v123, {v(KST + 4 * k, 4)} offset:{k * 1024}')
    A('s_waitcnt lgkmcnt(4)')
    for st in range(4):
        for h2 in range(2):
            A(f'ds_read_b64_tr_b16 {v(KVW + 4 * st + 2 * h2, 2)}, v122 offset:{st * 512 + h2 * 256}')
    A('s_waitcnt lgkmcnt(0)')
    for r in range(8):
        for e in range(2):
            A(f'v_dot2_f32_bf16 {v(SA + e)}, {v(KVW + 2 * r + e)}, v124, {"0" if r == 0 else v(SA + e)}')
    A('s_nop 2')
    A(f'v_add_f32 {v(SA)}, {v(SA)}, {v(SA + 1)}')
    A(f'v_mov_b32 {v(SA + 1)}, {v(SA)}')
    A('s_nop 1')
    swap_add(A, SA, SA + 1)
    A(f'ds_write_b32 v126, {v(SA)} offset:256')
    A.label('pr_k1')
    A('s_waitcnt lgkmcnt(0)')
    for st in range(4):
        for r in range(0, 4, 2):
            for jj in range(2):
                for e in range(2):
                    first = st == 0 and r == 0
                    acc = v(SA + 2 * e + jj)
                    A(f'v_dot2_f32_bf16 {acc}, {v(128 + 4 * (2 * st + jj) + r + e)}, v124, {"0" if first else acc}')
    A('s_nop 2')
    A(f'v_add_f32 {v(SA)}, {v(SA)}, {v(SA + 2)}')
    A(f'v_add_f32 {v(SA + 1)}, {v(SA + 1)}, {v(SA + 3)}')
    A('s_nop 1')
    swap_add(A, SA, SA + 1)
    A(f'ds_write_b32 v125, {v(SA)}')
    A('s_waitcnt lgkmcnt(0)')
    A('s_barrier')
    for ww in range(8):
        A(f'ds_read_b32 {v(240 + ww)}, v127 offset:{ww * 384}')
    A('s_waitcnt lgkmcnt(4)')
    for ww in range(8):
        A(f'ds_read_b32 {v(248 + ww)}, v127 offset:{ww * 384 + 256}')

    def cs_total():
        A('s_waitcnt lgkmcnt(8)')
        for b0 in (240, 248):
            for stp in (4, 2, 1):
                for e in range(stp):
                    A(f'v_add_f32 {v(b0 + e)}, {v(b0 + e)}, {v(b0 + e + stp)}')
        A(f'ds_write_b32 v127, v240 offset:{CSK - CSX}')
        A(f'ds_write_b32 v127, v248 offset:{CSK - CSX + 256}')
    g3_main(C, 'qkv', 32, 128, kvf=KVF, raw=True, hook_red=cs_total)
    A('s_cmp_lg_u32 s27, 0')
    A('s_cbranch_scc1 pr_w0')
    g3_waddr(C, (125, 126), 32, WQKVP)
    for i in range(8):
        A(f'buffer_store_dwordx4 {v(128 + 4 * i, 4)}, {v(125 + i % 2)}, s[8:11], 0 offen offset:{(i // 2) * 1024}')
    A('v_lshlrev_b32 v125, 2, v1')
    A('s_lshl_b32 s30, s24, 8')
    A(f's_add_u32 s30, s30, {CSQKV}')
    A('buffer_store_dword v240, v125, s[8:11], s30 offen')
    A('s_cmp_lg_u32 s24, 0')
    A('s_cbranch_scc1 pr_w0')
    A('s_lshl_b32 s30, s20, 12')
    A(f's_add_u32 s30, s30, {WQKVP + 16 * 32 * KB}')
    for k in range(4):
        A(f'buffer_store_dwordx4 {v(KVW + 4 * k, 4)}, v3, s[8:11], s30 offen offset:{k * 1024}')
    A(f's_mov_b32 s30, {CSQKV + 2048}')
    A('buffer_store_dword v248, v125, s[8:11], s30 offen')
    A.label('pr_w0')
    C.stamp()
    A('s_cmp_lg_u32 s20, 4')
    A('s_cbranch_scc1 pr_nz')
    A('v_mov_b32 v2, 0')
    A('v_lshlrev_b32 v4, 2, v1')
    A('s_lshl_b32 s30, s2, 7')
    A(f's_add_u32 s30, s30, {FLG}')
    A('s_mov_b32 exec_hi, 0')
    A('buffer_store_dword v2, v4, s[8:11], s30 offen')
    A('s_mul_i32 s30, s2, 384')
    A(f's_add_u32 s30, s30, {PFL}')
    A('v_lshlrev_b32 v4, 7, v1')
    A('s_mov_b64 exec, 7')
    A('buffer_store_dword v2, v4, s[8:11], s30 offen')
    A('s_mov_b64 exec, -1')
    A.label('pr_nz')
    A.label('pr_fin')
    C.stamp()
    stamp_end(C, 1)
    A.label('pr_end')
    A('s_endpgm')
    return dict(name=name, grid=256, block=512, lds=LDS_BYTES, nv=256, na=0)


def pack_ptrs(A):
    A('s_load_dwordx2 s[12:13], s[0:1], 0')
    A('s_load_dwordx2 s[4:5], s[0:1], 32')
    A('s_load_dwordx4 s[52:55], s[0:1], 48')
    A('s_load_dwordx2 s[16:17], s[0:1], 64')
    A('s_mov_b32 s7, 0x20000')
    A(f's_mov_b32 s14, {2048 * 1024}')
    A('s_mov_b32 s15, 0x20000')


def pack_issue(C):
    A = C.A
    A('s_mul_i32 s30, s2, 3')
    A('s_add_u32 s30, s30, s20')
    A('s_mov_b32 s58, s30')
    A('s_cmp_lt_u32 s20, 3')
    A('s_cselect_b32 s57, 1, 0')
    A('s_cmp_lt_u32 s30, 736')
    A('s_cselect_b32 s57, s57, 0')
    A('s_cmp_eq_u32 s57, 0')
    A('s_cselect_b32 s30, 0, s30')
    A('s_cmp_lt_u32 s30, 64')
    A('s_cbranch_scc1 pk_jwo')
    A('s_cmp_lt_u32 s30, 512')
    A('s_cbranch_scc1 pk_jgu')
    A('s_sub_u32 s30, s30, 512')
    A('s_mov_b64 s[4:5], s[16:17]')
    A(f's_mov_b32 s6, {1792 * 1024}')
    A('s_mov_b32 s50, 1024')
    A('s_and_b32 s31, s30, 7')
    A('s_lshr_b32 s30, s30, 3')
    A('s_lshl_b32 s51, s30, 16')
    A('s_lshl_b32 s56, s31, 7')
    A('s_add_u32 s51, s51, s56')
    A(f's_mul_i32 s56, s31, {2 * 112 * KB}')
    A('s_lshl_b32 s30, s30, 12')
    A('s_add_u32 s56, s56, s30')
    A(f's_add_u32 s56, s56, {WDP}')
    A(f's_mov_b32 s52, {112 * KB}')
    A('s_mov_b32 s53, 256')
    A(f's_mov_b32 s54, {G1.CSDUMMY}')
    A('s_branch pk_jgo')
    A.label('pk_jwo')
    A(f's_mov_b32 s6, {512 * 1024}')
    A('s_mov_b32 s50, 1024')
    A('s_lshr_b32 s31, s30, 3')
    A('s_and_b32 s30, s30, 7')
    A('s_lshl_b32 s51, s30, 16')
    A('s_lshl_b32 s56, s31, 7')
    A('s_add_u32 s51, s51, s56')
    A('s_lshl_b32 s56, s31, 16')
    A('s_lshl_b32 s30, s30, 12')
    A('s_add_u32 s56, s56, s30')
    A(f's_add_u32 s56, s56, {WOP}')
    A(f's_mov_b32 s52, {32 * KB}')
    A('s_mov_b32 s53, 256')
    A(f's_mov_b32 s54, {G1.CSDUMMY}')
    A('s_branch pk_jgo')
    A.label('pk_jgu')
    A('s_sub_u32 s30, s30, 64')
    A('s_cmp_ge_u32 s30, 224')
    A('s_cselect_b32 s4, s54, s52')
    A('s_cselect_b32 s5, s55, s53')
    A('s_cselect_b32 s16, 1, 0')
    A('s_cselect_b32 s31, 224, 0')
    A('s_sub_u32 s30, s30, s31')
    A(f's_mov_b32 s6, {512 * 3584}')
    A('s_mov_b32 s50, 3584')
    A('s_lshr_b32 s31, s30, 3')
    A('s_and_b32 s30, s30, 7')
    A(f's_mul_i32 s51, s30, {64 * 3584}')
    A('s_lshl_b32 s56, s31, 7')
    A('s_add_u32 s51, s51, s56')
    A('s_lshl_b32 s56, s31, 17')
    A('s_lshl_b32 s17, s30, 12')
    A('s_add_u32 s56, s56, s17')
    A('s_lshl_b32 s17, s16, 8')
    A('s_add_u32 s56, s56, s17')
    A(f's_add_u32 s56, s56, {WGUP}')
    A(f's_mov_b32 s52, {64 * KB}')
    A(f's_mov_b32 s53, {32 * KB}')
    A(f's_mul_i32 s54, s30, {3584 * 4}')
    A('s_lshl_b32 s17, s31, 9')
    A('s_add_u32 s54, s54, s17')
    A('s_lshl_b32 s17, s16, 6')
    A('s_add_u32 s54, s54, s17')
    A(f's_add_u32 s54, s54, {CSP}')
    A.label('pk_jgo')
    A('v_lshrrev_b32 v112, 3, v1')
    A('v_and_b32 v113, 7, v1')
    A('v_mul_lo_u32 v112, v112, s50')
    A('v_lshl_add_u32 v112, v113, 4, v112')
    A('s_lshl_b32 s50, s50, 3')
    A('s_min_u32 s59, s20, 2')
    A('s_lshl_b32 s59, s59, 13')
    A(f's_add_u32 s59, s59, {136 * KB}')
    A('s_cmp_eq_u32 s57, 0')
    A('s_cbranch_scc1 pk_i_end')
    for i in range(8):
        A(f's_add_u32 m0, s59, {i * 1024}')
        A('s_nop 0')
        A('buffer_load_dwordx4 v112, s[4:7], s51 offen lds')
        A('s_add_u32 s51, s51, s50')
    A.label('pk_i_end')


def pack_convert(C):
    A = C.A
    A('s_cmp_eq_u32 s57, 0')
    A('s_cbranch_scc1 pk_c_end')
    A('v_lshrrev_b32 v112, 5, v1')
    A('v_bfe_u32 v113, v1, 2, 2')
    A('v_lshl_add_u32 v113, v112, 2, v113')
    A('v_and_b32 v114, 3, v1')
    A('v_lshlrev_b32 v114, 3, v114')
    A('v_lshl_add_u32 v113, v113, 7, v114')
    A('v_bfe_u32 v114, v1, 4, 1')
    A('v_lshl_add_u32 v113, v114, 5, v113')
    A('v_add_u32 v113, s59, v113')
    A('v_mul_lo_u32 v114, v114, s53')
    A('v_and_b32 v115, 15, v1')
    A('v_lshl_add_u32 v114, v115, 4, v114')
    A('v_lshl_add_u32 v114, v112, 9, v114')
    A('v_lshrrev_b32 v112, 4, v1')
    A('v_lshlrev_b32 v112, 7, v112')
    A('v_lshl_add_u32 v112, v115, 2, v112')
    A('v_mov_b32 v115, 0x3f803f80')
    A('s_add_u32 s52, s52, s56')
    A('s_waitcnt vmcnt(0)')
    for jj in range(2):
        for st in range(4):
            for h2 in range(2):
                A(f'ds_read_b64_tr_b16 {v(128 + 4 * (4 * jj + st) + 2 * h2, 2)}, v113 offset:{st * 2048 + h2 * 1024 + jj * 64}')
        A('s_waitcnt lgkmcnt(0)')
        for st in range(4):
            A(f'buffer_store_dwordx4 {v(128 + 4 * (4 * jj + st), 4)}, v114, s[8:11], {"s56" if jj == 0 else "s52"} offen offset:{st * 1024} sc0 sc1')
    A('s_cmp_eq_u32 s53, 256')
    A('s_cbranch_scc1 pk_c_end')
    for r in range(16):
        for jj in range(2):
            A(f'v_dot2_f32_bf16 {v(116 + jj)}, {v(128 + 16 * jj + r)}, v115, {"0" if r == 0 else v(116 + jj)}')
    A('s_nop 2')
    swap_add(A, 116, 117)
    A('buffer_store_dword v116, v112, s[8:11], s54 offen sc0 sc1')
    A.label('pk_c_end')


def pack_flag(C):
    A = C.A
    A('s_cmp_ge_u32 s20, 3')
    A('s_cbranch_scc1 pk_f_end')
    A('s_lshl_b32 s30, s58, 7')
    A(f's_add_u32 s30, s30, {PFL}')
    A('v_mov_b32 v112, 0')
    A('v_mov_b32 v113, 1')
    A('s_waitcnt vmcnt(0)')
    A('s_mov_b64 exec, 1')
    A('buffer_store_dword v113, v112, s[8:11], s30 offen sc0 sc1')
    A('s_mov_b64 exec, -1')
    A.label('pk_f_end')


def pack_poll(C, endlab):
    A = C.A
    A('s_mul_i32 s30, s22, 7')
    A('s_lshr_b32 s30, s30, 2')
    A('v_lshrrev_b32 v112, 4, v1')
    A('v_add_u32 v112, s30, v112')
    A('v_min_u32 v112, 27, v112')
    A('v_and_b32 v113, 7, v1')
    A('v_lshl_add_u32 v112, v112, 3, v113')
    A('v_bfe_u32 v114, v1, 3, 1')
    A('v_mul_u32_u24 v114, 224, v114')
    A('v_add3_u32 v112, v112, v114, 64')
    A('s_mul_i32 s30, s20, 7')
    A('s_lshr_b32 s30, s30, 1')
    A('v_min_u32 v114, 4, v113')
    A('v_add_u32 v114, s30, v114')
    A('v_min_u32 v114, 27, v114')
    A('s_add_u32 s30, s24, 512')
    A('v_lshl_add_u32 v114, v114, 3, s30')
    A('v_cmp_le_u32 vcc, 48, v1')
    A('s_lshl_b32 s30, s24, 3')
    A('s_add_u32 s30, s30, s20')
    A('v_cndmask_b32 v112, v112, v114, vcc')
    A('v_mov_b32 v114, s30')
    A('v_cmp_le_u32 vcc, 56, v1')
    A(f's_mov_b32 s30, {PFL}')
    A('s_mov_b32 s31, 0')
    A('v_cndmask_b32 v112, v112, v114, vcc')
    A('v_lshlrev_b32 v112, 7, v112')
    A.label('pk_p')
    A('buffer_load_dword v113, v112, s[8:11], s30 offen sc1')
    A('s_waitcnt vmcnt(0)')
    A('v_cmp_eq_u32 vcc, 1, v113')
    A('s_add_u32 s31, s31, 1')
    A('s_cmp_eq_u64 vcc, -1')
    A('s_cbranch_scc1 pk_pd')
    A('s_sleep 16')
    A(f's_cmp_lt_u32 s31, {1 << 19}')
    A('s_cbranch_scc1 pk_p')
    A(f's_branch {endlab}')
    A.label('pk_pd')
    C.vm = []


def gen_layer(A, layer):
    name = f'layer{layer}_kernel'
    tg = f'l{layer}'
    end = f'{tg}_end'
    C = Ctx(A, tg)
    last = layer == 1
    xin = None if layer == 0 else XC
    kvf = KVF if layer == 0 else KVF2
    sy = 4 * layer
    kernel_begin(A, name)
    if layer == 0:
        pack_ptrs(A)
    setup(C, last, end)

    def pre_addr():
        gu_waddr(C)
        g3_waddr(C, (113, 114), 112, WDP)
        g3_waddr(C, (116, 117), 32, WOP)

    stubs = [lambda: (pre_addr(), gu_wload(C, 0))]
    stubs += [lambda ks=ks: gu_wload(C, ks) for ks in range(1, 24)]
    stubs += [lambda i=i: g3_wload(C, (116, 117), i, 224) for i in range(8)]
    if TOUCH and layer == 1:
        def t_addr():
            A('s_lshr_b32 s30, s2, 3')
            A('s_lshl_b32 s30, s30, 3')
            A('s_add_u32 s30, s30, s20')
            A(f's_mul_i32 s31, s30, {7 * KB}')
            A(f's_add_u32 s31, s31, {WDP}')
            A('v_add_u32 v118, s31, v3')
            A('s_lshl_b32 s31, s30, 11')
            A(f's_add_u32 s31, s31, {WQKVP}')
            A('v_add_u32 v119, s31, v3')

        def tch(vr, k):
            so, im = soff(k)
            C.vmem(f'buffer_load_dwordx4 v[120:123], {v(vr)}, s[8:11], {so} offen offset:{im}', 'tc')
        stubs += [lambda: (t_addr(), tch(V_WGU, 24))]
        stubs += [lambda ks=ks: tch(V_WGU, ks) for ks in range(25, 32)]
        stubs += [lambda k=k: tch(118, k) for k in range(7)]
        if not last:
            stubs += [lambda k=k: tch(119, k) for k in range(2)]

    def need_wo():
        A('s_lshr_b32 s30, s20, 1')
        A('s_lshl_b32 s30, s30, 2')
        A('s_lshl_b32 s31, s23, 1')
        A('s_add_u32 s30, s30, s31')
        A('s_lshl_b32 s32, 3, s30')

    def need_gu():
        A('s_lshr_b32 s30, s25, 1')
        A('s_lshl_b32 s32, 0x5555, s30')
        A('s_cmp_eq_u32 s20, 7')
        A('s_cselect_b32 s32, 0xffff, s32')

    def need_dn():
        A('s_lshl_b32 s30, s20, 1')
        A('s_lshl_b32 s32, 3, s30')

    def need_qkv():
        A('s_lshl_b32 s30, s20, 1')
        A('s_add_u32 s30, s30, s23')
        A('s_lshl_b32 s32, 1, s30')

    if layer == 0:
        fixed = {PK_I: lambda: pack_issue(C), PK_C: lambda: pack_convert(C), PK_F: lambda: pack_flag(C), PK_P: lambda: pack_poll(C, end)}
        tail = att_phase(C, kvf, stubs, fixed, PK_P)
    else:
        tail = att_phase(C, kvf, stubs)
    C.stamp()
    g3_pre(C, 'res', 32, OF, resbase=xin)
    handoff(C, sy + 0, end, need_wo)
    C.stamp()
    g3_main(C, 'res', 32, 224, outbase=XB, sxout=SXB, hook_red=lambda: [gu_wload(C, ks) for ks in range(24, 32)])
    C.stamp()
    gu_pre(C)
    handoff(C, sy + 1, end, need_gu)
    C.stamp()
    gu_main(C)
    C.stamp()
    g3_pre(C, 'res', 112, HF, resbase=XB)
    handoff(C, sy + 2, end, need_dn)
    C.stamp()
    if last:
        g3_main(C, 'out', 112, 128)
        C.stamp()
    else:
        g3_main(C, 'res', 112, 128, outbase=XC, sxout=SXC, hook_b=lambda st, n: qkv_wstep(C, st, n))
        C.stamp()
        g3_pre(C, 'qkv', 32, XC, resbase=SXC)
        handoff(C, sy + 3, end, need_qkv)
        C.stamp()
        g3_main(C, 'qkv', 32, 128, kvf=KVF2)
        C.stamp()
    stamp_end(C, 2 + layer)
    A.label(end)
    A('s_endpgm')
    tail()
    return dict(name=name, grid=256, block=512, lds=LDS_BYTES, nv=256, na=0)


def gen_zero_flags(A):
    pass


def build():
    A = Asm()
    ks = {}
    G1.STAMP = False
    ks['pre'] = gen_pre(A)
    ks['l0'] = gen_layer(A, 0)
    ks['l1'] = gen_layer(A, 1)
    order = ['pre', 'l0', 'l1']
    body = A.text()
    probs = lint(body)
    for p in probs:
        print('LINT:', p, file=sys.stderr)
    head = '; generated by gen/gen2.py\n'
    for k in order:
        d = ks[k]
        head += f"; @launch kernel={d['name']} grid=({d['grid']},1,1) block=({d['block']},1,1) lds={d['lds']}\n"
    head += '.amdgcn_target "amdgcn-amd-amdhsa--gfx950"\n.text\n'
    tail = '.section .rodata,"a"\n'
    for k, d in ks.items():
        tail += '.p2align 6\n' + descriptor(d['name'], d['nv'], d['na'], nsgpr=100)
    return head + body + tail


if __name__ == '__main__':
    if 'stamp' in sys.argv:
        STAMP = True
    for arg in sys.argv[2:]:
        if '=' in arg:
            k, val = arg.split('=')
            globals()[k] = int(val) if val.lstrip('-').isdigit() else val.replace('_', ' ')
    out = sys.argv[1] if len(sys.argv) > 1 else f'cdna_kernels/{NAME}.s'
    open(out, 'w').write(build())
    print('wrote', out)
```

```python
import sys
import math
import struct
from asmlib import Asm, v, a, s, lint
import gen as G1
from gen import f32, kernel_begin, descriptor, ws_srd, KB

NAME = G1.NAME
WQKVP, WOP, WGUP, WDP, CSQKV, CSGU = G1.WQKVP, G1.WOP, G1.WGUP, G1.WDP, G1.CSQKV, G1.CSGU
KVF, XA, XB, QF, OF, HF = G1.KVF, G1.XA, G1.XB, G1.QF, G1.OF, G1.HF
WS_SIZE, QSCALE = G1.WS_SIZE, G1.QSCALE
KVG = 2048
KVT = 2080
VBS = 512
XC = G1.WS_END
KVF2 = XC + 2048 * KB
FLG = KVF2 + 144 * KB
SXA = FLG + 64 * KB
SXB = SXA + 512 * KB
SXC = SXB + 512 * KB
CSP = SXC + 512 * KB
PFL = CSP + 128 * KB
KFL = PFL + 104 * KB
QF2 = KFL + 16 * KB
OF2 = QF2 + 2048 * KB
XB2 = OF2 + 2048 * KB
SXB2 = XB2 + 2048 * KB
HF2 = SXB2 + 512 * KB
WS_END = HF2 + 64 * 112 * KB
STAMPS = G1.STAMPS

STAMP = False
WT = ' sc0 sc1'
LDS_BYTES = 160 * KB
FINE = 0
KV_SLEEP = 2
QKV_PER = 1
WO_TAIL = 16
SLO = 0
QWT = ' sc0 sc1'
GU16 = 0
GU_NOW = 0
GU_WD0 = 3
GU_BARS = {4: 1, 8: 2, 12: 7, 24: 7}
PK_I = 2
PK_C = 5
PK_F = 6
PK_P = 9
RT = 0
TOUCH = 1
ATT_UN = 4
ATT_PFEND = 1
G3_PR4 = 7
G3_PR14 = 6
G2_ST8 = [2, 2, 2, 2]
G2_ST28 = [2, 2, 4, 4, 4, 4, 4, 4]
G2_PRE8 = 4
G2_PRE28 = 6


class Ctx:
    def __init__(self, A, tag):
        self.A = A
        self.tag = tag
        self.vm = []
        self.nlab = 0
        self.nstamp = 1

    def lab(self, base):
        self.nlab += 1
        return f'{self.tag}_{base}{self.nlab}'

    def vmem(self, text, tag):
        self.A(text)
        self.vm.append(tag)
        assert len(self.vm) <= 63, 'vmcnt overflow'

    def wait(self, tag, extra=''):
        idx = [i for i, t in enumerate(self.vm) if t == tag]
        if not idx:
            if extra:
                self.A(f's_waitcnt {extra}')
            return
        n = len(self.vm) - 1 - idx[-1]
        self.A(f's_waitcnt vmcnt({n}) {extra}'.strip())
        self.vm = self.vm[idx[-1] + 1:]

    def stamp(self):
        if STAMP:
            i = self.nstamp - SLO
            self.nstamp += 1
            if i < 1 or i >= 28:
                return
            A = self.A
            A('s_waitcnt lgkmcnt(0)')
            A('s_memrealtime s[60:61]' if RT else 's_memtime s[60:61]')
            A('s_waitcnt lgkmcnt(0)')
            A(f's_mov_b32 {s(64 + i)}, s60')


def stamp_begin(C):
    if STAMP:
        A = C.A
        A('s_memrealtime s[62:63]')
        A('s_memtime s[60:61]')
        for i in range(1, 30):
            A(f's_mov_b32 {s(64 + i)}, 0')
        A('s_waitcnt lgkmcnt(0)')
        A('s_mov_b32 s64, s62' if RT else 's_mov_b32 s64, s60')
        A('s_mov_b32 s95, s62')


def stamp_end(C, kidx):
    if STAMP:
        A = C.A
        A('s_waitcnt vmcnt(0) lgkmcnt(0)')
        A('s_memtime s[60:61]')
        A('s_memrealtime s[62:63]')
        A('s_waitcnt lgkmcnt(0)')
        A('s_mov_b32 s93, s62' if RT else 's_mov_b32 s93, s60')
        A('s_mov_b32 s94, s62')
        A('s_mov_b64 exec, 1')
        A('s_lshl_b32 s60, s2, 10')
        A('s_lshl_b32 s61, s20, 7')
        A('s_add_u32 s60, s60, s61')
        A(f's_add_u32 s60, s60, {STAMPS + kidx * (1 << 20)}')
        A('v_mov_b32 v0, 0')
        for i in range(32):
            A(f'v_mov_b32 v1, {s(64 + i)}')
            A(f'buffer_store_dword v1, v0, s[8:11], s60 offen offset:{i * 4}')
        A('s_waitcnt vmcnt(0)')


def setup(C, need_out, endlab):
    A = C.A
    A('s_cmp_ge_u32 s2, 256')
    A(f's_cbranch_scc1 {endlab}')
    stamp_begin(C)
    ws_srd(A, 8)
    if need_out:
        A('s_load_dwordx2 s[12:13], s[0:1], 72')
        A(f's_mov_b32 s14, {2048 * 512 * 2}')
        A('s_mov_b32 s15, 0x20000')
    A('v_and_b32 v1, 63, v0')
    A('v_lshrrev_b32 v2, 6, v0')
    A('v_lshlrev_b32 v3, 4, v1')
    A('v_readfirstlane_b32 s20, v2')
    A('s_and_b32 s21, s2, 7')
    A('s_lshl_b32 s21, s21, 1')
    A('s_bfe_u32 s22, s2, 0x10003')
    A('s_add_u32 s21, s21, s22')
    A('s_lshr_b32 s22, s2, 4')
    A('s_and_b32 s23, s22, 1')
    A('s_lshr_b32 s24, s22, 1')
    A('s_and_b32 s25, s20, 3')
    A('s_lshr_b32 s26, s20, 2')
    A('s_lshl_b32 s27, s21, 2')
    A('s_lshl_b32 s30, s23, 1')
    A('s_add_u32 s27, s27, s30')
    A('s_lshl_b32 s28, s24, 1')
    A('s_bfe_u32 s30, s20, 0x10001')
    A('s_add_u32 s28, s28, s30')
    A('s_and_b32 s29, s20, 1')
    A('s_add_u32 s30, s27, s29')
    A('s_lshl_b32 s49, s30, 15')
    A('s_lshl_b32 s31, s28, 11')
    A('s_add_u32 s49, s49, s31')
    A('s_lshl_b32 s31, s26, 10')
    A('s_add_u32 s49, s49, s31')
    for g in range(1, 8):
        A(f's_mov_b32 {s(40 + g)}, {g * 4096}')
    A('s_waitcnt lgkmcnt(0)')


def soff(i):
    return ('0' if i // 4 == 0 else s(40 + i // 4)), (i % 4) * 1024


def handoff(C, sync, endlab, need, kvflag=None, first=False):
    A = C.A
    l1, l2, ld = C.lab('pa'), C.lab('pb'), C.lab('pd')
    need()
    A('s_mov_b32 s33, 0')
    A('v_lshlrev_b32 v0, 2, v1')
    A('s_lshl_b32 s30, s21, 8')
    A(f's_add_u32 s30, s30, {FLG + sync * 4096}')
    A('s_lshl_b32 s34, s22, 2')
    A('s_add_u32 s34, s34, s30')
    A('v_mov_b32 v4, 1')
    if first:
        lz, lzd = C.lab('z'), C.lab('zd')
        A('s_cmp_lg_u32 s20, 0')
        A(f's_cbranch_scc1 {lzd}')
        A('s_mov_b32 s31, 0')
        A('s_mov_b64 exec, 1')
        A.label(lz)
        A('buffer_load_dword v2, v0, s[4:7], 0 offen sc0 sc1')
        A('s_waitcnt vmcnt(0)')
        A('v_cmp_le_u32 vcc, 16, v2')
        A('s_add_u32 s31, s31, 1')
        A('s_cmp_eq_u64 vcc, 1')
        A(f's_cbranch_scc1 {lzd}')
        A('s_sleep 8')
        A(f's_cmp_lt_u32 s31, {1 << 20}')
        A(f's_cbranch_scc1 {lz}')
        A(f's_branch {endlab}')
        A.label(lzd)
        A('s_mov_b64 exec, -1')
    if kvflag is not None:
        A('s_waitcnt vmcnt(0) lgkmcnt(0)')
        C.vm = []
    else:
        C.wait('st', 'lgkmcnt(0)')
    A('s_cmp_lg_u32 s20, 0')
    A('s_barrier')
    l, lb, lb2 = C.lab('sig'), C.lab('sb'), C.lab('sc')
    A(f's_cbranch_scc1 {l}')
    A('s_mov_b64 exec, 1')
    if kvflag is not None:
        lk = C.lab('kf')
        A('s_cmp_ge_u32 s24, 2')
        A(f's_cbranch_scc1 {lk}')
        A('s_add_u32 s31, s27, s24')
        A('s_lshl_b32 s31, s31, 7')
        A(f's_add_u32 s31, s31, {kvflag}')
        A('s_mov_b64 exec, 15')
        A('buffer_store_dword v4, v0, s[8:11], s31 offen sc0 sc1')
        A('s_mov_b64 exec, 1')
        A.label(lk)
    A('buffer_store_dword v4, v0, s[8:11], s34 offen')
    A.label(l)
    A('s_mov_b32 s31, 0')
    A('s_mov_b64 exec, s[32:33]')
    A.label(l1)
    A('buffer_load_dword v2, v0, s[8:11], s30 offen sc1')
    A('s_add_u32 s31, s31, 1')
    A('s_waitcnt vmcnt(0)')
    A('v_cmp_ne_u32 vcc, 0, v2')
    A('s_cmp_eq_u64 vcc, s[32:33]')
    A(f's_cbranch_scc1 {ld}')
    A('s_cmp_lt_u32 s31, 64')
    A(f's_cbranch_scc1 {l1}')
    A('s_cmp_lg_u32 s20, 0')
    A(f's_cbranch_scc1 {l2}')
    A('s_mov_b64 exec, 1')
    A('buffer_store_dword v4, v0, s[8:11], s34 offen offset:128 sc0 sc1')
    A('s_mov_b64 exec, s[32:33]')
    A.label(l2)
    A('buffer_load_dword v2, v0, s[8:11], s30 offen sc1')
    A('s_waitcnt vmcnt(0)')
    A('v_cmp_ne_u32 s[36:37], 0, v2')
    A('buffer_load_dword v2, v0, s[8:11], s30 offen offset:128 sc0 sc1')
    A('s_waitcnt vmcnt(0)')
    A('v_cmp_ne_u32 vcc, 0, v2')
    A('s_add_u32 s31, s31, 1')
    A('s_or_b64 vcc, vcc, s[36:37]')
    A('s_cmp_eq_u64 vcc, s[32:33]')
    A(f's_cbranch_scc1 {ld}')
    A('s_sleep 4')
    A(f's_cmp_lt_u32 s31, {1 << 20}')
    A(f's_cbranch_scc1 {l2}')
    A(f's_branch {endlab}')
    A.label(ld)
    A('s_mov_b64 exec, -1')
    C.vm = []
    C.flagb = True


def flag_b(C):
    if getattr(C, 'flagb', False):
        A = C.A
        l = C.lab('fb')
        A('s_cmp_lg_u32 s20, 0')
        A(f's_cbranch_scc1 {l}')
        A('s_mov_b64 exec, 1')
        A('buffer_store_dword v4, v0, s[8:11], s34 offen offset:128 sc0 sc1')
        A('s_mov_b64 exec, -1')
        A.label(l)
        C.flagb = False


ACCB, ACCA = 16, 48
KVW, KACC, QSX = 160, 176, 240
KVRED, STAT, CSX, CSK = 112 * KB, 144 * KB, 148 * KB, 152 * KB


def blk_stats(C, P, T):
    A = C.A
    A(f'v_mov_b32 {v(T + 4)}, 0x3f803f80')
    A(f'v_dot2_f32_bf16 {v(T + 1)}, {v(P)}, {v(P)}, 0')
    A(f'v_dot2_f32_bf16 {v(T)}, {v(P)}, {v(T + 4)}, 0')
    for m in range(1, 4):
        A(f'v_dot2_f32_bf16 {v(T + 1)}, {v(P + m)}, {v(P + m)}, {v(T + 1)}')
        A(f'v_dot2_f32_bf16 {v(T)}, {v(P + m)}, {v(T + 4)}, {v(T)}')
    A('s_nop 2')
    A(f'v_mov_b32 {v(T + 2)}, {v(T)}')
    A(f'v_mov_b32 {v(T + 3)}, {v(T + 1)}')
    A('s_nop 1')
    A(f'v_permlane32_swap_b32 {v(T)}, {v(T + 2)}')
    A(f'v_permlane32_swap_b32 {v(T + 1)}, {v(T + 3)}')
    A(f'v_add_f32 {v(T)}, {v(T)}, {v(T + 2)}')
    A(f'v_add_f32 {v(T + 1)}, {v(T + 1)}, {v(T + 3)}')


def g3_waddr(C, vregs, KS, wbase):
    A = C.A
    NS = KS // 8
    A('s_lshl_b32 s30, s26, 8')
    A(f'v_xor_b32 {v(vregs[0])}, s30, v3')
    A(f's_mul_i32 s31, s20, {NS * KB}')
    A(f's_add_u32 s31, s31, {wbase}')
    A('s_xor_b32 s30, s28, 1')
    A(f's_mul_i32 s30, s30, {KS * KB}')
    A('s_add_u32 s30, s30, s31')
    A(f'v_add_u32 {v(vregs[1])}, s30, {v(vregs[0])}')
    A(f's_mul_i32 s30, s28, {KS * KB}')
    A('s_add_u32 s30, s30, s31')
    A(f'v_add_u32 {v(vregs[0])}, s30, {v(vregs[0])}')


def g3_wload(C, vregs, idx, wreg0, tag='w'):
    st, jj = idx // 2, idx % 2
    so, im = soff(st)
    C.vmem(f'buffer_load_dwordx4 {v(wreg0 + 4 * idx, 4)}, {v(vregs[jj])}, s[8:11], {so} offen offset:{im}', tag)


def g3_ex(mode, KS):
    return 252 if KS == 112 else (112 if mode == 'qkv' else 116)


def g3_pre(C, mode, KS, xbase, resbase=None, raw=False):
    A = C.A
    NS = KS // 8
    EX = g3_ex(mode, KS)
    A(f's_mul_i32 s31, s20, {NS * KB}')
    A(f's_add_u32 s31, s31, {xbase}')
    A('s_add_u32 s30, s27, s29')
    A(f's_mul_i32 s32, s30, {KS * KB}')
    A('s_add_u32 s32, s32, s31')
    A('v_add_u32 v6, s32, v3')
    A('s_xor_b32 s30, s30, 1')
    A(f's_mul_i32 s32, s30, {KS * KB}')
    A('s_add_u32 s32, s32, s31')
    A('v_add_u32 v5, s32, v3')
    A('s_lshl_b32 s30, s20, 11')
    A('v_add_u32 v8, s30, v3')
    A('v_add_u32 v7, 0x10000, v8')
    for b in range(1, 8):
        A(f's_xor_b32 s30, s20, {b}')
        A('s_lshl_b32 s30, s30, 11')
        A(f's_add_u32 s30, s30, {(b - 1) * 16 * KB}')
        A(f'v_add_u32 {v(8 + b)}, s30, v3')
    if raw:
        return
    if mode == 'qkv':
        A('v_lshrrev_b32 v2, 5, v1')
        A('v_lshlrev_b32 v4, 4, v2')
        A('s_lshl_b32 s31, s28, 7')
        A('s_lshl_b32 s30, s26, 6')
        A('s_add_u32 s31, s31, s30')
        A(f's_add_u32 s31, s31, {CSQKV}')
        C.vmem(f'buffer_load_dwordx4 {v(EX, 4)}, v4, s[8:11], s31 offen', 'ex')
        C.vmem(f'buffer_load_dwordx4 {v(EX + 4, 4)}, v4, s[8:11], s31 offen offset:32', 'ex')
        A('s_bfe_u32 s30, s20, 0x10001')
        A('s_lshl_b32 s30, s30, 6')
        A('s_lshl_b32 s31, s26, 5')
        A('s_add_u32 s30, s30, s31')
        A(f's_add_u32 s31, s30, {CSQKV + 2048}')
        C.vmem(f'buffer_load_dwordx4 {v(EX + 8, 4)}, v4, s[8:11], s31 offen', 'ex')
        A(f'v_and_b32 {v(QSX + 8)}, 31, v1')
        A(f'v_lshlrev_b32 {v(QSX + 8)}, 3, {v(QSX + 8)}')
        A(f'v_lshl_add_u32 {v(QSX + 8)}, v2, 13, {v(QSX + 8)}')
        A('s_lshl_b32 s30, s27, 13')
        A('s_lshl_b32 s31, s20, 10')
        A('s_add_u32 s30, s30, s31')
        A(f's_add_u32 s30, s30, {resbase}')
        A(f'v_add_u32 {v(QSX + 8)}, s30, {v(QSX + 8)}')
    elif resbase is None:
        A('v_and_b32 v2, 31, v1')
        A('v_lshlrev_b32 v2, 10, v2')
        A('v_lshrrev_b32 v4, 5, v1')
        A('v_lshl_add_u32 v2, v4, 3, v2')
        A('s_add_u32 s30, s27, s29')
        A('s_lshl_b32 s30, s30, 15')
        A('s_lshl_b32 s31, s28, 6')
        A('s_add_u32 s30, s30, s31')
        A('s_lshl_b32 s31, s26, 5')
        A('s_add_u32 s30, s30, s31')
        C.vmem(f'buffer_load_dwordx2 {v(EX, 2)}, v2, s[12:15], s30 offen', 'ex')
        C.vmem(f'buffer_load_dwordx2 {v(EX + 2, 2)}, v2, s[12:15], s30 offen offset:16', 'ex')
    else:
        A(f's_add_u32 s31, s49, {resbase}')
        C.vmem(f'buffer_load_dwordx4 {v(EX, 4)}, v3, s[8:11], s31 offen', 'ex')


def g3_main(C, mode, KS, wreg0, outbase=None, kvf=None, after_store=None, sxout=None, hook_b=None, raw=False, hook_red=None):
    A = C.A
    NS = KS // 8
    EX = g3_ex(mode, KS)
    if NS == 4:
        xreg = {(hh, st): 80 + (hh * 4 + st) * 4 for hh in range(2) for st in range(4)}
    else:
        slot = [80 + 4 * k for k in range(12)] + [240, 244]
        xreg = {(hh, st): slot[st] for hh in range(2) for st in range(NS)}

    def xload(hh, st):
        so, im = soff(st)
        C.vmem(f'buffer_load_dwordx4 {v(xreg[hh, st], 4)}, {v(5 + hh)}, s[8:11], {so} offen offset:{im}', f'x{hh}_{st}')

    seq = [(hh, st) for hh in range(2) for st in range(NS)]
    PR = G3_PR4 if NS == 4 else G3_PR14
    if raw:
        seq, PR = [], 0
    for x in seq[:PR]:
        xload(*x)
    nxt = PR
    C.wait('w')

    def wr(b):
        base = (ACCA if b & 1 else ACCB) + ((b >> 1) & 1) * 16 + (b >> 2) * 8
        return [f'ds_write_b128 {v(8 + b)}, {v(base + h2 * 4, 4)} offset:{h2 * 1024}' for h2 in range(2)]

    pend = []
    for hh in range(2):
        acc = ACCA if hh == 0 else ACCB
        for st in range(NS):
            C.wait(f'x{hh}_{st}')
            if hh == 0 and st == 0:
                C.stamp()
            for jj in range(2):
                c = '0' if st == 0 else v(acc + jj * 16, 16)
                A(f'v_mfma_f32_32x32x16_bf16 {v(acc + jj * 16, 16)}, {v(wreg0 + 4 * (2 * st + jj), 4)}, {v(xreg[hh, st], 4)}, {c}')
                if hh == 1 and (st >= 3 or (NS == 4 and st >= 2)):
                    for _ in range(2 if NS == 4 else 1):
                        if pend:
                            A(pend.pop(0))
            if nxt < len(seq):
                xload(*seq[nxt])
                nxt += 1
                if nxt == len(seq):
                    if mode == 'qkv':
                        for e in range(4):
                            C.vmem(f'buffer_load_dwordx2 {v(QSX + 2 * e, 2)}, {v(QSX + 8)}, s[8:11], 0 offen offset:{e * 256}', 'sx')
                    flag_b(C)
                    hb = 0
            elif hook_b:
                hb += 1
            if hook_b and nxt == len(seq):
                hook_b(hb, PR)
            if hh == 1 and NS == 4 and st == 1:
                A('s_nop 7' if raw else 's_nop 5')
            if hh == 1 and NS != 4 and st == 2:
                A('s_nop 2')
        if hh == 0:
            pend = wr(1) + wr(5) + wr(3) + wr(7)
    assert not pend
    C.stamp()
    lkv = C.lab('nokv')
    if mode == 'qkv':
        la, lb = C.lab('ka'), C.lab('kb')
        A('s_cmp_ge_u32 s24, 2')
        A(f's_cbranch_scc1 {lb}')
        A('s_cmp_eq_u32 s24, s29')
        A(f's_cbranch_scc0 {la}')
        for hh in (1, 0):
            for st in range(4):
                c = '0' if st == 0 else v(KACC, 16)
                A(f'v_mfma_f32_32x32x16_bf16 {v(KACC, 16)}, {v(KVW + 4 * st, 4)}, {v(xreg[hh, st], 4)}, {c}')
            if hh == 1:
                A(f's_branch {lb}')
                A.label(la)
        A.label(lb)
        A('v_lshlrev_b32 v4, 3, v1')
        if not raw:
            C.wait('sx')
            for e in range(4):
                A(f'v_add_f32 {v(QSX + e)}, {v(QSX + e)}, {v(QSX + 4 + e)}')
            for e in range(2):
                A(f'v_add_f32 {v(QSX + e)}, {v(QSX + e)}, {v(QSX + 2 + e)}')
            A('s_lshl_b32 s30, s20, 9')
            A(f's_add_u32 s30, s30, {STAT}')
            A('v_add_u32 v2, s30, v4')
            A(f'ds_write_b64 v2, {v(QSX, 2)}')
        else:
            A('v_lshrrev_b32 v112, 5, v1')
            A('v_lshlrev_b32 v112, 4, v112')
            A('s_and_b32 s30, s28, 1')
            A('s_lshl_b32 s30, s30, 7')
            A('s_lshl_b32 s31, s26, 6')
            A('s_add_u32 s30, s30, s31')
            A(f's_add_u32 s30, s30, {CSK}')
            A('v_add_u32 v113, s30, v112')
            A('s_nop 3')
        A('v_and_b32 v4, 0xf8, v4')
        A('s_lshl_b32 s30, s29, 8')
        A(f's_add_u32 s30, s30, {STAT}')
        A('v_add_u32 v4, s30, v4')
    else:
        A('s_nop 10')
    for b in (4, 2, 6):
        for x in wr(b):
            A(x)
    if mode == 'qkv':
        A('s_cmp_ge_u32 s24, 2')
        A(f's_cbranch_scc1 {lkv}')
        A(f'v_add_u32 v2, {KVRED}, v8')
        for k4 in range(4):
            A(f'ds_write_b128 v2, {v(KACC + k4 * 4, 4)} offset:{(k4 >> 1) * 16 * KB + (k4 & 1) * 1024}')
        A.label(lkv)
    if hook_red:
        hook_red()
    A('s_waitcnt lgkmcnt(0)')
    A('s_barrier')
    for b in range(1, 8):
        for h2 in range(2):
            base, off = ('v8', (b - 1) * 16 * KB) if b <= 4 else ('v7', (b - 5) * 16 * KB)
            A(f'ds_read_b128 {v(ACCB + b * 8 + h2 * 4, 4)}, {base} offset:{off + h2 * 1024}')
    T = 80

    def red(base, waits):
        for stp in (32, 16, 8):
            for r in range(stp):
                A(f'v_add_f32 {v(base + r)}, {v(base + r)}, {v(base + stp + r)}')
    if mode == 'qkv':
        A('s_waitcnt lgkmcnt(6)')
        for ww in range(8):
            A(f'ds_read_b64 {v(T + ww * 2, 2)}, v4 offset:{ww * 512}')
        A('s_waitcnt lgkmcnt(8)')
        if raw:
            EX = 192
            for h2 in range(2):
                A(f'ds_read_b128 {v(EX + h2 * 4, 4)}, v113 offset:{h2 * 32}')
    else:
        C.wait('ex')
        for m in range(4):
            A(f'v_lshlrev_b32 {v(T + 2 * m)}, 16, {v(EX + m)}')
            A(f'v_and_b32 {v(T + 2 * m + 1)}, 0xffff0000, {v(EX + m)}')
        for r in range(8):
            A(f'v_add_f32 {v(ACCB + r)}, {v(ACCB + r)}, {v(T + r)}')
        A('s_waitcnt lgkmcnt(0)')
    red(ACCB, None)
    P = ACCB + 8
    if mode == 'qkv':
        A('s_waitcnt lgkmcnt(0)')
        for stp in (8, 4, 2):
            for e in range(stp):
                A(f'v_add_f32 {v(T + e)}, {v(T + e)}, {v(T + e + stp)}')
        A(f'v_mul_f32 {v(T)}, {f32(1.0 / 512)}, {v(T)}')
        A(f'v_mul_f32 {v(T + 1)}, {f32(1.0 / 512)}, {v(T + 1)}')
        A(f'v_fma_f32 {v(T + 1)}, -{v(T)}, {v(T)}, {v(T + 1)}')
        A(f'v_max_f32 {v(T + 1)}, 0, {v(T + 1)}')
        A(f'v_add_f32 {v(T + 1)}, {f32(1e-5)}, {v(T + 1)}')
        A(f'v_rsq_f32 {v(T + 1)}, {v(T + 1)}')
        C.wait('ex')
        for r in range(8):
            A(f'v_fma_f32 {v(ACCB + r)}, -{v(T)}, {v(EX + r)}, {v(ACCB + r)}')
        A(f'v_mul_f32 {v(T + 2)}, {f32(QSCALE)}, {v(T + 1)}')
        for r in range(8):
            A(f'v_mul_f32 {v(ACCB + r)}, {v(T + 2)}, {v(ACCB + r)}')
        for m in range(4):
            A(f'v_cvt_pk_bf16_f32 {v(P + m)}, {v(ACCB + 2 * m)}, {v(ACCB + 2 * m + 1)}')
        A(f's_add_u32 s31, s49, {C.qf}')
        C.vmem(f'buffer_store_dwordx4 {v(P, 4)}, v3, s[8:11], s31 offen{QWT}', 'st')
        le, lv = C.lab('ke'), C.lab('v')
        A('s_cmp_lg_u32 s29, s24')
        A(f's_cbranch_scc1 {le}')
        A('s_bfe_u32 s34, s20, 0x10001')
        A('s_lshl_b32 s30, s34, 14')
        A('s_lshl_b32 s31, s26, 10')
        A('s_add_u32 s30, s30, s31')
        A(f's_add_u32 s30, s30, {KVRED}')
        A('v_add_u32 v4, s30, v3')
        KR = 208
        for ww in range(8):
            A(f'ds_read_b128 {v(KR + ww * 4, 4)}, v4 offset:{ww * 2048}')
        KX = EX + 8
        if raw:
            A('s_lshl_b32 s30, s34, 6')
            A('s_lshl_b32 s31, s26, 5')
            A('s_add_u32 s30, s30, s31')
            A(f's_add_u32 s30, s30, {CSK + 256}')
            A('v_add_u32 v113, s30, v112')
            A(f'ds_read_b128 {v(KX, 4)}, v113')
        A('s_add_u32 s30, s27, s29')
        A(f's_mul_i32 s30, s30, {KVG}')
        A(f's_add_u32 s30, s30, {kvf}')
        A('v_bfe_u32 v4, v1, 4, 1')
        A(f'v_mul_u32_u24 v4, {VBS}, v4')
        A('v_bfe_u32 v5, v1, 2, 1')
        A('v_lshl_add_u32 v4, v5, 8, v4')
        A('v_and_b32 v5, 3, v1')
        A('v_lshl_add_u32 v4, v5, 1, v4')
        A('v_bfe_u32 v5, v1, 3, 1')
        A('v_lshl_add_u32 v4, v5, 3, v4')
        A('v_lshrrev_b32 v5, 5, v1')
        A('v_lshl_add_u32 v4, v5, 6, v4')
        A('s_waitcnt lgkmcnt(0)')
        for stp in (16, 8, 4):
            for r in range(stp):
                A(f'v_add_f32 {v(KR + r)}, {v(KR + r)}, {v(KR + stp + r)}')
        for r in range(4):
            A(f'v_fma_f32 {v(KR + r)}, -{v(T)}, {v(KX + r)}, {v(KR + r)}')
        for r in range(4):
            A(f'v_mul_f32 {v(KR + r)}, {v(T + 1)}, {v(KR + r)}')
        KP = KR + 8
        for m in range(2):
            A(f'v_cvt_pk_bf16_f32 {v(KP + m)}, {v(KR + 2 * m)}, {v(KR + 2 * m + 1)}')
        A('s_cmp_lg_u32 s34, 0')
        A(f's_cbranch_scc1 {lv}')
        A('s_lshl_b32 s31, s26, 3')
        A('s_add_u32 s31, s31, s30')
        A(f'buffer_store_dwordx2 {v(KP, 2)}, v3, s[8:11], s31 offen{QWT}')
        A(f's_branch {le}')
        A.label(lv)
        A('s_lshl_b32 s31, s26, 7')
        A('s_add_u32 s31, s31, s30')
        for r in range(4):
            op = 'buffer_store_short' if r % 2 == 0 else 'buffer_store_short_d16_hi'
            A(f'{op} {v(KP + r // 2)}, v4, s[8:11], s31 offen offset:{1024 + r * 16}{QWT}')
        A.label(le)
    else:
        for m in range(4):
            A(f'v_cvt_pk_bf16_f32 {v(P + m)}, {v(ACCB + 2 * m)}, {v(ACCB + 2 * m + 1)}')
        if mode == 'res':
            A(f's_add_u32 s31, s49, {outbase}')
            C.vmem(f'buffer_store_dwordx4 {v(P, 4)}, v3, s[8:11], s31 offen{WT}', 'st')
            blk_stats(C, P, T)
            A('s_lshr_b32 s31, s49, 2')
            A(f's_add_u32 s31, s31, {sxout}')
            A('v_lshlrev_b32 v4, 3, v1')
            A('s_mov_b32 exec_hi, 0')
            C.vmem(f'buffer_store_dwordx2 {v(T, 2)}, v4, s[8:11], s31 offen{WT}', 'st')
            A('s_mov_b64 exec, -1')
            if after_store:
                after_store()
        else:
            A('v_and_b32 v4, 31, v1')
            A('v_lshlrev_b32 v4, 10, v4')
            A('v_lshrrev_b32 v5, 5, v1')
            A('v_lshl_add_u32 v4, v5, 4, v4')
            A('s_add_u32 s30, s27, s29')
            A('s_lshl_b32 s30, s30, 15')
            A('s_lshl_b32 s31, s28, 6')
            A('s_add_u32 s30, s30, s31')
            A('s_lshl_b32 s31, s26, 5')
            A('s_add_u32 s30, s30, s31')
            A(f'v_permlane32_swap_b32 {v(P)}, {v(P + 2)}')
            A(f'v_permlane32_swap_b32 {v(P + 1)}, {v(P + 3)}')
            C.vmem(f'buffer_store_dwordx4 {v(P, 4)}, v4, s[12:15], s30 offen', 'st')


def qkv_wstep(C, st, n=1):
    A = C.A
    if st == 0:
        g3_waddr(C, (5, 6), 32, WQKVP)
    per = -(-8 // n)
    for i in range(st * per, min(8, (st + 1) * per)):
        g3_wload(C, (5, 6), i, 128)
    if st == n:
        A('s_lshl_b32 s30, s20, 12')
        A(f's_add_u32 s30, s30, {WQKVP + 16 * 32 * KB}')
        l = C.lab('kw')
        A('s_cmp_ge_u32 s24, 2')
        A(f's_cbranch_scc1 {l}')
        for k in range(4):
            A(f'buffer_load_dwordx4 {v(KVW + 4 * k, 4)}, v3, s[8:11], s30 offen offset:{k * 1024}')
        A.label(l)


def qkv_wloads(C):
    qkv_wstep(C, 0)
    qkv_wstep(C, 1)


RED4, KVR4, ST4 = 32 * KB, 48 * KB, 80 * KB
G4_ORD = [0, 1, 4, 5, 8, 9, 12, 13, 2, 3, 6, 7, 10, 11, 14, 15]


def g4_ids(C):
    A = C.A
    A('s_and_b32 s18, s22, 3')
    A('s_lshl_b32 s30, s21, 2')
    A('s_add_u32 s18, s18, s30')
    A('s_and_b32 s30, s22, 12')
    A('s_add_u32 s30, s30, s25')
    A('s_lshl_b32 s30, s30, 1')
    A('s_add_u32 s30, s30, s26')
    A('s_lshl_b32 s19, s18, 5')
    A('s_add_u32 s19, s19, s30')
    A('s_lshl_b32 s19, s19, 10')


def g4_waddr(C, vreg, wbase):
    A = C.A
    A('s_lshl_b32 s30, s26, 8')
    A(f'v_xor_b32 {v(vreg)}, s30, v3')
    A('s_and_b32 s30, s19, 0x7fff')
    A('s_lshl_b32 s30, s30, 4')
    A(f's_add_u32 s30, s30, {wbase}')
    A(f'v_add_u32 {v(vreg)}, s30, {v(vreg)}')


def g4_wreg(mode, i):
    if mode == 'qkv':
        return 128 + 4 * i
    return 224 + 4 * i if i < 8 else 64 + 4 * (i - 8)


def g4_wload(C, vreg, i, mode):
    so, im = soff(G4_ORD[i])
    C.vmem(f'buffer_load_dwordx4 {v(g4_wreg(mode, i), 4)}, {v(vreg)}, s[8:11], {so} offen offset:{im}', 'w')


def g4_pre(C, mode, xbase, resbase=None):
    A = C.A
    EX = 96
    A('s_lshl_b32 s30, s18, 15')
    A('s_lshl_b32 s48, s20, 12')
    A('s_add_u32 s30, s30, s48')
    A(f's_add_u32 s30, s30, {xbase}')
    A('v_add_u32 v5, s30, v3')
    A('s_lshl_b32 s30, s26, 14')
    A('v_add_u32 v6, s30, v3')
    A('s_lshl_b32 s30, s20, 11')
    A('v_add_u32 v8, s30, v3')
    A('v_xor_b32 v7, 0x2000, v8')
    if mode == 'qkv':
        A('v_lshrrev_b32 v2, 5, v1')
        A('v_lshlrev_b32 v4, 4, v2')
        A('s_and_b32 s31, s19, 0x7fff')
        A('s_lshr_b32 s31, s31, 4')
        A(f's_add_u32 s31, s31, {CSQKV}')
        C.vmem(f'buffer_load_dwordx4 {v(EX, 4)}, v4, s[8:11], s31 offen', 'ex')
        C.vmem(f'buffer_load_dwordx4 {v(EX + 4, 4)}, v4, s[8:11], s31 offen offset:32', 'ex')
        A('s_lshl_b32 s31, s25, 5')
        A(f's_add_u32 s31, s31, {CSQKV + 2048}')
        C.vmem(f'buffer_load_dwordx4 {v(EX + 8, 4)}, v4, s[8:11], s31 offen', 'ex')
        A('v_and_b32 v9, 31, v1')
        A('v_lshlrev_b32 v9, 3, v9')
        A(f'v_add_u32 v11, {ST4}, v9')
        A('s_lshl_b32 s30, s20, 8')
        A('v_add_u32 v10, s30, v11')
        A('v_lshl_add_u32 v9, v2, 9, v9')
        A('s_lshl_b32 s30, s18, 13')
        A('s_lshl_b32 s31, s20, 10')
        A('s_add_u32 s30, s30, s31')
        A(f's_add_u32 s30, s30, {resbase}')
        A('v_add_u32 v9, s30, v9')
        A('v_add_u32 v12, s48, v3')
        A('s_lshl_b32 s30, s25, 13')
        A('v_add_u32 v13, s30, v3')
        A('s_lshl_b32 s30, s20, 10')
        A('v_add_u32 v14, s30, v3')
        A('v_bfe_u32 v15, v1, 4, 1')
        A('v_lshlrev_b32 v15, 9, v15')
        A('v_bfe_u32 v4, v1, 2, 1')
        A('v_lshl_add_u32 v15, v4, 8, v15')
        A('v_and_b32 v4, 3, v1')
        A('v_lshl_add_u32 v15, v4, 1, v15')
        A('v_bfe_u32 v4, v1, 3, 1')
        A('v_lshl_add_u32 v15, v4, 3, v15')
        A('v_lshl_add_u32 v15, v2, 6, v15')
    elif resbase is None:
        A('v_and_b32 v2, 31, v1')
        A('v_lshlrev_b32 v2, 10, v2')
        A('v_lshrrev_b32 v4, 5, v1')
        A('v_lshl_add_u32 v2, v4, 3, v2')
        A('s_lshl_b32 s30, s18, 15')
        A('s_and_b32 s31, s19, 0x7fff')
        A('s_lshr_b32 s31, s31, 5')
        A('s_add_u32 s30, s30, s31')
        C.vmem(f'buffer_load_dwordx2 {v(EX, 2)}, v2, s[12:15], s30 offen', 'ex')
        C.vmem(f'buffer_load_dwordx2 {v(EX + 2, 2)}, v2, s[12:15], s30 offen offset:16', 'ex')
    else:
        A(f's_add_u32 s31, s19, {resbase}')
        C.vmem(f'buffer_load_dwordx4 {v(EX, 4)}, v3, s[8:11], s31 offen', 'ex')


def ln_stats(A, T):
    for stp in (8, 4, 2):
        for e in range(stp):
            A(f'v_add_f32 {v(T + e)}, {v(T + e)}, {v(T + e + stp)}')
    A(f'v_mul_f32 {v(T)}, {f32(1.0 / 512)}, {v(T)}')
    A(f'v_mul_f32 {v(T + 1)}, {f32(1.0 / 512)}, {v(T + 1)}')
    A(f'v_fma_f32 {v(T + 1)}, -{v(T)}, {v(T)}, {v(T + 1)}')
    A(f'v_max_f32 {v(T + 1)}, 0, {v(T + 1)}')
    A(f'v_add_f32 {v(T + 1)}, {f32(1e-5)}, {v(T + 1)}')
    A(f'v_rsq_f32 {v(T + 1)}, {v(T + 1)}')


def g4_main(C, mode, outbase=None, sxout=None, kvf=None, kfl=None, hook_red=None):
    A = C.A
    ACC, XR, EX = 16, 32, 96
    KW, KA, KR, T = 192, 208, 224, 108
    A('s_mov_b32 m0, s48')
    A('s_nop 0')
    for k in range(4):
        C.vmem(f'buffer_load_dwordx4 v5, s[8:11], 0 offen offset:{k * 1024} lds', f'x{k}')

    def rd(i):
        A(f'ds_read_b128 {v(XR + 4 * (i % 8), 4)}, v6 offset:{G4_ORD[i] * 1024}')

    def mf(i):
        c = '0' if i == 0 else v(ACC, 16)
        A(f'v_mfma_f32_32x32x16_bf16 {v(ACC, 16)}, {v(g4_wreg(mode, i), 4)}, {v(XR + 4 * (i % 8), 4)}, {c}')

    if mode == 'qkv':
        for e in range(2):
            C.vmem(f'buffer_load_dwordx2 {v(T + 2 * e, 2)}, v9, s[8:11], 0 offen offset:{e * 256}', 'sx')
        A('s_lshr_b32 s30, s22, 2')
        A('s_add_u32 s35, s30, s26')
        A('v_add_u32 v2, 0x4000, v14')
        C.wait('sx')
        C.stamp()
        lk = C.lab('k4')
        A('s_cmp_ge_u32 s22, 4')
        A(f's_cbranch_scc1 {lk}')
        for k in range(4):
            A(f'ds_read_b128 {v(KR + 4 * k, 4)}, v12 offset:{k * 1024}')
        for k in range(4):
            A(f's_waitcnt lgkmcnt({3 - k})')
            A(f'v_mfma_f32_32x32x16_bf16 {v(KA, 16)}, {v(KW + 4 * k, 4)}, {v(KR + 4 * k, 4)}, {"0" if k == 0 else v(KA, 16)}')
        A.label(lk)
        A(f'v_add_f32 {v(T)}, {v(T)}, {v(T + 2)}')
        A(f'v_add_f32 {v(T + 1)}, {v(T + 1)}, {v(T + 3)}')
        A(f'v_mov_b32 {v(T + 2)}, {v(T)}')
        A(f'v_mov_b32 {v(T + 3)}, {v(T + 1)}')
        A('s_nop 1')
        swap_add(A, T, T + 2)
        swap_add(A, T + 1, T + 3)
        A(f'ds_write_b64 v10, {v(T, 2)}')
        A(f'v_mov_b32 {v(T + 2)}, 0')
        A(f'v_mov_b32 v9, {ST4 + 8192}')
        A(f'ds_write_b32 v9, {v(T + 2)}')
        lk = C.lab('k5')
        A('s_cmp_ge_u32 s22, 4')
        A(f's_cbranch_scc1 {lk}')
        for k in range(4):
            A(f'ds_write_b128 {"v14" if k < 2 else "v2"}, {v(KA + 4 * k, 4)} offset:{KVR4 + (k & 1) * 8192}')
        A.label(lk)
        A('s_waitcnt lgkmcnt(0)')
        A('s_barrier')
        for ww in range(8):
            A(f'ds_read_b64 {v(T + 2 * ww, 2)}, v11 offset:{ww * 256}')
        lv, le, lf = C.lab('v6'), C.lab('e6'), C.lab('f6')
        A('s_cmp_lg_u32 s35, 0')
        A(f's_cbranch_scc1 {le}')
        A('s_setprio 3')
        A('s_waitcnt lgkmcnt(4)')
        for ww in range(8):
            A(f'ds_read_b128 {v(KR + 4 * ww, 4)}, v13 offset:{KVR4 + ww * 1024}')
        A('s_waitcnt lgkmcnt(8)')
        for r in range(16):
            A(f'v_mov_b32 {v(KA + r)}, {v(T + r)}')
        ln_stats(A, KA)
        A('s_lshl_b32 s30, s18, 11')
        A(f's_add_u32 s30, s30, {kvf}')
        A('s_waitcnt lgkmcnt(0)')
        for stp in (16, 8, 4):
            for r in range(stp):
                A(f'v_add_f32 {v(KR + r)}, {v(KR + r)}, {v(KR + stp + r)}')
        for r in range(4):
            A(f'v_fma_f32 {v(KR + r)}, -{v(KA)}, {v(EX + 8 + r)}, {v(KR + r)}')
        for r in range(4):
            A(f'v_mul_f32 {v(KR + r)}, {v(KA + 1)}, {v(KR + r)}')
        for m in range(2):
            A(f'v_cvt_pk_bf16_f32 {v(KR + 8 + m)}, {v(KR + 2 * m)}, {v(KR + 2 * m + 1)}')
        A('s_cmp_ge_u32 s20, 2')
        A(f's_cbranch_scc1 {lv}')
        A('s_lshl_b32 s31, s20, 3')
        A('s_add_u32 s31, s31, s30')
        A(f'buffer_store_dwordx2 {v(KR + 8, 2)}, v3, s[8:11], s31 offen sc0 sc1')
        A(f's_branch {lf}')
        A.label(lv)
        A('s_lshl_b32 s31, s29, 10')
        A(f's_add_u32 s31, s31, {ST4 + 4096}')
        A('v_add_u32 v15, s31, v15')
        for r in range(4):
            op = 'ds_write_b16' if r % 2 == 0 else 'ds_write_b16_d16_hi'
            A(f'{op} v15, {v(KR + 8 + r // 2)} offset:{r * 16}')
        A('v_lshrrev_b32 v2, 3, v1')
        A('v_lshlrev_b32 v2, 8, v2')
        A(f'v_and_b32 {v(KR)}, 7, v1')
        A(f'v_lshl_add_u32 v2, {v(KR)}, 4, v2')
        A('v_add_u32 v15, s31, v2')
        A('s_mov_b32 exec_hi, 0')
        A(f'ds_read_b128 {v(KR + 12, 4)}, v15')
        A('s_lshl_b32 s31, s29, 7')
        A('s_add_u32 s31, s31, s30')
        A('s_waitcnt lgkmcnt(0)')
        A(f'buffer_store_dwordx4 {v(KR + 12, 4)}, v2, s[8:11], s31 offen offset:1024 sc0 sc1')
        A('s_mov_b64 exec, -1')
        A.label(lf)
        lg = C.lab('g6')
        A('s_lshl_b32 s30, s18, 7')
        A(f's_add_u32 s30, s30, {kfl}')
        A('s_mov_b64 exec, 1')
        A('s_waitcnt vmcnt(0)')
        A('ds_add_rtn_u32 v2, v9, v4')
        A('s_waitcnt lgkmcnt(0)')
        A('v_cmp_eq_u32 vcc, 3, v2')
        A('s_cbranch_vccz ' + lg)
        A('buffer_store_dword v4, v0, s[8:11], s30 offen sc0 sc1')
        A.label(lg)
        A('s_mov_b64 exec, -1')
        A('s_setprio 0')
        A.label(le)
        flag_b(C)
        A('s_waitcnt lgkmcnt(0)')
        for i in range(8):
            rd(i)
        ln_stats(A, T)
        for i in range(16):
            A(f's_waitcnt lgkmcnt({7 if i < 8 else 15 - i})')
            mf(i)
            if i < 8:
                rd(i + 8)
    else:
        C.wait('w')
        C.wait('x1')
        A('s_barrier')
        C.stamp()
        for i in range(8):
            rd(i)
        for i in range(4):
            A(f's_waitcnt lgkmcnt({7 - i})')
            mf(i)
        C.wait('x3')
        A('s_barrier')
        for i in range(8, 12):
            rd(i)
        for i in range(4, 8):
            A('s_waitcnt lgkmcnt(7)')
            mf(i)
            rd(i + 8)
        flag_b(C)
        for i in range(8, 16):
            A(f's_waitcnt lgkmcnt({15 - i})')
            mf(i)
            if hook_red and i >= 8:
                hook_red(i - 8)
    C.stamp()
    if mode == 'qkv':
        A(f'v_mul_f32 {v(T + 2)}, {f32(QSCALE)}, {v(T + 1)}')
        A('s_nop 10')
    else:
        C.wait('ex')
        TT = XR
        for m in range(4):
            A(f'v_lshlrev_b32 {v(TT + 2 * m)}, 16, {v(EX + m)}')
            A(f'v_and_b32 {v(TT + 2 * m + 1)}, 0xffff0000, {v(EX + m)}')
        A('s_nop 3')
    for h2 in range(2):
        A(f'ds_write_b128 v7, {v(ACC + 8 + 4 * h2, 4)} offset:{RED4 + h2 * 1024}')
    if mode == 'qkv':
        for r in range(8):
            A(f'v_fma_f32 {v(ACC + r)}, -{v(T)}, {v(EX + r)}, {v(ACC + r)}')
    else:
        for r in range(8):
            A(f'v_add_f32 {v(ACC + r)}, {v(ACC + r)}, {v(XR + r)}')
    A('s_waitcnt lgkmcnt(0)')
    A('s_barrier')
    for h2 in range(2):
        A(f'ds_read_b128 {v(ACC + 8 + 4 * h2, 4)}, v8 offset:{RED4 + h2 * 1024}')
    A('s_waitcnt lgkmcnt(0)')
    for r in range(8):
        A(f'v_add_f32 {v(ACC + r)}, {v(ACC + r)}, {v(ACC + 8 + r)}')
    if mode == 'qkv':
        for r in range(8):
            A(f'v_mul_f32 {v(ACC + r)}, {v(T + 2)}, {v(ACC + r)}')
        for m in range(4):
            A(f'v_cvt_pk_bf16_f32 {v(124 + m)}, {v(ACC + 2 * m)}, {v(ACC + 2 * m + 1)}')
        A('s_barrier')
    else:
        P = ACC + 8
        for m in range(4):
            A(f'v_cvt_pk_bf16_f32 {v(P + m)}, {v(ACC + 2 * m)}, {v(ACC + 2 * m + 1)}')
        A(f's_add_u32 s31, s19, {outbase}')
        C.vmem(f'buffer_store_dwordx4 {v(P, 4)}, v3, s[8:11], s31 offen{WT}', 'st')
        blk_stats(C, P, XR)
        A('s_lshr_b32 s31, s19, 2')
        A(f's_add_u32 s31, s31, {sxout}')
        A('v_lshlrev_b32 v4, 3, v1')
        A('s_mov_b32 exec_hi, 0')
        C.vmem(f'buffer_store_dwordx2 {v(XR, 2)}, v4, s[8:11], s31 offen{WT}', 'st')
        A('s_mov_b64 exec, -1')


def qkv4_wstep(C, st, n):
    A = C.A
    if st == 0:
        g4_waddr(C, 5, WQKVP)
    per = QKV_PER
    for i in range(st * per, min(16, (st + 1) * per)):
        g4_wload(C, 5, i, 'qkv')
    C.qdone = min(16, (st + 1) * per)


def qkv4_wrest(C):
    A = C.A
    for i in range(C.qdone, 16):
        g4_wload(C, 5, i, 'qkv')
    l = C.lab('kw')
    A('s_lshl_b32 s30, s20, 12')
    A(f's_add_u32 s30, s30, {WQKVP + 16 * 32 * KB}')
    A('s_cmp_ge_u32 s22, 4')
    A(f's_cbranch_scc1 {l}')
    for k in range(4):
        A(f'buffer_load_dwordx4 {v(192 + 4 * k, 4)}, v3, s[8:11], s30 offen offset:{k * 1024}')
    A.label(l)


def att_phase(C, kvf, kfl, endlab, stubs, fixed={}, pf0=None, pre_hook=None, loadq=True):
    A = C.A
    tg = C.tag
    Q, CN, S0, S1, O, P, KF, VF, VK, VV, T = 124, 8, 24, 40, 56, 72, 80, 88, 104, 105, 106
    VV1 = 111
    S = [S0, S1]
    A(f's_add_u32 s36, s19, {C.B["OF"]}')
    if loadq:
        A(f's_add_u32 s31, s19, {C.B["QF"]}')
        C.vmem(f'buffer_load_dwordx4 {v(Q, 4)}, v3, s[8:11], s31 offen', 'q')
        flag_b(C)
    A(f's_mul_i32 s37, s20, {KVT}')
    A('s_lshl_b32 s38, s20, 14')
    A(f's_add_u32 s38, s38, {kvf}')
    lp, lpd = C.lab('kp'), C.lab('kpd')
    A('v_lshlrev_b32 v0, 7, v1')
    A('s_lshl_b32 s30, s20, 10')
    A(f's_add_u32 s30, s30, {kfl}')
    A('s_mov_b32 s31, 0')
    A('s_mov_b64 exec, 0xff')
    A.label(lp)
    A('buffer_load_dword v2, v0, s[8:11], s30 offen sc1')
    A('s_add_u32 s31, s31, 1')
    A('s_waitcnt vmcnt(0)')
    A('v_cmp_ne_u32 vcc, 0, v2')
    A('s_cmp_eq_u64 vcc, 0xff')
    A(f's_cbranch_scc1 {lpd}')
    A(f's_sleep {KV_SLEEP}')
    A(f's_cmp_lt_u32 s31, {1 << 21}')
    A(f's_cbranch_scc1 {lp}')
    A(f's_branch {endlab}')
    A.label(lpd)
    A('s_mov_b64 exec, -1')
    C.vm = []
    C.stamp()

    def kvdma(r):
        A(f's_add_u32 m0, s37, {r * 8 * KVT}')
        A(f's_add_u32 s30, s38, {r * KVG}')
        C.vmem('buffer_load_dwordx4 v3, s[8:11], s30 offen lds', f'kv{r}')
        C.vmem('buffer_load_dwordx4 v3, s[8:11], s30 offen offset:1024 lds', f'kv{r}')
    for r in range(3):
        kvdma(r)
    if pre_hook:
        pre_hook()
    A(f'v_mov_b32 {v(VK)}, v3')
    A(f'v_and_b32 {v(T)}, 15, v1')
    A(f'v_lshrrev_b32 {v(T + 1)}, 5, v1')
    A(f'v_lshl_add_u32 {v(T)}, {v(T + 1)}, 4, {v(T)}')
    A(f'v_lshlrev_b32 {v(T)}, 4, {v(T)}')
    A(f'v_add_u32 {v(VV)}, 1024, {v(T)}')
    A(f'v_add_u32 {v(VV1)}, 1536, {v(T)}')
    A(f'v_and_b32 {v(T + 1)}, 31, v1')
    A(f'v_cmp_eq_u32 vcc, 16, {v(T + 1)}')
    A(f'v_mov_b32 {v(T + 2)}, 2048')
    A('s_nop 0')
    A(f'v_cndmask_b32 {v(VV)}, {v(VV)}, {v(T + 2)}, vcc')
    A(f'v_cndmask_b32 {v(VV1)}, {v(VV1)}, {v(T + 2)}, vcc')
    A(f'v_cmp_lt_u32 vcc, 16, {v(T + 1)}')
    A(f'v_mov_b32 {v(T + 2)}, 2064')
    A('s_nop 0')
    A(f'v_cndmask_b32 {v(VV)}, {v(VV)}, {v(T + 2)}, vcc')
    A(f'v_cndmask_b32 {v(VV1)}, {v(VV1)}, {v(T + 2)}, vcc')
    for r in range(16):
        A(f'v_mov_b32 {v(O + r)}, 0')
    for m in range(4, 8):
        A(f'v_mov_b32 {v(P + m)}, 0')
    for m in range(4):
        A(f'v_mov_b32 {v(VF + 12 + m)}, 0')
        A(f'v_mov_b32 {v(P + m)}, 0x3f803f80')
    A(f'v_mul_u32_u24 {v(T)}, {KVT}, v1')
    lcw = C.lab('cw')
    A('s_cmp_lg_u32 s20, 7')
    A(f's_cbranch_scc1 {lcw}')
    A(f'ds_write_b128 {v(T)}, {v(P, 4)} offset:2048')
    A(f'ds_write_b128 {v(T)}, {v(P + 4, 4)} offset:2064')
    A.label(lcw)
    C.wait('kv1', 'lgkmcnt(0)')
    A('s_barrier')
    C.stamp()

    def rdK(buf, t):
        A(f'ds_read_b128 {v(KF + buf * 4, 4)}, {v(VK)} offset:{t * KVT}')

    def rdV(buf, t):
        A(f'ds_read_b128 {v(VF + buf * 8, 4)}, {v(VV)} offset:{t * KVT}')
        A(f'ds_read_b128 {v(VF + buf * 8 + 4, 4)}, {v(VV1)} offset:{t * KVT}')

    rdK(0, 0)
    rdK(1, 1)
    rdV(0, 0)
    A('s_waitcnt lgkmcnt(3)')
    A(f'v_mfma_f32_32x32x16_bf16 {v(S0, 16)}, {v(KF, 4)}, {v(Q, 4)}, 0')
    for r in range(3, 6):
        kvdma(r)
    A(f'v_max3_f32 {v(T)}, {v(S0)}, {v(S0 + 1)}, {v(S0 + 2)}')
    for r in range(3, 15, 2):
        A(f'v_max3_f32 {v(T)}, {v(T)}, {v(S0 + r)}, {v(S0 + r + 1)}')
    A(f'v_max_f32 {v(T)}, {v(T)}, {v(S0 + 15)}')
    A(f'v_mov_b32 {v(T + 1)}, {v(T)}')
    A('s_nop 1')
    A(f'v_permlane32_swap_b32 {v(T)}, {v(T + 1)}')
    A(f'v_max_f32 {v(T)}, {v(T)}, {v(T + 1)}')
    for r in range(16):
        A(f'v_sub_f32 {v(CN + r)}, 0, {v(T)}')
    for r in range(16):
        A(f'v_sub_f32 {v(S0 + r)}, {v(S0 + r)}, {v(T)}')
    A('s_setprio 3')
    C.stamp()
    UN = ATT_UN
    NIT = 64 // UN
    queue = list(stubs)
    first_pf = 8 // UN
    pf0 = pf0 or first_pf
    per = -(-len(queue) // (NIT - pf0 - ATT_PFEND))
    prio = {int(NIT * 0.5): 2, int(NIT * 0.78): 1, NIT - 1: 0}
    for it in range(NIT):
        if it == (1 if UN == 4 else 0):
            for r in range(6, 8):
                kvdma(r)
        if it == first_pf:
            C.wait('kv7')
            A('s_barrier')
        if it in prio:
            A(f's_setprio {prio[it]}')
        if it in fixed:
            if FINE == 2:
                C.stamp()
            fixed[it]()
            if FINE == 2:
                C.stamp()
        if it >= pf0:
            for _ in range(per):
                if queue:
                    queue.pop(0)()
        A('s_call_b64 s[34:35], att_body')
    assert not queue
    A(f'v_mfma_f32_32x32x16_bf16 {v(O, 16)}, {v(VF + 8 + 4, 4)}, {v(P + 4, 4)}, {v(O, 16)}')
    A('s_mov_b32 s39, 0')
    C.stamp()
    A('s_waitcnt lgkmcnt(0)')
    A('s_nop 10')
    A.label(f'{tg}_fin')
    A(f'v_mov_b32 {v(T)}, {v(O + 8)}')
    A(f'v_mov_b32 {v(T + 1)}, {v(O + 8)}')
    A(f'v_mul_f32 {v(T + 2)}, 0, {v(O)}')
    A(f'v_fma_f32 {v(T + 2)}, {v(O + 1)}, 0, {v(T + 2)}')
    A(f'v_permlane32_swap_b32 {v(T)}, {v(T + 1)}')
    for r in range(2, 8):
        A(f'v_fma_f32 {v(T + 2)}, {v(O + r)}, 0, {v(T + 2)}')
    A(f'v_add_f32 {v(T + 2)}, {v(T + 2)}, {v(T)}')
    A(f'v_mov_b32 {v(T + 3)}, {f32(2.0 ** 30)}')
    A(f'v_cmp_nle_f32 vcc, {v(T + 2)}, {v(T + 3)}')
    A(f'v_rcp_f32 {v(T)}, {v(T)}')
    A('s_cmp_eq_u32 s39, 99')
    A(f's_cbranch_scc1 {tg}_store')
    A(f's_cbranch_vccnz {tg}_slow')
    A.label(f'{tg}_store')
    for r in range(8):
        A(f'v_mul_f32 {v(O + r)}, {v(T)}, {v(O + r)}')
    for m in range(4):
        A(f'v_cvt_pk_bf16_f32 {v(P + m)}, {v(O + 2 * m)}, {v(O + 2 * m + 1)}')
    C.vmem(f'buffer_store_dwordx4 {v(P, 4)}, v3, s[8:11], s36 offen{WT}', 'st')

    def tail(with_body):
        if with_body:
            A.raw('.p2align 6')
            A.label('att_body')
            for t in range(UN):
                cur, nxt = t & 1, (t + 1) & 1
                Sc, Sn = S[cur], S[nxt]
                A('s_waitcnt lgkmcnt(2)')
                A(f'v_mfma_f32_32x32x16_bf16 {v(Sn, 16)}, {v(KF + nxt * 4, 4)}, {v(Q, 4)}, {v(CN, 16)}')
                rdK(cur, t + 2)
                for r in range(6):
                    A(f'v_exp_f32 {v(Sc + r)}, {v(Sc + r)}')
                A(f'v_mfma_f32_32x32x16_bf16 {v(O, 16)}, {v(VF + nxt * 8 + 4, 4)}, {v(P + 4, 4)}, {v(O, 16)}')
                for r in range(6, 8):
                    A(f'v_exp_f32 {v(Sc + r)}, {v(Sc + r)}')
                for m in range(4):
                    A(f'v_cvt_pk_bf16_f32 {v(P + m)}, {v(Sc + 2 * m)}, {v(Sc + 2 * m + 1)}')
                A(f'v_exp_f32 {v(Sc + 8)}, {v(Sc + 8)}')
                A(f'v_exp_f32 {v(Sc + 9)}, {v(Sc + 9)}')
                A('s_waitcnt lgkmcnt(1)')
                A(f'v_mfma_f32_32x32x16_bf16 {v(O, 16)}, {v(VF + cur * 8, 4)}, {v(P, 4)}, {v(O, 16)}')
                rdV(nxt, t + 1)
                for r in range(10, 16):
                    A(f'v_exp_f32 {v(Sc + r)}, {v(Sc + r)}')
                for m in range(4, 8):
                    A(f'v_cvt_pk_bf16_f32 {v(P + m)}, {v(Sc + 2 * m)}, {v(Sc + 2 * m + 1)}')
            A(f'v_add_u32 {v(VK)}, {UN * KVT}, {v(VK)}')
            A(f'v_add_u32 {v(VV)}, {UN * KVT}, {v(VV)}')
            A(f'v_add_u32 {v(VV1)}, {UN * KVT}, {v(VV1)}')
            A('s_setpc_b64 s[34:35]')
        A.label(f'{tg}_slow')
        A(f'v_subrev_u32 {v(VK)}, {64 * KVT}, {v(VK)}')
        A(f'v_subrev_u32 {v(VV)}, {64 * KVT}, {v(VV)}')
        A(f'v_subrev_u32 {v(VV1)}, {64 * KVT}, {v(VV1)}')
        for r in range(16):
            A(f'v_mov_b32 {v(O + r)}, 0')
        M = T + 4
        A(f'v_sub_f32 {v(M)}, 0, {v(CN)}')
        A.label(f'{tg}_sloop')
        rdK(0, 0)
        rdV(0, 0)
        A('s_waitcnt lgkmcnt(0)')
        A(f'v_mfma_f32_32x32x16_bf16 {v(S0, 16)}, {v(KF, 4)}, {v(Q, 4)}, 0')
        A('s_nop 11')
        A(f'v_max3_f32 {v(T)}, {v(S0)}, {v(S0 + 1)}, {v(S0 + 2)}')
        for r in range(3, 15, 2):
            A(f'v_max3_f32 {v(T)}, {v(T)}, {v(S0 + r)}, {v(S0 + r + 1)}')
        A(f'v_max3_f32 {v(T)}, {v(T)}, {v(S0 + 15)}, {v(M)}')
        A(f'v_mov_b32 {v(T + 1)}, {v(T)}')
        A('s_nop 1')
        A(f'v_permlane32_swap_b32 {v(T)}, {v(T + 1)}')
        A(f'v_max_f32 {v(T)}, {v(T)}, {v(T + 1)}')
        A(f'v_sub_f32 {v(T + 1)}, {v(M)}, {v(T)}')
        A(f'v_exp_f32 {v(T + 1)}, {v(T + 1)}')
        A(f'v_mov_b32 {v(M)}, {v(T)}')
        for r in range(16):
            A(f'v_sub_f32 {v(S0 + r)}, {v(S0 + r)}, {v(T)}')
        for r in range(16):
            A(f'v_exp_f32 {v(S0 + r)}, {v(S0 + r)}')
        for r in range(16):
            A(f'v_mul_f32 {v(O + r)}, {v(T + 1)}, {v(O + r)}')
        for m in range(8):
            A(f'v_cvt_pk_bf16_f32 {v(P + m)}, {v(S0 + 2 * m)}, {v(S0 + 2 * m + 1)}')
        A('s_nop 1')
        A(f'v_mfma_f32_32x32x16_bf16 {v(O, 16)}, {v(VF, 4)}, {v(P, 4)}, {v(O, 16)}')
        A(f'v_mfma_f32_32x32x16_bf16 {v(O, 16)}, {v(VF + 4, 4)}, {v(P + 4, 4)}, {v(O, 16)}')
        A(f'v_add_u32 {v(VK)}, {KVT}, {v(VK)}')
        A(f'v_add_u32 {v(VV)}, {KVT}, {v(VV)}')
        A(f'v_add_u32 {v(VV1)}, {KVT}, {v(VV1)}')
        A('s_nop 11')
        A('s_add_u32 s39, s39, 1')
        A('s_cmp_lt_u32 s39, 64')
        A(f's_cbranch_scc1 {tg}_sloop')
        A('s_mov_b32 s39, 99')
        A(f's_branch {tg}_fin')
    return tail


V_WGU = 112


def gu_waddr(C):
    A = C.A
    A('s_mul_i32 s30, s22, 7')
    A('s_min_u32 s31, s20, 6')
    A('s_add_u32 s40, s30, s31')
    A('s_lshl_b32 s30, s40, 15')
    A(f's_add_u32 s30, s30, {WGUP}')
    A(f'v_add_u32 {v(V_WGU)}, s30, v3')


def gu_wload(C, ks):
    so, im = soff(ks)
    C.vmem(f'buffer_load_dwordx4 {v(128 + 4 * ks, 4)}, {v(V_WGU)}, s[8:11], {so} offen offset:{im}', 'wg')


def gu_pre(C):
    A = C.A
    CS = 112
    A('v_mov_b32 v15, v113')
    A('v_mov_b32 v9, v114')
    A(f'v_mov_b32 v14, {v(V_WGU)}')
    A('s_lshl_b32 s30, s21, 2')
    A('s_add_u32 s30, s30, s25')
    A('s_lshl_b32 s30, s30, 15')
    A('s_lshl_b32 s31, s26, 11')
    A('s_add_u32 s30, s30, s31')
    A(f's_add_u32 s30, s30, {C.B["XB"]}')
    A('v_add_u32 v13, s30, v3')
    A('s_lshl_b32 s48, s25, 15')
    A('s_add_u32 s48, s48, s31')
    A('v_add_u32 v7, 0x10000, v3')
    A('v_lshrrev_b32 v11, 5, v1')
    A('v_lshlrev_b32 v11, 4, v11')
    A('s_min_u32 s30, s20, 6')
    A('s_lshl_b32 s30, s30, 7')
    A(f's_add_u32 s30, s30, {130 * KB}')
    A('v_add_u32 v10, s30, v11')
    A('v_and_b32 v12, 31, v1')
    A('v_lshlrev_b32 v12, 3, v12')
    A('v_lshl_add_u32 v12, v11, 8, v12')
    A('s_lshl_b32 s30, s21, 15')
    A(f's_add_u32 s30, s30, {C.B["SXB"]}')
    A('v_add_u32 v12, s30, v12')
    A('v_lshlrev_b32 v8, 3, v1')
    A(f'v_add_u32 v8, {128 * KB}, v8')


def gu_main(C, after_store=None):
    A = C.A
    ACC, XF, CS = 16, 80, 112

    def dma(c):
        A(f's_add_u32 m0, s48, {c * 4096}')
        so = '0' if c == 0 else s(40 + c)
        A('s_nop 0')
        for k in range(2):
            C.vmem(f'buffer_load_dwordx4 v13, s[8:11], {so} offen offset:{k * 1024} lds', f'x{c}')
    dma(0)
    dma(1)

    def rd(ks):
        buf = ks & 1
        for i in range(4):
            base = 'v3' if i < 2 else 'v7'
            A(f'ds_read_b128 {v(XF + buf * 16 + i * 4, 4)}, {base} offset:{(i & 1) * 32768 + ks * 1024}')

    def stats_load(i):
        for e in range(16):
            C.vmem(f'buffer_load_dwordx2 {v(ACC + (i & 1) * 32 + 2 * e, 2)}, v12, s[8:11], {"0" if i == 0 else s(40 + 2 * i)} offen offset:{e * 256}', f's{i}')

    def stats_sum(i):
        b = ACC + (i & 1) * 32
        C.wait(f's{i}')
        for stp in (16, 8, 4, 2):
            for e in range(stp):
                A(f'v_add_f32 {v(b + e)}, {v(b + e)}, {v(b + e + stp)}')
        A(f'v_mov_b32 {v(b + 2)}, {v(b)}')
        A(f'v_mov_b32 {v(b + 3)}, {v(b + 1)}')
        A('s_nop 1')
        A(f'v_permlane32_swap_b32 {v(b)}, {v(b + 2)}')
        A(f'v_permlane32_swap_b32 {v(b + 1)}, {v(b + 3)}')
        A(f'v_add_f32 {v(b)}, {v(b)}, {v(b + 2)}')
        A(f'v_add_f32 {v(b + 1)}, {v(b + 1)}, {v(b + 3)}')
        A(f'v_mul_f32 {v(b)}, {f32(-1.0 / 512)}, {v(b)}')
        A(f'v_mul_f32 {v(b + 1)}, {f32(1.0 / 512)}, {v(b + 1)}')
        A(f'v_fma_f32 {v(b + 1)}, -{v(b)}, {v(b)}, {v(b + 1)}')
        A(f'v_max_f32 {v(b + 1)}, 0, {v(b + 1)}')
        A(f'v_add_f32 {v(b + 1)}, {f32(1e-5)}, {v(b + 1)}')
        A(f'v_rcp_f32 {v(b + 1)}, {v(b + 1)}')
        A('s_nop 0')
        A(f'ds_write_b64 v8, {v(b, 2)} offset:{i * 512}')
        A('s_waitcnt lgkmcnt(0)')

    def loop(idle):
        C.wait('x0')
        A('s_barrier')
        C.stamp()
        if not idle:
            rd(0)
        for ks in range(32):
            if ks + 1 < 32:
                if (ks + 1) in GU_BARS:
                    C.wait(f'x{GU_BARS[ks + 1]}')
                    A('s_barrier')
                if not idle:
                    rd(ks + 1)
                    if ks == 28:
                        for g in range(4):
                            A(f'ds_read_b128 {v(CS + g * 4, 4)}, v10 offset:{g * 32}')
                        A('s_waitcnt lgkmcnt(8)')
                    elif ks == 30:
                        for i in range(4):
                            A(f'ds_read_b64 {v(4 + 2 * i, 2)}, v8 offset:{i * 512}' if i < 2 else f'ds_read_b64 {v(10 + 2 * (i - 2), 2)}, v8 offset:{i * 512}')
                        A('s_waitcnt lgkmcnt(8)')
                    else:
                        A('s_waitcnt lgkmcnt(4)')
            elif not idle:
                A('s_waitcnt lgkmcnt(0)')
            buf = ks & 1
            todo = []
            if ks == 10:
                C.flagb = True
                flag_b(C)
            if ks < 6:
                todo.append(lambda: dma(ks + 2))
            if ks == 16 + WO_TAIL and not idle:
                C.wait('wg')
            if 6 <= ks < 6 + 16 - WO_TAIL and not idle:
                k2 = 16 + WO_TAIL + ks - 6
                so, im = soff(k2)
                todo.append(lambda k2=k2, so=so, im=im: C.vmem(f'buffer_load_dwordx4 {v(128 + 4 * k2, 4)}, v14, s[8:11], {so} offen offset:{im}', 'wg'))
            if ks >= GU_WD0:
                nleft = 28 - len(wdone)
                for st in [st for st in range(28) if st < ks and st not in wdone][:(2 if nleft > 31 - ks else 1)]:
                    todo.append(lambda st=st: g3_wload(C, (15, 9), st, 128))
                    wdone.add(st)
            for i in range(4):
                if not idle:
                    c = '0' if ks == 0 else v(ACC + i * 16, 16)
                    if GU16:
                        for t2 in range(2):
                            aa = ACC + i * 16 + ((ks & 1) * 2 + t2) * 4
                            A(f'v_mfma_f32_16x16x32_bf16 {v(aa, 4)}, {v(128 + 4 * (ks ^ t2 if ks > 1 else ks), 4)}, {v(XF + buf * 16 + i * 4, 4)}, {"0" if ks < 2 else v(aa, 4)}')
                    else:
                        A(f'v_mfma_f32_32x32x16_bf16 {v(ACC + i * 16, 16)}, {v(128 + 4 * ks, 4)}, {v(XF + buf * 16 + i * 4, 4)}, {c}')
                if i < 3 and todo:
                    f_ = todo.pop(0)
                    if not (GU_NOW and ks >= 6):
                        f_()
            if idle:
                if ks == 6:
                    stats_load(0)
                    stats_load(1)
                if ks == 8:
                    stats_sum(0)
                    stats_load(2)
                    stats_sum(1)
                    stats_load(3)
                if ks == 12:
                    stats_sum(2)
                    stats_sum(3)
                    A(f's_mul_i32 s30, s22, {7 * 128}')
                    A(f's_add_u32 s30, s30, {CSP}')
                    for kp in range(8):
                        C.vmem(f'buffer_load_dwordx4 {v(ACC + 4 * kp, 4)}, v3, s[8:11], s30 offen', 'cp')
                        if kp < 7:
                            A(f's_add_u32 s30, s30, {3584 * 4}')
                if ks == 16:
                    C.wait('cp')
                    for stp in (16, 8, 4):
                        for e in range(stp):
                            A(f'v_add_f32 {v(ACC + e)}, {v(ACC + e)}, {v(ACC + e + stp)}')
                    A(f'v_add_u32 v10, {130 * KB}, v3')
                    A(f'ds_write_b128 v10, {v(ACC, 4)}')
                    A('s_waitcnt lgkmcnt(0)')
        assert len(wdone) == 28
        C.stamp()
        if idle:
            if after_store:
                after_store()
            return
        P = XF
        A(f's_mul_i32 s30, s21, {4 * 112}')
        A('s_add_u32 s30, s30, s40')
        A('s_lshl_b32 s30, s30, 10')
        A(f's_add_u32 s30, s30, {C.B["HF"]}')
        A('s_nop 4')
        for i in range(4):
            acc = ACC + i * 16
            st = v(4 + 2 * i, 2) if i < 2 else v(10 + 2 * (i - 2), 2)
            for r in range(0, 16, 2):
                A(f'v_pk_fma_f32 {v(acc + r, 2)}, {st}, {v(CS + r, 2)}, {v(acc + r, 2)} op_sel_hi:[0,1,1]')
            for r in range(0, 8, 2):
                A(f'v_pk_mul_f32 {v(acc + r, 2)}, {v(acc + r, 2)}, {v(acc + 8 + r, 2)}')
            for r in range(0, 8, 2):
                A(f'v_pk_mul_f32 {v(acc + r, 2)}, {v(acc + r, 2)}, {st} op_sel:[0,1] op_sel_hi:[1,1]')
            pp = P + i * 4
            for m in range(4):
                A(f'v_cvt_pk_bf16_f32 {v(pp + m)}, {v(acc + 2 * m)}, {v(acc + 2 * m + 1)}')
            C.vmem(f'buffer_store_dwordx4 {v(pp, 4)}, v3, s[8:11], s30 offen{WT}', 'st')
            if i < 3:
                A(f's_add_u32 s30, s30, {112 * KB}')
        if after_store:
            after_store()

    ls, le = C.lab('gs'), C.lab('ge')
    A('s_cmp_eq_u32 s20, 7')
    A(f's_cbranch_scc1 {ls}')
    save, ns = list(C.vm), C.nstamp
    wdone = set()
    loop(False)
    A(f's_branch {le}')
    A.label(ls)
    C.vm, C.nstamp = list(save), ns
    wdone = set()
    loop(True)
    A.label(le)
    C.vm = ['st']


def swap_add(A, ra, rb):
    A(f'v_permlane32_swap_b32 {v(ra)}, {v(rb)}')
    A(f'v_add_f32 {v(ra)}, {v(ra)}, {v(rb)}')


def pre_part(C, end):
    A = C.A
    A('s_cmp_ge_u32 s2, 256')
    A(f's_cbranch_scc1 {end}')
    A('s_load_dwordx2 s[12:13], s[0:1], 0')
    A('s_load_dwordx2 s[16:17], s[0:1], 8')
    A('s_load_dwordx2 s[52:53], s[0:1], 16')
    A('s_load_dwordx2 s[56:57], s[0:1], 24')
    A('s_load_dwordx2 s[4:5], s[0:1], 80')
    for d, sz in ((12, 2048 * 1024), (16, 512 * 1024), (52, 512 * 32), (56, 512 * 32), (4, 256)):
        A(f's_mov_b32 {s(d + 2)}, {sz}')
        A(f's_mov_b32 {s(d + 3)}, 0x20000')
    setup(C, False, end)
    C.stamp()
    A('s_lshl_b32 s30, s22, 3')
    A('s_add_u32 s39, s30, s20')
    A('s_cmp_lg_u32 s39, 7')
    A('s_cbranch_scc1 pr_z0')
    for r in range(4):
        A(f'v_mov_b32 {v(8 + r)}, 0')
    A('v_lshrrev_b32 v4, 4, v1')
    A('v_and_b32 v5, 15, v1')
    A('v_lshlrev_b32 v5, 4, v5')
    A('v_lshl_add_u32 v4, v4, 12, v5')
    A('s_lshl_b32 s30, s21, 8')
    A(f's_add_u32 s30, s30, {FLG}')
    for k in range(3):
        A('buffer_store_dwordx4 v[8:11], v4, s[8:11], s30 offen sc0 sc1')
        A('s_add_u32 s30, s30, 16384')
    A('v_lshlrev_b32 v4, 7, v1')
    A(f's_mul_i32 s30, s21, {60 * 128}')
    A(f's_add_u32 s30, s30, {PFL}')
    A('s_mov_b32 exec_hi, 0x0fffffff')
    A('buffer_store_dwordx4 v[8:11], v4, s[8:11], s30 offen sc0 sc1')
    A('s_mov_b64 exec, -1')
    A('s_nop 1')
    A.label('pr_z0')
    PK, KST = 192, 224
    A('s_lshl_b32 s48, s20, 14')
    A('v_lshrrev_b32 v4, 3, v1')
    A('v_and_b32 v5, 7, v1')
    A('v_lshrrev_b32 v6, 4, v1')
    A('v_xor_b32 v6, v6, v5')
    A('v_lshlrev_b32 v7, 10, v4')
    A('v_lshl_add_u32 v8, v6, 4, v7')
    A('v_xor_b32 v9, 64, v8')
    A('v_lshl_add_u32 v10, v5, 4, v7')
    A('s_lshl_b32 s30, s27, 15')
    A('s_lshl_b32 s31, s20, 7')
    A('s_add_u32 s30, s30, s31')
    A('s_lshl_b32 s31, s20, 16')
    A('s_lshl_b32 s32, s24, 7')
    A('s_add_u32 s31, s31, s32')
    for i in range(8):
        A(f's_add_u32 m0, s48, {i * 1024}')
        A('s_nop 0')
        C.vmem(f'buffer_load_dwordx4 {v(8 + (i & 1))}, s[12:15], s30 offen lds', 'x')
        A('s_add_u32 s30, s30, 8192')
    for i in range(8):
        A(f's_add_u32 m0, s48, {8192 + i * 1024}')
        A('s_nop 0')
        C.vmem('buffer_load_dwordx4 v10, s[16:19], s31 offen lds', 'wq')
        A('s_add_u32 s31, s31, 8192')
    A('s_lshl_b32 s30, s20, 11')
    A('s_cmp_ge_u32 s24, 2')
    A('s_cbranch_scc1 pr_k0')
    for k in range(4):
        A(f'buffer_load_dwordx4 {v(KST + 4 * k, 4)}, v3, {"s[52:55]" if k < 2 else "s[56:59]"}, s30 offen offset:{(k & 1) * 1024}')
    A.label('pr_k0')
    C.stamp()
    A('v_and_b32 v112, 31, v1')
    A('v_lshrrev_b32 v113, 5, v1')
    A('v_lshlrev_b32 v114, 7, v112')
    A('v_lshl_add_u32 v114, v113, 3, v114')
    A('v_bfe_u32 v115, v1, 1, 3')
    A('v_lshl_add_u32 v114, v115, 4, v114')
    A('s_lshl_b32 s30, s29, 12')
    A('s_add_u32 s30, s30, s48')
    A('v_add_u32 v115, s30, v114')
    A('v_xor_b32 v114, 4096, v115')
    A('v_bfe_u32 v116, v1, 2, 2')
    A('v_lshl_add_u32 v116, v113, 2, v116')
    A('v_and_b32 v117, 3, v1')
    A('v_lshlrev_b32 v117, 3, v117')
    A('v_bfe_u32 v118, v1, 4, 1')
    A('v_lshl_add_u32 v119, v116, 7, v117')
    A('v_lshl_add_u32 v119, v118, 5, v119')
    A('s_lshl_b32 s30, s26, 5')
    A('s_and_b32 s31, s28, 1')
    A('s_lshl_b32 s31, s31, 6')
    A('s_add_u32 s30, s30, s31')
    A('v_xor_b32 v120, s30, v119')
    A('s_add_u32 s30, s48, 8192')
    A('v_add_u32 v120, s30, v120')
    A('v_xor_b32 v121, 64, v120')
    A('v_lshl_add_u32 v122, v116, 5, v117')
    A('v_lshl_add_u32 v122, v118, 11, v122')
    A('v_add_u32 v122, s48, v122')
    A('v_add_u32 v123, s48, v3')
    A('v_mov_b32 v124, 0x3f803f80')
    g3_pre(C, 'qkv', 32, XA, raw=True)
    C.wait('x')
    C.stamp()
    for hh in range(2):
        for ch in range(8):
            A(f'v_xor_b32 {v(240 + ch)}, {ch << 4}, {v(114 + hh)}')
        for ch in range(8):
            A(f'ds_read_b64 {v(80 + hh * 16 + ch * 2, 2)}, {v(240 + ch)}')
        A('s_waitcnt lgkmcnt(0)' if hh else 's_waitcnt lgkmcnt(6)')
    SA = 248
    for r in range(16):
        for hh in range(2):
            x = v(80 + hh * 16 + r)
            A(f'v_dot2_f32_bf16 {v(SA + 2 * hh)}, {x}, v124, {"0" if r == 0 else v(SA + 2 * hh)}')
            A(f'v_dot2_f32_bf16 {v(SA + 2 * hh + 1)}, {x}, {x}, {"0" if r == 0 else v(SA + 2 * hh + 1)}')
    A('v_lshlrev_b32 v2, 3, v1')
    A('s_xor_b32 s30, s29, 1')
    A('s_lshl_b32 s30, s30, 8')
    A('v_xor_b32 v2, s30, v2')
    A('s_lshl_b32 s30, s20, 9')
    A(f's_add_u32 s30, s30, {STAT}')
    A('v_add_u32 v2, s30, v2')
    swap_add(A, SA, SA + 2)
    swap_add(A, SA + 1, SA + 3)
    A(f'ds_write_b64 v2, {v(SA, 2)}')
    A('v_lshlrev_b32 v127, 2, v1')
    A('s_and_b32 s30, s28, 1')
    A('s_lshl_b32 s30, s30, 7')
    A('s_lshl_b32 s31, s26, 6')
    A('s_add_u32 s30, s30, s31')
    A('v_xor_b32 v125, s30, v127')
    A('s_mul_i32 s30, s20, 384')
    A(f's_add_u32 s30, s30, {CSX}')
    A('v_add_u32 v125, s30, v125')
    A('v_and_b32 v126, 0x7c, v127')
    A('v_add_u32 v126, s30, v126')
    A(f'v_add_u32 v127, {CSX}, v127')
    A('s_waitcnt vmcnt(0)')
    C.vm = []
    A('s_cmp_lg_u32 s39, 7')
    A('s_cbranch_scc1 pr_z1')
    A('v_mov_b32 v2, 0')
    A('v_mov_b32 v4, 1')
    A('s_mov_b64 exec, 1')
    A('buffer_atomic_add v4, v2, s[4:7], 0 offen sc1')
    A('s_mov_b64 exec, -1')
    A.label('pr_z1')
    C.stamp()
    for st in range(4):
        for jj in range(2):
            for h2 in range(2):
                A(f'ds_read_b64_tr_b16 {v(128 + 4 * (2 * st + jj) + 2 * h2, 2)}, {v(120 + jj)} offset:{st * 2048 + h2 * 1024}')
        if st == 2:
            A('s_waitcnt lgkmcnt(6)')
    A('s_cmp_ge_u32 s24, 2')
    A('s_cbranch_scc1 pr_k1')
    for k in range(4):
        A(f'ds_write_b128 v123, {v(KST + 4 * k, 4)} offset:{k * 1024}')
    A('s_waitcnt lgkmcnt(4)')
    for st in range(4):
        for h2 in range(2):
            A(f'ds_read_b64_tr_b16 {v(KVW + 4 * st + 2 * h2, 2)}, v122 offset:{st * 512 + h2 * 256}')
    A('s_waitcnt lgkmcnt(0)')
    for r in range(8):
        for e in range(2):
            A(f'v_dot2_f32_bf16 {v(SA + e)}, {v(KVW + 2 * r + e)}, v124, {"0" if r == 0 else v(SA + e)}')
    A('s_nop 2')
    A(f'v_add_f32 {v(SA)}, {v(SA)}, {v(SA + 1)}')
    A(f'v_mov_b32 {v(SA + 1)}, {v(SA)}')
    A('s_nop 1')
    swap_add(A, SA, SA + 1)
    A(f'ds_write_b32 v126, {v(SA)} offset:256')
    A.label('pr_k1')
    A('s_waitcnt lgkmcnt(0)')
    for st in range(4):
        for r in range(0, 4, 2):
            for jj in range(2):
                for e in range(2):
                    first = st == 0 and r == 0
                    acc = v(SA + 2 * e + jj)
                    A(f'v_dot2_f32_bf16 {acc}, {v(128 + 4 * (2 * st + jj) + r + e)}, v124, {"0" if first else acc}')
    A('s_nop 2')
    A(f'v_add_f32 {v(SA)}, {v(SA)}, {v(SA + 2)}')
    A(f'v_add_f32 {v(SA + 1)}, {v(SA + 1)}, {v(SA + 3)}')
    A('s_nop 1')
    swap_add(A, SA, SA + 1)
    A(f'ds_write_b32 v125, {v(SA)}')
    A('s_waitcnt lgkmcnt(0)')
    A('s_barrier')
    for ww in range(8):
        A(f'ds_read_b32 {v(240 + ww)}, v127 offset:{ww * 384}')
    A('s_waitcnt lgkmcnt(4)')
    for ww in range(8):
        A(f'ds_read_b32 {v(248 + ww)}, v127 offset:{ww * 384 + 256}')

    def cs_total():
        A('s_waitcnt lgkmcnt(8)')
        for b0 in (240, 248):
            for stp in (4, 2, 1):
                for e in range(stp):
                    A(f'v_add_f32 {v(b0 + e)}, {v(b0 + e)}, {v(b0 + e + stp)}')
        A(f'ds_write_b32 v127, v240 offset:{CSK - CSX}')
        A(f'ds_write_b32 v127, v248 offset:{CSK - CSX + 256}')
    g3_main(C, 'qkv', 32, 128, kvf=KVF, raw=True, hook_red=cs_total)
    C.stamp()


def wq_store(C):
    A = C.A
    A('s_cmp_lg_u32 s27, 0')
    A('s_cbranch_scc1 pr_w0')
    g3_waddr(C, (112, 113), 32, WQKVP)
    for i in range(8):
        A(f'buffer_store_dwordx4 {v(128 + 4 * i, 4)}, {v(112 + i % 2)}, s[8:11], 0 offen offset:{(i // 2) * 1024} sc0 sc1')
    A('v_lshlrev_b32 v112, 2, v1')
    A('s_lshl_b32 s30, s24, 8')
    A(f's_add_u32 s30, s30, {CSQKV}')
    A('buffer_store_dword v240, v112, s[8:11], s30 offen sc0 sc1')
    A('s_cmp_lg_u32 s24, 0')
    A('s_cbranch_scc1 pr_w0')
    A('s_lshl_b32 s30, s20, 12')
    A(f's_add_u32 s30, s30, {WQKVP + 16 * 32 * KB}')
    for k in range(4):
        A(f'buffer_store_dwordx4 {v(KVW + 4 * k, 4)}, v3, s[8:11], s30 offen offset:{k * 1024} sc0 sc1')
    A(f's_mov_b32 s30, {CSQKV + 2048}')
    A('buffer_store_dword v248, v112, s[8:11], s30 offen sc0 sc1')
    A.label('pr_w0')


def pack_ptrs(A):
    A('s_load_dwordx2 s[4:5], s[0:1], 32')
    A('s_load_dwordx4 s[52:55], s[0:1], 48')
    A('s_load_dwordx2 s[16:17], s[0:1], 64')


def pack_issue(C):
    A = C.A
    A('s_mul_i32 s30, s2, 3')
    A('s_add_u32 s30, s30, s20')
    A('s_mov_b32 s58, s30')
    A('s_cmp_lt_u32 s20, 3')
    A('s_cselect_b32 s57, 1, 0')
    A('s_cmp_lt_u32 s30, 736')
    A('s_cselect_b32 s57, s57, 0')
    A('s_cmp_eq_u32 s57, 0')
    A('s_cselect_b32 s30, 0, s30')
    A('s_cmp_lt_u32 s30, 64')
    A('s_cbranch_scc1 pk_jwo')
    A('s_cmp_lt_u32 s30, 512')
    A('s_cbranch_scc1 pk_jgu')
    A('s_sub_u32 s30, s30, 512')
    A('s_mov_b64 s[4:5], s[16:17]')
    A(f's_mov_b32 s6, {1792 * 1024}')
    A('s_mov_b32 s50, 1024')
    A('s_and_b32 s31, s30, 7')
    A('s_lshr_b32 s30, s30, 3')
    A('s_lshl_b32 s51, s30, 16')
    A('s_lshl_b32 s56, s31, 7')
    A('s_add_u32 s51, s51, s56')
    A(f's_mul_i32 s56, s31, {2 * 112 * KB}')
    A('s_lshl_b32 s30, s30, 12')
    A('s_add_u32 s56, s56, s30')
    A(f's_add_u32 s56, s56, {WDP}')
    A(f's_mov_b32 s52, {112 * KB}')
    A('s_mov_b32 s53, 256')
    A(f's_mov_b32 s54, {G1.CSDUMMY}')
    A('s_branch pk_jgo')
    A.label('pk_jwo')
    A(f's_mov_b32 s6, {512 * 1024}')
    A('s_mov_b32 s50, 1024')
    A('s_lshr_b32 s31, s30, 3')
    A('s_and_b32 s30, s30, 7')
    A('s_lshl_b32 s51, s30, 16')
    A('s_lshl_b32 s56, s31, 7')
    A('s_add_u32 s51, s51, s56')
    A('s_lshl_b32 s56, s31, 16')
    A('s_lshl_b32 s30, s30, 12')
    A('s_add_u32 s56, s56, s30')
    A(f's_add_u32 s56, s56, {WOP}')
    A(f's_mov_b32 s52, {32 * KB}')
    A('s_mov_b32 s53, 256')
    A(f's_mov_b32 s54, {G1.CSDUMMY}')
    A('s_branch pk_jgo')
    A.label('pk_jgu')
    A('s_sub_u32 s30, s30, 64')
    A('s_cmp_ge_u32 s30, 224')
    A('s_cselect_b32 s4, s54, s52')
    A('s_cselect_b32 s5, s55, s53')
    A('s_cselect_b32 s16, 1, 0')
    A('s_cselect_b32 s31, 224, 0')
    A('s_sub_u32 s30, s30, s31')
    A(f's_mov_b32 s6, {512 * 3584}')
    A('s_mov_b32 s50, 3584')
    A('s_lshr_b32 s31, s30, 3')
    A('s_and_b32 s30, s30, 7')
    A(f's_mul_i32 s51, s30, {64 * 3584}')
    A('s_lshl_b32 s56, s31, 7')
    A('s_add_u32 s51, s51, s56')
    A('s_lshl_b32 s56, s31, 17')
    A('s_lshl_b32 s17, s30, 12')
    A('s_add_u32 s56, s56, s17')
    A('s_lshl_b32 s17, s16, 8')
    A('s_add_u32 s56, s56, s17')
    A(f's_add_u32 s56, s56, {WGUP}')
    A(f's_mov_b32 s52, {64 * KB}')
    A(f's_mov_b32 s53, {32 * KB}')
    A(f's_mul_i32 s54, s30, {3584 * 4}')
    A('s_lshl_b32 s17, s31, 9')
    A('s_add_u32 s54, s54, s17')
    A('s_lshl_b32 s17, s16, 6')
    A('s_add_u32 s54, s54, s17')
    A(f's_add_u32 s54, s54, {CSP}')
    A.label('pk_jgo')
    A('v_lshrrev_b32 v112, 3, v1')
    A('v_and_b32 v113, 7, v1')
    A('v_mul_lo_u32 v112, v112, s50')
    A('v_lshl_add_u32 v112, v113, 4, v112')
    A('s_lshl_b32 s50, s50, 3')
    A('s_min_u32 s59, s20, 2')
    A('s_lshl_b32 s59, s59, 13')
    A(f's_add_u32 s59, s59, {136 * KB}')
    A('s_cmp_eq_u32 s57, 0')
    A('s_cbranch_scc1 pk_i_end')
    for i in range(8):
        A(f's_add_u32 m0, s59, {i * 1024}')
        A('s_nop 0')
        A('buffer_load_dwordx4 v112, s[4:7], s51 offen lds')
        A('s_add_u32 s51, s51, s50')
    A.label('pk_i_end')


def pack_convert(C):
    A = C.A
    A('s_cmp_eq_u32 s57, 0')
    A('s_cbranch_scc1 pk_c_end')
    A('v_lshrrev_b32 v112, 5, v1')
    A('v_bfe_u32 v113, v1, 2, 2')
    A('v_lshl_add_u32 v113, v112, 2, v113')
    A('v_and_b32 v114, 3, v1')
    A('v_lshlrev_b32 v114, 3, v114')
    A('v_lshl_add_u32 v113, v113, 7, v114')
    A('v_bfe_u32 v114, v1, 4, 1')
    A('v_lshl_add_u32 v113, v114, 5, v113')
    A('v_add_u32 v113, s59, v113')
    A('v_mul_lo_u32 v114, v114, s53')
    A('v_and_b32 v115, 15, v1')
    A('v_lshl_add_u32 v114, v115, 4, v114')
    A('v_lshl_add_u32 v114, v112, 9, v114')
    A('v_lshrrev_b32 v112, 4, v1')
    A('v_lshlrev_b32 v112, 7, v112')
    A('v_lshl_add_u32 v112, v115, 2, v112')
    A('v_mov_b32 v115, 0x3f803f80')
    A('s_add_u32 s52, s52, s56')
    A('s_waitcnt vmcnt(0)')
    for jj in range(2):
        for st in range(4):
            for h2 in range(2):
                A(f'ds_read_b64_tr_b16 {v(128 + 4 * (4 * jj + st) + 2 * h2, 2)}, v113 offset:{st * 2048 + h2 * 1024 + jj * 64}')
        A('s_waitcnt lgkmcnt(0)')
        for st in range(4):
            A(f'buffer_store_dwordx4 {v(128 + 4 * (4 * jj + st), 4)}, v114, s[8:11], {"s56" if jj == 0 else "s52"} offen offset:{st * 1024} sc0 sc1')
    A('s_cmp_eq_u32 s53, 256')
    A('s_cbranch_scc1 pk_c_end')
    for r in range(16):
        for jj in range(2):
            A(f'v_dot2_f32_bf16 {v(116 + jj)}, {v(128 + 16 * jj + r)}, v115, {"0" if r == 0 else v(116 + jj)}')
    A('s_nop 2')
    swap_add(A, 116, 117)
    A('buffer_store_dword v116, v112, s[8:11], s54 offen sc0 sc1')
    A.label('pk_c_end')


def pack_flag(C):
    A = C.A
    A('v_mov_b32 v112, 0')
    A('v_mov_b32 v113, 1')
    A('s_cmp_eq_u32 s57, 0')
    A('s_cbranch_scc1 pk_f_1')
    A('s_lshl_b32 s30, s58, 7')
    A(f's_add_u32 s30, s30, {PFL}')
    A('s_waitcnt vmcnt(0)')
    A('s_mov_b64 exec, 1')
    A('buffer_store_dword v113, v112, s[8:11], s30 offen sc0 sc1')
    A('s_mov_b64 exec, -1')
    A.label('pk_f_1')
    A('s_cmp_lg_u32 s27, 0')
    A('s_cbranch_scc1 pk_f_end')
    A('s_lshl_b32 s30, s24, 3')
    A('s_add_u32 s30, s30, s20')
    A('s_lshl_b32 s30, s30, 7')
    A(f's_add_u32 s30, s30, {PFL + 768 * 128}')
    A('s_waitcnt vmcnt(0)')
    A('s_mov_b64 exec, 1')
    A('buffer_store_dword v113, v112, s[8:11], s30 offen sc0 sc1')
    A('s_mov_b64 exec, -1')
    A.label('pk_f_end')


def pack_poll(C, endlab):
    A = C.A
    A('s_mul_i32 s30, s22, 7')
    A('s_lshr_b32 s30, s30, 2')
    A('v_lshrrev_b32 v112, 4, v1')
    A('v_add_u32 v112, s30, v112')
    A('v_min_u32 v112, 27, v112')
    A('v_and_b32 v113, 7, v1')
    A('v_lshl_add_u32 v112, v112, 3, v113')
    A('v_bfe_u32 v114, v1, 3, 1')
    A('v_mul_u32_u24 v114, 224, v114')
    A('v_add3_u32 v112, v112, v114, 64')
    A('s_mul_i32 s30, s20, 7')
    A('s_lshr_b32 s30, s30, 1')
    A('v_min_u32 v114, 4, v113')
    A('v_add_u32 v114, s30, v114')
    A('v_min_u32 v114, 27, v114')
    A('s_add_u32 s30, s24, 512')
    A('v_lshl_add_u32 v114, v114, 3, s30')
    A('v_cmp_le_u32 vcc, 48, v1')
    A('s_lshl_b32 s30, s24, 3')
    A('s_add_u32 s30, s30, s20')
    A('v_cndmask_b32 v112, v112, v114, vcc')
    A('v_mov_b32 v114, s30')
    A('v_cmp_le_u32 vcc, 56, v1')
    A('s_add_u32 s30, s30, 768')
    A('s_add_u32 s31, s20, 768')
    A('v_cndmask_b32 v112, v112, v114, vcc')
    A('v_writelane_b32 v112, s30, 62')
    A('v_writelane_b32 v112, s31, 63')
    A(f's_mov_b32 s30, {PFL}')
    A('s_mov_b32 s31, 0')
    A('v_lshlrev_b32 v112, 7, v112')
    A('s_bfe_u32 s32, s19, 0x3000c')
    A('s_lshl_b32 s32, s32, 3')
    A('s_lshl_b32 s33, s26, 2')
    A('s_add_u32 s32, s32, s33')
    A('v_and_b32 v114, 3, v1')
    A('v_add_u32 v114, s32, v114')
    A('v_bfe_u32 v115, v1, 2, 1')
    A('v_mul_u32_u24 v115, 768, v115')
    A('v_add_lshl_u32 v114, v114, v115, 7')
    A.label('pk_p')
    A('buffer_load_dword v113, v112, s[8:11], s30 offen sc1')
    A('buffer_load_dword v115, v114, s[8:11], s30 offen sc1')
    A('s_waitcnt vmcnt(0)')
    A('v_and_b32 v113, v113, v115')
    A('v_cmp_eq_u32 vcc, 1, v113')
    A('s_add_u32 s31, s31, 1')
    A('s_cmp_eq_u64 vcc, -1')
    A('s_cbranch_scc1 pk_pd')
    A('s_sleep 16')
    A(f's_cmp_lt_u32 s31, {1 << 19}')
    A('s_cbranch_scc1 pk_p')
    A(f's_branch {endlab}')
    A.label('pk_pd')
    C.vm = []


def layer_part(C, layer, end):
    A = C.A
    C.tag = f'l{layer}'
    last = layer == 1
    xin = None if layer == 0 else XC
    kvf = KVF if layer == 0 else KVF2
    kfl = KFL + layer * 64 * 128
    sy = 5 * layer + 1
    C.B = dict(QF=QF, OF=OF, XB=XB, SXB=SXB, HF=HF) if layer == 0 else dict(QF=QF2, OF=OF2, XB=XB2, SXB=SXB2, HF=HF2)
    B = C.B

    def need_q():
        A('s_and_b32 s30, s22, 12')
        A('s_and_b32 s31, s20, 2')
        A('s_add_u32 s30, s30, s31')
        A('s_and_b32 s31, s24, 1')
        A('s_add_u32 s30, s30, s31')
        A('s_lshl_b32 s32, 1, s30')
    if layer == 0:
        g4_ids(C)
        handoff(C, sy - 1, end, need_q, kvflag=kfl, first=True)
        C.stamp()

    def pre_addr():
        gu_waddr(C)
        g3_waddr(C, (113, 114), 112, WDP)
        g4_waddr(C, 116, WOP)

    stubs = [lambda: (pre_addr(), gu_wload(C, 0))]
    stubs += [lambda ks=ks: gu_wload(C, ks) for ks in range(1, 24)]
    stubs += [lambda i=i: g4_wload(C, 116, i, 'res') for i in range(8)]
    if TOUCH and layer == 1:
        def t_addr():
            A('s_lshr_b32 s30, s2, 3')
            A('s_lshl_b32 s30, s30, 3')
            A('s_add_u32 s30, s30, s20')
            A(f's_mul_i32 s31, s30, {7 * KB}')
            A(f's_add_u32 s31, s31, {WDP}')
            A('v_add_u32 v118, s31, v3')
            A('s_lshl_b32 s31, s30, 11')
            A(f's_add_u32 s31, s31, {WQKVP}')
            A('v_add_u32 v119, s31, v3')

        def tch(vr, k):
            so, im = soff(k)
            C.vmem(f'buffer_load_dwordx4 v[120:123], {v(vr)}, s[8:11], {so} offen offset:{im}', 'tc')
        stubs += [lambda: (t_addr(), tch(V_WGU, 24))]
        stubs += [lambda ks=ks: tch(V_WGU, ks) for ks in range(25, 32)]
        stubs += [lambda k=k: tch(118, k) for k in range(7)]
        if not last:
            stubs += [lambda k=k: tch(119, k) for k in range(2)]

    def need_wo():
        A('s_lshr_b32 s30, s20, 1')
        A('s_lshl_b32 s30, s30, 2')
        A('s_and_b32 s31, s22, 3')
        A('s_add_u32 s30, s30, s31')
        A('s_lshl_b32 s32, 1, s30')

    def need_gu():
        A('s_lshl_b32 s32, 0x1111, s25')
        A('s_cmp_eq_u32 s20, 7')
        A('s_cselect_b32 s32, 0xffff, s32')

    def need_dn():
        A('s_lshl_b32 s30, s20, 1')
        A('s_lshl_b32 s32, 3, s30')

    def need_qkv():
        A('s_lshl_b32 s30, s20, 1')
        A('s_and_b32 s31, s24, 1')
        A('s_add_u32 s30, s30, s31')
        A('s_lshl_b32 s32, 1, s30')

    if layer == 0:
        fixed = {PK_I: lambda: (wq_store(C), pack_issue(C)), PK_C: lambda: pack_convert(C), PK_F: lambda: pack_flag(C), PK_P: lambda: pack_poll(C, end)}
        tail = att_phase(C, kvf, kfl, end, stubs, fixed, PK_P, pre_hook=lambda: pack_ptrs(A))
    else:
        tail = att_phase(C, kvf, kfl, end, stubs, pre_hook=lambda: A('s_load_dwordx2 s[12:13], s[0:1], 72'), loadq=False)
    C.stamp()
    A('s_nop 1')
    for i in range(8, 16):
        g4_wload(C, 116, i, 'res')
    g4_pre(C, 'res', B['OF'], resbase=xin)
    handoff(C, sy + 0, end, need_wo)
    C.stamp()
    g4_main(C, 'res', outbase=B['XB'], sxout=B['SXB'], hook_red=lambda k: gu_wload(C, 24 + k))
    C.stamp()
    gu_pre(C)
    handoff(C, sy + 1, end, need_gu)
    C.stamp()
    gu_main(C)
    C.stamp()
    g3_pre(C, 'res', 112, B['HF'], resbase=B['XB'])
    handoff(C, sy + 2, end, need_dn)
    C.stamp()
    if last:
        g3_main(C, 'out', 112, 128)
        C.stamp()
    else:
        g3_main(C, 'res', 112, 128, outbase=XC, sxout=SXC, hook_b=lambda st, n: qkv4_wstep(C, st, n), hook_red=lambda: qkv4_wrest(C))
        C.stamp()
        g4_pre(C, 'qkv', XC, resbase=SXC)
        handoff(C, sy + 3, end, need_qkv)
        C.stamp()
        g4_main(C, 'qkv', kvf=KVF2, kfl=KFL + 64 * 128)
        C.stamp()
    return tail


def build():
    A = Asm()
    name = NAME + '_kernel'
    C = Ctx(A, 'pr')
    C.qf = QF
    end = 'k_end'
    kernel_begin(A, name)
    pre_part(C, end)
    t0 = layer_part(C, 0, end)
    t1 = layer_part(C, 1, end)
    A('s_add_u32 s30, s2, s20')
    A('s_cmp_lg_u32 s30, 0')
    A('s_cbranch_scc1 k_fin')
    A('s_load_dwordx2 s[4:5], s[0:1], 80')
    A('s_mov_b32 s6, 256')
    A('v_mov_b32 v2, 0')
    A('s_mov_b64 exec, 1')
    A('s_waitcnt lgkmcnt(0)')
    A('buffer_store_dword v2, v2, s[4:7], 0 offen sc0 sc1')
    A('s_mov_b64 exec, -1')
    A.label('k_fin')
    stamp_end(C, 1)
    A.label(end)
    A('s_endpgm')
    t0(True)
    t1(False)
    body = A.text()
    probs = lint(body)
    for p in probs:
        print('LINT:', p, file=sys.stderr)
    head = '; generated by gen/gen3.py\n'
    head += f"; @launch grid=(256,1,1) block=(512,1,1) lds={LDS_BYTES}\n"
    head += '.amdgcn_target "amdgcn-amd-amdhsa--gfx950"\n.text\n'
    tail = '.section .rodata,"a"\n.p2align 6\n' + descriptor(name, 256, 0, nsgpr=100)
    print('stamps:', C.nstamp, file=sys.stderr)
    return head + body + tail


if __name__ == '__main__':
    if 'stamp' in sys.argv:
        STAMP = True
    for arg in sys.argv[2:]:
        if '=' in arg:
            k, val = arg.split('=')
            globals()[k] = int(val) if val.lstrip('-').isdigit() else val.replace('_', ' ')
    out = sys.argv[1] if len(sys.argv) > 1 else f'cdna_kernels/{NAME}.s'
    open(out, 'w').write(build())
    print('wrote', out)
```

```python
import sys
import math
import struct
from asmlib import Asm, v, a, s, lint
import gen as G1
from gen import f32, kernel_begin, descriptor, ws_srd, KB

NAME = G1.NAME
WQKVP, WOP, WGUP, WDP, CSQKV, CSGU = G1.WQKVP, G1.WOP, G1.WGUP, G1.WDP, G1.CSQKV, G1.CSGU
KVF, XA, XB, QF, OF, HF = G1.KVF, G1.XA, G1.XB, G1.QF, G1.OF, G1.HF
WS_SIZE, QSCALE = G1.WS_SIZE, G1.QSCALE
KVG = 2048
KVT = 2080
VBS = 512
XC = G1.WS_END
KVF2 = XC + 2048 * KB
FLG = KVF2 + 144 * KB
SXA = FLG + 64 * KB
SXB = SXA + 512 * KB
SXC = SXB + 512 * KB
CSP = SXC + 512 * KB
PFL = CSP + 128 * KB
KFL = PFL + 112 * KB
QF2 = KFL + 16 * KB
OF2 = QF2 + 2048 * KB
XB2 = OF2 + 2048 * KB
SXB2 = XB2 + 2048 * KB
HF2 = SXB2 + 512 * KB
WS_END = HF2 + 64 * 112 * KB
STAMPS = G1.STAMPS

STAMP = False
WT = ' sc0 sc1'
LDS_BYTES = 160 * KB
FINE = 0
TLBW = 0
KV_SLEEP = 2
QKV_PER = 1
WO_TAIL = 16
SLO = 0
QWT = ' sc0 sc1'
GU16 = 0
GU_NOW = 0
GU_WD0 = 3
GU_BARS = {4: 1, 8: 2, 12: 7, 24: 7}
PK_I = 2
PK_C = 5
PK_F = 6
PK_P = 9
RT = 0
TOUCH = 1
ATT_UN = 4
ATT_PFEND = 1
G3_PR4 = 7
G3_PR14 = 6
G2_ST8 = [2, 2, 2, 2]
G2_ST28 = [2, 2, 4, 4, 4, 4, 4, 4]
G2_PRE8 = 4
G2_PRE28 = 6


class Ctx:
    def __init__(self, A, tag):
        self.A = A
        self.tag = tag
        self.vm = []
        self.nlab = 0
        self.nstamp = 1

    def lab(self, base):
        self.nlab += 1
        return f'{self.tag}_{base}{self.nlab}'

    def vmem(self, text, tag):
        self.A(text)
        self.vm.append(tag)
        assert len(self.vm) <= 63, 'vmcnt overflow'

    def wait(self, tag, extra=''):
        idx = [i for i, t in enumerate(self.vm) if t == tag]
        if not idx:
            if extra:
                self.A(f's_waitcnt {extra}')
            return
        n = len(self.vm) - 1 - idx[-1]
        self.A(f's_waitcnt vmcnt({n}) {extra}'.strip())
        self.vm = self.vm[idx[-1] + 1:]

    def stamp(self):
        if STAMP:
            i = self.nstamp - SLO
            self.nstamp += 1
            if i < 1 or i >= 28:
                return
            A = self.A
            A('s_waitcnt lgkmcnt(0)')
            A('s_memrealtime s[60:61]' if RT else 's_memtime s[60:61]')
            A('s_waitcnt lgkmcnt(0)')
            A(f's_mov_b32 {s(64 + i)}, s60')


def stamp_begin(C):
    if STAMP:
        A = C.A
        A('s_memrealtime s[62:63]')
        A('s_memtime s[60:61]')
        for i in range(1, 30):
            A(f's_mov_b32 {s(64 + i)}, 0')
        A('s_waitcnt lgkmcnt(0)')
        A('s_mov_b32 s64, s62' if RT else 's_mov_b32 s64, s60')
        A('s_mov_b32 s95, s62')


def stamp_end(C, kidx):
    if STAMP:
        A = C.A
        A('s_waitcnt vmcnt(0) lgkmcnt(0)')
        A('s_memtime s[60:61]')
        A('s_memrealtime s[62:63]')
        A('s_waitcnt lgkmcnt(0)')
        A('s_mov_b32 s93, s62' if RT else 's_mov_b32 s93, s60')
        A('s_mov_b32 s94, s62')
        A('s_mov_b64 exec, 1')
        A('s_lshl_b32 s60, s2, 10')
        A('s_lshl_b32 s61, s20, 7')
        A('s_add_u32 s60, s60, s61')
        A(f's_add_u32 s60, s60, {STAMPS + kidx * (1 << 20)}')
        A('v_mov_b32 v0, 0')
        for i in range(32):
            A(f'v_mov_b32 v1, {s(64 + i)}')
            A(f'buffer_store_dword v1, v0, s[8:11], s60 offen offset:{i * 4}')
        A('s_waitcnt vmcnt(0)')


def setup(C, need_out, endlab):
    A = C.A
    A('s_cmp_ge_u32 s2, 256')
    A(f's_cbranch_scc1 {endlab}')
    stamp_begin(C)
    ws_srd(A, 8)
    if need_out:
        A('s_load_dwordx2 s[12:13], s[0:1], 72')
        A(f's_mov_b32 s14, {2048 * 512 * 2}')
        A('s_mov_b32 s15, 0x20000')
    A('v_and_b32 v1, 63, v0')
    A('v_lshrrev_b32 v2, 6, v0')
    A('v_lshlrev_b32 v3, 4, v1')
    A('v_readfirstlane_b32 s20, v2')
    A('s_and_b32 s21, s2, 7')
    A('s_lshl_b32 s21, s21, 1')
    A('s_bfe_u32 s22, s2, 0x10003')
    A('s_add_u32 s21, s21, s22')
    A('s_lshr_b32 s22, s2, 4')
    A('s_and_b32 s23, s22, 1')
    A('s_lshr_b32 s24, s22, 1')
    A('s_and_b32 s25, s20, 3')
    A('s_lshr_b32 s26, s20, 2')
    A('s_lshl_b32 s27, s21, 2')
    A('s_lshl_b32 s30, s23, 1')
    A('s_add_u32 s27, s27, s30')
    A('s_lshl_b32 s28, s24, 1')
    A('s_bfe_u32 s30, s20, 0x10001')
    A('s_add_u32 s28, s28, s30')
    A('s_and_b32 s29, s20, 1')
    A('s_add_u32 s30, s27, s29')
    A('s_lshl_b32 s49, s30, 15')
    A('s_lshl_b32 s31, s28, 11')
    A('s_add_u32 s49, s49, s31')
    A('s_lshl_b32 s31, s26, 10')
    A('s_add_u32 s49, s49, s31')
    for g in range(1, 8):
        A(f's_mov_b32 {s(40 + g)}, {g * 4096}')
    A('s_waitcnt lgkmcnt(0)')


def soff(i):
    return ('0' if i // 4 == 0 else s(40 + i // 4)), (i % 4) * 1024


def handoff(C, sync, endlab, need, kvflag=None, first=False):
    A = C.A
    l1, l2, ld = C.lab('pa'), C.lab('pb'), C.lab('pd')
    need()
    A('s_mov_b32 s33, 0')
    A('v_lshlrev_b32 v0, 2, v1')
    A('s_lshl_b32 s30, s21, 8')
    A(f's_add_u32 s30, s30, {FLG + sync * 4096}')
    A('s_lshl_b32 s34, s22, 2')
    A('s_add_u32 s34, s34, s30')
    A('v_mov_b32 v4, 1')
    if first:
        lz, lzd = C.lab('z'), C.lab('zd')
        A('s_cmp_lg_u32 s20, 0')
        A(f's_cbranch_scc1 {lzd}')
        A('s_mov_b32 s31, 0')
        A('s_mov_b64 exec, 1')
        A.label(lz)
        A('buffer_load_dword v2, v0, s[4:7], 0 offen sc0 sc1')
        A('s_waitcnt vmcnt(0)')
        A('v_cmp_le_u32 vcc, 16, v2')
        A('s_add_u32 s31, s31, 1')
        A('s_cmp_eq_u64 vcc, 1')
        A(f's_cbranch_scc1 {lzd}')
        A('s_sleep 8')
        A(f's_cmp_lt_u32 s31, {1 << 20}')
        A(f's_cbranch_scc1 {lz}')
        A(f's_branch {endlab}')
        A.label(lzd)
        A('s_mov_b64 exec, -1')
    if kvflag is not None:
        A('s_waitcnt vmcnt(0) lgkmcnt(0)')
        C.vm = []
    else:
        C.wait('st', 'lgkmcnt(0)')
    A('s_cmp_lg_u32 s20, 0')
    A('s_barrier')
    l, lb, lb2 = C.lab('sig'), C.lab('sb'), C.lab('sc')
    A(f's_cbranch_scc1 {l}')
    A('s_mov_b64 exec, 1')
    if kvflag is not None:
        lk = C.lab('kf')
        A('s_cmp_ge_u32 s24, 2')
        A(f's_cbranch_scc1 {lk}')
        A('s_add_u32 s31, s27, s24')
        A('s_lshl_b32 s31, s31, 7')
        A(f's_add_u32 s31, s31, {kvflag}')
        A('s_mov_b64 exec, 15')
        A('buffer_store_dword v4, v0, s[8:11], s31 offen sc0 sc1')
        A('s_mov_b64 exec, 1')
        A.label(lk)
    A('buffer_store_dword v4, v0, s[8:11], s34 offen')
    A.label(l)
    A('s_mov_b32 s31, 0')
    A('s_mov_b64 exec, s[32:33]')
    A.label(l1)
    A('buffer_load_dword v2, v0, s[8:11], s30 offen sc1')
    A('s_add_u32 s31, s31, 1')
    A('s_waitcnt vmcnt(0)')
    A('v_cmp_ne_u32 vcc, 0, v2')
    A('s_cmp_eq_u64 vcc, s[32:33]')
    A(f's_cbranch_scc1 {ld}')
    A('s_cmp_lt_u32 s31, 64')
    A(f's_cbranch_scc1 {l1}')
    A('s_mov_b64 exec, 1')
    A('buffer_store_dword v4, v0, s[8:11], s34 offen offset:128 sc0 sc1')
    A('s_mov_b64 exec, s[32:33]')
    A.label(l2)
    A('buffer_load_dword v2, v0, s[8:11], s30 offen sc1')
    A('s_waitcnt vmcnt(0)')
    A('v_cmp_ne_u32 s[36:37], 0, v2')
    A('buffer_load_dword v2, v0, s[8:11], s30 offen offset:128 sc0 sc1')
    A('s_waitcnt vmcnt(0)')
    A('v_cmp_ne_u32 vcc, 0, v2')
    A('s_add_u32 s31, s31, 1')
    A('s_or_b64 vcc, vcc, s[36:37]')
    A('s_cmp_eq_u64 vcc, s[32:33]')
    A(f's_cbranch_scc1 {ld}')
    A('s_sleep 4')
    A(f's_cmp_lt_u32 s31, {1 << 20}')
    A(f's_cbranch_scc1 {l2}')
    A(f's_branch {endlab}')
    A.label(ld)
    A('s_mov_b64 exec, -1')
    C.vm = []
    C.flagb = True


def flag_b(C):
    if getattr(C, 'flagb', False):
        A = C.A
        l = C.lab('fb')
        A('s_cmp_lg_u32 s20, 0')
        A(f's_cbranch_scc1 {l}')
        A('s_mov_b64 exec, 1')
        A('buffer_store_dword v4, v0, s[8:11], s34 offen offset:128 sc0 sc1')
        A('s_mov_b64 exec, -1')
        A.label(l)
        C.flagb = False


ACCB, ACCA = 16, 48
KVW, KACC, QSX = 160, 176, 240
KVRED, STAT, CSX, CSK = 112 * KB, 144 * KB, 148 * KB, 152 * KB


def blk_stats(C, P, T):
    A = C.A
    A(f'v_mov_b32 {v(T + 4)}, 0x3f803f80')
    A(f'v_dot2_f32_bf16 {v(T + 1)}, {v(P)}, {v(P)}, 0')
    A(f'v_dot2_f32_bf16 {v(T)}, {v(P)}, {v(T + 4)}, 0')
    for m in range(1, 4):
        A(f'v_dot2_f32_bf16 {v(T + 1)}, {v(P + m)}, {v(P + m)}, {v(T + 1)}')
        A(f'v_dot2_f32_bf16 {v(T)}, {v(P + m)}, {v(T + 4)}, {v(T)}')
    A('s_nop 2')
    A(f'v_mov_b32 {v(T + 2)}, {v(T)}')
    A(f'v_mov_b32 {v(T + 3)}, {v(T + 1)}')
    A('s_nop 1')
    A(f'v_permlane32_swap_b32 {v(T)}, {v(T + 2)}')
    A(f'v_permlane32_swap_b32 {v(T + 1)}, {v(T + 3)}')
    A(f'v_add_f32 {v(T)}, {v(T)}, {v(T + 2)}')
    A(f'v_add_f32 {v(T + 1)}, {v(T + 1)}, {v(T + 3)}')


def g3_waddr(C, vregs, KS, wbase):
    A = C.A
    NS = KS // 8
    A('s_lshl_b32 s30, s26, 8')
    A(f'v_xor_b32 {v(vregs[0])}, s30, v3')
    A(f's_mul_i32 s31, s20, {NS * KB}')
    A(f's_add_u32 s31, s31, {wbase}')
    A('s_xor_b32 s30, s28, 1')
    A(f's_mul_i32 s30, s30, {KS * KB}')
    A('s_add_u32 s30, s30, s31')
    A(f'v_add_u32 {v(vregs[1])}, s30, {v(vregs[0])}')
    A(f's_mul_i32 s30, s28, {KS * KB}')
    A('s_add_u32 s30, s30, s31')
    A(f'v_add_u32 {v(vregs[0])}, s30, {v(vregs[0])}')


def g3_wload(C, vregs, idx, wreg0, tag='w'):
    st, jj = idx // 2, idx % 2
    so, im = soff(st)
    C.vmem(f'buffer_load_dwordx4 {v(wreg0 + 4 * idx, 4)}, {v(vregs[jj])}, s[8:11], {so} offen offset:{im}', tag)


def g3_ex(mode, KS):
    return 252 if KS == 112 else (112 if mode == 'qkv' else 116)


def g3_pre(C, mode, KS, xbase, resbase=None, raw=False):
    A = C.A
    NS = KS // 8
    EX = g3_ex(mode, KS)
    A(f's_mul_i32 s31, s20, {NS * KB}')
    A(f's_add_u32 s31, s31, {xbase}')
    A('s_add_u32 s30, s27, s29')
    A(f's_mul_i32 s32, s30, {KS * KB}')
    A('s_add_u32 s32, s32, s31')
    A('v_add_u32 v6, s32, v3')
    A('s_xor_b32 s30, s30, 1')
    A(f's_mul_i32 s32, s30, {KS * KB}')
    A('s_add_u32 s32, s32, s31')
    A('v_add_u32 v5, s32, v3')
    A('s_lshl_b32 s30, s20, 11')
    A('v_add_u32 v8, s30, v3')
    A('v_add_u32 v7, 0x10000, v8')
    for b in range(1, 8):
        A(f's_xor_b32 s30, s20, {b}')
        A('s_lshl_b32 s30, s30, 11')
        A(f's_add_u32 s30, s30, {(b - 1) * 16 * KB}')
        A(f'v_add_u32 {v(8 + b)}, s30, v3')
    if raw:
        return
    if mode == 'qkv':
        A('v_lshrrev_b32 v2, 5, v1')
        A('v_lshlrev_b32 v4, 4, v2')
        A('s_lshl_b32 s31, s28, 7')
        A('s_lshl_b32 s30, s26, 6')
        A('s_add_u32 s31, s31, s30')
        A(f's_add_u32 s31, s31, {CSQKV}')
        C.vmem(f'buffer_load_dwordx4 {v(EX, 4)}, v4, s[8:11], s31 offen', 'ex')
        C.vmem(f'buffer_load_dwordx4 {v(EX + 4, 4)}, v4, s[8:11], s31 offen offset:32', 'ex')
        A('s_bfe_u32 s30, s20, 0x10001')
        A('s_lshl_b32 s30, s30, 6')
        A('s_lshl_b32 s31, s26, 5')
        A('s_add_u32 s30, s30, s31')
        A(f's_add_u32 s31, s30, {CSQKV + 2048}')
        C.vmem(f'buffer_load_dwordx4 {v(EX + 8, 4)}, v4, s[8:11], s31 offen', 'ex')
        A(f'v_and_b32 {v(QSX + 8)}, 31, v1')
        A(f'v_lshlrev_b32 {v(QSX + 8)}, 3, {v(QSX + 8)}')
        A(f'v_lshl_add_u32 {v(QSX + 8)}, v2, 13, {v(QSX + 8)}')
        A('s_lshl_b32 s30, s27, 13')
        A('s_lshl_b32 s31, s20, 10')
        A('s_add_u32 s30, s30, s31')
        A(f's_add_u32 s30, s30, {resbase}')
        A(f'v_add_u32 {v(QSX + 8)}, s30, {v(QSX + 8)}')
    elif resbase is None:
        A('v_and_b32 v2, 31, v1')
        A('v_lshlrev_b32 v2, 10, v2')
        A('v_lshrrev_b32 v4, 5, v1')
        A('v_lshl_add_u32 v2, v4, 3, v2')
        A('s_add_u32 s30, s27, s29')
        A('s_lshl_b32 s30, s30, 15')
        A('s_lshl_b32 s31, s28, 6')
        A('s_add_u32 s30, s30, s31')
        A('s_lshl_b32 s31, s26, 5')
        A('s_add_u32 s30, s30, s31')
        C.vmem(f'buffer_load_dwordx2 {v(EX, 2)}, v2, s[12:15], s30 offen', 'ex')
        C.vmem(f'buffer_load_dwordx2 {v(EX + 2, 2)}, v2, s[12:15], s30 offen offset:16', 'ex')
    else:
        A(f's_add_u32 s31, s49, {resbase}')
        C.vmem(f'buffer_load_dwordx4 {v(EX, 4)}, v3, s[8:11], s31 offen', 'ex')


def g3_main(C, mode, KS, wreg0, outbase=None, kvf=None, after_store=None, sxout=None, hook_b=None, raw=False, hook_red=None):
    A = C.A
    NS = KS // 8
    EX = g3_ex(mode, KS)
    if NS == 4:
        xreg = {(hh, st): 80 + (hh * 4 + st) * 4 for hh in range(2) for st in range(4)}
    else:
        slot = [80 + 4 * k for k in range(12)] + [240, 244]
        xreg = {(hh, st): slot[st] for hh in range(2) for st in range(NS)}

    def xload(hh, st):
        so, im = soff(st)
        C.vmem(f'buffer_load_dwordx4 {v(xreg[hh, st], 4)}, {v(5 + hh)}, s[8:11], {so} offen offset:{im}', f'x{hh}_{st}')

    seq = [(hh, st) for hh in range(2) for st in range(NS)]
    PR = G3_PR4 if NS == 4 else G3_PR14
    if raw:
        seq, PR = [], 0
    for x in seq[:PR]:
        xload(*x)
    nxt = PR
    C.wait('w')

    def wr(b):
        base = (ACCA if b & 1 else ACCB) + ((b >> 1) & 1) * 16 + (b >> 2) * 8
        return [f'ds_write_b128 {v(8 + b)}, {v(base + h2 * 4, 4)} offset:{h2 * 1024}' for h2 in range(2)]

    pend = []
    for hh in range(2):
        acc = ACCA if hh == 0 else ACCB
        for st in range(NS):
            C.wait(f'x{hh}_{st}')
            if hh == 0 and st == 0:
                C.stamp()
            for jj in range(2):
                c = '0' if st == 0 else v(acc + jj * 16, 16)
                A(f'v_mfma_f32_32x32x16_bf16 {v(acc + jj * 16, 16)}, {v(wreg0 + 4 * (2 * st + jj), 4)}, {v(xreg[hh, st], 4)}, {c}')
                if hh == 1 and (st >= 3 or (NS == 4 and st >= 2)):
                    for _ in range(2 if NS == 4 else 1):
                        if pend:
                            A(pend.pop(0))
            if nxt < len(seq):
                xload(*seq[nxt])
                nxt += 1
                if nxt == len(seq):
                    if mode == 'qkv':
                        for e in range(4):
                            C.vmem(f'buffer_load_dwordx2 {v(QSX + 2 * e, 2)}, {v(QSX + 8)}, s[8:11], 0 offen offset:{e * 256}', 'sx')
                    flag_b(C)
                    hb = 0
            elif hook_b:
                hb += 1
            if hook_b and nxt == len(seq):
                hook_b(hb, PR)
            if hh == 1 and NS == 4 and st == 1:
                A('s_nop 7' if raw else 's_nop 5')
            if hh == 1 and NS != 4 and st == 2:
                A('s_nop 2')
        if hh == 0:
            pend = wr(1) + wr(5) + wr(3) + wr(7)
    assert not pend
    C.stamp()
    lkv = C.lab('nokv')
    if mode == 'qkv':
        la, lb = C.lab('ka'), C.lab('kb')
        A('s_cmp_ge_u32 s24, 2')
        A(f's_cbranch_scc1 {lb}')
        A('s_cmp_eq_u32 s24, s29')
        A(f's_cbranch_scc0 {la}')
        for hh in (1, 0):
            for st in range(4):
                c = '0' if st == 0 else v(KACC, 16)
                A(f'v_mfma_f32_32x32x16_bf16 {v(KACC, 16)}, {v(KVW + 4 * st, 4)}, {v(xreg[hh, st], 4)}, {c}')
            if hh == 1:
                A(f's_branch {lb}')
                A.label(la)
        A.label(lb)
        A('v_lshlrev_b32 v4, 3, v1')
        if not raw:
            C.wait('sx')
            for e in range(4):
                A(f'v_add_f32 {v(QSX + e)}, {v(QSX + e)}, {v(QSX + 4 + e)}')
            for e in range(2):
                A(f'v_add_f32 {v(QSX + e)}, {v(QSX + e)}, {v(QSX + 2 + e)}')
            A('s_lshl_b32 s30, s20, 9')
            A(f's_add_u32 s30, s30, {STAT}')
            A('v_add_u32 v2, s30, v4')
            A(f'ds_write_b64 v2, {v(QSX, 2)}')
        else:
            A('v_lshrrev_b32 v112, 5, v1')
            A('v_lshlrev_b32 v112, 4, v112')
            A('s_and_b32 s30, s28, 1')
            A('s_lshl_b32 s30, s30, 7')
            A('s_lshl_b32 s31, s26, 6')
            A('s_add_u32 s30, s30, s31')
            A(f's_add_u32 s30, s30, {CSK}')
            A('v_add_u32 v113, s30, v112')
            A('s_nop 3')
        A('v_and_b32 v4, 0xf8, v4')
        A('s_lshl_b32 s30, s29, 8')
        A(f's_add_u32 s30, s30, {STAT}')
        A('v_add_u32 v4, s30, v4')
    else:
        A('s_nop 10')
    for b in (4, 2, 6):
        for x in wr(b):
            A(x)
    if mode == 'qkv':
        A('s_cmp_ge_u32 s24, 2')
        A(f's_cbranch_scc1 {lkv}')
        A(f'v_add_u32 v2, {KVRED}, v8')
        for k4 in range(4):
            A(f'ds_write_b128 v2, {v(KACC + k4 * 4, 4)} offset:{(k4 >> 1) * 16 * KB + (k4 & 1) * 1024}')
        A.label(lkv)
    if hook_red:
        hook_red()
    A('s_waitcnt lgkmcnt(0)')
    A('s_barrier')
    for b in range(1, 8):
        for h2 in range(2):
            base, off = ('v8', (b - 1) * 16 * KB) if b <= 4 else ('v7', (b - 5) * 16 * KB)
            A(f'ds_read_b128 {v(ACCB + b * 8 + h2 * 4, 4)}, {base} offset:{off + h2 * 1024}')
    T = 80

    def red(base, waits):
        for stp in (32, 16, 8):
            for r in range(stp):
                A(f'v_add_f32 {v(base + r)}, {v(base + r)}, {v(base + stp + r)}')
    if mode == 'qkv':
        A('s_waitcnt lgkmcnt(6)')
        for ww in range(8):
            A(f'ds_read_b64 {v(T + ww * 2, 2)}, v4 offset:{ww * 512}')
        A('s_waitcnt lgkmcnt(8)')
        if raw:
            EX = 192
            for h2 in range(2):
                A(f'ds_read_b128 {v(EX + h2 * 4, 4)}, v113 offset:{h2 * 32}')
    else:
        C.wait('ex')
        for m in range(4):
            A(f'v_lshlrev_b32 {v(T + 2 * m)}, 16, {v(EX + m)}')
            A(f'v_and_b32 {v(T + 2 * m + 1)}, 0xffff0000, {v(EX + m)}')
        for r in range(8):
            A(f'v_add_f32 {v(ACCB + r)}, {v(ACCB + r)}, {v(T + r)}')
        A('s_waitcnt lgkmcnt(0)')
    red(ACCB, None)
    P = ACCB + 8
    if mode == 'qkv':
        A('s_waitcnt lgkmcnt(0)')
        for stp in (8, 4, 2):
            for e in range(stp):
                A(f'v_add_f32 {v(T + e)}, {v(T + e)}, {v(T + e + stp)}')
        A(f'v_mul_f32 {v(T)}, {f32(1.0 / 512)}, {v(T)}')
        A(f'v_mul_f32 {v(T + 1)}, {f32(1.0 / 512)}, {v(T + 1)}')
        A(f'v_fma_f32 {v(T + 1)}, -{v(T)}, {v(T)}, {v(T + 1)}')
        A(f'v_max_f32 {v(T + 1)}, 0, {v(T + 1)}')
        A(f'v_add_f32 {v(T + 1)}, {f32(1e-5)}, {v(T + 1)}')
        A(f'v_rsq_f32 {v(T + 1)}, {v(T + 1)}')
        C.wait('ex')
        for r in range(8):
            A(f'v_fma_f32 {v(ACCB + r)}, -{v(T)}, {v(EX + r)}, {v(ACCB + r)}')
        A(f'v_mul_f32 {v(T + 2)}, {f32(QSCALE)}, {v(T + 1)}')
        for r in range(8):
            A(f'v_mul_f32 {v(ACCB + r)}, {v(T + 2)}, {v(ACCB + r)}')
        for m in range(4):
            A(f'v_cvt_pk_bf16_f32 {v(P + m)}, {v(ACCB + 2 * m)}, {v(ACCB + 2 * m + 1)}')
        A(f's_add_u32 s31, s49, {C.qf}')
        C.vmem(f'buffer_store_dwordx4 {v(P, 4)}, v3, s[8:11], s31 offen{QWT}', 'st')
        le, lv = C.lab('ke'), C.lab('v')
        A('s_cmp_lg_u32 s29, s24')
        A(f's_cbranch_scc1 {le}')
        A('s_bfe_u32 s34, s20, 0x10001')
        A('s_lshl_b32 s30, s34, 14')
        A('s_lshl_b32 s31, s26, 10')
        A('s_add_u32 s30, s30, s31')
        A(f's_add_u32 s30, s30, {KVRED}')
        A('v_add_u32 v4, s30, v3')
        KR = 208
        for ww in range(8):
            A(f'ds_read_b128 {v(KR + ww * 4, 4)}, v4 offset:{ww * 2048}')
        KX = EX + 8
        if raw:
            A('s_lshl_b32 s30, s34, 6')
            A('s_lshl_b32 s31, s26, 5')
            A('s_add_u32 s30, s30, s31')
            A(f's_add_u32 s30, s30, {CSK + 256}')
            A('v_add_u32 v113, s30, v112')
            A(f'ds_read_b128 {v(KX, 4)}, v113')
        A('s_add_u32 s30, s27, s29')
        A(f's_mul_i32 s30, s30, {KVG}')
        A(f's_add_u32 s30, s30, {kvf}')
        A('v_bfe_u32 v4, v1, 4, 1')
        A(f'v_mul_u32_u24 v4, {VBS}, v4')
        A('v_bfe_u32 v5, v1, 2, 1')
        A('v_lshl_add_u32 v4, v5, 8, v4')
        A('v_and_b32 v5, 3, v1')
        A('v_lshl_add_u32 v4, v5, 1, v4')
        A('v_bfe_u32 v5, v1, 3, 1')
        A('v_lshl_add_u32 v4, v5, 3, v4')
        A('v_lshrrev_b32 v5, 5, v1')
        A('v_lshl_add_u32 v4, v5, 6, v4')
        A('s_waitcnt lgkmcnt(0)')
        for stp in (16, 8, 4):
            for r in range(stp):
                A(f'v_add_f32 {v(KR + r)}, {v(KR + r)}, {v(KR + stp + r)}')
        for r in range(4):
            A(f'v_fma_f32 {v(KR + r)}, -{v(T)}, {v(KX + r)}, {v(KR + r)}')
        for r in range(4):
            A(f'v_mul_f32 {v(KR + r)}, {v(T + 1)}, {v(KR + r)}')
        KP = KR + 8
        for m in range(2):
            A(f'v_cvt_pk_bf16_f32 {v(KP + m)}, {v(KR + 2 * m)}, {v(KR + 2 * m + 1)}')
        A('s_cmp_lg_u32 s34, 0')
        A(f's_cbranch_scc1 {lv}')
        A('s_lshl_b32 s31, s26, 3')
        A('s_add_u32 s31, s31, s30')
        A(f'buffer_store_dwordx2 {v(KP, 2)}, v3, s[8:11], s31 offen{QWT}')
        A(f's_branch {le}')
        A.label(lv)
        A('s_lshl_b32 s31, s26, 7')
        A('s_add_u32 s31, s31, s30')
        for r in range(4):
            op = 'buffer_store_short' if r % 2 == 0 else 'buffer_store_short_d16_hi'
            A(f'{op} {v(KP + r // 2)}, v4, s[8:11], s31 offen offset:{1024 + r * 16}{QWT}')
        A.label(le)
    else:
        for m in range(4):
            A(f'v_cvt_pk_bf16_f32 {v(P + m)}, {v(ACCB + 2 * m)}, {v(ACCB + 2 * m + 1)}')
        if mode == 'res':
            A(f's_add_u32 s31, s49, {outbase}')
            C.vmem(f'buffer_store_dwordx4 {v(P, 4)}, v3, s[8:11], s31 offen{WT}', 'st')
            blk_stats(C, P, T)
            A('s_lshr_b32 s31, s49, 2')
            A(f's_add_u32 s31, s31, {sxout}')
            A('v_lshlrev_b32 v4, 3, v1')
            A('s_mov_b32 exec_hi, 0')
            C.vmem(f'buffer_store_dwordx2 {v(T, 2)}, v4, s[8:11], s31 offen{WT}', 'st')
            A('s_mov_b64 exec, -1')
            if after_store:
                after_store()
        else:
            A('v_and_b32 v4, 31, v1')
            A('v_lshlrev_b32 v4, 10, v4')
            A('v_lshrrev_b32 v5, 5, v1')
            A('v_lshl_add_u32 v4, v5, 4, v4')
            A('s_add_u32 s30, s27, s29')
            A('s_lshl_b32 s30, s30, 15')
            A('s_lshl_b32 s31, s28, 6')
            A('s_add_u32 s30, s30, s31')
            A('s_lshl_b32 s31, s26, 5')
            A('s_add_u32 s30, s30, s31')
            A(f'v_permlane32_swap_b32 {v(P)}, {v(P + 2)}')
            A(f'v_permlane32_swap_b32 {v(P + 1)}, {v(P + 3)}')
            C.vmem(f'buffer_store_dwordx4 {v(P, 4)}, v4, s[12:15], s30 offen', 'st')


def qkv_wstep(C, st, n=1):
    A = C.A
    if st == 0:
        g3_waddr(C, (5, 6), 32, WQKVP)
    per = -(-8 // n)
    for i in range(st * per, min(8, (st + 1) * per)):
        g3_wload(C, (5, 6), i, 128)
    if st == n:
        A('s_lshl_b32 s30, s20, 12')
        A(f's_add_u32 s30, s30, {WQKVP + 16 * 32 * KB}')
        l = C.lab('kw')
        A('s_cmp_ge_u32 s24, 2')
        A(f's_cbranch_scc1 {l}')
        for k in range(4):
            A(f'buffer_load_dwordx4 {v(KVW + 4 * k, 4)}, v3, s[8:11], s30 offen offset:{k * 1024}')
        A.label(l)


def qkv_wloads(C):
    qkv_wstep(C, 0)
    qkv_wstep(C, 1)


KVR4, XF0, ST4, RED4 = 0, 36 * KB, 68 * KB, 80 * KB
G4_ORD = [0, 1, 4, 5, 8, 9, 12, 13, 2, 3, 6, 7, 10, 11, 14, 15]


def g4_ids(C):
    A = C.A
    A('s_and_b32 s18, s22, 3')
    A('s_lshl_b32 s30, s21, 2')
    A('s_add_u32 s18, s18, s30')
    A('s_and_b32 s30, s22, 12')
    A('s_add_u32 s30, s30, s25')
    A('s_lshl_b32 s30, s30, 1')
    A('s_add_u32 s30, s30, s26')
    A('s_lshl_b32 s19, s18, 5')
    A('s_add_u32 s19, s19, s30')
    A('s_lshl_b32 s19, s19, 10')
    A('s_lshr_b32 s3, s22, 2')
    A('s_and_b32 s30, s21, 3')
    A('s_xor_b32 s3, s3, s30')


def g4_waddr(C, vreg, wbase):
    A = C.A
    A('s_lshl_b32 s30, s26, 8')
    A(f'v_xor_b32 {v(vreg)}, s30, v3')
    A('s_and_b32 s30, s19, 0x7fff')
    A('s_lshl_b32 s30, s30, 4')
    A(f's_add_u32 s30, s30, {wbase}')
    A(f'v_add_u32 {v(vreg)}, s30, {v(vreg)}')


def g4_wreg(mode, i):
    if mode == 'qkv':
        return 128 + 4 * i
    return 224 + 4 * i if i < 8 else 64 + 4 * (i - 8)


def g4_wload(C, vreg, i, mode):
    so, im = soff(G4_ORD[i])
    C.vmem(f'buffer_load_dwordx4 {v(g4_wreg(mode, i), 4)}, {v(vreg)}, s[8:11], {so} offen offset:{im}', 'w')


def g4_pre(C, mode, xbase, resbase=None, raw=False):
    A = C.A
    EX = 96
    A('s_lshl_b32 s30, s18, 15')
    A('s_lshl_b32 s48, s20, 12')
    A('s_add_u32 s30, s30, s48')
    A(f's_add_u32 s30, s30, {xbase}')
    A('v_add_u32 v5, s30, v3')
    A('s_lshl_b32 s30, s26, 14')
    A(f's_add_u32 s30, s30, {XF0}')
    A('v_add_u32 v6, s30, v3')
    A(f'v_add_u32 v14, s48, v3')
    A(f's_add_u32 s48, s48, {XF0}')
    A('s_lshl_b32 s30, s20, 11')
    A(f's_add_u32 s30, s30, {RED4}')
    A('v_add_u32 v8, s30, v3')
    A('v_xor_b32 v7, 0x2000, v8')
    if mode == 'qkv':
        A('v_lshrrev_b32 v2, 5, v1')
        if not raw:
            A('v_lshlrev_b32 v4, 4, v2')
            A('s_and_b32 s31, s19, 0x7fff')
            A('s_lshr_b32 s31, s31, 4')
            A(f's_add_u32 s31, s31, {CSQKV}')
            C.vmem(f'buffer_load_dwordx4 {v(EX, 4)}, v4, s[8:11], s31 offen', 'ex')
            C.vmem(f'buffer_load_dwordx4 {v(EX + 4, 4)}, v4, s[8:11], s31 offen offset:32', 'ex')
            A('s_lshl_b32 s31, s25, 5')
            A(f's_add_u32 s31, s31, {CSQKV + 2048}')
            C.vmem(f'buffer_load_dwordx4 {v(EX + 8, 4)}, v4, s[8:11], s31 offen', 'ex')
        A('v_and_b32 v9, 31, v1')
        A('v_lshlrev_b32 v9, 3, v9')
        A(f'v_add_u32 v11, {ST4}, v9')
        A('s_lshl_b32 s30, s20, 8')
        A('v_add_u32 v10, s30, v11')
        A('v_lshl_add_u32 v9, v2, 9, v9')
        A('s_lshl_b32 s30, s18, 13')
        A('s_lshl_b32 s31, s20, 10')
        A('s_add_u32 s30, s30, s31')
        A(f's_add_u32 s30, s30, {resbase}')
        A('v_add_u32 v9, s30, v9')
        A('v_add_u32 v12, s48, v3')
        A('s_lshl_b32 s30, s25, 10')
        A(f's_add_u32 s30, s30, {KVR4}')
        A('v_add_u32 v13, s30, v3')
        A('v_bfe_u32 v15, v1, 4, 1')
        A('v_lshlrev_b32 v15, 9, v15')
        A('v_bfe_u32 v4, v1, 2, 1')
        A('v_lshl_add_u32 v15, v4, 8, v15')
        A('v_and_b32 v4, 3, v1')
        A('v_lshl_add_u32 v15, v4, 1, v15')
        A('v_bfe_u32 v4, v1, 3, 1')
        A('v_lshl_add_u32 v15, v4, 3, v15')
        A('v_lshl_add_u32 v15, v2, 6, v15')
    elif resbase is None:
        A('v_and_b32 v2, 31, v1')
        A('v_lshlrev_b32 v2, 10, v2')
        A('v_lshrrev_b32 v4, 5, v1')
        A('v_lshl_add_u32 v2, v4, 3, v2')
        A('s_lshl_b32 s30, s18, 15')
        A('s_and_b32 s31, s19, 0x7fff')
        A('s_lshr_b32 s31, s31, 5')
        A('s_add_u32 s30, s30, s31')
        C.vmem(f'buffer_load_dwordx2 {v(EX, 2)}, v2, s[12:15], s30 offen', 'ex')
        C.vmem(f'buffer_load_dwordx2 {v(EX + 2, 2)}, v2, s[12:15], s30 offen offset:16', 'ex')
    else:
        A(f's_add_u32 s31, s19, {resbase}')
        C.vmem(f'buffer_load_dwordx4 {v(EX, 4)}, v3, s[8:11], s31 offen', 'ex')


def ln_stats(A, T):
    for stp in (8, 4, 2):
        for e in range(stp):
            A(f'v_add_f32 {v(T + e)}, {v(T + e)}, {v(T + e + stp)}')
    A(f'v_mul_f32 {v(T)}, {f32(1.0 / 512)}, {v(T)}')
    A(f'v_mul_f32 {v(T + 1)}, {f32(1.0 / 512)}, {v(T + 1)}')
    A(f'v_fma_f32 {v(T + 1)}, -{v(T)}, {v(T)}, {v(T + 1)}')
    A(f'v_max_f32 {v(T + 1)}, 0, {v(T + 1)}')
    A(f'v_add_f32 {v(T + 1)}, {f32(1e-5)}, {v(T + 1)}')
    A(f'v_rsq_f32 {v(T + 1)}, {v(T + 1)}')


def g4_main(C, mode, outbase=None, sxout=None, kvf=None, kfl=None, hook_red=None, raw=None):
    A = C.A
    ACC, XR, EX = 16, 32, 96
    KW, KA, KR, T = 192, 208, 224, 108
    if not raw:
        A('s_mov_b32 m0, s48')
        A('s_nop 0')
        for k in range(4):
            C.vmem(f'buffer_load_dwordx4 v5, s[8:11], 0 offen offset:{k * 1024} lds', f'x{k}')

    def rd(i):
        A(f'ds_read_b128 {v(XR + 4 * (i % 8), 4)}, v6 offset:{G4_ORD[i] * 1024}')

    def mf(i):
        c = '0' if i == 0 else v(ACC, 16)
        A(f'v_mfma_f32_32x32x16_bf16 {v(ACC, 16)}, {v(g4_wreg(mode, i), 4)}, {v(XR + 4 * (i % 8), 4)}, {c}')

    if mode == 'qkv':
        A('s_add_u32 s35, s3, s26')
        if raw:
            raw['front']()
        else:
            for e in range(2):
                C.vmem(f'buffer_load_dwordx2 {v(T + 2 * e, 2)}, v9, s[8:11], 0 offen offset:{e * 256}', 'sx')
            C.wait('sx')
            C.stamp()
        lk = C.lab('k4')
        A('s_cmp_lg_u32 s3, 0')
        A(f's_cbranch_scc1 {lk}')
        if raw:
            raw['kvw']()
        else:
            for k in range(4):
                A(f'ds_read_b128 {v(KR + 4 * k, 4)}, v12 offset:{k * 1024}')
        for k in range(4):
            if not raw:
                A(f's_waitcnt lgkmcnt({3 - k})')
            A(f'v_mfma_f32_32x32x16_bf16 {v(KA, 16)}, {v(KW + 4 * k, 4)}, {v(KR + 4 * k, 4)}, {"0" if k == 0 else v(KA, 16)}')
        A.label(lk)
        A(f'v_add_f32 {v(T)}, {v(T)}, {v(T + 2)}')
        A(f'v_add_f32 {v(T + 1)}, {v(T + 1)}, {v(T + 3)}')
        A(f'v_mov_b32 {v(T + 2)}, {v(T)}')
        A(f'v_mov_b32 {v(T + 3)}, {v(T + 1)}')
        A('s_nop 1')
        swap_add(A, T, T + 2)
        swap_add(A, T + 1, T + 3)
        A(f'ds_write_b64 v10, {v(T, 2)}')
        A(f'v_mov_b32 {v(T + 2)}, 0')
        A(f'v_mov_b32 v9, {ST4 + 8192}')
        A(f'ds_write_b32 v9, {v(T + 2)}')
        lk = C.lab('k5')
        A('s_cmp_lg_u32 s3, 0')
        A(f's_cbranch_scc1 {lk}')
        for k in range(4):
            A(f'ds_write_b128 v14, {v(KA + 4 * k, 4)} offset:{k * 1024}')
        A.label(lk)
        A('s_waitcnt lgkmcnt(0)')
        A('s_barrier')
        for ww in range(8):
            A(f'ds_read_b64 {v(T + 2 * ww, 2)}, v11 offset:{ww * 256}')
        lv, le, lf = C.lab('v6'), C.lab('e6'), C.lab('f6')
        A('s_cmp_lg_u32 s35, 0')
        A(f's_cbranch_scc1 {le}')
        A('s_setprio 3')
        A('s_waitcnt lgkmcnt(4)')
        for ww in range(8):
            A(f'ds_read_b128 {v(KR + 4 * ww, 4)}, v13 offset:{ww * 4096}')
        A('s_waitcnt lgkmcnt(8)')
        for r in range(16):
            A(f'v_mov_b32 {v(KA + r)}, {v(T + r)}')
        ln_stats(A, KA)
        A('s_lshl_b32 s30, s18, 11')
        A(f's_add_u32 s30, s30, {kvf}')
        A('s_waitcnt lgkmcnt(0)')
        if raw:
            raw['kvcs0']()
        for stp in (16, 8, 4):
            for r in range(stp):
                A(f'v_add_f32 {v(KR + r)}, {v(KR + r)}, {v(KR + stp + r)}')
        if raw:
            raw['kvcs1']()
        for r in range(4):
            A(f'v_fma_f32 {v(KR + r)}, -{v(KA)}, {v(EX + 8 + r)}, {v(KR + r)}')
        for r in range(4):
            A(f'v_mul_f32 {v(KR + r)}, {v(KA + 1)}, {v(KR + r)}')
        for m in range(2):
            A(f'v_cvt_pk_bf16_f32 {v(KR + 8 + m)}, {v(KR + 2 * m)}, {v(KR + 2 * m + 1)}')
        A('s_cmp_ge_u32 s20, 2')
        A(f's_cbranch_scc1 {lv}')
        A('s_lshl_b32 s31, s20, 3')
        A('s_add_u32 s31, s31, s30')
        A(f'buffer_store_dwordx2 {v(KR + 8, 2)}, v3, s[8:11], s31 offen sc0 sc1')
        A(f's_branch {lf}')
        A.label(lv)
        A('s_lshl_b32 s31, s29, 10')
        A(f's_add_u32 s31, s31, {ST4 + 4096}')
        A('v_add_u32 v15, s31, v15')
        for r in range(4):
            op = 'ds_write_b16' if r % 2 == 0 else 'ds_write_b16_d16_hi'
            A(f'{op} v15, {v(KR + 8 + r // 2)} offset:{r * 16}')
        A('v_lshrrev_b32 v2, 3, v1')
        A('v_lshlrev_b32 v2, 8, v2')
        A(f'v_and_b32 {v(KR)}, 7, v1')
        A(f'v_lshl_add_u32 v2, {v(KR)}, 4, v2')
        A('v_add_u32 v15, s31, v2')
        A('s_mov_b32 exec_hi, 0')
        A(f'ds_read_b128 {v(KR + 12, 4)}, v15')
        A('s_lshl_b32 s31, s29, 7')
        A('s_add_u32 s31, s31, s30')
        A('s_waitcnt lgkmcnt(0)')
        A(f'buffer_store_dwordx4 {v(KR + 12, 4)}, v2, s[8:11], s31 offen offset:1024 sc0 sc1')
        A('s_mov_b64 exec, -1')
        A.label(lf)
        lg = C.lab('g6')
        A('s_lshl_b32 s30, s18, 7')
        A(f's_add_u32 s30, s30, {kfl}')
        if raw:
            raw['zchk']()
        A('s_mov_b64 exec, 1')
        A('s_waitcnt vmcnt(0)')
        A('ds_add_rtn_u32 v2, v9, v4')
        A('s_waitcnt lgkmcnt(0)')
        A('v_cmp_eq_u32 vcc, 3, v2')
        A('s_cbranch_vccz ' + lg)
        A('buffer_store_dword v4, v0, s[8:11], s30 offen sc0 sc1')
        A.label(lg)
        A('s_mov_b64 exec, -1')
        A('s_setprio 0')
        A.label(le)
        flag_b(C)
        A('s_waitcnt lgkmcnt(0)')
        if raw:
            raw['wprep']()
        for i in range(8):
            rd(i)
        ln_stats(A, T)
        for i in range(16):
            A(f's_waitcnt lgkmcnt({7 if i < 8 else 15 - i})')
            mf(i)
            if i < 8:
                rd(i + 8)
    else:
        C.wait('w')
        C.wait('x1')
        A('s_barrier')
        C.stamp()
        for i in range(8):
            rd(i)
        for i in range(4):
            A(f's_waitcnt lgkmcnt({7 - i})')
            mf(i)
        C.wait('x3')
        A('s_barrier')
        for i in range(8, 12):
            rd(i)
        for i in range(4, 8):
            A('s_waitcnt lgkmcnt(7)')
            mf(i)
            rd(i + 8)
        flag_b(C)
        for i in range(8, 16):
            A(f's_waitcnt lgkmcnt({15 - i})')
            mf(i)
            if hook_red and i >= 8:
                hook_red(i - 8)
    C.stamp()
    if mode == 'qkv':
        A(f'v_mul_f32 {v(T + 2)}, {f32(QSCALE)}, {v(T + 1)}')
        A('s_nop 10')
    else:
        C.wait('ex')
        TT = XR
        for m in range(4):
            A(f'v_lshlrev_b32 {v(TT + 2 * m)}, 16, {v(EX + m)}')
            A(f'v_and_b32 {v(TT + 2 * m + 1)}, 0xffff0000, {v(EX + m)}')
        A('s_nop 3')
    for h2 in range(2):
        A(f'ds_write_b128 v7, {v(ACC + 8 + 4 * h2, 4)} offset:{h2 * 1024}')
    if mode == 'qkv':
        if not raw:
            for r in range(8):
                A(f'v_fma_f32 {v(ACC + r)}, -{v(T)}, {v(EX + r)}, {v(ACC + r)}')
    else:
        for r in range(8):
            A(f'v_add_f32 {v(ACC + r)}, {v(ACC + r)}, {v(XR + r)}')
    A('s_waitcnt lgkmcnt(0)')
    A('s_barrier')
    for h2 in range(2):
        A(f'ds_read_b128 {v(ACC + 8 + 4 * h2, 4)}, v8 offset:{h2 * 1024}')
    if raw:
        raw['cs']()
        for r in range(8):
            A(f'v_fma_f32 {v(ACC + r)}, -{v(T)}, {v(EX + r)}, {v(ACC + r)}')
    A('s_waitcnt lgkmcnt(0)')
    for r in range(8):
        A(f'v_add_f32 {v(ACC + r)}, {v(ACC + r)}, {v(ACC + 8 + r)}')
    if mode == 'qkv':
        for r in range(8):
            A(f'v_mul_f32 {v(ACC + r)}, {v(T + 2)}, {v(ACC + r)}')
        for m in range(4):
            A(f'v_cvt_pk_bf16_f32 {v(124 + m)}, {v(ACC + 2 * m)}, {v(ACC + 2 * m + 1)}')
        A('s_barrier')
    else:
        P = ACC + 8
        for m in range(4):
            A(f'v_cvt_pk_bf16_f32 {v(P + m)}, {v(ACC + 2 * m)}, {v(ACC + 2 * m + 1)}')
        A(f's_add_u32 s31, s19, {outbase}')
        C.vmem(f'buffer_store_dwordx4 {v(P, 4)}, v3, s[8:11], s31 offen{WT}', 'st')
        blk_stats(C, P, XR)
        A('s_lshr_b32 s31, s19, 2')
        A(f's_add_u32 s31, s31, {sxout}')
        A('v_lshlrev_b32 v4, 3, v1')
        A('s_mov_b32 exec_hi, 0')
        C.vmem(f'buffer_store_dwordx2 {v(XR, 2)}, v4, s[8:11], s31 offen{WT}', 'st')
        A('s_mov_b64 exec, -1')


def qkv4_wstep(C, st, n):
    A = C.A
    if st == 0:
        g4_waddr(C, 5, WQKVP)
    per = QKV_PER
    for i in range(st * per, min(16, (st + 1) * per)):
        g4_wload(C, 5, i, 'qkv')
    C.qdone = min(16, (st + 1) * per)


def qkv4_wrest(C):
    A = C.A
    for i in range(C.qdone, 16):
        g4_wload(C, 5, i, 'qkv')
    l = C.lab('kw')
    A('s_lshl_b32 s30, s20, 12')
    A(f's_add_u32 s30, s30, {WQKVP + 16 * 32 * KB}')
    A('s_cmp_lg_u32 s3, 0')
    A(f's_cbranch_scc1 {l}')
    for k in range(4):
        A(f'buffer_load_dwordx4 {v(192 + 4 * k, 4)}, v3, s[8:11], s30 offen offset:{k * 1024}')
    A.label(l)


def att_kvdma(C, r):
    A = C.A
    A(f's_add_u32 m0, s37, {r * 8 * KVT}')
    A(f's_add_u32 s30, s38, {r * KVG}')
    C.vmem('buffer_load_dwordx4 v3, s[8:11], s30 offen lds', f'kv{r}')
    C.vmem('buffer_load_dwordx4 v3, s[8:11], s30 offen offset:1024 lds', f'kv{r}')


def att_kv(C, kvf, kfl, endlab):
    A = C.A
    A(f's_mul_i32 s37, s20, {KVT}')
    A('s_lshl_b32 s38, s20, 14')
    A(f's_add_u32 s38, s38, {kvf}')
    lp, lpd = C.lab('kp'), C.lab('kpd')
    A('v_lshlrev_b32 v0, 7, v1')
    A('s_lshl_b32 s30, s20, 10')
    A(f's_add_u32 s30, s30, {kfl}')
    A('s_mov_b32 s31, 0')
    A('s_mov_b64 exec, 0xff')
    A.label(lp)
    A('buffer_load_dword v2, v0, s[8:11], s30 offen sc1')
    A('s_add_u32 s31, s31, 1')
    A('s_waitcnt vmcnt(0)')
    A('v_cmp_ne_u32 vcc, 0, v2')
    A('s_cmp_eq_u64 vcc, 0xff')
    A(f's_cbranch_scc1 {lpd}')
    A(f's_sleep {KV_SLEEP}')
    A(f's_cmp_lt_u32 s31, {1 << 21}')
    A(f's_cbranch_scc1 {lp}')
    A(f's_branch {endlab}')
    A.label(lpd)
    A('s_mov_b64 exec, -1')
    C.vm = []
    C.stamp()

    att_kvdma(C, 0)
    att_kvdma(C, 1)


def att_phase(C, kvf, kfl, endlab, stubs, fixed={}, pf0=None, pre_hook=None, loadq=True, early=False):
    A = C.A
    tg = C.tag
    Q, CN, S0, S1, O, P, KF, VF, VK, VV, T = 124, 8, 24, 40, 56, 72, 80, 88, 104, 105, 106
    VV1 = 111
    S = [S0, S1]
    A(f's_add_u32 s36, s19, {C.B["OF"]}')
    if loadq:
        A(f's_add_u32 s31, s19, {C.B["QF"]}')
        C.vmem(f'buffer_load_dwordx4 {v(Q, 4)}, v3, s[8:11], s31 offen', 'q')
        flag_b(C)
    if not early:
        att_kv(C, kvf, kfl, endlab)

    def kvdma(r):
        att_kvdma(C, r)
    kvdma(2)
    if pre_hook:
        pre_hook()
    A(f'v_mov_b32 {v(VK)}, v3')
    A(f'v_and_b32 {v(T)}, 15, v1')
    A(f'v_lshrrev_b32 {v(T + 1)}, 5, v1')
    A(f'v_lshl_add_u32 {v(T)}, {v(T + 1)}, 4, {v(T)}')
    A(f'v_lshlrev_b32 {v(T)}, 4, {v(T)}')
    A(f'v_add_u32 {v(VV)}, 1024, {v(T)}')
    A(f'v_add_u32 {v(VV1)}, 1536, {v(T)}')
    A(f'v_and_b32 {v(T + 1)}, 31, v1')
    A(f'v_cmp_eq_u32 vcc, 16, {v(T + 1)}')
    A(f'v_mov_b32 {v(T + 2)}, 2048')
    A('s_nop 0')
    A(f'v_cndmask_b32 {v(VV)}, {v(VV)}, {v(T + 2)}, vcc')
    A(f'v_cndmask_b32 {v(VV1)}, {v(VV1)}, {v(T + 2)}, vcc')
    A(f'v_cmp_lt_u32 vcc, 16, {v(T + 1)}')
    A(f'v_mov_b32 {v(T + 2)}, 2064')
    A('s_nop 0')
    A(f'v_cndmask_b32 {v(VV)}, {v(VV)}, {v(T + 2)}, vcc')
    A(f'v_cndmask_b32 {v(VV1)}, {v(VV1)}, {v(T + 2)}, vcc')
    for r in range(16):
        A(f'v_mov_b32 {v(O + r)}, 0')
    for m in range(4, 8):
        A(f'v_mov_b32 {v(P + m)}, 0')
    for m in range(4):
        A(f'v_mov_b32 {v(VF + 12 + m)}, 0')
        A(f'v_mov_b32 {v(P + m)}, 0x3f803f80')
    A(f'v_mul_u32_u24 {v(T)}, {KVT}, v1')
    lcw = C.lab('cw')
    A('s_cmp_lg_u32 s20, 7')
    A(f's_cbranch_scc1 {lcw}')
    A(f'ds_write_b128 {v(T)}, {v(P, 4)} offset:2048')
    A(f'ds_write_b128 {v(T)}, {v(P + 4, 4)} offset:2064')
    A.label(lcw)
    C.wait('kv1', 'lgkmcnt(0)')
    A('s_barrier')
    C.stamp()

    def rdK(buf, t):
        A(f'ds_read_b128 {v(KF + buf * 4, 4)}, {v(VK)} offset:{t * KVT}')

    def rdV(buf, t):
        A(f'ds_read_b128 {v(VF + buf * 8, 4)}, {v(VV)} offset:{t * KVT}')
        A(f'ds_read_b128 {v(VF + buf * 8 + 4, 4)}, {v(VV1)} offset:{t * KVT}')

    rdK(0, 0)
    rdK(1, 1)
    rdV(0, 0)
    A('s_waitcnt lgkmcnt(3)')
    A(f'v_mfma_f32_32x32x16_bf16 {v(S0, 16)}, {v(KF, 4)}, {v(Q, 4)}, 0')
    for r in range(3, 6):
        kvdma(r)
    A(f'v_max3_f32 {v(T)}, {v(S0)}, {v(S0 + 1)}, {v(S0 + 2)}')
    for r in range(3, 15, 2):
        A(f'v_max3_f32 {v(T)}, {v(T)}, {v(S0 + r)}, {v(S0 + r + 1)}')
    A(f'v_max_f32 {v(T)}, {v(T)}, {v(S0 + 15)}')
    A(f'v_mov_b32 {v(T + 1)}, {v(T)}')
    A('s_nop 1')
    A(f'v_permlane32_swap_b32 {v(T)}, {v(T + 1)}')
    A(f'v_max_f32 {v(T)}, {v(T)}, {v(T + 1)}')
    for r in range(16):
        A(f'v_sub_f32 {v(CN + r)}, 0, {v(T)}')
    for r in range(16):
        A(f'v_sub_f32 {v(S0 + r)}, {v(S0 + r)}, {v(T)}')
    A('s_setprio 3')
    C.stamp()
    UN = ATT_UN
    NIT = 64 // UN
    queue = list(stubs)
    first_pf = 8 // UN
    pf0 = pf0 or first_pf
    per = -(-len(queue) // (NIT - pf0 - ATT_PFEND))
    prio = {int(NIT * 0.5): 2, int(NIT * 0.78): 1, NIT - 1: 0}
    for it in range(NIT):
        if it == (1 if UN == 4 else 0):
            for r in range(6, 8):
                kvdma(r)
        if it == first_pf:
            C.wait('kv7')
            A('s_barrier')
        if it in prio:
            A(f's_setprio {prio[it]}')
        if it in fixed:
            if FINE == 2:
                C.stamp()
            fixed[it]()
            if FINE == 2:
                C.stamp()
        if it >= pf0:
            for _ in range(per):
                if queue:
                    queue.pop(0)()
        A('s_call_b64 s[34:35], att_body')
    assert not queue
    A(f'v_mfma_f32_32x32x16_bf16 {v(O, 16)}, {v(VF + 8 + 4, 4)}, {v(P + 4, 4)}, {v(O, 16)}')
    A('s_mov_b32 s39, 0')
    C.stamp()
    A('s_waitcnt lgkmcnt(0)')
    A('s_nop 10')
    A.label(f'{tg}_fin')
    A(f'v_mov_b32 {v(T)}, {v(O + 8)}')
    A(f'v_mov_b32 {v(T + 1)}, {v(O + 8)}')
    A(f'v_mul_f32 {v(T + 2)}, 0, {v(O)}')
    A(f'v_fma_f32 {v(T + 2)}, {v(O + 1)}, 0, {v(T + 2)}')
    A(f'v_permlane32_swap_b32 {v(T)}, {v(T + 1)}')
    for r in range(2, 8):
        A(f'v_fma_f32 {v(T + 2)}, {v(O + r)}, 0, {v(T + 2)}')
    A(f'v_add_f32 {v(T + 2)}, {v(T + 2)}, {v(T)}')
    A(f'v_mov_b32 {v(T + 3)}, {f32(2.0 ** 30)}')
    A(f'v_cmp_nle_f32 vcc, {v(T + 2)}, {v(T + 3)}')
    A(f'v_rcp_f32 {v(T)}, {v(T)}')
    A('s_cmp_eq_u32 s39, 99')
    A(f's_cbranch_scc1 {tg}_store')
    A(f's_cbranch_vccnz {tg}_slow')
    A.label(f'{tg}_store')
    for r in range(8):
        A(f'v_mul_f32 {v(O + r)}, {v(T)}, {v(O + r)}')
    for m in range(4):
        A(f'v_cvt_pk_bf16_f32 {v(P + m)}, {v(O + 2 * m)}, {v(O + 2 * m + 1)}')
    C.vmem(f'buffer_store_dwordx4 {v(P, 4)}, v3, s[8:11], s36 offen{WT}', 'st')

    def tail(with_body):
        if with_body:
            A.raw('.p2align 6')
            A.label('att_body')
            for t in range(UN):
                cur, nxt = t & 1, (t + 1) & 1
                Sc, Sn = S[cur], S[nxt]
                A('s_waitcnt lgkmcnt(2)')
                A(f'v_mfma_f32_32x32x16_bf16 {v(Sn, 16)}, {v(KF + nxt * 4, 4)}, {v(Q, 4)}, {v(CN, 16)}')
                rdK(cur, t + 2)
                for r in range(6):
                    A(f'v_exp_f32 {v(Sc + r)}, {v(Sc + r)}')
                A(f'v_mfma_f32_32x32x16_bf16 {v(O, 16)}, {v(VF + nxt * 8 + 4, 4)}, {v(P + 4, 4)}, {v(O, 16)}')
                for r in range(6, 8):
                    A(f'v_exp_f32 {v(Sc + r)}, {v(Sc + r)}')
                for m in range(4):
                    A(f'v_cvt_pk_bf16_f32 {v(P + m)}, {v(Sc + 2 * m)}, {v(Sc + 2 * m + 1)}')
                A(f'v_exp_f32 {v(Sc + 8)}, {v(Sc + 8)}')
                A(f'v_exp_f32 {v(Sc + 9)}, {v(Sc + 9)}')
                A('s_waitcnt lgkmcnt(1)')
                A(f'v_mfma_f32_32x32x16_bf16 {v(O, 16)}, {v(VF + cur * 8, 4)}, {v(P, 4)}, {v(O, 16)}')
                rdV(nxt, t + 1)
                for r in range(10, 16):
                    A(f'v_exp_f32 {v(Sc + r)}, {v(Sc + r)}')
                for m in range(4, 8):
                    A(f'v_cvt_pk_bf16_f32 {v(P + m)}, {v(Sc + 2 * m)}, {v(Sc + 2 * m + 1)}')
            A(f'v_add_u32 {v(VK)}, {UN * KVT}, {v(VK)}')
            A(f'v_add_u32 {v(VV)}, {UN * KVT}, {v(VV)}')
            A(f'v_add_u32 {v(VV1)}, {UN * KVT}, {v(VV1)}')
            A('s_setpc_b64 s[34:35]')
        A.label(f'{tg}_slow')
        A(f'v_subrev_u32 {v(VK)}, {64 * KVT}, {v(VK)}')
        A(f'v_subrev_u32 {v(VV)}, {64 * KVT}, {v(VV)}')
        A(f'v_subrev_u32 {v(VV1)}, {64 * KVT}, {v(VV1)}')
        for r in range(16):
            A(f'v_mov_b32 {v(O + r)}, 0')
        M = T + 4
        A(f'v_sub_f32 {v(M)}, 0, {v(CN)}')
        A.label(f'{tg}_sloop')
        rdK(0, 0)
        rdV(0, 0)
        A('s_waitcnt lgkmcnt(0)')
        A(f'v_mfma_f32_32x32x16_bf16 {v(S0, 16)}, {v(KF, 4)}, {v(Q, 4)}, 0')
        A('s_nop 11')
        A(f'v_max3_f32 {v(T)}, {v(S0)}, {v(S0 + 1)}, {v(S0 + 2)}')
        for r in range(3, 15, 2):
            A(f'v_max3_f32 {v(T)}, {v(T)}, {v(S0 + r)}, {v(S0 + r + 1)}')
        A(f'v_max3_f32 {v(T)}, {v(T)}, {v(S0 + 15)}, {v(M)}')
        A(f'v_mov_b32 {v(T + 1)}, {v(T)}')
        A('s_nop 1')
        A(f'v_permlane32_swap_b32 {v(T)}, {v(T + 1)}')
        A(f'v_max_f32 {v(T)}, {v(T)}, {v(T + 1)}')
        A(f'v_sub_f32 {v(T + 1)}, {v(M)}, {v(T)}')
        A(f'v_exp_f32 {v(T + 1)}, {v(T + 1)}')
        A(f'v_mov_b32 {v(M)}, {v(T)}')
        for r in range(16):
            A(f'v_sub_f32 {v(S0 + r)}, {v(S0 + r)}, {v(T)}')
        for r in range(16):
            A(f'v_exp_f32 {v(S0 + r)}, {v(S0 + r)}')
        for r in range(16):
            A(f'v_mul_f32 {v(O + r)}, {v(T + 1)}, {v(O + r)}')
        for m in range(8):
            A(f'v_cvt_pk_bf16_f32 {v(P + m)}, {v(S0 + 2 * m)}, {v(S0 + 2 * m + 1)}')
        A('s_nop 1')
        A(f'v_mfma_f32_32x32x16_bf16 {v(O, 16)}, {v(VF, 4)}, {v(P, 4)}, {v(O, 16)}')
        A(f'v_mfma_f32_32x32x16_bf16 {v(O, 16)}, {v(VF + 4, 4)}, {v(P + 4, 4)}, {v(O, 16)}')
        A(f'v_add_u32 {v(VK)}, {KVT}, {v(VK)}')
        A(f'v_add_u32 {v(VV)}, {KVT}, {v(VV)}')
        A(f'v_add_u32 {v(VV1)}, {KVT}, {v(VV1)}')
        A('s_nop 11')
        A('s_add_u32 s39, s39, 1')
        A('s_cmp_lt_u32 s39, 64')
        A(f's_cbranch_scc1 {tg}_sloop')
        A('s_mov_b32 s39, 99')
        A(f's_branch {tg}_fin')
    return tail


V_WGU = 112


def gu_waddr(C):
    A = C.A
    A('s_mul_i32 s30, s22, 7')
    A('s_min_u32 s31, s20, 6')
    A('s_add_u32 s40, s30, s31')
    A('s_lshl_b32 s30, s40, 15')
    A(f's_add_u32 s30, s30, {WGUP}')
    A(f'v_add_u32 {v(V_WGU)}, s30, v3')


def gu_wload(C, ks):
    so, im = soff(ks)
    C.vmem(f'buffer_load_dwordx4 {v(128 + 4 * ks, 4)}, {v(V_WGU)}, s[8:11], {so} offen offset:{im}', 'wg')


def gu_pre(C):
    A = C.A
    CS = 112
    A('v_mov_b32 v15, v113')
    A('v_mov_b32 v9, v114')
    A(f'v_mov_b32 v14, {v(V_WGU)}')
    A('s_lshl_b32 s30, s21, 2')
    A('s_add_u32 s30, s30, s25')
    A('s_lshl_b32 s30, s30, 15')
    A('s_lshl_b32 s31, s26, 11')
    A('s_add_u32 s30, s30, s31')
    A(f's_add_u32 s30, s30, {C.B["XB"]}')
    A('v_add_u32 v13, s30, v3')
    A('s_lshl_b32 s48, s25, 15')
    A('s_add_u32 s48, s48, s31')
    A('v_add_u32 v7, 0x10000, v3')
    A('v_lshrrev_b32 v11, 5, v1')
    A('v_lshlrev_b32 v11, 4, v11')
    A('s_min_u32 s30, s20, 6')
    A('s_lshl_b32 s30, s30, 7')
    A(f's_add_u32 s30, s30, {130 * KB}')
    A('v_add_u32 v10, s30, v11')
    A('v_and_b32 v12, 31, v1')
    A('v_lshlrev_b32 v12, 3, v12')
    A('v_lshl_add_u32 v12, v11, 8, v12')
    A('s_lshl_b32 s30, s21, 15')
    A(f's_add_u32 s30, s30, {C.B["SXB"]}')
    A('v_add_u32 v12, s30, v12')
    A('v_lshlrev_b32 v8, 3, v1')
    A(f'v_add_u32 v8, {128 * KB}, v8')


def gu_main(C, after_store=None):
    A = C.A
    ACC, XF, CS = 16, 80, 112

    def dma(c):
        A(f's_add_u32 m0, s48, {c * 4096}')
        so = '0' if c == 0 else s(40 + c)
        A('s_nop 0')
        for k in range(2):
            C.vmem(f'buffer_load_dwordx4 v13, s[8:11], {so} offen offset:{k * 1024} lds', f'x{c}')
    dma(0)
    dma(1)

    def rd(ks):
        buf = ks & 1
        for i in range(4):
            base = 'v3' if i < 2 else 'v7'
            A(f'ds_read_b128 {v(XF + buf * 16 + i * 4, 4)}, {base} offset:{(i & 1) * 32768 + ks * 1024}')

    def stats_load(i):
        for e in range(16):
            C.vmem(f'buffer_load_dwordx2 {v(ACC + (i & 1) * 32 + 2 * e, 2)}, v12, s[8:11], {"0" if i == 0 else s(40 + 2 * i)} offen offset:{e * 256}', f's{i}')

    def stats_sum(i):
        b = ACC + (i & 1) * 32
        C.wait(f's{i}')
        for stp in (16, 8, 4, 2):
            for e in range(stp):
                A(f'v_add_f32 {v(b + e)}, {v(b + e)}, {v(b + e + stp)}')
        A(f'v_mov_b32 {v(b + 2)}, {v(b)}')
        A(f'v_mov_b32 {v(b + 3)}, {v(b + 1)}')
        A('s_nop 1')
        A(f'v_permlane32_swap_b32 {v(b)}, {v(b + 2)}')
        A(f'v_permlane32_swap_b32 {v(b + 1)}, {v(b + 3)}')
        A(f'v_add_f32 {v(b)}, {v(b)}, {v(b + 2)}')
        A(f'v_add_f32 {v(b + 1)}, {v(b + 1)}, {v(b + 3)}')
        A(f'v_mul_f32 {v(b)}, {f32(-1.0 / 512)}, {v(b)}')
        A(f'v_mul_f32 {v(b + 1)}, {f32(1.0 / 512)}, {v(b + 1)}')
        A(f'v_fma_f32 {v(b + 1)}, -{v(b)}, {v(b)}, {v(b + 1)}')
        A(f'v_max_f32 {v(b + 1)}, 0, {v(b + 1)}')
        A(f'v_add_f32 {v(b + 1)}, {f32(1e-5)}, {v(b + 1)}')
        A(f'v_rcp_f32 {v(b + 1)}, {v(b + 1)}')
        A('s_nop 0')
        A(f'ds_write_b64 v8, {v(b, 2)} offset:{i * 512}')
        A('s_waitcnt lgkmcnt(0)')

    def loop(idle):
        C.wait('x0')
        A('s_barrier')
        C.stamp()
        if not idle:
            rd(0)
        for ks in range(32):
            if ks + 1 < 32:
                if (ks + 1) in GU_BARS:
                    C.wait(f'x{GU_BARS[ks + 1]}')
                    A('s_barrier')
                if not idle:
                    rd(ks + 1)
                    if ks == 28:
                        for g in range(4):
                            A(f'ds_read_b128 {v(CS + g * 4, 4)}, v10 offset:{g * 32}')
                        A('s_waitcnt lgkmcnt(8)')
                    elif ks == 30:
                        for i in range(4):
                            A(f'ds_read_b64 {v(4 + 2 * i, 2)}, v8 offset:{i * 512}' if i < 2 else f'ds_read_b64 {v(10 + 2 * (i - 2), 2)}, v8 offset:{i * 512}')
                        A('s_waitcnt lgkmcnt(8)')
                    else:
                        A('s_waitcnt lgkmcnt(4)')
            elif not idle:
                A('s_waitcnt lgkmcnt(0)')
            buf = ks & 1
            todo = []
            if ks == 10:
                C.flagb = True
                flag_b(C)
            if ks < 6:
                todo.append(lambda: dma(ks + 2))
            if ks == 16 + WO_TAIL and not idle:
                C.wait('wg')
            if 6 <= ks < 6 + 16 - WO_TAIL and not idle:
                k2 = 16 + WO_TAIL + ks - 6
                so, im = soff(k2)
                todo.append(lambda k2=k2, so=so, im=im: C.vmem(f'buffer_load_dwordx4 {v(128 + 4 * k2, 4)}, v14, s[8:11], {so} offen offset:{im}', 'wg'))
            if ks >= GU_WD0:
                nleft = 28 - len(wdone)
                for st in [st for st in range(28) if st < ks and st not in wdone][:(2 if nleft > 31 - ks else 1)]:
                    todo.append(lambda st=st: g3_wload(C, (15, 9), st, 128))
                    wdone.add(st)
            for i in range(4):
                if not idle:
                    c = '0' if ks == 0 else v(ACC + i * 16, 16)
                    if GU16:
                        for t2 in range(2):
                            aa = ACC + i * 16 + ((ks & 1) * 2 + t2) * 4
                            A(f'v_mfma_f32_16x16x32_bf16 {v(aa, 4)}, {v(128 + 4 * (ks ^ t2 if ks > 1 else ks), 4)}, {v(XF + buf * 16 + i * 4, 4)}, {"0" if ks < 2 else v(aa, 4)}')
                    else:
                        A(f'v_mfma_f32_32x32x16_bf16 {v(ACC + i * 16, 16)}, {v(128 + 4 * ks, 4)}, {v(XF + buf * 16 + i * 4, 4)}, {c}')
                if i < 3 and todo:
                    f_ = todo.pop(0)
                    if not (GU_NOW and ks >= 6):
                        f_()
            if idle:
                if ks == 6:
                    stats_load(0)
                    stats_load(1)
                if ks == 8:
                    stats_sum(0)
                    stats_load(2)
                    stats_sum(1)
                    stats_load(3)
                if ks == 12:
                    stats_sum(2)
                    stats_sum(3)
                    A(f's_mul_i32 s30, s22, {7 * 128}')
                    A(f's_add_u32 s30, s30, {CSP}')
                    for kp in range(8):
                        C.vmem(f'buffer_load_dwordx4 {v(ACC + 4 * kp, 4)}, v3, s[8:11], s30 offen', 'cp')
                        if kp < 7:
                            A(f's_add_u32 s30, s30, {3584 * 4}')
                if ks == 16:
                    C.wait('cp')
                    for stp in (16, 8, 4):
                        for e in range(stp):
                            A(f'v_add_f32 {v(ACC + e)}, {v(ACC + e)}, {v(ACC + e + stp)}')
                    A(f'v_add_u32 v10, {130 * KB}, v3')
                    A(f'ds_write_b128 v10, {v(ACC, 4)}')
                    A('s_waitcnt lgkmcnt(0)')
        assert len(wdone) == 28
        C.stamp()
        if idle:
            if after_store:
                after_store()
            return
        P = XF
        A(f's_mul_i32 s30, s21, {4 * 112}')
        A('s_add_u32 s30, s30, s40')
        A('s_lshl_b32 s30, s30, 10')
        A(f's_add_u32 s30, s30, {C.B["HF"]}')
        A('s_nop 4')
        for i in range(4):
            acc = ACC + i * 16
            st = v(4 + 2 * i, 2) if i < 2 else v(10 + 2 * (i - 2), 2)
            for r in range(0, 16, 2):
                A(f'v_pk_fma_f32 {v(acc + r, 2)}, {st}, {v(CS + r, 2)}, {v(acc + r, 2)} op_sel_hi:[0,1,1]')
            for r in range(0, 8, 2):
                A(f'v_pk_mul_f32 {v(acc + r, 2)}, {v(acc + r, 2)}, {v(acc + 8 + r, 2)}')
            for r in range(0, 8, 2):
                A(f'v_pk_mul_f32 {v(acc + r, 2)}, {v(acc + r, 2)}, {st} op_sel:[0,1] op_sel_hi:[1,1]')
            pp = P + i * 4
            for m in range(4):
                A(f'v_cvt_pk_bf16_f32 {v(pp + m)}, {v(acc + 2 * m)}, {v(acc + 2 * m + 1)}')
            C.vmem(f'buffer_store_dwordx4 {v(pp, 4)}, v3, s[8:11], s30 offen{WT}', 'st')
            if i < 3:
                A(f's_add_u32 s30, s30, {112 * KB}')
        if after_store:
            after_store()

    ls, le = C.lab('gs'), C.lab('ge')
    A('s_cmp_eq_u32 s20, 7')
    A(f's_cbranch_scc1 {ls}')
    save, ns = list(C.vm), C.nstamp
    wdone = set()
    loop(False)
    A(f's_branch {le}')
    A.label(ls)
    C.vm, C.nstamp = list(save), ns
    wdone = set()
    loop(True)
    A.label(le)
    C.vm = ['st']


def swap_add(A, ra, rb):
    A(f'v_permlane32_swap_b32 {v(ra)}, {v(rb)}')
    A(f'v_add_f32 {v(ra)}, {v(ra)}, {v(rb)}')


def pre_part(C, end):
    A = C.A
    A('s_cmp_ge_u32 s2, 256')
    A(f's_cbranch_scc1 {end}')
    A('s_load_dwordx2 s[12:13], s[0:1], 0')
    A('s_load_dwordx2 s[16:17], s[0:1], 8')
    A('s_load_dwordx2 s[52:53], s[0:1], 16')
    A('s_load_dwordx2 s[56:57], s[0:1], 24')
    A('s_load_dwordx2 s[4:5], s[0:1], 80')
    for d, sz in ((12, 2048 * 1024), (16, 512 * 1024), (52, 512 * 32), (56, 512 * 32), (4, 256)):
        A(f's_mov_b32 {s(d + 2)}, {sz}')
        A(f's_mov_b32 {s(d + 3)}, 0x20000')
    setup(C, False, end)
    C.stamp()
    if TLBW:
        A('s_lshl_b32 s30, s20, 3')
        A(f's_add_u32 s30, s30, 32')
        A('s_cmp_eq_u32 s20, 1')
        A('s_cselect_b32 s30, 8, s30')
        A('s_load_dwordx2 s[32:33], s[0:1], s30')
        A('s_mov_b32 s31, 8192')
        A('s_cmp_ge_u32 s20, 2')
        A('s_cselect_b32 s31, 28672, s31')
        A('s_cmp_eq_u32 s20, 6')
        A('s_cselect_b32 s31, 4, s31')
        A('s_cmp_eq_u32 s20, 7')
        A(f's_cselect_b32 s31, {TLBW}, s31')
        A('v_mul_lo_u32 v4, v1, s31')
        A('s_waitcnt lgkmcnt(0)')
        A('global_load_dword v127, v4, s[32:33]')
    A('s_add_u32 s30, s21, 1')
    A('s_and_b32 s30, s30, 3')
    A('s_lshl_b32 s30, s30, 2')
    A('s_xor_b32 s30, s30, s22')
    A('s_add_u32 s30, s30, s20')
    A('s_cmp_lg_u32 s30, 0')
    A('s_cbranch_scc1 pr_z0')
    for r in range(4):
        A(f'v_mov_b32 {v(8 + r)}, 0')
    A('v_lshrrev_b32 v4, 4, v1')
    A('v_and_b32 v5, 15, v1')
    A('v_lshlrev_b32 v5, 4, v5')
    A('v_lshl_add_u32 v4, v4, 12, v5')
    A('s_lshl_b32 s30, s21, 8')
    A(f's_add_u32 s30, s30, {FLG}')
    for k in range(3):
        A('buffer_store_dwordx4 v[8:11], v4, s[8:11], s30 offen sc0 sc1')
        A('s_add_u32 s30, s30, 16384')
    A('v_lshlrev_b32 v4, 7, v1')
    A(f's_mul_i32 s30, s21, {64 * 128}')
    A(f's_add_u32 s30, s30, {PFL}')
    A('buffer_store_dwordx4 v[8:11], v4, s[8:11], s30 offen sc0 sc1')
    A('v_mov_b32 v5, 1')
    A('s_mov_b64 exec, 1')
    A('s_waitcnt vmcnt(0)')
    A('buffer_atomic_add v5, v8, s[4:7], 0 offen sc1')
    A('s_mov_b64 exec, -1')
    A('s_nop 1')
    A.label('pr_z0')
    KST, KW, KR, T, EX, XR = 240, 192, 224, 108, 96, 32
    WST, CSQ, CSKV = 96 * KB, ST4 + 9 * KB, ST4 + 10 * KB
    A('s_mov_b64 s[36:37], s[16:17]')
    A(f's_mov_b32 s38, {512 * 1024}')
    A('s_mov_b32 s39, 0x20000')
    g4_ids(C)
    A('s_lshl_b32 s30, s20, 11')
    A('s_cmp_lg_u32 s3, 0')
    A('s_cbranch_scc1 pr_k0')
    for k in range(4):
        A(f'buffer_load_dwordx4 {v(KST + 4 * k, 4)}, v3, {"s[52:55]" if k < 2 else "s[56:59]"}, s30 offen offset:{(k & 1) * 1024}')
    A.label('pr_k0')
    A('v_lshrrev_b32 v4, 3, v1')
    A('v_and_b32 v5, 7, v1')
    A('v_lshrrev_b32 v6, 4, v1')
    A('v_xor_b32 v6, v6, v5')
    A('v_lshlrev_b32 v7, 10, v4')
    A('v_lshl_add_u32 v8, v6, 4, v7')
    A('v_xor_b32 v9, 64, v8')
    A('s_lshl_b32 s30, s18, 15')
    A('s_lshl_b32 s31, s20, 7')
    A('s_add_u32 s30, s30, s31')
    A('s_lshl_b32 s32, s20, 12')
    for i in range(4):
        A(f's_add_u32 m0, s32, {KVR4 + i * 1024}')
        A('s_nop 0')
        C.vmem(f'buffer_load_dwordx4 {v(8 + (i & 1))}, s[12:15], s30 offen lds', 'x')
        A('s_add_u32 s30, s30, 8192')
    A('v_lshrrev_b32 v4, 2, v1')
    A('v_and_b32 v5, 3, v1')
    A('v_lshlrev_b32 v10, 10, v4')
    A('v_lshl_add_u32 v10, v5, 4, v10')
    A('s_lshl_b32 s31, s26, 18')
    A('s_bfe_u32 s30, s19, 0x4000b')
    A('s_lshl_b32 s30, s30, 6')
    A('s_add_u32 s31, s31, s30')
    A('s_lshl_b32 s51, s20, 13')
    A(f's_add_u32 s51, s51, {WST}')
    A('s_mov_b32 s50, s31')
    A('v_mov_b32 v88, v10')

    def wloads():
        for i in range(16):
            A(f's_add_u32 s30, s50, {G4_ORD[i] * 16384}')
            if i < 8:
                A(f's_add_u32 m0, s51, {i * 1024}')
                A('s_nop 0')
                A('buffer_load_dwordx4 v88, s[36:39], s30 offen lds')
            else:
                A(f'buffer_load_dwordx4 {v(128 + 4 * i, 4)}, v88, s[36:39], s30 offen')
    A('s_cmp_eq_u32 s3, 0')
    A('s_cbranch_scc1 pr_w1')
    A('s_barrier')
    wloads()
    A('s_waitcnt vmcnt(16)')
    A.label('pr_w1')
    C.stamp()
    A('v_and_b32 v64, 31, v1')
    A('v_lshrrev_b32 v65, 5, v1')
    A('v_lshlrev_b32 v66, 7, v64')
    A('v_lshl_add_u32 v66, v65, 3, v66')
    A('v_bfe_u32 v67, v1, 1, 3')
    A('v_lshl_add_u32 v66, v67, 4, v66')
    A(f's_add_u32 s30, s32, {KVR4}')
    A('v_add_u32 v66, s30, v66')
    A('v_bfe_u32 v67, v1, 2, 2')
    A('v_lshl_add_u32 v67, v65, 2, v67')
    A('v_lshlrev_b32 v68, 3, v5')
    A('v_bfe_u32 v69, v1, 4, 1')
    A('v_lshl_add_u32 v70, v67, 5, v68')
    A('v_lshl_add_u32 v70, v69, 11, v70')
    A('v_add_u32 v70, s30, v70')
    A('v_lshl_add_u32 v71, v67, 6, v68')
    A('v_lshl_add_u32 v71, v69, 5, v71')
    A('s_lshl_b32 s30, s26, 5')
    A('v_xor_b32 v71, s30, v71')
    A('v_add_u32 v71, s51, v71')
    A('v_add_u32 v72, s51, v3')
    A('v_mov_b32 v73, 0x3f803f80')
    A('v_lshlrev_b32 v74, 2, v64')
    A('s_lshl_b32 s30, s20, 7')
    A(f's_add_u32 s31, s30, {CSKV}')
    A('v_add_u32 v75, s31, v74')
    A('s_lshl_b32 s31, s26, 6')
    A('v_xor_b32 v74, s31, v74')
    A(f's_add_u32 s30, s30, {CSQ}')
    A('v_add_u32 v74, s30, v74')
    A('v_lshlrev_b32 v76, 4, v65')
    A('s_add_u32 s30, s30, s31')
    A('v_add_u32 v77, s30, v76')
    A('v_xor_b32 v78, 512, v77')
    A('s_lshl_b32 s30, s25, 5')
    A(f's_add_u32 s30, s30, {CSKV}')
    A('v_add_u32 v79, s30, v76')
    g4_pre(C, 'qkv', XA, resbase=0, raw=True)
    A('v_mov_b32 v0, 0')
    A('v_mov_b32 v4, 1')
    for ch in range(8):
        A(f'v_xor_b32 {v(80 + ch)}, {ch << 4}, v66')

    def front():
        A('s_cmp_lg_u32 s3, 0')
        A('s_cbranch_scc1 pr_w2')
        A('s_waitcnt vmcnt(0)')
        A.label('pr_w2')
        C.vm = []
        C.stamp()
        for ch in range(8):
            A(f'ds_read_b64 {v(KR + 2 * ch, 2)}, {v(80 + ch)}')
        A('s_waitcnt lgkmcnt(0)')
        for k in range(4):
            A(f'ds_write_b128 v12, {v(KR + 4 * k, 4)} offset:{k * 1024}')
        for r in range(8):
            for e in range(2):
                x = v(KR + 2 * r + e)
                A(f'v_dot2_f32_bf16 {v(T + 2 * e)}, {x}, v73, {"0" if r == 0 else v(T + 2 * e)}')
                A(f'v_dot2_f32_bf16 {v(T + 2 * e + 1)}, {x}, {x}, {"0" if r == 0 else v(T + 2 * e + 1)}')
        A('s_nop 0')

    def kvw():
        for k in range(4):
            A(f'ds_write_b128 v14, {v(KST + 4 * k, 4)} offset:{k * 1024}')
        A('s_waitcnt lgkmcnt(4)')
        for st in range(4):
            for h2 in range(2):
                A(f'ds_read_b64_tr_b16 {v(KW + 4 * st + 2 * h2, 2)}, v70 offset:{st * 512 + h2 * 256}')
        A('s_waitcnt lgkmcnt(0)')
        for r in range(8):
            for e in range(2):
                A(f'v_dot2_f32_bf16 {v(80 + e)}, {v(KW + 2 * r + e)}, v73, {"0" if r == 0 else v(80 + e)}')
        A('s_nop 2')
        A('v_add_f32 v80, v80, v81')
        A('v_mov_b32 v81, v80')
        A('s_nop 1')
        swap_add(A, 80, 81)
        A('ds_write_b32 v75, v80')

    def kvcs0():
        for ww in range(8):
            A(f'ds_read_b128 {v(XR + 4 * ww, 4)}, v79 offset:{ww * 128}')

    def kvcs1():
        A('s_waitcnt lgkmcnt(0)')
        for stp in (16, 8):
            for r in range(stp):
                A(f'v_add_f32 {v(XR + r)}, {v(XR + r)}, {v(XR + stp + r)}')
        for r in range(4):
            A(f'v_add_f32 {v(EX + 8 + r)}, {v(XR + r)}, {v(XR + 4 + r)}')

    def zchk():
        lz, lzd = C.lab('z'), C.lab('zd')
        A('s_mov_b32 s31, 0')
        A('s_mov_b64 exec, 1')
        A.label(lz)
        A('buffer_load_dword v2, v0, s[4:7], 0 offen sc1')
        A('s_waitcnt vmcnt(0)')
        A('v_cmp_le_u32 vcc, 16, v2')
        A('s_add_u32 s31, s31, 1')
        A('s_cmp_eq_u64 vcc, 1')
        A(f's_cbranch_scc1 {lzd}')
        A('s_sleep 8')
        A(f's_cmp_lt_u32 s31, {1 << 20}')
        A(f's_cbranch_scc1 {lz}')
        A(f's_branch {end}')
        A.label(lzd)
        A('s_mov_b64 exec, -1')

    def wprep():
        A('s_cmp_lg_u32 s3, 0')
        A('s_cbranch_scc1 pr_w3')
        wloads()
        A.label('pr_w3')
        zchk()
        C.vm = []
        C.stamp()
        for half in range(2):
            if half:
                for i in range(8):
                    A(f'ds_write_b128 v72, {v(160 + 4 * i, 4)} offset:{i * 1024}')
                A('s_waitcnt lgkmcnt(0)')
            for i in range(8):
                for h2 in range(2):
                    A(f'ds_read_b64_tr_b16 {v(128 + 32 * half + 4 * i + 2 * h2, 2)}, v71 offset:{i * 1024 + h2 * 512}')
                if i == 5:
                    A('s_waitcnt lgkmcnt(6)')
            if half:
                for r in range(8):
                    for e in range(4):
                        A(f'v_dot2_f32_bf16 {v(80 + e)}, {v(128 + 4 * r + e)}, v73, {"0" if r == 0 else v(80 + e)}')
            A('s_waitcnt lgkmcnt(0)')
        for r in range(8, 16):
            for e in range(4):
                A(f'v_dot2_f32_bf16 {v(80 + e)}, {v(128 + 4 * r + e)}, v73, {v(80 + e)}')
        A('s_nop 2')
        A('v_add_f32 v80, v80, v81')
        A('v_add_f32 v82, v82, v83')
        A('v_add_f32 v80, v80, v82')
        A('v_mov_b32 v81, v80')
        A('s_nop 1')
        swap_add(A, 80, 81)
        A('ds_write_b32 v74, v80')
        A('s_waitcnt lgkmcnt(0)')
        A('s_barrier')
        att_kv(C, KVF, KFL, end)

    def cs():
        for h2 in range(2):
            A(f'ds_read_b128 {v(EX + 4 * h2, 4)}, v77 offset:{h2 * 32}')
            A(f'ds_read_b128 {v(XR + 4 * h2, 4)}, v78 offset:{h2 * 32}')
        A('s_waitcnt lgkmcnt(0)')
        for r in range(8):
            A(f'v_add_f32 {v(EX + r)}, {v(EX + r)}, {v(XR + r)}')
        for r in range(12):
            A(f'v_mov_b32 {v(208 + r)}, {v(EX + r)}')

    g4_main(C, 'qkv', kvf=KVF, kfl=KFL, raw=dict(front=front, kvw=kvw, kvcs0=kvcs0, kvcs1=kvcs1, zchk=zchk, wprep=wprep, cs=cs))
    C.stamp()


def wq_store(C):
    A = C.A
    A('s_and_b32 s30, s18, 0x33')
    A('s_cmp_lg_u32 s30, 0')
    A('s_cbranch_scc1 pr_w0')
    g4_waddr(C, 112, WQKVP)
    for q4 in (3, 2, 1, 0):
        if q4:
            A(f's_cmp_lg_u32 s21, {q4}')
            A(f's_cbranch_scc1 pr_ws{q4}')
        for i in range(4 * q4, 4 * q4 + 4):
            so, im = soff(G4_ORD[i])
            A(f'buffer_store_dwordx4 {v(128 + 4 * i, 4)}, v112, s[8:11], {so} offen offset:{im} sc0 sc1')
        if q4:
            A('s_branch pr_w0')
            A.label(f'pr_ws{q4}')
    A('v_lshrrev_b32 v113, 5, v1')
    A('v_lshlrev_b32 v113, 4, v113')
    A('s_lshr_b32 s31, s19, 4')
    A(f's_add_u32 s31, s31, {CSQKV}')
    A('s_mov_b32 exec_lo, 1')
    A('s_mov_b32 exec_hi, 1')
    A('buffer_store_dwordx4 v[208:211], v113, s[8:11], s31 offen sc0 sc1')
    A('buffer_store_dwordx4 v[212:215], v113, s[8:11], s31 offen offset:32 sc0 sc1')
    A('s_mov_b64 exec, -1')
    A('s_cmp_lg_u32 s22, 0')
    A('s_cbranch_scc1 pr_w0')
    A('s_lshl_b32 s30, s20, 12')
    A(f's_add_u32 s30, s30, {WQKVP + 16 * 32 * KB}')
    for k in range(4):
        A(f'buffer_store_dwordx4 {v(192 + 4 * k, 4)}, v3, s[8:11], s30 offen offset:{k * 1024} sc0 sc1')
    A('s_cmp_ge_u32 s20, 4')
    A('s_cbranch_scc1 pr_w0')
    A('s_lshl_b32 s31, s20, 5')
    A(f's_add_u32 s31, s31, {CSQKV + 2048}')
    A('s_mov_b32 exec_lo, 1')
    A('s_mov_b32 exec_hi, 1')
    A('buffer_store_dwordx4 v[216:219], v113, s[8:11], s31 offen sc0 sc1')
    A('s_mov_b64 exec, -1')
    A.label('pr_w0')


def pack_ptrs(A):
    A('s_load_dwordx2 s[4:5], s[0:1], 32')
    A('s_load_dwordx4 s[52:55], s[0:1], 48')
    A('s_load_dwordx2 s[16:17], s[0:1], 64')


def pack_issue(C):
    A = C.A
    A('s_mul_i32 s30, s2, 3')
    A('s_add_u32 s30, s30, s20')
    A('s_mov_b32 s58, s30')
    A('s_cmp_lt_u32 s20, 3')
    A('s_cselect_b32 s57, 1, 0')
    A('s_cmp_lt_u32 s30, 736')
    A('s_cselect_b32 s57, s57, 0')
    A('s_cmp_eq_u32 s57, 0')
    A('s_cselect_b32 s30, 0, s30')
    A('s_cmp_lt_u32 s30, 64')
    A('s_cbranch_scc1 pk_jwo')
    A('s_cmp_lt_u32 s30, 512')
    A('s_cbranch_scc1 pk_jgu')
    A('s_sub_u32 s30, s30, 512')
    A('s_mov_b64 s[4:5], s[16:17]')
    A(f's_mov_b32 s6, {1792 * 1024}')
    A('s_mov_b32 s50, 1024')
    A('s_and_b32 s31, s30, 7')
    A('s_lshr_b32 s30, s30, 3')
    A('s_lshl_b32 s51, s30, 16')
    A('s_lshl_b32 s56, s31, 7')
    A('s_add_u32 s51, s51, s56')
    A(f's_mul_i32 s56, s31, {2 * 112 * KB}')
    A('s_lshl_b32 s30, s30, 12')
    A('s_add_u32 s56, s56, s30')
    A(f's_add_u32 s56, s56, {WDP}')
    A(f's_mov_b32 s52, {112 * KB}')
    A('s_mov_b32 s53, 256')
    A(f's_mov_b32 s54, {G1.CSDUMMY}')
    A('s_branch pk_jgo')
    A.label('pk_jwo')
    A(f's_mov_b32 s6, {512 * 1024}')
    A('s_mov_b32 s50, 1024')
    A('s_lshr_b32 s31, s30, 3')
    A('s_and_b32 s30, s30, 7')
    A('s_lshl_b32 s51, s30, 16')
    A('s_lshl_b32 s56, s31, 7')
    A('s_add_u32 s51, s51, s56')
    A('s_lshl_b32 s56, s31, 16')
    A('s_lshl_b32 s30, s30, 12')
    A('s_add_u32 s56, s56, s30')
    A(f's_add_u32 s56, s56, {WOP}')
    A(f's_mov_b32 s52, {32 * KB}')
    A('s_mov_b32 s53, 256')
    A(f's_mov_b32 s54, {G1.CSDUMMY}')
    A('s_branch pk_jgo')
    A.label('pk_jgu')
    A('s_sub_u32 s30, s30, 64')
    A('s_cmp_ge_u32 s30, 224')
    A('s_cselect_b32 s4, s54, s52')
    A('s_cselect_b32 s5, s55, s53')
    A('s_cselect_b32 s16, 1, 0')
    A('s_cselect_b32 s31, 224, 0')
    A('s_sub_u32 s30, s30, s31')
    A(f's_mov_b32 s6, {512 * 3584}')
    A('s_mov_b32 s50, 3584')
    A('s_lshr_b32 s31, s30, 3')
    A('s_and_b32 s30, s30, 7')
    A(f's_mul_i32 s51, s30, {64 * 3584}')
    A('s_lshl_b32 s56, s31, 7')
    A('s_add_u32 s51, s51, s56')
    A('s_lshl_b32 s56, s31, 17')
    A('s_lshl_b32 s17, s30, 12')
    A('s_add_u32 s56, s56, s17')
    A('s_lshl_b32 s17, s16, 8')
    A('s_add_u32 s56, s56, s17')
    A(f's_add_u32 s56, s56, {WGUP}')
    A(f's_mov_b32 s52, {64 * KB}')
    A(f's_mov_b32 s53, {32 * KB}')
    A(f's_mul_i32 s54, s30, {3584 * 4}')
    A('s_lshl_b32 s17, s31, 9')
    A('s_add_u32 s54, s54, s17')
    A('s_lshl_b32 s17, s16, 6')
    A('s_add_u32 s54, s54, s17')
    A(f's_add_u32 s54, s54, {CSP}')
    A.label('pk_jgo')
    A('v_lshrrev_b32 v112, 3, v1')
    A('v_and_b32 v113, 7, v1')
    A('v_mul_lo_u32 v112, v112, s50')
    A('v_lshl_add_u32 v112, v113, 4, v112')
    A('s_lshl_b32 s50, s50, 3')
    A('s_min_u32 s59, s20, 2')
    A('s_lshl_b32 s59, s59, 13')
    A(f's_add_u32 s59, s59, {136 * KB}')
    A('s_cmp_eq_u32 s57, 0')
    A('s_cbranch_scc1 pk_i_end')
    for i in range(8):
        A(f's_add_u32 m0, s59, {i * 1024}')
        A('s_nop 0')
        A('buffer_load_dwordx4 v112, s[4:7], s51 offen lds')
        A('s_add_u32 s51, s51, s50')
    A.label('pk_i_end')


def pack_convert(C):
    A = C.A
    A('s_cmp_eq_u32 s57, 0')
    A('s_cbranch_scc1 pk_c_end')
    A('v_lshrrev_b32 v112, 5, v1')
    A('v_bfe_u32 v113, v1, 2, 2')
    A('v_lshl_add_u32 v113, v112, 2, v113')
    A('v_and_b32 v114, 3, v1')
    A('v_lshlrev_b32 v114, 3, v114')
    A('v_lshl_add_u32 v113, v113, 7, v114')
    A('v_bfe_u32 v114, v1, 4, 1')
    A('v_lshl_add_u32 v113, v114, 5, v113')
    A('v_add_u32 v113, s59, v113')
    A('v_mul_lo_u32 v114, v114, s53')
    A('v_and_b32 v115, 15, v1')
    A('v_lshl_add_u32 v114, v115, 4, v114')
    A('v_lshl_add_u32 v114, v112, 9, v114')
    A('v_lshrrev_b32 v112, 4, v1')
    A('v_lshlrev_b32 v112, 7, v112')
    A('v_lshl_add_u32 v112, v115, 2, v112')
    A('v_mov_b32 v115, 0x3f803f80')
    A('s_add_u32 s52, s52, s56')
    A('s_waitcnt vmcnt(0)')
    for jj in range(2):
        for st in range(4):
            for h2 in range(2):
                A(f'ds_read_b64_tr_b16 {v(128 + 4 * (4 * jj + st) + 2 * h2, 2)}, v113 offset:{st * 2048 + h2 * 1024 + jj * 64}')
        A('s_waitcnt lgkmcnt(0)')
        for st in range(4):
            A(f'buffer_store_dwordx4 {v(128 + 4 * (4 * jj + st), 4)}, v114, s[8:11], {"s56" if jj == 0 else "s52"} offen offset:{st * 1024} sc0 sc1')
    A('s_cmp_eq_u32 s53, 256')
    A('s_cbranch_scc1 pk_c_end')
    for r in range(16):
        for jj in range(2):
            A(f'v_dot2_f32_bf16 {v(116 + jj)}, {v(128 + 16 * jj + r)}, v115, {"0" if r == 0 else v(116 + jj)}')
    A('s_nop 2')
    swap_add(A, 116, 117)
    A('buffer_store_dword v116, v112, s[8:11], s54 offen sc0 sc1')
    A.label('pk_c_end')


def pack_flag(C):
    A = C.A
    A('v_mov_b32 v112, 0')
    A('v_mov_b32 v113, 1')
    A('s_cmp_eq_u32 s57, 0')
    A('s_cbranch_scc1 pk_f_1')
    A('s_lshl_b32 s30, s58, 7')
    A(f's_add_u32 s30, s30, {PFL}')
    A('s_waitcnt vmcnt(0)')
    A('s_mov_b64 exec, 1')
    A('buffer_store_dword v113, v112, s[8:11], s30 offen sc0 sc1')
    A('s_mov_b64 exec, -1')
    A.label('pk_f_1')
    A('s_and_b32 s30, s18, 0x33')
    A('s_cmp_lg_u32 s30, 0')
    A('s_cbranch_scc1 pk_f_end')
    A('s_lshl_b32 s30, s22, 1')
    A('s_add_u32 s30, s30, s20')
    A('s_lshl_b32 s31, s21, 5')
    A('s_add_u32 s30, s30, s31')
    A('s_lshl_b32 s30, s30, 7')
    A(f's_add_u32 s30, s30, {PFL + 768 * 128}')
    A('s_waitcnt vmcnt(0)')
    A('s_mov_b64 exec, 1')
    A('buffer_store_dword v113, v112, s[8:11], s30 offen sc0 sc1')
    A('s_mov_b64 exec, -1')
    A.label('pk_f_end')


def pack_poll(C, endlab):
    A = C.A
    A('s_mul_i32 s30, s22, 7')
    A('s_lshr_b32 s30, s30, 2')
    A('v_lshrrev_b32 v112, 4, v1')
    A('v_add_u32 v112, s30, v112')
    A('v_min_u32 v112, 27, v112')
    A('v_and_b32 v113, 7, v1')
    A('v_lshl_add_u32 v112, v112, 3, v113')
    A('v_bfe_u32 v114, v1, 3, 1')
    A('v_mul_u32_u24 v114, 224, v114')
    A('v_add3_u32 v112, v112, v114, 64')
    A('s_mul_i32 s30, s20, 7')
    A('s_lshr_b32 s30, s30, 1')
    A('v_min_u32 v114, 4, v113')
    A('v_add_u32 v114, s30, v114')
    A('v_min_u32 v114, 27, v114')
    A('s_add_u32 s30, s24, 512')
    A('v_lshl_add_u32 v114, v114, 3, s30')
    A('v_cmp_le_u32 vcc, 48, v1')
    A('s_lshl_b32 s30, s24, 3')
    A('s_add_u32 s30, s30, s20')
    A('v_cndmask_b32 v112, v112, v114, vcc')
    A('v_mov_b32 v114, s30')
    A('v_cmp_le_u32 vcc, 56, v1')
    A('s_add_u32 s31, s20, 768')
    A('s_and_b32 s30, s22, 12')
    A('s_lshl_b32 s30, s30, 1')
    A('s_add_u32 s30, s30, s31')
    A('v_cndmask_b32 v112, v112, v114, vcc')
    for q4 in range(4):
        A(f'v_writelane_b32 v112, s30, {59 + q4}')
        A('s_add_u32 s30, s30, 32')
    A('v_writelane_b32 v112, s31, 63')
    A(f's_mov_b32 s30, {PFL}')
    A('s_mov_b32 s31, 0')
    A('v_lshlrev_b32 v112, 7, v112')
    A('s_bfe_u32 s32, s19, 0x3000c')
    A('s_lshl_b32 s32, s32, 3')
    A('s_lshl_b32 s33, s26, 2')
    A('s_add_u32 s32, s32, s33')
    A('v_and_b32 v114, 3, v1')
    A('v_add_u32 v114, s32, v114')
    A('v_lshlrev_b32 v114, 7, v114')
    A.label('pk_p')
    A('buffer_load_dword v113, v112, s[8:11], s30 offen sc1')
    A('buffer_load_dword v115, v114, s[8:11], s30 offen sc1')
    A('s_waitcnt vmcnt(0)')
    A('v_and_b32 v113, v113, v115')
    A('v_cmp_eq_u32 vcc, 1, v113')
    A('s_add_u32 s31, s31, 1')
    A('s_cmp_eq_u64 vcc, -1')
    A('s_cbranch_scc1 pk_pd')
    A('s_sleep 16')
    A(f's_cmp_lt_u32 s31, {1 << 19}')
    A('s_cbranch_scc1 pk_p')
    A(f's_branch {endlab}')
    A.label('pk_pd')
    C.vm = []


def layer_part(C, layer, end):
    A = C.A
    C.tag = f'l{layer}'
    last = layer == 1
    xin = None if layer == 0 else XC
    kvf = KVF if layer == 0 else KVF2
    kfl = KFL + layer * 64 * 128
    sy = 5 * layer + 1
    C.B = dict(QF=QF, OF=OF, XB=XB, SXB=SXB, HF=HF) if layer == 0 else dict(QF=QF2, OF=OF2, XB=XB2, SXB=SXB2, HF=HF2)
    B = C.B

    def pre_addr():
        gu_waddr(C)
        g3_waddr(C, (113, 114), 112, WDP)
        g4_waddr(C, 116, WOP)

    stubs = [lambda: (pre_addr(), gu_wload(C, 0))]
    stubs += [lambda ks=ks: gu_wload(C, ks) for ks in range(1, 24)]
    stubs += [lambda i=i: g4_wload(C, 116, i, 'res') for i in range(8)]
    if TOUCH and layer == 1:
        def t_addr():
            A('s_lshr_b32 s30, s2, 3')
            A('s_lshl_b32 s30, s30, 3')
            A('s_add_u32 s30, s30, s20')
            A(f's_mul_i32 s31, s30, {7 * KB}')
            A(f's_add_u32 s31, s31, {WDP}')
            A('v_add_u32 v118, s31, v3')
            A('s_lshl_b32 s31, s30, 11')
            A(f's_add_u32 s31, s31, {WQKVP}')
            A('v_add_u32 v119, s31, v3')

        def tch(vr, k):
            so, im = soff(k)
            C.vmem(f'buffer_load_dwordx4 v[120:123], {v(vr)}, s[8:11], {so} offen offset:{im}', 'tc')
        stubs += [lambda: (t_addr(), tch(V_WGU, 24))]
        stubs += [lambda ks=ks: tch(V_WGU, ks) for ks in range(25, 32)]
        stubs += [lambda k=k: tch(118, k) for k in range(7)]
        if not last:
            stubs += [lambda k=k: tch(119, k) for k in range(2)]

    def need_wo():
        A('s_lshr_b32 s30, s20, 1')
        A('s_lshl_b32 s30, s30, 2')
        A('s_and_b32 s31, s22, 3')
        A('s_add_u32 s30, s30, s31')
        A('s_lshl_b32 s32, 1, s30')

    def need_gu():
        A('s_lshl_b32 s32, 0x1111, s25')
        A('s_cmp_eq_u32 s20, 7')
        A('s_cselect_b32 s32, 0xffff, s32')

    def need_dn():
        A('s_lshl_b32 s30, s20, 1')
        A('s_lshl_b32 s32, 3, s30')

    def need_qkv():
        A('s_lshl_b32 s30, s20, 1')
        A('s_and_b32 s31, s24, 1')
        A('s_add_u32 s30, s30, s31')
        A('s_lshl_b32 s32, 1, s30')

    if layer == 0:
        fixed = {PK_I: lambda: (wq_store(C), pack_issue(C)), PK_C: lambda: pack_convert(C), PK_F: lambda: pack_flag(C), PK_P: lambda: pack_poll(C, end)}
        tail = att_phase(C, kvf, kfl, end, stubs, fixed, PK_P, pre_hook=lambda: pack_ptrs(A), loadq=False, early=True)
    else:
        tail = att_phase(C, kvf, kfl, end, stubs, pre_hook=lambda: A('s_load_dwordx2 s[12:13], s[0:1], 72'), loadq=False)
    C.stamp()
    A('s_nop 1')
    for i in range(8, 16):
        g4_wload(C, 116, i, 'res')
    g4_pre(C, 'res', B['OF'], resbase=xin)
    handoff(C, sy + 0, end, need_wo)
    C.stamp()
    g4_main(C, 'res', outbase=B['XB'], sxout=B['SXB'], hook_red=lambda k: gu_wload(C, 24 + k))
    C.stamp()
    gu_pre(C)
    handoff(C, sy + 1, end, need_gu)
    C.stamp()
    gu_main(C)
    C.stamp()
    g3_pre(C, 'res', 112, B['HF'], resbase=B['XB'])
    handoff(C, sy + 2, end, need_dn)
    C.stamp()
    if last:
        g3_main(C, 'out', 112, 128)
        C.stamp()
    else:
        g3_main(C, 'res', 112, 128, outbase=XC, sxout=SXC, hook_b=lambda st, n: qkv4_wstep(C, st, n), hook_red=lambda: qkv4_wrest(C))
        C.stamp()
        g4_pre(C, 'qkv', XC, resbase=SXC)
        handoff(C, sy + 3, end, need_qkv)
        C.stamp()
        g4_main(C, 'qkv', kvf=KVF2, kfl=KFL + 64 * 128)
        C.stamp()
    return tail


def build():
    A = Asm()
    name = NAME + '_kernel'
    C = Ctx(A, 'pr')
    C.qf = QF
    end = 'k_end'
    kernel_begin(A, name)
    pre_part(C, end)
    t0 = layer_part(C, 0, end)
    t1 = layer_part(C, 1, end)
    A('s_add_u32 s30, s2, s20')
    A('s_cmp_lg_u32 s30, 0')
    A('s_cbranch_scc1 k_fin')
    A('s_load_dwordx2 s[4:5], s[0:1], 80')
    A('s_mov_b32 s6, 256')
    A('v_mov_b32 v2, 0')
    A('s_mov_b64 exec, 1')
    A('s_waitcnt lgkmcnt(0)')
    A('buffer_store_dword v2, v2, s[4:7], 0 offen sc0 sc1')
    A('s_mov_b64 exec, -1')
    A.label('k_fin')
    stamp_end(C, 1)
    A.label(end)
    A('s_endpgm')
    t0(True)
    t1(False)
    body = A.text()
    probs = lint(body)
    for p in probs:
        print('LINT:', p, file=sys.stderr)
    head = '; generated by gen/gen3.py\n'
    head += f"; @launch grid=(256,1,1) block=(512,1,1) lds={LDS_BYTES}\n"
    head += '.amdgcn_target "amdgcn-amd-amdhsa--gfx950"\n.text\n'
    tail = '.section .rodata,"a"\n.p2align 6\n' + descriptor(name, 256, 0, nsgpr=100)
    print('stamps:', C.nstamp, file=sys.stderr)
    return head + body + tail


if __name__ == '__main__':
    if 'stamp' in sys.argv:
        STAMP = True
    for arg in sys.argv[2:]:
        if '=' in arg:
            k, val = arg.split('=')
            globals()[k] = int(val) if val.lstrip('-').isdigit() else val.replace('_', ' ')
    out = sys.argv[1] if len(sys.argv) > 1 else f'cdna_kernels/{NAME}.s'
    open(out, 'w').write(build())
    print('wrote', out)
```

```python
import sys
import math
import struct
from asmlib import Asm, v, a, s, lint
import gen as G1
from gen import f32, kernel_begin, descriptor, ws_srd, KB

NAME = G1.NAME
WQKVP, WOP, WGUP, WDP, CSQKV, CSGU = G1.WQKVP, G1.WOP, G1.WGUP, G1.WDP, G1.CSQKV, G1.CSGU
KVF, XA, XB, QF, OF, HF = G1.KVF, G1.XA, G1.XB, G1.QF, G1.OF, G1.HF
WS_SIZE, QSCALE = G1.WS_SIZE, G1.QSCALE
KVG = 2048
KVT = 2080
VBS = 512
XC = G1.WS_END
KVF2 = XC + 2048 * KB
FLG = KVF2 + 144 * KB
SXA = FLG + 64 * KB
SXB = SXA + 512 * KB
SXC = SXB + 512 * KB
CSP = SXC + 512 * KB
PFL = CSP + 128 * KB
KFL = PFL + 112 * KB
QF2 = KFL + 16 * KB
OF2 = QF2 + 2048 * KB
XB2 = OF2 + 2048 * KB
SXB2 = XB2 + 2048 * KB
HF2 = SXB2 + 512 * KB
WS_END = HF2 + 64 * 112 * KB
STAMPS = G1.STAMPS

STAMP = False
WT = ' sc0 sc1'
LDS_BYTES = 160 * KB
FINE = 0
WROT = 1
GU_TAIL = 1
ATT_R0 = 4
EXPT = 0
TLBW = 0
KV_SLEEP = 2
QKV_PER = 1
WO_TAIL = 16
SLO = 0
QWT = ' sc0 sc1'
GU16 = 0
GU_NOW = 0
GU_WD0 = 3
GU_BARS = {4: 1, 8: 2, 12: 7, 24: 7}
PK_I = 2
PK_C = 5
PK_F = 6
PK_P = 10
RT = 0
TOUCH = 1
ATT_UN = 4
ATT_PFEND = 1
G3_PR4 = 7
G3_PR14 = 6
G2_ST8 = [2, 2, 2, 2]
G2_ST28 = [2, 2, 4, 4, 4, 4, 4, 4]
G2_PRE8 = 4
G2_PRE28 = 6


class Ctx:
    def __init__(self, A, tag):
        self.A = A
        self.tag = tag
        self.vm = []
        self.nlab = 0
        self.nstamp = 1

    def lab(self, base):
        self.nlab += 1
        return f'{self.tag}_{base}{self.nlab}'

    def vmem(self, text, tag):
        self.A(text)
        self.vm.append(tag)
        assert len(self.vm) <= 63, 'vmcnt overflow'

    def wait(self, tag, extra=''):
        idx = [i for i, t in enumerate(self.vm) if t == tag]
        if not idx:
            if extra:
                self.A(f's_waitcnt {extra}')
            return
        n = len(self.vm) - 1 - idx[-1]
        self.A(f's_waitcnt vmcnt({n}) {extra}'.strip())
        self.vm = self.vm[idx[-1] + 1:]

    def stamp(self):
        if STAMP:
            i = self.nstamp - SLO
            self.nstamp += 1
            if i < 1 or i >= 28:
                return
            A = self.A
            A('s_waitcnt lgkmcnt(0)')
            A('s_memrealtime s[60:61]' if RT else 's_memtime s[60:61]')
            A('s_waitcnt lgkmcnt(0)')
            A(f's_mov_b32 {s(64 + i)}, s60')


def stamp_begin(C):
    if STAMP:
        A = C.A
        A('s_memrealtime s[62:63]')
        A('s_memtime s[60:61]')
        for i in range(1, 30):
            A(f's_mov_b32 {s(64 + i)}, 0')
        A('s_waitcnt lgkmcnt(0)')
        A('s_mov_b32 s64, s62' if RT else 's_mov_b32 s64, s60')
        A('s_mov_b32 s95, s62')


def stamp_end(C, kidx):
    if STAMP:
        A = C.A
        A('s_waitcnt vmcnt(0) lgkmcnt(0)')
        A('s_memtime s[60:61]')
        A('s_memrealtime s[62:63]')
        A('s_waitcnt lgkmcnt(0)')
        A('s_mov_b32 s93, s62' if RT else 's_mov_b32 s93, s60')
        A('s_mov_b32 s94, s62')
        A('s_mov_b64 exec, 1')
        A('s_lshl_b32 s60, s2, 10')
        A('s_lshl_b32 s61, s20, 7')
        A('s_add_u32 s60, s60, s61')
        A(f's_add_u32 s60, s60, {STAMPS + kidx * (1 << 20)}')
        A('v_mov_b32 v0, 0')
        for i in range(32):
            A(f'v_mov_b32 v1, {s(64 + i)}')
            A(f'buffer_store_dword v1, v0, s[8:11], s60 offen offset:{i * 4}')
        A('s_waitcnt vmcnt(0)')


def setup(C, need_out, endlab):
    A = C.A
    A('s_cmp_ge_u32 s2, 256')
    A(f's_cbranch_scc1 {endlab}')
    stamp_begin(C)
    ws_srd(A, 8)
    if need_out:
        A('s_load_dwordx2 s[12:13], s[0:1], 72')
        A(f's_mov_b32 s14, {2048 * 512 * 2}')
        A('s_mov_b32 s15, 0x20000')
    A('v_and_b32 v1, 63, v0')
    A('v_lshrrev_b32 v2, 6, v0')
    A('v_lshlrev_b32 v3, 4, v1')
    A('v_readfirstlane_b32 s20, v2')
    A('s_and_b32 s21, s2, 7')
    A('s_lshl_b32 s21, s21, 1')
    A('s_bfe_u32 s22, s2, 0x10003')
    A('s_add_u32 s21, s21, s22')
    A('s_lshr_b32 s22, s2, 4')
    A('s_and_b32 s23, s22, 1')
    A('s_lshr_b32 s24, s22, 1')
    A('s_and_b32 s25, s20, 3')
    A('s_lshr_b32 s26, s20, 2')
    A('s_lshl_b32 s27, s21, 2')
    A('s_lshl_b32 s30, s23, 1')
    A('s_add_u32 s27, s27, s30')
    A('s_lshl_b32 s28, s24, 1')
    A('s_bfe_u32 s30, s20, 0x10001')
    A('s_add_u32 s28, s28, s30')
    A('s_and_b32 s29, s20, 1')
    A('s_add_u32 s30, s27, s29')
    A('s_lshl_b32 s49, s30, 15')
    A('s_lshl_b32 s31, s28, 11')
    A('s_add_u32 s49, s49, s31')
    A('s_lshl_b32 s31, s26, 10')
    A('s_add_u32 s49, s49, s31')
    for g in range(1, 8):
        A(f's_mov_b32 {s(40 + g)}, {g * 4096}')
    A('s_waitcnt lgkmcnt(0)')


def soff(i):
    return ('0' if i // 4 == 0 else s(40 + i // 4)), (i % 4) * 1024


def handoff(C, sync, endlab, need, kvflag=None, first=False):
    A = C.A
    l1, l2, ld = C.lab('pa'), C.lab('pb'), C.lab('pd')
    need()
    A('s_mov_b32 s33, 0')
    A('v_lshlrev_b32 v0, 2, v1')
    A('s_lshl_b32 s30, s21, 8')
    A(f's_add_u32 s30, s30, {FLG + sync * 4096}')
    A('s_lshl_b32 s34, s22, 2')
    A('s_add_u32 s34, s34, s30')
    A('v_mov_b32 v4, 1')
    if first:
        lz, lzd = C.lab('z'), C.lab('zd')
        A('s_cmp_lg_u32 s20, 0')
        A(f's_cbranch_scc1 {lzd}')
        A('s_mov_b32 s31, 0')
        A('s_mov_b64 exec, 1')
        A.label(lz)
        A('buffer_load_dword v2, v0, s[4:7], 0 offen sc0 sc1')
        A('s_waitcnt vmcnt(0)')
        A('v_cmp_le_u32 vcc, 16, v2')
        A('s_add_u32 s31, s31, 1')
        A('s_cmp_eq_u64 vcc, 1')
        A(f's_cbranch_scc1 {lzd}')
        A('s_sleep 8')
        A(f's_cmp_lt_u32 s31, {1 << 20}')
        A(f's_cbranch_scc1 {lz}')
        A(f's_branch {endlab}')
        A.label(lzd)
        A('s_mov_b64 exec, -1')
    if kvflag is not None:
        A('s_waitcnt vmcnt(0) lgkmcnt(0)')
        C.vm = []
    else:
        C.wait('st', 'lgkmcnt(0)')
    A('s_cmp_lg_u32 s20, 0')
    A('s_barrier')
    l, lb, lb2 = C.lab('sig'), C.lab('sb'), C.lab('sc')
    A(f's_cbranch_scc1 {l}')
    A('s_mov_b64 exec, 1')
    if kvflag is not None:
        lk = C.lab('kf')
        A('s_cmp_ge_u32 s24, 2')
        A(f's_cbranch_scc1 {lk}')
        A('s_add_u32 s31, s27, s24')
        A('s_lshl_b32 s31, s31, 7')
        A(f's_add_u32 s31, s31, {kvflag}')
        A('s_mov_b64 exec, 15')
        A('buffer_store_dword v4, v0, s[8:11], s31 offen sc0 sc1')
        A('s_mov_b64 exec, 1')
        A.label(lk)
    A('buffer_store_dword v4, v0, s[8:11], s34 offen')
    A.label(l)
    A('s_mov_b32 s31, 0')
    A('s_mov_b64 exec, s[32:33]')
    A.label(l1)
    A('buffer_load_dword v2, v0, s[8:11], s30 offen sc1')
    A('s_add_u32 s31, s31, 1')
    A('s_waitcnt vmcnt(0)')
    A('v_cmp_ne_u32 vcc, 0, v2')
    A('s_cmp_eq_u64 vcc, s[32:33]')
    A(f's_cbranch_scc1 {ld}')
    A('s_cmp_lt_u32 s31, 64')
    A(f's_cbranch_scc1 {l1}')
    A('s_mov_b64 exec, 1')
    A('buffer_store_dword v4, v0, s[8:11], s34 offen offset:128 sc0 sc1')
    A('s_mov_b64 exec, s[32:33]')
    A.label(l2)
    A('buffer_load_dword v2, v0, s[8:11], s30 offen sc1')
    A('s_waitcnt vmcnt(0)')
    A('v_cmp_ne_u32 s[36:37], 0, v2')
    A('buffer_load_dword v2, v0, s[8:11], s30 offen offset:128 sc0 sc1')
    A('s_waitcnt vmcnt(0)')
    A('v_cmp_ne_u32 vcc, 0, v2')
    A('s_add_u32 s31, s31, 1')
    A('s_or_b64 vcc, vcc, s[36:37]')
    A('s_cmp_eq_u64 vcc, s[32:33]')
    A(f's_cbranch_scc1 {ld}')
    A('s_sleep 4')
    A(f's_cmp_lt_u32 s31, {1 << 20}')
    A(f's_cbranch_scc1 {l2}')
    A(f's_branch {endlab}')
    A.label(ld)
    A('s_mov_b64 exec, -1')
    C.vm = []
    C.flagb = True


def flag_b(C):
    if getattr(C, 'flagb', False):
        A = C.A
        l = C.lab('fb')
        A('s_cmp_lg_u32 s20, 0')
        A(f's_cbranch_scc1 {l}')
        A('s_mov_b64 exec, 1')
        A('buffer_store_dword v4, v0, s[8:11], s34 offen offset:128 sc0 sc1')
        A('s_mov_b64 exec, -1')
        A.label(l)
        C.flagb = False


ACCB, ACCA = 16, 48
KVW, KACC, QSX = 160, 176, 240
KVRED, STAT, CSX, CSK = 112 * KB, 144 * KB, 148 * KB, 152 * KB


def blk_stats(C, P, T):
    A = C.A
    A(f'v_mov_b32 {v(T + 4)}, 0x3f803f80')
    A(f'v_dot2_f32_bf16 {v(T + 1)}, {v(P)}, {v(P)}, 0')
    A(f'v_dot2_f32_bf16 {v(T)}, {v(P)}, {v(T + 4)}, 0')
    for m in range(1, 4):
        A(f'v_dot2_f32_bf16 {v(T + 1)}, {v(P + m)}, {v(P + m)}, {v(T + 1)}')
        A(f'v_dot2_f32_bf16 {v(T)}, {v(P + m)}, {v(T + 4)}, {v(T)}')
    A('s_nop 2')
    A(f'v_mov_b32 {v(T + 2)}, {v(T)}')
    A(f'v_mov_b32 {v(T + 3)}, {v(T + 1)}')
    A('s_nop 1')
    A(f'v_permlane32_swap_b32 {v(T)}, {v(T + 2)}')
    A(f'v_permlane32_swap_b32 {v(T + 1)}, {v(T + 3)}')
    A(f'v_add_f32 {v(T)}, {v(T)}, {v(T + 2)}')
    A(f'v_add_f32 {v(T + 1)}, {v(T + 1)}, {v(T + 3)}')


def g3_waddr(C, vregs, KS, wbase):
    A = C.A
    NS = KS // 8
    A('s_lshl_b32 s30, s26, 8')
    A(f'v_xor_b32 {v(vregs[0])}, s30, v3')
    A(f's_mul_i32 s31, s20, {NS * KB}')
    A(f's_add_u32 s31, s31, {wbase}')
    A('s_xor_b32 s30, s28, 1')
    A(f's_mul_i32 s30, s30, {KS * KB}')
    A('s_add_u32 s30, s30, s31')
    A(f'v_add_u32 {v(vregs[1])}, s30, {v(vregs[0])}')
    A(f's_mul_i32 s30, s28, {KS * KB}')
    A('s_add_u32 s30, s30, s31')
    A(f'v_add_u32 {v(vregs[0])}, s30, {v(vregs[0])}')


def g3_wload(C, vregs, idx, wreg0, tag='w'):
    st, jj = idx // 2, idx % 2
    so, im = soff(st)
    C.vmem(f'buffer_load_dwordx4 {v(wreg0 + 4 * idx, 4)}, {v(vregs[jj])}, s[8:11], {so} offen offset:{im}', tag)


def g3_ex(mode, KS):
    return 252 if KS == 112 else (112 if mode == 'qkv' else 116)


def g3_pre(C, mode, KS, xbase, resbase=None, raw=False):
    A = C.A
    NS = KS // 8
    EX = g3_ex(mode, KS)
    A(f's_mul_i32 s31, s20, {NS * KB}')
    A(f's_add_u32 s31, s31, {xbase}')
    A('s_add_u32 s30, s27, s29')
    A(f's_mul_i32 s32, s30, {KS * KB}')
    A('s_add_u32 s32, s32, s31')
    A('v_add_u32 v6, s32, v3')
    A('s_xor_b32 s30, s30, 1')
    A(f's_mul_i32 s32, s30, {KS * KB}')
    A('s_add_u32 s32, s32, s31')
    A('v_add_u32 v5, s32, v3')
    A('s_lshl_b32 s30, s20, 11')
    A('v_add_u32 v8, s30, v3')
    A('v_add_u32 v7, 0x10000, v8')
    for b in range(1, 8):
        A(f's_xor_b32 s30, s20, {b}')
        A('s_lshl_b32 s30, s30, 11')
        A(f's_add_u32 s30, s30, {(b - 1) * 16 * KB}')
        A(f'v_add_u32 {v(8 + b)}, s30, v3')
    if raw:
        return
    if mode == 'qkv':
        A('v_lshrrev_b32 v2, 5, v1')
        A('v_lshlrev_b32 v4, 4, v2')
        A('s_lshl_b32 s31, s28, 7')
        A('s_lshl_b32 s30, s26, 6')
        A('s_add_u32 s31, s31, s30')
        A(f's_add_u32 s31, s31, {CSQKV}')
        C.vmem(f'buffer_load_dwordx4 {v(EX, 4)}, v4, s[8:11], s31 offen', 'ex')
        C.vmem(f'buffer_load_dwordx4 {v(EX + 4, 4)}, v4, s[8:11], s31 offen offset:32', 'ex')
        A('s_bfe_u32 s30, s20, 0x10001')
        A('s_lshl_b32 s30, s30, 6')
        A('s_lshl_b32 s31, s26, 5')
        A('s_add_u32 s30, s30, s31')
        A(f's_add_u32 s31, s30, {CSQKV + 2048}')
        C.vmem(f'buffer_load_dwordx4 {v(EX + 8, 4)}, v4, s[8:11], s31 offen', 'ex')
        A(f'v_and_b32 {v(QSX + 8)}, 31, v1')
        A(f'v_lshlrev_b32 {v(QSX + 8)}, 3, {v(QSX + 8)}')
        A(f'v_lshl_add_u32 {v(QSX + 8)}, v2, 13, {v(QSX + 8)}')
        A('s_lshl_b32 s30, s27, 13')
        A('s_lshl_b32 s31, s20, 10')
        A('s_add_u32 s30, s30, s31')
        A(f's_add_u32 s30, s30, {resbase}')
        A(f'v_add_u32 {v(QSX + 8)}, s30, {v(QSX + 8)}')
    elif resbase is None:
        A('v_and_b32 v2, 31, v1')
        A('v_lshlrev_b32 v2, 10, v2')
        A('v_lshrrev_b32 v4, 5, v1')
        A('v_lshl_add_u32 v2, v4, 3, v2')
        A('s_add_u32 s30, s27, s29')
        A('s_lshl_b32 s30, s30, 15')
        A('s_lshl_b32 s31, s28, 6')
        A('s_add_u32 s30, s30, s31')
        A('s_lshl_b32 s31, s26, 5')
        A('s_add_u32 s30, s30, s31')
        C.vmem(f'buffer_load_dwordx2 {v(EX, 2)}, v2, s[12:15], s30 offen', 'ex')
        C.vmem(f'buffer_load_dwordx2 {v(EX + 2, 2)}, v2, s[12:15], s30 offen offset:16', 'ex')
    else:
        A(f's_add_u32 s31, s49, {resbase}')
        C.vmem(f'buffer_load_dwordx4 {v(EX, 4)}, v3, s[8:11], s31 offen', 'ex')


def g3_main(C, mode, KS, wreg0, outbase=None, kvf=None, after_store=None, sxout=None, hook_b=None, raw=False, hook_red=None):
    A = C.A
    NS = KS // 8
    EX = g3_ex(mode, KS)
    if NS == 4:
        xreg = {(hh, st): 80 + (hh * 4 + st) * 4 for hh in range(2) for st in range(4)}
    else:
        slot = [80 + 4 * k for k in range(12)] + [240, 244]
        xreg = {(hh, st): slot[st] for hh in range(2) for st in range(NS)}

    def xload(hh, st):
        so, im = soff(st)
        C.vmem(f'buffer_load_dwordx4 {v(xreg[hh, st], 4)}, {v(5 + hh)}, s[8:11], {so} offen offset:{im}', f'x{hh}_{st}')

    seq = [(hh, st) for hh in range(2) for st in range(NS)]
    PR = G3_PR4 if NS == 4 else G3_PR14
    if raw:
        seq, PR = [], 0
    for x in seq[:PR]:
        xload(*x)
    nxt = PR
    C.wait('w')

    def wr(b):
        base = (ACCA if b & 1 else ACCB) + ((b >> 1) & 1) * 16 + (b >> 2) * 8
        return [f'ds_write_b128 {v(8 + b)}, {v(base + h2 * 4, 4)} offset:{h2 * 1024}' for h2 in range(2)]

    pend = []
    for hh in range(2):
        acc = ACCA if hh == 0 else ACCB
        for st in range(NS):
            C.wait(f'x{hh}_{st}')
            if hh == 0 and st == 0:
                C.stamp()
            for jj in range(2):
                c = '0' if st == 0 else v(acc + jj * 16, 16)
                A(f'v_mfma_f32_32x32x16_bf16 {v(acc + jj * 16, 16)}, {v(wreg0 + 4 * (2 * st + jj), 4)}, {v(xreg[hh, st], 4)}, {c}')
                if hh == 1 and (st >= 3 or (NS == 4 and st >= 2)):
                    for _ in range(2 if NS == 4 else 1):
                        if pend:
                            A(pend.pop(0))
            if nxt < len(seq):
                xload(*seq[nxt])
                nxt += 1
                if nxt == len(seq):
                    if mode == 'qkv':
                        for e in range(4):
                            C.vmem(f'buffer_load_dwordx2 {v(QSX + 2 * e, 2)}, {v(QSX + 8)}, s[8:11], 0 offen offset:{e * 256}', 'sx')
                    flag_b(C)
                    hb = 0
            elif hook_b:
                hb += 1
            if hook_b and nxt == len(seq):
                hook_b(hb, PR)
            if hh == 1 and NS == 4 and st == 1:
                A('s_nop 7' if raw else 's_nop 5')
            if hh == 1 and NS != 4 and st == 2:
                A('s_nop 2')
        if hh == 0:
            pend = wr(1) + wr(5) + wr(3) + wr(7)
    assert not pend
    C.stamp()
    lkv = C.lab('nokv')
    if mode == 'qkv':
        la, lb = C.lab('ka'), C.lab('kb')
        A('s_cmp_ge_u32 s24, 2')
        A(f's_cbranch_scc1 {lb}')
        A('s_cmp_eq_u32 s24, s29')
        A(f's_cbranch_scc0 {la}')
        for hh in (1, 0):
            for st in range(4):
                c = '0' if st == 0 else v(KACC, 16)
                A(f'v_mfma_f32_32x32x16_bf16 {v(KACC, 16)}, {v(KVW + 4 * st, 4)}, {v(xreg[hh, st], 4)}, {c}')
            if hh == 1:
                A(f's_branch {lb}')
                A.label(la)
        A.label(lb)
        A('v_lshlrev_b32 v4, 3, v1')
        if not raw:
            C.wait('sx')
            for e in range(4):
                A(f'v_add_f32 {v(QSX + e)}, {v(QSX + e)}, {v(QSX + 4 + e)}')
            for e in range(2):
                A(f'v_add_f32 {v(QSX + e)}, {v(QSX + e)}, {v(QSX + 2 + e)}')
            A('s_lshl_b32 s30, s20, 9')
            A(f's_add_u32 s30, s30, {STAT}')
            A('v_add_u32 v2, s30, v4')
            A(f'ds_write_b64 v2, {v(QSX, 2)}')
        else:
            A('v_lshrrev_b32 v112, 5, v1')
            A('v_lshlrev_b32 v112, 4, v112')
            A('s_and_b32 s30, s28, 1')
            A('s_lshl_b32 s30, s30, 7')
            A('s_lshl_b32 s31, s26, 6')
            A('s_add_u32 s30, s30, s31')
            A(f's_add_u32 s30, s30, {CSK}')
            A('v_add_u32 v113, s30, v112')
            A('s_nop 3')
        A('v_and_b32 v4, 0xf8, v4')
        A('s_lshl_b32 s30, s29, 8')
        A(f's_add_u32 s30, s30, {STAT}')
        A('v_add_u32 v4, s30, v4')
    else:
        A('s_nop 10')
    for b in (4, 2, 6):
        for x in wr(b):
            A(x)
    if mode == 'qkv':
        A('s_cmp_ge_u32 s24, 2')
        A(f's_cbranch_scc1 {lkv}')
        A(f'v_add_u32 v2, {KVRED}, v8')
        for k4 in range(4):
            A(f'ds_write_b128 v2, {v(KACC + k4 * 4, 4)} offset:{(k4 >> 1) * 16 * KB + (k4 & 1) * 1024}')
        A.label(lkv)
    if hook_red:
        hook_red()
    A('s_waitcnt lgkmcnt(0)')
    A('s_barrier')
    for b in range(1, 8):
        for h2 in range(2):
            base, off = ('v8', (b - 1) * 16 * KB) if b <= 4 else ('v7', (b - 5) * 16 * KB)
            A(f'ds_read_b128 {v(ACCB + b * 8 + h2 * 4, 4)}, {base} offset:{off + h2 * 1024}')
    T = 80

    def red(base, waits):
        for stp in (32, 16, 8):
            for r in range(stp):
                A(f'v_add_f32 {v(base + r)}, {v(base + r)}, {v(base + stp + r)}')
    if mode == 'qkv':
        A('s_waitcnt lgkmcnt(6)')
        for ww in range(8):
            A(f'ds_read_b64 {v(T + ww * 2, 2)}, v4 offset:{ww * 512}')
        A('s_waitcnt lgkmcnt(8)')
        if raw:
            EX = 192
            for h2 in range(2):
                A(f'ds_read_b128 {v(EX + h2 * 4, 4)}, v113 offset:{h2 * 32}')
    else:
        C.wait('ex')
        for m in range(4):
            A(f'v_lshlrev_b32 {v(T + 2 * m)}, 16, {v(EX + m)}')
            A(f'v_and_b32 {v(T + 2 * m + 1)}, 0xffff0000, {v(EX + m)}')
        for r in range(8):
            A(f'v_add_f32 {v(ACCB + r)}, {v(ACCB + r)}, {v(T + r)}')
        A('s_waitcnt lgkmcnt(0)')
    red(ACCB, None)
    P = ACCB + 8
    if mode == 'qkv':
        A('s_waitcnt lgkmcnt(0)')
        for stp in (8, 4, 2):
            for e in range(stp):
                A(f'v_add_f32 {v(T + e)}, {v(T + e)}, {v(T + e + stp)}')
        A(f'v_mul_f32 {v(T)}, {f32(1.0 / 512)}, {v(T)}')
        A(f'v_mul_f32 {v(T + 1)}, {f32(1.0 / 512)}, {v(T + 1)}')
        A(f'v_fma_f32 {v(T + 1)}, -{v(T)}, {v(T)}, {v(T + 1)}')
        A(f'v_max_f32 {v(T + 1)}, 0, {v(T + 1)}')
        A(f'v_add_f32 {v(T + 1)}, {f32(1e-5)}, {v(T + 1)}')
        A(f'v_rsq_f32 {v(T + 1)}, {v(T + 1)}')
        C.wait('ex')
        for r in range(8):
            A(f'v_fma_f32 {v(ACCB + r)}, -{v(T)}, {v(EX + r)}, {v(ACCB + r)}')
        A(f'v_mul_f32 {v(T + 2)}, {f32(QSCALE)}, {v(T + 1)}')
        for r in range(8):
            A(f'v_mul_f32 {v(ACCB + r)}, {v(T + 2)}, {v(ACCB + r)}')
        for m in range(4):
            A(f'v_cvt_pk_bf16_f32 {v(P + m)}, {v(ACCB + 2 * m)}, {v(ACCB + 2 * m + 1)}')
        A(f's_add_u32 s31, s49, {C.qf}')
        C.vmem(f'buffer_store_dwordx4 {v(P, 4)}, v3, s[8:11], s31 offen{QWT}', 'st')
        le, lv = C.lab('ke'), C.lab('v')
        A('s_cmp_lg_u32 s29, s24')
        A(f's_cbranch_scc1 {le}')
        A('s_bfe_u32 s34, s20, 0x10001')
        A('s_lshl_b32 s30, s34, 14')
        A('s_lshl_b32 s31, s26, 10')
        A('s_add_u32 s30, s30, s31')
        A(f's_add_u32 s30, s30, {KVRED}')
        A('v_add_u32 v4, s30, v3')
        KR = 208
        for ww in range(8):
            A(f'ds_read_b128 {v(KR + ww * 4, 4)}, v4 offset:{ww * 2048}')
        KX = EX + 8
        if raw:
            A('s_lshl_b32 s30, s34, 6')
            A('s_lshl_b32 s31, s26, 5')
            A('s_add_u32 s30, s30, s31')
            A(f's_add_u32 s30, s30, {CSK + 256}')
            A('v_add_u32 v113, s30, v112')
            A(f'ds_read_b128 {v(KX, 4)}, v113')
        A('s_add_u32 s30, s27, s29')
        A(f's_mul_i32 s30, s30, {KVG}')
        A(f's_add_u32 s30, s30, {kvf}')
        A('v_bfe_u32 v4, v1, 4, 1')
        A(f'v_mul_u32_u24 v4, {VBS}, v4')
        A('v_bfe_u32 v5, v1, 2, 1')
        A('v_lshl_add_u32 v4, v5, 8, v4')
        A('v_and_b32 v5, 3, v1')
        A('v_lshl_add_u32 v4, v5, 1, v4')
        A('v_bfe_u32 v5, v1, 3, 1')
        A('v_lshl_add_u32 v4, v5, 3, v4')
        A('v_lshrrev_b32 v5, 5, v1')
        A('v_lshl_add_u32 v4, v5, 6, v4')
        A('s_waitcnt lgkmcnt(0)')
        for stp in (16, 8, 4):
            for r in range(stp):
                A(f'v_add_f32 {v(KR + r)}, {v(KR + r)}, {v(KR + stp + r)}')
        for r in range(4):
            A(f'v_fma_f32 {v(KR + r)}, -{v(T)}, {v(KX + r)}, {v(KR + r)}')
        for r in range(4):
            A(f'v_mul_f32 {v(KR + r)}, {v(T + 1)}, {v(KR + r)}')
        KP = KR + 8
        for m in range(2):
            A(f'v_cvt_pk_bf16_f32 {v(KP + m)}, {v(KR + 2 * m)}, {v(KR + 2 * m + 1)}')
        A('s_cmp_lg_u32 s34, 0')
        A(f's_cbranch_scc1 {lv}')
        A('s_lshl_b32 s31, s26, 3')
        A('s_add_u32 s31, s31, s30')
        A(f'buffer_store_dwordx2 {v(KP, 2)}, v3, s[8:11], s31 offen{QWT}')
        A(f's_branch {le}')
        A.label(lv)
        A('s_lshl_b32 s31, s26, 7')
        A('s_add_u32 s31, s31, s30')
        for r in range(4):
            op = 'buffer_store_short' if r % 2 == 0 else 'buffer_store_short_d16_hi'
            A(f'{op} {v(KP + r // 2)}, v4, s[8:11], s31 offen offset:{1024 + r * 16}{QWT}')
        A.label(le)
    else:
        for m in range(4):
            A(f'v_cvt_pk_bf16_f32 {v(P + m)}, {v(ACCB + 2 * m)}, {v(ACCB + 2 * m + 1)}')
        if mode == 'res':
            A(f's_add_u32 s31, s49, {outbase}')
            C.vmem(f'buffer_store_dwordx4 {v(P, 4)}, v3, s[8:11], s31 offen{WT}', 'st')
            blk_stats(C, P, T)
            A('s_lshr_b32 s31, s49, 2')
            A(f's_add_u32 s31, s31, {sxout}')
            A('v_lshlrev_b32 v4, 3, v1')
            A('s_mov_b32 exec_hi, 0')
            C.vmem(f'buffer_store_dwordx2 {v(T, 2)}, v4, s[8:11], s31 offen{WT}', 'st')
            A('s_mov_b64 exec, -1')
            if after_store:
                after_store()
        else:
            A('v_and_b32 v4, 31, v1')
            A('v_lshlrev_b32 v4, 10, v4')
            A('v_lshrrev_b32 v5, 5, v1')
            A('v_lshl_add_u32 v4, v5, 4, v4')
            A('s_add_u32 s30, s27, s29')
            A('s_lshl_b32 s30, s30, 15')
            A('s_lshl_b32 s31, s28, 6')
            A('s_add_u32 s30, s30, s31')
            A('s_lshl_b32 s31, s26, 5')
            A('s_add_u32 s30, s30, s31')
            A(f'v_permlane32_swap_b32 {v(P)}, {v(P + 2)}')
            A(f'v_permlane32_swap_b32 {v(P + 1)}, {v(P + 3)}')
            C.vmem(f'buffer_store_dwordx4 {v(P, 4)}, v4, s[12:15], s30 offen', 'st')


def qkv_wstep(C, st, n=1):
    A = C.A
    if st == 0:
        g3_waddr(C, (5, 6), 32, WQKVP)
    per = -(-8 // n)
    for i in range(st * per, min(8, (st + 1) * per)):
        g3_wload(C, (5, 6), i, 128)
    if st == n:
        A('s_lshl_b32 s30, s20, 12')
        A(f's_add_u32 s30, s30, {WQKVP + 16 * 32 * KB}')
        l = C.lab('kw')
        A('s_cmp_ge_u32 s24, 2')
        A(f's_cbranch_scc1 {l}')
        for k in range(4):
            A(f'buffer_load_dwordx4 {v(KVW + 4 * k, 4)}, v3, s[8:11], s30 offen offset:{k * 1024}')
        A.label(l)


def qkv_wloads(C):
    qkv_wstep(C, 0)
    qkv_wstep(C, 1)


KVR4, XF0, ST4, RED4 = 0, 36 * KB, 68 * KB, 80 * KB
G4_ORD = [0, 1, 4, 5, 8, 9, 12, 13, 2, 3, 6, 7, 10, 11, 14, 15]


def g4_ids(C):
    A = C.A
    A('s_and_b32 s18, s22, 3')
    A('s_lshl_b32 s30, s21, 2')
    A('s_add_u32 s18, s18, s30')
    A('s_and_b32 s30, s22, 12')
    A('s_add_u32 s30, s30, s25')
    A('s_lshl_b32 s30, s30, 1')
    A('s_add_u32 s30, s30, s26')
    A('s_lshl_b32 s19, s18, 5')
    A('s_add_u32 s19, s19, s30')
    A('s_lshl_b32 s19, s19, 10')
    A('s_lshr_b32 s3, s22, 2')
    A('s_and_b32 s30, s21, 3')
    A('s_xor_b32 s3, s3, s30')


def g4_waddr(C, vreg, wbase):
    A = C.A
    A('s_lshl_b32 s30, s26, 8')
    A(f'v_xor_b32 {v(vreg)}, s30, v3')
    A('s_and_b32 s30, s19, 0x7fff')
    A('s_lshl_b32 s30, s30, 4')
    A(f's_add_u32 s30, s30, {wbase}')
    A(f'v_add_u32 {v(vreg)}, s30, {v(vreg)}')


def g4_wreg(mode, i):
    if mode == 'qkv':
        return 128 + 4 * i
    return 224 + 4 * i if i < 8 else 64 + 4 * (i - 8)


def g4_wload(C, vreg, i, mode):
    so, im = soff(G4_ORD[i])
    C.vmem(f'buffer_load_dwordx4 {v(g4_wreg(mode, i), 4)}, {v(vreg)}, s[8:11], {so} offen offset:{im}', 'w')


def g4_pre(C, mode, xbase, resbase=None, raw=False):
    A = C.A
    EX = 96
    A('s_lshl_b32 s30, s18, 15')
    A('s_lshl_b32 s48, s20, 12')
    A('s_add_u32 s30, s30, s48')
    A(f's_add_u32 s30, s30, {xbase}')
    A('v_add_u32 v5, s30, v3')
    A('s_lshl_b32 s30, s26, 14')
    A(f's_add_u32 s30, s30, {XF0}')
    A('v_add_u32 v6, s30, v3')
    A(f'v_add_u32 v14, s48, v3')
    A(f's_add_u32 s48, s48, {XF0}')
    A('s_lshl_b32 s30, s20, 11')
    A(f's_add_u32 s30, s30, {RED4}')
    A('v_add_u32 v8, s30, v3')
    A('v_xor_b32 v7, 0x2000, v8')
    if mode == 'qkv':
        A('v_lshrrev_b32 v2, 5, v1')
        if not raw:
            A('v_lshlrev_b32 v4, 4, v2')
            A('s_and_b32 s31, s19, 0x7fff')
            A('s_lshr_b32 s31, s31, 4')
            A(f's_add_u32 s31, s31, {CSQKV}')
            C.vmem(f'buffer_load_dwordx4 {v(EX, 4)}, v4, s[8:11], s31 offen', 'ex')
            C.vmem(f'buffer_load_dwordx4 {v(EX + 4, 4)}, v4, s[8:11], s31 offen offset:32', 'ex')
            A('s_lshl_b32 s31, s25, 5')
            A(f's_add_u32 s31, s31, {CSQKV + 2048}')
            C.vmem(f'buffer_load_dwordx4 {v(EX + 8, 4)}, v4, s[8:11], s31 offen', 'ex')
        A('v_and_b32 v9, 31, v1')
        A('v_lshlrev_b32 v9, 3, v9')
        A(f'v_add_u32 v11, {ST4}, v9')
        A('s_lshl_b32 s30, s20, 8')
        A('v_add_u32 v10, s30, v11')
        A('v_lshl_add_u32 v9, v2, 9, v9')
        A('s_lshl_b32 s30, s18, 13')
        A('s_lshl_b32 s31, s20, 10')
        A('s_add_u32 s30, s30, s31')
        A(f's_add_u32 s30, s30, {resbase}')
        A('v_add_u32 v9, s30, v9')
        A('v_add_u32 v12, s48, v3')
        A('s_lshl_b32 s30, s25, 10')
        A(f's_add_u32 s30, s30, {KVR4}')
        A('v_add_u32 v13, s30, v3')
        A('v_bfe_u32 v15, v1, 4, 1')
        A('v_lshlrev_b32 v15, 9, v15')
        A('v_bfe_u32 v4, v1, 2, 1')
        A('v_lshl_add_u32 v15, v4, 8, v15')
        A('v_and_b32 v4, 3, v1')
        A('v_lshl_add_u32 v15, v4, 1, v15')
        A('v_bfe_u32 v4, v1, 3, 1')
        A('v_lshl_add_u32 v15, v4, 3, v15')
        A('v_lshl_add_u32 v15, v2, 6, v15')
    elif resbase is None:
        A('v_and_b32 v2, 31, v1')
        A('v_lshlrev_b32 v2, 10, v2')
        A('v_lshrrev_b32 v4, 5, v1')
        A('v_lshl_add_u32 v2, v4, 3, v2')
        A('s_lshl_b32 s30, s18, 15')
        A('s_and_b32 s31, s19, 0x7fff')
        A('s_lshr_b32 s31, s31, 5')
        A('s_add_u32 s30, s30, s31')
        C.vmem(f'buffer_load_dwordx2 {v(EX, 2)}, v2, s[12:15], s30 offen', 'ex')
        C.vmem(f'buffer_load_dwordx2 {v(EX + 2, 2)}, v2, s[12:15], s30 offen offset:16', 'ex')
    else:
        A(f's_add_u32 s31, s19, {resbase}')
        C.vmem(f'buffer_load_dwordx4 {v(EX, 4)}, v3, s[8:11], s31 offen', 'ex')


def ln_stats(A, T):
    for stp in (8, 4, 2):
        for e in range(stp):
            A(f'v_add_f32 {v(T + e)}, {v(T + e)}, {v(T + e + stp)}')
    A(f'v_mul_f32 {v(T)}, {f32(1.0 / 512)}, {v(T)}')
    A(f'v_mul_f32 {v(T + 1)}, {f32(1.0 / 512)}, {v(T + 1)}')
    A(f'v_fma_f32 {v(T + 1)}, -{v(T)}, {v(T)}, {v(T + 1)}')
    A(f'v_max_f32 {v(T + 1)}, 0, {v(T + 1)}')
    A(f'v_add_f32 {v(T + 1)}, {f32(1e-5)}, {v(T + 1)}')
    A(f'v_rsq_f32 {v(T + 1)}, {v(T + 1)}')


def g4_main(C, mode, outbase=None, sxout=None, kvf=None, kfl=None, hook_red=None, raw=None):
    A = C.A
    ACC, XR, EX = 16, 32, 96
    KW, KA, KR, T = 192, 208, 224, 108
    if not raw:
        A('s_mov_b32 m0, s48')
        A('s_nop 0')
        for k in range(4):
            C.vmem(f'buffer_load_dwordx4 v5, s[8:11], 0 offen offset:{k * 1024} lds', f'x{k}')

    def rd(i):
        A(f'ds_read_b128 {v(XR + 4 * (i % 8), 4)}, v6 offset:{G4_ORD[i] * 1024}')

    def mf(i):
        c = '0' if i == 0 else v(ACC, 16)
        A(f'v_mfma_f32_32x32x16_bf16 {v(ACC, 16)}, {v(g4_wreg(mode, i), 4)}, {v(XR + 4 * (i % 8), 4)}, {c}')

    def wq_loads():
        for i in range(16):
            so, im = soff(G4_ORD[i])
            A(f'buffer_load_dwordx4 {v(128 + 4 * i, 4)}, v64, s[8:11], {so} offen offset:{im}')

    if mode == 'qkv':
        A('s_add_u32 s35, s3, s26')
        if raw:
            raw['front']()
        else:
            for e in range(2):
                C.vmem(f'buffer_load_dwordx2 {v(T + 2 * e, 2)}, v9, s[8:11], 0 offen offset:{e * 256}', 'sx')
            l1, l2 = C.lab('w1'), C.lab('w2')
            A('s_cmp_eq_u32 s3, 0')
            A(f's_cbranch_scc1 {l1}')
            flag_b(C)
            wq_loads()
            A('s_waitcnt vmcnt(16)')
            A(f's_branch {l2}')
            A.label(l1)
            A('s_waitcnt vmcnt(0)')
            A.label(l2)
            C.vm = []
            C.stamp()
        lk = C.lab('k4')
        A('s_cmp_lg_u32 s3, 0')
        A(f's_cbranch_scc1 {lk}')
        if raw:
            raw['kvw']()
        else:
            for k in range(4):
                A(f'ds_read_b128 {v(KR + 4 * k, 4)}, v12 offset:{k * 1024}')
        for k in range(4):
            if not raw:
                A(f's_waitcnt lgkmcnt({3 - k})')
            A(f'v_mfma_f32_32x32x16_bf16 {v(KA, 16)}, {v(KW + 4 * k, 4)}, {v(KR + 4 * k, 4)}, {"0" if k == 0 else v(KA, 16)}')
        A.label(lk)
        A(f'v_add_f32 {v(T)}, {v(T)}, {v(T + 2)}')
        A(f'v_add_f32 {v(T + 1)}, {v(T + 1)}, {v(T + 3)}')
        A(f'v_mov_b32 {v(T + 2)}, {v(T)}')
        A(f'v_mov_b32 {v(T + 3)}, {v(T + 1)}')
        A('s_nop 1')
        swap_add(A, T, T + 2)
        swap_add(A, T + 1, T + 3)
        A(f'ds_write_b64 v10, {v(T, 2)}')
        A(f'v_mov_b32 {v(T + 2)}, 0')
        A(f'v_mov_b32 v9, {ST4 + 8192}')
        A(f'ds_write_b32 v9, {v(T + 2)}')
        lk = C.lab('k5')
        A('s_cmp_lg_u32 s3, 0')
        A(f's_cbranch_scc1 {lk}')
        for k in range(4):
            A(f'ds_write_b128 v14, {v(KA + 4 * k, 4)} offset:{k * 1024}')
        A.label(lk)
        A('s_waitcnt lgkmcnt(0)')
        A('s_barrier')
        for ww in range(8):
            A(f'ds_read_b64 {v(T + 2 * ww, 2)}, v11 offset:{ww * 256}')
        lv, le, lf = C.lab('v6'), C.lab('e6'), C.lab('f6')
        A('s_cmp_lg_u32 s35, 0')
        A(f's_cbranch_scc1 {le}')
        A('s_setprio 3')
        A('s_waitcnt lgkmcnt(4)')
        for ww in range(8):
            A(f'ds_read_b128 {v(KR + 4 * ww, 4)}, v13 offset:{ww * 4096}')
        A('s_waitcnt lgkmcnt(8)')
        for r in range(16):
            A(f'v_mov_b32 {v(KA + r)}, {v(T + r)}')
        ln_stats(A, KA)
        A('s_lshl_b32 s30, s18, 11')
        A(f's_add_u32 s30, s30, {kvf}')
        A('s_waitcnt lgkmcnt(0)')
        if raw:
            raw['kvcs0']()
        for stp in (16, 8, 4):
            for r in range(stp):
                A(f'v_add_f32 {v(KR + r)}, {v(KR + r)}, {v(KR + stp + r)}')
        if raw:
            raw['kvcs1']()
        for r in range(4):
            A(f'v_fma_f32 {v(KR + r)}, -{v(KA)}, {v(EX + 8 + r)}, {v(KR + r)}')
        for r in range(4):
            A(f'v_mul_f32 {v(KR + r)}, {v(KA + 1)}, {v(KR + r)}')
        for m in range(2):
            A(f'v_cvt_pk_bf16_f32 {v(KR + 8 + m)}, {v(KR + 2 * m)}, {v(KR + 2 * m + 1)}')
        A('s_cmp_ge_u32 s20, 2')
        A(f's_cbranch_scc1 {lv}')
        A('s_lshl_b32 s31, s20, 3')
        A('s_add_u32 s31, s31, s30')
        A(f'buffer_store_dwordx2 {v(KR + 8, 2)}, v3, s[8:11], s31 offen sc0 sc1')
        A(f's_branch {lf}')
        A.label(lv)
        A('s_lshl_b32 s31, s29, 10')
        A(f's_add_u32 s31, s31, {ST4 + 4096}')
        A('v_add_u32 v15, s31, v15')
        for r in range(4):
            op = 'ds_write_b16' if r % 2 == 0 else 'ds_write_b16_d16_hi'
            A(f'{op} v15, {v(KR + 8 + r // 2)} offset:{r * 16}')
        A('v_lshrrev_b32 v2, 3, v1')
        A('v_lshlrev_b32 v2, 8, v2')
        A(f'v_and_b32 {v(KR)}, 7, v1')
        A(f'v_lshl_add_u32 v2, {v(KR)}, 4, v2')
        A('v_add_u32 v15, s31, v2')
        A('s_mov_b32 exec_hi, 0')
        A(f'ds_read_b128 {v(KR + 12, 4)}, v15')
        A('s_lshl_b32 s31, s29, 7')
        A('s_add_u32 s31, s31, s30')
        A('s_waitcnt lgkmcnt(0)')
        A(f'buffer_store_dwordx4 {v(KR + 12, 4)}, v2, s[8:11], s31 offen offset:1024 sc0 sc1')
        A('s_mov_b64 exec, -1')
        A.label(lf)
        lg = C.lab('g6')
        A('s_lshl_b32 s30, s18, 7')
        A(f's_add_u32 s30, s30, {kfl}')
        if raw:
            raw['zchk']()
        A('s_mov_b64 exec, 1')
        A('s_waitcnt vmcnt(0)')
        A('ds_add_rtn_u32 v2, v9, v4')
        A('s_waitcnt lgkmcnt(0)')
        A('v_cmp_eq_u32 vcc, 3, v2')
        A('s_cbranch_vccz ' + lg)
        A('buffer_store_dword v4, v0, s[8:11], s30 offen sc0 sc1')
        A.label(lg)
        A('s_mov_b64 exec, -1')
        A('s_setprio 0')
        A.label(le)
        flag_b(C)
        A('s_waitcnt lgkmcnt(0)')
        if raw:
            raw['wprep']()
        else:
            l3 = C.lab('w3')
            A('s_cmp_lg_u32 s3, 0')
            A(f's_cbranch_scc1 {l3}')
            C.flagb = True
            flag_b(C)
            wq_loads()
            A.label(l3)
        for i in range(8):
            rd(i)
        ln_stats(A, T)
        for i in range(16):
            A(f's_waitcnt lgkmcnt({7 if i < 8 else 15 - i})' + ('' if raw else f' vmcnt({15 - i})'))
            mf(i)
            if i < 8:
                rd(i + 8)
    else:
        C.wait('w')
        C.wait('x1')
        A('s_barrier')
        C.stamp()
        for i in range(8):
            rd(i)
        for i in range(4):
            A(f's_waitcnt lgkmcnt({7 - i})')
            mf(i)
        C.wait('x3')
        A('s_barrier')
        for i in range(8, 12):
            rd(i)
        for i in range(4, 8):
            A('s_waitcnt lgkmcnt(7)')
            mf(i)
            rd(i + 8)
        flag_b(C)
        for i in range(8, 16):
            A(f's_waitcnt lgkmcnt({15 - i})')
            mf(i)
            if hook_red and i >= 8:
                hook_red(i - 8)
    C.stamp()
    if mode == 'qkv':
        A(f'v_mul_f32 {v(T + 2)}, {f32(QSCALE)}, {v(T + 1)}')
        A('s_nop 10')
    else:
        C.wait('ex')
        TT = XR
        for m in range(4):
            A(f'v_lshlrev_b32 {v(TT + 2 * m)}, 16, {v(EX + m)}')
            A(f'v_and_b32 {v(TT + 2 * m + 1)}, 0xffff0000, {v(EX + m)}')
        A('s_nop 3')
    for h2 in range(2):
        A(f'ds_write_b128 v7, {v(ACC + 8 + 4 * h2, 4)} offset:{h2 * 1024}')
    if mode == 'qkv':
        if not raw:
            for r in range(8):
                A(f'v_fma_f32 {v(ACC + r)}, -{v(T)}, {v(EX + r)}, {v(ACC + r)}')
    else:
        for r in range(8):
            A(f'v_add_f32 {v(ACC + r)}, {v(ACC + r)}, {v(XR + r)}')
    A('s_waitcnt lgkmcnt(0)')
    A('s_barrier')
    for h2 in range(2):
        A(f'ds_read_b128 {v(ACC + 8 + 4 * h2, 4)}, v8 offset:{h2 * 1024}')
    if raw:
        raw['cs']()
        for r in range(8):
            A(f'v_fma_f32 {v(ACC + r)}, -{v(T)}, {v(EX + r)}, {v(ACC + r)}')
    A('s_waitcnt lgkmcnt(0)')
    for r in range(8):
        A(f'v_add_f32 {v(ACC + r)}, {v(ACC + r)}, {v(ACC + 8 + r)}')
    if mode == 'qkv':
        for r in range(8):
            A(f'v_mul_f32 {v(ACC + r)}, {v(T + 2)}, {v(ACC + r)}')
        for m in range(4):
            A(f'v_cvt_pk_bf16_f32 {v(124 + m)}, {v(ACC + 2 * m)}, {v(ACC + 2 * m + 1)}')
        A('s_barrier')
    else:
        P = ACC + 8
        for m in range(4):
            A(f'v_cvt_pk_bf16_f32 {v(P + m)}, {v(ACC + 2 * m)}, {v(ACC + 2 * m + 1)}')
        A(f's_add_u32 s31, s19, {outbase}')
        C.vmem(f'buffer_store_dwordx4 {v(P, 4)}, v3, s[8:11], s31 offen{WT}', 'st')
        blk_stats(C, P, XR)
        A('s_lshr_b32 s31, s19, 2')
        A(f's_add_u32 s31, s31, {sxout}')
        A('v_lshlrev_b32 v4, 3, v1')
        A('s_mov_b32 exec_hi, 0')
        C.vmem(f'buffer_store_dwordx2 {v(XR, 2)}, v4, s[8:11], s31 offen{WT}', 'st')
        A('s_mov_b64 exec, -1')


def qkv4_wstep(C, st, n):
    pass


def qkv4_wrest(C):
    A = C.A
    l = C.lab('kw')
    A('s_lshl_b32 s30, s20, 12')
    A(f's_add_u32 s30, s30, {WQKVP + 16 * 32 * KB}')
    A('s_cmp_lg_u32 s3, 0')
    A(f's_cbranch_scc1 {l}')
    for k in range(4):
        A(f'buffer_load_dwordx4 {v(192 + 4 * k, 4)}, v3, s[8:11], s30 offen offset:{k * 1024}')
    A.label(l)


def att_kvdma(C, r):
    A = C.A
    A(f's_add_u32 m0, s37, {r * 8 * KVT}')
    A(f's_add_u32 s30, s38, {r * KVG}')
    C.vmem('buffer_load_dwordx4 v3, s[8:11], s30 offen lds', f'kv{r}')
    C.vmem('buffer_load_dwordx4 v3, s[8:11], s30 offen offset:1024 lds', f'kv{r}')


def att_kv(C, kvf, kfl, endlab, mid=None):
    A = C.A
    A(f's_mul_i32 s37, s20, {KVT}')
    A('s_lshl_b32 s38, s20, 14')
    A(f's_add_u32 s38, s38, {kvf}')
    lp, lpd = C.lab('kp'), C.lab('kpd')
    A('v_lshlrev_b32 v0, 7, v1')
    A('s_lshl_b32 s30, s20, 10')
    A(f's_add_u32 s30, s30, {kfl}')
    A('s_mov_b32 s31, 0')
    A('s_mov_b64 exec, 0xff')
    A('buffer_load_dword v2, v0, s[8:11], s30 offen sc1')
    if mid:
        A('s_mov_b64 exec, -1')
        A('s_mov_b32 s39, s30')
        mid()
        A('s_mov_b32 s30, s39')
        A('s_mov_b32 s31, 0')
        A('s_mov_b64 exec, 0xff')
    A.label(lp)
    A('s_add_u32 s31, s31, 1')
    A('s_waitcnt vmcnt(0)')
    A('v_cmp_ne_u32 vcc, 0, v2')
    A('s_cmp_eq_u64 vcc, 0xff')
    A(f's_cbranch_scc1 {lpd}')
    A(f's_sleep {KV_SLEEP}')
    A('buffer_load_dword v2, v0, s[8:11], s30 offen sc1')
    A(f's_cmp_lt_u32 s31, {1 << 21}')
    A(f's_cbranch_scc1 {lp}')
    A(f's_branch {endlab}')
    A.label(lpd)
    A('s_mov_b64 exec, -1')
    C.vm = []
    C.stamp()

    att_kvdma(C, 0)
    att_kvdma(C, 1)


def att_phase(C, kvf, kfl, endlab, stubs, fixed={}, pf0=None, pre_hook=None, loadq=True, early=False):
    A = C.A
    tg = C.tag
    Q, CN, S0, S1, O, P, KF, VF, VK, VV, T = 124, 8, 24, 40, 56, 72, 80, 88, 104, 105, 106
    VV1 = 111
    S = [S0, S1]
    A(f's_add_u32 s36, s19, {C.B["OF"]}')
    if loadq:
        A(f's_add_u32 s31, s19, {C.B["QF"]}')
        C.vmem(f'buffer_load_dwordx4 {v(Q, 4)}, v3, s[8:11], s31 offen', 'q')
        flag_b(C)
    if not early:
        att_kv(C, kvf, kfl, endlab)

    def kvdma(r):
        att_kvdma(C, r)
    R0 = 3 if early else ATT_R0
    for r in range(2, R0):
        kvdma(r)
    if pre_hook:
        pre_hook()
    A(f'v_mov_b32 {v(VK)}, v3')
    A(f'v_and_b32 {v(T)}, 15, v1')
    A(f'v_lshrrev_b32 {v(T + 1)}, 5, v1')
    A(f'v_lshl_add_u32 {v(T)}, {v(T + 1)}, 4, {v(T)}')
    A(f'v_lshlrev_b32 {v(T)}, 4, {v(T)}')
    A(f'v_add_u32 {v(VV)}, 1024, {v(T)}')
    A(f'v_add_u32 {v(VV1)}, 1536, {v(T)}')
    A(f'v_and_b32 {v(T + 1)}, 31, v1')
    A(f'v_cmp_eq_u32 vcc, 16, {v(T + 1)}')
    A(f'v_mov_b32 {v(T + 2)}, 2048')
    A('s_nop 0')
    A(f'v_cndmask_b32 {v(VV)}, {v(VV)}, {v(T + 2)}, vcc')
    A(f'v_cndmask_b32 {v(VV1)}, {v(VV1)}, {v(T + 2)}, vcc')
    A(f'v_cmp_lt_u32 vcc, 16, {v(T + 1)}')
    A(f'v_mov_b32 {v(T + 2)}, 2064')
    A('s_nop 0')
    A(f'v_cndmask_b32 {v(VV)}, {v(VV)}, {v(T + 2)}, vcc')
    A(f'v_cndmask_b32 {v(VV1)}, {v(VV1)}, {v(T + 2)}, vcc')
    for r in range(16):
        A(f'v_mov_b32 {v(O + r)}, 0')
    for m in range(4, 8):
        A(f'v_mov_b32 {v(P + m)}, 0')
    for m in range(4):
        A(f'v_mov_b32 {v(VF + 12 + m)}, 0')
        A(f'v_mov_b32 {v(P + m)}, 0x3f803f80')
    A(f'v_mul_u32_u24 {v(T)}, {KVT}, v1')
    lcw = C.lab('cw')
    A('s_cmp_lg_u32 s20, 7')
    A(f's_cbranch_scc1 {lcw}')
    A(f'ds_write_b128 {v(T)}, {v(P, 4)} offset:2048')
    A(f'ds_write_b128 {v(T)}, {v(P + 4, 4)} offset:2064')
    A.label(lcw)
    C.wait('kv1', 'lgkmcnt(0)')
    A('s_barrier')
    C.stamp()

    def rdK(buf, t):
        A(f'ds_read_b128 {v(KF + buf * 4, 4)}, {v(VK)} offset:{t * KVT}')

    def rdV(buf, t):
        A(f'ds_read_b128 {v(VF + buf * 8, 4)}, {v(VV)} offset:{t * KVT}')
        A(f'ds_read_b128 {v(VF + buf * 8 + 4, 4)}, {v(VV1)} offset:{t * KVT}')

    rdK(0, 0)
    rdK(1, 1)
    rdV(0, 0)
    A('s_waitcnt lgkmcnt(3)')
    A(f'v_mfma_f32_32x32x16_bf16 {v(S0, 16)}, {v(KF, 4)}, {v(Q, 4)}, 0')
    A('s_nop 11')
    A(f'v_max3_f32 {v(T)}, {v(S0)}, {v(S0 + 1)}, {v(S0 + 2)}')
    for r in range(3, 15, 2):
        A(f'v_max3_f32 {v(T)}, {v(T)}, {v(S0 + r)}, {v(S0 + r + 1)}')
    A(f'v_max_f32 {v(T)}, {v(T)}, {v(S0 + 15)}')
    A(f'v_mov_b32 {v(T + 1)}, {v(T)}')
    A('s_nop 1')
    A(f'v_permlane32_swap_b32 {v(T)}, {v(T + 1)}')
    A(f'v_max_f32 {v(T)}, {v(T)}, {v(T + 1)}')
    for r in range(16):
        A(f'v_sub_f32 {v(CN + r)}, 0, {v(T)}')
    for r in range(16):
        A(f'v_sub_f32 {v(S0 + r)}, {v(S0 + r)}, {v(T)}')
    A('s_setprio 3')
    C.stamp()
    UN = ATT_UN
    NIT = 64 // UN
    queue = list(stubs)
    first_pf = 8 // UN
    pf0 = pf0 or first_pf
    per = -(-len(queue) // (NIT - pf0 - ATT_PFEND))
    prio = {int(NIT * 0.5): 2, int(NIT * 0.78): 1, NIT - 1: 0}
    for it in range(NIT):
        if it == (1 if UN == 4 else 0):
            for r in range(R0, 8):
                kvdma(r)
        if it == first_pf:
            C.wait('kv7')
            A('s_barrier')
        if it in prio:
            A(f's_setprio {prio[it]}')
        if it in fixed:
            if FINE == 2:
                C.stamp()
            fixed[it]()
            if FINE == 2:
                C.stamp()
        if it >= pf0:
            for _ in range(per):
                if queue:
                    queue.pop(0)()
        A('s_call_b64 s[34:35], att_body')
    assert not queue
    A(f'v_mfma_f32_32x32x16_bf16 {v(O, 16)}, {v(VF + 8 + 4, 4)}, {v(P + 4, 4)}, {v(O, 16)}')
    A('s_mov_b32 s39, 0')
    C.stamp()
    A('s_waitcnt lgkmcnt(0)')
    A('s_nop 10')
    A.label(f'{tg}_fin')
    A(f'v_mov_b32 {v(T)}, {v(O + 8)}')
    A(f'v_mov_b32 {v(T + 1)}, {v(O + 8)}')
    A(f'v_mul_f32 {v(T + 2)}, 0, {v(O)}')
    A(f'v_fma_f32 {v(T + 2)}, {v(O + 1)}, 0, {v(T + 2)}')
    A(f'v_permlane32_swap_b32 {v(T)}, {v(T + 1)}')
    for r in range(2, 8):
        A(f'v_fma_f32 {v(T + 2)}, {v(O + r)}, 0, {v(T + 2)}')
    A(f'v_add_f32 {v(T + 2)}, {v(T + 2)}, {v(T)}')
    A(f'v_mov_b32 {v(T + 3)}, {f32(2.0 ** 30)}')
    A(f'v_cmp_nle_f32 vcc, {v(T + 2)}, {v(T + 3)}')
    A(f'v_rcp_f32 {v(T)}, {v(T)}')
    A('s_cmp_eq_u32 s39, 99')
    A(f's_cbranch_scc1 {tg}_store')
    A(f's_cbranch_vccnz {tg}_slow')
    A.label(f'{tg}_store')
    for r in range(8):
        A(f'v_mul_f32 {v(O + r)}, {v(T)}, {v(O + r)}')
    for m in range(4):
        A(f'v_cvt_pk_bf16_f32 {v(P + m)}, {v(O + 2 * m)}, {v(O + 2 * m + 1)}')
    C.vmem(f'buffer_store_dwordx4 {v(P, 4)}, v3, s[8:11], s36 offen{WT}', 'st')

    def tail(with_body):
        if with_body:
            A.raw('.p2align 6')
            A.label('att_body')
            for t in range(UN):
                cur, nxt = t & 1, (t + 1) & 1
                Sc, Sn = S[cur], S[nxt]
                A('s_waitcnt lgkmcnt(2)')
                A(f'v_mfma_f32_32x32x16_bf16 {v(Sn, 16)}, {v(KF + nxt * 4, 4)}, {v(Q, 4)}, {v(CN, 16)}')
                rdK(cur, t + 2)
                for r in range(6):
                    A(f'v_exp_f32 {v(Sc + r)}, {v(Sc + r)}')
                A(f'v_mfma_f32_32x32x16_bf16 {v(O, 16)}, {v(VF + nxt * 8 + 4, 4)}, {v(P + 4, 4)}, {v(O, 16)}')
                for r in range(6, 8):
                    A(f'v_exp_f32 {v(Sc + r)}, {v(Sc + r)}')
                for m in range(4):
                    A(f'v_cvt_pk_bf16_f32 {v(P + m)}, {v(Sc + 2 * m)}, {v(Sc + 2 * m + 1)}')
                A(f'v_exp_f32 {v(Sc + 8)}, {v(Sc + 8)}')
                A(f'v_exp_f32 {v(Sc + 9)}, {v(Sc + 9)}')
                A('s_waitcnt lgkmcnt(1)')
                A(f'v_mfma_f32_32x32x16_bf16 {v(O, 16)}, {v(VF + cur * 8, 4)}, {v(P, 4)}, {v(O, 16)}')
                rdV(nxt, t + 1)
                for r in range(10, 16):
                    A(f'v_exp_f32 {v(Sc + r)}, {v(Sc + r)}')
                for m in range(4, 8):
                    A(f'v_cvt_pk_bf16_f32 {v(P + m)}, {v(Sc + 2 * m)}, {v(Sc + 2 * m + 1)}')
            if EXPT:
                n0 = max(i for i, l in enumerate(A.lines) if l.startswith('att_body'))
                body = A.lines[n0:]
                if EXPT == 1:
                    body = [l for l in body if not ('mfma' in l and v(P + 4, 4) in l)]
                if EXPT == 2:
                    body = [l if not ('mfma' in l and v(P + 4, 4) in l) else f'    v_mfma_f32_16x16x32_bf16 v[120:123], {v(VF + 4, 4)}, {v(P + 4, 4)}, v[120:123]' for l in body]
                if EXPT == 3:
                    body = [l.replace('lgkmcnt(2)', 'lgkmcnt(1)') for l in body if not ('ds_read' in l and v(VV1) in l)]
                if EXPT == 4:
                    body = [l if not ('mfma' in l and v(P + 4, 4) in l) else f'    v_mfma_f32_16x16x32_bf16 v[120:123], {v(VF + 4, 4)}, {v(P + 4, 4)}, v[120:123]' for l in body]
                    body = [l.replace('lgkmcnt(2)', 'lgkmcnt(1)') for l in body if not ('ds_read' in l and v(VV1) in l)]
                A.lines[n0:] = body
            A(f'v_add_u32 {v(VK)}, {UN * KVT}, {v(VK)}')
            A(f'v_add_u32 {v(VV)}, {UN * KVT}, {v(VV)}')
            A(f'v_add_u32 {v(VV1)}, {UN * KVT}, {v(VV1)}')
            A('s_setpc_b64 s[34:35]')
        A.label(f'{tg}_slow')
        A(f'v_subrev_u32 {v(VK)}, {64 * KVT}, {v(VK)}')
        A(f'v_subrev_u32 {v(VV)}, {64 * KVT}, {v(VV)}')
        A(f'v_subrev_u32 {v(VV1)}, {64 * KVT}, {v(VV1)}')
        for r in range(16):
            A(f'v_mov_b32 {v(O + r)}, 0')
        M = T + 4
        A(f'v_sub_f32 {v(M)}, 0, {v(CN)}')
        A.label(f'{tg}_sloop')
        rdK(0, 0)
        rdV(0, 0)
        A('s_waitcnt lgkmcnt(0)')
        A(f'v_mfma_f32_32x32x16_bf16 {v(S0, 16)}, {v(KF, 4)}, {v(Q, 4)}, 0')
        A('s_nop 11')
        A(f'v_max3_f32 {v(T)}, {v(S0)}, {v(S0 + 1)}, {v(S0 + 2)}')
        for r in range(3, 15, 2):
            A(f'v_max3_f32 {v(T)}, {v(T)}, {v(S0 + r)}, {v(S0 + r + 1)}')
        A(f'v_max3_f32 {v(T)}, {v(T)}, {v(S0 + 15)}, {v(M)}')
        A(f'v_mov_b32 {v(T + 1)}, {v(T)}')
        A('s_nop 1')
        A(f'v_permlane32_swap_b32 {v(T)}, {v(T + 1)}')
        A(f'v_max_f32 {v(T)}, {v(T)}, {v(T + 1)}')
        A(f'v_sub_f32 {v(T + 1)}, {v(M)}, {v(T)}')
        A(f'v_exp_f32 {v(T + 1)}, {v(T + 1)}')
        A(f'v_mov_b32 {v(M)}, {v(T)}')
        for r in range(16):
            A(f'v_sub_f32 {v(S0 + r)}, {v(S0 + r)}, {v(T)}')
        for r in range(16):
            A(f'v_exp_f32 {v(S0 + r)}, {v(S0 + r)}')
        for r in range(16):
            A(f'v_mul_f32 {v(O + r)}, {v(T + 1)}, {v(O + r)}')
        for m in range(8):
            A(f'v_cvt_pk_bf16_f32 {v(P + m)}, {v(S0 + 2 * m)}, {v(S0 + 2 * m + 1)}')
        A('s_nop 1')
        A(f'v_mfma_f32_32x32x16_bf16 {v(O, 16)}, {v(VF, 4)}, {v(P, 4)}, {v(O, 16)}')
        A(f'v_mfma_f32_32x32x16_bf16 {v(O, 16)}, {v(VF + 4, 4)}, {v(P + 4, 4)}, {v(O, 16)}')
        A(f'v_add_u32 {v(VK)}, {KVT}, {v(VK)}')
        A(f'v_add_u32 {v(VV)}, {KVT}, {v(VV)}')
        A(f'v_add_u32 {v(VV1)}, {KVT}, {v(VV1)}')
        A('s_nop 11')
        A('s_add_u32 s39, s39, 1')
        A('s_cmp_lt_u32 s39, 64')
        A(f's_cbranch_scc1 {tg}_sloop')
        A('s_mov_b32 s39, 99')
        A(f's_branch {tg}_fin')
    return tail


V_WGU = 112


def gu_waddr(C):
    A = C.A
    A('s_mul_i32 s30, s22, 7')
    A('s_min_u32 s31, s20, 6')
    A('s_add_u32 s40, s30, s31')
    A('s_lshl_b32 s30, s40, 15')
    A(f's_add_u32 s30, s30, {WGUP}')
    A(f'v_add_u32 {v(V_WGU)}, s30, v3')


def gu_wload(C, ks):
    so, im = soff(ks)
    C.vmem(f'buffer_load_dwordx4 {v(128 + 4 * ks, 4)}, {v(V_WGU)}, s[8:11], {so} offen offset:{im}', 'wg')


def gu_pre(C):
    A = C.A
    CS = 112
    A('v_mov_b32 v15, v113')
    A('v_mov_b32 v9, v114')
    A(f'v_mov_b32 v14, {v(V_WGU)}')
    A('s_lshl_b32 s30, s21, 2')
    A('s_add_u32 s30, s30, s25')
    A('s_lshl_b32 s30, s30, 15')
    A('s_lshl_b32 s31, s26, 11')
    A('s_add_u32 s30, s30, s31')
    A(f's_add_u32 s30, s30, {C.B["XB"]}')
    A('v_add_u32 v13, s30, v3')
    A('s_lshl_b32 s48, s25, 15')
    A('s_add_u32 s48, s48, s31')
    A('v_add_u32 v7, 0x10000, v3')
    A('v_lshrrev_b32 v11, 5, v1')
    A('v_lshlrev_b32 v11, 4, v11')
    A('s_min_u32 s30, s20, 6')
    A('s_lshl_b32 s30, s30, 7')
    A(f's_add_u32 s30, s30, {132 * KB}')
    A('v_add_u32 v10, s30, v11')
    A('v_and_b32 v12, 31, v1')
    A('v_lshlrev_b32 v12, 3, v12')
    A('v_lshl_add_u32 v12, v11, 8, v12')
    A('s_lshl_b32 s30, s21, 15')
    A(f's_add_u32 s30, s30, {C.B["SXB"]}')
    A('v_add_u32 v12, s30, v12')
    A(f'v_add_u32 v8, {128 * KB}, v3')


def gu_main(C, after_store=None):
    A = C.A
    ACC, XF, CS = 16, 80, 112
    STR = [4, 10, 240, 244]

    def dma(c):
        A(f's_add_u32 m0, s48, {c * 4096}')
        so = '0' if c == 0 else s(40 + c)
        A('s_nop 0')
        for k in range(2):
            C.vmem(f'buffer_load_dwordx4 v13, s[8:11], {so} offen offset:{k * 1024} lds', f'x{c}')
    dma(0)
    dma(1)

    def rd(ks):
        buf = ks & 1
        for i in range(4):
            base = 'v3' if i < 2 else 'v7'
            A(f'ds_read_b128 {v(XF + buf * 16 + i * 4, 4)}, {base} offset:{(i & 1) * 32768 + ks * 1024}')

    def stats_load(i):
        for e in range(16):
            C.vmem(f'buffer_load_dwordx2 {v(ACC + (i & 1) * 32 + 2 * e, 2)}, v12, s[8:11], {"0" if i == 0 else s(40 + 2 * i)} offen offset:{e * 256}', f's{i}')

    def stats_sum(i):
        b = ACC + (i & 1) * 32
        C.wait(f's{i}')
        for stp in (16, 8, 4, 2):
            for e in range(stp):
                A(f'v_add_f32 {v(b + e)}, {v(b + e)}, {v(b + e + stp)}')
        A(f'v_mov_b32 {v(b + 2)}, {v(b)}')
        A(f'v_mov_b32 {v(b + 3)}, {v(b + 1)}')
        A('s_nop 1')
        A(f'v_permlane32_swap_b32 {v(b)}, {v(b + 2)}')
        A(f'v_permlane32_swap_b32 {v(b + 1)}, {v(b + 3)}')
        A(f'v_add_f32 {v(b)}, {v(b)}, {v(b + 2)}')
        A(f'v_add_f32 {v(b + 1)}, {v(b + 1)}, {v(b + 3)}')
        A(f'v_mul_f32 {v(b)}, {f32(-1.0 / 512)}, {v(b)}')
        A(f'v_mul_f32 {v(b + 1)}, {f32(1.0 / 512)}, {v(b + 1)}')
        A(f'v_fma_f32 {v(b + 1)}, -{v(b)}, {v(b)}, {v(b + 1)}')
        A(f'v_max_f32 {v(b + 1)}, 0, {v(b + 1)}')
        A(f'v_add_f32 {v(b + 1)}, {f32(1e-5)}, {v(b + 1)}')
        A(f'v_rcp_f32 {v(b + 2)}, {v(b + 1)}')
        A(f'v_mov_b32 {v(b + 1)}, {v(b)}')
        A(f'v_mov_b32 {v(b + 3)}, {v(b + 2)}')
        A(f'ds_write_b128 v8, {v(b, 4)} offset:{i * 1024}')
        A('s_waitcnt lgkmcnt(0)')

    def loop(idle):
        C.wait('x0')
        A('s_barrier')
        C.stamp()
        if not idle:
            rd(0)
        for ks in range(32):
            if ks + 1 < 32:
                if (ks + 1) in GU_BARS:
                    C.wait(f'x{GU_BARS[ks + 1]}')
                    A('s_barrier')
                if not idle:
                    rd(ks + 1)
                    if ks == 28:
                        for g in range(4):
                            A(f'ds_read_b128 {v(CS + g * 4, 4)}, v10 offset:{g * 32}')
                        A('s_waitcnt lgkmcnt(8)')
                    elif ks == 30:
                        for i in range(4):
                            A(f'ds_read_b128 {v(STR[i], 4)}, v8 offset:{i * 1024}')
                        A('s_waitcnt lgkmcnt(8)')
                    else:
                        A('s_waitcnt lgkmcnt(4)')
            elif not idle:
                A('s_waitcnt lgkmcnt(0)')
            buf = ks & 1
            todo = []
            if ks == 10:
                C.flagb = True
                flag_b(C)
            if ks < 6:
                todo.append(lambda: dma(ks + 2))
            if ks == 16 + WO_TAIL and not idle:
                C.wait('wg')
            if 6 <= ks < 6 + 16 - WO_TAIL and not idle:
                k2 = 16 + WO_TAIL + ks - 6
                so, im = soff(k2)
                todo.append(lambda k2=k2, so=so, im=im: C.vmem(f'buffer_load_dwordx4 {v(128 + 4 * k2, 4)}, v14, s[8:11], {so} offen offset:{im}', 'wg'))
            if ks >= GU_WD0:
                nleft = 28 - len(wdone)
                for st in [st for st in range(28) if st < ks and st not in wdone][:(2 if nleft > 31 - ks else 1)]:
                    todo.append(lambda st=st: g3_wload(C, (15, 9), st, 128))
                    wdone.add(st)
            for i in range(4):
                if not idle and not (GU_TAIL and (ks == 31 or (ks == 30 and i >= 2))):
                    c = '0' if ks == 0 else v(ACC + i * 16, 16)
                    if GU16:
                        for t2 in range(2):
                            aa = ACC + i * 16 + ((ks & 1) * 2 + t2) * 4
                            A(f'v_mfma_f32_16x16x32_bf16 {v(aa, 4)}, {v(128 + 4 * (ks ^ t2 if ks > 1 else ks), 4)}, {v(XF + buf * 16 + i * 4, 4)}, {"0" if ks < 2 else v(aa, 4)}')
                    else:
                        A(f'v_mfma_f32_32x32x16_bf16 {v(ACC + i * 16, 16)}, {v(128 + 4 * ks, 4)}, {v(XF + buf * 16 + i * 4, 4)}, {c}')
                if i < 3 and todo:
                    f_ = todo.pop(0)
                    if not (GU_NOW and ks >= 6):
                        f_()
            if idle:
                if ks == 6:
                    stats_load(0)
                    stats_load(1)
                if ks == 8:
                    stats_sum(0)
                    stats_load(2)
                    stats_sum(1)
                    stats_load(3)
                if ks == 12:
                    stats_sum(2)
                    stats_sum(3)
                    A(f's_mul_i32 s30, s22, {7 * 128}')
                    A(f's_add_u32 s30, s30, {CSP}')
                    for kp in range(8):
                        C.vmem(f'buffer_load_dwordx4 {v(ACC + 4 * kp, 4)}, v3, s[8:11], s30 offen', 'cp')
                        if kp < 7:
                            A(f's_add_u32 s30, s30, {3584 * 4}')
                if ks == 16:
                    C.wait('cp')
                    for stp in (16, 8, 4):
                        for e in range(stp):
                            A(f'v_add_f32 {v(ACC + e)}, {v(ACC + e)}, {v(ACC + e + stp)}')
                    A(f'v_add_u32 v10, {132 * KB}, v3')
                    A(f'ds_write_b128 v10, {v(ACC, 4)}')
                    A('s_waitcnt lgkmcnt(0)')
        assert len(wdone) == 28
        C.stamp()
        if idle:
            if after_store:
                after_store()
            return
        P = XF

        def epi(i):
            acc = ACC + i * 16
            for r in range(0, 16, 2):
                A(f'v_pk_fma_f32 {v(acc + r, 2)}, {v(STR[i], 2)}, {v(CS + r, 2)}, {v(acc + r, 2)}')
            for r in range(0, 8, 2):
                A(f'v_pk_mul_f32 {v(acc + r, 2)}, {v(acc + r, 2)}, {v(acc + 8 + r, 2)}')
            for r in range(0, 8, 2):
                A(f'v_pk_mul_f32 {v(acc + r, 2)}, {v(acc + r, 2)}, {v(STR[i] + 2, 2)}')
            pp = acc + 8
            for m in range(4):
                A(f'v_cvt_pk_bf16_f32 {v(pp + m)}, {v(acc + 2 * m)}, {v(acc + 2 * m + 1)}')
            C.vmem(f'buffer_store_dwordx4 {v(pp, 4)}, v3, s[8:11], s30 offen{WT}', 'st')
            if i < 3:
                A(f's_add_u32 s30, s30, {112 * KB}')

        def mm(i, ks):
            A(f'v_mfma_f32_32x32x16_bf16 {v(ACC + i * 16, 16)}, {v(128 + 4 * ks, 4)}, {v(XF + (ks & 1) * 16 + i * 4, 4)}, {v(ACC + i * 16, 16)}')
        A(f's_mul_i32 s30, s21, {4 * 112}')
        A('s_add_u32 s30, s30, s40')
        A('s_lshl_b32 s30, s30, 10')
        A(f's_add_u32 s30, s30, {C.B["HF"]}')
        if GU_TAIL:
            A('s_waitcnt lgkmcnt(0)')
            mm(0, 31)
            mm(2, 30)
            mm(1, 31)
            mm(3, 30)
            A('s_nop 8')
            epi(0)
            mm(2, 31)
            mm(3, 31)
            epi(1)
            epi(2)
            epi(3)
        else:
            A('s_nop 4')
            for i in range(4):
                epi(i)
        if after_store:
            after_store()

    ls, le = C.lab('gs'), C.lab('ge')
    A('s_cmp_eq_u32 s20, 7')
    A(f's_cbranch_scc1 {ls}')
    save, ns = list(C.vm), C.nstamp
    wdone = set()
    loop(False)
    A(f's_branch {le}')
    A.label(ls)
    C.vm, C.nstamp = list(save), ns
    wdone = set()
    loop(True)
    A.label(le)
    C.vm = ['st']


def swap_add(A, ra, rb):
    A(f'v_permlane32_swap_b32 {v(ra)}, {v(rb)}')
    A(f'v_add_f32 {v(ra)}, {v(ra)}, {v(rb)}')


def pre_part(C, end):
    A = C.A
    A('s_cmp_ge_u32 s2, 256')
    A(f's_cbranch_scc1 {end}')
    A('s_load_dwordx2 s[12:13], s[0:1], 0')
    A('s_load_dwordx2 s[16:17], s[0:1], 8')
    A('s_load_dwordx2 s[52:53], s[0:1], 16')
    A('s_load_dwordx2 s[56:57], s[0:1], 24')
    A('s_load_dwordx2 s[4:5], s[0:1], 80')
    for d, sz in ((12, 2048 * 1024), (16, 512 * 1024), (52, 512 * 32), (56, 512 * 32), (4, 256)):
        A(f's_mov_b32 {s(d + 2)}, {sz}')
        A(f's_mov_b32 {s(d + 3)}, 0x20000')
    setup(C, False, end)
    C.stamp()
    if TLBW:
        A('s_lshl_b32 s30, s20, 3')
        A(f's_add_u32 s30, s30, 32')
        A('s_cmp_eq_u32 s20, 1')
        A('s_cselect_b32 s30, 8, s30')
        A('s_load_dwordx2 s[32:33], s[0:1], s30')
        A('s_mov_b32 s31, 8192')
        A('s_cmp_ge_u32 s20, 2')
        A('s_cselect_b32 s31, 28672, s31')
        A('s_cmp_eq_u32 s20, 6')
        A('s_cselect_b32 s31, 4, s31')
        A('s_cmp_eq_u32 s20, 7')
        A(f's_cselect_b32 s31, {TLBW}, s31')
        A('v_mul_lo_u32 v4, v1, s31')
        A('s_waitcnt lgkmcnt(0)')
        A('global_load_dword v127, v4, s[32:33]')
    A('s_add_u32 s30, s21, 1')
    A('s_and_b32 s30, s30, 3')
    A('s_lshl_b32 s30, s30, 2')
    A('s_xor_b32 s30, s30, s22')
    A('s_add_u32 s30, s30, s20')
    A('s_cmp_lg_u32 s30, 0')
    A('s_cbranch_scc1 pr_z0')
    for r in range(4):
        A(f'v_mov_b32 {v(8 + r)}, 0')
    A('v_lshrrev_b32 v4, 4, v1')
    A('v_and_b32 v5, 15, v1')
    A('v_lshlrev_b32 v5, 4, v5')
    A('v_lshl_add_u32 v4, v4, 12, v5')
    A('s_lshl_b32 s30, s21, 8')
    A(f's_add_u32 s30, s30, {FLG}')
    for k in range(3):
        A('buffer_store_dwordx4 v[8:11], v4, s[8:11], s30 offen sc0 sc1')
        A('s_add_u32 s30, s30, 16384')
    A('v_lshlrev_b32 v4, 7, v1')
    A(f's_mul_i32 s30, s21, {64 * 128}')
    A(f's_add_u32 s30, s30, {PFL}')
    A('buffer_store_dwordx4 v[8:11], v4, s[8:11], s30 offen sc0 sc1')
    A('v_mov_b32 v5, 1')
    A('s_mov_b64 exec, 1')
    A('s_waitcnt vmcnt(0)')
    A('buffer_atomic_add v5, v8, s[4:7], 0 offen sc1')
    A('s_mov_b64 exec, -1')
    A('s_nop 1')
    A.label('pr_z0')
    KST, KW, KR, T, EX, XR = 240, 192, 224, 108, 96, 32
    WST, CSQ, CSKV = 96 * KB, ST4 + 9 * KB, ST4 + 10 * KB
    A('s_mov_b64 s[36:37], s[16:17]')
    A(f's_mov_b32 s38, {512 * 1024}')
    A('s_mov_b32 s39, 0x20000')
    g4_ids(C)
    A('s_lshl_b32 s30, s20, 11')
    A('s_cmp_lg_u32 s3, 0')
    A('s_cbranch_scc1 pr_k0')
    for k in range(4):
        A(f'buffer_load_dwordx4 {v(KST + 4 * k, 4)}, v3, {"s[52:55]" if k < 2 else "s[56:59]"}, s30 offen offset:{(k & 1) * 1024}')
    A.label('pr_k0')
    A('v_lshrrev_b32 v4, 3, v1')
    A('v_and_b32 v5, 7, v1')
    A('v_lshrrev_b32 v6, 4, v1')
    A('v_xor_b32 v6, v6, v5')
    A('v_lshlrev_b32 v7, 10, v4')
    A('v_lshl_add_u32 v8, v6, 4, v7')
    A('v_xor_b32 v9, 64, v8')
    A('s_lshl_b32 s30, s18, 15')
    A('s_lshl_b32 s31, s20, 7')
    A('s_add_u32 s30, s30, s31')
    A('s_lshl_b32 s32, s20, 12')
    for i in range(4):
        A(f's_add_u32 m0, s32, {KVR4 + i * 1024}')
        A('s_nop 0')
        C.vmem(f'buffer_load_dwordx4 {v(8 + (i & 1))}, s[12:15], s30 offen lds', 'x')
        A('s_add_u32 s30, s30, 8192')
    A('v_lshrrev_b32 v4, 2, v1')
    A('v_and_b32 v5, 3, v1')
    A('v_lshlrev_b32 v10, 10, v4')
    A('v_lshl_add_u32 v10, v5, 4, v10')
    A('s_lshl_b32 s31, s26, 18')
    A('s_bfe_u32 s30, s19, 0x4000b')
    A('s_lshl_b32 s30, s30, 6')
    A('s_add_u32 s31, s31, s30')
    A('s_lshl_b32 s51, s20, 13')
    A(f's_add_u32 s51, s51, {WST}')
    A('s_mov_b32 s50, s31')
    A('v_mov_b32 v88, v10')
    A('s_and_b32 s33, s22, 3')
    A(f's_lshl_b32 s33, s33, 16' if WROT else 's_mov_b32 s33, 0')

    def wloads():
        for i in range(16):
            A(f's_xor_b32 s30, s33, {G4_ORD[i] * 16384}')
            A('s_add_u32 s30, s30, s50')
            if i < 8:
                A(f's_add_u32 m0, s51, {i * 1024}')
                A('s_nop 0')
                A('buffer_load_dwordx4 v88, s[36:39], s30 offen lds')
            else:
                A(f'buffer_load_dwordx4 {v(128 + 4 * i, 4)}, v88, s[36:39], s30 offen')
    A('s_cmp_eq_u32 s3, 0')
    A('s_cbranch_scc1 pr_w1')
    A('s_barrier')
    wloads()
    A('s_waitcnt vmcnt(16)')
    A.label('pr_w1')
    C.stamp()
    A('v_and_b32 v64, 31, v1')
    A('v_lshrrev_b32 v65, 5, v1')
    A('v_lshlrev_b32 v66, 7, v64')
    A('v_lshl_add_u32 v66, v65, 3, v66')
    A('v_bfe_u32 v67, v1, 1, 3')
    A('v_lshl_add_u32 v66, v67, 4, v66')
    A(f's_add_u32 s30, s32, {KVR4}')
    A('v_add_u32 v66, s30, v66')
    A('v_bfe_u32 v67, v1, 2, 2')
    A('v_lshl_add_u32 v67, v65, 2, v67')
    A('v_lshlrev_b32 v68, 3, v5')
    A('v_bfe_u32 v69, v1, 4, 1')
    A('v_lshl_add_u32 v70, v67, 5, v68')
    A('v_lshl_add_u32 v70, v69, 11, v70')
    A('v_add_u32 v70, s30, v70')
    A('v_lshl_add_u32 v71, v67, 6, v68')
    A('v_lshl_add_u32 v71, v69, 5, v71')
    A('s_lshl_b32 s30, s26, 5')
    A('v_xor_b32 v71, s30, v71')
    A('v_add_u32 v71, s51, v71')
    A('v_add_u32 v72, s51, v3')
    A('v_mov_b32 v73, 0x3f803f80')
    A('v_lshlrev_b32 v74, 2, v64')
    A('s_lshl_b32 s30, s20, 7')
    A(f's_add_u32 s31, s30, {CSKV}')
    A('v_add_u32 v75, s31, v74')
    A('s_lshl_b32 s31, s26, 6')
    A('v_xor_b32 v74, s31, v74')
    A(f's_add_u32 s30, s30, {CSQ}')
    A('v_add_u32 v74, s30, v74')
    A('v_lshlrev_b32 v76, 4, v65')
    A('s_add_u32 s30, s30, s31')
    A('v_add_u32 v77, s30, v76')
    A('v_xor_b32 v78, 512, v77')
    A('s_lshl_b32 s30, s25, 5')
    A(f's_add_u32 s30, s30, {CSKV}')
    A('v_add_u32 v79, s30, v76')
    g4_pre(C, 'qkv', XA, resbase=0, raw=True)
    A('s_lshr_b32 s30, s33, 4')
    A('s_lshl_b32 s31, s20, 12')
    A('s_xor_b32 s30, s30, s31')
    A(f's_add_u32 s30, s30, {XF0}')
    A('v_add_u32 v12, s30, v3')
    A('v_mov_b32 v0, 0')
    A('v_mov_b32 v4, 1')
    for ch in range(8):
        A(f'v_xor_b32 {v(80 + ch)}, {ch << 4}, v66')

    def front():
        A('s_cmp_lg_u32 s3, 0')
        A('s_cbranch_scc1 pr_w2')
        A('s_waitcnt vmcnt(0)')
        A.label('pr_w2')
        C.vm = []
        C.stamp()
        for ch in range(8):
            A(f'ds_read_b64 {v(KR + 2 * ch, 2)}, {v(80 + ch)}')
        A('s_waitcnt lgkmcnt(0)')
        for k in range(4):
            A(f'ds_write_b128 v12, {v(KR + 4 * k, 4)} offset:{k * 1024}')
        for r in range(8):
            for e in range(2):
                x = v(KR + 2 * r + e)
                A(f'v_dot2_f32_bf16 {v(T + 2 * e)}, {x}, v73, {"0" if r == 0 else v(T + 2 * e)}')
                A(f'v_dot2_f32_bf16 {v(T + 2 * e + 1)}, {x}, {x}, {"0" if r == 0 else v(T + 2 * e + 1)}')
        A('s_nop 0')

    def kvw():
        for k in range(4):
            A(f'ds_write_b128 v14, {v(KST + 4 * k, 4)} offset:{k * 1024}')
        A('s_waitcnt lgkmcnt(4)')
        for st in range(4):
            for h2 in range(2):
                A(f'ds_read_b64_tr_b16 {v(KW + 4 * st + 2 * h2, 2)}, v70 offset:{st * 512 + h2 * 256}')
        A('s_waitcnt lgkmcnt(0)')
        for r in range(8):
            for e in range(2):
                A(f'v_dot2_f32_bf16 {v(80 + e)}, {v(KW + 2 * r + e)}, v73, {"0" if r == 0 else v(80 + e)}')
        A('s_nop 2')
        A('v_add_f32 v80, v80, v81')
        A('v_mov_b32 v81, v80')
        A('s_nop 1')
        swap_add(A, 80, 81)
        A('ds_write_b32 v75, v80')

    def kvcs0():
        for ww in range(8):
            A(f'ds_read_b128 {v(XR + 4 * ww, 4)}, v79 offset:{ww * 128}')

    def kvcs1():
        A('s_waitcnt lgkmcnt(0)')
        for stp in (16, 8):
            for r in range(stp):
                A(f'v_add_f32 {v(XR + r)}, {v(XR + r)}, {v(XR + stp + r)}')
        for r in range(4):
            A(f'v_add_f32 {v(EX + 8 + r)}, {v(XR + r)}, {v(XR + 4 + r)}')

    def zchk():
        lz, lzd = C.lab('z'), C.lab('zd')
        A('s_mov_b32 s31, 0')
        A('s_mov_b64 exec, 1')
        A.label(lz)
        A('buffer_load_dword v2, v0, s[4:7], 0 offen sc1')
        A('s_waitcnt vmcnt(0)')
        A('v_cmp_le_u32 vcc, 16, v2')
        A('s_add_u32 s31, s31, 1')
        A('s_cmp_eq_u64 vcc, 1')
        A(f's_cbranch_scc1 {lzd}')
        A('s_sleep 8')
        A(f's_cmp_lt_u32 s31, {1 << 20}')
        A(f's_cbranch_scc1 {lz}')
        A(f's_branch {end}')
        A.label(lzd)
        A('s_mov_b64 exec, -1')

    def wprep():
        A('s_cmp_lg_u32 s3, 0')
        A('s_cbranch_scc1 pr_w3')
        wloads()
        A.label('pr_w3')
        zchk()
        C.vm = []
        C.stamp()
        att_kv(C, KVF, KFL, end, mid=wprep2)

    def wprep2():
        for half in range(2):
            if half:
                for i in range(8):
                    A(f'ds_write_b128 v72, {v(160 + 4 * i, 4)} offset:{i * 1024}')
                A('s_waitcnt lgkmcnt(0)')
            for i in range(8):
                for h2 in range(2):
                    A(f'ds_read_b64_tr_b16 {v(128 + 32 * half + 4 * i + 2 * h2, 2)}, v71 offset:{i * 1024 + h2 * 512}')
                if i == 5:
                    A('s_waitcnt lgkmcnt(6)')
            if half:
                for r in range(8):
                    for e in range(4):
                        A(f'v_dot2_f32_bf16 {v(80 + e)}, {v(128 + 4 * r + e)}, v73, {"0" if r == 0 else v(80 + e)}')
            A('s_waitcnt lgkmcnt(0)')
        for r in range(8, 16):
            for e in range(4):
                A(f'v_dot2_f32_bf16 {v(80 + e)}, {v(128 + 4 * r + e)}, v73, {v(80 + e)}')
        A('s_nop 2')
        A('v_add_f32 v80, v80, v81')
        A('v_add_f32 v82, v82, v83')
        A('v_add_f32 v80, v80, v82')
        A('v_mov_b32 v81, v80')
        A('s_nop 1')
        swap_add(A, 80, 81)
        A('ds_write_b32 v74, v80')
        A('s_waitcnt lgkmcnt(0)')
        A('s_barrier')

    def cs():
        for h2 in range(2):
            A(f'ds_read_b128 {v(EX + 4 * h2, 4)}, v77 offset:{h2 * 32}')
            A(f'ds_read_b128 {v(XR + 4 * h2, 4)}, v78 offset:{h2 * 32}')
        A('s_waitcnt lgkmcnt(0)')
        for r in range(8):
            A(f'v_add_f32 {v(EX + r)}, {v(EX + r)}, {v(XR + r)}')
        for r in range(12):
            A(f'v_mov_b32 {v(208 + r)}, {v(EX + r)}')

    g4_main(C, 'qkv', kvf=KVF, kfl=KFL, raw=dict(front=front, kvw=kvw, kvcs0=kvcs0, kvcs1=kvcs1, zchk=zchk, wprep=wprep, cs=cs))
    C.stamp()


def wq_store(C):
    A = C.A
    A('s_and_b32 s30, s18, 0x33')
    A('s_cmp_lg_u32 s30, 0')
    A('s_cbranch_scc1 pr_w0')
    g4_waddr(C, 112, WQKVP)
    for q4 in (3, 2, 1, 0):
        if q4:
            A(f's_cmp_lg_u32 s21, {q4}')
            A(f's_cbranch_scc1 pr_ws{q4}')
        for i in range(4 * q4, 4 * q4 + 4):
            so, im = soff(G4_ORD[i])
            A(f'buffer_store_dwordx4 {v(128 + 4 * i, 4)}, v112, s[8:11], {so} offen offset:{im} sc0 sc1')
        if q4:
            A('s_branch pr_w0')
            A.label(f'pr_ws{q4}')
    A('v_lshrrev_b32 v113, 5, v1')
    A('v_lshlrev_b32 v113, 4, v113')
    A('s_lshr_b32 s31, s19, 4')
    A(f's_add_u32 s31, s31, {CSQKV}')
    A('s_mov_b32 exec_lo, 1')
    A('s_mov_b32 exec_hi, 1')
    A('buffer_store_dwordx4 v[208:211], v113, s[8:11], s31 offen sc0 sc1')
    A('buffer_store_dwordx4 v[212:215], v113, s[8:11], s31 offen offset:32 sc0 sc1')
    A('s_mov_b64 exec, -1')
    A('s_cmp_lg_u32 s22, 0')
    A('s_cbranch_scc1 pr_w0')
    A('s_lshl_b32 s30, s20, 12')
    A(f's_add_u32 s30, s30, {WQKVP + 16 * 32 * KB}')
    for k in range(4):
        A(f'buffer_store_dwordx4 {v(192 + 4 * k, 4)}, v3, s[8:11], s30 offen offset:{k * 1024} sc0 sc1')
    A('s_cmp_ge_u32 s20, 4')
    A('s_cbranch_scc1 pr_w0')
    A('s_lshl_b32 s31, s20, 5')
    A(f's_add_u32 s31, s31, {CSQKV + 2048}')
    A('s_mov_b32 exec_lo, 1')
    A('s_mov_b32 exec_hi, 1')
    A('buffer_store_dwordx4 v[216:219], v113, s[8:11], s31 offen sc0 sc1')
    A('s_mov_b64 exec, -1')
    A.label('pr_w0')


def pack_ptrs(A):
    A('s_load_dwordx2 s[4:5], s[0:1], 32')
    A('s_load_dwordx4 s[52:55], s[0:1], 48')
    A('s_load_dwordx2 s[16:17], s[0:1], 64')


def pack_issue(C):
    A = C.A
    A('s_mul_i32 s30, s2, 3')
    A('s_add_u32 s30, s30, s20')
    A('s_mov_b32 s58, s30')
    A('s_cmp_lt_u32 s20, 3')
    A('s_cselect_b32 s57, 1, 0')
    A('s_cmp_lt_u32 s30, 736')
    A('s_cselect_b32 s57, s57, 0')
    A('s_cmp_eq_u32 s57, 0')
    A('s_cselect_b32 s30, 0, s30')
    A('s_cmp_lt_u32 s30, 64')
    A('s_cbranch_scc1 pk_jwo')
    A('s_cmp_lt_u32 s30, 512')
    A('s_cbranch_scc1 pk_jgu')
    A('s_sub_u32 s30, s30, 512')
    A('s_mov_b64 s[4:5], s[16:17]')
    A(f's_mov_b32 s6, {1792 * 1024}')
    A('s_mov_b32 s50, 1024')
    A('s_and_b32 s31, s30, 7')
    A('s_lshr_b32 s30, s30, 3')
    A('s_lshl_b32 s51, s30, 16')
    A('s_lshl_b32 s56, s31, 7')
    A('s_add_u32 s51, s51, s56')
    A(f's_mul_i32 s56, s31, {2 * 112 * KB}')
    A('s_lshl_b32 s30, s30, 12')
    A('s_add_u32 s56, s56, s30')
    A(f's_add_u32 s56, s56, {WDP}')
    A(f's_mov_b32 s52, {112 * KB}')
    A('s_mov_b32 s53, 256')
    A(f's_mov_b32 s54, {G1.CSDUMMY}')
    A('s_branch pk_jgo')
    A.label('pk_jwo')
    A(f's_mov_b32 s6, {512 * 1024}')
    A('s_mov_b32 s50, 1024')
    A('s_lshr_b32 s31, s30, 3')
    A('s_and_b32 s30, s30, 7')
    A('s_lshl_b32 s51, s30, 16')
    A('s_lshl_b32 s56, s31, 7')
    A('s_add_u32 s51, s51, s56')
    A('s_lshl_b32 s56, s31, 16')
    A('s_lshl_b32 s30, s30, 12')
    A('s_add_u32 s56, s56, s30')
    A(f's_add_u32 s56, s56, {WOP}')
    A(f's_mov_b32 s52, {32 * KB}')
    A('s_mov_b32 s53, 256')
    A(f's_mov_b32 s54, {G1.CSDUMMY}')
    A('s_branch pk_jgo')
    A.label('pk_jgu')
    A('s_sub_u32 s30, s30, 64')
    A('s_cmp_ge_u32 s30, 224')
    A('s_cselect_b32 s4, s54, s52')
    A('s_cselect_b32 s5, s55, s53')
    A('s_cselect_b32 s16, 1, 0')
    A('s_cselect_b32 s31, 224, 0')
    A('s_sub_u32 s30, s30, s31')
    A(f's_mov_b32 s6, {512 * 3584}')
    A('s_mov_b32 s50, 3584')
    A('s_lshr_b32 s31, s30, 3')
    A('s_and_b32 s30, s30, 7')
    A(f's_mul_i32 s51, s30, {64 * 3584}')
    A('s_lshl_b32 s56, s31, 7')
    A('s_add_u32 s51, s51, s56')
    A('s_lshl_b32 s56, s31, 17')
    A('s_lshl_b32 s17, s30, 12')
    A('s_add_u32 s56, s56, s17')
    A('s_lshl_b32 s17, s16, 8')
    A('s_add_u32 s56, s56, s17')
    A(f's_add_u32 s56, s56, {WGUP}')
    A(f's_mov_b32 s52, {64 * KB}')
    A(f's_mov_b32 s53, {32 * KB}')
    A(f's_mul_i32 s54, s30, {3584 * 4}')
    A('s_lshl_b32 s17, s31, 9')
    A('s_add_u32 s54, s54, s17')
    A('s_lshl_b32 s17, s16, 6')
    A('s_add_u32 s54, s54, s17')
    A(f's_add_u32 s54, s54, {CSP}')
    A.label('pk_jgo')
    A('v_lshrrev_b32 v112, 3, v1')
    A('v_and_b32 v113, 7, v1')
    A('v_mul_lo_u32 v112, v112, s50')
    A('v_lshl_add_u32 v112, v113, 4, v112')
    A('s_lshl_b32 s50, s50, 3')
    A('s_min_u32 s59, s20, 2')
    A('s_lshl_b32 s59, s59, 13')
    A(f's_add_u32 s59, s59, {136 * KB}')
    A('s_cmp_eq_u32 s57, 0')
    A('s_cbranch_scc1 pk_i_end')
    for i in range(8):
        A(f's_add_u32 m0, s59, {i * 1024}')
        A('s_nop 0')
        A('buffer_load_dwordx4 v112, s[4:7], s51 offen lds')
        A('s_add_u32 s51, s51, s50')
    A.label('pk_i_end')


def pack_convert(C):
    A = C.A
    A('s_cmp_eq_u32 s57, 0')
    A('s_cbranch_scc1 pk_c_end')
    A('v_lshrrev_b32 v112, 5, v1')
    A('v_bfe_u32 v113, v1, 2, 2')
    A('v_lshl_add_u32 v113, v112, 2, v113')
    A('v_and_b32 v114, 3, v1')
    A('v_lshlrev_b32 v114, 3, v114')
    A('v_lshl_add_u32 v113, v113, 7, v114')
    A('v_bfe_u32 v114, v1, 4, 1')
    A('v_lshl_add_u32 v113, v114, 5, v113')
    A('v_add_u32 v113, s59, v113')
    A('v_mul_lo_u32 v114, v114, s53')
    A('v_and_b32 v115, 15, v1')
    A('v_lshl_add_u32 v114, v115, 4, v114')
    A('v_lshl_add_u32 v114, v112, 9, v114')
    A('v_lshrrev_b32 v112, 4, v1')
    A('v_lshlrev_b32 v112, 7, v112')
    A('v_lshl_add_u32 v112, v115, 2, v112')
    A('v_mov_b32 v115, 0x3f803f80')
    A('s_add_u32 s52, s52, s56')
    A('s_waitcnt vmcnt(0)')
    for jj in range(2):
        for st in range(4):
            for h2 in range(2):
                A(f'ds_read_b64_tr_b16 {v(128 + 4 * (4 * jj + st) + 2 * h2, 2)}, v113 offset:{st * 2048 + h2 * 1024 + jj * 64}')
        A('s_waitcnt lgkmcnt(0)')
        for st in range(4):
            A(f'buffer_store_dwordx4 {v(128 + 4 * (4 * jj + st), 4)}, v114, s[8:11], {"s56" if jj == 0 else "s52"} offen offset:{st * 1024} sc0 sc1')
    A('s_cmp_eq_u32 s53, 256')
    A('s_cbranch_scc1 pk_c_end')
    for r in range(16):
        for jj in range(2):
            A(f'v_dot2_f32_bf16 {v(116 + jj)}, {v(128 + 16 * jj + r)}, v115, {"0" if r == 0 else v(116 + jj)}')
    A('s_nop 2')
    swap_add(A, 116, 117)
    A('buffer_store_dword v116, v112, s[8:11], s54 offen sc0 sc1')
    A.label('pk_c_end')


def pack_flag(C):
    A = C.A
    A('v_mov_b32 v112, 0')
    A('v_mov_b32 v113, 1')
    A('s_cmp_eq_u32 s57, 0')
    A('s_cbranch_scc1 pk_f_1')
    A('s_lshl_b32 s30, s58, 7')
    A(f's_add_u32 s30, s30, {PFL}')
    A('s_waitcnt vmcnt(0)')
    A('s_mov_b64 exec, 1')
    A('buffer_store_dword v113, v112, s[8:11], s30 offen sc0 sc1')
    A('s_mov_b64 exec, -1')
    A.label('pk_f_1')
    A('s_and_b32 s30, s18, 0x33')
    A('s_cmp_lg_u32 s30, 0')
    A('s_cbranch_scc1 pk_f_end')
    A('s_lshl_b32 s30, s22, 1')
    A('s_add_u32 s30, s30, s20')
    A('s_lshl_b32 s31, s21, 5')
    A('s_add_u32 s30, s30, s31')
    A('s_lshl_b32 s30, s30, 7')
    A(f's_add_u32 s30, s30, {PFL + 768 * 128}')
    A('s_waitcnt vmcnt(0)')
    A('s_mov_b64 exec, 1')
    A('buffer_store_dword v113, v112, s[8:11], s30 offen sc0 sc1')
    A('s_mov_b64 exec, -1')
    A.label('pk_f_end')


def pack_poll(C, endlab):
    A = C.A
    A('s_mul_i32 s30, s22, 7')
    A('s_lshr_b32 s30, s30, 2')
    A('v_lshrrev_b32 v112, 4, v1')
    A('v_add_u32 v112, s30, v112')
    A('v_min_u32 v112, 27, v112')
    A('v_and_b32 v113, 7, v1')
    A('v_lshl_add_u32 v112, v112, 3, v113')
    A('v_bfe_u32 v114, v1, 3, 1')
    A('v_mul_u32_u24 v114, 224, v114')
    A('v_add3_u32 v112, v112, v114, 64')
    A('s_mul_i32 s30, s20, 7')
    A('s_lshr_b32 s30, s30, 1')
    A('v_min_u32 v114, 4, v113')
    A('v_add_u32 v114, s30, v114')
    A('v_min_u32 v114, 27, v114')
    A('s_add_u32 s30, s24, 512')
    A('v_lshl_add_u32 v114, v114, 3, s30')
    A('v_cmp_le_u32 vcc, 48, v1')
    A('s_lshl_b32 s30, s24, 3')
    A('s_add_u32 s30, s30, s20')
    A('v_cndmask_b32 v112, v112, v114, vcc')
    A('v_mov_b32 v114, s30')
    A('v_cmp_le_u32 vcc, 56, v1')
    A('s_add_u32 s31, s20, 768')
    A('s_and_b32 s30, s22, 12')
    A('s_lshl_b32 s30, s30, 1')
    A('s_add_u32 s30, s30, s31')
    A('v_cndmask_b32 v112, v112, v114, vcc')
    for q4 in range(4):
        A(f'v_writelane_b32 v112, s30, {59 + q4}')
        A('s_add_u32 s30, s30, 32')
    A('v_writelane_b32 v112, s31, 63')
    A(f's_mov_b32 s30, {PFL}')
    A('s_mov_b32 s31, 0')
    A('v_lshlrev_b32 v112, 7, v112')
    A('s_bfe_u32 s32, s19, 0x3000c')
    A('s_lshl_b32 s32, s32, 3')
    A('s_lshl_b32 s33, s26, 2')
    A('s_add_u32 s32, s32, s33')
    A('v_and_b32 v114, 3, v1')
    A('v_add_u32 v114, s32, v114')
    A('v_lshlrev_b32 v114, 7, v114')
    A('buffer_load_dword v113, v112, s[8:11], s30 offen sc1')
    A('buffer_load_dword v115, v114, s[8:11], s30 offen sc1')


def pack_poll2(C, endlab):
    A = C.A
    A(f's_mov_b32 s30, {PFL}')
    A('s_mov_b32 s31, 0')
    A.label('pk_p')
    A('s_waitcnt vmcnt(0)')
    A('v_and_b32 v113, v113, v115')
    A('v_cmp_eq_u32 vcc, 1, v113')
    A('s_add_u32 s31, s31, 1')
    A('s_cmp_eq_u64 vcc, -1')
    A('s_cbranch_scc1 pk_pd')
    A('s_sleep 16')
    A('buffer_load_dword v113, v112, s[8:11], s30 offen sc1')
    A('buffer_load_dword v115, v114, s[8:11], s30 offen sc1')
    A(f's_cmp_lt_u32 s31, {1 << 19}')
    A('s_cbranch_scc1 pk_p')
    A(f's_branch {endlab}')
    A.label('pk_pd')
    C.vm = []


def layer_part(C, layer, end):
    A = C.A
    C.tag = f'l{layer}'
    last = layer == 1
    xin = None if layer == 0 else XC
    kvf = KVF if layer == 0 else KVF2
    kfl = KFL + layer * 64 * 128
    sy = 5 * layer + 1
    C.B = dict(QF=QF, OF=OF, XB=XB, SXB=SXB, HF=HF) if layer == 0 else dict(QF=QF2, OF=OF2, XB=XB2, SXB=SXB2, HF=HF2)
    B = C.B

    def pre_addr():
        gu_waddr(C)
        g3_waddr(C, (113, 114), 112, WDP)
        g4_waddr(C, 116, WOP)

    stubs = [lambda: (pre_addr(), gu_wload(C, 0))]
    stubs += [lambda ks=ks: gu_wload(C, ks) for ks in range(1, 24)]
    stubs += [lambda i=i: g4_wload(C, 116, i, 'res') for i in range(8)]
    if TOUCH and layer == 1:
        def t_addr():
            A('s_lshr_b32 s30, s2, 3')
            A('s_lshl_b32 s30, s30, 3')
            A('s_add_u32 s30, s30, s20')
            A(f's_mul_i32 s31, s30, {7 * KB}')
            A(f's_add_u32 s31, s31, {WDP}')
            A('v_add_u32 v118, s31, v3')
            A('s_lshl_b32 s31, s30, 11')
            A(f's_add_u32 s31, s31, {WQKVP}')
            A('v_add_u32 v119, s31, v3')

        def tch(vr, k):
            so, im = soff(k)
            C.vmem(f'buffer_load_dwordx4 v[120:123], {v(vr)}, s[8:11], {so} offen offset:{im}', 'tc')
        stubs += [lambda: (t_addr(), tch(V_WGU, 24))]
        stubs += [lambda ks=ks: tch(V_WGU, ks) for ks in range(25, 32)]
        stubs += [lambda k=k: tch(118, k) for k in range(7)]
        if not last:
            stubs += [lambda k=k: tch(119, k) for k in range(2)]

    def need_wo():
        A('s_lshr_b32 s30, s20, 1')
        A('s_lshl_b32 s30, s30, 2')
        A('s_and_b32 s31, s22, 3')
        A('s_add_u32 s30, s30, s31')
        A('s_lshl_b32 s32, 1, s30')

    def need_gu():
        A('s_lshl_b32 s32, 0x1111, s25')
        A('s_cmp_eq_u32 s20, 7')
        A('s_cselect_b32 s32, 0xffff, s32')

    def need_dn():
        A('s_lshl_b32 s30, s20, 1')
        A('s_lshl_b32 s32, 3, s30')

    def need_qkv():
        A('s_lshl_b32 s30, s20, 1')
        A('s_and_b32 s31, s24, 1')
        A('s_add_u32 s30, s30, s31')
        A('s_lshl_b32 s32, 1, s30')

    if layer == 0:
        fixed = {PK_I: lambda: (wq_store(C), pack_issue(C)), PK_C: lambda: pack_convert(C), PK_F: lambda: pack_flag(C), PK_P - 1: lambda: pack_poll(C, end), PK_P: lambda: pack_poll2(C, end)}
        tail = att_phase(C, kvf, kfl, end, stubs, fixed, PK_P, pre_hook=lambda: pack_ptrs(A), loadq=False, early=True)
    else:
        tail = att_phase(C, kvf, kfl, end, stubs, pre_hook=lambda: A('s_load_dwordx2 s[12:13], s[0:1], 72'), loadq=False)
    C.stamp()
    A('s_nop 1')
    for i in range(8, 16):
        g4_wload(C, 116, i, 'res')
    g4_pre(C, 'res', B['OF'], resbase=xin)
    handoff(C, sy + 0, end, need_wo)
    C.stamp()
    g4_main(C, 'res', outbase=B['XB'], sxout=B['SXB'], hook_red=lambda k: gu_wload(C, 24 + k))
    C.stamp()
    gu_pre(C)
    handoff(C, sy + 1, end, need_gu)
    C.stamp()
    gu_main(C)
    C.stamp()
    g3_pre(C, 'res', 112, B['HF'], resbase=B['XB'])
    handoff(C, sy + 2, end, need_dn)
    C.stamp()
    if last:
        g3_main(C, 'out', 112, 128)
        C.stamp()
    else:
        g3_main(C, 'res', 112, 128, outbase=XC, sxout=SXC, hook_b=lambda st, n: qkv4_wstep(C, st, n), hook_red=lambda: qkv4_wrest(C))
        C.stamp()
        g4_pre(C, 'qkv', XC, resbase=SXC)
        g4_waddr(C, 64, WQKVP)
        handoff(C, sy + 3, end, need_qkv)
        C.stamp()
        g4_main(C, 'qkv', kvf=KVF2, kfl=KFL + 64 * 128)
        C.stamp()
    return tail


def build():
    A = Asm()
    name = NAME + '_kernel'
    C = Ctx(A, 'pr')
    C.qf = QF
    end = 'k_end'
    kernel_begin(A, name)
    pre_part(C, end)
    t0 = layer_part(C, 0, end)
    t1 = layer_part(C, 1, end)
    A('s_add_u32 s30, s2, s20')
    A('s_cmp_lg_u32 s30, 0')
    A('s_cbranch_scc1 k_fin')
    A('s_load_dwordx2 s[4:5], s[0:1], 80')
    A('s_mov_b32 s6, 256')
    A('v_mov_b32 v2, 0')
    A('s_mov_b64 exec, 1')
    A('s_waitcnt lgkmcnt(0)')
    A('buffer_store_dword v2, v2, s[4:7], 0 offen sc0 sc1')
    A('s_mov_b64 exec, -1')
    A.label('k_fin')
    stamp_end(C, 1)
    A.label(end)
    A('s_endpgm')
    t0(True)
    t1(False)
    body = A.text()
    probs = lint(body)
    for p in probs:
        print('LINT:', p, file=sys.stderr)
    head = '; generated by gen/gen3.py\n'
    head += f"; @launch grid=(256,1,1) block=(512,1,1) lds={LDS_BYTES}\n"
    head += '.amdgcn_target "amdgcn-amd-amdhsa--gfx950"\n.text\n'
    tail = '.section .rodata,"a"\n.p2align 6\n' + descriptor(name, 256, 0, nsgpr=100)
    print('stamps:', C.nstamp, file=sys.stderr)
    return head + body + tail


if __name__ == '__main__':
    if 'stamp' in sys.argv:
        STAMP = True
    for arg in sys.argv[2:]:
        if '=' in arg:
            k, val = arg.split('=')
            globals()[k] = int(val) if val.lstrip('-').isdigit() else val.replace('_', ' ')
    out = sys.argv[1] if len(sys.argv) > 1 else f'cdna_kernels/{NAME}.s'
    open(out, 'w').write(build())
    print('wrote', out)
```

```python
import sys
import math
import struct
from asmlib import Asm, v, a, s, lint
import gen as G1
from gen import f32, kernel_begin, descriptor, ws_srd, KB

NAME = G1.NAME
WQKVP, WOP, WGUP, WDP, CSQKV, CSGU = G1.WQKVP, G1.WOP, G1.WGUP, G1.WDP, G1.CSQKV, G1.CSGU
KVF, XA, XB, QF, OF, HF = G1.KVF, G1.XA, G1.XB, G1.QF, G1.OF, G1.HF
WS_SIZE, QSCALE = G1.WS_SIZE, G1.QSCALE
KVG = 2048
KVT = 2080
VBS = 512
XC = G1.WS_END
KVF2 = XC + 2048 * KB
FLG = KVF2 + 144 * KB
SXA = FLG + 64 * KB
SXB = SXA + 512 * KB
SXC = SXB + 512 * KB
CSP = SXC + 512 * KB
PFL = CSP + 128 * KB
KFL = PFL + 112 * KB
QF2 = KFL + 16 * KB
OF2 = QF2 + 2048 * KB
XB2 = OF2 + 2048 * KB
SXB2 = XB2 + 2048 * KB
HF2 = SXB2 + 512 * KB
WS_END = HF2 + 64 * 112 * KB
STAMPS = G1.STAMPS

STAMP = False
WT = ' sc0 sc1'
LDS_BYTES = 160 * KB
FINE = 0
ATT_B2 = 3
WO_L0 = 3
WROT = 1
GU_TAIL = 1
ATT_R0 = 4
EXPT = 0
TLBW = 0
KV_SLEEP = 2
QKV_PER = 1
WO_TAIL = 16
SLO = 0
QWT = ' sc0 sc1'
GU16 = 0
GU_NOW = 0
GU_WD0 = 3
GU_BARS = {4: 1, 8: 2, 12: 7, 24: 7}
PK_I = 3
PK_C = 6
PK_F = 7
PK_P = 10
RT = 0
TOUCH = 0
TOUCH2 = 1
WO_LATE = 0
ATT_UN = 4
ATT_PFEND = 1
G3_PR4 = 7
G3_PR14 = 6
G2_ST8 = [2, 2, 2, 2]
G2_ST28 = [2, 2, 4, 4, 4, 4, 4, 4]
G2_PRE8 = 4
G2_PRE28 = 6


class Ctx:
    def __init__(self, A, tag):
        self.A = A
        self.tag = tag
        self.vm = []
        self.nlab = 0
        self.nstamp = 1

    def lab(self, base):
        self.nlab += 1
        return f'{self.tag}_{base}{self.nlab}'

    def vmem(self, text, tag):
        self.A(text)
        self.vm.append(tag)
        assert len(self.vm) <= 63, 'vmcnt overflow'

    def wait(self, tag, extra=''):
        idx = [i for i, t in enumerate(self.vm) if t == tag]
        if not idx:
            if extra:
                self.A(f's_waitcnt {extra}')
            return
        n = len(self.vm) - 1 - idx[-1]
        self.A(f's_waitcnt vmcnt({n}) {extra}'.strip())
        self.vm = self.vm[idx[-1] + 1:]

    def stamp(self):
        if STAMP:
            i = self.nstamp - SLO
            self.nstamp += 1
            if i < 1 or i >= 28:
                return
            A = self.A
            A('s_waitcnt lgkmcnt(0)')
            A('s_memrealtime s[60:61]' if RT else 's_memtime s[60:61]')
            A('s_waitcnt lgkmcnt(0)')
            A(f's_mov_b32 {s(64 + i)}, s60')


def stamp_begin(C):
    if STAMP:
        A = C.A
        A('s_memrealtime s[62:63]')
        A('s_memtime s[60:61]')
        for i in range(1, 30):
            A(f's_mov_b32 {s(64 + i)}, 0')
        A('s_waitcnt lgkmcnt(0)')
        A('s_mov_b32 s64, s62' if RT else 's_mov_b32 s64, s60')
        A('s_mov_b32 s95, s62')


def stamp_end(C, kidx):
    if STAMP:
        A = C.A
        A('s_waitcnt vmcnt(0) lgkmcnt(0)')
        A('s_memtime s[60:61]')
        A('s_memrealtime s[62:63]')
        A('s_waitcnt lgkmcnt(0)')
        A('s_mov_b32 s93, s62' if RT else 's_mov_b32 s93, s60')
        A('s_mov_b32 s94, s62')
        A('s_mov_b64 exec, 1')
        A('s_lshl_b32 s60, s2, 10')
        A('s_lshl_b32 s61, s20, 7')
        A('s_add_u32 s60, s60, s61')
        A(f's_add_u32 s60, s60, {STAMPS + kidx * (1 << 20)}')
        A('v_mov_b32 v0, 0')
        for i in range(32):
            A(f'v_mov_b32 v1, {s(64 + i)}')
            A(f'buffer_store_dword v1, v0, s[8:11], s60 offen offset:{i * 4}')
        A('s_waitcnt vmcnt(0)')


def setup(C, need_out, endlab):
    A = C.A
    A('s_cmp_ge_u32 s2, 256')
    A(f's_cbranch_scc1 {endlab}')
    stamp_begin(C)
    ws_srd(A, 8)
    if need_out:
        A('s_load_dwordx2 s[12:13], s[0:1], 72')
        A(f's_mov_b32 s14, {2048 * 512 * 2}')
        A('s_mov_b32 s15, 0x20000')
    A('v_and_b32 v1, 63, v0')
    A('v_lshrrev_b32 v2, 6, v0')
    A('v_lshlrev_b32 v3, 4, v1')
    A('v_readfirstlane_b32 s20, v2')
    A('s_and_b32 s21, s2, 7')
    A('s_lshl_b32 s21, s21, 1')
    A('s_bfe_u32 s22, s2, 0x10003')
    A('s_add_u32 s21, s21, s22')
    A('s_lshr_b32 s22, s2, 4')
    A('s_and_b32 s23, s22, 1')
    A('s_lshr_b32 s24, s22, 1')
    A('s_and_b32 s25, s20, 3')
    A('s_lshr_b32 s26, s20, 2')
    A('s_lshl_b32 s27, s21, 2')
    A('s_lshl_b32 s30, s23, 1')
    A('s_add_u32 s27, s27, s30')
    A('s_lshl_b32 s28, s24, 1')
    A('s_bfe_u32 s30, s20, 0x10001')
    A('s_add_u32 s28, s28, s30')
    A('s_and_b32 s29, s20, 1')
    A('s_add_u32 s30, s27, s29')
    A('s_lshl_b32 s49, s30, 15')
    A('s_lshl_b32 s31, s28, 11')
    A('s_add_u32 s49, s49, s31')
    A('s_lshl_b32 s31, s26, 10')
    A('s_add_u32 s49, s49, s31')
    for g in range(1, 8):
        A(f's_mov_b32 {s(40 + g)}, {g * 4096}')
    A('s_waitcnt lgkmcnt(0)')


def soff(i):
    return ('0' if i // 4 == 0 else s(40 + i // 4)), (i % 4) * 1024


def handoff(C, sync, endlab, need, kvflag=None, first=False):
    A = C.A
    l1, l2, ld = C.lab('pa'), C.lab('pb'), C.lab('pd')
    need()
    A('s_mov_b32 s33, 0')
    A('v_lshlrev_b32 v0, 2, v1')
    A('s_lshl_b32 s30, s21, 8')
    A(f's_add_u32 s30, s30, {FLG + sync * 4096}')
    A('s_lshl_b32 s34, s22, 2')
    A('s_add_u32 s34, s34, s30')
    A('v_mov_b32 v4, 1')
    if first:
        lz, lzd = C.lab('z'), C.lab('zd')
        A('s_cmp_lg_u32 s20, 0')
        A(f's_cbranch_scc1 {lzd}')
        A('s_mov_b32 s31, 0')
        A('s_mov_b64 exec, 1')
        A.label(lz)
        A('buffer_load_dword v2, v0, s[4:7], 0 offen sc0 sc1')
        A('s_waitcnt vmcnt(0)')
        A('v_cmp_le_u32 vcc, 16, v2')
        A('s_add_u32 s31, s31, 1')
        A('s_cmp_eq_u64 vcc, 1')
        A(f's_cbranch_scc1 {lzd}')
        A('s_sleep 8')
        A(f's_cmp_lt_u32 s31, {1 << 20}')
        A(f's_cbranch_scc1 {lz}')
        A(f's_branch {endlab}')
        A.label(lzd)
        A('s_mov_b64 exec, -1')
    if kvflag is not None:
        A('s_waitcnt vmcnt(0) lgkmcnt(0)')
        C.vm = []
    else:
        C.wait('st', 'lgkmcnt(0)')
    A('s_cmp_lg_u32 s20, 0')
    A('s_barrier')
    l, lb, lb2 = C.lab('sig'), C.lab('sb'), C.lab('sc')
    A(f's_cbranch_scc1 {l}')
    A('s_mov_b64 exec, 1')
    if kvflag is not None:
        lk = C.lab('kf')
        A('s_cmp_ge_u32 s24, 2')
        A(f's_cbranch_scc1 {lk}')
        A('s_add_u32 s31, s27, s24')
        A('s_lshl_b32 s31, s31, 7')
        A(f's_add_u32 s31, s31, {kvflag}')
        A('s_mov_b64 exec, 15')
        A('buffer_store_dword v4, v0, s[8:11], s31 offen sc0 sc1')
        A('s_mov_b64 exec, 1')
        A.label(lk)
    A('buffer_store_dword v4, v0, s[8:11], s34 offen')
    A.label(l)
    A('s_mov_b32 s31, 0')
    A('s_mov_b64 exec, s[32:33]')
    A.label(l1)
    A('buffer_load_dword v2, v0, s[8:11], s30 offen sc1')
    A('s_add_u32 s31, s31, 1')
    A('s_waitcnt vmcnt(0)')
    A('v_cmp_ne_u32 vcc, 0, v2')
    A('s_cmp_eq_u64 vcc, s[32:33]')
    A(f's_cbranch_scc1 {ld}')
    A('s_cmp_lt_u32 s31, 64')
    A(f's_cbranch_scc1 {l1}')
    A('s_mov_b64 exec, 1')
    A('buffer_store_dword v4, v0, s[8:11], s34 offen offset:128 sc0 sc1')
    A('s_mov_b64 exec, s[32:33]')
    A.label(l2)
    A('buffer_load_dword v2, v0, s[8:11], s30 offen sc1')
    A('s_waitcnt vmcnt(0)')
    A('v_cmp_ne_u32 s[36:37], 0, v2')
    A('buffer_load_dword v2, v0, s[8:11], s30 offen offset:128 sc0 sc1')
    A('s_waitcnt vmcnt(0)')
    A('v_cmp_ne_u32 vcc, 0, v2')
    A('s_add_u32 s31, s31, 1')
    A('s_or_b64 vcc, vcc, s[36:37]')
    A('s_cmp_eq_u64 vcc, s[32:33]')
    A(f's_cbranch_scc1 {ld}')
    A('s_sleep 4')
    A(f's_cmp_lt_u32 s31, {1 << 20}')
    A(f's_cbranch_scc1 {l2}')
    A(f's_branch {endlab}')
    A.label(ld)
    A('s_mov_b64 exec, -1')
    C.vm = []
    C.flagb = True


def flag_b(C):
    if getattr(C, 'flagb', False):
        A = C.A
        l = C.lab('fb')
        A('s_cmp_lg_u32 s20, 0')
        A(f's_cbranch_scc1 {l}')
        A('s_mov_b64 exec, 1')
        A('buffer_store_dword v4, v0, s[8:11], s34 offen offset:128 sc0 sc1')
        A('s_mov_b64 exec, -1')
        A.label(l)
        C.flagb = False


ACCB, ACCA = 16, 48
KVW, KACC, QSX = 160, 176, 240
KVRED, STAT, CSX, CSK = 112 * KB, 144 * KB, 148 * KB, 152 * KB


def blk_stats(C, P, T):
    A = C.A
    A(f'v_mov_b32 {v(T + 4)}, 0x3f803f80')
    A(f'v_dot2_f32_bf16 {v(T + 1)}, {v(P)}, {v(P)}, 0')
    A(f'v_dot2_f32_bf16 {v(T)}, {v(P)}, {v(T + 4)}, 0')
    for m in range(1, 4):
        A(f'v_dot2_f32_bf16 {v(T + 1)}, {v(P + m)}, {v(P + m)}, {v(T + 1)}')
        A(f'v_dot2_f32_bf16 {v(T)}, {v(P + m)}, {v(T + 4)}, {v(T)}')
    A('s_nop 2')
    A(f'v_mov_b32 {v(T + 2)}, {v(T)}')
    A(f'v_mov_b32 {v(T + 3)}, {v(T + 1)}')
    A('s_nop 1')
    A(f'v_permlane32_swap_b32 {v(T)}, {v(T + 2)}')
    A(f'v_permlane32_swap_b32 {v(T + 1)}, {v(T + 3)}')
    A(f'v_add_f32 {v(T)}, {v(T)}, {v(T + 2)}')
    A(f'v_add_f32 {v(T + 1)}, {v(T + 1)}, {v(T + 3)}')


def g3_waddr(C, vregs, KS, wbase):
    A = C.A
    NS = KS // 8
    A('s_lshl_b32 s30, s26, 8')
    A(f'v_xor_b32 {v(vregs[0])}, s30, v3')
    A(f's_mul_i32 s31, s20, {NS * KB}')
    A(f's_add_u32 s31, s31, {wbase}')
    A('s_xor_b32 s30, s28, 1')
    A(f's_mul_i32 s30, s30, {KS * KB}')
    A('s_add_u32 s30, s30, s31')
    A(f'v_add_u32 {v(vregs[1])}, s30, {v(vregs[0])}')
    A(f's_mul_i32 s30, s28, {KS * KB}')
    A('s_add_u32 s30, s30, s31')
    A(f'v_add_u32 {v(vregs[0])}, s30, {v(vregs[0])}')


def g3_wload(C, vregs, idx, wreg0, tag='w'):
    st, jj = idx // 2, idx % 2
    so, im = soff(st)
    C.vmem(f'buffer_load_dwordx4 {v(wreg0 + 4 * idx, 4)}, {v(vregs[jj])}, s[8:11], {so} offen offset:{im}', tag)


def g3_ex(mode, KS):
    return 252 if KS == 112 else (112 if mode == 'qkv' else 116)


def g3_pre(C, mode, KS, xbase, resbase=None, raw=False):
    A = C.A
    NS = KS // 8
    EX = g3_ex(mode, KS)
    A(f's_mul_i32 s31, s20, {NS * KB}')
    A(f's_add_u32 s31, s31, {xbase}')
    A('s_add_u32 s30, s27, s29')
    A(f's_mul_i32 s32, s30, {KS * KB}')
    A('s_add_u32 s32, s32, s31')
    A('v_add_u32 v6, s32, v3')
    A('s_xor_b32 s30, s30, 1')
    A(f's_mul_i32 s32, s30, {KS * KB}')
    A('s_add_u32 s32, s32, s31')
    A('v_add_u32 v5, s32, v3')
    A('s_lshl_b32 s30, s20, 11')
    A('v_add_u32 v8, s30, v3')
    A('v_add_u32 v7, 0x10000, v8')
    for b in range(1, 8):
        A(f's_xor_b32 s30, s20, {b}')
        A('s_lshl_b32 s30, s30, 11')
        A(f's_add_u32 s30, s30, {(b - 1) * 16 * KB}')
        A(f'v_add_u32 {v(8 + b)}, s30, v3')
    if raw:
        return
    if mode == 'qkv':
        A('v_lshrrev_b32 v2, 5, v1')
        A('v_lshlrev_b32 v4, 4, v2')
        A('s_lshl_b32 s31, s28, 7')
        A('s_lshl_b32 s30, s26, 6')
        A('s_add_u32 s31, s31, s30')
        A(f's_add_u32 s31, s31, {CSQKV}')
        C.vmem(f'buffer_load_dwordx4 {v(EX, 4)}, v4, s[8:11], s31 offen', 'ex')
        C.vmem(f'buffer_load_dwordx4 {v(EX + 4, 4)}, v4, s[8:11], s31 offen offset:32', 'ex')
        A('s_bfe_u32 s30, s20, 0x10001')
        A('s_lshl_b32 s30, s30, 6')
        A('s_lshl_b32 s31, s26, 5')
        A('s_add_u32 s30, s30, s31')
        A(f's_add_u32 s31, s30, {CSQKV + 2048}')
        C.vmem(f'buffer_load_dwordx4 {v(EX + 8, 4)}, v4, s[8:11], s31 offen', 'ex')
        A(f'v_and_b32 {v(QSX + 8)}, 31, v1')
        A(f'v_lshlrev_b32 {v(QSX + 8)}, 3, {v(QSX + 8)}')
        A(f'v_lshl_add_u32 {v(QSX + 8)}, v2, 13, {v(QSX + 8)}')
        A('s_lshl_b32 s30, s27, 13')
        A('s_lshl_b32 s31, s20, 10')
        A('s_add_u32 s30, s30, s31')
        A(f's_add_u32 s30, s30, {resbase}')
        A(f'v_add_u32 {v(QSX + 8)}, s30, {v(QSX + 8)}')
    elif resbase is None:
        A('v_and_b32 v2, 31, v1')
        A('v_lshlrev_b32 v2, 10, v2')
        A('v_lshrrev_b32 v4, 5, v1')
        A('v_lshl_add_u32 v2, v4, 3, v2')
        A('s_add_u32 s30, s27, s29')
        A('s_lshl_b32 s30, s30, 15')
        A('s_lshl_b32 s31, s28, 6')
        A('s_add_u32 s30, s30, s31')
        A('s_lshl_b32 s31, s26, 5')
        A('s_add_u32 s30, s30, s31')
        C.vmem(f'buffer_load_dwordx2 {v(EX, 2)}, v2, s[12:15], s30 offen', 'ex')
        C.vmem(f'buffer_load_dwordx2 {v(EX + 2, 2)}, v2, s[12:15], s30 offen offset:16', 'ex')
    else:
        A(f's_add_u32 s31, s49, {resbase}')
        C.vmem(f'buffer_load_dwordx4 {v(EX, 4)}, v3, s[8:11], s31 offen', 'ex')


def g3_main(C, mode, KS, wreg0, outbase=None, kvf=None, after_store=None, sxout=None, hook_b=None, raw=False, hook_red=None):
    A = C.A
    NS = KS // 8
    EX = g3_ex(mode, KS)
    if NS == 4:
        xreg = {(hh, st): 80 + (hh * 4 + st) * 4 for hh in range(2) for st in range(4)}
    else:
        slot = [80 + 4 * k for k in range(12)] + [240, 244]
        xreg = {(hh, st): slot[st] for hh in range(2) for st in range(NS)}

    def xload(hh, st):
        so, im = soff(st)
        C.vmem(f'buffer_load_dwordx4 {v(xreg[hh, st], 4)}, {v(5 + hh)}, s[8:11], {so} offen offset:{im}', f'x{hh}_{st}')

    seq = [(hh, st) for hh in range(2) for st in range(NS)]
    PR = G3_PR4 if NS == 4 else G3_PR14
    if raw:
        seq, PR = [], 0
    for x in seq[:PR]:
        xload(*x)
    nxt = PR
    C.wait('w')

    def wr(b):
        base = (ACCA if b & 1 else ACCB) + ((b >> 1) & 1) * 16 + (b >> 2) * 8
        return [f'ds_write_b128 {v(8 + b)}, {v(base + h2 * 4, 4)} offset:{h2 * 1024}' for h2 in range(2)]

    pend = []
    for hh in range(2):
        acc = ACCA if hh == 0 else ACCB
        for st in range(NS):
            C.wait(f'x{hh}_{st}')
            if hh == 0 and st == 0:
                C.stamp()
            for jj in range(2):
                c = '0' if st == 0 else v(acc + jj * 16, 16)
                A(f'v_mfma_f32_32x32x16_bf16 {v(acc + jj * 16, 16)}, {v(wreg0 + 4 * (2 * st + jj), 4)}, {v(xreg[hh, st], 4)}, {c}')
                if hh == 1 and (st >= 3 or (NS == 4 and st >= 2)):
                    for _ in range(2 if NS == 4 else 1):
                        if pend:
                            A(pend.pop(0))
            if nxt < len(seq):
                xload(*seq[nxt])
                nxt += 1
                if nxt == len(seq):
                    if mode == 'qkv':
                        for e in range(4):
                            C.vmem(f'buffer_load_dwordx2 {v(QSX + 2 * e, 2)}, {v(QSX + 8)}, s[8:11], 0 offen offset:{e * 256}', 'sx')
                    flag_b(C)
                    hb = 0
            elif hook_b:
                hb += 1
            if hook_b and nxt == len(seq):
                hook_b(hb, PR)
            if hh == 1 and NS == 4 and st == 1:
                A('s_nop 7' if raw else 's_nop 5')
            if hh == 1 and NS != 4 and st == 2:
                A('s_nop 2')
        if hh == 0:
            pend = wr(1) + wr(5) + wr(3) + wr(7)
    assert not pend
    C.stamp()
    lkv = C.lab('nokv')
    if mode == 'qkv':
        la, lb = C.lab('ka'), C.lab('kb')
        A('s_cmp_ge_u32 s24, 2')
        A(f's_cbranch_scc1 {lb}')
        A('s_cmp_eq_u32 s24, s29')
        A(f's_cbranch_scc0 {la}')
        for hh in (1, 0):
            for st in range(4):
                c = '0' if st == 0 else v(KACC, 16)
                A(f'v_mfma_f32_32x32x16_bf16 {v(KACC, 16)}, {v(KVW + 4 * st, 4)}, {v(xreg[hh, st], 4)}, {c}')
            if hh == 1:
                A(f's_branch {lb}')
                A.label(la)
        A.label(lb)
        A('v_lshlrev_b32 v4, 3, v1')
        if not raw:
            C.wait('sx')
            for e in range(4):
                A(f'v_add_f32 {v(QSX + e)}, {v(QSX + e)}, {v(QSX + 4 + e)}')
            for e in range(2):
                A(f'v_add_f32 {v(QSX + e)}, {v(QSX + e)}, {v(QSX + 2 + e)}')
            A('s_lshl_b32 s30, s20, 9')
            A(f's_add_u32 s30, s30, {STAT}')
            A('v_add_u32 v2, s30, v4')
            A(f'ds_write_b64 v2, {v(QSX, 2)}')
        else:
            A('v_lshrrev_b32 v112, 5, v1')
            A('v_lshlrev_b32 v112, 4, v112')
            A('s_and_b32 s30, s28, 1')
            A('s_lshl_b32 s30, s30, 7')
            A('s_lshl_b32 s31, s26, 6')
            A('s_add_u32 s30, s30, s31')
            A(f's_add_u32 s30, s30, {CSK}')
            A('v_add_u32 v113, s30, v112')
            A('s_nop 3')
        A('v_and_b32 v4, 0xf8, v4')
        A('s_lshl_b32 s30, s29, 8')
        A(f's_add_u32 s30, s30, {STAT}')
        A('v_add_u32 v4, s30, v4')
    else:
        A('s_nop 10')
    for b in (4, 2, 6):
        for x in wr(b):
            A(x)
    if mode == 'qkv':
        A('s_cmp_ge_u32 s24, 2')
        A(f's_cbranch_scc1 {lkv}')
        A(f'v_add_u32 v2, {KVRED}, v8')
        for k4 in range(4):
            A(f'ds_write_b128 v2, {v(KACC + k4 * 4, 4)} offset:{(k4 >> 1) * 16 * KB + (k4 & 1) * 1024}')
        A.label(lkv)
    if hook_red:
        hook_red()
    A('s_waitcnt lgkmcnt(0)')
    A('s_barrier')
    for b in range(1, 8):
        for h2 in range(2):
            base, off = ('v8', (b - 1) * 16 * KB) if b <= 4 else ('v7', (b - 5) * 16 * KB)
            A(f'ds_read_b128 {v(ACCB + b * 8 + h2 * 4, 4)}, {base} offset:{off + h2 * 1024}')
    T = 80

    def red(base, waits):
        for stp in (32, 16, 8):
            for r in range(stp):
                A(f'v_add_f32 {v(base + r)}, {v(base + r)}, {v(base + stp + r)}')
    if mode == 'qkv':
        A('s_waitcnt lgkmcnt(6)')
        for ww in range(8):
            A(f'ds_read_b64 {v(T + ww * 2, 2)}, v4 offset:{ww * 512}')
        A('s_waitcnt lgkmcnt(8)')
        if raw:
            EX = 192
            for h2 in range(2):
                A(f'ds_read_b128 {v(EX + h2 * 4, 4)}, v113 offset:{h2 * 32}')
    else:
        C.wait('ex')
        for m in range(4):
            A(f'v_lshlrev_b32 {v(T + 2 * m)}, 16, {v(EX + m)}')
            A(f'v_and_b32 {v(T + 2 * m + 1)}, 0xffff0000, {v(EX + m)}')
        for r in range(8):
            A(f'v_add_f32 {v(ACCB + r)}, {v(ACCB + r)}, {v(T + r)}')
        A('s_waitcnt lgkmcnt(0)')
    red(ACCB, None)
    P = ACCB + 8
    if mode == 'qkv':
        A('s_waitcnt lgkmcnt(0)')
        for stp in (8, 4, 2):
            for e in range(stp):
                A(f'v_add_f32 {v(T + e)}, {v(T + e)}, {v(T + e + stp)}')
        A(f'v_mul_f32 {v(T)}, {f32(1.0 / 512)}, {v(T)}')
        A(f'v_mul_f32 {v(T + 1)}, {f32(1.0 / 512)}, {v(T + 1)}')
        A(f'v_fma_f32 {v(T + 1)}, -{v(T)}, {v(T)}, {v(T + 1)}')
        A(f'v_max_f32 {v(T + 1)}, 0, {v(T + 1)}')
        A(f'v_add_f32 {v(T + 1)}, {f32(1e-5)}, {v(T + 1)}')
        A(f'v_rsq_f32 {v(T + 1)}, {v(T + 1)}')
        C.wait('ex')
        for r in range(8):
            A(f'v_fma_f32 {v(ACCB + r)}, -{v(T)}, {v(EX + r)}, {v(ACCB + r)}')
        A(f'v_mul_f32 {v(T + 2)}, {f32(QSCALE)}, {v(T + 1)}')
        for r in range(8):
            A(f'v_mul_f32 {v(ACCB + r)}, {v(T + 2)}, {v(ACCB + r)}')
        for m in range(4):
            A(f'v_cvt_pk_bf16_f32 {v(P + m)}, {v(ACCB + 2 * m)}, {v(ACCB + 2 * m + 1)}')
        A(f's_add_u32 s31, s49, {C.qf}')
        C.vmem(f'buffer_store_dwordx4 {v(P, 4)}, v3, s[8:11], s31 offen{QWT}', 'st')
        le, lv = C.lab('ke'), C.lab('v')
        A('s_cmp_lg_u32 s29, s24')
        A(f's_cbranch_scc1 {le}')
        A('s_bfe_u32 s34, s20, 0x10001')
        A('s_lshl_b32 s30, s34, 14')
        A('s_lshl_b32 s31, s26, 10')
        A('s_add_u32 s30, s30, s31')
        A(f's_add_u32 s30, s30, {KVRED}')
        A('v_add_u32 v4, s30, v3')
        KR = 208
        for ww in range(8):
            A(f'ds_read_b128 {v(KR + ww * 4, 4)}, v4 offset:{ww * 2048}')
        KX = EX + 8
        if raw:
            A('s_lshl_b32 s30, s34, 6')
            A('s_lshl_b32 s31, s26, 5')
            A('s_add_u32 s30, s30, s31')
            A(f's_add_u32 s30, s30, {CSK + 256}')
            A('v_add_u32 v113, s30, v112')
            A(f'ds_read_b128 {v(KX, 4)}, v113')
        A('s_add_u32 s30, s27, s29')
        A(f's_mul_i32 s30, s30, {KVG}')
        A(f's_add_u32 s30, s30, {kvf}')
        A('v_bfe_u32 v4, v1, 4, 1')
        A(f'v_mul_u32_u24 v4, {VBS}, v4')
        A('v_bfe_u32 v5, v1, 2, 1')
        A('v_lshl_add_u32 v4, v5, 8, v4')
        A('v_and_b32 v5, 3, v1')
        A('v_lshl_add_u32 v4, v5, 1, v4')
        A('v_bfe_u32 v5, v1, 3, 1')
        A('v_lshl_add_u32 v4, v5, 3, v4')
        A('v_lshrrev_b32 v5, 5, v1')
        A('v_lshl_add_u32 v4, v5, 6, v4')
        A('s_waitcnt lgkmcnt(0)')
        for stp in (16, 8, 4):
            for r in range(stp):
                A(f'v_add_f32 {v(KR + r)}, {v(KR + r)}, {v(KR + stp + r)}')
        for r in range(4):
            A(f'v_fma_f32 {v(KR + r)}, -{v(T)}, {v(KX + r)}, {v(KR + r)}')
        for r in range(4):
            A(f'v_mul_f32 {v(KR + r)}, {v(T + 1)}, {v(KR + r)}')
        KP = KR + 8
        for m in range(2):
            A(f'v_cvt_pk_bf16_f32 {v(KP + m)}, {v(KR + 2 * m)}, {v(KR + 2 * m + 1)}')
        A('s_cmp_lg_u32 s34, 0')
        A(f's_cbranch_scc1 {lv}')
        A('s_lshl_b32 s31, s26, 3')
        A('s_add_u32 s31, s31, s30')
        A(f'buffer_store_dwordx2 {v(KP, 2)}, v3, s[8:11], s31 offen{QWT}')
        A(f's_branch {le}')
        A.label(lv)
        A('s_lshl_b32 s31, s26, 7')
        A('s_add_u32 s31, s31, s30')
        for r in range(4):
            op = 'buffer_store_short' if r % 2 == 0 else 'buffer_store_short_d16_hi'
            A(f'{op} {v(KP + r // 2)}, v4, s[8:11], s31 offen offset:{1024 + r * 16}{QWT}')
        A.label(le)
    else:
        for m in range(4):
            A(f'v_cvt_pk_bf16_f32 {v(P + m)}, {v(ACCB + 2 * m)}, {v(ACCB + 2 * m + 1)}')
        if mode == 'res':
            A(f's_add_u32 s31, s49, {outbase}')
            C.vmem(f'buffer_store_dwordx4 {v(P, 4)}, v3, s[8:11], s31 offen{WT}', 'st')
            blk_stats(C, P, T)
            A('s_lshr_b32 s31, s49, 2')
            A(f's_add_u32 s31, s31, {sxout}')
            A('v_lshlrev_b32 v4, 3, v1')
            A('s_mov_b32 exec_hi, 0')
            C.vmem(f'buffer_store_dwordx2 {v(T, 2)}, v4, s[8:11], s31 offen{WT}', 'st')
            A('s_mov_b64 exec, -1')
            if after_store:
                after_store()
        else:
            A('v_and_b32 v4, 31, v1')
            A('v_lshlrev_b32 v4, 10, v4')
            A('v_lshrrev_b32 v5, 5, v1')
            A('v_lshl_add_u32 v4, v5, 4, v4')
            A('s_add_u32 s30, s27, s29')
            A('s_lshl_b32 s30, s30, 15')
            A('s_lshl_b32 s31, s28, 6')
            A('s_add_u32 s30, s30, s31')
            A('s_lshl_b32 s31, s26, 5')
            A('s_add_u32 s30, s30, s31')
            A(f'v_permlane32_swap_b32 {v(P)}, {v(P + 2)}')
            A(f'v_permlane32_swap_b32 {v(P + 1)}, {v(P + 3)}')
            C.vmem(f'buffer_store_dwordx4 {v(P, 4)}, v4, s[12:15], s30 offen', 'st')


def qkv_wstep(C, st, n=1):
    A = C.A
    if st == 0:
        g3_waddr(C, (5, 6), 32, WQKVP)
    per = -(-8 // n)
    for i in range(st * per, min(8, (st + 1) * per)):
        g3_wload(C, (5, 6), i, 128)
    if st == n:
        A('s_lshl_b32 s30, s20, 12')
        A(f's_add_u32 s30, s30, {WQKVP + 16 * 32 * KB}')
        l = C.lab('kw')
        A('s_cmp_ge_u32 s24, 2')
        A(f's_cbranch_scc1 {l}')
        for k in range(4):
            A(f'buffer_load_dwordx4 {v(KVW + 4 * k, 4)}, v3, s[8:11], s30 offen offset:{k * 1024}')
        A.label(l)


def qkv_wloads(C):
    qkv_wstep(C, 0)
    qkv_wstep(C, 1)


KVR4, XF0, ST4, RED4 = 0, 36 * KB, 68 * KB, 80 * KB
G4_ORD = [0, 1, 4, 5, 8, 9, 12, 13, 2, 3, 6, 7, 10, 11, 14, 15]


def g4_ids(C):
    A = C.A
    A('s_and_b32 s18, s22, 3')
    A('s_lshl_b32 s30, s21, 2')
    A('s_add_u32 s18, s18, s30')
    A('s_and_b32 s30, s22, 12')
    A('s_add_u32 s30, s30, s25')
    A('s_lshl_b32 s30, s30, 1')
    A('s_add_u32 s30, s30, s26')
    A('s_lshl_b32 s19, s18, 5')
    A('s_add_u32 s19, s19, s30')
    A('s_lshl_b32 s19, s19, 10')
    A('s_lshr_b32 s3, s22, 2')
    A('s_and_b32 s30, s21, 3')
    A('s_xor_b32 s3, s3, s30')


def g4_waddr(C, vreg, wbase):
    A = C.A
    A('s_lshl_b32 s30, s26, 8')
    A(f'v_xor_b32 {v(vreg)}, s30, v3')
    A('s_and_b32 s30, s19, 0x7fff')
    A('s_lshl_b32 s30, s30, 4')
    A(f's_add_u32 s30, s30, {wbase}')
    A(f'v_add_u32 {v(vreg)}, s30, {v(vreg)}')


def g4_wreg(mode, i):
    if mode == 'qkv':
        return 128 + 4 * i
    return 224 + 4 * i if i < 8 else 64 + 4 * (i - 8)


def g4_wload(C, vreg, i, mode):
    so, im = soff(G4_ORD[i])
    C.vmem(f'buffer_load_dwordx4 {v(g4_wreg(mode, i), 4)}, {v(vreg)}, s[8:11], {so} offen offset:{im}', 'w')


def g4_pre(C, mode, xbase, resbase=None, raw=False):
    A = C.A
    EX = 96
    A('s_lshl_b32 s30, s18, 15')
    A('s_lshl_b32 s48, s20, 12')
    A('s_add_u32 s30, s30, s48')
    A(f's_add_u32 s30, s30, {xbase}')
    A('v_add_u32 v5, s30, v3')
    A('s_lshl_b32 s30, s26, 14')
    A(f's_add_u32 s30, s30, {XF0}')
    A('v_add_u32 v6, s30, v3')
    A(f'v_add_u32 v14, s48, v3')
    A(f's_add_u32 s48, s48, {XF0}')
    A('s_lshl_b32 s30, s20, 11')
    A(f's_add_u32 s30, s30, {RED4}')
    A('v_add_u32 v8, s30, v3')
    A('v_xor_b32 v7, 0x2000, v8')
    if mode == 'qkv':
        A('v_lshrrev_b32 v2, 5, v1')
        if not raw:
            A('v_lshlrev_b32 v4, 4, v2')
            A('s_and_b32 s31, s19, 0x7fff')
            A('s_lshr_b32 s31, s31, 4')
            A(f's_add_u32 s31, s31, {CSQKV}')
            C.vmem(f'buffer_load_dwordx4 {v(EX, 4)}, v4, s[8:11], s31 offen', 'ex')
            C.vmem(f'buffer_load_dwordx4 {v(EX + 4, 4)}, v4, s[8:11], s31 offen offset:32', 'ex')
            A('s_lshl_b32 s31, s25, 5')
            A(f's_add_u32 s31, s31, {CSQKV + 2048}')
            C.vmem(f'buffer_load_dwordx4 {v(EX + 8, 4)}, v4, s[8:11], s31 offen', 'ex')
        A('v_and_b32 v9, 31, v1')
        A('v_lshlrev_b32 v9, 3, v9')
        A(f'v_add_u32 v11, {ST4}, v9')
        A('s_lshl_b32 s30, s20, 8')
        A('v_add_u32 v10, s30, v11')
        A('v_lshl_add_u32 v9, v2, 9, v9')
        A('s_lshl_b32 s30, s18, 13')
        A('s_lshl_b32 s31, s20, 10')
        A('s_add_u32 s30, s30, s31')
        A(f's_add_u32 s30, s30, {resbase}')
        A('v_add_u32 v9, s30, v9')
        A('v_add_u32 v12, s48, v3')
        A('s_lshl_b32 s30, s25, 10')
        A(f's_add_u32 s30, s30, {KVR4}')
        A('v_add_u32 v13, s30, v3')
        A('v_bfe_u32 v15, v1, 4, 1')
        A('v_lshlrev_b32 v15, 9, v15')
        A('v_bfe_u32 v4, v1, 2, 1')
        A('v_lshl_add_u32 v15, v4, 8, v15')
        A('v_and_b32 v4, 3, v1')
        A('v_lshl_add_u32 v15, v4, 1, v15')
        A('v_bfe_u32 v4, v1, 3, 1')
        A('v_lshl_add_u32 v15, v4, 3, v15')
        A('v_lshl_add_u32 v15, v2, 6, v15')
    elif resbase is None:
        A('v_and_b32 v2, 31, v1')
        A('v_lshlrev_b32 v2, 10, v2')
        A('v_lshrrev_b32 v4, 5, v1')
        A('v_lshl_add_u32 v2, v4, 3, v2')
        A('s_lshl_b32 s30, s18, 15')
        A('s_and_b32 s31, s19, 0x7fff')
        A('s_lshr_b32 s31, s31, 5')
        A('s_add_u32 s30, s30, s31')
        C.vmem(f'buffer_load_dwordx2 {v(EX, 2)}, v2, s[12:15], s30 offen', 'ex')
        C.vmem(f'buffer_load_dwordx2 {v(EX + 2, 2)}, v2, s[12:15], s30 offen offset:16', 'ex')
    else:
        A(f's_add_u32 s31, s19, {resbase}')
        C.vmem(f'buffer_load_dwordx4 {v(EX, 4)}, v3, s[8:11], s31 offen', 'ex')


def ln_stats(A, T):
    for stp in (8, 4, 2):
        for e in range(stp):
            A(f'v_add_f32 {v(T + e)}, {v(T + e)}, {v(T + e + stp)}')
    A(f'v_mul_f32 {v(T)}, {f32(1.0 / 512)}, {v(T)}')
    A(f'v_mul_f32 {v(T + 1)}, {f32(1.0 / 512)}, {v(T + 1)}')
    A(f'v_fma_f32 {v(T + 1)}, -{v(T)}, {v(T)}, {v(T + 1)}')
    A(f'v_max_f32 {v(T + 1)}, 0, {v(T + 1)}')
    A(f'v_add_f32 {v(T + 1)}, {f32(1e-5)}, {v(T + 1)}')
    A(f'v_rsq_f32 {v(T + 1)}, {v(T + 1)}')


def g4_main(C, mode, outbase=None, sxout=None, kvf=None, kfl=None, hook_red=None, raw=None, endlab=None):
    A = C.A
    ACC, XR, EX = 16, 32, 96
    KW, KA, KR, T = 192, 208, 224, 108
    if not raw:
        A('s_mov_b32 m0, s48')
        A('s_nop 0')
        for k in range(4):
            C.vmem(f'buffer_load_dwordx4 v5, s[8:11], 0 offen offset:{k * 1024} lds', f'x{k}')

    def rd(i):
        A(f'ds_read_b128 {v(XR + 4 * (i % 8), 4)}, v6 offset:{G4_ORD[i] * 1024}')

    def mf(i):
        c = '0' if i == 0 else v(ACC, 16)
        A(f'v_mfma_f32_32x32x16_bf16 {v(ACC, 16)}, {v(g4_wreg(mode, i), 4)}, {v(XR + 4 * (i % 8), 4)}, {c}')

    def wq_loads():
        for i in range(16):
            so, im = soff(G4_ORD[i])
            A(f'buffer_load_dwordx4 {v(128 + 4 * i, 4)}, v64, s[8:11], {so} offen offset:{im}')

    if mode == 'qkv':
        A('s_add_u32 s35, s3, s26')
        if raw:
            raw['front']()
        else:
            for e in range(2):
                C.vmem(f'buffer_load_dwordx2 {v(T + 2 * e, 2)}, v9, s[8:11], 0 offen offset:{e * 256}', 'sx')
            l1, l2 = C.lab('w1'), C.lab('w2')
            A('s_cmp_eq_u32 s3, 0')
            A(f's_cbranch_scc1 {l1}')
            flag_b(C)
            wq_loads()
            A('s_waitcnt vmcnt(16)')
            A(f's_branch {l2}')
            A.label(l1)
            A('s_waitcnt vmcnt(0)')
            A.label(l2)
            C.vm = []
            C.stamp()
        lk = C.lab('k4')
        A('s_cmp_lg_u32 s3, 0')
        A(f's_cbranch_scc1 {lk}')
        if raw:
            raw['kvw']()
        else:
            for k in range(4):
                A(f'ds_read_b128 {v(KR + 4 * k, 4)}, v12 offset:{k * 1024}')
        for k in range(4):
            if not raw:
                A(f's_waitcnt lgkmcnt({3 - k})')
            A(f'v_mfma_f32_32x32x16_bf16 {v(KA, 16)}, {v(KW + 4 * k, 4)}, {v(KR + 4 * k, 4)}, {"0" if k == 0 else v(KA, 16)}')
        A.label(lk)
        A(f'v_add_f32 {v(T)}, {v(T)}, {v(T + 2)}')
        A(f'v_add_f32 {v(T + 1)}, {v(T + 1)}, {v(T + 3)}')
        A(f'v_mov_b32 {v(T + 2)}, {v(T)}')
        A(f'v_mov_b32 {v(T + 3)}, {v(T + 1)}')
        A('s_nop 1')
        swap_add(A, T, T + 2)
        swap_add(A, T + 1, T + 3)
        A(f'ds_write_b64 v10, {v(T, 2)}')
        A(f'v_mov_b32 {v(T + 2)}, 0')
        A(f'v_mov_b32 v9, {ST4 + 8192}')
        A(f'ds_write_b32 v9, {v(T + 2)}')
        lk = C.lab('k5')
        A('s_cmp_lg_u32 s3, 0')
        A(f's_cbranch_scc1 {lk}')
        for k in range(4):
            A(f'ds_write_b128 v14, {v(KA + 4 * k, 4)} offset:{k * 1024}')
        A.label(lk)
        A('s_waitcnt lgkmcnt(0)')
        A('s_barrier')
        for ww in range(8):
            A(f'ds_read_b64 {v(T + 2 * ww, 2)}, v11 offset:{ww * 256}')
        lv, le, lf = C.lab('v6'), C.lab('e6'), C.lab('f6')
        A('s_cmp_lg_u32 s35, 0')
        A(f's_cbranch_scc1 {le}')
        A('s_setprio 3')
        if FINE == 3:
            C.stamp()
        A('s_waitcnt lgkmcnt(4)')
        for ww in range(8):
            A(f'ds_read_b128 {v(KR + 4 * ww, 4)}, v13 offset:{ww * 4096}')
        A('s_waitcnt lgkmcnt(8)')
        for r in range(16):
            A(f'v_mov_b32 {v(KA + r)}, {v(T + r)}')
        ln_stats(A, KA)
        A('s_lshl_b32 s30, s18, 11')
        A(f's_add_u32 s30, s30, {kvf}')
        A('s_waitcnt lgkmcnt(0)')
        if raw:
            raw['kvcs0']()
        for stp in (16, 8, 4):
            for r in range(stp):
                A(f'v_add_f32 {v(KR + r)}, {v(KR + r)}, {v(KR + stp + r)}')
        if raw:
            raw['kvcs1']()
        for r in range(4):
            A(f'v_fma_f32 {v(KR + r)}, -{v(KA)}, {v(EX + 8 + r)}, {v(KR + r)}')
        for r in range(4):
            A(f'v_mul_f32 {v(KR + r)}, {v(KA + 1)}, {v(KR + r)}')
        for m in range(2):
            A(f'v_cvt_pk_bf16_f32 {v(KR + 8 + m)}, {v(KR + 2 * m)}, {v(KR + 2 * m + 1)}')
        A('s_cmp_ge_u32 s20, 2')
        A(f's_cbranch_scc1 {lv}')
        A('s_lshl_b32 s31, s20, 3')
        A('s_add_u32 s31, s31, s30')
        A(f'buffer_store_dwordx2 {v(KR + 8, 2)}, v3, s[8:11], s31 offen sc0 sc1')
        A(f's_branch {lf}')
        A.label(lv)
        A('s_lshl_b32 s31, s29, 10')
        A(f's_add_u32 s31, s31, {ST4 + 4096}')
        A('v_add_u32 v15, s31, v15')
        for r in range(4):
            op = 'ds_write_b16' if r % 2 == 0 else 'ds_write_b16_d16_hi'
            A(f'{op} v15, {v(KR + 8 + r // 2)} offset:{r * 16}')
        A('v_lshrrev_b32 v2, 3, v1')
        A('v_lshlrev_b32 v2, 8, v2')
        A(f'v_and_b32 {v(KR)}, 7, v1')
        A(f'v_lshl_add_u32 v2, {v(KR)}, 4, v2')
        A('v_add_u32 v15, s31, v2')
        A('s_mov_b32 exec_hi, 0')
        A(f'ds_read_b128 {v(KR + 12, 4)}, v15')
        A('s_lshl_b32 s31, s29, 7')
        A('s_add_u32 s31, s31, s30')
        A('s_waitcnt lgkmcnt(0)')
        A(f'buffer_store_dwordx4 {v(KR + 12, 4)}, v2, s[8:11], s31 offen offset:1024 sc0 sc1')
        A('s_mov_b64 exec, -1')
        A.label(lf)
        lg = C.lab('g6')
        if FINE == 3:
            C.stamp()
        A('s_lshl_b32 s30, s18, 7')
        A(f's_add_u32 s30, s30, {kfl}')
        if raw:
            raw['zchk']()
        A('s_mov_b64 exec, 1')
        A('s_waitcnt vmcnt(0)')
        A('ds_add_rtn_u32 v2, v9, v4')
        A('s_waitcnt lgkmcnt(0)')
        A('v_cmp_eq_u32 vcc, 3, v2')
        A('s_cbranch_vccz ' + lg)
        A('buffer_store_dword v4, v0, s[8:11], s30 offen sc0 sc1')
        A.label(lg)
        A('s_mov_b64 exec, -1')
        A('s_setprio 0')
        if FINE == 3:
            C.stamp()
        A.label(le)
        flag_b(C)
        A('s_waitcnt lgkmcnt(0)')
        if raw:
            raw['wprep']()
        else:
            l3 = C.lab('w3')
            A('s_cmp_lg_u32 s3, 0')
            A(f's_cbranch_scc1 {l3}')
            C.flagb = True
            flag_b(C)
            wq_loads()
            A.label(l3)
        if raw:
            raw['loop'](rd, mf)
        else:
            for i in range(8):
                rd(i)
            ln_stats(A, T)
            for i in range(16):
                A(f's_waitcnt lgkmcnt({7 if i < 8 else 15 - i}) vmcnt({15 - i})')
                mf(i)
                if i < 8:
                    rd(i + 8)
    else:
        def wl(i):
            so, im = soff(G4_ORD[i])
            C.vmem(f'buffer_load_dwordx4 {v(g4_wreg(mode, i), 4)}, v116, s[8:11], {so} offen offset:{im}', f'w{i}')
        if WO_LATE:
            for i in range(8, 8 + WO_L0):
                wl(i)
        C.wait('x1')
        A('s_barrier')
        C.stamp()
        for i in range(8):
            rd(i)
        if WO_LATE:
            for i in range(8 + WO_L0, 16):
                wl(i)
        for i in range(4):
            A(f's_waitcnt lgkmcnt({7 - i})')
            mf(i)
        C.wait('x3')
        A('s_barrier')
        for i in range(8, 12):
            rd(i)
        for i in range(4, 8):
            A('s_waitcnt lgkmcnt(7)')
            mf(i)
            rd(i + 8)
        flag_b(C)
        for i in range(8, 16):
            C.wait(f'w{i}', f'lgkmcnt({15 - i})')
            mf(i)
            if hook_red and i >= 8:
                hook_red(i - 8)
    C.stamp()
    if mode == 'qkv':
        kv_setup(C, kvf, kfl)
        A(f'v_mul_f32 {v(T + 2)}, {f32(QSCALE)}, {v(T + 1)}')
        if raw:
            raw['cs0']()
    else:
        C.wait('ex')
        TT = XR
        for m in range(4):
            A(f'v_lshlrev_b32 {v(TT + 2 * m)}, 16, {v(EX + m)}')
            A(f'v_and_b32 {v(TT + 2 * m + 1)}, 0xffff0000, {v(EX + m)}')
        A('s_nop 3')
    for h2 in range(2):
        A(f'ds_write_b128 v7, {v(ACC + 8 + 4 * h2, 4)} offset:{h2 * 1024}')
    if mode == 'qkv':
        if not raw:
            for r in range(8):
                A(f'v_fma_f32 {v(ACC + r)}, -{v(T)}, {v(EX + r)}, {v(ACC + r)}')
    else:
        for r in range(8):
            A(f'v_add_f32 {v(ACC + r)}, {v(ACC + r)}, {v(XR + r)}')
    A('s_waitcnt lgkmcnt(0)')
    A('s_barrier')
    for h2 in range(2):
        A(f'ds_read_b128 {v(ACC + 8 + 4 * h2, 4)}, v8 offset:{h2 * 1024}')
    if mode == 'qkv':
        if FINE == 3:
            C.stamp()
        kv_wait(C, 1, endlab)
        if FINE == 3:
            C.stamp()
        att_kvdma(C, 0)
        kv_flagload(C)
    if raw:
        raw['cs']()
        for r in range(8):
            A(f'v_fma_f32 {v(ACC + r)}, -{v(T)}, {v(EX + r)}, {v(ACC + r)}')
    A('s_waitcnt lgkmcnt(0)')
    for r in range(8):
        A(f'v_add_f32 {v(ACC + r)}, {v(ACC + r)}, {v(ACC + 8 + r)}')
    if mode == 'qkv':
        for r in range(8):
            A(f'v_mul_f32 {v(ACC + r)}, {v(T + 2)}, {v(ACC + r)}')
        for m in range(4):
            A(f'v_cvt_pk_bf16_f32 {v(124 + m)}, {v(ACC + 2 * m)}, {v(ACC + 2 * m + 1)}')
        A('s_barrier')
    else:
        P = ACC + 8
        for m in range(4):
            A(f'v_cvt_pk_bf16_f32 {v(P + m)}, {v(ACC + 2 * m)}, {v(ACC + 2 * m + 1)}')
        A(f's_add_u32 s31, s19, {outbase}')
        C.vmem(f'buffer_store_dwordx4 {v(P, 4)}, v3, s[8:11], s31 offen{WT}', 'st')
        blk_stats(C, P, XR)
        A('s_lshr_b32 s31, s19, 2')
        A(f's_add_u32 s31, s31, {sxout}')
        A('v_lshlrev_b32 v4, 3, v1')
        A('s_mov_b32 exec_hi, 0')
        C.vmem(f'buffer_store_dwordx2 {v(XR, 2)}, v4, s[8:11], s31 offen{WT}', 'st')
        A('s_mov_b64 exec, -1')


def qkv4_wstep(C, st, n):
    pass


def qkv4_wrest(C):
    A = C.A
    l = C.lab('kw')
    A('s_lshl_b32 s30, s20, 12')
    A(f's_add_u32 s30, s30, {WQKVP + 16 * 32 * KB}')
    A('s_cmp_lg_u32 s3, 0')
    A(f's_cbranch_scc1 {l}')
    for k in range(4):
        A(f'buffer_load_dwordx4 {v(192 + 4 * k, 4)}, v3, s[8:11], s30 offen offset:{k * 1024}')
    A.label(l)


def att_kvdma(C, r):
    A = C.A
    A(f's_add_u32 s30, s39, {r * 16384}')
    A('s_and_b32 s30, s30, 0x1ffff')
    A(f's_add_u32 m0, s37, {r * 8 * KVT}')
    A('s_add_u32 s30, s30, s38')
    A('buffer_load_dwordx4 v3, s[8:11], s30 offen lds')
    A('buffer_load_dwordx4 v3, s[8:11], s30 offen offset:1024 lds')


def kv_flagload(C):
    A = C.A
    A('s_mov_b64 exec, 0xff')
    A('buffer_load_dword v2, v0, s[8:11], s33 offen sc1')
    A('s_mov_b64 exec, -1')


def kv_setup(C, kvf, kfl):
    A = C.A
    A(f's_mul_i32 s37, s20, {KVT}')
    A('s_lshl_b32 s38, s20, 11')
    A(f's_add_u32 s38, s38, {kvf}')
    A('s_lshr_b32 s30, s21, 1')
    A('s_lshl_b32 s39, s30, 14')
    A('v_add_u32 v0, s30, v1')
    A('v_and_b32 v0, 7, v0')
    A('v_lshlrev_b32 v0, 10, v0')
    A('s_lshl_b32 s33, s20, 7')
    A(f's_add_u32 s33, s33, {kfl}')
    kv_flagload(C)


def kv_wait(C, mask, endlab):
    A = C.A
    lp, lpd = C.lab('kp'), C.lab('kpd')
    A('s_mov_b32 s31, 0')
    A('s_mov_b64 exec, 0xff')
    A.label(lp)
    A('s_add_u32 s31, s31, 1')
    A('s_waitcnt vmcnt(0)')
    A('v_cmp_ne_u32 vcc, 0, v2')
    A(f's_and_b32 s30, vcc_lo, {mask}')
    A(f's_cmp_eq_u32 s30, {mask}')
    A(f's_cbranch_scc1 {lpd}')
    A(f's_sleep {KV_SLEEP}')
    A('buffer_load_dword v2, v0, s[8:11], s33 offen sc1')
    A(f's_cmp_lt_u32 s31, {1 << 21}')
    A(f's_cbranch_scc1 {lp}')
    A(f's_branch {endlab}')
    A.label(lpd)
    A('s_mov_b64 exec, -1')


def att_phase(C, kvf, kfl, endlab, stubs, fixed={}, pf0=None, pre_hook=None, loadq=True, early=False):
    A = C.A
    tg = C.tag
    Q, CN, S0, S1, O, P, KF, VF, VK, VV, T = 124, 8, 24, 40, 56, 72, 80, 88, 104, 105, 106
    VV1 = 111
    S = [S0, S1]
    A(f's_add_u32 s36, s19, {C.B["OF"]}')
    if loadq:
        A(f's_add_u32 s31, s19, {C.B["QF"]}')
        C.vmem(f'buffer_load_dwordx4 {v(Q, 4)}, v3, s[8:11], s31 offen', 'q')
        flag_b(C)
    def kvdma(r):
        att_kvdma(C, r)
    if pre_hook:
        pre_hook()
    A(f'v_mov_b32 {v(VK)}, v3')
    A(f'v_and_b32 {v(T)}, 15, v1')
    A(f'v_lshrrev_b32 {v(T + 1)}, 5, v1')
    A(f'v_lshl_add_u32 {v(T)}, {v(T + 1)}, 4, {v(T)}')
    A(f'v_lshlrev_b32 {v(T)}, 4, {v(T)}')
    A(f'v_add_u32 {v(VV)}, 1024, {v(T)}')
    A(f'v_add_u32 {v(VV1)}, 1536, {v(T)}')
    A(f'v_and_b32 {v(T + 1)}, 31, v1')
    A(f'v_cmp_eq_u32 vcc, 16, {v(T + 1)}')
    A(f'v_mov_b32 {v(T + 2)}, 2048')
    A('s_nop 0')
    A(f'v_cndmask_b32 {v(VV)}, {v(VV)}, {v(T + 2)}, vcc')
    A(f'v_cndmask_b32 {v(VV1)}, {v(VV1)}, {v(T + 2)}, vcc')
    A(f'v_cmp_lt_u32 vcc, 16, {v(T + 1)}')
    A(f'v_mov_b32 {v(T + 2)}, 2064')
    A('s_nop 0')
    A(f'v_cndmask_b32 {v(VV)}, {v(VV)}, {v(T + 2)}, vcc')
    A(f'v_cndmask_b32 {v(VV1)}, {v(VV1)}, {v(T + 2)}, vcc')
    for r in range(16):
        A(f'v_mov_b32 {v(O + r)}, 0')
    for m in range(4, 8):
        A(f'v_mov_b32 {v(P + m)}, 0')
    for m in range(4):
        A(f'v_mov_b32 {v(VF + 12 + m)}, 0')
        A(f'v_mov_b32 {v(P + m)}, 0x3f803f80')
    A(f'v_mul_u32_u24 {v(T)}, {KVT}, v1')
    lcw = C.lab('cw')
    A('s_cmp_lg_u32 s20, 7')
    A(f's_cbranch_scc1 {lcw}')
    A(f'ds_write_b128 {v(T)}, {v(P, 4)} offset:2048')
    A(f'ds_write_b128 {v(T)}, {v(P + 4, 4)} offset:2064')
    A.label(lcw)
    lnd = C.lab('nd')
    A('s_waitcnt vmcnt(0) lgkmcnt(0)')
    A('v_cmp_ne_u32 vcc, 0, v2')
    A('s_barrier')
    A('s_and_b32 s32, vcc_lo, 0xff')
    A('s_cmp_lg_u32 s32, 0xff')
    A(f's_cbranch_scc1 {lnd}')
    for r in range(1, 4):
        kvdma(r)
    A.label(lnd)
    C.vm = []
    C.stamp()

    def rdK(buf, t):
        A(f'ds_read_b128 {v(KF + buf * 4, 4)}, {v(VK)} offset:{t * KVT}')

    def rdV(buf, t):
        A(f'ds_read_b128 {v(VF + buf * 8, 4)}, {v(VV)} offset:{t * KVT}')
        A(f'ds_read_b128 {v(VF + buf * 8 + 4, 4)}, {v(VV1)} offset:{t * KVT}')

    rdK(0, 0)
    rdK(1, 1)
    rdV(0, 0)
    A('s_waitcnt lgkmcnt(3)')
    A(f'v_mfma_f32_32x32x16_bf16 {v(S0, 16)}, {v(KF, 4)}, {v(Q, 4)}, 0')
    A('s_nop 11')
    A(f'v_max3_f32 {v(T)}, {v(S0)}, {v(S0 + 1)}, {v(S0 + 2)}')
    for r in range(3, 15, 2):
        A(f'v_max3_f32 {v(T)}, {v(T)}, {v(S0 + r)}, {v(S0 + r + 1)}')
    A(f'v_max_f32 {v(T)}, {v(T)}, {v(S0 + 15)}')
    A(f'v_mov_b32 {v(T + 1)}, {v(T)}')
    A('s_nop 1')
    A(f'v_permlane32_swap_b32 {v(T)}, {v(T + 1)}')
    A(f'v_max_f32 {v(T)}, {v(T)}, {v(T + 1)}')
    for r in range(16):
        A(f'v_sub_f32 {v(CN + r)}, 0, {v(T)}')
    for r in range(16):
        A(f'v_sub_f32 {v(S0 + r)}, {v(S0 + r)}, {v(T)}')
    A('s_setprio 3')
    C.stamp()
    UN = ATT_UN
    NIT = 64 // UN
    queue = list(stubs)
    assert UN == 4
    first_pf = ATT_B2
    pf0 = pf0 or first_pf
    per = -(-len(queue) // (NIT - pf0 - ATT_PFEND))
    prio = {int(NIT * 0.5): 2, int(NIT * 0.78): 1, NIT - 1: 0}
    for it in range(NIT):
        if it == 1:
            ld = C.lab('dn')
            A('s_cmp_eq_u32 s32, 0xff')
            A(f's_cbranch_scc1 {ld}')
            kv_flagload(C)
            kv_wait(C, 0xff, endlab)
            for r in range(1, 4):
                kvdma(r)
            A.label(ld)
            for r in range(4, 8):
                kvdma(r)
            A('s_waitcnt vmcnt(12)')
            A('s_barrier')
        if it == first_pf:
            A('s_waitcnt vmcnt(0)')
            A('s_barrier')
        if it in prio:
            A(f's_setprio {prio[it]}')
        if it in fixed:
            if FINE == 2:
                C.stamp()
            fixed[it]()
            if FINE == 2:
                C.stamp()
        if it >= pf0:
            for _ in range(per):
                if queue:
                    queue.pop(0)()
        A('s_call_b64 s[34:35], att_body')
    assert not queue
    A(f'v_mfma_f32_32x32x16_bf16 {v(O, 16)}, {v(VF + 8 + 4, 4)}, {v(P + 4, 4)}, {v(O, 16)}')
    A('s_mov_b32 s39, 0')
    C.stamp()
    A('s_waitcnt lgkmcnt(0)')
    A('s_nop 10')
    A.label(f'{tg}_fin')
    A(f'v_mov_b32 {v(T)}, {v(O + 8)}')
    A(f'v_mov_b32 {v(T + 1)}, {v(O + 8)}')
    A(f'v_mul_f32 {v(T + 2)}, 0, {v(O)}')
    A(f'v_fma_f32 {v(T + 2)}, {v(O + 1)}, 0, {v(T + 2)}')
    A(f'v_permlane32_swap_b32 {v(T)}, {v(T + 1)}')
    for r in range(2, 8):
        A(f'v_fma_f32 {v(T + 2)}, {v(O + r)}, 0, {v(T + 2)}')
    A(f'v_add_f32 {v(T + 2)}, {v(T + 2)}, {v(T)}')
    A(f'v_mov_b32 {v(T + 3)}, {f32(2.0 ** 30)}')
    A(f'v_cmp_nle_f32 vcc, {v(T + 2)}, {v(T + 3)}')
    A(f'v_rcp_f32 {v(T)}, {v(T)}')
    A('s_cmp_eq_u32 s39, 99')
    A(f's_cbranch_scc1 {tg}_store')
    A(f's_cbranch_vccnz {tg}_slow')
    A.label(f'{tg}_store')
    for r in range(8):
        A(f'v_mul_f32 {v(O + r)}, {v(T)}, {v(O + r)}')
    for m in range(4):
        A(f'v_cvt_pk_bf16_f32 {v(P + m)}, {v(O + 2 * m)}, {v(O + 2 * m + 1)}')
    C.vmem(f'buffer_store_dwordx4 {v(P, 4)}, v3, s[8:11], s36 offen{WT}', 'st')

    def tail(with_body):
        if with_body:
            A.raw('.p2align 6')
            A.label('att_body')
            for t in range(UN):
                cur, nxt = t & 1, (t + 1) & 1
                Sc, Sn = S[cur], S[nxt]
                A('s_waitcnt lgkmcnt(2)')
                A(f'v_mfma_f32_32x32x16_bf16 {v(Sn, 16)}, {v(KF + nxt * 4, 4)}, {v(Q, 4)}, {v(CN, 16)}')
                rdK(cur, t + 2)
                for r in range(6):
                    A(f'v_exp_f32 {v(Sc + r)}, {v(Sc + r)}')
                A(f'v_mfma_f32_32x32x16_bf16 {v(O, 16)}, {v(VF + nxt * 8 + 4, 4)}, {v(P + 4, 4)}, {v(O, 16)}')
                for r in range(6, 8):
                    A(f'v_exp_f32 {v(Sc + r)}, {v(Sc + r)}')
                for m in range(4):
                    A(f'v_cvt_pk_bf16_f32 {v(P + m)}, {v(Sc + 2 * m)}, {v(Sc + 2 * m + 1)}')
                A(f'v_exp_f32 {v(Sc + 8)}, {v(Sc + 8)}')
                A(f'v_exp_f32 {v(Sc + 9)}, {v(Sc + 9)}')
                A('s_waitcnt lgkmcnt(1)')
                A(f'v_mfma_f32_32x32x16_bf16 {v(O, 16)}, {v(VF + cur * 8, 4)}, {v(P, 4)}, {v(O, 16)}')
                rdV(nxt, t + 1)
                for r in range(10, 16):
                    A(f'v_exp_f32 {v(Sc + r)}, {v(Sc + r)}')
                for m in range(4, 8):
                    A(f'v_cvt_pk_bf16_f32 {v(P + m)}, {v(Sc + 2 * m)}, {v(Sc + 2 * m + 1)}')
            if EXPT:
                n0 = max(i for i, l in enumerate(A.lines) if l.startswith('att_body'))
                body = A.lines[n0:]
                if EXPT == 1:
                    body = [l for l in body if not ('mfma' in l and v(P + 4, 4) in l)]
                if EXPT == 2:
                    body = [l if not ('mfma' in l and v(P + 4, 4) in l) else f'    v_mfma_f32_16x16x32_bf16 v[120:123], {v(VF + 4, 4)}, {v(P + 4, 4)}, v[120:123]' for l in body]
                if EXPT == 3:
                    body = [l.replace('lgkmcnt(2)', 'lgkmcnt(1)') for l in body if not ('ds_read' in l and v(VV1) in l)]
                if EXPT == 4:
                    body = [l if not ('mfma' in l and v(P + 4, 4) in l) else f'    v_mfma_f32_16x16x32_bf16 v[120:123], {v(VF + 4, 4)}, {v(P + 4, 4)}, v[120:123]' for l in body]
                    body = [l.replace('lgkmcnt(2)', 'lgkmcnt(1)') for l in body if not ('ds_read' in l and v(VV1) in l)]
                if EXPT == 5:
                    body = ['att_body:']
                    def E(x): body.append('    ' + x)
                    for t in range(UN):
                        cur, nxt = t & 1, (t + 1) & 1
                        Sc, Sn = S[cur], S[nxt]
                        def cv(m): E(f'v_cvt_pkrtz_f16_f32 {v(Sc + 2 * m)}, {v(Sc + 2 * m)}, {v(Sc + 2 * m + 1)}')
                        def ex(m, h): E(f'v_exp_f16_sdwa {v(P + m)}, {v(Sc + 2 * m)} dst_sel:WORD_{h} dst_unused:UNUSED_PRESERVE src0_sel:WORD_{h}')
                        E('s_waitcnt lgkmcnt(2)')
                        E(f'v_mfma_f32_32x32x16_bf16 {v(Sn, 16)}, {v(KF + nxt * 4, 4)}, {v(Q, 4)}, {v(CN, 16)}')
                        E(f'ds_read_b128 {v(KF + cur * 4, 4)}, {v(VK)} offset:{(t + 2) * KVT}')
                        for m in range(4): cv(m)
                        for m in range(4): ex(m, 0)
                        E(f'v_mfma_f32_32x32x16_f16 {v(O, 16)}, {v(VF + nxt * 8 + 4, 4)}, {v(P + 4, 4)}, {v(O, 16)}')
                        for m in range(4): ex(m, 1)
                        for m in range(4, 8): cv(m)
                        E('s_waitcnt lgkmcnt(1)')
                        E(f'v_mfma_f32_32x32x16_f16 {v(O, 16)}, {v(VF + cur * 8, 4)}, {v(P, 4)}, {v(O, 16)}')
                        E(f'ds_read_b128 {v(VF + nxt * 8, 4)}, {v(VV)} offset:{(t + 1) * KVT}')
                        E(f'ds_read_b128 {v(VF + nxt * 8 + 4, 4)}, {v(VV1)} offset:{(t + 1) * KVT}')
                        for m in range(4, 8): ex(m, 0)
                        for m in range(4, 8): ex(m, 1)
                A.lines[n0:] = body
            A(f'v_add_u32 {v(VK)}, {UN * KVT}, {v(VK)}')
            A(f'v_add_u32 {v(VV)}, {UN * KVT}, {v(VV)}')
            A(f'v_add_u32 {v(VV1)}, {UN * KVT}, {v(VV1)}')
            A('s_setpc_b64 s[34:35]')
        A.label(f'{tg}_slow')
        A(f'v_subrev_u32 {v(VK)}, {64 * KVT}, {v(VK)}')
        A(f'v_subrev_u32 {v(VV)}, {64 * KVT}, {v(VV)}')
        A(f'v_subrev_u32 {v(VV1)}, {64 * KVT}, {v(VV1)}')
        for r in range(16):
            A(f'v_mov_b32 {v(O + r)}, 0')
        M = T + 4
        A(f'v_sub_f32 {v(M)}, 0, {v(CN)}')
        A.label(f'{tg}_sloop')
        rdK(0, 0)
        rdV(0, 0)
        A('s_waitcnt lgkmcnt(0)')
        A(f'v_mfma_f32_32x32x16_bf16 {v(S0, 16)}, {v(KF, 4)}, {v(Q, 4)}, 0')
        A('s_nop 11')
        A(f'v_max3_f32 {v(T)}, {v(S0)}, {v(S0 + 1)}, {v(S0 + 2)}')
        for r in range(3, 15, 2):
            A(f'v_max3_f32 {v(T)}, {v(T)}, {v(S0 + r)}, {v(S0 + r + 1)}')
        A(f'v_max3_f32 {v(T)}, {v(T)}, {v(S0 + 15)}, {v(M)}')
        A(f'v_mov_b32 {v(T + 1)}, {v(T)}')
        A('s_nop 1')
        A(f'v_permlane32_swap_b32 {v(T)}, {v(T + 1)}')
        A(f'v_max_f32 {v(T)}, {v(T)}, {v(T + 1)}')
        A(f'v_sub_f32 {v(T + 1)}, {v(M)}, {v(T)}')
        A(f'v_exp_f32 {v(T + 1)}, {v(T + 1)}')
        A(f'v_mov_b32 {v(M)}, {v(T)}')
        for r in range(16):
            A(f'v_sub_f32 {v(S0 + r)}, {v(S0 + r)}, {v(T)}')
        for r in range(16):
            A(f'v_exp_f32 {v(S0 + r)}, {v(S0 + r)}')
        for r in range(16):
            A(f'v_mul_f32 {v(O + r)}, {v(T + 1)}, {v(O + r)}')
        for m in range(8):
            A(f'v_cvt_pk_bf16_f32 {v(P + m)}, {v(S0 + 2 * m)}, {v(S0 + 2 * m + 1)}')
        A('s_nop 1')
        A(f'v_mfma_f32_32x32x16_bf16 {v(O, 16)}, {v(VF, 4)}, {v(P, 4)}, {v(O, 16)}')
        A(f'v_mfma_f32_32x32x16_bf16 {v(O, 16)}, {v(VF + 4, 4)}, {v(P + 4, 4)}, {v(O, 16)}')
        A(f'v_add_u32 {v(VK)}, {KVT}, {v(VK)}')
        A(f'v_add_u32 {v(VV)}, {KVT}, {v(VV)}')
        A(f'v_add_u32 {v(VV1)}, {KVT}, {v(VV1)}')
        A('s_nop 11')
        A('s_add_u32 s39, s39, 1')
        A('s_cmp_lt_u32 s39, 64')
        A(f's_cbranch_scc1 {tg}_sloop')
        A('s_mov_b32 s39, 99')
        A(f's_branch {tg}_fin')
    return tail


V_WGU = 112


def gu_waddr(C):
    A = C.A
    A('s_mul_i32 s30, s22, 7')
    A('s_min_u32 s31, s20, 6')
    A('s_add_u32 s40, s30, s31')
    A('s_lshl_b32 s30, s40, 15')
    A(f's_add_u32 s30, s30, {WGUP}')
    A(f'v_add_u32 {v(V_WGU)}, s30, v3')


def gu_wload(C, ks):
    so, im = soff(ks)
    C.vmem(f'buffer_load_dwordx4 {v(128 + 4 * ks, 4)}, {v(V_WGU)}, s[8:11], {so} offen offset:{im}', 'wg')


def gu_pre(C):
    A = C.A
    CS = 112
    A('v_mov_b32 v15, v113')
    A('v_mov_b32 v9, v114')
    A(f'v_mov_b32 v14, {v(V_WGU)}')
    A('s_lshl_b32 s30, s21, 2')
    A('s_add_u32 s30, s30, s25')
    A('s_lshl_b32 s30, s30, 15')
    A('s_lshl_b32 s31, s26, 11')
    A('s_add_u32 s30, s30, s31')
    A(f's_add_u32 s30, s30, {C.B["XB"]}')
    A('v_add_u32 v13, s30, v3')
    A('s_lshl_b32 s48, s25, 15')
    A('s_add_u32 s48, s48, s31')
    A('v_add_u32 v7, 0x10000, v3')
    A('v_lshrrev_b32 v11, 5, v1')
    A('v_lshlrev_b32 v11, 4, v11')
    A('s_min_u32 s30, s20, 6')
    A('s_lshl_b32 s30, s30, 7')
    A(f's_add_u32 s30, s30, {132 * KB}')
    A('v_add_u32 v10, s30, v11')
    A('v_and_b32 v12, 31, v1')
    A('v_lshlrev_b32 v12, 3, v12')
    A('v_lshl_add_u32 v12, v11, 8, v12')
    A('s_lshl_b32 s30, s21, 15')
    A(f's_add_u32 s30, s30, {C.B["SXB"]}')
    A('v_add_u32 v12, s30, v12')
    A(f'v_add_u32 v8, {128 * KB}, v3')


def gu_main(C, after_store=None):
    A = C.A
    ACC, XF, CS = 16, 80, 112
    STR = [4, 10, 240, 244]

    def dma(c):
        A(f's_add_u32 m0, s48, {c * 4096}')
        so = '0' if c == 0 else s(40 + c)
        A('s_nop 0')
        for k in range(2):
            C.vmem(f'buffer_load_dwordx4 v13, s[8:11], {so} offen offset:{k * 1024} lds', f'x{c}')
    dma(0)
    dma(1)

    def rd(ks):
        buf = ks & 1
        for i in range(4):
            base = 'v3' if i < 2 else 'v7'
            A(f'ds_read_b128 {v(XF + buf * 16 + i * 4, 4)}, {base} offset:{(i & 1) * 32768 + ks * 1024}')

    def stats_load(i):
        for e in range(16):
            C.vmem(f'buffer_load_dwordx2 {v(ACC + (i & 1) * 32 + 2 * e, 2)}, v12, s[8:11], {"0" if i == 0 else s(40 + 2 * i)} offen offset:{e * 256}', f's{i}')

    def stats_sum(i):
        b = ACC + (i & 1) * 32
        C.wait(f's{i}')
        for stp in (16, 8, 4, 2):
            for e in range(stp):
                A(f'v_add_f32 {v(b + e)}, {v(b + e)}, {v(b + e + stp)}')
        A(f'v_mov_b32 {v(b + 2)}, {v(b)}')
        A(f'v_mov_b32 {v(b + 3)}, {v(b + 1)}')
        A('s_nop 1')
        A(f'v_permlane32_swap_b32 {v(b)}, {v(b + 2)}')
        A(f'v_permlane32_swap_b32 {v(b + 1)}, {v(b + 3)}')
        A(f'v_add_f32 {v(b)}, {v(b)}, {v(b + 2)}')
        A(f'v_add_f32 {v(b + 1)}, {v(b + 1)}, {v(b + 3)}')
        A(f'v_mul_f32 {v(b)}, {f32(-1.0 / 512)}, {v(b)}')
        A(f'v_mul_f32 {v(b + 1)}, {f32(1.0 / 512)}, {v(b + 1)}')
        A(f'v_fma_f32 {v(b + 1)}, -{v(b)}, {v(b)}, {v(b + 1)}')
        A(f'v_max_f32 {v(b + 1)}, 0, {v(b + 1)}')
        A(f'v_add_f32 {v(b + 1)}, {f32(1e-5)}, {v(b + 1)}')
        A(f'v_rcp_f32 {v(b + 2)}, {v(b + 1)}')
        A(f'v_mov_b32 {v(b + 1)}, {v(b)}')
        A(f'v_mov_b32 {v(b + 3)}, {v(b + 2)}')
        A(f'ds_write_b128 v8, {v(b, 4)} offset:{i * 1024}')
        A('s_waitcnt lgkmcnt(0)')

    def loop(idle):
        C.wait('x0')
        A('s_barrier')
        C.stamp()
        if not idle:
            rd(0)
        for ks in range(32):
            if ks + 1 < 32:
                if (ks + 1) in GU_BARS:
                    C.wait(f'x{GU_BARS[ks + 1]}')
                    A('s_barrier')
                if not idle:
                    rd(ks + 1)
                    if ks == 28:
                        for g in range(4):
                            A(f'ds_read_b128 {v(CS + g * 4, 4)}, v10 offset:{g * 32}')
                        A('s_waitcnt lgkmcnt(8)')
                    elif ks == 30:
                        for i in range(4):
                            A(f'ds_read_b128 {v(STR[i], 4)}, v8 offset:{i * 1024}')
                        A('s_waitcnt lgkmcnt(8)')
                    else:
                        A('s_waitcnt lgkmcnt(4)')
            elif not idle:
                A('s_waitcnt lgkmcnt(0)')
            buf = ks & 1
            todo = []
            if ks == 10:
                C.flagb = True
                flag_b(C)
            if ks < 6:
                todo.append(lambda: dma(ks + 2))
            if ks == 16 + WO_TAIL and not idle:
                C.wait('wg')
            if 6 <= ks < 6 + 16 - WO_TAIL and not idle:
                k2 = 16 + WO_TAIL + ks - 6
                so, im = soff(k2)
                todo.append(lambda k2=k2, so=so, im=im: C.vmem(f'buffer_load_dwordx4 {v(128 + 4 * k2, 4)}, v14, s[8:11], {so} offen offset:{im}', 'wg'))
            if ks >= GU_WD0:
                nleft = 28 - len(wdone)
                for st in [st for st in range(28) if st < ks and st not in wdone][:(2 if nleft > 31 - ks else 1)]:
                    todo.append(lambda st=st: g3_wload(C, (15, 9), st, 128))
                    wdone.add(st)
            for i in range(4):
                if not idle and not (GU_TAIL and (ks == 31 or (ks == 30 and i >= 2))):
                    c = '0' if ks == 0 else v(ACC + i * 16, 16)
                    if GU16:
                        for t2 in range(2):
                            aa = ACC + i * 16 + ((ks & 1) * 2 + t2) * 4
                            A(f'v_mfma_f32_16x16x32_bf16 {v(aa, 4)}, {v(128 + 4 * (ks ^ t2 if ks > 1 else ks), 4)}, {v(XF + buf * 16 + i * 4, 4)}, {"0" if ks < 2 else v(aa, 4)}')
                    else:
                        A(f'v_mfma_f32_32x32x16_bf16 {v(ACC + i * 16, 16)}, {v(128 + 4 * ks, 4)}, {v(XF + buf * 16 + i * 4, 4)}, {c}')
                if i < 3 and todo:
                    f_ = todo.pop(0)
                    if not (GU_NOW and ks >= 6):
                        f_()
            if idle:
                if ks == 6:
                    stats_load(0)
                    stats_load(1)
                if ks == 8:
                    stats_sum(0)
                    stats_load(2)
                    stats_sum(1)
                    stats_load(3)
                if ks == 12:
                    stats_sum(2)
                    stats_sum(3)
                    A(f's_mul_i32 s30, s22, {7 * 128}')
                    A(f's_add_u32 s30, s30, {CSP}')
                    for kp in range(8):
                        C.vmem(f'buffer_load_dwordx4 {v(ACC + 4 * kp, 4)}, v3, s[8:11], s30 offen', 'cp')
                        if kp < 7:
                            A(f's_add_u32 s30, s30, {3584 * 4}')
                if ks == 16:
                    C.wait('cp')
                    for stp in (16, 8, 4):
                        for e in range(stp):
                            A(f'v_add_f32 {v(ACC + e)}, {v(ACC + e)}, {v(ACC + e + stp)}')
                    A(f'v_add_u32 v10, {132 * KB}, v3')
                    A(f'ds_write_b128 v10, {v(ACC, 4)}')
                    A('s_waitcnt lgkmcnt(0)')
        assert len(wdone) == 28
        C.stamp()
        if idle:
            if after_store:
                after_store()
            return
        P = XF

        def epi(i):
            acc = ACC + i * 16
            for r in range(0, 16, 2):
                A(f'v_pk_fma_f32 {v(acc + r, 2)}, {v(STR[i], 2)}, {v(CS + r, 2)}, {v(acc + r, 2)}')
            for r in range(0, 8, 2):
                A(f'v_pk_mul_f32 {v(acc + r, 2)}, {v(acc + r, 2)}, {v(acc + 8 + r, 2)}')
            for r in range(0, 8, 2):
                A(f'v_pk_mul_f32 {v(acc + r, 2)}, {v(acc + r, 2)}, {v(STR[i] + 2, 2)}')
            pp = acc + 8
            for m in range(4):
                A(f'v_cvt_pk_bf16_f32 {v(pp + m)}, {v(acc + 2 * m)}, {v(acc + 2 * m + 1)}')
            C.vmem(f'buffer_store_dwordx4 {v(pp, 4)}, v3, s[8:11], s30 offen{WT}', 'st')
            if i < 3:
                A(f's_add_u32 s30, s30, {112 * KB}')

        def mm(i, ks):
            A(f'v_mfma_f32_32x32x16_bf16 {v(ACC + i * 16, 16)}, {v(128 + 4 * ks, 4)}, {v(XF + (ks & 1) * 16 + i * 4, 4)}, {v(ACC + i * 16, 16)}')
        A(f's_mul_i32 s30, s21, {4 * 112}')
        A('s_add_u32 s30, s30, s40')
        A('s_lshl_b32 s30, s30, 10')
        A(f's_add_u32 s30, s30, {C.B["HF"]}')
        if GU_TAIL:
            A('s_waitcnt lgkmcnt(0)')
            mm(0, 31)
            mm(2, 30)
            mm(1, 31)
            mm(3, 30)
            A('s_nop 8')
            epi(0)
            mm(2, 31)
            mm(3, 31)
            epi(1)
            epi(2)
            epi(3)
        else:
            A('s_nop 4')
            for i in range(4):
                epi(i)
        if after_store:
            after_store()

    ls, le = C.lab('gs'), C.lab('ge')
    A('s_cmp_eq_u32 s20, 7')
    A(f's_cbranch_scc1 {ls}')
    save, ns = list(C.vm), C.nstamp
    wdone = set()
    loop(False)
    A(f's_branch {le}')
    A.label(ls)
    C.vm, C.nstamp = list(save), ns
    wdone = set()
    loop(True)
    A.label(le)
    C.vm = ['st']


def swap_add(A, ra, rb):
    A(f'v_permlane32_swap_b32 {v(ra)}, {v(rb)}')
    A(f'v_add_f32 {v(ra)}, {v(ra)}, {v(rb)}')


def pre_part(C, end):
    A = C.A
    A('s_cmp_ge_u32 s2, 256')
    A(f's_cbranch_scc1 {end}')
    A('s_load_dwordx2 s[12:13], s[0:1], 0')
    A('s_load_dwordx2 s[16:17], s[0:1], 8')
    A('s_load_dwordx2 s[52:53], s[0:1], 16')
    A('s_load_dwordx2 s[56:57], s[0:1], 24')
    A('s_load_dwordx2 s[4:5], s[0:1], 80')
    for d, sz in ((12, 2048 * 1024), (16, 512 * 1024), (52, 512 * 32), (56, 512 * 32), (4, 256)):
        A(f's_mov_b32 {s(d + 2)}, {sz}')
        A(f's_mov_b32 {s(d + 3)}, 0x20000')
    setup(C, False, end)
    C.stamp()
    if TLBW:
        A('s_lshl_b32 s30, s20, 3')
        A(f's_add_u32 s30, s30, 32')
        A('s_cmp_eq_u32 s20, 1')
        A('s_cselect_b32 s30, 8, s30')
        A('s_load_dwordx2 s[32:33], s[0:1], s30')
        A('s_mov_b32 s31, 8192')
        A('s_cmp_ge_u32 s20, 2')
        A('s_cselect_b32 s31, 28672, s31')
        A('s_cmp_eq_u32 s20, 6')
        A('s_cselect_b32 s31, 4, s31')
        A('s_cmp_eq_u32 s20, 7')
        A(f's_cselect_b32 s31, {TLBW}, s31')
        A('v_mul_lo_u32 v4, v1, s31')
        A('s_waitcnt lgkmcnt(0)')
        A('global_load_dword v127, v4, s[32:33]')
    A('s_add_u32 s30, s21, 1')
    A('s_and_b32 s30, s30, 3')
    A('s_lshl_b32 s30, s30, 2')
    A('s_xor_b32 s30, s30, s22')
    A('s_add_u32 s30, s30, s20')
    A('s_cmp_lg_u32 s30, 0')
    A('s_cbranch_scc1 pr_z0')
    for r in range(4):
        A(f'v_mov_b32 {v(8 + r)}, 0')
    A('v_lshrrev_b32 v4, 4, v1')
    A('v_and_b32 v5, 15, v1')
    A('v_lshlrev_b32 v5, 4, v5')
    A('v_lshl_add_u32 v4, v4, 12, v5')
    A('s_lshl_b32 s30, s21, 8')
    A(f's_add_u32 s30, s30, {FLG}')
    for k in range(3):
        A('buffer_store_dwordx4 v[8:11], v4, s[8:11], s30 offen sc0 sc1')
        A('s_add_u32 s30, s30, 16384')
    A('v_lshlrev_b32 v4, 7, v1')
    A(f's_mul_i32 s30, s21, {64 * 128}')
    A(f's_add_u32 s30, s30, {PFL}')
    A('buffer_store_dwordx4 v[8:11], v4, s[8:11], s30 offen sc0 sc1')
    A('v_mov_b32 v5, 1')
    A('s_mov_b64 exec, 1')
    A('s_waitcnt vmcnt(0)')
    A('buffer_atomic_add v5, v8, s[4:7], 0 offen sc1')
    A('s_mov_b64 exec, -1')
    A('s_nop 1')
    A.label('pr_z0')
    KST, KW, KR, T, EX, XR = 240, 192, 224, 108, 96, 32
    WST, CSQ, CSKV = 96 * KB, ST4 + 9 * KB, ST4 + 10 * KB
    A('s_mov_b64 s[36:37], s[16:17]')
    A(f's_mov_b32 s38, {512 * 1024}')
    A('s_mov_b32 s39, 0x20000')
    g4_ids(C)
    A('s_lshl_b32 s30, s20, 11')
    A('s_cmp_lg_u32 s3, 0')
    A('s_cbranch_scc1 pr_k0')
    for k in range(4):
        A(f'buffer_load_dwordx4 {v(KST + 4 * k, 4)}, v3, {"s[52:55]" if k < 2 else "s[56:59]"}, s30 offen offset:{(k & 1) * 1024}')
    A.label('pr_k0')
    A('v_lshrrev_b32 v4, 3, v1')
    A('v_and_b32 v5, 7, v1')
    A('v_lshrrev_b32 v6, 4, v1')
    A('v_xor_b32 v6, v6, v5')
    A('v_lshlrev_b32 v7, 10, v4')
    A('v_lshl_add_u32 v8, v6, 4, v7')
    A('v_xor_b32 v9, 64, v8')
    A('s_lshl_b32 s30, s18, 15')
    A('s_lshl_b32 s31, s20, 7')
    A('s_add_u32 s30, s30, s31')
    A('s_lshl_b32 s32, s20, 12')
    for i in range(4):
        A(f's_add_u32 m0, s32, {KVR4 + i * 1024}')
        A('s_nop 0')
        C.vmem(f'buffer_load_dwordx4 {v(8 + (i & 1))}, s[12:15], s30 offen lds', 'x')
        A('s_add_u32 s30, s30, 8192')
    A('v_lshrrev_b32 v4, 2, v1')
    A('v_and_b32 v5, 3, v1')
    A('v_lshlrev_b32 v10, 10, v4')
    A('v_lshl_add_u32 v10, v5, 4, v10')
    A('s_lshl_b32 s31, s26, 18')
    A('s_bfe_u32 s30, s19, 0x4000b')
    A('s_lshl_b32 s30, s30, 6')
    A('s_add_u32 s31, s31, s30')
    A('s_lshl_b32 s51, s20, 13')
    A(f's_add_u32 s51, s51, {WST}')
    A('s_mov_b32 s50, s31')
    A('v_mov_b32 v88, v10')
    A('s_and_b32 s33, s22, 3')
    A(f's_lshl_b32 s33, s33, 16' if WROT else 's_mov_b32 s33, 0')

    def wloads():
        for i in range(16):
            A(f's_xor_b32 s30, s33, {G4_ORD[i] * 16384}')
            A('s_add_u32 s30, s30, s50')
            if i < 8:
                A(f's_add_u32 m0, s51, {i * 1024}')
                A('s_nop 0')
                A('buffer_load_dwordx4 v88, s[36:39], s30 offen lds')
            else:
                A(f'buffer_load_dwordx4 {v(128 + 4 * i, 4)}, v88, s[36:39], s30 offen')
    A('s_cmp_eq_u32 s3, 0')
    A('s_cbranch_scc1 pr_w1')
    A('s_barrier')
    wloads()
    A('s_waitcnt vmcnt(16)')
    A.label('pr_w1')
    C.stamp()
    A('v_and_b32 v64, 31, v1')
    A('v_lshrrev_b32 v65, 5, v1')
    A('v_lshlrev_b32 v66, 7, v64')
    A('v_lshl_add_u32 v66, v65, 3, v66')
    A('v_bfe_u32 v67, v1, 1, 3')
    A('v_lshl_add_u32 v66, v67, 4, v66')
    A(f's_add_u32 s30, s32, {KVR4}')
    A('v_add_u32 v66, s30, v66')
    A('v_bfe_u32 v67, v1, 2, 2')
    A('v_lshl_add_u32 v67, v65, 2, v67')
    A('v_lshlrev_b32 v68, 3, v5')
    A('v_bfe_u32 v69, v1, 4, 1')
    A('v_lshl_add_u32 v70, v67, 5, v68')
    A('v_lshl_add_u32 v70, v69, 11, v70')
    A('v_add_u32 v70, s30, v70')
    A('v_lshl_add_u32 v71, v67, 6, v68')
    A('v_lshl_add_u32 v71, v69, 5, v71')
    A('s_lshl_b32 s30, s26, 5')
    A('v_xor_b32 v71, s30, v71')
    A('v_add_u32 v71, s51, v71')
    A('v_add_u32 v72, s51, v3')
    A('v_mov_b32 v73, 0x3f803f80')
    A('v_lshlrev_b32 v74, 2, v64')
    A('s_lshl_b32 s30, s20, 7')
    A(f's_add_u32 s31, s30, {CSKV}')
    A('v_add_u32 v75, s31, v74')
    A('s_lshl_b32 s31, s26, 6')
    A('v_xor_b32 v74, s31, v74')
    A(f's_add_u32 s30, s30, {CSQ}')
    A('v_add_u32 v74, s30, v74')
    A('v_lshlrev_b32 v76, 4, v65')
    A('s_add_u32 s30, s30, s31')
    A('v_add_u32 v77, s30, v76')
    A('v_xor_b32 v78, 512, v77')
    A('s_lshl_b32 s30, s25, 5')
    A(f's_add_u32 s30, s30, {CSKV}')
    A('v_add_u32 v79, s30, v76')
    g4_pre(C, 'qkv', XA, resbase=0, raw=True)
    A('s_lshr_b32 s30, s33, 4')
    A('s_lshl_b32 s31, s20, 12')
    A('s_xor_b32 s30, s30, s31')
    A(f's_add_u32 s30, s30, {XF0}')
    A('v_add_u32 v12, s30, v3')
    A('v_mov_b32 v0, 0')
    A('v_mov_b32 v4, 1')
    for ch in range(8):
        A(f'v_xor_b32 {v(80 + ch)}, {ch << 4}, v66')

    def front():
        A('s_cmp_lg_u32 s3, 0')
        A('s_cbranch_scc1 pr_w2')
        A('s_waitcnt vmcnt(0)')
        A.label('pr_w2')
        C.vm = []
        C.stamp()
        for ch in range(8):
            A(f'ds_read_b64 {v(KR + 2 * ch, 2)}, {v(80 + ch)}')
        A('s_waitcnt lgkmcnt(0)')
        for k in range(4):
            A(f'ds_write_b128 v12, {v(KR + 4 * k, 4)} offset:{k * 1024}')
        for r in range(8):
            for e in range(2):
                x = v(KR + 2 * r + e)
                A(f'v_dot2_f32_bf16 {v(T + 2 * e)}, {x}, v73, {"0" if r == 0 else v(T + 2 * e)}')
                A(f'v_dot2_f32_bf16 {v(T + 2 * e + 1)}, {x}, {x}, {"0" if r == 0 else v(T + 2 * e + 1)}')
        A('s_nop 0')

    def kvw():
        for k in range(4):
            A(f'ds_write_b128 v14, {v(KST + 4 * k, 4)} offset:{k * 1024}')
        A('s_waitcnt lgkmcnt(4)')
        for st in range(4):
            for h2 in range(2):
                A(f'ds_read_b64_tr_b16 {v(KW + 4 * st + 2 * h2, 2)}, v70 offset:{st * 512 + h2 * 256}')
        A('s_waitcnt lgkmcnt(0)')
        for r in range(8):
            for e in range(2):
                A(f'v_dot2_f32_bf16 {v(80 + e)}, {v(KW + 2 * r + e)}, v73, {"0" if r == 0 else v(80 + e)}')
        A('s_nop 2')
        A('v_add_f32 v80, v80, v81')
        A('v_mov_b32 v81, v80')
        A('s_nop 1')
        swap_add(A, 80, 81)
        A('ds_write_b32 v75, v80')

    def kvcs0():
        for ww in range(8):
            A(f'ds_read_b128 {v(XR + 4 * ww, 4)}, v79 offset:{ww * 128}')

    def kvcs1():
        A('s_waitcnt lgkmcnt(0)')
        for stp in (16, 8):
            for r in range(stp):
                A(f'v_add_f32 {v(XR + r)}, {v(XR + r)}, {v(XR + stp + r)}')
        for r in range(4):
            A(f'v_add_f32 {v(EX + 8 + r)}, {v(XR + r)}, {v(XR + 4 + r)}')

    def zchk():
        lz, lzd = C.lab('z'), C.lab('zd')
        A('s_mov_b32 s31, 0')
        A('s_mov_b64 exec, 1')
        A.label(lz)
        A('buffer_load_dword v2, v0, s[4:7], 0 offen sc1')
        A('s_waitcnt vmcnt(0)')
        A('v_cmp_le_u32 vcc, 16, v2')
        A('s_add_u32 s31, s31, 1')
        A('s_cmp_eq_u64 vcc, 1')
        A(f's_cbranch_scc1 {lzd}')
        A('s_sleep 8')
        A(f's_cmp_lt_u32 s31, {1 << 20}')
        A(f's_cbranch_scc1 {lz}')
        A(f's_branch {end}')
        A.label(lzd)
        A('s_mov_b64 exec, -1')

    def wprep():
        A('s_cmp_lg_u32 s3, 0')
        A('s_cbranch_scc1 pr_w3')
        wloads()
        A.label('pr_w3')
        zchk()
        C.vm = []
        C.stamp()


    def tr(i):
        for h2 in range(2):
            A(f'ds_read_b64_tr_b16 {v(128 + 4 * i + 2 * h2, 2)}, v71 offset:{(i % 8) * 1024 + h2 * 512}')

    def csdot(r0, r1):
        for r in range(r0, r1):
            for e in range(4):
                A(f'v_dot2_f32_bf16 {v(80 + e)}, {v(128 + 4 * r + e)}, v73, {"0" if r == 0 else v(80 + e)}')

    def loop(rd, mf):
        for i in range(8):
            tr(i)
            if i == 5:
                A('s_waitcnt lgkmcnt(6)')
        ln_stats(A, T)
        A('s_waitcnt lgkmcnt(0)')
        for i in range(4):
            rd(i)
        for i in range(8):
            A(f'ds_write_b128 v72, {v(160 + 4 * i, 4)} offset:{i * 1024}')
        csdot(0, 8)
        A('s_waitcnt lgkmcnt(0)')
        for i in range(4, 8):
            rd(i)
        for i in range(8):
            if i == 4:
                A('s_waitcnt lgkmcnt(8)')
            mf(i)
            if i < 4:
                tr(8 + i)
            else:
                A('s_waitcnt lgkmcnt(9)')
                tr(8 + i)
                rd(4 + i)
        for i in range(8, 16):
            if i == 8:
                A('s_waitcnt lgkmcnt(9)')
            elif i < 12:
                A(f's_waitcnt lgkmcnt({9 - 2 * (i - 8)})')
            else:
                A(f's_waitcnt lgkmcnt({15 - i})')
            mf(i)
            if i < 12:
                rd(4 + i)

    def cs0():
        csdot(8, 16)
        A('s_nop 2')
        A('v_add_f32 v80, v80, v81')
        A('v_add_f32 v82, v82, v83')
        A('v_add_f32 v80, v80, v82')
        A('v_mov_b32 v81, v80')
        A('s_nop 1')
        swap_add(A, 80, 81)
        A('ds_write_b32 v74, v80')

    def cs():
        for h2 in range(2):
            A(f'ds_read_b128 {v(EX + 4 * h2, 4)}, v77 offset:{h2 * 32}')
            A(f'ds_read_b128 {v(XR + 4 * h2, 4)}, v78 offset:{h2 * 32}')
        A('s_waitcnt lgkmcnt(0)')
        for r in range(8):
            A(f'v_add_f32 {v(EX + r)}, {v(EX + r)}, {v(XR + r)}')
        for r in range(12):
            A(f'v_mov_b32 {v(208 + r)}, {v(EX + r)}')

    g4_main(C, 'qkv', kvf=KVF, kfl=KFL, raw=dict(front=front, kvw=kvw, kvcs0=kvcs0, kvcs1=kvcs1, zchk=zchk, wprep=wprep, cs=cs, cs0=cs0, loop=loop), endlab=end)
    C.stamp()


def wq_store(C):
    A = C.A
    A('s_and_b32 s30, s18, 0x33')
    A('s_cmp_lg_u32 s30, 0')
    A('s_cbranch_scc1 pr_w0')
    g4_waddr(C, 112, WQKVP)
    for q4 in (3, 2, 1, 0):
        if q4:
            A(f's_cmp_lg_u32 s21, {q4}')
            A(f's_cbranch_scc1 pr_ws{q4}')
        for i in range(4 * q4, 4 * q4 + 4):
            so, im = soff(G4_ORD[i])
            A(f'buffer_store_dwordx4 {v(128 + 4 * i, 4)}, v112, s[8:11], {so} offen offset:{im} sc0 sc1')
        if q4:
            A('s_branch pr_w0')
            A.label(f'pr_ws{q4}')
    A('v_lshrrev_b32 v113, 5, v1')
    A('v_lshlrev_b32 v113, 4, v113')
    A('s_lshr_b32 s31, s19, 4')
    A(f's_add_u32 s31, s31, {CSQKV}')
    A('s_mov_b32 exec_lo, 1')
    A('s_mov_b32 exec_hi, 1')
    A('buffer_store_dwordx4 v[208:211], v113, s[8:11], s31 offen sc0 sc1')
    A('buffer_store_dwordx4 v[212:215], v113, s[8:11], s31 offen offset:32 sc0 sc1')
    A('s_mov_b64 exec, -1')
    A('s_cmp_lg_u32 s22, 0')
    A('s_cbranch_scc1 pr_w0')
    A('s_lshl_b32 s30, s20, 12')
    A(f's_add_u32 s30, s30, {WQKVP + 16 * 32 * KB}')
    for k in range(4):
        A(f'buffer_store_dwordx4 {v(192 + 4 * k, 4)}, v3, s[8:11], s30 offen offset:{k * 1024} sc0 sc1')
    A('s_cmp_ge_u32 s20, 4')
    A('s_cbranch_scc1 pr_w0')
    A('s_lshl_b32 s31, s20, 5')
    A(f's_add_u32 s31, s31, {CSQKV + 2048}')
    A('s_mov_b32 exec_lo, 1')
    A('s_mov_b32 exec_hi, 1')
    A('buffer_store_dwordx4 v[216:219], v113, s[8:11], s31 offen sc0 sc1')
    A('s_mov_b64 exec, -1')
    A.label('pr_w0')


def pack_ptrs(A):
    A('s_load_dwordx2 s[4:5], s[0:1], 32')
    A('s_load_dwordx4 s[52:55], s[0:1], 48')
    A('s_load_dwordx2 s[16:17], s[0:1], 64')


def pack_issue(C):
    A = C.A
    A('s_mul_i32 s30, s2, 3')
    A('s_add_u32 s30, s30, s20')
    A('s_mov_b32 s58, s30')
    A('s_cmp_lt_u32 s20, 3')
    A('s_cselect_b32 s57, 1, 0')
    A('s_cmp_lt_u32 s30, 736')
    A('s_cselect_b32 s57, s57, 0')
    A('s_cmp_eq_u32 s57, 0')
    A('s_cselect_b32 s30, 0, s30')
    A('s_cmp_lt_u32 s30, 64')
    A('s_cbranch_scc1 pk_jwo')
    A('s_cmp_lt_u32 s30, 512')
    A('s_cbranch_scc1 pk_jgu')
    A('s_sub_u32 s30, s30, 512')
    A('s_mov_b64 s[4:5], s[16:17]')
    A(f's_mov_b32 s6, {1792 * 1024}')
    A('s_mov_b32 s50, 1024')
    A('s_and_b32 s31, s30, 7')
    A('s_lshr_b32 s30, s30, 3')
    A('s_lshl_b32 s51, s30, 16')
    A('s_lshl_b32 s56, s31, 7')
    A('s_add_u32 s51, s51, s56')
    A(f's_mul_i32 s56, s31, {2 * 112 * KB}')
    A('s_lshl_b32 s30, s30, 12')
    A('s_add_u32 s56, s56, s30')
    A(f's_add_u32 s56, s56, {WDP}')
    A(f's_mov_b32 s52, {112 * KB}')
    A('s_mov_b32 s53, 256')
    A(f's_mov_b32 s54, {G1.CSDUMMY}')
    A('s_branch pk_jgo')
    A.label('pk_jwo')
    A(f's_mov_b32 s6, {512 * 1024}')
    A('s_mov_b32 s50, 1024')
    A('s_lshr_b32 s31, s30, 3')
    A('s_and_b32 s30, s30, 7')
    A('s_lshl_b32 s51, s30, 16')
    A('s_lshl_b32 s56, s31, 7')
    A('s_add_u32 s51, s51, s56')
    A('s_lshl_b32 s56, s31, 16')
    A('s_lshl_b32 s30, s30, 12')
    A('s_add_u32 s56, s56, s30')
    A(f's_add_u32 s56, s56, {WOP}')
    A(f's_mov_b32 s52, {32 * KB}')
    A('s_mov_b32 s53, 256')
    A(f's_mov_b32 s54, {G1.CSDUMMY}')
    A('s_branch pk_jgo')
    A.label('pk_jgu')
    A('s_sub_u32 s30, s30, 64')
    A('s_cmp_ge_u32 s30, 224')
    A('s_cselect_b32 s4, s54, s52')
    A('s_cselect_b32 s5, s55, s53')
    A('s_cselect_b32 s16, 1, 0')
    A('s_cselect_b32 s31, 224, 0')
    A('s_sub_u32 s30, s30, s31')
    A(f's_mov_b32 s6, {512 * 3584}')
    A('s_mov_b32 s50, 3584')
    A('s_lshr_b32 s31, s30, 3')
    A('s_and_b32 s30, s30, 7')
    A(f's_mul_i32 s51, s30, {64 * 3584}')
    A('s_lshl_b32 s56, s31, 7')
    A('s_add_u32 s51, s51, s56')
    A('s_lshl_b32 s56, s31, 17')
    A('s_lshl_b32 s17, s30, 12')
    A('s_add_u32 s56, s56, s17')
    A('s_lshl_b32 s17, s16, 8')
    A('s_add_u32 s56, s56, s17')
    A(f's_add_u32 s56, s56, {WGUP}')
    A(f's_mov_b32 s52, {64 * KB}')
    A(f's_mov_b32 s53, {32 * KB}')
    A(f's_mul_i32 s54, s30, {3584 * 4}')
    A('s_lshl_b32 s17, s31, 9')
    A('s_add_u32 s54, s54, s17')
    A('s_lshl_b32 s17, s16, 6')
    A('s_add_u32 s54, s54, s17')
    A(f's_add_u32 s54, s54, {CSP}')
    A.label('pk_jgo')
    A('v_lshrrev_b32 v112, 3, v1')
    A('v_and_b32 v113, 7, v1')
    A('v_mul_lo_u32 v112, v112, s50')
    A('v_lshl_add_u32 v112, v113, 4, v112')
    A('s_lshl_b32 s50, s50, 3')
    A('s_min_u32 s59, s20, 2')
    A('s_lshl_b32 s59, s59, 13')
    A(f's_add_u32 s59, s59, {136 * KB}')
    A('s_cmp_eq_u32 s57, 0')
    A('s_cbranch_scc1 pk_i_end')
    for i in range(8):
        A(f's_add_u32 m0, s59, {i * 1024}')
        A('s_nop 0')
        A('buffer_load_dwordx4 v112, s[4:7], s51 offen lds')
        A('s_add_u32 s51, s51, s50')
    A.label('pk_i_end')


def pack_convert(C):
    A = C.A
    A('s_cmp_eq_u32 s57, 0')
    A('s_cbranch_scc1 pk_c_end')
    A('v_lshrrev_b32 v112, 5, v1')
    A('v_bfe_u32 v113, v1, 2, 2')
    A('v_lshl_add_u32 v113, v112, 2, v113')
    A('v_and_b32 v114, 3, v1')
    A('v_lshlrev_b32 v114, 3, v114')
    A('v_lshl_add_u32 v113, v113, 7, v114')
    A('v_bfe_u32 v114, v1, 4, 1')
    A('v_lshl_add_u32 v113, v114, 5, v113')
    A('v_add_u32 v113, s59, v113')
    A('v_mul_lo_u32 v114, v114, s53')
    A('v_and_b32 v115, 15, v1')
    A('v_lshl_add_u32 v114, v115, 4, v114')
    A('v_lshl_add_u32 v114, v112, 9, v114')
    A('v_lshrrev_b32 v112, 4, v1')
    A('v_lshlrev_b32 v112, 7, v112')
    A('v_lshl_add_u32 v112, v115, 2, v112')
    A('v_mov_b32 v115, 0x3f803f80')
    A('s_add_u32 s52, s52, s56')
    A('s_waitcnt vmcnt(0)')
    for jj in range(2):
        for st in range(4):
            for h2 in range(2):
                A(f'ds_read_b64_tr_b16 {v(128 + 4 * (4 * jj + st) + 2 * h2, 2)}, v113 offset:{st * 2048 + h2 * 1024 + jj * 64}')
        A('s_waitcnt lgkmcnt(0)')
        for st in range(4):
            A(f'buffer_store_dwordx4 {v(128 + 4 * (4 * jj + st), 4)}, v114, s[8:11], {"s56" if jj == 0 else "s52"} offen offset:{st * 1024} sc0 sc1')
    A('s_cmp_eq_u32 s53, 256')
    A('s_cbranch_scc1 pk_c_end')
    for r in range(16):
        for jj in range(2):
            A(f'v_dot2_f32_bf16 {v(116 + jj)}, {v(128 + 16 * jj + r)}, v115, {"0" if r == 0 else v(116 + jj)}')
    A('s_nop 2')
    swap_add(A, 116, 117)
    A('buffer_store_dword v116, v112, s[8:11], s54 offen sc0 sc1')
    A.label('pk_c_end')


def pack_flag(C):
    A = C.A
    A('v_mov_b32 v112, 0')
    A('v_mov_b32 v113, 1')
    A('s_cmp_eq_u32 s57, 0')
    A('s_cbranch_scc1 pk_f_1')
    A('s_lshl_b32 s30, s58, 7')
    A(f's_add_u32 s30, s30, {PFL}')
    A('s_waitcnt vmcnt(0)')
    A('s_mov_b64 exec, 1')
    A('buffer_store_dword v113, v112, s[8:11], s30 offen sc0 sc1')
    A('s_mov_b64 exec, -1')
    A.label('pk_f_1')
    A('s_and_b32 s30, s18, 0x33')
    A('s_cmp_lg_u32 s30, 0')
    A('s_cbranch_scc1 pk_f_end')
    A('s_lshl_b32 s30, s22, 1')
    A('s_add_u32 s30, s30, s20')
    A('s_lshl_b32 s31, s21, 5')
    A('s_add_u32 s30, s30, s31')
    A('s_lshl_b32 s30, s30, 7')
    A(f's_add_u32 s30, s30, {PFL + 768 * 128}')
    A('s_waitcnt vmcnt(0)')
    A('s_mov_b64 exec, 1')
    A('buffer_store_dword v113, v112, s[8:11], s30 offen sc0 sc1')
    A('s_mov_b64 exec, -1')
    A.label('pk_f_end')


def pack_poll(C, endlab):
    A = C.A
    A('s_mul_i32 s30, s22, 7')
    A('s_lshr_b32 s30, s30, 2')
    A('v_lshrrev_b32 v112, 4, v1')
    A('v_add_u32 v112, s30, v112')
    A('v_min_u32 v112, 27, v112')
    A('v_and_b32 v113, 7, v1')
    A('v_lshl_add_u32 v112, v112, 3, v113')
    A('v_bfe_u32 v114, v1, 3, 1')
    A('v_mul_u32_u24 v114, 224, v114')
    A('v_add3_u32 v112, v112, v114, 64')
    A('s_mul_i32 s30, s20, 7')
    A('s_lshr_b32 s30, s30, 1')
    A('v_min_u32 v114, 4, v113')
    A('v_add_u32 v114, s30, v114')
    A('v_min_u32 v114, 27, v114')
    A('s_add_u32 s30, s24, 512')
    A('v_lshl_add_u32 v114, v114, 3, s30')
    A('v_cmp_le_u32 vcc, 48, v1')
    A('s_lshl_b32 s30, s24, 3')
    A('s_add_u32 s30, s30, s20')
    A('v_cndmask_b32 v112, v112, v114, vcc')
    A('v_mov_b32 v114, s30')
    A('v_cmp_le_u32 vcc, 56, v1')
    A('s_add_u32 s31, s20, 768')
    A('s_and_b32 s30, s22, 12')
    A('s_lshl_b32 s30, s30, 1')
    A('s_add_u32 s30, s30, s31')
    A('v_cndmask_b32 v112, v112, v114, vcc')
    for q4 in range(4):
        A(f'v_writelane_b32 v112, s30, {59 + q4}')
        A('s_add_u32 s30, s30, 32')
    A('v_writelane_b32 v112, s31, 63')
    A(f's_mov_b32 s30, {PFL}')
    A('s_mov_b32 s31, 0')
    A('v_lshlrev_b32 v112, 7, v112')
    A('s_bfe_u32 s32, s19, 0x3000c')
    A('s_lshl_b32 s32, s32, 3')
    A('s_lshl_b32 s33, s26, 2')
    A('s_add_u32 s32, s32, s33')
    A('v_and_b32 v114, 3, v1')
    A('v_add_u32 v114, s32, v114')
    A('v_lshlrev_b32 v114, 7, v114')
    A('buffer_load_dword v113, v112, s[8:11], s30 offen sc1')
    A('buffer_load_dword v115, v114, s[8:11], s30 offen sc1')


def pack_poll2(C, endlab):
    A = C.A
    A(f's_mov_b32 s30, {PFL}')
    A('s_mov_b32 s31, 0')
    A.label('pk_p')
    A('s_waitcnt vmcnt(0)')
    A('v_and_b32 v113, v113, v115')
    A('v_cmp_eq_u32 vcc, 1, v113')
    A('s_add_u32 s31, s31, 1')
    A('s_cmp_eq_u64 vcc, -1')
    A('s_cbranch_scc1 pk_pd')
    A('s_sleep 16')
    A('buffer_load_dword v113, v112, s[8:11], s30 offen sc1')
    A('buffer_load_dword v115, v114, s[8:11], s30 offen sc1')
    A(f's_cmp_lt_u32 s31, {1 << 19}')
    A('s_cbranch_scc1 pk_p')
    A(f's_branch {endlab}')
    A.label('pk_pd')
    C.vm = []


def layer_part(C, layer, end):
    A = C.A
    C.tag = f'l{layer}'
    last = layer == 1
    xin = None if layer == 0 else XC
    kvf = KVF if layer == 0 else KVF2
    kfl = KFL + layer * 64 * 128
    sy = 5 * layer + 1
    C.B = dict(QF=QF, OF=OF, XB=XB, SXB=SXB, HF=HF) if layer == 0 else dict(QF=QF2, OF=OF2, XB=XB2, SXB=SXB2, HF=HF2)
    B = C.B

    def pre_addr():
        gu_waddr(C)
        g3_waddr(C, (113, 114), 112, WDP)
        g4_waddr(C, 116, WOP)

    stubs = [lambda: (pre_addr(), gu_wload(C, 0))]
    stubs += [lambda ks=ks: gu_wload(C, ks) for ks in range(1, 24)]
    stubs += [lambda i=i: g4_wload(C, 116, i, 'res') for i in range(8)]
    if TOUCH2:
        def touch2():
            A('s_and_b32 s30, s18, 7')
            A('s_lshr_b32 s31, s30, 1')
            A('s_lshl_b32 s31, s31, 2')
            A('s_and_b32 s30, s30, 1')
            A('s_add_u32 s30, s30, s31')
            A('s_lshl_b32 s30, s30, 10')
            C.vmem('buffer_load_dwordx4 v[120:123], v116, s[8:11], s30 offen offset:2048', 'tc')
            if layer == 0:
                A(f's_add_u32 s30, s30, {WQKVP - WOP + (1 << 32) if WQKVP < WOP else WQKVP - WOP}')
                A('v_add_u32 v117, s30, v116')
                C.vmem('buffer_load_dwordx4 v[120:123], v117, s[8:11], 0 offen', 'tc')
                C.vmem('buffer_load_dwordx4 v[120:123], v117, s[8:11], 0 offen offset:2048', 'tc')
        stubs += [touch2]
    if TOUCH and layer == 1:
        def t_addr():
            A('s_lshr_b32 s30, s2, 3')
            A('s_lshl_b32 s30, s30, 3')
            A('s_add_u32 s30, s30, s20')
            A(f's_mul_i32 s31, s30, {7 * KB}')
            A(f's_add_u32 s31, s31, {WDP}')
            A('v_add_u32 v118, s31, v3')
            A('s_lshl_b32 s31, s30, 11')
            A(f's_add_u32 s31, s31, {WQKVP}')
            A('v_add_u32 v119, s31, v3')

        def tch(vr, k):
            so, im = soff(k)
            C.vmem(f'buffer_load_dwordx4 v[120:123], {v(vr)}, s[8:11], {so} offen offset:{im}', 'tc')
        stubs += [lambda: (t_addr(), tch(V_WGU, 24))]
        stubs += [lambda ks=ks: tch(V_WGU, ks) for ks in range(25, 32)]
        stubs += [lambda k=k: tch(118, k) for k in range(7)]
        if not last:
            stubs += [lambda k=k: tch(119, k) for k in range(2)]

    def need_wo():
        A('s_lshr_b32 s30, s20, 1')
        A('s_lshl_b32 s30, s30, 2')
        A('s_and_b32 s31, s22, 3')
        A('s_add_u32 s30, s30, s31')
        A('s_lshl_b32 s32, 1, s30')

    def need_gu():
        A('s_lshl_b32 s32, 0x1111, s25')
        A('s_cmp_eq_u32 s20, 7')
        A('s_cselect_b32 s32, 0xffff, s32')

    def need_dn():
        A('s_lshl_b32 s30, s20, 1')
        A('s_lshl_b32 s32, 3, s30')

    def need_qkv():
        A('s_lshl_b32 s30, s20, 1')
        A('s_and_b32 s31, s24, 1')
        A('s_add_u32 s30, s30, s31')
        A('s_lshl_b32 s32, 1, s30')

    if layer == 0:
        fixed = {PK_I: lambda: (wq_store(C), pack_issue(C)), PK_C: lambda: pack_convert(C), PK_F: lambda: pack_flag(C), PK_P - 1: lambda: pack_poll(C, end), PK_P: lambda: pack_poll2(C, end)}
        tail = att_phase(C, kvf, kfl, end, stubs, fixed, PK_P, pre_hook=lambda: pack_ptrs(A), loadq=False, early=True)
    else:
        tail = att_phase(C, kvf, kfl, end, stubs, pre_hook=lambda: A('s_load_dwordx2 s[12:13], s[0:1], 72'), loadq=False)
    C.stamp()
    if not WO_LATE:
        A('s_nop 1')
        for i in range(8, 16):
            g4_wload(C, 116, i, 'res')
    g4_pre(C, 'res', B['OF'], resbase=xin)
    handoff(C, sy + 0, end, need_wo)
    C.stamp()
    g4_main(C, 'res', outbase=B['XB'], sxout=B['SXB'], hook_red=lambda k: gu_wload(C, 24 + k))
    C.stamp()
    gu_pre(C)
    handoff(C, sy + 1, end, need_gu)
    C.stamp()
    gu_main(C)
    C.stamp()
    g3_pre(C, 'res', 112, B['HF'], resbase=B['XB'])
    handoff(C, sy + 2, end, need_dn)
    C.stamp()
    if last:
        g3_main(C, 'out', 112, 128)
        C.stamp()
    else:
        g3_main(C, 'res', 112, 128, outbase=XC, sxout=SXC, hook_b=lambda st, n: qkv4_wstep(C, st, n), hook_red=lambda: qkv4_wrest(C))
        C.stamp()
        g4_pre(C, 'qkv', XC, resbase=SXC)
        g4_waddr(C, 64, WQKVP)
        handoff(C, sy + 3, end, need_qkv)
        C.stamp()
        g4_main(C, 'qkv', kvf=KVF2, kfl=KFL + 64 * 128, endlab=end)
        C.stamp()
    return tail


def build():
    A = Asm()
    name = NAME + '_kernel'
    C = Ctx(A, 'pr')
    C.qf = QF
    end = 'k_end'
    kernel_begin(A, name)
    pre_part(C, end)
    t0 = layer_part(C, 0, end)
    t1 = layer_part(C, 1, end)
    A('s_add_u32 s30, s2, s20')
    A('s_cmp_lg_u32 s30, 0')
    A('s_cbranch_scc1 k_fin')
    A('s_load_dwordx2 s[4:5], s[0:1], 80')
    A('s_mov_b32 s6, 256')
    A('v_mov_b32 v2, 0')
    A('s_mov_b64 exec, 1')
    A('s_waitcnt lgkmcnt(0)')
    A('buffer_store_dword v2, v2, s[4:7], 0 offen sc0 sc1')
    A('s_mov_b64 exec, -1')
    A.label('k_fin')
    stamp_end(C, 1)
    A.label(end)
    A('s_endpgm')
    t0(True)
    t1(False)
    body = A.text()
    probs = lint(body)
    for p in probs:
        print('LINT:', p, file=sys.stderr)
    head = '; generated by gen/gen3.py\n'
    head += f"; @launch grid=(256,1,1) block=(512,1,1) lds={LDS_BYTES}\n"
    head += '.amdgcn_target "amdgcn-amd-amdhsa--gfx950"\n.text\n'
    tail = '.section .rodata,"a"\n.p2align 6\n' + descriptor(name, 256, 0, nsgpr=100)
    print('stamps:', C.nstamp, file=sys.stderr)
    return head + body + tail


if __name__ == '__main__':
    if 'stamp' in sys.argv:
        STAMP = True
    for arg in sys.argv[2:]:
        if '=' in arg:
            k, val = arg.split('=')
            globals()[k] = int(val) if val.lstrip('-').isdigit() else val.replace('_', ' ')
    out = sys.argv[1] if len(sys.argv) > 1 else f'cdna_kernels/{NAME}.s'
    open(out, 'w').write(build())
    print('wrote', out)
```

```python
import sys
import math
import struct
from asmlib import Asm, v, a, s, lint
import gen as G1
from gen import f32, kernel_begin, descriptor, ws_srd, KB

NAME = G1.NAME
WQKVP, WOP, WGUP, WDP, CSQKV, CSGU = G1.WQKVP, G1.WOP, G1.WGUP, G1.WDP, G1.CSQKV, G1.CSGU
KVF, XA, XB, QF, OF, HF = G1.KVF, G1.XA, G1.XB, G1.QF, G1.OF, G1.HF
WS_SIZE, QSCALE = G1.WS_SIZE, G1.QSCALE
KVG = 2048
KVT = 2080
VBS = 512
XC = G1.WS_END
KVF2 = XC + 2048 * KB
FLG = KVF2 + 144 * KB
SXA = FLG + 64 * KB
SXB = SXA + 512 * KB
SXC = SXB + 512 * KB
CSP = SXC + 512 * KB
PFL = CSP + 128 * KB
KFL = PFL + 112 * KB
QF2 = KFL + 16 * KB
OF2 = QF2 + 2048 * KB
XB2 = OF2 + 2048 * KB
SXB2 = XB2 + 2048 * KB
HF2 = SXB2 + 512 * KB
WS_END = HF2 + 64 * 112 * KB
STAMPS = G1.STAMPS

STAMP = False
WT = ' sc0 sc1'
LDS_BYTES = 160 * KB
FINE = 0
DBGD = ''
ATT_B2 = 2
WO_L0 = 3
WROT = 1
GU_TAIL = 1
ATT_R0 = 4
EXPT = 0
TLBW = 0
KV_SLEEP = 2
QKV_PER = 1
WO_TAIL = 16
SLO = 0
QWT = ' sc0 sc1'
GU16 = 0
GU_NOW = 0
GU_WD0 = 3
GU_BARS = {4: 1, 8: 2, 12: 7, 24: 7}
PK_I = 2
PK_C = 5
PK_F = 6
PK_P = 10
RT = 0
TOUCH = 0
TOUCH2 = 1
WO_LATE = 0
ATT_UN = 4
ATT_PFEND = 1
G3_PR4 = 7
G3_PR14 = 6
G2_ST8 = [2, 2, 2, 2]
G2_ST28 = [2, 2, 4, 4, 4, 4, 4, 4]
G2_PRE8 = 4
G2_PRE28 = 6


class Ctx:
    def __init__(self, A, tag):
        self.A = A
        self.tag = tag
        self.vm = []
        self.nlab = 0
        self.nstamp = 1

    def lab(self, base):
        self.nlab += 1
        return f'{self.tag}_{base}{self.nlab}'

    def vmem(self, text, tag):
        self.A(text)
        self.vm.append(tag)
        assert len(self.vm) <= 63, 'vmcnt overflow'

    def wait(self, tag, extra=''):
        idx = [i for i, t in enumerate(self.vm) if t == tag]
        if not idx:
            if extra:
                self.A(f's_waitcnt {extra}')
            return
        n = len(self.vm) - 1 - idx[-1]
        self.A(f's_waitcnt vmcnt({n}) {extra}'.strip())
        self.vm = self.vm[idx[-1] + 1:]

    def stamp(self):
        if STAMP:
            i = self.nstamp - SLO
            self.nstamp += 1
            if i < 1 or i >= 28:
                return
            A = self.A
            A('s_waitcnt lgkmcnt(0)')
            A('s_memrealtime s[60:61]' if RT else 's_memtime s[60:61]')
            A('s_waitcnt lgkmcnt(0)')
            A(f's_mov_b32 {s(64 + i)}, s60')


def stamp_begin(C):
    if STAMP:
        A = C.A
        A('s_memrealtime s[62:63]')
        A('s_memtime s[60:61]')
        for i in range(1, 30):
            A(f's_mov_b32 {s(64 + i)}, 0')
        A('s_waitcnt lgkmcnt(0)')
        A('s_mov_b32 s64, s62' if RT else 's_mov_b32 s64, s60')
        A('s_mov_b32 s95, s62')


def stamp_end(C, kidx):
    if STAMP:
        A = C.A
        A('s_waitcnt vmcnt(0) lgkmcnt(0)')
        A('s_memtime s[60:61]')
        A('s_memrealtime s[62:63]')
        A('s_waitcnt lgkmcnt(0)')
        A('s_mov_b32 s93, s62' if RT else 's_mov_b32 s93, s60')
        A('s_mov_b32 s94, s62')
        A('s_mov_b64 exec, 1')
        A('s_lshl_b32 s60, s2, 10')
        A('s_lshl_b32 s61, s20, 7')
        A('s_add_u32 s60, s60, s61')
        A(f's_add_u32 s60, s60, {STAMPS + kidx * (1 << 20)}')
        A('v_mov_b32 v0, 0')
        for i in range(32):
            A(f'v_mov_b32 v1, {s(64 + i)}')
            A(f'buffer_store_dword v1, v0, s[8:11], s60 offen offset:{i * 4}')
        A('s_waitcnt vmcnt(0)')


def setup(C, need_out, endlab):
    A = C.A
    A('s_cmp_ge_u32 s2, 256')
    A(f's_cbranch_scc1 {endlab}')
    stamp_begin(C)
    ws_srd(A, 8)
    if need_out:
        A('s_load_dwordx2 s[12:13], s[0:1], 72')
        A(f's_mov_b32 s14, {2048 * 512 * 2}')
        A('s_mov_b32 s15, 0x20000')
    A('v_and_b32 v1, 63, v0')
    A('v_lshrrev_b32 v2, 6, v0')
    A('v_lshlrev_b32 v3, 4, v1')
    A('v_readfirstlane_b32 s20, v2')
    A('s_and_b32 s21, s2, 7')
    A('s_lshl_b32 s21, s21, 1')
    A('s_bfe_u32 s22, s2, 0x10003')
    A('s_add_u32 s21, s21, s22')
    A('s_lshr_b32 s22, s2, 4')
    A('s_and_b32 s23, s22, 1')
    A('s_lshr_b32 s24, s22, 1')
    A('s_and_b32 s25, s20, 3')
    A('s_lshr_b32 s26, s20, 2')
    A('s_lshl_b32 s27, s21, 2')
    A('s_lshl_b32 s30, s23, 1')
    A('s_add_u32 s27, s27, s30')
    A('s_lshl_b32 s28, s24, 1')
    A('s_bfe_u32 s30, s20, 0x10001')
    A('s_add_u32 s28, s28, s30')
    A('s_and_b32 s29, s20, 1')
    A('s_add_u32 s30, s27, s29')
    A('s_lshl_b32 s49, s30, 15')
    A('s_lshl_b32 s31, s28, 11')
    A('s_add_u32 s49, s49, s31')
    A('s_lshl_b32 s31, s26, 10')
    A('s_add_u32 s49, s49, s31')
    for g in range(1, 8):
        A(f's_mov_b32 {s(40 + g)}, {g * 4096}')
    A('s_waitcnt lgkmcnt(0)')


def soff(i):
    return ('0' if i // 4 == 0 else s(40 + i // 4)), (i % 4) * 1024


def handoff(C, sync, endlab, need, kvflag=None, first=False):
    A = C.A
    l1, l2, ld = C.lab('pa'), C.lab('pb'), C.lab('pd')
    need()
    A('s_mov_b32 s33, 0')
    A('v_lshlrev_b32 v0, 2, v1')
    A('s_lshl_b32 s30, s21, 8')
    A(f's_add_u32 s30, s30, {FLG + sync * 4096}')
    A('s_lshl_b32 s34, s22, 2')
    A('s_add_u32 s34, s34, s30')
    A('v_mov_b32 v4, 1')
    if first:
        lz, lzd = C.lab('z'), C.lab('zd')
        A('s_cmp_lg_u32 s20, 0')
        A(f's_cbranch_scc1 {lzd}')
        A('s_mov_b32 s31, 0')
        A('s_mov_b64 exec, 1')
        A.label(lz)
        A('buffer_load_dword v2, v0, s[4:7], 0 offen sc0 sc1')
        A('s_waitcnt vmcnt(0)')
        A('v_cmp_le_u32 vcc, 16, v2')
        A('s_add_u32 s31, s31, 1')
        A('s_cmp_eq_u64 vcc, 1')
        A(f's_cbranch_scc1 {lzd}')
        A('s_sleep 8')
        A(f's_cmp_lt_u32 s31, {1 << 20}')
        A(f's_cbranch_scc1 {lz}')
        A(f's_branch {endlab}')
        A.label(lzd)
        A('s_mov_b64 exec, -1')
    if kvflag is not None:
        A('s_waitcnt vmcnt(0) lgkmcnt(0)')
        C.vm = []
    else:
        C.wait('st', 'lgkmcnt(0)')
    A('s_cmp_lg_u32 s20, 0')
    A('s_barrier')
    l, lb, lb2 = C.lab('sig'), C.lab('sb'), C.lab('sc')
    A(f's_cbranch_scc1 {l}')
    A('s_mov_b64 exec, 1')
    if kvflag is not None:
        lk = C.lab('kf')
        A('s_cmp_ge_u32 s24, 2')
        A(f's_cbranch_scc1 {lk}')
        A('s_add_u32 s31, s27, s24')
        A('s_lshl_b32 s31, s31, 7')
        A(f's_add_u32 s31, s31, {kvflag}')
        A('s_mov_b64 exec, 15')
        A('buffer_store_dword v4, v0, s[8:11], s31 offen sc0 sc1')
        A('s_mov_b64 exec, 1')
        A.label(lk)
    A('buffer_store_dword v4, v0, s[8:11], s34 offen')
    A.label(l)
    A('s_mov_b32 s31, 0')
    A('s_mov_b64 exec, s[32:33]')
    A.label(l1)
    A('buffer_load_dword v2, v0, s[8:11], s30 offen sc1')
    A('s_add_u32 s31, s31, 1')
    A('s_waitcnt vmcnt(0)')
    A('v_cmp_ne_u32 vcc, 0, v2')
    A('s_cmp_eq_u64 vcc, s[32:33]')
    A(f's_cbranch_scc1 {ld}')
    A('s_cmp_lt_u32 s31, 64')
    A(f's_cbranch_scc1 {l1}')
    A('s_mov_b64 exec, 1')
    A('buffer_store_dword v4, v0, s[8:11], s34 offen offset:128 sc0 sc1')
    A('s_mov_b64 exec, s[32:33]')
    A.label(l2)
    A('buffer_load_dword v2, v0, s[8:11], s30 offen sc1')
    A('s_waitcnt vmcnt(0)')
    A('v_cmp_ne_u32 s[36:37], 0, v2')
    A('buffer_load_dword v2, v0, s[8:11], s30 offen offset:128 sc0 sc1')
    A('s_waitcnt vmcnt(0)')
    A('v_cmp_ne_u32 vcc, 0, v2')
    A('s_add_u32 s31, s31, 1')
    A('s_or_b64 vcc, vcc, s[36:37]')
    A('s_cmp_eq_u64 vcc, s[32:33]')
    A(f's_cbranch_scc1 {ld}')
    A('s_sleep 4')
    A(f's_cmp_lt_u32 s31, {1 << 20}')
    A(f's_cbranch_scc1 {l2}')
    A(f's_branch {endlab}')
    A.label(ld)
    A('s_mov_b64 exec, -1')
    C.vm = []
    C.flagb = True


def flag_b(C):
    if getattr(C, 'flagb', False):
        A = C.A
        l = C.lab('fb')
        A('s_cmp_lg_u32 s20, 0')
        A(f's_cbranch_scc1 {l}')
        A('s_mov_b64 exec, 1')
        A('buffer_store_dword v4, v0, s[8:11], s34 offen offset:128 sc0 sc1')
        A('s_mov_b64 exec, -1')
        A.label(l)
        C.flagb = False


ACCB, ACCA = 16, 48
KVW, KACC, QSX = 160, 176, 240
KVRED, STAT, CSX, CSK = 112 * KB, 144 * KB, 148 * KB, 152 * KB


def blk_stats(C, P, T):
    A = C.A
    A(f'v_mov_b32 {v(T + 4)}, 0x3f803f80')
    A(f'v_dot2_f32_bf16 {v(T + 1)}, {v(P)}, {v(P)}, 0')
    A(f'v_dot2_f32_bf16 {v(T)}, {v(P)}, {v(T + 4)}, 0')
    for m in range(1, 4):
        A(f'v_dot2_f32_bf16 {v(T + 1)}, {v(P + m)}, {v(P + m)}, {v(T + 1)}')
        A(f'v_dot2_f32_bf16 {v(T)}, {v(P + m)}, {v(T + 4)}, {v(T)}')
    A('s_nop 2')
    A(f'v_mov_b32 {v(T + 2)}, {v(T)}')
    A(f'v_mov_b32 {v(T + 3)}, {v(T + 1)}')
    A('s_nop 1')
    A(f'v_permlane32_swap_b32 {v(T)}, {v(T + 2)}')
    A(f'v_permlane32_swap_b32 {v(T + 1)}, {v(T + 3)}')
    A(f'v_add_f32 {v(T)}, {v(T)}, {v(T + 2)}')
    A(f'v_add_f32 {v(T + 1)}, {v(T + 1)}, {v(T + 3)}')


def g3_waddr(C, vregs, KS, wbase):
    A = C.A
    NS = KS // 8
    A('s_lshl_b32 s30, s26, 8')
    A(f'v_xor_b32 {v(vregs[0])}, s30, v3')
    A(f's_mul_i32 s31, s20, {NS * KB}')
    A(f's_add_u32 s31, s31, {wbase}')
    A('s_xor_b32 s30, s28, 1')
    A(f's_mul_i32 s30, s30, {KS * KB}')
    A('s_add_u32 s30, s30, s31')
    A(f'v_add_u32 {v(vregs[1])}, s30, {v(vregs[0])}')
    A(f's_mul_i32 s30, s28, {KS * KB}')
    A('s_add_u32 s30, s30, s31')
    A(f'v_add_u32 {v(vregs[0])}, s30, {v(vregs[0])}')


def g3_wload(C, vregs, idx, wreg0, tag='w'):
    st, jj = idx // 2, idx % 2
    so, im = soff(st)
    C.vmem(f'buffer_load_dwordx4 {v(wreg0 + 4 * idx, 4)}, {v(vregs[jj])}, s[8:11], {so} offen offset:{im}', tag)


def g3_ex(mode, KS):
    return 252 if KS == 112 else (112 if mode == 'qkv' else 116)


def g3_pre(C, mode, KS, xbase, resbase=None, raw=False):
    A = C.A
    NS = KS // 8
    EX = g3_ex(mode, KS)
    A(f's_mul_i32 s31, s20, {NS * KB}')
    A(f's_add_u32 s31, s31, {xbase}')
    A('s_add_u32 s30, s27, s29')
    A(f's_mul_i32 s32, s30, {KS * KB}')
    A('s_add_u32 s32, s32, s31')
    A('v_add_u32 v6, s32, v3')
    A('s_xor_b32 s30, s30, 1')
    A(f's_mul_i32 s32, s30, {KS * KB}')
    A('s_add_u32 s32, s32, s31')
    A('v_add_u32 v5, s32, v3')
    A('s_lshl_b32 s30, s20, 11')
    A('v_add_u32 v8, s30, v3')
    A('v_add_u32 v7, 0x10000, v8')
    for b in range(1, 8):
        A(f's_xor_b32 s30, s20, {b}')
        A('s_lshl_b32 s30, s30, 11')
        A(f's_add_u32 s30, s30, {(b - 1) * 16 * KB}')
        A(f'v_add_u32 {v(8 + b)}, s30, v3')
    if raw:
        return
    if mode == 'qkv':
        A('v_lshrrev_b32 v2, 5, v1')
        A('v_lshlrev_b32 v4, 4, v2')
        A('s_lshl_b32 s31, s28, 7')
        A('s_lshl_b32 s30, s26, 6')
        A('s_add_u32 s31, s31, s30')
        A(f's_add_u32 s31, s31, {CSQKV}')
        C.vmem(f'buffer_load_dwordx4 {v(EX, 4)}, v4, s[8:11], s31 offen', 'ex')
        C.vmem(f'buffer_load_dwordx4 {v(EX + 4, 4)}, v4, s[8:11], s31 offen offset:32', 'ex')
        A('s_bfe_u32 s30, s20, 0x10001')
        A('s_lshl_b32 s30, s30, 6')
        A('s_lshl_b32 s31, s26, 5')
        A('s_add_u32 s30, s30, s31')
        A(f's_add_u32 s31, s30, {CSQKV + 2048}')
        C.vmem(f'buffer_load_dwordx4 {v(EX + 8, 4)}, v4, s[8:11], s31 offen', 'ex')
        A(f'v_and_b32 {v(QSX + 8)}, 31, v1')
        A(f'v_lshlrev_b32 {v(QSX + 8)}, 3, {v(QSX + 8)}')
        A(f'v_lshl_add_u32 {v(QSX + 8)}, v2, 13, {v(QSX + 8)}')
        A('s_lshl_b32 s30, s27, 13')
        A('s_lshl_b32 s31, s20, 10')
        A('s_add_u32 s30, s30, s31')
        A(f's_add_u32 s30, s30, {resbase}')
        A(f'v_add_u32 {v(QSX + 8)}, s30, {v(QSX + 8)}')
    elif resbase is None:
        A('v_and_b32 v2, 31, v1')
        A('v_lshlrev_b32 v2, 10, v2')
        A('v_lshrrev_b32 v4, 5, v1')
        A('v_lshl_add_u32 v2, v4, 3, v2')
        A('s_add_u32 s30, s27, s29')
        A('s_lshl_b32 s30, s30, 15')
        A('s_lshl_b32 s31, s28, 6')
        A('s_add_u32 s30, s30, s31')
        A('s_lshl_b32 s31, s26, 5')
        A('s_add_u32 s30, s30, s31')
        C.vmem(f'buffer_load_dwordx2 {v(EX, 2)}, v2, s[12:15], s30 offen', 'ex')
        C.vmem(f'buffer_load_dwordx2 {v(EX + 2, 2)}, v2, s[12:15], s30 offen offset:16', 'ex')
    else:
        A(f's_add_u32 s31, s49, {resbase}')
        C.vmem(f'buffer_load_dwordx4 {v(EX, 4)}, v3, s[8:11], s31 offen', 'ex')


def g3_main(C, mode, KS, wreg0, outbase=None, kvf=None, after_store=None, sxout=None, hook_b=None, raw=False, hook_red=None):
    A = C.A
    NS = KS // 8
    EX = g3_ex(mode, KS)
    if NS == 4:
        xreg = {(hh, st): 80 + (hh * 4 + st) * 4 for hh in range(2) for st in range(4)}
    else:
        slot = [80 + 4 * k for k in range(12)] + [240, 244]
        xreg = {(hh, st): slot[st] for hh in range(2) for st in range(NS)}

    def xload(hh, st):
        so, im = soff(st)
        C.vmem(f'buffer_load_dwordx4 {v(xreg[hh, st], 4)}, {v(5 + hh)}, s[8:11], {so} offen offset:{im}', f'x{hh}_{st}')

    seq = [(hh, st) for hh in range(2) for st in range(NS)]
    PR = G3_PR4 if NS == 4 else G3_PR14
    if raw:
        seq, PR = [], 0
    for x in seq[:PR]:
        xload(*x)
    nxt = PR
    C.wait('w')

    def wr(b):
        base = (ACCA if b & 1 else ACCB) + ((b >> 1) & 1) * 16 + (b >> 2) * 8
        return [f'ds_write_b128 {v(8 + b)}, {v(base + h2 * 4, 4)} offset:{h2 * 1024}' for h2 in range(2)]

    pend = []
    for hh in range(2):
        acc = ACCA if hh == 0 else ACCB
        for st in range(NS):
            C.wait(f'x{hh}_{st}')
            if hh == 0 and st == 0:
                C.stamp()
            for jj in range(2):
                c = '0' if st == 0 else v(acc + jj * 16, 16)
                A(f'v_mfma_f32_32x32x16_bf16 {v(acc + jj * 16, 16)}, {v(wreg0 + 4 * (2 * st + jj), 4)}, {v(xreg[hh, st], 4)}, {c}')
                if hh == 1 and (st >= 3 or (NS == 4 and st >= 2)):
                    for _ in range(2 if NS == 4 else 1):
                        if pend:
                            A(pend.pop(0))
            if nxt < len(seq):
                xload(*seq[nxt])
                nxt += 1
                if nxt == len(seq):
                    if mode == 'qkv':
                        for e in range(4):
                            C.vmem(f'buffer_load_dwordx2 {v(QSX + 2 * e, 2)}, {v(QSX + 8)}, s[8:11], 0 offen offset:{e * 256}', 'sx')
                    flag_b(C)
                    hb = 0
            elif hook_b:
                hb += 1
            if hook_b and nxt == len(seq):
                hook_b(hb, PR)
            if hh == 1 and NS == 4 and st == 1:
                A('s_nop 7' if raw else 's_nop 5')
            if hh == 1 and NS != 4 and st == 2:
                A('s_nop 2')
        if hh == 0:
            pend = wr(1) + wr(5) + wr(3) + wr(7)
    assert not pend
    C.stamp()
    lkv = C.lab('nokv')
    if mode == 'qkv':
        la, lb = C.lab('ka'), C.lab('kb')
        A('s_cmp_ge_u32 s24, 2')
        A(f's_cbranch_scc1 {lb}')
        A('s_cmp_eq_u32 s24, s29')
        A(f's_cbranch_scc0 {la}')
        for hh in (1, 0):
            for st in range(4):
                c = '0' if st == 0 else v(KACC, 16)
                A(f'v_mfma_f32_32x32x16_bf16 {v(KACC, 16)}, {v(KVW + 4 * st, 4)}, {v(xreg[hh, st], 4)}, {c}')
            if hh == 1:
                A(f's_branch {lb}')
                A.label(la)
        A.label(lb)
        A('v_lshlrev_b32 v4, 3, v1')
        if not raw:
            C.wait('sx')
            for e in range(4):
                A(f'v_add_f32 {v(QSX + e)}, {v(QSX + e)}, {v(QSX + 4 + e)}')
            for e in range(2):
                A(f'v_add_f32 {v(QSX + e)}, {v(QSX + e)}, {v(QSX + 2 + e)}')
            A('s_lshl_b32 s30, s20, 9')
            A(f's_add_u32 s30, s30, {STAT}')
            A('v_add_u32 v2, s30, v4')
            A(f'ds_write_b64 v2, {v(QSX, 2)}')
        else:
            A('v_lshrrev_b32 v112, 5, v1')
            A('v_lshlrev_b32 v112, 4, v112')
            A('s_and_b32 s30, s28, 1')
            A('s_lshl_b32 s30, s30, 7')
            A('s_lshl_b32 s31, s26, 6')
            A('s_add_u32 s30, s30, s31')
            A(f's_add_u32 s30, s30, {CSK}')
            A('v_add_u32 v113, s30, v112')
            A('s_nop 3')
        A('v_and_b32 v4, 0xf8, v4')
        A('s_lshl_b32 s30, s29, 8')
        A(f's_add_u32 s30, s30, {STAT}')
        A('v_add_u32 v4, s30, v4')
    else:
        A('s_nop 10')
    for b in (4, 2, 6):
        for x in wr(b):
            A(x)
    if mode == 'qkv':
        A('s_cmp_ge_u32 s24, 2')
        A(f's_cbranch_scc1 {lkv}')
        A(f'v_add_u32 v2, {KVRED}, v8')
        for k4 in range(4):
            A(f'ds_write_b128 v2, {v(KACC + k4 * 4, 4)} offset:{(k4 >> 1) * 16 * KB + (k4 & 1) * 1024}')
        A.label(lkv)
    if hook_red:
        hook_red()
    A('s_waitcnt lgkmcnt(0)')
    A('s_barrier')
    for b in range(1, 8):
        for h2 in range(2):
            base, off = ('v8', (b - 1) * 16 * KB) if b <= 4 else ('v7', (b - 5) * 16 * KB)
            A(f'ds_read_b128 {v(ACCB + b * 8 + h2 * 4, 4)}, {base} offset:{off + h2 * 1024}')
    T = 80

    def red(base, waits):
        for stp in (32, 16, 8):
            for r in range(stp):
                A(f'v_add_f32 {v(base + r)}, {v(base + r)}, {v(base + stp + r)}')
    if mode == 'qkv':
        A('s_waitcnt lgkmcnt(6)')
        for ww in range(8):
            A(f'ds_read_b64 {v(T + ww * 2, 2)}, v4 offset:{ww * 512}')
        A('s_waitcnt lgkmcnt(8)')
        if raw:
            EX = 192
            for h2 in range(2):
                A(f'ds_read_b128 {v(EX + h2 * 4, 4)}, v113 offset:{h2 * 32}')
    else:
        C.wait('ex')
        for m in range(4):
            A(f'v_lshlrev_b32 {v(T + 2 * m)}, 16, {v(EX + m)}')
            A(f'v_and_b32 {v(T + 2 * m + 1)}, 0xffff0000, {v(EX + m)}')
        for r in range(8):
            A(f'v_add_f32 {v(ACCB + r)}, {v(ACCB + r)}, {v(T + r)}')
        A('s_waitcnt lgkmcnt(0)')
    red(ACCB, None)
    P = ACCB + 8
    if mode == 'qkv':
        A('s_waitcnt lgkmcnt(0)')
        for stp in (8, 4, 2):
            for e in range(stp):
                A(f'v_add_f32 {v(T + e)}, {v(T + e)}, {v(T + e + stp)}')
        A(f'v_mul_f32 {v(T)}, {f32(1.0 / 512)}, {v(T)}')
        A(f'v_mul_f32 {v(T + 1)}, {f32(1.0 / 512)}, {v(T + 1)}')
        A(f'v_fma_f32 {v(T + 1)}, -{v(T)}, {v(T)}, {v(T + 1)}')
        A(f'v_max_f32 {v(T + 1)}, 0, {v(T + 1)}')
        A(f'v_add_f32 {v(T + 1)}, {f32(1e-5)}, {v(T + 1)}')
        A(f'v_rsq_f32 {v(T + 1)}, {v(T + 1)}')
        C.wait('ex')
        for r in range(8):
            A(f'v_fma_f32 {v(ACCB + r)}, -{v(T)}, {v(EX + r)}, {v(ACCB + r)}')
        A(f'v_mul_f32 {v(T + 2)}, {f32(QSCALE)}, {v(T + 1)}')
        for r in range(8):
            A(f'v_mul_f32 {v(ACCB + r)}, {v(T + 2)}, {v(ACCB + r)}')
        for m in range(4):
            A(f'v_cvt_pk_bf16_f32 {v(P + m)}, {v(ACCB + 2 * m)}, {v(ACCB + 2 * m + 1)}')
        A(f's_add_u32 s31, s49, {C.qf}')
        C.vmem(f'buffer_store_dwordx4 {v(P, 4)}, v3, s[8:11], s31 offen{QWT}', 'st')
        le, lv = C.lab('ke'), C.lab('v')
        A('s_cmp_lg_u32 s29, s24')
        A(f's_cbranch_scc1 {le}')
        A('s_bfe_u32 s34, s20, 0x10001')
        A('s_lshl_b32 s30, s34, 14')
        A('s_lshl_b32 s31, s26, 10')
        A('s_add_u32 s30, s30, s31')
        A(f's_add_u32 s30, s30, {KVRED}')
        A('v_add_u32 v4, s30, v3')
        KR = 208
        for ww in range(8):
            A(f'ds_read_b128 {v(KR + ww * 4, 4)}, v4 offset:{ww * 2048}')
        KX = EX + 8
        if raw:
            A('s_lshl_b32 s30, s34, 6')
            A('s_lshl_b32 s31, s26, 5')
            A('s_add_u32 s30, s30, s31')
            A(f's_add_u32 s30, s30, {CSK + 256}')
            A('v_add_u32 v113, s30, v112')
            A(f'ds_read_b128 {v(KX, 4)}, v113')
        A('s_add_u32 s30, s27, s29')
        A(f's_mul_i32 s30, s30, {KVG}')
        A(f's_add_u32 s30, s30, {kvf}')
        A('v_bfe_u32 v4, v1, 4, 1')
        A(f'v_mul_u32_u24 v4, {VBS}, v4')
        A('v_bfe_u32 v5, v1, 2, 1')
        A('v_lshl_add_u32 v4, v5, 8, v4')
        A('v_and_b32 v5, 3, v1')
        A('v_lshl_add_u32 v4, v5, 1, v4')
        A('v_bfe_u32 v5, v1, 3, 1')
        A('v_lshl_add_u32 v4, v5, 3, v4')
        A('v_lshrrev_b32 v5, 5, v1')
        A('v_lshl_add_u32 v4, v5, 6, v4')
        A('s_waitcnt lgkmcnt(0)')
        for stp in (16, 8, 4):
            for r in range(stp):
                A(f'v_add_f32 {v(KR + r)}, {v(KR + r)}, {v(KR + stp + r)}')
        for r in range(4):
            A(f'v_fma_f32 {v(KR + r)}, -{v(T)}, {v(KX + r)}, {v(KR + r)}')
        for r in range(4):
            A(f'v_mul_f32 {v(KR + r)}, {v(T + 1)}, {v(KR + r)}')
        KP = KR + 8
        for m in range(2):
            A(f'v_cvt_pk_bf16_f32 {v(KP + m)}, {v(KR + 2 * m)}, {v(KR + 2 * m + 1)}')
        A('s_cmp_lg_u32 s34, 0')
        A(f's_cbranch_scc1 {lv}')
        A('s_lshl_b32 s31, s26, 3')
        A('s_add_u32 s31, s31, s30')
        A(f'buffer_store_dwordx2 {v(KP, 2)}, v3, s[8:11], s31 offen{QWT}')
        A(f's_branch {le}')
        A.label(lv)
        A('s_lshl_b32 s31, s26, 7')
        A('s_add_u32 s31, s31, s30')
        for r in range(4):
            op = 'buffer_store_short' if r % 2 == 0 else 'buffer_store_short_d16_hi'
            A(f'{op} {v(KP + r // 2)}, v4, s[8:11], s31 offen offset:{1024 + r * 16}{QWT}')
        A.label(le)
    else:
        for m in range(4):
            A(f'v_cvt_pk_bf16_f32 {v(P + m)}, {v(ACCB + 2 * m)}, {v(ACCB + 2 * m + 1)}')
        if mode == 'res':
            A(f's_add_u32 s31, s49, {outbase}')
            C.vmem(f'buffer_store_dwordx4 {v(P, 4)}, v3, s[8:11], s31 offen{WT}', 'st')
            blk_stats(C, P, T)
            A('s_lshr_b32 s31, s49, 2')
            A(f's_add_u32 s31, s31, {sxout}')
            A('v_lshlrev_b32 v4, 3, v1')
            A('s_mov_b32 exec_hi, 0')
            C.vmem(f'buffer_store_dwordx2 {v(T, 2)}, v4, s[8:11], s31 offen{WT}', 'st')
            A('s_mov_b64 exec, -1')
            if after_store:
                after_store()
        else:
            A('v_and_b32 v4, 31, v1')
            A('v_lshlrev_b32 v4, 10, v4')
            A('v_lshrrev_b32 v5, 5, v1')
            A('v_lshl_add_u32 v4, v5, 4, v4')
            A('s_add_u32 s30, s27, s29')
            A('s_lshl_b32 s30, s30, 15')
            A('s_lshl_b32 s31, s28, 6')
            A('s_add_u32 s30, s30, s31')
            A('s_lshl_b32 s31, s26, 5')
            A('s_add_u32 s30, s30, s31')
            A(f'v_permlane32_swap_b32 {v(P)}, {v(P + 2)}')
            A(f'v_permlane32_swap_b32 {v(P + 1)}, {v(P + 3)}')
            C.vmem(f'buffer_store_dwordx4 {v(P, 4)}, v4, s[12:15], s30 offen', 'st')


def qkv_wstep(C, st, n=1):
    A = C.A
    if st == 0:
        g3_waddr(C, (5, 6), 32, WQKVP)
    per = -(-8 // n)
    for i in range(st * per, min(8, (st + 1) * per)):
        g3_wload(C, (5, 6), i, 128)
    if st == n:
        A('s_lshl_b32 s30, s20, 12')
        A(f's_add_u32 s30, s30, {WQKVP + 16 * 32 * KB}')
        l = C.lab('kw')
        A('s_cmp_ge_u32 s24, 2')
        A(f's_cbranch_scc1 {l}')
        for k in range(4):
            A(f'buffer_load_dwordx4 {v(KVW + 4 * k, 4)}, v3, s[8:11], s30 offen offset:{k * 1024}')
        A.label(l)


def qkv_wloads(C):
    qkv_wstep(C, 0)
    qkv_wstep(C, 1)


KVR4, XF0, ST4, RED4 = 0, 36 * KB, 68 * KB, 80 * KB
G4_ORD = [0, 1, 4, 5, 8, 9, 12, 13, 2, 3, 6, 7, 10, 11, 14, 15]


def g4_ids(C):
    A = C.A
    A('s_and_b32 s18, s22, 3')
    A('s_lshl_b32 s30, s21, 2')
    A('s_add_u32 s18, s18, s30')
    A('s_and_b32 s30, s22, 12')
    A('s_add_u32 s30, s30, s25')
    A('s_lshl_b32 s30, s30, 1')
    A('s_add_u32 s30, s30, s26')
    A('s_lshl_b32 s19, s18, 5')
    A('s_add_u32 s19, s19, s30')
    A('s_lshl_b32 s19, s19, 10')
    A('s_lshr_b32 s3, s22, 2')
    A('s_and_b32 s30, s21, 3')
    A('s_xor_b32 s3, s3, s30')


def g4_waddr(C, vreg, wbase):
    A = C.A
    A('s_lshl_b32 s30, s26, 8')
    A(f'v_xor_b32 {v(vreg)}, s30, v3')
    A('s_and_b32 s30, s19, 0x7fff')
    A('s_lshl_b32 s30, s30, 4')
    A(f's_add_u32 s30, s30, {wbase}')
    A(f'v_add_u32 {v(vreg)}, s30, {v(vreg)}')


def g4_wreg(mode, i):
    if mode == 'qkv':
        return 128 + 4 * i
    return 224 + 4 * i if i < 8 else 64 + 4 * (i - 8)


def g4_wload(C, vreg, i, mode):
    so, im = soff(G4_ORD[i])
    C.vmem(f'buffer_load_dwordx4 {v(g4_wreg(mode, i), 4)}, {v(vreg)}, s[8:11], {so} offen offset:{im}', 'w')


def g4_pre(C, mode, xbase, resbase=None, raw=False):
    A = C.A
    EX = 96
    A('s_lshl_b32 s30, s18, 15')
    A('s_lshl_b32 s48, s20, 12')
    A('s_add_u32 s30, s30, s48')
    A(f's_add_u32 s30, s30, {xbase}')
    A('v_add_u32 v5, s30, v3')
    A('s_lshl_b32 s30, s26, 14')
    A(f's_add_u32 s30, s30, {XF0}')
    A('v_add_u32 v6, s30, v3')
    A(f'v_add_u32 v14, s48, v3')
    A(f's_add_u32 s48, s48, {XF0}')
    A('s_lshl_b32 s30, s20, 11')
    A(f's_add_u32 s30, s30, {RED4}')
    A('v_add_u32 v8, s30, v3')
    A('v_xor_b32 v7, 0x2000, v8')
    if mode == 'qkv':
        A('v_lshrrev_b32 v2, 5, v1')
        if not raw:
            A('v_lshlrev_b32 v4, 4, v2')
            A('s_and_b32 s31, s19, 0x7fff')
            A('s_lshr_b32 s31, s31, 4')
            A(f's_add_u32 s31, s31, {CSQKV}')
            C.vmem(f'buffer_load_dwordx4 {v(EX, 4)}, v4, s[8:11], s31 offen', 'ex')
            C.vmem(f'buffer_load_dwordx4 {v(EX + 4, 4)}, v4, s[8:11], s31 offen offset:32', 'ex')
            A('s_lshl_b32 s31, s25, 5')
            A(f's_add_u32 s31, s31, {CSQKV + 2048}')
            C.vmem(f'buffer_load_dwordx4 {v(EX + 8, 4)}, v4, s[8:11], s31 offen', 'ex')
        A('v_and_b32 v9, 31, v1')
        A('v_lshlrev_b32 v9, 3, v9')
        A(f'v_add_u32 v11, {ST4}, v9')
        A('s_lshl_b32 s30, s20, 8')
        A('v_add_u32 v10, s30, v11')
        A('v_lshl_add_u32 v9, v2, 9, v9')
        A('s_lshl_b32 s30, s18, 13')
        A('s_lshl_b32 s31, s20, 10')
        A('s_add_u32 s30, s30, s31')
        A(f's_add_u32 s30, s30, {resbase}')
        A('v_add_u32 v9, s30, v9')
        A('v_add_u32 v12, s48, v3')
        A('s_lshl_b32 s30, s25, 10')
        A(f's_add_u32 s30, s30, {KVR4}')
        A('v_add_u32 v13, s30, v3')
        A('v_bfe_u32 v15, v1, 4, 1')
        A('v_lshlrev_b32 v15, 9, v15')
        A('v_bfe_u32 v4, v1, 2, 1')
        A('v_lshl_add_u32 v15, v4, 8, v15')
        A('v_and_b32 v4, 3, v1')
        A('v_lshl_add_u32 v15, v4, 1, v15')
        A('v_bfe_u32 v4, v1, 3, 1')
        A('v_lshl_add_u32 v15, v4, 3, v15')
        A('v_lshl_add_u32 v15, v2, 6, v15')
    elif resbase is None:
        A('v_and_b32 v2, 31, v1')
        A('v_lshlrev_b32 v2, 10, v2')
        A('v_lshrrev_b32 v4, 5, v1')
        A('v_lshl_add_u32 v2, v4, 3, v2')
        A('s_lshl_b32 s30, s18, 15')
        A('s_and_b32 s31, s19, 0x7fff')
        A('s_lshr_b32 s31, s31, 5')
        A('s_add_u32 s30, s30, s31')
        C.vmem(f'buffer_load_dwordx2 {v(EX, 2)}, v2, s[12:15], s30 offen', 'ex')
        C.vmem(f'buffer_load_dwordx2 {v(EX + 2, 2)}, v2, s[12:15], s30 offen offset:16', 'ex')
    else:
        A(f's_add_u32 s31, s19, {resbase}')
        C.vmem(f'buffer_load_dwordx4 {v(EX, 4)}, v3, s[8:11], s31 offen', 'ex')


def ln_stats(A, T):
    for stp in (8, 4, 2):
        for e in range(stp):
            A(f'v_add_f32 {v(T + e)}, {v(T + e)}, {v(T + e + stp)}')
    A(f'v_mul_f32 {v(T)}, {f32(1.0 / 512)}, {v(T)}')
    A(f'v_mul_f32 {v(T + 1)}, {f32(1.0 / 512)}, {v(T + 1)}')
    A(f'v_fma_f32 {v(T + 1)}, -{v(T)}, {v(T)}, {v(T + 1)}')
    A(f'v_max_f32 {v(T + 1)}, 0, {v(T + 1)}')
    A(f'v_add_f32 {v(T + 1)}, {f32(1e-5)}, {v(T + 1)}')
    A(f'v_rsq_f32 {v(T + 1)}, {v(T + 1)}')


def g4_main(C, mode, outbase=None, sxout=None, kvf=None, kfl=None, hook_red=None, raw=None, endlab=None):
    A = C.A
    ACC, XR, EX = 16, 32, 96
    KW, KA, KR, T = 192, 208, 224, 108
    if not raw:
        A('s_mov_b32 m0, s48')
        A('s_nop 0')
        for k in range(4):
            C.vmem(f'buffer_load_dwordx4 v5, s[8:11], 0 offen offset:{k * 1024} lds', f'x{k}')

    def rd(i):
        A(f'ds_read_b128 {v(XR + 4 * (i % 8), 4)}, v6 offset:{G4_ORD[i] * 1024}')

    def mf(i):
        c = '0' if i == 0 else v(ACC, 16)
        A(f'v_mfma_f32_32x32x16_bf16 {v(ACC, 16)}, {v(g4_wreg(mode, i), 4)}, {v(XR + 4 * (i % 8), 4)}, {c}')

    def wq_loads():
        for i in range(16):
            so, im = soff(G4_ORD[i])
            A(f'buffer_load_dwordx4 {v(128 + 4 * i, 4)}, v64, s[8:11], {so} offen offset:{im}')

    if mode == 'qkv':
        A('s_add_u32 s35, s3, s26')
        if raw:
            raw['front']()
        else:
            for e in range(2):
                C.vmem(f'buffer_load_dwordx2 {v(T + 2 * e, 2)}, v9, s[8:11], 0 offen offset:{e * 256}', 'sx')
            l1, l2 = C.lab('w1'), C.lab('w2')
            A('s_cmp_eq_u32 s3, 0')
            A(f's_cbranch_scc1 {l1}')
            flag_b(C)
            wq_loads()
            A('s_waitcnt vmcnt(16)')
            A(f's_branch {l2}')
            A.label(l1)
            A('s_waitcnt vmcnt(0)')
            A.label(l2)
            C.vm = []
            C.stamp()
        lk = C.lab('k4')
        A('s_cmp_lg_u32 s3, 0')
        A(f's_cbranch_scc1 {lk}')
        if raw:
            raw['kvw']()
        else:
            for k in range(4):
                A(f'ds_read_b128 {v(KR + 4 * k, 4)}, v12 offset:{k * 1024}')
        for k in range(4):
            if not raw:
                A(f's_waitcnt lgkmcnt({3 - k})')
            A(f'v_mfma_f32_32x32x16_bf16 {v(KA, 16)}, {v(KW + 4 * k, 4)}, {v(KR + 4 * k, 4)}, {"0" if k == 0 else v(KA, 16)}')
        A.label(lk)
        A(f'v_add_f32 {v(T)}, {v(T)}, {v(T + 2)}')
        A(f'v_add_f32 {v(T + 1)}, {v(T + 1)}, {v(T + 3)}')
        A(f'v_mov_b32 {v(T + 2)}, {v(T)}')
        A(f'v_mov_b32 {v(T + 3)}, {v(T + 1)}')
        A('s_nop 1')
        swap_add(A, T, T + 2)
        swap_add(A, T + 1, T + 3)
        A(f'ds_write_b64 v10, {v(T, 2)}')
        A(f'v_mov_b32 {v(T + 2)}, 0')
        A(f'v_mov_b32 v9, {ST4 + 8192}')
        A(f'ds_write_b32 v9, {v(T + 2)}')
        lk = C.lab('k5')
        A('s_cmp_lg_u32 s3, 0')
        A(f's_cbranch_scc1 {lk}')
        for k in range(4):
            A(f'ds_write_b128 v14, {v(KA + 4 * k, 4)} offset:{k * 1024}')
        A.label(lk)
        A('s_waitcnt lgkmcnt(0)')
        A('s_barrier')
        for ww in range(8):
            A(f'ds_read_b64 {v(T + 2 * ww, 2)}, v11 offset:{ww * 256}')
        lv, le, lf = C.lab('v6'), C.lab('e6'), C.lab('f6')
        A('s_cmp_lg_u32 s35, 0')
        A(f's_cbranch_scc1 {le}')
        A('s_setprio 3')
        if FINE == 3:
            C.stamp()
        A('s_waitcnt lgkmcnt(4)')
        for ww in range(8):
            A(f'ds_read_b128 {v(KR + 4 * ww, 4)}, v13 offset:{ww * 4096}')
        A('s_waitcnt lgkmcnt(8)')
        for r in range(16):
            A(f'v_mov_b32 {v(KA + r)}, {v(T + r)}')
        ln_stats(A, KA)
        A('s_lshl_b32 s30, s18, 11')
        A(f's_add_u32 s30, s30, {kvf}')
        A('s_waitcnt lgkmcnt(0)')
        if raw:
            raw['kvcs0']()
        for stp in (16, 8, 4):
            for r in range(stp):
                A(f'v_add_f32 {v(KR + r)}, {v(KR + r)}, {v(KR + stp + r)}')
        if raw:
            raw['kvcs1']()
        for r in range(4):
            A(f'v_fma_f32 {v(KR + r)}, -{v(KA)}, {v(EX + 8 + r)}, {v(KR + r)}')
        for r in range(4):
            A(f'v_mul_f32 {v(KR + r)}, {v(KA + 1)}, {v(KR + r)}')
        for m in range(2):
            A(f'v_cvt_pk_bf16_f32 {v(KR + 8 + m)}, {v(KR + 2 * m)}, {v(KR + 2 * m + 1)}')
        A('s_cmp_ge_u32 s20, 2')
        A(f's_cbranch_scc1 {lv}')
        A('s_lshl_b32 s31, s20, 3')
        A('s_add_u32 s31, s31, s30')
        A(f'buffer_store_dwordx2 {v(KR + 8, 2)}, v3, s[8:11], s31 offen sc0 sc1')
        A(f's_branch {lf}')
        A.label(lv)
        A('s_lshl_b32 s31, s29, 10')
        A(f's_add_u32 s31, s31, {ST4 + 4096}')
        A('v_add_u32 v15, s31, v15')
        for r in range(4):
            op = 'ds_write_b16' if r % 2 == 0 else 'ds_write_b16_d16_hi'
            A(f'{op} v15, {v(KR + 8 + r // 2)} offset:{r * 16}')
        A('v_lshrrev_b32 v2, 3, v1')
        A('v_lshlrev_b32 v2, 8, v2')
        A(f'v_and_b32 {v(KR)}, 7, v1')
        A(f'v_lshl_add_u32 v2, {v(KR)}, 4, v2')
        A('v_add_u32 v15, s31, v2')
        A('s_mov_b32 exec_hi, 0')
        A(f'ds_read_b128 {v(KR + 12, 4)}, v15')
        A('s_lshl_b32 s31, s29, 7')
        A('s_add_u32 s31, s31, s30')
        A('s_waitcnt lgkmcnt(0)')
        A(f'buffer_store_dwordx4 {v(KR + 12, 4)}, v2, s[8:11], s31 offen offset:1024 sc0 sc1')
        A('s_mov_b64 exec, -1')
        A.label(lf)
        lg = C.lab('g6')
        if FINE == 3:
            C.stamp()
        A('s_lshl_b32 s30, s18, 7')
        A(f's_add_u32 s30, s30, {kfl}')
        if raw:
            raw['zchk']()
        A('s_mov_b64 exec, 1')
        A('s_waitcnt vmcnt(0)')
        A('ds_add_rtn_u32 v2, v9, v4')
        A('s_waitcnt lgkmcnt(0)')
        A('v_cmp_eq_u32 vcc, 3, v2')
        A('s_cbranch_vccz ' + lg)
        A('buffer_store_dword v4, v0, s[8:11], s30 offen sc0 sc1')
        A.label(lg)
        A('s_mov_b64 exec, -1')
        A('s_setprio 0')
        if FINE == 3:
            C.stamp()
        A.label(le)
        flag_b(C)
        A('s_waitcnt lgkmcnt(0)')
        if raw:
            raw['wprep']()
        else:
            l3 = C.lab('w3')
            A('s_cmp_lg_u32 s3, 0')
            A(f's_cbranch_scc1 {l3}')
            C.flagb = True
            flag_b(C)
            wq_loads()
            A.label(l3)
        if raw:
            raw['loop'](rd, mf)
        else:
            for i in range(8):
                rd(i)
            ln_stats(A, T)
            for i in range(16):
                A(f's_waitcnt lgkmcnt({7 if i < 8 else 15 - i}) vmcnt({15 - i})')
                mf(i)
                if i < 8:
                    rd(i + 8)
    else:
        def wl(i):
            so, im = soff(G4_ORD[i])
            C.vmem(f'buffer_load_dwordx4 {v(g4_wreg(mode, i), 4)}, v116, s[8:11], {so} offen offset:{im}', f'w{i}')
        if WO_LATE:
            for i in range(8, 8 + WO_L0):
                wl(i)
        C.wait('x1')
        A('s_barrier')
        C.stamp()
        for i in range(8):
            rd(i)
        if WO_LATE:
            for i in range(8 + WO_L0, 16):
                wl(i)
        for i in range(4):
            A(f's_waitcnt lgkmcnt({7 - i})')
            mf(i)
        C.wait('x3')
        A('s_barrier')
        for i in range(8, 12):
            rd(i)
        for i in range(4, 8):
            A('s_waitcnt lgkmcnt(7)')
            mf(i)
            rd(i + 8)
        flag_b(C)
        for i in range(8, 16):
            C.wait(f'w{i}', f'lgkmcnt({15 - i})')
            mf(i)
            if hook_red and i >= 8:
                hook_red(i - 8)
    C.stamp()
    if mode == 'qkv':
        kv_setup(C, kvf, kfl)
        A(f'v_mul_f32 {v(T + 2)}, {f32(QSCALE)}, {v(T + 1)}')
        if raw:
            raw['cs0']()
    else:
        C.wait('ex')
        TT = XR
        for m in range(4):
            A(f'v_lshlrev_b32 {v(TT + 2 * m)}, 16, {v(EX + m)}')
            A(f'v_and_b32 {v(TT + 2 * m + 1)}, 0xffff0000, {v(EX + m)}')
        A('s_nop 3')
    for h2 in range(2):
        A(f'ds_write_b128 v7, {v(ACC + 8 + 4 * h2, 4)} offset:{h2 * 1024}')
    if mode == 'qkv':
        if not raw:
            for r in range(8):
                A(f'v_fma_f32 {v(ACC + r)}, -{v(T)}, {v(EX + r)}, {v(ACC + r)}')
    else:
        for r in range(8):
            A(f'v_add_f32 {v(ACC + r)}, {v(ACC + r)}, {v(XR + r)}')
    A('s_waitcnt lgkmcnt(0)')
    A('s_barrier')
    for h2 in range(2):
        A(f'ds_read_b128 {v(ACC + 8 + 4 * h2, 4)}, v8 offset:{h2 * 1024}')
    if mode == 'qkv':
        if FINE == 3:
            C.stamp()
        kv_wait(C, 1, endlab)
        if FINE == 3:
            C.stamp()
        att_kvdma(C, 0)
        kv_flagload(C)
    if raw:
        raw['cs']()
        for r in range(8):
            A(f'v_fma_f32 {v(ACC + r)}, -{v(T)}, {v(EX + r)}, {v(ACC + r)}')
    A('s_waitcnt lgkmcnt(0)')
    for r in range(8):
        A(f'v_add_f32 {v(ACC + r)}, {v(ACC + r)}, {v(ACC + 8 + r)}')
    if mode == 'qkv':
        for r in range(8):
            A(f'v_mul_f32 {v(ACC + r)}, {v(T + 2)}, {v(ACC + r)}')
        for m in range(4):
            A(f'v_cvt_pk_bf16_f32 {v(124 + m)}, {v(ACC + 2 * m)}, {v(ACC + 2 * m + 1)}')
        A('s_barrier')
    else:
        P = ACC + 8
        for m in range(4):
            A(f'v_cvt_pk_bf16_f32 {v(P + m)}, {v(ACC + 2 * m)}, {v(ACC + 2 * m + 1)}')
        A(f's_add_u32 s31, s19, {outbase}')
        C.vmem(f'buffer_store_dwordx4 {v(P, 4)}, v3, s[8:11], s31 offen{WT}', 'st')
        blk_stats(C, P, XR)
        A('s_lshr_b32 s31, s19, 2')
        A(f's_add_u32 s31, s31, {sxout}')
        A('v_lshlrev_b32 v4, 3, v1')
        A('s_mov_b32 exec_hi, 0')
        C.vmem(f'buffer_store_dwordx2 {v(XR, 2)}, v4, s[8:11], s31 offen{WT}', 'st')
        A('s_mov_b64 exec, -1')


def qkv4_wstep(C, st, n):
    pass


def qkv4_wrest(C):
    A = C.A
    l = C.lab('kw')
    A('s_lshl_b32 s30, s20, 12')
    A(f's_add_u32 s30, s30, {WQKVP + 16 * 32 * KB}')
    A('s_cmp_lg_u32 s3, 0')
    A(f's_cbranch_scc1 {l}')
    for k in range(4):
        A(f'buffer_load_dwordx4 {v(192 + 4 * k, 4)}, v3, s[8:11], s30 offen offset:{k * 1024}')
    A.label(l)


def att_kvdma(C, r):
    A = C.A
    A(f's_add_u32 s30, s39, {r * 16384}')
    A('s_and_b32 s30, s30, 0x1ffff')
    A(f's_add_u32 m0, s37, {r * 8 * KVT}')
    A('s_add_u32 s30, s30, s38')
    A('buffer_load_dwordx4 v3, s[8:11], s30 offen lds')
    A('buffer_load_dwordx4 v3, s[8:11], s30 offen offset:1024 lds')


def kv_flagload(C):
    A = C.A
    A('s_mov_b64 exec, 0xff')
    A('buffer_load_dword v2, v0, s[8:11], s33 offen sc1')
    A('s_mov_b64 exec, -1')


def kv_setup(C, kvf, kfl):
    A = C.A
    A(f's_mul_i32 s37, s20, {KVT}')
    A('s_lshl_b32 s38, s20, 11')
    A(f's_add_u32 s38, s38, {kvf}')
    A('s_lshr_b32 s30, s21, 1')
    A('s_lshl_b32 s39, s30, 14')
    A('v_add_u32 v0, s30, v1')
    A('v_and_b32 v0, 7, v0')
    A('v_lshlrev_b32 v0, 10, v0')
    A('s_lshl_b32 s33, s20, 7')
    A(f's_add_u32 s33, s33, {kfl}')
    kv_flagload(C)


def kv_wait(C, mask, endlab):
    A = C.A
    lp, lpd = C.lab('kp'), C.lab('kpd')
    A('s_mov_b32 s31, 0')
    A('s_mov_b64 exec, 0xff')
    A.label(lp)
    A('s_add_u32 s31, s31, 1')
    A('s_waitcnt vmcnt(0)')
    A('v_cmp_ne_u32 vcc, 0, v2')
    A(f's_and_b32 s30, vcc_lo, {mask}')
    A(f's_cmp_eq_u32 s30, {mask}')
    A(f's_cbranch_scc1 {lpd}')
    A(f's_sleep {KV_SLEEP}')
    A('buffer_load_dword v2, v0, s[8:11], s33 offen sc1')
    A(f's_cmp_lt_u32 s31, {1 << 21}')
    A(f's_cbranch_scc1 {lp}')
    A(f's_branch {endlab}')
    A.label(lpd)
    A('s_mov_b64 exec, -1')


def att_phase(C, kvf, kfl, endlab, stubs, fixed={}, pf0=None, pre_hook=None, loadq=True, early=False):
    A = C.A
    tg = C.tag
    Q, CN, S0, S1, O, P, KF, VF, VK, VV, T = 124, 8, 24, 40, 56, 72, 80, 88, 104, 105, 106
    VV1 = 111
    S = [S0, S1]
    A(f's_add_u32 s36, s19, {C.B["OF"]}')
    if loadq:
        A(f's_add_u32 s31, s19, {C.B["QF"]}')
        C.vmem(f'buffer_load_dwordx4 {v(Q, 4)}, v3, s[8:11], s31 offen', 'q')
        flag_b(C)
    def kvdma(r):
        att_kvdma(C, r)
    if pre_hook:
        pre_hook()
    A(f'v_mov_b32 {v(VK)}, v3')
    A(f'v_and_b32 {v(T)}, 15, v1')
    A(f'v_lshrrev_b32 {v(T + 1)}, 5, v1')
    A(f'v_lshl_add_u32 {v(T)}, {v(T + 1)}, 4, {v(T)}')
    A(f'v_lshlrev_b32 {v(T)}, 4, {v(T)}')
    A(f'v_add_u32 {v(VV)}, 1024, {v(T)}')
    A(f'v_add_u32 {v(VV1)}, 1536, {v(T)}')
    A(f'v_and_b32 {v(T + 1)}, 31, v1')
    A(f'v_cmp_eq_u32 vcc, 16, {v(T + 1)}')
    A(f'v_mov_b32 {v(T + 2)}, 2048')
    A('s_nop 0')
    A(f'v_cndmask_b32 {v(VV)}, {v(VV)}, {v(T + 2)}, vcc')
    A(f'v_cndmask_b32 {v(VV1)}, {v(VV1)}, {v(T + 2)}, vcc')
    A(f'v_cmp_lt_u32 vcc, 16, {v(T + 1)}')
    A(f'v_mov_b32 {v(T + 2)}, 2064')
    A('s_nop 0')
    A(f'v_cndmask_b32 {v(VV)}, {v(VV)}, {v(T + 2)}, vcc')
    A(f'v_cndmask_b32 {v(VV1)}, {v(VV1)}, {v(T + 2)}, vcc')
    for r in range(16):
        A(f'v_mov_b32 {v(O + r)}, 0')
    for m in range(4, 8):
        A(f'v_mov_b32 {v(P + m)}, 0')
    for m in range(4):
        A(f'v_mov_b32 {v(VF + 12 + m)}, 0')
        A(f'v_mov_b32 {v(P + m)}, 0x3f803f80')
    A(f'v_mul_u32_u24 {v(T)}, {KVT}, v1')
    lcw = C.lab('cw')
    A('s_cmp_lg_u32 s20, 7')
    A(f's_cbranch_scc1 {lcw}')
    A(f'ds_write_b128 {v(T)}, {v(P, 4)} offset:2048')
    A(f'ds_write_b128 {v(T)}, {v(P + 4, 4)} offset:2064')
    A.label(lcw)
    lnd = C.lab('nd')
    A('s_waitcnt vmcnt(0) lgkmcnt(0)')
    A('v_cmp_ne_u32 vcc, 0, v2')
    A('s_barrier')
    A('s_and_b32 s32, vcc_lo, 0xff')
    A('s_cmp_lg_u32 s32, 0xff')
    A(f's_cbranch_scc1 {lnd}')
    for r in range(1, 4):
        kvdma(r)
    A.label(lnd)
    C.vm = []
    C.stamp()

    def rdK(buf, t):
        A(f'ds_read_b128 {v(KF + buf * 4, 4)}, {v(VK)} offset:{t * KVT}')

    def rdV(buf, t):
        A(f'ds_read_b128 {v(VF + buf * 8, 4)}, {v(VV)} offset:{t * KVT}')
        A(f'ds_read_b128 {v(VF + buf * 8 + 4, 4)}, {v(VV1)} offset:{t * KVT}')

    rdK(0, 0)
    rdK(1, 1)
    rdV(0, 0)
    A('s_waitcnt lgkmcnt(3)')
    A(f'v_mfma_f32_32x32x16_bf16 {v(S0, 16)}, {v(KF, 4)}, {v(Q, 4)}, 0')
    A('s_nop 11')
    A(f'v_max3_f32 {v(T)}, {v(S0)}, {v(S0 + 1)}, {v(S0 + 2)}')
    for r in range(3, 15, 2):
        A(f'v_max3_f32 {v(T)}, {v(T)}, {v(S0 + r)}, {v(S0 + r + 1)}')
    A(f'v_max_f32 {v(T)}, {v(T)}, {v(S0 + 15)}')
    A(f'v_mov_b32 {v(T + 1)}, {v(T)}')
    A('s_nop 1')
    A(f'v_permlane32_swap_b32 {v(T)}, {v(T + 1)}')
    A(f'v_max_f32 {v(T)}, {v(T)}, {v(T + 1)}')
    for r in range(16):
        A(f'v_sub_f32 {v(CN + r)}, 0, {v(T)}')
    for r in range(16):
        A(f'v_sub_f32 {v(S0 + r)}, {v(S0 + r)}, {v(T)}')
    A('s_setprio 3')
    C.stamp()
    UN = ATT_UN
    NIT = 64 // UN
    queue = list(stubs)
    assert UN == 4
    first_pf = ATT_B2
    pf0 = pf0 or first_pf
    per = -(-len(queue) // (NIT - pf0 - ATT_PFEND))
    prio = {int(NIT * 0.5): 2, int(NIT * 0.78): 1, NIT - 1: 0}
    for it in range(NIT):
        if it == 1:
            ld = C.lab('dn')
            A('s_cmp_eq_u32 s32, 0xff')
            A(f's_cbranch_scc1 {ld}')
            kv_flagload(C)
            kv_wait(C, 0xff, endlab)
            for r in range(1, 4):
                kvdma(r)
            A.label(ld)
            for r in range(4, 8):
                kvdma(r)
            A('s_waitcnt vmcnt(12)')
            A('s_barrier')
        if it == first_pf:
            A('s_waitcnt vmcnt(0)')
            A('s_barrier')
        if it in prio:
            A(f's_setprio {prio[it]}')
        if it in fixed:
            if FINE == 2:
                C.stamp()
            fixed[it]()
            if FINE == 2:
                C.stamp()
        if it >= pf0:
            for _ in range(per):
                if queue:
                    queue.pop(0)()
        A('s_call_b64 s[34:35], att_body')
    assert not queue
    A(f'v_mfma_f32_32x32x16_bf16 {v(O, 16)}, {v(VF + 8 + 4, 4)}, {v(P + 4, 4)}, {v(O, 16)}')
    A('s_mov_b32 s39, 0')
    C.stamp()
    A('s_waitcnt lgkmcnt(0)')
    A('s_nop 10')
    A.label(f'{tg}_fin')
    A(f'v_mov_b32 {v(T)}, {v(O + 8)}')
    A(f'v_mov_b32 {v(T + 1)}, {v(O + 8)}')
    A(f'v_mul_f32 {v(T + 2)}, 0, {v(O)}')
    A(f'v_fma_f32 {v(T + 2)}, {v(O + 1)}, 0, {v(T + 2)}')
    A(f'v_permlane32_swap_b32 {v(T)}, {v(T + 1)}')
    for r in range(2, 8):
        A(f'v_fma_f32 {v(T + 2)}, {v(O + r)}, 0, {v(T + 2)}')
    A(f'v_add_f32 {v(T + 2)}, {v(T + 2)}, {v(T)}')
    A(f'v_mov_b32 {v(T + 3)}, {f32(2.0 ** 30)}')
    A(f'v_cmp_nle_f32 vcc, {v(T + 2)}, {v(T + 3)}')
    A(f'v_rcp_f32 {v(T)}, {v(T)}')
    A('s_cmp_eq_u32 s39, 99')
    A(f's_cbranch_scc1 {tg}_store')
    A(f's_cbranch_vccnz {tg}_slow')
    A.label(f'{tg}_store')
    for r in range(8):
        A(f'v_mul_f32 {v(O + r)}, {v(T)}, {v(O + r)}')
    for m in range(4):
        A(f'v_cvt_pk_bf16_f32 {v(P + m)}, {v(O + 2 * m)}, {v(O + 2 * m + 1)}')
    C.vmem(f'buffer_store_dwordx4 {v(P, 4)}, v3, s[8:11], s36 offen{WT}', 'st')

    def tail(with_body):
        if with_body:
            A.raw('.p2align 6')
            A.label('att_body')
            for t in range(UN):
                cur, nxt = t & 1, (t + 1) & 1
                Sc, Sn = S[cur], S[nxt]
                A('s_waitcnt lgkmcnt(2)')
                A(f'v_mfma_f32_32x32x16_bf16 {v(Sn, 16)}, {v(KF + nxt * 4, 4)}, {v(Q, 4)}, {v(CN, 16)}')
                rdK(cur, t + 2)
                for r in range(6):
                    A(f'v_exp_f32 {v(Sc + r)}, {v(Sc + r)}')
                A(f'v_mfma_f32_32x32x16_bf16 {v(O, 16)}, {v(VF + nxt * 8 + 4, 4)}, {v(P + 4, 4)}, {v(O, 16)}')
                for r in range(6, 8):
                    A(f'v_exp_f32 {v(Sc + r)}, {v(Sc + r)}')
                for m in range(4):
                    A(f'v_cvt_pk_bf16_f32 {v(P + m)}, {v(Sc + 2 * m)}, {v(Sc + 2 * m + 1)}')
                A(f'v_exp_f32 {v(Sc + 8)}, {v(Sc + 8)}')
                A(f'v_exp_f32 {v(Sc + 9)}, {v(Sc + 9)}')
                A('s_waitcnt lgkmcnt(1)')
                A(f'v_mfma_f32_32x32x16_bf16 {v(O, 16)}, {v(VF + cur * 8, 4)}, {v(P, 4)}, {v(O, 16)}')
                rdV(nxt, t + 1)
                for r in range(10, 16):
                    A(f'v_exp_f32 {v(Sc + r)}, {v(Sc + r)}')
                for m in range(4, 8):
                    A(f'v_cvt_pk_bf16_f32 {v(P + m)}, {v(Sc + 2 * m)}, {v(Sc + 2 * m + 1)}')
            if EXPT:
                n0 = max(i for i, l in enumerate(A.lines) if l.startswith('att_body'))
                body = A.lines[n0:]
                if EXPT == 1:
                    body = [l for l in body if not ('mfma' in l and v(P + 4, 4) in l)]
                if EXPT == 2:
                    body = [l if not ('mfma' in l and v(P + 4, 4) in l) else f'    v_mfma_f32_16x16x32_bf16 v[120:123], {v(VF + 4, 4)}, {v(P + 4, 4)}, v[120:123]' for l in body]
                if EXPT == 3:
                    body = [l.replace('lgkmcnt(2)', 'lgkmcnt(1)') for l in body if not ('ds_read' in l and v(VV1) in l)]
                if EXPT == 4:
                    body = [l if not ('mfma' in l and v(P + 4, 4) in l) else f'    v_mfma_f32_16x16x32_bf16 v[120:123], {v(VF + 4, 4)}, {v(P + 4, 4)}, v[120:123]' for l in body]
                    body = [l.replace('lgkmcnt(2)', 'lgkmcnt(1)') for l in body if not ('ds_read' in l and v(VV1) in l)]
                if EXPT == 5:
                    body = ['att_body:']
                    def E(x): body.append('    ' + x)
                    for t in range(UN):
                        cur, nxt = t & 1, (t + 1) & 1
                        Sc, Sn = S[cur], S[nxt]
                        def cv(m): E(f'v_cvt_pkrtz_f16_f32 {v(Sc + 2 * m)}, {v(Sc + 2 * m)}, {v(Sc + 2 * m + 1)}')
                        def ex(m, h): E(f'v_exp_f16_sdwa {v(P + m)}, {v(Sc + 2 * m)} dst_sel:WORD_{h} dst_unused:UNUSED_PRESERVE src0_sel:WORD_{h}')
                        E('s_waitcnt lgkmcnt(2)')
                        E(f'v_mfma_f32_32x32x16_bf16 {v(Sn, 16)}, {v(KF + nxt * 4, 4)}, {v(Q, 4)}, {v(CN, 16)}')
                        E(f'ds_read_b128 {v(KF + cur * 4, 4)}, {v(VK)} offset:{(t + 2) * KVT}')
                        for m in range(4): cv(m)
                        for m in range(4): ex(m, 0)
                        E(f'v_mfma_f32_32x32x16_f16 {v(O, 16)}, {v(VF + nxt * 8 + 4, 4)}, {v(P + 4, 4)}, {v(O, 16)}')
                        for m in range(4): ex(m, 1)
                        for m in range(4, 8): cv(m)
                        E('s_waitcnt lgkmcnt(1)')
                        E(f'v_mfma_f32_32x32x16_f16 {v(O, 16)}, {v(VF + cur * 8, 4)}, {v(P, 4)}, {v(O, 16)}')
                        E(f'ds_read_b128 {v(VF + nxt * 8, 4)}, {v(VV)} offset:{(t + 1) * KVT}')
                        E(f'ds_read_b128 {v(VF + nxt * 8 + 4, 4)}, {v(VV1)} offset:{(t + 1) * KVT}')
                        for m in range(4, 8): ex(m, 0)
                        for m in range(4, 8): ex(m, 1)
                A.lines[n0:] = body
            A(f'v_add_u32 {v(VK)}, {UN * KVT}, {v(VK)}')
            A(f'v_add_u32 {v(VV)}, {UN * KVT}, {v(VV)}')
            A(f'v_add_u32 {v(VV1)}, {UN * KVT}, {v(VV1)}')
            A('s_setpc_b64 s[34:35]')
        A.label(f'{tg}_slow')
        A(f'v_subrev_u32 {v(VK)}, {64 * KVT}, {v(VK)}')
        A(f'v_subrev_u32 {v(VV)}, {64 * KVT}, {v(VV)}')
        A(f'v_subrev_u32 {v(VV1)}, {64 * KVT}, {v(VV1)}')
        for r in range(16):
            A(f'v_mov_b32 {v(O + r)}, 0')
        M = T + 4
        A(f'v_sub_f32 {v(M)}, 0, {v(CN)}')
        A.label(f'{tg}_sloop')
        rdK(0, 0)
        rdV(0, 0)
        A('s_waitcnt lgkmcnt(0)')
        A(f'v_mfma_f32_32x32x16_bf16 {v(S0, 16)}, {v(KF, 4)}, {v(Q, 4)}, 0')
        A('s_nop 11')
        A(f'v_max3_f32 {v(T)}, {v(S0)}, {v(S0 + 1)}, {v(S0 + 2)}')
        for r in range(3, 15, 2):
            A(f'v_max3_f32 {v(T)}, {v(T)}, {v(S0 + r)}, {v(S0 + r + 1)}')
        A(f'v_max3_f32 {v(T)}, {v(T)}, {v(S0 + 15)}, {v(M)}')
        A(f'v_mov_b32 {v(T + 1)}, {v(T)}')
        A('s_nop 1')
        A(f'v_permlane32_swap_b32 {v(T)}, {v(T + 1)}')
        A(f'v_max_f32 {v(T)}, {v(T)}, {v(T + 1)}')
        A(f'v_sub_f32 {v(T + 1)}, {v(M)}, {v(T)}')
        A(f'v_exp_f32 {v(T + 1)}, {v(T + 1)}')
        A(f'v_mov_b32 {v(M)}, {v(T)}')
        for r in range(16):
            A(f'v_sub_f32 {v(S0 + r)}, {v(S0 + r)}, {v(T)}')
        for r in range(16):
            A(f'v_exp_f32 {v(S0 + r)}, {v(S0 + r)}')
        for r in range(16):
            A(f'v_mul_f32 {v(O + r)}, {v(T + 1)}, {v(O + r)}')
        for m in range(8):
            A(f'v_cvt_pk_bf16_f32 {v(P + m)}, {v(S0 + 2 * m)}, {v(S0 + 2 * m + 1)}')
        A('s_nop 1')
        A(f'v_mfma_f32_32x32x16_bf16 {v(O, 16)}, {v(VF, 4)}, {v(P, 4)}, {v(O, 16)}')
        A(f'v_mfma_f32_32x32x16_bf16 {v(O, 16)}, {v(VF + 4, 4)}, {v(P + 4, 4)}, {v(O, 16)}')
        A(f'v_add_u32 {v(VK)}, {KVT}, {v(VK)}')
        A(f'v_add_u32 {v(VV)}, {KVT}, {v(VV)}')
        A(f'v_add_u32 {v(VV1)}, {KVT}, {v(VV1)}')
        A('s_nop 11')
        A('s_add_u32 s39, s39, 1')
        A('s_cmp_lt_u32 s39, 64')
        A(f's_cbranch_scc1 {tg}_sloop')
        A('s_mov_b32 s39, 99')
        A(f's_branch {tg}_fin')
    return tail


V_WGU = 112


def gu_waddr(C):
    A = C.A
    A('s_mul_i32 s30, s22, 7')
    A('s_min_u32 s31, s20, 6')
    A('s_add_u32 s40, s30, s31')
    A('s_lshl_b32 s30, s40, 15')
    A(f's_add_u32 s30, s30, {WGUP}')
    A(f'v_add_u32 {v(V_WGU)}, s30, v3')


def gu_wload(C, ks):
    so, im = soff(ks)
    C.vmem(f'buffer_load_dwordx4 {v(128 + 4 * ks, 4)}, {v(V_WGU)}, s[8:11], {so} offen offset:{im}', 'wg')


def gu_pre(C):
    A = C.A
    CS = 112
    A('v_mov_b32 v15, v113')
    A('v_mov_b32 v9, v114')
    A(f'v_mov_b32 v14, {v(V_WGU)}')
    A('s_lshl_b32 s30, s21, 2')
    A('s_add_u32 s30, s30, s25')
    A('s_lshl_b32 s30, s30, 15')
    A('s_lshl_b32 s31, s26, 11')
    A('s_add_u32 s30, s30, s31')
    A(f's_add_u32 s30, s30, {C.B["XB"]}')
    A('v_add_u32 v13, s30, v3')
    A('s_lshl_b32 s48, s25, 15')
    A('s_add_u32 s48, s48, s31')
    A('v_add_u32 v7, 0x10000, v3')
    A('v_lshrrev_b32 v11, 5, v1')
    A('v_lshlrev_b32 v11, 4, v11')
    A('s_min_u32 s30, s20, 6')
    A('s_lshl_b32 s30, s30, 7')
    A(f's_add_u32 s30, s30, {132 * KB}')
    A('v_add_u32 v10, s30, v11')
    A('v_and_b32 v12, 31, v1')
    A('v_lshlrev_b32 v12, 3, v12')
    A('v_lshl_add_u32 v12, v11, 8, v12')
    A('s_lshl_b32 s30, s21, 15')
    A(f's_add_u32 s30, s30, {C.B["SXB"]}')
    A('v_add_u32 v12, s30, v12')
    A(f'v_add_u32 v8, {128 * KB}, v3')


def gu_main(C, after_store=None):
    A = C.A
    ACC, XF, CS = 16, 80, 112
    STR = [4, 10, 240, 244]

    def dma(c):
        A(f's_add_u32 m0, s48, {c * 4096}')
        so = '0' if c == 0 else s(40 + c)
        A('s_nop 0')
        for k in range(2):
            C.vmem(f'buffer_load_dwordx4 v13, s[8:11], {so} offen offset:{k * 1024} lds', f'x{c}')
    dma(0)
    dma(1)

    def rd(ks):
        buf = ks & 1
        for i in range(4):
            base = 'v3' if i < 2 else 'v7'
            A(f'ds_read_b128 {v(XF + buf * 16 + i * 4, 4)}, {base} offset:{(i & 1) * 32768 + ks * 1024}')

    def stats_load(i):
        for e in range(16):
            C.vmem(f'buffer_load_dwordx2 {v(ACC + (i & 1) * 32 + 2 * e, 2)}, v12, s[8:11], {"0" if i == 0 else s(40 + 2 * i)} offen offset:{e * 256}', f's{i}')

    def stats_sum(i):
        b = ACC + (i & 1) * 32
        C.wait(f's{i}')
        for stp in (16, 8, 4, 2):
            for e in range(stp):
                A(f'v_add_f32 {v(b + e)}, {v(b + e)}, {v(b + e + stp)}')
        A(f'v_mov_b32 {v(b + 2)}, {v(b)}')
        A(f'v_mov_b32 {v(b + 3)}, {v(b + 1)}')
        A('s_nop 1')
        A(f'v_permlane32_swap_b32 {v(b)}, {v(b + 2)}')
        A(f'v_permlane32_swap_b32 {v(b + 1)}, {v(b + 3)}')
        A(f'v_add_f32 {v(b)}, {v(b)}, {v(b + 2)}')
        A(f'v_add_f32 {v(b + 1)}, {v(b + 1)}, {v(b + 3)}')
        A(f'v_mul_f32 {v(b)}, {f32(-1.0 / 512)}, {v(b)}')
        A(f'v_mul_f32 {v(b + 1)}, {f32(1.0 / 512)}, {v(b + 1)}')
        A(f'v_fma_f32 {v(b + 1)}, -{v(b)}, {v(b)}, {v(b + 1)}')
        A(f'v_max_f32 {v(b + 1)}, 0, {v(b + 1)}')
        A(f'v_add_f32 {v(b + 1)}, {f32(1e-5)}, {v(b + 1)}')
        A(f'v_rcp_f32 {v(b + 2)}, {v(b + 1)}')
        A(f'v_mov_b32 {v(b + 1)}, {v(b)}')
        A(f'v_mov_b32 {v(b + 3)}, {v(b + 2)}')
        A(f'ds_write_b128 v8, {v(b, 4)} offset:{i * 1024}')
        A('s_waitcnt lgkmcnt(0)')

    def loop(idle):
        C.wait('x0')
        A('s_barrier')
        C.stamp()
        if not idle:
            rd(0)
        for ks in range(32):
            if ks + 1 < 32:
                if (ks + 1) in GU_BARS:
                    C.wait(f'x{GU_BARS[ks + 1]}')
                    A('s_barrier')
                if not idle:
                    rd(ks + 1)
                    if ks == 28:
                        for g in range(4):
                            A(f'ds_read_b128 {v(CS + g * 4, 4)}, v10 offset:{g * 32}')
                        A('s_waitcnt lgkmcnt(8)')
                    elif ks == 30:
                        for i in range(4):
                            A(f'ds_read_b128 {v(STR[i], 4)}, v8 offset:{i * 1024}')
                        A('s_waitcnt lgkmcnt(8)')
                    else:
                        A('s_waitcnt lgkmcnt(4)')
            elif not idle:
                A('s_waitcnt lgkmcnt(0)')
            buf = ks & 1
            todo = []
            if ks == 10:
                C.flagb = True
                flag_b(C)
            if ks < 6:
                todo.append(lambda: dma(ks + 2))
            if ks == 16 + WO_TAIL and not idle:
                C.wait('wg')
            if 6 <= ks < 6 + 16 - WO_TAIL and not idle:
                k2 = 16 + WO_TAIL + ks - 6
                so, im = soff(k2)
                todo.append(lambda k2=k2, so=so, im=im: C.vmem(f'buffer_load_dwordx4 {v(128 + 4 * k2, 4)}, v14, s[8:11], {so} offen offset:{im}', 'wg'))
            if ks >= GU_WD0:
                nleft = 28 - len(wdone)
                for st in [st for st in range(28) if st < ks and st not in wdone][:(2 if nleft > 31 - ks else 1)]:
                    todo.append(lambda st=st: g3_wload(C, (15, 9), st, 128))
                    wdone.add(st)
            for i in range(4):
                if not idle and not (GU_TAIL and (ks == 31 or (ks == 30 and i >= 2))):
                    c = '0' if ks == 0 else v(ACC + i * 16, 16)
                    if GU16:
                        for t2 in range(2):
                            aa = ACC + i * 16 + ((ks & 1) * 2 + t2) * 4
                            A(f'v_mfma_f32_16x16x32_bf16 {v(aa, 4)}, {v(128 + 4 * (ks ^ t2 if ks > 1 else ks), 4)}, {v(XF + buf * 16 + i * 4, 4)}, {"0" if ks < 2 else v(aa, 4)}')
                    else:
                        A(f'v_mfma_f32_32x32x16_bf16 {v(ACC + i * 16, 16)}, {v(128 + 4 * ks, 4)}, {v(XF + buf * 16 + i * 4, 4)}, {c}')
                if i < 3 and todo:
                    f_ = todo.pop(0)
                    if not (GU_NOW and ks >= 6):
                        f_()
            if idle:
                if ks == 6:
                    stats_load(0)
                    stats_load(1)
                if ks == 8:
                    stats_sum(0)
                    stats_load(2)
                    stats_sum(1)
                    stats_load(3)
                if ks == 12:
                    stats_sum(2)
                    stats_sum(3)
                    A(f's_mul_i32 s30, s22, {7 * 128}')
                    A(f's_add_u32 s30, s30, {CSP}')
                    for kp in range(8):
                        C.vmem(f'buffer_load_dwordx4 {v(ACC + 4 * kp, 4)}, v3, s[8:11], s30 offen', 'cp')
                        if kp < 7:
                            A(f's_add_u32 s30, s30, {3584 * 4}')
                if ks == 16:
                    C.wait('cp')
                    for stp in (16, 8, 4):
                        for e in range(stp):
                            A(f'v_add_f32 {v(ACC + e)}, {v(ACC + e)}, {v(ACC + e + stp)}')
                    A(f'v_add_u32 v10, {132 * KB}, v3')
                    A(f'ds_write_b128 v10, {v(ACC, 4)}')
                    A('s_waitcnt lgkmcnt(0)')
        assert len(wdone) == 28
        C.stamp()
        if idle:
            if after_store:
                after_store()
            return
        P = XF

        def epi(i):
            acc = ACC + i * 16
            for r in range(0, 16, 2):
                A(f'v_pk_fma_f32 {v(acc + r, 2)}, {v(STR[i], 2)}, {v(CS + r, 2)}, {v(acc + r, 2)}')
            for r in range(0, 8, 2):
                A(f'v_pk_mul_f32 {v(acc + r, 2)}, {v(acc + r, 2)}, {v(acc + 8 + r, 2)}')
            for r in range(0, 8, 2):
                A(f'v_pk_mul_f32 {v(acc + r, 2)}, {v(acc + r, 2)}, {v(STR[i] + 2, 2)}')
            pp = acc + 8
            for m in range(4):
                A(f'v_cvt_pk_bf16_f32 {v(pp + m)}, {v(acc + 2 * m)}, {v(acc + 2 * m + 1)}')
            C.vmem(f'buffer_store_dwordx4 {v(pp, 4)}, v3, s[8:11], s30 offen{WT}', 'st')
            if i < 3:
                A(f's_add_u32 s30, s30, {112 * KB}')

        def mm(i, ks):
            A(f'v_mfma_f32_32x32x16_bf16 {v(ACC + i * 16, 16)}, {v(128 + 4 * ks, 4)}, {v(XF + (ks & 1) * 16 + i * 4, 4)}, {v(ACC + i * 16, 16)}')
        A(f's_mul_i32 s30, s21, {4 * 112}')
        A('s_add_u32 s30, s30, s40')
        A('s_lshl_b32 s30, s30, 10')
        A(f's_add_u32 s30, s30, {C.B["HF"]}')
        if GU_TAIL:
            A('s_waitcnt lgkmcnt(0)')
            mm(0, 31)
            mm(2, 30)
            mm(1, 31)
            mm(3, 30)
            A('s_nop 8')
            epi(0)
            mm(2, 31)
            mm(3, 31)
            epi(1)
            epi(2)
            epi(3)
        else:
            A('s_nop 4')
            for i in range(4):
                epi(i)
        if after_store:
            after_store()

    ls, le = C.lab('gs'), C.lab('ge')
    A('s_cmp_eq_u32 s20, 7')
    A(f's_cbranch_scc1 {ls}')
    save, ns = list(C.vm), C.nstamp
    wdone = set()
    loop(False)
    A(f's_branch {le}')
    A.label(ls)
    C.vm, C.nstamp = list(save), ns
    wdone = set()
    loop(True)
    A.label(le)
    C.vm = ['st']


def swap_add(A, ra, rb):
    A(f'v_permlane32_swap_b32 {v(ra)}, {v(rb)}')
    A(f'v_add_f32 {v(ra)}, {v(ra)}, {v(rb)}')


def pre_part(C, end):
    A = C.A
    A('s_cmp_ge_u32 s2, 256')
    A(f's_cbranch_scc1 {end}')
    A('s_load_dwordx2 s[12:13], s[0:1], 0')
    A('s_load_dwordx2 s[16:17], s[0:1], 8')
    A('s_load_dwordx2 s[52:53], s[0:1], 16')
    A('s_load_dwordx2 s[56:57], s[0:1], 24')
    A('s_load_dwordx2 s[4:5], s[0:1], 80')
    for d, sz in ((12, 2048 * 1024), (16, 512 * 1024), (52, 512 * 32), (56, 512 * 32), (4, 256)):
        A(f's_mov_b32 {s(d + 2)}, {sz}')
        A(f's_mov_b32 {s(d + 3)}, 0x20000')
    setup(C, False, end)
    C.stamp()
    if TLBW:
        A('s_lshl_b32 s30, s20, 3')
        A(f's_add_u32 s30, s30, 32')
        A('s_cmp_eq_u32 s20, 1')
        A('s_cselect_b32 s30, 8, s30')
        A('s_load_dwordx2 s[32:33], s[0:1], s30')
        A('s_mov_b32 s31, 8192')
        A('s_cmp_ge_u32 s20, 2')
        A('s_cselect_b32 s31, 28672, s31')
        A('s_cmp_eq_u32 s20, 6')
        A('s_cselect_b32 s31, 4, s31')
        A('s_cmp_eq_u32 s20, 7')
        A(f's_cselect_b32 s31, {TLBW}, s31')
        A('v_mul_lo_u32 v4, v1, s31')
        A('s_waitcnt lgkmcnt(0)')
        A('global_load_dword v127, v4, s[32:33]')
    A('s_add_u32 s30, s21, 1')
    A('s_and_b32 s30, s30, 3')
    A('s_lshl_b32 s30, s30, 2')
    A('s_xor_b32 s30, s30, s22')
    A('s_add_u32 s30, s30, s20')
    A('s_cmp_lg_u32 s30, 0')
    A('s_cbranch_scc1 pr_z0')
    for r in range(4):
        A(f'v_mov_b32 {v(8 + r)}, 0')
    A('v_lshrrev_b32 v4, 4, v1')
    A('v_and_b32 v5, 15, v1')
    A('v_lshlrev_b32 v5, 4, v5')
    A('v_lshl_add_u32 v4, v4, 12, v5')
    A('s_lshl_b32 s30, s21, 8')
    A(f's_add_u32 s30, s30, {FLG}')
    for k in range(3):
        A('buffer_store_dwordx4 v[8:11], v4, s[8:11], s30 offen sc0 sc1')
        A('s_add_u32 s30, s30, 16384')
    A('v_lshlrev_b32 v4, 7, v1')
    A(f's_mul_i32 s30, s21, {64 * 128}')
    A(f's_add_u32 s30, s30, {PFL}')
    A('buffer_store_dwordx4 v[8:11], v4, s[8:11], s30 offen sc0 sc1')
    A('v_mov_b32 v5, 1')
    A('s_mov_b64 exec, 1')
    A('s_waitcnt vmcnt(0)')
    A('buffer_atomic_add v5, v8, s[4:7], 0 offen sc1')
    A('s_mov_b64 exec, -1')
    A('s_nop 1')
    A.label('pr_z0')
    KST, KW, KR, T, EX, XR = 240, 192, 224, 108, 96, 32
    WST, CSQ, CSKV = 96 * KB, ST4 + 9 * KB, ST4 + 10 * KB
    A('s_mov_b64 s[36:37], s[16:17]')
    A(f's_mov_b32 s38, {512 * 1024}')
    A('s_mov_b32 s39, 0x20000')
    g4_ids(C)
    A('s_lshl_b32 s30, s20, 11')
    A('s_cmp_lg_u32 s3, 0')
    A('s_cbranch_scc1 pr_k0')
    for k in range(4):
        A(f'buffer_load_dwordx4 {v(KST + 4 * k, 4)}, v3, {"s[52:55]" if k < 2 else "s[56:59]"}, s30 offen offset:{(k & 1) * 1024}')
    A.label('pr_k0')
    A('v_lshrrev_b32 v4, 3, v1')
    A('v_and_b32 v5, 7, v1')
    A('v_lshrrev_b32 v6, 4, v1')
    A('v_xor_b32 v6, v6, v5')
    A('v_lshlrev_b32 v7, 10, v4')
    A('v_lshl_add_u32 v8, v6, 4, v7')
    A('v_xor_b32 v9, 64, v8')
    A('s_lshl_b32 s30, s18, 15')
    A('s_lshl_b32 s31, s20, 7')
    A('s_add_u32 s30, s30, s31')
    A('s_lshl_b32 s32, s20, 12')
    for i in range(4):
        A(f's_add_u32 m0, s32, {KVR4 + i * 1024}')
        A('s_nop 0')
        C.vmem(f'buffer_load_dwordx4 {v(8 + (i & 1))}, s[12:15], s30 offen lds', 'x')
        A('s_add_u32 s30, s30, 8192')
    A('v_lshrrev_b32 v4, 2, v1')
    A('v_and_b32 v5, 3, v1')
    A('v_lshlrev_b32 v10, 10, v4')
    A('v_lshl_add_u32 v10, v5, 4, v10')
    A('s_lshl_b32 s31, s26, 18')
    A('s_bfe_u32 s30, s19, 0x4000b')
    A('s_lshl_b32 s30, s30, 6')
    A('s_add_u32 s31, s31, s30')
    A('s_lshl_b32 s51, s20, 13')
    A(f's_add_u32 s51, s51, {WST}')
    A('s_mov_b32 s50, s31')
    A('v_mov_b32 v88, v10')
    A('s_and_b32 s33, s22, 3')
    A(f's_lshl_b32 s33, s33, 16' if WROT else 's_mov_b32 s33, 0')

    def wloads():
        for i in range(16):
            A(f's_xor_b32 s30, s33, {G4_ORD[i] * 16384}')
            A('s_add_u32 s30, s30, s50')
            if i < 8:
                A(f's_add_u32 m0, s51, {i * 1024}')
                A('s_nop 0')
                A('buffer_load_dwordx4 v88, s[36:39], s30 offen lds')
            else:
                A(f'buffer_load_dwordx4 {v(128 + 4 * i, 4)}, v88, s[36:39], s30 offen')
    A('s_cmp_eq_u32 s3, 0')
    A('s_cbranch_scc1 pr_w1')
    A('s_barrier')
    wloads()
    A('s_waitcnt vmcnt(16)')
    A.label('pr_w1')
    C.stamp()
    A('v_and_b32 v64, 31, v1')
    A('v_lshrrev_b32 v65, 5, v1')
    A('v_lshlrev_b32 v66, 7, v64')
    A('v_lshl_add_u32 v66, v65, 3, v66')
    A('v_bfe_u32 v67, v1, 1, 3')
    A('v_lshl_add_u32 v66, v67, 4, v66')
    A(f's_add_u32 s30, s32, {KVR4}')
    A('v_add_u32 v66, s30, v66')
    A('v_bfe_u32 v67, v1, 2, 2')
    A('v_lshl_add_u32 v67, v65, 2, v67')
    A('v_lshlrev_b32 v68, 3, v5')
    A('v_bfe_u32 v69, v1, 4, 1')
    A('v_lshl_add_u32 v70, v67, 5, v68')
    A('v_lshl_add_u32 v70, v69, 11, v70')
    A('v_add_u32 v70, s30, v70')
    A('v_lshl_add_u32 v71, v67, 6, v68')
    A('v_lshl_add_u32 v71, v69, 5, v71')
    A('s_lshl_b32 s30, s26, 5')
    A('v_xor_b32 v71, s30, v71')
    A('v_add_u32 v71, s51, v71')
    A('v_add_u32 v72, s51, v3')
    A('v_mov_b32 v73, 0x3f803f80')
    A('v_lshlrev_b32 v74, 2, v64')
    A('s_lshl_b32 s30, s20, 7')
    A(f's_add_u32 s31, s30, {CSKV}')
    A('v_add_u32 v75, s31, v74')
    A('s_lshl_b32 s31, s26, 6')
    A('v_xor_b32 v74, s31, v74')
    A(f's_add_u32 s30, s30, {CSQ}')
    A('v_add_u32 v74, s30, v74')
    A('v_lshlrev_b32 v76, 4, v65')
    A('s_add_u32 s30, s30, s31')
    A('v_add_u32 v77, s30, v76')
    A('v_xor_b32 v78, 512, v77')
    A('s_lshl_b32 s30, s25, 5')
    A(f's_add_u32 s30, s30, {CSKV}')
    A('v_add_u32 v79, s30, v76')
    g4_pre(C, 'qkv', XA, resbase=0, raw=True)
    A('s_lshr_b32 s30, s33, 4')
    A('s_lshl_b32 s31, s20, 12')
    A('s_xor_b32 s30, s30, s31')
    A(f's_add_u32 s30, s30, {XF0}')
    A('v_add_u32 v12, s30, v3')
    A('v_mov_b32 v0, 0')
    A('v_mov_b32 v4, 1')
    for ch in range(8):
        A(f'v_xor_b32 {v(80 + ch)}, {ch << 4}, v66')

    def front():
        A('s_cmp_lg_u32 s3, 0')
        A('s_cbranch_scc1 pr_w2')
        A('s_waitcnt vmcnt(0)')
        A.label('pr_w2')
        C.vm = []
        C.stamp()
        for ch in range(8):
            A(f'ds_read_b64 {v(KR + 2 * ch, 2)}, {v(80 + ch)}')
        A('s_waitcnt lgkmcnt(0)')
        for k in range(4):
            A(f'ds_write_b128 v12, {v(KR + 4 * k, 4)} offset:{k * 1024}')
        for r in range(8):
            for e in range(2):
                x = v(KR + 2 * r + e)
                A(f'v_dot2_f32_bf16 {v(T + 2 * e)}, {x}, v73, {"0" if r == 0 else v(T + 2 * e)}')
                A(f'v_dot2_f32_bf16 {v(T + 2 * e + 1)}, {x}, {x}, {"0" if r == 0 else v(T + 2 * e + 1)}')
        A('s_nop 0')

    def kvw():
        for k in range(4):
            A(f'ds_write_b128 v14, {v(KST + 4 * k, 4)} offset:{k * 1024}')
        A('s_waitcnt lgkmcnt(4)')
        for st in range(4):
            for h2 in range(2):
                A(f'ds_read_b64_tr_b16 {v(KW + 4 * st + 2 * h2, 2)}, v70 offset:{st * 512 + h2 * 256}')
        A('s_waitcnt lgkmcnt(0)')
        for r in range(8):
            for e in range(2):
                A(f'v_dot2_f32_bf16 {v(80 + e)}, {v(KW + 2 * r + e)}, v73, {"0" if r == 0 else v(80 + e)}')
        A('s_nop 2')
        A('v_add_f32 v80, v80, v81')
        A('v_mov_b32 v81, v80')
        A('s_nop 1')
        swap_add(A, 80, 81)
        A('ds_write_b32 v75, v80')

    def kvcs0():
        for ww in range(8):
            A(f'ds_read_b128 {v(XR + 4 * ww, 4)}, v79 offset:{ww * 128}')

    def kvcs1():
        A('s_waitcnt lgkmcnt(0)')
        for stp in (16, 8):
            for r in range(stp):
                A(f'v_add_f32 {v(XR + r)}, {v(XR + r)}, {v(XR + stp + r)}')
        for r in range(4):
            A(f'v_add_f32 {v(EX + 8 + r)}, {v(XR + r)}, {v(XR + 4 + r)}')

    def zchk():
        lz, lzd = C.lab('z'), C.lab('zd')
        A('s_mov_b32 s31, 0')
        A('s_mov_b64 exec, 1')
        A.label(lz)
        A('buffer_load_dword v2, v0, s[4:7], 0 offen sc1')
        A('s_waitcnt vmcnt(0)')
        A('v_cmp_le_u32 vcc, 16, v2')
        A('s_add_u32 s31, s31, 1')
        A('s_cmp_eq_u64 vcc, 1')
        A(f's_cbranch_scc1 {lzd}')
        A('s_sleep 8')
        A(f's_cmp_lt_u32 s31, {1 << 20}')
        A(f's_cbranch_scc1 {lz}')
        A(f's_branch {end}')
        A.label(lzd)
        A('s_mov_b64 exec, -1')

    def wprep():
        A('s_cmp_lg_u32 s3, 0')
        A('s_cbranch_scc1 pr_w3')
        wloads()
        A.label('pr_w3')
        zchk()
        C.vm = []
        C.stamp()


    def tr(i):
        for h2 in range(2):
            A(f'ds_read_b64_tr_b16 {v(128 + 4 * i + 2 * h2, 2)}, v71 offset:{(i % 8) * 1024 + h2 * 512}')

    def csdot(r0, r1):
        for r in range(r0, r1):
            for e in range(4):
                A(f'v_dot2_f32_bf16 {v(80 + e)}, {v(128 + 4 * r + e)}, v73, {"0" if r == 0 else v(80 + e)}')

    def loop(rd, mf):
        for i in range(8):
            tr(i)
            if i == 5:
                A('s_waitcnt lgkmcnt(6)')
        ln_stats(A, T)
        A('s_waitcnt lgkmcnt(0)')
        for i in range(4):
            rd(i)
        for i in range(8):
            A(f'ds_write_b128 v72, {v(160 + 4 * i, 4)} offset:{i * 1024}')
        csdot(0, 8)
        A('s_waitcnt lgkmcnt(0)')
        for i in range(4, 8):
            rd(i)
        for i in range(8):
            if i == 4:
                A('s_waitcnt lgkmcnt(8)')
            mf(i)
            if i < 4:
                tr(8 + i)
            else:
                A('s_waitcnt lgkmcnt(9)')
                tr(8 + i)
                rd(4 + i)
        for i in range(8, 16):
            if i == 8:
                A('s_waitcnt lgkmcnt(9)')
            elif i < 12:
                A(f's_waitcnt lgkmcnt({9 - 2 * (i - 8)})')
            else:
                A(f's_waitcnt lgkmcnt({15 - i})')
            mf(i)
            if i < 12:
                rd(4 + i)

    def cs0():
        csdot(8, 16)
        A('s_nop 2')
        A('v_add_f32 v80, v80, v81')
        A('v_add_f32 v82, v82, v83')
        A('v_add_f32 v80, v80, v82')
        A('v_mov_b32 v81, v80')
        A('s_nop 1')
        swap_add(A, 80, 81)
        A('ds_write_b32 v74, v80')

    def cs():
        for h2 in range(2):
            A(f'ds_read_b128 {v(EX + 4 * h2, 4)}, v77 offset:{h2 * 32}')
            A(f'ds_read_b128 {v(XR + 4 * h2, 4)}, v78 offset:{h2 * 32}')
        A('s_waitcnt lgkmcnt(0)')
        for r in range(8):
            A(f'v_add_f32 {v(EX + r)}, {v(EX + r)}, {v(XR + r)}')
        for r in range(12):
            A(f'v_mov_b32 {v(208 + r)}, {v(EX + r)}')

    g4_main(C, 'qkv', kvf=KVF, kfl=KFL, raw=dict(front=front, kvw=kvw, kvcs0=kvcs0, kvcs1=kvcs1, zchk=zchk, wprep=wprep, cs=cs, cs0=cs0, loop=loop), endlab=end)
    C.stamp()


def wq_store(C):
    A = C.A
    A('s_and_b32 s30, s18, 0x33')
    A('s_cmp_lg_u32 s30, 0')
    A('s_cbranch_scc1 pr_w0')
    g4_waddr(C, 112, WQKVP)
    for q4 in (3, 2, 1, 0):
        if q4:
            A(f's_cmp_lg_u32 s21, {q4}')
            A(f's_cbranch_scc1 pr_ws{q4}')
        for i in range(4 * q4, 4 * q4 + 4):
            so, im = soff(G4_ORD[i])
            A(f'buffer_store_dwordx4 {v(128 + 4 * i, 4)}, v112, s[8:11], {so} offen offset:{im} sc0 sc1')
        if q4:
            A('s_branch pr_w0')
            A.label(f'pr_ws{q4}')
    A('v_lshrrev_b32 v113, 5, v1')
    A('v_lshlrev_b32 v113, 4, v113')
    A('s_lshr_b32 s31, s19, 4')
    A(f's_add_u32 s31, s31, {CSQKV}')
    A('s_mov_b32 exec_lo, 1')
    A('s_mov_b32 exec_hi, 1')
    A('buffer_store_dwordx4 v[208:211], v113, s[8:11], s31 offen sc0 sc1')
    A('buffer_store_dwordx4 v[212:215], v113, s[8:11], s31 offen offset:32 sc0 sc1')
    A('s_mov_b64 exec, -1')
    A('s_cmp_lg_u32 s22, 0')
    A('s_cbranch_scc1 pr_w0')
    A('s_lshl_b32 s30, s20, 12')
    A(f's_add_u32 s30, s30, {WQKVP + 16 * 32 * KB}')
    for k in range(4):
        A(f'buffer_store_dwordx4 {v(192 + 4 * k, 4)}, v3, s[8:11], s30 offen offset:{k * 1024} sc0 sc1')
    A('s_cmp_ge_u32 s20, 4')
    A('s_cbranch_scc1 pr_w0')
    A('s_lshl_b32 s31, s20, 5')
    A(f's_add_u32 s31, s31, {CSQKV + 2048}')
    A('s_mov_b32 exec_lo, 1')
    A('s_mov_b32 exec_hi, 1')
    A('buffer_store_dwordx4 v[216:219], v113, s[8:11], s31 offen sc0 sc1')
    A('s_mov_b64 exec, -1')
    A.label('pr_w0')


def pack_ptrs(A):
    A('s_load_dwordx2 s[4:5], s[0:1], 32')
    A('s_load_dwordx4 s[52:55], s[0:1], 48')
    A('s_load_dwordx2 s[16:17], s[0:1], 64')


def pack_issue(C):
    A = C.A
    A('s_mul_i32 s30, s2, 3')
    A('s_add_u32 s30, s30, s20')
    A('s_mov_b32 s58, s30')
    A('s_cmp_lt_u32 s20, 3')
    A('s_cselect_b32 s57, 1, 0')
    A('s_cmp_lt_u32 s30, 736')
    A('s_cselect_b32 s57, s57, 0')
    A('s_cmp_eq_u32 s57, 0')
    A('s_cselect_b32 s30, 0, s30')
    A('s_cmp_lt_u32 s30, 64')
    A('s_cbranch_scc1 pk_jwo')
    A('s_cmp_lt_u32 s30, 512')
    A('s_cbranch_scc1 pk_jgu')
    A('s_sub_u32 s30, s30, 512')
    A('s_mov_b64 s[4:5], s[16:17]')
    A(f's_mov_b32 s6, {1792 * 1024}')
    A('s_mov_b32 s50, 1024')
    A('s_and_b32 s31, s30, 7')
    A('s_lshr_b32 s30, s30, 3')
    A('s_lshl_b32 s51, s30, 16')
    A('s_lshl_b32 s56, s31, 7')
    A('s_add_u32 s51, s51, s56')
    A(f's_mul_i32 s56, s31, {2 * 112 * KB}')
    A('s_lshl_b32 s30, s30, 12')
    A('s_add_u32 s56, s56, s30')
    A(f's_add_u32 s56, s56, {WDP}')
    A(f's_mov_b32 s52, {112 * KB}')
    A('s_mov_b32 s53, 256')
    A(f's_mov_b32 s54, {G1.CSDUMMY}')
    A('s_branch pk_jgo')
    A.label('pk_jwo')
    A(f's_mov_b32 s6, {512 * 1024}')
    A('s_mov_b32 s50, 1024')
    A('s_lshr_b32 s31, s30, 3')
    A('s_and_b32 s30, s30, 7')
    A('s_lshl_b32 s51, s30, 16')
    A('s_lshl_b32 s56, s31, 7')
    A('s_add_u32 s51, s51, s56')
    A('s_lshl_b32 s56, s31, 16')
    A('s_lshl_b32 s30, s30, 12')
    A('s_add_u32 s56, s56, s30')
    A(f's_add_u32 s56, s56, {WOP}')
    A(f's_mov_b32 s52, {32 * KB}')
    A('s_mov_b32 s53, 256')
    A(f's_mov_b32 s54, {G1.CSDUMMY}')
    A('s_branch pk_jgo')
    A.label('pk_jgu')
    A('s_sub_u32 s30, s30, 64')
    A('s_cmp_ge_u32 s30, 224')
    A('s_cselect_b32 s4, s54, s52')
    A('s_cselect_b32 s5, s55, s53')
    A('s_cselect_b32 s16, 1, 0')
    A('s_cselect_b32 s31, 224, 0')
    A('s_sub_u32 s30, s30, s31')
    A(f's_mov_b32 s6, {512 * 3584}')
    A('s_mov_b32 s50, 3584')
    A('s_lshr_b32 s31, s30, 3')
    A('s_and_b32 s30, s30, 7')
    A(f's_mul_i32 s51, s30, {64 * 3584}')
    A('s_lshl_b32 s56, s31, 7')
    A('s_add_u32 s51, s51, s56')
    A('s_lshl_b32 s56, s31, 17')
    A('s_lshl_b32 s17, s30, 12')
    A('s_add_u32 s56, s56, s17')
    A('s_lshl_b32 s17, s16, 8')
    A('s_add_u32 s56, s56, s17')
    A(f's_add_u32 s56, s56, {WGUP}')
    A(f's_mov_b32 s52, {64 * KB}')
    A(f's_mov_b32 s53, {32 * KB}')
    A(f's_mul_i32 s54, s30, {3584 * 4}')
    A('s_lshl_b32 s17, s31, 9')
    A('s_add_u32 s54, s54, s17')
    A('s_lshl_b32 s17, s16, 6')
    A('s_add_u32 s54, s54, s17')
    A(f's_add_u32 s54, s54, {CSP}')
    A.label('pk_jgo')
    A('v_lshrrev_b32 v112, 3, v1')
    A('v_and_b32 v113, 7, v1')
    A('v_mul_lo_u32 v112, v112, s50')
    A('v_lshl_add_u32 v112, v113, 4, v112')
    A('s_lshl_b32 s50, s50, 3')
    A('s_min_u32 s59, s20, 2')
    A('s_lshl_b32 s59, s59, 13')
    A(f's_add_u32 s59, s59, {136 * KB}')
    A('s_cmp_eq_u32 s57, 0')
    A('s_cbranch_scc1 pk_i_end')
    for i in range(8):
        A(f's_add_u32 m0, s59, {i * 1024}')
        A('s_nop 0')
        A('buffer_load_dwordx4 v112, s[4:7], s51 offen lds')
        A('s_add_u32 s51, s51, s50')
    A.label('pk_i_end')


def pack_convert(C):
    A = C.A
    A('s_cmp_eq_u32 s57, 0')
    A('s_cbranch_scc1 pk_c_end')
    A('v_lshrrev_b32 v112, 5, v1')
    A('v_bfe_u32 v113, v1, 2, 2')
    A('v_lshl_add_u32 v113, v112, 2, v113')
    A('v_and_b32 v114, 3, v1')
    A('v_lshlrev_b32 v114, 3, v114')
    A('v_lshl_add_u32 v113, v113, 7, v114')
    A('v_bfe_u32 v114, v1, 4, 1')
    A('v_lshl_add_u32 v113, v114, 5, v113')
    A('v_add_u32 v113, s59, v113')
    A('v_mul_lo_u32 v114, v114, s53')
    A('v_and_b32 v115, 15, v1')
    A('v_lshl_add_u32 v114, v115, 4, v114')
    A('v_lshl_add_u32 v114, v112, 9, v114')
    A('v_lshrrev_b32 v112, 4, v1')
    A('v_lshlrev_b32 v112, 7, v112')
    A('v_lshl_add_u32 v112, v115, 2, v112')
    A('v_mov_b32 v115, 0x3f803f80')
    A('s_add_u32 s52, s52, s56')
    A('s_waitcnt vmcnt(0)')
    for jj in range(2):
        for st in range(4):
            for h2 in range(2):
                A(f'ds_read_b64_tr_b16 {v(128 + 4 * (4 * jj + st) + 2 * h2, 2)}, v113 offset:{st * 2048 + h2 * 1024 + jj * 64}')
        A('s_waitcnt lgkmcnt(0)')
        for st in range(4):
            A(f'buffer_store_dwordx4 {v(128 + 4 * (4 * jj + st), 4)}, v114, s[8:11], {"s56" if jj == 0 else "s52"} offen offset:{st * 1024} sc0 sc1')
    A('s_cmp_eq_u32 s53, 256')
    A('s_cbranch_scc1 pk_c_end')
    for r in range(16):
        for jj in range(2):
            A(f'v_dot2_f32_bf16 {v(116 + jj)}, {v(128 + 16 * jj + r)}, v115, {"0" if r == 0 else v(116 + jj)}')
    A('s_nop 2')
    swap_add(A, 116, 117)
    A('buffer_store_dword v116, v112, s[8:11], s54 offen sc0 sc1')
    A.label('pk_c_end')


def pack_flag(C):
    A = C.A
    A('v_mov_b32 v112, 0')
    A('v_mov_b32 v113, 1')
    A('s_cmp_eq_u32 s57, 0')
    A('s_cbranch_scc1 pk_f_1')
    A('s_lshl_b32 s30, s58, 7')
    A(f's_add_u32 s30, s30, {PFL}')
    A('s_waitcnt vmcnt(0)')
    A('s_mov_b64 exec, 1')
    A('buffer_store_dword v113, v112, s[8:11], s30 offen sc0 sc1')
    A('s_mov_b64 exec, -1')
    A.label('pk_f_1')
    A('s_and_b32 s30, s18, 0x33')
    A('s_cmp_lg_u32 s30, 0')
    A('s_cbranch_scc1 pk_f_end')
    A('s_lshl_b32 s30, s22, 1')
    A('s_add_u32 s30, s30, s20')
    A('s_lshl_b32 s31, s21, 5')
    A('s_add_u32 s30, s30, s31')
    A('s_lshl_b32 s30, s30, 7')
    A(f's_add_u32 s30, s30, {PFL + 768 * 128}')
    A('s_waitcnt vmcnt(0)')
    A('s_mov_b64 exec, 1')
    A('buffer_store_dword v113, v112, s[8:11], s30 offen sc0 sc1')
    A('s_mov_b64 exec, -1')
    A.label('pk_f_end')


def pack_poll(C, endlab):
    A = C.A
    A('s_mul_i32 s30, s22, 7')
    A('s_lshr_b32 s30, s30, 2')
    A('v_lshrrev_b32 v112, 4, v1')
    A('v_add_u32 v112, s30, v112')
    A('v_min_u32 v112, 27, v112')
    A('v_and_b32 v113, 7, v1')
    A('v_lshl_add_u32 v112, v112, 3, v113')
    A('v_bfe_u32 v114, v1, 3, 1')
    A('v_mul_u32_u24 v114, 224, v114')
    A('v_add3_u32 v112, v112, v114, 64')
    A('s_mul_i32 s30, s20, 7')
    A('s_lshr_b32 s30, s30, 1')
    A('v_min_u32 v114, 4, v113')
    A('v_add_u32 v114, s30, v114')
    A('v_min_u32 v114, 27, v114')
    A('s_add_u32 s30, s24, 512')
    A('v_lshl_add_u32 v114, v114, 3, s30')
    A('v_cmp_le_u32 vcc, 48, v1')
    A('s_lshl_b32 s30, s24, 3')
    A('s_add_u32 s30, s30, s20')
    A('v_cndmask_b32 v112, v112, v114, vcc')
    A('v_mov_b32 v114, s30')
    A('v_cmp_le_u32 vcc, 56, v1')
    A('s_add_u32 s31, s20, 768')
    A('s_and_b32 s30, s22, 12')
    A('s_lshl_b32 s30, s30, 1')
    A('s_add_u32 s30, s30, s31')
    A('v_cndmask_b32 v112, v112, v114, vcc')
    for q4 in range(4):
        A(f'v_writelane_b32 v112, s30, {59 + q4}')
        A('s_add_u32 s30, s30, 32')
    A('v_writelane_b32 v112, s31, 63')
    A(f's_mov_b32 s30, {PFL}')
    A('s_mov_b32 s31, 0')
    A('v_lshlrev_b32 v112, 7, v112')
    A('s_bfe_u32 s32, s19, 0x3000c')
    A('s_lshl_b32 s32, s32, 3')
    A('s_lshl_b32 s33, s26, 2')
    A('s_add_u32 s32, s32, s33')
    A('v_and_b32 v114, 3, v1')
    A('v_add_u32 v114, s32, v114')
    A('v_lshlrev_b32 v114, 7, v114')
    A('buffer_load_dword v113, v112, s[8:11], s30 offen sc1')
    A('buffer_load_dword v115, v114, s[8:11], s30 offen sc1')


def pack_poll2(C, endlab):
    A = C.A
    A(f's_mov_b32 s30, {PFL}')
    A('s_mov_b32 s31, 0')
    A.label('pk_p')
    A('s_waitcnt vmcnt(0)')
    A('v_and_b32 v113, v113, v115')
    A('v_cmp_eq_u32 vcc, 1, v113')
    A('s_add_u32 s31, s31, 1')
    A('s_cmp_eq_u64 vcc, -1')
    A('s_cbranch_scc1 pk_pd')
    A('s_sleep 16')
    A('buffer_load_dword v113, v112, s[8:11], s30 offen sc1')
    A('buffer_load_dword v115, v114, s[8:11], s30 offen sc1')
    A(f's_cmp_lt_u32 s31, {1 << 19}')
    A('s_cbranch_scc1 pk_p')
    A(f's_branch {endlab}')
    A.label('pk_pd')
    C.vm = []


def layer_part(C, layer, end):
    A = C.A
    C.tag = f'l{layer}'
    last = layer == 1
    xin = None if layer == 0 else XC
    kvf = KVF if layer == 0 else KVF2
    kfl = KFL + layer * 64 * 128
    sy = 5 * layer + 1
    C.B = dict(QF=QF, OF=OF, XB=XB, SXB=SXB, HF=HF) if layer == 0 else dict(QF=QF2, OF=OF2, XB=XB2, SXB=SXB2, HF=HF2)
    B = C.B

    def pre_addr():
        gu_waddr(C)
        g3_waddr(C, (113, 114), 112, WDP)
        g4_waddr(C, 116, WOP)

    stubs = [lambda: (pre_addr(), gu_wload(C, 0))]
    stubs += [lambda ks=ks: gu_wload(C, ks) for ks in range(1, 24)]
    stubs += [lambda i=i: g4_wload(C, 116, i, 'res') for i in range(8)]
    if TOUCH2:
        def touch2():
            A('s_and_b32 s30, s18, 7')
            A('s_lshr_b32 s31, s30, 1')
            A('s_lshl_b32 s31, s31, 2')
            A('s_and_b32 s30, s30, 1')
            A('s_add_u32 s30, s30, s31')
            A('s_lshl_b32 s30, s30, 10')
            C.vmem('buffer_load_dwordx4 v[120:123], v116, s[8:11], s30 offen offset:2048', 'tc')
            if layer == 0:
                A(f's_add_u32 s30, s30, {WQKVP - WOP + (1 << 32) if WQKVP < WOP else WQKVP - WOP}')
                A('v_add_u32 v117, s30, v116')
                C.vmem('buffer_load_dwordx4 v[120:123], v117, s[8:11], 0 offen', 'tc')
                C.vmem('buffer_load_dwordx4 v[120:123], v117, s[8:11], 0 offen offset:2048', 'tc')
        stubs += [touch2]
    if TOUCH and layer == 1:
        def t_addr():
            A('s_lshr_b32 s30, s2, 3')
            A('s_lshl_b32 s30, s30, 3')
            A('s_add_u32 s30, s30, s20')
            A(f's_mul_i32 s31, s30, {7 * KB}')
            A(f's_add_u32 s31, s31, {WDP}')
            A('v_add_u32 v118, s31, v3')
            A('s_lshl_b32 s31, s30, 11')
            A(f's_add_u32 s31, s31, {WQKVP}')
            A('v_add_u32 v119, s31, v3')

        def tch(vr, k):
            so, im = soff(k)
            C.vmem(f'buffer_load_dwordx4 v[120:123], {v(vr)}, s[8:11], {so} offen offset:{im}', 'tc')
        stubs += [lambda: (t_addr(), tch(V_WGU, 24))]
        stubs += [lambda ks=ks: tch(V_WGU, ks) for ks in range(25, 32)]
        stubs += [lambda k=k: tch(118, k) for k in range(7)]
        if not last:
            stubs += [lambda k=k: tch(119, k) for k in range(2)]

    def need_wo():
        A('s_lshr_b32 s30, s20, 1')
        A('s_lshl_b32 s30, s30, 2')
        A('s_and_b32 s31, s22, 3')
        A('s_add_u32 s30, s30, s31')
        A('s_lshl_b32 s32, 1, s30')

    def need_gu():
        A('s_lshl_b32 s32, 0x1111, s25')
        A('s_cmp_eq_u32 s20, 7')
        A('s_cselect_b32 s32, 0xffff, s32')

    def need_dn():
        A('s_lshl_b32 s30, s20, 1')
        A('s_lshl_b32 s32, 3, s30')

    def need_qkv():
        A('s_lshl_b32 s30, s20, 1')
        A('s_and_b32 s31, s24, 1')
        A('s_add_u32 s30, s30, s31')
        A('s_lshl_b32 s32, 1, s30')

    if layer == 0:
        fixed = {PK_I: lambda: (wq_store(C), pack_issue(C)), PK_C: lambda: pack_convert(C), PK_F: lambda: pack_flag(C), PK_P - 1: lambda: pack_poll(C, end), PK_P: lambda: pack_poll2(C, end)}
        tail = att_phase(C, kvf, kfl, end, stubs, fixed, PK_P, pre_hook=lambda: pack_ptrs(A), loadq=False, early=True)
    else:
        tail = att_phase(C, kvf, kfl, end, stubs, pre_hook=lambda: A('s_load_dwordx2 s[12:13], s[0:1], 72'), loadq=False)
    C.stamp()
    if not WO_LATE:
        A('s_nop 1')
        for i in range(8, 16):
            g4_wload(C, 116, i, 'res')
    g4_pre(C, 'res', B['OF'], resbase=xin)
    handoff(C, sy + 0, end, need_wo)
    C.stamp()
    g4_main(C, 'res', outbase=B['XB'], sxout=B['SXB'], hook_red=lambda k: gu_wload(C, 24 + k))
    C.stamp()
    gu_pre(C)
    handoff(C, sy + 1, end, need_gu)
    C.stamp()
    gu_main(C)
    C.stamp()
    g3_pre(C, 'res', 112, B['HF'], resbase=B['XB'])
    handoff(C, sy + 2, end, need_dn)
    C.stamp()
    if last:
        g3_main(C, 'out', 112, 128)
        C.stamp()
    else:
        g3_main(C, 'res', 112, 128, outbase=XC, sxout=SXC, hook_b=lambda st, n: qkv4_wstep(C, st, n), hook_red=lambda: qkv4_wrest(C))
        C.stamp()
        g4_pre(C, 'qkv', XC, resbase=SXC)
        g4_waddr(C, 64, WQKVP)
        handoff(C, sy + 3, end, need_qkv)
        C.stamp()
        g4_main(C, 'qkv', kvf=KVF2, kfl=KFL + 64 * 128, endlab=end)
        C.stamp()
    return tail


def build():
    A = Asm()
    name = NAME + '_kernel'
    C = Ctx(A, 'pr')
    C.qf = QF
    end = 'k_end'
    kernel_begin(A, name)
    pre_part(C, end)
    t0 = layer_part(C, 0, end)
    t1 = layer_part(C, 1, end)
    A('s_add_u32 s30, s2, s20')
    A('s_cmp_lg_u32 s30, 0')
    A('s_cbranch_scc1 k_fin')
    A('s_load_dwordx2 s[4:5], s[0:1], 80')
    A('s_mov_b32 s6, 256')
    A('v_mov_b32 v2, 0')
    A('s_mov_b64 exec, 1')
    A('s_waitcnt lgkmcnt(0)')
    A('buffer_store_dword v2, v2, s[4:7], 0 offen sc0 sc1')
    A('s_mov_b64 exec, -1')
    A.label('k_fin')
    if DBGD:
        A('s_cmp_lg_u32 s2, 77')
        A('s_cbranch_scc1 k_fin2')
        A('s_cmp_lg_u32 s20, 1')
        A('s_cbranch_scc1 k_fin2')
        A('s_load_dwordx2 s[4:5], s[0:1], 80')
        A('s_memrealtime s[60:61]')
        A('s_mov_b32 s6, 256')
        A('v_mov_b32 v2, 0')
        A('s_mov_b64 exec, 1')
        A('s_waitcnt lgkmcnt(0)')
        sel = [int(x) for x in DBGD.split()]
        for k, i in enumerate(sel + [-1]):
            A(f's_sub_u32 s30, {s(64 + i) if i >= 0 else "s60"}, s64')
            A('v_mov_b32 v4, s30')
            A(f'buffer_store_dword v4, v2, s[4:7], 0 offen offset:{4 + 4 * k}')
        A('s_mov_b64 exec, -1')
        A.label('k_fin2')
    stamp_end(C, 1)
    A.label(end)
    A('s_endpgm')
    t0(True)
    t1(False)
    body = A.text()
    probs = lint(body)
    for p in probs:
        print('LINT:', p, file=sys.stderr)
    head = '; generated by gen/gen3.py\n'
    head += f"; @launch grid=(256,1,1) block=(512,1,1) lds={LDS_BYTES}\n"
    head += '.amdgcn_target "amdgcn-amd-amdhsa--gfx950"\n.text\n'
    tail = '.section .rodata,"a"\n.p2align 6\n' + descriptor(name, 256, 0, nsgpr=100)
    print('stamps:', C.nstamp, file=sys.stderr)
    return head + body + tail


if __name__ == '__main__':
    if 'stamp' in sys.argv:
        STAMP = True
    for arg in sys.argv[2:]:
        if '=' in arg:
            k, val = arg.split('=')
            globals()[k] = int(val) if val.lstrip('-').isdigit() else val.replace('_', ' ')
    out = sys.argv[1] if len(sys.argv) > 1 else f'cdna_kernels/{NAME}.s'
    open(out, 'w').write(build())
    print('wrote', out)
```

```python
import sys
import math
import struct
from asmlib import Asm, v, a, s, lint
import gen as G1
from gen import f32, kernel_begin, descriptor, ws_srd, KB

NAME = G1.NAME
WQKVP, WOP, WGUP, WDP, CSQKV, CSGU = G1.WQKVP, G1.WOP, G1.WGUP, G1.WDP, G1.CSQKV, G1.CSGU
KVF, XA, XB, QF, OF, HF = G1.KVF, G1.XA, G1.XB, G1.QF, G1.OF, G1.HF
WS_SIZE, QSCALE = G1.WS_SIZE, G1.QSCALE
KVG = 2048
KVT = 2080
VBS = 512
XC = G1.WS_END
KVF2 = XC + 2048 * KB
FLG = KVF2 + 144 * KB
SXA = FLG + 64 * KB
SXB = SXA + 512 * KB
SXC = SXB + 512 * KB
CSP = SXC + 512 * KB
PFL = CSP + 128 * KB
KFL = PFL + 112 * KB
QF2 = KFL + 16 * KB
OF2 = QF2 + 2048 * KB
XB2 = OF2 + 2048 * KB
SXB2 = XB2 + 2048 * KB
HF2 = SXB2 + 512 * KB
WS_END = HF2 + 64 * 112 * KB
STAMPS = G1.STAMPS

STAMP = False
WT = ' sc0 sc1'
LDS_BYTES = 160 * KB
FINE = 0
PRIOV = 0
DBGD = ''
ATT_B2 = 2
WO_L0 = 3
WROT = 1
GU_TAIL = 1
ATT_R0 = 4
EXPT = 0
TLBW = 0
KV_SLEEP = 2
QKV_PER = 1
WO_TAIL = 16
SLO = 0
QWT = ' sc0 sc1'
GU16 = 0
GU_NOW = 0
GU_WD0 = 3
GU_BARS = {4: 1, 8: 2, 12: 7, 24: 7}
PK_I = 2
PK_C = 5
PK_F = 6
PK_P = 10
RT = 0
TOUCH = 0
TOUCH2 = 1
WO_LATE = 0
ATT_UN = 4
ATT_PFEND = 1
G3_PR4 = 7
G3_PR14 = 6
G2_ST8 = [2, 2, 2, 2]
G2_ST28 = [2, 2, 4, 4, 4, 4, 4, 4]
G2_PRE8 = 4
G2_PRE28 = 6


class Ctx:
    def __init__(self, A, tag):
        self.A = A
        self.tag = tag
        self.vm = []
        self.nlab = 0
        self.nstamp = 1

    def lab(self, base):
        self.nlab += 1
        return f'{self.tag}_{base}{self.nlab}'

    def vmem(self, text, tag):
        self.A(text)
        self.vm.append(tag)
        assert len(self.vm) <= 63, 'vmcnt overflow'

    def wait(self, tag, extra=''):
        idx = [i for i, t in enumerate(self.vm) if t == tag]
        if not idx:
            if extra:
                self.A(f's_waitcnt {extra}')
            return
        n = len(self.vm) - 1 - idx[-1]
        self.A(f's_waitcnt vmcnt({n}) {extra}'.strip())
        self.vm = self.vm[idx[-1] + 1:]

    def stamp(self):
        if STAMP:
            i = self.nstamp - SLO
            self.nstamp += 1
            if i < 1 or i >= 28:
                return
            A = self.A
            A('s_waitcnt lgkmcnt(0)')
            A('s_memrealtime s[60:61]' if RT else 's_memtime s[60:61]')
            A('s_waitcnt lgkmcnt(0)')
            A(f's_mov_b32 {s(64 + i)}, s60')


def stamp_begin(C):
    if STAMP:
        A = C.A
        A('s_memrealtime s[62:63]')
        A('s_memtime s[60:61]')
        for i in range(1, 30):
            A(f's_mov_b32 {s(64 + i)}, 0')
        A('s_waitcnt lgkmcnt(0)')
        A('s_mov_b32 s64, s62' if RT else 's_mov_b32 s64, s60')
        A('s_mov_b32 s95, s62')


def stamp_end(C, kidx):
    if STAMP:
        A = C.A
        A('s_waitcnt vmcnt(0) lgkmcnt(0)')
        A('s_memtime s[60:61]')
        A('s_memrealtime s[62:63]')
        A('s_waitcnt lgkmcnt(0)')
        A('s_mov_b32 s93, s62' if RT else 's_mov_b32 s93, s60')
        A('s_mov_b32 s94, s62')
        A('s_mov_b64 exec, 1')
        A('s_lshl_b32 s60, s2, 10')
        A('s_lshl_b32 s61, s20, 7')
        A('s_add_u32 s60, s60, s61')
        A(f's_add_u32 s60, s60, {STAMPS + kidx * (1 << 20)}')
        A('v_mov_b32 v0, 0')
        for i in range(32):
            A(f'v_mov_b32 v1, {s(64 + i)}')
            A(f'buffer_store_dword v1, v0, s[8:11], s60 offen offset:{i * 4}')
        A('s_waitcnt vmcnt(0)')


def setup(C, need_out, endlab):
    A = C.A
    A('s_cmp_ge_u32 s2, 256')
    A(f's_cbranch_scc1 {endlab}')
    stamp_begin(C)
    ws_srd(A, 8)
    if need_out:
        A('s_load_dwordx2 s[12:13], s[0:1], 72')
        A(f's_mov_b32 s14, {2048 * 512 * 2}')
        A('s_mov_b32 s15, 0x20000')
    A('v_and_b32 v1, 63, v0')
    A('v_lshrrev_b32 v2, 6, v0')
    A('v_lshlrev_b32 v3, 4, v1')
    A('v_readfirstlane_b32 s20, v2')
    A('s_and_b32 s21, s2, 7')
    A('s_lshl_b32 s21, s21, 1')
    A('s_bfe_u32 s22, s2, 0x10003')
    A('s_add_u32 s21, s21, s22')
    A('s_lshr_b32 s22, s2, 4')
    A('s_and_b32 s23, s22, 1')
    A('s_lshr_b32 s24, s22, 1')
    A('s_and_b32 s25, s20, 3')
    A('s_lshr_b32 s26, s20, 2')
    A('s_lshl_b32 s27, s21, 2')
    A('s_lshl_b32 s30, s23, 1')
    A('s_add_u32 s27, s27, s30')
    A('s_lshl_b32 s28, s24, 1')
    A('s_bfe_u32 s30, s20, 0x10001')
    A('s_add_u32 s28, s28, s30')
    A('s_and_b32 s29, s20, 1')
    A('s_add_u32 s30, s27, s29')
    A('s_lshl_b32 s49, s30, 15')
    A('s_lshl_b32 s31, s28, 11')
    A('s_add_u32 s49, s49, s31')
    A('s_lshl_b32 s31, s26, 10')
    A('s_add_u32 s49, s49, s31')
    for g in range(1, 8):
        A(f's_mov_b32 {s(40 + g)}, {g * 4096}')
    A('s_waitcnt lgkmcnt(0)')


def soff(i):
    return ('0' if i // 4 == 0 else s(40 + i // 4)), (i % 4) * 1024


def handoff(C, sync, endlab, need, kvflag=None, first=False):
    A = C.A
    l1, l2, ld = C.lab('pa'), C.lab('pb'), C.lab('pd')
    need()
    A('s_mov_b32 s33, 0')
    A('v_lshlrev_b32 v0, 2, v1')
    A('s_lshl_b32 s30, s21, 8')
    A(f's_add_u32 s30, s30, {FLG + sync * 4096}')
    A('s_lshl_b32 s34, s22, 2')
    A('s_add_u32 s34, s34, s30')
    A('v_mov_b32 v4, 1')
    if first:
        lz, lzd = C.lab('z'), C.lab('zd')
        A('s_cmp_lg_u32 s20, 0')
        A(f's_cbranch_scc1 {lzd}')
        A('s_mov_b32 s31, 0')
        A('s_mov_b64 exec, 1')
        A.label(lz)
        A('buffer_load_dword v2, v0, s[4:7], 0 offen sc0 sc1')
        A('s_waitcnt vmcnt(0)')
        A('v_cmp_le_u32 vcc, 16, v2')
        A('s_add_u32 s31, s31, 1')
        A('s_cmp_eq_u64 vcc, 1')
        A(f's_cbranch_scc1 {lzd}')
        A('s_sleep 8')
        A(f's_cmp_lt_u32 s31, {1 << 20}')
        A(f's_cbranch_scc1 {lz}')
        A(f's_branch {endlab}')
        A.label(lzd)
        A('s_mov_b64 exec, -1')
    if kvflag is not None:
        A('s_waitcnt vmcnt(0) lgkmcnt(0)')
        C.vm = []
    else:
        C.wait('st', 'lgkmcnt(0)')
    A('s_cmp_lg_u32 s20, 0')
    A('s_barrier')
    l, lb, lb2 = C.lab('sig'), C.lab('sb'), C.lab('sc')
    A(f's_cbranch_scc1 {l}')
    A('s_mov_b64 exec, 1')
    if kvflag is not None:
        lk = C.lab('kf')
        A('s_cmp_ge_u32 s24, 2')
        A(f's_cbranch_scc1 {lk}')
        A('s_add_u32 s31, s27, s24')
        A('s_lshl_b32 s31, s31, 7')
        A(f's_add_u32 s31, s31, {kvflag}')
        A('s_mov_b64 exec, 15')
        A('buffer_store_dword v4, v0, s[8:11], s31 offen sc0 sc1')
        A('s_mov_b64 exec, 1')
        A.label(lk)
    A('buffer_store_dword v4, v0, s[8:11], s34 offen')
    A.label(l)
    A('s_mov_b32 s31, 0')
    A('s_mov_b64 exec, s[32:33]')
    A.label(l1)
    A('buffer_load_dword v2, v0, s[8:11], s30 offen sc1')
    A('s_add_u32 s31, s31, 1')
    A('s_waitcnt vmcnt(0)')
    A('v_cmp_ne_u32 vcc, 0, v2')
    A('s_cmp_eq_u64 vcc, s[32:33]')
    A(f's_cbranch_scc1 {ld}')
    A('s_cmp_lt_u32 s31, 64')
    A(f's_cbranch_scc1 {l1}')
    A('s_mov_b64 exec, 1')
    A('buffer_store_dword v4, v0, s[8:11], s34 offen offset:128 sc0 sc1')
    A('s_mov_b64 exec, s[32:33]')
    A.label(l2)
    A('buffer_load_dword v2, v0, s[8:11], s30 offen sc1')
    A('s_waitcnt vmcnt(0)')
    A('v_cmp_ne_u32 s[36:37], 0, v2')
    A('buffer_load_dword v2, v0, s[8:11], s30 offen offset:128 sc0 sc1')
    A('s_waitcnt vmcnt(0)')
    A('v_cmp_ne_u32 vcc, 0, v2')
    A('s_add_u32 s31, s31, 1')
    A('s_or_b64 vcc, vcc, s[36:37]')
    A('s_cmp_eq_u64 vcc, s[32:33]')
    A(f's_cbranch_scc1 {ld}')
    A('s_sleep 4')
    A(f's_cmp_lt_u32 s31, {1 << 20}')
    A(f's_cbranch_scc1 {l2}')
    A(f's_branch {endlab}')
    A.label(ld)
    A('s_mov_b64 exec, -1')
    C.vm = []
    C.flagb = True


def flag_b(C):
    if getattr(C, 'flagb', False):
        A = C.A
        l = C.lab('fb')
        A('s_cmp_lg_u32 s20, 0')
        A(f's_cbranch_scc1 {l}')
        A('s_mov_b64 exec, 1')
        A('buffer_store_dword v4, v0, s[8:11], s34 offen offset:128 sc0 sc1')
        A('s_mov_b64 exec, -1')
        A.label(l)
        C.flagb = False


ACCB, ACCA = 16, 48
KVW, KACC, QSX = 160, 176, 240
KVRED, STAT, CSX, CSK = 112 * KB, 144 * KB, 148 * KB, 152 * KB


def blk_stats(C, P, T):
    A = C.A
    A(f'v_mov_b32 {v(T + 4)}, 0x3f803f80')
    A(f'v_dot2_f32_bf16 {v(T + 1)}, {v(P)}, {v(P)}, 0')
    A(f'v_dot2_f32_bf16 {v(T)}, {v(P)}, {v(T + 4)}, 0')
    for m in range(1, 4):
        A(f'v_dot2_f32_bf16 {v(T + 1)}, {v(P + m)}, {v(P + m)}, {v(T + 1)}')
        A(f'v_dot2_f32_bf16 {v(T)}, {v(P + m)}, {v(T + 4)}, {v(T)}')
    A('s_nop 2')
    A(f'v_mov_b32 {v(T + 2)}, {v(T)}')
    A(f'v_mov_b32 {v(T + 3)}, {v(T + 1)}')
    A('s_nop 1')
    A(f'v_permlane32_swap_b32 {v(T)}, {v(T + 2)}')
    A(f'v_permlane32_swap_b32 {v(T + 1)}, {v(T + 3)}')
    A(f'v_add_f32 {v(T)}, {v(T)}, {v(T + 2)}')
    A(f'v_add_f32 {v(T + 1)}, {v(T + 1)}, {v(T + 3)}')


def g3_waddr(C, vregs, KS, wbase):
    A = C.A
    NS = KS // 8
    A('s_lshl_b32 s30, s26, 8')
    A(f'v_xor_b32 {v(vregs[0])}, s30, v3')
    A(f's_mul_i32 s31, s20, {NS * KB}')
    A(f's_add_u32 s31, s31, {wbase}')
    A('s_xor_b32 s30, s28, 1')
    A(f's_mul_i32 s30, s30, {KS * KB}')
    A('s_add_u32 s30, s30, s31')
    A(f'v_add_u32 {v(vregs[1])}, s30, {v(vregs[0])}')
    A(f's_mul_i32 s30, s28, {KS * KB}')
    A('s_add_u32 s30, s30, s31')
    A(f'v_add_u32 {v(vregs[0])}, s30, {v(vregs[0])}')


def g3_wload(C, vregs, idx, wreg0, tag='w'):
    st, jj = idx // 2, idx % 2
    so, im = soff(st)
    C.vmem(f'buffer_load_dwordx4 {v(wreg0 + 4 * idx, 4)}, {v(vregs[jj])}, s[8:11], {so} offen offset:{im}', tag)


def g3_ex(mode, KS):
    return 252 if KS == 112 else (112 if mode == 'qkv' else 116)


def g3_pre(C, mode, KS, xbase, resbase=None, raw=False):
    A = C.A
    NS = KS // 8
    EX = g3_ex(mode, KS)
    A(f's_mul_i32 s31, s20, {NS * KB}')
    A(f's_add_u32 s31, s31, {xbase}')
    A('s_add_u32 s30, s27, s29')
    A(f's_mul_i32 s32, s30, {KS * KB}')
    A('s_add_u32 s32, s32, s31')
    A('v_add_u32 v6, s32, v3')
    A('s_xor_b32 s30, s30, 1')
    A(f's_mul_i32 s32, s30, {KS * KB}')
    A('s_add_u32 s32, s32, s31')
    A('v_add_u32 v5, s32, v3')
    A('s_lshl_b32 s30, s20, 11')
    A('v_add_u32 v8, s30, v3')
    A('v_add_u32 v7, 0x10000, v8')
    for b in range(1, 8):
        A(f's_xor_b32 s30, s20, {b}')
        A('s_lshl_b32 s30, s30, 11')
        A(f's_add_u32 s30, s30, {(b - 1) * 16 * KB}')
        A(f'v_add_u32 {v(8 + b)}, s30, v3')
    if raw:
        return
    if mode == 'qkv':
        A('v_lshrrev_b32 v2, 5, v1')
        A('v_lshlrev_b32 v4, 4, v2')
        A('s_lshl_b32 s31, s28, 7')
        A('s_lshl_b32 s30, s26, 6')
        A('s_add_u32 s31, s31, s30')
        A(f's_add_u32 s31, s31, {CSQKV}')
        C.vmem(f'buffer_load_dwordx4 {v(EX, 4)}, v4, s[8:11], s31 offen', 'ex')
        C.vmem(f'buffer_load_dwordx4 {v(EX + 4, 4)}, v4, s[8:11], s31 offen offset:32', 'ex')
        A('s_bfe_u32 s30, s20, 0x10001')
        A('s_lshl_b32 s30, s30, 6')
        A('s_lshl_b32 s31, s26, 5')
        A('s_add_u32 s30, s30, s31')
        A(f's_add_u32 s31, s30, {CSQKV + 2048}')
        C.vmem(f'buffer_load_dwordx4 {v(EX + 8, 4)}, v4, s[8:11], s31 offen', 'ex')
        A(f'v_and_b32 {v(QSX + 8)}, 31, v1')
        A(f'v_lshlrev_b32 {v(QSX + 8)}, 3, {v(QSX + 8)}')
        A(f'v_lshl_add_u32 {v(QSX + 8)}, v2, 13, {v(QSX + 8)}')
        A('s_lshl_b32 s30, s27, 13')
        A('s_lshl_b32 s31, s20, 10')
        A('s_add_u32 s30, s30, s31')
        A(f's_add_u32 s30, s30, {resbase}')
        A(f'v_add_u32 {v(QSX + 8)}, s30, {v(QSX + 8)}')
    elif resbase is None:
        A('v_and_b32 v2, 31, v1')
        A('v_lshlrev_b32 v2, 10, v2')
        A('v_lshrrev_b32 v4, 5, v1')
        A('v_lshl_add_u32 v2, v4, 3, v2')
        A('s_add_u32 s30, s27, s29')
        A('s_lshl_b32 s30, s30, 15')
        A('s_lshl_b32 s31, s28, 6')
        A('s_add_u32 s30, s30, s31')
        A('s_lshl_b32 s31, s26, 5')
        A('s_add_u32 s30, s30, s31')
        C.vmem(f'buffer_load_dwordx2 {v(EX, 2)}, v2, s[12:15], s30 offen', 'ex')
        C.vmem(f'buffer_load_dwordx2 {v(EX + 2, 2)}, v2, s[12:15], s30 offen offset:16', 'ex')
    else:
        A(f's_add_u32 s31, s49, {resbase}')
        C.vmem(f'buffer_load_dwordx4 {v(EX, 4)}, v3, s[8:11], s31 offen', 'ex')


def g3_main(C, mode, KS, wreg0, outbase=None, kvf=None, after_store=None, sxout=None, hook_b=None, raw=False, hook_red=None):
    A = C.A
    NS = KS // 8
    EX = g3_ex(mode, KS)
    if NS == 4:
        xreg = {(hh, st): 80 + (hh * 4 + st) * 4 for hh in range(2) for st in range(4)}
    else:
        slot = [80 + 4 * k for k in range(12)] + [240, 244]
        xreg = {(hh, st): slot[st] for hh in range(2) for st in range(NS)}

    def xload(hh, st):
        so, im = soff(st)
        C.vmem(f'buffer_load_dwordx4 {v(xreg[hh, st], 4)}, {v(5 + hh)}, s[8:11], {so} offen offset:{im}', f'x{hh}_{st}')

    seq = [(hh, st) for hh in range(2) for st in range(NS)]
    PR = G3_PR4 if NS == 4 else G3_PR14
    if raw:
        seq, PR = [], 0
    for x in seq[:PR]:
        xload(*x)
    nxt = PR
    C.wait('w')

    def wr(b):
        base = (ACCA if b & 1 else ACCB) + ((b >> 1) & 1) * 16 + (b >> 2) * 8
        return [f'ds_write_b128 {v(8 + b)}, {v(base + h2 * 4, 4)} offset:{h2 * 1024}' for h2 in range(2)]

    pend = []
    for hh in range(2):
        acc = ACCA if hh == 0 else ACCB
        for st in range(NS):
            C.wait(f'x{hh}_{st}')
            if hh == 0 and st == 0:
                C.stamp()
            for jj in range(2):
                c = '0' if st == 0 else v(acc + jj * 16, 16)
                A(f'v_mfma_f32_32x32x16_bf16 {v(acc + jj * 16, 16)}, {v(wreg0 + 4 * (2 * st + jj), 4)}, {v(xreg[hh, st], 4)}, {c}')
                if hh == 1 and (st >= 3 or (NS == 4 and st >= 2)):
                    for _ in range(2 if NS == 4 else 1):
                        if pend:
                            A(pend.pop(0))
            if nxt < len(seq):
                xload(*seq[nxt])
                nxt += 1
                if nxt == len(seq):
                    if mode == 'qkv':
                        for e in range(4):
                            C.vmem(f'buffer_load_dwordx2 {v(QSX + 2 * e, 2)}, {v(QSX + 8)}, s[8:11], 0 offen offset:{e * 256}', 'sx')
                    flag_b(C)
                    hb = 0
            elif hook_b:
                hb += 1
            if hook_b and nxt == len(seq):
                hook_b(hb, PR)
            if hh == 1 and NS == 4 and st == 1:
                A('s_nop 7' if raw else 's_nop 5')
            if hh == 1 and NS != 4 and st == 2:
                A('s_nop 2')
        if hh == 0:
            pend = wr(1) + wr(5) + wr(3) + wr(7)
    assert not pend
    C.stamp()
    lkv = C.lab('nokv')
    if mode == 'qkv':
        la, lb = C.lab('ka'), C.lab('kb')
        A('s_cmp_ge_u32 s24, 2')
        A(f's_cbranch_scc1 {lb}')
        A('s_cmp_eq_u32 s24, s29')
        A(f's_cbranch_scc0 {la}')
        for hh in (1, 0):
            for st in range(4):
                c = '0' if st == 0 else v(KACC, 16)
                A(f'v_mfma_f32_32x32x16_bf16 {v(KACC, 16)}, {v(KVW + 4 * st, 4)}, {v(xreg[hh, st], 4)}, {c}')
            if hh == 1:
                A(f's_branch {lb}')
                A.label(la)
        A.label(lb)
        A('v_lshlrev_b32 v4, 3, v1')
        if not raw:
            C.wait('sx')
            for e in range(4):
                A(f'v_add_f32 {v(QSX + e)}, {v(QSX + e)}, {v(QSX + 4 + e)}')
            for e in range(2):
                A(f'v_add_f32 {v(QSX + e)}, {v(QSX + e)}, {v(QSX + 2 + e)}')
            A('s_lshl_b32 s30, s20, 9')
            A(f's_add_u32 s30, s30, {STAT}')
            A('v_add_u32 v2, s30, v4')
            A(f'ds_write_b64 v2, {v(QSX, 2)}')
        else:
            A('v_lshrrev_b32 v112, 5, v1')
            A('v_lshlrev_b32 v112, 4, v112')
            A('s_and_b32 s30, s28, 1')
            A('s_lshl_b32 s30, s30, 7')
            A('s_lshl_b32 s31, s26, 6')
            A('s_add_u32 s30, s30, s31')
            A(f's_add_u32 s30, s30, {CSK}')
            A('v_add_u32 v113, s30, v112')
            A('s_nop 3')
        A('v_and_b32 v4, 0xf8, v4')
        A('s_lshl_b32 s30, s29, 8')
        A(f's_add_u32 s30, s30, {STAT}')
        A('v_add_u32 v4, s30, v4')
    else:
        A('s_nop 10')
    for b in (4, 2, 6):
        for x in wr(b):
            A(x)
    if mode == 'qkv':
        A('s_cmp_ge_u32 s24, 2')
        A(f's_cbranch_scc1 {lkv}')
        A(f'v_add_u32 v2, {KVRED}, v8')
        for k4 in range(4):
            A(f'ds_write_b128 v2, {v(KACC + k4 * 4, 4)} offset:{(k4 >> 1) * 16 * KB + (k4 & 1) * 1024}')
        A.label(lkv)
    if hook_red:
        hook_red()
    A('s_waitcnt lgkmcnt(0)')
    A('s_barrier')
    for b in range(1, 8):
        for h2 in range(2):
            base, off = ('v8', (b - 1) * 16 * KB) if b <= 4 else ('v7', (b - 5) * 16 * KB)
            A(f'ds_read_b128 {v(ACCB + b * 8 + h2 * 4, 4)}, {base} offset:{off + h2 * 1024}')
    T = 80

    def red(base, waits):
        for stp in (32, 16, 8):
            for r in range(stp):
                A(f'v_add_f32 {v(base + r)}, {v(base + r)}, {v(base + stp + r)}')
    if mode == 'qkv':
        A('s_waitcnt lgkmcnt(6)')
        for ww in range(8):
            A(f'ds_read_b64 {v(T + ww * 2, 2)}, v4 offset:{ww * 512}')
        A('s_waitcnt lgkmcnt(8)')
        if raw:
            EX = 192
            for h2 in range(2):
                A(f'ds_read_b128 {v(EX + h2 * 4, 4)}, v113 offset:{h2 * 32}')
    else:
        C.wait('ex')
        for m in range(4):
            A(f'v_lshlrev_b32 {v(T + 2 * m)}, 16, {v(EX + m)}')
            A(f'v_and_b32 {v(T + 2 * m + 1)}, 0xffff0000, {v(EX + m)}')
        for r in range(8):
            A(f'v_add_f32 {v(ACCB + r)}, {v(ACCB + r)}, {v(T + r)}')
        A('s_waitcnt lgkmcnt(0)')
    red(ACCB, None)
    P = ACCB + 8
    if mode == 'qkv':
        A('s_waitcnt lgkmcnt(0)')
        for stp in (8, 4, 2):
            for e in range(stp):
                A(f'v_add_f32 {v(T + e)}, {v(T + e)}, {v(T + e + stp)}')
        A(f'v_mul_f32 {v(T)}, {f32(1.0 / 512)}, {v(T)}')
        A(f'v_mul_f32 {v(T + 1)}, {f32(1.0 / 512)}, {v(T + 1)}')
        A(f'v_fma_f32 {v(T + 1)}, -{v(T)}, {v(T)}, {v(T + 1)}')
        A(f'v_max_f32 {v(T + 1)}, 0, {v(T + 1)}')
        A(f'v_add_f32 {v(T + 1)}, {f32(1e-5)}, {v(T + 1)}')
        A(f'v_rsq_f32 {v(T + 1)}, {v(T + 1)}')
        C.wait('ex')
        for r in range(8):
            A(f'v_fma_f32 {v(ACCB + r)}, -{v(T)}, {v(EX + r)}, {v(ACCB + r)}')
        A(f'v_mul_f32 {v(T + 2)}, {f32(QSCALE)}, {v(T + 1)}')
        for r in range(8):
            A(f'v_mul_f32 {v(ACCB + r)}, {v(T + 2)}, {v(ACCB + r)}')
        for m in range(4):
            A(f'v_cvt_pk_bf16_f32 {v(P + m)}, {v(ACCB + 2 * m)}, {v(ACCB + 2 * m + 1)}')
        A(f's_add_u32 s31, s49, {C.qf}')
        C.vmem(f'buffer_store_dwordx4 {v(P, 4)}, v3, s[8:11], s31 offen{QWT}', 'st')
        le, lv = C.lab('ke'), C.lab('v')
        A('s_cmp_lg_u32 s29, s24')
        A(f's_cbranch_scc1 {le}')
        A('s_bfe_u32 s34, s20, 0x10001')
        A('s_lshl_b32 s30, s34, 14')
        A('s_lshl_b32 s31, s26, 10')
        A('s_add_u32 s30, s30, s31')
        A(f's_add_u32 s30, s30, {KVRED}')
        A('v_add_u32 v4, s30, v3')
        KR = 208
        for ww in range(8):
            A(f'ds_read_b128 {v(KR + ww * 4, 4)}, v4 offset:{ww * 2048}')
        KX = EX + 8
        if raw:
            A('s_lshl_b32 s30, s34, 6')
            A('s_lshl_b32 s31, s26, 5')
            A('s_add_u32 s30, s30, s31')
            A(f's_add_u32 s30, s30, {CSK + 256}')
            A('v_add_u32 v113, s30, v112')
            A(f'ds_read_b128 {v(KX, 4)}, v113')
        A('s_add_u32 s30, s27, s29')
        A(f's_mul_i32 s30, s30, {KVG}')
        A(f's_add_u32 s30, s30, {kvf}')
        A('v_bfe_u32 v4, v1, 4, 1')
        A(f'v_mul_u32_u24 v4, {VBS}, v4')
        A('v_bfe_u32 v5, v1, 2, 1')
        A('v_lshl_add_u32 v4, v5, 8, v4')
        A('v_and_b32 v5, 3, v1')
        A('v_lshl_add_u32 v4, v5, 1, v4')
        A('v_bfe_u32 v5, v1, 3, 1')
        A('v_lshl_add_u32 v4, v5, 3, v4')
        A('v_lshrrev_b32 v5, 5, v1')
        A('v_lshl_add_u32 v4, v5, 6, v4')
        A('s_waitcnt lgkmcnt(0)')
        for stp in (16, 8, 4):
            for r in range(stp):
                A(f'v_add_f32 {v(KR + r)}, {v(KR + r)}, {v(KR + stp + r)}')
        for r in range(4):
            A(f'v_fma_f32 {v(KR + r)}, -{v(T)}, {v(KX + r)}, {v(KR + r)}')
        for r in range(4):
            A(f'v_mul_f32 {v(KR + r)}, {v(T + 1)}, {v(KR + r)}')
        KP = KR + 8
        for m in range(2):
            A(f'v_cvt_pk_bf16_f32 {v(KP + m)}, {v(KR + 2 * m)}, {v(KR + 2 * m + 1)}')
        A('s_cmp_lg_u32 s34, 0')
        A(f's_cbranch_scc1 {lv}')
        A('s_lshl_b32 s31, s26, 3')
        A('s_add_u32 s31, s31, s30')
        A(f'buffer_store_dwordx2 {v(KP, 2)}, v3, s[8:11], s31 offen{QWT}')
        A(f's_branch {le}')
        A.label(lv)
        A('s_lshl_b32 s31, s26, 7')
        A('s_add_u32 s31, s31, s30')
        for r in range(4):
            op = 'buffer_store_short' if r % 2 == 0 else 'buffer_store_short_d16_hi'
            A(f'{op} {v(KP + r // 2)}, v4, s[8:11], s31 offen offset:{1024 + r * 16}{QWT}')
        A.label(le)
    else:
        for m in range(4):
            A(f'v_cvt_pk_bf16_f32 {v(P + m)}, {v(ACCB + 2 * m)}, {v(ACCB + 2 * m + 1)}')
        if mode == 'res':
            A(f's_add_u32 s31, s49, {outbase}')
            C.vmem(f'buffer_store_dwordx4 {v(P, 4)}, v3, s[8:11], s31 offen{WT}', 'st')
            blk_stats(C, P, T)
            A('s_lshr_b32 s31, s49, 2')
            A(f's_add_u32 s31, s31, {sxout}')
            A('v_lshlrev_b32 v4, 3, v1')
            A('s_mov_b32 exec_hi, 0')
            C.vmem(f'buffer_store_dwordx2 {v(T, 2)}, v4, s[8:11], s31 offen{WT}', 'st')
            A('s_mov_b64 exec, -1')
            if after_store:
                after_store()
        else:
            A('v_and_b32 v4, 31, v1')
            A('v_lshlrev_b32 v4, 10, v4')
            A('v_lshrrev_b32 v5, 5, v1')
            A('v_lshl_add_u32 v4, v5, 4, v4')
            A('s_add_u32 s30, s27, s29')
            A('s_lshl_b32 s30, s30, 15')
            A('s_lshl_b32 s31, s28, 6')
            A('s_add_u32 s30, s30, s31')
            A('s_lshl_b32 s31, s26, 5')
            A('s_add_u32 s30, s30, s31')
            A(f'v_permlane32_swap_b32 {v(P)}, {v(P + 2)}')
            A(f'v_permlane32_swap_b32 {v(P + 1)}, {v(P + 3)}')
            C.vmem(f'buffer_store_dwordx4 {v(P, 4)}, v4, s[12:15], s30 offen', 'st')


def qkv_wstep(C, st, n=1):
    A = C.A
    if st == 0:
        g3_waddr(C, (5, 6), 32, WQKVP)
    per = -(-8 // n)
    for i in range(st * per, min(8, (st + 1) * per)):
        g3_wload(C, (5, 6), i, 128)
    if st == n:
        A('s_lshl_b32 s30, s20, 12')
        A(f's_add_u32 s30, s30, {WQKVP + 16 * 32 * KB}')
        l = C.lab('kw')
        A('s_cmp_ge_u32 s24, 2')
        A(f's_cbranch_scc1 {l}')
        for k in range(4):
            A(f'buffer_load_dwordx4 {v(KVW + 4 * k, 4)}, v3, s[8:11], s30 offen offset:{k * 1024}')
        A.label(l)


def qkv_wloads(C):
    qkv_wstep(C, 0)
    qkv_wstep(C, 1)


KVR4, XF0, ST4, RED4 = 0, 36 * KB, 68 * KB, 80 * KB
G4_ORD = [0, 1, 4, 5, 8, 9, 12, 13, 2, 3, 6, 7, 10, 11, 14, 15]


def g4_ids(C):
    A = C.A
    A('s_and_b32 s18, s22, 3')
    A('s_lshl_b32 s30, s21, 2')
    A('s_add_u32 s18, s18, s30')
    A('s_and_b32 s30, s22, 12')
    A('s_add_u32 s30, s30, s25')
    A('s_lshl_b32 s30, s30, 1')
    A('s_add_u32 s30, s30, s26')
    A('s_lshl_b32 s19, s18, 5')
    A('s_add_u32 s19, s19, s30')
    A('s_lshl_b32 s19, s19, 10')
    A('s_lshr_b32 s3, s22, 2')
    A('s_and_b32 s30, s21, 3')
    A('s_xor_b32 s3, s3, s30')


def g4_waddr(C, vreg, wbase):
    A = C.A
    A('s_lshl_b32 s30, s26, 8')
    A(f'v_xor_b32 {v(vreg)}, s30, v3')
    A('s_and_b32 s30, s19, 0x7fff')
    A('s_lshl_b32 s30, s30, 4')
    A(f's_add_u32 s30, s30, {wbase}')
    A(f'v_add_u32 {v(vreg)}, s30, {v(vreg)}')


def g4_wreg(mode, i):
    if mode == 'qkv':
        return 128 + 4 * i
    return 224 + 4 * i if i < 8 else 64 + 4 * (i - 8)


def g4_wload(C, vreg, i, mode):
    so, im = soff(G4_ORD[i])
    C.vmem(f'buffer_load_dwordx4 {v(g4_wreg(mode, i), 4)}, {v(vreg)}, s[8:11], {so} offen offset:{im}', 'w')


def g4_pre(C, mode, xbase, resbase=None, raw=False):
    A = C.A
    EX = 96
    A('s_lshl_b32 s30, s18, 15')
    A('s_lshl_b32 s48, s20, 12')
    A('s_add_u32 s30, s30, s48')
    A(f's_add_u32 s30, s30, {xbase}')
    A('v_add_u32 v5, s30, v3')
    A('s_lshl_b32 s30, s26, 14')
    A(f's_add_u32 s30, s30, {XF0}')
    A('v_add_u32 v6, s30, v3')
    A(f'v_add_u32 v14, s48, v3')
    A(f's_add_u32 s48, s48, {XF0}')
    A('s_lshl_b32 s30, s20, 11')
    A(f's_add_u32 s30, s30, {RED4}')
    A('v_add_u32 v8, s30, v3')
    A('v_xor_b32 v7, 0x2000, v8')
    if mode == 'qkv':
        A('v_lshrrev_b32 v2, 5, v1')
        if not raw:
            A('v_lshlrev_b32 v4, 4, v2')
            A('s_and_b32 s31, s19, 0x7fff')
            A('s_lshr_b32 s31, s31, 4')
            A(f's_add_u32 s31, s31, {CSQKV}')
            C.vmem(f'buffer_load_dwordx4 {v(EX, 4)}, v4, s[8:11], s31 offen', 'ex')
            C.vmem(f'buffer_load_dwordx4 {v(EX + 4, 4)}, v4, s[8:11], s31 offen offset:32', 'ex')
            A('s_lshl_b32 s31, s25, 5')
            A(f's_add_u32 s31, s31, {CSQKV + 2048}')
            C.vmem(f'buffer_load_dwordx4 {v(EX + 8, 4)}, v4, s[8:11], s31 offen', 'ex')
        A('v_and_b32 v9, 31, v1')
        A('v_lshlrev_b32 v9, 3, v9')
        A(f'v_add_u32 v11, {ST4}, v9')
        A('s_lshl_b32 s30, s20, 8')
        A('v_add_u32 v10, s30, v11')
        A('v_lshl_add_u32 v9, v2, 9, v9')
        A('s_lshl_b32 s30, s18, 13')
        A('s_lshl_b32 s31, s20, 10')
        A('s_add_u32 s30, s30, s31')
        A(f's_add_u32 s30, s30, {resbase}')
        A('v_add_u32 v9, s30, v9')
        A('v_add_u32 v12, s48, v3')
        A('s_lshl_b32 s30, s25, 10')
        A(f's_add_u32 s30, s30, {KVR4}')
        A('v_add_u32 v13, s30, v3')
        A('v_bfe_u32 v15, v1, 4, 1')
        A('v_lshlrev_b32 v15, 9, v15')
        A('v_bfe_u32 v4, v1, 2, 1')
        A('v_lshl_add_u32 v15, v4, 8, v15')
        A('v_and_b32 v4, 3, v1')
        A('v_lshl_add_u32 v15, v4, 1, v15')
        A('v_bfe_u32 v4, v1, 3, 1')
        A('v_lshl_add_u32 v15, v4, 3, v15')
        A('v_lshl_add_u32 v15, v2, 6, v15')
    elif resbase is None:
        A('v_and_b32 v2, 31, v1')
        A('v_lshlrev_b32 v2, 10, v2')
        A('v_lshrrev_b32 v4, 5, v1')
        A('v_lshl_add_u32 v2, v4, 3, v2')
        A('s_lshl_b32 s30, s18, 15')
        A('s_and_b32 s31, s19, 0x7fff')
        A('s_lshr_b32 s31, s31, 5')
        A('s_add_u32 s30, s30, s31')
        C.vmem(f'buffer_load_dwordx2 {v(EX, 2)}, v2, s[12:15], s30 offen', 'ex')
        C.vmem(f'buffer_load_dwordx2 {v(EX + 2, 2)}, v2, s[12:15], s30 offen offset:16', 'ex')
    else:
        A(f's_add_u32 s31, s19, {resbase}')
        C.vmem(f'buffer_load_dwordx4 {v(EX, 4)}, v3, s[8:11], s31 offen', 'ex')


def ln_stats(A, T):
    for stp in (8, 4, 2):
        for e in range(stp):
            A(f'v_add_f32 {v(T + e)}, {v(T + e)}, {v(T + e + stp)}')
    A(f'v_mul_f32 {v(T)}, {f32(1.0 / 512)}, {v(T)}')
    A(f'v_mul_f32 {v(T + 1)}, {f32(1.0 / 512)}, {v(T + 1)}')
    A(f'v_fma_f32 {v(T + 1)}, -{v(T)}, {v(T)}, {v(T + 1)}')
    A(f'v_max_f32 {v(T + 1)}, 0, {v(T + 1)}')
    A(f'v_add_f32 {v(T + 1)}, {f32(1e-5)}, {v(T + 1)}')
    A(f'v_rsq_f32 {v(T + 1)}, {v(T + 1)}')


def g4_main(C, mode, outbase=None, sxout=None, kvf=None, kfl=None, hook_red=None, raw=None, endlab=None):
    A = C.A
    ACC, XR, EX = 16, 32, 96
    KW, KA, KR, T = 192, 208, 224, 108
    if not raw:
        A('s_mov_b32 m0, s48')
        A('s_nop 0')
        for k in range(4):
            C.vmem(f'buffer_load_dwordx4 v5, s[8:11], 0 offen offset:{k * 1024} lds', f'x{k}')

    def rd(i):
        A(f'ds_read_b128 {v(XR + 4 * (i % 8), 4)}, v6 offset:{G4_ORD[i] * 1024}')

    def mf(i):
        c = '0' if i == 0 else v(ACC, 16)
        A(f'v_mfma_f32_32x32x16_bf16 {v(ACC, 16)}, {v(g4_wreg(mode, i), 4)}, {v(XR + 4 * (i % 8), 4)}, {c}')

    def wq_loads():
        for i in range(16):
            so, im = soff(G4_ORD[i])
            A(f'buffer_load_dwordx4 {v(128 + 4 * i, 4)}, v64, s[8:11], {so} offen offset:{im}')

    if mode == 'qkv':
        A('s_add_u32 s35, s3, s26')
        if raw:
            raw['front']()
        else:
            for e in range(2):
                C.vmem(f'buffer_load_dwordx2 {v(T + 2 * e, 2)}, v9, s[8:11], 0 offen offset:{e * 256}', 'sx')
            l1, l2 = C.lab('w1'), C.lab('w2')
            A('s_cmp_eq_u32 s3, 0')
            A(f's_cbranch_scc1 {l1}')
            flag_b(C)
            wq_loads()
            A('s_waitcnt vmcnt(16)')
            A(f's_branch {l2}')
            A.label(l1)
            A('s_waitcnt vmcnt(0)')
            A.label(l2)
            C.vm = []
            C.stamp()
        lk = C.lab('k4')
        A('s_cmp_lg_u32 s3, 0')
        A(f's_cbranch_scc1 {lk}')
        if raw:
            raw['kvw']()
        else:
            for k in range(4):
                A(f'ds_read_b128 {v(KR + 4 * k, 4)}, v12 offset:{k * 1024}')
        for k in range(4):
            if not raw:
                A(f's_waitcnt lgkmcnt({3 - k})')
            A(f'v_mfma_f32_32x32x16_bf16 {v(KA, 16)}, {v(KW + 4 * k, 4)}, {v(KR + 4 * k, 4)}, {"0" if k == 0 else v(KA, 16)}')
        A.label(lk)
        A(f'v_add_f32 {v(T)}, {v(T)}, {v(T + 2)}')
        A(f'v_add_f32 {v(T + 1)}, {v(T + 1)}, {v(T + 3)}')
        A(f'v_mov_b32 {v(T + 2)}, {v(T)}')
        A(f'v_mov_b32 {v(T + 3)}, {v(T + 1)}')
        A('s_nop 1')
        swap_add(A, T, T + 2)
        swap_add(A, T + 1, T + 3)
        A(f'ds_write_b64 v10, {v(T, 2)}')
        A(f'v_mov_b32 {v(T + 2)}, 0')
        A(f'v_mov_b32 v9, {ST4 + 8192}')
        A(f'ds_write_b32 v9, {v(T + 2)}')
        lk = C.lab('k5')
        A('s_cmp_lg_u32 s3, 0')
        A(f's_cbranch_scc1 {lk}')
        for k in range(4):
            A(f'ds_write_b128 v14, {v(KA + 4 * k, 4)} offset:{k * 1024}')
        A.label(lk)
        A('s_waitcnt lgkmcnt(0)')
        A('s_barrier')
        for ww in range(8):
            A(f'ds_read_b64 {v(T + 2 * ww, 2)}, v11 offset:{ww * 256}')
        lv, le, lf = C.lab('v6'), C.lab('e6'), C.lab('f6')
        A('s_cmp_lg_u32 s35, 0')
        A(f's_cbranch_scc1 {le}')
        A('s_setprio 3')
        if FINE == 3:
            C.stamp()
        A('s_waitcnt lgkmcnt(4)')
        for ww in range(8):
            A(f'ds_read_b128 {v(KR + 4 * ww, 4)}, v13 offset:{ww * 4096}')
        A('s_waitcnt lgkmcnt(8)')
        for r in range(16):
            A(f'v_mov_b32 {v(KA + r)}, {v(T + r)}')
        ln_stats(A, KA)
        A('s_lshl_b32 s30, s18, 11')
        A(f's_add_u32 s30, s30, {kvf}')
        A('s_waitcnt lgkmcnt(0)')
        if raw:
            raw['kvcs0']()
        for stp in (16, 8, 4):
            for r in range(stp):
                A(f'v_add_f32 {v(KR + r)}, {v(KR + r)}, {v(KR + stp + r)}')
        if raw:
            raw['kvcs1']()
        for r in range(4):
            A(f'v_fma_f32 {v(KR + r)}, -{v(KA)}, {v(EX + 8 + r)}, {v(KR + r)}')
        for r in range(4):
            A(f'v_mul_f32 {v(KR + r)}, {v(KA + 1)}, {v(KR + r)}')
        for m in range(2):
            A(f'v_cvt_pk_bf16_f32 {v(KR + 8 + m)}, {v(KR + 2 * m)}, {v(KR + 2 * m + 1)}')
        A('s_cmp_ge_u32 s20, 2')
        A(f's_cbranch_scc1 {lv}')
        A('s_lshl_b32 s31, s20, 3')
        A('s_add_u32 s31, s31, s30')
        A(f'buffer_store_dwordx2 {v(KR + 8, 2)}, v3, s[8:11], s31 offen sc0 sc1')
        A(f's_branch {lf}')
        A.label(lv)
        A('s_lshl_b32 s31, s29, 10')
        A(f's_add_u32 s31, s31, {ST4 + 4096}')
        A('v_add_u32 v15, s31, v15')
        for r in range(4):
            op = 'ds_write_b16' if r % 2 == 0 else 'ds_write_b16_d16_hi'
            A(f'{op} v15, {v(KR + 8 + r // 2)} offset:{r * 16}')
        A('v_lshrrev_b32 v2, 3, v1')
        A('v_lshlrev_b32 v2, 8, v2')
        A(f'v_and_b32 {v(KR)}, 7, v1')
        A(f'v_lshl_add_u32 v2, {v(KR)}, 4, v2')
        A('v_add_u32 v15, s31, v2')
        A('s_mov_b32 exec_hi, 0')
        A(f'ds_read_b128 {v(KR + 12, 4)}, v15')
        A('s_lshl_b32 s31, s29, 7')
        A('s_add_u32 s31, s31, s30')
        A('s_waitcnt lgkmcnt(0)')
        A(f'buffer_store_dwordx4 {v(KR + 12, 4)}, v2, s[8:11], s31 offen offset:1024 sc0 sc1')
        A('s_mov_b64 exec, -1')
        A.label(lf)
        lg = C.lab('g6')
        if FINE == 3:
            C.stamp()
        A('s_lshl_b32 s30, s18, 7')
        A(f's_add_u32 s30, s30, {kfl}')
        if raw:
            raw['zchk']()
        A('s_mov_b64 exec, 1')
        A('s_waitcnt vmcnt(0)')
        A('ds_add_rtn_u32 v2, v9, v4')
        A('s_waitcnt lgkmcnt(0)')
        A('v_cmp_eq_u32 vcc, 3, v2')
        A('s_cbranch_vccz ' + lg)
        A('buffer_store_dword v4, v0, s[8:11], s30 offen sc0 sc1')
        A.label(lg)
        A('s_mov_b64 exec, -1')
        A('s_setprio 0')
        if FINE == 3:
            C.stamp()
        A.label(le)
        flag_b(C)
        A('s_waitcnt lgkmcnt(0)')
        if raw:
            raw['wprep']()
        else:
            l3 = C.lab('w3')
            A('s_cmp_lg_u32 s3, 0')
            A(f's_cbranch_scc1 {l3}')
            C.flagb = True
            flag_b(C)
            wq_loads()
            A.label(l3)
        if raw:
            raw['loop'](rd, mf)
        else:
            for i in range(8):
                rd(i)
            ln_stats(A, T)
            for i in range(16):
                A(f's_waitcnt lgkmcnt({7 if i < 8 else 15 - i}) vmcnt({15 - i})')
                mf(i)
                if i < 8:
                    rd(i + 8)
    else:
        def wl(i):
            so, im = soff(G4_ORD[i])
            C.vmem(f'buffer_load_dwordx4 {v(g4_wreg(mode, i), 4)}, v116, s[8:11], {so} offen offset:{im}', f'w{i}')
        if WO_LATE:
            for i in range(8, 8 + WO_L0):
                wl(i)
        C.wait('x1')
        A('s_barrier')
        C.stamp()
        for i in range(8):
            rd(i)
        if WO_LATE:
            for i in range(8 + WO_L0, 16):
                wl(i)
        for i in range(4):
            A(f's_waitcnt lgkmcnt({7 - i})')
            mf(i)
        C.wait('x3')
        A('s_barrier')
        for i in range(8, 12):
            rd(i)
        for i in range(4, 8):
            A('s_waitcnt lgkmcnt(7)')
            mf(i)
            rd(i + 8)
        flag_b(C)
        for i in range(8, 16):
            C.wait(f'w{i}', f'lgkmcnt({15 - i})')
            mf(i)
            if hook_red and i >= 8:
                hook_red(i - 8)
    C.stamp()
    if mode == 'qkv':
        kv_setup(C, kvf, kfl)
        A(f'v_mul_f32 {v(T + 2)}, {f32(QSCALE)}, {v(T + 1)}')
        if raw:
            raw['cs0']()
    else:
        C.wait('ex')
        TT = XR
        for m in range(4):
            A(f'v_lshlrev_b32 {v(TT + 2 * m)}, 16, {v(EX + m)}')
            A(f'v_and_b32 {v(TT + 2 * m + 1)}, 0xffff0000, {v(EX + m)}')
        A('s_nop 3')
    for h2 in range(2):
        A(f'ds_write_b128 v7, {v(ACC + 8 + 4 * h2, 4)} offset:{h2 * 1024}')
    if mode == 'qkv':
        if not raw:
            for r in range(8):
                A(f'v_fma_f32 {v(ACC + r)}, -{v(T)}, {v(EX + r)}, {v(ACC + r)}')
    else:
        for r in range(8):
            A(f'v_add_f32 {v(ACC + r)}, {v(ACC + r)}, {v(XR + r)}')
    A('s_waitcnt lgkmcnt(0)')
    A('s_barrier')
    for h2 in range(2):
        A(f'ds_read_b128 {v(ACC + 8 + 4 * h2, 4)}, v8 offset:{h2 * 1024}')
    if mode == 'qkv':
        if FINE == 3:
            C.stamp()
        kv_wait(C, 1, endlab)
        if FINE == 3:
            C.stamp()
        att_kvdma(C, 0)
        kv_flagload(C)
    if raw:
        raw['cs']()
        for r in range(8):
            A(f'v_fma_f32 {v(ACC + r)}, -{v(T)}, {v(EX + r)}, {v(ACC + r)}')
    A('s_waitcnt lgkmcnt(0)')
    for r in range(8):
        A(f'v_add_f32 {v(ACC + r)}, {v(ACC + r)}, {v(ACC + 8 + r)}')
    if mode == 'qkv':
        for r in range(8):
            A(f'v_mul_f32 {v(ACC + r)}, {v(T + 2)}, {v(ACC + r)}')
        for m in range(4):
            A(f'v_cvt_pk_bf16_f32 {v(124 + m)}, {v(ACC + 2 * m)}, {v(ACC + 2 * m + 1)}')
        A('s_barrier')
    else:
        P = ACC + 8
        for m in range(4):
            A(f'v_cvt_pk_bf16_f32 {v(P + m)}, {v(ACC + 2 * m)}, {v(ACC + 2 * m + 1)}')
        A(f's_add_u32 s31, s19, {outbase}')
        C.vmem(f'buffer_store_dwordx4 {v(P, 4)}, v3, s[8:11], s31 offen{WT}', 'st')
        blk_stats(C, P, XR)
        A('s_lshr_b32 s31, s19, 2')
        A(f's_add_u32 s31, s31, {sxout}')
        A('v_lshlrev_b32 v4, 3, v1')
        A('s_mov_b32 exec_hi, 0')
        C.vmem(f'buffer_store_dwordx2 {v(XR, 2)}, v4, s[8:11], s31 offen{WT}', 'st')
        A('s_mov_b64 exec, -1')


def qkv4_wstep(C, st, n):
    pass


def qkv4_wrest(C):
    A = C.A
    l = C.lab('kw')
    A('s_lshl_b32 s30, s20, 12')
    A(f's_add_u32 s30, s30, {WQKVP + 16 * 32 * KB}')
    A('s_cmp_lg_u32 s3, 0')
    A(f's_cbranch_scc1 {l}')
    for k in range(4):
        A(f'buffer_load_dwordx4 {v(192 + 4 * k, 4)}, v3, s[8:11], s30 offen offset:{k * 1024}')
    A.label(l)


def att_kvdma(C, r):
    A = C.A
    A(f's_add_u32 s30, s39, {r * 16384}')
    A('s_and_b32 s30, s30, 0x1ffff')
    A(f's_add_u32 m0, s37, {r * 8 * KVT}')
    A('s_add_u32 s30, s30, s38')
    A('buffer_load_dwordx4 v3, s[8:11], s30 offen lds')
    A('buffer_load_dwordx4 v3, s[8:11], s30 offen offset:1024 lds')


def kv_flagload(C):
    A = C.A
    A('s_mov_b64 exec, 0xff')
    A('buffer_load_dword v2, v0, s[8:11], s33 offen sc1')
    A('s_mov_b64 exec, -1')


def kv_setup(C, kvf, kfl):
    A = C.A
    A(f's_mul_i32 s37, s20, {KVT}')
    A('s_lshl_b32 s38, s20, 11')
    A(f's_add_u32 s38, s38, {kvf}')
    A('s_lshr_b32 s30, s21, 1')
    A('s_lshl_b32 s39, s30, 14')
    A('v_add_u32 v0, s30, v1')
    A('v_and_b32 v0, 7, v0')
    A('v_lshlrev_b32 v0, 10, v0')
    A('s_lshl_b32 s33, s20, 7')
    A(f's_add_u32 s33, s33, {kfl}')
    kv_flagload(C)


def kv_wait(C, mask, endlab):
    A = C.A
    lp, lpd = C.lab('kp'), C.lab('kpd')
    A('s_mov_b32 s31, 0')
    A('s_mov_b64 exec, 0xff')
    A.label(lp)
    A('s_add_u32 s31, s31, 1')
    A('s_waitcnt vmcnt(0)')
    A('v_cmp_ne_u32 vcc, 0, v2')
    A(f's_and_b32 s30, vcc_lo, {mask}')
    A(f's_cmp_eq_u32 s30, {mask}')
    A(f's_cbranch_scc1 {lpd}')
    A(f's_sleep {KV_SLEEP}')
    A('buffer_load_dword v2, v0, s[8:11], s33 offen sc1')
    A(f's_cmp_lt_u32 s31, {1 << 21}')
    A(f's_cbranch_scc1 {lp}')
    A(f's_branch {endlab}')
    A.label(lpd)
    A('s_mov_b64 exec, -1')


def att_phase(C, kvf, kfl, endlab, stubs, fixed={}, pf0=None, pre_hook=None, loadq=True, early=False):
    A = C.A
    tg = C.tag
    Q, CN, S0, S1, O, P, KF, VF, VK, VV, T = 124, 8, 24, 40, 56, 72, 80, 88, 104, 105, 106
    VV1 = 111
    S = [S0, S1]
    A(f's_add_u32 s36, s19, {C.B["OF"]}')
    if loadq:
        A(f's_add_u32 s31, s19, {C.B["QF"]}')
        C.vmem(f'buffer_load_dwordx4 {v(Q, 4)}, v3, s[8:11], s31 offen', 'q')
        flag_b(C)
    def kvdma(r):
        att_kvdma(C, r)
    if pre_hook:
        pre_hook()
    A(f'v_mov_b32 {v(VK)}, v3')
    A(f'v_and_b32 {v(T)}, 15, v1')
    A(f'v_lshrrev_b32 {v(T + 1)}, 5, v1')
    A(f'v_lshl_add_u32 {v(T)}, {v(T + 1)}, 4, {v(T)}')
    A(f'v_lshlrev_b32 {v(T)}, 4, {v(T)}')
    A(f'v_add_u32 {v(VV)}, 1024, {v(T)}')
    A(f'v_add_u32 {v(VV1)}, 1536, {v(T)}')
    A(f'v_and_b32 {v(T + 1)}, 31, v1')
    A(f'v_cmp_eq_u32 vcc, 16, {v(T + 1)}')
    A(f'v_mov_b32 {v(T + 2)}, 2048')
    A('s_nop 0')
    A(f'v_cndmask_b32 {v(VV)}, {v(VV)}, {v(T + 2)}, vcc')
    A(f'v_cndmask_b32 {v(VV1)}, {v(VV1)}, {v(T + 2)}, vcc')
    A(f'v_cmp_lt_u32 vcc, 16, {v(T + 1)}')
    A(f'v_mov_b32 {v(T + 2)}, 2064')
    A('s_nop 0')
    A(f'v_cndmask_b32 {v(VV)}, {v(VV)}, {v(T + 2)}, vcc')
    A(f'v_cndmask_b32 {v(VV1)}, {v(VV1)}, {v(T + 2)}, vcc')
    for r in range(16):
        A(f'v_mov_b32 {v(O + r)}, 0')
    for m in range(4, 8):
        A(f'v_mov_b32 {v(P + m)}, 0')
    for m in range(4):
        A(f'v_mov_b32 {v(VF + 12 + m)}, 0')
        A(f'v_mov_b32 {v(P + m)}, 0x3f803f80')
    A(f'v_mul_u32_u24 {v(T)}, {KVT}, v1')
    lcw = C.lab('cw')
    A('s_cmp_lg_u32 s20, 7')
    A(f's_cbranch_scc1 {lcw}')
    A(f'ds_write_b128 {v(T)}, {v(P, 4)} offset:2048')
    A(f'ds_write_b128 {v(T)}, {v(P + 4, 4)} offset:2064')
    A.label(lcw)
    lnd = C.lab('nd')
    A('s_waitcnt vmcnt(0) lgkmcnt(0)')
    A('v_cmp_ne_u32 vcc, 0, v2')
    A('s_barrier')
    A('s_and_b32 s32, vcc_lo, 0xff')
    A('s_cmp_lg_u32 s32, 0xff')
    A(f's_cbranch_scc1 {lnd}')
    for r in range(1, 4):
        kvdma(r)
    A.label(lnd)
    C.vm = []
    C.stamp()

    def rdK(buf, t):
        A(f'ds_read_b128 {v(KF + buf * 4, 4)}, {v(VK)} offset:{t * KVT}')

    def rdV(buf, t):
        A(f'ds_read_b128 {v(VF + buf * 8, 4)}, {v(VV)} offset:{t * KVT}')
        A(f'ds_read_b128 {v(VF + buf * 8 + 4, 4)}, {v(VV1)} offset:{t * KVT}')

    rdK(0, 0)
    rdK(1, 1)
    rdV(0, 0)
    A('s_waitcnt lgkmcnt(3)')
    A(f'v_mfma_f32_32x32x16_bf16 {v(S0, 16)}, {v(KF, 4)}, {v(Q, 4)}, 0')
    A('s_nop 11')
    A(f'v_max3_f32 {v(T)}, {v(S0)}, {v(S0 + 1)}, {v(S0 + 2)}')
    for r in range(3, 15, 2):
        A(f'v_max3_f32 {v(T)}, {v(T)}, {v(S0 + r)}, {v(S0 + r + 1)}')
    A(f'v_max_f32 {v(T)}, {v(T)}, {v(S0 + 15)}')
    A(f'v_mov_b32 {v(T + 1)}, {v(T)}')
    A('s_nop 1')
    A(f'v_permlane32_swap_b32 {v(T)}, {v(T + 1)}')
    A(f'v_max_f32 {v(T)}, {v(T)}, {v(T + 1)}')
    for r in range(16):
        A(f'v_sub_f32 {v(CN + r)}, 0, {v(T)}')
    for r in range(16):
        A(f'v_sub_f32 {v(S0 + r)}, {v(S0 + r)}, {v(T)}')
    A('s_setprio 3')
    C.stamp()
    UN = ATT_UN
    NIT = 64 // UN
    queue = list(stubs)
    assert UN == 4
    first_pf = ATT_B2
    pf0 = pf0 or first_pf
    per = -(-len(queue) // (NIT - pf0 - ATT_PFEND))
    prio = {int(NIT * 0.5): 2, int(NIT * 0.78): 1, NIT - 1: 0}
    if PRIOV == 1:
        prio = {NIT - 1: 0}
    if PRIOV == 2:
        prio = {6: 2, 11: 1, 14: 0}
    if PRIOV == 3:
        prio = {k: (3 if k % 2 == 0 else 0) for k in range(NIT)}
    for it in range(NIT):
        if it == 1:
            ld = C.lab('dn')
            A('s_cmp_eq_u32 s32, 0xff')
            A(f's_cbranch_scc1 {ld}')
            kv_flagload(C)
            kv_wait(C, 0xff, endlab)
            for r in range(1, 4):
                kvdma(r)
            A.label(ld)
            for r in range(4, 8):
                kvdma(r)
            A('s_waitcnt vmcnt(12)')
            A('s_barrier')
        if it == first_pf:
            A('s_waitcnt vmcnt(0)')
            A('s_barrier')
        if it in prio:
            A(f's_setprio {prio[it]}')
        if it in fixed:
            if FINE == 2:
                C.stamp()
            fixed[it]()
            if FINE == 2:
                C.stamp()
        if it >= pf0:
            for _ in range(per):
                if queue:
                    queue.pop(0)()
        A('s_call_b64 s[34:35], att_body')
    assert not queue
    A(f'v_mfma_f32_32x32x16_bf16 {v(O, 16)}, {v(VF + 8 + 4, 4)}, {v(P + 4, 4)}, {v(O, 16)}')
    A('s_mov_b32 s39, 0')
    C.stamp()
    A('s_waitcnt lgkmcnt(0)')
    A('s_nop 10')
    A.label(f'{tg}_fin')
    A(f'v_mov_b32 {v(T)}, {v(O + 8)}')
    A(f'v_mov_b32 {v(T + 1)}, {v(O + 8)}')
    A(f'v_mul_f32 {v(T + 2)}, 0, {v(O)}')
    A(f'v_fma_f32 {v(T + 2)}, {v(O + 1)}, 0, {v(T + 2)}')
    A(f'v_permlane32_swap_b32 {v(T)}, {v(T + 1)}')
    for r in range(2, 8):
        A(f'v_fma_f32 {v(T + 2)}, {v(O + r)}, 0, {v(T + 2)}')
    A(f'v_add_f32 {v(T + 2)}, {v(T + 2)}, {v(T)}')
    A(f'v_mov_b32 {v(T + 3)}, {f32(2.0 ** 30)}')
    A(f'v_cmp_nle_f32 vcc, {v(T + 2)}, {v(T + 3)}')
    A(f'v_rcp_f32 {v(T)}, {v(T)}')
    A('s_cmp_eq_u32 s39, 99')
    A(f's_cbranch_scc1 {tg}_store')
    A(f's_cbranch_vccnz {tg}_slow')
    A.label(f'{tg}_store')
    for r in range(8):
        A(f'v_mul_f32 {v(O + r)}, {v(T)}, {v(O + r)}')
    for m in range(4):
        A(f'v_cvt_pk_bf16_f32 {v(P + m)}, {v(O + 2 * m)}, {v(O + 2 * m + 1)}')
    C.vmem(f'buffer_store_dwordx4 {v(P, 4)}, v3, s[8:11], s36 offen{WT}', 'st')

    def tail(with_body):
        if with_body:
            A.raw('.p2align 6')
            A.label('att_body')
            for t in range(UN):
                cur, nxt = t & 1, (t + 1) & 1
                Sc, Sn = S[cur], S[nxt]
                A('s_waitcnt lgkmcnt(2)')
                A(f'v_mfma_f32_32x32x16_bf16 {v(Sn, 16)}, {v(KF + nxt * 4, 4)}, {v(Q, 4)}, {v(CN, 16)}')
                rdK(cur, t + 2)
                for r in range(6):
                    A(f'v_exp_f32 {v(Sc + r)}, {v(Sc + r)}')
                A(f'v_mfma_f32_32x32x16_bf16 {v(O, 16)}, {v(VF + nxt * 8 + 4, 4)}, {v(P + 4, 4)}, {v(O, 16)}')
                for r in range(6, 8):
                    A(f'v_exp_f32 {v(Sc + r)}, {v(Sc + r)}')
                for m in range(4):
                    A(f'v_cvt_pk_bf16_f32 {v(P + m)}, {v(Sc + 2 * m)}, {v(Sc + 2 * m + 1)}')
                A(f'v_exp_f32 {v(Sc + 8)}, {v(Sc + 8)}')
                A(f'v_exp_f32 {v(Sc + 9)}, {v(Sc + 9)}')
                A('s_waitcnt lgkmcnt(1)')
                A(f'v_mfma_f32_32x32x16_bf16 {v(O, 16)}, {v(VF + cur * 8, 4)}, {v(P, 4)}, {v(O, 16)}')
                rdV(nxt, t + 1)
                for r in range(10, 16):
                    A(f'v_exp_f32 {v(Sc + r)}, {v(Sc + r)}')
                for m in range(4, 8):
                    A(f'v_cvt_pk_bf16_f32 {v(P + m)}, {v(Sc + 2 * m)}, {v(Sc + 2 * m + 1)}')
            if EXPT:
                n0 = max(i for i, l in enumerate(A.lines) if l.startswith('att_body'))
                body = A.lines[n0:]
                if EXPT == 1:
                    body = [l for l in body if not ('mfma' in l and v(P + 4, 4) in l)]
                if EXPT == 2:
                    body = [l if not ('mfma' in l and v(P + 4, 4) in l) else f'    v_mfma_f32_16x16x32_bf16 v[120:123], {v(VF + 4, 4)}, {v(P + 4, 4)}, v[120:123]' for l in body]
                if EXPT == 3:
                    body = [l.replace('lgkmcnt(2)', 'lgkmcnt(1)') for l in body if not ('ds_read' in l and v(VV1) in l)]
                if EXPT == 4:
                    body = [l if not ('mfma' in l and v(P + 4, 4) in l) else f'    v_mfma_f32_16x16x32_bf16 v[120:123], {v(VF + 4, 4)}, {v(P + 4, 4)}, v[120:123]' for l in body]
                    body = [l.replace('lgkmcnt(2)', 'lgkmcnt(1)') for l in body if not ('ds_read' in l and v(VV1) in l)]
                if EXPT == 5:
                    body = ['att_body:']
                    def E(x): body.append('    ' + x)
                    for t in range(UN):
                        cur, nxt = t & 1, (t + 1) & 1
                        Sc, Sn = S[cur], S[nxt]
                        def cv(m): E(f'v_cvt_pkrtz_f16_f32 {v(Sc + 2 * m)}, {v(Sc + 2 * m)}, {v(Sc + 2 * m + 1)}')
                        def ex(m, h): E(f'v_exp_f16_sdwa {v(P + m)}, {v(Sc + 2 * m)} dst_sel:WORD_{h} dst_unused:UNUSED_PRESERVE src0_sel:WORD_{h}')
                        E('s_waitcnt lgkmcnt(2)')
                        E(f'v_mfma_f32_32x32x16_bf16 {v(Sn, 16)}, {v(KF + nxt * 4, 4)}, {v(Q, 4)}, {v(CN, 16)}')
                        E(f'ds_read_b128 {v(KF + cur * 4, 4)}, {v(VK)} offset:{(t + 2) * KVT}')
                        for m in range(4): cv(m)
                        for m in range(4): ex(m, 0)
                        E(f'v_mfma_f32_32x32x16_f16 {v(O, 16)}, {v(VF + nxt * 8 + 4, 4)}, {v(P + 4, 4)}, {v(O, 16)}')
                        for m in range(4): ex(m, 1)
                        for m in range(4, 8): cv(m)
                        E('s_waitcnt lgkmcnt(1)')
                        E(f'v_mfma_f32_32x32x16_f16 {v(O, 16)}, {v(VF + cur * 8, 4)}, {v(P, 4)}, {v(O, 16)}')
                        E(f'ds_read_b128 {v(VF + nxt * 8, 4)}, {v(VV)} offset:{(t + 1) * KVT}')
                        E(f'ds_read_b128 {v(VF + nxt * 8 + 4, 4)}, {v(VV1)} offset:{(t + 1) * KVT}')
                        for m in range(4, 8): ex(m, 0)
                        for m in range(4, 8): ex(m, 1)
                A.lines[n0:] = body
            A(f'v_add_u32 {v(VK)}, {UN * KVT}, {v(VK)}')
            A(f'v_add_u32 {v(VV)}, {UN * KVT}, {v(VV)}')
            A(f'v_add_u32 {v(VV1)}, {UN * KVT}, {v(VV1)}')
            A('s_setpc_b64 s[34:35]')
        A.label(f'{tg}_slow')
        A(f'v_subrev_u32 {v(VK)}, {64 * KVT}, {v(VK)}')
        A(f'v_subrev_u32 {v(VV)}, {64 * KVT}, {v(VV)}')
        A(f'v_subrev_u32 {v(VV1)}, {64 * KVT}, {v(VV1)}')
        for r in range(16):
            A(f'v_mov_b32 {v(O + r)}, 0')
        M = T + 4
        A(f'v_sub_f32 {v(M)}, 0, {v(CN)}')
        A.label(f'{tg}_sloop')
        rdK(0, 0)
        rdV(0, 0)
        A('s_waitcnt lgkmcnt(0)')
        A(f'v_mfma_f32_32x32x16_bf16 {v(S0, 16)}, {v(KF, 4)}, {v(Q, 4)}, 0')
        A('s_nop 11')
        A(f'v_max3_f32 {v(T)}, {v(S0)}, {v(S0 + 1)}, {v(S0 + 2)}')
        for r in range(3, 15, 2):
            A(f'v_max3_f32 {v(T)}, {v(T)}, {v(S0 + r)}, {v(S0 + r + 1)}')
        A(f'v_max3_f32 {v(T)}, {v(T)}, {v(S0 + 15)}, {v(M)}')
        A(f'v_mov_b32 {v(T + 1)}, {v(T)}')
        A('s_nop 1')
        A(f'v_permlane32_swap_b32 {v(T)}, {v(T + 1)}')
        A(f'v_max_f32 {v(T)}, {v(T)}, {v(T + 1)}')
        A(f'v_sub_f32 {v(T + 1)}, {v(M)}, {v(T)}')
        A(f'v_exp_f32 {v(T + 1)}, {v(T + 1)}')
        A(f'v_mov_b32 {v(M)}, {v(T)}')
        for r in range(16):
            A(f'v_sub_f32 {v(S0 + r)}, {v(S0 + r)}, {v(T)}')
        for r in range(16):
            A(f'v_exp_f32 {v(S0 + r)}, {v(S0 + r)}')
        for r in range(16):
            A(f'v_mul_f32 {v(O + r)}, {v(T + 1)}, {v(O + r)}')
        for m in range(8):
            A(f'v_cvt_pk_bf16_f32 {v(P + m)}, {v(S0 + 2 * m)}, {v(S0 + 2 * m + 1)}')
        A('s_nop 1')
        A(f'v_mfma_f32_32x32x16_bf16 {v(O, 16)}, {v(VF, 4)}, {v(P, 4)}, {v(O, 16)}')
        A(f'v_mfma_f32_32x32x16_bf16 {v(O, 16)}, {v(VF + 4, 4)}, {v(P + 4, 4)}, {v(O, 16)}')
        A(f'v_add_u32 {v(VK)}, {KVT}, {v(VK)}')
        A(f'v_add_u32 {v(VV)}, {KVT}, {v(VV)}')
        A(f'v_add_u32 {v(VV1)}, {KVT}, {v(VV1)}')
        A('s_nop 11')
        A('s_add_u32 s39, s39, 1')
        A('s_cmp_lt_u32 s39, 64')
        A(f's_cbranch_scc1 {tg}_sloop')
        A('s_mov_b32 s39, 99')
        A(f's_branch {tg}_fin')
    return tail


V_WGU = 112


def gu_waddr(C):
    A = C.A
    A('s_mul_i32 s30, s22, 7')
    A('s_min_u32 s31, s20, 6')
    A('s_add_u32 s40, s30, s31')
    A('s_lshl_b32 s30, s40, 15')
    A(f's_add_u32 s30, s30, {WGUP}')
    A(f'v_add_u32 {v(V_WGU)}, s30, v3')


def gu_wload(C, ks):
    so, im = soff(ks)
    C.vmem(f'buffer_load_dwordx4 {v(128 + 4 * ks, 4)}, {v(V_WGU)}, s[8:11], {so} offen offset:{im}', 'wg')


def gu_pre(C):
    A = C.A
    CS = 112
    A('v_mov_b32 v15, v113')
    A('v_mov_b32 v9, v114')
    A(f'v_mov_b32 v14, {v(V_WGU)}')
    A('s_lshl_b32 s30, s21, 2')
    A('s_add_u32 s30, s30, s25')
    A('s_lshl_b32 s30, s30, 15')
    A('s_lshl_b32 s31, s26, 11')
    A('s_add_u32 s30, s30, s31')
    A(f's_add_u32 s30, s30, {C.B["XB"]}')
    A('v_add_u32 v13, s30, v3')
    A('s_lshl_b32 s48, s25, 15')
    A('s_add_u32 s48, s48, s31')
    A('v_add_u32 v7, 0x10000, v3')
    A('v_lshrrev_b32 v11, 5, v1')
    A('v_lshlrev_b32 v11, 4, v11')
    A('s_min_u32 s30, s20, 6')
    A('s_lshl_b32 s30, s30, 7')
    A(f's_add_u32 s30, s30, {132 * KB}')
    A('v_add_u32 v10, s30, v11')
    A('v_and_b32 v12, 31, v1')
    A('v_lshlrev_b32 v12, 3, v12')
    A('v_lshl_add_u32 v12, v11, 8, v12')
    A('s_lshl_b32 s30, s21, 15')
    A(f's_add_u32 s30, s30, {C.B["SXB"]}')
    A('v_add_u32 v12, s30, v12')
    A(f'v_add_u32 v8, {128 * KB}, v3')


def gu_main(C, after_store=None):
    A = C.A
    ACC, XF, CS = 16, 80, 112
    STR = [4, 10, 240, 244]

    def dma(c):
        A(f's_add_u32 m0, s48, {c * 4096}')
        so = '0' if c == 0 else s(40 + c)
        A('s_nop 0')
        for k in range(2):
            C.vmem(f'buffer_load_dwordx4 v13, s[8:11], {so} offen offset:{k * 1024} lds', f'x{c}')
    dma(0)
    dma(1)

    def rd(ks):
        buf = ks & 1
        for i in range(4):
            base = 'v3' if i < 2 else 'v7'
            A(f'ds_read_b128 {v(XF + buf * 16 + i * 4, 4)}, {base} offset:{(i & 1) * 32768 + ks * 1024}')

    def stats_load(i):
        for e in range(16):
            C.vmem(f'buffer_load_dwordx2 {v(ACC + (i & 1) * 32 + 2 * e, 2)}, v12, s[8:11], {"0" if i == 0 else s(40 + 2 * i)} offen offset:{e * 256}', f's{i}')

    def stats_sum(i):
        b = ACC + (i & 1) * 32
        C.wait(f's{i}')
        for stp in (16, 8, 4, 2):
            for e in range(stp):
                A(f'v_add_f32 {v(b + e)}, {v(b + e)}, {v(b + e + stp)}')
        A(f'v_mov_b32 {v(b + 2)}, {v(b)}')
        A(f'v_mov_b32 {v(b + 3)}, {v(b + 1)}')
        A('s_nop 1')
        A(f'v_permlane32_swap_b32 {v(b)}, {v(b + 2)}')
        A(f'v_permlane32_swap_b32 {v(b + 1)}, {v(b + 3)}')
        A(f'v_add_f32 {v(b)}, {v(b)}, {v(b + 2)}')
        A(f'v_add_f32 {v(b + 1)}, {v(b + 1)}, {v(b + 3)}')
        A(f'v_mul_f32 {v(b)}, {f32(-1.0 / 512)}, {v(b)}')
        A(f'v_mul_f32 {v(b + 1)}, {f32(1.0 / 512)}, {v(b + 1)}')
        A(f'v_fma_f32 {v(b + 1)}, -{v(b)}, {v(b)}, {v(b + 1)}')
        A(f'v_max_f32 {v(b + 1)}, 0, {v(b + 1)}')
        A(f'v_add_f32 {v(b + 1)}, {f32(1e-5)}, {v(b + 1)}')
        A(f'v_rcp_f32 {v(b + 2)}, {v(b + 1)}')
        A(f'v_mov_b32 {v(b + 1)}, {v(b)}')
        A(f'v_mov_b32 {v(b + 3)}, {v(b + 2)}')
        A(f'ds_write_b128 v8, {v(b, 4)} offset:{i * 1024}')
        A('s_waitcnt lgkmcnt(0)')

    def loop(idle):
        C.wait('x0')
        A('s_barrier')
        C.stamp()
        if not idle:
            rd(0)
        for ks in range(32):
            if ks + 1 < 32:
                if (ks + 1) in GU_BARS:
                    C.wait(f'x{GU_BARS[ks + 1]}')
                    A('s_barrier')
                if not idle:
                    rd(ks + 1)
                    if ks == 28:
                        for g in range(4):
                            A(f'ds_read_b128 {v(CS + g * 4, 4)}, v10 offset:{g * 32}')
                        A('s_waitcnt lgkmcnt(8)')
                    elif ks == 30:
                        for i in range(4):
                            A(f'ds_read_b128 {v(STR[i], 4)}, v8 offset:{i * 1024}')
                        A('s_waitcnt lgkmcnt(8)')
                    else:
                        A('s_waitcnt lgkmcnt(4)')
            elif not idle:
                A('s_waitcnt lgkmcnt(0)')
            buf = ks & 1
            todo = []
            if ks == 10:
                C.flagb = True
                flag_b(C)
            if ks < 6:
                todo.append(lambda: dma(ks + 2))
            if ks == 16 + WO_TAIL and not idle:
                C.wait('wg')
            if 6 <= ks < 6 + 16 - WO_TAIL and not idle:
                k2 = 16 + WO_TAIL + ks - 6
                so, im = soff(k2)
                todo.append(lambda k2=k2, so=so, im=im: C.vmem(f'buffer_load_dwordx4 {v(128 + 4 * k2, 4)}, v14, s[8:11], {so} offen offset:{im}', 'wg'))
            if ks >= GU_WD0:
                nleft = 28 - len(wdone)
                for st in [st for st in range(28) if st < ks and st not in wdone][:(2 if nleft > 31 - ks else 1)]:
                    todo.append(lambda st=st: g3_wload(C, (15, 9), st, 128))
                    wdone.add(st)
            for i in range(4):
                if not idle and not (GU_TAIL and (ks == 31 or (ks == 30 and i >= 2))):
                    c = '0' if ks == 0 else v(ACC + i * 16, 16)
                    if GU16:
                        for t2 in range(2):
                            aa = ACC + i * 16 + ((ks & 1) * 2 + t2) * 4
                            A(f'v_mfma_f32_16x16x32_bf16 {v(aa, 4)}, {v(128 + 4 * (ks ^ t2 if ks > 1 else ks), 4)}, {v(XF + buf * 16 + i * 4, 4)}, {"0" if ks < 2 else v(aa, 4)}')
                    else:
                        A(f'v_mfma_f32_32x32x16_bf16 {v(ACC + i * 16, 16)}, {v(128 + 4 * ks, 4)}, {v(XF + buf * 16 + i * 4, 4)}, {c}')
                if i < 3 and todo:
                    f_ = todo.pop(0)
                    if not (GU_NOW and ks >= 6):
                        f_()
            if idle:
                if ks == 6:
                    stats_load(0)
                    stats_load(1)
                if ks == 8:
                    stats_sum(0)
                    stats_load(2)
                    stats_sum(1)
                    stats_load(3)
                if ks == 12:
                    stats_sum(2)
                    stats_sum(3)
                    A(f's_mul_i32 s30, s22, {7 * 128}')
                    A(f's_add_u32 s30, s30, {CSP}')
                    for kp in range(8):
                        C.vmem(f'buffer_load_dwordx4 {v(ACC + 4 * kp, 4)}, v3, s[8:11], s30 offen', 'cp')
                        if kp < 7:
                            A(f's_add_u32 s30, s30, {3584 * 4}')
                if ks == 16:
                    C.wait('cp')
                    for stp in (16, 8, 4):
                        for e in range(stp):
                            A(f'v_add_f32 {v(ACC + e)}, {v(ACC + e)}, {v(ACC + e + stp)}')
                    A(f'v_add_u32 v10, {132 * KB}, v3')
                    A(f'ds_write_b128 v10, {v(ACC, 4)}')
                    A('s_waitcnt lgkmcnt(0)')
        assert len(wdone) == 28
        C.stamp()
        if idle:
            if after_store:
                after_store()
            return
        P = XF

        def epi(i):
            acc = ACC + i * 16
            for r in range(0, 16, 2):
                A(f'v_pk_fma_f32 {v(acc + r, 2)}, {v(STR[i], 2)}, {v(CS + r, 2)}, {v(acc + r, 2)}')
            for r in range(0, 8, 2):
                A(f'v_pk_mul_f32 {v(acc + r, 2)}, {v(acc + r, 2)}, {v(acc + 8 + r, 2)}')
            for r in range(0, 8, 2):
                A(f'v_pk_mul_f32 {v(acc + r, 2)}, {v(acc + r, 2)}, {v(STR[i] + 2, 2)}')
            pp = acc + 8
            for m in range(4):
                A(f'v_cvt_pk_bf16_f32 {v(pp + m)}, {v(acc + 2 * m)}, {v(acc + 2 * m + 1)}')
            C.vmem(f'buffer_store_dwordx4 {v(pp, 4)}, v3, s[8:11], s30 offen{WT}', 'st')
            if i < 3:
                A(f's_add_u32 s30, s30, {112 * KB}')

        def mm(i, ks):
            A(f'v_mfma_f32_32x32x16_bf16 {v(ACC + i * 16, 16)}, {v(128 + 4 * ks, 4)}, {v(XF + (ks & 1) * 16 + i * 4, 4)}, {v(ACC + i * 16, 16)}')
        A(f's_mul_i32 s30, s21, {4 * 112}')
        A('s_add_u32 s30, s30, s40')
        A('s_lshl_b32 s30, s30, 10')
        A(f's_add_u32 s30, s30, {C.B["HF"]}')
        if GU_TAIL:
            A('s_waitcnt lgkmcnt(0)')
            mm(0, 31)
            mm(2, 30)
            mm(1, 31)
            mm(3, 30)
            A('s_nop 8')
            epi(0)
            mm(2, 31)
            mm(3, 31)
            epi(1)
            epi(2)
            epi(3)
        else:
            A('s_nop 4')
            for i in range(4):
                epi(i)
        if after_store:
            after_store()

    ls, le = C.lab('gs'), C.lab('ge')
    A('s_cmp_eq_u32 s20, 7')
    A(f's_cbranch_scc1 {ls}')
    save, ns = list(C.vm), C.nstamp
    wdone = set()
    loop(False)
    A(f's_branch {le}')
    A.label(ls)
    C.vm, C.nstamp = list(save), ns
    wdone = set()
    loop(True)
    A.label(le)
    C.vm = ['st']


def swap_add(A, ra, rb):
    A(f'v_permlane32_swap_b32 {v(ra)}, {v(rb)}')
    A(f'v_add_f32 {v(ra)}, {v(ra)}, {v(rb)}')


def pre_part(C, end):
    A = C.A
    A('s_cmp_ge_u32 s2, 256')
    A(f's_cbranch_scc1 {end}')
    A('s_load_dwordx2 s[12:13], s[0:1], 0')
    A('s_load_dwordx2 s[16:17], s[0:1], 8')
    A('s_load_dwordx2 s[52:53], s[0:1], 16')
    A('s_load_dwordx2 s[56:57], s[0:1], 24')
    A('s_load_dwordx2 s[4:5], s[0:1], 80')
    for d, sz in ((12, 2048 * 1024), (16, 512 * 1024), (52, 512 * 32), (56, 512 * 32), (4, 256)):
        A(f's_mov_b32 {s(d + 2)}, {sz}')
        A(f's_mov_b32 {s(d + 3)}, 0x20000')
    setup(C, False, end)
    C.stamp()
    if TLBW:
        A('s_lshl_b32 s30, s20, 3')
        A(f's_add_u32 s30, s30, 32')
        A('s_cmp_eq_u32 s20, 1')
        A('s_cselect_b32 s30, 8, s30')
        A('s_load_dwordx2 s[32:33], s[0:1], s30')
        A('s_mov_b32 s31, 8192')
        A('s_cmp_ge_u32 s20, 2')
        A('s_cselect_b32 s31, 28672, s31')
        A('s_cmp_eq_u32 s20, 6')
        A('s_cselect_b32 s31, 4, s31')
        A('s_cmp_eq_u32 s20, 7')
        A(f's_cselect_b32 s31, {TLBW}, s31')
        A('v_mul_lo_u32 v4, v1, s31')
        A('s_waitcnt lgkmcnt(0)')
        A('global_load_dword v127, v4, s[32:33]')
    A('s_add_u32 s30, s21, 1')
    A('s_and_b32 s30, s30, 3')
    A('s_lshl_b32 s30, s30, 2')
    A('s_xor_b32 s30, s30, s22')
    A('s_add_u32 s30, s30, s20')
    A('s_cmp_lg_u32 s30, 0')
    A('s_cbranch_scc1 pr_z0')
    for r in range(4):
        A(f'v_mov_b32 {v(8 + r)}, 0')
    A('v_lshrrev_b32 v4, 4, v1')
    A('v_and_b32 v5, 15, v1')
    A('v_lshlrev_b32 v5, 4, v5')
    A('v_lshl_add_u32 v4, v4, 12, v5')
    A('s_lshl_b32 s30, s21, 8')
    A(f's_add_u32 s30, s30, {FLG}')
    for k in range(3):
        A('buffer_store_dwordx4 v[8:11], v4, s[8:11], s30 offen sc0 sc1')
        A('s_add_u32 s30, s30, 16384')
    A('v_lshlrev_b32 v4, 7, v1')
    A(f's_mul_i32 s30, s21, {64 * 128}')
    A(f's_add_u32 s30, s30, {PFL}')
    A('buffer_store_dwordx4 v[8:11], v4, s[8:11], s30 offen sc0 sc1')
    A('v_mov_b32 v5, 1')
    A('s_mov_b64 exec, 1')
    A('s_waitcnt vmcnt(0)')
    A('buffer_atomic_add v5, v8, s[4:7], 0 offen sc1')
    A('s_mov_b64 exec, -1')
    A('s_nop 1')
    A.label('pr_z0')
    KST, KW, KR, T, EX, XR = 240, 192, 224, 108, 96, 32
    WST, CSQ, CSKV = 96 * KB, ST4 + 9 * KB, ST4 + 10 * KB
    A('s_mov_b64 s[36:37], s[16:17]')
    A(f's_mov_b32 s38, {512 * 1024}')
    A('s_mov_b32 s39, 0x20000')
    g4_ids(C)
    A('s_lshl_b32 s30, s20, 11')
    A('s_cmp_lg_u32 s3, 0')
    A('s_cbranch_scc1 pr_k0')
    for k in range(4):
        A(f'buffer_load_dwordx4 {v(KST + 4 * k, 4)}, v3, {"s[52:55]" if k < 2 else "s[56:59]"}, s30 offen offset:{(k & 1) * 1024}')
    A.label('pr_k0')
    A('v_lshrrev_b32 v4, 3, v1')
    A('v_and_b32 v5, 7, v1')
    A('v_lshrrev_b32 v6, 4, v1')
    A('v_xor_b32 v6, v6, v5')
    A('v_lshlrev_b32 v7, 10, v4')
    A('v_lshl_add_u32 v8, v6, 4, v7')
    A('v_xor_b32 v9, 64, v8')
    A('s_lshl_b32 s30, s18, 15')
    A('s_lshl_b32 s31, s20, 7')
    A('s_add_u32 s30, s30, s31')
    A('s_lshl_b32 s32, s20, 12')
    for i in range(4):
        A(f's_add_u32 m0, s32, {KVR4 + i * 1024}')
        A('s_nop 0')
        C.vmem(f'buffer_load_dwordx4 {v(8 + (i & 1))}, s[12:15], s30 offen lds', 'x')
        A('s_add_u32 s30, s30, 8192')
    A('v_lshrrev_b32 v4, 2, v1')
    A('v_and_b32 v5, 3, v1')
    A('v_lshlrev_b32 v10, 10, v4')
    A('v_lshl_add_u32 v10, v5, 4, v10')
    A('s_lshl_b32 s31, s26, 18')
    A('s_bfe_u32 s30, s19, 0x4000b')
    A('s_lshl_b32 s30, s30, 6')
    A('s_add_u32 s31, s31, s30')
    A('s_lshl_b32 s51, s20, 13')
    A(f's_add_u32 s51, s51, {WST}')
    A('s_mov_b32 s50, s31')
    A('v_mov_b32 v88, v10')
    A('s_and_b32 s33, s22, 3')
    A(f's_lshl_b32 s33, s33, 16' if WROT else 's_mov_b32 s33, 0')

    def wloads():
        for i in range(16):
            A(f's_xor_b32 s30, s33, {G4_ORD[i] * 16384}')
            A('s_add_u32 s30, s30, s50')
            if i < 8:
                A(f's_add_u32 m0, s51, {i * 1024}')
                A('s_nop 0')
                A('buffer_load_dwordx4 v88, s[36:39], s30 offen lds')
            else:
                A(f'buffer_load_dwordx4 {v(128 + 4 * i, 4)}, v88, s[36:39], s30 offen')
    A('s_cmp_eq_u32 s3, 0')
    A('s_cbranch_scc1 pr_w1')
    A('s_barrier')
    wloads()
    A('s_waitcnt vmcnt(16)')
    A.label('pr_w1')
    C.stamp()
    A('v_and_b32 v64, 31, v1')
    A('v_lshrrev_b32 v65, 5, v1')
    A('v_lshlrev_b32 v66, 7, v64')
    A('v_lshl_add_u32 v66, v65, 3, v66')
    A('v_bfe_u32 v67, v1, 1, 3')
    A('v_lshl_add_u32 v66, v67, 4, v66')
    A(f's_add_u32 s30, s32, {KVR4}')
    A('v_add_u32 v66, s30, v66')
    A('v_bfe_u32 v67, v1, 2, 2')
    A('v_lshl_add_u32 v67, v65, 2, v67')
    A('v_lshlrev_b32 v68, 3, v5')
    A('v_bfe_u32 v69, v1, 4, 1')
    A('v_lshl_add_u32 v70, v67, 5, v68')
    A('v_lshl_add_u32 v70, v69, 11, v70')
    A('v_add_u32 v70, s30, v70')
    A('v_lshl_add_u32 v71, v67, 6, v68')
    A('v_lshl_add_u32 v71, v69, 5, v71')
    A('s_lshl_b32 s30, s26, 5')
    A('v_xor_b32 v71, s30, v71')
    A('v_add_u32 v71, s51, v71')
    A('v_add_u32 v72, s51, v3')
    A('v_mov_b32 v73, 0x3f803f80')
    A('v_lshlrev_b32 v74, 2, v64')
    A('s_lshl_b32 s30, s20, 7')
    A(f's_add_u32 s31, s30, {CSKV}')
    A('v_add_u32 v75, s31, v74')
    A('s_lshl_b32 s31, s26, 6')
    A('v_xor_b32 v74, s31, v74')
    A(f's_add_u32 s30, s30, {CSQ}')
    A('v_add_u32 v74, s30, v74')
    A('v_lshlrev_b32 v76, 4, v65')
    A('s_add_u32 s30, s30, s31')
    A('v_add_u32 v77, s30, v76')
    A('v_xor_b32 v78, 512, v77')
    A('s_lshl_b32 s30, s25, 5')
    A(f's_add_u32 s30, s30, {CSKV}')
    A('v_add_u32 v79, s30, v76')
    g4_pre(C, 'qkv', XA, resbase=0, raw=True)
    A('s_lshr_b32 s30, s33, 4')
    A('s_lshl_b32 s31, s20, 12')
    A('s_xor_b32 s30, s30, s31')
    A(f's_add_u32 s30, s30, {XF0}')
    A('v_add_u32 v12, s30, v3')
    A('v_mov_b32 v0, 0')
    A('v_mov_b32 v4, 1')
    for ch in range(8):
        A(f'v_xor_b32 {v(80 + ch)}, {ch << 4}, v66')

    def front():
        A('s_cmp_lg_u32 s3, 0')
        A('s_cbranch_scc1 pr_w2')
        A('s_waitcnt vmcnt(0)')
        A.label('pr_w2')
        C.vm = []
        C.stamp()
        for ch in range(8):
            A(f'ds_read_b64 {v(KR + 2 * ch, 2)}, {v(80 + ch)}')
        A('s_waitcnt lgkmcnt(0)')
        for k in range(4):
            A(f'ds_write_b128 v12, {v(KR + 4 * k, 4)} offset:{k * 1024}')
        for r in range(8):
            for e in range(2):
                x = v(KR + 2 * r + e)
                A(f'v_dot2_f32_bf16 {v(T + 2 * e)}, {x}, v73, {"0" if r == 0 else v(T + 2 * e)}')
                A(f'v_dot2_f32_bf16 {v(T + 2 * e + 1)}, {x}, {x}, {"0" if r == 0 else v(T + 2 * e + 1)}')
        A('s_nop 0')

    def kvw():
        for k in range(4):
            A(f'ds_write_b128 v14, {v(KST + 4 * k, 4)} offset:{k * 1024}')
        A('s_waitcnt lgkmcnt(4)')
        for st in range(4):
            for h2 in range(2):
                A(f'ds_read_b64_tr_b16 {v(KW + 4 * st + 2 * h2, 2)}, v70 offset:{st * 512 + h2 * 256}')
        A('s_waitcnt lgkmcnt(0)')
        for r in range(8):
            for e in range(2):
                A(f'v_dot2_f32_bf16 {v(80 + e)}, {v(KW + 2 * r + e)}, v73, {"0" if r == 0 else v(80 + e)}')
        A('s_nop 2')
        A('v_add_f32 v80, v80, v81')
        A('v_mov_b32 v81, v80')
        A('s_nop 1')
        swap_add(A, 80, 81)
        A('ds_write_b32 v75, v80')

    def kvcs0():
        for ww in range(8):
            A(f'ds_read_b128 {v(XR + 4 * ww, 4)}, v79 offset:{ww * 128}')

    def kvcs1():
        A('s_waitcnt lgkmcnt(0)')
        for stp in (16, 8):
            for r in range(stp):
                A(f'v_add_f32 {v(XR + r)}, {v(XR + r)}, {v(XR + stp + r)}')
        for r in range(4):
            A(f'v_add_f32 {v(EX + 8 + r)}, {v(XR + r)}, {v(XR + 4 + r)}')

    def zchk():
        lz, lzd = C.lab('z'), C.lab('zd')
        A('s_mov_b32 s31, 0')
        A('s_mov_b64 exec, 1')
        A.label(lz)
        A('buffer_load_dword v2, v0, s[4:7], 0 offen sc1')
        A('s_waitcnt vmcnt(0)')
        A('v_cmp_le_u32 vcc, 16, v2')
        A('s_add_u32 s31, s31, 1')
        A('s_cmp_eq_u64 vcc, 1')
        A(f's_cbranch_scc1 {lzd}')
        A('s_sleep 8')
        A(f's_cmp_lt_u32 s31, {1 << 20}')
        A(f's_cbranch_scc1 {lz}')
        A(f's_branch {end}')
        A.label(lzd)
        A('s_mov_b64 exec, -1')

    def wprep():
        A('s_cmp_lg_u32 s3, 0')
        A('s_cbranch_scc1 pr_w3')
        wloads()
        A.label('pr_w3')
        zchk()
        C.vm = []
        C.stamp()


    def tr(i):
        for h2 in range(2):
            A(f'ds_read_b64_tr_b16 {v(128 + 4 * i + 2 * h2, 2)}, v71 offset:{(i % 8) * 1024 + h2 * 512}')

    def csdot(r0, r1):
        for r in range(r0, r1):
            for e in range(4):
                A(f'v_dot2_f32_bf16 {v(80 + e)}, {v(128 + 4 * r + e)}, v73, {"0" if r == 0 else v(80 + e)}')

    def loop(rd, mf):
        for i in range(8):
            tr(i)
            if i == 5:
                A('s_waitcnt lgkmcnt(6)')
        ln_stats(A, T)
        A('s_waitcnt lgkmcnt(0)')
        for i in range(4):
            rd(i)
        for i in range(8):
            A(f'ds_write_b128 v72, {v(160 + 4 * i, 4)} offset:{i * 1024}')
        csdot(0, 8)
        A('s_waitcnt lgkmcnt(0)')
        for i in range(4, 8):
            rd(i)
        for i in range(8):
            if i == 4:
                A('s_waitcnt lgkmcnt(8)')
            mf(i)
            if i < 4:
                tr(8 + i)
            else:
                A('s_waitcnt lgkmcnt(9)')
                tr(8 + i)
                rd(4 + i)
        for i in range(8, 16):
            if i == 8:
                A('s_waitcnt lgkmcnt(9)')
            elif i < 12:
                A(f's_waitcnt lgkmcnt({9 - 2 * (i - 8)})')
            else:
                A(f's_waitcnt lgkmcnt({15 - i})')
            mf(i)
            if i < 12:
                rd(4 + i)

    def cs0():
        csdot(8, 16)
        A('s_nop 2')
        A('v_add_f32 v80, v80, v81')
        A('v_add_f32 v82, v82, v83')
        A('v_add_f32 v80, v80, v82')
        A('v_mov_b32 v81, v80')
        A('s_nop 1')
        swap_add(A, 80, 81)
        A('ds_write_b32 v74, v80')

    def cs():
        for h2 in range(2):
            A(f'ds_read_b128 {v(EX + 4 * h2, 4)}, v77 offset:{h2 * 32}')
            A(f'ds_read_b128 {v(XR + 4 * h2, 4)}, v78 offset:{h2 * 32}')
        A('s_waitcnt lgkmcnt(0)')
        for r in range(8):
            A(f'v_add_f32 {v(EX + r)}, {v(EX + r)}, {v(XR + r)}')
        for r in range(12):
            A(f'v_mov_b32 {v(208 + r)}, {v(EX + r)}')

    g4_main(C, 'qkv', kvf=KVF, kfl=KFL, raw=dict(front=front, kvw=kvw, kvcs0=kvcs0, kvcs1=kvcs1, zchk=zchk, wprep=wprep, cs=cs, cs0=cs0, loop=loop), endlab=end)
    C.stamp()


def wq_store(C):
    A = C.A
    A('s_and_b32 s30, s18, 0x33')
    A('s_cmp_lg_u32 s30, 0')
    A('s_cbranch_scc1 pr_w0')
    g4_waddr(C, 112, WQKVP)
    for q4 in (3, 2, 1, 0):
        if q4:
            A(f's_cmp_lg_u32 s21, {q4}')
            A(f's_cbranch_scc1 pr_ws{q4}')
        for i in range(4 * q4, 4 * q4 + 4):
            so, im = soff(G4_ORD[i])
            A(f'buffer_store_dwordx4 {v(128 + 4 * i, 4)}, v112, s[8:11], {so} offen offset:{im} sc0 sc1')
        if q4:
            A('s_branch pr_w0')
            A.label(f'pr_ws{q4}')
    A('v_lshrrev_b32 v113, 5, v1')
    A('v_lshlrev_b32 v113, 4, v113')
    A('s_lshr_b32 s31, s19, 4')
    A(f's_add_u32 s31, s31, {CSQKV}')
    A('s_mov_b32 exec_lo, 1')
    A('s_mov_b32 exec_hi, 1')
    A('buffer_store_dwordx4 v[208:211], v113, s[8:11], s31 offen sc0 sc1')
    A('buffer_store_dwordx4 v[212:215], v113, s[8:11], s31 offen offset:32 sc0 sc1')
    A('s_mov_b64 exec, -1')
    A('s_cmp_lg_u32 s22, 0')
    A('s_cbranch_scc1 pr_w0')
    A('s_lshl_b32 s30, s20, 12')
    A(f's_add_u32 s30, s30, {WQKVP + 16 * 32 * KB}')
    for k in range(4):
        A(f'buffer_store_dwordx4 {v(192 + 4 * k, 4)}, v3, s[8:11], s30 offen offset:{k * 1024} sc0 sc1')
    A('s_cmp_ge_u32 s20, 4')
    A('s_cbranch_scc1 pr_w0')
    A('s_lshl_b32 s31, s20, 5')
    A(f's_add_u32 s31, s31, {CSQKV + 2048}')
    A('s_mov_b32 exec_lo, 1')
    A('s_mov_b32 exec_hi, 1')
    A('buffer_store_dwordx4 v[216:219], v113, s[8:11], s31 offen sc0 sc1')
    A('s_mov_b64 exec, -1')
    A.label('pr_w0')


def pack_ptrs(A):
    A('s_load_dwordx2 s[4:5], s[0:1], 32')
    A('s_load_dwordx4 s[52:55], s[0:1], 48')
    A('s_load_dwordx2 s[16:17], s[0:1], 64')


def pack_issue(C):
    A = C.A
    A('s_mul_i32 s30, s2, 3')
    A('s_add_u32 s30, s30, s20')
    A('s_mov_b32 s58, s30')
    A('s_cmp_lt_u32 s20, 3')
    A('s_cselect_b32 s57, 1, 0')
    A('s_cmp_lt_u32 s30, 736')
    A('s_cselect_b32 s57, s57, 0')
    A('s_cmp_eq_u32 s57, 0')
    A('s_cselect_b32 s30, 0, s30')
    A('s_cmp_lt_u32 s30, 64')
    A('s_cbranch_scc1 pk_jwo')
    A('s_cmp_lt_u32 s30, 512')
    A('s_cbranch_scc1 pk_jgu')
    A('s_sub_u32 s30, s30, 512')
    A('s_mov_b64 s[4:5], s[16:17]')
    A(f's_mov_b32 s6, {1792 * 1024}')
    A('s_mov_b32 s50, 1024')
    A('s_and_b32 s31, s30, 7')
    A('s_lshr_b32 s30, s30, 3')
    A('s_lshl_b32 s51, s30, 16')
    A('s_lshl_b32 s56, s31, 7')
    A('s_add_u32 s51, s51, s56')
    A(f's_mul_i32 s56, s31, {2 * 112 * KB}')
    A('s_lshl_b32 s30, s30, 12')
    A('s_add_u32 s56, s56, s30')
    A(f's_add_u32 s56, s56, {WDP}')
    A(f's_mov_b32 s52, {112 * KB}')
    A('s_mov_b32 s53, 256')
    A(f's_mov_b32 s54, {G1.CSDUMMY}')
    A('s_branch pk_jgo')
    A.label('pk_jwo')
    A(f's_mov_b32 s6, {512 * 1024}')
    A('s_mov_b32 s50, 1024')
    A('s_lshr_b32 s31, s30, 3')
    A('s_and_b32 s30, s30, 7')
    A('s_lshl_b32 s51, s30, 16')
    A('s_lshl_b32 s56, s31, 7')
    A('s_add_u32 s51, s51, s56')
    A('s_lshl_b32 s56, s31, 16')
    A('s_lshl_b32 s30, s30, 12')
    A('s_add_u32 s56, s56, s30')
    A(f's_add_u32 s56, s56, {WOP}')
    A(f's_mov_b32 s52, {32 * KB}')
    A('s_mov_b32 s53, 256')
    A(f's_mov_b32 s54, {G1.CSDUMMY}')
    A('s_branch pk_jgo')
    A.label('pk_jgu')
    A('s_sub_u32 s30, s30, 64')
    A('s_cmp_ge_u32 s30, 224')
    A('s_cselect_b32 s4, s54, s52')
    A('s_cselect_b32 s5, s55, s53')
    A('s_cselect_b32 s16, 1, 0')
    A('s_cselect_b32 s31, 224, 0')
    A('s_sub_u32 s30, s30, s31')
    A(f's_mov_b32 s6, {512 * 3584}')
    A('s_mov_b32 s50, 3584')
    A('s_lshr_b32 s31, s30, 3')
    A('s_and_b32 s30, s30, 7')
    A(f's_mul_i32 s51, s30, {64 * 3584}')
    A('s_lshl_b32 s56, s31, 7')
    A('s_add_u32 s51, s51, s56')
    A('s_lshl_b32 s56, s31, 17')
    A('s_lshl_b32 s17, s30, 12')
    A('s_add_u32 s56, s56, s17')
    A('s_lshl_b32 s17, s16, 8')
    A('s_add_u32 s56, s56, s17')
    A(f's_add_u32 s56, s56, {WGUP}')
    A(f's_mov_b32 s52, {64 * KB}')
    A(f's_mov_b32 s53, {32 * KB}')
    A(f's_mul_i32 s54, s30, {3584 * 4}')
    A('s_lshl_b32 s17, s31, 9')
    A('s_add_u32 s54, s54, s17')
    A('s_lshl_b32 s17, s16, 6')
    A('s_add_u32 s54, s54, s17')
    A(f's_add_u32 s54, s54, {CSP}')
    A.label('pk_jgo')
    A('v_lshrrev_b32 v112, 3, v1')
    A('v_and_b32 v113, 7, v1')
    A('v_mul_lo_u32 v112, v112, s50')
    A('v_lshl_add_u32 v112, v113, 4, v112')
    A('s_lshl_b32 s50, s50, 3')
    A('s_min_u32 s59, s20, 2')
    A('s_lshl_b32 s59, s59, 13')
    A(f's_add_u32 s59, s59, {136 * KB}')
    A('s_cmp_eq_u32 s57, 0')
    A('s_cbranch_scc1 pk_i_end')
    for i in range(8):
        A(f's_add_u32 m0, s59, {i * 1024}')
        A('s_nop 0')
        A('buffer_load_dwordx4 v112, s[4:7], s51 offen lds')
        A('s_add_u32 s51, s51, s50')
    A.label('pk_i_end')


def pack_convert(C):
    A = C.A
    A('s_cmp_eq_u32 s57, 0')
    A('s_cbranch_scc1 pk_c_end')
    A('v_lshrrev_b32 v112, 5, v1')
    A('v_bfe_u32 v113, v1, 2, 2')
    A('v_lshl_add_u32 v113, v112, 2, v113')
    A('v_and_b32 v114, 3, v1')
    A('v_lshlrev_b32 v114, 3, v114')
    A('v_lshl_add_u32 v113, v113, 7, v114')
    A('v_bfe_u32 v114, v1, 4, 1')
    A('v_lshl_add_u32 v113, v114, 5, v113')
    A('v_add_u32 v113, s59, v113')
    A('v_mul_lo_u32 v114, v114, s53')
    A('v_and_b32 v115, 15, v1')
    A('v_lshl_add_u32 v114, v115, 4, v114')
    A('v_lshl_add_u32 v114, v112, 9, v114')
    A('v_lshrrev_b32 v112, 4, v1')
    A('v_lshlrev_b32 v112, 7, v112')
    A('v_lshl_add_u32 v112, v115, 2, v112')
    A('v_mov_b32 v115, 0x3f803f80')
    A('s_add_u32 s52, s52, s56')
    A('s_waitcnt vmcnt(0)')
    for jj in range(2):
        for st in range(4):
            for h2 in range(2):
                A(f'ds_read_b64_tr_b16 {v(128 + 4 * (4 * jj + st) + 2 * h2, 2)}, v113 offset:{st * 2048 + h2 * 1024 + jj * 64}')
        A('s_waitcnt lgkmcnt(0)')
        for st in range(4):
            A(f'buffer_store_dwordx4 {v(128 + 4 * (4 * jj + st), 4)}, v114, s[8:11], {"s56" if jj == 0 else "s52"} offen offset:{st * 1024} sc0 sc1')
    A('s_cmp_eq_u32 s53, 256')
    A('s_cbranch_scc1 pk_c_end')
    for r in range(16):
        for jj in range(2):
            A(f'v_dot2_f32_bf16 {v(116 + jj)}, {v(128 + 16 * jj + r)}, v115, {"0" if r == 0 else v(116 + jj)}')
    A('s_nop 2')
    swap_add(A, 116, 117)
    A('buffer_store_dword v116, v112, s[8:11], s54 offen sc0 sc1')
    A.label('pk_c_end')


def pack_flag(C):
    A = C.A
    A('v_mov_b32 v112, 0')
    A('v_mov_b32 v113, 1')
    A('s_cmp_eq_u32 s57, 0')
    A('s_cbranch_scc1 pk_f_1')
    A('s_lshl_b32 s30, s58, 7')
    A(f's_add_u32 s30, s30, {PFL}')
    A('s_waitcnt vmcnt(0)')
    A('s_mov_b64 exec, 1')
    A('buffer_store_dword v113, v112, s[8:11], s30 offen sc0 sc1')
    A('s_mov_b64 exec, -1')
    A.label('pk_f_1')
    A('s_and_b32 s30, s18, 0x33')
    A('s_cmp_lg_u32 s30, 0')
    A('s_cbranch_scc1 pk_f_end')
    A('s_lshl_b32 s30, s22, 1')
    A('s_add_u32 s30, s30, s20')
    A('s_lshl_b32 s31, s21, 5')
    A('s_add_u32 s30, s30, s31')
    A('s_lshl_b32 s30, s30, 7')
    A(f's_add_u32 s30, s30, {PFL + 768 * 128}')
    A('s_waitcnt vmcnt(0)')
    A('s_mov_b64 exec, 1')
    A('buffer_store_dword v113, v112, s[8:11], s30 offen sc0 sc1')
    A('s_mov_b64 exec, -1')
    A.label('pk_f_end')


def pack_poll(C, endlab):
    A = C.A
    A('s_mul_i32 s30, s22, 7')
    A('s_lshr_b32 s30, s30, 2')
    A('v_lshrrev_b32 v112, 4, v1')
    A('v_add_u32 v112, s30, v112')
    A('v_min_u32 v112, 27, v112')
    A('v_and_b32 v113, 7, v1')
    A('v_lshl_add_u32 v112, v112, 3, v113')
    A('v_bfe_u32 v114, v1, 3, 1')
    A('v_mul_u32_u24 v114, 224, v114')
    A('v_add3_u32 v112, v112, v114, 64')
    A('s_mul_i32 s30, s20, 7')
    A('s_lshr_b32 s30, s30, 1')
    A('v_min_u32 v114, 4, v113')
    A('v_add_u32 v114, s30, v114')
    A('v_min_u32 v114, 27, v114')
    A('s_add_u32 s30, s24, 512')
    A('v_lshl_add_u32 v114, v114, 3, s30')
    A('v_cmp_le_u32 vcc, 48, v1')
    A('s_lshl_b32 s30, s24, 3')
    A('s_add_u32 s30, s30, s20')
    A('v_cndmask_b32 v112, v112, v114, vcc')
    A('v_mov_b32 v114, s30')
    A('v_cmp_le_u32 vcc, 56, v1')
    A('s_add_u32 s31, s20, 768')
    A('s_and_b32 s30, s22, 12')
    A('s_lshl_b32 s30, s30, 1')
    A('s_add_u32 s30, s30, s31')
    A('v_cndmask_b32 v112, v112, v114, vcc')
    for q4 in range(4):
        A(f'v_writelane_b32 v112, s30, {59 + q4}')
        A('s_add_u32 s30, s30, 32')
    A('v_writelane_b32 v112, s31, 63')
    A(f's_mov_b32 s30, {PFL}')
    A('s_mov_b32 s31, 0')
    A('v_lshlrev_b32 v112, 7, v112')
    A('s_bfe_u32 s32, s19, 0x3000c')
    A('s_lshl_b32 s32, s32, 3')
    A('s_lshl_b32 s33, s26, 2')
    A('s_add_u32 s32, s32, s33')
    A('v_and_b32 v114, 3, v1')
    A('v_add_u32 v114, s32, v114')
    A('v_lshlrev_b32 v114, 7, v114')
    A('buffer_load_dword v113, v112, s[8:11], s30 offen sc1')
    A('buffer_load_dword v115, v114, s[8:11], s30 offen sc1')


def pack_poll2(C, endlab):
    A = C.A
    A(f's_mov_b32 s30, {PFL}')
    A('s_mov_b32 s31, 0')
    A.label('pk_p')
    A('s_waitcnt vmcnt(0)')
    A('v_and_b32 v113, v113, v115')
    A('v_cmp_eq_u32 vcc, 1, v113')
    A('s_add_u32 s31, s31, 1')
    A('s_cmp_eq_u64 vcc, -1')
    A('s_cbranch_scc1 pk_pd')
    A('s_sleep 16')
    A('buffer_load_dword v113, v112, s[8:11], s30 offen sc1')
    A('buffer_load_dword v115, v114, s[8:11], s30 offen sc1')
    A(f's_cmp_lt_u32 s31, {1 << 19}')
    A('s_cbranch_scc1 pk_p')
    A(f's_branch {endlab}')
    A.label('pk_pd')
    C.vm = []


def layer_part(C, layer, end):
    A = C.A
    C.tag = f'l{layer}'
    last = layer == 1
    xin = None if layer == 0 else XC
    kvf = KVF if layer == 0 else KVF2
    kfl = KFL + layer * 64 * 128
    sy = 5 * layer + 1
    C.B = dict(QF=QF, OF=OF, XB=XB, SXB=SXB, HF=HF) if layer == 0 else dict(QF=QF2, OF=OF2, XB=XB2, SXB=SXB2, HF=HF2)
    B = C.B

    def pre_addr():
        gu_waddr(C)
        g3_waddr(C, (113, 114), 112, WDP)
        g4_waddr(C, 116, WOP)

    stubs = [lambda: (pre_addr(), gu_wload(C, 0))]
    stubs += [lambda ks=ks: gu_wload(C, ks) for ks in range(1, 24)]
    stubs += [lambda i=i: g4_wload(C, 116, i, 'res') for i in range(8)]
    if TOUCH2:
        def touch2():
            A('s_and_b32 s30, s18, 7')
            A('s_lshr_b32 s31, s30, 1')
            A('s_lshl_b32 s31, s31, 2')
            A('s_and_b32 s30, s30, 1')
            A('s_add_u32 s30, s30, s31')
            A('s_lshl_b32 s30, s30, 10')
            C.vmem('buffer_load_dwordx4 v[120:123], v116, s[8:11], s30 offen offset:2048', 'tc')
            if layer == 0:
                A(f's_add_u32 s30, s30, {WQKVP - WOP + (1 << 32) if WQKVP < WOP else WQKVP - WOP}')
                A('v_add_u32 v117, s30, v116')
                C.vmem('buffer_load_dwordx4 v[120:123], v117, s[8:11], 0 offen', 'tc')
                C.vmem('buffer_load_dwordx4 v[120:123], v117, s[8:11], 0 offen offset:2048', 'tc')
        stubs += [touch2]
    if TOUCH and layer == 1:
        def t_addr():
            A('s_lshr_b32 s30, s2, 3')
            A('s_lshl_b32 s30, s30, 3')
            A('s_add_u32 s30, s30, s20')
            A(f's_mul_i32 s31, s30, {7 * KB}')
            A(f's_add_u32 s31, s31, {WDP}')
            A('v_add_u32 v118, s31, v3')
            A('s_lshl_b32 s31, s30, 11')
            A(f's_add_u32 s31, s31, {WQKVP}')
            A('v_add_u32 v119, s31, v3')

        def tch(vr, k):
            so, im = soff(k)
            C.vmem(f'buffer_load_dwordx4 v[120:123], {v(vr)}, s[8:11], {so} offen offset:{im}', 'tc')
        stubs += [lambda: (t_addr(), tch(V_WGU, 24))]
        stubs += [lambda ks=ks: tch(V_WGU, ks) for ks in range(25, 32)]
        stubs += [lambda k=k: tch(118, k) for k in range(7)]
        if not last:
            stubs += [lambda k=k: tch(119, k) for k in range(2)]

    def need_wo():
        A('s_lshr_b32 s30, s20, 1')
        A('s_lshl_b32 s30, s30, 2')
        A('s_and_b32 s31, s22, 3')
        A('s_add_u32 s30, s30, s31')
        A('s_lshl_b32 s32, 1, s30')

    def need_gu():
        A('s_lshl_b32 s32, 0x1111, s25')
        A('s_cmp_eq_u32 s20, 7')
        A('s_cselect_b32 s32, 0xffff, s32')

    def need_dn():
        A('s_lshl_b32 s30, s20, 1')
        A('s_lshl_b32 s32, 3, s30')

    def need_qkv():
        A('s_lshl_b32 s30, s20, 1')
        A('s_and_b32 s31, s24, 1')
        A('s_add_u32 s30, s30, s31')
        A('s_lshl_b32 s32, 1, s30')

    if layer == 0:
        fixed = {PK_I: lambda: (wq_store(C), pack_issue(C)), PK_C: lambda: pack_convert(C), PK_F: lambda: pack_flag(C), PK_P - 1: lambda: pack_poll(C, end), PK_P: lambda: pack_poll2(C, end)}
        tail = att_phase(C, kvf, kfl, end, stubs, fixed, PK_P, pre_hook=lambda: pack_ptrs(A), loadq=False, early=True)
    else:
        tail = att_phase(C, kvf, kfl, end, stubs, pre_hook=lambda: A('s_load_dwordx2 s[12:13], s[0:1], 72'), loadq=False)
    C.stamp()
    if not WO_LATE:
        A('s_nop 1')
        for i in range(8, 16):
            g4_wload(C, 116, i, 'res')
    g4_pre(C, 'res', B['OF'], resbase=xin)
    handoff(C, sy + 0, end, need_wo)
    C.stamp()
    g4_main(C, 'res', outbase=B['XB'], sxout=B['SXB'], hook_red=lambda k: gu_wload(C, 24 + k))
    C.stamp()
    gu_pre(C)
    handoff(C, sy + 1, end, need_gu)
    C.stamp()
    gu_main(C)
    C.stamp()
    g3_pre(C, 'res', 112, B['HF'], resbase=B['XB'])
    handoff(C, sy + 2, end, need_dn)
    C.stamp()
    if last:
        g3_main(C, 'out', 112, 128)
        C.stamp()
    else:
        g3_main(C, 'res', 112, 128, outbase=XC, sxout=SXC, hook_b=lambda st, n: qkv4_wstep(C, st, n), hook_red=lambda: qkv4_wrest(C))
        C.stamp()
        g4_pre(C, 'qkv', XC, resbase=SXC)
        g4_waddr(C, 64, WQKVP)
        handoff(C, sy + 3, end, need_qkv)
        C.stamp()
        g4_main(C, 'qkv', kvf=KVF2, kfl=KFL + 64 * 128, endlab=end)
        C.stamp()
    return tail


def build():
    A = Asm()
    name = NAME + '_kernel'
    C = Ctx(A, 'pr')
    C.qf = QF
    end = 'k_end'
    kernel_begin(A, name)
    pre_part(C, end)
    t0 = layer_part(C, 0, end)
    t1 = layer_part(C, 1, end)
    A('s_add_u32 s30, s2, s20')
    A('s_cmp_lg_u32 s30, 0')
    A('s_cbranch_scc1 k_fin')
    A('s_load_dwordx2 s[4:5], s[0:1], 80')
    A('s_mov_b32 s6, 256')
    A('v_mov_b32 v2, 0')
    A('s_mov_b64 exec, 1')
    A('s_waitcnt lgkmcnt(0)')
    A('buffer_store_dword v2, v2, s[4:7], 0 offen sc0 sc1')
    A('s_mov_b64 exec, -1')
    A.label('k_fin')
    if DBGD:
        A('s_cmp_lg_u32 s2, 77')
        A('s_cbranch_scc1 k_fin2')
        A('s_cmp_lg_u32 s20, 1')
        A('s_cbranch_scc1 k_fin2')
        A('s_load_dwordx2 s[4:5], s[0:1], 80')
        A('s_memrealtime s[60:61]')
        A('s_mov_b32 s6, 256')
        A('v_mov_b32 v2, 0')
        A('s_mov_b64 exec, 1')
        A('s_waitcnt lgkmcnt(0)')
        sel = [int(x) for x in DBGD.split()]
        for k, i in enumerate(sel + [-1]):
            A(f's_sub_u32 s30, {s(64 + i) if i >= 0 else "s60"}, s64')
            A('v_mov_b32 v4, s30')
            A(f'buffer_store_dword v4, v2, s[4:7], 0 offen offset:{4 + 4 * k}')
        A('s_mov_b64 exec, -1')
        A.label('k_fin2')
    stamp_end(C, 1)
    A.label(end)
    A('s_endpgm')
    t0(True)
    t1(False)
    body = A.text()
    probs = lint(body)
    for p in probs:
        print('LINT:', p, file=sys.stderr)
    head = '; generated by gen/gen3.py\n'
    head += f"; @launch grid=(256,1,1) block=(512,1,1) lds={LDS_BYTES}\n"
    head += '.amdgcn_target "amdgcn-amd-amdhsa--gfx950"\n.text\n'
    tail = '.section .rodata,"a"\n.p2align 6\n' + descriptor(name, 256, 0, nsgpr=100)
    print('stamps:', C.nstamp, file=sys.stderr)
    return head + body + tail


if __name__ == '__main__':
    if 'stamp' in sys.argv:
        STAMP = True
    for arg in sys.argv[2:]:
        if '=' in arg:
            k, val = arg.split('=')
            globals()[k] = int(val) if val.lstrip('-').isdigit() else val.replace('_', ' ')
    out = sys.argv[1] if len(sys.argv) > 1 else f'cdna_kernels/{NAME}.s'
    open(out, 'w').write(build())
    print('wrote', out)
```

```python
import sys
import math
import struct
from asmlib import Asm, v, a, s, lint
import gen as G1
from gen import f32, kernel_begin, descriptor, ws_srd, KB

NAME = G1.NAME
WQKVP, WOP, WGUP, WDP, CSQKV, CSGU = G1.WQKVP, G1.WOP, G1.WGUP, G1.WDP, G1.CSQKV, G1.CSGU
KVF, XA, XB, QF, OF, HF = G1.KVF, G1.XA, G1.XB, G1.QF, G1.OF, G1.HF
WS_SIZE, QSCALE = G1.WS_SIZE, G1.QSCALE
KVG = 2048
KVT = 2080
VBS = 512
XC = G1.WS_END
KVF2 = XC + 2048 * KB
FLG = KVF2 + 144 * KB
SXA = FLG + 64 * KB
SXB = SXA + 512 * KB
SXC = SXB + 512 * KB
CSP = SXC + 512 * KB
PFL = CSP + 128 * KB
KFL = PFL + 112 * KB
QF2 = KFL + 16 * KB
OF2 = QF2 + 2048 * KB
XB2 = OF2 + 2048 * KB
SXB2 = XB2 + 2048 * KB
HF2 = SXB2 + 512 * KB
WS_END = HF2 + 64 * 112 * KB
STAMPS = G1.STAMPS

STAMP = False
WT = ' sc0 sc1'
LDS_BYTES = 160 * KB
FINE = 0
TOUCH3 = 0
PRIOV = 0
DBGD = ''
ATT_B2 = 2
WO_L0 = 3
WROT = 1
GU_TAIL = 1
ATT_R0 = 4
EXPT = 0
TLBW = 0
KV_SLEEP = 2
QKV_PER = 1
WO_TAIL = 16
SLO = 0
QWT = ' sc0 sc1'
GU16 = 0
GU_NOW = 0
GU_WD0 = 3
GU_BARS = {4: 1, 8: 2, 12: 7, 24: 7}
PK_I = 2
PK_C = 5
PK_F = 6
PK_P = 10
RT = 0
TOUCH = 0
TOUCH2 = 1
WO_LATE = 0
ATT_UN = 4
ATT_PFEND = 1
G3_PR4 = 7
G3_PR14 = 6
G2_ST8 = [2, 2, 2, 2]
G2_ST28 = [2, 2, 4, 4, 4, 4, 4, 4]
G2_PRE8 = 4
G2_PRE28 = 6


class Ctx:
    def __init__(self, A, tag):
        self.A = A
        self.tag = tag
        self.vm = []
        self.nlab = 0
        self.nstamp = 1

    def lab(self, base):
        self.nlab += 1
        return f'{self.tag}_{base}{self.nlab}'

    def vmem(self, text, tag):
        self.A(text)
        self.vm.append(tag)
        assert len(self.vm) <= 63, 'vmcnt overflow'

    def wait(self, tag, extra=''):
        idx = [i for i, t in enumerate(self.vm) if t == tag]
        if not idx:
            if extra:
                self.A(f's_waitcnt {extra}')
            return
        n = len(self.vm) - 1 - idx[-1]
        self.A(f's_waitcnt vmcnt({n}) {extra}'.strip())
        self.vm = self.vm[idx[-1] + 1:]

    def stamp(self):
        if STAMP:
            i = self.nstamp - SLO
            self.nstamp += 1
            if i < 1 or i >= 28:
                return
            A = self.A
            A('s_waitcnt lgkmcnt(0)')
            A('s_memrealtime s[60:61]' if RT else 's_memtime s[60:61]')
            A('s_waitcnt lgkmcnt(0)')
            A(f's_mov_b32 {s(64 + i)}, s60')


def stamp_begin(C):
    if STAMP:
        A = C.A
        A('s_memrealtime s[62:63]')
        A('s_memtime s[60:61]')
        for i in range(1, 30):
            A(f's_mov_b32 {s(64 + i)}, 0')
        A('s_waitcnt lgkmcnt(0)')
        A('s_mov_b32 s64, s62' if RT else 's_mov_b32 s64, s60')
        A('s_mov_b32 s95, s62')


def stamp_end(C, kidx):
    if STAMP:
        A = C.A
        A('s_waitcnt vmcnt(0) lgkmcnt(0)')
        A('s_memtime s[60:61]')
        A('s_memrealtime s[62:63]')
        A('s_waitcnt lgkmcnt(0)')
        A('s_mov_b32 s93, s62' if RT else 's_mov_b32 s93, s60')
        A('s_mov_b32 s94, s62')
        A('s_mov_b64 exec, 1')
        A('s_lshl_b32 s60, s2, 10')
        A('s_lshl_b32 s61, s20, 7')
        A('s_add_u32 s60, s60, s61')
        A(f's_add_u32 s60, s60, {STAMPS + kidx * (1 << 20)}')
        A('v_mov_b32 v0, 0')
        for i in range(32):
            A(f'v_mov_b32 v1, {s(64 + i)}')
            A(f'buffer_store_dword v1, v0, s[8:11], s60 offen offset:{i * 4}')
        A('s_waitcnt vmcnt(0)')


def setup(C, need_out, endlab):
    A = C.A
    A('s_cmp_ge_u32 s2, 256')
    A(f's_cbranch_scc1 {endlab}')
    stamp_begin(C)
    ws_srd(A, 8)
    if need_out:
        A('s_load_dwordx2 s[12:13], s[0:1], 72')
        A(f's_mov_b32 s14, {2048 * 512 * 2}')
        A('s_mov_b32 s15, 0x20000')
    A('v_and_b32 v1, 63, v0')
    A('v_lshrrev_b32 v2, 6, v0')
    A('v_lshlrev_b32 v3, 4, v1')
    A('v_readfirstlane_b32 s20, v2')
    A('s_and_b32 s21, s2, 7')
    A('s_lshl_b32 s21, s21, 1')
    A('s_bfe_u32 s22, s2, 0x10003')
    A('s_add_u32 s21, s21, s22')
    A('s_lshr_b32 s22, s2, 4')
    A('s_and_b32 s23, s22, 1')
    A('s_lshr_b32 s24, s22, 1')
    A('s_and_b32 s25, s20, 3')
    A('s_lshr_b32 s26, s20, 2')
    A('s_lshl_b32 s27, s21, 2')
    A('s_lshl_b32 s30, s23, 1')
    A('s_add_u32 s27, s27, s30')
    A('s_lshl_b32 s28, s24, 1')
    A('s_bfe_u32 s30, s20, 0x10001')
    A('s_add_u32 s28, s28, s30')
    A('s_and_b32 s29, s20, 1')
    A('s_add_u32 s30, s27, s29')
    A('s_lshl_b32 s49, s30, 15')
    A('s_lshl_b32 s31, s28, 11')
    A('s_add_u32 s49, s49, s31')
    A('s_lshl_b32 s31, s26, 10')
    A('s_add_u32 s49, s49, s31')
    for g in range(1, 8):
        A(f's_mov_b32 {s(40 + g)}, {g * 4096}')
    A('s_waitcnt lgkmcnt(0)')


def soff(i):
    return ('0' if i // 4 == 0 else s(40 + i // 4)), (i % 4) * 1024


def handoff(C, sync, endlab, need, kvflag=None, first=False):
    A = C.A
    l1, l2, ld = C.lab('pa'), C.lab('pb'), C.lab('pd')
    need()
    A('s_mov_b32 s33, 0')
    A('v_lshlrev_b32 v0, 2, v1')
    A('s_lshl_b32 s30, s21, 8')
    A(f's_add_u32 s30, s30, {FLG + sync * 4096}')
    A('s_lshl_b32 s34, s22, 2')
    A('s_add_u32 s34, s34, s30')
    A('v_mov_b32 v4, 1')
    if first:
        lz, lzd = C.lab('z'), C.lab('zd')
        A('s_cmp_lg_u32 s20, 0')
        A(f's_cbranch_scc1 {lzd}')
        A('s_mov_b32 s31, 0')
        A('s_mov_b64 exec, 1')
        A.label(lz)
        A('buffer_load_dword v2, v0, s[4:7], 0 offen sc0 sc1')
        A('s_waitcnt vmcnt(0)')
        A('v_cmp_le_u32 vcc, 16, v2')
        A('s_add_u32 s31, s31, 1')
        A('s_cmp_eq_u64 vcc, 1')
        A(f's_cbranch_scc1 {lzd}')
        A('s_sleep 8')
        A(f's_cmp_lt_u32 s31, {1 << 20}')
        A(f's_cbranch_scc1 {lz}')
        A(f's_branch {endlab}')
        A.label(lzd)
        A('s_mov_b64 exec, -1')
    if kvflag is not None:
        A('s_waitcnt vmcnt(0) lgkmcnt(0)')
        C.vm = []
    else:
        C.wait('st', 'lgkmcnt(0)')
    A('s_cmp_lg_u32 s20, 0')
    A('s_barrier')
    l, lb, lb2 = C.lab('sig'), C.lab('sb'), C.lab('sc')
    A(f's_cbranch_scc1 {l}')
    A('s_mov_b64 exec, 1')
    if kvflag is not None:
        lk = C.lab('kf')
        A('s_cmp_ge_u32 s24, 2')
        A(f's_cbranch_scc1 {lk}')
        A('s_add_u32 s31, s27, s24')
        A('s_lshl_b32 s31, s31, 7')
        A(f's_add_u32 s31, s31, {kvflag}')
        A('s_mov_b64 exec, 15')
        A('buffer_store_dword v4, v0, s[8:11], s31 offen sc0 sc1')
        A('s_mov_b64 exec, 1')
        A.label(lk)
    A('buffer_store_dword v4, v0, s[8:11], s34 offen')
    A.label(l)
    A('s_mov_b32 s31, 0')
    A('s_mov_b64 exec, s[32:33]')
    A.label(l1)
    A('buffer_load_dword v2, v0, s[8:11], s30 offen sc1')
    A('s_add_u32 s31, s31, 1')
    A('s_waitcnt vmcnt(0)')
    A('v_cmp_ne_u32 vcc, 0, v2')
    A('s_cmp_eq_u64 vcc, s[32:33]')
    A(f's_cbranch_scc1 {ld}')
    A('s_cmp_lt_u32 s31, 64')
    A(f's_cbranch_scc1 {l1}')
    A('s_mov_b64 exec, 1')
    A('buffer_store_dword v4, v0, s[8:11], s34 offen offset:128 sc0 sc1')
    A('s_mov_b64 exec, s[32:33]')
    A.label(l2)
    A('buffer_load_dword v2, v0, s[8:11], s30 offen sc1')
    A('s_waitcnt vmcnt(0)')
    A('v_cmp_ne_u32 s[36:37], 0, v2')
    A('buffer_load_dword v2, v0, s[8:11], s30 offen offset:128 sc0 sc1')
    A('s_waitcnt vmcnt(0)')
    A('v_cmp_ne_u32 vcc, 0, v2')
    A('s_add_u32 s31, s31, 1')
    A('s_or_b64 vcc, vcc, s[36:37]')
    A('s_cmp_eq_u64 vcc, s[32:33]')
    A(f's_cbranch_scc1 {ld}')
    A('s_sleep 4')
    A(f's_cmp_lt_u32 s31, {1 << 20}')
    A(f's_cbranch_scc1 {l2}')
    A(f's_branch {endlab}')
    A.label(ld)
    A('s_mov_b64 exec, -1')
    C.vm = []
    C.flagb = True


def flag_b(C):
    if getattr(C, 'flagb', False):
        A = C.A
        l = C.lab('fb')
        A('s_cmp_lg_u32 s20, 0')
        A(f's_cbranch_scc1 {l}')
        A('s_mov_b64 exec, 1')
        A('buffer_store_dword v4, v0, s[8:11], s34 offen offset:128 sc0 sc1')
        A('s_mov_b64 exec, -1')
        A.label(l)
        C.flagb = False


ACCB, ACCA = 16, 48
KVW, KACC, QSX = 160, 176, 240
KVRED, STAT, CSX, CSK = 112 * KB, 144 * KB, 148 * KB, 152 * KB


def blk_stats(C, P, T):
    A = C.A
    A(f'v_mov_b32 {v(T + 4)}, 0x3f803f80')
    A(f'v_dot2_f32_bf16 {v(T + 1)}, {v(P)}, {v(P)}, 0')
    A(f'v_dot2_f32_bf16 {v(T)}, {v(P)}, {v(T + 4)}, 0')
    for m in range(1, 4):
        A(f'v_dot2_f32_bf16 {v(T + 1)}, {v(P + m)}, {v(P + m)}, {v(T + 1)}')
        A(f'v_dot2_f32_bf16 {v(T)}, {v(P + m)}, {v(T + 4)}, {v(T)}')
    A('s_nop 2')
    A(f'v_mov_b32 {v(T + 2)}, {v(T)}')
    A(f'v_mov_b32 {v(T + 3)}, {v(T + 1)}')
    A('s_nop 1')
    A(f'v_permlane32_swap_b32 {v(T)}, {v(T + 2)}')
    A(f'v_permlane32_swap_b32 {v(T + 1)}, {v(T + 3)}')
    A(f'v_add_f32 {v(T)}, {v(T)}, {v(T + 2)}')
    A(f'v_add_f32 {v(T + 1)}, {v(T + 1)}, {v(T + 3)}')


def g3_waddr(C, vregs, KS, wbase):
    A = C.A
    NS = KS // 8
    A('s_lshl_b32 s30, s26, 8')
    A(f'v_xor_b32 {v(vregs[0])}, s30, v3')
    A(f's_mul_i32 s31, s20, {NS * KB}')
    A(f's_add_u32 s31, s31, {wbase}')
    A('s_xor_b32 s30, s28, 1')
    A(f's_mul_i32 s30, s30, {KS * KB}')
    A('s_add_u32 s30, s30, s31')
    A(f'v_add_u32 {v(vregs[1])}, s30, {v(vregs[0])}')
    A(f's_mul_i32 s30, s28, {KS * KB}')
    A('s_add_u32 s30, s30, s31')
    A(f'v_add_u32 {v(vregs[0])}, s30, {v(vregs[0])}')


def g3_wload(C, vregs, idx, wreg0, tag='w'):
    st, jj = idx // 2, idx % 2
    so, im = soff(st)
    C.vmem(f'buffer_load_dwordx4 {v(wreg0 + 4 * idx, 4)}, {v(vregs[jj])}, s[8:11], {so} offen offset:{im}', tag)


def g3_ex(mode, KS):
    return 252 if KS == 112 else (112 if mode == 'qkv' else 116)


def g3_pre(C, mode, KS, xbase, resbase=None, raw=False):
    A = C.A
    NS = KS // 8
    EX = g3_ex(mode, KS)
    A(f's_mul_i32 s31, s20, {NS * KB}')
    A(f's_add_u32 s31, s31, {xbase}')
    A('s_add_u32 s30, s27, s29')
    A(f's_mul_i32 s32, s30, {KS * KB}')
    A('s_add_u32 s32, s32, s31')
    A('v_add_u32 v6, s32, v3')
    A('s_xor_b32 s30, s30, 1')
    A(f's_mul_i32 s32, s30, {KS * KB}')
    A('s_add_u32 s32, s32, s31')
    A('v_add_u32 v5, s32, v3')
    A('s_lshl_b32 s30, s20, 11')
    A('v_add_u32 v8, s30, v3')
    A('v_add_u32 v7, 0x10000, v8')
    for b in range(1, 8):
        A(f's_xor_b32 s30, s20, {b}')
        A('s_lshl_b32 s30, s30, 11')
        A(f's_add_u32 s30, s30, {(b - 1) * 16 * KB}')
        A(f'v_add_u32 {v(8 + b)}, s30, v3')
    if raw:
        return
    if mode == 'qkv':
        A('v_lshrrev_b32 v2, 5, v1')
        A('v_lshlrev_b32 v4, 4, v2')
        A('s_lshl_b32 s31, s28, 7')
        A('s_lshl_b32 s30, s26, 6')
        A('s_add_u32 s31, s31, s30')
        A(f's_add_u32 s31, s31, {CSQKV}')
        C.vmem(f'buffer_load_dwordx4 {v(EX, 4)}, v4, s[8:11], s31 offen', 'ex')
        C.vmem(f'buffer_load_dwordx4 {v(EX + 4, 4)}, v4, s[8:11], s31 offen offset:32', 'ex')
        A('s_bfe_u32 s30, s20, 0x10001')
        A('s_lshl_b32 s30, s30, 6')
        A('s_lshl_b32 s31, s26, 5')
        A('s_add_u32 s30, s30, s31')
        A(f's_add_u32 s31, s30, {CSQKV + 2048}')
        C.vmem(f'buffer_load_dwordx4 {v(EX + 8, 4)}, v4, s[8:11], s31 offen', 'ex')
        A(f'v_and_b32 {v(QSX + 8)}, 31, v1')
        A(f'v_lshlrev_b32 {v(QSX + 8)}, 3, {v(QSX + 8)}')
        A(f'v_lshl_add_u32 {v(QSX + 8)}, v2, 13, {v(QSX + 8)}')
        A('s_lshl_b32 s30, s27, 13')
        A('s_lshl_b32 s31, s20, 10')
        A('s_add_u32 s30, s30, s31')
        A(f's_add_u32 s30, s30, {resbase}')
        A(f'v_add_u32 {v(QSX + 8)}, s30, {v(QSX + 8)}')
    elif resbase is None:
        A('v_and_b32 v2, 31, v1')
        A('v_lshlrev_b32 v2, 10, v2')
        A('v_lshrrev_b32 v4, 5, v1')
        A('v_lshl_add_u32 v2, v4, 3, v2')
        A('s_add_u32 s30, s27, s29')
        A('s_lshl_b32 s30, s30, 15')
        A('s_lshl_b32 s31, s28, 6')
        A('s_add_u32 s30, s30, s31')
        A('s_lshl_b32 s31, s26, 5')
        A('s_add_u32 s30, s30, s31')
        C.vmem(f'buffer_load_dwordx2 {v(EX, 2)}, v2, s[12:15], s30 offen', 'ex')
        C.vmem(f'buffer_load_dwordx2 {v(EX + 2, 2)}, v2, s[12:15], s30 offen offset:16', 'ex')
    else:
        A(f's_add_u32 s31, s49, {resbase}')
        C.vmem(f'buffer_load_dwordx4 {v(EX, 4)}, v3, s[8:11], s31 offen', 'ex')


def g3_main(C, mode, KS, wreg0, outbase=None, kvf=None, after_store=None, sxout=None, hook_b=None, raw=False, hook_red=None):
    A = C.A
    NS = KS // 8
    EX = g3_ex(mode, KS)
    if NS == 4:
        xreg = {(hh, st): 80 + (hh * 4 + st) * 4 for hh in range(2) for st in range(4)}
    else:
        slot = [80 + 4 * k for k in range(12)] + [240, 244]
        xreg = {(hh, st): slot[st] for hh in range(2) for st in range(NS)}

    def xload(hh, st):
        so, im = soff(st)
        C.vmem(f'buffer_load_dwordx4 {v(xreg[hh, st], 4)}, {v(5 + hh)}, s[8:11], {so} offen offset:{im}', f'x{hh}_{st}')

    seq = [(hh, st) for hh in range(2) for st in range(NS)]
    PR = G3_PR4 if NS == 4 else G3_PR14
    if raw:
        seq, PR = [], 0
    for x in seq[:PR]:
        xload(*x)
    nxt = PR
    C.wait('w')

    def wr(b):
        base = (ACCA if b & 1 else ACCB) + ((b >> 1) & 1) * 16 + (b >> 2) * 8
        return [f'ds_write_b128 {v(8 + b)}, {v(base + h2 * 4, 4)} offset:{h2 * 1024}' for h2 in range(2)]

    pend = []
    for hh in range(2):
        acc = ACCA if hh == 0 else ACCB
        for st in range(NS):
            C.wait(f'x{hh}_{st}')
            if hh == 0 and st == 0:
                C.stamp()
            for jj in range(2):
                c = '0' if st == 0 else v(acc + jj * 16, 16)
                A(f'v_mfma_f32_32x32x16_bf16 {v(acc + jj * 16, 16)}, {v(wreg0 + 4 * (2 * st + jj), 4)}, {v(xreg[hh, st], 4)}, {c}')
                if hh == 1 and (st >= 3 or (NS == 4 and st >= 2)):
                    for _ in range(2 if NS == 4 else 1):
                        if pend:
                            A(pend.pop(0))
            if nxt < len(seq):
                xload(*seq[nxt])
                nxt += 1
                if nxt == len(seq):
                    if mode == 'qkv':
                        for e in range(4):
                            C.vmem(f'buffer_load_dwordx2 {v(QSX + 2 * e, 2)}, {v(QSX + 8)}, s[8:11], 0 offen offset:{e * 256}', 'sx')
                    flag_b(C)
                    hb = 0
            elif hook_b:
                hb += 1
            if hook_b and nxt == len(seq):
                hook_b(hb, PR)
            if hh == 1 and NS == 4 and st == 1:
                A('s_nop 7' if raw else 's_nop 5')
            if hh == 1 and NS != 4 and st == 2:
                A('s_nop 2')
        if hh == 0:
            pend = wr(1) + wr(5) + wr(3) + wr(7)
    assert not pend
    C.stamp()
    lkv = C.lab('nokv')
    if mode == 'qkv':
        la, lb = C.lab('ka'), C.lab('kb')
        A('s_cmp_ge_u32 s24, 2')
        A(f's_cbranch_scc1 {lb}')
        A('s_cmp_eq_u32 s24, s29')
        A(f's_cbranch_scc0 {la}')
        for hh in (1, 0):
            for st in range(4):
                c = '0' if st == 0 else v(KACC, 16)
                A(f'v_mfma_f32_32x32x16_bf16 {v(KACC, 16)}, {v(KVW + 4 * st, 4)}, {v(xreg[hh, st], 4)}, {c}')
            if hh == 1:
                A(f's_branch {lb}')
                A.label(la)
        A.label(lb)
        A('v_lshlrev_b32 v4, 3, v1')
        if not raw:
            C.wait('sx')
            for e in range(4):
                A(f'v_add_f32 {v(QSX + e)}, {v(QSX + e)}, {v(QSX + 4 + e)}')
            for e in range(2):
                A(f'v_add_f32 {v(QSX + e)}, {v(QSX + e)}, {v(QSX + 2 + e)}')
            A('s_lshl_b32 s30, s20, 9')
            A(f's_add_u32 s30, s30, {STAT}')
            A('v_add_u32 v2, s30, v4')
            A(f'ds_write_b64 v2, {v(QSX, 2)}')
        else:
            A('v_lshrrev_b32 v112, 5, v1')
            A('v_lshlrev_b32 v112, 4, v112')
            A('s_and_b32 s30, s28, 1')
            A('s_lshl_b32 s30, s30, 7')
            A('s_lshl_b32 s31, s26, 6')
            A('s_add_u32 s30, s30, s31')
            A(f's_add_u32 s30, s30, {CSK}')
            A('v_add_u32 v113, s30, v112')
            A('s_nop 3')
        A('v_and_b32 v4, 0xf8, v4')
        A('s_lshl_b32 s30, s29, 8')
        A(f's_add_u32 s30, s30, {STAT}')
        A('v_add_u32 v4, s30, v4')
    else:
        A('s_nop 10')
    for b in (4, 2, 6):
        for x in wr(b):
            A(x)
    if mode == 'qkv':
        A('s_cmp_ge_u32 s24, 2')
        A(f's_cbranch_scc1 {lkv}')
        A(f'v_add_u32 v2, {KVRED}, v8')
        for k4 in range(4):
            A(f'ds_write_b128 v2, {v(KACC + k4 * 4, 4)} offset:{(k4 >> 1) * 16 * KB + (k4 & 1) * 1024}')
        A.label(lkv)
    if hook_red:
        hook_red()
    A('s_waitcnt lgkmcnt(0)')
    A('s_barrier')
    for b in range(1, 8):
        for h2 in range(2):
            base, off = ('v8', (b - 1) * 16 * KB) if b <= 4 else ('v7', (b - 5) * 16 * KB)
            A(f'ds_read_b128 {v(ACCB + b * 8 + h2 * 4, 4)}, {base} offset:{off + h2 * 1024}')
    T = 80

    def red(base, waits):
        for stp in (32, 16, 8):
            for r in range(stp):
                A(f'v_add_f32 {v(base + r)}, {v(base + r)}, {v(base + stp + r)}')
    if mode == 'qkv':
        A('s_waitcnt lgkmcnt(6)')
        for ww in range(8):
            A(f'ds_read_b64 {v(T + ww * 2, 2)}, v4 offset:{ww * 512}')
        A('s_waitcnt lgkmcnt(8)')
        if raw:
            EX = 192
            for h2 in range(2):
                A(f'ds_read_b128 {v(EX + h2 * 4, 4)}, v113 offset:{h2 * 32}')
    else:
        C.wait('ex')
        for m in range(4):
            A(f'v_lshlrev_b32 {v(T + 2 * m)}, 16, {v(EX + m)}')
            A(f'v_and_b32 {v(T + 2 * m + 1)}, 0xffff0000, {v(EX + m)}')
        for r in range(8):
            A(f'v_add_f32 {v(ACCB + r)}, {v(ACCB + r)}, {v(T + r)}')
        A('s_waitcnt lgkmcnt(0)')
    red(ACCB, None)
    P = ACCB + 8
    if mode == 'qkv':
        A('s_waitcnt lgkmcnt(0)')
        for stp in (8, 4, 2):
            for e in range(stp):
                A(f'v_add_f32 {v(T + e)}, {v(T + e)}, {v(T + e + stp)}')
        A(f'v_mul_f32 {v(T)}, {f32(1.0 / 512)}, {v(T)}')
        A(f'v_mul_f32 {v(T + 1)}, {f32(1.0 / 512)}, {v(T + 1)}')
        A(f'v_fma_f32 {v(T + 1)}, -{v(T)}, {v(T)}, {v(T + 1)}')
        A(f'v_max_f32 {v(T + 1)}, 0, {v(T + 1)}')
        A(f'v_add_f32 {v(T + 1)}, {f32(1e-5)}, {v(T + 1)}')
        A(f'v_rsq_f32 {v(T + 1)}, {v(T + 1)}')
        C.wait('ex')
        for r in range(8):
            A(f'v_fma_f32 {v(ACCB + r)}, -{v(T)}, {v(EX + r)}, {v(ACCB + r)}')
        A(f'v_mul_f32 {v(T + 2)}, {f32(QSCALE)}, {v(T + 1)}')
        for r in range(8):
            A(f'v_mul_f32 {v(ACCB + r)}, {v(T + 2)}, {v(ACCB + r)}')
        for m in range(4):
            A(f'v_cvt_pk_bf16_f32 {v(P + m)}, {v(ACCB + 2 * m)}, {v(ACCB + 2 * m + 1)}')
        A(f's_add_u32 s31, s49, {C.qf}')
        C.vmem(f'buffer_store_dwordx4 {v(P, 4)}, v3, s[8:11], s31 offen{QWT}', 'st')
        le, lv = C.lab('ke'), C.lab('v')
        A('s_cmp_lg_u32 s29, s24')
        A(f's_cbranch_scc1 {le}')
        A('s_bfe_u32 s34, s20, 0x10001')
        A('s_lshl_b32 s30, s34, 14')
        A('s_lshl_b32 s31, s26, 10')
        A('s_add_u32 s30, s30, s31')
        A(f's_add_u32 s30, s30, {KVRED}')
        A('v_add_u32 v4, s30, v3')
        KR = 208
        for ww in range(8):
            A(f'ds_read_b128 {v(KR + ww * 4, 4)}, v4 offset:{ww * 2048}')
        KX = EX + 8
        if raw:
            A('s_lshl_b32 s30, s34, 6')
            A('s_lshl_b32 s31, s26, 5')
            A('s_add_u32 s30, s30, s31')
            A(f's_add_u32 s30, s30, {CSK + 256}')
            A('v_add_u32 v113, s30, v112')
            A(f'ds_read_b128 {v(KX, 4)}, v113')
        A('s_add_u32 s30, s27, s29')
        A(f's_mul_i32 s30, s30, {KVG}')
        A(f's_add_u32 s30, s30, {kvf}')
        A('v_bfe_u32 v4, v1, 4, 1')
        A(f'v_mul_u32_u24 v4, {VBS}, v4')
        A('v_bfe_u32 v5, v1, 2, 1')
        A('v_lshl_add_u32 v4, v5, 8, v4')
        A('v_and_b32 v5, 3, v1')
        A('v_lshl_add_u32 v4, v5, 1, v4')
        A('v_bfe_u32 v5, v1, 3, 1')
        A('v_lshl_add_u32 v4, v5, 3, v4')
        A('v_lshrrev_b32 v5, 5, v1')
        A('v_lshl_add_u32 v4, v5, 6, v4')
        A('s_waitcnt lgkmcnt(0)')
        for stp in (16, 8, 4):
            for r in range(stp):
                A(f'v_add_f32 {v(KR + r)}, {v(KR + r)}, {v(KR + stp + r)}')
        for r in range(4):
            A(f'v_fma_f32 {v(KR + r)}, -{v(T)}, {v(KX + r)}, {v(KR + r)}')
        for r in range(4):
            A(f'v_mul_f32 {v(KR + r)}, {v(T + 1)}, {v(KR + r)}')
        KP = KR + 8
        for m in range(2):
            A(f'v_cvt_pk_bf16_f32 {v(KP + m)}, {v(KR + 2 * m)}, {v(KR + 2 * m + 1)}')
        A('s_cmp_lg_u32 s34, 0')
        A(f's_cbranch_scc1 {lv}')
        A('s_lshl_b32 s31, s26, 3')
        A('s_add_u32 s31, s31, s30')
        A(f'buffer_store_dwordx2 {v(KP, 2)}, v3, s[8:11], s31 offen{QWT}')
        A(f's_branch {le}')
        A.label(lv)
        A('s_lshl_b32 s31, s26, 7')
        A('s_add_u32 s31, s31, s30')
        for r in range(4):
            op = 'buffer_store_short' if r % 2 == 0 else 'buffer_store_short_d16_hi'
            A(f'{op} {v(KP + r // 2)}, v4, s[8:11], s31 offen offset:{1024 + r * 16}{QWT}')
        A.label(le)
    else:
        for m in range(4):
            A(f'v_cvt_pk_bf16_f32 {v(P + m)}, {v(ACCB + 2 * m)}, {v(ACCB + 2 * m + 1)}')
        if mode == 'res':
            A(f's_add_u32 s31, s49, {outbase}')
            C.vmem(f'buffer_store_dwordx4 {v(P, 4)}, v3, s[8:11], s31 offen{WT}', 'st')
            blk_stats(C, P, T)
            A('s_lshr_b32 s31, s49, 2')
            A(f's_add_u32 s31, s31, {sxout}')
            A('v_lshlrev_b32 v4, 3, v1')
            A('s_mov_b32 exec_hi, 0')
            C.vmem(f'buffer_store_dwordx2 {v(T, 2)}, v4, s[8:11], s31 offen{WT}', 'st')
            A('s_mov_b64 exec, -1')
            if after_store:
                after_store()
        else:
            A('v_and_b32 v4, 31, v1')
            A('v_lshlrev_b32 v4, 10, v4')
            A('v_lshrrev_b32 v5, 5, v1')
            A('v_lshl_add_u32 v4, v5, 4, v4')
            A('s_add_u32 s30, s27, s29')
            A('s_lshl_b32 s30, s30, 15')
            A('s_lshl_b32 s31, s28, 6')
            A('s_add_u32 s30, s30, s31')
            A('s_lshl_b32 s31, s26, 5')
            A('s_add_u32 s30, s30, s31')
            A(f'v_permlane32_swap_b32 {v(P)}, {v(P + 2)}')
            A(f'v_permlane32_swap_b32 {v(P + 1)}, {v(P + 3)}')
            C.vmem(f'buffer_store_dwordx4 {v(P, 4)}, v4, s[12:15], s30 offen', 'st')


def qkv_wstep(C, st, n=1):
    A = C.A
    if st == 0:
        g3_waddr(C, (5, 6), 32, WQKVP)
    per = -(-8 // n)
    for i in range(st * per, min(8, (st + 1) * per)):
        g3_wload(C, (5, 6), i, 128)
    if st == n:
        A('s_lshl_b32 s30, s20, 12')
        A(f's_add_u32 s30, s30, {WQKVP + 16 * 32 * KB}')
        l = C.lab('kw')
        A('s_cmp_ge_u32 s24, 2')
        A(f's_cbranch_scc1 {l}')
        for k in range(4):
            A(f'buffer_load_dwordx4 {v(KVW + 4 * k, 4)}, v3, s[8:11], s30 offen offset:{k * 1024}')
        A.label(l)


def qkv_wloads(C):
    qkv_wstep(C, 0)
    qkv_wstep(C, 1)


KVR4, XF0, ST4, RED4 = 0, 36 * KB, 68 * KB, 80 * KB
G4_ORD = [0, 1, 4, 5, 8, 9, 12, 13, 2, 3, 6, 7, 10, 11, 14, 15]


def g4_ids(C):
    A = C.A
    A('s_and_b32 s18, s22, 3')
    A('s_lshl_b32 s30, s21, 2')
    A('s_add_u32 s18, s18, s30')
    A('s_and_b32 s30, s22, 12')
    A('s_add_u32 s30, s30, s25')
    A('s_lshl_b32 s30, s30, 1')
    A('s_add_u32 s30, s30, s26')
    A('s_lshl_b32 s19, s18, 5')
    A('s_add_u32 s19, s19, s30')
    A('s_lshl_b32 s19, s19, 10')
    A('s_lshr_b32 s3, s22, 2')
    A('s_and_b32 s30, s21, 3')
    A('s_xor_b32 s3, s3, s30')


def g4_waddr(C, vreg, wbase):
    A = C.A
    A('s_lshl_b32 s30, s26, 8')
    A(f'v_xor_b32 {v(vreg)}, s30, v3')
    A('s_and_b32 s30, s19, 0x7fff')
    A('s_lshl_b32 s30, s30, 4')
    A(f's_add_u32 s30, s30, {wbase}')
    A(f'v_add_u32 {v(vreg)}, s30, {v(vreg)}')


def g4_wreg(mode, i):
    if mode == 'qkv':
        return 128 + 4 * i
    return 224 + 4 * i if i < 8 else 64 + 4 * (i - 8)


def g4_wload(C, vreg, i, mode):
    so, im = soff(G4_ORD[i])
    C.vmem(f'buffer_load_dwordx4 {v(g4_wreg(mode, i), 4)}, {v(vreg)}, s[8:11], {so} offen offset:{im}', 'w')


def g4_pre(C, mode, xbase, resbase=None, raw=False):
    A = C.A
    EX = 96
    A('s_lshl_b32 s30, s18, 15')
    A('s_lshl_b32 s48, s20, 12')
    A('s_add_u32 s30, s30, s48')
    A(f's_add_u32 s30, s30, {xbase}')
    A('v_add_u32 v5, s30, v3')
    A('s_lshl_b32 s30, s26, 14')
    A(f's_add_u32 s30, s30, {XF0}')
    A('v_add_u32 v6, s30, v3')
    A(f'v_add_u32 v14, s48, v3')
    A(f's_add_u32 s48, s48, {XF0}')
    A('s_lshl_b32 s30, s20, 11')
    A(f's_add_u32 s30, s30, {RED4}')
    A('v_add_u32 v8, s30, v3')
    A('v_xor_b32 v7, 0x2000, v8')
    if mode == 'qkv':
        A('v_lshrrev_b32 v2, 5, v1')
        if not raw:
            A('v_lshlrev_b32 v4, 4, v2')
            A('s_and_b32 s31, s19, 0x7fff')
            A('s_lshr_b32 s31, s31, 4')
            A(f's_add_u32 s31, s31, {CSQKV}')
            C.vmem(f'buffer_load_dwordx4 {v(EX, 4)}, v4, s[8:11], s31 offen', 'ex')
            C.vmem(f'buffer_load_dwordx4 {v(EX + 4, 4)}, v4, s[8:11], s31 offen offset:32', 'ex')
            A('s_lshl_b32 s31, s25, 5')
            A(f's_add_u32 s31, s31, {CSQKV + 2048}')
            C.vmem(f'buffer_load_dwordx4 {v(EX + 8, 4)}, v4, s[8:11], s31 offen', 'ex')
        A('v_and_b32 v9, 31, v1')
        A('v_lshlrev_b32 v9, 3, v9')
        A(f'v_add_u32 v11, {ST4}, v9')
        A('s_lshl_b32 s30, s20, 8')
        A('v_add_u32 v10, s30, v11')
        A('v_lshl_add_u32 v9, v2, 9, v9')
        A('s_lshl_b32 s30, s18, 13')
        A('s_lshl_b32 s31, s20, 10')
        A('s_add_u32 s30, s30, s31')
        A(f's_add_u32 s30, s30, {resbase}')
        A('v_add_u32 v9, s30, v9')
        A('v_add_u32 v12, s48, v3')
        A('s_lshl_b32 s30, s25, 10')
        A(f's_add_u32 s30, s30, {KVR4}')
        A('v_add_u32 v13, s30, v3')
        A('v_bfe_u32 v15, v1, 4, 1')
        A('v_lshlrev_b32 v15, 9, v15')
        A('v_bfe_u32 v4, v1, 2, 1')
        A('v_lshl_add_u32 v15, v4, 8, v15')
        A('v_and_b32 v4, 3, v1')
        A('v_lshl_add_u32 v15, v4, 1, v15')
        A('v_bfe_u32 v4, v1, 3, 1')
        A('v_lshl_add_u32 v15, v4, 3, v15')
        A('v_lshl_add_u32 v15, v2, 6, v15')
    elif resbase is None:
        A('v_and_b32 v2, 31, v1')
        A('v_lshlrev_b32 v2, 10, v2')
        A('v_lshrrev_b32 v4, 5, v1')
        A('v_lshl_add_u32 v2, v4, 3, v2')
        A('s_lshl_b32 s30, s18, 15')
        A('s_and_b32 s31, s19, 0x7fff')
        A('s_lshr_b32 s31, s31, 5')
        A('s_add_u32 s30, s30, s31')
        C.vmem(f'buffer_load_dwordx2 {v(EX, 2)}, v2, s[12:15], s30 offen', 'ex')
        C.vmem(f'buffer_load_dwordx2 {v(EX + 2, 2)}, v2, s[12:15], s30 offen offset:16', 'ex')
    else:
        A(f's_add_u32 s31, s19, {resbase}')
        C.vmem(f'buffer_load_dwordx4 {v(EX, 4)}, v3, s[8:11], s31 offen', 'ex')


def ln_stats(A, T):
    for stp in (8, 4, 2):
        for e in range(stp):
            A(f'v_add_f32 {v(T + e)}, {v(T + e)}, {v(T + e + stp)}')
    A(f'v_mul_f32 {v(T)}, {f32(1.0 / 512)}, {v(T)}')
    A(f'v_mul_f32 {v(T + 1)}, {f32(1.0 / 512)}, {v(T + 1)}')
    A(f'v_fma_f32 {v(T + 1)}, -{v(T)}, {v(T)}, {v(T + 1)}')
    A(f'v_max_f32 {v(T + 1)}, 0, {v(T + 1)}')
    A(f'v_add_f32 {v(T + 1)}, {f32(1e-5)}, {v(T + 1)}')
    A(f'v_rsq_f32 {v(T + 1)}, {v(T + 1)}')


def g4_main(C, mode, outbase=None, sxout=None, kvf=None, kfl=None, hook_red=None, raw=None, endlab=None):
    A = C.A
    ACC, XR, EX = 16, 32, 96
    KW, KA, KR, T = 192, 208, 224, 108
    if not raw:
        A('s_mov_b32 m0, s48')
        A('s_nop 0')
        for k in range(4):
            C.vmem(f'buffer_load_dwordx4 v5, s[8:11], 0 offen offset:{k * 1024} lds', f'x{k}')

    def rd(i):
        A(f'ds_read_b128 {v(XR + 4 * (i % 8), 4)}, v6 offset:{G4_ORD[i] * 1024}')

    def mf(i):
        c = '0' if i == 0 else v(ACC, 16)
        A(f'v_mfma_f32_32x32x16_bf16 {v(ACC, 16)}, {v(g4_wreg(mode, i), 4)}, {v(XR + 4 * (i % 8), 4)}, {c}')

    def wq_loads():
        for i in range(16):
            so, im = soff(G4_ORD[i])
            A(f'buffer_load_dwordx4 {v(128 + 4 * i, 4)}, v64, s[8:11], {so} offen offset:{im}')

    if mode == 'qkv':
        A('s_add_u32 s35, s3, s26')
        if raw:
            raw['front']()
        else:
            for e in range(2):
                C.vmem(f'buffer_load_dwordx2 {v(T + 2 * e, 2)}, v9, s[8:11], 0 offen offset:{e * 256}', 'sx')
            l1, l2 = C.lab('w1'), C.lab('w2')
            A('s_cmp_eq_u32 s3, 0')
            A(f's_cbranch_scc1 {l1}')
            flag_b(C)
            wq_loads()
            A('s_waitcnt vmcnt(16)')
            A(f's_branch {l2}')
            A.label(l1)
            A('s_waitcnt vmcnt(0)')
            A.label(l2)
            C.vm = []
            C.stamp()
        lk = C.lab('k4')
        A('s_cmp_lg_u32 s3, 0')
        A(f's_cbranch_scc1 {lk}')
        if raw:
            raw['kvw']()
        else:
            for k in range(4):
                A(f'ds_read_b128 {v(KR + 4 * k, 4)}, v12 offset:{k * 1024}')
        for k in range(4):
            if not raw:
                A(f's_waitcnt lgkmcnt({3 - k})')
            A(f'v_mfma_f32_32x32x16_bf16 {v(KA, 16)}, {v(KW + 4 * k, 4)}, {v(KR + 4 * k, 4)}, {"0" if k == 0 else v(KA, 16)}')
        A.label(lk)
        A(f'v_add_f32 {v(T)}, {v(T)}, {v(T + 2)}')
        A(f'v_add_f32 {v(T + 1)}, {v(T + 1)}, {v(T + 3)}')
        A(f'v_mov_b32 {v(T + 2)}, {v(T)}')
        A(f'v_mov_b32 {v(T + 3)}, {v(T + 1)}')
        A('s_nop 1')
        swap_add(A, T, T + 2)
        swap_add(A, T + 1, T + 3)
        A(f'ds_write_b64 v10, {v(T, 2)}')
        A(f'v_mov_b32 {v(T + 2)}, 0')
        A(f'v_mov_b32 v9, {ST4 + 8192}')
        A(f'ds_write_b32 v9, {v(T + 2)}')
        lk = C.lab('k5')
        A('s_cmp_lg_u32 s3, 0')
        A(f's_cbranch_scc1 {lk}')
        for k in range(4):
            A(f'ds_write_b128 v14, {v(KA + 4 * k, 4)} offset:{k * 1024}')
        A.label(lk)
        A('s_waitcnt lgkmcnt(0)')
        A('s_barrier')
        for ww in range(8):
            A(f'ds_read_b64 {v(T + 2 * ww, 2)}, v11 offset:{ww * 256}')
        lv, le, lf = C.lab('v6'), C.lab('e6'), C.lab('f6')
        A('s_cmp_lg_u32 s35, 0')
        A(f's_cbranch_scc1 {le}')
        A('s_setprio 3')
        if FINE == 3:
            C.stamp()
        A('s_waitcnt lgkmcnt(4)')
        for ww in range(8):
            A(f'ds_read_b128 {v(KR + 4 * ww, 4)}, v13 offset:{ww * 4096}')
        A('s_waitcnt lgkmcnt(8)')
        for r in range(16):
            A(f'v_mov_b32 {v(KA + r)}, {v(T + r)}')
        ln_stats(A, KA)
        A('s_lshl_b32 s30, s18, 11')
        A(f's_add_u32 s30, s30, {kvf}')
        A('s_waitcnt lgkmcnt(0)')
        if raw:
            raw['kvcs0']()
        for stp in (16, 8, 4):
            for r in range(stp):
                A(f'v_add_f32 {v(KR + r)}, {v(KR + r)}, {v(KR + stp + r)}')
        if raw:
            raw['kvcs1']()
        for r in range(4):
            A(f'v_fma_f32 {v(KR + r)}, -{v(KA)}, {v(EX + 8 + r)}, {v(KR + r)}')
        for r in range(4):
            A(f'v_mul_f32 {v(KR + r)}, {v(KA + 1)}, {v(KR + r)}')
        for m in range(2):
            A(f'v_cvt_pk_bf16_f32 {v(KR + 8 + m)}, {v(KR + 2 * m)}, {v(KR + 2 * m + 1)}')
        A('s_cmp_ge_u32 s20, 2')
        A(f's_cbranch_scc1 {lv}')
        A('s_lshl_b32 s31, s20, 3')
        A('s_add_u32 s31, s31, s30')
        A(f'buffer_store_dwordx2 {v(KR + 8, 2)}, v3, s[8:11], s31 offen sc0 sc1')
        A(f's_branch {lf}')
        A.label(lv)
        A('s_lshl_b32 s31, s29, 10')
        A(f's_add_u32 s31, s31, {ST4 + 4096}')
        A('v_add_u32 v15, s31, v15')
        for r in range(4):
            op = 'ds_write_b16' if r % 2 == 0 else 'ds_write_b16_d16_hi'
            A(f'{op} v15, {v(KR + 8 + r // 2)} offset:{r * 16}')
        A('v_lshrrev_b32 v2, 3, v1')
        A('v_lshlrev_b32 v2, 8, v2')
        A(f'v_and_b32 {v(KR)}, 7, v1')
        A(f'v_lshl_add_u32 v2, {v(KR)}, 4, v2')
        A('v_add_u32 v15, s31, v2')
        A('s_mov_b32 exec_hi, 0')
        A(f'ds_read_b128 {v(KR + 12, 4)}, v15')
        A('s_lshl_b32 s31, s29, 7')
        A('s_add_u32 s31, s31, s30')
        A('s_waitcnt lgkmcnt(0)')
        A(f'buffer_store_dwordx4 {v(KR + 12, 4)}, v2, s[8:11], s31 offen offset:1024 sc0 sc1')
        A('s_mov_b64 exec, -1')
        A.label(lf)
        lg = C.lab('g6')
        if FINE == 3:
            C.stamp()
        A('s_lshl_b32 s30, s18, 7')
        A(f's_add_u32 s30, s30, {kfl}')
        if raw:
            raw['zchk']()
        A('s_mov_b64 exec, 1')
        A('s_waitcnt vmcnt(0)')
        A('ds_add_rtn_u32 v2, v9, v4')
        A('s_waitcnt lgkmcnt(0)')
        A('v_cmp_eq_u32 vcc, 3, v2')
        A('s_cbranch_vccz ' + lg)
        A('buffer_store_dword v4, v0, s[8:11], s30 offen sc0 sc1')
        A.label(lg)
        A('s_mov_b64 exec, -1')
        A('s_setprio 0')
        if FINE == 3:
            C.stamp()
        A.label(le)
        flag_b(C)
        A('s_waitcnt lgkmcnt(0)')
        if raw:
            raw['wprep']()
        else:
            l3 = C.lab('w3')
            A('s_cmp_lg_u32 s3, 0')
            A(f's_cbranch_scc1 {l3}')
            C.flagb = True
            flag_b(C)
            wq_loads()
            A.label(l3)
        if raw:
            raw['loop'](rd, mf)
        else:
            for i in range(8):
                rd(i)
            ln_stats(A, T)
            for i in range(16):
                A(f's_waitcnt lgkmcnt({7 if i < 8 else 15 - i}) vmcnt({15 - i})')
                mf(i)
                if i < 8:
                    rd(i + 8)
    else:
        def wl(i):
            so, im = soff(G4_ORD[i])
            C.vmem(f'buffer_load_dwordx4 {v(g4_wreg(mode, i), 4)}, v116, s[8:11], {so} offen offset:{im}', f'w{i}')
        if WO_LATE:
            for i in range(8, 8 + WO_L0):
                wl(i)
        C.wait('x1')
        A('s_barrier')
        C.stamp()
        for i in range(8):
            rd(i)
        if WO_LATE:
            for i in range(8 + WO_L0, 16):
                wl(i)
        for i in range(4):
            A(f's_waitcnt lgkmcnt({7 - i})')
            mf(i)
        C.wait('x3')
        A('s_barrier')
        for i in range(8, 12):
            rd(i)
        for i in range(4, 8):
            A('s_waitcnt lgkmcnt(7)')
            mf(i)
            rd(i + 8)
        flag_b(C)
        for i in range(8, 16):
            C.wait(f'w{i}', f'lgkmcnt({15 - i})')
            mf(i)
            if hook_red and i >= 8:
                hook_red(i - 8)
    C.stamp()
    if mode == 'qkv':
        kv_setup(C, kvf, kfl)
        A(f'v_mul_f32 {v(T + 2)}, {f32(QSCALE)}, {v(T + 1)}')
        if raw:
            raw['cs0']()
    else:
        C.wait('ex')
        TT = XR
        for m in range(4):
            A(f'v_lshlrev_b32 {v(TT + 2 * m)}, 16, {v(EX + m)}')
            A(f'v_and_b32 {v(TT + 2 * m + 1)}, 0xffff0000, {v(EX + m)}')
        A('s_nop 3')
    for h2 in range(2):
        A(f'ds_write_b128 v7, {v(ACC + 8 + 4 * h2, 4)} offset:{h2 * 1024}')
    if mode == 'qkv':
        if not raw:
            for r in range(8):
                A(f'v_fma_f32 {v(ACC + r)}, -{v(T)}, {v(EX + r)}, {v(ACC + r)}')
    else:
        for r in range(8):
            A(f'v_add_f32 {v(ACC + r)}, {v(ACC + r)}, {v(XR + r)}')
    A('s_waitcnt lgkmcnt(0)')
    A('s_barrier')
    for h2 in range(2):
        A(f'ds_read_b128 {v(ACC + 8 + 4 * h2, 4)}, v8 offset:{h2 * 1024}')
    if mode == 'qkv':
        if FINE == 3:
            C.stamp()
        kv_wait(C, 1, endlab)
        if FINE == 3:
            C.stamp()
        att_kvdma(C, 0)
        kv_flagload(C)
    if raw:
        raw['cs']()
        for r in range(8):
            A(f'v_fma_f32 {v(ACC + r)}, -{v(T)}, {v(EX + r)}, {v(ACC + r)}')
    A('s_waitcnt lgkmcnt(0)')
    for r in range(8):
        A(f'v_add_f32 {v(ACC + r)}, {v(ACC + r)}, {v(ACC + 8 + r)}')
    if mode == 'qkv':
        for r in range(8):
            A(f'v_mul_f32 {v(ACC + r)}, {v(T + 2)}, {v(ACC + r)}')
        for m in range(4):
            A(f'v_cvt_pk_bf16_f32 {v(124 + m)}, {v(ACC + 2 * m)}, {v(ACC + 2 * m + 1)}')
        A('s_barrier')
    else:
        P = ACC + 8
        for m in range(4):
            A(f'v_cvt_pk_bf16_f32 {v(P + m)}, {v(ACC + 2 * m)}, {v(ACC + 2 * m + 1)}')
        A(f's_add_u32 s31, s19, {outbase}')
        C.vmem(f'buffer_store_dwordx4 {v(P, 4)}, v3, s[8:11], s31 offen{WT}', 'st')
        blk_stats(C, P, XR)
        A('s_lshr_b32 s31, s19, 2')
        A(f's_add_u32 s31, s31, {sxout}')
        A('v_lshlrev_b32 v4, 3, v1')
        A('s_mov_b32 exec_hi, 0')
        C.vmem(f'buffer_store_dwordx2 {v(XR, 2)}, v4, s[8:11], s31 offen{WT}', 'st')
        A('s_mov_b64 exec, -1')


def qkv4_wstep(C, st, n):
    pass


def qkv4_wrest(C):
    A = C.A
    l = C.lab('kw')
    A('s_lshl_b32 s30, s20, 12')
    A(f's_add_u32 s30, s30, {WQKVP + 16 * 32 * KB}')
    A('s_cmp_lg_u32 s3, 0')
    A(f's_cbranch_scc1 {l}')
    for k in range(4):
        A(f'buffer_load_dwordx4 {v(192 + 4 * k, 4)}, v3, s[8:11], s30 offen offset:{k * 1024}')
    A.label(l)


def att_kvdma(C, r):
    A = C.A
    A(f's_add_u32 s30, s39, {r * 16384}')
    A('s_and_b32 s30, s30, 0x1ffff')
    A(f's_add_u32 m0, s37, {r * 8 * KVT}')
    A('s_add_u32 s30, s30, s38')
    A('buffer_load_dwordx4 v3, s[8:11], s30 offen lds')
    A('buffer_load_dwordx4 v3, s[8:11], s30 offen offset:1024 lds')


def kv_flagload(C):
    A = C.A
    A('s_mov_b64 exec, 0xff')
    A('buffer_load_dword v2, v0, s[8:11], s33 offen sc1')
    A('s_mov_b64 exec, -1')


def kv_setup(C, kvf, kfl):
    A = C.A
    A(f's_mul_i32 s37, s20, {KVT}')
    A('s_lshl_b32 s38, s20, 11')
    A(f's_add_u32 s38, s38, {kvf}')
    A('s_lshr_b32 s30, s21, 1')
    A('s_lshl_b32 s39, s30, 14')
    A('v_add_u32 v0, s30, v1')
    A('v_and_b32 v0, 7, v0')
    A('v_lshlrev_b32 v0, 10, v0')
    A('s_lshl_b32 s33, s20, 7')
    A(f's_add_u32 s33, s33, {kfl}')
    kv_flagload(C)


def kv_wait(C, mask, endlab):
    A = C.A
    lp, lpd = C.lab('kp'), C.lab('kpd')
    A('s_mov_b32 s31, 0')
    A('s_mov_b64 exec, 0xff')
    A.label(lp)
    A('s_add_u32 s31, s31, 1')
    A('s_waitcnt vmcnt(0)')
    A('v_cmp_ne_u32 vcc, 0, v2')
    A(f's_and_b32 s30, vcc_lo, {mask}')
    A(f's_cmp_eq_u32 s30, {mask}')
    A(f's_cbranch_scc1 {lpd}')
    A(f's_sleep {KV_SLEEP}')
    A('buffer_load_dword v2, v0, s[8:11], s33 offen sc1')
    A(f's_cmp_lt_u32 s31, {1 << 21}')
    A(f's_cbranch_scc1 {lp}')
    A(f's_branch {endlab}')
    A.label(lpd)
    A('s_mov_b64 exec, -1')


def att_phase(C, kvf, kfl, endlab, stubs, fixed={}, pf0=None, pre_hook=None, loadq=True, early=False):
    A = C.A
    tg = C.tag
    Q, CN, S0, S1, O, P, KF, VF, VK, VV, T = 124, 8, 24, 40, 56, 72, 80, 88, 104, 105, 106
    VV1 = 111
    S = [S0, S1]
    A(f's_add_u32 s36, s19, {C.B["OF"]}')
    if loadq:
        A(f's_add_u32 s31, s19, {C.B["QF"]}')
        C.vmem(f'buffer_load_dwordx4 {v(Q, 4)}, v3, s[8:11], s31 offen', 'q')
        flag_b(C)
    def kvdma(r):
        att_kvdma(C, r)
    if pre_hook:
        pre_hook()
    A(f'v_mov_b32 {v(VK)}, v3')
    A(f'v_and_b32 {v(T)}, 15, v1')
    A(f'v_lshrrev_b32 {v(T + 1)}, 5, v1')
    A(f'v_lshl_add_u32 {v(T)}, {v(T + 1)}, 4, {v(T)}')
    A(f'v_lshlrev_b32 {v(T)}, 4, {v(T)}')
    A(f'v_add_u32 {v(VV)}, 1024, {v(T)}')
    A(f'v_add_u32 {v(VV1)}, 1536, {v(T)}')
    A(f'v_and_b32 {v(T + 1)}, 31, v1')
    A(f'v_cmp_eq_u32 vcc, 16, {v(T + 1)}')
    A(f'v_mov_b32 {v(T + 2)}, 2048')
    A('s_nop 0')
    A(f'v_cndmask_b32 {v(VV)}, {v(VV)}, {v(T + 2)}, vcc')
    A(f'v_cndmask_b32 {v(VV1)}, {v(VV1)}, {v(T + 2)}, vcc')
    A(f'v_cmp_lt_u32 vcc, 16, {v(T + 1)}')
    A(f'v_mov_b32 {v(T + 2)}, 2064')
    A('s_nop 0')
    A(f'v_cndmask_b32 {v(VV)}, {v(VV)}, {v(T + 2)}, vcc')
    A(f'v_cndmask_b32 {v(VV1)}, {v(VV1)}, {v(T + 2)}, vcc')
    for r in range(16):
        A(f'v_mov_b32 {v(O + r)}, 0')
    for m in range(4, 8):
        A(f'v_mov_b32 {v(P + m)}, 0')
    for m in range(4):
        A(f'v_mov_b32 {v(VF + 12 + m)}, 0')
        A(f'v_mov_b32 {v(P + m)}, 0x3f803f80')
    A(f'v_mul_u32_u24 {v(T)}, {KVT}, v1')
    lcw = C.lab('cw')
    A('s_cmp_lg_u32 s20, 7')
    A(f's_cbranch_scc1 {lcw}')
    A(f'ds_write_b128 {v(T)}, {v(P, 4)} offset:2048')
    A(f'ds_write_b128 {v(T)}, {v(P + 4, 4)} offset:2064')
    A.label(lcw)
    lnd = C.lab('nd')
    A('s_waitcnt vmcnt(0) lgkmcnt(0)')
    A('v_cmp_ne_u32 vcc, 0, v2')
    A('s_barrier')
    A('s_and_b32 s32, vcc_lo, 0xff')
    A('s_cmp_lg_u32 s32, 0xff')
    A(f's_cbranch_scc1 {lnd}')
    for r in range(1, 4):
        kvdma(r)
    A.label(lnd)
    C.vm = []
    C.stamp()

    def rdK(buf, t):
        A(f'ds_read_b128 {v(KF + buf * 4, 4)}, {v(VK)} offset:{t * KVT}')

    def rdV(buf, t):
        A(f'ds_read_b128 {v(VF + buf * 8, 4)}, {v(VV)} offset:{t * KVT}')
        A(f'ds_read_b128 {v(VF + buf * 8 + 4, 4)}, {v(VV1)} offset:{t * KVT}')

    rdK(0, 0)
    rdK(1, 1)
    rdV(0, 0)
    A('s_waitcnt lgkmcnt(3)')
    A(f'v_mfma_f32_32x32x16_bf16 {v(S0, 16)}, {v(KF, 4)}, {v(Q, 4)}, 0')
    A('s_nop 11')
    A(f'v_max3_f32 {v(T)}, {v(S0)}, {v(S0 + 1)}, {v(S0 + 2)}')
    for r in range(3, 15, 2):
        A(f'v_max3_f32 {v(T)}, {v(T)}, {v(S0 + r)}, {v(S0 + r + 1)}')
    A(f'v_max_f32 {v(T)}, {v(T)}, {v(S0 + 15)}')
    A(f'v_mov_b32 {v(T + 1)}, {v(T)}')
    A('s_nop 1')
    A(f'v_permlane32_swap_b32 {v(T)}, {v(T + 1)}')
    A(f'v_max_f32 {v(T)}, {v(T)}, {v(T + 1)}')
    for r in range(16):
        A(f'v_sub_f32 {v(CN + r)}, 0, {v(T)}')
    for r in range(16):
        A(f'v_sub_f32 {v(S0 + r)}, {v(S0 + r)}, {v(T)}')
    A('s_setprio 3')
    C.stamp()
    UN = ATT_UN
    NIT = 64 // UN
    queue = list(stubs)
    assert UN == 4
    first_pf = ATT_B2
    pf0 = pf0 or first_pf
    per = -(-len(queue) // (NIT - pf0 - ATT_PFEND))
    prio = {int(NIT * 0.5): 2, int(NIT * 0.78): 1, NIT - 1: 0}
    if PRIOV == 1:
        prio = {NIT - 1: 0}
    if PRIOV == 2:
        prio = {6: 2, 11: 1, 14: 0}
    if PRIOV == 3:
        prio = {k: (3 if k % 2 == 0 else 0) for k in range(NIT)}
    for it in range(NIT):
        if it == 1:
            ld = C.lab('dn')
            A('s_cmp_eq_u32 s32, 0xff')
            A(f's_cbranch_scc1 {ld}')
            kv_flagload(C)
            kv_wait(C, 0xff, endlab)
            for r in range(1, 4):
                kvdma(r)
            A.label(ld)
            for r in range(4, 8):
                kvdma(r)
            A('s_waitcnt vmcnt(12)')
            A('s_barrier')
        if it == first_pf:
            A('s_waitcnt vmcnt(0)')
            A('s_barrier')
        if it in prio:
            A(f's_setprio {prio[it]}')
        if it in fixed:
            if FINE == 2:
                C.stamp()
            fixed[it]()
            if FINE == 2:
                C.stamp()
        if it >= pf0:
            for _ in range(per):
                if queue:
                    queue.pop(0)()
        A('s_call_b64 s[34:35], att_body')
    assert not queue
    A(f'v_mfma_f32_32x32x16_bf16 {v(O, 16)}, {v(VF + 8 + 4, 4)}, {v(P + 4, 4)}, {v(O, 16)}')
    A('s_mov_b32 s39, 0')
    C.stamp()
    A('s_waitcnt lgkmcnt(0)')
    A('s_nop 10')
    A.label(f'{tg}_fin')
    A(f'v_mov_b32 {v(T)}, {v(O + 8)}')
    A(f'v_mov_b32 {v(T + 1)}, {v(O + 8)}')
    A(f'v_mul_f32 {v(T + 2)}, 0, {v(O)}')
    A(f'v_fma_f32 {v(T + 2)}, {v(O + 1)}, 0, {v(T + 2)}')
    A(f'v_permlane32_swap_b32 {v(T)}, {v(T + 1)}')
    for r in range(2, 8):
        A(f'v_fma_f32 {v(T + 2)}, {v(O + r)}, 0, {v(T + 2)}')
    A(f'v_add_f32 {v(T + 2)}, {v(T + 2)}, {v(T)}')
    A(f'v_mov_b32 {v(T + 3)}, {f32(2.0 ** 30)}')
    A(f'v_cmp_nle_f32 vcc, {v(T + 2)}, {v(T + 3)}')
    A(f'v_rcp_f32 {v(T)}, {v(T)}')
    A('s_cmp_eq_u32 s39, 99')
    A(f's_cbranch_scc1 {tg}_store')
    A(f's_cbranch_vccnz {tg}_slow')
    A.label(f'{tg}_store')
    for r in range(8):
        A(f'v_mul_f32 {v(O + r)}, {v(T)}, {v(O + r)}')
    for m in range(4):
        A(f'v_cvt_pk_bf16_f32 {v(P + m)}, {v(O + 2 * m)}, {v(O + 2 * m + 1)}')
    C.vmem(f'buffer_store_dwordx4 {v(P, 4)}, v3, s[8:11], s36 offen{WT}', 'st')

    def tail(with_body):
        if with_body:
            A.raw('.p2align 6')
            A.label('att_body')
            for t in range(UN):
                cur, nxt = t & 1, (t + 1) & 1
                Sc, Sn = S[cur], S[nxt]
                A('s_waitcnt lgkmcnt(2)')
                A(f'v_mfma_f32_32x32x16_bf16 {v(Sn, 16)}, {v(KF + nxt * 4, 4)}, {v(Q, 4)}, {v(CN, 16)}')
                rdK(cur, t + 2)
                for r in range(6):
                    A(f'v_exp_f32 {v(Sc + r)}, {v(Sc + r)}')
                A(f'v_mfma_f32_32x32x16_bf16 {v(O, 16)}, {v(VF + nxt * 8 + 4, 4)}, {v(P + 4, 4)}, {v(O, 16)}')
                for r in range(6, 8):
                    A(f'v_exp_f32 {v(Sc + r)}, {v(Sc + r)}')
                for m in range(4):
                    A(f'v_cvt_pk_bf16_f32 {v(P + m)}, {v(Sc + 2 * m)}, {v(Sc + 2 * m + 1)}')
                A(f'v_exp_f32 {v(Sc + 8)}, {v(Sc + 8)}')
                A(f'v_exp_f32 {v(Sc + 9)}, {v(Sc + 9)}')
                A('s_waitcnt lgkmcnt(1)')
                A(f'v_mfma_f32_32x32x16_bf16 {v(O, 16)}, {v(VF + cur * 8, 4)}, {v(P, 4)}, {v(O, 16)}')
                rdV(nxt, t + 1)
                for r in range(10, 16):
                    A(f'v_exp_f32 {v(Sc + r)}, {v(Sc + r)}')
                for m in range(4, 8):
                    A(f'v_cvt_pk_bf16_f32 {v(P + m)}, {v(Sc + 2 * m)}, {v(Sc + 2 * m + 1)}')
            if EXPT:
                n0 = max(i for i, l in enumerate(A.lines) if l.startswith('att_body'))
                body = A.lines[n0:]
                if EXPT == 1:
                    body = [l for l in body if not ('mfma' in l and v(P + 4, 4) in l)]
                if EXPT == 2:
                    body = [l if not ('mfma' in l and v(P + 4, 4) in l) else f'    v_mfma_f32_16x16x32_bf16 v[120:123], {v(VF + 4, 4)}, {v(P + 4, 4)}, v[120:123]' for l in body]
                if EXPT == 3:
                    body = [l.replace('lgkmcnt(2)', 'lgkmcnt(1)') for l in body if not ('ds_read' in l and v(VV1) in l)]
                if EXPT == 4:
                    body = [l if not ('mfma' in l and v(P + 4, 4) in l) else f'    v_mfma_f32_16x16x32_bf16 v[120:123], {v(VF + 4, 4)}, {v(P + 4, 4)}, v[120:123]' for l in body]
                    body = [l.replace('lgkmcnt(2)', 'lgkmcnt(1)') for l in body if not ('ds_read' in l and v(VV1) in l)]
                if EXPT == 5:
                    body = ['att_body:']
                    def E(x): body.append('    ' + x)
                    for t in range(UN):
                        cur, nxt = t & 1, (t + 1) & 1
                        Sc, Sn = S[cur], S[nxt]
                        def cv(m): E(f'v_cvt_pkrtz_f16_f32 {v(Sc + 2 * m)}, {v(Sc + 2 * m)}, {v(Sc + 2 * m + 1)}')
                        def ex(m, h): E(f'v_exp_f16_sdwa {v(P + m)}, {v(Sc + 2 * m)} dst_sel:WORD_{h} dst_unused:UNUSED_PRESERVE src0_sel:WORD_{h}')
                        E('s_waitcnt lgkmcnt(2)')
                        E(f'v_mfma_f32_32x32x16_bf16 {v(Sn, 16)}, {v(KF + nxt * 4, 4)}, {v(Q, 4)}, {v(CN, 16)}')
                        E(f'ds_read_b128 {v(KF + cur * 4, 4)}, {v(VK)} offset:{(t + 2) * KVT}')
                        for m in range(4): cv(m)
                        for m in range(4): ex(m, 0)
                        E(f'v_mfma_f32_32x32x16_f16 {v(O, 16)}, {v(VF + nxt * 8 + 4, 4)}, {v(P + 4, 4)}, {v(O, 16)}')
                        for m in range(4): ex(m, 1)
                        for m in range(4, 8): cv(m)
                        E('s_waitcnt lgkmcnt(1)')
                        E(f'v_mfma_f32_32x32x16_f16 {v(O, 16)}, {v(VF + cur * 8, 4)}, {v(P, 4)}, {v(O, 16)}')
                        E(f'ds_read_b128 {v(VF + nxt * 8, 4)}, {v(VV)} offset:{(t + 1) * KVT}')
                        E(f'ds_read_b128 {v(VF + nxt * 8 + 4, 4)}, {v(VV1)} offset:{(t + 1) * KVT}')
                        for m in range(4, 8): ex(m, 0)
                        for m in range(4, 8): ex(m, 1)
                A.lines[n0:] = body
            A(f'v_add_u32 {v(VK)}, {UN * KVT}, {v(VK)}')
            A(f'v_add_u32 {v(VV)}, {UN * KVT}, {v(VV)}')
            A(f'v_add_u32 {v(VV1)}, {UN * KVT}, {v(VV1)}')
            A('s_setpc_b64 s[34:35]')
        A.label(f'{tg}_slow')
        A(f'v_subrev_u32 {v(VK)}, {64 * KVT}, {v(VK)}')
        A(f'v_subrev_u32 {v(VV)}, {64 * KVT}, {v(VV)}')
        A(f'v_subrev_u32 {v(VV1)}, {64 * KVT}, {v(VV1)}')
        for r in range(16):
            A(f'v_mov_b32 {v(O + r)}, 0')
        M = T + 4
        A(f'v_sub_f32 {v(M)}, 0, {v(CN)}')
        A.label(f'{tg}_sloop')
        rdK(0, 0)
        rdV(0, 0)
        A('s_waitcnt lgkmcnt(0)')
        A(f'v_mfma_f32_32x32x16_bf16 {v(S0, 16)}, {v(KF, 4)}, {v(Q, 4)}, 0')
        A('s_nop 11')
        A(f'v_max3_f32 {v(T)}, {v(S0)}, {v(S0 + 1)}, {v(S0 + 2)}')
        for r in range(3, 15, 2):
            A(f'v_max3_f32 {v(T)}, {v(T)}, {v(S0 + r)}, {v(S0 + r + 1)}')
        A(f'v_max3_f32 {v(T)}, {v(T)}, {v(S0 + 15)}, {v(M)}')
        A(f'v_mov_b32 {v(T + 1)}, {v(T)}')
        A('s_nop 1')
        A(f'v_permlane32_swap_b32 {v(T)}, {v(T + 1)}')
        A(f'v_max_f32 {v(T)}, {v(T)}, {v(T + 1)}')
        A(f'v_sub_f32 {v(T + 1)}, {v(M)}, {v(T)}')
        A(f'v_exp_f32 {v(T + 1)}, {v(T + 1)}')
        A(f'v_mov_b32 {v(M)}, {v(T)}')
        for r in range(16):
            A(f'v_sub_f32 {v(S0 + r)}, {v(S0 + r)}, {v(T)}')
        for r in range(16):
            A(f'v_exp_f32 {v(S0 + r)}, {v(S0 + r)}')
        for r in range(16):
            A(f'v_mul_f32 {v(O + r)}, {v(T + 1)}, {v(O + r)}')
        for m in range(8):
            A(f'v_cvt_pk_bf16_f32 {v(P + m)}, {v(S0 + 2 * m)}, {v(S0 + 2 * m + 1)}')
        A('s_nop 1')
        A(f'v_mfma_f32_32x32x16_bf16 {v(O, 16)}, {v(VF, 4)}, {v(P, 4)}, {v(O, 16)}')
        A(f'v_mfma_f32_32x32x16_bf16 {v(O, 16)}, {v(VF + 4, 4)}, {v(P + 4, 4)}, {v(O, 16)}')
        A(f'v_add_u32 {v(VK)}, {KVT}, {v(VK)}')
        A(f'v_add_u32 {v(VV)}, {KVT}, {v(VV)}')
        A(f'v_add_u32 {v(VV1)}, {KVT}, {v(VV1)}')
        A('s_nop 11')
        A('s_add_u32 s39, s39, 1')
        A('s_cmp_lt_u32 s39, 64')
        A(f's_cbranch_scc1 {tg}_sloop')
        A('s_mov_b32 s39, 99')
        A(f's_branch {tg}_fin')
    return tail


V_WGU = 112


def gu_waddr(C):
    A = C.A
    A('s_mul_i32 s30, s22, 7')
    A('s_min_u32 s31, s20, 6')
    A('s_add_u32 s40, s30, s31')
    A('s_lshl_b32 s30, s40, 15')
    A(f's_add_u32 s30, s30, {WGUP}')
    A(f'v_add_u32 {v(V_WGU)}, s30, v3')


def gu_wload(C, ks):
    so, im = soff(ks)
    C.vmem(f'buffer_load_dwordx4 {v(128 + 4 * ks, 4)}, {v(V_WGU)}, s[8:11], {so} offen offset:{im}', 'wg')


def gu_pre(C):
    A = C.A
    CS = 112
    A('v_mov_b32 v15, v113')
    A('v_mov_b32 v9, v114')
    A(f'v_mov_b32 v14, {v(V_WGU)}')
    A('s_lshl_b32 s30, s21, 2')
    A('s_add_u32 s30, s30, s25')
    A('s_lshl_b32 s30, s30, 15')
    A('s_lshl_b32 s31, s26, 11')
    A('s_add_u32 s30, s30, s31')
    A(f's_add_u32 s30, s30, {C.B["XB"]}')
    A('v_add_u32 v13, s30, v3')
    A('s_lshl_b32 s48, s25, 15')
    A('s_add_u32 s48, s48, s31')
    A('v_add_u32 v7, 0x10000, v3')
    A('v_lshrrev_b32 v11, 5, v1')
    A('v_lshlrev_b32 v11, 4, v11')
    A('s_min_u32 s30, s20, 6')
    A('s_lshl_b32 s30, s30, 7')
    A(f's_add_u32 s30, s30, {132 * KB}')
    A('v_add_u32 v10, s30, v11')
    A('v_and_b32 v12, 31, v1')
    A('v_lshlrev_b32 v12, 3, v12')
    A('v_lshl_add_u32 v12, v11, 8, v12')
    A('s_lshl_b32 s30, s21, 15')
    A(f's_add_u32 s30, s30, {C.B["SXB"]}')
    A('v_add_u32 v12, s30, v12')
    A(f'v_add_u32 v8, {128 * KB}, v3')


def gu_main(C, after_store=None):
    A = C.A
    ACC, XF, CS = 16, 80, 112
    STR = [4, 10, 240, 244]

    def dma(c):
        A(f's_add_u32 m0, s48, {c * 4096}')
        so = '0' if c == 0 else s(40 + c)
        A('s_nop 0')
        for k in range(2):
            C.vmem(f'buffer_load_dwordx4 v13, s[8:11], {so} offen offset:{k * 1024} lds', f'x{c}')
    dma(0)
    dma(1)

    def rd(ks):
        buf = ks & 1
        for i in range(4):
            base = 'v3' if i < 2 else 'v7'
            A(f'ds_read_b128 {v(XF + buf * 16 + i * 4, 4)}, {base} offset:{(i & 1) * 32768 + ks * 1024}')

    def stats_load(i):
        for e in range(16):
            C.vmem(f'buffer_load_dwordx2 {v(ACC + (i & 1) * 32 + 2 * e, 2)}, v12, s[8:11], {"0" if i == 0 else s(40 + 2 * i)} offen offset:{e * 256}', f's{i}')

    def stats_sum(i):
        b = ACC + (i & 1) * 32
        C.wait(f's{i}')
        for stp in (16, 8, 4, 2):
            for e in range(stp):
                A(f'v_add_f32 {v(b + e)}, {v(b + e)}, {v(b + e + stp)}')
        A(f'v_mov_b32 {v(b + 2)}, {v(b)}')
        A(f'v_mov_b32 {v(b + 3)}, {v(b + 1)}')
        A('s_nop 1')
        A(f'v_permlane32_swap_b32 {v(b)}, {v(b + 2)}')
        A(f'v_permlane32_swap_b32 {v(b + 1)}, {v(b + 3)}')
        A(f'v_add_f32 {v(b)}, {v(b)}, {v(b + 2)}')
        A(f'v_add_f32 {v(b + 1)}, {v(b + 1)}, {v(b + 3)}')
        A(f'v_mul_f32 {v(b)}, {f32(-1.0 / 512)}, {v(b)}')
        A(f'v_mul_f32 {v(b + 1)}, {f32(1.0 / 512)}, {v(b + 1)}')
        A(f'v_fma_f32 {v(b + 1)}, -{v(b)}, {v(b)}, {v(b + 1)}')
        A(f'v_max_f32 {v(b + 1)}, 0, {v(b + 1)}')
        A(f'v_add_f32 {v(b + 1)}, {f32(1e-5)}, {v(b + 1)}')
        A(f'v_rcp_f32 {v(b + 2)}, {v(b + 1)}')
        A(f'v_mov_b32 {v(b + 1)}, {v(b)}')
        A(f'v_mov_b32 {v(b + 3)}, {v(b + 2)}')
        A(f'ds_write_b128 v8, {v(b, 4)} offset:{i * 1024}')
        A('s_waitcnt lgkmcnt(0)')

    def loop(idle):
        C.wait('x0')
        A('s_barrier')
        C.stamp()
        if not idle:
            rd(0)
        for ks in range(32):
            if ks + 1 < 32:
                if (ks + 1) in GU_BARS:
                    C.wait(f'x{GU_BARS[ks + 1]}')
                    A('s_barrier')
                if not idle:
                    rd(ks + 1)
                    if ks == 28:
                        for g in range(4):
                            A(f'ds_read_b128 {v(CS + g * 4, 4)}, v10 offset:{g * 32}')
                        A('s_waitcnt lgkmcnt(8)')
                    elif ks == 30:
                        for i in range(4):
                            A(f'ds_read_b128 {v(STR[i], 4)}, v8 offset:{i * 1024}')
                        A('s_waitcnt lgkmcnt(8)')
                    else:
                        A('s_waitcnt lgkmcnt(4)')
            elif not idle:
                A('s_waitcnt lgkmcnt(0)')
            buf = ks & 1
            todo = []
            if ks == 10:
                C.flagb = True
                flag_b(C)
            if ks < 6:
                todo.append(lambda: dma(ks + 2))
            if ks == 16 + WO_TAIL and not idle:
                C.wait('wg')
            if 6 <= ks < 6 + 16 - WO_TAIL and not idle:
                k2 = 16 + WO_TAIL + ks - 6
                so, im = soff(k2)
                todo.append(lambda k2=k2, so=so, im=im: C.vmem(f'buffer_load_dwordx4 {v(128 + 4 * k2, 4)}, v14, s[8:11], {so} offen offset:{im}', 'wg'))
            if ks >= GU_WD0:
                nleft = 28 - len(wdone)
                for st in [st for st in range(28) if st < ks and st not in wdone][:(2 if nleft > 31 - ks else 1)]:
                    todo.append(lambda st=st: g3_wload(C, (15, 9), st, 128))
                    wdone.add(st)
            for i in range(4):
                if not idle and not (GU_TAIL and (ks == 31 or (ks == 30 and i >= 2))):
                    c = '0' if ks == 0 else v(ACC + i * 16, 16)
                    if GU16:
                        for t2 in range(2):
                            aa = ACC + i * 16 + ((ks & 1) * 2 + t2) * 4
                            A(f'v_mfma_f32_16x16x32_bf16 {v(aa, 4)}, {v(128 + 4 * (ks ^ t2 if ks > 1 else ks), 4)}, {v(XF + buf * 16 + i * 4, 4)}, {"0" if ks < 2 else v(aa, 4)}')
                    else:
                        A(f'v_mfma_f32_32x32x16_bf16 {v(ACC + i * 16, 16)}, {v(128 + 4 * ks, 4)}, {v(XF + buf * 16 + i * 4, 4)}, {c}')
                if i < 3 and todo:
                    f_ = todo.pop(0)
                    if not (GU_NOW and ks >= 6):
                        f_()
            if idle:
                if ks == 6:
                    stats_load(0)
                    stats_load(1)
                if ks == 8:
                    stats_sum(0)
                    stats_load(2)
                    stats_sum(1)
                    stats_load(3)
                if ks == 12:
                    stats_sum(2)
                    stats_sum(3)
                    A(f's_mul_i32 s30, s22, {7 * 128}')
                    A(f's_add_u32 s30, s30, {CSP}')
                    for kp in range(8):
                        C.vmem(f'buffer_load_dwordx4 {v(ACC + 4 * kp, 4)}, v3, s[8:11], s30 offen', 'cp')
                        if kp < 7:
                            A(f's_add_u32 s30, s30, {3584 * 4}')
                if ks == 16:
                    C.wait('cp')
                    for stp in (16, 8, 4):
                        for e in range(stp):
                            A(f'v_add_f32 {v(ACC + e)}, {v(ACC + e)}, {v(ACC + e + stp)}')
                    A(f'v_add_u32 v10, {132 * KB}, v3')
                    A(f'ds_write_b128 v10, {v(ACC, 4)}')
                    A('s_waitcnt lgkmcnt(0)')
        assert len(wdone) == 28
        C.stamp()
        if idle:
            if after_store:
                after_store()
            return
        P = XF

        def epi(i):
            acc = ACC + i * 16
            for r in range(0, 16, 2):
                A(f'v_pk_fma_f32 {v(acc + r, 2)}, {v(STR[i], 2)}, {v(CS + r, 2)}, {v(acc + r, 2)}')
            for r in range(0, 8, 2):
                A(f'v_pk_mul_f32 {v(acc + r, 2)}, {v(acc + r, 2)}, {v(acc + 8 + r, 2)}')
            for r in range(0, 8, 2):
                A(f'v_pk_mul_f32 {v(acc + r, 2)}, {v(acc + r, 2)}, {v(STR[i] + 2, 2)}')
            pp = acc + 8
            for m in range(4):
                A(f'v_cvt_pk_bf16_f32 {v(pp + m)}, {v(acc + 2 * m)}, {v(acc + 2 * m + 1)}')
            C.vmem(f'buffer_store_dwordx4 {v(pp, 4)}, v3, s[8:11], s30 offen{WT}', 'st')
            if i < 3:
                A(f's_add_u32 s30, s30, {112 * KB}')

        def mm(i, ks):
            A(f'v_mfma_f32_32x32x16_bf16 {v(ACC + i * 16, 16)}, {v(128 + 4 * ks, 4)}, {v(XF + (ks & 1) * 16 + i * 4, 4)}, {v(ACC + i * 16, 16)}')
        A(f's_mul_i32 s30, s21, {4 * 112}')
        A('s_add_u32 s30, s30, s40')
        A('s_lshl_b32 s30, s30, 10')
        A(f's_add_u32 s30, s30, {C.B["HF"]}')
        if GU_TAIL:
            A('s_waitcnt lgkmcnt(0)')
            mm(0, 31)
            mm(2, 30)
            mm(1, 31)
            mm(3, 30)
            A('s_nop 8')
            epi(0)
            mm(2, 31)
            mm(3, 31)
            epi(1)
            epi(2)
            epi(3)
        else:
            A('s_nop 4')
            for i in range(4):
                epi(i)
        if after_store:
            after_store()

    ls, le = C.lab('gs'), C.lab('ge')
    A('s_cmp_eq_u32 s20, 7')
    A(f's_cbranch_scc1 {ls}')
    save, ns = list(C.vm), C.nstamp
    wdone = set()
    loop(False)
    A(f's_branch {le}')
    A.label(ls)
    C.vm, C.nstamp = list(save), ns
    wdone = set()
    loop(True)
    A.label(le)
    C.vm = ['st']


def swap_add(A, ra, rb):
    A(f'v_permlane32_swap_b32 {v(ra)}, {v(rb)}')
    A(f'v_add_f32 {v(ra)}, {v(ra)}, {v(rb)}')


def pre_part(C, end):
    A = C.A
    A('s_cmp_ge_u32 s2, 256')
    A(f's_cbranch_scc1 {end}')
    A('s_load_dwordx2 s[12:13], s[0:1], 0')
    A('s_load_dwordx2 s[16:17], s[0:1], 8')
    A('s_load_dwordx2 s[52:53], s[0:1], 16')
    A('s_load_dwordx2 s[56:57], s[0:1], 24')
    A('s_load_dwordx2 s[4:5], s[0:1], 80')
    for d, sz in ((12, 2048 * 1024), (16, 512 * 1024), (52, 512 * 32), (56, 512 * 32), (4, 256)):
        A(f's_mov_b32 {s(d + 2)}, {sz}')
        A(f's_mov_b32 {s(d + 3)}, 0x20000')
    setup(C, False, end)
    C.stamp()
    if TLBW:
        A('s_lshl_b32 s30, s20, 3')
        A(f's_add_u32 s30, s30, 32')
        A('s_cmp_eq_u32 s20, 1')
        A('s_cselect_b32 s30, 8, s30')
        A('s_load_dwordx2 s[32:33], s[0:1], s30')
        A('s_mov_b32 s31, 8192')
        A('s_cmp_ge_u32 s20, 2')
        A('s_cselect_b32 s31, 28672, s31')
        A('s_cmp_eq_u32 s20, 6')
        A('s_cselect_b32 s31, 4, s31')
        A('s_cmp_eq_u32 s20, 7')
        A(f's_cselect_b32 s31, {TLBW}, s31')
        A('v_mul_lo_u32 v4, v1, s31')
        A('s_waitcnt lgkmcnt(0)')
        A('global_load_dword v127, v4, s[32:33]')
    A('s_add_u32 s30, s21, 1')
    A('s_and_b32 s30, s30, 3')
    A('s_lshl_b32 s30, s30, 2')
    A('s_xor_b32 s30, s30, s22')
    A('s_add_u32 s30, s30, s20')
    A('s_cmp_lg_u32 s30, 0')
    A('s_cbranch_scc1 pr_z0')
    for r in range(4):
        A(f'v_mov_b32 {v(8 + r)}, 0')
    A('v_lshrrev_b32 v4, 4, v1')
    A('v_and_b32 v5, 15, v1')
    A('v_lshlrev_b32 v5, 4, v5')
    A('v_lshl_add_u32 v4, v4, 12, v5')
    A('s_lshl_b32 s30, s21, 8')
    A(f's_add_u32 s30, s30, {FLG}')
    for k in range(3):
        A('buffer_store_dwordx4 v[8:11], v4, s[8:11], s30 offen sc0 sc1')
        A('s_add_u32 s30, s30, 16384')
    A('v_lshlrev_b32 v4, 7, v1')
    A(f's_mul_i32 s30, s21, {64 * 128}')
    A(f's_add_u32 s30, s30, {PFL}')
    A('buffer_store_dwordx4 v[8:11], v4, s[8:11], s30 offen sc0 sc1')
    A('v_mov_b32 v5, 1')
    A('s_mov_b64 exec, 1')
    A('s_waitcnt vmcnt(0)')
    A('buffer_atomic_add v5, v8, s[4:7], 0 offen sc1')
    A('s_mov_b64 exec, -1')
    A('s_nop 1')
    A.label('pr_z0')
    KST, KW, KR, T, EX, XR = 240, 192, 224, 108, 96, 32
    WST, CSQ, CSKV = 96 * KB, ST4 + 9 * KB, ST4 + 10 * KB
    A('s_mov_b64 s[36:37], s[16:17]')
    A(f's_mov_b32 s38, {512 * 1024}')
    A('s_mov_b32 s39, 0x20000')
    g4_ids(C)
    A('s_lshl_b32 s30, s20, 11')
    A('s_cmp_lg_u32 s3, 0')
    A('s_cbranch_scc1 pr_k0')
    for k in range(4):
        A(f'buffer_load_dwordx4 {v(KST + 4 * k, 4)}, v3, {"s[52:55]" if k < 2 else "s[56:59]"}, s30 offen offset:{(k & 1) * 1024}')
    A.label('pr_k0')
    A('v_lshrrev_b32 v4, 3, v1')
    A('v_and_b32 v5, 7, v1')
    A('v_lshrrev_b32 v6, 4, v1')
    A('v_xor_b32 v6, v6, v5')
    A('v_lshlrev_b32 v7, 10, v4')
    A('v_lshl_add_u32 v8, v6, 4, v7')
    A('v_xor_b32 v9, 64, v8')
    A('s_lshl_b32 s30, s18, 15')
    A('s_lshl_b32 s31, s20, 7')
    A('s_add_u32 s30, s30, s31')
    A('s_lshl_b32 s32, s20, 12')
    for i in range(4):
        A(f's_add_u32 m0, s32, {KVR4 + i * 1024}')
        A('s_nop 0')
        C.vmem(f'buffer_load_dwordx4 {v(8 + (i & 1))}, s[12:15], s30 offen lds', 'x')
        A('s_add_u32 s30, s30, 8192')
    A('v_lshrrev_b32 v4, 2, v1')
    A('v_and_b32 v5, 3, v1')
    A('v_lshlrev_b32 v10, 10, v4')
    A('v_lshl_add_u32 v10, v5, 4, v10')
    A('s_lshl_b32 s31, s26, 18')
    A('s_bfe_u32 s30, s19, 0x4000b')
    A('s_lshl_b32 s30, s30, 6')
    A('s_add_u32 s31, s31, s30')
    A('s_lshl_b32 s51, s20, 13')
    A(f's_add_u32 s51, s51, {WST}')
    A('s_mov_b32 s50, s31')
    A('v_mov_b32 v88, v10')
    A('s_and_b32 s33, s22, 3')
    A(f's_lshl_b32 s33, s33, 16' if WROT else 's_mov_b32 s33, 0')

    def wloads():
        for i in range(16):
            A(f's_xor_b32 s30, s33, {G4_ORD[i] * 16384}')
            A('s_add_u32 s30, s30, s50')
            if i < 8:
                A(f's_add_u32 m0, s51, {i * 1024}')
                A('s_nop 0')
                A('buffer_load_dwordx4 v88, s[36:39], s30 offen lds')
            else:
                A(f'buffer_load_dwordx4 {v(128 + 4 * i, 4)}, v88, s[36:39], s30 offen')
    A('s_cmp_eq_u32 s3, 0')
    A('s_cbranch_scc1 pr_w1')
    A('s_barrier')
    wloads()
    A('s_waitcnt vmcnt(16)')
    A.label('pr_w1')
    C.stamp()
    A('v_and_b32 v64, 31, v1')
    A('v_lshrrev_b32 v65, 5, v1')
    A('v_lshlrev_b32 v66, 7, v64')
    A('v_lshl_add_u32 v66, v65, 3, v66')
    A('v_bfe_u32 v67, v1, 1, 3')
    A('v_lshl_add_u32 v66, v67, 4, v66')
    A(f's_add_u32 s30, s32, {KVR4}')
    A('v_add_u32 v66, s30, v66')
    A('v_bfe_u32 v67, v1, 2, 2')
    A('v_lshl_add_u32 v67, v65, 2, v67')
    A('v_lshlrev_b32 v68, 3, v5')
    A('v_bfe_u32 v69, v1, 4, 1')
    A('v_lshl_add_u32 v70, v67, 5, v68')
    A('v_lshl_add_u32 v70, v69, 11, v70')
    A('v_add_u32 v70, s30, v70')
    A('v_lshl_add_u32 v71, v67, 6, v68')
    A('v_lshl_add_u32 v71, v69, 5, v71')
    A('s_lshl_b32 s30, s26, 5')
    A('v_xor_b32 v71, s30, v71')
    A('v_add_u32 v71, s51, v71')
    A('v_add_u32 v72, s51, v3')
    A('v_mov_b32 v73, 0x3f803f80')
    A('v_lshlrev_b32 v74, 2, v64')
    A('s_lshl_b32 s30, s20, 7')
    A(f's_add_u32 s31, s30, {CSKV}')
    A('v_add_u32 v75, s31, v74')
    A('s_lshl_b32 s31, s26, 6')
    A('v_xor_b32 v74, s31, v74')
    A(f's_add_u32 s30, s30, {CSQ}')
    A('v_add_u32 v74, s30, v74')
    A('v_lshlrev_b32 v76, 4, v65')
    A('s_add_u32 s30, s30, s31')
    A('v_add_u32 v77, s30, v76')
    A('v_xor_b32 v78, 512, v77')
    A('s_lshl_b32 s30, s25, 5')
    A(f's_add_u32 s30, s30, {CSKV}')
    A('v_add_u32 v79, s30, v76')
    g4_pre(C, 'qkv', XA, resbase=0, raw=True)
    A('s_lshr_b32 s30, s33, 4')
    A('s_lshl_b32 s31, s20, 12')
    A('s_xor_b32 s30, s30, s31')
    A(f's_add_u32 s30, s30, {XF0}')
    A('v_add_u32 v12, s30, v3')
    A('v_mov_b32 v0, 0')
    A('v_mov_b32 v4, 1')
    for ch in range(8):
        A(f'v_xor_b32 {v(80 + ch)}, {ch << 4}, v66')

    def front():
        A('s_cmp_lg_u32 s3, 0')
        A('s_cbranch_scc1 pr_w2')
        A('s_waitcnt vmcnt(0)')
        A.label('pr_w2')
        C.vm = []
        C.stamp()
        for ch in range(8):
            A(f'ds_read_b64 {v(KR + 2 * ch, 2)}, {v(80 + ch)}')
        A('s_waitcnt lgkmcnt(0)')
        for k in range(4):
            A(f'ds_write_b128 v12, {v(KR + 4 * k, 4)} offset:{k * 1024}')
        for r in range(8):
            for e in range(2):
                x = v(KR + 2 * r + e)
                A(f'v_dot2_f32_bf16 {v(T + 2 * e)}, {x}, v73, {"0" if r == 0 else v(T + 2 * e)}')
                A(f'v_dot2_f32_bf16 {v(T + 2 * e + 1)}, {x}, {x}, {"0" if r == 0 else v(T + 2 * e + 1)}')
        A('s_nop 0')

    def kvw():
        for k in range(4):
            A(f'ds_write_b128 v14, {v(KST + 4 * k, 4)} offset:{k * 1024}')
        A('s_waitcnt lgkmcnt(4)')
        for st in range(4):
            for h2 in range(2):
                A(f'ds_read_b64_tr_b16 {v(KW + 4 * st + 2 * h2, 2)}, v70 offset:{st * 512 + h2 * 256}')
        A('s_waitcnt lgkmcnt(0)')
        for r in range(8):
            for e in range(2):
                A(f'v_dot2_f32_bf16 {v(80 + e)}, {v(KW + 2 * r + e)}, v73, {"0" if r == 0 else v(80 + e)}')
        A('s_nop 2')
        A('v_add_f32 v80, v80, v81')
        A('v_mov_b32 v81, v80')
        A('s_nop 1')
        swap_add(A, 80, 81)
        A('ds_write_b32 v75, v80')

    def kvcs0():
        for ww in range(8):
            A(f'ds_read_b128 {v(XR + 4 * ww, 4)}, v79 offset:{ww * 128}')

    def kvcs1():
        A('s_waitcnt lgkmcnt(0)')
        for stp in (16, 8):
            for r in range(stp):
                A(f'v_add_f32 {v(XR + r)}, {v(XR + r)}, {v(XR + stp + r)}')
        for r in range(4):
            A(f'v_add_f32 {v(EX + 8 + r)}, {v(XR + r)}, {v(XR + 4 + r)}')

    def zchk():
        lz, lzd = C.lab('z'), C.lab('zd')
        A('s_mov_b32 s31, 0')
        A('s_mov_b64 exec, 1')
        A.label(lz)
        A('buffer_load_dword v2, v0, s[4:7], 0 offen sc1')
        A('s_waitcnt vmcnt(0)')
        A('v_cmp_le_u32 vcc, 16, v2')
        A('s_add_u32 s31, s31, 1')
        A('s_cmp_eq_u64 vcc, 1')
        A(f's_cbranch_scc1 {lzd}')
        A('s_sleep 8')
        A(f's_cmp_lt_u32 s31, {1 << 20}')
        A(f's_cbranch_scc1 {lz}')
        A(f's_branch {end}')
        A.label(lzd)
        A('s_mov_b64 exec, -1')

    def wprep():
        A('s_cmp_lg_u32 s3, 0')
        A('s_cbranch_scc1 pr_w3')
        wloads()
        A.label('pr_w3')
        zchk()
        C.vm = []
        C.stamp()


    def tr(i):
        for h2 in range(2):
            A(f'ds_read_b64_tr_b16 {v(128 + 4 * i + 2 * h2, 2)}, v71 offset:{(i % 8) * 1024 + h2 * 512}')

    def csdot(r0, r1):
        for r in range(r0, r1):
            for e in range(4):
                A(f'v_dot2_f32_bf16 {v(80 + e)}, {v(128 + 4 * r + e)}, v73, {"0" if r == 0 else v(80 + e)}')

    def loop(rd, mf):
        for i in range(8):
            tr(i)
            if i == 5:
                A('s_waitcnt lgkmcnt(6)')
        ln_stats(A, T)
        A('s_waitcnt lgkmcnt(0)')
        for i in range(4):
            rd(i)
        for i in range(8):
            A(f'ds_write_b128 v72, {v(160 + 4 * i, 4)} offset:{i * 1024}')
        csdot(0, 8)
        A('s_waitcnt lgkmcnt(0)')
        for i in range(4, 8):
            rd(i)
        for i in range(8):
            if i == 4:
                A('s_waitcnt lgkmcnt(8)')
            mf(i)
            if i < 4:
                tr(8 + i)
            else:
                A('s_waitcnt lgkmcnt(9)')
                tr(8 + i)
                rd(4 + i)
        for i in range(8, 16):
            if i == 8:
                A('s_waitcnt lgkmcnt(9)')
            elif i < 12:
                A(f's_waitcnt lgkmcnt({9 - 2 * (i - 8)})')
            else:
                A(f's_waitcnt lgkmcnt({15 - i})')
            mf(i)
            if i < 12:
                rd(4 + i)

    def cs0():
        csdot(8, 16)
        A('s_nop 2')
        A('v_add_f32 v80, v80, v81')
        A('v_add_f32 v82, v82, v83')
        A('v_add_f32 v80, v80, v82')
        A('v_mov_b32 v81, v80')
        A('s_nop 1')
        swap_add(A, 80, 81)
        A('ds_write_b32 v74, v80')

    def cs():
        for h2 in range(2):
            A(f'ds_read_b128 {v(EX + 4 * h2, 4)}, v77 offset:{h2 * 32}')
            A(f'ds_read_b128 {v(XR + 4 * h2, 4)}, v78 offset:{h2 * 32}')
        A('s_waitcnt lgkmcnt(0)')
        for r in range(8):
            A(f'v_add_f32 {v(EX + r)}, {v(EX + r)}, {v(XR + r)}')
        for r in range(12):
            A(f'v_mov_b32 {v(208 + r)}, {v(EX + r)}')

    g4_main(C, 'qkv', kvf=KVF, kfl=KFL, raw=dict(front=front, kvw=kvw, kvcs0=kvcs0, kvcs1=kvcs1, zchk=zchk, wprep=wprep, cs=cs, cs0=cs0, loop=loop), endlab=end)
    C.stamp()


def wq_store(C):
    A = C.A
    A('s_and_b32 s30, s18, 0x33')
    A('s_cmp_lg_u32 s30, 0')
    A('s_cbranch_scc1 pr_w0')
    g4_waddr(C, 112, WQKVP)
    for q4 in (3, 2, 1, 0):
        if q4:
            A(f's_cmp_lg_u32 s21, {q4}')
            A(f's_cbranch_scc1 pr_ws{q4}')
        for i in range(4 * q4, 4 * q4 + 4):
            so, im = soff(G4_ORD[i])
            A(f'buffer_store_dwordx4 {v(128 + 4 * i, 4)}, v112, s[8:11], {so} offen offset:{im} sc0 sc1')
        if q4:
            A('s_branch pr_w0')
            A.label(f'pr_ws{q4}')
    A('v_lshrrev_b32 v113, 5, v1')
    A('v_lshlrev_b32 v113, 4, v113')
    A('s_lshr_b32 s31, s19, 4')
    A(f's_add_u32 s31, s31, {CSQKV}')
    A('s_mov_b32 exec_lo, 1')
    A('s_mov_b32 exec_hi, 1')
    A('buffer_store_dwordx4 v[208:211], v113, s[8:11], s31 offen sc0 sc1')
    A('buffer_store_dwordx4 v[212:215], v113, s[8:11], s31 offen offset:32 sc0 sc1')
    A('s_mov_b64 exec, -1')
    A('s_cmp_lg_u32 s22, 0')
    A('s_cbranch_scc1 pr_w0')
    A('s_lshl_b32 s30, s20, 12')
    A(f's_add_u32 s30, s30, {WQKVP + 16 * 32 * KB}')
    for k in range(4):
        A(f'buffer_store_dwordx4 {v(192 + 4 * k, 4)}, v3, s[8:11], s30 offen offset:{k * 1024} sc0 sc1')
    A('s_cmp_ge_u32 s20, 4')
    A('s_cbranch_scc1 pr_w0')
    A('s_lshl_b32 s31, s20, 5')
    A(f's_add_u32 s31, s31, {CSQKV + 2048}')
    A('s_mov_b32 exec_lo, 1')
    A('s_mov_b32 exec_hi, 1')
    A('buffer_store_dwordx4 v[216:219], v113, s[8:11], s31 offen sc0 sc1')
    A('s_mov_b64 exec, -1')
    A.label('pr_w0')


def pack_ptrs(A):
    A('s_load_dwordx2 s[4:5], s[0:1], 32')
    A('s_load_dwordx4 s[52:55], s[0:1], 48')
    A('s_load_dwordx2 s[16:17], s[0:1], 64')


def pack_issue(C):
    A = C.A
    A('s_mul_i32 s30, s2, 3')
    A('s_add_u32 s30, s30, s20')
    A('s_mov_b32 s58, s30')
    A('s_cmp_lt_u32 s20, 3')
    A('s_cselect_b32 s57, 1, 0')
    A('s_cmp_lt_u32 s30, 736')
    A('s_cselect_b32 s57, s57, 0')
    A('s_cmp_eq_u32 s57, 0')
    A('s_cselect_b32 s30, 0, s30')
    A('s_cmp_lt_u32 s30, 64')
    A('s_cbranch_scc1 pk_jwo')
    A('s_cmp_lt_u32 s30, 512')
    A('s_cbranch_scc1 pk_jgu')
    A('s_sub_u32 s30, s30, 512')
    A('s_mov_b64 s[4:5], s[16:17]')
    A(f's_mov_b32 s6, {1792 * 1024}')
    A('s_mov_b32 s50, 1024')
    A('s_and_b32 s31, s30, 7')
    A('s_lshr_b32 s30, s30, 3')
    A('s_lshl_b32 s51, s30, 16')
    A('s_lshl_b32 s56, s31, 7')
    A('s_add_u32 s51, s51, s56')
    A(f's_mul_i32 s56, s31, {2 * 112 * KB}')
    A('s_lshl_b32 s30, s30, 12')
    A('s_add_u32 s56, s56, s30')
    A(f's_add_u32 s56, s56, {WDP}')
    A(f's_mov_b32 s52, {112 * KB}')
    A('s_mov_b32 s53, 256')
    A(f's_mov_b32 s54, {G1.CSDUMMY}')
    A('s_branch pk_jgo')
    A.label('pk_jwo')
    A(f's_mov_b32 s6, {512 * 1024}')
    A('s_mov_b32 s50, 1024')
    A('s_lshr_b32 s31, s30, 3')
    A('s_and_b32 s30, s30, 7')
    A('s_lshl_b32 s51, s30, 16')
    A('s_lshl_b32 s56, s31, 7')
    A('s_add_u32 s51, s51, s56')
    A('s_lshl_b32 s56, s31, 16')
    A('s_lshl_b32 s30, s30, 12')
    A('s_add_u32 s56, s56, s30')
    A(f's_add_u32 s56, s56, {WOP}')
    A(f's_mov_b32 s52, {32 * KB}')
    A('s_mov_b32 s53, 256')
    A(f's_mov_b32 s54, {G1.CSDUMMY}')
    A('s_branch pk_jgo')
    A.label('pk_jgu')
    A('s_sub_u32 s30, s30, 64')
    A('s_cmp_ge_u32 s30, 224')
    A('s_cselect_b32 s4, s54, s52')
    A('s_cselect_b32 s5, s55, s53')
    A('s_cselect_b32 s16, 1, 0')
    A('s_cselect_b32 s31, 224, 0')
    A('s_sub_u32 s30, s30, s31')
    A(f's_mov_b32 s6, {512 * 3584}')
    A('s_mov_b32 s50, 3584')
    A('s_lshr_b32 s31, s30, 3')
    A('s_and_b32 s30, s30, 7')
    A(f's_mul_i32 s51, s30, {64 * 3584}')
    A('s_lshl_b32 s56, s31, 7')
    A('s_add_u32 s51, s51, s56')
    A('s_lshl_b32 s56, s31, 17')
    A('s_lshl_b32 s17, s30, 12')
    A('s_add_u32 s56, s56, s17')
    A('s_lshl_b32 s17, s16, 8')
    A('s_add_u32 s56, s56, s17')
    A(f's_add_u32 s56, s56, {WGUP}')
    A(f's_mov_b32 s52, {64 * KB}')
    A(f's_mov_b32 s53, {32 * KB}')
    A(f's_mul_i32 s54, s30, {3584 * 4}')
    A('s_lshl_b32 s17, s31, 9')
    A('s_add_u32 s54, s54, s17')
    A('s_lshl_b32 s17, s16, 6')
    A('s_add_u32 s54, s54, s17')
    A(f's_add_u32 s54, s54, {CSP}')
    A.label('pk_jgo')
    A('v_lshrrev_b32 v112, 3, v1')
    A('v_and_b32 v113, 7, v1')
    A('v_mul_lo_u32 v112, v112, s50')
    A('v_lshl_add_u32 v112, v113, 4, v112')
    A('s_lshl_b32 s50, s50, 3')
    A('s_min_u32 s59, s20, 2')
    A('s_lshl_b32 s59, s59, 13')
    A(f's_add_u32 s59, s59, {136 * KB}')
    A('s_cmp_eq_u32 s57, 0')
    A('s_cbranch_scc1 pk_i_end')
    for i in range(8):
        A(f's_add_u32 m0, s59, {i * 1024}')
        A('s_nop 0')
        A('buffer_load_dwordx4 v112, s[4:7], s51 offen lds')
        A('s_add_u32 s51, s51, s50')
    A.label('pk_i_end')


def pack_convert(C):
    A = C.A
    A('s_cmp_eq_u32 s57, 0')
    A('s_cbranch_scc1 pk_c_end')
    A('v_lshrrev_b32 v112, 5, v1')
    A('v_bfe_u32 v113, v1, 2, 2')
    A('v_lshl_add_u32 v113, v112, 2, v113')
    A('v_and_b32 v114, 3, v1')
    A('v_lshlrev_b32 v114, 3, v114')
    A('v_lshl_add_u32 v113, v113, 7, v114')
    A('v_bfe_u32 v114, v1, 4, 1')
    A('v_lshl_add_u32 v113, v114, 5, v113')
    A('v_add_u32 v113, s59, v113')
    A('v_mul_lo_u32 v114, v114, s53')
    A('v_and_b32 v115, 15, v1')
    A('v_lshl_add_u32 v114, v115, 4, v114')
    A('v_lshl_add_u32 v114, v112, 9, v114')
    A('v_lshrrev_b32 v112, 4, v1')
    A('v_lshlrev_b32 v112, 7, v112')
    A('v_lshl_add_u32 v112, v115, 2, v112')
    A('v_mov_b32 v115, 0x3f803f80')
    A('s_add_u32 s52, s52, s56')
    A('s_waitcnt vmcnt(0)')
    for jj in range(2):
        for st in range(4):
            for h2 in range(2):
                A(f'ds_read_b64_tr_b16 {v(128 + 4 * (4 * jj + st) + 2 * h2, 2)}, v113 offset:{st * 2048 + h2 * 1024 + jj * 64}')
        A('s_waitcnt lgkmcnt(0)')
        for st in range(4):
            A(f'buffer_store_dwordx4 {v(128 + 4 * (4 * jj + st), 4)}, v114, s[8:11], {"s56" if jj == 0 else "s52"} offen offset:{st * 1024} sc0 sc1')
    A('s_cmp_eq_u32 s53, 256')
    A('s_cbranch_scc1 pk_c_end')
    for r in range(16):
        for jj in range(2):
            A(f'v_dot2_f32_bf16 {v(116 + jj)}, {v(128 + 16 * jj + r)}, v115, {"0" if r == 0 else v(116 + jj)}')
    A('s_nop 2')
    swap_add(A, 116, 117)
    A('buffer_store_dword v116, v112, s[8:11], s54 offen sc0 sc1')
    A.label('pk_c_end')


def pack_flag(C):
    A = C.A
    A('v_mov_b32 v112, 0')
    A('v_mov_b32 v113, 1')
    A('s_cmp_eq_u32 s57, 0')
    A('s_cbranch_scc1 pk_f_1')
    A('s_lshl_b32 s30, s58, 7')
    A(f's_add_u32 s30, s30, {PFL}')
    A('s_waitcnt vmcnt(0)')
    A('s_mov_b64 exec, 1')
    A('buffer_store_dword v113, v112, s[8:11], s30 offen sc0 sc1')
    A('s_mov_b64 exec, -1')
    A.label('pk_f_1')
    A('s_and_b32 s30, s18, 0x33')
    A('s_cmp_lg_u32 s30, 0')
    A('s_cbranch_scc1 pk_f_end')
    A('s_lshl_b32 s30, s22, 1')
    A('s_add_u32 s30, s30, s20')
    A('s_lshl_b32 s31, s21, 5')
    A('s_add_u32 s30, s30, s31')
    A('s_lshl_b32 s30, s30, 7')
    A(f's_add_u32 s30, s30, {PFL + 768 * 128}')
    A('s_waitcnt vmcnt(0)')
    A('s_mov_b64 exec, 1')
    A('buffer_store_dword v113, v112, s[8:11], s30 offen sc0 sc1')
    A('s_mov_b64 exec, -1')
    A.label('pk_f_end')


def pack_poll(C, endlab):
    A = C.A
    A('s_mul_i32 s30, s22, 7')
    A('s_lshr_b32 s30, s30, 2')
    A('v_lshrrev_b32 v112, 4, v1')
    A('v_add_u32 v112, s30, v112')
    A('v_min_u32 v112, 27, v112')
    A('v_and_b32 v113, 7, v1')
    A('v_lshl_add_u32 v112, v112, 3, v113')
    A('v_bfe_u32 v114, v1, 3, 1')
    A('v_mul_u32_u24 v114, 224, v114')
    A('v_add3_u32 v112, v112, v114, 64')
    A('s_mul_i32 s30, s20, 7')
    A('s_lshr_b32 s30, s30, 1')
    A('v_min_u32 v114, 4, v113')
    A('v_add_u32 v114, s30, v114')
    A('v_min_u32 v114, 27, v114')
    A('s_add_u32 s30, s24, 512')
    A('v_lshl_add_u32 v114, v114, 3, s30')
    A('v_cmp_le_u32 vcc, 48, v1')
    A('s_lshl_b32 s30, s24, 3')
    A('s_add_u32 s30, s30, s20')
    A('v_cndmask_b32 v112, v112, v114, vcc')
    A('v_mov_b32 v114, s30')
    A('v_cmp_le_u32 vcc, 56, v1')
    A('s_add_u32 s31, s20, 768')
    A('s_and_b32 s30, s22, 12')
    A('s_lshl_b32 s30, s30, 1')
    A('s_add_u32 s30, s30, s31')
    A('v_cndmask_b32 v112, v112, v114, vcc')
    for q4 in range(4):
        A(f'v_writelane_b32 v112, s30, {59 + q4}')
        A('s_add_u32 s30, s30, 32')
    A('v_writelane_b32 v112, s31, 63')
    A(f's_mov_b32 s30, {PFL}')
    A('s_mov_b32 s31, 0')
    A('v_lshlrev_b32 v112, 7, v112')
    A('s_bfe_u32 s32, s19, 0x3000c')
    A('s_lshl_b32 s32, s32, 3')
    A('s_lshl_b32 s33, s26, 2')
    A('s_add_u32 s32, s32, s33')
    A('v_and_b32 v114, 3, v1')
    A('v_add_u32 v114, s32, v114')
    A('v_lshlrev_b32 v114, 7, v114')
    A('buffer_load_dword v113, v112, s[8:11], s30 offen sc1')
    A('buffer_load_dword v115, v114, s[8:11], s30 offen sc1')


def pack_poll2(C, endlab):
    A = C.A
    A(f's_mov_b32 s30, {PFL}')
    A('s_mov_b32 s31, 0')
    A.label('pk_p')
    A('s_waitcnt vmcnt(0)')
    A('v_and_b32 v113, v113, v115')
    A('v_cmp_eq_u32 vcc, 1, v113')
    A('s_add_u32 s31, s31, 1')
    A('s_cmp_eq_u64 vcc, -1')
    A('s_cbranch_scc1 pk_pd')
    A('s_sleep 16')
    A('buffer_load_dword v113, v112, s[8:11], s30 offen sc1')
    A('buffer_load_dword v115, v114, s[8:11], s30 offen sc1')
    A(f's_cmp_lt_u32 s31, {1 << 19}')
    A('s_cbranch_scc1 pk_p')
    A(f's_branch {endlab}')
    A.label('pk_pd')
    C.vm = []


def layer_part(C, layer, end):
    A = C.A
    C.tag = f'l{layer}'
    last = layer == 1
    xin = None if layer == 0 else XC
    kvf = KVF if layer == 0 else KVF2
    kfl = KFL + layer * 64 * 128
    sy = 5 * layer + 1
    C.B = dict(QF=QF, OF=OF, XB=XB, SXB=SXB, HF=HF) if layer == 0 else dict(QF=QF2, OF=OF2, XB=XB2, SXB=SXB2, HF=HF2)
    B = C.B

    def pre_addr():
        gu_waddr(C)
        g3_waddr(C, (113, 114), 112, WDP)
        g4_waddr(C, 116, WOP)

    stubs = [lambda: (pre_addr(), gu_wload(C, 0))]
    stubs += [lambda ks=ks: gu_wload(C, ks) for ks in range(1, 24)]
    stubs += [lambda i=i: g4_wload(C, 116, i, 'res') for i in range(8)]
    if TOUCH2:
        def touch2():
            A('s_and_b32 s30, s18, 7')
            A('s_lshr_b32 s31, s30, 1')
            A('s_lshl_b32 s31, s31, 2')
            A('s_and_b32 s30, s30, 1')
            A('s_add_u32 s30, s30, s31')
            A('s_lshl_b32 s30, s30, 10')
            C.vmem('buffer_load_dwordx4 v[120:123], v116, s[8:11], s30 offen offset:2048', 'tc')
            if layer == 0:
                A(f's_add_u32 s30, s30, {WQKVP - WOP + (1 << 32) if WQKVP < WOP else WQKVP - WOP}')
                A('v_add_u32 v117, s30, v116')
                C.vmem('buffer_load_dwordx4 v[120:123], v117, s[8:11], 0 offen', 'tc')
                C.vmem('buffer_load_dwordx4 v[120:123], v117, s[8:11], 0 offen offset:2048', 'tc')
        stubs += [touch2]
    if TOUCH3 & 1:
        def t3a(k):
            if k == 0:
                A('s_and_b32 s30, s21, 1')
                A('s_lshl_b32 s30, s30, 12')
                A(f's_add_u32 s30, s30, {24 * KB}')
                A(f'v_add_u32 v118, s30, {v(V_WGU)}')
            C.vmem(f'buffer_load_dwordx4 v[120:123], v118, s[8:11], 0 offen offset:{k * 1024}', 'tc')
        stubs += [lambda k=k: t3a(k) for k in range(4)]
    if TOUCH3 & 2:
        def t3b(k):
            if k == 0:
                A('s_and_b32 s30, s21, 1')
                A(f's_mul_i32 s30, s30, {7 * KB}')
                A('s_cmp_eq_u32 s23, 0')
                A('s_cselect_b64 vcc, -1, 0')
                A('v_cndmask_b32 v119, v114, v113, vcc')
                A('v_add_u32 v119, s30, v119')
            so, im = soff(k)
            C.vmem(f'buffer_load_dwordx4 v[120:123], v119, s[8:11], {so} offen offset:{im}', 'tc')
        stubs += [lambda k=k: t3b(k) for k in range(7)]
    if TOUCH and layer == 1:
        def t_addr():
            A('s_lshr_b32 s30, s2, 3')
            A('s_lshl_b32 s30, s30, 3')
            A('s_add_u32 s30, s30, s20')
            A(f's_mul_i32 s31, s30, {7 * KB}')
            A(f's_add_u32 s31, s31, {WDP}')
            A('v_add_u32 v118, s31, v3')
            A('s_lshl_b32 s31, s30, 11')
            A(f's_add_u32 s31, s31, {WQKVP}')
            A('v_add_u32 v119, s31, v3')

        def tch(vr, k):
            so, im = soff(k)
            C.vmem(f'buffer_load_dwordx4 v[120:123], {v(vr)}, s[8:11], {so} offen offset:{im}', 'tc')
        stubs += [lambda: (t_addr(), tch(V_WGU, 24))]
        stubs += [lambda ks=ks: tch(V_WGU, ks) for ks in range(25, 32)]
        stubs += [lambda k=k: tch(118, k) for k in range(7)]
        if not last:
            stubs += [lambda k=k: tch(119, k) for k in range(2)]

    def need_wo():
        A('s_lshr_b32 s30, s20, 1')
        A('s_lshl_b32 s30, s30, 2')
        A('s_and_b32 s31, s22, 3')
        A('s_add_u32 s30, s30, s31')
        A('s_lshl_b32 s32, 1, s30')

    def need_gu():
        A('s_lshl_b32 s32, 0x1111, s25')
        A('s_cmp_eq_u32 s20, 7')
        A('s_cselect_b32 s32, 0xffff, s32')

    def need_dn():
        A('s_lshl_b32 s30, s20, 1')
        A('s_lshl_b32 s32, 3, s30')

    def need_qkv():
        A('s_lshl_b32 s30, s20, 1')
        A('s_and_b32 s31, s24, 1')
        A('s_add_u32 s30, s30, s31')
        A('s_lshl_b32 s32, 1, s30')

    if layer == 0:
        fixed = {PK_I: lambda: (wq_store(C), pack_issue(C)), PK_C: lambda: pack_convert(C), PK_F: lambda: pack_flag(C), PK_P - 1: lambda: pack_poll(C, end), PK_P: lambda: pack_poll2(C, end)}
        tail = att_phase(C, kvf, kfl, end, stubs, fixed, PK_P, pre_hook=lambda: pack_ptrs(A), loadq=False, early=True)
    else:
        tail = att_phase(C, kvf, kfl, end, stubs, pre_hook=lambda: A('s_load_dwordx2 s[12:13], s[0:1], 72'), loadq=False)
    C.stamp()
    if not WO_LATE:
        A('s_nop 1')
        for i in range(8, 16):
            g4_wload(C, 116, i, 'res')
    g4_pre(C, 'res', B['OF'], resbase=xin)
    handoff(C, sy + 0, end, need_wo)
    C.stamp()
    g4_main(C, 'res', outbase=B['XB'], sxout=B['SXB'], hook_red=lambda k: gu_wload(C, 24 + k))
    C.stamp()
    gu_pre(C)
    handoff(C, sy + 1, end, need_gu)
    C.stamp()
    gu_main(C)
    C.stamp()
    g3_pre(C, 'res', 112, B['HF'], resbase=B['XB'])
    handoff(C, sy + 2, end, need_dn)
    C.stamp()
    if last:
        g3_main(C, 'out', 112, 128)
        C.stamp()
    else:
        g3_main(C, 'res', 112, 128, outbase=XC, sxout=SXC, hook_b=lambda st, n: qkv4_wstep(C, st, n), hook_red=lambda: qkv4_wrest(C))
        C.stamp()
        g4_pre(C, 'qkv', XC, resbase=SXC)
        g4_waddr(C, 64, WQKVP)
        handoff(C, sy + 3, end, need_qkv)
        C.stamp()
        g4_main(C, 'qkv', kvf=KVF2, kfl=KFL + 64 * 128, endlab=end)
        C.stamp()
    return tail


def build():
    A = Asm()
    name = NAME + '_kernel'
    C = Ctx(A, 'pr')
    C.qf = QF
    end = 'k_end'
    kernel_begin(A, name)
    pre_part(C, end)
    t0 = layer_part(C, 0, end)
    t1 = layer_part(C, 1, end)
    A('s_add_u32 s30, s2, s20')
    A('s_cmp_lg_u32 s30, 0')
    A('s_cbranch_scc1 k_fin')
    A('s_load_dwordx2 s[4:5], s[0:1], 80')
    A('s_mov_b32 s6, 256')
    A('v_mov_b32 v2, 0')
    A('s_mov_b64 exec, 1')
    A('s_waitcnt lgkmcnt(0)')
    A('buffer_store_dword v2, v2, s[4:7], 0 offen sc0 sc1')
    A('s_mov_b64 exec, -1')
    A.label('k_fin')
    if DBGD:
        A('s_cmp_lg_u32 s2, 77')
        A('s_cbranch_scc1 k_fin2')
        A('s_cmp_lg_u32 s20, 1')
        A('s_cbranch_scc1 k_fin2')
        A('s_load_dwordx2 s[4:5], s[0:1], 80')
        A('s_memrealtime s[60:61]')
        A('s_mov_b32 s6, 256')
        A('v_mov_b32 v2, 0')
        A('s_mov_b64 exec, 1')
        A('s_waitcnt lgkmcnt(0)')
        sel = [int(x) for x in DBGD.split()]
        for k, i in enumerate(sel + [-1]):
            A(f's_sub_u32 s30, {s(64 + i) if i >= 0 else "s60"}, s64')
            A('v_mov_b32 v4, s30')
            A(f'buffer_store_dword v4, v2, s[4:7], 0 offen offset:{4 + 4 * k}')
        A('s_mov_b64 exec, -1')
        A.label('k_fin2')
    stamp_end(C, 1)
    A.label(end)
    A('s_endpgm')
    t0(True)
    t1(False)
    body = A.text()
    probs = lint(body)
    for p in probs:
        print('LINT:', p, file=sys.stderr)
    head = '; generated by gen/gen3.py\n'
    head += f"; @launch grid=(256,1,1) block=(512,1,1) lds={LDS_BYTES}\n"
    head += '.amdgcn_target "amdgcn-amd-amdhsa--gfx950"\n.text\n'
    tail = '.section .rodata,"a"\n.p2align 6\n' + descriptor(name, 256, 0, nsgpr=100)
    print('stamps:', C.nstamp, file=sys.stderr)
    return head + body + tail


if __name__ == '__main__':
    if 'stamp' in sys.argv:
        STAMP = True
    for arg in sys.argv[2:]:
        if '=' in arg:
            k, val = arg.split('=')
            globals()[k] = int(val) if val.lstrip('-').isdigit() else val.replace('_', ' ')
    out = sys.argv[1] if len(sys.argv) > 1 else f'cdna_kernels/{NAME}.s'
    open(out, 'w').write(build())
    print('wrote', out)
```

```python
import sys
import math
import struct
from asmlib import Asm, v, a, s, lint
import gen as G1
from gen import f32, kernel_begin, descriptor, ws_srd, KB

NAME = G1.NAME
WQKVP, WOP, WGUP, WDP, CSQKV, CSGU = G1.WQKVP, G1.WOP, G1.WGUP, G1.WDP, G1.CSQKV, G1.CSGU
KVF, XA, XB, QF, OF, HF = G1.KVF, G1.XA, G1.XB, G1.QF, G1.OF, G1.HF
WS_SIZE, QSCALE = G1.WS_SIZE, G1.QSCALE
KVG = 2048
KVT = 2080
VBS = 512
XC = G1.WS_END
KVF2 = XC + 2048 * KB
FLG = KVF2 + 144 * KB
SXA = FLG + 64 * KB
SXB = SXA + 512 * KB
SXC = SXB + 512 * KB
CSP = SXC + 512 * KB
PFL = CSP + 128 * KB
KFL = PFL + 112 * KB
QF2 = KFL + 16 * KB
OF2 = QF2 + 2048 * KB
XB2 = OF2 + 2048 * KB
SXB2 = XB2 + 2048 * KB
HF2 = SXB2 + 512 * KB
WS_END = HF2 + 64 * 112 * KB
STAMPS = G1.STAMPS

STAMP = False
WT = ' sc0 sc1'
LDS_BYTES = 160 * KB
FINE = 0
ONEWAIT = 1
INLINE = 0
ATT_NB = 4
TOUCH3 = 0
PRIOV = 0
DBGD = ''
ATT_B2 = 2
WO_L0 = 3
WROT = 1
GU_TAIL = 1
ATT_R0 = 4
EXPT = 0
TLBW = 0
KV_SLEEP = 2
QKV_PER = 1
WO_TAIL = 16
SLO = 0
QWT = ' sc0 sc1'
GU16 = 0
GU_NOW = 0
GU_WD0 = 3
GU_BARS = {4: 1, 8: 2, 12: 7, 24: 7}
PK_I = 2
PK_C = 5
PK_F = 6
PK_P = 10
RT = 0
TOUCH = 0
TOUCH2 = 1
WO_LATE = 0
ATT_UN = 4
ATT_PFEND = 1
G3_PR4 = 7
G3_PR14 = 6
G2_ST8 = [2, 2, 2, 2]
G2_ST28 = [2, 2, 4, 4, 4, 4, 4, 4]
G2_PRE8 = 4
G2_PRE28 = 6


class Ctx:
    def __init__(self, A, tag):
        self.A = A
        self.tag = tag
        self.vm = []
        self.nlab = 0
        self.nstamp = 1

    def lab(self, base):
        self.nlab += 1
        return f'{self.tag}_{base}{self.nlab}'

    def vmem(self, text, tag):
        self.A(text)
        self.vm.append(tag)
        assert len(self.vm) <= 63, 'vmcnt overflow'

    def wait(self, tag, extra=''):
        idx = [i for i, t in enumerate(self.vm) if t == tag]
        if not idx:
            if extra:
                self.A(f's_waitcnt {extra}')
            return
        n = len(self.vm) - 1 - idx[-1]
        self.A(f's_waitcnt vmcnt({n}) {extra}'.strip())
        self.vm = self.vm[idx[-1] + 1:]

    def stamp(self):
        if STAMP:
            i = self.nstamp - SLO
            self.nstamp += 1
            if i < 1 or i >= 28:
                return
            A = self.A
            A('s_waitcnt lgkmcnt(0)')
            A('s_memrealtime s[60:61]' if RT else 's_memtime s[60:61]')
            A('s_waitcnt lgkmcnt(0)')
            A(f's_mov_b32 {s(64 + i)}, s60')


def stamp_begin(C):
    if STAMP:
        A = C.A
        A('s_memrealtime s[62:63]')
        A('s_memtime s[60:61]')
        for i in range(1, 30):
            A(f's_mov_b32 {s(64 + i)}, 0')
        A('s_waitcnt lgkmcnt(0)')
        A('s_mov_b32 s64, s62' if RT else 's_mov_b32 s64, s60')
        A('s_mov_b32 s95, s62')


def stamp_end(C, kidx):
    if STAMP:
        A = C.A
        A('s_waitcnt vmcnt(0) lgkmcnt(0)')
        A('s_memtime s[60:61]')
        A('s_memrealtime s[62:63]')
        A('s_waitcnt lgkmcnt(0)')
        A('s_mov_b32 s93, s62' if RT else 's_mov_b32 s93, s60')
        A('s_mov_b32 s94, s62')
        A('s_mov_b64 exec, 1')
        A('s_lshl_b32 s60, s2, 10')
        A('s_lshl_b32 s61, s20, 7')
        A('s_add_u32 s60, s60, s61')
        A(f's_add_u32 s60, s60, {STAMPS + kidx * (1 << 20)}')
        A('v_mov_b32 v0, 0')
        for i in range(32):
            A(f'v_mov_b32 v1, {s(64 + i)}')
            A(f'buffer_store_dword v1, v0, s[8:11], s60 offen offset:{i * 4}')
        A('s_waitcnt vmcnt(0)')


def setup(C, need_out, endlab):
    A = C.A
    A('s_cmp_ge_u32 s2, 256')
    A(f's_cbranch_scc1 {endlab}')
    stamp_begin(C)
    ws_srd(A, 8)
    if need_out:
        A('s_load_dwordx2 s[12:13], s[0:1], 72')
        A(f's_mov_b32 s14, {2048 * 512 * 2}')
        A('s_mov_b32 s15, 0x20000')
    A('v_and_b32 v1, 63, v0')
    A('v_lshrrev_b32 v2, 6, v0')
    A('v_lshlrev_b32 v3, 4, v1')
    A('v_readfirstlane_b32 s20, v2')
    A('s_and_b32 s21, s2, 7')
    A('s_lshl_b32 s21, s21, 1')
    A('s_bfe_u32 s22, s2, 0x10003')
    A('s_add_u32 s21, s21, s22')
    A('s_lshr_b32 s22, s2, 4')
    A('s_and_b32 s23, s22, 1')
    A('s_lshr_b32 s24, s22, 1')
    A('s_and_b32 s25, s20, 3')
    A('s_lshr_b32 s26, s20, 2')
    A('s_lshl_b32 s27, s21, 2')
    A('s_lshl_b32 s30, s23, 1')
    A('s_add_u32 s27, s27, s30')
    A('s_lshl_b32 s28, s24, 1')
    A('s_bfe_u32 s30, s20, 0x10001')
    A('s_add_u32 s28, s28, s30')
    A('s_and_b32 s29, s20, 1')
    A('s_add_u32 s30, s27, s29')
    A('s_lshl_b32 s49, s30, 15')
    A('s_lshl_b32 s31, s28, 11')
    A('s_add_u32 s49, s49, s31')
    A('s_lshl_b32 s31, s26, 10')
    A('s_add_u32 s49, s49, s31')
    for g in range(1, 8):
        A(f's_mov_b32 {s(40 + g)}, {g * 4096}')
    A('s_waitcnt lgkmcnt(0)')


def soff(i):
    return ('0' if i // 4 == 0 else s(40 + i // 4)), (i % 4) * 1024


def handoff(C, sync, endlab, need, kvflag=None, first=False):
    A = C.A
    l1, l2, ld = C.lab('pa'), C.lab('pb'), C.lab('pd')
    need()
    A('s_mov_b32 s33, 0')
    A('v_lshlrev_b32 v0, 2, v1')
    A('s_lshl_b32 s30, s21, 8')
    A(f's_add_u32 s30, s30, {FLG + sync * 4096}')
    A('s_lshl_b32 s34, s22, 2')
    A('s_add_u32 s34, s34, s30')
    A('v_mov_b32 v4, 1')
    if first:
        lz, lzd = C.lab('z'), C.lab('zd')
        A('s_cmp_lg_u32 s20, 0')
        A(f's_cbranch_scc1 {lzd}')
        A('s_mov_b32 s31, 0')
        A('s_mov_b64 exec, 1')
        A.label(lz)
        A('buffer_load_dword v2, v0, s[4:7], 0 offen sc0 sc1')
        A('s_waitcnt vmcnt(0)')
        A('v_cmp_le_u32 vcc, 16, v2')
        A('s_add_u32 s31, s31, 1')
        A('s_cmp_eq_u64 vcc, 1')
        A(f's_cbranch_scc1 {lzd}')
        A('s_sleep 8')
        A(f's_cmp_lt_u32 s31, {1 << 20}')
        A(f's_cbranch_scc1 {lz}')
        A(f's_branch {endlab}')
        A.label(lzd)
        A('s_mov_b64 exec, -1')
    if kvflag is not None:
        A('s_waitcnt vmcnt(0) lgkmcnt(0)')
        C.vm = []
    else:
        C.wait('st', 'lgkmcnt(0)')
    A('s_cmp_lg_u32 s20, 0')
    A('s_barrier')
    l, lb, lb2 = C.lab('sig'), C.lab('sb'), C.lab('sc')
    A(f's_cbranch_scc1 {l}')
    A('s_mov_b64 exec, 1')
    if kvflag is not None:
        lk = C.lab('kf')
        A('s_cmp_ge_u32 s24, 2')
        A(f's_cbranch_scc1 {lk}')
        A('s_add_u32 s31, s27, s24')
        A('s_lshl_b32 s31, s31, 7')
        A(f's_add_u32 s31, s31, {kvflag}')
        A('s_mov_b64 exec, 15')
        A('buffer_store_dword v4, v0, s[8:11], s31 offen sc0 sc1')
        A('s_mov_b64 exec, 1')
        A.label(lk)
    A('buffer_store_dword v4, v0, s[8:11], s34 offen')
    A.label(l)
    A('s_mov_b32 s31, 0')
    A('s_mov_b64 exec, s[32:33]')
    A.label(l1)
    A('buffer_load_dword v2, v0, s[8:11], s30 offen sc1')
    A('s_add_u32 s31, s31, 1')
    A('s_waitcnt vmcnt(0)')
    A('v_cmp_ne_u32 vcc, 0, v2')
    A('s_cmp_eq_u64 vcc, s[32:33]')
    A(f's_cbranch_scc1 {ld}')
    A('s_cmp_lt_u32 s31, 64')
    A(f's_cbranch_scc1 {l1}')
    A('s_mov_b64 exec, 1')
    A('buffer_store_dword v4, v0, s[8:11], s34 offen offset:128 sc0 sc1')
    A('s_mov_b64 exec, s[32:33]')
    A.label(l2)
    A('buffer_load_dword v2, v0, s[8:11], s30 offen sc1')
    A('s_waitcnt vmcnt(0)')
    A('v_cmp_ne_u32 s[36:37], 0, v2')
    A('buffer_load_dword v2, v0, s[8:11], s30 offen offset:128 sc0 sc1')
    A('s_waitcnt vmcnt(0)')
    A('v_cmp_ne_u32 vcc, 0, v2')
    A('s_add_u32 s31, s31, 1')
    A('s_or_b64 vcc, vcc, s[36:37]')
    A('s_cmp_eq_u64 vcc, s[32:33]')
    A(f's_cbranch_scc1 {ld}')
    A('s_sleep 4')
    A(f's_cmp_lt_u32 s31, {1 << 20}')
    A(f's_cbranch_scc1 {l2}')
    A(f's_branch {endlab}')
    A.label(ld)
    A('s_mov_b64 exec, -1')
    C.vm = []
    C.flagb = True


def flag_b(C):
    if getattr(C, 'flagb', False):
        A = C.A
        l = C.lab('fb')
        A('s_cmp_lg_u32 s20, 0')
        A(f's_cbranch_scc1 {l}')
        A('s_mov_b64 exec, 1')
        A('buffer_store_dword v4, v0, s[8:11], s34 offen offset:128 sc0 sc1')
        A('s_mov_b64 exec, -1')
        A.label(l)
        C.flagb = False


ACCB, ACCA = 16, 48
KVW, KACC, QSX = 160, 176, 240
KVRED, STAT, CSX, CSK = 112 * KB, 144 * KB, 148 * KB, 152 * KB


def blk_stats(C, P, T):
    A = C.A
    A(f'v_mov_b32 {v(T + 4)}, 0x3f803f80')
    A(f'v_dot2_f32_bf16 {v(T + 1)}, {v(P)}, {v(P)}, 0')
    A(f'v_dot2_f32_bf16 {v(T)}, {v(P)}, {v(T + 4)}, 0')
    for m in range(1, 4):
        A(f'v_dot2_f32_bf16 {v(T + 1)}, {v(P + m)}, {v(P + m)}, {v(T + 1)}')
        A(f'v_dot2_f32_bf16 {v(T)}, {v(P + m)}, {v(T + 4)}, {v(T)}')
    A('s_nop 2')
    A(f'v_mov_b32 {v(T + 2)}, {v(T)}')
    A(f'v_mov_b32 {v(T + 3)}, {v(T + 1)}')
    A('s_nop 1')
    A(f'v_permlane32_swap_b32 {v(T)}, {v(T + 2)}')
    A(f'v_permlane32_swap_b32 {v(T + 1)}, {v(T + 3)}')
    A(f'v_add_f32 {v(T)}, {v(T)}, {v(T + 2)}')
    A(f'v_add_f32 {v(T + 1)}, {v(T + 1)}, {v(T + 3)}')


def g3_waddr(C, vregs, KS, wbase):
    A = C.A
    NS = KS // 8
    A('s_lshl_b32 s30, s26, 8')
    A(f'v_xor_b32 {v(vregs[0])}, s30, v3')
    A(f's_mul_i32 s31, s20, {NS * KB}')
    A(f's_add_u32 s31, s31, {wbase}')
    A('s_xor_b32 s30, s28, 1')
    A(f's_mul_i32 s30, s30, {KS * KB}')
    A('s_add_u32 s30, s30, s31')
    A(f'v_add_u32 {v(vregs[1])}, s30, {v(vregs[0])}')
    A(f's_mul_i32 s30, s28, {KS * KB}')
    A('s_add_u32 s30, s30, s31')
    A(f'v_add_u32 {v(vregs[0])}, s30, {v(vregs[0])}')


def g3_wload(C, vregs, idx, wreg0, tag='w'):
    st, jj = idx // 2, idx % 2
    so, im = soff(st)
    C.vmem(f'buffer_load_dwordx4 {v(wreg0 + 4 * idx, 4)}, {v(vregs[jj])}, s[8:11], {so} offen offset:{im}', tag)


def g3_ex(mode, KS):
    return 252 if KS == 112 else (112 if mode == 'qkv' else 116)


def g3_pre(C, mode, KS, xbase, resbase=None, raw=False):
    A = C.A
    NS = KS // 8
    EX = g3_ex(mode, KS)
    A(f's_mul_i32 s31, s20, {NS * KB}')
    A(f's_add_u32 s31, s31, {xbase}')
    A('s_add_u32 s30, s27, s29')
    A(f's_mul_i32 s32, s30, {KS * KB}')
    A('s_add_u32 s32, s32, s31')
    A('v_add_u32 v6, s32, v3')
    A('s_xor_b32 s30, s30, 1')
    A(f's_mul_i32 s32, s30, {KS * KB}')
    A('s_add_u32 s32, s32, s31')
    A('v_add_u32 v5, s32, v3')
    A('s_lshl_b32 s30, s20, 11')
    A('v_add_u32 v8, s30, v3')
    A('v_add_u32 v7, 0x10000, v8')
    for b in range(1, 8):
        A(f's_xor_b32 s30, s20, {b}')
        A('s_lshl_b32 s30, s30, 11')
        A(f's_add_u32 s30, s30, {(b - 1) * 16 * KB}')
        A(f'v_add_u32 {v(8 + b)}, s30, v3')
    if raw:
        return
    if mode == 'qkv':
        A('v_lshrrev_b32 v2, 5, v1')
        A('v_lshlrev_b32 v4, 4, v2')
        A('s_lshl_b32 s31, s28, 7')
        A('s_lshl_b32 s30, s26, 6')
        A('s_add_u32 s31, s31, s30')
        A(f's_add_u32 s31, s31, {CSQKV}')
        C.vmem(f'buffer_load_dwordx4 {v(EX, 4)}, v4, s[8:11], s31 offen', 'ex')
        C.vmem(f'buffer_load_dwordx4 {v(EX + 4, 4)}, v4, s[8:11], s31 offen offset:32', 'ex')
        A('s_bfe_u32 s30, s20, 0x10001')
        A('s_lshl_b32 s30, s30, 6')
        A('s_lshl_b32 s31, s26, 5')
        A('s_add_u32 s30, s30, s31')
        A(f's_add_u32 s31, s30, {CSQKV + 2048}')
        C.vmem(f'buffer_load_dwordx4 {v(EX + 8, 4)}, v4, s[8:11], s31 offen', 'ex')
        A(f'v_and_b32 {v(QSX + 8)}, 31, v1')
        A(f'v_lshlrev_b32 {v(QSX + 8)}, 3, {v(QSX + 8)}')
        A(f'v_lshl_add_u32 {v(QSX + 8)}, v2, 13, {v(QSX + 8)}')
        A('s_lshl_b32 s30, s27, 13')
        A('s_lshl_b32 s31, s20, 10')
        A('s_add_u32 s30, s30, s31')
        A(f's_add_u32 s30, s30, {resbase}')
        A(f'v_add_u32 {v(QSX + 8)}, s30, {v(QSX + 8)}')
    elif resbase is None:
        A('v_and_b32 v2, 31, v1')
        A('v_lshlrev_b32 v2, 10, v2')
        A('v_lshrrev_b32 v4, 5, v1')
        A('v_lshl_add_u32 v2, v4, 3, v2')
        A('s_add_u32 s30, s27, s29')
        A('s_lshl_b32 s30, s30, 15')
        A('s_lshl_b32 s31, s28, 6')
        A('s_add_u32 s30, s30, s31')
        A('s_lshl_b32 s31, s26, 5')
        A('s_add_u32 s30, s30, s31')
        C.vmem(f'buffer_load_dwordx2 {v(EX, 2)}, v2, s[12:15], s30 offen', 'ex')
        C.vmem(f'buffer_load_dwordx2 {v(EX + 2, 2)}, v2, s[12:15], s30 offen offset:16', 'ex')
    else:
        A(f's_add_u32 s31, s49, {resbase}')
        C.vmem(f'buffer_load_dwordx4 {v(EX, 4)}, v3, s[8:11], s31 offen', 'ex')


def g3_main(C, mode, KS, wreg0, outbase=None, kvf=None, after_store=None, sxout=None, hook_b=None, raw=False, hook_red=None):
    A = C.A
    NS = KS // 8
    EX = g3_ex(mode, KS)
    if NS == 4:
        xreg = {(hh, st): 80 + (hh * 4 + st) * 4 for hh in range(2) for st in range(4)}
    else:
        slot = [80 + 4 * k for k in range(12)] + [240, 244]
        xreg = {(hh, st): slot[st] for hh in range(2) for st in range(NS)}

    def xload(hh, st):
        so, im = soff(st)
        C.vmem(f'buffer_load_dwordx4 {v(xreg[hh, st], 4)}, {v(5 + hh)}, s[8:11], {so} offen offset:{im}', f'x{hh}_{st}')

    seq = [(hh, st) for hh in range(2) for st in range(NS)]
    PR = G3_PR4 if NS == 4 else G3_PR14
    if raw:
        seq, PR = [], 0
    for x in seq[:PR]:
        xload(*x)
    nxt = PR
    C.wait('w')

    def wr(b):
        base = (ACCA if b & 1 else ACCB) + ((b >> 1) & 1) * 16 + (b >> 2) * 8
        return [f'ds_write_b128 {v(8 + b)}, {v(base + h2 * 4, 4)} offset:{h2 * 1024}' for h2 in range(2)]

    pend = []
    for hh in range(2):
        acc = ACCA if hh == 0 else ACCB
        for st in range(NS):
            C.wait(f'x{hh}_{st}')
            if hh == 0 and st == 0:
                C.stamp()
            for jj in range(2):
                c = '0' if st == 0 else v(acc + jj * 16, 16)
                A(f'v_mfma_f32_32x32x16_bf16 {v(acc + jj * 16, 16)}, {v(wreg0 + 4 * (2 * st + jj), 4)}, {v(xreg[hh, st], 4)}, {c}')
                if hh == 1 and (st >= 3 or (NS == 4 and st >= 2)):
                    for _ in range(2 if NS == 4 else 1):
                        if pend:
                            A(pend.pop(0))
            if nxt < len(seq):
                xload(*seq[nxt])
                nxt += 1
                if nxt == len(seq):
                    if mode == 'qkv':
                        for e in range(4):
                            C.vmem(f'buffer_load_dwordx2 {v(QSX + 2 * e, 2)}, {v(QSX + 8)}, s[8:11], 0 offen offset:{e * 256}', 'sx')
                    flag_b(C)
                    hb = 0
            elif hook_b:
                hb += 1
            if hook_b and nxt == len(seq):
                hook_b(hb, PR)
            if hh == 1 and NS == 4 and st == 1:
                A('s_nop 7' if raw else 's_nop 5')
            if hh == 1 and NS != 4 and st == 2:
                A('s_nop 2')
        if hh == 0:
            pend = wr(1) + wr(5) + wr(3) + wr(7)
    assert not pend
    C.stamp()
    lkv = C.lab('nokv')
    if mode == 'qkv':
        la, lb = C.lab('ka'), C.lab('kb')
        A('s_cmp_ge_u32 s24, 2')
        A(f's_cbranch_scc1 {lb}')
        A('s_cmp_eq_u32 s24, s29')
        A(f's_cbranch_scc0 {la}')
        for hh in (1, 0):
            for st in range(4):
                c = '0' if st == 0 else v(KACC, 16)
                A(f'v_mfma_f32_32x32x16_bf16 {v(KACC, 16)}, {v(KVW + 4 * st, 4)}, {v(xreg[hh, st], 4)}, {c}')
            if hh == 1:
                A(f's_branch {lb}')
                A.label(la)
        A.label(lb)
        A('v_lshlrev_b32 v4, 3, v1')
        if not raw:
            C.wait('sx')
            for e in range(4):
                A(f'v_add_f32 {v(QSX + e)}, {v(QSX + e)}, {v(QSX + 4 + e)}')
            for e in range(2):
                A(f'v_add_f32 {v(QSX + e)}, {v(QSX + e)}, {v(QSX + 2 + e)}')
            A('s_lshl_b32 s30, s20, 9')
            A(f's_add_u32 s30, s30, {STAT}')
            A('v_add_u32 v2, s30, v4')
            A(f'ds_write_b64 v2, {v(QSX, 2)}')
        else:
            A('v_lshrrev_b32 v112, 5, v1')
            A('v_lshlrev_b32 v112, 4, v112')
            A('s_and_b32 s30, s28, 1')
            A('s_lshl_b32 s30, s30, 7')
            A('s_lshl_b32 s31, s26, 6')
            A('s_add_u32 s30, s30, s31')
            A(f's_add_u32 s30, s30, {CSK}')
            A('v_add_u32 v113, s30, v112')
            A('s_nop 3')
        A('v_and_b32 v4, 0xf8, v4')
        A('s_lshl_b32 s30, s29, 8')
        A(f's_add_u32 s30, s30, {STAT}')
        A('v_add_u32 v4, s30, v4')
    else:
        A('s_nop 10')
    for b in (4, 2, 6):
        for x in wr(b):
            A(x)
    if mode == 'qkv':
        A('s_cmp_ge_u32 s24, 2')
        A(f's_cbranch_scc1 {lkv}')
        A(f'v_add_u32 v2, {KVRED}, v8')
        for k4 in range(4):
            A(f'ds_write_b128 v2, {v(KACC + k4 * 4, 4)} offset:{(k4 >> 1) * 16 * KB + (k4 & 1) * 1024}')
        A.label(lkv)
    if hook_red:
        hook_red()
    A('s_waitcnt lgkmcnt(0)')
    A('s_barrier')
    for b in range(1, 8):
        for h2 in range(2):
            base, off = ('v8', (b - 1) * 16 * KB) if b <= 4 else ('v7', (b - 5) * 16 * KB)
            A(f'ds_read_b128 {v(ACCB + b * 8 + h2 * 4, 4)}, {base} offset:{off + h2 * 1024}')
    T = 80

    def red(base, waits):
        for stp in (32, 16, 8):
            for r in range(stp):
                A(f'v_add_f32 {v(base + r)}, {v(base + r)}, {v(base + stp + r)}')
    if mode == 'qkv':
        A('s_waitcnt lgkmcnt(6)')
        for ww in range(8):
            A(f'ds_read_b64 {v(T + ww * 2, 2)}, v4 offset:{ww * 512}')
        A('s_waitcnt lgkmcnt(8)')
        if raw:
            EX = 192
            for h2 in range(2):
                A(f'ds_read_b128 {v(EX + h2 * 4, 4)}, v113 offset:{h2 * 32}')
    else:
        C.wait('ex')
        for m in range(4):
            A(f'v_lshlrev_b32 {v(T + 2 * m)}, 16, {v(EX + m)}')
            A(f'v_and_b32 {v(T + 2 * m + 1)}, 0xffff0000, {v(EX + m)}')
        for r in range(8):
            A(f'v_add_f32 {v(ACCB + r)}, {v(ACCB + r)}, {v(T + r)}')
        A('s_waitcnt lgkmcnt(0)')
    red(ACCB, None)
    P = ACCB + 8
    if mode == 'qkv':
        A('s_waitcnt lgkmcnt(0)')
        for stp in (8, 4, 2):
            for e in range(stp):
                A(f'v_add_f32 {v(T + e)}, {v(T + e)}, {v(T + e + stp)}')
        A(f'v_mul_f32 {v(T)}, {f32(1.0 / 512)}, {v(T)}')
        A(f'v_mul_f32 {v(T + 1)}, {f32(1.0 / 512)}, {v(T + 1)}')
        A(f'v_fma_f32 {v(T + 1)}, -{v(T)}, {v(T)}, {v(T + 1)}')
        A(f'v_max_f32 {v(T + 1)}, 0, {v(T + 1)}')
        A(f'v_add_f32 {v(T + 1)}, {f32(1e-5)}, {v(T + 1)}')
        A(f'v_rsq_f32 {v(T + 1)}, {v(T + 1)}')
        C.wait('ex')
        for r in range(8):
            A(f'v_fma_f32 {v(ACCB + r)}, -{v(T)}, {v(EX + r)}, {v(ACCB + r)}')
        A(f'v_mul_f32 {v(T + 2)}, {f32(QSCALE)}, {v(T + 1)}')
        for r in range(8):
            A(f'v_mul_f32 {v(ACCB + r)}, {v(T + 2)}, {v(ACCB + r)}')
        for m in range(4):
            A(f'v_cvt_pk_bf16_f32 {v(P + m)}, {v(ACCB + 2 * m)}, {v(ACCB + 2 * m + 1)}')
        A(f's_add_u32 s31, s49, {C.qf}')
        C.vmem(f'buffer_store_dwordx4 {v(P, 4)}, v3, s[8:11], s31 offen{QWT}', 'st')
        le, lv = C.lab('ke'), C.lab('v')
        A('s_cmp_lg_u32 s29, s24')
        A(f's_cbranch_scc1 {le}')
        A('s_bfe_u32 s34, s20, 0x10001')
        A('s_lshl_b32 s30, s34, 14')
        A('s_lshl_b32 s31, s26, 10')
        A('s_add_u32 s30, s30, s31')
        A(f's_add_u32 s30, s30, {KVRED}')
        A('v_add_u32 v4, s30, v3')
        KR = 208
        for ww in range(8):
            A(f'ds_read_b128 {v(KR + ww * 4, 4)}, v4 offset:{ww * 2048}')
        KX = EX + 8
        if raw:
            A('s_lshl_b32 s30, s34, 6')
            A('s_lshl_b32 s31, s26, 5')
            A('s_add_u32 s30, s30, s31')
            A(f's_add_u32 s30, s30, {CSK + 256}')
            A('v_add_u32 v113, s30, v112')
            A(f'ds_read_b128 {v(KX, 4)}, v113')
        A('s_add_u32 s30, s27, s29')
        A(f's_mul_i32 s30, s30, {KVG}')
        A(f's_add_u32 s30, s30, {kvf}')
        A('v_bfe_u32 v4, v1, 4, 1')
        A(f'v_mul_u32_u24 v4, {VBS}, v4')
        A('v_bfe_u32 v5, v1, 2, 1')
        A('v_lshl_add_u32 v4, v5, 8, v4')
        A('v_and_b32 v5, 3, v1')
        A('v_lshl_add_u32 v4, v5, 1, v4')
        A('v_bfe_u32 v5, v1, 3, 1')
        A('v_lshl_add_u32 v4, v5, 3, v4')
        A('v_lshrrev_b32 v5, 5, v1')
        A('v_lshl_add_u32 v4, v5, 6, v4')
        A('s_waitcnt lgkmcnt(0)')
        for stp in (16, 8, 4):
            for r in range(stp):
                A(f'v_add_f32 {v(KR + r)}, {v(KR + r)}, {v(KR + stp + r)}')
        for r in range(4):
            A(f'v_fma_f32 {v(KR + r)}, -{v(T)}, {v(KX + r)}, {v(KR + r)}')
        for r in range(4):
            A(f'v_mul_f32 {v(KR + r)}, {v(T + 1)}, {v(KR + r)}')
        KP = KR + 8
        for m in range(2):
            A(f'v_cvt_pk_bf16_f32 {v(KP + m)}, {v(KR + 2 * m)}, {v(KR + 2 * m + 1)}')
        A('s_cmp_lg_u32 s34, 0')
        A(f's_cbranch_scc1 {lv}')
        A('s_lshl_b32 s31, s26, 3')
        A('s_add_u32 s31, s31, s30')
        A(f'buffer_store_dwordx2 {v(KP, 2)}, v3, s[8:11], s31 offen{QWT}')
        A(f's_branch {le}')
        A.label(lv)
        A('s_lshl_b32 s31, s26, 7')
        A('s_add_u32 s31, s31, s30')
        for r in range(4):
            op = 'buffer_store_short' if r % 2 == 0 else 'buffer_store_short_d16_hi'
            A(f'{op} {v(KP + r // 2)}, v4, s[8:11], s31 offen offset:{1024 + r * 16}{QWT}')
        A.label(le)
    else:
        for m in range(4):
            A(f'v_cvt_pk_bf16_f32 {v(P + m)}, {v(ACCB + 2 * m)}, {v(ACCB + 2 * m + 1)}')
        if mode == 'res':
            A(f's_add_u32 s31, s49, {outbase}')
            C.vmem(f'buffer_store_dwordx4 {v(P, 4)}, v3, s[8:11], s31 offen{WT}', 'st')
            blk_stats(C, P, T)
            A('s_lshr_b32 s31, s49, 2')
            A(f's_add_u32 s31, s31, {sxout}')
            A('v_lshlrev_b32 v4, 3, v1')
            A('s_mov_b32 exec_hi, 0')
            C.vmem(f'buffer_store_dwordx2 {v(T, 2)}, v4, s[8:11], s31 offen{WT}', 'st')
            A('s_mov_b64 exec, -1')
            if after_store:
                after_store()
        else:
            A('v_and_b32 v4, 31, v1')
            A('v_lshlrev_b32 v4, 10, v4')
            A('v_lshrrev_b32 v5, 5, v1')
            A('v_lshl_add_u32 v4, v5, 4, v4')
            A('s_add_u32 s30, s27, s29')
            A('s_lshl_b32 s30, s30, 15')
            A('s_lshl_b32 s31, s28, 6')
            A('s_add_u32 s30, s30, s31')
            A('s_lshl_b32 s31, s26, 5')
            A('s_add_u32 s30, s30, s31')
            A(f'v_permlane32_swap_b32 {v(P)}, {v(P + 2)}')
            A(f'v_permlane32_swap_b32 {v(P + 1)}, {v(P + 3)}')
            C.vmem(f'buffer_store_dwordx4 {v(P, 4)}, v4, s[12:15], s30 offen', 'st')


def qkv_wstep(C, st, n=1):
    A = C.A
    if st == 0:
        g3_waddr(C, (5, 6), 32, WQKVP)
    per = -(-8 // n)
    for i in range(st * per, min(8, (st + 1) * per)):
        g3_wload(C, (5, 6), i, 128)
    if st == n:
        A('s_lshl_b32 s30, s20, 12')
        A(f's_add_u32 s30, s30, {WQKVP + 16 * 32 * KB}')
        l = C.lab('kw')
        A('s_cmp_ge_u32 s24, 2')
        A(f's_cbranch_scc1 {l}')
        for k in range(4):
            A(f'buffer_load_dwordx4 {v(KVW + 4 * k, 4)}, v3, s[8:11], s30 offen offset:{k * 1024}')
        A.label(l)


def qkv_wloads(C):
    qkv_wstep(C, 0)
    qkv_wstep(C, 1)


KVR4, XF0, ST4, RED4 = 0, 36 * KB, 68 * KB, 80 * KB
G4_ORD = [0, 1, 4, 5, 8, 9, 12, 13, 2, 3, 6, 7, 10, 11, 14, 15]


def g4_ids(C):
    A = C.A
    A('s_and_b32 s18, s22, 3')
    A('s_lshl_b32 s30, s21, 2')
    A('s_add_u32 s18, s18, s30')
    A('s_and_b32 s30, s22, 12')
    A('s_add_u32 s30, s30, s25')
    A('s_lshl_b32 s30, s30, 1')
    A('s_add_u32 s30, s30, s26')
    A('s_lshl_b32 s19, s18, 5')
    A('s_add_u32 s19, s19, s30')
    A('s_lshl_b32 s19, s19, 10')
    A('s_lshr_b32 s3, s22, 2')
    A('s_and_b32 s30, s21, 3')
    A('s_xor_b32 s3, s3, s30')


def g4_waddr(C, vreg, wbase):
    A = C.A
    A('s_lshl_b32 s30, s26, 8')
    A(f'v_xor_b32 {v(vreg)}, s30, v3')
    A('s_and_b32 s30, s19, 0x7fff')
    A('s_lshl_b32 s30, s30, 4')
    A(f's_add_u32 s30, s30, {wbase}')
    A(f'v_add_u32 {v(vreg)}, s30, {v(vreg)}')


def g4_wreg(mode, i):
    if mode == 'qkv':
        return 128 + 4 * i
    return 224 + 4 * i if i < 8 else 64 + 4 * (i - 8)


def g4_wload(C, vreg, i, mode):
    so, im = soff(G4_ORD[i])
    C.vmem(f'buffer_load_dwordx4 {v(g4_wreg(mode, i), 4)}, {v(vreg)}, s[8:11], {so} offen offset:{im}', 'w')


def g4_pre(C, mode, xbase, resbase=None, raw=False):
    A = C.A
    EX = 96
    A('s_lshl_b32 s30, s18, 15')
    A('s_lshl_b32 s48, s20, 12')
    A('s_add_u32 s30, s30, s48')
    A(f's_add_u32 s30, s30, {xbase}')
    A('v_add_u32 v5, s30, v3')
    A('s_lshl_b32 s30, s26, 14')
    A(f's_add_u32 s30, s30, {XF0}')
    A('v_add_u32 v6, s30, v3')
    A(f'v_add_u32 v14, s48, v3')
    A(f's_add_u32 s48, s48, {XF0}')
    A('s_lshl_b32 s30, s20, 11')
    A(f's_add_u32 s30, s30, {RED4}')
    A('v_add_u32 v8, s30, v3')
    A('v_xor_b32 v7, 0x2000, v8')
    if mode == 'qkv':
        A('v_lshrrev_b32 v2, 5, v1')
        if not raw:
            A('v_lshlrev_b32 v4, 4, v2')
            A('s_and_b32 s31, s19, 0x7fff')
            A('s_lshr_b32 s31, s31, 4')
            A(f's_add_u32 s31, s31, {CSQKV}')
            C.vmem(f'buffer_load_dwordx4 {v(EX, 4)}, v4, s[8:11], s31 offen', 'ex')
            C.vmem(f'buffer_load_dwordx4 {v(EX + 4, 4)}, v4, s[8:11], s31 offen offset:32', 'ex')
            A('s_lshl_b32 s31, s25, 5')
            A(f's_add_u32 s31, s31, {CSQKV + 2048}')
            C.vmem(f'buffer_load_dwordx4 {v(EX + 8, 4)}, v4, s[8:11], s31 offen', 'ex')
        A('v_and_b32 v9, 31, v1')
        A('v_lshlrev_b32 v9, 3, v9')
        A(f'v_add_u32 v11, {ST4}, v9')
        A('s_lshl_b32 s30, s20, 8')
        A('v_add_u32 v10, s30, v11')
        A('v_lshl_add_u32 v9, v2, 9, v9')
        A('s_lshl_b32 s30, s18, 13')
        A('s_lshl_b32 s31, s20, 10')
        A('s_add_u32 s30, s30, s31')
        A(f's_add_u32 s30, s30, {resbase}')
        A('v_add_u32 v9, s30, v9')
        A('v_add_u32 v12, s48, v3')
        A('s_lshl_b32 s30, s25, 10')
        A(f's_add_u32 s30, s30, {KVR4}')
        A('v_add_u32 v13, s30, v3')
        A('v_bfe_u32 v15, v1, 4, 1')
        A('v_lshlrev_b32 v15, 9, v15')
        A('v_bfe_u32 v4, v1, 2, 1')
        A('v_lshl_add_u32 v15, v4, 8, v15')
        A('v_and_b32 v4, 3, v1')
        A('v_lshl_add_u32 v15, v4, 1, v15')
        A('v_bfe_u32 v4, v1, 3, 1')
        A('v_lshl_add_u32 v15, v4, 3, v15')
        A('v_lshl_add_u32 v15, v2, 6, v15')
    elif resbase is None:
        A('v_and_b32 v2, 31, v1')
        A('v_lshlrev_b32 v2, 10, v2')
        A('v_lshrrev_b32 v4, 5, v1')
        A('v_lshl_add_u32 v2, v4, 3, v2')
        A('s_lshl_b32 s30, s18, 15')
        A('s_and_b32 s31, s19, 0x7fff')
        A('s_lshr_b32 s31, s31, 5')
        A('s_add_u32 s30, s30, s31')
        C.vmem(f'buffer_load_dwordx2 {v(EX, 2)}, v2, s[12:15], s30 offen', 'ex')
        C.vmem(f'buffer_load_dwordx2 {v(EX + 2, 2)}, v2, s[12:15], s30 offen offset:16', 'ex')
    else:
        A(f's_add_u32 s31, s19, {resbase}')
        C.vmem(f'buffer_load_dwordx4 {v(EX, 4)}, v3, s[8:11], s31 offen', 'ex')


def ln_stats(A, T):
    for stp in (8, 4, 2):
        for e in range(stp):
            A(f'v_add_f32 {v(T + e)}, {v(T + e)}, {v(T + e + stp)}')
    A(f'v_mul_f32 {v(T)}, {f32(1.0 / 512)}, {v(T)}')
    A(f'v_mul_f32 {v(T + 1)}, {f32(1.0 / 512)}, {v(T + 1)}')
    A(f'v_fma_f32 {v(T + 1)}, -{v(T)}, {v(T)}, {v(T + 1)}')
    A(f'v_max_f32 {v(T + 1)}, 0, {v(T + 1)}')
    A(f'v_add_f32 {v(T + 1)}, {f32(1e-5)}, {v(T + 1)}')
    A(f'v_rsq_f32 {v(T + 1)}, {v(T + 1)}')


def g4_main(C, mode, outbase=None, sxout=None, kvf=None, kfl=None, hook_red=None, raw=None, endlab=None):
    A = C.A
    ACC, XR, EX = 16, 32, 96
    KW, KA, KR, T = 192, 208, 224, 108
    if not raw:
        A('s_mov_b32 m0, s48')
        A('s_nop 0')
        for k in range(4):
            C.vmem(f'buffer_load_dwordx4 v5, s[8:11], 0 offen offset:{k * 1024} lds', f'x{k}')

    def rd(i):
        A(f'ds_read_b128 {v(XR + 4 * (i % 8), 4)}, v6 offset:{G4_ORD[i] * 1024}')

    def mf(i):
        c = '0' if i == 0 else v(ACC, 16)
        A(f'v_mfma_f32_32x32x16_bf16 {v(ACC, 16)}, {v(g4_wreg(mode, i), 4)}, {v(XR + 4 * (i % 8), 4)}, {c}')

    def wq_loads():
        for i in range(16):
            so, im = soff(G4_ORD[i])
            A(f'buffer_load_dwordx4 {v(128 + 4 * i, 4)}, v64, s[8:11], {so} offen offset:{im}')

    if mode == 'qkv':
        A('s_add_u32 s35, s3, s26')
        if raw:
            raw['front']()
        else:
            for e in range(2):
                C.vmem(f'buffer_load_dwordx2 {v(T + 2 * e, 2)}, v9, s[8:11], 0 offen offset:{e * 256}', 'sx')
            l1, l2 = C.lab('w1'), C.lab('w2')
            A('s_cmp_eq_u32 s3, 0')
            A(f's_cbranch_scc1 {l1}')
            flag_b(C)
            wq_loads()
            A('s_waitcnt vmcnt(16)')
            A(f's_branch {l2}')
            A.label(l1)
            A('s_waitcnt vmcnt(0)')
            A.label(l2)
            C.vm = []
            C.stamp()
        lk = C.lab('k4')
        A('s_cmp_lg_u32 s3, 0')
        A(f's_cbranch_scc1 {lk}')
        if raw:
            raw['kvw']()
        else:
            for k in range(4):
                A(f'ds_read_b128 {v(KR + 4 * k, 4)}, v12 offset:{k * 1024}')
        for k in range(4):
            if not raw:
                A(f's_waitcnt lgkmcnt({3 - k})')
            A(f'v_mfma_f32_32x32x16_bf16 {v(KA, 16)}, {v(KW + 4 * k, 4)}, {v(KR + 4 * k, 4)}, {"0" if k == 0 else v(KA, 16)}')
        A.label(lk)
        A(f'v_add_f32 {v(T)}, {v(T)}, {v(T + 2)}')
        A(f'v_add_f32 {v(T + 1)}, {v(T + 1)}, {v(T + 3)}')
        A(f'v_mov_b32 {v(T + 2)}, {v(T)}')
        A(f'v_mov_b32 {v(T + 3)}, {v(T + 1)}')
        A('s_nop 1')
        swap_add(A, T, T + 2)
        swap_add(A, T + 1, T + 3)
        A(f'ds_write_b64 v10, {v(T, 2)}')
        A(f'v_mov_b32 {v(T + 2)}, 0')
        A(f'v_mov_b32 v9, {ST4 + 8192}')
        A(f'ds_write_b32 v9, {v(T + 2)}')
        lk = C.lab('k5')
        A('s_cmp_lg_u32 s3, 0')
        A(f's_cbranch_scc1 {lk}')
        for k in range(4):
            A(f'ds_write_b128 v14, {v(KA + 4 * k, 4)} offset:{k * 1024}')
        A.label(lk)
        A('s_waitcnt lgkmcnt(0)')
        A('s_barrier')
        for ww in range(8):
            A(f'ds_read_b64 {v(T + 2 * ww, 2)}, v11 offset:{ww * 256}')
        lv, le, lf = C.lab('v6'), C.lab('e6'), C.lab('f6')
        A('s_cmp_lg_u32 s35, 0')
        A(f's_cbranch_scc1 {le}')
        A('s_setprio 3')
        if FINE == 3:
            C.stamp()
        A('s_waitcnt lgkmcnt(4)')
        for ww in range(8):
            A(f'ds_read_b128 {v(KR + 4 * ww, 4)}, v13 offset:{ww * 4096}')
        A('s_waitcnt lgkmcnt(8)')
        for r in range(16):
            A(f'v_mov_b32 {v(KA + r)}, {v(T + r)}')
        ln_stats(A, KA)
        A('s_lshl_b32 s30, s18, 11')
        A(f's_add_u32 s30, s30, {kvf}')
        A('s_waitcnt lgkmcnt(0)')
        if raw:
            raw['kvcs0']()
        for stp in (16, 8, 4):
            for r in range(stp):
                A(f'v_add_f32 {v(KR + r)}, {v(KR + r)}, {v(KR + stp + r)}')
        if raw:
            raw['kvcs1']()
        for r in range(4):
            A(f'v_fma_f32 {v(KR + r)}, -{v(KA)}, {v(EX + 8 + r)}, {v(KR + r)}')
        for r in range(4):
            A(f'v_mul_f32 {v(KR + r)}, {v(KA + 1)}, {v(KR + r)}')
        for m in range(2):
            A(f'v_cvt_pk_bf16_f32 {v(KR + 8 + m)}, {v(KR + 2 * m)}, {v(KR + 2 * m + 1)}')
        A('s_cmp_ge_u32 s20, 2')
        A(f's_cbranch_scc1 {lv}')
        A('s_lshl_b32 s31, s20, 3')
        A('s_add_u32 s31, s31, s30')
        A(f'buffer_store_dwordx2 {v(KR + 8, 2)}, v3, s[8:11], s31 offen sc0 sc1')
        A(f's_branch {lf}')
        A.label(lv)
        A('s_lshl_b32 s31, s29, 10')
        A(f's_add_u32 s31, s31, {ST4 + 4096}')
        A('v_add_u32 v15, s31, v15')
        for r in range(4):
            op = 'ds_write_b16' if r % 2 == 0 else 'ds_write_b16_d16_hi'
            A(f'{op} v15, {v(KR + 8 + r // 2)} offset:{r * 16}')
        A('v_lshrrev_b32 v2, 3, v1')
        A('v_lshlrev_b32 v2, 8, v2')
        A(f'v_and_b32 {v(KR)}, 7, v1')
        A(f'v_lshl_add_u32 v2, {v(KR)}, 4, v2')
        A('v_add_u32 v15, s31, v2')
        A('s_mov_b32 exec_hi, 0')
        A(f'ds_read_b128 {v(KR + 12, 4)}, v15')
        A('s_lshl_b32 s31, s29, 7')
        A('s_add_u32 s31, s31, s30')
        A('s_waitcnt lgkmcnt(0)')
        A(f'buffer_store_dwordx4 {v(KR + 12, 4)}, v2, s[8:11], s31 offen offset:1024 sc0 sc1')
        A('s_mov_b64 exec, -1')
        A.label(lf)
        lg = C.lab('g6')
        if FINE == 3:
            C.stamp()
        A('s_lshl_b32 s30, s18, 7')
        A(f's_add_u32 s30, s30, {kfl}')
        if raw:
            raw['zchk']()
        A('s_mov_b64 exec, 1')
        A('s_waitcnt vmcnt(0)')
        A('ds_add_rtn_u32 v2, v9, v4')
        A('s_waitcnt lgkmcnt(0)')
        A('v_cmp_eq_u32 vcc, 3, v2')
        A('s_cbranch_vccz ' + lg)
        A('buffer_store_dword v4, v0, s[8:11], s30 offen sc0 sc1')
        A.label(lg)
        A('s_mov_b64 exec, -1')
        A('s_setprio 0')
        if FINE == 3:
            C.stamp()
        A.label(le)
        flag_b(C)
        A('s_waitcnt lgkmcnt(0)')
        if raw:
            raw['wprep']()
        else:
            l3 = C.lab('w3')
            A('s_cmp_lg_u32 s3, 0')
            A(f's_cbranch_scc1 {l3}')
            C.flagb = True
            flag_b(C)
            wq_loads()
            A.label(l3)
        if raw:
            raw['loop'](rd, mf)
        else:
            for i in range(8):
                rd(i)
            ln_stats(A, T)
            for i in range(16):
                A(f's_waitcnt lgkmcnt({7 if i < 8 else 15 - i}) vmcnt({15 - i})')
                mf(i)
                if i < 8:
                    rd(i + 8)
    else:
        def wl(i):
            so, im = soff(G4_ORD[i])
            C.vmem(f'buffer_load_dwordx4 {v(g4_wreg(mode, i), 4)}, v116, s[8:11], {so} offen offset:{im}', f'w{i}')
        if WO_LATE:
            for i in range(8, 8 + WO_L0):
                wl(i)
        C.wait('x1')
        A('s_barrier')
        C.stamp()
        for i in range(8):
            rd(i)
        if WO_LATE:
            for i in range(8 + WO_L0, 16):
                wl(i)
        for i in range(4):
            A(f's_waitcnt lgkmcnt({7 - i})')
            mf(i)
        C.wait('x3')
        A('s_barrier')
        for i in range(8, 12):
            rd(i)
        for i in range(4, 8):
            A('s_waitcnt lgkmcnt(7)')
            mf(i)
            rd(i + 8)
        flag_b(C)
        for i in range(8, 16):
            C.wait(f'w{i}', f'lgkmcnt({15 - i})')
            mf(i)
            if hook_red and i >= 8:
                hook_red(i - 8)
    C.stamp()
    if mode == 'qkv':
        kv_setup(C, kvf, kfl)
        A(f'v_mul_f32 {v(T + 2)}, {f32(QSCALE)}, {v(T + 1)}')
        if raw:
            raw['cs0']()
    else:
        C.wait('ex')
        TT = XR
        for m in range(4):
            A(f'v_lshlrev_b32 {v(TT + 2 * m)}, 16, {v(EX + m)}')
            A(f'v_and_b32 {v(TT + 2 * m + 1)}, 0xffff0000, {v(EX + m)}')
        A('s_nop 3')
    for h2 in range(2):
        A(f'ds_write_b128 v7, {v(ACC + 8 + 4 * h2, 4)} offset:{h2 * 1024}')
    if mode == 'qkv':
        if not raw:
            for r in range(8):
                A(f'v_fma_f32 {v(ACC + r)}, -{v(T)}, {v(EX + r)}, {v(ACC + r)}')
    else:
        for r in range(8):
            A(f'v_add_f32 {v(ACC + r)}, {v(ACC + r)}, {v(XR + r)}')
    A('s_waitcnt lgkmcnt(0)')
    A('s_barrier')
    for h2 in range(2):
        A(f'ds_read_b128 {v(ACC + 8 + 4 * h2, 4)}, v8 offset:{h2 * 1024}')
    if mode == 'qkv':
        if FINE == 3:
            C.stamp()
        kv_wait(C, 1, endlab)
        if FINE == 3:
            C.stamp()
        att_kvdma(C, 0)
        kv_flagload(C)
    if raw:
        raw['cs']()
        for r in range(8):
            A(f'v_fma_f32 {v(ACC + r)}, -{v(T)}, {v(EX + r)}, {v(ACC + r)}')
    A('s_waitcnt lgkmcnt(0)')
    for r in range(8):
        A(f'v_add_f32 {v(ACC + r)}, {v(ACC + r)}, {v(ACC + 8 + r)}')
    if mode == 'qkv':
        for r in range(8):
            A(f'v_mul_f32 {v(ACC + r)}, {v(T + 2)}, {v(ACC + r)}')
        for m in range(4):
            A(f'v_cvt_pk_bf16_f32 {v(124 + m)}, {v(ACC + 2 * m)}, {v(ACC + 2 * m + 1)}')
        A('s_barrier')
    else:
        P = ACC + 8
        for m in range(4):
            A(f'v_cvt_pk_bf16_f32 {v(P + m)}, {v(ACC + 2 * m)}, {v(ACC + 2 * m + 1)}')
        A(f's_add_u32 s31, s19, {outbase}')
        C.vmem(f'buffer_store_dwordx4 {v(P, 4)}, v3, s[8:11], s31 offen{WT}', 'st')
        blk_stats(C, P, XR)
        A('s_lshr_b32 s31, s19, 2')
        A(f's_add_u32 s31, s31, {sxout}')
        A('v_lshlrev_b32 v4, 3, v1')
        A('s_mov_b32 exec_hi, 0')
        C.vmem(f'buffer_store_dwordx2 {v(XR, 2)}, v4, s[8:11], s31 offen{WT}', 'st')
        A('s_mov_b64 exec, -1')


def qkv4_wstep(C, st, n):
    pass


def qkv4_wrest(C):
    A = C.A
    l = C.lab('kw')
    A('s_lshl_b32 s30, s20, 12')
    A(f's_add_u32 s30, s30, {WQKVP + 16 * 32 * KB}')
    A('s_cmp_lg_u32 s3, 0')
    A(f's_cbranch_scc1 {l}')
    for k in range(4):
        A(f'buffer_load_dwordx4 {v(192 + 4 * k, 4)}, v3, s[8:11], s30 offen offset:{k * 1024}')
    A.label(l)


def att_kvdma(C, r):
    A = C.A
    A(f's_add_u32 s30, s39, {r * 16384}')
    A('s_and_b32 s30, s30, 0x1ffff')
    A(f's_add_u32 m0, s37, {r * 8 * KVT}')
    A('s_add_u32 s30, s30, s38')
    A('buffer_load_dwordx4 v3, s[8:11], s30 offen lds')
    A('buffer_load_dwordx4 v3, s[8:11], s30 offen offset:1024 lds')


def kv_flagload(C):
    A = C.A
    A('s_mov_b64 exec, 0xff')
    A('buffer_load_dword v2, v0, s[8:11], s33 offen sc1')
    A('s_mov_b64 exec, -1')


def kv_setup(C, kvf, kfl):
    A = C.A
    A(f's_mul_i32 s37, s20, {KVT}')
    A('s_lshl_b32 s38, s20, 11')
    A(f's_add_u32 s38, s38, {kvf}')
    A('s_lshr_b32 s30, s21, 1')
    A('s_lshl_b32 s39, s30, 14')
    A('v_add_u32 v0, s30, v1')
    A('v_and_b32 v0, 7, v0')
    A('v_lshlrev_b32 v0, 10, v0')
    A('s_lshl_b32 s33, s20, 7')
    A(f's_add_u32 s33, s33, {kfl}')
    kv_flagload(C)


def kv_wait(C, mask, endlab):
    A = C.A
    lp, lpd = C.lab('kp'), C.lab('kpd')
    A('s_mov_b32 s31, 0')
    A('s_mov_b64 exec, 0xff')
    A.label(lp)
    A('s_add_u32 s31, s31, 1')
    A('s_waitcnt vmcnt(0)')
    A('v_cmp_ne_u32 vcc, 0, v2')
    A(f's_and_b32 s30, vcc_lo, {mask}')
    A(f's_cmp_eq_u32 s30, {mask}')
    A(f's_cbranch_scc1 {lpd}')
    A(f's_sleep {KV_SLEEP}')
    A('buffer_load_dword v2, v0, s[8:11], s33 offen sc1')
    A(f's_cmp_lt_u32 s31, {1 << 21}')
    A(f's_cbranch_scc1 {lp}')
    A(f's_branch {endlab}')
    A.label(lpd)
    A('s_mov_b64 exec, -1')


def att_phase(C, kvf, kfl, endlab, stubs, fixed={}, pf0=None, pre_hook=None, loadq=True, early=False):
    A = C.A
    tg = C.tag
    Q, CN, S0, S1, O, P, KF, VF, VK, VV, T = 124, 8, 24, 40, 56, 72, 80, 88, 104, 105, 106
    VV1 = 111
    S = [S0, S1]
    A(f's_add_u32 s36, s19, {C.B["OF"]}')
    if loadq:
        A(f's_add_u32 s31, s19, {C.B["QF"]}')
        C.vmem(f'buffer_load_dwordx4 {v(Q, 4)}, v3, s[8:11], s31 offen', 'q')
        flag_b(C)
    def kvdma(r):
        att_kvdma(C, r)
    if pre_hook:
        pre_hook()
    A(f'v_mov_b32 {v(VK)}, v3')
    A(f'v_and_b32 {v(T)}, 15, v1')
    A(f'v_lshrrev_b32 {v(T + 1)}, 5, v1')
    A(f'v_lshl_add_u32 {v(T)}, {v(T + 1)}, 4, {v(T)}')
    A(f'v_lshlrev_b32 {v(T)}, 4, {v(T)}')
    A(f'v_add_u32 {v(VV)}, 1024, {v(T)}')
    A(f'v_add_u32 {v(VV1)}, 1536, {v(T)}')
    A(f'v_and_b32 {v(T + 1)}, 31, v1')
    A(f'v_cmp_eq_u32 vcc, 16, {v(T + 1)}')
    A(f'v_mov_b32 {v(T + 2)}, 2048')
    A('s_nop 0')
    A(f'v_cndmask_b32 {v(VV)}, {v(VV)}, {v(T + 2)}, vcc')
    A(f'v_cndmask_b32 {v(VV1)}, {v(VV1)}, {v(T + 2)}, vcc')
    A(f'v_cmp_lt_u32 vcc, 16, {v(T + 1)}')
    A(f'v_mov_b32 {v(T + 2)}, 2064')
    A('s_nop 0')
    A(f'v_cndmask_b32 {v(VV)}, {v(VV)}, {v(T + 2)}, vcc')
    A(f'v_cndmask_b32 {v(VV1)}, {v(VV1)}, {v(T + 2)}, vcc')
    for r in range(16):
        A(f'v_mov_b32 {v(O + r)}, 0')
    for m in range(4, 8):
        A(f'v_mov_b32 {v(P + m)}, 0')
    for m in range(4):
        A(f'v_mov_b32 {v(VF + 12 + m)}, 0')
        A(f'v_mov_b32 {v(P + m)}, 0x3f803f80')
    A(f'v_mul_u32_u24 {v(T)}, {KVT}, v1')
    lcw = C.lab('cw')
    A('s_cmp_lg_u32 s20, 7')
    A(f's_cbranch_scc1 {lcw}')
    A(f'ds_write_b128 {v(T)}, {v(P, 4)} offset:2048')
    A(f'ds_write_b128 {v(T)}, {v(P + 4, 4)} offset:2064')
    A.label(lcw)
    lnd = C.lab('nd')
    A('s_waitcnt vmcnt(0) lgkmcnt(0)')
    A('v_cmp_ne_u32 vcc, 0, v2')
    A('s_barrier')
    A('s_and_b32 s32, vcc_lo, 0xff')
    A('s_cmp_lg_u32 s32, 0xff')
    A(f's_cbranch_scc1 {lnd}')
    for r in range(1, 4):
        kvdma(r)
    A.label(lnd)
    C.vm = []
    C.stamp()

    def rdK(buf, t):
        A(f'ds_read_b128 {v(KF + buf * 4, 4)}, {v(VK)} offset:{t * KVT}')

    def rdV(buf, t):
        A(f'ds_read_b128 {v(VF + buf * 8, 4)}, {v(VV)} offset:{t * KVT}')
        A(f'ds_read_b128 {v(VF + buf * 8 + 4, 4)}, {v(VV1)} offset:{t * KVT}')

    rdK(0, 0)
    rdK(1, 1)
    rdV(0, 0)
    A('s_waitcnt lgkmcnt(3)')
    A(f'v_mfma_f32_32x32x16_bf16 {v(S0, 16)}, {v(KF, 4)}, {v(Q, 4)}, 0')
    A('s_nop 11')
    A(f'v_max3_f32 {v(T)}, {v(S0)}, {v(S0 + 1)}, {v(S0 + 2)}')
    for r in range(3, 15, 2):
        A(f'v_max3_f32 {v(T)}, {v(T)}, {v(S0 + r)}, {v(S0 + r + 1)}')
    A(f'v_max_f32 {v(T)}, {v(T)}, {v(S0 + 15)}')
    A(f'v_mov_b32 {v(T + 1)}, {v(T)}')
    A('s_nop 1')
    A(f'v_permlane32_swap_b32 {v(T)}, {v(T + 1)}')
    A(f'v_max_f32 {v(T)}, {v(T)}, {v(T + 1)}')
    for r in range(16):
        A(f'v_sub_f32 {v(CN + r)}, 0, {v(T)}')
    for r in range(16):
        A(f'v_sub_f32 {v(S0 + r)}, {v(S0 + r)}, {v(T)}')
    A('s_setprio 3')
    C.stamp()
    def tile(t, off, extra=None):
        cur, nxt = t & 1, (t + 1) & 1
        Sc, Sn = S[cur], S[nxt]
        if not ONEWAIT:
            A('s_waitcnt lgkmcnt(2)')
        A(f'v_mfma_f32_32x32x16_bf16 {v(Sn, 16)}, {v(KF + nxt * 4, 4)}, {v(Q, 4)}, {v(CN, 16)}')
        rdK(cur, off + 2)
        for r in range(6):
            A(f'v_exp_f32 {v(Sc + r)}, {v(Sc + r)}')
        A(f'v_mfma_f32_32x32x16_bf16 {v(O, 16)}, {v(VF + nxt * 8 + 4, 4)}, {v(P + 4, 4)}, {v(O, 16)}')
        if extra:
            extra()
        for r in range(6, 8):
            A(f'v_exp_f32 {v(Sc + r)}, {v(Sc + r)}')
        for m in range(4):
            A(f'v_cvt_pk_bf16_f32 {v(P + m)}, {v(Sc + 2 * m)}, {v(Sc + 2 * m + 1)}')
        A(f'v_exp_f32 {v(Sc + 8)}, {v(Sc + 8)}')
        A(f'v_exp_f32 {v(Sc + 9)}, {v(Sc + 9)}')
        A('s_waitcnt lgkmcnt(0)' if ONEWAIT else 's_waitcnt lgkmcnt(1)')
        A(f'v_mfma_f32_32x32x16_bf16 {v(O, 16)}, {v(VF + cur * 8, 4)}, {v(P, 4)}, {v(O, 16)}')
        rdV(nxt, off + 1)
        for r in range(10, 16):
            A(f'v_exp_f32 {v(Sc + r)}, {v(Sc + r)}')
        for m in range(4, 8):
            A(f'v_cvt_pk_bf16_f32 {v(P + m)}, {v(Sc + 2 * m)}, {v(Sc + 2 * m + 1)}')

    def bump(n):
        for rg in (VK, VV, VV1):
            A(f'v_add_u32 {v(rg)}, {n * KVT}, {v(rg)}')
    if ONEWAIT:
        A('s_waitcnt lgkmcnt(0)')
    UN = ATT_UN
    NIT = 64 // UN
    queue = list(stubs)
    nq = len(queue)
    NB = ATT_NB
    assert UN == 4
    first_pf = ATT_B2
    pf0 = pf0 or first_pf
    per = -(-len(queue) // (NIT - pf0 - ATT_PFEND))
    prio = {int(NIT * 0.5): 2, int(NIT * 0.78): 1, NIT - 1: 0}
    if PRIOV == 1:
        prio = {NIT - 1: 0}
    if PRIOV == 2:
        prio = {6: 2, 11: 1, 14: 0}
    if PRIOV == 3:
        prio = {k: (3 if k % 2 == 0 else 0) for k in range(NIT)}
    for it in range(NIT):
        if it == 1:
            ld = C.lab('dn')
            A('s_cmp_eq_u32 s32, 0xff')
            A(f's_cbranch_scc1 {ld}')
            kv_flagload(C)
            kv_wait(C, 0xff, endlab)
            for r in range(1, 4):
                kvdma(r)
            A.label(ld)
            for r in range(4, 8):
                kvdma(r)
            A('s_waitcnt vmcnt(12)')
            A('s_barrier')
        if it == first_pf:
            A('s_waitcnt vmcnt(0)')
            A('s_barrier')
        if it in prio:
            A(f's_setprio {prio[it]}')
        if it in fixed:
            if FINE == 2:
                C.stamp()
            fixed[it]()
            if FINE == 2:
                C.stamp()
        if INLINE:
            ntl = (NIT - pf0 - ATT_PFEND) * UN
            for tt in range(UN):
                t = it * UN + tt
                ex = None
                if it >= pf0 and queue:
                    k = t - pf0 * UN
                    n = (nq * (k + 1)) // ntl - (nq * k) // ntl
                    fs = [queue.pop(0) for _ in range(min(n, len(queue)))]
                    ex = lambda fs=fs: [f() for f in fs]
                tile(t, t % 24 if t < 48 else t - 48, ex)
                if t in (23, 47):
                    bump(24)
                if t == 63:
                    bump(16)
            continue
        if it >= pf0:
            for _ in range(per):
                if queue:
                    queue.pop(0)()
        A(f's_call_b64 s[34:35], att_body{it % NB}')
    assert not queue
    A(f'v_mfma_f32_32x32x16_bf16 {v(O, 16)}, {v(VF + 8 + 4, 4)}, {v(P + 4, 4)}, {v(O, 16)}')
    A('s_mov_b32 s39, 0')
    C.stamp()
    A('s_waitcnt lgkmcnt(0)')
    A('s_nop 10')
    A.label(f'{tg}_fin')
    A(f'v_mov_b32 {v(T)}, {v(O + 8)}')
    A(f'v_mov_b32 {v(T + 1)}, {v(O + 8)}')
    A(f'v_mul_f32 {v(T + 2)}, 0, {v(O)}')
    A(f'v_fma_f32 {v(T + 2)}, {v(O + 1)}, 0, {v(T + 2)}')
    A(f'v_permlane32_swap_b32 {v(T)}, {v(T + 1)}')
    for r in range(2, 8):
        A(f'v_fma_f32 {v(T + 2)}, {v(O + r)}, 0, {v(T + 2)}')
    A(f'v_add_f32 {v(T + 2)}, {v(T + 2)}, {v(T)}')
    A(f'v_mov_b32 {v(T + 3)}, {f32(2.0 ** 30)}')
    A(f'v_cmp_nle_f32 vcc, {v(T + 2)}, {v(T + 3)}')
    A(f'v_rcp_f32 {v(T)}, {v(T)}')
    A('s_cmp_eq_u32 s39, 99')
    A(f's_cbranch_scc1 {tg}_store')
    A(f's_cbranch_vccnz {tg}_slow')
    A.label(f'{tg}_store')
    for r in range(8):
        A(f'v_mul_f32 {v(O + r)}, {v(T)}, {v(O + r)}')
    for m in range(4):
        A(f'v_cvt_pk_bf16_f32 {v(P + m)}, {v(O + 2 * m)}, {v(O + 2 * m + 1)}')
    C.vmem(f'buffer_store_dwordx4 {v(P, 4)}, v3, s[8:11], s36 offen{WT}', 'st')

    def tail(with_body):
        if with_body and not INLINE:
            for b in range(NB):
                A.raw('.p2align 6')
                A.label(f'att_body{b}')
                for t in range(UN):
                    tile(t, b * UN + t)
                if b == NB - 1:
                    bump(NB * UN)
                A('s_setpc_b64 s[34:35]')
        A.label(f'{tg}_slow')
        A(f'v_subrev_u32 {v(VK)}, {64 * KVT}, {v(VK)}')
        A(f'v_subrev_u32 {v(VV)}, {64 * KVT}, {v(VV)}')
        A(f'v_subrev_u32 {v(VV1)}, {64 * KVT}, {v(VV1)}')
        for r in range(16):
            A(f'v_mov_b32 {v(O + r)}, 0')
        M = T + 4
        A(f'v_sub_f32 {v(M)}, 0, {v(CN)}')
        A.label(f'{tg}_sloop')
        rdK(0, 0)
        rdV(0, 0)
        A('s_waitcnt lgkmcnt(0)')
        A(f'v_mfma_f32_32x32x16_bf16 {v(S0, 16)}, {v(KF, 4)}, {v(Q, 4)}, 0')
        A('s_nop 11')
        A(f'v_max3_f32 {v(T)}, {v(S0)}, {v(S0 + 1)}, {v(S0 + 2)}')
        for r in range(3, 15, 2):
            A(f'v_max3_f32 {v(T)}, {v(T)}, {v(S0 + r)}, {v(S0 + r + 1)}')
        A(f'v_max3_f32 {v(T)}, {v(T)}, {v(S0 + 15)}, {v(M)}')
        A(f'v_mov_b32 {v(T + 1)}, {v(T)}')
        A('s_nop 1')
        A(f'v_permlane32_swap_b32 {v(T)}, {v(T + 1)}')
        A(f'v_max_f32 {v(T)}, {v(T)}, {v(T + 1)}')
        A(f'v_sub_f32 {v(T + 1)}, {v(M)}, {v(T)}')
        A(f'v_exp_f32 {v(T + 1)}, {v(T + 1)}')
        A(f'v_mov_b32 {v(M)}, {v(T)}')
        for r in range(16):
            A(f'v_sub_f32 {v(S0 + r)}, {v(S0 + r)}, {v(T)}')
        for r in range(16):
            A(f'v_exp_f32 {v(S0 + r)}, {v(S0 + r)}')
        for r in range(16):
            A(f'v_mul_f32 {v(O + r)}, {v(T + 1)}, {v(O + r)}')
        for m in range(8):
            A(f'v_cvt_pk_bf16_f32 {v(P + m)}, {v(S0 + 2 * m)}, {v(S0 + 2 * m + 1)}')
        A('s_nop 1')
        A(f'v_mfma_f32_32x32x16_bf16 {v(O, 16)}, {v(VF, 4)}, {v(P, 4)}, {v(O, 16)}')
        A(f'v_mfma_f32_32x32x16_bf16 {v(O, 16)}, {v(VF + 4, 4)}, {v(P + 4, 4)}, {v(O, 16)}')
        A(f'v_add_u32 {v(VK)}, {KVT}, {v(VK)}')
        A(f'v_add_u32 {v(VV)}, {KVT}, {v(VV)}')
        A(f'v_add_u32 {v(VV1)}, {KVT}, {v(VV1)}')
        A('s_nop 11')
        A('s_add_u32 s39, s39, 1')
        A('s_cmp_lt_u32 s39, 64')
        A(f's_cbranch_scc1 {tg}_sloop')
        A('s_mov_b32 s39, 99')
        A(f's_branch {tg}_fin')
    return tail


V_WGU = 112


def gu_waddr(C):
    A = C.A
    A('s_mul_i32 s30, s22, 7')
    A('s_min_u32 s31, s20, 6')
    A('s_add_u32 s40, s30, s31')
    A('s_lshl_b32 s30, s40, 15')
    A(f's_add_u32 s30, s30, {WGUP}')
    A(f'v_add_u32 {v(V_WGU)}, s30, v3')


def gu_wload(C, ks):
    so, im = soff(ks)
    C.vmem(f'buffer_load_dwordx4 {v(128 + 4 * ks, 4)}, {v(V_WGU)}, s[8:11], {so} offen offset:{im}', 'wg')


def gu_pre(C):
    A = C.A
    CS = 112
    A('v_mov_b32 v15, v113')
    A('v_mov_b32 v9, v114')
    A(f'v_mov_b32 v14, {v(V_WGU)}')
    A('s_lshl_b32 s30, s21, 2')
    A('s_add_u32 s30, s30, s25')
    A('s_lshl_b32 s30, s30, 15')
    A('s_lshl_b32 s31, s26, 11')
    A('s_add_u32 s30, s30, s31')
    A(f's_add_u32 s30, s30, {C.B["XB"]}')
    A('v_add_u32 v13, s30, v3')
    A('s_lshl_b32 s48, s25, 15')
    A('s_add_u32 s48, s48, s31')
    A('v_add_u32 v7, 0x10000, v3')
    A('v_lshrrev_b32 v11, 5, v1')
    A('v_lshlrev_b32 v11, 4, v11')
    A('s_min_u32 s30, s20, 6')
    A('s_lshl_b32 s30, s30, 7')
    A(f's_add_u32 s30, s30, {132 * KB}')
    A('v_add_u32 v10, s30, v11')
    A('v_and_b32 v12, 31, v1')
    A('v_lshlrev_b32 v12, 3, v12')
    A('v_lshl_add_u32 v12, v11, 8, v12')
    A('s_lshl_b32 s30, s21, 15')
    A(f's_add_u32 s30, s30, {C.B["SXB"]}')
    A('v_add_u32 v12, s30, v12')
    A(f'v_add_u32 v8, {128 * KB}, v3')


def gu_main(C, after_store=None):
    A = C.A
    ACC, XF, CS = 16, 80, 112
    STR = [4, 10, 240, 244]

    def dma(c):
        A(f's_add_u32 m0, s48, {c * 4096}')
        so = '0' if c == 0 else s(40 + c)
        A('s_nop 0')
        for k in range(2):
            C.vmem(f'buffer_load_dwordx4 v13, s[8:11], {so} offen offset:{k * 1024} lds', f'x{c}')
    dma(0)
    dma(1)

    def rd(ks):
        buf = ks & 1
        for i in range(4):
            base = 'v3' if i < 2 else 'v7'
            A(f'ds_read_b128 {v(XF + buf * 16 + i * 4, 4)}, {base} offset:{(i & 1) * 32768 + ks * 1024}')

    def stats_load(i):
        for e in range(16):
            C.vmem(f'buffer_load_dwordx2 {v(ACC + (i & 1) * 32 + 2 * e, 2)}, v12, s[8:11], {"0" if i == 0 else s(40 + 2 * i)} offen offset:{e * 256}', f's{i}')

    def stats_sum(i):
        b = ACC + (i & 1) * 32
        C.wait(f's{i}')
        for stp in (16, 8, 4, 2):
            for e in range(stp):
                A(f'v_add_f32 {v(b + e)}, {v(b + e)}, {v(b + e + stp)}')
        A(f'v_mov_b32 {v(b + 2)}, {v(b)}')
        A(f'v_mov_b32 {v(b + 3)}, {v(b + 1)}')
        A('s_nop 1')
        A(f'v_permlane32_swap_b32 {v(b)}, {v(b + 2)}')
        A(f'v_permlane32_swap_b32 {v(b + 1)}, {v(b + 3)}')
        A(f'v_add_f32 {v(b)}, {v(b)}, {v(b + 2)}')
        A(f'v_add_f32 {v(b + 1)}, {v(b + 1)}, {v(b + 3)}')
        A(f'v_mul_f32 {v(b)}, {f32(-1.0 / 512)}, {v(b)}')
        A(f'v_mul_f32 {v(b + 1)}, {f32(1.0 / 512)}, {v(b + 1)}')
        A(f'v_fma_f32 {v(b + 1)}, -{v(b)}, {v(b)}, {v(b + 1)}')
        A(f'v_max_f32 {v(b + 1)}, 0, {v(b + 1)}')
        A(f'v_add_f32 {v(b + 1)}, {f32(1e-5)}, {v(b + 1)}')
        A(f'v_rcp_f32 {v(b + 2)}, {v(b + 1)}')
        A(f'v_mov_b32 {v(b + 1)}, {v(b)}')
        A(f'v_mov_b32 {v(b + 3)}, {v(b + 2)}')
        A(f'ds_write_b128 v8, {v(b, 4)} offset:{i * 1024}')
        A('s_waitcnt lgkmcnt(0)')

    def loop(idle):
        C.wait('x0')
        A('s_barrier')
        C.stamp()
        if not idle:
            rd(0)
        for ks in range(32):
            if ks + 1 < 32:
                if (ks + 1) in GU_BARS:
                    C.wait(f'x{GU_BARS[ks + 1]}')
                    A('s_barrier')
                if not idle:
                    rd(ks + 1)
                    if ks == 28:
                        for g in range(4):
                            A(f'ds_read_b128 {v(CS + g * 4, 4)}, v10 offset:{g * 32}')
                        A('s_waitcnt lgkmcnt(8)')
                    elif ks == 30:
                        for i in range(4):
                            A(f'ds_read_b128 {v(STR[i], 4)}, v8 offset:{i * 1024}')
                        A('s_waitcnt lgkmcnt(8)')
                    else:
                        A('s_waitcnt lgkmcnt(4)')
            elif not idle:
                A('s_waitcnt lgkmcnt(0)')
            buf = ks & 1
            todo = []
            if ks == 10:
                C.flagb = True
                flag_b(C)
            if ks < 6:
                todo.append(lambda: dma(ks + 2))
            if ks == 16 + WO_TAIL and not idle:
                C.wait('wg')
            if 6 <= ks < 6 + 16 - WO_TAIL and not idle:
                k2 = 16 + WO_TAIL + ks - 6
                so, im = soff(k2)
                todo.append(lambda k2=k2, so=so, im=im: C.vmem(f'buffer_load_dwordx4 {v(128 + 4 * k2, 4)}, v14, s[8:11], {so} offen offset:{im}', 'wg'))
            if ks >= GU_WD0:
                nleft = 28 - len(wdone)
                for st in [st for st in range(28) if st < ks and st not in wdone][:(2 if nleft > 31 - ks else 1)]:
                    todo.append(lambda st=st: g3_wload(C, (15, 9), st, 128))
                    wdone.add(st)
            for i in range(4):
                if not idle and not (GU_TAIL and (ks == 31 or (ks == 30 and i >= 2))):
                    c = '0' if ks == 0 else v(ACC + i * 16, 16)
                    if GU16:
                        for t2 in range(2):
                            aa = ACC + i * 16 + ((ks & 1) * 2 + t2) * 4
                            A(f'v_mfma_f32_16x16x32_bf16 {v(aa, 4)}, {v(128 + 4 * (ks ^ t2 if ks > 1 else ks), 4)}, {v(XF + buf * 16 + i * 4, 4)}, {"0" if ks < 2 else v(aa, 4)}')
                    else:
                        A(f'v_mfma_f32_32x32x16_bf16 {v(ACC + i * 16, 16)}, {v(128 + 4 * ks, 4)}, {v(XF + buf * 16 + i * 4, 4)}, {c}')
                if i < 3 and todo:
                    f_ = todo.pop(0)
                    if not (GU_NOW and ks >= 6):
                        f_()
            if idle:
                if ks == 6:
                    stats_load(0)
                    stats_load(1)
                if ks == 8:
                    stats_sum(0)
                    stats_load(2)
                    stats_sum(1)
                    stats_load(3)
                if ks == 12:
                    stats_sum(2)
                    stats_sum(3)
                    A(f's_mul_i32 s30, s22, {7 * 128}')
                    A(f's_add_u32 s30, s30, {CSP}')
                    for kp in range(8):
                        C.vmem(f'buffer_load_dwordx4 {v(ACC + 4 * kp, 4)}, v3, s[8:11], s30 offen', 'cp')
                        if kp < 7:
                            A(f's_add_u32 s30, s30, {3584 * 4}')
                if ks == 16:
                    C.wait('cp')
                    for stp in (16, 8, 4):
                        for e in range(stp):
                            A(f'v_add_f32 {v(ACC + e)}, {v(ACC + e)}, {v(ACC + e + stp)}')
                    A(f'v_add_u32 v10, {132 * KB}, v3')
                    A(f'ds_write_b128 v10, {v(ACC, 4)}')
                    A('s_waitcnt lgkmcnt(0)')
        assert len(wdone) == 28
        C.stamp()
        if idle:
            if after_store:
                after_store()
            return
        P = XF

        def epi(i):
            acc = ACC + i * 16
            for r in range(0, 16, 2):
                A(f'v_pk_fma_f32 {v(acc + r, 2)}, {v(STR[i], 2)}, {v(CS + r, 2)}, {v(acc + r, 2)}')
            for r in range(0, 8, 2):
                A(f'v_pk_mul_f32 {v(acc + r, 2)}, {v(acc + r, 2)}, {v(acc + 8 + r, 2)}')
            for r in range(0, 8, 2):
                A(f'v_pk_mul_f32 {v(acc + r, 2)}, {v(acc + r, 2)}, {v(STR[i] + 2, 2)}')
            pp = acc + 8
            for m in range(4):
                A(f'v_cvt_pk_bf16_f32 {v(pp + m)}, {v(acc + 2 * m)}, {v(acc + 2 * m + 1)}')
            C.vmem(f'buffer_store_dwordx4 {v(pp, 4)}, v3, s[8:11], s30 offen{WT}', 'st')
            if i < 3:
                A(f's_add_u32 s30, s30, {112 * KB}')

        def mm(i, ks):
            A(f'v_mfma_f32_32x32x16_bf16 {v(ACC + i * 16, 16)}, {v(128 + 4 * ks, 4)}, {v(XF + (ks & 1) * 16 + i * 4, 4)}, {v(ACC + i * 16, 16)}')
        A(f's_mul_i32 s30, s21, {4 * 112}')
        A('s_add_u32 s30, s30, s40')
        A('s_lshl_b32 s30, s30, 10')
        A(f's_add_u32 s30, s30, {C.B["HF"]}')
        if GU_TAIL:
            A('s_waitcnt lgkmcnt(0)')
            mm(0, 31)
            mm(2, 30)
            mm(1, 31)
            mm(3, 30)
            A('s_nop 8')
            epi(0)
            mm(2, 31)
            mm(3, 31)
            epi(1)
            epi(2)
            epi(3)
        else:
            A('s_nop 4')
            for i in range(4):
                epi(i)
        if after_store:
            after_store()

    ls, le = C.lab('gs'), C.lab('ge')
    A('s_cmp_eq_u32 s20, 7')
    A(f's_cbranch_scc1 {ls}')
    save, ns = list(C.vm), C.nstamp
    wdone = set()
    loop(False)
    A(f's_branch {le}')
    A.label(ls)
    C.vm, C.nstamp = list(save), ns
    wdone = set()
    loop(True)
    A.label(le)
    C.vm = ['st']


def swap_add(A, ra, rb):
    A(f'v_permlane32_swap_b32 {v(ra)}, {v(rb)}')
    A(f'v_add_f32 {v(ra)}, {v(ra)}, {v(rb)}')


def pre_part(C, end):
    A = C.A
    A('s_cmp_ge_u32 s2, 256')
    A(f's_cbranch_scc1 {end}')
    A('s_load_dwordx2 s[12:13], s[0:1], 0')
    A('s_load_dwordx2 s[16:17], s[0:1], 8')
    A('s_load_dwordx2 s[52:53], s[0:1], 16')
    A('s_load_dwordx2 s[56:57], s[0:1], 24')
    A('s_load_dwordx2 s[4:5], s[0:1], 80')
    for d, sz in ((12, 2048 * 1024), (16, 512 * 1024), (52, 512 * 32), (56, 512 * 32), (4, 256)):
        A(f's_mov_b32 {s(d + 2)}, {sz}')
        A(f's_mov_b32 {s(d + 3)}, 0x20000')
    setup(C, False, end)
    C.stamp()
    if TLBW:
        A('s_lshl_b32 s30, s20, 3')
        A(f's_add_u32 s30, s30, 32')
        A('s_cmp_eq_u32 s20, 1')
        A('s_cselect_b32 s30, 8, s30')
        A('s_load_dwordx2 s[32:33], s[0:1], s30')
        A('s_mov_b32 s31, 8192')
        A('s_cmp_ge_u32 s20, 2')
        A('s_cselect_b32 s31, 28672, s31')
        A('s_cmp_eq_u32 s20, 6')
        A('s_cselect_b32 s31, 4, s31')
        A('s_cmp_eq_u32 s20, 7')
        A(f's_cselect_b32 s31, {TLBW}, s31')
        A('v_mul_lo_u32 v4, v1, s31')
        A('s_waitcnt lgkmcnt(0)')
        A('global_load_dword v127, v4, s[32:33]')
    A('s_add_u32 s30, s21, 1')
    A('s_and_b32 s30, s30, 3')
    A('s_lshl_b32 s30, s30, 2')
    A('s_xor_b32 s30, s30, s22')
    A('s_add_u32 s30, s30, s20')
    A('s_cmp_lg_u32 s30, 0')
    A('s_cbranch_scc1 pr_z0')
    for r in range(4):
        A(f'v_mov_b32 {v(8 + r)}, 0')
    A('v_lshrrev_b32 v4, 4, v1')
    A('v_and_b32 v5, 15, v1')
    A('v_lshlrev_b32 v5, 4, v5')
    A('v_lshl_add_u32 v4, v4, 12, v5')
    A('s_lshl_b32 s30, s21, 8')
    A(f's_add_u32 s30, s30, {FLG}')
    for k in range(3):
        A('buffer_store_dwordx4 v[8:11], v4, s[8:11], s30 offen sc0 sc1')
        A('s_add_u32 s30, s30, 16384')
    A('v_lshlrev_b32 v4, 7, v1')
    A(f's_mul_i32 s30, s21, {64 * 128}')
    A(f's_add_u32 s30, s30, {PFL}')
    A('buffer_store_dwordx4 v[8:11], v4, s[8:11], s30 offen sc0 sc1')
    A('v_mov_b32 v5, 1')
    A('s_mov_b64 exec, 1')
    A('s_waitcnt vmcnt(0)')
    A('buffer_atomic_add v5, v8, s[4:7], 0 offen sc1')
    A('s_mov_b64 exec, -1')
    A('s_nop 1')
    A.label('pr_z0')
    KST, KW, KR, T, EX, XR = 240, 192, 224, 108, 96, 32
    WST, CSQ, CSKV = 96 * KB, ST4 + 9 * KB, ST4 + 10 * KB
    A('s_mov_b64 s[36:37], s[16:17]')
    A(f's_mov_b32 s38, {512 * 1024}')
    A('s_mov_b32 s39, 0x20000')
    g4_ids(C)
    A('s_lshl_b32 s30, s20, 11')
    A('s_cmp_lg_u32 s3, 0')
    A('s_cbranch_scc1 pr_k0')
    for k in range(4):
        A(f'buffer_load_dwordx4 {v(KST + 4 * k, 4)}, v3, {"s[52:55]" if k < 2 else "s[56:59]"}, s30 offen offset:{(k & 1) * 1024}')
    A.label('pr_k0')
    A('v_lshrrev_b32 v4, 3, v1')
    A('v_and_b32 v5, 7, v1')
    A('v_lshrrev_b32 v6, 4, v1')
    A('v_xor_b32 v6, v6, v5')
    A('v_lshlrev_b32 v7, 10, v4')
    A('v_lshl_add_u32 v8, v6, 4, v7')
    A('v_xor_b32 v9, 64, v8')
    A('s_lshl_b32 s30, s18, 15')
    A('s_lshl_b32 s31, s20, 7')
    A('s_add_u32 s30, s30, s31')
    A('s_lshl_b32 s32, s20, 12')
    for i in range(4):
        A(f's_add_u32 m0, s32, {KVR4 + i * 1024}')
        A('s_nop 0')
        C.vmem(f'buffer_load_dwordx4 {v(8 + (i & 1))}, s[12:15], s30 offen lds', 'x')
        A('s_add_u32 s30, s30, 8192')
    A('v_lshrrev_b32 v4, 2, v1')
    A('v_and_b32 v5, 3, v1')
    A('v_lshlrev_b32 v10, 10, v4')
    A('v_lshl_add_u32 v10, v5, 4, v10')
    A('s_lshl_b32 s31, s26, 18')
    A('s_bfe_u32 s30, s19, 0x4000b')
    A('s_lshl_b32 s30, s30, 6')
    A('s_add_u32 s31, s31, s30')
    A('s_lshl_b32 s51, s20, 13')
    A(f's_add_u32 s51, s51, {WST}')
    A('s_mov_b32 s50, s31')
    A('v_mov_b32 v88, v10')
    A('s_and_b32 s33, s22, 3')
    A(f's_lshl_b32 s33, s33, 16' if WROT else 's_mov_b32 s33, 0')

    def wloads():
        for i in range(16):
            A(f's_xor_b32 s30, s33, {G4_ORD[i] * 16384}')
            A('s_add_u32 s30, s30, s50')
            if i < 8:
                A(f's_add_u32 m0, s51, {i * 1024}')
                A('s_nop 0')
                A('buffer_load_dwordx4 v88, s[36:39], s30 offen lds')
            else:
                A(f'buffer_load_dwordx4 {v(128 + 4 * i, 4)}, v88, s[36:39], s30 offen')
    A('s_cmp_eq_u32 s3, 0')
    A('s_cbranch_scc1 pr_w1')
    A('s_barrier')
    wloads()
    A('s_waitcnt vmcnt(16)')
    A.label('pr_w1')
    C.stamp()
    A('v_and_b32 v64, 31, v1')
    A('v_lshrrev_b32 v65, 5, v1')
    A('v_lshlrev_b32 v66, 7, v64')
    A('v_lshl_add_u32 v66, v65, 3, v66')
    A('v_bfe_u32 v67, v1, 1, 3')
    A('v_lshl_add_u32 v66, v67, 4, v66')
    A(f's_add_u32 s30, s32, {KVR4}')
    A('v_add_u32 v66, s30, v66')
    A('v_bfe_u32 v67, v1, 2, 2')
    A('v_lshl_add_u32 v67, v65, 2, v67')
    A('v_lshlrev_b32 v68, 3, v5')
    A('v_bfe_u32 v69, v1, 4, 1')
    A('v_lshl_add_u32 v70, v67, 5, v68')
    A('v_lshl_add_u32 v70, v69, 11, v70')
    A('v_add_u32 v70, s30, v70')
    A('v_lshl_add_u32 v71, v67, 6, v68')
    A('v_lshl_add_u32 v71, v69, 5, v71')
    A('s_lshl_b32 s30, s26, 5')
    A('v_xor_b32 v71, s30, v71')
    A('v_add_u32 v71, s51, v71')
    A('v_add_u32 v72, s51, v3')
    A('v_mov_b32 v73, 0x3f803f80')
    A('v_lshlrev_b32 v74, 2, v64')
    A('s_lshl_b32 s30, s20, 7')
    A(f's_add_u32 s31, s30, {CSKV}')
    A('v_add_u32 v75, s31, v74')
    A('s_lshl_b32 s31, s26, 6')
    A('v_xor_b32 v74, s31, v74')
    A(f's_add_u32 s30, s30, {CSQ}')
    A('v_add_u32 v74, s30, v74')
    A('v_lshlrev_b32 v76, 4, v65')
    A('s_add_u32 s30, s30, s31')
    A('v_add_u32 v77, s30, v76')
    A('v_xor_b32 v78, 512, v77')
    A('s_lshl_b32 s30, s25, 5')
    A(f's_add_u32 s30, s30, {CSKV}')
    A('v_add_u32 v79, s30, v76')
    g4_pre(C, 'qkv', XA, resbase=0, raw=True)
    A('s_lshr_b32 s30, s33, 4')
    A('s_lshl_b32 s31, s20, 12')
    A('s_xor_b32 s30, s30, s31')
    A(f's_add_u32 s30, s30, {XF0}')
    A('v_add_u32 v12, s30, v3')
    A('v_mov_b32 v0, 0')
    A('v_mov_b32 v4, 1')
    for ch in range(8):
        A(f'v_xor_b32 {v(80 + ch)}, {ch << 4}, v66')

    def front():
        A('s_cmp_lg_u32 s3, 0')
        A('s_cbranch_scc1 pr_w2')
        A('s_waitcnt vmcnt(0)')
        A.label('pr_w2')
        C.vm = []
        C.stamp()
        for ch in range(8):
            A(f'ds_read_b64 {v(KR + 2 * ch, 2)}, {v(80 + ch)}')
        A('s_waitcnt lgkmcnt(0)')
        for k in range(4):
            A(f'ds_write_b128 v12, {v(KR + 4 * k, 4)} offset:{k * 1024}')
        for r in range(8):
            for e in range(2):
                x = v(KR + 2 * r + e)
                A(f'v_dot2_f32_bf16 {v(T + 2 * e)}, {x}, v73, {"0" if r == 0 else v(T + 2 * e)}')
                A(f'v_dot2_f32_bf16 {v(T + 2 * e + 1)}, {x}, {x}, {"0" if r == 0 else v(T + 2 * e + 1)}')
        A('s_nop 0')

    def kvw():
        for k in range(4):
            A(f'ds_write_b128 v14, {v(KST + 4 * k, 4)} offset:{k * 1024}')
        A('s_waitcnt lgkmcnt(4)')
        for st in range(4):
            for h2 in range(2):
                A(f'ds_read_b64_tr_b16 {v(KW + 4 * st + 2 * h2, 2)}, v70 offset:{st * 512 + h2 * 256}')
        A('s_waitcnt lgkmcnt(0)')
        for r in range(8):
            for e in range(2):
                A(f'v_dot2_f32_bf16 {v(80 + e)}, {v(KW + 2 * r + e)}, v73, {"0" if r == 0 else v(80 + e)}')
        A('s_nop 2')
        A('v_add_f32 v80, v80, v81')
        A('v_mov_b32 v81, v80')
        A('s_nop 1')
        swap_add(A, 80, 81)
        A('ds_write_b32 v75, v80')

    def kvcs0():
        for ww in range(8):
            A(f'ds_read_b128 {v(XR + 4 * ww, 4)}, v79 offset:{ww * 128}')

    def kvcs1():
        A('s_waitcnt lgkmcnt(0)')
        for stp in (16, 8):
            for r in range(stp):
                A(f'v_add_f32 {v(XR + r)}, {v(XR + r)}, {v(XR + stp + r)}')
        for r in range(4):
            A(f'v_add_f32 {v(EX + 8 + r)}, {v(XR + r)}, {v(XR + 4 + r)}')

    def zchk():
        lz, lzd = C.lab('z'), C.lab('zd')
        A('s_mov_b32 s31, 0')
        A('s_mov_b64 exec, 1')
        A.label(lz)
        A('buffer_load_dword v2, v0, s[4:7], 0 offen sc1')
        A('s_waitcnt vmcnt(0)')
        A('v_cmp_le_u32 vcc, 16, v2')
        A('s_add_u32 s31, s31, 1')
        A('s_cmp_eq_u64 vcc, 1')
        A(f's_cbranch_scc1 {lzd}')
        A('s_sleep 8')
        A(f's_cmp_lt_u32 s31, {1 << 20}')
        A(f's_cbranch_scc1 {lz}')
        A(f's_branch {end}')
        A.label(lzd)
        A('s_mov_b64 exec, -1')

    def wprep():
        A('s_cmp_lg_u32 s3, 0')
        A('s_cbranch_scc1 pr_w3')
        wloads()
        A.label('pr_w3')
        zchk()
        C.vm = []
        C.stamp()


    def tr(i):
        for h2 in range(2):
            A(f'ds_read_b64_tr_b16 {v(128 + 4 * i + 2 * h2, 2)}, v71 offset:{(i % 8) * 1024 + h2 * 512}')

    def csdot(r0, r1):
        for r in range(r0, r1):
            for e in range(4):
                A(f'v_dot2_f32_bf16 {v(80 + e)}, {v(128 + 4 * r + e)}, v73, {"0" if r == 0 else v(80 + e)}')

    def loop(rd, mf):
        for i in range(8):
            tr(i)
            if i == 5:
                A('s_waitcnt lgkmcnt(6)')
        ln_stats(A, T)
        A('s_waitcnt lgkmcnt(0)')
        for i in range(4):
            rd(i)
        for i in range(8):
            A(f'ds_write_b128 v72, {v(160 + 4 * i, 4)} offset:{i * 1024}')
        csdot(0, 8)
        A('s_waitcnt lgkmcnt(0)')
        for i in range(4, 8):
            rd(i)
        for i in range(8):
            if i == 4:
                A('s_waitcnt lgkmcnt(8)')
            mf(i)
            if i < 4:
                tr(8 + i)
            else:
                A('s_waitcnt lgkmcnt(9)')
                tr(8 + i)
                rd(4 + i)
        for i in range(8, 16):
            if i == 8:
                A('s_waitcnt lgkmcnt(9)')
            elif i < 12:
                A(f's_waitcnt lgkmcnt({9 - 2 * (i - 8)})')
            else:
                A(f's_waitcnt lgkmcnt({15 - i})')
            mf(i)
            if i < 12:
                rd(4 + i)

    def cs0():
        csdot(8, 16)
        A('s_nop 2')
        A('v_add_f32 v80, v80, v81')
        A('v_add_f32 v82, v82, v83')
        A('v_add_f32 v80, v80, v82')
        A('v_mov_b32 v81, v80')
        A('s_nop 1')
        swap_add(A, 80, 81)
        A('ds_write_b32 v74, v80')

    def cs():
        for h2 in range(2):
            A(f'ds_read_b128 {v(EX + 4 * h2, 4)}, v77 offset:{h2 * 32}')
            A(f'ds_read_b128 {v(XR + 4 * h2, 4)}, v78 offset:{h2 * 32}')
        A('s_waitcnt lgkmcnt(0)')
        for r in range(8):
            A(f'v_add_f32 {v(EX + r)}, {v(EX + r)}, {v(XR + r)}')
        for r in range(12):
            A(f'v_mov_b32 {v(208 + r)}, {v(EX + r)}')

    g4_main(C, 'qkv', kvf=KVF, kfl=KFL, raw=dict(front=front, kvw=kvw, kvcs0=kvcs0, kvcs1=kvcs1, zchk=zchk, wprep=wprep, cs=cs, cs0=cs0, loop=loop), endlab=end)
    C.stamp()


def wq_store(C):
    A = C.A
    A('s_and_b32 s30, s18, 0x33')
    A('s_cmp_lg_u32 s30, 0')
    A('s_cbranch_scc1 pr_w0')
    g4_waddr(C, 112, WQKVP)
    for q4 in (3, 2, 1, 0):
        if q4:
            A(f's_cmp_lg_u32 s21, {q4}')
            A(f's_cbranch_scc1 pr_ws{q4}')
        for i in range(4 * q4, 4 * q4 + 4):
            so, im = soff(G4_ORD[i])
            A(f'buffer_store_dwordx4 {v(128 + 4 * i, 4)}, v112, s[8:11], {so} offen offset:{im} sc0 sc1')
        if q4:
            A('s_branch pr_w0')
            A.label(f'pr_ws{q4}')
    A('v_lshrrev_b32 v113, 5, v1')
    A('v_lshlrev_b32 v113, 4, v113')
    A('s_lshr_b32 s31, s19, 4')
    A(f's_add_u32 s31, s31, {CSQKV}')
    A('s_mov_b32 exec_lo, 1')
    A('s_mov_b32 exec_hi, 1')
    A('buffer_store_dwordx4 v[208:211], v113, s[8:11], s31 offen sc0 sc1')
    A('buffer_store_dwordx4 v[212:215], v113, s[8:11], s31 offen offset:32 sc0 sc1')
    A('s_mov_b64 exec, -1')
    A('s_cmp_lg_u32 s22, 0')
    A('s_cbranch_scc1 pr_w0')
    A('s_lshl_b32 s30, s20, 12')
    A(f's_add_u32 s30, s30, {WQKVP + 16 * 32 * KB}')
    for k in range(4):
        A(f'buffer_store_dwordx4 {v(192 + 4 * k, 4)}, v3, s[8:11], s30 offen offset:{k * 1024} sc0 sc1')
    A('s_cmp_ge_u32 s20, 4')
    A('s_cbranch_scc1 pr_w0')
    A('s_lshl_b32 s31, s20, 5')
    A(f's_add_u32 s31, s31, {CSQKV + 2048}')
    A('s_mov_b32 exec_lo, 1')
    A('s_mov_b32 exec_hi, 1')
    A('buffer_store_dwordx4 v[216:219], v113, s[8:11], s31 offen sc0 sc1')
    A('s_mov_b64 exec, -1')
    A.label('pr_w0')


def pack_ptrs(A):
    A('s_load_dwordx2 s[4:5], s[0:1], 32')
    A('s_load_dwordx4 s[52:55], s[0:1], 48')
    A('s_load_dwordx2 s[16:17], s[0:1], 64')


def pack_issue(C):
    A = C.A
    A('s_mul_i32 s30, s2, 3')
    A('s_add_u32 s30, s30, s20')
    A('s_mov_b32 s58, s30')
    A('s_cmp_lt_u32 s20, 3')
    A('s_cselect_b32 s57, 1, 0')
    A('s_cmp_lt_u32 s30, 736')
    A('s_cselect_b32 s57, s57, 0')
    A('s_cmp_eq_u32 s57, 0')
    A('s_cselect_b32 s30, 0, s30')
    A('s_cmp_lt_u32 s30, 64')
    A('s_cbranch_scc1 pk_jwo')
    A('s_cmp_lt_u32 s30, 512')
    A('s_cbranch_scc1 pk_jgu')
    A('s_sub_u32 s30, s30, 512')
    A('s_mov_b64 s[4:5], s[16:17]')
    A(f's_mov_b32 s6, {1792 * 1024}')
    A('s_mov_b32 s50, 1024')
    A('s_and_b32 s31, s30, 7')
    A('s_lshr_b32 s30, s30, 3')
    A('s_lshl_b32 s51, s30, 16')
    A('s_lshl_b32 s56, s31, 7')
    A('s_add_u32 s51, s51, s56')
    A(f's_mul_i32 s56, s31, {2 * 112 * KB}')
    A('s_lshl_b32 s30, s30, 12')
    A('s_add_u32 s56, s56, s30')
    A(f's_add_u32 s56, s56, {WDP}')
    A(f's_mov_b32 s52, {112 * KB}')
    A('s_mov_b32 s53, 256')
    A(f's_mov_b32 s54, {G1.CSDUMMY}')
    A('s_branch pk_jgo')
    A.label('pk_jwo')
    A(f's_mov_b32 s6, {512 * 1024}')
    A('s_mov_b32 s50, 1024')
    A('s_lshr_b32 s31, s30, 3')
    A('s_and_b32 s30, s30, 7')
    A('s_lshl_b32 s51, s30, 16')
    A('s_lshl_b32 s56, s31, 7')
    A('s_add_u32 s51, s51, s56')
    A('s_lshl_b32 s56, s31, 16')
    A('s_lshl_b32 s30, s30, 12')
    A('s_add_u32 s56, s56, s30')
    A(f's_add_u32 s56, s56, {WOP}')
    A(f's_mov_b32 s52, {32 * KB}')
    A('s_mov_b32 s53, 256')
    A(f's_mov_b32 s54, {G1.CSDUMMY}')
    A('s_branch pk_jgo')
    A.label('pk_jgu')
    A('s_sub_u32 s30, s30, 64')
    A('s_cmp_ge_u32 s30, 224')
    A('s_cselect_b32 s4, s54, s52')
    A('s_cselect_b32 s5, s55, s53')
    A('s_cselect_b32 s16, 1, 0')
    A('s_cselect_b32 s31, 224, 0')
    A('s_sub_u32 s30, s30, s31')
    A(f's_mov_b32 s6, {512 * 3584}')
    A('s_mov_b32 s50, 3584')
    A('s_lshr_b32 s31, s30, 3')
    A('s_and_b32 s30, s30, 7')
    A(f's_mul_i32 s51, s30, {64 * 3584}')
    A('s_lshl_b32 s56, s31, 7')
    A('s_add_u32 s51, s51, s56')
    A('s_lshl_b32 s56, s31, 17')
    A('s_lshl_b32 s17, s30, 12')
    A('s_add_u32 s56, s56, s17')
    A('s_lshl_b32 s17, s16, 8')
    A('s_add_u32 s56, s56, s17')
    A(f's_add_u32 s56, s56, {WGUP}')
    A(f's_mov_b32 s52, {64 * KB}')
    A(f's_mov_b32 s53, {32 * KB}')
    A(f's_mul_i32 s54, s30, {3584 * 4}')
    A('s_lshl_b32 s17, s31, 9')
    A('s_add_u32 s54, s54, s17')
    A('s_lshl_b32 s17, s16, 6')
    A('s_add_u32 s54, s54, s17')
    A(f's_add_u32 s54, s54, {CSP}')
    A.label('pk_jgo')
    A('v_lshrrev_b32 v112, 3, v1')
    A('v_and_b32 v113, 7, v1')
    A('v_mul_lo_u32 v112, v112, s50')
    A('v_lshl_add_u32 v112, v113, 4, v112')
    A('s_lshl_b32 s50, s50, 3')
    A('s_min_u32 s59, s20, 2')
    A('s_lshl_b32 s59, s59, 13')
    A(f's_add_u32 s59, s59, {136 * KB}')
    A('s_cmp_eq_u32 s57, 0')
    A('s_cbranch_scc1 pk_i_end')
    for i in range(8):
        A(f's_add_u32 m0, s59, {i * 1024}')
        A('s_nop 0')
        A('buffer_load_dwordx4 v112, s[4:7], s51 offen lds')
        A('s_add_u32 s51, s51, s50')
    A.label('pk_i_end')


def pack_convert(C):
    A = C.A
    A('s_cmp_eq_u32 s57, 0')
    A('s_cbranch_scc1 pk_c_end')
    A('v_lshrrev_b32 v112, 5, v1')
    A('v_bfe_u32 v113, v1, 2, 2')
    A('v_lshl_add_u32 v113, v112, 2, v113')
    A('v_and_b32 v114, 3, v1')
    A('v_lshlrev_b32 v114, 3, v114')
    A('v_lshl_add_u32 v113, v113, 7, v114')
    A('v_bfe_u32 v114, v1, 4, 1')
    A('v_lshl_add_u32 v113, v114, 5, v113')
    A('v_add_u32 v113, s59, v113')
    A('v_mul_lo_u32 v114, v114, s53')
    A('v_and_b32 v115, 15, v1')
    A('v_lshl_add_u32 v114, v115, 4, v114')
    A('v_lshl_add_u32 v114, v112, 9, v114')
    A('v_lshrrev_b32 v112, 4, v1')
    A('v_lshlrev_b32 v112, 7, v112')
    A('v_lshl_add_u32 v112, v115, 2, v112')
    A('v_mov_b32 v115, 0x3f803f80')
    A('s_add_u32 s52, s52, s56')
    A('s_waitcnt vmcnt(0)')
    for jj in range(2):
        for st in range(4):
            for h2 in range(2):
                A(f'ds_read_b64_tr_b16 {v(128 + 4 * (4 * jj + st) + 2 * h2, 2)}, v113 offset:{st * 2048 + h2 * 1024 + jj * 64}')
        A('s_waitcnt lgkmcnt(0)')
        for st in range(4):
            A(f'buffer_store_dwordx4 {v(128 + 4 * (4 * jj + st), 4)}, v114, s[8:11], {"s56" if jj == 0 else "s52"} offen offset:{st * 1024} sc0 sc1')
    A('s_cmp_eq_u32 s53, 256')
    A('s_cbranch_scc1 pk_c_end')
    for r in range(16):
        for jj in range(2):
            A(f'v_dot2_f32_bf16 {v(116 + jj)}, {v(128 + 16 * jj + r)}, v115, {"0" if r == 0 else v(116 + jj)}')
    A('s_nop 2')
    swap_add(A, 116, 117)
    A('buffer_store_dword v116, v112, s[8:11], s54 offen sc0 sc1')
    A.label('pk_c_end')


def pack_flag(C):
    A = C.A
    A('v_mov_b32 v112, 0')
    A('v_mov_b32 v113, 1')
    A('s_cmp_eq_u32 s57, 0')
    A('s_cbranch_scc1 pk_f_1')
    A('s_lshl_b32 s30, s58, 7')
    A(f's_add_u32 s30, s30, {PFL}')
    A('s_waitcnt vmcnt(0)')
    A('s_mov_b64 exec, 1')
    A('buffer_store_dword v113, v112, s[8:11], s30 offen sc0 sc1')
    A('s_mov_b64 exec, -1')
    A.label('pk_f_1')
    A('s_and_b32 s30, s18, 0x33')
    A('s_cmp_lg_u32 s30, 0')
    A('s_cbranch_scc1 pk_f_end')
    A('s_lshl_b32 s30, s22, 1')
    A('s_add_u32 s30, s30, s20')
    A('s_lshl_b32 s31, s21, 5')
    A('s_add_u32 s30, s30, s31')
    A('s_lshl_b32 s30, s30, 7')
    A(f's_add_u32 s30, s30, {PFL + 768 * 128}')
    A('s_waitcnt vmcnt(0)')
    A('s_mov_b64 exec, 1')
    A('buffer_store_dword v113, v112, s[8:11], s30 offen sc0 sc1')
    A('s_mov_b64 exec, -1')
    A.label('pk_f_end')


def pack_poll(C, endlab):
    A = C.A
    A('s_mul_i32 s30, s22, 7')
    A('s_lshr_b32 s30, s30, 2')
    A('v_lshrrev_b32 v112, 4, v1')
    A('v_add_u32 v112, s30, v112')
    A('v_min_u32 v112, 27, v112')
    A('v_and_b32 v113, 7, v1')
    A('v_lshl_add_u32 v112, v112, 3, v113')
    A('v_bfe_u32 v114, v1, 3, 1')
    A('v_mul_u32_u24 v114, 224, v114')
    A('v_add3_u32 v112, v112, v114, 64')
    A('s_mul_i32 s30, s20, 7')
    A('s_lshr_b32 s30, s30, 1')
    A('v_min_u32 v114, 4, v113')
    A('v_add_u32 v114, s30, v114')
    A('v_min_u32 v114, 27, v114')
    A('s_add_u32 s30, s24, 512')
    A('v_lshl_add_u32 v114, v114, 3, s30')
    A('v_cmp_le_u32 vcc, 48, v1')
    A('s_lshl_b32 s30, s24, 3')
    A('s_add_u32 s30, s30, s20')
    A('v_cndmask_b32 v112, v112, v114, vcc')
    A('v_mov_b32 v114, s30')
    A('v_cmp_le_u32 vcc, 56, v1')
    A('s_add_u32 s31, s20, 768')
    A('s_and_b32 s30, s22, 12')
    A('s_lshl_b32 s30, s30, 1')
    A('s_add_u32 s30, s30, s31')
    A('v_cndmask_b32 v112, v112, v114, vcc')
    for q4 in range(4):
        A(f'v_writelane_b32 v112, s30, {59 + q4}')
        A('s_add_u32 s30, s30, 32')
    A('v_writelane_b32 v112, s31, 63')
    A(f's_mov_b32 s30, {PFL}')
    A('s_mov_b32 s31, 0')
    A('v_lshlrev_b32 v112, 7, v112')
    A('s_bfe_u32 s32, s19, 0x3000c')
    A('s_lshl_b32 s32, s32, 3')
    A('s_lshl_b32 s33, s26, 2')
    A('s_add_u32 s32, s32, s33')
    A('v_and_b32 v114, 3, v1')
    A('v_add_u32 v114, s32, v114')
    A('v_lshlrev_b32 v114, 7, v114')
    A('buffer_load_dword v113, v112, s[8:11], s30 offen sc1')
    A('buffer_load_dword v115, v114, s[8:11], s30 offen sc1')


def pack_poll2(C, endlab):
    A = C.A
    A(f's_mov_b32 s30, {PFL}')
    A('s_mov_b32 s31, 0')
    A.label('pk_p')
    A('s_waitcnt vmcnt(0)')
    A('v_and_b32 v113, v113, v115')
    A('v_cmp_eq_u32 vcc, 1, v113')
    A('s_add_u32 s31, s31, 1')
    A('s_cmp_eq_u64 vcc, -1')
    A('s_cbranch_scc1 pk_pd')
    A('s_sleep 16')
    A('buffer_load_dword v113, v112, s[8:11], s30 offen sc1')
    A('buffer_load_dword v115, v114, s[8:11], s30 offen sc1')
    A(f's_cmp_lt_u32 s31, {1 << 19}')
    A('s_cbranch_scc1 pk_p')
    A(f's_branch {endlab}')
    A.label('pk_pd')
    C.vm = []


def layer_part(C, layer, end):
    A = C.A
    C.tag = f'l{layer}'
    last = layer == 1
    xin = None if layer == 0 else XC
    kvf = KVF if layer == 0 else KVF2
    kfl = KFL + layer * 64 * 128
    sy = 5 * layer + 1
    C.B = dict(QF=QF, OF=OF, XB=XB, SXB=SXB, HF=HF) if layer == 0 else dict(QF=QF2, OF=OF2, XB=XB2, SXB=SXB2, HF=HF2)
    B = C.B

    def pre_addr():
        gu_waddr(C)
        g3_waddr(C, (113, 114), 112, WDP)
        g4_waddr(C, 116, WOP)

    stubs = [lambda: (pre_addr(), gu_wload(C, 0))]
    stubs += [lambda ks=ks: gu_wload(C, ks) for ks in range(1, 24)]
    stubs += [lambda i=i: g4_wload(C, 116, i, 'res') for i in range(8)]
    if TOUCH2:
        def touch2():
            A('s_and_b32 s30, s18, 7')
            A('s_lshr_b32 s31, s30, 1')
            A('s_lshl_b32 s31, s31, 2')
            A('s_and_b32 s30, s30, 1')
            A('s_add_u32 s30, s30, s31')
            A('s_lshl_b32 s30, s30, 10')
            C.vmem('buffer_load_dwordx4 v[120:123], v116, s[8:11], s30 offen offset:2048', 'tc')
            if layer == 0:
                A(f's_add_u32 s30, s30, {WQKVP - WOP + (1 << 32) if WQKVP < WOP else WQKVP - WOP}')
                A('v_add_u32 v117, s30, v116')
                C.vmem('buffer_load_dwordx4 v[120:123], v117, s[8:11], 0 offen', 'tc')
                C.vmem('buffer_load_dwordx4 v[120:123], v117, s[8:11], 0 offen offset:2048', 'tc')
        stubs += [touch2]
    if TOUCH3 & 1:
        def t3a(k):
            if k == 0:
                A('s_and_b32 s30, s21, 1')
                A('s_lshl_b32 s30, s30, 12')
                A(f's_add_u32 s30, s30, {24 * KB}')
                A(f'v_add_u32 v118, s30, {v(V_WGU)}')
            C.vmem(f'buffer_load_dwordx4 v[120:123], v118, s[8:11], 0 offen offset:{k * 1024}', 'tc')
        stubs += [lambda k=k: t3a(k) for k in range(4)]
    if TOUCH3 & 2:
        def t3b(k):
            if k == 0:
                A('s_and_b32 s30, s21, 1')
                A(f's_mul_i32 s30, s30, {7 * KB}')
                A('s_cmp_eq_u32 s23, 0')
                A('s_cselect_b64 vcc, -1, 0')
                A('v_cndmask_b32 v119, v114, v113, vcc')
                A('v_add_u32 v119, s30, v119')
            so, im = soff(k)
            C.vmem(f'buffer_load_dwordx4 v[120:123], v119, s[8:11], {so} offen offset:{im}', 'tc')
        stubs += [lambda k=k: t3b(k) for k in range(7)]
    if TOUCH and layer == 1:
        def t_addr():
            A('s_lshr_b32 s30, s2, 3')
            A('s_lshl_b32 s30, s30, 3')
            A('s_add_u32 s30, s30, s20')
            A(f's_mul_i32 s31, s30, {7 * KB}')
            A(f's_add_u32 s31, s31, {WDP}')
            A('v_add_u32 v118, s31, v3')
            A('s_lshl_b32 s31, s30, 11')
            A(f's_add_u32 s31, s31, {WQKVP}')
            A('v_add_u32 v119, s31, v3')

        def tch(vr, k):
            so, im = soff(k)
            C.vmem(f'buffer_load_dwordx4 v[120:123], {v(vr)}, s[8:11], {so} offen offset:{im}', 'tc')
        stubs += [lambda: (t_addr(), tch(V_WGU, 24))]
        stubs += [lambda ks=ks: tch(V_WGU, ks) for ks in range(25, 32)]
        stubs += [lambda k=k: tch(118, k) for k in range(7)]
        if not last:
            stubs += [lambda k=k: tch(119, k) for k in range(2)]

    def need_wo():
        A('s_lshr_b32 s30, s20, 1')
        A('s_lshl_b32 s30, s30, 2')
        A('s_and_b32 s31, s22, 3')
        A('s_add_u32 s30, s30, s31')
        A('s_lshl_b32 s32, 1, s30')

    def need_gu():
        A('s_lshl_b32 s32, 0x1111, s25')
        A('s_cmp_eq_u32 s20, 7')
        A('s_cselect_b32 s32, 0xffff, s32')

    def need_dn():
        A('s_lshl_b32 s30, s20, 1')
        A('s_lshl_b32 s32, 3, s30')

    def need_qkv():
        A('s_lshl_b32 s30, s20, 1')
        A('s_and_b32 s31, s24, 1')
        A('s_add_u32 s30, s30, s31')
        A('s_lshl_b32 s32, 1, s30')

    if layer == 0:
        fixed = {PK_I: lambda: (wq_store(C), pack_issue(C)), PK_C: lambda: pack_convert(C), PK_F: lambda: pack_flag(C), PK_P - 1: lambda: pack_poll(C, end), PK_P: lambda: pack_poll2(C, end)}
        tail = att_phase(C, kvf, kfl, end, stubs, fixed, PK_P, pre_hook=lambda: pack_ptrs(A), loadq=False, early=True)
    else:
        tail = att_phase(C, kvf, kfl, end, stubs, pre_hook=lambda: A('s_load_dwordx2 s[12:13], s[0:1], 72'), loadq=False)
    C.stamp()
    if not WO_LATE:
        A('s_nop 1')
        for i in range(8, 16):
            g4_wload(C, 116, i, 'res')
    g4_pre(C, 'res', B['OF'], resbase=xin)
    handoff(C, sy + 0, end, need_wo)
    C.stamp()
    g4_main(C, 'res', outbase=B['XB'], sxout=B['SXB'], hook_red=lambda k: gu_wload(C, 24 + k))
    C.stamp()
    gu_pre(C)
    handoff(C, sy + 1, end, need_gu)
    C.stamp()
    gu_main(C)
    C.stamp()
    g3_pre(C, 'res', 112, B['HF'], resbase=B['XB'])
    handoff(C, sy + 2, end, need_dn)
    C.stamp()
    if last:
        g3_main(C, 'out', 112, 128)
        C.stamp()
    else:
        g3_main(C, 'res', 112, 128, outbase=XC, sxout=SXC, hook_b=lambda st, n: qkv4_wstep(C, st, n), hook_red=lambda: qkv4_wrest(C))
        C.stamp()
        g4_pre(C, 'qkv', XC, resbase=SXC)
        g4_waddr(C, 64, WQKVP)
        handoff(C, sy + 3, end, need_qkv)
        C.stamp()
        g4_main(C, 'qkv', kvf=KVF2, kfl=KFL + 64 * 128, endlab=end)
        C.stamp()
    return tail


def build():
    A = Asm()
    name = NAME + '_kernel'
    C = Ctx(A, 'pr')
    C.qf = QF
    end = 'k_end'
    kernel_begin(A, name)
    pre_part(C, end)
    t0 = layer_part(C, 0, end)
    t1 = layer_part(C, 1, end)
    A('s_add_u32 s30, s2, s20')
    A('s_cmp_lg_u32 s30, 0')
    A('s_cbranch_scc1 k_fin')
    A('s_load_dwordx2 s[4:5], s[0:1], 80')
    A('s_mov_b32 s6, 256')
    A('v_mov_b32 v2, 0')
    A('s_mov_b64 exec, 1')
    A('s_waitcnt lgkmcnt(0)')
    A('buffer_store_dword v2, v2, s[4:7], 0 offen sc0 sc1')
    A('s_mov_b64 exec, -1')
    A.label('k_fin')
    if DBGD:
        A('s_cmp_lg_u32 s2, 77')
        A('s_cbranch_scc1 k_fin2')
        A('s_cmp_lg_u32 s20, 1')
        A('s_cbranch_scc1 k_fin2')
        A('s_load_dwordx2 s[4:5], s[0:1], 80')
        A('s_memrealtime s[60:61]')
        A('s_mov_b32 s6, 256')
        A('v_mov_b32 v2, 0')
        A('s_mov_b64 exec, 1')
        A('s_waitcnt lgkmcnt(0)')
        sel = [int(x) for x in DBGD.split()]
        for k, i in enumerate(sel + [-1]):
            A(f's_sub_u32 s30, {s(64 + i) if i >= 0 else "s60"}, s64')
            A('v_mov_b32 v4, s30')
            A(f'buffer_store_dword v4, v2, s[4:7], 0 offen offset:{4 + 4 * k}')
        A('s_mov_b64 exec, -1')
        A.label('k_fin2')
    stamp_end(C, 1)
    A.label(end)
    A('s_endpgm')
    t0(True)
    t1(False)
    body = A.text()
    probs = lint(body)
    for p in probs:
        print('LINT:', p, file=sys.stderr)
    head = '; generated by gen/gen3.py\n'
    head += f"; @launch grid=(256,1,1) block=(512,1,1) lds={LDS_BYTES}\n"
    head += '.amdgcn_target "amdgcn-amd-amdhsa--gfx950"\n.text\n'
    tail = '.section .rodata,"a"\n.p2align 6\n' + descriptor(name, 256, 0, nsgpr=100)
    print('stamps:', C.nstamp, file=sys.stderr)
    return head + body + tail


if __name__ == '__main__':
    if 'stamp' in sys.argv:
        STAMP = True
    for arg in sys.argv[2:]:
        if '=' in arg:
            k, val = arg.split('=')
            globals()[k] = int(val) if val.lstrip('-').isdigit() else val.replace('_', ' ')
    out = sys.argv[1] if len(sys.argv) > 1 else f'cdna_kernels/{NAME}.s'
    open(out, 'w').write(build())
    print('wrote', out)
```

```python
import sys
import math
import struct
from asmlib import Asm, v, a, s, lint
import gen as G1
from gen import f32, kernel_begin, descriptor, ws_srd, KB

NAME = G1.NAME
WQKVP, WOP, WGUP, WDP, CSQKV, CSGU = G1.WQKVP, G1.WOP, G1.WGUP, G1.WDP, G1.CSQKV, G1.CSGU
KVF, XA, XB, QF, OF, HF = G1.KVF, G1.XA, G1.XB, G1.QF, G1.OF, G1.HF
WS_SIZE, QSCALE = G1.WS_SIZE, G1.QSCALE
KVG = 2048
KVT = 2080
VBS = 512
XC = G1.WS_END
KVF2 = XC + 2048 * KB
FLG = KVF2 + 144 * KB
SXA = FLG + 64 * KB
SXB = SXA + 512 * KB
SXC = SXB + 512 * KB
CSP = SXC + 512 * KB
PFL = CSP + 128 * KB
KFL = PFL + 112 * KB
QF2 = KFL + 16 * KB
OF2 = QF2 + 2048 * KB
XB2 = OF2 + 2048 * KB
SXB2 = XB2 + 2048 * KB
HF2 = SXB2 + 512 * KB
WS_END = HF2 + 64 * 112 * KB
STAMPS = G1.STAMPS

STAMP = False
WT = ' sc0 sc1'
LDS_BYTES = 160 * KB
FINE = 0
TCHK = 2
TB2 = 8
DPT = 2
TPFEND = 4
TP2 = 32
TP1 = 48
TP0 = 60
ONEWAIT = 1
INLINE = 0
ATT_NB = 4
TOUCH3 = 0
PRIOV = 0
DBGD = ''
ATT_B2 = 2
WO_L0 = 3
WROT = 1
GU_TAIL = 1
ATT_R0 = 4
EXPT = 0
TLBW = 0
KV_SLEEP = 2
QKV_PER = 1
WO_TAIL = 16
SLO = 0
QWT = ' sc0 sc1'
GU16 = 0
GU_NOW = 0
GU_WD0 = 3
GU_BARS = {4: 1, 8: 2, 12: 7, 24: 7}
PK_I = 2
PK_C = 5
PK_F = 6
PK_P = 10
RT = 0
TOUCH = 0
TOUCH2 = 1
WO_LATE = 0
ATT_UN = 4
ATT_PFEND = 1
G3_PR4 = 7
G3_PR14 = 6
G2_ST8 = [2, 2, 2, 2]
G2_ST28 = [2, 2, 4, 4, 4, 4, 4, 4]
G2_PRE8 = 4
G2_PRE28 = 6


class Ctx:
    def __init__(self, A, tag):
        self.A = A
        self.tag = tag
        self.vm = []
        self.nlab = 0
        self.nstamp = 1

    def lab(self, base):
        self.nlab += 1
        return f'{self.tag}_{base}{self.nlab}'

    def vmem(self, text, tag):
        self.A(text)
        self.vm.append(tag)
        assert len(self.vm) <= 63, 'vmcnt overflow'

    def wait(self, tag, extra=''):
        idx = [i for i, t in enumerate(self.vm) if t == tag]
        if not idx:
            if extra:
                self.A(f's_waitcnt {extra}')
            return
        n = len(self.vm) - 1 - idx[-1]
        self.A(f's_waitcnt vmcnt({n}) {extra}'.strip())
        self.vm = self.vm[idx[-1] + 1:]

    def stamp(self):
        if STAMP:
            i = self.nstamp - SLO
            self.nstamp += 1
            if i < 1 or i >= 28:
                return
            A = self.A
            A('s_waitcnt lgkmcnt(0)')
            A('s_memrealtime s[60:61]' if RT else 's_memtime s[60:61]')
            A('s_waitcnt lgkmcnt(0)')
            A(f's_mov_b32 {s(64 + i)}, s60')


def stamp_begin(C):
    if STAMP:
        A = C.A
        A('s_memrealtime s[62:63]')
        A('s_memtime s[60:61]')
        for i in range(1, 30):
            A(f's_mov_b32 {s(64 + i)}, 0')
        A('s_waitcnt lgkmcnt(0)')
        A('s_mov_b32 s64, s62' if RT else 's_mov_b32 s64, s60')
        A('s_mov_b32 s95, s62')


def stamp_end(C, kidx):
    if STAMP:
        A = C.A
        A('s_waitcnt vmcnt(0) lgkmcnt(0)')
        A('s_memtime s[60:61]')
        A('s_memrealtime s[62:63]')
        A('s_waitcnt lgkmcnt(0)')
        A('s_mov_b32 s93, s62' if RT else 's_mov_b32 s93, s60')
        A('s_mov_b32 s94, s62')
        A('s_mov_b64 exec, 1')
        A('s_lshl_b32 s60, s2, 10')
        A('s_lshl_b32 s61, s20, 7')
        A('s_add_u32 s60, s60, s61')
        A(f's_add_u32 s60, s60, {STAMPS + kidx * (1 << 20)}')
        A('v_mov_b32 v0, 0')
        for i in range(32):
            A(f'v_mov_b32 v1, {s(64 + i)}')
            A(f'buffer_store_dword v1, v0, s[8:11], s60 offen offset:{i * 4}')
        A('s_waitcnt vmcnt(0)')


def setup(C, need_out, endlab):
    A = C.A
    A('s_cmp_ge_u32 s2, 256')
    A(f's_cbranch_scc1 {endlab}')
    stamp_begin(C)
    ws_srd(A, 8)
    if need_out:
        A('s_load_dwordx2 s[12:13], s[0:1], 72')
        A(f's_mov_b32 s14, {2048 * 512 * 2}')
        A('s_mov_b32 s15, 0x20000')
    A('v_and_b32 v1, 63, v0')
    A('v_lshrrev_b32 v2, 6, v0')
    A('v_lshlrev_b32 v3, 4, v1')
    A('v_readfirstlane_b32 s20, v2')
    A('s_and_b32 s21, s2, 7')
    A('s_lshl_b32 s21, s21, 1')
    A('s_bfe_u32 s22, s2, 0x10003')
    A('s_add_u32 s21, s21, s22')
    A('s_lshr_b32 s22, s2, 4')
    A('s_and_b32 s23, s22, 1')
    A('s_lshr_b32 s24, s22, 1')
    A('s_and_b32 s25, s20, 3')
    A('s_lshr_b32 s26, s20, 2')
    A('s_lshl_b32 s27, s21, 2')
    A('s_lshl_b32 s30, s23, 1')
    A('s_add_u32 s27, s27, s30')
    A('s_lshl_b32 s28, s24, 1')
    A('s_bfe_u32 s30, s20, 0x10001')
    A('s_add_u32 s28, s28, s30')
    A('s_and_b32 s29, s20, 1')
    A('s_add_u32 s30, s27, s29')
    A('s_lshl_b32 s49, s30, 15')
    A('s_lshl_b32 s31, s28, 11')
    A('s_add_u32 s49, s49, s31')
    A('s_lshl_b32 s31, s26, 10')
    A('s_add_u32 s49, s49, s31')
    for g in range(1, 8):
        A(f's_mov_b32 {s(40 + g)}, {g * 4096}')
    A('s_waitcnt lgkmcnt(0)')


def soff(i):
    return ('0' if i // 4 == 0 else s(40 + i // 4)), (i % 4) * 1024


def handoff(C, sync, endlab, need, kvflag=None, first=False):
    A = C.A
    l1, l2, ld = C.lab('pa'), C.lab('pb'), C.lab('pd')
    need()
    A('s_mov_b32 s33, 0')
    A('v_lshlrev_b32 v0, 2, v1')
    A('s_lshl_b32 s30, s21, 8')
    A(f's_add_u32 s30, s30, {FLG + sync * 4096}')
    A('s_lshl_b32 s34, s22, 2')
    A('s_add_u32 s34, s34, s30')
    A('v_mov_b32 v4, 1')
    if first:
        lz, lzd = C.lab('z'), C.lab('zd')
        A('s_cmp_lg_u32 s20, 0')
        A(f's_cbranch_scc1 {lzd}')
        A('s_mov_b32 s31, 0')
        A('s_mov_b64 exec, 1')
        A.label(lz)
        A('buffer_load_dword v2, v0, s[4:7], 0 offen sc0 sc1')
        A('s_waitcnt vmcnt(0)')
        A('v_cmp_le_u32 vcc, 16, v2')
        A('s_add_u32 s31, s31, 1')
        A('s_cmp_eq_u64 vcc, 1')
        A(f's_cbranch_scc1 {lzd}')
        A('s_sleep 8')
        A(f's_cmp_lt_u32 s31, {1 << 20}')
        A(f's_cbranch_scc1 {lz}')
        A(f's_branch {endlab}')
        A.label(lzd)
        A('s_mov_b64 exec, -1')
    if kvflag is not None:
        A('s_waitcnt vmcnt(0) lgkmcnt(0)')
        C.vm = []
    else:
        C.wait('st', 'lgkmcnt(0)')
    A('s_cmp_lg_u32 s20, 0')
    A('s_barrier')
    l, lb, lb2 = C.lab('sig'), C.lab('sb'), C.lab('sc')
    A(f's_cbranch_scc1 {l}')
    A('s_mov_b64 exec, 1')
    if kvflag is not None:
        lk = C.lab('kf')
        A('s_cmp_ge_u32 s24, 2')
        A(f's_cbranch_scc1 {lk}')
        A('s_add_u32 s31, s27, s24')
        A('s_lshl_b32 s31, s31, 7')
        A(f's_add_u32 s31, s31, {kvflag}')
        A('s_mov_b64 exec, 15')
        A('buffer_store_dword v4, v0, s[8:11], s31 offen sc0 sc1')
        A('s_mov_b64 exec, 1')
        A.label(lk)
    A('buffer_store_dword v4, v0, s[8:11], s34 offen')
    A.label(l)
    A('s_mov_b32 s31, 0')
    A('s_mov_b64 exec, s[32:33]')
    A.label(l1)
    A('buffer_load_dword v2, v0, s[8:11], s30 offen sc1')
    A('s_add_u32 s31, s31, 1')
    A('s_waitcnt vmcnt(0)')
    A('v_cmp_ne_u32 vcc, 0, v2')
    A('s_cmp_eq_u64 vcc, s[32:33]')
    A(f's_cbranch_scc1 {ld}')
    A('s_cmp_lt_u32 s31, 64')
    A(f's_cbranch_scc1 {l1}')
    A('s_mov_b64 exec, 1')
    A('buffer_store_dword v4, v0, s[8:11], s34 offen offset:128 sc0 sc1')
    A('s_mov_b64 exec, s[32:33]')
    A.label(l2)
    A('buffer_load_dword v2, v0, s[8:11], s30 offen sc1')
    A('s_waitcnt vmcnt(0)')
    A('v_cmp_ne_u32 s[36:37], 0, v2')
    A('buffer_load_dword v2, v0, s[8:11], s30 offen offset:128 sc0 sc1')
    A('s_waitcnt vmcnt(0)')
    A('v_cmp_ne_u32 vcc, 0, v2')
    A('s_add_u32 s31, s31, 1')
    A('s_or_b64 vcc, vcc, s[36:37]')
    A('s_cmp_eq_u64 vcc, s[32:33]')
    A(f's_cbranch_scc1 {ld}')
    A('s_sleep 4')
    A(f's_cmp_lt_u32 s31, {1 << 20}')
    A(f's_cbranch_scc1 {l2}')
    A(f's_branch {endlab}')
    A.label(ld)
    A('s_mov_b64 exec, -1')
    C.vm = []
    C.flagb = True


def flag_b(C):
    if getattr(C, 'flagb', False):
        A = C.A
        l = C.lab('fb')
        A('s_cmp_lg_u32 s20, 0')
        A(f's_cbranch_scc1 {l}')
        A('s_mov_b64 exec, 1')
        A('buffer_store_dword v4, v0, s[8:11], s34 offen offset:128 sc0 sc1')
        A('s_mov_b64 exec, -1')
        A.label(l)
        C.flagb = False


ACCB, ACCA = 16, 48
KVW, KACC, QSX = 160, 176, 240
KVRED, STAT, CSX, CSK = 112 * KB, 144 * KB, 148 * KB, 152 * KB


def blk_stats(C, P, T):
    A = C.A
    A(f'v_mov_b32 {v(T + 4)}, 0x3f803f80')
    A(f'v_dot2_f32_bf16 {v(T + 1)}, {v(P)}, {v(P)}, 0')
    A(f'v_dot2_f32_bf16 {v(T)}, {v(P)}, {v(T + 4)}, 0')
    for m in range(1, 4):
        A(f'v_dot2_f32_bf16 {v(T + 1)}, {v(P + m)}, {v(P + m)}, {v(T + 1)}')
        A(f'v_dot2_f32_bf16 {v(T)}, {v(P + m)}, {v(T + 4)}, {v(T)}')
    A('s_nop 2')
    A(f'v_mov_b32 {v(T + 2)}, {v(T)}')
    A(f'v_mov_b32 {v(T + 3)}, {v(T + 1)}')
    A('s_nop 1')
    A(f'v_permlane32_swap_b32 {v(T)}, {v(T + 2)}')
    A(f'v_permlane32_swap_b32 {v(T + 1)}, {v(T + 3)}')
    A(f'v_add_f32 {v(T)}, {v(T)}, {v(T + 2)}')
    A(f'v_add_f32 {v(T + 1)}, {v(T + 1)}, {v(T + 3)}')


def g3_waddr(C, vregs, KS, wbase):
    A = C.A
    NS = KS // 8
    A('s_lshl_b32 s30, s26, 8')
    A(f'v_xor_b32 {v(vregs[0])}, s30, v3')
    A(f's_mul_i32 s31, s20, {NS * KB}')
    A(f's_add_u32 s31, s31, {wbase}')
    A('s_xor_b32 s30, s28, 1')
    A(f's_mul_i32 s30, s30, {KS * KB}')
    A('s_add_u32 s30, s30, s31')
    A(f'v_add_u32 {v(vregs[1])}, s30, {v(vregs[0])}')
    A(f's_mul_i32 s30, s28, {KS * KB}')
    A('s_add_u32 s30, s30, s31')
    A(f'v_add_u32 {v(vregs[0])}, s30, {v(vregs[0])}')


def g3_wload(C, vregs, idx, wreg0, tag='w'):
    st, jj = idx // 2, idx % 2
    so, im = soff(st)
    C.vmem(f'buffer_load_dwordx4 {v(wreg0 + 4 * idx, 4)}, {v(vregs[jj])}, s[8:11], {so} offen offset:{im}', tag)


def g3_ex(mode, KS):
    return 252 if KS == 112 else (112 if mode == 'qkv' else 116)


def g3_pre(C, mode, KS, xbase, resbase=None, raw=False):
    A = C.A
    NS = KS // 8
    EX = g3_ex(mode, KS)
    A(f's_mul_i32 s31, s20, {NS * KB}')
    A(f's_add_u32 s31, s31, {xbase}')
    A('s_add_u32 s30, s27, s29')
    A(f's_mul_i32 s32, s30, {KS * KB}')
    A('s_add_u32 s32, s32, s31')
    A('v_add_u32 v6, s32, v3')
    A('s_xor_b32 s30, s30, 1')
    A(f's_mul_i32 s32, s30, {KS * KB}')
    A('s_add_u32 s32, s32, s31')
    A('v_add_u32 v5, s32, v3')
    A('s_lshl_b32 s30, s20, 11')
    A('v_add_u32 v8, s30, v3')
    A('v_add_u32 v7, 0x10000, v8')
    for b in range(1, 8):
        A(f's_xor_b32 s30, s20, {b}')
        A('s_lshl_b32 s30, s30, 11')
        A(f's_add_u32 s30, s30, {(b - 1) * 16 * KB}')
        A(f'v_add_u32 {v(8 + b)}, s30, v3')
    if raw:
        return
    if mode == 'qkv':
        A('v_lshrrev_b32 v2, 5, v1')
        A('v_lshlrev_b32 v4, 4, v2')
        A('s_lshl_b32 s31, s28, 7')
        A('s_lshl_b32 s30, s26, 6')
        A('s_add_u32 s31, s31, s30')
        A(f's_add_u32 s31, s31, {CSQKV}')
        C.vmem(f'buffer_load_dwordx4 {v(EX, 4)}, v4, s[8:11], s31 offen', 'ex')
        C.vmem(f'buffer_load_dwordx4 {v(EX + 4, 4)}, v4, s[8:11], s31 offen offset:32', 'ex')
        A('s_bfe_u32 s30, s20, 0x10001')
        A('s_lshl_b32 s30, s30, 6')
        A('s_lshl_b32 s31, s26, 5')
        A('s_add_u32 s30, s30, s31')
        A(f's_add_u32 s31, s30, {CSQKV + 2048}')
        C.vmem(f'buffer_load_dwordx4 {v(EX + 8, 4)}, v4, s[8:11], s31 offen', 'ex')
        A(f'v_and_b32 {v(QSX + 8)}, 31, v1')
        A(f'v_lshlrev_b32 {v(QSX + 8)}, 3, {v(QSX + 8)}')
        A(f'v_lshl_add_u32 {v(QSX + 8)}, v2, 13, {v(QSX + 8)}')
        A('s_lshl_b32 s30, s27, 13')
        A('s_lshl_b32 s31, s20, 10')
        A('s_add_u32 s30, s30, s31')
        A(f's_add_u32 s30, s30, {resbase}')
        A(f'v_add_u32 {v(QSX + 8)}, s30, {v(QSX + 8)}')
    elif resbase is None:
        A('v_and_b32 v2, 31, v1')
        A('v_lshlrev_b32 v2, 10, v2')
        A('v_lshrrev_b32 v4, 5, v1')
        A('v_lshl_add_u32 v2, v4, 3, v2')
        A('s_add_u32 s30, s27, s29')
        A('s_lshl_b32 s30, s30, 15')
        A('s_lshl_b32 s31, s28, 6')
        A('s_add_u32 s30, s30, s31')
        A('s_lshl_b32 s31, s26, 5')
        A('s_add_u32 s30, s30, s31')
        C.vmem(f'buffer_load_dwordx2 {v(EX, 2)}, v2, s[12:15], s30 offen', 'ex')
        C.vmem(f'buffer_load_dwordx2 {v(EX + 2, 2)}, v2, s[12:15], s30 offen offset:16', 'ex')
    else:
        A(f's_add_u32 s31, s49, {resbase}')
        C.vmem(f'buffer_load_dwordx4 {v(EX, 4)}, v3, s[8:11], s31 offen', 'ex')


def g3_main(C, mode, KS, wreg0, outbase=None, kvf=None, after_store=None, sxout=None, hook_b=None, raw=False, hook_red=None):
    A = C.A
    NS = KS // 8
    EX = g3_ex(mode, KS)
    if NS == 4:
        xreg = {(hh, st): 80 + (hh * 4 + st) * 4 for hh in range(2) for st in range(4)}
    else:
        slot = [80 + 4 * k for k in range(12)] + [240, 244]
        xreg = {(hh, st): slot[st] for hh in range(2) for st in range(NS)}

    def xload(hh, st):
        so, im = soff(st)
        C.vmem(f'buffer_load_dwordx4 {v(xreg[hh, st], 4)}, {v(5 + hh)}, s[8:11], {so} offen offset:{im}', f'x{hh}_{st}')

    seq = [(hh, st) for hh in range(2) for st in range(NS)]
    PR = G3_PR4 if NS == 4 else G3_PR14
    if raw:
        seq, PR = [], 0
    for x in seq[:PR]:
        xload(*x)
    nxt = PR
    C.wait('w')

    def wr(b):
        base = (ACCA if b & 1 else ACCB) + ((b >> 1) & 1) * 16 + (b >> 2) * 8
        return [f'ds_write_b128 {v(8 + b)}, {v(base + h2 * 4, 4)} offset:{h2 * 1024}' for h2 in range(2)]

    pend = []
    for hh in range(2):
        acc = ACCA if hh == 0 else ACCB
        for st in range(NS):
            C.wait(f'x{hh}_{st}')
            if hh == 0 and st == 0:
                C.stamp()
            for jj in range(2):
                c = '0' if st == 0 else v(acc + jj * 16, 16)
                A(f'v_mfma_f32_32x32x16_bf16 {v(acc + jj * 16, 16)}, {v(wreg0 + 4 * (2 * st + jj), 4)}, {v(xreg[hh, st], 4)}, {c}')
                if hh == 1 and (st >= 3 or (NS == 4 and st >= 2)):
                    for _ in range(2 if NS == 4 else 1):
                        if pend:
                            A(pend.pop(0))
            if nxt < len(seq):
                xload(*seq[nxt])
                nxt += 1
                if nxt == len(seq):
                    if mode == 'qkv':
                        for e in range(4):
                            C.vmem(f'buffer_load_dwordx2 {v(QSX + 2 * e, 2)}, {v(QSX + 8)}, s[8:11], 0 offen offset:{e * 256}', 'sx')
                    flag_b(C)
                    hb = 0
            elif hook_b:
                hb += 1
            if hook_b and nxt == len(seq):
                hook_b(hb, PR)
            if hh == 1 and NS == 4 and st == 1:
                A('s_nop 7' if raw else 's_nop 5')
            if hh == 1 and NS != 4 and st == 2:
                A('s_nop 2')
        if hh == 0:
            pend = wr(1) + wr(5) + wr(3) + wr(7)
    assert not pend
    C.stamp()
    lkv = C.lab('nokv')
    if mode == 'qkv':
        la, lb = C.lab('ka'), C.lab('kb')
        A('s_cmp_ge_u32 s24, 2')
        A(f's_cbranch_scc1 {lb}')
        A('s_cmp_eq_u32 s24, s29')
        A(f's_cbranch_scc0 {la}')
        for hh in (1, 0):
            for st in range(4):
                c = '0' if st == 0 else v(KACC, 16)
                A(f'v_mfma_f32_32x32x16_bf16 {v(KACC, 16)}, {v(KVW + 4 * st, 4)}, {v(xreg[hh, st], 4)}, {c}')
            if hh == 1:
                A(f's_branch {lb}')
                A.label(la)
        A.label(lb)
        A('v_lshlrev_b32 v4, 3, v1')
        if not raw:
            C.wait('sx')
            for e in range(4):
                A(f'v_add_f32 {v(QSX + e)}, {v(QSX + e)}, {v(QSX + 4 + e)}')
            for e in range(2):
                A(f'v_add_f32 {v(QSX + e)}, {v(QSX + e)}, {v(QSX + 2 + e)}')
            A('s_lshl_b32 s30, s20, 9')
            A(f's_add_u32 s30, s30, {STAT}')
            A('v_add_u32 v2, s30, v4')
            A(f'ds_write_b64 v2, {v(QSX, 2)}')
        else:
            A('v_lshrrev_b32 v112, 5, v1')
            A('v_lshlrev_b32 v112, 4, v112')
            A('s_and_b32 s30, s28, 1')
            A('s_lshl_b32 s30, s30, 7')
            A('s_lshl_b32 s31, s26, 6')
            A('s_add_u32 s30, s30, s31')
            A(f's_add_u32 s30, s30, {CSK}')
            A('v_add_u32 v113, s30, v112')
            A('s_nop 3')
        A('v_and_b32 v4, 0xf8, v4')
        A('s_lshl_b32 s30, s29, 8')
        A(f's_add_u32 s30, s30, {STAT}')
        A('v_add_u32 v4, s30, v4')
    else:
        A('s_nop 10')
    for b in (4, 2, 6):
        for x in wr(b):
            A(x)
    if mode == 'qkv':
        A('s_cmp_ge_u32 s24, 2')
        A(f's_cbranch_scc1 {lkv}')
        A(f'v_add_u32 v2, {KVRED}, v8')
        for k4 in range(4):
            A(f'ds_write_b128 v2, {v(KACC + k4 * 4, 4)} offset:{(k4 >> 1) * 16 * KB + (k4 & 1) * 1024}')
        A.label(lkv)
    if hook_red:
        hook_red()
    A('s_waitcnt lgkmcnt(0)')
    A('s_barrier')
    for b in range(1, 8):
        for h2 in range(2):
            base, off = ('v8', (b - 1) * 16 * KB) if b <= 4 else ('v7', (b - 5) * 16 * KB)
            A(f'ds_read_b128 {v(ACCB + b * 8 + h2 * 4, 4)}, {base} offset:{off + h2 * 1024}')
    T = 80

    def red(base, waits):
        for stp in (32, 16, 8):
            for r in range(stp):
                A(f'v_add_f32 {v(base + r)}, {v(base + r)}, {v(base + stp + r)}')
    if mode == 'qkv':
        A('s_waitcnt lgkmcnt(6)')
        for ww in range(8):
            A(f'ds_read_b64 {v(T + ww * 2, 2)}, v4 offset:{ww * 512}')
        A('s_waitcnt lgkmcnt(8)')
        if raw:
            EX = 192
            for h2 in range(2):
                A(f'ds_read_b128 {v(EX + h2 * 4, 4)}, v113 offset:{h2 * 32}')
    else:
        C.wait('ex')
        for m in range(4):
            A(f'v_lshlrev_b32 {v(T + 2 * m)}, 16, {v(EX + m)}')
            A(f'v_and_b32 {v(T + 2 * m + 1)}, 0xffff0000, {v(EX + m)}')
        for r in range(8):
            A(f'v_add_f32 {v(ACCB + r)}, {v(ACCB + r)}, {v(T + r)}')
        A('s_waitcnt lgkmcnt(0)')
    red(ACCB, None)
    P = ACCB + 8
    if mode == 'qkv':
        A('s_waitcnt lgkmcnt(0)')
        for stp in (8, 4, 2):
            for e in range(stp):
                A(f'v_add_f32 {v(T + e)}, {v(T + e)}, {v(T + e + stp)}')
        A(f'v_mul_f32 {v(T)}, {f32(1.0 / 512)}, {v(T)}')
        A(f'v_mul_f32 {v(T + 1)}, {f32(1.0 / 512)}, {v(T + 1)}')
        A(f'v_fma_f32 {v(T + 1)}, -{v(T)}, {v(T)}, {v(T + 1)}')
        A(f'v_max_f32 {v(T + 1)}, 0, {v(T + 1)}')
        A(f'v_add_f32 {v(T + 1)}, {f32(1e-5)}, {v(T + 1)}')
        A(f'v_rsq_f32 {v(T + 1)}, {v(T + 1)}')
        C.wait('ex')
        for r in range(8):
            A(f'v_fma_f32 {v(ACCB + r)}, -{v(T)}, {v(EX + r)}, {v(ACCB + r)}')
        A(f'v_mul_f32 {v(T + 2)}, {f32(QSCALE)}, {v(T + 1)}')
        for r in range(8):
            A(f'v_mul_f32 {v(ACCB + r)}, {v(T + 2)}, {v(ACCB + r)}')
        for m in range(4):
            A(f'v_cvt_pk_bf16_f32 {v(P + m)}, {v(ACCB + 2 * m)}, {v(ACCB + 2 * m + 1)}')
        A(f's_add_u32 s31, s49, {C.qf}')
        C.vmem(f'buffer_store_dwordx4 {v(P, 4)}, v3, s[8:11], s31 offen{QWT}', 'st')
        le, lv = C.lab('ke'), C.lab('v')
        A('s_cmp_lg_u32 s29, s24')
        A(f's_cbranch_scc1 {le}')
        A('s_bfe_u32 s34, s20, 0x10001')
        A('s_lshl_b32 s30, s34, 14')
        A('s_lshl_b32 s31, s26, 10')
        A('s_add_u32 s30, s30, s31')
        A(f's_add_u32 s30, s30, {KVRED}')
        A('v_add_u32 v4, s30, v3')
        KR = 208
        for ww in range(8):
            A(f'ds_read_b128 {v(KR + ww * 4, 4)}, v4 offset:{ww * 2048}')
        KX = EX + 8
        if raw:
            A('s_lshl_b32 s30, s34, 6')
            A('s_lshl_b32 s31, s26, 5')
            A('s_add_u32 s30, s30, s31')
            A(f's_add_u32 s30, s30, {CSK + 256}')
            A('v_add_u32 v113, s30, v112')
            A(f'ds_read_b128 {v(KX, 4)}, v113')
        A('s_add_u32 s30, s27, s29')
        A(f's_mul_i32 s30, s30, {KVG}')
        A(f's_add_u32 s30, s30, {kvf}')
        A('v_bfe_u32 v4, v1, 4, 1')
        A(f'v_mul_u32_u24 v4, {VBS}, v4')
        A('v_bfe_u32 v5, v1, 2, 1')
        A('v_lshl_add_u32 v4, v5, 8, v4')
        A('v_and_b32 v5, 3, v1')
        A('v_lshl_add_u32 v4, v5, 1, v4')
        A('v_bfe_u32 v5, v1, 3, 1')
        A('v_lshl_add_u32 v4, v5, 3, v4')
        A('v_lshrrev_b32 v5, 5, v1')
        A('v_lshl_add_u32 v4, v5, 6, v4')
        A('s_waitcnt lgkmcnt(0)')
        for stp in (16, 8, 4):
            for r in range(stp):
                A(f'v_add_f32 {v(KR + r)}, {v(KR + r)}, {v(KR + stp + r)}')
        for r in range(4):
            A(f'v_fma_f32 {v(KR + r)}, -{v(T)}, {v(KX + r)}, {v(KR + r)}')
        for r in range(4):
            A(f'v_mul_f32 {v(KR + r)}, {v(T + 1)}, {v(KR + r)}')
        KP = KR + 8
        for m in range(2):
            A(f'v_cvt_pk_bf16_f32 {v(KP + m)}, {v(KR + 2 * m)}, {v(KR + 2 * m + 1)}')
        A('s_cmp_lg_u32 s34, 0')
        A(f's_cbranch_scc1 {lv}')
        A('s_lshl_b32 s31, s26, 3')
        A('s_add_u32 s31, s31, s30')
        A(f'buffer_store_dwordx2 {v(KP, 2)}, v3, s[8:11], s31 offen{QWT}')
        A(f's_branch {le}')
        A.label(lv)
        A('s_lshl_b32 s31, s26, 7')
        A('s_add_u32 s31, s31, s30')
        for r in range(4):
            op = 'buffer_store_short' if r % 2 == 0 else 'buffer_store_short_d16_hi'
            A(f'{op} {v(KP + r // 2)}, v4, s[8:11], s31 offen offset:{1024 + r * 16}{QWT}')
        A.label(le)
    else:
        for m in range(4):
            A(f'v_cvt_pk_bf16_f32 {v(P + m)}, {v(ACCB + 2 * m)}, {v(ACCB + 2 * m + 1)}')
        if mode == 'res':
            A(f's_add_u32 s31, s49, {outbase}')
            C.vmem(f'buffer_store_dwordx4 {v(P, 4)}, v3, s[8:11], s31 offen{WT}', 'st')
            blk_stats(C, P, T)
            A('s_lshr_b32 s31, s49, 2')
            A(f's_add_u32 s31, s31, {sxout}')
            A('v_lshlrev_b32 v4, 3, v1')
            A('s_mov_b32 exec_hi, 0')
            C.vmem(f'buffer_store_dwordx2 {v(T, 2)}, v4, s[8:11], s31 offen{WT}', 'st')
            A('s_mov_b64 exec, -1')
            if after_store:
                after_store()
        else:
            A('v_and_b32 v4, 31, v1')
            A('v_lshlrev_b32 v4, 10, v4')
            A('v_lshrrev_b32 v5, 5, v1')
            A('v_lshl_add_u32 v4, v5, 4, v4')
            A('s_add_u32 s30, s27, s29')
            A('s_lshl_b32 s30, s30, 15')
            A('s_lshl_b32 s31, s28, 6')
            A('s_add_u32 s30, s30, s31')
            A('s_lshl_b32 s31, s26, 5')
            A('s_add_u32 s30, s30, s31')
            A(f'v_permlane32_swap_b32 {v(P)}, {v(P + 2)}')
            A(f'v_permlane32_swap_b32 {v(P + 1)}, {v(P + 3)}')
            C.vmem(f'buffer_store_dwordx4 {v(P, 4)}, v4, s[12:15], s30 offen', 'st')


def qkv_wstep(C, st, n=1):
    A = C.A
    if st == 0:
        g3_waddr(C, (5, 6), 32, WQKVP)
    per = -(-8 // n)
    for i in range(st * per, min(8, (st + 1) * per)):
        g3_wload(C, (5, 6), i, 128)
    if st == n:
        A('s_lshl_b32 s30, s20, 12')
        A(f's_add_u32 s30, s30, {WQKVP + 16 * 32 * KB}')
        l = C.lab('kw')
        A('s_cmp_ge_u32 s24, 2')
        A(f's_cbranch_scc1 {l}')
        for k in range(4):
            A(f'buffer_load_dwordx4 {v(KVW + 4 * k, 4)}, v3, s[8:11], s30 offen offset:{k * 1024}')
        A.label(l)


def qkv_wloads(C):
    qkv_wstep(C, 0)
    qkv_wstep(C, 1)


KVR4, XF0, ST4, RED4 = 0, 36 * KB, 68 * KB, 80 * KB
G4_ORD = [0, 1, 4, 5, 8, 9, 12, 13, 2, 3, 6, 7, 10, 11, 14, 15]


def g4_ids(C):
    A = C.A
    A('s_and_b32 s18, s22, 3')
    A('s_lshl_b32 s30, s21, 2')
    A('s_add_u32 s18, s18, s30')
    A('s_and_b32 s30, s22, 12')
    A('s_add_u32 s30, s30, s25')
    A('s_lshl_b32 s30, s30, 1')
    A('s_add_u32 s30, s30, s26')
    A('s_lshl_b32 s19, s18, 5')
    A('s_add_u32 s19, s19, s30')
    A('s_lshl_b32 s19, s19, 10')
    A('s_lshr_b32 s3, s22, 2')
    A('s_and_b32 s30, s21, 3')
    A('s_xor_b32 s3, s3, s30')


def g4_waddr(C, vreg, wbase):
    A = C.A
    A('s_lshl_b32 s30, s26, 8')
    A(f'v_xor_b32 {v(vreg)}, s30, v3')
    A('s_and_b32 s30, s19, 0x7fff')
    A('s_lshl_b32 s30, s30, 4')
    A(f's_add_u32 s30, s30, {wbase}')
    A(f'v_add_u32 {v(vreg)}, s30, {v(vreg)}')


def g4_wreg(mode, i):
    if mode == 'qkv':
        return 128 + 4 * i
    return 224 + 4 * i if i < 8 else 64 + 4 * (i - 8)


def g4_wload(C, vreg, i, mode):
    so, im = soff(G4_ORD[i])
    C.vmem(f'buffer_load_dwordx4 {v(g4_wreg(mode, i), 4)}, {v(vreg)}, s[8:11], {so} offen offset:{im}', 'w')


def g4_pre(C, mode, xbase, resbase=None, raw=False):
    A = C.A
    EX = 96
    A('s_lshl_b32 s30, s18, 15')
    A('s_lshl_b32 s48, s20, 12')
    A('s_add_u32 s30, s30, s48')
    A(f's_add_u32 s30, s30, {xbase}')
    A('v_add_u32 v5, s30, v3')
    A('s_lshl_b32 s30, s26, 14')
    A(f's_add_u32 s30, s30, {XF0}')
    A('v_add_u32 v6, s30, v3')
    A(f'v_add_u32 v14, s48, v3')
    A(f's_add_u32 s48, s48, {XF0}')
    A('s_lshl_b32 s30, s20, 11')
    A(f's_add_u32 s30, s30, {RED4}')
    A('v_add_u32 v8, s30, v3')
    A('v_xor_b32 v7, 0x2000, v8')
    if mode == 'qkv':
        A('v_lshrrev_b32 v2, 5, v1')
        if not raw:
            A('v_lshlrev_b32 v4, 4, v2')
            A('s_and_b32 s31, s19, 0x7fff')
            A('s_lshr_b32 s31, s31, 4')
            A(f's_add_u32 s31, s31, {CSQKV}')
            C.vmem(f'buffer_load_dwordx4 {v(EX, 4)}, v4, s[8:11], s31 offen', 'ex')
            C.vmem(f'buffer_load_dwordx4 {v(EX + 4, 4)}, v4, s[8:11], s31 offen offset:32', 'ex')
            A('s_lshl_b32 s31, s25, 5')
            A(f's_add_u32 s31, s31, {CSQKV + 2048}')
            C.vmem(f'buffer_load_dwordx4 {v(EX + 8, 4)}, v4, s[8:11], s31 offen', 'ex')
        A('v_and_b32 v9, 31, v1')
        A('v_lshlrev_b32 v9, 3, v9')
        A(f'v_add_u32 v11, {ST4}, v9')
        A('s_lshl_b32 s30, s20, 8')
        A('v_add_u32 v10, s30, v11')
        A('v_lshl_add_u32 v9, v2, 9, v9')
        A('s_lshl_b32 s30, s18, 13')
        A('s_lshl_b32 s31, s20, 10')
        A('s_add_u32 s30, s30, s31')
        A(f's_add_u32 s30, s30, {resbase}')
        A('v_add_u32 v9, s30, v9')
        A('v_add_u32 v12, s48, v3')
        A('s_lshl_b32 s30, s25, 10')
        A(f's_add_u32 s30, s30, {KVR4}')
        A('v_add_u32 v13, s30, v3')
        A('v_bfe_u32 v15, v1, 4, 1')
        A('v_lshlrev_b32 v15, 9, v15')
        A('v_bfe_u32 v4, v1, 2, 1')
        A('v_lshl_add_u32 v15, v4, 8, v15')
        A('v_and_b32 v4, 3, v1')
        A('v_lshl_add_u32 v15, v4, 1, v15')
        A('v_bfe_u32 v4, v1, 3, 1')
        A('v_lshl_add_u32 v15, v4, 3, v15')
        A('v_lshl_add_u32 v15, v2, 6, v15')
    elif resbase is None:
        A('v_and_b32 v2, 31, v1')
        A('v_lshlrev_b32 v2, 10, v2')
        A('v_lshrrev_b32 v4, 5, v1')
        A('v_lshl_add_u32 v2, v4, 3, v2')
        A('s_lshl_b32 s30, s18, 15')
        A('s_and_b32 s31, s19, 0x7fff')
        A('s_lshr_b32 s31, s31, 5')
        A('s_add_u32 s30, s30, s31')
        C.vmem(f'buffer_load_dwordx2 {v(EX, 2)}, v2, s[12:15], s30 offen', 'ex')
        C.vmem(f'buffer_load_dwordx2 {v(EX + 2, 2)}, v2, s[12:15], s30 offen offset:16', 'ex')
    else:
        A(f's_add_u32 s31, s19, {resbase}')
        C.vmem(f'buffer_load_dwordx4 {v(EX, 4)}, v3, s[8:11], s31 offen', 'ex')


def ln_stats(A, T):
    for stp in (8, 4, 2):
        for e in range(stp):
            A(f'v_add_f32 {v(T + e)}, {v(T + e)}, {v(T + e + stp)}')
    A(f'v_mul_f32 {v(T)}, {f32(1.0 / 512)}, {v(T)}')
    A(f'v_mul_f32 {v(T + 1)}, {f32(1.0 / 512)}, {v(T + 1)}')
    A(f'v_fma_f32 {v(T + 1)}, -{v(T)}, {v(T)}, {v(T + 1)}')
    A(f'v_max_f32 {v(T + 1)}, 0, {v(T + 1)}')
    A(f'v_add_f32 {v(T + 1)}, {f32(1e-5)}, {v(T + 1)}')
    A(f'v_rsq_f32 {v(T + 1)}, {v(T + 1)}')


def g4_main(C, mode, outbase=None, sxout=None, kvf=None, kfl=None, hook_red=None, raw=None, endlab=None):
    A = C.A
    ACC, XR, EX = 16, 32, 96
    KW, KA, KR, T = 192, 208, 224, 108
    if not raw:
        A('s_mov_b32 m0, s48')
        A('s_nop 0')
        for k in range(4):
            C.vmem(f'buffer_load_dwordx4 v5, s[8:11], 0 offen offset:{k * 1024} lds', f'x{k}')

    def rd(i):
        A(f'ds_read_b128 {v(XR + 4 * (i % 8), 4)}, v6 offset:{G4_ORD[i] * 1024}')

    def mf(i):
        c = '0' if i == 0 else v(ACC, 16)
        A(f'v_mfma_f32_32x32x16_bf16 {v(ACC, 16)}, {v(g4_wreg(mode, i), 4)}, {v(XR + 4 * (i % 8), 4)}, {c}')

    def wq_loads():
        for i in range(16):
            so, im = soff(G4_ORD[i])
            A(f'buffer_load_dwordx4 {v(128 + 4 * i, 4)}, v64, s[8:11], {so} offen offset:{im}')

    if mode == 'qkv':
        A('s_add_u32 s35, s3, s26')
        if raw:
            raw['front']()
        else:
            for e in range(2):
                C.vmem(f'buffer_load_dwordx2 {v(T + 2 * e, 2)}, v9, s[8:11], 0 offen offset:{e * 256}', 'sx')
            l1, l2 = C.lab('w1'), C.lab('w2')
            A('s_cmp_eq_u32 s3, 0')
            A(f's_cbranch_scc1 {l1}')
            flag_b(C)
            wq_loads()
            A('s_waitcnt vmcnt(16)')
            A(f's_branch {l2}')
            A.label(l1)
            A('s_waitcnt vmcnt(0)')
            A.label(l2)
            C.vm = []
            C.stamp()
        lk = C.lab('k4')
        A('s_cmp_lg_u32 s3, 0')
        A(f's_cbranch_scc1 {lk}')
        if raw:
            raw['kvw']()
        else:
            for k in range(4):
                A(f'ds_read_b128 {v(KR + 4 * k, 4)}, v12 offset:{k * 1024}')
        for k in range(4):
            if not raw:
                A(f's_waitcnt lgkmcnt({3 - k})')
            A(f'v_mfma_f32_32x32x16_bf16 {v(KA, 16)}, {v(KW + 4 * k, 4)}, {v(KR + 4 * k, 4)}, {"0" if k == 0 else v(KA, 16)}')
        A.label(lk)
        A(f'v_add_f32 {v(T)}, {v(T)}, {v(T + 2)}')
        A(f'v_add_f32 {v(T + 1)}, {v(T + 1)}, {v(T + 3)}')
        A(f'v_mov_b32 {v(T + 2)}, {v(T)}')
        A(f'v_mov_b32 {v(T + 3)}, {v(T + 1)}')
        A('s_nop 1')
        swap_add(A, T, T + 2)
        swap_add(A, T + 1, T + 3)
        A(f'ds_write_b64 v10, {v(T, 2)}')
        A(f'v_mov_b32 {v(T + 2)}, 0')
        A(f'v_mov_b32 v9, {ST4 + 8192}')
        A(f'ds_write_b32 v9, {v(T + 2)}')
        lk = C.lab('k5')
        A('s_cmp_lg_u32 s3, 0')
        A(f's_cbranch_scc1 {lk}')
        for k in range(4):
            A(f'ds_write_b128 v14, {v(KA + 4 * k, 4)} offset:{k * 1024}')
        A.label(lk)
        A('s_waitcnt lgkmcnt(0)')
        A('s_barrier')
        for ww in range(8):
            A(f'ds_read_b64 {v(T + 2 * ww, 2)}, v11 offset:{ww * 256}')
        lv, le, lf = C.lab('v6'), C.lab('e6'), C.lab('f6')
        A('s_cmp_lg_u32 s35, 0')
        A(f's_cbranch_scc1 {le}')
        A('s_setprio 3')
        if FINE == 3:
            C.stamp()
        A('s_waitcnt lgkmcnt(4)')
        for ww in range(8):
            A(f'ds_read_b128 {v(KR + 4 * ww, 4)}, v13 offset:{ww * 4096}')
        A('s_waitcnt lgkmcnt(8)')
        for r in range(16):
            A(f'v_mov_b32 {v(KA + r)}, {v(T + r)}')
        ln_stats(A, KA)
        A('s_lshl_b32 s30, s18, 11')
        A(f's_add_u32 s30, s30, {kvf}')
        A('s_waitcnt lgkmcnt(0)')
        if raw:
            raw['kvcs0']()
        for stp in (16, 8, 4):
            for r in range(stp):
                A(f'v_add_f32 {v(KR + r)}, {v(KR + r)}, {v(KR + stp + r)}')
        if raw:
            raw['kvcs1']()
        for r in range(4):
            A(f'v_fma_f32 {v(KR + r)}, -{v(KA)}, {v(EX + 8 + r)}, {v(KR + r)}')
        for r in range(4):
            A(f'v_mul_f32 {v(KR + r)}, {v(KA + 1)}, {v(KR + r)}')
        for m in range(2):
            A(f'v_cvt_pk_bf16_f32 {v(KR + 8 + m)}, {v(KR + 2 * m)}, {v(KR + 2 * m + 1)}')
        A('s_cmp_ge_u32 s20, 2')
        A(f's_cbranch_scc1 {lv}')
        A('s_lshl_b32 s31, s20, 3')
        A('s_add_u32 s31, s31, s30')
        A(f'buffer_store_dwordx2 {v(KR + 8, 2)}, v3, s[8:11], s31 offen sc0 sc1')
        A(f's_branch {lf}')
        A.label(lv)
        A('s_lshl_b32 s31, s29, 10')
        A(f's_add_u32 s31, s31, {ST4 + 4096}')
        A('v_add_u32 v15, s31, v15')
        for r in range(4):
            op = 'ds_write_b16' if r % 2 == 0 else 'ds_write_b16_d16_hi'
            A(f'{op} v15, {v(KR + 8 + r // 2)} offset:{r * 16}')
        A('v_lshrrev_b32 v2, 3, v1')
        A('v_lshlrev_b32 v2, 8, v2')
        A(f'v_and_b32 {v(KR)}, 7, v1')
        A(f'v_lshl_add_u32 v2, {v(KR)}, 4, v2')
        A('v_add_u32 v15, s31, v2')
        A('s_mov_b32 exec_hi, 0')
        A(f'ds_read_b128 {v(KR + 12, 4)}, v15')
        A('s_lshl_b32 s31, s29, 7')
        A('s_add_u32 s31, s31, s30')
        A('s_waitcnt lgkmcnt(0)')
        A(f'buffer_store_dwordx4 {v(KR + 12, 4)}, v2, s[8:11], s31 offen offset:1024 sc0 sc1')
        A('s_mov_b64 exec, -1')
        A.label(lf)
        lg = C.lab('g6')
        if FINE == 3:
            C.stamp()
        A('s_lshl_b32 s30, s18, 7')
        A(f's_add_u32 s30, s30, {kfl}')
        if raw:
            raw['zchk']()
        A('s_mov_b64 exec, 1')
        A('s_waitcnt vmcnt(0)')
        A('ds_add_rtn_u32 v2, v9, v4')
        A('s_waitcnt lgkmcnt(0)')
        A('v_cmp_eq_u32 vcc, 3, v2')
        A('s_cbranch_vccz ' + lg)
        A('buffer_store_dword v4, v0, s[8:11], s30 offen sc0 sc1')
        A.label(lg)
        A('s_mov_b64 exec, -1')
        A('s_setprio 0')
        if FINE == 3:
            C.stamp()
        A.label(le)
        flag_b(C)
        A('s_waitcnt lgkmcnt(0)')
        if raw:
            raw['wprep']()
        else:
            l3 = C.lab('w3')
            A('s_cmp_lg_u32 s3, 0')
            A(f's_cbranch_scc1 {l3}')
            C.flagb = True
            flag_b(C)
            wq_loads()
            A.label(l3)
        if raw:
            raw['loop'](rd, mf)
        else:
            for i in range(8):
                rd(i)
            ln_stats(A, T)
            for i in range(16):
                A(f's_waitcnt lgkmcnt({7 if i < 8 else 15 - i}) vmcnt({15 - i})')
                mf(i)
                if i < 8:
                    rd(i + 8)
    else:
        def wl(i):
            so, im = soff(G4_ORD[i])
            C.vmem(f'buffer_load_dwordx4 {v(g4_wreg(mode, i), 4)}, v116, s[8:11], {so} offen offset:{im}', f'w{i}')
        if WO_LATE:
            for i in range(8, 8 + WO_L0):
                wl(i)
        C.wait('x1')
        A('s_barrier')
        C.stamp()
        for i in range(8):
            rd(i)
        if WO_LATE:
            for i in range(8 + WO_L0, 16):
                wl(i)
        for i in range(4):
            A(f's_waitcnt lgkmcnt({7 - i})')
            mf(i)
        C.wait('x3')
        A('s_barrier')
        for i in range(8, 12):
            rd(i)
        for i in range(4, 8):
            A('s_waitcnt lgkmcnt(7)')
            mf(i)
            rd(i + 8)
        flag_b(C)
        for i in range(8, 16):
            C.wait(f'w{i}', f'lgkmcnt({15 - i})')
            mf(i)
            if hook_red and i >= 8:
                hook_red(i - 8)
    C.stamp()
    if mode == 'qkv':
        kv_setup(C, kvf, kfl)
        A(f'v_mul_f32 {v(T + 2)}, {f32(QSCALE)}, {v(T + 1)}')
        if raw:
            raw['cs0']()
    else:
        C.wait('ex')
        TT = XR
        for m in range(4):
            A(f'v_lshlrev_b32 {v(TT + 2 * m)}, 16, {v(EX + m)}')
            A(f'v_and_b32 {v(TT + 2 * m + 1)}, 0xffff0000, {v(EX + m)}')
        A('s_nop 3')
    for h2 in range(2):
        A(f'ds_write_b128 v7, {v(ACC + 8 + 4 * h2, 4)} offset:{h2 * 1024}')
    if mode == 'qkv':
        if not raw:
            for r in range(8):
                A(f'v_fma_f32 {v(ACC + r)}, -{v(T)}, {v(EX + r)}, {v(ACC + r)}')
    else:
        for r in range(8):
            A(f'v_add_f32 {v(ACC + r)}, {v(ACC + r)}, {v(XR + r)}')
    A('s_waitcnt lgkmcnt(0)')
    A('s_barrier')
    for h2 in range(2):
        A(f'ds_read_b128 {v(ACC + 8 + 4 * h2, 4)}, v8 offset:{h2 * 1024}')
    if mode == 'qkv':
        if FINE == 3:
            C.stamp()
        kv_wait(C, 1, endlab)
        if FINE == 3:
            C.stamp()
        att_kvdma(C, 0)
        kv_flagload(C)
    if raw:
        raw['cs']()
        for r in range(8):
            A(f'v_fma_f32 {v(ACC + r)}, -{v(T)}, {v(EX + r)}, {v(ACC + r)}')
    A('s_waitcnt lgkmcnt(0)')
    for r in range(8):
        A(f'v_add_f32 {v(ACC + r)}, {v(ACC + r)}, {v(ACC + 8 + r)}')
    if mode == 'qkv':
        for r in range(8):
            A(f'v_mul_f32 {v(ACC + r)}, {v(T + 2)}, {v(ACC + r)}')
        for m in range(4):
            A(f'v_cvt_pk_bf16_f32 {v(124 + m)}, {v(ACC + 2 * m)}, {v(ACC + 2 * m + 1)}')
        A('s_barrier')
    else:
        P = ACC + 8
        for m in range(4):
            A(f'v_cvt_pk_bf16_f32 {v(P + m)}, {v(ACC + 2 * m)}, {v(ACC + 2 * m + 1)}')
        A(f's_add_u32 s31, s19, {outbase}')
        C.vmem(f'buffer_store_dwordx4 {v(P, 4)}, v3, s[8:11], s31 offen{WT}', 'st')
        blk_stats(C, P, XR)
        A('s_lshr_b32 s31, s19, 2')
        A(f's_add_u32 s31, s31, {sxout}')
        A('v_lshlrev_b32 v4, 3, v1')
        A('s_mov_b32 exec_hi, 0')
        C.vmem(f'buffer_store_dwordx2 {v(XR, 2)}, v4, s[8:11], s31 offen{WT}', 'st')
        A('s_mov_b64 exec, -1')


def qkv4_wstep(C, st, n):
    pass


def qkv4_wrest(C):
    A = C.A
    l = C.lab('kw')
    A('s_lshl_b32 s30, s20, 12')
    A(f's_add_u32 s30, s30, {WQKVP + 16 * 32 * KB}')
    A('s_cmp_lg_u32 s3, 0')
    A(f's_cbranch_scc1 {l}')
    for k in range(4):
        A(f'buffer_load_dwordx4 {v(192 + 4 * k, 4)}, v3, s[8:11], s30 offen offset:{k * 1024}')
    A.label(l)


def att_kvdma(C, r):
    A = C.A
    A(f's_add_u32 s30, s39, {r * 16384}')
    A('s_and_b32 s30, s30, 0x1ffff')
    A(f's_add_u32 m0, s37, {r * 8 * KVT}')
    A('s_add_u32 s30, s30, s38')
    A('buffer_load_dwordx4 v3, s[8:11], s30 offen lds')
    A('buffer_load_dwordx4 v3, s[8:11], s30 offen offset:1024 lds')


def kv_flagload(C):
    A = C.A
    A('s_mov_b64 exec, 0xff')
    A('buffer_load_dword v2, v0, s[8:11], s33 offen sc1')
    A('s_mov_b64 exec, -1')


def kv_setup(C, kvf, kfl):
    A = C.A
    A(f's_mul_i32 s37, s20, {KVT}')
    A('s_lshl_b32 s38, s20, 11')
    A(f's_add_u32 s38, s38, {kvf}')
    A('s_lshr_b32 s30, s21, 1')
    A('s_lshl_b32 s39, s30, 14')
    A('v_add_u32 v0, s30, v1')
    A('v_and_b32 v0, 7, v0')
    A('v_lshlrev_b32 v0, 10, v0')
    A('s_lshl_b32 s33, s20, 7')
    A(f's_add_u32 s33, s33, {kfl}')
    kv_flagload(C)


def kv_wait(C, mask, endlab):
    A = C.A
    lp, lpd = C.lab('kp'), C.lab('kpd')
    A('s_mov_b32 s31, 0')
    A('s_mov_b64 exec, 0xff')
    A.label(lp)
    A('s_add_u32 s31, s31, 1')
    A('s_waitcnt vmcnt(0)')
    A('v_cmp_ne_u32 vcc, 0, v2')
    A(f's_and_b32 s30, vcc_lo, {mask}')
    A(f's_cmp_eq_u32 s30, {mask}')
    A(f's_cbranch_scc1 {lpd}')
    A(f's_sleep {KV_SLEEP}')
    A('buffer_load_dword v2, v0, s[8:11], s33 offen sc1')
    A(f's_cmp_lt_u32 s31, {1 << 21}')
    A(f's_cbranch_scc1 {lp}')
    A(f's_branch {endlab}')
    A.label(lpd)
    A('s_mov_b64 exec, -1')


def att_phase(C, kvf, kfl, endlab, stubs, fixed={}, pf0=None, pre_hook=None, loadq=True, early=False):
    A = C.A
    tg = C.tag
    Q, CN, S0, S1, O, P, KF, VF, VK, VV, T = 124, 8, 24, 40, 56, 72, 80, 88, 104, 105, 106
    VV1 = 111
    S = [S0, S1]
    A(f's_add_u32 s36, s19, {C.B["OF"]}')
    if loadq:
        A(f's_add_u32 s31, s19, {C.B["QF"]}')
        C.vmem(f'buffer_load_dwordx4 {v(Q, 4)}, v3, s[8:11], s31 offen', 'q')
        flag_b(C)
    def kvdma(r):
        att_kvdma(C, r)
    if pre_hook:
        pre_hook()
    A(f'v_mov_b32 {v(VK)}, v3')
    A(f'v_and_b32 {v(T)}, 15, v1')
    A(f'v_lshrrev_b32 {v(T + 1)}, 5, v1')
    A(f'v_lshl_add_u32 {v(T)}, {v(T + 1)}, 4, {v(T)}')
    A(f'v_lshlrev_b32 {v(T)}, 4, {v(T)}')
    A(f'v_add_u32 {v(VV)}, 1024, {v(T)}')
    A(f'v_add_u32 {v(VV1)}, 1536, {v(T)}')
    A(f'v_and_b32 {v(T + 1)}, 31, v1')
    A(f'v_cmp_eq_u32 vcc, 16, {v(T + 1)}')
    A(f'v_mov_b32 {v(T + 2)}, 2048')
    A('s_nop 0')
    A(f'v_cndmask_b32 {v(VV)}, {v(VV)}, {v(T + 2)}, vcc')
    A(f'v_cndmask_b32 {v(VV1)}, {v(VV1)}, {v(T + 2)}, vcc')
    A(f'v_cmp_lt_u32 vcc, 16, {v(T + 1)}')
    A(f'v_mov_b32 {v(T + 2)}, 2064')
    A('s_nop 0')
    A(f'v_cndmask_b32 {v(VV)}, {v(VV)}, {v(T + 2)}, vcc')
    A(f'v_cndmask_b32 {v(VV1)}, {v(VV1)}, {v(T + 2)}, vcc')
    for r in range(16):
        A(f'v_mov_b32 {v(O + r)}, 0')
    for m in range(4, 8):
        A(f'v_mov_b32 {v(P + m)}, 0')
    for m in range(4):
        A(f'v_mov_b32 {v(VF + 12 + m)}, 0')
        A(f'v_mov_b32 {v(P + m)}, 0x3f803f80')
    A(f'v_mul_u32_u24 {v(T)}, {KVT}, v1')
    lcw = C.lab('cw')
    A('s_cmp_lg_u32 s20, 7')
    A(f's_cbranch_scc1 {lcw}')
    A(f'ds_write_b128 {v(T)}, {v(P, 4)} offset:2048')
    A(f'ds_write_b128 {v(T)}, {v(P + 4, 4)} offset:2064')
    A.label(lcw)
    lnd = C.lab('nd')
    A('s_waitcnt vmcnt(0) lgkmcnt(0)')
    A('v_cmp_ne_u32 vcc, 0, v2')
    A('s_barrier')
    A('s_and_b32 s32, vcc_lo, 0xff')
    A('s_cmp_lg_u32 s32, 0xff')
    A(f's_cbranch_scc1 {lnd}')
    for r in range(1, 4):
        kvdma(r)
    A.label(lnd)
    C.vm = []
    C.stamp()

    def rdK(buf, t):
        A(f'ds_read_b128 {v(KF + buf * 4, 4)}, {v(VK)} offset:{t * KVT}')

    def rdV(buf, t):
        A(f'ds_read_b128 {v(VF + buf * 8, 4)}, {v(VV)} offset:{t * KVT}')
        A(f'ds_read_b128 {v(VF + buf * 8 + 4, 4)}, {v(VV1)} offset:{t * KVT}')

    rdK(0, 0)
    rdK(1, 1)
    rdV(0, 0)
    A('s_waitcnt lgkmcnt(3)')
    A(f'v_mfma_f32_32x32x16_bf16 {v(S0, 16)}, {v(KF, 4)}, {v(Q, 4)}, 0')
    A('s_nop 11')
    A(f'v_max3_f32 {v(T)}, {v(S0)}, {v(S0 + 1)}, {v(S0 + 2)}')
    for r in range(3, 15, 2):
        A(f'v_max3_f32 {v(T)}, {v(T)}, {v(S0 + r)}, {v(S0 + r + 1)}')
    A(f'v_max_f32 {v(T)}, {v(T)}, {v(S0 + 15)}')
    A(f'v_mov_b32 {v(T + 1)}, {v(T)}')
    A('s_nop 1')
    A(f'v_permlane32_swap_b32 {v(T)}, {v(T + 1)}')
    A(f'v_max_f32 {v(T)}, {v(T)}, {v(T + 1)}')
    for r in range(16):
        A(f'v_sub_f32 {v(CN + r)}, 0, {v(T)}')
    for r in range(16):
        A(f'v_sub_f32 {v(S0 + r)}, {v(S0 + r)}, {v(T)}')
    A('s_setprio 3')
    C.stamp()
    def tile(t, off, extra=None):
        cur, nxt = t & 1, (t + 1) & 1
        Sc, Sn = S[cur], S[nxt]
        if not ONEWAIT:
            A('s_waitcnt lgkmcnt(2)')
        A(f'v_mfma_f32_32x32x16_bf16 {v(Sn, 16)}, {v(KF + nxt * 4, 4)}, {v(Q, 4)}, {v(CN, 16)}')
        rdK(cur, off + 2)
        for r in range(6):
            A(f'v_exp_f32 {v(Sc + r)}, {v(Sc + r)}')
        A(f'v_mfma_f32_32x32x16_bf16 {v(O, 16)}, {v(VF + nxt * 8 + 4, 4)}, {v(P + 4, 4)}, {v(O, 16)}')
        if extra:
            extra()
        for r in range(6, 8):
            A(f'v_exp_f32 {v(Sc + r)}, {v(Sc + r)}')
        for m in range(4):
            A(f'v_cvt_pk_bf16_f32 {v(P + m)}, {v(Sc + 2 * m)}, {v(Sc + 2 * m + 1)}')
        A(f'v_exp_f32 {v(Sc + 8)}, {v(Sc + 8)}')
        A(f'v_exp_f32 {v(Sc + 9)}, {v(Sc + 9)}')
        A('s_waitcnt lgkmcnt(0)' if ONEWAIT else 's_waitcnt lgkmcnt(1)')
        A(f'v_mfma_f32_32x32x16_bf16 {v(O, 16)}, {v(VF + cur * 8, 4)}, {v(P, 4)}, {v(O, 16)}')
        rdV(nxt, off + 1)
        for r in range(10, 16):
            A(f'v_exp_f32 {v(Sc + r)}, {v(Sc + r)}')
        for m in range(4, 8):
            A(f'v_cvt_pk_bf16_f32 {v(P + m)}, {v(Sc + 2 * m)}, {v(Sc + 2 * m + 1)}')

    def bump(n):
        for rg in (VK, VV, VV1):
            A(f'v_add_u32 {v(rg)}, {n * KVT}, {v(rg)}')
    if ONEWAIT:
        A('s_waitcnt lgkmcnt(0)')
    queue = list(stubs)
    nq = len(queue)
    tpf0 = 4 * pf0 if pf0 else TB2
    ntl = 64 - TPFEND - tpf0
    prio = {TP2: 2, TP1: 1, TP0: 0}
    dq = list(range(4, 8))
    for t in range(64):
        if t == TCHK:
            ld = C.lab('dn')
            A('s_cmp_eq_u32 s32, 0xff')
            A(f's_cbranch_scc1 {ld}')
            kv_flagload(C)
            kv_wait(C, 0xff, endlab)
            for r in range(1, 4):
                kvdma(r)
            A.label(ld)
        if t == 6 and TB2 != 6:
            assert not dq
            A('s_waitcnt vmcnt(12)')
            A('s_barrier')
        if t == TB2:
            assert not dq
            A('s_waitcnt vmcnt(0)')
            A('s_barrier')
        if t in prio:
            A(f's_setprio {prio[t]}')
        if t % 4 == 0 and t // 4 in fixed:
            fixed[t // 4]()
        fs = []
        if t >= TCHK:
            for _ in range(DPT):
                if dq:
                    fs.append(lambda r=dq.pop(0): kvdma(r))
        if t >= tpf0 and queue:
            k = t - tpf0
            n = (nq * (k + 1)) // ntl - (nq * k) // ntl
            fs += [queue.pop(0) for _ in range(min(n, len(queue)))]
        tile(t, t % 24 if t < 48 else t - 48, lambda fs=fs: [f() for f in fs])
        if t in (23, 47):
            bump(24)
        if t == 63:
            bump(16)
    assert not queue
    A(f'v_mfma_f32_32x32x16_bf16 {v(O, 16)}, {v(VF + 8 + 4, 4)}, {v(P + 4, 4)}, {v(O, 16)}')
    A('s_mov_b32 s39, 0')
    C.stamp()
    A('s_waitcnt lgkmcnt(0)')
    A('s_nop 10')
    A.label(f'{tg}_fin')
    A(f'v_mov_b32 {v(T)}, {v(O + 8)}')
    A(f'v_mov_b32 {v(T + 1)}, {v(O + 8)}')
    A(f'v_mul_f32 {v(T + 2)}, 0, {v(O)}')
    A(f'v_fma_f32 {v(T + 2)}, {v(O + 1)}, 0, {v(T + 2)}')
    A(f'v_permlane32_swap_b32 {v(T)}, {v(T + 1)}')
    for r in range(2, 8):
        A(f'v_fma_f32 {v(T + 2)}, {v(O + r)}, 0, {v(T + 2)}')
    A(f'v_add_f32 {v(T + 2)}, {v(T + 2)}, {v(T)}')
    A(f'v_mov_b32 {v(T + 3)}, {f32(2.0 ** 30)}')
    A(f'v_cmp_nle_f32 vcc, {v(T + 2)}, {v(T + 3)}')
    A(f'v_rcp_f32 {v(T)}, {v(T)}')
    A('s_cmp_eq_u32 s39, 99')
    A(f's_cbranch_scc1 {tg}_store')
    A(f's_cbranch_vccnz {tg}_slow')
    A.label(f'{tg}_store')
    for r in range(8):
        A(f'v_mul_f32 {v(O + r)}, {v(T)}, {v(O + r)}')
    for m in range(4):
        A(f'v_cvt_pk_bf16_f32 {v(P + m)}, {v(O + 2 * m)}, {v(O + 2 * m + 1)}')
    C.vmem(f'buffer_store_dwordx4 {v(P, 4)}, v3, s[8:11], s36 offen{WT}', 'st')

    def tail(with_body):
        A.label(f'{tg}_slow')
        A(f'v_subrev_u32 {v(VK)}, {64 * KVT}, {v(VK)}')
        A(f'v_subrev_u32 {v(VV)}, {64 * KVT}, {v(VV)}')
        A(f'v_subrev_u32 {v(VV1)}, {64 * KVT}, {v(VV1)}')
        for r in range(16):
            A(f'v_mov_b32 {v(O + r)}, 0')
        M = T + 4
        A(f'v_sub_f32 {v(M)}, 0, {v(CN)}')
        A.label(f'{tg}_sloop')
        rdK(0, 0)
        rdV(0, 0)
        A('s_waitcnt lgkmcnt(0)')
        A(f'v_mfma_f32_32x32x16_bf16 {v(S0, 16)}, {v(KF, 4)}, {v(Q, 4)}, 0')
        A('s_nop 11')
        A(f'v_max3_f32 {v(T)}, {v(S0)}, {v(S0 + 1)}, {v(S0 + 2)}')
        for r in range(3, 15, 2):
            A(f'v_max3_f32 {v(T)}, {v(T)}, {v(S0 + r)}, {v(S0 + r + 1)}')
        A(f'v_max3_f32 {v(T)}, {v(T)}, {v(S0 + 15)}, {v(M)}')
        A(f'v_mov_b32 {v(T + 1)}, {v(T)}')
        A('s_nop 1')
        A(f'v_permlane32_swap_b32 {v(T)}, {v(T + 1)}')
        A(f'v_max_f32 {v(T)}, {v(T)}, {v(T + 1)}')
        A(f'v_sub_f32 {v(T + 1)}, {v(M)}, {v(T)}')
        A(f'v_exp_f32 {v(T + 1)}, {v(T + 1)}')
        A(f'v_mov_b32 {v(M)}, {v(T)}')
        for r in range(16):
            A(f'v_sub_f32 {v(S0 + r)}, {v(S0 + r)}, {v(T)}')
        for r in range(16):
            A(f'v_exp_f32 {v(S0 + r)}, {v(S0 + r)}')
        for r in range(16):
            A(f'v_mul_f32 {v(O + r)}, {v(T + 1)}, {v(O + r)}')
        for m in range(8):
            A(f'v_cvt_pk_bf16_f32 {v(P + m)}, {v(S0 + 2 * m)}, {v(S0 + 2 * m + 1)}')
        A('s_nop 1')
        A(f'v_mfma_f32_32x32x16_bf16 {v(O, 16)}, {v(VF, 4)}, {v(P, 4)}, {v(O, 16)}')
        A(f'v_mfma_f32_32x32x16_bf16 {v(O, 16)}, {v(VF + 4, 4)}, {v(P + 4, 4)}, {v(O, 16)}')
        A(f'v_add_u32 {v(VK)}, {KVT}, {v(VK)}')
        A(f'v_add_u32 {v(VV)}, {KVT}, {v(VV)}')
        A(f'v_add_u32 {v(VV1)}, {KVT}, {v(VV1)}')
        A('s_nop 11')
        A('s_add_u32 s39, s39, 1')
        A('s_cmp_lt_u32 s39, 64')
        A(f's_cbranch_scc1 {tg}_sloop')
        A('s_mov_b32 s39, 99')
        A(f's_branch {tg}_fin')
    return tail


V_WGU = 112


def gu_waddr(C):
    A = C.A
    A('s_mul_i32 s30, s22, 7')
    A('s_min_u32 s31, s20, 6')
    A('s_add_u32 s40, s30, s31')
    A('s_lshl_b32 s30, s40, 15')
    A(f's_add_u32 s30, s30, {WGUP}')
    A(f'v_add_u32 {v(V_WGU)}, s30, v3')


def gu_wload(C, ks):
    so, im = soff(ks)
    C.vmem(f'buffer_load_dwordx4 {v(128 + 4 * ks, 4)}, {v(V_WGU)}, s[8:11], {so} offen offset:{im}', 'wg')


def gu_pre(C):
    A = C.A
    CS = 112
    A('v_mov_b32 v15, v113')
    A('v_mov_b32 v9, v114')
    A(f'v_mov_b32 v14, {v(V_WGU)}')
    A('s_lshl_b32 s30, s21, 2')
    A('s_add_u32 s30, s30, s25')
    A('s_lshl_b32 s30, s30, 15')
    A('s_lshl_b32 s31, s26, 11')
    A('s_add_u32 s30, s30, s31')
    A(f's_add_u32 s30, s30, {C.B["XB"]}')
    A('v_add_u32 v13, s30, v3')
    A('s_lshl_b32 s48, s25, 15')
    A('s_add_u32 s48, s48, s31')
    A('v_add_u32 v7, 0x10000, v3')
    A('v_lshrrev_b32 v11, 5, v1')
    A('v_lshlrev_b32 v11, 4, v11')
    A('s_min_u32 s30, s20, 6')
    A('s_lshl_b32 s30, s30, 7')
    A(f's_add_u32 s30, s30, {132 * KB}')
    A('v_add_u32 v10, s30, v11')
    A('v_and_b32 v12, 31, v1')
    A('v_lshlrev_b32 v12, 3, v12')
    A('v_lshl_add_u32 v12, v11, 8, v12')
    A('s_lshl_b32 s30, s21, 15')
    A(f's_add_u32 s30, s30, {C.B["SXB"]}')
    A('v_add_u32 v12, s30, v12')
    A(f'v_add_u32 v8, {128 * KB}, v3')


def gu_main(C, after_store=None):
    A = C.A
    ACC, XF, CS = 16, 80, 112
    STR = [4, 10, 240, 244]

    def dma(c):
        A(f's_add_u32 m0, s48, {c * 4096}')
        so = '0' if c == 0 else s(40 + c)
        A('s_nop 0')
        for k in range(2):
            C.vmem(f'buffer_load_dwordx4 v13, s[8:11], {so} offen offset:{k * 1024} lds', f'x{c}')
    dma(0)
    dma(1)

    def rd(ks):
        buf = ks & 1
        for i in range(4):
            base = 'v3' if i < 2 else 'v7'
            A(f'ds_read_b128 {v(XF + buf * 16 + i * 4, 4)}, {base} offset:{(i & 1) * 32768 + ks * 1024}')

    def stats_load(i):
        for e in range(16):
            C.vmem(f'buffer_load_dwordx2 {v(ACC + (i & 1) * 32 + 2 * e, 2)}, v12, s[8:11], {"0" if i == 0 else s(40 + 2 * i)} offen offset:{e * 256}', f's{i}')

    def stats_sum(i):
        b = ACC + (i & 1) * 32
        C.wait(f's{i}')
        for stp in (16, 8, 4, 2):
            for e in range(stp):
                A(f'v_add_f32 {v(b + e)}, {v(b + e)}, {v(b + e + stp)}')
        A(f'v_mov_b32 {v(b + 2)}, {v(b)}')
        A(f'v_mov_b32 {v(b + 3)}, {v(b + 1)}')
        A('s_nop 1')
        A(f'v_permlane32_swap_b32 {v(b)}, {v(b + 2)}')
        A(f'v_permlane32_swap_b32 {v(b + 1)}, {v(b + 3)}')
        A(f'v_add_f32 {v(b)}, {v(b)}, {v(b + 2)}')
        A(f'v_add_f32 {v(b + 1)}, {v(b + 1)}, {v(b + 3)}')
        A(f'v_mul_f32 {v(b)}, {f32(-1.0 / 512)}, {v(b)}')
        A(f'v_mul_f32 {v(b + 1)}, {f32(1.0 / 512)}, {v(b + 1)}')
        A(f'v_fma_f32 {v(b + 1)}, -{v(b)}, {v(b)}, {v(b + 1)}')
        A(f'v_max_f32 {v(b + 1)}, 0, {v(b + 1)}')
        A(f'v_add_f32 {v(b + 1)}, {f32(1e-5)}, {v(b + 1)}')
        A(f'v_rcp_f32 {v(b + 2)}, {v(b + 1)}')
        A(f'v_mov_b32 {v(b + 1)}, {v(b)}')
        A(f'v_mov_b32 {v(b + 3)}, {v(b + 2)}')
        A(f'ds_write_b128 v8, {v(b, 4)} offset:{i * 1024}')
        A('s_waitcnt lgkmcnt(0)')

    def loop(idle):
        C.wait('x0')
        A('s_barrier')
        C.stamp()
        if not idle:
            rd(0)
        for ks in range(32):
            if ks + 1 < 32:
                if (ks + 1) in GU_BARS:
                    C.wait(f'x{GU_BARS[ks + 1]}')
                    A('s_barrier')
                if not idle:
                    rd(ks + 1)
                    if ks == 28:
                        for g in range(4):
                            A(f'ds_read_b128 {v(CS + g * 4, 4)}, v10 offset:{g * 32}')
                        A('s_waitcnt lgkmcnt(8)')
                    elif ks == 30:
                        for i in range(4):
                            A(f'ds_read_b128 {v(STR[i], 4)}, v8 offset:{i * 1024}')
                        A('s_waitcnt lgkmcnt(8)')
                    else:
                        A('s_waitcnt lgkmcnt(4)')
            elif not idle:
                A('s_waitcnt lgkmcnt(0)')
            buf = ks & 1
            todo = []
            if ks == 10:
                C.flagb = True
                flag_b(C)
            if ks < 6:
                todo.append(lambda: dma(ks + 2))
            if ks == 16 + WO_TAIL and not idle:
                C.wait('wg')
            if 6 <= ks < 6 + 16 - WO_TAIL and not idle:
                k2 = 16 + WO_TAIL + ks - 6
                so, im = soff(k2)
                todo.append(lambda k2=k2, so=so, im=im: C.vmem(f'buffer_load_dwordx4 {v(128 + 4 * k2, 4)}, v14, s[8:11], {so} offen offset:{im}', 'wg'))
            if ks >= GU_WD0:
                nleft = 28 - len(wdone)
                for st in [st for st in range(28) if st < ks and st not in wdone][:(2 if nleft > 31 - ks else 1)]:
                    todo.append(lambda st=st: g3_wload(C, (15, 9), st, 128))
                    wdone.add(st)
            for i in range(4):
                if not idle and not (GU_TAIL and (ks == 31 or (ks == 30 and i >= 2))):
                    c = '0' if ks == 0 else v(ACC + i * 16, 16)
                    if GU16:
                        for t2 in range(2):
                            aa = ACC + i * 16 + ((ks & 1) * 2 + t2) * 4
                            A(f'v_mfma_f32_16x16x32_bf16 {v(aa, 4)}, {v(128 + 4 * (ks ^ t2 if ks > 1 else ks), 4)}, {v(XF + buf * 16 + i * 4, 4)}, {"0" if ks < 2 else v(aa, 4)}')
                    else:
                        A(f'v_mfma_f32_32x32x16_bf16 {v(ACC + i * 16, 16)}, {v(128 + 4 * ks, 4)}, {v(XF + buf * 16 + i * 4, 4)}, {c}')
                if i < 3 and todo:
                    f_ = todo.pop(0)
                    if not (GU_NOW and ks >= 6):
                        f_()
            if idle:
                if ks == 6:
                    stats_load(0)
                    stats_load(1)
                if ks == 8:
                    stats_sum(0)
                    stats_load(2)
                    stats_sum(1)
                    stats_load(3)
                if ks == 12:
                    stats_sum(2)
                    stats_sum(3)
                    A(f's_mul_i32 s30, s22, {7 * 128}')
                    A(f's_add_u32 s30, s30, {CSP}')
                    for kp in range(8):
                        C.vmem(f'buffer_load_dwordx4 {v(ACC + 4 * kp, 4)}, v3, s[8:11], s30 offen', 'cp')
                        if kp < 7:
                            A(f's_add_u32 s30, s30, {3584 * 4}')
                if ks == 16:
                    C.wait('cp')
                    for stp in (16, 8, 4):
                        for e in range(stp):
                            A(f'v_add_f32 {v(ACC + e)}, {v(ACC + e)}, {v(ACC + e + stp)}')
                    A(f'v_add_u32 v10, {132 * KB}, v3')
                    A(f'ds_write_b128 v10, {v(ACC, 4)}')
                    A('s_waitcnt lgkmcnt(0)')
        assert len(wdone) == 28
        C.stamp()
        if idle:
            if after_store:
                after_store()
            return
        P = XF

        def epi(i):
            acc = ACC + i * 16
            for r in range(0, 16, 2):
                A(f'v_pk_fma_f32 {v(acc + r, 2)}, {v(STR[i], 2)}, {v(CS + r, 2)}, {v(acc + r, 2)}')
            for r in range(0, 8, 2):
                A(f'v_pk_mul_f32 {v(acc + r, 2)}, {v(acc + r, 2)}, {v(acc + 8 + r, 2)}')
            for r in range(0, 8, 2):
                A(f'v_pk_mul_f32 {v(acc + r, 2)}, {v(acc + r, 2)}, {v(STR[i] + 2, 2)}')
            pp = acc + 8
            for m in range(4):
                A(f'v_cvt_pk_bf16_f32 {v(pp + m)}, {v(acc + 2 * m)}, {v(acc + 2 * m + 1)}')
            C.vmem(f'buffer_store_dwordx4 {v(pp, 4)}, v3, s[8:11], s30 offen{WT}', 'st')
            if i < 3:
                A(f's_add_u32 s30, s30, {112 * KB}')

        def mm(i, ks):
            A(f'v_mfma_f32_32x32x16_bf16 {v(ACC + i * 16, 16)}, {v(128 + 4 * ks, 4)}, {v(XF + (ks & 1) * 16 + i * 4, 4)}, {v(ACC + i * 16, 16)}')
        A(f's_mul_i32 s30, s21, {4 * 112}')
        A('s_add_u32 s30, s30, s40')
        A('s_lshl_b32 s30, s30, 10')
        A(f's_add_u32 s30, s30, {C.B["HF"]}')
        if GU_TAIL:
            A('s_waitcnt lgkmcnt(0)')
            mm(0, 31)
            mm(2, 30)
            mm(1, 31)
            mm(3, 30)
            A('s_nop 8')
            epi(0)
            mm(2, 31)
            mm(3, 31)
            epi(1)
            epi(2)
            epi(3)
        else:
            A('s_nop 4')
            for i in range(4):
                epi(i)
        if after_store:
            after_store()

    ls, le = C.lab('gs'), C.lab('ge')
    A('s_cmp_eq_u32 s20, 7')
    A(f's_cbranch_scc1 {ls}')
    save, ns = list(C.vm), C.nstamp
    wdone = set()
    loop(False)
    A(f's_branch {le}')
    A.label(ls)
    C.vm, C.nstamp = list(save), ns
    wdone = set()
    loop(True)
    A.label(le)
    C.vm = ['st']


def swap_add(A, ra, rb):
    A(f'v_permlane32_swap_b32 {v(ra)}, {v(rb)}')
    A(f'v_add_f32 {v(ra)}, {v(ra)}, {v(rb)}')


def pre_part(C, end):
    A = C.A
    A('s_cmp_ge_u32 s2, 256')
    A(f's_cbranch_scc1 {end}')
    A('s_load_dwordx2 s[12:13], s[0:1], 0')
    A('s_load_dwordx2 s[16:17], s[0:1], 8')
    A('s_load_dwordx2 s[52:53], s[0:1], 16')
    A('s_load_dwordx2 s[56:57], s[0:1], 24')
    A('s_load_dwordx2 s[4:5], s[0:1], 80')
    for d, sz in ((12, 2048 * 1024), (16, 512 * 1024), (52, 512 * 32), (56, 512 * 32), (4, 256)):
        A(f's_mov_b32 {s(d + 2)}, {sz}')
        A(f's_mov_b32 {s(d + 3)}, 0x20000')
    setup(C, False, end)
    C.stamp()
    if TLBW:
        A('s_lshl_b32 s30, s20, 3')
        A(f's_add_u32 s30, s30, 32')
        A('s_cmp_eq_u32 s20, 1')
        A('s_cselect_b32 s30, 8, s30')
        A('s_load_dwordx2 s[32:33], s[0:1], s30')
        A('s_mov_b32 s31, 8192')
        A('s_cmp_ge_u32 s20, 2')
        A('s_cselect_b32 s31, 28672, s31')
        A('s_cmp_eq_u32 s20, 6')
        A('s_cselect_b32 s31, 4, s31')
        A('s_cmp_eq_u32 s20, 7')
        A(f's_cselect_b32 s31, {TLBW}, s31')
        A('v_mul_lo_u32 v4, v1, s31')
        A('s_waitcnt lgkmcnt(0)')
        A('global_load_dword v127, v4, s[32:33]')
    A('s_add_u32 s30, s21, 1')
    A('s_and_b32 s30, s30, 3')
    A('s_lshl_b32 s30, s30, 2')
    A('s_xor_b32 s30, s30, s22')
    A('s_add_u32 s30, s30, s20')
    A('s_cmp_lg_u32 s30, 0')
    A('s_cbranch_scc1 pr_z0')
    for r in range(4):
        A(f'v_mov_b32 {v(8 + r)}, 0')
    A('v_lshrrev_b32 v4, 4, v1')
    A('v_and_b32 v5, 15, v1')
    A('v_lshlrev_b32 v5, 4, v5')
    A('v_lshl_add_u32 v4, v4, 12, v5')
    A('s_lshl_b32 s30, s21, 8')
    A(f's_add_u32 s30, s30, {FLG}')
    for k in range(3):
        A('buffer_store_dwordx4 v[8:11], v4, s[8:11], s30 offen sc0 sc1')
        A('s_add_u32 s30, s30, 16384')
    A('v_lshlrev_b32 v4, 7, v1')
    A(f's_mul_i32 s30, s21, {64 * 128}')
    A(f's_add_u32 s30, s30, {PFL}')
    A('buffer_store_dwordx4 v[8:11], v4, s[8:11], s30 offen sc0 sc1')
    A('v_mov_b32 v5, 1')
    A('s_mov_b64 exec, 1')
    A('s_waitcnt vmcnt(0)')
    A('buffer_atomic_add v5, v8, s[4:7], 0 offen sc1')
    A('s_mov_b64 exec, -1')
    A('s_nop 1')
    A.label('pr_z0')
    KST, KW, KR, T, EX, XR = 240, 192, 224, 108, 96, 32
    WST, CSQ, CSKV = 96 * KB, ST4 + 9 * KB, ST4 + 10 * KB
    A('s_mov_b64 s[36:37], s[16:17]')
    A(f's_mov_b32 s38, {512 * 1024}')
    A('s_mov_b32 s39, 0x20000')
    g4_ids(C)
    A('s_lshl_b32 s30, s20, 11')
    A('s_cmp_lg_u32 s3, 0')
    A('s_cbranch_scc1 pr_k0')
    for k in range(4):
        A(f'buffer_load_dwordx4 {v(KST + 4 * k, 4)}, v3, {"s[52:55]" if k < 2 else "s[56:59]"}, s30 offen offset:{(k & 1) * 1024}')
    A.label('pr_k0')
    A('v_lshrrev_b32 v4, 3, v1')
    A('v_and_b32 v5, 7, v1')
    A('v_lshrrev_b32 v6, 4, v1')
    A('v_xor_b32 v6, v6, v5')
    A('v_lshlrev_b32 v7, 10, v4')
    A('v_lshl_add_u32 v8, v6, 4, v7')
    A('v_xor_b32 v9, 64, v8')
    A('s_lshl_b32 s30, s18, 15')
    A('s_lshl_b32 s31, s20, 7')
    A('s_add_u32 s30, s30, s31')
    A('s_lshl_b32 s32, s20, 12')
    for i in range(4):
        A(f's_add_u32 m0, s32, {KVR4 + i * 1024}')
        A('s_nop 0')
        C.vmem(f'buffer_load_dwordx4 {v(8 + (i & 1))}, s[12:15], s30 offen lds', 'x')
        A('s_add_u32 s30, s30, 8192')
    A('v_lshrrev_b32 v4, 2, v1')
    A('v_and_b32 v5, 3, v1')
    A('v_lshlrev_b32 v10, 10, v4')
    A('v_lshl_add_u32 v10, v5, 4, v10')
    A('s_lshl_b32 s31, s26, 18')
    A('s_bfe_u32 s30, s19, 0x4000b')
    A('s_lshl_b32 s30, s30, 6')
    A('s_add_u32 s31, s31, s30')
    A('s_lshl_b32 s51, s20, 13')
    A(f's_add_u32 s51, s51, {WST}')
    A('s_mov_b32 s50, s31')
    A('v_mov_b32 v88, v10')
    A('s_and_b32 s33, s22, 3')
    A(f's_lshl_b32 s33, s33, 16' if WROT else 's_mov_b32 s33, 0')

    def wloads():
        for i in range(16):
            A(f's_xor_b32 s30, s33, {G4_ORD[i] * 16384}')
            A('s_add_u32 s30, s30, s50')
            if i < 8:
                A(f's_add_u32 m0, s51, {i * 1024}')
                A('s_nop 0')
                A('buffer_load_dwordx4 v88, s[36:39], s30 offen lds')
            else:
                A(f'buffer_load_dwordx4 {v(128 + 4 * i, 4)}, v88, s[36:39], s30 offen')
    A('s_cmp_eq_u32 s3, 0')
    A('s_cbranch_scc1 pr_w1')
    A('s_barrier')
    wloads()
    A('s_waitcnt vmcnt(16)')
    A.label('pr_w1')
    C.stamp()
    A('v_and_b32 v64, 31, v1')
    A('v_lshrrev_b32 v65, 5, v1')
    A('v_lshlrev_b32 v66, 7, v64')
    A('v_lshl_add_u32 v66, v65, 3, v66')
    A('v_bfe_u32 v67, v1, 1, 3')
    A('v_lshl_add_u32 v66, v67, 4, v66')
    A(f's_add_u32 s30, s32, {KVR4}')
    A('v_add_u32 v66, s30, v66')
    A('v_bfe_u32 v67, v1, 2, 2')
    A('v_lshl_add_u32 v67, v65, 2, v67')
    A('v_lshlrev_b32 v68, 3, v5')
    A('v_bfe_u32 v69, v1, 4, 1')
    A('v_lshl_add_u32 v70, v67, 5, v68')
    A('v_lshl_add_u32 v70, v69, 11, v70')
    A('v_add_u32 v70, s30, v70')
    A('v_lshl_add_u32 v71, v67, 6, v68')
    A('v_lshl_add_u32 v71, v69, 5, v71')
    A('s_lshl_b32 s30, s26, 5')
    A('v_xor_b32 v71, s30, v71')
    A('v_add_u32 v71, s51, v71')
    A('v_add_u32 v72, s51, v3')
    A('v_mov_b32 v73, 0x3f803f80')
    A('v_lshlrev_b32 v74, 2, v64')
    A('s_lshl_b32 s30, s20, 7')
    A(f's_add_u32 s31, s30, {CSKV}')
    A('v_add_u32 v75, s31, v74')
    A('s_lshl_b32 s31, s26, 6')
    A('v_xor_b32 v74, s31, v74')
    A(f's_add_u32 s30, s30, {CSQ}')
    A('v_add_u32 v74, s30, v74')
    A('v_lshlrev_b32 v76, 4, v65')
    A('s_add_u32 s30, s30, s31')
    A('v_add_u32 v77, s30, v76')
    A('v_xor_b32 v78, 512, v77')
    A('s_lshl_b32 s30, s25, 5')
    A(f's_add_u32 s30, s30, {CSKV}')
    A('v_add_u32 v79, s30, v76')
    g4_pre(C, 'qkv', XA, resbase=0, raw=True)
    A('s_lshr_b32 s30, s33, 4')
    A('s_lshl_b32 s31, s20, 12')
    A('s_xor_b32 s30, s30, s31')
    A(f's_add_u32 s30, s30, {XF0}')
    A('v_add_u32 v12, s30, v3')
    A('v_mov_b32 v0, 0')
    A('v_mov_b32 v4, 1')
    for ch in range(8):
        A(f'v_xor_b32 {v(80 + ch)}, {ch << 4}, v66')

    def front():
        A('s_cmp_lg_u32 s3, 0')
        A('s_cbranch_scc1 pr_w2')
        A('s_waitcnt vmcnt(0)')
        A.label('pr_w2')
        C.vm = []
        C.stamp()
        for ch in range(8):
            A(f'ds_read_b64 {v(KR + 2 * ch, 2)}, {v(80 + ch)}')
        A('s_waitcnt lgkmcnt(0)')
        for k in range(4):
            A(f'ds_write_b128 v12, {v(KR + 4 * k, 4)} offset:{k * 1024}')
        for r in range(8):
            for e in range(2):
                x = v(KR + 2 * r + e)
                A(f'v_dot2_f32_bf16 {v(T + 2 * e)}, {x}, v73, {"0" if r == 0 else v(T + 2 * e)}')
                A(f'v_dot2_f32_bf16 {v(T + 2 * e + 1)}, {x}, {x}, {"0" if r == 0 else v(T + 2 * e + 1)}')
        A('s_nop 0')

    def kvw():
        for k in range(4):
            A(f'ds_write_b128 v14, {v(KST + 4 * k, 4)} offset:{k * 1024}')
        A('s_waitcnt lgkmcnt(4)')
        for st in range(4):
            for h2 in range(2):
                A(f'ds_read_b64_tr_b16 {v(KW + 4 * st + 2 * h2, 2)}, v70 offset:{st * 512 + h2 * 256}')
        A('s_waitcnt lgkmcnt(0)')
        for r in range(8):
            for e in range(2):
                A(f'v_dot2_f32_bf16 {v(80 + e)}, {v(KW + 2 * r + e)}, v73, {"0" if r == 0 else v(80 + e)}')
        A('s_nop 2')
        A('v_add_f32 v80, v80, v81')
        A('v_mov_b32 v81, v80')
        A('s_nop 1')
        swap_add(A, 80, 81)
        A('ds_write_b32 v75, v80')

    def kvcs0():
        for ww in range(8):
            A(f'ds_read_b128 {v(XR + 4 * ww, 4)}, v79 offset:{ww * 128}')

    def kvcs1():
        A('s_waitcnt lgkmcnt(0)')
        for stp in (16, 8):
            for r in range(stp):
                A(f'v_add_f32 {v(XR + r)}, {v(XR + r)}, {v(XR + stp + r)}')
        for r in range(4):
            A(f'v_add_f32 {v(EX + 8 + r)}, {v(XR + r)}, {v(XR + 4 + r)}')

    def zchk():
        lz, lzd = C.lab('z'), C.lab('zd')
        A('s_mov_b32 s31, 0')
        A('s_mov_b64 exec, 1')
        A.label(lz)
        A('buffer_load_dword v2, v0, s[4:7], 0 offen sc1')
        A('s_waitcnt vmcnt(0)')
        A('v_cmp_le_u32 vcc, 16, v2')
        A('s_add_u32 s31, s31, 1')
        A('s_cmp_eq_u64 vcc, 1')
        A(f's_cbranch_scc1 {lzd}')
        A('s_sleep 8')
        A(f's_cmp_lt_u32 s31, {1 << 20}')
        A(f's_cbranch_scc1 {lz}')
        A(f's_branch {end}')
        A.label(lzd)
        A('s_mov_b64 exec, -1')

    def wprep():
        A('s_cmp_lg_u32 s3, 0')
        A('s_cbranch_scc1 pr_w3')
        wloads()
        A.label('pr_w3')
        zchk()
        C.vm = []
        C.stamp()


    def tr(i):
        for h2 in range(2):
            A(f'ds_read_b64_tr_b16 {v(128 + 4 * i + 2 * h2, 2)}, v71 offset:{(i % 8) * 1024 + h2 * 512}')

    def csdot(r0, r1):
        for r in range(r0, r1):
            for e in range(4):
                A(f'v_dot2_f32_bf16 {v(80 + e)}, {v(128 + 4 * r + e)}, v73, {"0" if r == 0 else v(80 + e)}')

    def loop(rd, mf):
        for i in range(8):
            tr(i)
            if i == 5:
                A('s_waitcnt lgkmcnt(6)')
        ln_stats(A, T)
        A('s_waitcnt lgkmcnt(0)')
        for i in range(4):
            rd(i)
        for i in range(8):
            A(f'ds_write_b128 v72, {v(160 + 4 * i, 4)} offset:{i * 1024}')
        csdot(0, 8)
        A('s_waitcnt lgkmcnt(0)')
        for i in range(4, 8):
            rd(i)
        for i in range(8):
            if i == 4:
                A('s_waitcnt lgkmcnt(8)')
            mf(i)
            if i < 4:
                tr(8 + i)
            else:
                A('s_waitcnt lgkmcnt(9)')
                tr(8 + i)
                rd(4 + i)
        for i in range(8, 16):
            if i == 8:
                A('s_waitcnt lgkmcnt(9)')
            elif i < 12:
                A(f's_waitcnt lgkmcnt({9 - 2 * (i - 8)})')
            else:
                A(f's_waitcnt lgkmcnt({15 - i})')
            mf(i)
            if i < 12:
                rd(4 + i)

    def cs0():
        csdot(8, 16)
        A('s_nop 2')
        A('v_add_f32 v80, v80, v81')
        A('v_add_f32 v82, v82, v83')
        A('v_add_f32 v80, v80, v82')
        A('v_mov_b32 v81, v80')
        A('s_nop 1')
        swap_add(A, 80, 81)
        A('ds_write_b32 v74, v80')

    def cs():
        for h2 in range(2):
            A(f'ds_read_b128 {v(EX + 4 * h2, 4)}, v77 offset:{h2 * 32}')
            A(f'ds_read_b128 {v(XR + 4 * h2, 4)}, v78 offset:{h2 * 32}')
        A('s_waitcnt lgkmcnt(0)')
        for r in range(8):
            A(f'v_add_f32 {v(EX + r)}, {v(EX + r)}, {v(XR + r)}')
        for r in range(12):
            A(f'v_mov_b32 {v(208 + r)}, {v(EX + r)}')

    g4_main(C, 'qkv', kvf=KVF, kfl=KFL, raw=dict(front=front, kvw=kvw, kvcs0=kvcs0, kvcs1=kvcs1, zchk=zchk, wprep=wprep, cs=cs, cs0=cs0, loop=loop), endlab=end)
    C.stamp()


def wq_store(C):
    A = C.A
    A('s_and_b32 s30, s18, 0x33')
    A('s_cmp_lg_u32 s30, 0')
    A('s_cbranch_scc1 pr_w0')
    g4_waddr(C, 112, WQKVP)
    for q4 in (3, 2, 1, 0):
        if q4:
            A(f's_cmp_lg_u32 s21, {q4}')
            A(f's_cbranch_scc1 pr_ws{q4}')
        for i in range(4 * q4, 4 * q4 + 4):
            so, im = soff(G4_ORD[i])
            A(f'buffer_store_dwordx4 {v(128 + 4 * i, 4)}, v112, s[8:11], {so} offen offset:{im} sc0 sc1')
        if q4:
            A('s_branch pr_w0')
            A.label(f'pr_ws{q4}')
    A('v_lshrrev_b32 v113, 5, v1')
    A('v_lshlrev_b32 v113, 4, v113')
    A('s_lshr_b32 s31, s19, 4')
    A(f's_add_u32 s31, s31, {CSQKV}')
    A('s_mov_b32 exec_lo, 1')
    A('s_mov_b32 exec_hi, 1')
    A('buffer_store_dwordx4 v[208:211], v113, s[8:11], s31 offen sc0 sc1')
    A('buffer_store_dwordx4 v[212:215], v113, s[8:11], s31 offen offset:32 sc0 sc1')
    A('s_mov_b64 exec, -1')
    A('s_cmp_lg_u32 s22, 0')
    A('s_cbranch_scc1 pr_w0')
    A('s_lshl_b32 s30, s20, 12')
    A(f's_add_u32 s30, s30, {WQKVP + 16 * 32 * KB}')
    for k in range(4):
        A(f'buffer_store_dwordx4 {v(192 + 4 * k, 4)}, v3, s[8:11], s30 offen offset:{k * 1024} sc0 sc1')
    A('s_cmp_ge_u32 s20, 4')
    A('s_cbranch_scc1 pr_w0')
    A('s_lshl_b32 s31, s20, 5')
    A(f's_add_u32 s31, s31, {CSQKV + 2048}')
    A('s_mov_b32 exec_lo, 1')
    A('s_mov_b32 exec_hi, 1')
    A('buffer_store_dwordx4 v[216:219], v113, s[8:11], s31 offen sc0 sc1')
    A('s_mov_b64 exec, -1')
    A.label('pr_w0')


def pack_ptrs(A):
    A('s_load_dwordx2 s[4:5], s[0:1], 32')
    A('s_load_dwordx4 s[52:55], s[0:1], 48')
    A('s_load_dwordx2 s[16:17], s[0:1], 64')


def pack_issue(C):
    A = C.A
    A('s_mul_i32 s30, s2, 3')
    A('s_add_u32 s30, s30, s20')
    A('s_mov_b32 s58, s30')
    A('s_cmp_lt_u32 s20, 3')
    A('s_cselect_b32 s57, 1, 0')
    A('s_cmp_lt_u32 s30, 736')
    A('s_cselect_b32 s57, s57, 0')
    A('s_cmp_eq_u32 s57, 0')
    A('s_cselect_b32 s30, 0, s30')
    A('s_cmp_lt_u32 s30, 64')
    A('s_cbranch_scc1 pk_jwo')
    A('s_cmp_lt_u32 s30, 512')
    A('s_cbranch_scc1 pk_jgu')
    A('s_sub_u32 s30, s30, 512')
    A('s_mov_b64 s[4:5], s[16:17]')
    A(f's_mov_b32 s6, {1792 * 1024}')
    A('s_mov_b32 s50, 1024')
    A('s_and_b32 s31, s30, 7')
    A('s_lshr_b32 s30, s30, 3')
    A('s_lshl_b32 s51, s30, 16')
    A('s_lshl_b32 s56, s31, 7')
    A('s_add_u32 s51, s51, s56')
    A(f's_mul_i32 s56, s31, {2 * 112 * KB}')
    A('s_lshl_b32 s30, s30, 12')
    A('s_add_u32 s56, s56, s30')
    A(f's_add_u32 s56, s56, {WDP}')
    A(f's_mov_b32 s52, {112 * KB}')
    A('s_mov_b32 s53, 256')
    A(f's_mov_b32 s54, {G1.CSDUMMY}')
    A('s_branch pk_jgo')
    A.label('pk_jwo')
    A(f's_mov_b32 s6, {512 * 1024}')
    A('s_mov_b32 s50, 1024')
    A('s_lshr_b32 s31, s30, 3')
    A('s_and_b32 s30, s30, 7')
    A('s_lshl_b32 s51, s30, 16')
    A('s_lshl_b32 s56, s31, 7')
    A('s_add_u32 s51, s51, s56')
    A('s_lshl_b32 s56, s31, 16')
    A('s_lshl_b32 s30, s30, 12')
    A('s_add_u32 s56, s56, s30')
    A(f's_add_u32 s56, s56, {WOP}')
    A(f's_mov_b32 s52, {32 * KB}')
    A('s_mov_b32 s53, 256')
    A(f's_mov_b32 s54, {G1.CSDUMMY}')
    A('s_branch pk_jgo')
    A.label('pk_jgu')
    A('s_sub_u32 s30, s30, 64')
    A('s_cmp_ge_u32 s30, 224')
    A('s_cselect_b32 s4, s54, s52')
    A('s_cselect_b32 s5, s55, s53')
    A('s_cselect_b32 s16, 1, 0')
    A('s_cselect_b32 s31, 224, 0')
    A('s_sub_u32 s30, s30, s31')
    A(f's_mov_b32 s6, {512 * 3584}')
    A('s_mov_b32 s50, 3584')
    A('s_lshr_b32 s31, s30, 3')
    A('s_and_b32 s30, s30, 7')
    A(f's_mul_i32 s51, s30, {64 * 3584}')
    A('s_lshl_b32 s56, s31, 7')
    A('s_add_u32 s51, s51, s56')
    A('s_lshl_b32 s56, s31, 17')
    A('s_lshl_b32 s17, s30, 12')
    A('s_add_u32 s56, s56, s17')
    A('s_lshl_b32 s17, s16, 8')
    A('s_add_u32 s56, s56, s17')
    A(f's_add_u32 s56, s56, {WGUP}')
    A(f's_mov_b32 s52, {64 * KB}')
    A(f's_mov_b32 s53, {32 * KB}')
    A(f's_mul_i32 s54, s30, {3584 * 4}')
    A('s_lshl_b32 s17, s31, 9')
    A('s_add_u32 s54, s54, s17')
    A('s_lshl_b32 s17, s16, 6')
    A('s_add_u32 s54, s54, s17')
    A(f's_add_u32 s54, s54, {CSP}')
    A.label('pk_jgo')
    A('v_lshrrev_b32 v112, 3, v1')
    A('v_and_b32 v113, 7, v1')
    A('v_mul_lo_u32 v112, v112, s50')
    A('v_lshl_add_u32 v112, v113, 4, v112')
    A('s_lshl_b32 s50, s50, 3')
    A('s_min_u32 s59, s20, 2')
    A('s_lshl_b32 s59, s59, 13')
    A(f's_add_u32 s59, s59, {136 * KB}')
    A('s_cmp_eq_u32 s57, 0')
    A('s_cbranch_scc1 pk_i_end')
    for i in range(8):
        A(f's_add_u32 m0, s59, {i * 1024}')
        A('s_nop 0')
        A('buffer_load_dwordx4 v112, s[4:7], s51 offen lds')
        A('s_add_u32 s51, s51, s50')
    A.label('pk_i_end')


def pack_convert(C):
    A = C.A
    A('s_cmp_eq_u32 s57, 0')
    A('s_cbranch_scc1 pk_c_end')
    A('v_lshrrev_b32 v112, 5, v1')
    A('v_bfe_u32 v113, v1, 2, 2')
    A('v_lshl_add_u32 v113, v112, 2, v113')
    A('v_and_b32 v114, 3, v1')
    A('v_lshlrev_b32 v114, 3, v114')
    A('v_lshl_add_u32 v113, v113, 7, v114')
    A('v_bfe_u32 v114, v1, 4, 1')
    A('v_lshl_add_u32 v113, v114, 5, v113')
    A('v_add_u32 v113, s59, v113')
    A('v_mul_lo_u32 v114, v114, s53')
    A('v_and_b32 v115, 15, v1')
    A('v_lshl_add_u32 v114, v115, 4, v114')
    A('v_lshl_add_u32 v114, v112, 9, v114')
    A('v_lshrrev_b32 v112, 4, v1')
    A('v_lshlrev_b32 v112, 7, v112')
    A('v_lshl_add_u32 v112, v115, 2, v112')
    A('v_mov_b32 v115, 0x3f803f80')
    A('s_add_u32 s52, s52, s56')
    A('s_waitcnt vmcnt(0)')
    for jj in range(2):
        for st in range(4):
            for h2 in range(2):
                A(f'ds_read_b64_tr_b16 {v(128 + 4 * (4 * jj + st) + 2 * h2, 2)}, v113 offset:{st * 2048 + h2 * 1024 + jj * 64}')
        A('s_waitcnt lgkmcnt(0)')
        for st in range(4):
            A(f'buffer_store_dwordx4 {v(128 + 4 * (4 * jj + st), 4)}, v114, s[8:11], {"s56" if jj == 0 else "s52"} offen offset:{st * 1024} sc0 sc1')
    A('s_cmp_eq_u32 s53, 256')
    A('s_cbranch_scc1 pk_c_end')
    for r in range(16):
        for jj in range(2):
            A(f'v_dot2_f32_bf16 {v(116 + jj)}, {v(128 + 16 * jj + r)}, v115, {"0" if r == 0 else v(116 + jj)}')
    A('s_nop 2')
    swap_add(A, 116, 117)
    A('buffer_store_dword v116, v112, s[8:11], s54 offen sc0 sc1')
    A.label('pk_c_end')


def pack_flag(C):
    A = C.A
    A('v_mov_b32 v112, 0')
    A('v_mov_b32 v113, 1')
    A('s_cmp_eq_u32 s57, 0')
    A('s_cbranch_scc1 pk_f_1')
    A('s_lshl_b32 s30, s58, 7')
    A(f's_add_u32 s30, s30, {PFL}')
    A('s_waitcnt vmcnt(0)')
    A('s_mov_b64 exec, 1')
    A('buffer_store_dword v113, v112, s[8:11], s30 offen sc0 sc1')
    A('s_mov_b64 exec, -1')
    A.label('pk_f_1')
    A('s_and_b32 s30, s18, 0x33')
    A('s_cmp_lg_u32 s30, 0')
    A('s_cbranch_scc1 pk_f_end')
    A('s_lshl_b32 s30, s22, 1')
    A('s_add_u32 s30, s30, s20')
    A('s_lshl_b32 s31, s21, 5')
    A('s_add_u32 s30, s30, s31')
    A('s_lshl_b32 s30, s30, 7')
    A(f's_add_u32 s30, s30, {PFL + 768 * 128}')
    A('s_waitcnt vmcnt(0)')
    A('s_mov_b64 exec, 1')
    A('buffer_store_dword v113, v112, s[8:11], s30 offen sc0 sc1')
    A('s_mov_b64 exec, -1')
    A.label('pk_f_end')


def pack_poll(C, endlab):
    A = C.A
    A('s_mul_i32 s30, s22, 7')
    A('s_lshr_b32 s30, s30, 2')
    A('v_lshrrev_b32 v112, 4, v1')
    A('v_add_u32 v112, s30, v112')
    A('v_min_u32 v112, 27, v112')
    A('v_and_b32 v113, 7, v1')
    A('v_lshl_add_u32 v112, v112, 3, v113')
    A('v_bfe_u32 v114, v1, 3, 1')
    A('v_mul_u32_u24 v114, 224, v114')
    A('v_add3_u32 v112, v112, v114, 64')
    A('s_mul_i32 s30, s20, 7')
    A('s_lshr_b32 s30, s30, 1')
    A('v_min_u32 v114, 4, v113')
    A('v_add_u32 v114, s30, v114')
    A('v_min_u32 v114, 27, v114')
    A('s_add_u32 s30, s24, 512')
    A('v_lshl_add_u32 v114, v114, 3, s30')
    A('v_cmp_le_u32 vcc, 48, v1')
    A('s_lshl_b32 s30, s24, 3')
    A('s_add_u32 s30, s30, s20')
    A('v_cndmask_b32 v112, v112, v114, vcc')
    A('v_mov_b32 v114, s30')
    A('v_cmp_le_u32 vcc, 56, v1')
    A('s_add_u32 s31, s20, 768')
    A('s_and_b32 s30, s22, 12')
    A('s_lshl_b32 s30, s30, 1')
    A('s_add_u32 s30, s30, s31')
    A('v_cndmask_b32 v112, v112, v114, vcc')
    for q4 in range(4):
        A(f'v_writelane_b32 v112, s30, {59 + q4}')
        A('s_add_u32 s30, s30, 32')
    A('v_writelane_b32 v112, s31, 63')
    A(f's_mov_b32 s30, {PFL}')
    A('s_mov_b32 s31, 0')
    A('v_lshlrev_b32 v112, 7, v112')
    A('s_bfe_u32 s32, s19, 0x3000c')
    A('s_lshl_b32 s32, s32, 3')
    A('s_lshl_b32 s33, s26, 2')
    A('s_add_u32 s32, s32, s33')
    A('v_and_b32 v114, 3, v1')
    A('v_add_u32 v114, s32, v114')
    A('v_lshlrev_b32 v114, 7, v114')
    A('buffer_load_dword v113, v112, s[8:11], s30 offen sc1')
    A('buffer_load_dword v115, v114, s[8:11], s30 offen sc1')


def pack_poll2(C, endlab):
    A = C.A
    A(f's_mov_b32 s30, {PFL}')
    A('s_mov_b32 s31, 0')
    A.label('pk_p')
    A('s_waitcnt vmcnt(0)')
    A('v_and_b32 v113, v113, v115')
    A('v_cmp_eq_u32 vcc, 1, v113')
    A('s_add_u32 s31, s31, 1')
    A('s_cmp_eq_u64 vcc, -1')
    A('s_cbranch_scc1 pk_pd')
    A('s_sleep 16')
    A('buffer_load_dword v113, v112, s[8:11], s30 offen sc1')
    A('buffer_load_dword v115, v114, s[8:11], s30 offen sc1')
    A(f's_cmp_lt_u32 s31, {1 << 19}')
    A('s_cbranch_scc1 pk_p')
    A(f's_branch {endlab}')
    A.label('pk_pd')
    C.vm = []


def layer_part(C, layer, end):
    A = C.A
    C.tag = f'l{layer}'
    last = layer == 1
    xin = None if layer == 0 else XC
    kvf = KVF if layer == 0 else KVF2
    kfl = KFL + layer * 64 * 128
    sy = 5 * layer + 1
    C.B = dict(QF=QF, OF=OF, XB=XB, SXB=SXB, HF=HF) if layer == 0 else dict(QF=QF2, OF=OF2, XB=XB2, SXB=SXB2, HF=HF2)
    B = C.B

    def pre_addr():
        gu_waddr(C)
        g3_waddr(C, (113, 114), 112, WDP)
        g4_waddr(C, 116, WOP)

    stubs = [lambda: (pre_addr(), gu_wload(C, 0))]
    stubs += [lambda ks=ks: gu_wload(C, ks) for ks in range(1, 24)]
    stubs += [lambda i=i: g4_wload(C, 116, i, 'res') for i in range(8)]
    if TOUCH2:
        def touch2():
            A('s_and_b32 s30, s18, 7')
            A('s_lshr_b32 s31, s30, 1')
            A('s_lshl_b32 s31, s31, 2')
            A('s_and_b32 s30, s30, 1')
            A('s_add_u32 s30, s30, s31')
            A('s_lshl_b32 s30, s30, 10')
            C.vmem('buffer_load_dwordx4 v[120:123], v116, s[8:11], s30 offen offset:2048', 'tc')
            if layer == 0:
                A(f's_add_u32 s30, s30, {WQKVP - WOP + (1 << 32) if WQKVP < WOP else WQKVP - WOP}')
                A('v_add_u32 v117, s30, v116')
                C.vmem('buffer_load_dwordx4 v[120:123], v117, s[8:11], 0 offen', 'tc')
                C.vmem('buffer_load_dwordx4 v[120:123], v117, s[8:11], 0 offen offset:2048', 'tc')
        stubs += [touch2]
    if TOUCH3 & 1:
        def t3a(k):
            if k == 0:
                A('s_and_b32 s30, s21, 1')
                A('s_lshl_b32 s30, s30, 12')
                A(f's_add_u32 s30, s30, {24 * KB}')
                A(f'v_add_u32 v118, s30, {v(V_WGU)}')
            C.vmem(f'buffer_load_dwordx4 v[120:123], v118, s[8:11], 0 offen offset:{k * 1024}', 'tc')
        stubs += [lambda k=k: t3a(k) for k in range(4)]
    if TOUCH3 & 2:
        def t3b(k):
            if k == 0:
                A('s_and_b32 s30, s21, 1')
                A(f's_mul_i32 s30, s30, {7 * KB}')
                A('s_cmp_eq_u32 s23, 0')
                A('s_cselect_b64 vcc, -1, 0')
                A('v_cndmask_b32 v119, v114, v113, vcc')
                A('v_add_u32 v119, s30, v119')
            so, im = soff(k)
            C.vmem(f'buffer_load_dwordx4 v[120:123], v119, s[8:11], {so} offen offset:{im}', 'tc')
        stubs += [lambda k=k: t3b(k) for k in range(7)]
    if TOUCH and layer == 1:
        def t_addr():
            A('s_lshr_b32 s30, s2, 3')
            A('s_lshl_b32 s30, s30, 3')
            A('s_add_u32 s30, s30, s20')
            A(f's_mul_i32 s31, s30, {7 * KB}')
            A(f's_add_u32 s31, s31, {WDP}')
            A('v_add_u32 v118, s31, v3')
            A('s_lshl_b32 s31, s30, 11')
            A(f's_add_u32 s31, s31, {WQKVP}')
            A('v_add_u32 v119, s31, v3')

        def tch(vr, k):
            so, im = soff(k)
            C.vmem(f'buffer_load_dwordx4 v[120:123], {v(vr)}, s[8:11], {so} offen offset:{im}', 'tc')
        stubs += [lambda: (t_addr(), tch(V_WGU, 24))]
        stubs += [lambda ks=ks: tch(V_WGU, ks) for ks in range(25, 32)]
        stubs += [lambda k=k: tch(118, k) for k in range(7)]
        if not last:
            stubs += [lambda k=k: tch(119, k) for k in range(2)]

    def need_wo():
        A('s_lshr_b32 s30, s20, 1')
        A('s_lshl_b32 s30, s30, 2')
        A('s_and_b32 s31, s22, 3')
        A('s_add_u32 s30, s30, s31')
        A('s_lshl_b32 s32, 1, s30')

    def need_gu():
        A('s_lshl_b32 s32, 0x1111, s25')
        A('s_cmp_eq_u32 s20, 7')
        A('s_cselect_b32 s32, 0xffff, s32')

    def need_dn():
        A('s_lshl_b32 s30, s20, 1')
        A('s_lshl_b32 s32, 3, s30')

    def need_qkv():
        A('s_lshl_b32 s30, s20, 1')
        A('s_and_b32 s31, s24, 1')
        A('s_add_u32 s30, s30, s31')
        A('s_lshl_b32 s32, 1, s30')

    if layer == 0:
        fixed = {PK_I: lambda: (wq_store(C), pack_issue(C)), PK_C: lambda: pack_convert(C), PK_F: lambda: pack_flag(C), PK_P - 1: lambda: pack_poll(C, end), PK_P: lambda: pack_poll2(C, end)}
        tail = att_phase(C, kvf, kfl, end, stubs, fixed, PK_P, pre_hook=lambda: pack_ptrs(A), loadq=False, early=True)
    else:
        tail = att_phase(C, kvf, kfl, end, stubs, pre_hook=lambda: A('s_load_dwordx2 s[12:13], s[0:1], 72'), loadq=False)
    C.stamp()
    if not WO_LATE:
        A('s_nop 1')
        for i in range(8, 16):
            g4_wload(C, 116, i, 'res')
    g4_pre(C, 'res', B['OF'], resbase=xin)
    handoff(C, sy + 0, end, need_wo)
    C.stamp()
    g4_main(C, 'res', outbase=B['XB'], sxout=B['SXB'], hook_red=lambda k: gu_wload(C, 24 + k))
    C.stamp()
    gu_pre(C)
    handoff(C, sy + 1, end, need_gu)
    C.stamp()
    gu_main(C)
    C.stamp()
    g3_pre(C, 'res', 112, B['HF'], resbase=B['XB'])
    handoff(C, sy + 2, end, need_dn)
    C.stamp()
    if last:
        g3_main(C, 'out', 112, 128)
        C.stamp()
    else:
        g3_main(C, 'res', 112, 128, outbase=XC, sxout=SXC, hook_b=lambda st, n: qkv4_wstep(C, st, n), hook_red=lambda: qkv4_wrest(C))
        C.stamp()
        g4_pre(C, 'qkv', XC, resbase=SXC)
        g4_waddr(C, 64, WQKVP)
        handoff(C, sy + 3, end, need_qkv)
        C.stamp()
        g4_main(C, 'qkv', kvf=KVF2, kfl=KFL + 64 * 128, endlab=end)
        C.stamp()
    return tail


def build():
    A = Asm()
    name = NAME + '_kernel'
    C = Ctx(A, 'pr')
    C.qf = QF
    end = 'k_end'
    kernel_begin(A, name)
    pre_part(C, end)
    t0 = layer_part(C, 0, end)
    t1 = layer_part(C, 1, end)
    A('s_add_u32 s30, s2, s20')
    A('s_cmp_lg_u32 s30, 0')
    A('s_cbranch_scc1 k_fin')
    A('s_load_dwordx2 s[4:5], s[0:1], 80')
    A('s_mov_b32 s6, 256')
    A('v_mov_b32 v2, 0')
    A('s_mov_b64 exec, 1')
    A('s_waitcnt lgkmcnt(0)')
    A('buffer_store_dword v2, v2, s[4:7], 0 offen sc0 sc1')
    A('s_mov_b64 exec, -1')
    A.label('k_fin')
    if DBGD:
        A('s_cmp_lg_u32 s2, 77')
        A('s_cbranch_scc1 k_fin2')
        A('s_cmp_lg_u32 s20, 1')
        A('s_cbranch_scc1 k_fin2')
        A('s_load_dwordx2 s[4:5], s[0:1], 80')
        A('s_memrealtime s[60:61]')
        A('s_mov_b32 s6, 256')
        A('v_mov_b32 v2, 0')
        A('s_mov_b64 exec, 1')
        A('s_waitcnt lgkmcnt(0)')
        sel = [int(x) for x in DBGD.split()]
        for k, i in enumerate(sel + [-1]):
            A(f's_sub_u32 s30, {s(64 + i) if i >= 0 else "s60"}, s64')
            A('v_mov_b32 v4, s30')
            A(f'buffer_store_dword v4, v2, s[4:7], 0 offen offset:{4 + 4 * k}')
        A('s_mov_b64 exec, -1')
        A.label('k_fin2')
    stamp_end(C, 1)
    A.label(end)
    A('s_endpgm')
    t0(True)
    t1(False)
    body = A.text()
    probs = lint(body)
    for p in probs:
        print('LINT:', p, file=sys.stderr)
    head = '; generated by gen/gen3.py\n'
    head += f"; @launch grid=(256,1,1) block=(512,1,1) lds={LDS_BYTES}\n"
    head += '.amdgcn_target "amdgcn-amd-amdhsa--gfx950"\n.text\n'
    tail = '.section .rodata,"a"\n.p2align 6\n' + descriptor(name, 256, 0, nsgpr=100)
    print('stamps:', C.nstamp, file=sys.stderr)
    return head + body + tail


if __name__ == '__main__':
    if 'stamp' in sys.argv:
        STAMP = True
    for arg in sys.argv[2:]:
        if '=' in arg:
            k, val = arg.split('=')
            globals()[k] = int(val) if val.lstrip('-').isdigit() else val.replace('_', ' ')
    out = sys.argv[1] if len(sys.argv) > 1 else f'cdna_kernels/{NAME}.s'
    open(out, 'w').write(build())
    print('wrote', out)
```

```python
import sys
import math
import struct
from asmlib import Asm, v, a, s, lint
import gen as G1
from gen import f32, kernel_begin, descriptor, ws_srd, KB

NAME = G1.NAME
WQKVP, WOP, WGUP, WDP, CSQKV, CSGU = G1.WQKVP, G1.WOP, G1.WGUP, G1.WDP, G1.CSQKV, G1.CSGU
KVF, XA, XB, QF, OF, HF = G1.KVF, G1.XA, G1.XB, G1.QF, G1.OF, G1.HF
WS_SIZE, QSCALE = G1.WS_SIZE, G1.QSCALE
KVG = 2048
KVT = 2080
VBS = 512
XC = G1.WS_END
KVF2 = XC + 2048 * KB
FLG = KVF2 + 144 * KB
SXA = FLG + 64 * KB
SXB = SXA + 512 * KB
SXC = SXB + 512 * KB
CSP = SXC + 512 * KB
PFL = CSP + 128 * KB
KFL = PFL + 112 * KB
QF2 = KFL + 16 * KB
OF2 = QF2 + 2048 * KB
XB2 = OF2 + 2048 * KB
SXB2 = XB2 + 2048 * KB
HF2 = SXB2 + 512 * KB
WS_END = HF2 + 64 * 112 * KB
STAMPS = G1.STAMPS

STAMP = False
WT = ' sc0 sc1'
LDS_BYTES = 160 * KB
FINE = 0
TCHK = 2
TB2 = 6
DPT = 4
TPFEND = 8
TP2 = 32
TP1 = 48
TP0 = 60
ONEWAIT = 1
INLINE = 0
ATT_NB = 4
TOUCH3 = 0
PRIOV = 0
DBGD = ''
ATT_B2 = 2
WO_L0 = 3
WROT = 1
GU_TAIL = 1
ATT_R0 = 4
EXPT = 0
TLBW = 0
KV_SLEEP = 2
QKV_PER = 1
WO_TAIL = 16
SLO = 0
QWT = ' sc0 sc1'
GU16 = 0
GU_NOW = 0
GU_WD0 = 3
GU_BARS = {4: 1, 8: 2, 12: 7, 24: 7}
PK_I = 8
PK_C = 20
PK_F = 24
PK_P = 40
RT = 0
TOUCH = 0
TOUCH2 = 1
WO_LATE = 0
ATT_UN = 4
ATT_PFEND = 1
G3_PR4 = 7
G3_PR14 = 6
G2_ST8 = [2, 2, 2, 2]
G2_ST28 = [2, 2, 4, 4, 4, 4, 4, 4]
G2_PRE8 = 4
G2_PRE28 = 6


class Ctx:
    def __init__(self, A, tag):
        self.A = A
        self.tag = tag
        self.vm = []
        self.nlab = 0
        self.nstamp = 1

    def lab(self, base):
        self.nlab += 1
        return f'{self.tag}_{base}{self.nlab}'

    def vmem(self, text, tag):
        self.A(text)
        self.vm.append(tag)
        assert len(self.vm) <= 63, 'vmcnt overflow'

    def wait(self, tag, extra=''):
        idx = [i for i, t in enumerate(self.vm) if t == tag]
        if not idx:
            if extra:
                self.A(f's_waitcnt {extra}')
            return
        n = len(self.vm) - 1 - idx[-1]
        self.A(f's_waitcnt vmcnt({n}) {extra}'.strip())
        self.vm = self.vm[idx[-1] + 1:]

    def stamp(self):
        if STAMP:
            i = self.nstamp - SLO
            self.nstamp += 1
            if i < 1 or i >= 28:
                return
            A = self.A
            A('s_waitcnt lgkmcnt(0)')
            A('s_memrealtime s[60:61]' if RT else 's_memtime s[60:61]')
            A('s_waitcnt lgkmcnt(0)')
            A(f's_mov_b32 {s(64 + i)}, s60')


def stamp_begin(C):
    if STAMP:
        A = C.A
        A('s_memrealtime s[62:63]')
        A('s_memtime s[60:61]')
        for i in range(1, 30):
            A(f's_mov_b32 {s(64 + i)}, 0')
        A('s_waitcnt lgkmcnt(0)')
        A('s_mov_b32 s64, s62' if RT else 's_mov_b32 s64, s60')
        A('s_mov_b32 s95, s62')


def stamp_end(C, kidx):
    if STAMP:
        A = C.A
        A('s_waitcnt vmcnt(0) lgkmcnt(0)')
        A('s_memtime s[60:61]')
        A('s_memrealtime s[62:63]')
        A('s_waitcnt lgkmcnt(0)')
        A('s_mov_b32 s93, s62' if RT else 's_mov_b32 s93, s60')
        A('s_mov_b32 s94, s62')
        A('s_mov_b64 exec, 1')
        A('s_lshl_b32 s60, s2, 10')
        A('s_lshl_b32 s61, s20, 7')
        A('s_add_u32 s60, s60, s61')
        A(f's_add_u32 s60, s60, {STAMPS + kidx * (1 << 20)}')
        A('v_mov_b32 v0, 0')
        for i in range(32):
            A(f'v_mov_b32 v1, {s(64 + i)}')
            A(f'buffer_store_dword v1, v0, s[8:11], s60 offen offset:{i * 4}')
        A('s_waitcnt vmcnt(0)')


def setup(C, need_out, endlab):
    A = C.A
    A('s_cmp_ge_u32 s2, 256')
    A(f's_cbranch_scc1 {endlab}')
    stamp_begin(C)
    ws_srd(A, 8)
    if need_out:
        A('s_load_dwordx2 s[12:13], s[0:1], 72')
        A(f's_mov_b32 s14, {2048 * 512 * 2}')
        A('s_mov_b32 s15, 0x20000')
    A('v_and_b32 v1, 63, v0')
    A('v_lshrrev_b32 v2, 6, v0')
    A('v_lshlrev_b32 v3, 4, v1')
    A('v_readfirstlane_b32 s20, v2')
    A('s_and_b32 s21, s2, 7')
    A('s_lshl_b32 s21, s21, 1')
    A('s_bfe_u32 s22, s2, 0x10003')
    A('s_add_u32 s21, s21, s22')
    A('s_lshr_b32 s22, s2, 4')
    A('s_and_b32 s23, s22, 1')
    A('s_lshr_b32 s24, s22, 1')
    A('s_and_b32 s25, s20, 3')
    A('s_lshr_b32 s26, s20, 2')
    A('s_lshl_b32 s27, s21, 2')
    A('s_lshl_b32 s30, s23, 1')
    A('s_add_u32 s27, s27, s30')
    A('s_lshl_b32 s28, s24, 1')
    A('s_bfe_u32 s30, s20, 0x10001')
    A('s_add_u32 s28, s28, s30')
    A('s_and_b32 s29, s20, 1')
    A('s_add_u32 s30, s27, s29')
    A('s_lshl_b32 s49, s30, 15')
    A('s_lshl_b32 s31, s28, 11')
    A('s_add_u32 s49, s49, s31')
    A('s_lshl_b32 s31, s26, 10')
    A('s_add_u32 s49, s49, s31')
    for g in range(1, 8):
        A(f's_mov_b32 {s(40 + g)}, {g * 4096}')
    A('s_waitcnt lgkmcnt(0)')


def soff(i):
    return ('0' if i // 4 == 0 else s(40 + i // 4)), (i % 4) * 1024


def handoff(C, sync, endlab, need, kvflag=None, first=False):
    A = C.A
    l1, l2, ld = C.lab('pa'), C.lab('pb'), C.lab('pd')
    need()
    A('s_mov_b32 s33, 0')
    A('v_lshlrev_b32 v0, 2, v1')
    A('s_lshl_b32 s30, s21, 8')
    A(f's_add_u32 s30, s30, {FLG + sync * 4096}')
    A('s_lshl_b32 s34, s22, 2')
    A('s_add_u32 s34, s34, s30')
    A('v_mov_b32 v4, 1')
    if first:
        lz, lzd = C.lab('z'), C.lab('zd')
        A('s_cmp_lg_u32 s20, 0')
        A(f's_cbranch_scc1 {lzd}')
        A('s_mov_b32 s31, 0')
        A('s_mov_b64 exec, 1')
        A.label(lz)
        A('buffer_load_dword v2, v0, s[4:7], 0 offen sc0 sc1')
        A('s_waitcnt vmcnt(0)')
        A('v_cmp_le_u32 vcc, 16, v2')
        A('s_add_u32 s31, s31, 1')
        A('s_cmp_eq_u64 vcc, 1')
        A(f's_cbranch_scc1 {lzd}')
        A('s_sleep 8')
        A(f's_cmp_lt_u32 s31, {1 << 20}')
        A(f's_cbranch_scc1 {lz}')
        A(f's_branch {endlab}')
        A.label(lzd)
        A('s_mov_b64 exec, -1')
    if kvflag is not None:
        A('s_waitcnt vmcnt(0) lgkmcnt(0)')
        C.vm = []
    else:
        C.wait('st', 'lgkmcnt(0)')
    A('s_cmp_lg_u32 s20, 0')
    A('s_barrier')
    l, lb, lb2 = C.lab('sig'), C.lab('sb'), C.lab('sc')
    A(f's_cbranch_scc1 {l}')
    A('s_mov_b64 exec, 1')
    if kvflag is not None:
        lk = C.lab('kf')
        A('s_cmp_ge_u32 s24, 2')
        A(f's_cbranch_scc1 {lk}')
        A('s_add_u32 s31, s27, s24')
        A('s_lshl_b32 s31, s31, 7')
        A(f's_add_u32 s31, s31, {kvflag}')
        A('s_mov_b64 exec, 15')
        A('buffer_store_dword v4, v0, s[8:11], s31 offen sc0 sc1')
        A('s_mov_b64 exec, 1')
        A.label(lk)
    A('buffer_store_dword v4, v0, s[8:11], s34 offen')
    A.label(l)
    A('s_mov_b32 s31, 0')
    A('s_mov_b64 exec, s[32:33]')
    A.label(l1)
    A('buffer_load_dword v2, v0, s[8:11], s30 offen sc1')
    A('s_add_u32 s31, s31, 1')
    A('s_waitcnt vmcnt(0)')
    A('v_cmp_ne_u32 vcc, 0, v2')
    A('s_cmp_eq_u64 vcc, s[32:33]')
    A(f's_cbranch_scc1 {ld}')
    A('s_cmp_lt_u32 s31, 64')
    A(f's_cbranch_scc1 {l1}')
    A('s_mov_b64 exec, 1')
    A('buffer_store_dword v4, v0, s[8:11], s34 offen offset:128 sc0 sc1')
    A('s_mov_b64 exec, s[32:33]')
    A.label(l2)
    A('buffer_load_dword v2, v0, s[8:11], s30 offen sc1')
    A('s_waitcnt vmcnt(0)')
    A('v_cmp_ne_u32 s[36:37], 0, v2')
    A('buffer_load_dword v2, v0, s[8:11], s30 offen offset:128 sc0 sc1')
    A('s_waitcnt vmcnt(0)')
    A('v_cmp_ne_u32 vcc, 0, v2')
    A('s_add_u32 s31, s31, 1')
    A('s_or_b64 vcc, vcc, s[36:37]')
    A('s_cmp_eq_u64 vcc, s[32:33]')
    A(f's_cbranch_scc1 {ld}')
    A('s_sleep 4')
    A(f's_cmp_lt_u32 s31, {1 << 20}')
    A(f's_cbranch_scc1 {l2}')
    A(f's_branch {endlab}')
    A.label(ld)
    A('s_mov_b64 exec, -1')
    C.vm = []
    C.flagb = True


def flag_b(C):
    if getattr(C, 'flagb', False):
        A = C.A
        l = C.lab('fb')
        A('s_cmp_lg_u32 s20, 0')
        A(f's_cbranch_scc1 {l}')
        A('s_mov_b64 exec, 1')
        A('buffer_store_dword v4, v0, s[8:11], s34 offen offset:128 sc0 sc1')
        A('s_mov_b64 exec, -1')
        A.label(l)
        C.flagb = False


ACCB, ACCA = 16, 48
KVW, KACC, QSX = 160, 176, 240
KVRED, STAT, CSX, CSK = 112 * KB, 144 * KB, 148 * KB, 152 * KB


def blk_stats(C, P, T):
    A = C.A
    A(f'v_mov_b32 {v(T + 4)}, 0x3f803f80')
    A(f'v_dot2_f32_bf16 {v(T + 1)}, {v(P)}, {v(P)}, 0')
    A(f'v_dot2_f32_bf16 {v(T)}, {v(P)}, {v(T + 4)}, 0')
    for m in range(1, 4):
        A(f'v_dot2_f32_bf16 {v(T + 1)}, {v(P + m)}, {v(P + m)}, {v(T + 1)}')
        A(f'v_dot2_f32_bf16 {v(T)}, {v(P + m)}, {v(T + 4)}, {v(T)}')
    A('s_nop 2')
    A(f'v_mov_b32 {v(T + 2)}, {v(T)}')
    A(f'v_mov_b32 {v(T + 3)}, {v(T + 1)}')
    A('s_nop 1')
    A(f'v_permlane32_swap_b32 {v(T)}, {v(T + 2)}')
    A(f'v_permlane32_swap_b32 {v(T + 1)}, {v(T + 3)}')
    A(f'v_add_f32 {v(T)}, {v(T)}, {v(T + 2)}')
    A(f'v_add_f32 {v(T + 1)}, {v(T + 1)}, {v(T + 3)}')


def g3_waddr(C, vregs, KS, wbase):
    A = C.A
    NS = KS // 8
    A('s_lshl_b32 s30, s26, 8')
    A(f'v_xor_b32 {v(vregs[0])}, s30, v3')
    A(f's_mul_i32 s31, s20, {NS * KB}')
    A(f's_add_u32 s31, s31, {wbase}')
    A('s_xor_b32 s30, s28, 1')
    A(f's_mul_i32 s30, s30, {KS * KB}')
    A('s_add_u32 s30, s30, s31')
    A(f'v_add_u32 {v(vregs[1])}, s30, {v(vregs[0])}')
    A(f's_mul_i32 s30, s28, {KS * KB}')
    A('s_add_u32 s30, s30, s31')
    A(f'v_add_u32 {v(vregs[0])}, s30, {v(vregs[0])}')


def g3_wload(C, vregs, idx, wreg0, tag='w'):
    st, jj = idx // 2, idx % 2
    so, im = soff(st)
    C.vmem(f'buffer_load_dwordx4 {v(wreg0 + 4 * idx, 4)}, {v(vregs[jj])}, s[8:11], {so} offen offset:{im}', tag)


def g3_ex(mode, KS):
    return 252 if KS == 112 else (112 if mode == 'qkv' else 116)


def g3_pre(C, mode, KS, xbase, resbase=None, raw=False):
    A = C.A
    NS = KS // 8
    EX = g3_ex(mode, KS)
    A(f's_mul_i32 s31, s20, {NS * KB}')
    A(f's_add_u32 s31, s31, {xbase}')
    A('s_add_u32 s30, s27, s29')
    A(f's_mul_i32 s32, s30, {KS * KB}')
    A('s_add_u32 s32, s32, s31')
    A('v_add_u32 v6, s32, v3')
    A('s_xor_b32 s30, s30, 1')
    A(f's_mul_i32 s32, s30, {KS * KB}')
    A('s_add_u32 s32, s32, s31')
    A('v_add_u32 v5, s32, v3')
    A('s_lshl_b32 s30, s20, 11')
    A('v_add_u32 v8, s30, v3')
    A('v_add_u32 v7, 0x10000, v8')
    for b in range(1, 8):
        A(f's_xor_b32 s30, s20, {b}')
        A('s_lshl_b32 s30, s30, 11')
        A(f's_add_u32 s30, s30, {(b - 1) * 16 * KB}')
        A(f'v_add_u32 {v(8 + b)}, s30, v3')
    if raw:
        return
    if mode == 'qkv':
        A('v_lshrrev_b32 v2, 5, v1')
        A('v_lshlrev_b32 v4, 4, v2')
        A('s_lshl_b32 s31, s28, 7')
        A('s_lshl_b32 s30, s26, 6')
        A('s_add_u32 s31, s31, s30')
        A(f's_add_u32 s31, s31, {CSQKV}')
        C.vmem(f'buffer_load_dwordx4 {v(EX, 4)}, v4, s[8:11], s31 offen', 'ex')
        C.vmem(f'buffer_load_dwordx4 {v(EX + 4, 4)}, v4, s[8:11], s31 offen offset:32', 'ex')
        A('s_bfe_u32 s30, s20, 0x10001')
        A('s_lshl_b32 s30, s30, 6')
        A('s_lshl_b32 s31, s26, 5')
        A('s_add_u32 s30, s30, s31')
        A(f's_add_u32 s31, s30, {CSQKV + 2048}')
        C.vmem(f'buffer_load_dwordx4 {v(EX + 8, 4)}, v4, s[8:11], s31 offen', 'ex')
        A(f'v_and_b32 {v(QSX + 8)}, 31, v1')
        A(f'v_lshlrev_b32 {v(QSX + 8)}, 3, {v(QSX + 8)}')
        A(f'v_lshl_add_u32 {v(QSX + 8)}, v2, 13, {v(QSX + 8)}')
        A('s_lshl_b32 s30, s27, 13')
        A('s_lshl_b32 s31, s20, 10')
        A('s_add_u32 s30, s30, s31')
        A(f's_add_u32 s30, s30, {resbase}')
        A(f'v_add_u32 {v(QSX + 8)}, s30, {v(QSX + 8)}')
    elif resbase is None:
        A('v_and_b32 v2, 31, v1')
        A('v_lshlrev_b32 v2, 10, v2')
        A('v_lshrrev_b32 v4, 5, v1')
        A('v_lshl_add_u32 v2, v4, 3, v2')
        A('s_add_u32 s30, s27, s29')
        A('s_lshl_b32 s30, s30, 15')
        A('s_lshl_b32 s31, s28, 6')
        A('s_add_u32 s30, s30, s31')
        A('s_lshl_b32 s31, s26, 5')
        A('s_add_u32 s30, s30, s31')
        C.vmem(f'buffer_load_dwordx2 {v(EX, 2)}, v2, s[12:15], s30 offen', 'ex')
        C.vmem(f'buffer_load_dwordx2 {v(EX + 2, 2)}, v2, s[12:15], s30 offen offset:16', 'ex')
    else:
        A(f's_add_u32 s31, s49, {resbase}')
        C.vmem(f'buffer_load_dwordx4 {v(EX, 4)}, v3, s[8:11], s31 offen', 'ex')


def g3_main(C, mode, KS, wreg0, outbase=None, kvf=None, after_store=None, sxout=None, hook_b=None, raw=False, hook_red=None):
    A = C.A
    NS = KS // 8
    EX = g3_ex(mode, KS)
    if NS == 4:
        xreg = {(hh, st): 80 + (hh * 4 + st) * 4 for hh in range(2) for st in range(4)}
    else:
        slot = [80 + 4 * k for k in range(12)] + [240, 244]
        xreg = {(hh, st): slot[st] for hh in range(2) for st in range(NS)}

    def xload(hh, st):
        so, im = soff(st)
        C.vmem(f'buffer_load_dwordx4 {v(xreg[hh, st], 4)}, {v(5 + hh)}, s[8:11], {so} offen offset:{im}', f'x{hh}_{st}')

    seq = [(hh, st) for hh in range(2) for st in range(NS)]
    PR = G3_PR4 if NS == 4 else G3_PR14
    if raw:
        seq, PR = [], 0
    for x in seq[:PR]:
        xload(*x)
    nxt = PR
    C.wait('w')

    def wr(b):
        base = (ACCA if b & 1 else ACCB) + ((b >> 1) & 1) * 16 + (b >> 2) * 8
        return [f'ds_write_b128 {v(8 + b)}, {v(base + h2 * 4, 4)} offset:{h2 * 1024}' for h2 in range(2)]

    pend = []
    for hh in range(2):
        acc = ACCA if hh == 0 else ACCB
        for st in range(NS):
            C.wait(f'x{hh}_{st}')
            if hh == 0 and st == 0:
                C.stamp()
            for jj in range(2):
                c = '0' if st == 0 else v(acc + jj * 16, 16)
                A(f'v_mfma_f32_32x32x16_bf16 {v(acc + jj * 16, 16)}, {v(wreg0 + 4 * (2 * st + jj), 4)}, {v(xreg[hh, st], 4)}, {c}')
                if hh == 1 and (st >= 3 or (NS == 4 and st >= 2)):
                    for _ in range(2 if NS == 4 else 1):
                        if pend:
                            A(pend.pop(0))
            if nxt < len(seq):
                xload(*seq[nxt])
                nxt += 1
                if nxt == len(seq):
                    if mode == 'qkv':
                        for e in range(4):
                            C.vmem(f'buffer_load_dwordx2 {v(QSX + 2 * e, 2)}, {v(QSX + 8)}, s[8:11], 0 offen offset:{e * 256}', 'sx')
                    flag_b(C)
                    hb = 0
            elif hook_b:
                hb += 1
            if hook_b and nxt == len(seq):
                hook_b(hb, PR)
            if hh == 1 and NS == 4 and st == 1:
                A('s_nop 7' if raw else 's_nop 5')
            if hh == 1 and NS != 4 and st == 2:
                A('s_nop 2')
        if hh == 0:
            pend = wr(1) + wr(5) + wr(3) + wr(7)
    assert not pend
    C.stamp()
    lkv = C.lab('nokv')
    if mode == 'qkv':
        la, lb = C.lab('ka'), C.lab('kb')
        A('s_cmp_ge_u32 s24, 2')
        A(f's_cbranch_scc1 {lb}')
        A('s_cmp_eq_u32 s24, s29')
        A(f's_cbranch_scc0 {la}')
        for hh in (1, 0):
            for st in range(4):
                c = '0' if st == 0 else v(KACC, 16)
                A(f'v_mfma_f32_32x32x16_bf16 {v(KACC, 16)}, {v(KVW + 4 * st, 4)}, {v(xreg[hh, st], 4)}, {c}')
            if hh == 1:
                A(f's_branch {lb}')
                A.label(la)
        A.label(lb)
        A('v_lshlrev_b32 v4, 3, v1')
        if not raw:
            C.wait('sx')
            for e in range(4):
                A(f'v_add_f32 {v(QSX + e)}, {v(QSX + e)}, {v(QSX + 4 + e)}')
            for e in range(2):
                A(f'v_add_f32 {v(QSX + e)}, {v(QSX + e)}, {v(QSX + 2 + e)}')
            A('s_lshl_b32 s30, s20, 9')
            A(f's_add_u32 s30, s30, {STAT}')
            A('v_add_u32 v2, s30, v4')
            A(f'ds_write_b64 v2, {v(QSX, 2)}')
        else:
            A('v_lshrrev_b32 v112, 5, v1')
            A('v_lshlrev_b32 v112, 4, v112')
            A('s_and_b32 s30, s28, 1')
            A('s_lshl_b32 s30, s30, 7')
            A('s_lshl_b32 s31, s26, 6')
            A('s_add_u32 s30, s30, s31')
            A(f's_add_u32 s30, s30, {CSK}')
            A('v_add_u32 v113, s30, v112')
            A('s_nop 3')
        A('v_and_b32 v4, 0xf8, v4')
        A('s_lshl_b32 s30, s29, 8')
        A(f's_add_u32 s30, s30, {STAT}')
        A('v_add_u32 v4, s30, v4')
    else:
        A('s_nop 10')
    for b in (4, 2, 6):
        for x in wr(b):
            A(x)
    if mode == 'qkv':
        A('s_cmp_ge_u32 s24, 2')
        A(f's_cbranch_scc1 {lkv}')
        A(f'v_add_u32 v2, {KVRED}, v8')
        for k4 in range(4):
            A(f'ds_write_b128 v2, {v(KACC + k4 * 4, 4)} offset:{(k4 >> 1) * 16 * KB + (k4 & 1) * 1024}')
        A.label(lkv)
    if hook_red:
        hook_red()
    A('s_waitcnt lgkmcnt(0)')
    A('s_barrier')
    for b in range(1, 8):
        for h2 in range(2):
            base, off = ('v8', (b - 1) * 16 * KB) if b <= 4 else ('v7', (b - 5) * 16 * KB)
            A(f'ds_read_b128 {v(ACCB + b * 8 + h2 * 4, 4)}, {base} offset:{off + h2 * 1024}')
    T = 80

    def red(base, waits):
        for stp in (32, 16, 8):
            for r in range(stp):
                A(f'v_add_f32 {v(base + r)}, {v(base + r)}, {v(base + stp + r)}')
    if mode == 'qkv':
        A('s_waitcnt lgkmcnt(6)')
        for ww in range(8):
            A(f'ds_read_b64 {v(T + ww * 2, 2)}, v4 offset:{ww * 512}')
        A('s_waitcnt lgkmcnt(8)')
        if raw:
            EX = 192
            for h2 in range(2):
                A(f'ds_read_b128 {v(EX + h2 * 4, 4)}, v113 offset:{h2 * 32}')
    else:
        C.wait('ex')
        for m in range(4):
            A(f'v_lshlrev_b32 {v(T + 2 * m)}, 16, {v(EX + m)}')
            A(f'v_and_b32 {v(T + 2 * m + 1)}, 0xffff0000, {v(EX + m)}')
        for r in range(8):
            A(f'v_add_f32 {v(ACCB + r)}, {v(ACCB + r)}, {v(T + r)}')
        A('s_waitcnt lgkmcnt(0)')
    red(ACCB, None)
    P = ACCB + 8
    if mode == 'qkv':
        A('s_waitcnt lgkmcnt(0)')
        for stp in (8, 4, 2):
            for e in range(stp):
                A(f'v_add_f32 {v(T + e)}, {v(T + e)}, {v(T + e + stp)}')
        A(f'v_mul_f32 {v(T)}, {f32(1.0 / 512)}, {v(T)}')
        A(f'v_mul_f32 {v(T + 1)}, {f32(1.0 / 512)}, {v(T + 1)}')
        A(f'v_fma_f32 {v(T + 1)}, -{v(T)}, {v(T)}, {v(T + 1)}')
        A(f'v_max_f32 {v(T + 1)}, 0, {v(T + 1)}')
        A(f'v_add_f32 {v(T + 1)}, {f32(1e-5)}, {v(T + 1)}')
        A(f'v_rsq_f32 {v(T + 1)}, {v(T + 1)}')
        C.wait('ex')
        for r in range(8):
            A(f'v_fma_f32 {v(ACCB + r)}, -{v(T)}, {v(EX + r)}, {v(ACCB + r)}')
        A(f'v_mul_f32 {v(T + 2)}, {f32(QSCALE)}, {v(T + 1)}')
        for r in range(8):
            A(f'v_mul_f32 {v(ACCB + r)}, {v(T + 2)}, {v(ACCB + r)}')
        for m in range(4):
            A(f'v_cvt_pk_bf16_f32 {v(P + m)}, {v(ACCB + 2 * m)}, {v(ACCB + 2 * m + 1)}')
        A(f's_add_u32 s31, s49, {C.qf}')
        C.vmem(f'buffer_store_dwordx4 {v(P, 4)}, v3, s[8:11], s31 offen{QWT}', 'st')
        le, lv = C.lab('ke'), C.lab('v')
        A('s_cmp_lg_u32 s29, s24')
        A(f's_cbranch_scc1 {le}')
        A('s_bfe_u32 s34, s20, 0x10001')
        A('s_lshl_b32 s30, s34, 14')
        A('s_lshl_b32 s31, s26, 10')
        A('s_add_u32 s30, s30, s31')
        A(f's_add_u32 s30, s30, {KVRED}')
        A('v_add_u32 v4, s30, v3')
        KR = 208
        for ww in range(8):
            A(f'ds_read_b128 {v(KR + ww * 4, 4)}, v4 offset:{ww * 2048}')
        KX = EX + 8
        if raw:
            A('s_lshl_b32 s30, s34, 6')
            A('s_lshl_b32 s31, s26, 5')
            A('s_add_u32 s30, s30, s31')
            A(f's_add_u32 s30, s30, {CSK + 256}')
            A('v_add_u32 v113, s30, v112')
            A(f'ds_read_b128 {v(KX, 4)}, v113')
        A('s_add_u32 s30, s27, s29')
        A(f's_mul_i32 s30, s30, {KVG}')
        A(f's_add_u32 s30, s30, {kvf}')
        A('v_bfe_u32 v4, v1, 4, 1')
        A(f'v_mul_u32_u24 v4, {VBS}, v4')
        A('v_bfe_u32 v5, v1, 2, 1')
        A('v_lshl_add_u32 v4, v5, 8, v4')
        A('v_and_b32 v5, 3, v1')
        A('v_lshl_add_u32 v4, v5, 1, v4')
        A('v_bfe_u32 v5, v1, 3, 1')
        A('v_lshl_add_u32 v4, v5, 3, v4')
        A('v_lshrrev_b32 v5, 5, v1')
        A('v_lshl_add_u32 v4, v5, 6, v4')
        A('s_waitcnt lgkmcnt(0)')
        for stp in (16, 8, 4):
            for r in range(stp):
                A(f'v_add_f32 {v(KR + r)}, {v(KR + r)}, {v(KR + stp + r)}')
        for r in range(4):
            A(f'v_fma_f32 {v(KR + r)}, -{v(T)}, {v(KX + r)}, {v(KR + r)}')
        for r in range(4):
            A(f'v_mul_f32 {v(KR + r)}, {v(T + 1)}, {v(KR + r)}')
        KP = KR + 8
        for m in range(2):
            A(f'v_cvt_pk_bf16_f32 {v(KP + m)}, {v(KR + 2 * m)}, {v(KR + 2 * m + 1)}')
        A('s_cmp_lg_u32 s34, 0')
        A(f's_cbranch_scc1 {lv}')
        A('s_lshl_b32 s31, s26, 3')
        A('s_add_u32 s31, s31, s30')
        A(f'buffer_store_dwordx2 {v(KP, 2)}, v3, s[8:11], s31 offen{QWT}')
        A(f's_branch {le}')
        A.label(lv)
        A('s_lshl_b32 s31, s26, 7')
        A('s_add_u32 s31, s31, s30')
        for r in range(4):
            op = 'buffer_store_short' if r % 2 == 0 else 'buffer_store_short_d16_hi'
            A(f'{op} {v(KP + r // 2)}, v4, s[8:11], s31 offen offset:{1024 + r * 16}{QWT}')
        A.label(le)
    else:
        for m in range(4):
            A(f'v_cvt_pk_bf16_f32 {v(P + m)}, {v(ACCB + 2 * m)}, {v(ACCB + 2 * m + 1)}')
        if mode == 'res':
            A(f's_add_u32 s31, s49, {outbase}')
            C.vmem(f'buffer_store_dwordx4 {v(P, 4)}, v3, s[8:11], s31 offen{WT}', 'st')
            blk_stats(C, P, T)
            A('s_lshr_b32 s31, s49, 2')
            A(f's_add_u32 s31, s31, {sxout}')
            A('v_lshlrev_b32 v4, 3, v1')
            A('s_mov_b32 exec_hi, 0')
            C.vmem(f'buffer_store_dwordx2 {v(T, 2)}, v4, s[8:11], s31 offen{WT}', 'st')
            A('s_mov_b64 exec, -1')
            if after_store:
                after_store()
        else:
            A('v_and_b32 v4, 31, v1')
            A('v_lshlrev_b32 v4, 10, v4')
            A('v_lshrrev_b32 v5, 5, v1')
            A('v_lshl_add_u32 v4, v5, 4, v4')
            A('s_add_u32 s30, s27, s29')
            A('s_lshl_b32 s30, s30, 15')
            A('s_lshl_b32 s31, s28, 6')
            A('s_add_u32 s30, s30, s31')
            A('s_lshl_b32 s31, s26, 5')
            A('s_add_u32 s30, s30, s31')
            A(f'v_permlane32_swap_b32 {v(P)}, {v(P + 2)}')
            A(f'v_permlane32_swap_b32 {v(P + 1)}, {v(P + 3)}')
            C.vmem(f'buffer_store_dwordx4 {v(P, 4)}, v4, s[12:15], s30 offen', 'st')


def qkv_wstep(C, st, n=1):
    A = C.A
    if st == 0:
        g3_waddr(C, (5, 6), 32, WQKVP)
    per = -(-8 // n)
    for i in range(st * per, min(8, (st + 1) * per)):
        g3_wload(C, (5, 6), i, 128)
    if st == n:
        A('s_lshl_b32 s30, s20, 12')
        A(f's_add_u32 s30, s30, {WQKVP + 16 * 32 * KB}')
        l = C.lab('kw')
        A('s_cmp_ge_u32 s24, 2')
        A(f's_cbranch_scc1 {l}')
        for k in range(4):
            A(f'buffer_load_dwordx4 {v(KVW + 4 * k, 4)}, v3, s[8:11], s30 offen offset:{k * 1024}')
        A.label(l)


def qkv_wloads(C):
    qkv_wstep(C, 0)
    qkv_wstep(C, 1)


KVR4, XF0, ST4, RED4 = 0, 36 * KB, 68 * KB, 80 * KB
G4_ORD = [0, 1, 4, 5, 8, 9, 12, 13, 2, 3, 6, 7, 10, 11, 14, 15]


def g4_ids(C):
    A = C.A
    A('s_and_b32 s18, s22, 3')
    A('s_lshl_b32 s30, s21, 2')
    A('s_add_u32 s18, s18, s30')
    A('s_and_b32 s30, s22, 12')
    A('s_add_u32 s30, s30, s25')
    A('s_lshl_b32 s30, s30, 1')
    A('s_add_u32 s30, s30, s26')
    A('s_lshl_b32 s19, s18, 5')
    A('s_add_u32 s19, s19, s30')
    A('s_lshl_b32 s19, s19, 10')
    A('s_lshr_b32 s3, s22, 2')
    A('s_and_b32 s30, s21, 3')
    A('s_xor_b32 s3, s3, s30')


def g4_waddr(C, vreg, wbase):
    A = C.A
    A('s_lshl_b32 s30, s26, 8')
    A(f'v_xor_b32 {v(vreg)}, s30, v3')
    A('s_and_b32 s30, s19, 0x7fff')
    A('s_lshl_b32 s30, s30, 4')
    A(f's_add_u32 s30, s30, {wbase}')
    A(f'v_add_u32 {v(vreg)}, s30, {v(vreg)}')


def g4_wreg(mode, i):
    if mode == 'qkv':
        return 128 + 4 * i
    return 224 + 4 * i if i < 8 else 64 + 4 * (i - 8)


def g4_wload(C, vreg, i, mode):
    so, im = soff(G4_ORD[i])
    C.vmem(f'buffer_load_dwordx4 {v(g4_wreg(mode, i), 4)}, {v(vreg)}, s[8:11], {so} offen offset:{im}', 'w')


def g4_pre(C, mode, xbase, resbase=None, raw=False):
    A = C.A
    EX = 96
    A('s_lshl_b32 s30, s18, 15')
    A('s_lshl_b32 s48, s20, 12')
    A('s_add_u32 s30, s30, s48')
    A(f's_add_u32 s30, s30, {xbase}')
    A('v_add_u32 v5, s30, v3')
    A('s_lshl_b32 s30, s26, 14')
    A(f's_add_u32 s30, s30, {XF0}')
    A('v_add_u32 v6, s30, v3')
    A(f'v_add_u32 v14, s48, v3')
    A(f's_add_u32 s48, s48, {XF0}')
    A('s_lshl_b32 s30, s20, 11')
    A(f's_add_u32 s30, s30, {RED4}')
    A('v_add_u32 v8, s30, v3')
    A('v_xor_b32 v7, 0x2000, v8')
    if mode == 'qkv':
        A('v_lshrrev_b32 v2, 5, v1')
        if not raw:
            A('v_lshlrev_b32 v4, 4, v2')
            A('s_and_b32 s31, s19, 0x7fff')
            A('s_lshr_b32 s31, s31, 4')
            A(f's_add_u32 s31, s31, {CSQKV}')
            C.vmem(f'buffer_load_dwordx4 {v(EX, 4)}, v4, s[8:11], s31 offen', 'ex')
            C.vmem(f'buffer_load_dwordx4 {v(EX + 4, 4)}, v4, s[8:11], s31 offen offset:32', 'ex')
            A('s_lshl_b32 s31, s25, 5')
            A(f's_add_u32 s31, s31, {CSQKV + 2048}')
            C.vmem(f'buffer_load_dwordx4 {v(EX + 8, 4)}, v4, s[8:11], s31 offen', 'ex')
        A('v_and_b32 v9, 31, v1')
        A('v_lshlrev_b32 v9, 3, v9')
        A(f'v_add_u32 v11, {ST4}, v9')
        A('s_lshl_b32 s30, s20, 8')
        A('v_add_u32 v10, s30, v11')
        A('v_lshl_add_u32 v9, v2, 9, v9')
        A('s_lshl_b32 s30, s18, 13')
        A('s_lshl_b32 s31, s20, 10')
        A('s_add_u32 s30, s30, s31')
        A(f's_add_u32 s30, s30, {resbase}')
        A('v_add_u32 v9, s30, v9')
        A('v_add_u32 v12, s48, v3')
        A('s_lshl_b32 s30, s25, 10')
        A(f's_add_u32 s30, s30, {KVR4}')
        A('v_add_u32 v13, s30, v3')
        A('v_bfe_u32 v15, v1, 4, 1')
        A('v_lshlrev_b32 v15, 9, v15')
        A('v_bfe_u32 v4, v1, 2, 1')
        A('v_lshl_add_u32 v15, v4, 8, v15')
        A('v_and_b32 v4, 3, v1')
        A('v_lshl_add_u32 v15, v4, 1, v15')
        A('v_bfe_u32 v4, v1, 3, 1')
        A('v_lshl_add_u32 v15, v4, 3, v15')
        A('v_lshl_add_u32 v15, v2, 6, v15')
    elif resbase is None:
        A('v_and_b32 v2, 31, v1')
        A('v_lshlrev_b32 v2, 10, v2')
        A('v_lshrrev_b32 v4, 5, v1')
        A('v_lshl_add_u32 v2, v4, 3, v2')
        A('s_lshl_b32 s30, s18, 15')
        A('s_and_b32 s31, s19, 0x7fff')
        A('s_lshr_b32 s31, s31, 5')
        A('s_add_u32 s30, s30, s31')
        C.vmem(f'buffer_load_dwordx2 {v(EX, 2)}, v2, s[12:15], s30 offen', 'ex')
        C.vmem(f'buffer_load_dwordx2 {v(EX + 2, 2)}, v2, s[12:15], s30 offen offset:16', 'ex')
    else:
        A(f's_add_u32 s31, s19, {resbase}')
        C.vmem(f'buffer_load_dwordx4 {v(EX, 4)}, v3, s[8:11], s31 offen', 'ex')


def ln_stats(A, T):
    for stp in (8, 4, 2):
        for e in range(stp):
            A(f'v_add_f32 {v(T + e)}, {v(T + e)}, {v(T + e + stp)}')
    A(f'v_mul_f32 {v(T)}, {f32(1.0 / 512)}, {v(T)}')
    A(f'v_mul_f32 {v(T + 1)}, {f32(1.0 / 512)}, {v(T + 1)}')
    A(f'v_fma_f32 {v(T + 1)}, -{v(T)}, {v(T)}, {v(T + 1)}')
    A(f'v_max_f32 {v(T + 1)}, 0, {v(T + 1)}')
    A(f'v_add_f32 {v(T + 1)}, {f32(1e-5)}, {v(T + 1)}')
    A(f'v_rsq_f32 {v(T + 1)}, {v(T + 1)}')


def g4_main(C, mode, outbase=None, sxout=None, kvf=None, kfl=None, hook_red=None, raw=None, endlab=None):
    A = C.A
    ACC, XR, EX = 16, 32, 96
    KW, KA, KR, T = 192, 208, 224, 108
    if not raw:
        A('s_mov_b32 m0, s48')
        A('s_nop 0')
        for k in range(4):
            C.vmem(f'buffer_load_dwordx4 v5, s[8:11], 0 offen offset:{k * 1024} lds', f'x{k}')

    def rd(i):
        A(f'ds_read_b128 {v(XR + 4 * (i % 8), 4)}, v6 offset:{G4_ORD[i] * 1024}')

    def mf(i):
        c = '0' if i == 0 else v(ACC, 16)
        A(f'v_mfma_f32_32x32x16_bf16 {v(ACC, 16)}, {v(g4_wreg(mode, i), 4)}, {v(XR + 4 * (i % 8), 4)}, {c}')

    def wq_loads():
        for i in range(16):
            so, im = soff(G4_ORD[i])
            A(f'buffer_load_dwordx4 {v(128 + 4 * i, 4)}, v64, s[8:11], {so} offen offset:{im}')

    if mode == 'qkv':
        A('s_add_u32 s35, s3, s26')
        if raw:
            raw['front']()
        else:
            for e in range(2):
                C.vmem(f'buffer_load_dwordx2 {v(T + 2 * e, 2)}, v9, s[8:11], 0 offen offset:{e * 256}', 'sx')
            l1, l2 = C.lab('w1'), C.lab('w2')
            A('s_cmp_eq_u32 s3, 0')
            A(f's_cbranch_scc1 {l1}')
            flag_b(C)
            wq_loads()
            A('s_waitcnt vmcnt(16)')
            A(f's_branch {l2}')
            A.label(l1)
            A('s_waitcnt vmcnt(0)')
            A.label(l2)
            C.vm = []
            C.stamp()
        lk = C.lab('k4')
        A('s_cmp_lg_u32 s3, 0')
        A(f's_cbranch_scc1 {lk}')
        if raw:
            raw['kvw']()
        else:
            for k in range(4):
                A(f'ds_read_b128 {v(KR + 4 * k, 4)}, v12 offset:{k * 1024}')
        for k in range(4):
            if not raw:
                A(f's_waitcnt lgkmcnt({3 - k})')
            A(f'v_mfma_f32_32x32x16_bf16 {v(KA, 16)}, {v(KW + 4 * k, 4)}, {v(KR + 4 * k, 4)}, {"0" if k == 0 else v(KA, 16)}')
        A.label(lk)
        A(f'v_add_f32 {v(T)}, {v(T)}, {v(T + 2)}')
        A(f'v_add_f32 {v(T + 1)}, {v(T + 1)}, {v(T + 3)}')
        A(f'v_mov_b32 {v(T + 2)}, {v(T)}')
        A(f'v_mov_b32 {v(T + 3)}, {v(T + 1)}')
        A('s_nop 1')
        swap_add(A, T, T + 2)
        swap_add(A, T + 1, T + 3)
        A(f'ds_write_b64 v10, {v(T, 2)}')
        A(f'v_mov_b32 {v(T + 2)}, 0')
        A(f'v_mov_b32 v9, {ST4 + 8192}')
        A(f'ds_write_b32 v9, {v(T + 2)}')
        lk = C.lab('k5')
        A('s_cmp_lg_u32 s3, 0')
        A(f's_cbranch_scc1 {lk}')
        for k in range(4):
            A(f'ds_write_b128 v14, {v(KA + 4 * k, 4)} offset:{k * 1024}')
        A.label(lk)
        A('s_waitcnt lgkmcnt(0)')
        A('s_barrier')
        for ww in range(8):
            A(f'ds_read_b64 {v(T + 2 * ww, 2)}, v11 offset:{ww * 256}')
        lv, le, lf = C.lab('v6'), C.lab('e6'), C.lab('f6')
        A('s_cmp_lg_u32 s35, 0')
        A(f's_cbranch_scc1 {le}')
        A('s_setprio 3')
        if FINE == 3:
            C.stamp()
        A('s_waitcnt lgkmcnt(4)')
        for ww in range(8):
            A(f'ds_read_b128 {v(KR + 4 * ww, 4)}, v13 offset:{ww * 4096}')
        A('s_waitcnt lgkmcnt(8)')
        for r in range(16):
            A(f'v_mov_b32 {v(KA + r)}, {v(T + r)}')
        ln_stats(A, KA)
        A('s_lshl_b32 s30, s18, 11')
        A(f's_add_u32 s30, s30, {kvf}')
        A('s_waitcnt lgkmcnt(0)')
        if raw:
            raw['kvcs0']()
        for stp in (16, 8, 4):
            for r in range(stp):
                A(f'v_add_f32 {v(KR + r)}, {v(KR + r)}, {v(KR + stp + r)}')
        if raw:
            raw['kvcs1']()
        for r in range(4):
            A(f'v_fma_f32 {v(KR + r)}, -{v(KA)}, {v(EX + 8 + r)}, {v(KR + r)}')
        for r in range(4):
            A(f'v_mul_f32 {v(KR + r)}, {v(KA + 1)}, {v(KR + r)}')
        for m in range(2):
            A(f'v_cvt_pk_bf16_f32 {v(KR + 8 + m)}, {v(KR + 2 * m)}, {v(KR + 2 * m + 1)}')
        A('s_cmp_ge_u32 s20, 2')
        A(f's_cbranch_scc1 {lv}')
        A('s_lshl_b32 s31, s20, 3')
        A('s_add_u32 s31, s31, s30')
        A(f'buffer_store_dwordx2 {v(KR + 8, 2)}, v3, s[8:11], s31 offen sc0 sc1')
        A(f's_branch {lf}')
        A.label(lv)
        A('s_lshl_b32 s31, s29, 10')
        A(f's_add_u32 s31, s31, {ST4 + 4096}')
        A('v_add_u32 v15, s31, v15')
        for r in range(4):
            op = 'ds_write_b16' if r % 2 == 0 else 'ds_write_b16_d16_hi'
            A(f'{op} v15, {v(KR + 8 + r // 2)} offset:{r * 16}')
        A('v_lshrrev_b32 v2, 3, v1')
        A('v_lshlrev_b32 v2, 8, v2')
        A(f'v_and_b32 {v(KR)}, 7, v1')
        A(f'v_lshl_add_u32 v2, {v(KR)}, 4, v2')
        A('v_add_u32 v15, s31, v2')
        A('s_mov_b32 exec_hi, 0')
        A(f'ds_read_b128 {v(KR + 12, 4)}, v15')
        A('s_lshl_b32 s31, s29, 7')
        A('s_add_u32 s31, s31, s30')
        A('s_waitcnt lgkmcnt(0)')
        A(f'buffer_store_dwordx4 {v(KR + 12, 4)}, v2, s[8:11], s31 offen offset:1024 sc0 sc1')
        A('s_mov_b64 exec, -1')
        A.label(lf)
        lg = C.lab('g6')
        if FINE == 3:
            C.stamp()
        A('s_lshl_b32 s30, s18, 7')
        A(f's_add_u32 s30, s30, {kfl}')
        if raw:
            raw['zchk']()
        A('s_mov_b64 exec, 1')
        A('s_waitcnt vmcnt(0)')
        A('ds_add_rtn_u32 v2, v9, v4')
        A('s_waitcnt lgkmcnt(0)')
        A('v_cmp_eq_u32 vcc, 3, v2')
        A('s_cbranch_vccz ' + lg)
        A('buffer_store_dword v4, v0, s[8:11], s30 offen sc0 sc1')
        A.label(lg)
        A('s_mov_b64 exec, -1')
        A('s_setprio 0')
        if FINE == 3:
            C.stamp()
        A.label(le)
        flag_b(C)
        A('s_waitcnt lgkmcnt(0)')
        if raw:
            raw['wprep']()
        else:
            l3 = C.lab('w3')
            A('s_cmp_lg_u32 s3, 0')
            A(f's_cbranch_scc1 {l3}')
            C.flagb = True
            flag_b(C)
            wq_loads()
            A.label(l3)
        if raw:
            raw['loop'](rd, mf)
        else:
            for i in range(8):
                rd(i)
            ln_stats(A, T)
            for i in range(16):
                A(f's_waitcnt lgkmcnt({7 if i < 8 else 15 - i}) vmcnt({15 - i})')
                mf(i)
                if i < 8:
                    rd(i + 8)
    else:
        def wl(i):
            so, im = soff(G4_ORD[i])
            C.vmem(f'buffer_load_dwordx4 {v(g4_wreg(mode, i), 4)}, v116, s[8:11], {so} offen offset:{im}', f'w{i}')
        if WO_LATE:
            for i in range(8, 8 + WO_L0):
                wl(i)
        C.wait('x1')
        A('s_barrier')
        C.stamp()
        for i in range(8):
            rd(i)
        if WO_LATE:
            for i in range(8 + WO_L0, 16):
                wl(i)
        for i in range(4):
            A(f's_waitcnt lgkmcnt({7 - i})')
            mf(i)
        C.wait('x3')
        A('s_barrier')
        for i in range(8, 12):
            rd(i)
        for i in range(4, 8):
            A('s_waitcnt lgkmcnt(7)')
            mf(i)
            rd(i + 8)
        flag_b(C)
        for i in range(8, 16):
            C.wait(f'w{i}', f'lgkmcnt({15 - i})')
            mf(i)
            if hook_red and i >= 8:
                hook_red(i - 8)
    C.stamp()
    if mode == 'qkv':
        kv_setup(C, kvf, kfl)
        A(f'v_mul_f32 {v(T + 2)}, {f32(QSCALE)}, {v(T + 1)}')
        if raw:
            raw['cs0']()
    else:
        C.wait('ex')
        TT = XR
        for m in range(4):
            A(f'v_lshlrev_b32 {v(TT + 2 * m)}, 16, {v(EX + m)}')
            A(f'v_and_b32 {v(TT + 2 * m + 1)}, 0xffff0000, {v(EX + m)}')
        A('s_nop 3')
    for h2 in range(2):
        A(f'ds_write_b128 v7, {v(ACC + 8 + 4 * h2, 4)} offset:{h2 * 1024}')
    if mode == 'qkv':
        if not raw:
            for r in range(8):
                A(f'v_fma_f32 {v(ACC + r)}, -{v(T)}, {v(EX + r)}, {v(ACC + r)}')
    else:
        for r in range(8):
            A(f'v_add_f32 {v(ACC + r)}, {v(ACC + r)}, {v(XR + r)}')
    A('s_waitcnt lgkmcnt(0)')
    A('s_barrier')
    for h2 in range(2):
        A(f'ds_read_b128 {v(ACC + 8 + 4 * h2, 4)}, v8 offset:{h2 * 1024}')
    if mode == 'qkv':
        if FINE == 3:
            C.stamp()
        kv_wait(C, 1, endlab)
        if FINE == 3:
            C.stamp()
        att_kvdma(C, 0)
        kv_flagload(C)
    if raw:
        raw['cs']()
        for r in range(8):
            A(f'v_fma_f32 {v(ACC + r)}, -{v(T)}, {v(EX + r)}, {v(ACC + r)}')
    A('s_waitcnt lgkmcnt(0)')
    for r in range(8):
        A(f'v_add_f32 {v(ACC + r)}, {v(ACC + r)}, {v(ACC + 8 + r)}')
    if mode == 'qkv':
        for r in range(8):
            A(f'v_mul_f32 {v(ACC + r)}, {v(T + 2)}, {v(ACC + r)}')
        for m in range(4):
            A(f'v_cvt_pk_bf16_f32 {v(124 + m)}, {v(ACC + 2 * m)}, {v(ACC + 2 * m + 1)}')
        A('s_barrier')
    else:
        P = ACC + 8
        for m in range(4):
            A(f'v_cvt_pk_bf16_f32 {v(P + m)}, {v(ACC + 2 * m)}, {v(ACC + 2 * m + 1)}')
        A(f's_add_u32 s31, s19, {outbase}')
        C.vmem(f'buffer_store_dwordx4 {v(P, 4)}, v3, s[8:11], s31 offen{WT}', 'st')
        blk_stats(C, P, XR)
        A('s_lshr_b32 s31, s19, 2')
        A(f's_add_u32 s31, s31, {sxout}')
        A('v_lshlrev_b32 v4, 3, v1')
        A('s_mov_b32 exec_hi, 0')
        C.vmem(f'buffer_store_dwordx2 {v(XR, 2)}, v4, s[8:11], s31 offen{WT}', 'st')
        A('s_mov_b64 exec, -1')


def qkv4_wstep(C, st, n):
    pass


def qkv4_wrest(C):
    A = C.A
    l = C.lab('kw')
    A('s_lshl_b32 s30, s20, 12')
    A(f's_add_u32 s30, s30, {WQKVP + 16 * 32 * KB}')
    A('s_cmp_lg_u32 s3, 0')
    A(f's_cbranch_scc1 {l}')
    for k in range(4):
        A(f'buffer_load_dwordx4 {v(192 + 4 * k, 4)}, v3, s[8:11], s30 offen offset:{k * 1024}')
    A.label(l)


def att_kvdma(C, r):
    A = C.A
    A(f's_add_u32 s30, s39, {r * 16384}')
    A('s_and_b32 s30, s30, 0x1ffff')
    A(f's_add_u32 m0, s37, {r * 8 * KVT}')
    A('s_add_u32 s30, s30, s38')
    A('buffer_load_dwordx4 v3, s[8:11], s30 offen lds')
    A('buffer_load_dwordx4 v3, s[8:11], s30 offen offset:1024 lds')


def kv_flagload(C):
    A = C.A
    A('s_mov_b64 exec, 0xff')
    A('buffer_load_dword v2, v0, s[8:11], s33 offen sc1')
    A('s_mov_b64 exec, -1')


def kv_setup(C, kvf, kfl):
    A = C.A
    A(f's_mul_i32 s37, s20, {KVT}')
    A('s_lshl_b32 s38, s20, 11')
    A(f's_add_u32 s38, s38, {kvf}')
    A('s_lshr_b32 s30, s21, 1')
    A('s_lshl_b32 s39, s30, 14')
    A('v_add_u32 v0, s30, v1')
    A('v_and_b32 v0, 7, v0')
    A('v_lshlrev_b32 v0, 10, v0')
    A('s_lshl_b32 s33, s20, 7')
    A(f's_add_u32 s33, s33, {kfl}')
    kv_flagload(C)


def kv_wait(C, mask, endlab):
    A = C.A
    lp, lpd = C.lab('kp'), C.lab('kpd')
    A('s_mov_b32 s31, 0')
    A('s_mov_b64 exec, 0xff')
    A.label(lp)
    A('s_add_u32 s31, s31, 1')
    A('s_waitcnt vmcnt(0)')
    A('v_cmp_ne_u32 vcc, 0, v2')
    A(f's_and_b32 s30, vcc_lo, {mask}')
    A(f's_cmp_eq_u32 s30, {mask}')
    A(f's_cbranch_scc1 {lpd}')
    A(f's_sleep {KV_SLEEP}')
    A('buffer_load_dword v2, v0, s[8:11], s33 offen sc1')
    A(f's_cmp_lt_u32 s31, {1 << 21}')
    A(f's_cbranch_scc1 {lp}')
    A(f's_branch {endlab}')
    A.label(lpd)
    A('s_mov_b64 exec, -1')


def att_phase(C, kvf, kfl, endlab, stubs, fixed={}, pf0=None, pre_hook=None, loadq=True, early=False):
    A = C.A
    tg = C.tag
    Q, CN, S0, S1, O, P, KF, VF, VK, VV, T = 124, 8, 24, 40, 56, 72, 80, 88, 104, 105, 106
    VV1 = 111
    S = [S0, S1]
    A(f's_add_u32 s36, s19, {C.B["OF"]}')
    if loadq:
        A(f's_add_u32 s31, s19, {C.B["QF"]}')
        C.vmem(f'buffer_load_dwordx4 {v(Q, 4)}, v3, s[8:11], s31 offen', 'q')
        flag_b(C)
    def kvdma(r):
        att_kvdma(C, r)
    if pre_hook:
        pre_hook()
    A(f'v_mov_b32 {v(VK)}, v3')
    A(f'v_and_b32 {v(T)}, 15, v1')
    A(f'v_lshrrev_b32 {v(T + 1)}, 5, v1')
    A(f'v_lshl_add_u32 {v(T)}, {v(T + 1)}, 4, {v(T)}')
    A(f'v_lshlrev_b32 {v(T)}, 4, {v(T)}')
    A(f'v_add_u32 {v(VV)}, 1024, {v(T)}')
    A(f'v_add_u32 {v(VV1)}, 1536, {v(T)}')
    A(f'v_and_b32 {v(T + 1)}, 31, v1')
    A(f'v_cmp_eq_u32 vcc, 16, {v(T + 1)}')
    A(f'v_mov_b32 {v(T + 2)}, 2048')
    A('s_nop 0')
    A(f'v_cndmask_b32 {v(VV)}, {v(VV)}, {v(T + 2)}, vcc')
    A(f'v_cndmask_b32 {v(VV1)}, {v(VV1)}, {v(T + 2)}, vcc')
    A(f'v_cmp_lt_u32 vcc, 16, {v(T + 1)}')
    A(f'v_mov_b32 {v(T + 2)}, 2064')
    A('s_nop 0')
    A(f'v_cndmask_b32 {v(VV)}, {v(VV)}, {v(T + 2)}, vcc')
    A(f'v_cndmask_b32 {v(VV1)}, {v(VV1)}, {v(T + 2)}, vcc')
    for r in range(16):
        A(f'v_mov_b32 {v(O + r)}, 0')
    for m in range(4, 8):
        A(f'v_mov_b32 {v(P + m)}, 0')
    for m in range(4):
        A(f'v_mov_b32 {v(VF + 12 + m)}, 0')
        A(f'v_mov_b32 {v(P + m)}, 0x3f803f80')
    A(f'v_mul_u32_u24 {v(T)}, {KVT}, v1')
    lcw = C.lab('cw')
    A('s_cmp_lg_u32 s20, 7')
    A(f's_cbranch_scc1 {lcw}')
    A(f'ds_write_b128 {v(T)}, {v(P, 4)} offset:2048')
    A(f'ds_write_b128 {v(T)}, {v(P + 4, 4)} offset:2064')
    A.label(lcw)
    lnd = C.lab('nd')
    A('s_waitcnt vmcnt(0) lgkmcnt(0)')
    A('v_cmp_ne_u32 vcc, 0, v2')
    A('s_barrier')
    A('s_and_b32 s32, vcc_lo, 0xff')
    A('s_cmp_lg_u32 s32, 0xff')
    A(f's_cbranch_scc1 {lnd}')
    for r in range(1, 4):
        kvdma(r)
    A.label(lnd)
    C.vm = []
    C.stamp()

    def rdK(buf, t):
        A(f'ds_read_b128 {v(KF + buf * 4, 4)}, {v(VK)} offset:{t * KVT}')

    def rdV(buf, t):
        A(f'ds_read_b128 {v(VF + buf * 8, 4)}, {v(VV)} offset:{t * KVT}')
        A(f'ds_read_b128 {v(VF + buf * 8 + 4, 4)}, {v(VV1)} offset:{t * KVT}')

    rdK(0, 0)
    rdK(1, 1)
    rdV(0, 0)
    A('s_waitcnt lgkmcnt(3)')
    A(f'v_mfma_f32_32x32x16_bf16 {v(S0, 16)}, {v(KF, 4)}, {v(Q, 4)}, 0')
    A('s_nop 11')
    A(f'v_max3_f32 {v(T)}, {v(S0)}, {v(S0 + 1)}, {v(S0 + 2)}')
    for r in range(3, 15, 2):
        A(f'v_max3_f32 {v(T)}, {v(T)}, {v(S0 + r)}, {v(S0 + r + 1)}')
    A(f'v_max_f32 {v(T)}, {v(T)}, {v(S0 + 15)}')
    A(f'v_mov_b32 {v(T + 1)}, {v(T)}')
    A('s_nop 1')
    A(f'v_permlane32_swap_b32 {v(T)}, {v(T + 1)}')
    A(f'v_max_f32 {v(T)}, {v(T)}, {v(T + 1)}')
    for r in range(16):
        A(f'v_sub_f32 {v(CN + r)}, 0, {v(T)}')
    for r in range(16):
        A(f'v_sub_f32 {v(S0 + r)}, {v(S0 + r)}, {v(T)}')
    A('s_setprio 3')
    C.stamp()
    def tile(t, off, extra=None):
        cur, nxt = t & 1, (t + 1) & 1
        Sc, Sn = S[cur], S[nxt]
        if not ONEWAIT:
            A('s_waitcnt lgkmcnt(2)')
        A(f'v_mfma_f32_32x32x16_bf16 {v(Sn, 16)}, {v(KF + nxt * 4, 4)}, {v(Q, 4)}, {v(CN, 16)}')
        rdK(cur, off + 2)
        for r in range(6):
            A(f'v_exp_f32 {v(Sc + r)}, {v(Sc + r)}')
        A(f'v_mfma_f32_32x32x16_bf16 {v(O, 16)}, {v(VF + nxt * 8 + 4, 4)}, {v(P + 4, 4)}, {v(O, 16)}')
        if extra:
            extra()
        for r in range(6, 8):
            A(f'v_exp_f32 {v(Sc + r)}, {v(Sc + r)}')
        for m in range(4):
            A(f'v_cvt_pk_bf16_f32 {v(P + m)}, {v(Sc + 2 * m)}, {v(Sc + 2 * m + 1)}')
        A(f'v_exp_f32 {v(Sc + 8)}, {v(Sc + 8)}')
        A(f'v_exp_f32 {v(Sc + 9)}, {v(Sc + 9)}')
        A('s_waitcnt lgkmcnt(0)' if ONEWAIT else 's_waitcnt lgkmcnt(1)')
        A(f'v_mfma_f32_32x32x16_bf16 {v(O, 16)}, {v(VF + cur * 8, 4)}, {v(P, 4)}, {v(O, 16)}')
        rdV(nxt, off + 1)
        for r in range(10, 16):
            A(f'v_exp_f32 {v(Sc + r)}, {v(Sc + r)}')
        for m in range(4, 8):
            A(f'v_cvt_pk_bf16_f32 {v(P + m)}, {v(Sc + 2 * m)}, {v(Sc + 2 * m + 1)}')

    def bump(n):
        for rg in (VK, VV, VV1):
            A(f'v_add_u32 {v(rg)}, {n * KVT}, {v(rg)}')
    if ONEWAIT:
        A('s_waitcnt lgkmcnt(0)')
    queue = list(stubs)
    nq = len(queue)
    tpf0 = pf0 if pf0 else TB2
    ntl = 64 - TPFEND - tpf0
    prio = {TP2: 2, TP1: 1, TP0: 0}
    dq = list(range(4, 8))
    for t in range(64):
        if t == TCHK:
            ld = C.lab('dn')
            A('s_cmp_eq_u32 s32, 0xff')
            A(f's_cbranch_scc1 {ld}')
            kv_flagload(C)
            kv_wait(C, 0xff, endlab)
            for r in range(1, 4):
                kvdma(r)
            A.label(ld)
        if t == 6 and TB2 != 6:
            assert not dq
            A('s_waitcnt vmcnt(12)')
            A('s_barrier')
        if t == TB2:
            assert not dq
            A('s_waitcnt vmcnt(0)')
            A('s_barrier')
        if t in prio:
            A(f's_setprio {prio[t]}')
        if t in fixed:
            fixed[t]()
        fs = []
        if t >= TCHK:
            for _ in range(DPT):
                if dq:
                    fs.append(lambda r=dq.pop(0): kvdma(r))
        if t >= tpf0 and queue:
            k = t - tpf0
            n = (nq * (k + 1)) // ntl - (nq * k) // ntl
            fs += [queue.pop(0) for _ in range(min(n, len(queue)))]
        tile(t, t % 24 if t < 48 else t - 48, lambda fs=fs: [f() for f in fs])
        if t in (23, 47):
            bump(24)
        if t == 63:
            bump(16)
    assert not queue
    A(f'v_mfma_f32_32x32x16_bf16 {v(O, 16)}, {v(VF + 8 + 4, 4)}, {v(P + 4, 4)}, {v(O, 16)}')
    A('s_mov_b32 s39, 0')
    C.stamp()
    A('s_waitcnt lgkmcnt(0)')
    A('s_nop 10')
    A.label(f'{tg}_fin')
    A(f'v_mov_b32 {v(T)}, {v(O + 8)}')
    A(f'v_mov_b32 {v(T + 1)}, {v(O + 8)}')
    A(f'v_mul_f32 {v(T + 2)}, 0, {v(O)}')
    A(f'v_fma_f32 {v(T + 2)}, {v(O + 1)}, 0, {v(T + 2)}')
    A(f'v_permlane32_swap_b32 {v(T)}, {v(T + 1)}')
    for r in range(2, 8):
        A(f'v_fma_f32 {v(T + 2)}, {v(O + r)}, 0, {v(T + 2)}')
    A(f'v_add_f32 {v(T + 2)}, {v(T + 2)}, {v(T)}')
    A(f'v_mov_b32 {v(T + 3)}, {f32(2.0 ** 30)}')
    A(f'v_cmp_nle_f32 vcc, {v(T + 2)}, {v(T + 3)}')
    A(f'v_rcp_f32 {v(T)}, {v(T)}')
    A('s_cmp_eq_u32 s39, 99')
    A(f's_cbranch_scc1 {tg}_store')
    A(f's_cbranch_vccnz {tg}_slow')
    A.label(f'{tg}_store')
    for r in range(8):
        A(f'v_mul_f32 {v(O + r)}, {v(T)}, {v(O + r)}')
    for m in range(4):
        A(f'v_cvt_pk_bf16_f32 {v(P + m)}, {v(O + 2 * m)}, {v(O + 2 * m + 1)}')
    C.vmem(f'buffer_store_dwordx4 {v(P, 4)}, v3, s[8:11], s36 offen{WT}', 'st')

    def tail(with_body):
        A.label(f'{tg}_slow')
        A(f'v_subrev_u32 {v(VK)}, {64 * KVT}, {v(VK)}')
        A(f'v_subrev_u32 {v(VV)}, {64 * KVT}, {v(VV)}')
        A(f'v_subrev_u32 {v(VV1)}, {64 * KVT}, {v(VV1)}')
        for r in range(16):
            A(f'v_mov_b32 {v(O + r)}, 0')
        M = T + 4
        A(f'v_sub_f32 {v(M)}, 0, {v(CN)}')
        A.label(f'{tg}_sloop')
        rdK(0, 0)
        rdV(0, 0)
        A('s_waitcnt lgkmcnt(0)')
        A(f'v_mfma_f32_32x32x16_bf16 {v(S0, 16)}, {v(KF, 4)}, {v(Q, 4)}, 0')
        A('s_nop 11')
        A(f'v_max3_f32 {v(T)}, {v(S0)}, {v(S0 + 1)}, {v(S0 + 2)}')
        for r in range(3, 15, 2):
            A(f'v_max3_f32 {v(T)}, {v(T)}, {v(S0 + r)}, {v(S0 + r + 1)}')
        A(f'v_max3_f32 {v(T)}, {v(T)}, {v(S0 + 15)}, {v(M)}')
        A(f'v_mov_b32 {v(T + 1)}, {v(T)}')
        A('s_nop 1')
        A(f'v_permlane32_swap_b32 {v(T)}, {v(T + 1)}')
        A(f'v_max_f32 {v(T)}, {v(T)}, {v(T + 1)}')
        A(f'v_sub_f32 {v(T + 1)}, {v(M)}, {v(T)}')
        A(f'v_exp_f32 {v(T + 1)}, {v(T + 1)}')
        A(f'v_mov_b32 {v(M)}, {v(T)}')
        for r in range(16):
            A(f'v_sub_f32 {v(S0 + r)}, {v(S0 + r)}, {v(T)}')
        for r in range(16):
            A(f'v_exp_f32 {v(S0 + r)}, {v(S0 + r)}')
        for r in range(16):
            A(f'v_mul_f32 {v(O + r)}, {v(T + 1)}, {v(O + r)}')
        for m in range(8):
            A(f'v_cvt_pk_bf16_f32 {v(P + m)}, {v(S0 + 2 * m)}, {v(S0 + 2 * m + 1)}')
        A('s_nop 1')
        A(f'v_mfma_f32_32x32x16_bf16 {v(O, 16)}, {v(VF, 4)}, {v(P, 4)}, {v(O, 16)}')
        A(f'v_mfma_f32_32x32x16_bf16 {v(O, 16)}, {v(VF + 4, 4)}, {v(P + 4, 4)}, {v(O, 16)}')
        A(f'v_add_u32 {v(VK)}, {KVT}, {v(VK)}')
        A(f'v_add_u32 {v(VV)}, {KVT}, {v(VV)}')
        A(f'v_add_u32 {v(VV1)}, {KVT}, {v(VV1)}')
        A('s_nop 11')
        A('s_add_u32 s39, s39, 1')
        A('s_cmp_lt_u32 s39, 64')
        A(f's_cbranch_scc1 {tg}_sloop')
        A('s_mov_b32 s39, 99')
        A(f's_branch {tg}_fin')
    return tail


V_WGU = 112


def gu_waddr(C):
    A = C.A
    A('s_mul_i32 s30, s22, 7')
    A('s_min_u32 s31, s20, 6')
    A('s_add_u32 s40, s30, s31')
    A('s_lshl_b32 s30, s40, 15')
    A(f's_add_u32 s30, s30, {WGUP}')
    A(f'v_add_u32 {v(V_WGU)}, s30, v3')


def gu_wload(C, ks):
    so, im = soff(ks)
    C.vmem(f'buffer_load_dwordx4 {v(128 + 4 * ks, 4)}, {v(V_WGU)}, s[8:11], {so} offen offset:{im}', 'wg')


def gu_pre(C):
    A = C.A
    CS = 112
    A('v_mov_b32 v15, v113')
    A('v_mov_b32 v9, v114')
    A(f'v_mov_b32 v14, {v(V_WGU)}')
    A('s_lshl_b32 s30, s21, 2')
    A('s_add_u32 s30, s30, s25')
    A('s_lshl_b32 s30, s30, 15')
    A('s_lshl_b32 s31, s26, 11')
    A('s_add_u32 s30, s30, s31')
    A(f's_add_u32 s30, s30, {C.B["XB"]}')
    A('v_add_u32 v13, s30, v3')
    A('s_lshl_b32 s48, s25, 15')
    A('s_add_u32 s48, s48, s31')
    A('v_add_u32 v7, 0x10000, v3')
    A('v_lshrrev_b32 v11, 5, v1')
    A('v_lshlrev_b32 v11, 4, v11')
    A('s_min_u32 s30, s20, 6')
    A('s_lshl_b32 s30, s30, 7')
    A(f's_add_u32 s30, s30, {132 * KB}')
    A('v_add_u32 v10, s30, v11')
    A('v_and_b32 v12, 31, v1')
    A('v_lshlrev_b32 v12, 3, v12')
    A('v_lshl_add_u32 v12, v11, 8, v12')
    A('s_lshl_b32 s30, s21, 15')
    A(f's_add_u32 s30, s30, {C.B["SXB"]}')
    A('v_add_u32 v12, s30, v12')
    A(f'v_add_u32 v8, {128 * KB}, v3')


def gu_main(C, after_store=None):
    A = C.A
    ACC, XF, CS = 16, 80, 112
    STR = [4, 10, 240, 244]

    def dma(c):
        A(f's_add_u32 m0, s48, {c * 4096}')
        so = '0' if c == 0 else s(40 + c)
        A('s_nop 0')
        for k in range(2):
            C.vmem(f'buffer_load_dwordx4 v13, s[8:11], {so} offen offset:{k * 1024} lds', f'x{c}')
    dma(0)
    dma(1)

    def rd(ks):
        buf = ks & 1
        for i in range(4):
            base = 'v3' if i < 2 else 'v7'
            A(f'ds_read_b128 {v(XF + buf * 16 + i * 4, 4)}, {base} offset:{(i & 1) * 32768 + ks * 1024}')

    def stats_load(i):
        for e in range(16):
            C.vmem(f'buffer_load_dwordx2 {v(ACC + (i & 1) * 32 + 2 * e, 2)}, v12, s[8:11], {"0" if i == 0 else s(40 + 2 * i)} offen offset:{e * 256}', f's{i}')

    def stats_sum(i):
        b = ACC + (i & 1) * 32
        C.wait(f's{i}')
        for stp in (16, 8, 4, 2):
            for e in range(stp):
                A(f'v_add_f32 {v(b + e)}, {v(b + e)}, {v(b + e + stp)}')
        A(f'v_mov_b32 {v(b + 2)}, {v(b)}')
        A(f'v_mov_b32 {v(b + 3)}, {v(b + 1)}')
        A('s_nop 1')
        A(f'v_permlane32_swap_b32 {v(b)}, {v(b + 2)}')
        A(f'v_permlane32_swap_b32 {v(b + 1)}, {v(b + 3)}')
        A(f'v_add_f32 {v(b)}, {v(b)}, {v(b + 2)}')
        A(f'v_add_f32 {v(b + 1)}, {v(b + 1)}, {v(b + 3)}')
        A(f'v_mul_f32 {v(b)}, {f32(-1.0 / 512)}, {v(b)}')
        A(f'v_mul_f32 {v(b + 1)}, {f32(1.0 / 512)}, {v(b + 1)}')
        A(f'v_fma_f32 {v(b + 1)}, -{v(b)}, {v(b)}, {v(b + 1)}')
        A(f'v_max_f32 {v(b + 1)}, 0, {v(b + 1)}')
        A(f'v_add_f32 {v(b + 1)}, {f32(1e-5)}, {v(b + 1)}')
        A(f'v_rcp_f32 {v(b + 2)}, {v(b + 1)}')
        A(f'v_mov_b32 {v(b + 1)}, {v(b)}')
        A(f'v_mov_b32 {v(b + 3)}, {v(b + 2)}')
        A(f'ds_write_b128 v8, {v(b, 4)} offset:{i * 1024}')
        A('s_waitcnt lgkmcnt(0)')

    def loop(idle):
        C.wait('x0')
        A('s_barrier')
        C.stamp()
        if not idle:
            rd(0)
        for ks in range(32):
            if ks + 1 < 32:
                if (ks + 1) in GU_BARS:
                    C.wait(f'x{GU_BARS[ks + 1]}')
                    A('s_barrier')
                if not idle:
                    rd(ks + 1)
                    if ks == 28:
                        for g in range(4):
                            A(f'ds_read_b128 {v(CS + g * 4, 4)}, v10 offset:{g * 32}')
                        A('s_waitcnt lgkmcnt(8)')
                    elif ks == 30:
                        for i in range(4):
                            A(f'ds_read_b128 {v(STR[i], 4)}, v8 offset:{i * 1024}')
                        A('s_waitcnt lgkmcnt(8)')
                    else:
                        A('s_waitcnt lgkmcnt(4)')
            elif not idle:
                A('s_waitcnt lgkmcnt(0)')
            buf = ks & 1
            todo = []
            if ks == 10:
                C.flagb = True
                flag_b(C)
            if ks < 6:
                todo.append(lambda: dma(ks + 2))
            if ks == 16 + WO_TAIL and not idle:
                C.wait('wg')
            if 6 <= ks < 6 + 16 - WO_TAIL and not idle:
                k2 = 16 + WO_TAIL + ks - 6
                so, im = soff(k2)
                todo.append(lambda k2=k2, so=so, im=im: C.vmem(f'buffer_load_dwordx4 {v(128 + 4 * k2, 4)}, v14, s[8:11], {so} offen offset:{im}', 'wg'))
            if ks >= GU_WD0:
                nleft = 28 - len(wdone)
                for st in [st for st in range(28) if st < ks and st not in wdone][:(2 if nleft > 31 - ks else 1)]:
                    todo.append(lambda st=st: g3_wload(C, (15, 9), st, 128))
                    wdone.add(st)
            for i in range(4):
                if not idle and not (GU_TAIL and (ks == 31 or (ks == 30 and i >= 2))):
                    c = '0' if ks == 0 else v(ACC + i * 16, 16)
                    if GU16:
                        for t2 in range(2):
                            aa = ACC + i * 16 + ((ks & 1) * 2 + t2) * 4
                            A(f'v_mfma_f32_16x16x32_bf16 {v(aa, 4)}, {v(128 + 4 * (ks ^ t2 if ks > 1 else ks), 4)}, {v(XF + buf * 16 + i * 4, 4)}, {"0" if ks < 2 else v(aa, 4)}')
                    else:
                        A(f'v_mfma_f32_32x32x16_bf16 {v(ACC + i * 16, 16)}, {v(128 + 4 * ks, 4)}, {v(XF + buf * 16 + i * 4, 4)}, {c}')
                if i < 3 and todo:
                    f_ = todo.pop(0)
                    if not (GU_NOW and ks >= 6):
                        f_()
            if idle:
                if ks == 6:
                    stats_load(0)
                    stats_load(1)
                if ks == 8:
                    stats_sum(0)
                    stats_load(2)
                    stats_sum(1)
                    stats_load(3)
                if ks == 12:
                    stats_sum(2)
                    stats_sum(3)
                    A(f's_mul_i32 s30, s22, {7 * 128}')
                    A(f's_add_u32 s30, s30, {CSP}')
                    for kp in range(8):
                        C.vmem(f'buffer_load_dwordx4 {v(ACC + 4 * kp, 4)}, v3, s[8:11], s30 offen', 'cp')
                        if kp < 7:
                            A(f's_add_u32 s30, s30, {3584 * 4}')
                if ks == 16:
                    C.wait('cp')
                    for stp in (16, 8, 4):
                        for e in range(stp):
                            A(f'v_add_f32 {v(ACC + e)}, {v(ACC + e)}, {v(ACC + e + stp)}')
                    A(f'v_add_u32 v10, {132 * KB}, v3')
                    A(f'ds_write_b128 v10, {v(ACC, 4)}')
                    A('s_waitcnt lgkmcnt(0)')
        assert len(wdone) == 28
        C.stamp()
        if idle:
            if after_store:
                after_store()
            return
        P = XF

        def epi(i):
            acc = ACC + i * 16
            for r in range(0, 16, 2):
                A(f'v_pk_fma_f32 {v(acc + r, 2)}, {v(STR[i], 2)}, {v(CS + r, 2)}, {v(acc + r, 2)}')
            for r in range(0, 8, 2):
                A(f'v_pk_mul_f32 {v(acc + r, 2)}, {v(acc + r, 2)}, {v(acc + 8 + r, 2)}')
            for r in range(0, 8, 2):
                A(f'v_pk_mul_f32 {v(acc + r, 2)}, {v(acc + r, 2)}, {v(STR[i] + 2, 2)}')
            pp = acc + 8
            for m in range(4):
                A(f'v_cvt_pk_bf16_f32 {v(pp + m)}, {v(acc + 2 * m)}, {v(acc + 2 * m + 1)}')
            C.vmem(f'buffer_store_dwordx4 {v(pp, 4)}, v3, s[8:11], s30 offen{WT}', 'st')
            if i < 3:
                A(f's_add_u32 s30, s30, {112 * KB}')

        def mm(i, ks):
            A(f'v_mfma_f32_32x32x16_bf16 {v(ACC + i * 16, 16)}, {v(128 + 4 * ks, 4)}, {v(XF + (ks & 1) * 16 + i * 4, 4)}, {v(ACC + i * 16, 16)}')
        A(f's_mul_i32 s30, s21, {4 * 112}')
        A('s_add_u32 s30, s30, s40')
        A('s_lshl_b32 s30, s30, 10')
        A(f's_add_u32 s30, s30, {C.B["HF"]}')
        if GU_TAIL:
            A('s_waitcnt lgkmcnt(0)')
            mm(0, 31)
            mm(2, 30)
            mm(1, 31)
            mm(3, 30)
            A('s_nop 8')
            epi(0)
            mm(2, 31)
            mm(3, 31)
            epi(1)
            epi(2)
            epi(3)
        else:
            A('s_nop 4')
            for i in range(4):
                epi(i)
        if after_store:
            after_store()

    ls, le = C.lab('gs'), C.lab('ge')
    A('s_cmp_eq_u32 s20, 7')
    A(f's_cbranch_scc1 {ls}')
    save, ns = list(C.vm), C.nstamp
    wdone = set()
    loop(False)
    A(f's_branch {le}')
    A.label(ls)
    C.vm, C.nstamp = list(save), ns
    wdone = set()
    loop(True)
    A.label(le)
    C.vm = ['st']


def swap_add(A, ra, rb):
    A(f'v_permlane32_swap_b32 {v(ra)}, {v(rb)}')
    A(f'v_add_f32 {v(ra)}, {v(ra)}, {v(rb)}')


def pre_part(C, end):
    A = C.A
    A('s_cmp_ge_u32 s2, 256')
    A(f's_cbranch_scc1 {end}')
    A('s_load_dwordx2 s[12:13], s[0:1], 0')
    A('s_load_dwordx2 s[16:17], s[0:1], 8')
    A('s_load_dwordx2 s[52:53], s[0:1], 16')
    A('s_load_dwordx2 s[56:57], s[0:1], 24')
    A('s_load_dwordx2 s[4:5], s[0:1], 80')
    for d, sz in ((12, 2048 * 1024), (16, 512 * 1024), (52, 512 * 32), (56, 512 * 32), (4, 256)):
        A(f's_mov_b32 {s(d + 2)}, {sz}')
        A(f's_mov_b32 {s(d + 3)}, 0x20000')
    setup(C, False, end)
    C.stamp()
    if TLBW:
        A('s_lshl_b32 s30, s20, 3')
        A(f's_add_u32 s30, s30, 32')
        A('s_cmp_eq_u32 s20, 1')
        A('s_cselect_b32 s30, 8, s30')
        A('s_load_dwordx2 s[32:33], s[0:1], s30')
        A('s_mov_b32 s31, 8192')
        A('s_cmp_ge_u32 s20, 2')
        A('s_cselect_b32 s31, 28672, s31')
        A('s_cmp_eq_u32 s20, 6')
        A('s_cselect_b32 s31, 4, s31')
        A('s_cmp_eq_u32 s20, 7')
        A(f's_cselect_b32 s31, {TLBW}, s31')
        A('v_mul_lo_u32 v4, v1, s31')
        A('s_waitcnt lgkmcnt(0)')
        A('global_load_dword v127, v4, s[32:33]')
    A('s_add_u32 s30, s21, 1')
    A('s_and_b32 s30, s30, 3')
    A('s_lshl_b32 s30, s30, 2')
    A('s_xor_b32 s30, s30, s22')
    A('s_add_u32 s30, s30, s20')
    A('s_cmp_lg_u32 s30, 0')
    A('s_cbranch_scc1 pr_z0')
    for r in range(4):
        A(f'v_mov_b32 {v(8 + r)}, 0')
    A('v_lshrrev_b32 v4, 4, v1')
    A('v_and_b32 v5, 15, v1')
    A('v_lshlrev_b32 v5, 4, v5')
    A('v_lshl_add_u32 v4, v4, 12, v5')
    A('s_lshl_b32 s30, s21, 8')
    A(f's_add_u32 s30, s30, {FLG}')
    for k in range(3):
        A('buffer_store_dwordx4 v[8:11], v4, s[8:11], s30 offen sc0 sc1')
        A('s_add_u32 s30, s30, 16384')
    A('v_lshlrev_b32 v4, 7, v1')
    A(f's_mul_i32 s30, s21, {64 * 128}')
    A(f's_add_u32 s30, s30, {PFL}')
    A('buffer_store_dwordx4 v[8:11], v4, s[8:11], s30 offen sc0 sc1')
    A('v_mov_b32 v5, 1')
    A('s_mov_b64 exec, 1')
    A('s_waitcnt vmcnt(0)')
    A('buffer_atomic_add v5, v8, s[4:7], 0 offen sc1')
    A('s_mov_b64 exec, -1')
    A('s_nop 1')
    A.label('pr_z0')
    KST, KW, KR, T, EX, XR = 240, 192, 224, 108, 96, 32
    WST, CSQ, CSKV = 96 * KB, ST4 + 9 * KB, ST4 + 10 * KB
    A('s_mov_b64 s[36:37], s[16:17]')
    A(f's_mov_b32 s38, {512 * 1024}')
    A('s_mov_b32 s39, 0x20000')
    g4_ids(C)
    A('s_lshl_b32 s30, s20, 11')
    A('s_cmp_lg_u32 s3, 0')
    A('s_cbranch_scc1 pr_k0')
    for k in range(4):
        A(f'buffer_load_dwordx4 {v(KST + 4 * k, 4)}, v3, {"s[52:55]" if k < 2 else "s[56:59]"}, s30 offen offset:{(k & 1) * 1024}')
    A.label('pr_k0')
    A('v_lshrrev_b32 v4, 3, v1')
    A('v_and_b32 v5, 7, v1')
    A('v_lshrrev_b32 v6, 4, v1')
    A('v_xor_b32 v6, v6, v5')
    A('v_lshlrev_b32 v7, 10, v4')
    A('v_lshl_add_u32 v8, v6, 4, v7')
    A('v_xor_b32 v9, 64, v8')
    A('s_lshl_b32 s30, s18, 15')
    A('s_lshl_b32 s31, s20, 7')
    A('s_add_u32 s30, s30, s31')
    A('s_lshl_b32 s32, s20, 12')
    for i in range(4):
        A(f's_add_u32 m0, s32, {KVR4 + i * 1024}')
        A('s_nop 0')
        C.vmem(f'buffer_load_dwordx4 {v(8 + (i & 1))}, s[12:15], s30 offen lds', 'x')
        A('s_add_u32 s30, s30, 8192')
    A('v_lshrrev_b32 v4, 2, v1')
    A('v_and_b32 v5, 3, v1')
    A('v_lshlrev_b32 v10, 10, v4')
    A('v_lshl_add_u32 v10, v5, 4, v10')
    A('s_lshl_b32 s31, s26, 18')
    A('s_bfe_u32 s30, s19, 0x4000b')
    A('s_lshl_b32 s30, s30, 6')
    A('s_add_u32 s31, s31, s30')
    A('s_lshl_b32 s51, s20, 13')
    A(f's_add_u32 s51, s51, {WST}')
    A('s_mov_b32 s50, s31')
    A('v_mov_b32 v88, v10')
    A('s_and_b32 s33, s22, 3')
    A(f's_lshl_b32 s33, s33, 16' if WROT else 's_mov_b32 s33, 0')

    def wloads():
        for i in range(16):
            A(f's_xor_b32 s30, s33, {G4_ORD[i] * 16384}')
            A('s_add_u32 s30, s30, s50')
            if i < 8:
                A(f's_add_u32 m0, s51, {i * 1024}')
                A('s_nop 0')
                A('buffer_load_dwordx4 v88, s[36:39], s30 offen lds')
            else:
                A(f'buffer_load_dwordx4 {v(128 + 4 * i, 4)}, v88, s[36:39], s30 offen')
    A('s_cmp_eq_u32 s3, 0')
    A('s_cbranch_scc1 pr_w1')
    A('s_barrier')
    wloads()
    A('s_waitcnt vmcnt(16)')
    A.label('pr_w1')
    C.stamp()
    A('v_and_b32 v64, 31, v1')
    A('v_lshrrev_b32 v65, 5, v1')
    A('v_lshlrev_b32 v66, 7, v64')
    A('v_lshl_add_u32 v66, v65, 3, v66')
    A('v_bfe_u32 v67, v1, 1, 3')
    A('v_lshl_add_u32 v66, v67, 4, v66')
    A(f's_add_u32 s30, s32, {KVR4}')
    A('v_add_u32 v66, s30, v66')
    A('v_bfe_u32 v67, v1, 2, 2')
    A('v_lshl_add_u32 v67, v65, 2, v67')
    A('v_lshlrev_b32 v68, 3, v5')
    A('v_bfe_u32 v69, v1, 4, 1')
    A('v_lshl_add_u32 v70, v67, 5, v68')
    A('v_lshl_add_u32 v70, v69, 11, v70')
    A('v_add_u32 v70, s30, v70')
    A('v_lshl_add_u32 v71, v67, 6, v68')
    A('v_lshl_add_u32 v71, v69, 5, v71')
    A('s_lshl_b32 s30, s26, 5')
    A('v_xor_b32 v71, s30, v71')
    A('v_add_u32 v71, s51, v71')
    A('v_add_u32 v72, s51, v3')
    A('v_mov_b32 v73, 0x3f803f80')
    A('v_lshlrev_b32 v74, 2, v64')
    A('s_lshl_b32 s30, s20, 7')
    A(f's_add_u32 s31, s30, {CSKV}')
    A('v_add_u32 v75, s31, v74')
    A('s_lshl_b32 s31, s26, 6')
    A('v_xor_b32 v74, s31, v74')
    A(f's_add_u32 s30, s30, {CSQ}')
    A('v_add_u32 v74, s30, v74')
    A('v_lshlrev_b32 v76, 4, v65')
    A('s_add_u32 s30, s30, s31')
    A('v_add_u32 v77, s30, v76')
    A('v_xor_b32 v78, 512, v77')
    A('s_lshl_b32 s30, s25, 5')
    A(f's_add_u32 s30, s30, {CSKV}')
    A('v_add_u32 v79, s30, v76')
    g4_pre(C, 'qkv', XA, resbase=0, raw=True)
    A('s_lshr_b32 s30, s33, 4')
    A('s_lshl_b32 s31, s20, 12')
    A('s_xor_b32 s30, s30, s31')
    A(f's_add_u32 s30, s30, {XF0}')
    A('v_add_u32 v12, s30, v3')
    A('v_mov_b32 v0, 0')
    A('v_mov_b32 v4, 1')
    for ch in range(8):
        A(f'v_xor_b32 {v(80 + ch)}, {ch << 4}, v66')

    def front():
        A('s_cmp_lg_u32 s3, 0')
        A('s_cbranch_scc1 pr_w2')
        A('s_waitcnt vmcnt(0)')
        A.label('pr_w2')
        C.vm = []
        C.stamp()
        for ch in range(8):
            A(f'ds_read_b64 {v(KR + 2 * ch, 2)}, {v(80 + ch)}')
        A('s_waitcnt lgkmcnt(0)')
        for k in range(4):
            A(f'ds_write_b128 v12, {v(KR + 4 * k, 4)} offset:{k * 1024}')
        for r in range(8):
            for e in range(2):
                x = v(KR + 2 * r + e)
                A(f'v_dot2_f32_bf16 {v(T + 2 * e)}, {x}, v73, {"0" if r == 0 else v(T + 2 * e)}')
                A(f'v_dot2_f32_bf16 {v(T + 2 * e + 1)}, {x}, {x}, {"0" if r == 0 else v(T + 2 * e + 1)}')
        A('s_nop 0')

    def kvw():
        for k in range(4):
            A(f'ds_write_b128 v14, {v(KST + 4 * k, 4)} offset:{k * 1024}')
        A('s_waitcnt lgkmcnt(4)')
        for st in range(4):
            for h2 in range(2):
                A(f'ds_read_b64_tr_b16 {v(KW + 4 * st + 2 * h2, 2)}, v70 offset:{st * 512 + h2 * 256}')
        A('s_waitcnt lgkmcnt(0)')
        for r in range(8):
            for e in range(2):
                A(f'v_dot2_f32_bf16 {v(80 + e)}, {v(KW + 2 * r + e)}, v73, {"0" if r == 0 else v(80 + e)}')
        A('s_nop 2')
        A('v_add_f32 v80, v80, v81')
        A('v_mov_b32 v81, v80')
        A('s_nop 1')
        swap_add(A, 80, 81)
        A('ds_write_b32 v75, v80')

    def kvcs0():
        for ww in range(8):
            A(f'ds_read_b128 {v(XR + 4 * ww, 4)}, v79 offset:{ww * 128}')

    def kvcs1():
        A('s_waitcnt lgkmcnt(0)')
        for stp in (16, 8):
            for r in range(stp):
                A(f'v_add_f32 {v(XR + r)}, {v(XR + r)}, {v(XR + stp + r)}')
        for r in range(4):
            A(f'v_add_f32 {v(EX + 8 + r)}, {v(XR + r)}, {v(XR + 4 + r)}')

    def zchk():
        lz, lzd = C.lab('z'), C.lab('zd')
        A('s_mov_b32 s31, 0')
        A('s_mov_b64 exec, 1')
        A.label(lz)
        A('buffer_load_dword v2, v0, s[4:7], 0 offen sc1')
        A('s_waitcnt vmcnt(0)')
        A('v_cmp_le_u32 vcc, 16, v2')
        A('s_add_u32 s31, s31, 1')
        A('s_cmp_eq_u64 vcc, 1')
        A(f's_cbranch_scc1 {lzd}')
        A('s_sleep 8')
        A(f's_cmp_lt_u32 s31, {1 << 20}')
        A(f's_cbranch_scc1 {lz}')
        A(f's_branch {end}')
        A.label(lzd)
        A('s_mov_b64 exec, -1')

    def wprep():
        A('s_cmp_lg_u32 s3, 0')
        A('s_cbranch_scc1 pr_w3')
        wloads()
        A.label('pr_w3')
        zchk()
        C.vm = []
        C.stamp()


    def tr(i):
        for h2 in range(2):
            A(f'ds_read_b64_tr_b16 {v(128 + 4 * i + 2 * h2, 2)}, v71 offset:{(i % 8) * 1024 + h2 * 512}')

    def csdot(r0, r1):
        for r in range(r0, r1):
            for e in range(4):
                A(f'v_dot2_f32_bf16 {v(80 + e)}, {v(128 + 4 * r + e)}, v73, {"0" if r == 0 else v(80 + e)}')

    def loop(rd, mf):
        for i in range(8):
            tr(i)
            if i == 5:
                A('s_waitcnt lgkmcnt(6)')
        ln_stats(A, T)
        A('s_waitcnt lgkmcnt(0)')
        for i in range(4):
            rd(i)
        for i in range(8):
            A(f'ds_write_b128 v72, {v(160 + 4 * i, 4)} offset:{i * 1024}')
        csdot(0, 8)
        A('s_waitcnt lgkmcnt(0)')
        for i in range(4, 8):
            rd(i)
        for i in range(8):
            if i == 4:
                A('s_waitcnt lgkmcnt(8)')
            mf(i)
            if i < 4:
                tr(8 + i)
            else:
                A('s_waitcnt lgkmcnt(9)')
                tr(8 + i)
                rd(4 + i)
        for i in range(8, 16):
            if i == 8:
                A('s_waitcnt lgkmcnt(9)')
            elif i < 12:
                A(f's_waitcnt lgkmcnt({9 - 2 * (i - 8)})')
            else:
                A(f's_waitcnt lgkmcnt({15 - i})')
            mf(i)
            if i < 12:
                rd(4 + i)

    def cs0():
        csdot(8, 16)
        A('s_nop 2')
        A('v_add_f32 v80, v80, v81')
        A('v_add_f32 v82, v82, v83')
        A('v_add_f32 v80, v80, v82')
        A('v_mov_b32 v81, v80')
        A('s_nop 1')
        swap_add(A, 80, 81)
        A('ds_write_b32 v74, v80')

    def cs():
        for h2 in range(2):
            A(f'ds_read_b128 {v(EX + 4 * h2, 4)}, v77 offset:{h2 * 32}')
            A(f'ds_read_b128 {v(XR + 4 * h2, 4)}, v78 offset:{h2 * 32}')
        A('s_waitcnt lgkmcnt(0)')
        for r in range(8):
            A(f'v_add_f32 {v(EX + r)}, {v(EX + r)}, {v(XR + r)}')
        for r in range(12):
            A(f'v_mov_b32 {v(208 + r)}, {v(EX + r)}')

    g4_main(C, 'qkv', kvf=KVF, kfl=KFL, raw=dict(front=front, kvw=kvw, kvcs0=kvcs0, kvcs1=kvcs1, zchk=zchk, wprep=wprep, cs=cs, cs0=cs0, loop=loop), endlab=end)
    C.stamp()


def wq_store(C):
    A = C.A
    A('s_and_b32 s30, s18, 0x33')
    A('s_cmp_lg_u32 s30, 0')
    A('s_cbranch_scc1 pr_w0')
    g4_waddr(C, 112, WQKVP)
    for q4 in (3, 2, 1, 0):
        if q4:
            A(f's_cmp_lg_u32 s21, {q4}')
            A(f's_cbranch_scc1 pr_ws{q4}')
        for i in range(4 * q4, 4 * q4 + 4):
            so, im = soff(G4_ORD[i])
            A(f'buffer_store_dwordx4 {v(128 + 4 * i, 4)}, v112, s[8:11], {so} offen offset:{im} sc0 sc1')
        if q4:
            A('s_branch pr_w0')
            A.label(f'pr_ws{q4}')
    A('v_lshrrev_b32 v113, 5, v1')
    A('v_lshlrev_b32 v113, 4, v113')
    A('s_lshr_b32 s31, s19, 4')
    A(f's_add_u32 s31, s31, {CSQKV}')
    A('s_mov_b32 exec_lo, 1')
    A('s_mov_b32 exec_hi, 1')
    A('buffer_store_dwordx4 v[208:211], v113, s[8:11], s31 offen sc0 sc1')
    A('buffer_store_dwordx4 v[212:215], v113, s[8:11], s31 offen offset:32 sc0 sc1')
    A('s_mov_b64 exec, -1')
    A('s_cmp_lg_u32 s22, 0')
    A('s_cbranch_scc1 pr_w0')
    A('s_lshl_b32 s30, s20, 12')
    A(f's_add_u32 s30, s30, {WQKVP + 16 * 32 * KB}')
    for k in range(4):
        A(f'buffer_store_dwordx4 {v(192 + 4 * k, 4)}, v3, s[8:11], s30 offen offset:{k * 1024} sc0 sc1')
    A('s_cmp_ge_u32 s20, 4')
    A('s_cbranch_scc1 pr_w0')
    A('s_lshl_b32 s31, s20, 5')
    A(f's_add_u32 s31, s31, {CSQKV + 2048}')
    A('s_mov_b32 exec_lo, 1')
    A('s_mov_b32 exec_hi, 1')
    A('buffer_store_dwordx4 v[216:219], v113, s[8:11], s31 offen sc0 sc1')
    A('s_mov_b64 exec, -1')
    A.label('pr_w0')


def pack_ptrs(A):
    A('s_load_dwordx2 s[4:5], s[0:1], 32')
    A('s_load_dwordx4 s[52:55], s[0:1], 48')
    A('s_load_dwordx2 s[16:17], s[0:1], 64')


def pack_issue(C):
    A = C.A
    A('s_mul_i32 s30, s2, 3')
    A('s_add_u32 s30, s30, s20')
    A('s_mov_b32 s58, s30')
    A('s_cmp_lt_u32 s20, 3')
    A('s_cselect_b32 s57, 1, 0')
    A('s_cmp_lt_u32 s30, 736')
    A('s_cselect_b32 s57, s57, 0')
    A('s_cmp_eq_u32 s57, 0')
    A('s_cselect_b32 s30, 0, s30')
    A('s_cmp_lt_u32 s30, 64')
    A('s_cbranch_scc1 pk_jwo')
    A('s_cmp_lt_u32 s30, 512')
    A('s_cbranch_scc1 pk_jgu')
    A('s_sub_u32 s30, s30, 512')
    A('s_mov_b64 s[4:5], s[16:17]')
    A(f's_mov_b32 s6, {1792 * 1024}')
    A('s_mov_b32 s50, 1024')
    A('s_and_b32 s31, s30, 7')
    A('s_lshr_b32 s30, s30, 3')
    A('s_lshl_b32 s51, s30, 16')
    A('s_lshl_b32 s56, s31, 7')
    A('s_add_u32 s51, s51, s56')
    A(f's_mul_i32 s56, s31, {2 * 112 * KB}')
    A('s_lshl_b32 s30, s30, 12')
    A('s_add_u32 s56, s56, s30')
    A(f's_add_u32 s56, s56, {WDP}')
    A(f's_mov_b32 s52, {112 * KB}')
    A('s_mov_b32 s53, 256')
    A(f's_mov_b32 s54, {G1.CSDUMMY}')
    A('s_branch pk_jgo')
    A.label('pk_jwo')
    A(f's_mov_b32 s6, {512 * 1024}')
    A('s_mov_b32 s50, 1024')
    A('s_lshr_b32 s31, s30, 3')
    A('s_and_b32 s30, s30, 7')
    A('s_lshl_b32 s51, s30, 16')
    A('s_lshl_b32 s56, s31, 7')
    A('s_add_u32 s51, s51, s56')
    A('s_lshl_b32 s56, s31, 16')
    A('s_lshl_b32 s30, s30, 12')
    A('s_add_u32 s56, s56, s30')
    A(f's_add_u32 s56, s56, {WOP}')
    A(f's_mov_b32 s52, {32 * KB}')
    A('s_mov_b32 s53, 256')
    A(f's_mov_b32 s54, {G1.CSDUMMY}')
    A('s_branch pk_jgo')
    A.label('pk_jgu')
    A('s_sub_u32 s30, s30, 64')
    A('s_cmp_ge_u32 s30, 224')
    A('s_cselect_b32 s4, s54, s52')
    A('s_cselect_b32 s5, s55, s53')
    A('s_cselect_b32 s16, 1, 0')
    A('s_cselect_b32 s31, 224, 0')
    A('s_sub_u32 s30, s30, s31')
    A(f's_mov_b32 s6, {512 * 3584}')
    A('s_mov_b32 s50, 3584')
    A('s_lshr_b32 s31, s30, 3')
    A('s_and_b32 s30, s30, 7')
    A(f's_mul_i32 s51, s30, {64 * 3584}')
    A('s_lshl_b32 s56, s31, 7')
    A('s_add_u32 s51, s51, s56')
    A('s_lshl_b32 s56, s31, 17')
    A('s_lshl_b32 s17, s30, 12')
    A('s_add_u32 s56, s56, s17')
    A('s_lshl_b32 s17, s16, 8')
    A('s_add_u32 s56, s56, s17')
    A(f's_add_u32 s56, s56, {WGUP}')
    A(f's_mov_b32 s52, {64 * KB}')
    A(f's_mov_b32 s53, {32 * KB}')
    A(f's_mul_i32 s54, s30, {3584 * 4}')
    A('s_lshl_b32 s17, s31, 9')
    A('s_add_u32 s54, s54, s17')
    A('s_lshl_b32 s17, s16, 6')
    A('s_add_u32 s54, s54, s17')
    A(f's_add_u32 s54, s54, {CSP}')
    A.label('pk_jgo')
    A('v_lshrrev_b32 v112, 3, v1')
    A('v_and_b32 v113, 7, v1')
    A('v_mul_lo_u32 v112, v112, s50')
    A('v_lshl_add_u32 v112, v113, 4, v112')
    A('s_lshl_b32 s50, s50, 3')
    A('s_min_u32 s59, s20, 2')
    A('s_lshl_b32 s59, s59, 13')
    A(f's_add_u32 s59, s59, {136 * KB}')
    A('s_cmp_eq_u32 s57, 0')
    A('s_cbranch_scc1 pk_i_end')
    for i in range(8):
        A(f's_add_u32 m0, s59, {i * 1024}')
        A('s_nop 0')
        A('buffer_load_dwordx4 v112, s[4:7], s51 offen lds')
        A('s_add_u32 s51, s51, s50')
    A.label('pk_i_end')


def pack_convert(C):
    A = C.A
    A('s_cmp_eq_u32 s57, 0')
    A('s_cbranch_scc1 pk_c_end')
    A('v_lshrrev_b32 v112, 5, v1')
    A('v_bfe_u32 v113, v1, 2, 2')
    A('v_lshl_add_u32 v113, v112, 2, v113')
    A('v_and_b32 v114, 3, v1')
    A('v_lshlrev_b32 v114, 3, v114')
    A('v_lshl_add_u32 v113, v113, 7, v114')
    A('v_bfe_u32 v114, v1, 4, 1')
    A('v_lshl_add_u32 v113, v114, 5, v113')
    A('v_add_u32 v113, s59, v113')
    A('v_mul_lo_u32 v114, v114, s53')
    A('v_and_b32 v115, 15, v1')
    A('v_lshl_add_u32 v114, v115, 4, v114')
    A('v_lshl_add_u32 v114, v112, 9, v114')
    A('v_lshrrev_b32 v112, 4, v1')
    A('v_lshlrev_b32 v112, 7, v112')
    A('v_lshl_add_u32 v112, v115, 2, v112')
    A('v_mov_b32 v115, 0x3f803f80')
    A('s_add_u32 s52, s52, s56')
    A('s_waitcnt vmcnt(0)')
    for jj in range(2):
        for st in range(4):
            for h2 in range(2):
                A(f'ds_read_b64_tr_b16 {v(128 + 4 * (4 * jj + st) + 2 * h2, 2)}, v113 offset:{st * 2048 + h2 * 1024 + jj * 64}')
        A('s_waitcnt lgkmcnt(0)')
        for st in range(4):
            A(f'buffer_store_dwordx4 {v(128 + 4 * (4 * jj + st), 4)}, v114, s[8:11], {"s56" if jj == 0 else "s52"} offen offset:{st * 1024} sc0 sc1')
    A('s_cmp_eq_u32 s53, 256')
    A('s_cbranch_scc1 pk_c_end')
    for r in range(16):
        for jj in range(2):
            A(f'v_dot2_f32_bf16 {v(116 + jj)}, {v(128 + 16 * jj + r)}, v115, {"0" if r == 0 else v(116 + jj)}')
    A('s_nop 2')
    swap_add(A, 116, 117)
    A('buffer_store_dword v116, v112, s[8:11], s54 offen sc0 sc1')
    A.label('pk_c_end')


def pack_flag(C):
    A = C.A
    A('v_mov_b32 v112, 0')
    A('v_mov_b32 v113, 1')
    A('s_cmp_eq_u32 s57, 0')
    A('s_cbranch_scc1 pk_f_1')
    A('s_lshl_b32 s30, s58, 7')
    A(f's_add_u32 s30, s30, {PFL}')
    A('s_waitcnt vmcnt(0)')
    A('s_mov_b64 exec, 1')
    A('buffer_store_dword v113, v112, s[8:11], s30 offen sc0 sc1')
    A('s_mov_b64 exec, -1')
    A.label('pk_f_1')
    A('s_and_b32 s30, s18, 0x33')
    A('s_cmp_lg_u32 s30, 0')
    A('s_cbranch_scc1 pk_f_end')
    A('s_lshl_b32 s30, s22, 1')
    A('s_add_u32 s30, s30, s20')
    A('s_lshl_b32 s31, s21, 5')
    A('s_add_u32 s30, s30, s31')
    A('s_lshl_b32 s30, s30, 7')
    A(f's_add_u32 s30, s30, {PFL + 768 * 128}')
    A('s_waitcnt vmcnt(0)')
    A('s_mov_b64 exec, 1')
    A('buffer_store_dword v113, v112, s[8:11], s30 offen sc0 sc1')
    A('s_mov_b64 exec, -1')
    A.label('pk_f_end')


def pack_poll(C, endlab):
    A = C.A
    A('s_mul_i32 s30, s22, 7')
    A('s_lshr_b32 s30, s30, 2')
    A('v_lshrrev_b32 v112, 4, v1')
    A('v_add_u32 v112, s30, v112')
    A('v_min_u32 v112, 27, v112')
    A('v_and_b32 v113, 7, v1')
    A('v_lshl_add_u32 v112, v112, 3, v113')
    A('v_bfe_u32 v114, v1, 3, 1')
    A('v_mul_u32_u24 v114, 224, v114')
    A('v_add3_u32 v112, v112, v114, 64')
    A('s_mul_i32 s30, s20, 7')
    A('s_lshr_b32 s30, s30, 1')
    A('v_min_u32 v114, 4, v113')
    A('v_add_u32 v114, s30, v114')
    A('v_min_u32 v114, 27, v114')
    A('s_add_u32 s30, s24, 512')
    A('v_lshl_add_u32 v114, v114, 3, s30')
    A('v_cmp_le_u32 vcc, 48, v1')
    A('s_lshl_b32 s30, s24, 3')
    A('s_add_u32 s30, s30, s20')
    A('v_cndmask_b32 v112, v112, v114, vcc')
    A('v_mov_b32 v114, s30')
    A('v_cmp_le_u32 vcc, 56, v1')
    A('s_add_u32 s31, s20, 768')
    A('s_and_b32 s30, s22, 12')
    A('s_lshl_b32 s30, s30, 1')
    A('s_add_u32 s30, s30, s31')
    A('v_cndmask_b32 v112, v112, v114, vcc')
    for q4 in range(4):
        A(f'v_writelane_b32 v112, s30, {59 + q4}')
        A('s_add_u32 s30, s30, 32')
    A('v_writelane_b32 v112, s31, 63')
    A(f's_mov_b32 s30, {PFL}')
    A('s_mov_b32 s31, 0')
    A('v_lshlrev_b32 v112, 7, v112')
    A('s_bfe_u32 s32, s19, 0x3000c')
    A('s_lshl_b32 s32, s32, 3')
    A('s_lshl_b32 s33, s26, 2')
    A('s_add_u32 s32, s32, s33')
    A('v_and_b32 v114, 3, v1')
    A('v_add_u32 v114, s32, v114')
    A('v_lshlrev_b32 v114, 7, v114')
    A('buffer_load_dword v113, v112, s[8:11], s30 offen sc1')
    A('buffer_load_dword v115, v114, s[8:11], s30 offen sc1')


def pack_poll2(C, endlab):
    A = C.A
    A(f's_mov_b32 s30, {PFL}')
    A('s_mov_b32 s31, 0')
    A.label('pk_p')
    A('s_waitcnt vmcnt(0)')
    A('v_and_b32 v113, v113, v115')
    A('v_cmp_eq_u32 vcc, 1, v113')
    A('s_add_u32 s31, s31, 1')
    A('s_cmp_eq_u64 vcc, -1')
    A('s_cbranch_scc1 pk_pd')
    A('s_sleep 16')
    A('buffer_load_dword v113, v112, s[8:11], s30 offen sc1')
    A('buffer_load_dword v115, v114, s[8:11], s30 offen sc1')
    A(f's_cmp_lt_u32 s31, {1 << 19}')
    A('s_cbranch_scc1 pk_p')
    A(f's_branch {endlab}')
    A.label('pk_pd')
    C.vm = []


def layer_part(C, layer, end):
    A = C.A
    C.tag = f'l{layer}'
    last = layer == 1
    xin = None if layer == 0 else XC
    kvf = KVF if layer == 0 else KVF2
    kfl = KFL + layer * 64 * 128
    sy = 5 * layer + 1
    C.B = dict(QF=QF, OF=OF, XB=XB, SXB=SXB, HF=HF) if layer == 0 else dict(QF=QF2, OF=OF2, XB=XB2, SXB=SXB2, HF=HF2)
    B = C.B

    def pre_addr():
        gu_waddr(C)
        g3_waddr(C, (113, 114), 112, WDP)
        g4_waddr(C, 116, WOP)

    stubs = [lambda: (pre_addr(), gu_wload(C, 0))]
    stubs += [lambda ks=ks: gu_wload(C, ks) for ks in range(1, 24)]
    stubs += [lambda i=i: g4_wload(C, 116, i, 'res') for i in range(8)]
    if TOUCH2:
        def touch2():
            A('s_and_b32 s30, s18, 7')
            A('s_lshr_b32 s31, s30, 1')
            A('s_lshl_b32 s31, s31, 2')
            A('s_and_b32 s30, s30, 1')
            A('s_add_u32 s30, s30, s31')
            A('s_lshl_b32 s30, s30, 10')
            C.vmem('buffer_load_dwordx4 v[120:123], v116, s[8:11], s30 offen offset:2048', 'tc')
            if layer == 0:
                A(f's_add_u32 s30, s30, {WQKVP - WOP + (1 << 32) if WQKVP < WOP else WQKVP - WOP}')
                A('v_add_u32 v117, s30, v116')
                C.vmem('buffer_load_dwordx4 v[120:123], v117, s[8:11], 0 offen', 'tc')
                C.vmem('buffer_load_dwordx4 v[120:123], v117, s[8:11], 0 offen offset:2048', 'tc')
        stubs += [touch2]
    if TOUCH3 & 1:
        def t3a(k):
            if k == 0:
                A('s_and_b32 s30, s21, 1')
                A('s_lshl_b32 s30, s30, 12')
                A(f's_add_u32 s30, s30, {24 * KB}')
                A(f'v_add_u32 v118, s30, {v(V_WGU)}')
            C.vmem(f'buffer_load_dwordx4 v[120:123], v118, s[8:11], 0 offen offset:{k * 1024}', 'tc')
        stubs += [lambda k=k: t3a(k) for k in range(4)]
    if TOUCH3 & 2:
        def t3b(k):
            if k == 0:
                A('s_and_b32 s30, s21, 1')
                A(f's_mul_i32 s30, s30, {7 * KB}')
                A('s_cmp_eq_u32 s23, 0')
                A('s_cselect_b64 vcc, -1, 0')
                A('v_cndmask_b32 v119, v114, v113, vcc')
                A('v_add_u32 v119, s30, v119')
            so, im = soff(k)
            C.vmem(f'buffer_load_dwordx4 v[120:123], v119, s[8:11], {so} offen offset:{im}', 'tc')
        stubs += [lambda k=k: t3b(k) for k in range(7)]
    if TOUCH and layer == 1:
        def t_addr():
            A('s_lshr_b32 s30, s2, 3')
            A('s_lshl_b32 s30, s30, 3')
            A('s_add_u32 s30, s30, s20')
            A(f's_mul_i32 s31, s30, {7 * KB}')
            A(f's_add_u32 s31, s31, {WDP}')
            A('v_add_u32 v118, s31, v3')
            A('s_lshl_b32 s31, s30, 11')
            A(f's_add_u32 s31, s31, {WQKVP}')
            A('v_add_u32 v119, s31, v3')

        def tch(vr, k):
            so, im = soff(k)
            C.vmem(f'buffer_load_dwordx4 v[120:123], {v(vr)}, s[8:11], {so} offen offset:{im}', 'tc')
        stubs += [lambda: (t_addr(), tch(V_WGU, 24))]
        stubs += [lambda ks=ks: tch(V_WGU, ks) for ks in range(25, 32)]
        stubs += [lambda k=k: tch(118, k) for k in range(7)]
        if not last:
            stubs += [lambda k=k: tch(119, k) for k in range(2)]

    def need_wo():
        A('s_lshr_b32 s30, s20, 1')
        A('s_lshl_b32 s30, s30, 2')
        A('s_and_b32 s31, s22, 3')
        A('s_add_u32 s30, s30, s31')
        A('s_lshl_b32 s32, 1, s30')

    def need_gu():
        A('s_lshl_b32 s32, 0x1111, s25')
        A('s_cmp_eq_u32 s20, 7')
        A('s_cselect_b32 s32, 0xffff, s32')

    def need_dn():
        A('s_lshl_b32 s30, s20, 1')
        A('s_lshl_b32 s32, 3, s30')

    def need_qkv():
        A('s_lshl_b32 s30, s20, 1')
        A('s_and_b32 s31, s24, 1')
        A('s_add_u32 s30, s30, s31')
        A('s_lshl_b32 s32, 1, s30')

    if layer == 0:
        fixed = {PK_I: lambda: (wq_store(C), pack_issue(C)), PK_C: lambda: pack_convert(C), PK_F: lambda: pack_flag(C), PK_P - 3: lambda: pack_poll(C, end), PK_P: lambda: pack_poll2(C, end)}
        tail = att_phase(C, kvf, kfl, end, stubs, fixed, PK_P, pre_hook=lambda: pack_ptrs(A), loadq=False, early=True)
    else:
        tail = att_phase(C, kvf, kfl, end, stubs, pre_hook=lambda: A('s_load_dwordx2 s[12:13], s[0:1], 72'), loadq=False)
    C.stamp()
    if not WO_LATE:
        A('s_nop 1')
        for i in range(8, 16):
            g4_wload(C, 116, i, 'res')
    g4_pre(C, 'res', B['OF'], resbase=xin)
    handoff(C, sy + 0, end, need_wo)
    C.stamp()
    g4_main(C, 'res', outbase=B['XB'], sxout=B['SXB'], hook_red=lambda k: gu_wload(C, 24 + k))
    C.stamp()
    gu_pre(C)
    handoff(C, sy + 1, end, need_gu)
    C.stamp()
    gu_main(C)
    C.stamp()
    g3_pre(C, 'res', 112, B['HF'], resbase=B['XB'])
    handoff(C, sy + 2, end, need_dn)
    C.stamp()
    if last:
        g3_main(C, 'out', 112, 128)
        C.stamp()
    else:
        g3_main(C, 'res', 112, 128, outbase=XC, sxout=SXC, hook_b=lambda st, n: qkv4_wstep(C, st, n), hook_red=lambda: qkv4_wrest(C))
        C.stamp()
        g4_pre(C, 'qkv', XC, resbase=SXC)
        g4_waddr(C, 64, WQKVP)
        handoff(C, sy + 3, end, need_qkv)
        C.stamp()
        g4_main(C, 'qkv', kvf=KVF2, kfl=KFL + 64 * 128, endlab=end)
        C.stamp()
    return tail


def build():
    A = Asm()
    name = NAME + '_kernel'
    C = Ctx(A, 'pr')
    C.qf = QF
    end = 'k_end'
    kernel_begin(A, name)
    pre_part(C, end)
    t0 = layer_part(C, 0, end)
    t1 = layer_part(C, 1, end)
    A('s_add_u32 s30, s2, s20')
    A('s_cmp_lg_u32 s30, 0')
    A('s_cbranch_scc1 k_fin')
    A('s_load_dwordx2 s[4:5], s[0:1], 80')
    A('s_mov_b32 s6, 256')
    A('v_mov_b32 v2, 0')
    A('s_mov_b64 exec, 1')
    A('s_waitcnt lgkmcnt(0)')
    A('buffer_store_dword v2, v2, s[4:7], 0 offen sc0 sc1')
    A('s_mov_b64 exec, -1')
    A.label('k_fin')
    if DBGD:
        A('s_cmp_lg_u32 s2, 77')
        A('s_cbranch_scc1 k_fin2')
        A('s_cmp_lg_u32 s20, 1')
        A('s_cbranch_scc1 k_fin2')
        A('s_load_dwordx2 s[4:5], s[0:1], 80')
        A('s_memrealtime s[60:61]')
        A('s_mov_b32 s6, 256')
        A('v_mov_b32 v2, 0')
        A('s_mov_b64 exec, 1')
        A('s_waitcnt lgkmcnt(0)')
        sel = [int(x) for x in DBGD.split()]
        for k, i in enumerate(sel + [-1]):
            A(f's_sub_u32 s30, {s(64 + i) if i >= 0 else "s60"}, s64')
            A('v_mov_b32 v4, s30')
            A(f'buffer_store_dword v4, v2, s[4:7], 0 offen offset:{4 + 4 * k}')
        A('s_mov_b64 exec, -1')
        A.label('k_fin2')
    stamp_end(C, 1)
    A.label(end)
    A('s_endpgm')
    t0(True)
    t1(False)
    body = A.text()
    probs = lint(body)
    for p in probs:
        print('LINT:', p, file=sys.stderr)
    head = '; generated by gen/gen3.py\n'
    head += f"; @launch grid=(256,1,1) block=(512,1,1) lds={LDS_BYTES}\n"
    head += '.amdgcn_target "amdgcn-amd-amdhsa--gfx950"\n.text\n'
    tail = '.section .rodata,"a"\n.p2align 6\n' + descriptor(name, 256, 0, nsgpr=100)
    print('stamps:', C.nstamp, file=sys.stderr)
    return head + body + tail


if __name__ == '__main__':
    if 'stamp' in sys.argv:
        STAMP = True
    for arg in sys.argv[2:]:
        if '=' in arg:
            k, val = arg.split('=')
            globals()[k] = int(val) if val.lstrip('-').isdigit() else val.replace('_', ' ')
    out = sys.argv[1] if len(sys.argv) > 1 else f'cdna_kernels/{NAME}.s'
    open(out, 'w').write(build())
    print('wrote', out)
```

```python
import sys
import math
import struct
from asmlib import Asm, v, a, s, lint
import gen as G1
from gen import f32, kernel_begin, descriptor, ws_srd, KB

NAME = G1.NAME
WQKVP, WOP, WGUP, WDP, CSQKV, CSGU = G1.WQKVP, G1.WOP, G1.WGUP, G1.WDP, G1.CSQKV, G1.CSGU
KVF, XA, XB, QF, OF, HF = G1.KVF, G1.XA, G1.XB, G1.QF, G1.OF, G1.HF
WS_SIZE, QSCALE = G1.WS_SIZE, G1.QSCALE
KVG = 2048
KVT = 2080
VBS = 512
XC = G1.WS_END
KVF2 = XC + 2048 * KB
FLG = KVF2 + 144 * KB
SXA = FLG + 64 * KB
SXB = SXA + 512 * KB
SXC = SXB + 512 * KB
CSP = SXC + 512 * KB
PFL = CSP + 128 * KB
KFL = PFL + 112 * KB
QF2 = KFL + 16 * KB
OF2 = QF2 + 2048 * KB
XB2 = OF2 + 2048 * KB
SXB2 = XB2 + 2048 * KB
HF2 = SXB2 + 512 * KB
WS_END = HF2 + 64 * 112 * KB
STAMPS = G1.STAMPS

STAMP = False
WT = ' sc0 sc1'
LDS_BYTES = 160 * KB
FINE = 0
TCHK = 2
TB2 = 6
DPT = 4
TPFEND = 8
TP2 = 28
TP1 = 46
TP0 = 58
ONEWAIT = 1
INLINE = 0
ATT_NB = 4
TOUCH3 = 0
PRIOV = 0
DBGD = ''
ATT_B2 = 2
WO_L0 = 3
WROT = 1
GU_TAIL = 1
ATT_R0 = 4
EXPT = 0
TLBW = 0
KV_SLEEP = 2
QKV_PER = 1
WO_TAIL = 16
SLO = 0
QWT = ' sc0 sc1'
GU16 = 0
GU_NOW = 0
GU_WD0 = 3
GU_BARS = {4: 1, 8: 2, 12: 7, 24: 7}
PK_I = 6
PK_C = 18
PK_F = 22
PK_P = 36
RT = 0
TOUCH = 0
TOUCH2 = 1
WO_LATE = 0
ATT_UN = 4
ATT_PFEND = 1
G3_PR4 = 7
G3_PR14 = 6
G2_ST8 = [2, 2, 2, 2]
G2_ST28 = [2, 2, 4, 4, 4, 4, 4, 4]
G2_PRE8 = 4
G2_PRE28 = 6


class Ctx:
    def __init__(self, A, tag):
        self.A = A
        self.tag = tag
        self.vm = []
        self.nlab = 0
        self.nstamp = 1

    def lab(self, base):
        self.nlab += 1
        return f'{self.tag}_{base}{self.nlab}'

    def vmem(self, text, tag):
        self.A(text)
        self.vm.append(tag)
        assert len(self.vm) <= 63, 'vmcnt overflow'

    def wait(self, tag, extra=''):
        idx = [i for i, t in enumerate(self.vm) if t == tag]
        if not idx:
            if extra:
                self.A(f's_waitcnt {extra}')
            return
        n = len(self.vm) - 1 - idx[-1]
        self.A(f's_waitcnt vmcnt({n}) {extra}'.strip())
        self.vm = self.vm[idx[-1] + 1:]

    def stamp(self):
        if STAMP:
            i = self.nstamp - SLO
            self.nstamp += 1
            if i < 1 or i >= 28:
                return
            A = self.A
            A('s_waitcnt lgkmcnt(0)')
            A('s_memrealtime s[60:61]' if RT else 's_memtime s[60:61]')
            A('s_waitcnt lgkmcnt(0)')
            A(f's_mov_b32 {s(64 + i)}, s60')


def stamp_begin(C):
    if STAMP:
        A = C.A
        A('s_memrealtime s[62:63]')
        A('s_memtime s[60:61]')
        for i in range(1, 30):
            A(f's_mov_b32 {s(64 + i)}, 0')
        A('s_waitcnt lgkmcnt(0)')
        A('s_mov_b32 s64, s62' if RT else 's_mov_b32 s64, s60')
        A('s_mov_b32 s95, s62')


def stamp_end(C, kidx):
    if STAMP:
        A = C.A
        A('s_waitcnt vmcnt(0) lgkmcnt(0)')
        A('s_memtime s[60:61]')
        A('s_memrealtime s[62:63]')
        A('s_waitcnt lgkmcnt(0)')
        A('s_mov_b32 s93, s62' if RT else 's_mov_b32 s93, s60')
        A('s_mov_b32 s94, s62')
        A('s_mov_b64 exec, 1')
        A('s_lshl_b32 s60, s2, 10')
        A('s_lshl_b32 s61, s20, 7')
        A('s_add_u32 s60, s60, s61')
        A(f's_add_u32 s60, s60, {STAMPS + kidx * (1 << 20)}')
        A('v_mov_b32 v0, 0')
        for i in range(32):
            A(f'v_mov_b32 v1, {s(64 + i)}')
            A(f'buffer_store_dword v1, v0, s[8:11], s60 offen offset:{i * 4}')
        A('s_waitcnt vmcnt(0)')


def setup(C, need_out, endlab):
    A = C.A
    A('s_cmp_ge_u32 s2, 256')
    A(f's_cbranch_scc1 {endlab}')
    stamp_begin(C)
    ws_srd(A, 8)
    if need_out:
        A('s_load_dwordx2 s[12:13], s[0:1], 72')
        A(f's_mov_b32 s14, {2048 * 512 * 2}')
        A('s_mov_b32 s15, 0x20000')
    A('v_and_b32 v1, 63, v0')
    A('v_lshrrev_b32 v2, 6, v0')
    A('v_lshlrev_b32 v3, 4, v1')
    A('v_readfirstlane_b32 s20, v2')
    A('s_and_b32 s21, s2, 7')
    A('s_lshl_b32 s21, s21, 1')
    A('s_bfe_u32 s22, s2, 0x10003')
    A('s_add_u32 s21, s21, s22')
    A('s_lshr_b32 s22, s2, 4')
    A('s_and_b32 s23, s22, 1')
    A('s_lshr_b32 s24, s22, 1')
    A('s_and_b32 s25, s20, 3')
    A('s_lshr_b32 s26, s20, 2')
    A('s_lshl_b32 s27, s21, 2')
    A('s_lshl_b32 s30, s23, 1')
    A('s_add_u32 s27, s27, s30')
    A('s_lshl_b32 s28, s24, 1')
    A('s_bfe_u32 s30, s20, 0x10001')
    A('s_add_u32 s28, s28, s30')
    A('s_and_b32 s29, s20, 1')
    A('s_add_u32 s30, s27, s29')
    A('s_lshl_b32 s49, s30, 15')
    A('s_lshl_b32 s31, s28, 11')
    A('s_add_u32 s49, s49, s31')
    A('s_lshl_b32 s31, s26, 10')
    A('s_add_u32 s49, s49, s31')
    for g in range(1, 8):
        A(f's_mov_b32 {s(40 + g)}, {g * 4096}')
    A('s_waitcnt lgkmcnt(0)')


def soff(i):
    return ('0' if i // 4 == 0 else s(40 + i // 4)), (i % 4) * 1024


def handoff(C, sync, endlab, need, kvflag=None, first=False):
    A = C.A
    l1, l2, ld = C.lab('pa'), C.lab('pb'), C.lab('pd')
    need()
    A('s_mov_b32 s33, 0')
    A('v_lshlrev_b32 v0, 2, v1')
    A('s_lshl_b32 s30, s21, 8')
    A(f's_add_u32 s30, s30, {FLG + sync * 4096}')
    A('s_lshl_b32 s34, s22, 2')
    A('s_add_u32 s34, s34, s30')
    A('v_mov_b32 v4, 1')
    if first:
        lz, lzd = C.lab('z'), C.lab('zd')
        A('s_cmp_lg_u32 s20, 0')
        A(f's_cbranch_scc1 {lzd}')
        A('s_mov_b32 s31, 0')
        A('s_mov_b64 exec, 1')
        A.label(lz)
        A('buffer_load_dword v2, v0, s[4:7], 0 offen sc0 sc1')
        A('s_waitcnt vmcnt(0)')
        A('v_cmp_le_u32 vcc, 16, v2')
        A('s_add_u32 s31, s31, 1')
        A('s_cmp_eq_u64 vcc, 1')
        A(f's_cbranch_scc1 {lzd}')
        A('s_sleep 8')
        A(f's_cmp_lt_u32 s31, {1 << 20}')
        A(f's_cbranch_scc1 {lz}')
        A(f's_branch {endlab}')
        A.label(lzd)
        A('s_mov_b64 exec, -1')
    if kvflag is not None:
        A('s_waitcnt vmcnt(0) lgkmcnt(0)')
        C.vm = []
    else:
        C.wait('st', 'lgkmcnt(0)')
    if FINE == 4:
        C.stamp()
    A('s_cmp_lg_u32 s20, 0')
    A('s_barrier')
    l, lb, lb2 = C.lab('sig'), C.lab('sb'), C.lab('sc')
    A(f's_cbranch_scc1 {l}')
    A('s_mov_b64 exec, 1')
    if kvflag is not None:
        lk = C.lab('kf')
        A('s_cmp_ge_u32 s24, 2')
        A(f's_cbranch_scc1 {lk}')
        A('s_add_u32 s31, s27, s24')
        A('s_lshl_b32 s31, s31, 7')
        A(f's_add_u32 s31, s31, {kvflag}')
        A('s_mov_b64 exec, 15')
        A('buffer_store_dword v4, v0, s[8:11], s31 offen sc0 sc1')
        A('s_mov_b64 exec, 1')
        A.label(lk)
    A('buffer_store_dword v4, v0, s[8:11], s34 offen')
    A.label(l)
    if FINE == 4:
        C.stamp()
    A('s_mov_b32 s31, 0')
    A('s_mov_b64 exec, s[32:33]')
    A.label(l1)
    A('buffer_load_dword v2, v0, s[8:11], s30 offen sc1')
    A('s_add_u32 s31, s31, 1')
    A('s_waitcnt vmcnt(0)')
    A('v_cmp_ne_u32 vcc, 0, v2')
    A('s_cmp_eq_u64 vcc, s[32:33]')
    A(f's_cbranch_scc1 {ld}')
    A('s_cmp_lt_u32 s31, 64')
    A(f's_cbranch_scc1 {l1}')
    A('s_mov_b64 exec, 1')
    A('buffer_store_dword v4, v0, s[8:11], s34 offen offset:128 sc0 sc1')
    A('s_mov_b64 exec, s[32:33]')
    A.label(l2)
    A('buffer_load_dword v2, v0, s[8:11], s30 offen sc1')
    A('s_waitcnt vmcnt(0)')
    A('v_cmp_ne_u32 s[36:37], 0, v2')
    A('buffer_load_dword v2, v0, s[8:11], s30 offen offset:128 sc0 sc1')
    A('s_waitcnt vmcnt(0)')
    A('v_cmp_ne_u32 vcc, 0, v2')
    A('s_add_u32 s31, s31, 1')
    A('s_or_b64 vcc, vcc, s[36:37]')
    A('s_cmp_eq_u64 vcc, s[32:33]')
    A(f's_cbranch_scc1 {ld}')
    A('s_sleep 4')
    A(f's_cmp_lt_u32 s31, {1 << 20}')
    A(f's_cbranch_scc1 {l2}')
    A(f's_branch {endlab}')
    A.label(ld)
    A('s_mov_b64 exec, -1')
    C.vm = []
    C.flagb = True


def flag_b(C):
    if getattr(C, 'flagb', False):
        A = C.A
        l = C.lab('fb')
        A('s_cmp_lg_u32 s20, 0')
        A(f's_cbranch_scc1 {l}')
        A('s_mov_b64 exec, 1')
        A('buffer_store_dword v4, v0, s[8:11], s34 offen offset:128 sc0 sc1')
        A('s_mov_b64 exec, -1')
        A.label(l)
        C.flagb = False


ACCB, ACCA = 16, 48
KVW, KACC, QSX = 160, 176, 240
KVRED, STAT, CSX, CSK = 112 * KB, 144 * KB, 148 * KB, 152 * KB


def blk_stats(C, P, T):
    A = C.A
    A(f'v_mov_b32 {v(T + 4)}, 0x3f803f80')
    A(f'v_dot2_f32_bf16 {v(T + 1)}, {v(P)}, {v(P)}, 0')
    A(f'v_dot2_f32_bf16 {v(T)}, {v(P)}, {v(T + 4)}, 0')
    for m in range(1, 4):
        A(f'v_dot2_f32_bf16 {v(T + 1)}, {v(P + m)}, {v(P + m)}, {v(T + 1)}')
        A(f'v_dot2_f32_bf16 {v(T)}, {v(P + m)}, {v(T + 4)}, {v(T)}')
    A('s_nop 2')
    A(f'v_mov_b32 {v(T + 2)}, {v(T)}')
    A(f'v_mov_b32 {v(T + 3)}, {v(T + 1)}')
    A('s_nop 1')
    A(f'v_permlane32_swap_b32 {v(T)}, {v(T + 2)}')
    A(f'v_permlane32_swap_b32 {v(T + 1)}, {v(T + 3)}')
    A(f'v_add_f32 {v(T)}, {v(T)}, {v(T + 2)}')
    A(f'v_add_f32 {v(T + 1)}, {v(T + 1)}, {v(T + 3)}')


def g3_waddr(C, vregs, KS, wbase):
    A = C.A
    NS = KS // 8
    A('s_lshl_b32 s30, s26, 8')
    A(f'v_xor_b32 {v(vregs[0])}, s30, v3')
    A(f's_mul_i32 s31, s20, {NS * KB}')
    A(f's_add_u32 s31, s31, {wbase}')
    A('s_xor_b32 s30, s28, 1')
    A(f's_mul_i32 s30, s30, {KS * KB}')
    A('s_add_u32 s30, s30, s31')
    A(f'v_add_u32 {v(vregs[1])}, s30, {v(vregs[0])}')
    A(f's_mul_i32 s30, s28, {KS * KB}')
    A('s_add_u32 s30, s30, s31')
    A(f'v_add_u32 {v(vregs[0])}, s30, {v(vregs[0])}')


def g3_wload(C, vregs, idx, wreg0, tag='w'):
    st, jj = idx // 2, idx % 2
    so, im = soff(st)
    C.vmem(f'buffer_load_dwordx4 {v(wreg0 + 4 * idx, 4)}, {v(vregs[jj])}, s[8:11], {so} offen offset:{im}', tag)


def g3_ex(mode, KS):
    return 252 if KS == 112 else (112 if mode == 'qkv' else 116)


def g3_pre(C, mode, KS, xbase, resbase=None, raw=False):
    A = C.A
    NS = KS // 8
    EX = g3_ex(mode, KS)
    A(f's_mul_i32 s31, s20, {NS * KB}')
    A(f's_add_u32 s31, s31, {xbase}')
    A('s_add_u32 s30, s27, s29')
    A(f's_mul_i32 s32, s30, {KS * KB}')
    A('s_add_u32 s32, s32, s31')
    A('v_add_u32 v6, s32, v3')
    A('s_xor_b32 s30, s30, 1')
    A(f's_mul_i32 s32, s30, {KS * KB}')
    A('s_add_u32 s32, s32, s31')
    A('v_add_u32 v5, s32, v3')
    A('s_lshl_b32 s30, s20, 11')
    A('v_add_u32 v8, s30, v3')
    A('v_add_u32 v7, 0x10000, v8')
    for b in range(1, 8):
        A(f's_xor_b32 s30, s20, {b}')
        A('s_lshl_b32 s30, s30, 11')
        A(f's_add_u32 s30, s30, {(b - 1) * 16 * KB}')
        A(f'v_add_u32 {v(8 + b)}, s30, v3')
    if raw:
        return
    if mode == 'qkv':
        A('v_lshrrev_b32 v2, 5, v1')
        A('v_lshlrev_b32 v4, 4, v2')
        A('s_lshl_b32 s31, s28, 7')
        A('s_lshl_b32 s30, s26, 6')
        A('s_add_u32 s31, s31, s30')
        A(f's_add_u32 s31, s31, {CSQKV}')
        C.vmem(f'buffer_load_dwordx4 {v(EX, 4)}, v4, s[8:11], s31 offen', 'ex')
        C.vmem(f'buffer_load_dwordx4 {v(EX + 4, 4)}, v4, s[8:11], s31 offen offset:32', 'ex')
        A('s_bfe_u32 s30, s20, 0x10001')
        A('s_lshl_b32 s30, s30, 6')
        A('s_lshl_b32 s31, s26, 5')
        A('s_add_u32 s30, s30, s31')
        A(f's_add_u32 s31, s30, {CSQKV + 2048}')
        C.vmem(f'buffer_load_dwordx4 {v(EX + 8, 4)}, v4, s[8:11], s31 offen', 'ex')
        A(f'v_and_b32 {v(QSX + 8)}, 31, v1')
        A(f'v_lshlrev_b32 {v(QSX + 8)}, 3, {v(QSX + 8)}')
        A(f'v_lshl_add_u32 {v(QSX + 8)}, v2, 13, {v(QSX + 8)}')
        A('s_lshl_b32 s30, s27, 13')
        A('s_lshl_b32 s31, s20, 10')
        A('s_add_u32 s30, s30, s31')
        A(f's_add_u32 s30, s30, {resbase}')
        A(f'v_add_u32 {v(QSX + 8)}, s30, {v(QSX + 8)}')
    elif resbase is None:
        A('v_and_b32 v2, 31, v1')
        A('v_lshlrev_b32 v2, 10, v2')
        A('v_lshrrev_b32 v4, 5, v1')
        A('v_lshl_add_u32 v2, v4, 3, v2')
        A('s_add_u32 s30, s27, s29')
        A('s_lshl_b32 s30, s30, 15')
        A('s_lshl_b32 s31, s28, 6')
        A('s_add_u32 s30, s30, s31')
        A('s_lshl_b32 s31, s26, 5')
        A('s_add_u32 s30, s30, s31')
        C.vmem(f'buffer_load_dwordx2 {v(EX, 2)}, v2, s[12:15], s30 offen', 'ex')
        C.vmem(f'buffer_load_dwordx2 {v(EX + 2, 2)}, v2, s[12:15], s30 offen offset:16', 'ex')
    else:
        A(f's_add_u32 s31, s49, {resbase}')
        C.vmem(f'buffer_load_dwordx4 {v(EX, 4)}, v3, s[8:11], s31 offen', 'ex')


def g3_main(C, mode, KS, wreg0, outbase=None, kvf=None, after_store=None, sxout=None, hook_b=None, raw=False, hook_red=None):
    A = C.A
    NS = KS // 8
    EX = g3_ex(mode, KS)
    if NS == 4:
        xreg = {(hh, st): 80 + (hh * 4 + st) * 4 for hh in range(2) for st in range(4)}
    else:
        slot = [80 + 4 * k for k in range(12)] + [240, 244]
        xreg = {(hh, st): slot[st] for hh in range(2) for st in range(NS)}

    def xload(hh, st):
        so, im = soff(st)
        C.vmem(f'buffer_load_dwordx4 {v(xreg[hh, st], 4)}, {v(5 + hh)}, s[8:11], {so} offen offset:{im}', f'x{hh}_{st}')

    seq = [(hh, st) for hh in range(2) for st in range(NS)]
    PR = G3_PR4 if NS == 4 else G3_PR14
    if raw:
        seq, PR = [], 0
    for x in seq[:PR]:
        xload(*x)
    nxt = PR
    C.wait('w')

    def wr(b):
        base = (ACCA if b & 1 else ACCB) + ((b >> 1) & 1) * 16 + (b >> 2) * 8
        return [f'ds_write_b128 {v(8 + b)}, {v(base + h2 * 4, 4)} offset:{h2 * 1024}' for h2 in range(2)]

    pend = []
    for hh in range(2):
        acc = ACCA if hh == 0 else ACCB
        for st in range(NS):
            C.wait(f'x{hh}_{st}')
            if hh == 0 and st == 0:
                C.stamp()
            for jj in range(2):
                c = '0' if st == 0 else v(acc + jj * 16, 16)
                A(f'v_mfma_f32_32x32x16_bf16 {v(acc + jj * 16, 16)}, {v(wreg0 + 4 * (2 * st + jj), 4)}, {v(xreg[hh, st], 4)}, {c}')
                if hh == 1 and (st >= 3 or (NS == 4 and st >= 2)):
                    for _ in range(2 if NS == 4 else 1):
                        if pend:
                            A(pend.pop(0))
            if nxt < len(seq):
                xload(*seq[nxt])
                nxt += 1
                if nxt == len(seq):
                    if mode == 'qkv':
                        for e in range(4):
                            C.vmem(f'buffer_load_dwordx2 {v(QSX + 2 * e, 2)}, {v(QSX + 8)}, s[8:11], 0 offen offset:{e * 256}', 'sx')
                    flag_b(C)
                    hb = 0
            elif hook_b:
                hb += 1
            if hook_b and nxt == len(seq):
                hook_b(hb, PR)
            if hh == 1 and NS == 4 and st == 1:
                A('s_nop 7' if raw else 's_nop 5')
            if hh == 1 and NS != 4 and st == 2:
                A('s_nop 2')
        if hh == 0:
            pend = wr(1) + wr(5) + wr(3) + wr(7)
    assert not pend
    C.stamp()
    lkv = C.lab('nokv')
    if mode == 'qkv':
        la, lb = C.lab('ka'), C.lab('kb')
        A('s_cmp_ge_u32 s24, 2')
        A(f's_cbranch_scc1 {lb}')
        A('s_cmp_eq_u32 s24, s29')
        A(f's_cbranch_scc0 {la}')
        for hh in (1, 0):
            for st in range(4):
                c = '0' if st == 0 else v(KACC, 16)
                A(f'v_mfma_f32_32x32x16_bf16 {v(KACC, 16)}, {v(KVW + 4 * st, 4)}, {v(xreg[hh, st], 4)}, {c}')
            if hh == 1:
                A(f's_branch {lb}')
                A.label(la)
        A.label(lb)
        A('v_lshlrev_b32 v4, 3, v1')
        if not raw:
            C.wait('sx')
            for e in range(4):
                A(f'v_add_f32 {v(QSX + e)}, {v(QSX + e)}, {v(QSX + 4 + e)}')
            for e in range(2):
                A(f'v_add_f32 {v(QSX + e)}, {v(QSX + e)}, {v(QSX + 2 + e)}')
            A('s_lshl_b32 s30, s20, 9')
            A(f's_add_u32 s30, s30, {STAT}')
            A('v_add_u32 v2, s30, v4')
            A(f'ds_write_b64 v2, {v(QSX, 2)}')
        else:
            A('v_lshrrev_b32 v112, 5, v1')
            A('v_lshlrev_b32 v112, 4, v112')
            A('s_and_b32 s30, s28, 1')
            A('s_lshl_b32 s30, s30, 7')
            A('s_lshl_b32 s31, s26, 6')
            A('s_add_u32 s30, s30, s31')
            A(f's_add_u32 s30, s30, {CSK}')
            A('v_add_u32 v113, s30, v112')
            A('s_nop 3')
        A('v_and_b32 v4, 0xf8, v4')
        A('s_lshl_b32 s30, s29, 8')
        A(f's_add_u32 s30, s30, {STAT}')
        A('v_add_u32 v4, s30, v4')
    else:
        A('s_nop 10')
    for b in (4, 2, 6):
        for x in wr(b):
            A(x)
    if mode == 'qkv':
        A('s_cmp_ge_u32 s24, 2')
        A(f's_cbranch_scc1 {lkv}')
        A(f'v_add_u32 v2, {KVRED}, v8')
        for k4 in range(4):
            A(f'ds_write_b128 v2, {v(KACC + k4 * 4, 4)} offset:{(k4 >> 1) * 16 * KB + (k4 & 1) * 1024}')
        A.label(lkv)
    if hook_red:
        hook_red()
    A('s_waitcnt lgkmcnt(0)')
    A('s_barrier')
    for b in range(1, 8):
        for h2 in range(2):
            base, off = ('v8', (b - 1) * 16 * KB) if b <= 4 else ('v7', (b - 5) * 16 * KB)
            A(f'ds_read_b128 {v(ACCB + b * 8 + h2 * 4, 4)}, {base} offset:{off + h2 * 1024}')
    T = 80

    def red(base, waits):
        for stp in (32, 16, 8):
            for r in range(stp):
                A(f'v_add_f32 {v(base + r)}, {v(base + r)}, {v(base + stp + r)}')
    if mode == 'qkv':
        A('s_waitcnt lgkmcnt(6)')
        for ww in range(8):
            A(f'ds_read_b64 {v(T + ww * 2, 2)}, v4 offset:{ww * 512}')
        A('s_waitcnt lgkmcnt(8)')
        if raw:
            EX = 192
            for h2 in range(2):
                A(f'ds_read_b128 {v(EX + h2 * 4, 4)}, v113 offset:{h2 * 32}')
    else:
        C.wait('ex')
        for m in range(4):
            A(f'v_lshlrev_b32 {v(T + 2 * m)}, 16, {v(EX + m)}')
            A(f'v_and_b32 {v(T + 2 * m + 1)}, 0xffff0000, {v(EX + m)}')
        for r in range(8):
            A(f'v_add_f32 {v(ACCB + r)}, {v(ACCB + r)}, {v(T + r)}')
        A('s_waitcnt lgkmcnt(0)')
    red(ACCB, None)
    P = ACCB + 8
    if mode == 'qkv':
        A('s_waitcnt lgkmcnt(0)')
        for stp in (8, 4, 2):
            for e in range(stp):
                A(f'v_add_f32 {v(T + e)}, {v(T + e)}, {v(T + e + stp)}')
        A(f'v_mul_f32 {v(T)}, {f32(1.0 / 512)}, {v(T)}')
        A(f'v_mul_f32 {v(T + 1)}, {f32(1.0 / 512)}, {v(T + 1)}')
        A(f'v_fma_f32 {v(T + 1)}, -{v(T)}, {v(T)}, {v(T + 1)}')
        A(f'v_max_f32 {v(T + 1)}, 0, {v(T + 1)}')
        A(f'v_add_f32 {v(T + 1)}, {f32(1e-5)}, {v(T + 1)}')
        A(f'v_rsq_f32 {v(T + 1)}, {v(T + 1)}')
        C.wait('ex')
        for r in range(8):
            A(f'v_fma_f32 {v(ACCB + r)}, -{v(T)}, {v(EX + r)}, {v(ACCB + r)}')
        A(f'v_mul_f32 {v(T + 2)}, {f32(QSCALE)}, {v(T + 1)}')
        for r in range(8):
            A(f'v_mul_f32 {v(ACCB + r)}, {v(T + 2)}, {v(ACCB + r)}')
        for m in range(4):
            A(f'v_cvt_pk_bf16_f32 {v(P + m)}, {v(ACCB + 2 * m)}, {v(ACCB + 2 * m + 1)}')
        A(f's_add_u32 s31, s49, {C.qf}')
        C.vmem(f'buffer_store_dwordx4 {v(P, 4)}, v3, s[8:11], s31 offen{QWT}', 'st')
        le, lv = C.lab('ke'), C.lab('v')
        A('s_cmp_lg_u32 s29, s24')
        A(f's_cbranch_scc1 {le}')
        A('s_bfe_u32 s34, s20, 0x10001')
        A('s_lshl_b32 s30, s34, 14')
        A('s_lshl_b32 s31, s26, 10')
        A('s_add_u32 s30, s30, s31')
        A(f's_add_u32 s30, s30, {KVRED}')
        A('v_add_u32 v4, s30, v3')
        KR = 208
        for ww in range(8):
            A(f'ds_read_b128 {v(KR + ww * 4, 4)}, v4 offset:{ww * 2048}')
        KX = EX + 8
        if raw:
            A('s_lshl_b32 s30, s34, 6')
            A('s_lshl_b32 s31, s26, 5')
            A('s_add_u32 s30, s30, s31')
            A(f's_add_u32 s30, s30, {CSK + 256}')
            A('v_add_u32 v113, s30, v112')
            A(f'ds_read_b128 {v(KX, 4)}, v113')
        A('s_add_u32 s30, s27, s29')
        A(f's_mul_i32 s30, s30, {KVG}')
        A(f's_add_u32 s30, s30, {kvf}')
        A('v_bfe_u32 v4, v1, 4, 1')
        A(f'v_mul_u32_u24 v4, {VBS}, v4')
        A('v_bfe_u32 v5, v1, 2, 1')
        A('v_lshl_add_u32 v4, v5, 8, v4')
        A('v_and_b32 v5, 3, v1')
        A('v_lshl_add_u32 v4, v5, 1, v4')
        A('v_bfe_u32 v5, v1, 3, 1')
        A('v_lshl_add_u32 v4, v5, 3, v4')
        A('v_lshrrev_b32 v5, 5, v1')
        A('v_lshl_add_u32 v4, v5, 6, v4')
        A('s_waitcnt lgkmcnt(0)')
        for stp in (16, 8, 4):
            for r in range(stp):
                A(f'v_add_f32 {v(KR + r)}, {v(KR + r)}, {v(KR + stp + r)}')
        for r in range(4):
            A(f'v_fma_f32 {v(KR + r)}, -{v(T)}, {v(KX + r)}, {v(KR + r)}')
        for r in range(4):
            A(f'v_mul_f32 {v(KR + r)}, {v(T + 1)}, {v(KR + r)}')
        KP = KR + 8
        for m in range(2):
            A(f'v_cvt_pk_bf16_f32 {v(KP + m)}, {v(KR + 2 * m)}, {v(KR + 2 * m + 1)}')
        A('s_cmp_lg_u32 s34, 0')
        A(f's_cbranch_scc1 {lv}')
        A('s_lshl_b32 s31, s26, 3')
        A('s_add_u32 s31, s31, s30')
        A(f'buffer_store_dwordx2 {v(KP, 2)}, v3, s[8:11], s31 offen{QWT}')
        A(f's_branch {le}')
        A.label(lv)
        A('s_lshl_b32 s31, s26, 7')
        A('s_add_u32 s31, s31, s30')
        for r in range(4):
            op = 'buffer_store_short' if r % 2 == 0 else 'buffer_store_short_d16_hi'
            A(f'{op} {v(KP + r // 2)}, v4, s[8:11], s31 offen offset:{1024 + r * 16}{QWT}')
        A.label(le)
    else:
        for m in range(4):
            A(f'v_cvt_pk_bf16_f32 {v(P + m)}, {v(ACCB + 2 * m)}, {v(ACCB + 2 * m + 1)}')
        if mode == 'res':
            A(f's_add_u32 s31, s49, {outbase}')
            C.vmem(f'buffer_store_dwordx4 {v(P, 4)}, v3, s[8:11], s31 offen{WT}', 'st')
            blk_stats(C, P, T)
            A('s_lshr_b32 s31, s49, 2')
            A(f's_add_u32 s31, s31, {sxout}')
            A('v_lshlrev_b32 v4, 3, v1')
            A('s_mov_b32 exec_hi, 0')
            C.vmem(f'buffer_store_dwordx2 {v(T, 2)}, v4, s[8:11], s31 offen{WT}', 'st')
            A('s_mov_b64 exec, -1')
            if after_store:
                after_store()
        else:
            A('v_and_b32 v4, 31, v1')
            A('v_lshlrev_b32 v4, 10, v4')
            A('v_lshrrev_b32 v5, 5, v1')
            A('v_lshl_add_u32 v4, v5, 4, v4')
            A('s_add_u32 s30, s27, s29')
            A('s_lshl_b32 s30, s30, 15')
            A('s_lshl_b32 s31, s28, 6')
            A('s_add_u32 s30, s30, s31')
            A('s_lshl_b32 s31, s26, 5')
            A('s_add_u32 s30, s30, s31')
            A(f'v_permlane32_swap_b32 {v(P)}, {v(P + 2)}')
            A(f'v_permlane32_swap_b32 {v(P + 1)}, {v(P + 3)}')
            C.vmem(f'buffer_store_dwordx4 {v(P, 4)}, v4, s[12:15], s30 offen', 'st')


def qkv_wstep(C, st, n=1):
    A = C.A
    if st == 0:
        g3_waddr(C, (5, 6), 32, WQKVP)
    per = -(-8 // n)
    for i in range(st * per, min(8, (st + 1) * per)):
        g3_wload(C, (5, 6), i, 128)
    if st == n:
        A('s_lshl_b32 s30, s20, 12')
        A(f's_add_u32 s30, s30, {WQKVP + 16 * 32 * KB}')
        l = C.lab('kw')
        A('s_cmp_ge_u32 s24, 2')
        A(f's_cbranch_scc1 {l}')
        for k in range(4):
            A(f'buffer_load_dwordx4 {v(KVW + 4 * k, 4)}, v3, s[8:11], s30 offen offset:{k * 1024}')
        A.label(l)


def qkv_wloads(C):
    qkv_wstep(C, 0)
    qkv_wstep(C, 1)


KVR4, XF0, ST4, RED4 = 0, 36 * KB, 68 * KB, 80 * KB
G4_ORD = [0, 1, 4, 5, 8, 9, 12, 13, 2, 3, 6, 7, 10, 11, 14, 15]


def g4_ids(C):
    A = C.A
    A('s_and_b32 s18, s22, 3')
    A('s_lshl_b32 s30, s21, 2')
    A('s_add_u32 s18, s18, s30')
    A('s_and_b32 s30, s22, 12')
    A('s_add_u32 s30, s30, s25')
    A('s_lshl_b32 s30, s30, 1')
    A('s_add_u32 s30, s30, s26')
    A('s_lshl_b32 s19, s18, 5')
    A('s_add_u32 s19, s19, s30')
    A('s_lshl_b32 s19, s19, 10')
    A('s_lshr_b32 s3, s22, 2')
    A('s_and_b32 s30, s21, 3')
    A('s_xor_b32 s3, s3, s30')


def g4_waddr(C, vreg, wbase):
    A = C.A
    A('s_lshl_b32 s30, s26, 8')
    A(f'v_xor_b32 {v(vreg)}, s30, v3')
    A('s_and_b32 s30, s19, 0x7fff')
    A('s_lshl_b32 s30, s30, 4')
    A(f's_add_u32 s30, s30, {wbase}')
    A(f'v_add_u32 {v(vreg)}, s30, {v(vreg)}')


def g4_wreg(mode, i):
    if mode == 'qkv':
        return 128 + 4 * i
    return 224 + 4 * i if i < 8 else 64 + 4 * (i - 8)


def g4_wload(C, vreg, i, mode):
    so, im = soff(G4_ORD[i])
    C.vmem(f'buffer_load_dwordx4 {v(g4_wreg(mode, i), 4)}, {v(vreg)}, s[8:11], {so} offen offset:{im}', 'w')


def g4_pre(C, mode, xbase, resbase=None, raw=False):
    A = C.A
    EX = 96
    A('s_lshl_b32 s30, s18, 15')
    A('s_lshl_b32 s48, s20, 12')
    A('s_add_u32 s30, s30, s48')
    A(f's_add_u32 s30, s30, {xbase}')
    A('v_add_u32 v5, s30, v3')
    A('s_lshl_b32 s30, s26, 14')
    A(f's_add_u32 s30, s30, {XF0}')
    A('v_add_u32 v6, s30, v3')
    A(f'v_add_u32 v14, s48, v3')
    A(f's_add_u32 s48, s48, {XF0}')
    A('s_lshl_b32 s30, s20, 11')
    A(f's_add_u32 s30, s30, {RED4}')
    A('v_add_u32 v8, s30, v3')
    A('v_xor_b32 v7, 0x2000, v8')
    if mode == 'qkv':
        A('v_lshrrev_b32 v2, 5, v1')
        if not raw:
            A('v_lshlrev_b32 v4, 4, v2')
            A('s_and_b32 s31, s19, 0x7fff')
            A('s_lshr_b32 s31, s31, 4')
            A(f's_add_u32 s31, s31, {CSQKV}')
            C.vmem(f'buffer_load_dwordx4 {v(EX, 4)}, v4, s[8:11], s31 offen', 'ex')
            C.vmem(f'buffer_load_dwordx4 {v(EX + 4, 4)}, v4, s[8:11], s31 offen offset:32', 'ex')
            A('s_lshl_b32 s31, s25, 5')
            A(f's_add_u32 s31, s31, {CSQKV + 2048}')
            C.vmem(f'buffer_load_dwordx4 {v(EX + 8, 4)}, v4, s[8:11], s31 offen', 'ex')
        A('v_and_b32 v9, 31, v1')
        A('v_lshlrev_b32 v9, 3, v9')
        A(f'v_add_u32 v11, {ST4}, v9')
        A('s_lshl_b32 s30, s20, 8')
        A('v_add_u32 v10, s30, v11')
        A('v_lshl_add_u32 v9, v2, 9, v9')
        A('s_lshl_b32 s30, s18, 13')
        A('s_lshl_b32 s31, s20, 10')
        A('s_add_u32 s30, s30, s31')
        A(f's_add_u32 s30, s30, {resbase}')
        A('v_add_u32 v9, s30, v9')
        A('v_add_u32 v12, s48, v3')
        A('s_lshl_b32 s30, s25, 10')
        A(f's_add_u32 s30, s30, {KVR4}')
        A('v_add_u32 v13, s30, v3')
        A('v_bfe_u32 v15, v1, 4, 1')
        A('v_lshlrev_b32 v15, 9, v15')
        A('v_bfe_u32 v4, v1, 2, 1')
        A('v_lshl_add_u32 v15, v4, 8, v15')
        A('v_and_b32 v4, 3, v1')
        A('v_lshl_add_u32 v15, v4, 1, v15')
        A('v_bfe_u32 v4, v1, 3, 1')
        A('v_lshl_add_u32 v15, v4, 3, v15')
        A('v_lshl_add_u32 v15, v2, 6, v15')
    elif resbase is None:
        A('v_and_b32 v2, 31, v1')
        A('v_lshlrev_b32 v2, 10, v2')
        A('v_lshrrev_b32 v4, 5, v1')
        A('v_lshl_add_u32 v2, v4, 3, v2')
        A('s_lshl_b32 s30, s18, 15')
        A('s_and_b32 s31, s19, 0x7fff')
        A('s_lshr_b32 s31, s31, 5')
        A('s_add_u32 s30, s30, s31')
        C.vmem(f'buffer_load_dwordx2 {v(EX, 2)}, v2, s[12:15], s30 offen', 'ex')
        C.vmem(f'buffer_load_dwordx2 {v(EX + 2, 2)}, v2, s[12:15], s30 offen offset:16', 'ex')
    else:
        A(f's_add_u32 s31, s19, {resbase}')
        C.vmem(f'buffer_load_dwordx4 {v(EX, 4)}, v3, s[8:11], s31 offen', 'ex')


def ln_stats(A, T):
    for stp in (8, 4, 2):
        for e in range(stp):
            A(f'v_add_f32 {v(T + e)}, {v(T + e)}, {v(T + e + stp)}')
    A(f'v_mul_f32 {v(T)}, {f32(1.0 / 512)}, {v(T)}')
    A(f'v_mul_f32 {v(T + 1)}, {f32(1.0 / 512)}, {v(T + 1)}')
    A(f'v_fma_f32 {v(T + 1)}, -{v(T)}, {v(T)}, {v(T + 1)}')
    A(f'v_max_f32 {v(T + 1)}, 0, {v(T + 1)}')
    A(f'v_add_f32 {v(T + 1)}, {f32(1e-5)}, {v(T + 1)}')
    A(f'v_rsq_f32 {v(T + 1)}, {v(T + 1)}')


def g4_main(C, mode, outbase=None, sxout=None, kvf=None, kfl=None, hook_red=None, raw=None, endlab=None):
    A = C.A
    ACC, XR, EX = 16, 32, 96
    KW, KA, KR, T = 192, 208, 224, 108
    if not raw:
        A('s_mov_b32 m0, s48')
        A('s_nop 0')
        for k in range(4):
            C.vmem(f'buffer_load_dwordx4 v5, s[8:11], 0 offen offset:{k * 1024} lds', f'x{k}')

    def rd(i):
        A(f'ds_read_b128 {v(XR + 4 * (i % 8), 4)}, v6 offset:{G4_ORD[i] * 1024}')

    def mf(i):
        c = '0' if i == 0 else v(ACC, 16)
        A(f'v_mfma_f32_32x32x16_bf16 {v(ACC, 16)}, {v(g4_wreg(mode, i), 4)}, {v(XR + 4 * (i % 8), 4)}, {c}')

    def wq_loads():
        for i in range(16):
            so, im = soff(G4_ORD[i])
            A(f'buffer_load_dwordx4 {v(128 + 4 * i, 4)}, v64, s[8:11], {so} offen offset:{im}')

    if mode == 'qkv':
        A('s_add_u32 s35, s3, s26')
        if raw:
            raw['front']()
        else:
            for e in range(2):
                C.vmem(f'buffer_load_dwordx2 {v(T + 2 * e, 2)}, v9, s[8:11], 0 offen offset:{e * 256}', 'sx')
            l1, l2 = C.lab('w1'), C.lab('w2')
            A('s_cmp_eq_u32 s3, 0')
            A(f's_cbranch_scc1 {l1}')
            flag_b(C)
            wq_loads()
            A('s_waitcnt vmcnt(16)')
            A(f's_branch {l2}')
            A.label(l1)
            A('s_waitcnt vmcnt(0)')
            A.label(l2)
            C.vm = []
            C.stamp()
        lk = C.lab('k4')
        A('s_cmp_lg_u32 s3, 0')
        A(f's_cbranch_scc1 {lk}')
        if raw:
            raw['kvw']()
        else:
            for k in range(4):
                A(f'ds_read_b128 {v(KR + 4 * k, 4)}, v12 offset:{k * 1024}')
        for k in range(4):
            if not raw:
                A(f's_waitcnt lgkmcnt({3 - k})')
            A(f'v_mfma_f32_32x32x16_bf16 {v(KA, 16)}, {v(KW + 4 * k, 4)}, {v(KR + 4 * k, 4)}, {"0" if k == 0 else v(KA, 16)}')
        A.label(lk)
        A(f'v_add_f32 {v(T)}, {v(T)}, {v(T + 2)}')
        A(f'v_add_f32 {v(T + 1)}, {v(T + 1)}, {v(T + 3)}')
        A(f'v_mov_b32 {v(T + 2)}, {v(T)}')
        A(f'v_mov_b32 {v(T + 3)}, {v(T + 1)}')
        A('s_nop 1')
        swap_add(A, T, T + 2)
        swap_add(A, T + 1, T + 3)
        A(f'ds_write_b64 v10, {v(T, 2)}')
        A(f'v_mov_b32 {v(T + 2)}, 0')
        A(f'v_mov_b32 v9, {ST4 + 8192}')
        A(f'ds_write_b32 v9, {v(T + 2)}')
        lk = C.lab('k5')
        A('s_cmp_lg_u32 s3, 0')
        A(f's_cbranch_scc1 {lk}')
        for k in range(4):
            A(f'ds_write_b128 v14, {v(KA + 4 * k, 4)} offset:{k * 1024}')
        A.label(lk)
        A('s_waitcnt lgkmcnt(0)')
        A('s_barrier')
        for ww in range(8):
            A(f'ds_read_b64 {v(T + 2 * ww, 2)}, v11 offset:{ww * 256}')
        lv, le, lf = C.lab('v6'), C.lab('e6'), C.lab('f6')
        A('s_cmp_lg_u32 s35, 0')
        A(f's_cbranch_scc1 {le}')
        A('s_setprio 3')
        if FINE == 3:
            C.stamp()
        A('s_waitcnt lgkmcnt(4)')
        for ww in range(8):
            A(f'ds_read_b128 {v(KR + 4 * ww, 4)}, v13 offset:{ww * 4096}')
        if raw:
            raw['zchk2']()
        A('s_waitcnt lgkmcnt(8)')
        for r in range(16):
            A(f'v_mov_b32 {v(KA + r)}, {v(T + r)}')
        ln_stats(A, KA)
        A('s_lshl_b32 s30, s18, 11')
        A(f's_add_u32 s30, s30, {kvf}')
        A('s_waitcnt lgkmcnt(0)')
        if raw:
            raw['kvcs0']()
        for stp in (16, 8, 4):
            for r in range(stp):
                A(f'v_add_f32 {v(KR + r)}, {v(KR + r)}, {v(KR + stp + r)}')
        if raw:
            raw['kvcs1']()
        for r in range(4):
            A(f'v_fma_f32 {v(KR + r)}, -{v(KA)}, {v(EX + 8 + r)}, {v(KR + r)}')
        for r in range(4):
            A(f'v_mul_f32 {v(KR + r)}, {v(KA + 1)}, {v(KR + r)}')
        for m in range(2):
            A(f'v_cvt_pk_bf16_f32 {v(KR + 8 + m)}, {v(KR + 2 * m)}, {v(KR + 2 * m + 1)}')
        A('s_cmp_ge_u32 s20, 2')
        A(f's_cbranch_scc1 {lv}')
        A('s_lshl_b32 s31, s20, 3')
        A('s_add_u32 s31, s31, s30')
        A(f'buffer_store_dwordx2 {v(KR + 8, 2)}, v3, s[8:11], s31 offen sc0 sc1')
        A(f's_branch {lf}')
        A.label(lv)
        A('s_lshl_b32 s31, s29, 10')
        A(f's_add_u32 s31, s31, {ST4 + 4096}')
        A('v_add_u32 v15, s31, v15')
        for r in range(4):
            op = 'ds_write_b16' if r % 2 == 0 else 'ds_write_b16_d16_hi'
            A(f'{op} v15, {v(KR + 8 + r // 2)} offset:{r * 16}')
        A('v_lshrrev_b32 v2, 3, v1')
        A('v_lshlrev_b32 v2, 8, v2')
        A(f'v_and_b32 {v(KR)}, 7, v1')
        A(f'v_lshl_add_u32 v2, {v(KR)}, 4, v2')
        A('v_add_u32 v15, s31, v2')
        A('s_mov_b32 exec_hi, 0')
        A(f'ds_read_b128 {v(KR + 12, 4)}, v15')
        A('s_lshl_b32 s31, s29, 7')
        A('s_add_u32 s31, s31, s30')
        A('s_waitcnt lgkmcnt(0)')
        A(f'buffer_store_dwordx4 {v(KR + 12, 4)}, v2, s[8:11], s31 offen offset:1024 sc0 sc1')
        A('s_mov_b64 exec, -1')
        A.label(lf)
        lg = C.lab('g6')
        if FINE == 3:
            C.stamp()
        if raw:
            raw['wloads']()
        else:
            wq_loads()
        A('s_lshl_b32 s30, s18, 7')
        A(f's_add_u32 s30, s30, {kfl}')
        A('s_mov_b64 exec, 1')
        A('s_waitcnt vmcnt(16)')
        A('ds_add_rtn_u32 v2, v9, v4')
        A('s_waitcnt lgkmcnt(0)')
        A('v_cmp_eq_u32 vcc, 3, v2')
        A('s_cbranch_vccz ' + lg)
        A('buffer_store_dword v4, v0, s[8:11], s30 offen sc0 sc1')
        A.label(lg)
        A('s_mov_b64 exec, -1')
        A('s_setprio 0')
        if FINE == 3:
            C.stamp()
        A.label(le)
        flag_b(C)
        A('s_waitcnt lgkmcnt(0)')
        if raw:
            raw['wprep']()
        else:
            l3 = C.lab('w3')
            A('s_cmp_lg_u32 s3, 0')
            A(f's_cbranch_scc1 {l3}')
            C.flagb = True
            flag_b(C)
            A('s_cmp_eq_u32 s35, 0')
            A(f's_cbranch_scc1 {l3}')
            wq_loads()
            A.label(l3)
        if raw:
            raw['loop'](rd, mf)
        else:
            for i in range(8):
                rd(i)
            ln_stats(A, T)
            for i in range(16):
                A(f's_waitcnt lgkmcnt({7 if i < 8 else 15 - i}) vmcnt({15 - i})')
                mf(i)
                if i < 8:
                    rd(i + 8)
    else:
        def wl(i):
            so, im = soff(G4_ORD[i])
            C.vmem(f'buffer_load_dwordx4 {v(g4_wreg(mode, i), 4)}, v116, s[8:11], {so} offen offset:{im}', f'w{i}')
        if WO_LATE:
            for i in range(8, 8 + WO_L0):
                wl(i)
        C.wait('x1')
        A('s_barrier')
        C.stamp()
        for i in range(8):
            rd(i)
        if WO_LATE:
            for i in range(8 + WO_L0, 16):
                wl(i)
        for i in range(4):
            A(f's_waitcnt lgkmcnt({7 - i})')
            mf(i)
        C.wait('x3')
        A('s_barrier')
        for i in range(8, 12):
            rd(i)
        for i in range(4, 8):
            A('s_waitcnt lgkmcnt(7)')
            mf(i)
            rd(i + 8)
        flag_b(C)
        for i in range(8, 16):
            C.wait(f'w{i}', f'lgkmcnt({15 - i})')
            mf(i)
            if hook_red and i >= 8:
                hook_red(i - 8)
    C.stamp()
    if mode == 'qkv':
        kv_setup(C, kvf, kfl)
        A(f'v_mul_f32 {v(T + 2)}, {f32(QSCALE)}, {v(T + 1)}')
        if raw:
            raw['cs0']()
    else:
        C.wait('ex')
        TT = XR
        for m in range(4):
            A(f'v_lshlrev_b32 {v(TT + 2 * m)}, 16, {v(EX + m)}')
            A(f'v_and_b32 {v(TT + 2 * m + 1)}, 0xffff0000, {v(EX + m)}')
        A('s_nop 3')
    for h2 in range(2):
        A(f'ds_write_b128 v7, {v(ACC + 8 + 4 * h2, 4)} offset:{h2 * 1024}')
    if mode == 'qkv':
        if not raw:
            for r in range(8):
                A(f'v_fma_f32 {v(ACC + r)}, -{v(T)}, {v(EX + r)}, {v(ACC + r)}')
    else:
        for r in range(8):
            A(f'v_add_f32 {v(ACC + r)}, {v(ACC + r)}, {v(XR + r)}')
    A('s_waitcnt lgkmcnt(0)')
    A('s_barrier')
    for h2 in range(2):
        A(f'ds_read_b128 {v(ACC + 8 + 4 * h2, 4)}, v8 offset:{h2 * 1024}')
    if mode == 'qkv':
        if FINE == 3:
            C.stamp()
        kv_wait(C, 1, endlab)
        if FINE == 3:
            C.stamp()
        att_kvdma(C, 0)
        kv_flagload(C)
    if raw:
        raw['cs']()
        for r in range(8):
            A(f'v_fma_f32 {v(ACC + r)}, -{v(T)}, {v(EX + r)}, {v(ACC + r)}')
    A('s_waitcnt lgkmcnt(0)')
    for r in range(8):
        A(f'v_add_f32 {v(ACC + r)}, {v(ACC + r)}, {v(ACC + 8 + r)}')
    if mode == 'qkv':
        for r in range(8):
            A(f'v_mul_f32 {v(ACC + r)}, {v(T + 2)}, {v(ACC + r)}')
        for m in range(4):
            A(f'v_cvt_pk_bf16_f32 {v(124 + m)}, {v(ACC + 2 * m)}, {v(ACC + 2 * m + 1)}')
        A('s_barrier')
    else:
        P = ACC + 8
        for m in range(4):
            A(f'v_cvt_pk_bf16_f32 {v(P + m)}, {v(ACC + 2 * m)}, {v(ACC + 2 * m + 1)}')
        A(f's_add_u32 s31, s19, {outbase}')
        C.vmem(f'buffer_store_dwordx4 {v(P, 4)}, v3, s[8:11], s31 offen{WT}', 'st')
        blk_stats(C, P, XR)
        A('s_lshr_b32 s31, s19, 2')
        A(f's_add_u32 s31, s31, {sxout}')
        A('v_lshlrev_b32 v4, 3, v1')
        A('s_mov_b32 exec_hi, 0')
        C.vmem(f'buffer_store_dwordx2 {v(XR, 2)}, v4, s[8:11], s31 offen{WT}', 'st')
        A('s_mov_b64 exec, -1')


def qkv4_wstep(C, st, n):
    pass


def qkv4_wrest(C):
    A = C.A
    l = C.lab('kw')
    A('s_lshl_b32 s30, s20, 12')
    A(f's_add_u32 s30, s30, {WQKVP + 16 * 32 * KB}')
    A('s_cmp_lg_u32 s3, 0')
    A(f's_cbranch_scc1 {l}')
    for k in range(4):
        A(f'buffer_load_dwordx4 {v(192 + 4 * k, 4)}, v3, s[8:11], s30 offen offset:{k * 1024}')
    A.label(l)


def att_kvdma(C, r):
    A = C.A
    A(f's_add_u32 s30, s39, {r * 16384}')
    A('s_and_b32 s30, s30, 0x1ffff')
    A(f's_add_u32 m0, s37, {r * 8 * KVT}')
    A('s_add_u32 s30, s30, s38')
    A('buffer_load_dwordx4 v3, s[8:11], s30 offen lds')
    A('buffer_load_dwordx4 v3, s[8:11], s30 offen offset:1024 lds')


def kv_flagload(C):
    A = C.A
    A('s_mov_b64 exec, 0xff')
    A('buffer_load_dword v2, v0, s[8:11], s33 offen sc1')
    A('s_mov_b64 exec, -1')


def kv_setup(C, kvf, kfl):
    A = C.A
    A(f's_mul_i32 s37, s20, {KVT}')
    A('s_lshl_b32 s38, s20, 11')
    A(f's_add_u32 s38, s38, {kvf}')
    A('s_lshr_b32 s30, s21, 1')
    A('s_lshl_b32 s39, s30, 14')
    A('v_add_u32 v0, s30, v1')
    A('v_and_b32 v0, 7, v0')
    A('v_lshlrev_b32 v0, 10, v0')
    A('s_lshl_b32 s33, s20, 7')
    A(f's_add_u32 s33, s33, {kfl}')
    kv_flagload(C)


def kv_wait(C, mask, endlab):
    A = C.A
    lp, lpd = C.lab('kp'), C.lab('kpd')
    A('s_mov_b32 s31, 0')
    A('s_mov_b64 exec, 0xff')
    A.label(lp)
    A('s_add_u32 s31, s31, 1')
    A('s_waitcnt vmcnt(0)')
    A('v_cmp_ne_u32 vcc, 0, v2')
    A(f's_and_b32 s30, vcc_lo, {mask}')
    A(f's_cmp_eq_u32 s30, {mask}')
    A(f's_cbranch_scc1 {lpd}')
    A(f's_sleep {KV_SLEEP}')
    A('buffer_load_dword v2, v0, s[8:11], s33 offen sc1')
    A(f's_cmp_lt_u32 s31, {1 << 21}')
    A(f's_cbranch_scc1 {lp}')
    A(f's_branch {endlab}')
    A.label(lpd)
    A('s_mov_b64 exec, -1')


def att_phase(C, kvf, kfl, endlab, stubs, fixed={}, pf0=None, pre_hook=None, loadq=True, early=False):
    A = C.A
    tg = C.tag
    Q, CN, S0, S1, O, P, KF, VF, VK, VV, T = 124, 8, 24, 40, 56, 72, 80, 88, 104, 105, 106
    VV1 = 111
    S = [S0, S1]
    A(f's_add_u32 s36, s19, {C.B["OF"]}')
    if loadq:
        A(f's_add_u32 s31, s19, {C.B["QF"]}')
        C.vmem(f'buffer_load_dwordx4 {v(Q, 4)}, v3, s[8:11], s31 offen', 'q')
        flag_b(C)
    def kvdma(r):
        att_kvdma(C, r)
    if pre_hook:
        pre_hook()
    A(f'v_mov_b32 {v(VK)}, v3')
    A(f'v_and_b32 {v(T)}, 15, v1')
    A(f'v_lshrrev_b32 {v(T + 1)}, 5, v1')
    A(f'v_lshl_add_u32 {v(T)}, {v(T + 1)}, 4, {v(T)}')
    A(f'v_lshlrev_b32 {v(T)}, 4, {v(T)}')
    A(f'v_add_u32 {v(VV)}, 1024, {v(T)}')
    A(f'v_add_u32 {v(VV1)}, 1536, {v(T)}')
    A(f'v_and_b32 {v(T + 1)}, 31, v1')
    A(f'v_cmp_eq_u32 vcc, 16, {v(T + 1)}')
    A(f'v_mov_b32 {v(T + 2)}, 2048')
    A('s_nop 0')
    A(f'v_cndmask_b32 {v(VV)}, {v(VV)}, {v(T + 2)}, vcc')
    A(f'v_cndmask_b32 {v(VV1)}, {v(VV1)}, {v(T + 2)}, vcc')
    A(f'v_cmp_lt_u32 vcc, 16, {v(T + 1)}')
    A(f'v_mov_b32 {v(T + 2)}, 2064')
    A('s_nop 0')
    A(f'v_cndmask_b32 {v(VV)}, {v(VV)}, {v(T + 2)}, vcc')
    A(f'v_cndmask_b32 {v(VV1)}, {v(VV1)}, {v(T + 2)}, vcc')
    for r in range(16):
        A(f'v_mov_b32 {v(O + r)}, 0')
    for m in range(4, 8):
        A(f'v_mov_b32 {v(P + m)}, 0')
    for m in range(4):
        A(f'v_mov_b32 {v(VF + 12 + m)}, 0')
        A(f'v_mov_b32 {v(P + m)}, 0x3f803f80')
    A(f'v_mul_u32_u24 {v(T)}, {KVT}, v1')
    lcw = C.lab('cw')
    A('s_cmp_lg_u32 s20, 7')
    A(f's_cbranch_scc1 {lcw}')
    A(f'ds_write_b128 {v(T)}, {v(P, 4)} offset:2048')
    A(f'ds_write_b128 {v(T)}, {v(P + 4, 4)} offset:2064')
    A.label(lcw)
    lnd = C.lab('nd')
    A('s_waitcnt vmcnt(0) lgkmcnt(0)')
    A('v_cmp_ne_u32 vcc, 0, v2')
    A('s_barrier')
    A('s_and_b32 s32, vcc_lo, 0xff')
    A('s_cmp_lg_u32 s32, 0xff')
    A(f's_cbranch_scc1 {lnd}')
    for r in range(1, 4):
        kvdma(r)
    A.label(lnd)
    C.vm = []
    C.stamp()

    def rdK(buf, t):
        A(f'ds_read_b128 {v(KF + buf * 4, 4)}, {v(VK)} offset:{t * KVT}')

    def rdV(buf, t):
        A(f'ds_read_b128 {v(VF + buf * 8, 4)}, {v(VV)} offset:{t * KVT}')
        A(f'ds_read_b128 {v(VF + buf * 8 + 4, 4)}, {v(VV1)} offset:{t * KVT}')

    rdK(0, 0)
    rdK(1, 1)
    rdV(0, 0)
    A('s_waitcnt lgkmcnt(3)')
    A(f'v_mfma_f32_32x32x16_bf16 {v(S0, 16)}, {v(KF, 4)}, {v(Q, 4)}, 0')
    A('s_nop 11')
    A(f'v_max3_f32 {v(T)}, {v(S0)}, {v(S0 + 1)}, {v(S0 + 2)}')
    for r in range(3, 15, 2):
        A(f'v_max3_f32 {v(T)}, {v(T)}, {v(S0 + r)}, {v(S0 + r + 1)}')
    A(f'v_max_f32 {v(T)}, {v(T)}, {v(S0 + 15)}')
    A(f'v_mov_b32 {v(T + 1)}, {v(T)}')
    A('s_nop 1')
    A(f'v_permlane32_swap_b32 {v(T)}, {v(T + 1)}')
    A(f'v_max_f32 {v(T)}, {v(T)}, {v(T + 1)}')
    for r in range(16):
        A(f'v_sub_f32 {v(CN + r)}, 0, {v(T)}')
    for r in range(16):
        A(f'v_sub_f32 {v(S0 + r)}, {v(S0 + r)}, {v(T)}')
    A('s_setprio 3')
    C.stamp()
    def tile(t, off, extra=None):
        cur, nxt = t & 1, (t + 1) & 1
        Sc, Sn = S[cur], S[nxt]
        if not ONEWAIT:
            A('s_waitcnt lgkmcnt(2)')
        A(f'v_mfma_f32_32x32x16_bf16 {v(Sn, 16)}, {v(KF + nxt * 4, 4)}, {v(Q, 4)}, {v(CN, 16)}')
        rdK(cur, off + 2)
        for r in range(6):
            A(f'v_exp_f32 {v(Sc + r)}, {v(Sc + r)}')
        A(f'v_mfma_f32_32x32x16_bf16 {v(O, 16)}, {v(VF + nxt * 8 + 4, 4)}, {v(P + 4, 4)}, {v(O, 16)}')
        if extra:
            extra()
        for r in range(6, 8):
            A(f'v_exp_f32 {v(Sc + r)}, {v(Sc + r)}')
        for m in range(4):
            A(f'v_cvt_pk_bf16_f32 {v(P + m)}, {v(Sc + 2 * m)}, {v(Sc + 2 * m + 1)}')
        A(f'v_exp_f32 {v(Sc + 8)}, {v(Sc + 8)}')
        A(f'v_exp_f32 {v(Sc + 9)}, {v(Sc + 9)}')
        A('s_waitcnt lgkmcnt(0)' if ONEWAIT else 's_waitcnt lgkmcnt(1)')
        A(f'v_mfma_f32_32x32x16_bf16 {v(O, 16)}, {v(VF + cur * 8, 4)}, {v(P, 4)}, {v(O, 16)}')
        rdV(nxt, off + 1)
        for r in range(10, 16):
            A(f'v_exp_f32 {v(Sc + r)}, {v(Sc + r)}')
        for m in range(4, 8):
            A(f'v_cvt_pk_bf16_f32 {v(P + m)}, {v(Sc + 2 * m)}, {v(Sc + 2 * m + 1)}')

    def bump(n):
        for rg in (VK, VV, VV1):
            A(f'v_add_u32 {v(rg)}, {n * KVT}, {v(rg)}')
    if ONEWAIT:
        A('s_waitcnt lgkmcnt(0)')
    queue = list(stubs)
    nq = len(queue)
    tpf0 = pf0 if pf0 else TB2
    ntl = 64 - TPFEND - tpf0
    prio = {TP2: 2, TP1: 1, TP0: 0}
    dq = list(range(4, 8))
    for t in range(64):
        if t == TCHK:
            ld = C.lab('dn')
            A('s_cmp_eq_u32 s32, 0xff')
            A(f's_cbranch_scc1 {ld}')
            kv_flagload(C)
            kv_wait(C, 0xff, endlab)
            for r in range(1, 4):
                kvdma(r)
            A.label(ld)
        if t == 6 and TB2 != 6:
            assert not dq
            A('s_waitcnt vmcnt(12)')
            A('s_barrier')
        if t == TB2:
            assert not dq
            A('s_waitcnt vmcnt(0)')
            A('s_barrier')
        if t in prio:
            A(f's_setprio {prio[t]}')
        if t in fixed:
            fixed[t]()
        fs = []
        if t >= TCHK:
            for _ in range(DPT):
                if dq:
                    fs.append(lambda r=dq.pop(0): kvdma(r))
        if t >= tpf0 and queue:
            k = t - tpf0
            n = (nq * (k + 1)) // ntl - (nq * k) // ntl
            fs += [queue.pop(0) for _ in range(min(n, len(queue)))]
        tile(t, t % 24 if t < 48 else t - 48, lambda fs=fs: [f() for f in fs])
        if t in (23, 47):
            bump(24)
        if t == 63:
            bump(16)
    assert not queue
    A(f'v_mfma_f32_32x32x16_bf16 {v(O, 16)}, {v(VF + 8 + 4, 4)}, {v(P + 4, 4)}, {v(O, 16)}')
    A('s_mov_b32 s39, 0')
    C.stamp()
    A('s_waitcnt lgkmcnt(0)')
    A('s_nop 10')
    A.label(f'{tg}_fin')
    A(f'v_mov_b32 {v(T)}, {v(O + 8)}')
    A(f'v_mov_b32 {v(T + 1)}, {v(O + 8)}')
    A(f'v_mul_f32 {v(T + 2)}, 0, {v(O)}')
    A(f'v_fma_f32 {v(T + 2)}, {v(O + 1)}, 0, {v(T + 2)}')
    A(f'v_permlane32_swap_b32 {v(T)}, {v(T + 1)}')
    for r in range(2, 8):
        A(f'v_fma_f32 {v(T + 2)}, {v(O + r)}, 0, {v(T + 2)}')
    A(f'v_add_f32 {v(T + 2)}, {v(T + 2)}, {v(T)}')
    A(f'v_mov_b32 {v(T + 3)}, {f32(2.0 ** 30)}')
    A(f'v_cmp_nle_f32 vcc, {v(T + 2)}, {v(T + 3)}')
    A(f'v_rcp_f32 {v(T)}, {v(T)}')
    A('s_cmp_eq_u32 s39, 99')
    A(f's_cbranch_scc1 {tg}_store')
    A(f's_cbranch_vccnz {tg}_slow')
    A.label(f'{tg}_store')
    for r in range(8):
        A(f'v_mul_f32 {v(O + r)}, {v(T)}, {v(O + r)}')
    for m in range(4):
        A(f'v_cvt_pk_bf16_f32 {v(P + m)}, {v(O + 2 * m)}, {v(O + 2 * m + 1)}')
    C.vmem(f'buffer_store_dwordx4 {v(P, 4)}, v3, s[8:11], s36 offen{WT}', 'st')

    def tail(with_body):
        A.label(f'{tg}_slow')
        A(f'v_subrev_u32 {v(VK)}, {64 * KVT}, {v(VK)}')
        A(f'v_subrev_u32 {v(VV)}, {64 * KVT}, {v(VV)}')
        A(f'v_subrev_u32 {v(VV1)}, {64 * KVT}, {v(VV1)}')
        for r in range(16):
            A(f'v_mov_b32 {v(O + r)}, 0')
        M = T + 4
        A(f'v_sub_f32 {v(M)}, 0, {v(CN)}')
        A.label(f'{tg}_sloop')
        rdK(0, 0)
        rdV(0, 0)
        A('s_waitcnt lgkmcnt(0)')
        A(f'v_mfma_f32_32x32x16_bf16 {v(S0, 16)}, {v(KF, 4)}, {v(Q, 4)}, 0')
        A('s_nop 11')
        A(f'v_max3_f32 {v(T)}, {v(S0)}, {v(S0 + 1)}, {v(S0 + 2)}')
        for r in range(3, 15, 2):
            A(f'v_max3_f32 {v(T)}, {v(T)}, {v(S0 + r)}, {v(S0 + r + 1)}')
        A(f'v_max3_f32 {v(T)}, {v(T)}, {v(S0 + 15)}, {v(M)}')
        A(f'v_mov_b32 {v(T + 1)}, {v(T)}')
        A('s_nop 1')
        A(f'v_permlane32_swap_b32 {v(T)}, {v(T + 1)}')
        A(f'v_max_f32 {v(T)}, {v(T)}, {v(T + 1)}')
        A(f'v_sub_f32 {v(T + 1)}, {v(M)}, {v(T)}')
        A(f'v_exp_f32 {v(T + 1)}, {v(T + 1)}')
        A(f'v_mov_b32 {v(M)}, {v(T)}')
        for r in range(16):
            A(f'v_sub_f32 {v(S0 + r)}, {v(S0 + r)}, {v(T)}')
        for r in range(16):
            A(f'v_exp_f32 {v(S0 + r)}, {v(S0 + r)}')
        for r in range(16):
            A(f'v_mul_f32 {v(O + r)}, {v(T + 1)}, {v(O + r)}')
        for m in range(8):
            A(f'v_cvt_pk_bf16_f32 {v(P + m)}, {v(S0 + 2 * m)}, {v(S0 + 2 * m + 1)}')
        A('s_nop 1')
        A(f'v_mfma_f32_32x32x16_bf16 {v(O, 16)}, {v(VF, 4)}, {v(P, 4)}, {v(O, 16)}')
        A(f'v_mfma_f32_32x32x16_bf16 {v(O, 16)}, {v(VF + 4, 4)}, {v(P + 4, 4)}, {v(O, 16)}')
        A(f'v_add_u32 {v(VK)}, {KVT}, {v(VK)}')
        A(f'v_add_u32 {v(VV)}, {KVT}, {v(VV)}')
        A(f'v_add_u32 {v(VV1)}, {KVT}, {v(VV1)}')
        A('s_nop 11')
        A('s_add_u32 s39, s39, 1')
        A('s_cmp_lt_u32 s39, 64')
        A(f's_cbranch_scc1 {tg}_sloop')
        A('s_mov_b32 s39, 99')
        A(f's_branch {tg}_fin')
    return tail


V_WGU = 112


def gu_waddr(C):
    A = C.A
    A('s_mul_i32 s30, s22, 7')
    A('s_min_u32 s31, s20, 6')
    A('s_add_u32 s40, s30, s31')
    A('s_lshl_b32 s30, s40, 15')
    A(f's_add_u32 s30, s30, {WGUP}')
    A(f'v_add_u32 {v(V_WGU)}, s30, v3')


def gu_wload(C, ks):
    so, im = soff(ks)
    C.vmem(f'buffer_load_dwordx4 {v(128 + 4 * ks, 4)}, {v(V_WGU)}, s[8:11], {so} offen offset:{im}', 'wg')


def gu_pre(C):
    A = C.A
    CS = 112
    A('v_mov_b32 v15, v113')
    A('v_mov_b32 v9, v114')
    A(f'v_mov_b32 v14, {v(V_WGU)}')
    A('s_lshl_b32 s30, s21, 2')
    A('s_add_u32 s30, s30, s25')
    A('s_lshl_b32 s30, s30, 15')
    A('s_lshl_b32 s31, s26, 11')
    A('s_add_u32 s30, s30, s31')
    A(f's_add_u32 s30, s30, {C.B["XB"]}')
    A('v_add_u32 v13, s30, v3')
    A('s_lshl_b32 s48, s25, 15')
    A('s_add_u32 s48, s48, s31')
    A('v_add_u32 v7, 0x10000, v3')
    A('v_lshrrev_b32 v11, 5, v1')
    A('v_lshlrev_b32 v11, 4, v11')
    A('s_min_u32 s30, s20, 6')
    A('s_lshl_b32 s30, s30, 7')
    A(f's_add_u32 s30, s30, {132 * KB}')
    A('v_add_u32 v10, s30, v11')
    A('v_and_b32 v12, 31, v1')
    A('v_lshlrev_b32 v12, 3, v12')
    A('v_lshl_add_u32 v12, v11, 8, v12')
    A('s_lshl_b32 s30, s21, 15')
    A(f's_add_u32 s30, s30, {C.B["SXB"]}')
    A('v_add_u32 v12, s30, v12')
    A(f'v_add_u32 v8, {128 * KB}, v3')


def gu_main(C, after_store=None):
    A = C.A
    ACC, XF, CS = 16, 80, 112
    STR = [4, 10, 240, 244]

    def dma(c):
        A(f's_add_u32 m0, s48, {c * 4096}')
        so = '0' if c == 0 else s(40 + c)
        A('s_nop 0')
        for k in range(2):
            C.vmem(f'buffer_load_dwordx4 v13, s[8:11], {so} offen offset:{k * 1024} lds', f'x{c}')
    dma(0)
    dma(1)

    def rd(ks):
        buf = ks & 1
        for i in range(4):
            base = 'v3' if i < 2 else 'v7'
            A(f'ds_read_b128 {v(XF + buf * 16 + i * 4, 4)}, {base} offset:{(i & 1) * 32768 + ks * 1024}')

    def stats_load(i):
        for e in range(16):
            C.vmem(f'buffer_load_dwordx2 {v(ACC + (i & 1) * 32 + 2 * e, 2)}, v12, s[8:11], {"0" if i == 0 else s(40 + 2 * i)} offen offset:{e * 256}', f's{i}')

    def stats_sum(i):
        b = ACC + (i & 1) * 32
        C.wait(f's{i}')
        for stp in (16, 8, 4, 2):
            for e in range(stp):
                A(f'v_add_f32 {v(b + e)}, {v(b + e)}, {v(b + e + stp)}')
        A(f'v_mov_b32 {v(b + 2)}, {v(b)}')
        A(f'v_mov_b32 {v(b + 3)}, {v(b + 1)}')
        A('s_nop 1')
        A(f'v_permlane32_swap_b32 {v(b)}, {v(b + 2)}')
        A(f'v_permlane32_swap_b32 {v(b + 1)}, {v(b + 3)}')
        A(f'v_add_f32 {v(b)}, {v(b)}, {v(b + 2)}')
        A(f'v_add_f32 {v(b + 1)}, {v(b + 1)}, {v(b + 3)}')
        A(f'v_mul_f32 {v(b)}, {f32(-1.0 / 512)}, {v(b)}')
        A(f'v_mul_f32 {v(b + 1)}, {f32(1.0 / 512)}, {v(b + 1)}')
        A(f'v_fma_f32 {v(b + 1)}, -{v(b)}, {v(b)}, {v(b + 1)}')
        A(f'v_max_f32 {v(b + 1)}, 0, {v(b + 1)}')
        A(f'v_add_f32 {v(b + 1)}, {f32(1e-5)}, {v(b + 1)}')
        A(f'v_rcp_f32 {v(b + 2)}, {v(b + 1)}')
        A(f'v_mov_b32 {v(b + 1)}, {v(b)}')
        A(f'v_mov_b32 {v(b + 3)}, {v(b + 2)}')
        A(f'ds_write_b128 v8, {v(b, 4)} offset:{i * 1024}')
        A('s_waitcnt lgkmcnt(0)')

    def loop(idle):
        C.wait('x0')
        A('s_barrier')
        C.stamp()
        if not idle:
            rd(0)
        for ks in range(32):
            if ks + 1 < 32:
                if (ks + 1) in GU_BARS:
                    C.wait(f'x{GU_BARS[ks + 1]}')
                    A('s_barrier')
                if not idle:
                    rd(ks + 1)
                    if ks == 28:
                        for g in range(4):
                            A(f'ds_read_b128 {v(CS + g * 4, 4)}, v10 offset:{g * 32}')
                        A('s_waitcnt lgkmcnt(8)')
                    elif ks == 30:
                        for i in range(4):
                            A(f'ds_read_b128 {v(STR[i], 4)}, v8 offset:{i * 1024}')
                        A('s_waitcnt lgkmcnt(8)')
                    else:
                        A('s_waitcnt lgkmcnt(4)')
            elif not idle:
                A('s_waitcnt lgkmcnt(0)')
            buf = ks & 1
            todo = []
            if ks == 10:
                C.flagb = True
                flag_b(C)
            if ks < 6:
                todo.append(lambda: dma(ks + 2))
            if ks == 16 + WO_TAIL and not idle:
                C.wait('wg')
            if 6 <= ks < 6 + 16 - WO_TAIL and not idle:
                k2 = 16 + WO_TAIL + ks - 6
                so, im = soff(k2)
                todo.append(lambda k2=k2, so=so, im=im: C.vmem(f'buffer_load_dwordx4 {v(128 + 4 * k2, 4)}, v14, s[8:11], {so} offen offset:{im}', 'wg'))
            if ks >= GU_WD0:
                nleft = 28 - len(wdone)
                for st in [st for st in range(28) if st < ks and st not in wdone][:(2 if nleft > 31 - ks else 1)]:
                    todo.append(lambda st=st: g3_wload(C, (15, 9), st, 128))
                    wdone.add(st)
            for i in range(4):
                if not idle and not (GU_TAIL and (ks == 31 or (ks == 30 and i >= 2))):
                    c = '0' if ks == 0 else v(ACC + i * 16, 16)
                    if GU16:
                        for t2 in range(2):
                            aa = ACC + i * 16 + ((ks & 1) * 2 + t2) * 4
                            A(f'v_mfma_f32_16x16x32_bf16 {v(aa, 4)}, {v(128 + 4 * (ks ^ t2 if ks > 1 else ks), 4)}, {v(XF + buf * 16 + i * 4, 4)}, {"0" if ks < 2 else v(aa, 4)}')
                    else:
                        A(f'v_mfma_f32_32x32x16_bf16 {v(ACC + i * 16, 16)}, {v(128 + 4 * ks, 4)}, {v(XF + buf * 16 + i * 4, 4)}, {c}')
                if i < 3 and todo:
                    f_ = todo.pop(0)
                    if not (GU_NOW and ks >= 6):
                        f_()
            if idle:
                if ks == 6:
                    stats_load(0)
                    stats_load(1)
                if ks == 8:
                    stats_sum(0)
                    stats_load(2)
                    stats_sum(1)
                    stats_load(3)
                if ks == 12:
                    stats_sum(2)
                    stats_sum(3)
                    A(f's_mul_i32 s30, s22, {7 * 128}')
                    A(f's_add_u32 s30, s30, {CSP}')
                    for kp in range(8):
                        C.vmem(f'buffer_load_dwordx4 {v(ACC + 4 * kp, 4)}, v3, s[8:11], s30 offen', 'cp')
                        if kp < 7:
                            A(f's_add_u32 s30, s30, {3584 * 4}')
                if ks == 16:
                    C.wait('cp')
                    for stp in (16, 8, 4):
                        for e in range(stp):
                            A(f'v_add_f32 {v(ACC + e)}, {v(ACC + e)}, {v(ACC + e + stp)}')
                    A(f'v_add_u32 v10, {132 * KB}, v3')
                    A(f'ds_write_b128 v10, {v(ACC, 4)}')
                    A('s_waitcnt lgkmcnt(0)')
        assert len(wdone) == 28
        C.stamp()
        if idle:
            if after_store:
                after_store()
            return
        P = XF

        def epi(i):
            acc = ACC + i * 16
            for r in range(0, 16, 2):
                A(f'v_pk_fma_f32 {v(acc + r, 2)}, {v(STR[i], 2)}, {v(CS + r, 2)}, {v(acc + r, 2)}')
            for r in range(0, 8, 2):
                A(f'v_pk_mul_f32 {v(acc + r, 2)}, {v(acc + r, 2)}, {v(acc + 8 + r, 2)}')
            for r in range(0, 8, 2):
                A(f'v_pk_mul_f32 {v(acc + r, 2)}, {v(acc + r, 2)}, {v(STR[i] + 2, 2)}')
            pp = acc + 8
            for m in range(4):
                A(f'v_cvt_pk_bf16_f32 {v(pp + m)}, {v(acc + 2 * m)}, {v(acc + 2 * m + 1)}')
            C.vmem(f'buffer_store_dwordx4 {v(pp, 4)}, v3, s[8:11], s30 offen{WT}', 'st')
            if i < 3:
                A(f's_add_u32 s30, s30, {112 * KB}')

        def mm(i, ks):
            A(f'v_mfma_f32_32x32x16_bf16 {v(ACC + i * 16, 16)}, {v(128 + 4 * ks, 4)}, {v(XF + (ks & 1) * 16 + i * 4, 4)}, {v(ACC + i * 16, 16)}')
        A(f's_mul_i32 s30, s21, {4 * 112}')
        A('s_add_u32 s30, s30, s40')
        A('s_lshl_b32 s30, s30, 10')
        A(f's_add_u32 s30, s30, {C.B["HF"]}')
        if GU_TAIL:
            A('s_waitcnt lgkmcnt(0)')
            mm(0, 31)
            mm(2, 30)
            mm(1, 31)
            mm(3, 30)
            A('s_nop 8')
            epi(0)
            mm(2, 31)
            mm(3, 31)
            epi(1)
            epi(2)
            epi(3)
        else:
            A('s_nop 4')
            for i in range(4):
                epi(i)
        if after_store:
            after_store()

    ls, le = C.lab('gs'), C.lab('ge')
    A('s_cmp_eq_u32 s20, 7')
    A(f's_cbranch_scc1 {ls}')
    save, ns = list(C.vm), C.nstamp
    wdone = set()
    loop(False)
    A(f's_branch {le}')
    A.label(ls)
    C.vm, C.nstamp = list(save), ns
    wdone = set()
    loop(True)
    A.label(le)
    C.vm = ['st']


def swap_add(A, ra, rb):
    A(f'v_permlane32_swap_b32 {v(ra)}, {v(rb)}')
    A(f'v_add_f32 {v(ra)}, {v(ra)}, {v(rb)}')


def pre_part(C, end):
    A = C.A
    A('s_cmp_ge_u32 s2, 256')
    A(f's_cbranch_scc1 {end}')
    A('s_load_dwordx2 s[12:13], s[0:1], 0')
    A('s_load_dwordx2 s[16:17], s[0:1], 8')
    A('s_load_dwordx2 s[52:53], s[0:1], 16')
    A('s_load_dwordx2 s[56:57], s[0:1], 24')
    A('s_load_dwordx2 s[4:5], s[0:1], 80')
    for d, sz in ((12, 2048 * 1024), (16, 512 * 1024), (52, 512 * 32), (56, 512 * 32), (4, 256)):
        A(f's_mov_b32 {s(d + 2)}, {sz}')
        A(f's_mov_b32 {s(d + 3)}, 0x20000')
    setup(C, False, end)
    C.stamp()
    if TLBW:
        A('s_lshl_b32 s30, s20, 3')
        A(f's_add_u32 s30, s30, 32')
        A('s_cmp_eq_u32 s20, 1')
        A('s_cselect_b32 s30, 8, s30')
        A('s_load_dwordx2 s[32:33], s[0:1], s30')
        A('s_mov_b32 s31, 8192')
        A('s_cmp_ge_u32 s20, 2')
        A('s_cselect_b32 s31, 28672, s31')
        A('s_cmp_eq_u32 s20, 6')
        A('s_cselect_b32 s31, 4, s31')
        A('s_cmp_eq_u32 s20, 7')
        A(f's_cselect_b32 s31, {TLBW}, s31')
        A('v_mul_lo_u32 v4, v1, s31')
        A('s_waitcnt lgkmcnt(0)')
        A('global_load_dword v127, v4, s[32:33]')
    A('s_add_u32 s30, s21, 1')
    A('s_and_b32 s30, s30, 3')
    A('s_lshl_b32 s30, s30, 2')
    A('s_xor_b32 s30, s30, s22')
    A('s_add_u32 s30, s30, s20')
    A('s_cmp_lg_u32 s30, 0')
    A('s_cbranch_scc1 pr_z0')
    for r in range(4):
        A(f'v_mov_b32 {v(8 + r)}, 0')
    A('v_lshrrev_b32 v4, 4, v1')
    A('v_and_b32 v5, 15, v1')
    A('v_lshlrev_b32 v5, 4, v5')
    A('v_lshl_add_u32 v4, v4, 12, v5')
    A('s_lshl_b32 s30, s21, 8')
    A(f's_add_u32 s30, s30, {FLG}')
    for k in range(3):
        A('buffer_store_dwordx4 v[8:11], v4, s[8:11], s30 offen sc0 sc1')
        A('s_add_u32 s30, s30, 16384')
    A('v_lshlrev_b32 v4, 7, v1')
    A(f's_mul_i32 s30, s21, {64 * 128}')
    A(f's_add_u32 s30, s30, {PFL}')
    A('buffer_store_dwordx4 v[8:11], v4, s[8:11], s30 offen sc0 sc1')
    A('v_mov_b32 v5, 1')
    A('s_mov_b64 exec, 1')
    A('s_waitcnt vmcnt(0)')
    A('buffer_atomic_add v5, v8, s[4:7], 0 offen sc1')
    A('s_mov_b64 exec, -1')
    A('s_nop 1')
    A.label('pr_z0')
    KST, KW, KR, T, EX, XR = 240, 192, 224, 108, 96, 32
    WST, CSQ, CSKV = 96 * KB, ST4 + 9 * KB, ST4 + 10 * KB
    A('s_mov_b64 s[36:37], s[16:17]')
    A(f's_mov_b32 s38, {512 * 1024}')
    A('s_mov_b32 s39, 0x20000')
    g4_ids(C)
    A('s_lshl_b32 s30, s20, 11')
    A('s_cmp_lg_u32 s3, 0')
    A('s_cbranch_scc1 pr_k0')
    for k in range(4):
        A(f'buffer_load_dwordx4 {v(KST + 4 * k, 4)}, v3, {"s[52:55]" if k < 2 else "s[56:59]"}, s30 offen offset:{(k & 1) * 1024}')
    A.label('pr_k0')
    A('v_lshrrev_b32 v4, 3, v1')
    A('v_and_b32 v5, 7, v1')
    A('v_lshrrev_b32 v6, 4, v1')
    A('v_xor_b32 v6, v6, v5')
    A('v_lshlrev_b32 v7, 10, v4')
    A('v_lshl_add_u32 v8, v6, 4, v7')
    A('v_xor_b32 v9, 64, v8')
    A('s_lshl_b32 s30, s18, 15')
    A('s_lshl_b32 s31, s20, 7')
    A('s_add_u32 s30, s30, s31')
    A('s_lshl_b32 s32, s20, 12')
    for i in range(4):
        A(f's_add_u32 m0, s32, {KVR4 + i * 1024}')
        A('s_nop 0')
        C.vmem(f'buffer_load_dwordx4 {v(8 + (i & 1))}, s[12:15], s30 offen lds', 'x')
        A('s_add_u32 s30, s30, 8192')
    A('v_lshrrev_b32 v4, 2, v1')
    A('v_and_b32 v5, 3, v1')
    A('v_lshlrev_b32 v10, 10, v4')
    A('v_lshl_add_u32 v10, v5, 4, v10')
    A('s_lshl_b32 s31, s26, 18')
    A('s_bfe_u32 s30, s19, 0x4000b')
    A('s_lshl_b32 s30, s30, 6')
    A('s_add_u32 s31, s31, s30')
    A('s_lshl_b32 s51, s20, 13')
    A(f's_add_u32 s51, s51, {WST}')
    A('s_mov_b32 s50, s31')
    A('v_mov_b32 v88, v10')
    A('s_and_b32 s33, s22, 3')
    A(f's_lshl_b32 s33, s33, 16' if WROT else 's_mov_b32 s33, 0')

    def wloads():
        for i in range(16):
            A(f's_xor_b32 s30, s33, {G4_ORD[i] * 16384}')
            A('s_add_u32 s30, s30, s50')
            if i < 8:
                A(f's_add_u32 m0, s51, {i * 1024}')
                A('s_nop 0')
                A('buffer_load_dwordx4 v88, s[36:39], s30 offen lds')
            else:
                A(f'buffer_load_dwordx4 {v(128 + 4 * i, 4)}, v88, s[36:39], s30 offen')
    A('s_cmp_eq_u32 s3, 0')
    A('s_cbranch_scc1 pr_w1')
    A('s_barrier')
    wloads()
    A('s_waitcnt vmcnt(16)')
    A.label('pr_w1')
    C.stamp()
    A('v_and_b32 v64, 31, v1')
    A('v_lshrrev_b32 v65, 5, v1')
    A('v_lshlrev_b32 v66, 7, v64')
    A('v_lshl_add_u32 v66, v65, 3, v66')
    A('v_bfe_u32 v67, v1, 1, 3')
    A('v_lshl_add_u32 v66, v67, 4, v66')
    A(f's_add_u32 s30, s32, {KVR4}')
    A('v_add_u32 v66, s30, v66')
    A('v_bfe_u32 v67, v1, 2, 2')
    A('v_lshl_add_u32 v67, v65, 2, v67')
    A('v_lshlrev_b32 v68, 3, v5')
    A('v_bfe_u32 v69, v1, 4, 1')
    A('v_lshl_add_u32 v70, v67, 5, v68')
    A('v_lshl_add_u32 v70, v69, 11, v70')
    A('v_add_u32 v70, s30, v70')
    A('v_lshl_add_u32 v71, v67, 6, v68')
    A('v_lshl_add_u32 v71, v69, 5, v71')
    A('s_lshl_b32 s30, s26, 5')
    A('v_xor_b32 v71, s30, v71')
    A('v_add_u32 v71, s51, v71')
    A('v_add_u32 v72, s51, v3')
    A('v_mov_b32 v73, 0x3f803f80')
    A('v_lshlrev_b32 v74, 2, v64')
    A('s_lshl_b32 s30, s20, 7')
    A(f's_add_u32 s31, s30, {CSKV}')
    A('v_add_u32 v75, s31, v74')
    A('s_lshl_b32 s31, s26, 6')
    A('v_xor_b32 v74, s31, v74')
    A(f's_add_u32 s30, s30, {CSQ}')
    A('v_add_u32 v74, s30, v74')
    A('v_lshlrev_b32 v76, 4, v65')
    A('s_add_u32 s30, s30, s31')
    A('v_add_u32 v77, s30, v76')
    A('v_xor_b32 v78, 512, v77')
    A('s_lshl_b32 s30, s25, 5')
    A(f's_add_u32 s30, s30, {CSKV}')
    A('v_add_u32 v79, s30, v76')
    g4_pre(C, 'qkv', XA, resbase=0, raw=True)
    A('s_lshr_b32 s30, s33, 4')
    A('s_lshl_b32 s31, s20, 12')
    A('s_xor_b32 s30, s30, s31')
    A(f's_add_u32 s30, s30, {XF0}')
    A('v_add_u32 v12, s30, v3')
    A('v_mov_b32 v0, 0')
    A('v_mov_b32 v4, 1')
    for ch in range(8):
        A(f'v_xor_b32 {v(80 + ch)}, {ch << 4}, v66')

    def front():
        A('s_cmp_lg_u32 s3, 0')
        A('s_cbranch_scc1 pr_w2')
        A('s_waitcnt vmcnt(0)')
        A.label('pr_w2')
        C.vm = []
        C.stamp()
        for ch in range(8):
            A(f'ds_read_b64 {v(KR + 2 * ch, 2)}, {v(80 + ch)}')
        A('s_waitcnt lgkmcnt(0)')
        for k in range(4):
            A(f'ds_write_b128 v12, {v(KR + 4 * k, 4)} offset:{k * 1024}')
        for r in range(8):
            for e in range(2):
                x = v(KR + 2 * r + e)
                A(f'v_dot2_f32_bf16 {v(T + 2 * e)}, {x}, v73, {"0" if r == 0 else v(T + 2 * e)}')
                A(f'v_dot2_f32_bf16 {v(T + 2 * e + 1)}, {x}, {x}, {"0" if r == 0 else v(T + 2 * e + 1)}')
        A('s_nop 0')

    def kvw():
        A('buffer_load_dword v89, v0, s[4:7], 0 offen sc1')
        for k in range(4):
            A(f'ds_write_b128 v14, {v(KST + 4 * k, 4)} offset:{k * 1024}')
        A('s_waitcnt lgkmcnt(4)')
        for st in range(4):
            for h2 in range(2):
                A(f'ds_read_b64_tr_b16 {v(KW + 4 * st + 2 * h2, 2)}, v70 offset:{st * 512 + h2 * 256}')
        A('s_waitcnt lgkmcnt(0)')
        for r in range(8):
            for e in range(2):
                A(f'v_dot2_f32_bf16 {v(80 + e)}, {v(KW + 2 * r + e)}, v73, {"0" if r == 0 else v(80 + e)}')
        A('s_nop 2')
        A('v_add_f32 v80, v80, v81')
        A('v_mov_b32 v81, v80')
        A('s_nop 1')
        swap_add(A, 80, 81)
        A('ds_write_b32 v75, v80')

    def kvcs0():
        for ww in range(8):
            A(f'ds_read_b128 {v(XR + 4 * ww, 4)}, v79 offset:{ww * 128}')

    def kvcs1():
        A('s_waitcnt lgkmcnt(0)')
        for stp in (16, 8):
            for r in range(stp):
                A(f'v_add_f32 {v(XR + r)}, {v(XR + r)}, {v(XR + stp + r)}')
        for r in range(4):
            A(f'v_add_f32 {v(EX + 8 + r)}, {v(XR + r)}, {v(XR + 4 + r)}')

    def zchk():
        lz, lzd = C.lab('z'), C.lab('zd')
        A('s_mov_b32 s31, 0')
        A('s_mov_b64 exec, 1')
        A.label(lz)
        A('buffer_load_dword v2, v0, s[4:7], 0 offen sc1')
        A('s_waitcnt vmcnt(0)')
        A('v_cmp_le_u32 vcc, 16, v2')
        A('s_add_u32 s31, s31, 1')
        A('s_cmp_eq_u64 vcc, 1')
        A(f's_cbranch_scc1 {lzd}')
        A('s_sleep 8')
        A(f's_cmp_lt_u32 s31, {1 << 20}')
        A(f's_cbranch_scc1 {lz}')
        A(f's_branch {end}')
        A.label(lzd)
        A('s_mov_b64 exec, -1')

    def zchk2():
        lzz = C.lab('zz')
        A('s_waitcnt vmcnt(0)')
        A('v_cmp_le_u32 vcc, 16, v89')
        A('s_cmp_eq_u64 vcc, -1')
        A(f's_cbranch_scc1 {lzz}')
        zchk()
        A.label(lzz)

    def wprep():
        A('s_cmp_lg_u32 s3, 0')
        A('s_cbranch_scc1 pr_w3')
        A('s_cmp_eq_u32 s35, 0')
        A('s_cbranch_scc1 pr_w3')
        wloads()
        A.label('pr_w3')
        zchk()
        C.vm = []
        C.stamp()


    def tr(i):
        for h2 in range(2):
            A(f'ds_read_b64_tr_b16 {v(128 + 4 * i + 2 * h2, 2)}, v71 offset:{(i % 8) * 1024 + h2 * 512}')

    def csdot(r0, r1):
        for r in range(r0, r1):
            for e in range(4):
                A(f'v_dot2_f32_bf16 {v(80 + e)}, {v(128 + 4 * r + e)}, v73, {"0" if r == 0 else v(80 + e)}')

    def loop(rd, mf):
        for i in range(8):
            tr(i)
            if i == 5:
                A('s_waitcnt lgkmcnt(6)')
        ln_stats(A, T)
        A('s_waitcnt lgkmcnt(0)')
        for i in range(4):
            rd(i)
        for i in range(8):
            A(f'ds_write_b128 v72, {v(160 + 4 * i, 4)} offset:{i * 1024}')
        csdot(0, 8)
        A('s_waitcnt lgkmcnt(0)')
        for i in range(4, 8):
            rd(i)
        for i in range(8):
            if i == 4:
                A('s_waitcnt lgkmcnt(8)')
            mf(i)
            if i < 4:
                tr(8 + i)
            else:
                A('s_waitcnt lgkmcnt(9)')
                tr(8 + i)
                rd(4 + i)
        for i in range(8, 16):
            if i == 8:
                A('s_waitcnt lgkmcnt(9)')
            elif i < 12:
                A(f's_waitcnt lgkmcnt({9 - 2 * (i - 8)})')
            else:
                A(f's_waitcnt lgkmcnt({15 - i})')
            mf(i)
            if i < 12:
                rd(4 + i)

    def cs0():
        csdot(8, 16)
        A('s_nop 2')
        A('v_add_f32 v80, v80, v81')
        A('v_add_f32 v82, v82, v83')
        A('v_add_f32 v80, v80, v82')
        A('v_mov_b32 v81, v80')
        A('s_nop 1')
        swap_add(A, 80, 81)
        A('ds_write_b32 v74, v80')

    def cs():
        for h2 in range(2):
            A(f'ds_read_b128 {v(EX + 4 * h2, 4)}, v77 offset:{h2 * 32}')
            A(f'ds_read_b128 {v(XR + 4 * h2, 4)}, v78 offset:{h2 * 32}')
        A('s_waitcnt lgkmcnt(0)')
        for r in range(8):
            A(f'v_add_f32 {v(EX + r)}, {v(EX + r)}, {v(XR + r)}')
        for r in range(12):
            A(f'v_mov_b32 {v(208 + r)}, {v(EX + r)}')

    g4_main(C, 'qkv', kvf=KVF, kfl=KFL, raw=dict(front=front, kvw=kvw, kvcs0=kvcs0, kvcs1=kvcs1, zchk=zchk, zchk2=zchk2, wloads=wloads, wprep=wprep, cs=cs, cs0=cs0, loop=loop), endlab=end)
    C.stamp()


def wq_store(C):
    A = C.A
    A('s_and_b32 s30, s18, 0x33')
    A('s_cmp_lg_u32 s30, 0')
    A('s_cbranch_scc1 pr_w0')
    g4_waddr(C, 112, WQKVP)
    for q4 in (3, 2, 1, 0):
        if q4:
            A(f's_cmp_lg_u32 s21, {q4}')
            A(f's_cbranch_scc1 pr_ws{q4}')
        for i in range(4 * q4, 4 * q4 + 4):
            so, im = soff(G4_ORD[i])
            A(f'buffer_store_dwordx4 {v(128 + 4 * i, 4)}, v112, s[8:11], {so} offen offset:{im} sc0 sc1')
        if q4:
            A('s_branch pr_w0')
            A.label(f'pr_ws{q4}')
    A('v_lshrrev_b32 v113, 5, v1')
    A('v_lshlrev_b32 v113, 4, v113')
    A('s_lshr_b32 s31, s19, 4')
    A(f's_add_u32 s31, s31, {CSQKV}')
    A('s_mov_b32 exec_lo, 1')
    A('s_mov_b32 exec_hi, 1')
    A('buffer_store_dwordx4 v[208:211], v113, s[8:11], s31 offen sc0 sc1')
    A('buffer_store_dwordx4 v[212:215], v113, s[8:11], s31 offen offset:32 sc0 sc1')
    A('s_mov_b64 exec, -1')
    A('s_cmp_lg_u32 s22, 0')
    A('s_cbranch_scc1 pr_w0')
    A('s_lshl_b32 s30, s20, 12')
    A(f's_add_u32 s30, s30, {WQKVP + 16 * 32 * KB}')
    for k in range(4):
        A(f'buffer_store_dwordx4 {v(192 + 4 * k, 4)}, v3, s[8:11], s30 offen offset:{k * 1024} sc0 sc1')
    A('s_cmp_ge_u32 s20, 4')
    A('s_cbranch_scc1 pr_w0')
    A('s_lshl_b32 s31, s20, 5')
    A(f's_add_u32 s31, s31, {CSQKV + 2048}')
    A('s_mov_b32 exec_lo, 1')
    A('s_mov_b32 exec_hi, 1')
    A('buffer_store_dwordx4 v[216:219], v113, s[8:11], s31 offen sc0 sc1')
    A('s_mov_b64 exec, -1')
    A.label('pr_w0')


def pack_ptrs(A):
    A('s_load_dwordx2 s[4:5], s[0:1], 32')
    A('s_load_dwordx4 s[52:55], s[0:1], 48')
    A('s_load_dwordx2 s[16:17], s[0:1], 64')


def pack_issue(C):
    A = C.A
    A('s_mul_i32 s30, s2, 3')
    A('s_add_u32 s30, s30, s20')
    A('s_mov_b32 s58, s30')
    A('s_cmp_lt_u32 s20, 3')
    A('s_cselect_b32 s57, 1, 0')
    A('s_cmp_lt_u32 s30, 736')
    A('s_cselect_b32 s57, s57, 0')
    A('s_cmp_eq_u32 s57, 0')
    A('s_cselect_b32 s30, 0, s30')
    A('s_cmp_lt_u32 s30, 64')
    A('s_cbranch_scc1 pk_jwo')
    A('s_cmp_lt_u32 s30, 512')
    A('s_cbranch_scc1 pk_jgu')
    A('s_sub_u32 s30, s30, 512')
    A('s_mov_b64 s[4:5], s[16:17]')
    A(f's_mov_b32 s6, {1792 * 1024}')
    A('s_mov_b32 s50, 1024')
    A('s_and_b32 s31, s30, 7')
    A('s_lshr_b32 s30, s30, 3')
    A('s_lshl_b32 s51, s30, 16')
    A('s_lshl_b32 s56, s31, 7')
    A('s_add_u32 s51, s51, s56')
    A(f's_mul_i32 s56, s31, {2 * 112 * KB}')
    A('s_lshl_b32 s30, s30, 12')
    A('s_add_u32 s56, s56, s30')
    A(f's_add_u32 s56, s56, {WDP}')
    A(f's_mov_b32 s52, {112 * KB}')
    A('s_mov_b32 s53, 256')
    A(f's_mov_b32 s54, {G1.CSDUMMY}')
    A('s_branch pk_jgo')
    A.label('pk_jwo')
    A(f's_mov_b32 s6, {512 * 1024}')
    A('s_mov_b32 s50, 1024')
    A('s_lshr_b32 s31, s30, 3')
    A('s_and_b32 s30, s30, 7')
    A('s_lshl_b32 s51, s30, 16')
    A('s_lshl_b32 s56, s31, 7')
    A('s_add_u32 s51, s51, s56')
    A('s_lshl_b32 s56, s31, 16')
    A('s_lshl_b32 s30, s30, 12')
    A('s_add_u32 s56, s56, s30')
    A(f's_add_u32 s56, s56, {WOP}')
    A(f's_mov_b32 s52, {32 * KB}')
    A('s_mov_b32 s53, 256')
    A(f's_mov_b32 s54, {G1.CSDUMMY}')
    A('s_branch pk_jgo')
    A.label('pk_jgu')
    A('s_sub_u32 s30, s30, 64')
    A('s_cmp_ge_u32 s30, 224')
    A('s_cselect_b32 s4, s54, s52')
    A('s_cselect_b32 s5, s55, s53')
    A('s_cselect_b32 s16, 1, 0')
    A('s_cselect_b32 s31, 224, 0')
    A('s_sub_u32 s30, s30, s31')
    A(f's_mov_b32 s6, {512 * 3584}')
    A('s_mov_b32 s50, 3584')
    A('s_lshr_b32 s31, s30, 3')
    A('s_and_b32 s30, s30, 7')
    A(f's_mul_i32 s51, s30, {64 * 3584}')
    A('s_lshl_b32 s56, s31, 7')
    A('s_add_u32 s51, s51, s56')
    A('s_lshl_b32 s56, s31, 17')
    A('s_lshl_b32 s17, s30, 12')
    A('s_add_u32 s56, s56, s17')
    A('s_lshl_b32 s17, s16, 8')
    A('s_add_u32 s56, s56, s17')
    A(f's_add_u32 s56, s56, {WGUP}')
    A(f's_mov_b32 s52, {64 * KB}')
    A(f's_mov_b32 s53, {32 * KB}')
    A(f's_mul_i32 s54, s30, {3584 * 4}')
    A('s_lshl_b32 s17, s31, 9')
    A('s_add_u32 s54, s54, s17')
    A('s_lshl_b32 s17, s16, 6')
    A('s_add_u32 s54, s54, s17')
    A(f's_add_u32 s54, s54, {CSP}')
    A.label('pk_jgo')
    A('v_lshrrev_b32 v112, 3, v1')
    A('v_and_b32 v113, 7, v1')
    A('v_mul_lo_u32 v112, v112, s50')
    A('v_lshl_add_u32 v112, v113, 4, v112')
    A('s_lshl_b32 s50, s50, 3')
    A('s_min_u32 s59, s20, 2')
    A('s_lshl_b32 s59, s59, 13')
    A(f's_add_u32 s59, s59, {136 * KB}')
    A('s_cmp_eq_u32 s57, 0')
    A('s_cbranch_scc1 pk_i_end')
    for i in range(8):
        A(f's_add_u32 m0, s59, {i * 1024}')
        A('s_nop 0')
        A('buffer_load_dwordx4 v112, s[4:7], s51 offen lds')
        A('s_add_u32 s51, s51, s50')
    A.label('pk_i_end')


def pack_convert(C):
    A = C.A
    A('s_cmp_eq_u32 s57, 0')
    A('s_cbranch_scc1 pk_c_end')
    A('v_lshrrev_b32 v112, 5, v1')
    A('v_bfe_u32 v113, v1, 2, 2')
    A('v_lshl_add_u32 v113, v112, 2, v113')
    A('v_and_b32 v114, 3, v1')
    A('v_lshlrev_b32 v114, 3, v114')
    A('v_lshl_add_u32 v113, v113, 7, v114')
    A('v_bfe_u32 v114, v1, 4, 1')
    A('v_lshl_add_u32 v113, v114, 5, v113')
    A('v_add_u32 v113, s59, v113')
    A('v_mul_lo_u32 v114, v114, s53')
    A('v_and_b32 v115, 15, v1')
    A('v_lshl_add_u32 v114, v115, 4, v114')
    A('v_lshl_add_u32 v114, v112, 9, v114')
    A('v_lshrrev_b32 v112, 4, v1')
    A('v_lshlrev_b32 v112, 7, v112')
    A('v_lshl_add_u32 v112, v115, 2, v112')
    A('v_mov_b32 v115, 0x3f803f80')
    A('s_add_u32 s52, s52, s56')
    A('s_waitcnt vmcnt(0)')
    for jj in range(2):
        for st in range(4):
            for h2 in range(2):
                A(f'ds_read_b64_tr_b16 {v(128 + 4 * (4 * jj + st) + 2 * h2, 2)}, v113 offset:{st * 2048 + h2 * 1024 + jj * 64}')
        A('s_waitcnt lgkmcnt(0)')
        for st in range(4):
            A(f'buffer_store_dwordx4 {v(128 + 4 * (4 * jj + st), 4)}, v114, s[8:11], {"s56" if jj == 0 else "s52"} offen offset:{st * 1024} sc0 sc1')
    A('s_cmp_eq_u32 s53, 256')
    A('s_cbranch_scc1 pk_c_end')
    for r in range(16):
        for jj in range(2):
            A(f'v_dot2_f32_bf16 {v(116 + jj)}, {v(128 + 16 * jj + r)}, v115, {"0" if r == 0 else v(116 + jj)}')
    A('s_nop 2')
    swap_add(A, 116, 117)
    A('buffer_store_dword v116, v112, s[8:11], s54 offen sc0 sc1')
    A.label('pk_c_end')


def pack_flag(C):
    A = C.A
    A('v_mov_b32 v112, 0')
    A('v_mov_b32 v113, 1')
    A('s_cmp_eq_u32 s57, 0')
    A('s_cbranch_scc1 pk_f_1')
    A('s_lshl_b32 s30, s58, 7')
    A(f's_add_u32 s30, s30, {PFL}')
    A('s_waitcnt vmcnt(0)')
    A('s_mov_b64 exec, 1')
    A('buffer_store_dword v113, v112, s[8:11], s30 offen sc0 sc1')
    A('s_mov_b64 exec, -1')
    A.label('pk_f_1')
    A('s_and_b32 s30, s18, 0x33')
    A('s_cmp_lg_u32 s30, 0')
    A('s_cbranch_scc1 pk_f_end')
    A('s_lshl_b32 s30, s22, 1')
    A('s_add_u32 s30, s30, s20')
    A('s_lshl_b32 s31, s21, 5')
    A('s_add_u32 s30, s30, s31')
    A('s_lshl_b32 s30, s30, 7')
    A(f's_add_u32 s30, s30, {PFL + 768 * 128}')
    A('s_waitcnt vmcnt(0)')
    A('s_mov_b64 exec, 1')
    A('buffer_store_dword v113, v112, s[8:11], s30 offen sc0 sc1')
    A('s_mov_b64 exec, -1')
    A.label('pk_f_end')


def pack_poll(C, endlab):
    A = C.A
    A('s_mul_i32 s30, s22, 7')
    A('s_lshr_b32 s30, s30, 2')
    A('v_lshrrev_b32 v112, 4, v1')
    A('v_add_u32 v112, s30, v112')
    A('v_min_u32 v112, 27, v112')
    A('v_and_b32 v113, 7, v1')
    A('v_lshl_add_u32 v112, v112, 3, v113')
    A('v_bfe_u32 v114, v1, 3, 1')
    A('v_mul_u32_u24 v114, 224, v114')
    A('v_add3_u32 v112, v112, v114, 64')
    A('s_mul_i32 s30, s20, 7')
    A('s_lshr_b32 s30, s30, 1')
    A('v_min_u32 v114, 4, v113')
    A('v_add_u32 v114, s30, v114')
    A('v_min_u32 v114, 27, v114')
    A('s_add_u32 s30, s24, 512')
    A('v_lshl_add_u32 v114, v114, 3, s30')
    A('v_cmp_le_u32 vcc, 48, v1')
    A('s_lshl_b32 s30, s24, 3')
    A('s_add_u32 s30, s30, s20')
    A('v_cndmask_b32 v112, v112, v114, vcc')
    A('v_mov_b32 v114, s30')
    A('v_cmp_le_u32 vcc, 56, v1')
    A('s_add_u32 s31, s20, 768')
    A('s_and_b32 s30, s22, 12')
    A('s_lshl_b32 s30, s30, 1')
    A('s_add_u32 s30, s30, s31')
    A('v_cndmask_b32 v112, v112, v114, vcc')
    for q4 in range(4):
        A(f'v_writelane_b32 v112, s30, {59 + q4}')
        A('s_add_u32 s30, s30, 32')
    A('v_writelane_b32 v112, s31, 63')
    A(f's_mov_b32 s30, {PFL}')
    A('s_mov_b32 s31, 0')
    A('v_lshlrev_b32 v112, 7, v112')
    A('s_bfe_u32 s32, s19, 0x3000c')
    A('s_lshl_b32 s32, s32, 3')
    A('s_lshl_b32 s33, s26, 2')
    A('s_add_u32 s32, s32, s33')
    A('v_and_b32 v114, 3, v1')
    A('v_add_u32 v114, s32, v114')
    A('v_lshlrev_b32 v114, 7, v114')
    A('buffer_load_dword v113, v112, s[8:11], s30 offen sc1')
    A('buffer_load_dword v115, v114, s[8:11], s30 offen sc1')


def pack_poll2(C, endlab):
    A = C.A
    A(f's_mov_b32 s30, {PFL}')
    A('s_mov_b32 s31, 0')
    A.label('pk_p')
    A('s_waitcnt vmcnt(0)')
    A('v_and_b32 v113, v113, v115')
    A('v_cmp_eq_u32 vcc, 1, v113')
    A('s_add_u32 s31, s31, 1')
    A('s_cmp_eq_u64 vcc, -1')
    A('s_cbranch_scc1 pk_pd')
    A('s_sleep 16')
    A('buffer_load_dword v113, v112, s[8:11], s30 offen sc1')
    A('buffer_load_dword v115, v114, s[8:11], s30 offen sc1')
    A(f's_cmp_lt_u32 s31, {1 << 19}')
    A('s_cbranch_scc1 pk_p')
    A(f's_branch {endlab}')
    A.label('pk_pd')
    C.vm = []


def layer_part(C, layer, end):
    A = C.A
    C.tag = f'l{layer}'
    last = layer == 1
    xin = None if layer == 0 else XC
    kvf = KVF if layer == 0 else KVF2
    kfl = KFL + layer * 64 * 128
    sy = 5 * layer + 1
    C.B = dict(QF=QF, OF=OF, XB=XB, SXB=SXB, HF=HF) if layer == 0 else dict(QF=QF2, OF=OF2, XB=XB2, SXB=SXB2, HF=HF2)
    B = C.B

    def pre_addr():
        gu_waddr(C)
        g3_waddr(C, (113, 114), 112, WDP)
        g4_waddr(C, 116, WOP)

    stubs = [lambda: (pre_addr(), gu_wload(C, 0))]
    stubs += [lambda ks=ks: gu_wload(C, ks) for ks in range(1, 24)]
    stubs += [lambda i=i: g4_wload(C, 116, i, 'res') for i in range(8)]
    if TOUCH2:
        def touch2():
            A('s_and_b32 s30, s18, 7')
            A('s_lshr_b32 s31, s30, 1')
            A('s_lshl_b32 s31, s31, 2')
            A('s_and_b32 s30, s30, 1')
            A('s_add_u32 s30, s30, s31')
            A('s_lshl_b32 s30, s30, 10')
            C.vmem('buffer_load_dwordx4 v[120:123], v116, s[8:11], s30 offen offset:2048', 'tc')
            if layer == 0:
                A(f's_add_u32 s30, s30, {WQKVP - WOP + (1 << 32) if WQKVP < WOP else WQKVP - WOP}')
                A('v_add_u32 v117, s30, v116')
                C.vmem('buffer_load_dwordx4 v[120:123], v117, s[8:11], 0 offen', 'tc')
                C.vmem('buffer_load_dwordx4 v[120:123], v117, s[8:11], 0 offen offset:2048', 'tc')
        stubs += [touch2]
    if TOUCH3 & 1:
        def t3a(k):
            if k == 0:
                A('s_and_b32 s30, s21, 1')
                A('s_lshl_b32 s30, s30, 12')
                A(f's_add_u32 s30, s30, {24 * KB}')
                A(f'v_add_u32 v118, s30, {v(V_WGU)}')
            C.vmem(f'buffer_load_dwordx4 v[120:123], v118, s[8:11], 0 offen offset:{k * 1024}', 'tc')
        stubs += [lambda k=k: t3a(k) for k in range(4)]
    if TOUCH3 & 2:
        def t3b(k):
            if k == 0:
                A('s_and_b32 s30, s21, 1')
                A(f's_mul_i32 s30, s30, {7 * KB}')
                A('s_cmp_eq_u32 s23, 0')
                A('s_cselect_b64 vcc, -1, 0')
                A('v_cndmask_b32 v119, v114, v113, vcc')
                A('v_add_u32 v119, s30, v119')
            so, im = soff(k)
            C.vmem(f'buffer_load_dwordx4 v[120:123], v119, s[8:11], {so} offen offset:{im}', 'tc')
        stubs += [lambda k=k: t3b(k) for k in range(7)]
    if TOUCH and layer == 1:
        def t_addr():
            A('s_lshr_b32 s30, s2, 3')
            A('s_lshl_b32 s30, s30, 3')
            A('s_add_u32 s30, s30, s20')
            A(f's_mul_i32 s31, s30, {7 * KB}')
            A(f's_add_u32 s31, s31, {WDP}')
            A('v_add_u32 v118, s31, v3')
            A('s_lshl_b32 s31, s30, 11')
            A(f's_add_u32 s31, s31, {WQKVP}')
            A('v_add_u32 v119, s31, v3')

        def tch(vr, k):
            so, im = soff(k)
            C.vmem(f'buffer_load_dwordx4 v[120:123], {v(vr)}, s[8:11], {so} offen offset:{im}', 'tc')
        stubs += [lambda: (t_addr(), tch(V_WGU, 24))]
        stubs += [lambda ks=ks: tch(V_WGU, ks) for ks in range(25, 32)]
        stubs += [lambda k=k: tch(118, k) for k in range(7)]
        if not last:
            stubs += [lambda k=k: tch(119, k) for k in range(2)]

    def need_wo():
        A('s_lshr_b32 s30, s20, 1')
        A('s_lshl_b32 s30, s30, 2')
        A('s_and_b32 s31, s22, 3')
        A('s_add_u32 s30, s30, s31')
        A('s_lshl_b32 s32, 1, s30')

    def need_gu():
        A('s_lshl_b32 s32, 0x1111, s25')
        A('s_cmp_eq_u32 s20, 7')
        A('s_cselect_b32 s32, 0xffff, s32')

    def need_dn():
        A('s_lshl_b32 s30, s20, 1')
        A('s_lshl_b32 s32, 3, s30')

    def need_qkv():
        A('s_lshl_b32 s30, s20, 1')
        A('s_and_b32 s31, s24, 1')
        A('s_add_u32 s30, s30, s31')
        A('s_lshl_b32 s32, 1, s30')

    if layer == 0:
        fixed = {PK_I: lambda: (wq_store(C), pack_issue(C)), PK_C: lambda: pack_convert(C), PK_F: lambda: pack_flag(C), PK_P - 3: lambda: pack_poll(C, end), PK_P: lambda: pack_poll2(C, end)}
        tail = att_phase(C, kvf, kfl, end, stubs, fixed, PK_P, pre_hook=lambda: pack_ptrs(A), loadq=False, early=True)
    else:
        tail = att_phase(C, kvf, kfl, end, stubs, pre_hook=lambda: A('s_load_dwordx2 s[12:13], s[0:1], 72'), loadq=False)
    C.stamp()
    if not WO_LATE:
        A('s_nop 1')
        for i in range(8, 16):
            g4_wload(C, 116, i, 'res')
    g4_pre(C, 'res', B['OF'], resbase=xin)
    handoff(C, sy + 0, end, need_wo)
    C.stamp()
    g4_main(C, 'res', outbase=B['XB'], sxout=B['SXB'], hook_red=lambda k: gu_wload(C, 24 + k))
    C.stamp()
    gu_pre(C)
    handoff(C, sy + 1, end, need_gu)
    C.stamp()
    gu_main(C)
    C.stamp()
    g3_pre(C, 'res', 112, B['HF'], resbase=B['XB'])
    handoff(C, sy + 2, end, need_dn)
    C.stamp()
    if last:
        g3_main(C, 'out', 112, 128)
        C.stamp()
    else:
        g3_main(C, 'res', 112, 128, outbase=XC, sxout=SXC, hook_b=lambda st, n: qkv4_wstep(C, st, n), hook_red=lambda: qkv4_wrest(C))
        C.stamp()
        g4_pre(C, 'qkv', XC, resbase=SXC)
        g4_waddr(C, 64, WQKVP)
        handoff(C, sy + 3, end, need_qkv)
        C.stamp()
        g4_main(C, 'qkv', kvf=KVF2, kfl=KFL + 64 * 128, endlab=end)
        C.stamp()
    return tail


def build():
    A = Asm()
    name = NAME + '_kernel'
    C = Ctx(A, 'pr')
    C.qf = QF
    end = 'k_end'
    kernel_begin(A, name)
    pre_part(C, end)
    t0 = layer_part(C, 0, end)
    t1 = layer_part(C, 1, end)
    A('s_add_u32 s30, s2, s20')
    A('s_cmp_lg_u32 s30, 0')
    A('s_cbranch_scc1 k_fin')
    A('s_load_dwordx2 s[4:5], s[0:1], 80')
    A('s_mov_b32 s6, 256')
    A('v_mov_b32 v2, 0')
    A('s_mov_b64 exec, 1')
    A('s_waitcnt lgkmcnt(0)')
    A('buffer_store_dword v2, v2, s[4:7], 0 offen sc0 sc1')
    A('s_mov_b64 exec, -1')
    A.label('k_fin')
    if DBGD:
        A('s_cmp_lg_u32 s2, 77')
        A('s_cbranch_scc1 k_fin2')
        A('s_cmp_lg_u32 s20, 1')
        A('s_cbranch_scc1 k_fin2')
        A('s_load_dwordx2 s[4:5], s[0:1], 80')
        A('s_memrealtime s[60:61]')
        A('s_mov_b32 s6, 256')
        A('v_mov_b32 v2, 0')
        A('s_mov_b64 exec, 1')
        A('s_waitcnt lgkmcnt(0)')
        sel = [int(x) for x in DBGD.split()]
        for k, i in enumerate(sel + [-1]):
            A(f's_sub_u32 s30, {s(64 + i) if i >= 0 else "s60"}, s64')
            A('v_mov_b32 v4, s30')
            A(f'buffer_store_dword v4, v2, s[4:7], 0 offen offset:{4 + 4 * k}')
        A('s_mov_b64 exec, -1')
        A.label('k_fin2')
    stamp_end(C, 1)
    A.label(end)
    A('s_endpgm')
    t0(True)
    t1(False)
    body = A.text()
    probs = lint(body)
    for p in probs:
        print('LINT:', p, file=sys.stderr)
    head = '; generated by gen/gen3.py\n'
    head += f"; @launch grid=(256,1,1) block=(512,1,1) lds={LDS_BYTES}\n"
    head += '.amdgcn_target "amdgcn-amd-amdhsa--gfx950"\n.text\n'
    tail = '.section .rodata,"a"\n.p2align 6\n' + descriptor(name, 256, 0, nsgpr=100)
    print('stamps:', C.nstamp, file=sys.stderr)
    return head + body + tail


if __name__ == '__main__':
    if 'stamp' in sys.argv:
        STAMP = True
    for arg in sys.argv[2:]:
        if '=' in arg:
            k, val = arg.split('=')
            globals()[k] = int(val) if val.lstrip('-').isdigit() else val.replace('_', ' ')
    out = sys.argv[1] if len(sys.argv) > 1 else f'cdna_kernels/{NAME}.s'
    open(out, 'w').write(build())
    print('wrote', out)
```

```python
import sys
import math
import struct
from asmlib import Asm, v, a, s, lint
import gen as G1
from gen import f32, kernel_begin, descriptor, ws_srd, KB

NAME = G1.NAME
WQKVP, WOP, WGUP, WDP, CSQKV, CSGU = G1.WQKVP, G1.WOP, G1.WGUP, G1.WDP, G1.CSQKV, G1.CSGU
KVF, XA, XB, QF, OF, HF = G1.KVF, G1.XA, G1.XB, G1.QF, G1.OF, G1.HF
WS_SIZE, QSCALE = G1.WS_SIZE, G1.QSCALE
KVG = 2048
KVT = 2080
VBS = 512
XC = G1.WS_END
KVF2 = XC + 2048 * KB
FLG = KVF2 + 144 * KB
SXA = FLG + 64 * KB
SXB = SXA + 512 * KB
SXC = SXB + 512 * KB
CSP = SXC + 512 * KB
PFL = CSP + 128 * KB
KFL = PFL + 112 * KB
QF2 = KFL + 16 * KB
OF2 = QF2 + 2048 * KB
XB2 = OF2 + 2048 * KB
SXB2 = XB2 + 2048 * KB
HF2 = SXB2 + 512 * KB
WS_END = HF2 + 64 * 112 * KB
STAMPS = G1.STAMPS

STAMP = False
WT = ' sc0 sc1'
LDS_BYTES = 160 * KB
FINE = 0
GU_D = 16
F1BAR = 1
F2BAR = 1
GU_XB = 0
PRIME_LATE = 1
GU_PRIO = 0
GU_SF1 = 5
DN_PI = 4
DN_AR = 0
TCHK = 2
TB2 = 6
DPT = 4
TPFEND = 8
TP2 = 28
TP1 = 46
TP0 = 58
ONEWAIT = 1
INLINE = 0
ATT_NB = 4
TOUCH3 = 0
PRIOV = 0
DBGD = ''
ATT_B2 = 2
WO_L0 = 3
WROT = 1
GU_TAIL = 1
ATT_R0 = 4
EXPT = 0
TLBW = 0
KV_SLEEP = 2
QKV_PER = 1
WO_TAIL = 16
SLO = 0
QWT = ' sc0 sc1'
GU16 = 0
GU_NOW = 0
GU_WD0 = 3
GU_BARS = {4: 1, 8: 2, 12: 7, 24: 7}
PK_I = 6
PK_C = 18
PK_F = 22
PK_P = 36
RT = 0
TOUCH = 0
TOUCH2 = 1
WO_LATE = 0
ATT_UN = 4
ATT_PFEND = 1
G3_PR4 = 7
G3_PR14 = 6
G2_ST8 = [2, 2, 2, 2]
G2_ST28 = [2, 2, 4, 4, 4, 4, 4, 4]
G2_PRE8 = 4
G2_PRE28 = 6


class Ctx:
    def __init__(self, A, tag):
        self.A = A
        self.tag = tag
        self.vm = []
        self.lds = []
        self.nlab = 0
        self.nstamp = 1

    def lab(self, base):
        self.nlab += 1
        return f'{self.tag}_{base}{self.nlab}'

    def vmem(self, text, tag):
        self.A(text)
        self.vm.append(tag)
        assert len(self.vm) <= 63, 'vmcnt overflow'

    def wait(self, tag, extra=''):
        idx = [i for i, t in enumerate(self.vm) if t == tag]
        if not idx:
            if extra:
                self.A(f's_waitcnt {extra}')
            return
        n = len(self.vm) - 1 - idx[-1]
        self.A(f's_waitcnt vmcnt({n}) {extra}'.strip())
        self.vm = self.vm[idx[-1] + 1:]

    def ds(self, text, tag):
        self.A(text)
        self.lds.append(tag)
        assert len(self.lds) <= 15, 'lgkmcnt overflow'

    def dwait(self, tag):
        idx = [i for i, t in enumerate(self.lds) if t == tag]
        if idx:
            self.A(f's_waitcnt lgkmcnt({len(self.lds) - 1 - idx[-1]})')
            self.lds = self.lds[idx[-1] + 1:]

    def stamp(self):
        if STAMP:
            i = self.nstamp - SLO
            self.nstamp += 1
            if i < 1 or i >= 28:
                return
            A = self.A
            A('s_waitcnt lgkmcnt(0)')
            A('s_memrealtime s[60:61]' if RT else 's_memtime s[60:61]')
            A('s_waitcnt lgkmcnt(0)')
            A(f's_mov_b32 {s(64 + i)}, s60')


def stamp_begin(C):
    if STAMP:
        A = C.A
        A('s_memrealtime s[62:63]')
        A('s_memtime s[60:61]')
        for i in range(1, 30):
            A(f's_mov_b32 {s(64 + i)}, 0')
        A('s_waitcnt lgkmcnt(0)')
        A('s_mov_b32 s64, s62' if RT else 's_mov_b32 s64, s60')
        A('s_mov_b32 s95, s62')


def stamp_end(C, kidx):
    if STAMP:
        A = C.A
        A('s_waitcnt vmcnt(0) lgkmcnt(0)')
        A('s_memtime s[60:61]')
        A('s_memrealtime s[62:63]')
        A('s_waitcnt lgkmcnt(0)')
        A('s_mov_b32 s93, s62' if RT else 's_mov_b32 s93, s60')
        A('s_mov_b32 s94, s62')
        A('s_mov_b64 exec, 1')
        A('s_lshl_b32 s60, s2, 10')
        A('s_lshl_b32 s61, s20, 7')
        A('s_add_u32 s60, s60, s61')
        A(f's_add_u32 s60, s60, {STAMPS + kidx * (1 << 20)}')
        A('v_mov_b32 v0, 0')
        for i in range(32):
            A(f'v_mov_b32 v1, {s(64 + i)}')
            A(f'buffer_store_dword v1, v0, s[8:11], s60 offen offset:{i * 4}')
        A('s_waitcnt vmcnt(0)')


def setup(C, need_out, endlab):
    A = C.A
    A('s_cmp_ge_u32 s2, 256')
    A(f's_cbranch_scc1 {endlab}')
    stamp_begin(C)
    ws_srd(A, 8)
    if need_out:
        A('s_load_dwordx2 s[12:13], s[0:1], 72')
        A(f's_mov_b32 s14, {2048 * 512 * 2}')
        A('s_mov_b32 s15, 0x20000')
    A('v_and_b32 v1, 63, v0')
    A('v_lshrrev_b32 v2, 6, v0')
    A('v_lshlrev_b32 v3, 4, v1')
    A('v_readfirstlane_b32 s20, v2')
    A('s_and_b32 s21, s2, 7')
    A('s_lshl_b32 s21, s21, 1')
    A('s_bfe_u32 s22, s2, 0x10003')
    A('s_add_u32 s21, s21, s22')
    A('s_lshr_b32 s22, s2, 4')
    A('s_and_b32 s23, s22, 1')
    A('s_lshr_b32 s24, s22, 1')
    A('s_and_b32 s25, s20, 3')
    A('s_lshr_b32 s26, s20, 2')
    A('s_lshl_b32 s27, s21, 2')
    A('s_add_u32 s27, s27, s23')
    A('s_lshl_b32 s28, s24, 1')
    A('s_bfe_u32 s30, s20, 0x10001')
    A('s_add_u32 s28, s28, s30')
    A('s_and_b32 s29, s20, 1')
    A('s_lshl_b32 s30, s29, 1')
    A('s_add_u32 s30, s30, s27')
    A('s_lshl_b32 s49, s30, 15')
    A('s_lshl_b32 s31, s28, 11')
    A('s_add_u32 s49, s49, s31')
    A('s_lshl_b32 s31, s26, 10')
    A('s_add_u32 s49, s49, s31')
    for g in range(1, 8):
        A(f's_mov_b32 {s(40 + g)}, {g * 4096}')
    A('s_waitcnt lgkmcnt(0)')


def soff(i):
    return ('0' if i // 4 == 0 else s(40 + i // 4)), (i % 4) * 1024


def handoff(C, sync, endlab, need, kvflag=None, first=False):
    A = C.A
    l1, l2, ld = C.lab('pa'), C.lab('pb'), C.lab('pd')
    need()
    A('s_mov_b32 s33, 0')
    A('v_lshlrev_b32 v0, 2, v1')
    A('s_lshl_b32 s30, s21, 8')
    A(f's_add_u32 s30, s30, {FLG + sync * 4096}')
    A('s_lshl_b32 s34, s22, 2')
    A('s_add_u32 s34, s34, s30')
    A('v_mov_b32 v4, 1')
    if first:
        lz, lzd = C.lab('z'), C.lab('zd')
        A('s_cmp_lg_u32 s20, 0')
        A(f's_cbranch_scc1 {lzd}')
        A('s_mov_b32 s31, 0')
        A('s_mov_b64 exec, 1')
        A.label(lz)
        A('buffer_load_dword v2, v0, s[4:7], 0 offen sc0 sc1')
        A('s_waitcnt vmcnt(0)')
        A('v_cmp_le_u32 vcc, 16, v2')
        A('s_add_u32 s31, s31, 1')
        A('s_cmp_eq_u64 vcc, 1')
        A(f's_cbranch_scc1 {lzd}')
        A('s_sleep 8')
        A(f's_cmp_lt_u32 s31, {1 << 20}')
        A(f's_cbranch_scc1 {lz}')
        A(f's_branch {endlab}')
        A.label(lzd)
        A('s_mov_b64 exec, -1')
    if kvflag is not None:
        A('s_waitcnt vmcnt(0) lgkmcnt(0)')
        C.vm = []
    else:
        C.wait('st', 'lgkmcnt(0)')
    A('s_cmp_lg_u32 s20, 0')
    A('s_barrier')
    l, lb, lb2 = C.lab('sig'), C.lab('sb'), C.lab('sc')
    A(f's_cbranch_scc1 {l}')
    A('s_mov_b64 exec, 1')
    if kvflag is not None:
        lk = C.lab('kf')
        A('s_cmp_ge_u32 s24, 2')
        A(f's_cbranch_scc1 {lk}')
        A('s_add_u32 s31, s27, s24')
        A('s_lshl_b32 s31, s31, 7')
        A(f's_add_u32 s31, s31, {kvflag}')
        A('s_mov_b64 exec, 15')
        A('buffer_store_dword v4, v0, s[8:11], s31 offen sc0 sc1')
        A('s_mov_b64 exec, 1')
        A.label(lk)
    A('buffer_store_dword v4, v0, s[8:11], s34 offen')
    A.label(l)
    A('s_mov_b32 s31, 0')
    A('s_mov_b64 exec, s[32:33]')
    A.label(l1)
    A('buffer_load_dword v2, v0, s[8:11], s30 offen sc1')
    A('s_add_u32 s31, s31, 1')
    A('s_waitcnt vmcnt(0)')
    A('v_cmp_ne_u32 vcc, 0, v2')
    A('s_cmp_eq_u64 vcc, s[32:33]')
    A(f's_cbranch_scc1 {ld}')
    A('s_cmp_lt_u32 s31, 64')
    A(f's_cbranch_scc1 {l1}')
    A('s_mov_b64 exec, 1')
    A('buffer_store_dword v4, v0, s[8:11], s34 offen offset:128 sc0 sc1')
    A('s_mov_b64 exec, s[32:33]')
    A.label(l2)
    A('buffer_load_dword v2, v0, s[8:11], s30 offen sc1')
    A('s_waitcnt vmcnt(0)')
    A('v_cmp_ne_u32 s[36:37], 0, v2')
    A('buffer_load_dword v2, v0, s[8:11], s30 offen offset:128 sc0 sc1')
    A('s_waitcnt vmcnt(0)')
    A('v_cmp_ne_u32 vcc, 0, v2')
    A('s_add_u32 s31, s31, 1')
    A('s_or_b64 vcc, vcc, s[36:37]')
    A('s_cmp_eq_u64 vcc, s[32:33]')
    A(f's_cbranch_scc1 {ld}')
    A('s_sleep 4')
    A(f's_cmp_lt_u32 s31, {1 << 20}')
    A(f's_cbranch_scc1 {l2}')
    A(f's_branch {endlab}')
    A.label(ld)
    A('s_mov_b64 exec, -1')
    C.vm = []
    C.flagb = True


def flag_b(C):
    if getattr(C, 'flagb', False):
        A = C.A
        l = C.lab('fb')
        A('s_cmp_lg_u32 s20, 0')
        A(f's_cbranch_scc1 {l}')
        A('s_mov_b64 exec, 1')
        A('buffer_store_dword v4, v0, s[8:11], s34 offen offset:128 sc0 sc1')
        A('s_mov_b64 exec, -1')
        A.label(l)
        C.flagb = False


ACCB, ACCA = 16, 48
KVW, KACC, QSX = 160, 176, 240
KVRED, STAT, CSX, CSK = 112 * KB, 144 * KB, 148 * KB, 152 * KB


def blk_stats(C, P, T):
    A = C.A
    A(f'v_mov_b32 {v(T + 4)}, 0x3f803f80')
    A(f'v_dot2_f32_bf16 {v(T + 1)}, {v(P)}, {v(P)}, 0')
    A(f'v_dot2_f32_bf16 {v(T)}, {v(P)}, {v(T + 4)}, 0')
    for m in range(1, 4):
        A(f'v_dot2_f32_bf16 {v(T + 1)}, {v(P + m)}, {v(P + m)}, {v(T + 1)}')
        A(f'v_dot2_f32_bf16 {v(T)}, {v(P + m)}, {v(T + 4)}, {v(T)}')
    A('s_nop 2')
    A(f'v_mov_b32 {v(T + 2)}, {v(T)}')
    A(f'v_mov_b32 {v(T + 3)}, {v(T + 1)}')
    A('s_nop 1')
    A(f'v_permlane32_swap_b32 {v(T)}, {v(T + 2)}')
    A(f'v_permlane32_swap_b32 {v(T + 1)}, {v(T + 3)}')
    A(f'v_add_f32 {v(T)}, {v(T)}, {v(T + 2)}')
    A(f'v_add_f32 {v(T + 1)}, {v(T + 1)}, {v(T + 3)}')


def g3_waddr(C, vregs, KS, wbase):
    A = C.A
    NS = KS // 8
    A('s_lshl_b32 s30, s26, 8')
    A(f'v_xor_b32 {v(vregs[0])}, s30, v3')
    A(f's_mul_i32 s31, s20, {NS * KB}')
    A(f's_add_u32 s31, s31, {wbase}')
    A('s_xor_b32 s30, s28, 1')
    A(f's_mul_i32 s30, s30, {KS * KB}')
    A('s_add_u32 s30, s30, s31')
    A(f'v_add_u32 {v(vregs[1])}, s30, {v(vregs[0])}')
    A(f's_mul_i32 s30, s28, {KS * KB}')
    A('s_add_u32 s30, s30, s31')
    A(f'v_add_u32 {v(vregs[0])}, s30, {v(vregs[0])}')


def g3_wload(C, vregs, idx, wreg0, tag='w'):
    st, jj = idx // 2, idx % 2
    so, im = soff(st)
    C.vmem(f'buffer_load_dwordx4 {v(wreg0 + 4 * idx, 4)}, {v(vregs[jj])}, s[8:11], {so} offen offset:{im}', tag)


def g3_ex(mode, KS):
    return 252 if KS == 112 else (112 if mode == 'qkv' else 116)


def g3_pre(C, mode, KS, xbase, resbase=None, raw=False):
    A = C.A
    NS = KS // 8
    EX = g3_ex(mode, KS)
    A(f's_mul_i32 s31, s20, {NS * KB}')
    A(f's_add_u32 s31, s31, {xbase}')
    A('s_add_u32 s30, s27, s29')
    A(f's_mul_i32 s32, s30, {KS * KB}')
    A('s_add_u32 s32, s32, s31')
    A('v_add_u32 v6, s32, v3')
    A('s_xor_b32 s30, s30, 1')
    A(f's_mul_i32 s32, s30, {KS * KB}')
    A('s_add_u32 s32, s32, s31')
    A('v_add_u32 v5, s32, v3')
    A('s_lshl_b32 s30, s20, 11')
    A('v_add_u32 v8, s30, v3')
    A('v_add_u32 v7, 0x10000, v8')
    for b in range(1, 8):
        A(f's_xor_b32 s30, s20, {b}')
        A('s_lshl_b32 s30, s30, 11')
        A(f's_add_u32 s30, s30, {(b - 1) * 16 * KB}')
        A(f'v_add_u32 {v(8 + b)}, s30, v3')
    if raw:
        return
    if mode == 'qkv':
        A('v_lshrrev_b32 v2, 5, v1')
        A('v_lshlrev_b32 v4, 4, v2')
        A('s_lshl_b32 s31, s28, 7')
        A('s_lshl_b32 s30, s26, 6')
        A('s_add_u32 s31, s31, s30')
        A(f's_add_u32 s31, s31, {CSQKV}')
        C.vmem(f'buffer_load_dwordx4 {v(EX, 4)}, v4, s[8:11], s31 offen', 'ex')
        C.vmem(f'buffer_load_dwordx4 {v(EX + 4, 4)}, v4, s[8:11], s31 offen offset:32', 'ex')
        A('s_bfe_u32 s30, s20, 0x10001')
        A('s_lshl_b32 s30, s30, 6')
        A('s_lshl_b32 s31, s26, 5')
        A('s_add_u32 s30, s30, s31')
        A(f's_add_u32 s31, s30, {CSQKV + 2048}')
        C.vmem(f'buffer_load_dwordx4 {v(EX + 8, 4)}, v4, s[8:11], s31 offen', 'ex')
        A(f'v_and_b32 {v(QSX + 8)}, 31, v1')
        A(f'v_lshlrev_b32 {v(QSX + 8)}, 3, {v(QSX + 8)}')
        A(f'v_lshl_add_u32 {v(QSX + 8)}, v2, 13, {v(QSX + 8)}')
        A('s_lshl_b32 s30, s27, 13')
        A('s_lshl_b32 s31, s20, 10')
        A('s_add_u32 s30, s30, s31')
        A(f's_add_u32 s30, s30, {resbase}')
        A(f'v_add_u32 {v(QSX + 8)}, s30, {v(QSX + 8)}')
    elif resbase is None:
        A('v_and_b32 v2, 31, v1')
        A('v_lshlrev_b32 v2, 10, v2')
        A('v_lshrrev_b32 v4, 5, v1')
        A('v_lshl_add_u32 v2, v4, 3, v2')
        A('s_add_u32 s30, s27, s29')
        A('s_lshl_b32 s30, s30, 15')
        A('s_lshl_b32 s31, s28, 6')
        A('s_add_u32 s30, s30, s31')
        A('s_lshl_b32 s31, s26, 5')
        A('s_add_u32 s30, s30, s31')
        C.vmem(f'buffer_load_dwordx2 {v(EX, 2)}, v2, s[12:15], s30 offen', 'ex')
        C.vmem(f'buffer_load_dwordx2 {v(EX + 2, 2)}, v2, s[12:15], s30 offen offset:16', 'ex')
    else:
        A(f's_add_u32 s31, s49, {resbase}')
        C.vmem(f'buffer_load_dwordx4 {v(EX, 4)}, v3, s[8:11], s31 offen', 'ex')


def g3_main(C, mode, KS, wreg0, outbase=None, kvf=None, after_store=None, sxout=None, hook_b=None, raw=False, hook_red=None):
    A = C.A
    NS = KS // 8
    EX = g3_ex(mode, KS)
    if NS == 4:
        xreg = {(hh, st): 80 + (hh * 4 + st) * 4 for hh in range(2) for st in range(4)}
    else:
        slot = [80 + 4 * k for k in range(12)] + [240, 244]
        xreg = {(hh, st): slot[st] for hh in range(2) for st in range(NS)}

    def xload(hh, st):
        so, im = soff(st)
        C.vmem(f'buffer_load_dwordx4 {v(xreg[hh, st], 4)}, {v(5 + hh)}, s[8:11], {so} offen offset:{im}', f'x{hh}_{st}')

    seq = [(hh, st) for hh in range(2) for st in range(NS)]
    PR = G3_PR4 if NS == 4 else G3_PR14
    if raw:
        seq, PR = [], 0
    for x in seq[:PR]:
        xload(*x)
    nxt = PR
    C.wait('w')

    def wr(b):
        base = (ACCA if b & 1 else ACCB) + ((b >> 1) & 1) * 16 + (b >> 2) * 8
        return [f'ds_write_b128 {v(8 + b)}, {v(base + h2 * 4, 4)} offset:{h2 * 1024}' for h2 in range(2)]

    pend = []
    for hh in range(2):
        acc = ACCA if hh == 0 else ACCB
        for st in range(NS):
            C.wait(f'x{hh}_{st}')
            if hh == 0 and st == 0:
                C.stamp()
            for jj in range(2):
                c = '0' if st == 0 else v(acc + jj * 16, 16)
                A(f'v_mfma_f32_32x32x16_bf16 {v(acc + jj * 16, 16)}, {v(wreg0 + 4 * (2 * st + jj), 4)}, {v(xreg[hh, st], 4)}, {c}')
                if hh == 1 and (st >= 3 or (NS == 4 and st >= 2)):
                    for _ in range(2 if NS == 4 else 1):
                        if pend:
                            A(pend.pop(0))
            if nxt < len(seq):
                xload(*seq[nxt])
                nxt += 1
                if nxt == len(seq):
                    if mode == 'qkv':
                        for e in range(4):
                            C.vmem(f'buffer_load_dwordx2 {v(QSX + 2 * e, 2)}, {v(QSX + 8)}, s[8:11], 0 offen offset:{e * 256}', 'sx')
                    flag_b(C)
                    hb = 0
            elif hook_b:
                hb += 1
            if hook_b and nxt == len(seq):
                hook_b(hb, PR)
            if hh == 1 and NS == 4 and st == 1:
                A('s_nop 7' if raw else 's_nop 5')
            if hh == 1 and NS != 4 and st == 2:
                A('s_nop 2')
        if hh == 0:
            pend = wr(1) + wr(5) + wr(3) + wr(7)
    assert not pend
    C.stamp()
    lkv = C.lab('nokv')
    if mode == 'qkv':
        la, lb = C.lab('ka'), C.lab('kb')
        A('s_cmp_ge_u32 s24, 2')
        A(f's_cbranch_scc1 {lb}')
        A('s_cmp_eq_u32 s24, s29')
        A(f's_cbranch_scc0 {la}')
        for hh in (1, 0):
            for st in range(4):
                c = '0' if st == 0 else v(KACC, 16)
                A(f'v_mfma_f32_32x32x16_bf16 {v(KACC, 16)}, {v(KVW + 4 * st, 4)}, {v(xreg[hh, st], 4)}, {c}')
            if hh == 1:
                A(f's_branch {lb}')
                A.label(la)
        A.label(lb)
        A('v_lshlrev_b32 v4, 3, v1')
        if not raw:
            C.wait('sx')
            for e in range(4):
                A(f'v_add_f32 {v(QSX + e)}, {v(QSX + e)}, {v(QSX + 4 + e)}')
            for e in range(2):
                A(f'v_add_f32 {v(QSX + e)}, {v(QSX + e)}, {v(QSX + 2 + e)}')
            A('s_lshl_b32 s30, s20, 9')
            A(f's_add_u32 s30, s30, {STAT}')
            A('v_add_u32 v2, s30, v4')
            A(f'ds_write_b64 v2, {v(QSX, 2)}')
        else:
            A('v_lshrrev_b32 v112, 5, v1')
            A('v_lshlrev_b32 v112, 4, v112')
            A('s_and_b32 s30, s28, 1')
            A('s_lshl_b32 s30, s30, 7')
            A('s_lshl_b32 s31, s26, 6')
            A('s_add_u32 s30, s30, s31')
            A(f's_add_u32 s30, s30, {CSK}')
            A('v_add_u32 v113, s30, v112')
            A('s_nop 3')
        A('v_and_b32 v4, 0xf8, v4')
        A('s_lshl_b32 s30, s29, 8')
        A(f's_add_u32 s30, s30, {STAT}')
        A('v_add_u32 v4, s30, v4')
    else:
        A('s_nop 10')
    for b in (4, 2, 6):
        for x in wr(b):
            A(x)
    if mode == 'qkv':
        A('s_cmp_ge_u32 s24, 2')
        A(f's_cbranch_scc1 {lkv}')
        A(f'v_add_u32 v2, {KVRED}, v8')
        for k4 in range(4):
            A(f'ds_write_b128 v2, {v(KACC + k4 * 4, 4)} offset:{(k4 >> 1) * 16 * KB + (k4 & 1) * 1024}')
        A.label(lkv)
    if hook_red:
        hook_red()
    A('s_waitcnt lgkmcnt(0)')
    A('s_barrier')
    for b in range(1, 8):
        for h2 in range(2):
            base, off = ('v8', (b - 1) * 16 * KB) if b <= 4 else ('v7', (b - 5) * 16 * KB)
            A(f'ds_read_b128 {v(ACCB + b * 8 + h2 * 4, 4)}, {base} offset:{off + h2 * 1024}')
    T = 80

    def red(base, waits):
        for stp in (32, 16, 8):
            for r in range(stp):
                A(f'v_add_f32 {v(base + r)}, {v(base + r)}, {v(base + stp + r)}')
    if mode == 'qkv':
        A('s_waitcnt lgkmcnt(6)')
        for ww in range(8):
            A(f'ds_read_b64 {v(T + ww * 2, 2)}, v4 offset:{ww * 512}')
        A('s_waitcnt lgkmcnt(8)')
        if raw:
            EX = 192
            for h2 in range(2):
                A(f'ds_read_b128 {v(EX + h2 * 4, 4)}, v113 offset:{h2 * 32}')
    else:
        C.wait('ex')
        for m in range(4):
            A(f'v_lshlrev_b32 {v(T + 2 * m)}, 16, {v(EX + m)}')
            A(f'v_and_b32 {v(T + 2 * m + 1)}, 0xffff0000, {v(EX + m)}')
        for r in range(8):
            A(f'v_add_f32 {v(ACCB + r)}, {v(ACCB + r)}, {v(T + r)}')
        A('s_waitcnt lgkmcnt(0)')
    red(ACCB, None)
    P = ACCB + 8
    if mode == 'qkv':
        A('s_waitcnt lgkmcnt(0)')
        for stp in (8, 4, 2):
            for e in range(stp):
                A(f'v_add_f32 {v(T + e)}, {v(T + e)}, {v(T + e + stp)}')
        A(f'v_mul_f32 {v(T)}, {f32(1.0 / 512)}, {v(T)}')
        A(f'v_mul_f32 {v(T + 1)}, {f32(1.0 / 512)}, {v(T + 1)}')
        A(f'v_fma_f32 {v(T + 1)}, -{v(T)}, {v(T)}, {v(T + 1)}')
        A(f'v_max_f32 {v(T + 1)}, 0, {v(T + 1)}')
        A(f'v_add_f32 {v(T + 1)}, {f32(1e-5)}, {v(T + 1)}')
        A(f'v_rsq_f32 {v(T + 1)}, {v(T + 1)}')
        C.wait('ex')
        for r in range(8):
            A(f'v_fma_f32 {v(ACCB + r)}, -{v(T)}, {v(EX + r)}, {v(ACCB + r)}')
        A(f'v_mul_f32 {v(T + 2)}, {f32(QSCALE)}, {v(T + 1)}')
        for r in range(8):
            A(f'v_mul_f32 {v(ACCB + r)}, {v(T + 2)}, {v(ACCB + r)}')
        for m in range(4):
            A(f'v_cvt_pk_bf16_f32 {v(P + m)}, {v(ACCB + 2 * m)}, {v(ACCB + 2 * m + 1)}')
        A(f's_add_u32 s31, s49, {C.qf}')
        C.vmem(f'buffer_store_dwordx4 {v(P, 4)}, v3, s[8:11], s31 offen{QWT}', 'st')
        le, lv = C.lab('ke'), C.lab('v')
        A('s_cmp_lg_u32 s29, s24')
        A(f's_cbranch_scc1 {le}')
        A('s_bfe_u32 s34, s20, 0x10001')
        A('s_lshl_b32 s30, s34, 14')
        A('s_lshl_b32 s31, s26, 10')
        A('s_add_u32 s30, s30, s31')
        A(f's_add_u32 s30, s30, {KVRED}')
        A('v_add_u32 v4, s30, v3')
        KR = 208
        for ww in range(8):
            A(f'ds_read_b128 {v(KR + ww * 4, 4)}, v4 offset:{ww * 2048}')
        KX = EX + 8
        if raw:
            A('s_lshl_b32 s30, s34, 6')
            A('s_lshl_b32 s31, s26, 5')
            A('s_add_u32 s30, s30, s31')
            A(f's_add_u32 s30, s30, {CSK + 256}')
            A('v_add_u32 v113, s30, v112')
            A(f'ds_read_b128 {v(KX, 4)}, v113')
        A('s_add_u32 s30, s27, s29')
        A(f's_mul_i32 s30, s30, {KVG}')
        A(f's_add_u32 s30, s30, {kvf}')
        A('v_bfe_u32 v4, v1, 4, 1')
        A(f'v_mul_u32_u24 v4, {VBS}, v4')
        A('v_bfe_u32 v5, v1, 2, 1')
        A('v_lshl_add_u32 v4, v5, 8, v4')
        A('v_and_b32 v5, 3, v1')
        A('v_lshl_add_u32 v4, v5, 1, v4')
        A('v_bfe_u32 v5, v1, 3, 1')
        A('v_lshl_add_u32 v4, v5, 3, v4')
        A('v_lshrrev_b32 v5, 5, v1')
        A('v_lshl_add_u32 v4, v5, 6, v4')
        A('s_waitcnt lgkmcnt(0)')
        for stp in (16, 8, 4):
            for r in range(stp):
                A(f'v_add_f32 {v(KR + r)}, {v(KR + r)}, {v(KR + stp + r)}')
        for r in range(4):
            A(f'v_fma_f32 {v(KR + r)}, -{v(T)}, {v(KX + r)}, {v(KR + r)}')
        for r in range(4):
            A(f'v_mul_f32 {v(KR + r)}, {v(T + 1)}, {v(KR + r)}')
        KP = KR + 8
        for m in range(2):
            A(f'v_cvt_pk_bf16_f32 {v(KP + m)}, {v(KR + 2 * m)}, {v(KR + 2 * m + 1)}')
        A('s_cmp_lg_u32 s34, 0')
        A(f's_cbranch_scc1 {lv}')
        A('s_lshl_b32 s31, s26, 3')
        A('s_add_u32 s31, s31, s30')
        A(f'buffer_store_dwordx2 {v(KP, 2)}, v3, s[8:11], s31 offen{QWT}')
        A(f's_branch {le}')
        A.label(lv)
        A('s_lshl_b32 s31, s26, 7')
        A('s_add_u32 s31, s31, s30')
        for r in range(4):
            op = 'buffer_store_short' if r % 2 == 0 else 'buffer_store_short_d16_hi'
            A(f'{op} {v(KP + r // 2)}, v4, s[8:11], s31 offen offset:{1024 + r * 16}{QWT}')
        A.label(le)
    else:
        for m in range(4):
            A(f'v_cvt_pk_bf16_f32 {v(P + m)}, {v(ACCB + 2 * m)}, {v(ACCB + 2 * m + 1)}')
        if mode == 'res':
            A(f's_add_u32 s31, s49, {outbase}')
            C.vmem(f'buffer_store_dwordx4 {v(P, 4)}, v3, s[8:11], s31 offen{WT}', 'st')
            blk_stats(C, P, T)
            A('s_lshr_b32 s31, s49, 2')
            A(f's_add_u32 s31, s31, {sxout}')
            A('v_lshlrev_b32 v4, 3, v1')
            A('s_mov_b32 exec_hi, 0')
            C.vmem(f'buffer_store_dwordx2 {v(T, 2)}, v4, s[8:11], s31 offen{WT}', 'st')
            A('s_mov_b64 exec, -1')
            if after_store:
                after_store()
        else:
            A('v_and_b32 v4, 31, v1')
            A('v_lshlrev_b32 v4, 10, v4')
            A('v_lshrrev_b32 v5, 5, v1')
            A('v_lshl_add_u32 v4, v5, 4, v4')
            A('s_add_u32 s30, s27, s29')
            A('s_lshl_b32 s30, s30, 15')
            A('s_lshl_b32 s31, s28, 6')
            A('s_add_u32 s30, s30, s31')
            A('s_lshl_b32 s31, s26, 5')
            A('s_add_u32 s30, s30, s31')
            A(f'v_permlane32_swap_b32 {v(P)}, {v(P + 2)}')
            A(f'v_permlane32_swap_b32 {v(P + 1)}, {v(P + 3)}')
            C.vmem(f'buffer_store_dwordx4 {v(P, 4)}, v4, s[12:15], s30 offen', 'st')


def qkv_wstep(C, st, n=1):
    A = C.A
    if st == 0:
        g3_waddr(C, (5, 6), 32, WQKVP)
    per = -(-8 // n)
    for i in range(st * per, min(8, (st + 1) * per)):
        g3_wload(C, (5, 6), i, 128)
    if st == n:
        A('s_lshl_b32 s30, s20, 12')
        A(f's_add_u32 s30, s30, {WQKVP + 16 * 32 * KB}')
        l = C.lab('kw')
        A('s_cmp_ge_u32 s24, 2')
        A(f's_cbranch_scc1 {l}')
        for k in range(4):
            A(f'buffer_load_dwordx4 {v(KVW + 4 * k, 4)}, v3, s[8:11], s30 offen offset:{k * 1024}')
        A.label(l)


def qkv_wloads(C):
    qkv_wstep(C, 0)
    qkv_wstep(C, 1)


KVR4, XF0, ST4, RED4 = 0, 36 * KB, 68 * KB, 80 * KB
G4_ORD = [0, 1, 4, 5, 8, 9, 12, 13, 2, 3, 6, 7, 10, 11, 14, 15]


def g4_ids(C):
    A = C.A
    A('s_and_b32 s18, s22, 3')
    A('s_lshl_b32 s30, s21, 2')
    A('s_add_u32 s18, s18, s30')
    A('s_and_b32 s30, s22, 12')
    A('s_add_u32 s30, s30, s25')
    A('s_lshl_b32 s30, s30, 1')
    A('s_add_u32 s30, s30, s26')
    A('s_lshl_b32 s19, s18, 5')
    A('s_add_u32 s19, s19, s30')
    A('s_lshl_b32 s19, s19, 10')
    A('s_lshr_b32 s3, s22, 2')
    A('s_and_b32 s30, s21, 3')
    A('s_xor_b32 s3, s3, s30')


def g4_waddr(C, vreg, wbase):
    A = C.A
    A('s_lshl_b32 s30, s26, 8')
    A(f'v_xor_b32 {v(vreg)}, s30, v3')
    A('s_and_b32 s30, s19, 0x7fff')
    A('s_lshl_b32 s30, s30, 4')
    A(f's_add_u32 s30, s30, {wbase}')
    A(f'v_add_u32 {v(vreg)}, s30, {v(vreg)}')


def g4_wreg(mode, i):
    if mode == 'qkv':
        return 128 + 4 * i
    return 224 + 4 * i if i < 8 else 64 + 4 * (i - 8)


def g4_wload(C, vreg, i, mode):
    so, im = soff(G4_ORD[i])
    C.vmem(f'buffer_load_dwordx4 {v(g4_wreg(mode, i), 4)}, {v(vreg)}, s[8:11], {so} offen offset:{im}', 'w')


def g4_pre(C, mode, xbase, resbase=None, raw=False):
    A = C.A
    EX = 96
    A('s_lshl_b32 s30, s18, 15')
    A('s_lshl_b32 s48, s20, 12')
    A('s_add_u32 s30, s30, s48')
    A(f's_add_u32 s30, s30, {xbase}')
    A('v_add_u32 v5, s30, v3')
    A('s_lshl_b32 s30, s26, 14')
    A(f's_add_u32 s30, s30, {XF0}')
    A('v_add_u32 v6, s30, v3')
    A(f'v_add_u32 v14, s48, v3')
    A(f's_add_u32 s48, s48, {XF0}')
    A('s_lshl_b32 s30, s20, 11')
    A(f's_add_u32 s30, s30, {RED4}')
    A('v_add_u32 v8, s30, v3')
    A('v_xor_b32 v7, 0x2000, v8')
    if mode == 'qkv':
        A('v_lshrrev_b32 v2, 5, v1')
        if not raw:
            A('v_lshlrev_b32 v4, 4, v2')
            A('s_and_b32 s31, s19, 0x7fff')
            A('s_lshr_b32 s31, s31, 4')
            A(f's_add_u32 s31, s31, {CSQKV}')
            C.vmem(f'buffer_load_dwordx4 {v(EX, 4)}, v4, s[8:11], s31 offen', 'ex')
            C.vmem(f'buffer_load_dwordx4 {v(EX + 4, 4)}, v4, s[8:11], s31 offen offset:32', 'ex')
            A('s_lshl_b32 s31, s25, 5')
            A(f's_add_u32 s31, s31, {CSQKV + 2048}')
            C.vmem(f'buffer_load_dwordx4 {v(EX + 8, 4)}, v4, s[8:11], s31 offen', 'ex')
        A('v_and_b32 v9, 31, v1')
        A('v_lshlrev_b32 v9, 3, v9')
        A(f'v_add_u32 v11, {ST4}, v9')
        A('s_lshl_b32 s30, s20, 8')
        A('v_add_u32 v10, s30, v11')
        A('v_lshl_add_u32 v9, v2, 9, v9')
        A('s_lshl_b32 s30, s18, 13')
        A('s_lshl_b32 s31, s20, 10')
        A('s_add_u32 s30, s30, s31')
        A(f's_add_u32 s30, s30, {resbase}')
        A('v_add_u32 v9, s30, v9')
        A('v_add_u32 v12, s48, v3')
        A('s_lshl_b32 s30, s25, 10')
        A(f's_add_u32 s30, s30, {KVR4}')
        A('v_add_u32 v13, s30, v3')
        A('v_bfe_u32 v15, v1, 4, 1')
        A('v_lshlrev_b32 v15, 9, v15')
        A('v_bfe_u32 v4, v1, 2, 1')
        A('v_lshl_add_u32 v15, v4, 8, v15')
        A('v_and_b32 v4, 3, v1')
        A('v_lshl_add_u32 v15, v4, 1, v15')
        A('v_bfe_u32 v4, v1, 3, 1')
        A('v_lshl_add_u32 v15, v4, 3, v15')
        A('v_lshl_add_u32 v15, v2, 6, v15')
    elif resbase is None:
        A('v_and_b32 v2, 31, v1')
        A('v_lshlrev_b32 v2, 10, v2')
        A('v_lshrrev_b32 v4, 5, v1')
        A('v_lshl_add_u32 v2, v4, 3, v2')
        A('s_lshl_b32 s30, s18, 15')
        A('s_and_b32 s31, s19, 0x7fff')
        A('s_lshr_b32 s31, s31, 5')
        A('s_add_u32 s30, s30, s31')
        C.vmem(f'buffer_load_dwordx2 {v(EX, 2)}, v2, s[12:15], s30 offen', 'ex')
        C.vmem(f'buffer_load_dwordx2 {v(EX + 2, 2)}, v2, s[12:15], s30 offen offset:16', 'ex')
    else:
        A(f's_add_u32 s31, s19, {resbase}')
        C.vmem(f'buffer_load_dwordx4 {v(EX, 4)}, v3, s[8:11], s31 offen', 'ex')


def ln_stats(A, T):
    for stp in (8, 4, 2):
        for e in range(stp):
            A(f'v_add_f32 {v(T + e)}, {v(T + e)}, {v(T + e + stp)}')
    A(f'v_mul_f32 {v(T)}, {f32(1.0 / 512)}, {v(T)}')
    A(f'v_mul_f32 {v(T + 1)}, {f32(1.0 / 512)}, {v(T + 1)}')
    A(f'v_fma_f32 {v(T + 1)}, -{v(T)}, {v(T)}, {v(T + 1)}')
    A(f'v_max_f32 {v(T + 1)}, 0, {v(T + 1)}')
    A(f'v_add_f32 {v(T + 1)}, {f32(1e-5)}, {v(T + 1)}')
    A(f'v_rsq_f32 {v(T + 1)}, {v(T + 1)}')


def g4_main(C, mode, outbase=None, sxout=None, kvf=None, kfl=None, hook_red=None, raw=None, endlab=None):
    A = C.A
    ACC, XR, EX = 16, 32, 96
    KW, KA, KR, T = 192, 208, 224, 108
    if not raw:
        A('s_mov_b32 m0, s48')
        A('s_nop 0')
        for k in range(4):
            C.vmem(f'buffer_load_dwordx4 v5, s[8:11], 0 offen offset:{k * 1024} lds', f'x{k}')

    def rd(i):
        A(f'ds_read_b128 {v(XR + 4 * (i % 8), 4)}, v6 offset:{G4_ORD[i] * 1024}')

    def mf(i):
        c = '0' if i == 0 else v(ACC, 16)
        A(f'v_mfma_f32_32x32x16_bf16 {v(ACC, 16)}, {v(g4_wreg(mode, i), 4)}, {v(XR + 4 * (i % 8), 4)}, {c}')

    def wq_loads():
        for i in range(16):
            so, im = soff(G4_ORD[i])
            A(f'buffer_load_dwordx4 {v(128 + 4 * i, 4)}, v64, s[8:11], {so} offen offset:{im}')

    if mode == 'qkv':
        A('s_add_u32 s35, s3, s26')
        if raw:
            raw['front']()
        else:
            for e in range(2):
                C.vmem(f'buffer_load_dwordx2 {v(T + 2 * e, 2)}, v9, s[8:11], 0 offen offset:{e * 256}', 'sx')
            l1, l2 = C.lab('w1'), C.lab('w2')
            A('s_cmp_eq_u32 s3, 0')
            A(f's_cbranch_scc1 {l1}')
            flag_b(C)
            wq_loads()
            A('s_waitcnt vmcnt(16)')
            A(f's_branch {l2}')
            A.label(l1)
            A('s_waitcnt vmcnt(0)')
            A.label(l2)
            C.vm = []
            C.stamp()
        lk = C.lab('k4')
        A('s_cmp_lg_u32 s3, 0')
        A(f's_cbranch_scc1 {lk}')
        if raw:
            raw['kvw']()
        else:
            for k in range(4):
                A(f'ds_read_b128 {v(KR + 4 * k, 4)}, v12 offset:{k * 1024}')
        for k in range(4):
            if not raw:
                A(f's_waitcnt lgkmcnt({3 - k})')
            A(f'v_mfma_f32_32x32x16_bf16 {v(KA, 16)}, {v(KW + 4 * k, 4)}, {v(KR + 4 * k, 4)}, {"0" if k == 0 else v(KA, 16)}')
        A.label(lk)
        A(f'v_add_f32 {v(T)}, {v(T)}, {v(T + 2)}')
        A(f'v_add_f32 {v(T + 1)}, {v(T + 1)}, {v(T + 3)}')
        A(f'v_mov_b32 {v(T + 2)}, {v(T)}')
        A(f'v_mov_b32 {v(T + 3)}, {v(T + 1)}')
        A('s_nop 1')
        swap_add(A, T, T + 2)
        swap_add(A, T + 1, T + 3)
        A(f'ds_write_b64 v10, {v(T, 2)}')
        A(f'v_mov_b32 {v(T + 2)}, 0')
        A(f'v_mov_b32 v9, {ST4 + 8192}')
        A(f'ds_write_b32 v9, {v(T + 2)}')
        lk = C.lab('k5')
        A('s_cmp_lg_u32 s3, 0')
        A(f's_cbranch_scc1 {lk}')
        for k in range(4):
            A(f'ds_write_b128 v14, {v(KA + 4 * k, 4)} offset:{k * 1024}')
        A.label(lk)
        A('s_waitcnt lgkmcnt(0)')
        A('s_barrier')
        for ww in range(8):
            A(f'ds_read_b64 {v(T + 2 * ww, 2)}, v11 offset:{ww * 256}')
        lv, le, lf = C.lab('v6'), C.lab('e6'), C.lab('f6')
        A('s_cmp_lg_u32 s35, 0')
        A(f's_cbranch_scc1 {le}')
        A('s_setprio 3')
        if FINE == 3:
            C.stamp()
        A('s_waitcnt lgkmcnt(4)')
        for ww in range(8):
            A(f'ds_read_b128 {v(KR + 4 * ww, 4)}, v13 offset:{ww * 4096}')
        A('s_waitcnt lgkmcnt(8)')
        for r in range(16):
            A(f'v_mov_b32 {v(KA + r)}, {v(T + r)}')
        ln_stats(A, KA)
        A('s_lshl_b32 s30, s18, 11')
        A(f's_add_u32 s30, s30, {kvf}')
        A('s_waitcnt lgkmcnt(0)')
        if raw:
            raw['kvcs0']()
        for stp in (16, 8, 4):
            for r in range(stp):
                A(f'v_add_f32 {v(KR + r)}, {v(KR + r)}, {v(KR + stp + r)}')
        if raw:
            raw['kvcs1']()
        for r in range(4):
            A(f'v_fma_f32 {v(KR + r)}, -{v(KA)}, {v(EX + 8 + r)}, {v(KR + r)}')
        for r in range(4):
            A(f'v_mul_f32 {v(KR + r)}, {v(KA + 1)}, {v(KR + r)}')
        for m in range(2):
            A(f'v_cvt_pk_bf16_f32 {v(KR + 8 + m)}, {v(KR + 2 * m)}, {v(KR + 2 * m + 1)}')
        A('s_cmp_ge_u32 s20, 2')
        A(f's_cbranch_scc1 {lv}')
        A('s_lshl_b32 s31, s20, 3')
        A('s_add_u32 s31, s31, s30')
        A(f'buffer_store_dwordx2 {v(KR + 8, 2)}, v3, s[8:11], s31 offen sc0 sc1')
        A(f's_branch {lf}')
        A.label(lv)
        A('s_lshl_b32 s31, s29, 10')
        A(f's_add_u32 s31, s31, {ST4 + 4096}')
        A('v_add_u32 v15, s31, v15')
        for r in range(4):
            op = 'ds_write_b16' if r % 2 == 0 else 'ds_write_b16_d16_hi'
            A(f'{op} v15, {v(KR + 8 + r // 2)} offset:{r * 16}')
        A('v_lshrrev_b32 v2, 3, v1')
        A('v_lshlrev_b32 v2, 8, v2')
        A(f'v_and_b32 {v(KR)}, 7, v1')
        A(f'v_lshl_add_u32 v2, {v(KR)}, 4, v2')
        A('v_add_u32 v15, s31, v2')
        A('s_mov_b32 exec_hi, 0')
        A(f'ds_read_b128 {v(KR + 12, 4)}, v15')
        A('s_lshl_b32 s31, s29, 7')
        A('s_add_u32 s31, s31, s30')
        A('s_waitcnt lgkmcnt(0)')
        A(f'buffer_store_dwordx4 {v(KR + 12, 4)}, v2, s[8:11], s31 offen offset:1024 sc0 sc1')
        A('s_mov_b64 exec, -1')
        A.label(lf)
        lg = C.lab('g6')
        if FINE == 3:
            C.stamp()
        A('s_lshl_b32 s30, s18, 7')
        A(f's_add_u32 s30, s30, {kfl}')
        if raw:
            raw['zchk']()
        A('s_mov_b64 exec, 1')
        A('s_waitcnt vmcnt(0)')
        A('ds_add_rtn_u32 v2, v9, v4')
        A('s_waitcnt lgkmcnt(0)')
        A('v_cmp_eq_u32 vcc, 3, v2')
        A('s_cbranch_vccz ' + lg)
        A('buffer_store_dword v4, v0, s[8:11], s30 offen sc0 sc1')
        A.label(lg)
        A('s_mov_b64 exec, -1')
        A('s_setprio 0')
        if FINE == 3:
            C.stamp()
        A.label(le)
        flag_b(C)
        A('s_waitcnt lgkmcnt(0)')
        if raw:
            raw['wprep']()
        else:
            l3 = C.lab('w3')
            A('s_cmp_lg_u32 s3, 0')
            A(f's_cbranch_scc1 {l3}')
            C.flagb = True
            flag_b(C)
            wq_loads()
            A.label(l3)
        if raw:
            raw['loop'](rd, mf)
        else:
            for i in range(8):
                rd(i)
            ln_stats(A, T)
            for i in range(16):
                A(f's_waitcnt lgkmcnt({7 if i < 8 else 15 - i}) vmcnt({15 - i})')
                mf(i)
                if i < 8:
                    rd(i + 8)
    else:
        def wl(i):
            so, im = soff(G4_ORD[i])
            C.vmem(f'buffer_load_dwordx4 {v(g4_wreg(mode, i), 4)}, v116, s[8:11], {so} offen offset:{im}', f'w{i}')
        if WO_LATE:
            for i in range(8, 8 + WO_L0):
                wl(i)
        C.wait('x1')
        A('s_barrier')
        C.stamp()
        for i in range(8):
            rd(i)
        if WO_LATE:
            for i in range(8 + WO_L0, 16):
                wl(i)
        for i in range(4):
            A(f's_waitcnt lgkmcnt({7 - i})')
            mf(i)
        C.wait('x3')
        A('s_barrier')
        for i in range(8, 12):
            rd(i)
        for i in range(4, 8):
            A('s_waitcnt lgkmcnt(7)')
            mf(i)
            rd(i + 8)
        flag_b(C)
        for i in range(8, 16):
            C.wait(f'w{i}', f'lgkmcnt({15 - i})')
            mf(i)
            if hook_red and i >= 8:
                hook_red(i - 8)
    C.stamp()
    if mode == 'qkv':
        kv_setup(C, kvf, kfl)
        A(f'v_mul_f32 {v(T + 2)}, {f32(QSCALE)}, {v(T + 1)}')
        if raw:
            raw['cs0']()
    else:
        C.wait('ex')
        TT = XR
        for m in range(4):
            A(f'v_lshlrev_b32 {v(TT + 2 * m)}, 16, {v(EX + m)}')
            A(f'v_and_b32 {v(TT + 2 * m + 1)}, 0xffff0000, {v(EX + m)}')
        A('s_nop 3')
    for h2 in range(2):
        A(f'ds_write_b128 v7, {v(ACC + 8 + 4 * h2, 4)} offset:{h2 * 1024}')
    if mode == 'qkv':
        if not raw:
            for r in range(8):
                A(f'v_fma_f32 {v(ACC + r)}, -{v(T)}, {v(EX + r)}, {v(ACC + r)}')
    else:
        for r in range(8):
            A(f'v_add_f32 {v(ACC + r)}, {v(ACC + r)}, {v(XR + r)}')
    A('s_waitcnt lgkmcnt(0)')
    A('s_barrier')
    for h2 in range(2):
        A(f'ds_read_b128 {v(ACC + 8 + 4 * h2, 4)}, v8 offset:{h2 * 1024}')
    if mode == 'qkv':
        if FINE == 3:
            C.stamp()
        kv_wait(C, 1, endlab)
        if FINE == 3:
            C.stamp()
        att_kvdma(C, 0)
        kv_flagload(C)
    if raw:
        raw['cs']()
        for r in range(8):
            A(f'v_fma_f32 {v(ACC + r)}, -{v(T)}, {v(EX + r)}, {v(ACC + r)}')
    A('s_waitcnt lgkmcnt(0)')
    for r in range(8):
        A(f'v_add_f32 {v(ACC + r)}, {v(ACC + r)}, {v(ACC + 8 + r)}')
    if mode == 'qkv':
        for r in range(8):
            A(f'v_mul_f32 {v(ACC + r)}, {v(T + 2)}, {v(ACC + r)}')
        for m in range(4):
            A(f'v_cvt_pk_bf16_f32 {v(124 + m)}, {v(ACC + 2 * m)}, {v(ACC + 2 * m + 1)}')
        A('s_barrier')
    else:
        P = ACC + 8
        for m in range(4):
            A(f'v_cvt_pk_bf16_f32 {v(P + m)}, {v(ACC + 2 * m)}, {v(ACC + 2 * m + 1)}')
        A(f's_add_u32 s31, s19, {outbase}')
        C.vmem(f'buffer_store_dwordx4 {v(P, 4)}, v3, s[8:11], s31 offen{WT}', 'st')
        blk_stats(C, P, XR)
        A('s_lshr_b32 s31, s19, 2')
        A(f's_add_u32 s31, s31, {sxout}')
        A('v_lshlrev_b32 v4, 3, v1')
        A('s_mov_b32 exec_hi, 0')
        C.vmem(f'buffer_store_dwordx2 {v(XR, 2)}, v4, s[8:11], s31 offen{WT}', 'st')
        A('s_mov_b64 exec, -1')


def qkv4_wstep(C, st, n):
    pass


def qkv4_wrest(C):
    A = C.A
    l = C.lab('kw')
    A('s_lshl_b32 s30, s20, 12')
    A(f's_add_u32 s30, s30, {WQKVP + 16 * 32 * KB}')
    A('s_cmp_lg_u32 s3, 0')
    A(f's_cbranch_scc1 {l}')
    for k in range(4):
        A(f'buffer_load_dwordx4 {v(192 + 4 * k, 4)}, v3, s[8:11], s30 offen offset:{k * 1024}')
    A.label(l)


def att_kvdma(C, r):
    A = C.A
    A(f's_add_u32 s30, s39, {r * 16384}')
    A('s_and_b32 s30, s30, 0x1ffff')
    A(f's_add_u32 m0, s37, {r * 8 * KVT}')
    A('s_add_u32 s30, s30, s38')
    A('buffer_load_dwordx4 v3, s[8:11], s30 offen lds')
    A('buffer_load_dwordx4 v3, s[8:11], s30 offen offset:1024 lds')


def kv_flagload(C):
    A = C.A
    A('s_mov_b64 exec, 0xff')
    A('buffer_load_dword v2, v0, s[8:11], s33 offen sc1')
    A('s_mov_b64 exec, -1')


def kv_setup(C, kvf, kfl):
    A = C.A
    A(f's_mul_i32 s37, s20, {KVT}')
    A('s_lshl_b32 s38, s20, 11')
    A(f's_add_u32 s38, s38, {kvf}')
    A('s_lshr_b32 s30, s21, 1')
    A('s_lshl_b32 s39, s30, 14')
    A('v_add_u32 v0, s30, v1')
    A('v_and_b32 v0, 7, v0')
    A('v_lshlrev_b32 v0, 10, v0')
    A('s_lshl_b32 s33, s20, 7')
    A(f's_add_u32 s33, s33, {kfl}')
    kv_flagload(C)


def kv_wait(C, mask, endlab):
    A = C.A
    lp, lpd = C.lab('kp'), C.lab('kpd')
    A('s_mov_b32 s31, 0')
    A('s_mov_b64 exec, 0xff')
    A.label(lp)
    A('s_add_u32 s31, s31, 1')
    A('s_waitcnt vmcnt(0)')
    A('v_cmp_ne_u32 vcc, 0, v2')
    A(f's_and_b32 s30, vcc_lo, {mask}')
    A(f's_cmp_eq_u32 s30, {mask}')
    A(f's_cbranch_scc1 {lpd}')
    A(f's_sleep {KV_SLEEP}')
    A('buffer_load_dword v2, v0, s[8:11], s33 offen sc1')
    A(f's_cmp_lt_u32 s31, {1 << 21}')
    A(f's_cbranch_scc1 {lp}')
    A(f's_branch {endlab}')
    A.label(lpd)
    A('s_mov_b64 exec, -1')


def att_phase(C, kvf, kfl, endlab, stubs, fixed={}, pf0=None, pre_hook=None, loadq=True, early=False):
    A = C.A
    tg = C.tag
    Q, CN, S0, S1, O, P, KF, VF, VK, VV, T = 124, 8, 24, 40, 56, 72, 80, 88, 104, 105, 106
    VV1 = 111
    S = [S0, S1]
    A(f's_add_u32 s36, s19, {C.B["OF"]}')
    if loadq:
        A(f's_add_u32 s31, s19, {C.B["QF"]}')
        C.vmem(f'buffer_load_dwordx4 {v(Q, 4)}, v3, s[8:11], s31 offen', 'q')
        flag_b(C)
    def kvdma(r):
        att_kvdma(C, r)
    if pre_hook:
        pre_hook()
    A(f'v_mov_b32 {v(VK)}, v3')
    A(f'v_and_b32 {v(T)}, 15, v1')
    A(f'v_lshrrev_b32 {v(T + 1)}, 5, v1')
    A(f'v_lshl_add_u32 {v(T)}, {v(T + 1)}, 4, {v(T)}')
    A(f'v_lshlrev_b32 {v(T)}, 4, {v(T)}')
    A(f'v_add_u32 {v(VV)}, 1024, {v(T)}')
    A(f'v_add_u32 {v(VV1)}, 1536, {v(T)}')
    A(f'v_and_b32 {v(T + 1)}, 31, v1')
    A(f'v_cmp_eq_u32 vcc, 16, {v(T + 1)}')
    A(f'v_mov_b32 {v(T + 2)}, 2048')
    A('s_nop 0')
    A(f'v_cndmask_b32 {v(VV)}, {v(VV)}, {v(T + 2)}, vcc')
    A(f'v_cndmask_b32 {v(VV1)}, {v(VV1)}, {v(T + 2)}, vcc')
    A(f'v_cmp_lt_u32 vcc, 16, {v(T + 1)}')
    A(f'v_mov_b32 {v(T + 2)}, 2064')
    A('s_nop 0')
    A(f'v_cndmask_b32 {v(VV)}, {v(VV)}, {v(T + 2)}, vcc')
    A(f'v_cndmask_b32 {v(VV1)}, {v(VV1)}, {v(T + 2)}, vcc')
    for r in range(16):
        A(f'v_mov_b32 {v(O + r)}, 0')
    for m in range(4, 8):
        A(f'v_mov_b32 {v(P + m)}, 0')
    for m in range(4):
        A(f'v_mov_b32 {v(VF + 12 + m)}, 0')
        A(f'v_mov_b32 {v(P + m)}, 0x3f803f80')
    A(f'v_mul_u32_u24 {v(T)}, {KVT}, v1')
    lcw = C.lab('cw')
    A('s_cmp_lg_u32 s20, 7')
    A(f's_cbranch_scc1 {lcw}')
    A(f'ds_write_b128 {v(T)}, {v(P, 4)} offset:2048')
    A(f'ds_write_b128 {v(T)}, {v(P + 4, 4)} offset:2064')
    A.label(lcw)
    lnd = C.lab('nd')
    A('s_waitcnt vmcnt(0) lgkmcnt(0)')
    A('v_cmp_ne_u32 vcc, 0, v2')
    A('s_barrier')
    A('s_and_b32 s32, vcc_lo, 0xff')
    A('s_cmp_lg_u32 s32, 0xff')
    A(f's_cbranch_scc1 {lnd}')
    for r in range(1, 4):
        kvdma(r)
    A.label(lnd)
    C.vm = []
    C.stamp()

    def rdK(buf, t):
        A(f'ds_read_b128 {v(KF + buf * 4, 4)}, {v(VK)} offset:{t * KVT}')

    def rdV(buf, t):
        A(f'ds_read_b128 {v(VF + buf * 8, 4)}, {v(VV)} offset:{t * KVT}')
        A(f'ds_read_b128 {v(VF + buf * 8 + 4, 4)}, {v(VV1)} offset:{t * KVT}')

    rdK(0, 0)
    rdK(1, 1)
    rdV(0, 0)
    A('s_waitcnt lgkmcnt(3)')
    A(f'v_mfma_f32_32x32x16_bf16 {v(S0, 16)}, {v(KF, 4)}, {v(Q, 4)}, 0')
    A('s_nop 11')
    A(f'v_max3_f32 {v(T)}, {v(S0)}, {v(S0 + 1)}, {v(S0 + 2)}')
    for r in range(3, 15, 2):
        A(f'v_max3_f32 {v(T)}, {v(T)}, {v(S0 + r)}, {v(S0 + r + 1)}')
    A(f'v_max_f32 {v(T)}, {v(T)}, {v(S0 + 15)}')
    A(f'v_mov_b32 {v(T + 1)}, {v(T)}')
    A('s_nop 1')
    A(f'v_permlane32_swap_b32 {v(T)}, {v(T + 1)}')
    A(f'v_max_f32 {v(T)}, {v(T)}, {v(T + 1)}')
    for r in range(16):
        A(f'v_sub_f32 {v(CN + r)}, 0, {v(T)}')
    for r in range(16):
        A(f'v_sub_f32 {v(S0 + r)}, {v(S0 + r)}, {v(T)}')
    A('s_setprio 3')
    C.stamp()
    def tile(t, off, extra=None):
        cur, nxt = t & 1, (t + 1) & 1
        Sc, Sn = S[cur], S[nxt]
        if not ONEWAIT:
            A('s_waitcnt lgkmcnt(2)')
        A(f'v_mfma_f32_32x32x16_bf16 {v(Sn, 16)}, {v(KF + nxt * 4, 4)}, {v(Q, 4)}, {v(CN, 16)}')
        rdK(cur, off + 2)
        for r in range(6):
            A(f'v_exp_f32 {v(Sc + r)}, {v(Sc + r)}')
        A(f'v_mfma_f32_32x32x16_bf16 {v(O, 16)}, {v(VF + nxt * 8 + 4, 4)}, {v(P + 4, 4)}, {v(O, 16)}')
        if extra:
            extra()
        for r in range(6, 8):
            A(f'v_exp_f32 {v(Sc + r)}, {v(Sc + r)}')
        for m in range(4):
            A(f'v_cvt_pk_bf16_f32 {v(P + m)}, {v(Sc + 2 * m)}, {v(Sc + 2 * m + 1)}')
        A(f'v_exp_f32 {v(Sc + 8)}, {v(Sc + 8)}')
        A(f'v_exp_f32 {v(Sc + 9)}, {v(Sc + 9)}')
        A('s_waitcnt lgkmcnt(0)' if ONEWAIT else 's_waitcnt lgkmcnt(1)')
        A(f'v_mfma_f32_32x32x16_bf16 {v(O, 16)}, {v(VF + cur * 8, 4)}, {v(P, 4)}, {v(O, 16)}')
        rdV(nxt, off + 1)
        for r in range(10, 16):
            A(f'v_exp_f32 {v(Sc + r)}, {v(Sc + r)}')
        for m in range(4, 8):
            A(f'v_cvt_pk_bf16_f32 {v(P + m)}, {v(Sc + 2 * m)}, {v(Sc + 2 * m + 1)}')

    def bump(n):
        for rg in (VK, VV, VV1):
            A(f'v_add_u32 {v(rg)}, {n * KVT}, {v(rg)}')
    if ONEWAIT:
        A('s_waitcnt lgkmcnt(0)')
    queue = list(stubs)
    nq = len(queue)
    tpf0 = pf0 if pf0 else TB2
    ntl = 64 - TPFEND - tpf0
    prio = {TP2: 2, TP1: 1, TP0: 0}
    dq = list(range(4, 8))
    for t in range(64):
        if t == TCHK:
            ld = C.lab('dn')
            A('s_cmp_eq_u32 s32, 0xff')
            A(f's_cbranch_scc1 {ld}')
            kv_flagload(C)
            kv_wait(C, 0xff, endlab)
            for r in range(1, 4):
                kvdma(r)
            A.label(ld)
        if t == 6 and TB2 != 6:
            assert not dq
            A('s_waitcnt vmcnt(12)')
            A('s_barrier')
        if t == TB2:
            assert not dq
            A('s_waitcnt vmcnt(0)')
            A('s_barrier')
        if t in prio:
            A(f's_setprio {prio[t]}')
        if t in fixed:
            fixed[t]()
        fs = []
        if t >= TCHK:
            for _ in range(DPT):
                if dq:
                    fs.append(lambda r=dq.pop(0): kvdma(r))
        if t >= tpf0 and queue:
            k = t - tpf0
            n = (nq * (k + 1)) // ntl - (nq * k) // ntl
            fs += [queue.pop(0) for _ in range(min(n, len(queue)))]
        tile(t, t % 24 if t < 48 else t - 48, lambda fs=fs: [f() for f in fs])
        if t in (23, 47):
            bump(24)
        if t == 63:
            bump(16)
    assert not queue
    A(f'v_mfma_f32_32x32x16_bf16 {v(O, 16)}, {v(VF + 8 + 4, 4)}, {v(P + 4, 4)}, {v(O, 16)}')
    A('s_mov_b32 s39, 0')
    C.stamp()
    A('s_waitcnt lgkmcnt(0)')
    A('s_nop 10')
    A.label(f'{tg}_fin')
    A(f'v_mov_b32 {v(T)}, {v(O + 8)}')
    A(f'v_mov_b32 {v(T + 1)}, {v(O + 8)}')
    A(f'v_mul_f32 {v(T + 2)}, 0, {v(O)}')
    A(f'v_fma_f32 {v(T + 2)}, {v(O + 1)}, 0, {v(T + 2)}')
    A(f'v_permlane32_swap_b32 {v(T)}, {v(T + 1)}')
    for r in range(2, 8):
        A(f'v_fma_f32 {v(T + 2)}, {v(O + r)}, 0, {v(T + 2)}')
    A(f'v_add_f32 {v(T + 2)}, {v(T + 2)}, {v(T)}')
    A(f'v_mov_b32 {v(T + 3)}, {f32(2.0 ** 30)}')
    A(f'v_cmp_nle_f32 vcc, {v(T + 2)}, {v(T + 3)}')
    A(f'v_rcp_f32 {v(T)}, {v(T)}')
    A('s_cmp_eq_u32 s39, 99')
    A(f's_cbranch_scc1 {tg}_store')
    A(f's_cbranch_vccnz {tg}_slow')
    A.label(f'{tg}_store')
    for r in range(8):
        A(f'v_mul_f32 {v(O + r)}, {v(T)}, {v(O + r)}')
    for m in range(4):
        A(f'v_cvt_pk_bf16_f32 {v(P + m)}, {v(O + 2 * m)}, {v(O + 2 * m + 1)}')
    C.vmem(f'buffer_store_dwordx4 {v(P, 4)}, v3, s[8:11], s36 offen{WT}', 'st')

    def tail(with_body):
        A.label(f'{tg}_slow')
        A(f'v_subrev_u32 {v(VK)}, {64 * KVT}, {v(VK)}')
        A(f'v_subrev_u32 {v(VV)}, {64 * KVT}, {v(VV)}')
        A(f'v_subrev_u32 {v(VV1)}, {64 * KVT}, {v(VV1)}')
        for r in range(16):
            A(f'v_mov_b32 {v(O + r)}, 0')
        M = T + 4
        A(f'v_sub_f32 {v(M)}, 0, {v(CN)}')
        A.label(f'{tg}_sloop')
        rdK(0, 0)
        rdV(0, 0)
        A('s_waitcnt lgkmcnt(0)')
        A(f'v_mfma_f32_32x32x16_bf16 {v(S0, 16)}, {v(KF, 4)}, {v(Q, 4)}, 0')
        A('s_nop 11')
        A(f'v_max3_f32 {v(T)}, {v(S0)}, {v(S0 + 1)}, {v(S0 + 2)}')
        for r in range(3, 15, 2):
            A(f'v_max3_f32 {v(T)}, {v(T)}, {v(S0 + r)}, {v(S0 + r + 1)}')
        A(f'v_max3_f32 {v(T)}, {v(T)}, {v(S0 + 15)}, {v(M)}')
        A(f'v_mov_b32 {v(T + 1)}, {v(T)}')
        A('s_nop 1')
        A(f'v_permlane32_swap_b32 {v(T)}, {v(T + 1)}')
        A(f'v_max_f32 {v(T)}, {v(T)}, {v(T + 1)}')
        A(f'v_sub_f32 {v(T + 1)}, {v(M)}, {v(T)}')
        A(f'v_exp_f32 {v(T + 1)}, {v(T + 1)}')
        A(f'v_mov_b32 {v(M)}, {v(T)}')
        for r in range(16):
            A(f'v_sub_f32 {v(S0 + r)}, {v(S0 + r)}, {v(T)}')
        for r in range(16):
            A(f'v_exp_f32 {v(S0 + r)}, {v(S0 + r)}')
        for r in range(16):
            A(f'v_mul_f32 {v(O + r)}, {v(T + 1)}, {v(O + r)}')
        for m in range(8):
            A(f'v_cvt_pk_bf16_f32 {v(P + m)}, {v(S0 + 2 * m)}, {v(S0 + 2 * m + 1)}')
        A('s_nop 1')
        A(f'v_mfma_f32_32x32x16_bf16 {v(O, 16)}, {v(VF, 4)}, {v(P, 4)}, {v(O, 16)}')
        A(f'v_mfma_f32_32x32x16_bf16 {v(O, 16)}, {v(VF + 4, 4)}, {v(P + 4, 4)}, {v(O, 16)}')
        A(f'v_add_u32 {v(VK)}, {KVT}, {v(VK)}')
        A(f'v_add_u32 {v(VV)}, {KVT}, {v(VV)}')
        A(f'v_add_u32 {v(VV1)}, {KVT}, {v(VV1)}')
        A('s_nop 11')
        A('s_add_u32 s39, s39, 1')
        A('s_cmp_lt_u32 s39, 64')
        A(f's_cbranch_scc1 {tg}_sloop')
        A('s_mov_b32 s39, 99')
        A(f's_branch {tg}_fin')
    return tail


V_WGU = 112


def gu_waddr(C):
    A = C.A
    A('s_mul_i32 s30, s22, 7')
    A('s_min_u32 s31, s20, 6')
    A('s_add_u32 s40, s30, s31')
    A('s_lshl_b32 s30, s40, 15')
    A(f's_add_u32 s30, s30, {WGUP}')
    A(f'v_add_u32 {v(V_WGU)}, s30, v3')


def gu_wload(C, ks):
    so, im = soff(ks)
    C.vmem(f'buffer_load_dwordx4 {v(128 + 4 * ks, 4)}, {v(V_WGU)}, s[8:11], {so} offen offset:{im}', 'wg')


def gu_pre(C):
    A = C.A
    CS = 112
    A('v_mov_b32 v15, v113')
    A('v_mov_b32 v9, v114')
    A(f'v_mov_b32 v14, {v(V_WGU)}')
    A('s_lshl_b32 s30, s21, 2')
    A('s_add_u32 s30, s30, s25')
    A('s_lshl_b32 s30, s30, 15')
    A('s_lshl_b32 s31, s26, 11')
    A('s_add_u32 s30, s30, s31')
    A(f's_add_u32 s30, s30, {C.B["XB"]}')
    A('v_add_u32 v13, s30, v3')
    A('s_lshl_b32 s48, s25, 15')
    A('s_add_u32 s48, s48, s31')
    A('v_add_u32 v7, 0x10000, v3')
    A('v_lshrrev_b32 v11, 5, v1')
    A('v_lshlrev_b32 v11, 4, v11')
    A('s_min_u32 s30, s20, 6')
    A('s_lshl_b32 s30, s30, 7')
    A(f's_add_u32 s30, s30, {132 * KB}')
    A('v_add_u32 v10, s30, v11')
    A('v_and_b32 v12, 31, v1')
    A('v_lshlrev_b32 v12, 3, v12')
    A('v_lshl_add_u32 v12, v11, 8, v12')
    A('s_lshl_b32 s30, s21, 15')
    A(f's_add_u32 s30, s30, {C.B["SXB"]}')
    A('v_add_u32 v12, s30, v12')
    A(f'v_add_u32 v8, {128 * KB}, v3')


def gu_main(C, after_store=None):
    A = C.A
    ACC, XF, CS = 16, 80, 112
    STR = [4, 10, 240, 244]

    def dma(c):
        A(f's_add_u32 m0, s48, {c * 4096}')
        so = '0' if c == 0 else s(40 + c)
        A('s_nop 0')
        for k in range(2):
            C.vmem(f'buffer_load_dwordx4 v13, s[8:11], {so} offen offset:{k * 1024} lds', f'x{c}')
    dma(0)
    dma(1)

    def rd(ks):
        buf = ks & 1
        for i in range(4):
            base = 'v3' if i < 2 else 'v7'
            A(f'ds_read_b128 {v(XF + buf * 16 + i * 4, 4)}, {base} offset:{(i & 1) * 32768 + ks * 1024}')

    def stats_load(i):
        for e in range(16):
            C.vmem(f'buffer_load_dwordx2 {v(ACC + (i & 1) * 32 + 2 * e, 2)}, v12, s[8:11], {"0" if i == 0 else s(40 + 2 * i)} offen offset:{e * 256}', f's{i}')

    def stats_sum(i):
        b = ACC + (i & 1) * 32
        C.wait(f's{i}')
        for stp in (16, 8, 4, 2):
            for e in range(stp):
                A(f'v_add_f32 {v(b + e)}, {v(b + e)}, {v(b + e + stp)}')
        A(f'v_mov_b32 {v(b + 2)}, {v(b)}')
        A(f'v_mov_b32 {v(b + 3)}, {v(b + 1)}')
        A('s_nop 1')
        A(f'v_permlane32_swap_b32 {v(b)}, {v(b + 2)}')
        A(f'v_permlane32_swap_b32 {v(b + 1)}, {v(b + 3)}')
        A(f'v_add_f32 {v(b)}, {v(b)}, {v(b + 2)}')
        A(f'v_add_f32 {v(b + 1)}, {v(b + 1)}, {v(b + 3)}')
        A(f'v_mul_f32 {v(b)}, {f32(-1.0 / 512)}, {v(b)}')
        A(f'v_mul_f32 {v(b + 1)}, {f32(1.0 / 512)}, {v(b + 1)}')
        A(f'v_fma_f32 {v(b + 1)}, -{v(b)}, {v(b)}, {v(b + 1)}')
        A(f'v_max_f32 {v(b + 1)}, 0, {v(b + 1)}')
        A(f'v_add_f32 {v(b + 1)}, {f32(1e-5)}, {v(b + 1)}')
        A(f'v_rcp_f32 {v(b + 2)}, {v(b + 1)}')
        A(f'v_mov_b32 {v(b + 1)}, {v(b)}')
        A(f'v_mov_b32 {v(b + 3)}, {v(b + 2)}')
        A(f'ds_write_b128 v8, {v(b, 4)} offset:{i * 1024}')
        A('s_waitcnt lgkmcnt(0)')

    def loop(idle):
        C.wait('x0')
        A('s_barrier')
        C.stamp()
        if not idle:
            rd(0)
        for ks in range(32):
            if ks + 1 < 32:
                if (ks + 1) in GU_BARS:
                    C.wait(f'x{GU_BARS[ks + 1]}')
                    A('s_barrier')
                if not idle:
                    rd(ks + 1)
                    if ks == 28:
                        for g in range(4):
                            A(f'ds_read_b128 {v(CS + g * 4, 4)}, v10 offset:{g * 32}')
                        A('s_waitcnt lgkmcnt(8)')
                    elif ks == 30:
                        for i in range(4):
                            A(f'ds_read_b128 {v(STR[i], 4)}, v8 offset:{i * 1024}')
                        A('s_waitcnt lgkmcnt(8)')
                    else:
                        A('s_waitcnt lgkmcnt(4)')
            elif not idle:
                A('s_waitcnt lgkmcnt(0)')
            buf = ks & 1
            todo = []
            if ks == 10:
                C.flagb = True
                flag_b(C)
            if ks < 6:
                todo.append(lambda: dma(ks + 2))
            if ks == 16 + WO_TAIL and not idle:
                C.wait('wg')
            if 6 <= ks < 6 + 16 - WO_TAIL and not idle:
                k2 = 16 + WO_TAIL + ks - 6
                so, im = soff(k2)
                todo.append(lambda k2=k2, so=so, im=im: C.vmem(f'buffer_load_dwordx4 {v(128 + 4 * k2, 4)}, v14, s[8:11], {so} offen offset:{im}', 'wg'))
            if ks >= GU_WD0:
                nleft = 28 - len(wdone)
                for st in [st for st in range(28) if st < ks and st not in wdone][:(2 if nleft > 31 - ks else 1)]:
                    todo.append(lambda st=st: g3_wload(C, (15, 9), st, 128))
                    wdone.add(st)
            for i in range(4):
                if not idle and not (GU_TAIL and (ks == 31 or (ks == 30 and i >= 2))):
                    c = '0' if ks == 0 else v(ACC + i * 16, 16)
                    if GU16:
                        for t2 in range(2):
                            aa = ACC + i * 16 + ((ks & 1) * 2 + t2) * 4
                            A(f'v_mfma_f32_16x16x32_bf16 {v(aa, 4)}, {v(128 + 4 * (ks ^ t2 if ks > 1 else ks), 4)}, {v(XF + buf * 16 + i * 4, 4)}, {"0" if ks < 2 else v(aa, 4)}')
                    else:
                        A(f'v_mfma_f32_32x32x16_bf16 {v(ACC + i * 16, 16)}, {v(128 + 4 * ks, 4)}, {v(XF + buf * 16 + i * 4, 4)}, {c}')
                if i < 3 and todo:
                    f_ = todo.pop(0)
                    if not (GU_NOW and ks >= 6):
                        f_()
            if idle:
                if ks == 6:
                    stats_load(0)
                    stats_load(1)
                if ks == 8:
                    stats_sum(0)
                    stats_load(2)
                    stats_sum(1)
                    stats_load(3)
                if ks == 12:
                    stats_sum(2)
                    stats_sum(3)
                    A(f's_mul_i32 s30, s22, {7 * 128}')
                    A(f's_add_u32 s30, s30, {CSP}')
                    for kp in range(8):
                        C.vmem(f'buffer_load_dwordx4 {v(ACC + 4 * kp, 4)}, v3, s[8:11], s30 offen', 'cp')
                        if kp < 7:
                            A(f's_add_u32 s30, s30, {3584 * 4}')
                if ks == 16:
                    C.wait('cp')
                    for stp in (16, 8, 4):
                        for e in range(stp):
                            A(f'v_add_f32 {v(ACC + e)}, {v(ACC + e)}, {v(ACC + e + stp)}')
                    A(f'v_add_u32 v10, {132 * KB}, v3')
                    A(f'ds_write_b128 v10, {v(ACC, 4)}')
                    A('s_waitcnt lgkmcnt(0)')
        assert len(wdone) == 28
        C.stamp()
        if idle:
            if after_store:
                after_store()
            return
        P = XF

        def epi(i):
            acc = ACC + i * 16
            for r in range(0, 16, 2):
                A(f'v_pk_fma_f32 {v(acc + r, 2)}, {v(STR[i], 2)}, {v(CS + r, 2)}, {v(acc + r, 2)}')
            for r in range(0, 8, 2):
                A(f'v_pk_mul_f32 {v(acc + r, 2)}, {v(acc + r, 2)}, {v(acc + 8 + r, 2)}')
            for r in range(0, 8, 2):
                A(f'v_pk_mul_f32 {v(acc + r, 2)}, {v(acc + r, 2)}, {v(STR[i] + 2, 2)}')
            pp = acc + 8
            for m in range(4):
                A(f'v_cvt_pk_bf16_f32 {v(pp + m)}, {v(acc + 2 * m)}, {v(acc + 2 * m + 1)}')
            C.vmem(f'buffer_store_dwordx4 {v(pp, 4)}, v3, s[8:11], s30 offen{WT}', 'st')
            if i < 3:
                A(f's_add_u32 s30, s30, {112 * KB}')

        def mm(i, ks):
            A(f'v_mfma_f32_32x32x16_bf16 {v(ACC + i * 16, 16)}, {v(128 + 4 * ks, 4)}, {v(XF + (ks & 1) * 16 + i * 4, 4)}, {v(ACC + i * 16, 16)}')
        A(f's_mul_i32 s30, s21, {4 * 112}')
        A('s_add_u32 s30, s30, s40')
        A('s_lshl_b32 s30, s30, 10')
        A(f's_add_u32 s30, s30, {C.B["HF"]}')
        if GU_TAIL:
            A('s_waitcnt lgkmcnt(0)')
            mm(0, 31)
            mm(2, 30)
            mm(1, 31)
            mm(3, 30)
            A('s_nop 8')
            epi(0)
            mm(2, 31)
            mm(3, 31)
            epi(1)
            epi(2)
            epi(3)
        else:
            A('s_nop 4')
            for i in range(4):
                epi(i)
        if after_store:
            after_store()

    ls, le = C.lab('gs'), C.lab('ge')
    A('s_cmp_eq_u32 s20, 7')
    A(f's_cbranch_scc1 {ls}')
    save, ns = list(C.vm), C.nstamp
    wdone = set()
    loop(False)
    A(f's_branch {le}')
    A.label(ls)
    C.vm, C.nstamp = list(save), ns
    wdone = set()
    loop(True)
    A.label(le)
    C.vm = ['st']


def flag_addr(C, sreg, sync):
    C.A(f's_lshl_b32 {s(sreg)}, s21, 8')
    C.A(f's_add_u32 {s(sreg)}, {s(sreg)}, {FLG + sync * 4096}')


GCNT = 134 * KB


def arrive(C, k, sync):
    A = C.A
    l = C.lab('p7')
    A('s_mov_b64 exec, 1')
    A(f'v_mov_b32 v14, {GCNT + 4 * k}')
    A('ds_add_rtn_u32 v14, v14, v4')
    A('s_waitcnt lgkmcnt(0)')
    C.lds = []
    A('v_cmp_eq_u32 vcc, 6, v14')
    A(f's_cbranch_vccz {l}')
    flag_addr(C, 30, sync)
    A('s_lshl_b32 s31, s22, 2')
    A('s_add_u32 s30, s30, s31')
    A('buffer_store_dword v4, v0, s[8:11], s30 offen')
    A('buffer_store_dword v4, v0, s[8:11], s30 offen offset:128 sc0 sc1')
    A.label(l)
    A('s_mov_b64 exec, -1')


def publish7(C, sync):
    A = C.A
    l = C.lab('p7')
    A('s_cmp_lg_u32 s20, 7')
    A(f's_cbranch_scc1 {l}')
    flag_addr(C, 30, sync)
    A('s_lshl_b32 s31, s22, 2')
    A('s_add_u32 s30, s30, s31')
    A('s_mov_b64 exec, 1')
    A('buffer_store_dword v4, v0, s[8:11], s30 offen')
    A('buffer_store_dword v4, v0, s[8:11], s30 offen offset:128 sc0 sc1')
    A('s_mov_b64 exec, -1')
    A.label(l)


def poll_issue(C, sync, tag):
    A = C.A
    flag_addr(C, 35, sync)
    A('s_mov_b64 exec, s[32:33]')
    C.vmem('buffer_load_dword v2, v0, s[8:11], s35 offen sc1', tag)
    A('s_mov_b64 exec, -1')


def poll_check(C, tag, endlab):
    A = C.A
    l1, l2, ld = C.lab('qa'), C.lab('qb'), C.lab('qd')
    C.wait(tag)
    A('s_mov_b64 exec, s[32:33]')
    A('s_mov_b32 s31, 0')
    A.label(l1)
    A('v_cmp_ne_u32 vcc, 0, v2')
    A('s_cmp_eq_u64 vcc, s[32:33]')
    A(f's_cbranch_scc1 {ld}')
    A('buffer_load_dword v2, v0, s[8:11], s35 offen sc1')
    A('s_add_u32 s31, s31, 1')
    A('s_waitcnt vmcnt(0)')
    A('s_cmp_lt_u32 s31, 64')
    A(f's_cbranch_scc1 {l1}')
    A.label(l2)
    A('buffer_load_dword v2, v0, s[8:11], s35 offen sc1')
    A('s_waitcnt vmcnt(0)')
    A('v_cmp_ne_u32 s[36:37], 0, v2')
    A('buffer_load_dword v2, v0, s[8:11], s35 offen offset:128 sc0 sc1')
    A('s_waitcnt vmcnt(0)')
    A('v_cmp_ne_u32 vcc, 0, v2')
    A('s_add_u32 s31, s31, 1')
    A('s_or_b64 vcc, vcc, s[36:37]')
    A('s_cmp_eq_u64 vcc, s[32:33]')
    A(f's_cbranch_scc1 {ld}')
    A('s_sleep 4')
    A(f's_cmp_lt_u32 s31, {1 << 20}')
    A(f's_cbranch_scc1 {l2}')
    A(f's_branch {endlab}')
    A.label(ld)
    A('s_mov_b64 exec, -1')


def gu2_pre(C):
    A = C.A
    A('v_mov_b32 v15, v113')
    A('v_mov_b32 v9, v114')
    A('s_lshl_b32 s30, s21, 2')
    A('s_add_u32 s30, s30, s29')
    A('s_lshl_b32 s30, s30, 15')
    A('s_lshr_b32 s31, s20, 1')
    A('s_lshl_b32 s31, s31, 11')
    A('s_add_u32 s30, s30, s31')
    A(f's_add_u32 s30, s30, {C.B["XB"]}')
    A('v_add_u32 v13, s30, v3')
    A('v_add_u32 v14, 0x10000, v13')
    A('s_lshl_b32 s48, s29, 15')
    A('s_add_u32 s48, s48, s31')
    A('v_add_u32 v7, 0x10000, v3')
    A('v_lshrrev_b32 v11, 5, v1')
    A('v_lshlrev_b32 v11, 4, v11')
    A('s_min_u32 s30, s20, 6')
    A('s_lshl_b32 s30, s30, 7')
    A(f's_add_u32 s30, s30, {132 * KB}')
    A('v_add_u32 v10, s30, v11')
    A('v_and_b32 v12, 31, v1')
    A('v_lshlrev_b32 v12, 3, v12')
    A('v_lshl_add_u32 v12, v11, 8, v12')
    A('s_lshl_b32 s30, s21, 15')
    A(f's_add_u32 s30, s30, {C.B["SXB"]}')
    A('v_add_u32 v12, s30, v12')
    A(f'v_add_u32 v8, {128 * KB}, v3')
    A(f's_mul_i32 s31, s20, {14 * KB}')
    A(f's_mul_i32 s30, s27, {112 * KB}')
    A('s_add_u32 s30, s30, s31')
    A(f's_add_u32 s30, s30, {C.B["HF"]}')
    A('v_add_u32 v5, s30, v3')
    A(f'v_add_u32 v6, {224 * KB}, v5')


def dn_slot(n):
    return 24 + 4 * n if n < 6 else 80 + 4 * ((n - 6) % 12)


def dn_xload(C, n):
    hh, st = divmod(n, 14)
    so, im = soff(st)
    C.vmem(f'buffer_load_dwordx4 {v(dn_slot(n), 4)}, {v(5 + hh)}, s[8:11], {so} offen offset:{im}', f'x{n}')


def gu2_main(C, sync1, endlab):
    A = C.A
    ACC, XF, CS = 16, 80, 112
    STR = [10, 10, ACC, ACC + 4]
    D = GU_D
    H = D // 2
    NSTEP = 32
    SE = 32 - H

    def dma(late, c):
        A(f's_add_u32 m0, s48, {late * 65536 + c * 8192}')
        so = '0' if c == 0 else s(40 + 2 * c)
        A('s_nop 0')
        for k in range(2):
            C.vmem(f'buffer_load_dwordx4 {"v14" if late else "v13"}, s[8:11], {so} offen offset:{k * 1024} lds', f'{"l" if late else "e"}{c}')
    dma(0, 0)
    dma(0, 1)

    def parts(st):
        if st < H:
            return [(0, 2 * st), (1, 2 * st), (0, 2 * st + 1), (1, 2 * st + 1)]
        if st < SE:
            return [(0, st + H), (1, st + H), (2, st - H), (3, st - H)]
        k = 32 - D + 2 * (st - SE)
        return [(2, k), (3, k), (2, k + 1), (3, k + 1)]

    def rd(st):
        for n, (i, ks) in enumerate(parts(st)):
            base = 'v3' if i < 2 else 'v7'
            C.ds(f'ds_read_b128 {v(XF + (st & 1) * 16 + n * 4, 4)}, {base} offset:{(i & 1) * 32768 + ks * 1024}', f'r{st}')

    def stats_load(i):
        for e in range(16):
            C.vmem(f'buffer_load_dwordx2 {v(ACC + (i & 1) * 32 + 2 * e, 2)}, v12, s[8:11], {"0" if i == 0 else s(40 + 2 * i)} offen offset:{e * 256}', f's{i}')

    def stats_sum(i):
        b = ACC + (i & 1) * 32
        C.wait(f's{i}')
        for stp in (16, 8, 4, 2):
            for e in range(stp):
                A(f'v_add_f32 {v(b + e)}, {v(b + e)}, {v(b + e + stp)}')
        A(f'v_mov_b32 {v(b + 2)}, {v(b)}')
        A(f'v_mov_b32 {v(b + 3)}, {v(b + 1)}')
        A('s_nop 1')
        A(f'v_permlane32_swap_b32 {v(b)}, {v(b + 2)}')
        A(f'v_permlane32_swap_b32 {v(b + 1)}, {v(b + 3)}')
        A(f'v_add_f32 {v(b)}, {v(b)}, {v(b + 2)}')
        A(f'v_add_f32 {v(b + 1)}, {v(b + 1)}, {v(b + 3)}')
        A(f'v_mul_f32 {v(b)}, {f32(-1.0 / 512)}, {v(b)}')
        A(f'v_mul_f32 {v(b + 1)}, {f32(1.0 / 512)}, {v(b + 1)}')
        A(f'v_fma_f32 {v(b + 1)}, -{v(b)}, {v(b)}, {v(b + 1)}')
        A(f'v_max_f32 {v(b + 1)}, 0, {v(b + 1)}')
        A(f'v_add_f32 {v(b + 1)}, {f32(1e-5)}, {v(b + 1)}')
        A(f'v_rcp_f32 {v(b + 2)}, {v(b + 1)}')
        A(f'v_mov_b32 {v(b + 1)}, {v(b)}')
        A(f'v_mov_b32 {v(b + 3)}, {v(b + 2)}')
        A(f'ds_write_b128 v8, {v(b, 4)} offset:{i * 1024}')
        A('s_waitcnt lgkmcnt(0)')

    def epi(i):
        acc = ACC + i * 16
        for r in range(0, 16, 2):
            A(f'v_pk_fma_f32 {v(acc + r, 2)}, {v(STR[i], 2)}, {v(CS + r, 2)}, {v(acc + r, 2)}')
        for r in range(0, 8, 2):
            A(f'v_pk_mul_f32 {v(acc + r, 2)}, {v(acc + r, 2)}, {v(acc + 8 + r, 2)}')
        for r in range(0, 8, 2):
            A(f'v_pk_mul_f32 {v(acc + r, 2)}, {v(acc + r, 2)}, {v(STR[i] + 2, 2)}')
        pp = acc + 8
        for m in range(4):
            A(f'v_cvt_pk_bf16_f32 {v(pp + m)}, {v(acc + 2 * m)}, {v(acc + 2 * m + 1)}')
        C.vmem(f'buffer_store_dwordx4 {v(pp, 4)}, v3, s[8:11], s39 offen{WT}', 'st')
        if i < 3:
            A(f's_add_u32 s39, s39, {112 * KB}')

    SF1 = SE + GU_SF1
    bars = {4: 'l0', 8: 'l1', 12: 'l3', 20: None}
    if F1BAR:
        bars[SF1] = 'st'
    if GU_XB:
        bars[SE + GU_XB - 10] = None
    avail = {0: {'e0'}, 4: {'e0', 'e1', 'l0'}, 8: {'e0', 'e1', 'l0', 'e2', 'l1'}}
    for st in range(12):
        have = avail[st // 4 * 4]
        for i, ks in parts(st):
            assert ('l' if i >= 2 else 'e') + str(ks // 8) in have, (st, i, ks)

    def loop(idle):
        C.lds = []
        A(f's_mul_i32 s39, s21, {4 * 112}')
        A('s_add_u32 s39, s39, s40')
        A('s_lshl_b32 s39, s39, 10')
        A(f's_add_u32 s39, s39, {C.B["HF"]}')
        C.wait('e0')
        A('s_barrier')
        C.stamp()
        if not idle:
            rd(0)
        dq = [(1, 0), (0, 2), (1, 1), (0, 3), (1, 2), (1, 3)]
        wdone = 0
        for st in range(NSTEP):
            if st + 1 in bars:
                if bars[st + 1]:
                    C.wait(bars[st + 1])
                A('s_barrier')
                if F1BAR and st + 1 == SF1 and idle:
                    publish7(C, sync1)
            if not idle:
                if st + 1 < NSTEP:
                    rd(st + 1)
                if st == 21:
                    for g in range(4):
                        C.ds(f'ds_read_b128 {v(CS + g * 4, 4)}, v10 offset:{g * 32}', 'cs')
                if st == SE - 1:
                    C.ds(f'ds_read_b128 {v(STR[0], 4)}, v8', 'sa')
                if st == SE + 3:
                    for i in range(2, 4):
                        C.ds(f'ds_read_b128 {v(STR[i], 4)}, v8 offset:{i * 1024}', 'sb')
                C.dwait(f'r{st}')
            todo = []
            if GU_PRIO and not idle and st in (20, 24, 28, 30):
                A(f's_setprio {dict([(20, 3), (24, 2), (28, 1), (30, 0)])[st]}')
            if st == 10:
                C.flagb = True
                flag_b(C)
            if dq:
                todo.append(lambda x=dq.pop(0): dma(*x))
            freed = min([ks for i, ks in parts(st) if i >= 2] or [0])
            lim = 28 if idle and st >= 8 else min(28, freed)
            for _ in range(2):
                if wdone < lim:
                    todo.append(lambda k=wdone: g3_wload(C, (15, 9), k, 128))
                    wdone += 1
            for n, (i, ks) in enumerate(parts(st)):
                if not idle:
                    c = '0' if ks == 0 else v(ACC + i * 16, 16)
                    A(f'v_mfma_f32_32x32x16_bf16 {v(ACC + i * 16, 16)}, {v(128 + 4 * ks, 4)}, {v(XF + (st & 1) * 16 + n * 4, 4)}, {c}')
                if todo:
                    todo.pop(0)()
            assert not todo
            if not idle and st == SE:
                C.dwait('sa')
                A('s_nop 3')
                epi(0)
                C.ds(f'ds_read_b128 {v(STR[1], 4)}, v8 offset:1024', 'sa')
            if not idle and st == SE + 1:
                C.dwait('sa')
                epi(1)
            if not idle and st == SF1 and not F1BAR:
                C.wait('st')
                arrive(C, 0, sync1)
            if st == NSTEP - 1:
                assert wdone == 28
                A('s_lshl_b32 s30, s20, 1')
                A('s_lshl_b32 s32, 3, s30')
                poll_issue(C, sync1, 'f1')
            if idle:
                if st == 6:
                    A(f'v_mov_b32 {v(XF)}, 0')
                    A(f'v_mov_b32 {v(XF + 1)}, 0')
                    A(f'v_mov_b32 {v(XF + 2)}, {GCNT}')
                    A(f'ds_write_b64 {v(XF + 2)}, {v(XF, 2)}')
                    stats_load(0)
                    stats_load(1)
                if st == 9:
                    stats_sum(0)
                    A(f's_mul_i32 s30, s22, {7 * 128}')
                    A(f's_add_u32 s30, s30, {CSP}')
                    for kp in range(8):
                        C.vmem(f'buffer_load_dwordx4 {v(ACC + 4 * kp, 4)}, v3, s[8:11], s30 offen', 'cp')
                        if kp < 7:
                            A(f's_add_u32 s30, s30, {3584 * 4}')
                    stats_sum(1)
                    stats_load(3)
                if st == 13:
                    C.wait('cp')
                    for stp in (16, 8, 4):
                        for e in range(stp):
                            A(f'v_add_f32 {v(ACC + e)}, {v(ACC + e)}, {v(ACC + e + stp)}')
                    A(f'v_add_u32 v10, {132 * KB}, v3')
                    A(f'ds_write_b128 v10, {v(ACC, 4)}')
                    A('s_waitcnt lgkmcnt(0)')
                    stats_load(2)
                    stats_sum(3)
                    stats_sum(2)
        C.stamp()
        if not idle:
            A('s_waitcnt lgkmcnt(0)')
            A('s_nop 3')
            epi(2)
            if PRIME_LATE:
                epi(3)
        poll_check(C, 'f1', endlab)
        for n in range(6):
            dn_xload(C, n)
        if not idle and not PRIME_LATE:
            epi(3)

    ls, le = C.lab('gs'), C.lab('ge')
    A('s_cmp_eq_u32 s20, 7')
    A(f's_cbranch_scc1 {ls}')
    save, ns = list(C.vm), C.nstamp
    loop(False)
    A(f's_branch {le}')
    A.label(ls)
    C.vm, C.nstamp = list(save), ns
    loop(True)
    A.label(le)
    C.vm = [f'x{n}' for n in range(6)]


def dn_main(C, mode, sync2, endlab, resbase, outbase=None, sxout=None, hook_red=None):
    A = C.A
    NS, EX, WR = 14, 252, 128
    AC = [48, 16]
    nxt = 6
    A(f's_add_u32 s31, s49, {resbase}')
    C.vmem(f'buffer_load_dwordx4 {v(EX, 4)}, v3, s[8:11], s31 offen', 'ex')
    A('s_lshl_b32 s30, s20, 11')
    A('v_add_u32 v8, s30, v3')
    A('v_add_u32 v7, 0x10000, v8')
    A('s_and_b32 s31, s20, 6')
    for c in range(4):
        A(f's_xor_b32 s30, s31, {c << 1}')
        A('s_lshl_b32 s30, s30, 11')
        A('s_lshl_b32 s34, s20, 14')
        A('s_add_u32 s30, s30, s34')
        A(f'v_add_u32 {v(9 + c)}, s30, v3')
    C.stamp()

    def wr(hh):
        out = []
        for c in (0, 2, 1, 3):
            base = AC[hh] + (c & 1) * 16 + (c >> 1) * 8
            out += [f'ds_write_b128 {v(9 + c)}, {v(base + h2 * 4, 4)} offset:{hh * 2048 + h2 * 1024}' for h2 in range(2)]
        return out
    pend = []
    for hh in range(2):
        for st in range(NS):
            n = hh * NS + st
            C.wait(f'x{n}')
            for jj in range(2):
                c = '0' if st == 0 else v(AC[hh] + jj * 16, 16)
                A(f'v_mfma_f32_32x32x16_bf16 {v(AC[hh] + jj * 16, 16)}, {v(WR + 4 * (2 * st + jj), 4)}, {v(dn_slot(n), 4)}, {c}')
                if hh == 1 and st >= 3 and pend:
                    A(pend.pop(0))
            if n == DN_AR and F2BAR:
                if not PRIME_LATE:
                    C.wait('ex')
                A('s_barrier')
                publish7(C, sync2)
            if n == DN_AR and not F2BAR:
                C.wait('ex')
                lh = C.lab('h7')
                A('s_cmp_eq_u32 s20, 7')
                A(f's_cbranch_scc1 {lh}')
                arrive(C, 1, sync2)
                A.label(lh)
            if n == DN_PI:
                poll_issue(C, sync2, 'f2')
            if nxt == NS:
                poll_check(C, 'f2', endlab)
            if nxt < 2 * NS:
                dn_xload(C, nxt)
                nxt += 1
            if hh == 1 and st == 2:
                A('s_nop 2' if F2BAR else 's_barrier')
        if hh == 0:
            pend = wr(0)
    assert not pend
    C.stamp()
    T = 80
    C.wait('ex')
    for m in range(4):
        A(f'v_lshlrev_b32 {v(T + 2 * m)}, 16, {v(EX + m)}')
        A(f'v_and_b32 {v(T + 2 * m + 1)}, 0xffff0000, {v(EX + m)}')
    A('s_nop 2')
    for x in wr(1):
        A(x)
    if hook_red:
        hook_red()
    A('s_waitcnt lgkmcnt(0)')
    A('s_barrier')
    for b in range(8):
        for h2 in range(2):
            base, off = ('v8', b * 16 * KB) if b < 4 else ('v7', (b - 4) * 16 * KB)
            A(f'ds_read_b128 {v(16 + b * 8 + h2 * 4, 4)}, {base} offset:{off + h2 * 1024}')
        if b == 6:
            A('s_waitcnt lgkmcnt(10)')
            for r in range(8):
                A(f'v_add_f32 {v(16 + r)}, {v(16 + r)}, {v(T + r)}')
    A('s_waitcnt lgkmcnt(0)')
    for stp in (32, 16, 8):
        for r in range(stp):
            A(f'v_add_f32 {v(16 + r)}, {v(16 + r)}, {v(16 + stp + r)}')
    P = 24
    for m in range(4):
        A(f'v_cvt_pk_bf16_f32 {v(P + m)}, {v(16 + 2 * m)}, {v(16 + 2 * m + 1)}')
    if mode == 'res':
        A(f's_add_u32 s31, s49, {outbase}')
        C.vmem(f'buffer_store_dwordx4 {v(P, 4)}, v3, s[8:11], s31 offen{WT}', 'st')
        blk_stats(C, P, T)
        A('s_lshr_b32 s31, s49, 2')
        A(f's_add_u32 s31, s31, {sxout}')
        A('v_lshlrev_b32 v4, 3, v1')
        A('s_mov_b32 exec_hi, 0')
        C.vmem(f'buffer_store_dwordx2 {v(T, 2)}, v4, s[8:11], s31 offen{WT}', 'st')
        A('s_mov_b64 exec, -1')
    else:
        A('v_and_b32 v4, 31, v1')
        A('v_lshlrev_b32 v4, 10, v4')
        A('v_lshrrev_b32 v5, 5, v1')
        A('v_lshl_add_u32 v4, v5, 4, v4')
        A('s_and_b32 s30, s49, 0xffff8000')
        A('s_and_b32 s31, s49, 0x7fff')
        A('s_lshr_b32 s31, s31, 5')
        A('s_add_u32 s30, s30, s31')
        A(f'v_permlane32_swap_b32 {v(P)}, {v(P + 2)}')
        A(f'v_permlane32_swap_b32 {v(P + 1)}, {v(P + 3)}')
        C.vmem(f'buffer_store_dwordx4 {v(P, 4)}, v4, s[12:15], s30 offen', 'st')


def swap_add(A, ra, rb):
    A(f'v_permlane32_swap_b32 {v(ra)}, {v(rb)}')
    A(f'v_add_f32 {v(ra)}, {v(ra)}, {v(rb)}')


def pre_part(C, end):
    A = C.A
    A('s_cmp_ge_u32 s2, 256')
    A(f's_cbranch_scc1 {end}')
    A('s_load_dwordx2 s[12:13], s[0:1], 0')
    A('s_load_dwordx2 s[16:17], s[0:1], 8')
    A('s_load_dwordx2 s[52:53], s[0:1], 16')
    A('s_load_dwordx2 s[56:57], s[0:1], 24')
    A('s_load_dwordx2 s[4:5], s[0:1], 80')
    for d, sz in ((12, 2048 * 1024), (16, 512 * 1024), (52, 512 * 32), (56, 512 * 32), (4, 256)):
        A(f's_mov_b32 {s(d + 2)}, {sz}')
        A(f's_mov_b32 {s(d + 3)}, 0x20000')
    setup(C, False, end)
    C.stamp()
    if TLBW:
        A('s_lshl_b32 s30, s20, 3')
        A(f's_add_u32 s30, s30, 32')
        A('s_cmp_eq_u32 s20, 1')
        A('s_cselect_b32 s30, 8, s30')
        A('s_load_dwordx2 s[32:33], s[0:1], s30')
        A('s_mov_b32 s31, 8192')
        A('s_cmp_ge_u32 s20, 2')
        A('s_cselect_b32 s31, 28672, s31')
        A('s_cmp_eq_u32 s20, 6')
        A('s_cselect_b32 s31, 4, s31')
        A('s_cmp_eq_u32 s20, 7')
        A(f's_cselect_b32 s31, {TLBW}, s31')
        A('v_mul_lo_u32 v4, v1, s31')
        A('s_waitcnt lgkmcnt(0)')
        A('global_load_dword v127, v4, s[32:33]')
    A('s_add_u32 s30, s21, 1')
    A('s_and_b32 s30, s30, 3')
    A('s_lshl_b32 s30, s30, 2')
    A('s_xor_b32 s30, s30, s22')
    A('s_add_u32 s30, s30, s20')
    A('s_cmp_lg_u32 s30, 0')
    A('s_cbranch_scc1 pr_z0')
    for r in range(4):
        A(f'v_mov_b32 {v(8 + r)}, 0')
    A('v_lshrrev_b32 v4, 4, v1')
    A('v_and_b32 v5, 15, v1')
    A('v_lshlrev_b32 v5, 4, v5')
    A('v_lshl_add_u32 v4, v4, 12, v5')
    A('s_lshl_b32 s30, s21, 8')
    A(f's_add_u32 s30, s30, {FLG}')
    for k in range(3):
        A('buffer_store_dwordx4 v[8:11], v4, s[8:11], s30 offen sc0 sc1')
        A('s_add_u32 s30, s30, 16384')
    A('v_lshlrev_b32 v4, 7, v1')
    A(f's_mul_i32 s30, s21, {64 * 128}')
    A(f's_add_u32 s30, s30, {PFL}')
    A('buffer_store_dwordx4 v[8:11], v4, s[8:11], s30 offen sc0 sc1')
    A('v_mov_b32 v5, 1')
    A('s_mov_b64 exec, 1')
    A('s_waitcnt vmcnt(0)')
    A('buffer_atomic_add v5, v8, s[4:7], 0 offen sc1')
    A('s_mov_b64 exec, -1')
    A('s_nop 1')
    A.label('pr_z0')
    KST, KW, KR, T, EX, XR = 240, 192, 224, 108, 96, 32
    WST, CSQ, CSKV = 96 * KB, ST4 + 9 * KB, ST4 + 10 * KB
    A('s_mov_b64 s[36:37], s[16:17]')
    A(f's_mov_b32 s38, {512 * 1024}')
    A('s_mov_b32 s39, 0x20000')
    g4_ids(C)
    A('s_lshl_b32 s30, s20, 11')
    A('s_cmp_lg_u32 s3, 0')
    A('s_cbranch_scc1 pr_k0')
    for k in range(4):
        A(f'buffer_load_dwordx4 {v(KST + 4 * k, 4)}, v3, {"s[52:55]" if k < 2 else "s[56:59]"}, s30 offen offset:{(k & 1) * 1024}')
    A.label('pr_k0')
    A('v_lshrrev_b32 v4, 3, v1')
    A('v_and_b32 v5, 7, v1')
    A('v_lshrrev_b32 v6, 4, v1')
    A('v_xor_b32 v6, v6, v5')
    A('v_lshlrev_b32 v7, 10, v4')
    A('v_lshl_add_u32 v8, v6, 4, v7')
    A('v_xor_b32 v9, 64, v8')
    A('s_lshl_b32 s30, s18, 15')
    A('s_lshl_b32 s31, s20, 7')
    A('s_add_u32 s30, s30, s31')
    A('s_lshl_b32 s32, s20, 12')
    for i in range(4):
        A(f's_add_u32 m0, s32, {KVR4 + i * 1024}')
        A('s_nop 0')
        C.vmem(f'buffer_load_dwordx4 {v(8 + (i & 1))}, s[12:15], s30 offen lds', 'x')
        A('s_add_u32 s30, s30, 8192')
    A('v_lshrrev_b32 v4, 2, v1')
    A('v_and_b32 v5, 3, v1')
    A('v_lshlrev_b32 v10, 10, v4')
    A('v_lshl_add_u32 v10, v5, 4, v10')
    A('s_lshl_b32 s31, s26, 18')
    A('s_bfe_u32 s30, s19, 0x4000b')
    A('s_lshl_b32 s30, s30, 6')
    A('s_add_u32 s31, s31, s30')
    A('s_lshl_b32 s51, s20, 13')
    A(f's_add_u32 s51, s51, {WST}')
    A('s_mov_b32 s50, s31')
    A('v_mov_b32 v88, v10')
    A('s_and_b32 s33, s22, 3')
    A(f's_lshl_b32 s33, s33, 16' if WROT else 's_mov_b32 s33, 0')

    def wloads():
        for i in range(16):
            A(f's_xor_b32 s30, s33, {G4_ORD[i] * 16384}')
            A('s_add_u32 s30, s30, s50')
            if i < 8:
                A(f's_add_u32 m0, s51, {i * 1024}')
                A('s_nop 0')
                A('buffer_load_dwordx4 v88, s[36:39], s30 offen lds')
            else:
                A(f'buffer_load_dwordx4 {v(128 + 4 * i, 4)}, v88, s[36:39], s30 offen')
    A('s_cmp_eq_u32 s3, 0')
    A('s_cbranch_scc1 pr_w1')
    A('s_barrier')
    wloads()
    A('s_waitcnt vmcnt(16)')
    A.label('pr_w1')
    C.stamp()
    A('v_and_b32 v64, 31, v1')
    A('v_lshrrev_b32 v65, 5, v1')
    A('v_lshlrev_b32 v66, 7, v64')
    A('v_lshl_add_u32 v66, v65, 3, v66')
    A('v_bfe_u32 v67, v1, 1, 3')
    A('v_lshl_add_u32 v66, v67, 4, v66')
    A(f's_add_u32 s30, s32, {KVR4}')
    A('v_add_u32 v66, s30, v66')
    A('v_bfe_u32 v67, v1, 2, 2')
    A('v_lshl_add_u32 v67, v65, 2, v67')
    A('v_lshlrev_b32 v68, 3, v5')
    A('v_bfe_u32 v69, v1, 4, 1')
    A('v_lshl_add_u32 v70, v67, 5, v68')
    A('v_lshl_add_u32 v70, v69, 11, v70')
    A('v_add_u32 v70, s30, v70')
    A('v_lshl_add_u32 v71, v67, 6, v68')
    A('v_lshl_add_u32 v71, v69, 5, v71')
    A('s_lshl_b32 s30, s26, 5')
    A('v_xor_b32 v71, s30, v71')
    A('v_add_u32 v71, s51, v71')
    A('v_add_u32 v72, s51, v3')
    A('v_mov_b32 v73, 0x3f803f80')
    A('v_lshlrev_b32 v74, 2, v64')
    A('s_lshl_b32 s30, s20, 7')
    A(f's_add_u32 s31, s30, {CSKV}')
    A('v_add_u32 v75, s31, v74')
    A('s_lshl_b32 s31, s26, 6')
    A('v_xor_b32 v74, s31, v74')
    A(f's_add_u32 s30, s30, {CSQ}')
    A('v_add_u32 v74, s30, v74')
    A('v_lshlrev_b32 v76, 4, v65')
    A('s_add_u32 s30, s30, s31')
    A('v_add_u32 v77, s30, v76')
    A('v_xor_b32 v78, 512, v77')
    A('s_lshl_b32 s30, s25, 5')
    A(f's_add_u32 s30, s30, {CSKV}')
    A('v_add_u32 v79, s30, v76')
    g4_pre(C, 'qkv', XA, resbase=0, raw=True)
    A('s_lshr_b32 s30, s33, 4')
    A('s_lshl_b32 s31, s20, 12')
    A('s_xor_b32 s30, s30, s31')
    A(f's_add_u32 s30, s30, {XF0}')
    A('v_add_u32 v12, s30, v3')
    A('v_mov_b32 v0, 0')
    A('v_mov_b32 v4, 1')
    for ch in range(8):
        A(f'v_xor_b32 {v(80 + ch)}, {ch << 4}, v66')

    def front():
        A('s_cmp_lg_u32 s3, 0')
        A('s_cbranch_scc1 pr_w2')
        A('s_waitcnt vmcnt(0)')
        A.label('pr_w2')
        C.vm = []
        C.stamp()
        for ch in range(8):
            A(f'ds_read_b64 {v(KR + 2 * ch, 2)}, {v(80 + ch)}')
        A('s_waitcnt lgkmcnt(0)')
        for k in range(4):
            A(f'ds_write_b128 v12, {v(KR + 4 * k, 4)} offset:{k * 1024}')
        for r in range(8):
            for e in range(2):
                x = v(KR + 2 * r + e)
                A(f'v_dot2_f32_bf16 {v(T + 2 * e)}, {x}, v73, {"0" if r == 0 else v(T + 2 * e)}')
                A(f'v_dot2_f32_bf16 {v(T + 2 * e + 1)}, {x}, {x}, {"0" if r == 0 else v(T + 2 * e + 1)}')
        A('s_nop 0')

    def kvw():
        for k in range(4):
            A(f'ds_write_b128 v14, {v(KST + 4 * k, 4)} offset:{k * 1024}')
        A('s_waitcnt lgkmcnt(4)')
        for st in range(4):
            for h2 in range(2):
                A(f'ds_read_b64_tr_b16 {v(KW + 4 * st + 2 * h2, 2)}, v70 offset:{st * 512 + h2 * 256}')
        A('s_waitcnt lgkmcnt(0)')
        for r in range(8):
            for e in range(2):
                A(f'v_dot2_f32_bf16 {v(80 + e)}, {v(KW + 2 * r + e)}, v73, {"0" if r == 0 else v(80 + e)}')
        A('s_nop 2')
        A('v_add_f32 v80, v80, v81')
        A('v_mov_b32 v81, v80')
        A('s_nop 1')
        swap_add(A, 80, 81)
        A('ds_write_b32 v75, v80')

    def kvcs0():
        for ww in range(8):
            A(f'ds_read_b128 {v(XR + 4 * ww, 4)}, v79 offset:{ww * 128}')

    def kvcs1():
        A('s_waitcnt lgkmcnt(0)')
        for stp in (16, 8):
            for r in range(stp):
                A(f'v_add_f32 {v(XR + r)}, {v(XR + r)}, {v(XR + stp + r)}')
        for r in range(4):
            A(f'v_add_f32 {v(EX + 8 + r)}, {v(XR + r)}, {v(XR + 4 + r)}')

    def zchk():
        lz, lzd = C.lab('z'), C.lab('zd')
        A('s_mov_b32 s31, 0')
        A('s_mov_b64 exec, 1')
        A.label(lz)
        A('buffer_load_dword v2, v0, s[4:7], 0 offen sc1')
        A('s_waitcnt vmcnt(0)')
        A('v_cmp_le_u32 vcc, 16, v2')
        A('s_add_u32 s31, s31, 1')
        A('s_cmp_eq_u64 vcc, 1')
        A(f's_cbranch_scc1 {lzd}')
        A('s_sleep 8')
        A(f's_cmp_lt_u32 s31, {1 << 20}')
        A(f's_cbranch_scc1 {lz}')
        A(f's_branch {end}')
        A.label(lzd)
        A('s_mov_b64 exec, -1')

    def wprep():
        A('s_cmp_lg_u32 s3, 0')
        A('s_cbranch_scc1 pr_w3')
        wloads()
        A.label('pr_w3')
        zchk()
        C.vm = []
        C.stamp()


    def tr(i):
        for h2 in range(2):
            A(f'ds_read_b64_tr_b16 {v(128 + 4 * i + 2 * h2, 2)}, v71 offset:{(i % 8) * 1024 + h2 * 512}')

    def csdot(r0, r1):
        for r in range(r0, r1):
            for e in range(4):
                A(f'v_dot2_f32_bf16 {v(80 + e)}, {v(128 + 4 * r + e)}, v73, {"0" if r == 0 else v(80 + e)}')

    def loop(rd, mf):
        for i in range(8):
            tr(i)
            if i == 5:
                A('s_waitcnt lgkmcnt(6)')
        ln_stats(A, T)
        A('s_waitcnt lgkmcnt(0)')
        for i in range(4):
            rd(i)
        for i in range(8):
            A(f'ds_write_b128 v72, {v(160 + 4 * i, 4)} offset:{i * 1024}')
        csdot(0, 8)
        A('s_waitcnt lgkmcnt(0)')
        for i in range(4, 8):
            rd(i)
        for i in range(8):
            if i == 4:
                A('s_waitcnt lgkmcnt(8)')
            mf(i)
            if i < 4:
                tr(8 + i)
            else:
                A('s_waitcnt lgkmcnt(9)')
                tr(8 + i)
                rd(4 + i)
        for i in range(8, 16):
            if i == 8:
                A('s_waitcnt lgkmcnt(9)')
            elif i < 12:
                A(f's_waitcnt lgkmcnt({9 - 2 * (i - 8)})')
            else:
                A(f's_waitcnt lgkmcnt({15 - i})')
            mf(i)
            if i < 12:
                rd(4 + i)

    def cs0():
        csdot(8, 16)
        A('s_nop 2')
        A('v_add_f32 v80, v80, v81')
        A('v_add_f32 v82, v82, v83')
        A('v_add_f32 v80, v80, v82')
        A('v_mov_b32 v81, v80')
        A('s_nop 1')
        swap_add(A, 80, 81)
        A('ds_write_b32 v74, v80')

    def cs():
        for h2 in range(2):
            A(f'ds_read_b128 {v(EX + 4 * h2, 4)}, v77 offset:{h2 * 32}')
            A(f'ds_read_b128 {v(XR + 4 * h2, 4)}, v78 offset:{h2 * 32}')
        A('s_waitcnt lgkmcnt(0)')
        for r in range(8):
            A(f'v_add_f32 {v(EX + r)}, {v(EX + r)}, {v(XR + r)}')
        for r in range(12):
            A(f'v_mov_b32 {v(208 + r)}, {v(EX + r)}')

    g4_main(C, 'qkv', kvf=KVF, kfl=KFL, raw=dict(front=front, kvw=kvw, kvcs0=kvcs0, kvcs1=kvcs1, zchk=zchk, wprep=wprep, cs=cs, cs0=cs0, loop=loop), endlab=end)
    C.stamp()


def wq_store(C):
    A = C.A
    A('s_and_b32 s30, s18, 0x33')
    A('s_cmp_lg_u32 s30, 0')
    A('s_cbranch_scc1 pr_w0')
    g4_waddr(C, 112, WQKVP)
    for q4 in (3, 2, 1, 0):
        if q4:
            A(f's_cmp_lg_u32 s21, {q4}')
            A(f's_cbranch_scc1 pr_ws{q4}')
        for i in range(4 * q4, 4 * q4 + 4):
            so, im = soff(G4_ORD[i])
            A(f'buffer_store_dwordx4 {v(128 + 4 * i, 4)}, v112, s[8:11], {so} offen offset:{im} sc0 sc1')
        if q4:
            A('s_branch pr_w0')
            A.label(f'pr_ws{q4}')
    A('v_lshrrev_b32 v113, 5, v1')
    A('v_lshlrev_b32 v113, 4, v113')
    A('s_lshr_b32 s31, s19, 4')
    A(f's_add_u32 s31, s31, {CSQKV}')
    A('s_mov_b32 exec_lo, 1')
    A('s_mov_b32 exec_hi, 1')
    A('buffer_store_dwordx4 v[208:211], v113, s[8:11], s31 offen sc0 sc1')
    A('buffer_store_dwordx4 v[212:215], v113, s[8:11], s31 offen offset:32 sc0 sc1')
    A('s_mov_b64 exec, -1')
    A('s_cmp_lg_u32 s22, 0')
    A('s_cbranch_scc1 pr_w0')
    A('s_lshl_b32 s30, s20, 12')
    A(f's_add_u32 s30, s30, {WQKVP + 16 * 32 * KB}')
    for k in range(4):
        A(f'buffer_store_dwordx4 {v(192 + 4 * k, 4)}, v3, s[8:11], s30 offen offset:{k * 1024} sc0 sc1')
    A('s_cmp_ge_u32 s20, 4')
    A('s_cbranch_scc1 pr_w0')
    A('s_lshl_b32 s31, s20, 5')
    A(f's_add_u32 s31, s31, {CSQKV + 2048}')
    A('s_mov_b32 exec_lo, 1')
    A('s_mov_b32 exec_hi, 1')
    A('buffer_store_dwordx4 v[216:219], v113, s[8:11], s31 offen sc0 sc1')
    A('s_mov_b64 exec, -1')
    A.label('pr_w0')


def pack_ptrs(A):
    A('s_load_dwordx2 s[4:5], s[0:1], 32')
    A('s_load_dwordx4 s[52:55], s[0:1], 48')
    A('s_load_dwordx2 s[16:17], s[0:1], 64')


def pack_issue(C):
    A = C.A
    A('s_mul_i32 s30, s2, 3')
    A('s_add_u32 s30, s30, s20')
    A('s_mov_b32 s58, s30')
    A('s_cmp_lt_u32 s20, 3')
    A('s_cselect_b32 s57, 1, 0')
    A('s_cmp_lt_u32 s30, 736')
    A('s_cselect_b32 s57, s57, 0')
    A('s_cmp_eq_u32 s57, 0')
    A('s_cselect_b32 s30, 0, s30')
    A('s_cmp_lt_u32 s30, 64')
    A('s_cbranch_scc1 pk_jwo')
    A('s_cmp_lt_u32 s30, 512')
    A('s_cbranch_scc1 pk_jgu')
    A('s_sub_u32 s30, s30, 512')
    A('s_mov_b64 s[4:5], s[16:17]')
    A(f's_mov_b32 s6, {1792 * 1024}')
    A('s_mov_b32 s50, 1024')
    A('s_and_b32 s31, s30, 7')
    A('s_lshr_b32 s30, s30, 3')
    A('s_lshl_b32 s51, s30, 16')
    A('s_lshl_b32 s56, s31, 7')
    A('s_add_u32 s51, s51, s56')
    A(f's_mul_i32 s56, s31, {2 * 112 * KB}')
    A('s_lshl_b32 s30, s30, 12')
    A('s_add_u32 s56, s56, s30')
    A(f's_add_u32 s56, s56, {WDP}')
    A(f's_mov_b32 s52, {112 * KB}')
    A('s_mov_b32 s53, 256')
    A(f's_mov_b32 s54, {G1.CSDUMMY}')
    A('s_branch pk_jgo')
    A.label('pk_jwo')
    A(f's_mov_b32 s6, {512 * 1024}')
    A('s_mov_b32 s50, 1024')
    A('s_lshr_b32 s31, s30, 3')
    A('s_and_b32 s30, s30, 7')
    A('s_lshl_b32 s51, s30, 16')
    A('s_lshl_b32 s56, s31, 7')
    A('s_add_u32 s51, s51, s56')
    A('s_lshl_b32 s56, s31, 16')
    A('s_lshl_b32 s30, s30, 12')
    A('s_add_u32 s56, s56, s30')
    A(f's_add_u32 s56, s56, {WOP}')
    A(f's_mov_b32 s52, {32 * KB}')
    A('s_mov_b32 s53, 256')
    A(f's_mov_b32 s54, {G1.CSDUMMY}')
    A('s_branch pk_jgo')
    A.label('pk_jgu')
    A('s_sub_u32 s30, s30, 64')
    A('s_cmp_ge_u32 s30, 224')
    A('s_cselect_b32 s4, s54, s52')
    A('s_cselect_b32 s5, s55, s53')
    A('s_cselect_b32 s16, 1, 0')
    A('s_cselect_b32 s31, 224, 0')
    A('s_sub_u32 s30, s30, s31')
    A(f's_mov_b32 s6, {512 * 3584}')
    A('s_mov_b32 s50, 3584')
    A('s_lshr_b32 s31, s30, 3')
    A('s_and_b32 s30, s30, 7')
    A(f's_mul_i32 s51, s30, {64 * 3584}')
    A('s_lshl_b32 s56, s31, 7')
    A('s_add_u32 s51, s51, s56')
    A('s_lshl_b32 s56, s31, 17')
    A('s_lshl_b32 s17, s30, 12')
    A('s_add_u32 s56, s56, s17')
    A('s_lshl_b32 s17, s16, 8')
    A('s_add_u32 s56, s56, s17')
    A(f's_add_u32 s56, s56, {WGUP}')
    A(f's_mov_b32 s52, {64 * KB}')
    A(f's_mov_b32 s53, {32 * KB}')
    A(f's_mul_i32 s54, s30, {3584 * 4}')
    A('s_lshl_b32 s17, s31, 9')
    A('s_add_u32 s54, s54, s17')
    A('s_lshl_b32 s17, s16, 6')
    A('s_add_u32 s54, s54, s17')
    A(f's_add_u32 s54, s54, {CSP}')
    A.label('pk_jgo')
    A('v_lshrrev_b32 v112, 3, v1')
    A('v_and_b32 v113, 7, v1')
    A('v_mul_lo_u32 v112, v112, s50')
    A('v_lshl_add_u32 v112, v113, 4, v112')
    A('s_lshl_b32 s50, s50, 3')
    A('s_min_u32 s59, s20, 2')
    A('s_lshl_b32 s59, s59, 13')
    A(f's_add_u32 s59, s59, {136 * KB}')
    A('s_cmp_eq_u32 s57, 0')
    A('s_cbranch_scc1 pk_i_end')
    for i in range(8):
        A(f's_add_u32 m0, s59, {i * 1024}')
        A('s_nop 0')
        A('buffer_load_dwordx4 v112, s[4:7], s51 offen lds')
        A('s_add_u32 s51, s51, s50')
    A.label('pk_i_end')


def pack_convert(C):
    A = C.A
    A('s_cmp_eq_u32 s57, 0')
    A('s_cbranch_scc1 pk_c_end')
    A('v_lshrrev_b32 v112, 5, v1')
    A('v_bfe_u32 v113, v1, 2, 2')
    A('v_lshl_add_u32 v113, v112, 2, v113')
    A('v_and_b32 v114, 3, v1')
    A('v_lshlrev_b32 v114, 3, v114')
    A('v_lshl_add_u32 v113, v113, 7, v114')
    A('v_bfe_u32 v114, v1, 4, 1')
    A('v_lshl_add_u32 v113, v114, 5, v113')
    A('v_add_u32 v113, s59, v113')
    A('v_mul_lo_u32 v114, v114, s53')
    A('v_and_b32 v115, 15, v1')
    A('v_lshl_add_u32 v114, v115, 4, v114')
    A('v_lshl_add_u32 v114, v112, 9, v114')
    A('v_lshrrev_b32 v112, 4, v1')
    A('v_lshlrev_b32 v112, 7, v112')
    A('v_lshl_add_u32 v112, v115, 2, v112')
    A('v_mov_b32 v115, 0x3f803f80')
    A('s_add_u32 s52, s52, s56')
    A('s_waitcnt vmcnt(0)')
    for jj in range(2):
        for st in range(4):
            for h2 in range(2):
                A(f'ds_read_b64_tr_b16 {v(128 + 4 * (4 * jj + st) + 2 * h2, 2)}, v113 offset:{st * 2048 + h2 * 1024 + jj * 64}')
        A('s_waitcnt lgkmcnt(0)')
        for st in range(4):
            A(f'buffer_store_dwordx4 {v(128 + 4 * (4 * jj + st), 4)}, v114, s[8:11], {"s56" if jj == 0 else "s52"} offen offset:{st * 1024} sc0 sc1')
    A('s_cmp_eq_u32 s53, 256')
    A('s_cbranch_scc1 pk_c_end')
    for r in range(16):
        for jj in range(2):
            A(f'v_dot2_f32_bf16 {v(116 + jj)}, {v(128 + 16 * jj + r)}, v115, {"0" if r == 0 else v(116 + jj)}')
    A('s_nop 2')
    swap_add(A, 116, 117)
    A('buffer_store_dword v116, v112, s[8:11], s54 offen sc0 sc1')
    A.label('pk_c_end')


def pack_flag(C):
    A = C.A
    A('v_mov_b32 v112, 0')
    A('v_mov_b32 v113, 1')
    A('s_cmp_eq_u32 s57, 0')
    A('s_cbranch_scc1 pk_f_1')
    A('s_lshl_b32 s30, s58, 7')
    A(f's_add_u32 s30, s30, {PFL}')
    A('s_waitcnt vmcnt(0)')
    A('s_mov_b64 exec, 1')
    A('buffer_store_dword v113, v112, s[8:11], s30 offen sc0 sc1')
    A('s_mov_b64 exec, -1')
    A.label('pk_f_1')
    A('s_and_b32 s30, s18, 0x33')
    A('s_cmp_lg_u32 s30, 0')
    A('s_cbranch_scc1 pk_f_end')
    A('s_lshl_b32 s30, s22, 1')
    A('s_add_u32 s30, s30, s20')
    A('s_lshl_b32 s31, s21, 5')
    A('s_add_u32 s30, s30, s31')
    A('s_lshl_b32 s30, s30, 7')
    A(f's_add_u32 s30, s30, {PFL + 768 * 128}')
    A('s_waitcnt vmcnt(0)')
    A('s_mov_b64 exec, 1')
    A('buffer_store_dword v113, v112, s[8:11], s30 offen sc0 sc1')
    A('s_mov_b64 exec, -1')
    A.label('pk_f_end')


def pack_poll(C, endlab):
    A = C.A
    A('s_mul_i32 s30, s22, 7')
    A('s_lshr_b32 s30, s30, 2')
    A('v_lshrrev_b32 v112, 4, v1')
    A('v_add_u32 v112, s30, v112')
    A('v_min_u32 v112, 27, v112')
    A('v_and_b32 v113, 7, v1')
    A('v_lshl_add_u32 v112, v112, 3, v113')
    A('v_bfe_u32 v114, v1, 3, 1')
    A('v_mul_u32_u24 v114, 224, v114')
    A('v_add3_u32 v112, v112, v114, 64')
    A('s_mul_i32 s30, s20, 7')
    A('s_lshr_b32 s30, s30, 1')
    A('v_min_u32 v114, 4, v113')
    A('v_add_u32 v114, s30, v114')
    A('v_min_u32 v114, 27, v114')
    A('s_add_u32 s30, s24, 512')
    A('v_lshl_add_u32 v114, v114, 3, s30')
    A('v_cmp_le_u32 vcc, 48, v1')
    A('s_lshl_b32 s30, s24, 3')
    A('s_add_u32 s30, s30, s20')
    A('v_cndmask_b32 v112, v112, v114, vcc')
    A('v_mov_b32 v114, s30')
    A('v_cmp_le_u32 vcc, 56, v1')
    A('s_add_u32 s31, s20, 768')
    A('s_and_b32 s30, s22, 12')
    A('s_lshl_b32 s30, s30, 1')
    A('s_add_u32 s30, s30, s31')
    A('v_cndmask_b32 v112, v112, v114, vcc')
    for q4 in range(4):
        A(f'v_writelane_b32 v112, s30, {59 + q4}')
        A('s_add_u32 s30, s30, 32')
    A('v_writelane_b32 v112, s31, 63')
    A(f's_mov_b32 s30, {PFL}')
    A('s_mov_b32 s31, 0')
    A('v_lshlrev_b32 v112, 7, v112')
    A('s_bfe_u32 s32, s19, 0x3000c')
    A('s_lshl_b32 s32, s32, 3')
    A('s_lshl_b32 s33, s26, 2')
    A('s_add_u32 s32, s32, s33')
    A('v_and_b32 v114, 3, v1')
    A('v_add_u32 v114, s32, v114')
    A('v_lshlrev_b32 v114, 7, v114')
    A('buffer_load_dword v113, v112, s[8:11], s30 offen sc1')
    A('buffer_load_dword v115, v114, s[8:11], s30 offen sc1')


def pack_poll2(C, endlab):
    A = C.A
    A(f's_mov_b32 s30, {PFL}')
    A('s_mov_b32 s31, 0')
    A.label('pk_p')
    A('s_waitcnt vmcnt(0)')
    A('v_and_b32 v113, v113, v115')
    A('v_cmp_eq_u32 vcc, 1, v113')
    A('s_add_u32 s31, s31, 1')
    A('s_cmp_eq_u64 vcc, -1')
    A('s_cbranch_scc1 pk_pd')
    A('s_sleep 16')
    A('buffer_load_dword v113, v112, s[8:11], s30 offen sc1')
    A('buffer_load_dword v115, v114, s[8:11], s30 offen sc1')
    A(f's_cmp_lt_u32 s31, {1 << 19}')
    A('s_cbranch_scc1 pk_p')
    A(f's_branch {endlab}')
    A.label('pk_pd')
    C.vm = []


def layer_part(C, layer, end):
    A = C.A
    C.tag = f'l{layer}'
    last = layer == 1
    xin = None if layer == 0 else XC
    kvf = KVF if layer == 0 else KVF2
    kfl = KFL + layer * 64 * 128
    sy = 5 * layer + 1
    C.B = dict(QF=QF, OF=OF, XB=XB, SXB=SXB, HF=HF) if layer == 0 else dict(QF=QF2, OF=OF2, XB=XB2, SXB=SXB2, HF=HF2)
    B = C.B

    def pre_addr():
        gu_waddr(C)
        g3_waddr(C, (113, 114), 112, WDP)
        g4_waddr(C, 116, WOP)

    stubs = [lambda: (pre_addr(), gu_wload(C, 0))]
    stubs += [lambda ks=ks: gu_wload(C, ks) for ks in range(1, 24)]
    stubs += [lambda i=i: g4_wload(C, 116, i, 'res') for i in range(8)]
    if TOUCH2:
        def touch2():
            A('s_and_b32 s30, s18, 7')
            A('s_lshr_b32 s31, s30, 1')
            A('s_lshl_b32 s31, s31, 2')
            A('s_and_b32 s30, s30, 1')
            A('s_add_u32 s30, s30, s31')
            A('s_lshl_b32 s30, s30, 10')
            C.vmem('buffer_load_dwordx4 v[120:123], v116, s[8:11], s30 offen offset:2048', 'tc')
            if layer == 0:
                A(f's_add_u32 s30, s30, {WQKVP - WOP + (1 << 32) if WQKVP < WOP else WQKVP - WOP}')
                A('v_add_u32 v117, s30, v116')
                C.vmem('buffer_load_dwordx4 v[120:123], v117, s[8:11], 0 offen', 'tc')
                C.vmem('buffer_load_dwordx4 v[120:123], v117, s[8:11], 0 offen offset:2048', 'tc')
        stubs += [touch2]
    if TOUCH3 & 1:
        def t3a(k):
            if k == 0:
                A('s_and_b32 s30, s21, 1')
                A('s_lshl_b32 s30, s30, 12')
                A(f's_add_u32 s30, s30, {24 * KB}')
                A(f'v_add_u32 v118, s30, {v(V_WGU)}')
            C.vmem(f'buffer_load_dwordx4 v[120:123], v118, s[8:11], 0 offen offset:{k * 1024}', 'tc')
        stubs += [lambda k=k: t3a(k) for k in range(4)]
    if TOUCH3 & 2:
        def t3b(k):
            if k == 0:
                A('s_and_b32 s30, s21, 1')
                A(f's_mul_i32 s30, s30, {7 * KB}')
                A('s_cmp_eq_u32 s23, 0')
                A('s_cselect_b64 vcc, -1, 0')
                A('v_cndmask_b32 v119, v114, v113, vcc')
                A('v_add_u32 v119, s30, v119')
            so, im = soff(k)
            C.vmem(f'buffer_load_dwordx4 v[120:123], v119, s[8:11], {so} offen offset:{im}', 'tc')
        stubs += [lambda k=k: t3b(k) for k in range(7)]
    if TOUCH and layer == 1:
        def t_addr():
            A('s_lshr_b32 s30, s2, 3')
            A('s_lshl_b32 s30, s30, 3')
            A('s_add_u32 s30, s30, s20')
            A(f's_mul_i32 s31, s30, {7 * KB}')
            A(f's_add_u32 s31, s31, {WDP}')
            A('v_add_u32 v118, s31, v3')
            A('s_lshl_b32 s31, s30, 11')
            A(f's_add_u32 s31, s31, {WQKVP}')
            A('v_add_u32 v119, s31, v3')

        def tch(vr, k):
            so, im = soff(k)
            C.vmem(f'buffer_load_dwordx4 v[120:123], {v(vr)}, s[8:11], {so} offen offset:{im}', 'tc')
        stubs += [lambda: (t_addr(), tch(V_WGU, 24))]
        stubs += [lambda ks=ks: tch(V_WGU, ks) for ks in range(25, 32)]
        stubs += [lambda k=k: tch(118, k) for k in range(7)]
        if not last:
            stubs += [lambda k=k: tch(119, k) for k in range(2)]

    def need_wo():
        A('s_lshr_b32 s30, s20, 1')
        A('s_lshl_b32 s30, s30, 2')
        A('s_and_b32 s31, s22, 3')
        A('s_add_u32 s30, s30, s31')
        A('s_lshl_b32 s32, 1, s30')

    def need_gu():
        A('s_lshl_b32 s32, 0x5555, s29')
        A('s_cmp_eq_u32 s20, 7')
        A('s_cselect_b32 s32, 0xffff, s32')

    def need_dn():
        A('s_lshl_b32 s30, s20, 1')
        A('s_lshl_b32 s32, 3, s30')

    def need_qkv():
        A('s_lshl_b32 s30, s20, 1')
        A('s_add_u32 s30, s30, s23')
        A('s_lshl_b32 s32, 1, s30')

    if layer == 0:
        fixed = {PK_I: lambda: (wq_store(C), pack_issue(C)), PK_C: lambda: pack_convert(C), PK_F: lambda: pack_flag(C), PK_P - 3: lambda: pack_poll(C, end), PK_P: lambda: pack_poll2(C, end)}
        tail = att_phase(C, kvf, kfl, end, stubs, fixed, PK_P, pre_hook=lambda: pack_ptrs(A), loadq=False, early=True)
    else:
        tail = att_phase(C, kvf, kfl, end, stubs, pre_hook=lambda: A('s_load_dwordx2 s[12:13], s[0:1], 72'), loadq=False)
    C.stamp()
    if not WO_LATE:
        A('s_nop 1')
        for i in range(8, 16):
            g4_wload(C, 116, i, 'res')
    g4_pre(C, 'res', B['OF'], resbase=xin)
    handoff(C, sy + 0, end, need_wo)
    C.stamp()
    g4_main(C, 'res', outbase=B['XB'], sxout=B['SXB'], hook_red=lambda k: gu_wload(C, 24 + k))
    C.stamp()
    gu2_pre(C)
    handoff(C, sy + 1, end, need_gu)
    C.stamp()
    gu2_main(C, sy + 2, end)
    C.stamp()
    if last:
        dn_main(C, 'out', sy - 1, end, B['XB'])
        C.stamp()
    else:
        dn_main(C, 'res', sy - 1, end, B['XB'], outbase=XC, sxout=SXC, hook_red=lambda: qkv4_wrest(C))
        C.stamp()
        g4_pre(C, 'qkv', XC, resbase=SXC)
        g4_waddr(C, 64, WQKVP)
        handoff(C, sy + 3, end, need_qkv)
        C.stamp()
        g4_main(C, 'qkv', kvf=KVF2, kfl=KFL + 64 * 128, endlab=end)
        C.stamp()
    return tail


def build():
    A = Asm()
    name = NAME + '_kernel'
    C = Ctx(A, 'pr')
    C.qf = QF
    end = 'k_end'
    kernel_begin(A, name)
    pre_part(C, end)
    t0 = layer_part(C, 0, end)
    t1 = layer_part(C, 1, end)
    A('s_add_u32 s30, s2, s20')
    A('s_cmp_lg_u32 s30, 0')
    A('s_cbranch_scc1 k_fin')
    A('s_load_dwordx2 s[4:5], s[0:1], 80')
    A('s_mov_b32 s6, 256')
    A('v_mov_b32 v2, 0')
    A('s_mov_b64 exec, 1')
    A('s_waitcnt lgkmcnt(0)')
    A('buffer_store_dword v2, v2, s[4:7], 0 offen sc0 sc1')
    A('s_mov_b64 exec, -1')
    A.label('k_fin')
    if DBGD:
        A('s_cmp_lg_u32 s2, 77')
        A('s_cbranch_scc1 k_fin2')
        A('s_cmp_lg_u32 s20, 1')
        A('s_cbranch_scc1 k_fin2')
        A('s_load_dwordx2 s[4:5], s[0:1], 80')
        A('s_memrealtime s[60:61]')
        A('s_mov_b32 s6, 256')
        A('v_mov_b32 v2, 0')
        A('s_mov_b64 exec, 1')
        A('s_waitcnt lgkmcnt(0)')
        sel = [int(x) for x in DBGD.split()]
        for k, i in enumerate(sel + [-1]):
            A(f's_sub_u32 s30, {s(64 + i) if i >= 0 else "s60"}, s64')
            A('v_mov_b32 v4, s30')
            A(f'buffer_store_dword v4, v2, s[4:7], 0 offen offset:{4 + 4 * k}')
        A('s_mov_b64 exec, -1')
        A.label('k_fin2')
    stamp_end(C, 1)
    A.label(end)
    A('s_endpgm')
    t0(True)
    t1(False)
    body = A.text()
    probs = lint(body)
    for p in probs:
        print('LINT:', p, file=sys.stderr)
    head = '; generated by gen/gen3.py\n'
    head += f"; @launch grid=(256,1,1) block=(512,1,1) lds={LDS_BYTES}\n"
    head += '.amdgcn_target "amdgcn-amd-amdhsa--gfx950"\n.text\n'
    tail = '.section .rodata,"a"\n.p2align 6\n' + descriptor(name, 256, 0, nsgpr=100)
    print('stamps:', C.nstamp, file=sys.stderr)
    return head + body + tail


if __name__ == '__main__':
    if 'stamp' in sys.argv:
        STAMP = True
    for arg in sys.argv[2:]:
        if '=' in arg:
            k, val = arg.split('=')
            globals()[k] = int(val) if val.lstrip('-').isdigit() else val.replace('_', ' ')
    out = sys.argv[1] if len(sys.argv) > 1 else f'cdna_kernels/{NAME}.s'
    open(out, 'w').write(build())
    print('wrote', out)
```

```python
import sys
import math
import struct
from asmlib import Asm, v, a, s, lint
import gen as G1
from gen import f32, kernel_begin, descriptor, ws_srd, KB

NAME = G1.NAME
WQKVP, WOP, WGUP, WDP, CSQKV, CSGU = G1.WQKVP, G1.WOP, G1.WGUP, G1.WDP, G1.CSQKV, G1.CSGU
KVF, XA, XB, QF, OF, HF = G1.KVF, G1.XA, G1.XB, G1.QF, G1.OF, G1.HF
WS_SIZE, QSCALE = G1.WS_SIZE, G1.QSCALE
KVG = 2048
KVT = 2080
VBS = 512
XC = G1.WS_END
KVF2 = XC + 2048 * KB
FLG = KVF2 + 144 * KB
SXA = FLG + 64 * KB
SXB = SXA + 512 * KB
SXC = SXB + 512 * KB
CSP = SXC + 512 * KB
PFL = CSP + 128 * KB
KFL = PFL + 112 * KB
QF2 = KFL + 16 * KB
OF2 = QF2 + 2048 * KB
XB2 = OF2 + 2048 * KB
SXB2 = XB2 + 2048 * KB
HF2 = SXB2 + 512 * KB
WS_END = HF2 + 64 * 112 * KB
STAMPS = G1.STAMPS

STAMP = False
WT = ' sc0 sc1'
LDS_BYTES = 160 * KB
FINE = 0
GU_D = 16
F1BAR = 1
F2BAR = 1
GU_XB = 0
PRIME_LATE = 2
GU_PO = 0
GU_PRIO = 0
GU_SF1 = 5
DN_PI = 4
DN_AR = 0
TCHK = 2
TB2 = 6
DPT = 4
TPFEND = 8
TP2 = 28
TP1 = 46
TP0 = 58
ONEWAIT = 1
INLINE = 0
ATT_NB = 4
TOUCH3 = 0
PRIOV = 0
DBGD = ''
ATT_B2 = 2
WO_L0 = 3
WROT = 1
GU_TAIL = 1
ATT_R0 = 4
EXPT = 0
TLBW = 0
KV_SLEEP = 2
QKV_PER = 1
WO_TAIL = 16
SLO = 0
QWT = ' sc0 sc1'
GU16 = 0
GU_NOW = 0
GU_WD0 = 3
GU_BARS = {4: 1, 8: 2, 12: 7, 24: 7}
PK_I = 6
PK_C = 18
PK_F = 22
PK_P = 36
RT = 0
TOUCH = 0
TOUCH2 = 1
WO_LATE = 0
ATT_UN = 4
ATT_PFEND = 1
G3_PR4 = 7
G3_PR14 = 6
G2_ST8 = [2, 2, 2, 2]
G2_ST28 = [2, 2, 4, 4, 4, 4, 4, 4]
G2_PRE8 = 4
G2_PRE28 = 6


class Ctx:
    def __init__(self, A, tag):
        self.A = A
        self.tag = tag
        self.vm = []
        self.lds = []
        self.nlab = 0
        self.nstamp = 1

    def lab(self, base):
        self.nlab += 1
        return f'{self.tag}_{base}{self.nlab}'

    def vmem(self, text, tag):
        self.A(text)
        self.vm.append(tag)
        assert len(self.vm) <= 63, 'vmcnt overflow'

    def wait(self, tag, extra=''):
        idx = [i for i, t in enumerate(self.vm) if t == tag]
        if not idx:
            if extra:
                self.A(f's_waitcnt {extra}')
            return
        n = len(self.vm) - 1 - idx[-1]
        self.A(f's_waitcnt vmcnt({n}) {extra}'.strip())
        self.vm = self.vm[idx[-1] + 1:]

    def ds(self, text, tag):
        self.A(text)
        self.lds.append(tag)
        assert len(self.lds) <= 15, 'lgkmcnt overflow'

    def dwait(self, tag):
        idx = [i for i, t in enumerate(self.lds) if t == tag]
        if idx:
            self.A(f's_waitcnt lgkmcnt({len(self.lds) - 1 - idx[-1]})')
            self.lds = self.lds[idx[-1] + 1:]

    def stamp(self):
        if STAMP:
            i = self.nstamp - SLO
            self.nstamp += 1
            if i < 1 or i >= 28:
                return
            A = self.A
            A('s_waitcnt lgkmcnt(0)')
            A('s_memrealtime s[60:61]' if RT else 's_memtime s[60:61]')
            A('s_waitcnt lgkmcnt(0)')
            A(f's_mov_b32 {s(64 + i)}, s60')


def stamp_begin(C):
    if STAMP:
        A = C.A
        A('s_memrealtime s[62:63]')
        A('s_memtime s[60:61]')
        for i in range(1, 30):
            A(f's_mov_b32 {s(64 + i)}, 0')
        A('s_waitcnt lgkmcnt(0)')
        A('s_mov_b32 s64, s62' if RT else 's_mov_b32 s64, s60')
        A('s_mov_b32 s95, s62')


def stamp_end(C, kidx):
    if STAMP:
        A = C.A
        A('s_waitcnt vmcnt(0) lgkmcnt(0)')
        A('s_memtime s[60:61]')
        A('s_memrealtime s[62:63]')
        A('s_waitcnt lgkmcnt(0)')
        A('s_mov_b32 s93, s62' if RT else 's_mov_b32 s93, s60')
        A('s_mov_b32 s94, s62')
        A('s_mov_b64 exec, 1')
        A('s_lshl_b32 s60, s2, 10')
        A('s_lshl_b32 s61, s20, 7')
        A('s_add_u32 s60, s60, s61')
        A(f's_add_u32 s60, s60, {STAMPS + kidx * (1 << 20)}')
        A('v_mov_b32 v0, 0')
        for i in range(32):
            A(f'v_mov_b32 v1, {s(64 + i)}')
            A(f'buffer_store_dword v1, v0, s[8:11], s60 offen offset:{i * 4}')
        A('s_waitcnt vmcnt(0)')


def setup(C, need_out, endlab):
    A = C.A
    A('s_cmp_ge_u32 s2, 256')
    A(f's_cbranch_scc1 {endlab}')
    stamp_begin(C)
    ws_srd(A, 8)
    if need_out:
        A('s_load_dwordx2 s[12:13], s[0:1], 72')
        A(f's_mov_b32 s14, {2048 * 512 * 2}')
        A('s_mov_b32 s15, 0x20000')
    A('v_and_b32 v1, 63, v0')
    A('v_lshrrev_b32 v2, 6, v0')
    A('v_lshlrev_b32 v3, 4, v1')
    A('v_readfirstlane_b32 s20, v2')
    A('s_and_b32 s21, s2, 7')
    A('s_lshl_b32 s21, s21, 1')
    A('s_bfe_u32 s22, s2, 0x10003')
    A('s_add_u32 s21, s21, s22')
    A('s_lshr_b32 s22, s2, 4')
    A('s_and_b32 s23, s22, 1')
    A('s_lshr_b32 s24, s22, 1')
    A('s_and_b32 s25, s20, 3')
    A('s_lshr_b32 s26, s20, 2')
    A('s_lshl_b32 s27, s21, 2')
    A('s_add_u32 s27, s27, s23')
    A('s_lshl_b32 s28, s24, 1')
    A('s_bfe_u32 s30, s20, 0x10001')
    A('s_add_u32 s28, s28, s30')
    A('s_and_b32 s29, s20, 1')
    A('s_lshl_b32 s30, s29, 1')
    A('s_add_u32 s30, s30, s27')
    A('s_lshl_b32 s49, s30, 15')
    A('s_lshl_b32 s31, s28, 11')
    A('s_add_u32 s49, s49, s31')
    A('s_lshl_b32 s31, s26, 10')
    A('s_add_u32 s49, s49, s31')
    for g in range(1, 8):
        A(f's_mov_b32 {s(40 + g)}, {g * 4096}')
    A('s_waitcnt lgkmcnt(0)')


def soff(i):
    return ('0' if i // 4 == 0 else s(40 + i // 4)), (i % 4) * 1024


def handoff(C, sync, endlab, need, kvflag=None, first=False):
    A = C.A
    l1, l2, ld = C.lab('pa'), C.lab('pb'), C.lab('pd')
    need()
    A('s_mov_b32 s33, 0')
    A('v_lshlrev_b32 v0, 2, v1')
    A('s_lshl_b32 s30, s21, 8')
    A(f's_add_u32 s30, s30, {FLG + sync * 4096}')
    A('s_lshl_b32 s34, s22, 2')
    A('s_add_u32 s34, s34, s30')
    A('v_mov_b32 v4, 1')
    if first:
        lz, lzd = C.lab('z'), C.lab('zd')
        A('s_cmp_lg_u32 s20, 0')
        A(f's_cbranch_scc1 {lzd}')
        A('s_mov_b32 s31, 0')
        A('s_mov_b64 exec, 1')
        A.label(lz)
        A('buffer_load_dword v2, v0, s[4:7], 0 offen sc0 sc1')
        A('s_waitcnt vmcnt(0)')
        A('v_cmp_le_u32 vcc, 16, v2')
        A('s_add_u32 s31, s31, 1')
        A('s_cmp_eq_u64 vcc, 1')
        A(f's_cbranch_scc1 {lzd}')
        A('s_sleep 8')
        A(f's_cmp_lt_u32 s31, {1 << 20}')
        A(f's_cbranch_scc1 {lz}')
        A(f's_branch {endlab}')
        A.label(lzd)
        A('s_mov_b64 exec, -1')
    if kvflag is not None:
        A('s_waitcnt vmcnt(0) lgkmcnt(0)')
        C.vm = []
    else:
        C.wait('st', 'lgkmcnt(0)')
    A('s_cmp_lg_u32 s20, 0')
    A('s_barrier')
    l, lb, lb2 = C.lab('sig'), C.lab('sb'), C.lab('sc')
    A(f's_cbranch_scc1 {l}')
    A('s_mov_b64 exec, 1')
    if kvflag is not None:
        lk = C.lab('kf')
        A('s_cmp_ge_u32 s24, 2')
        A(f's_cbranch_scc1 {lk}')
        A('s_add_u32 s31, s27, s24')
        A('s_lshl_b32 s31, s31, 7')
        A(f's_add_u32 s31, s31, {kvflag}')
        A('s_mov_b64 exec, 15')
        A('buffer_store_dword v4, v0, s[8:11], s31 offen sc0 sc1')
        A('s_mov_b64 exec, 1')
        A.label(lk)
    A('buffer_store_dword v4, v0, s[8:11], s34 offen')
    A.label(l)
    A('s_mov_b32 s31, 0')
    A('s_mov_b64 exec, s[32:33]')
    A.label(l1)
    A('buffer_load_dword v2, v0, s[8:11], s30 offen sc1')
    A('s_add_u32 s31, s31, 1')
    A('s_waitcnt vmcnt(0)')
    A('v_cmp_ne_u32 vcc, 0, v2')
    A('s_cmp_eq_u64 vcc, s[32:33]')
    A(f's_cbranch_scc1 {ld}')
    A('s_cmp_lt_u32 s31, 64')
    A(f's_cbranch_scc1 {l1}')
    A('s_mov_b64 exec, 1')
    A('buffer_store_dword v4, v0, s[8:11], s34 offen offset:128 sc0 sc1')
    A('s_mov_b64 exec, s[32:33]')
    A.label(l2)
    A('buffer_load_dword v2, v0, s[8:11], s30 offen sc1')
    A('s_waitcnt vmcnt(0)')
    A('v_cmp_ne_u32 s[36:37], 0, v2')
    A('buffer_load_dword v2, v0, s[8:11], s30 offen offset:128 sc0 sc1')
    A('s_waitcnt vmcnt(0)')
    A('v_cmp_ne_u32 vcc, 0, v2')
    A('s_add_u32 s31, s31, 1')
    A('s_or_b64 vcc, vcc, s[36:37]')
    A('s_cmp_eq_u64 vcc, s[32:33]')
    A(f's_cbranch_scc1 {ld}')
    A('s_sleep 4')
    A(f's_cmp_lt_u32 s31, {1 << 20}')
    A(f's_cbranch_scc1 {l2}')
    A(f's_branch {endlab}')
    A.label(ld)
    A('s_mov_b64 exec, -1')
    C.vm = []
    C.flagb = True


def flag_b(C):
    if getattr(C, 'flagb', False):
        A = C.A
        l = C.lab('fb')
        A('s_cmp_lg_u32 s20, 0')
        A(f's_cbranch_scc1 {l}')
        A('s_mov_b64 exec, 1')
        A('buffer_store_dword v4, v0, s[8:11], s34 offen offset:128 sc0 sc1')
        A('s_mov_b64 exec, -1')
        A.label(l)
        C.flagb = False


ACCB, ACCA = 16, 48
KVW, KACC, QSX = 160, 176, 240
KVRED, STAT, CSX, CSK = 112 * KB, 144 * KB, 148 * KB, 152 * KB


def blk_stats(C, P, T):
    A = C.A
    A(f'v_mov_b32 {v(T + 4)}, 0x3f803f80')
    A(f'v_dot2_f32_bf16 {v(T + 1)}, {v(P)}, {v(P)}, 0')
    A(f'v_dot2_f32_bf16 {v(T)}, {v(P)}, {v(T + 4)}, 0')
    for m in range(1, 4):
        A(f'v_dot2_f32_bf16 {v(T + 1)}, {v(P + m)}, {v(P + m)}, {v(T + 1)}')
        A(f'v_dot2_f32_bf16 {v(T)}, {v(P + m)}, {v(T + 4)}, {v(T)}')
    A('s_nop 2')
    A(f'v_mov_b32 {v(T + 2)}, {v(T)}')
    A(f'v_mov_b32 {v(T + 3)}, {v(T + 1)}')
    A('s_nop 1')
    A(f'v_permlane32_swap_b32 {v(T)}, {v(T + 2)}')
    A(f'v_permlane32_swap_b32 {v(T + 1)}, {v(T + 3)}')
    A(f'v_add_f32 {v(T)}, {v(T)}, {v(T + 2)}')
    A(f'v_add_f32 {v(T + 1)}, {v(T + 1)}, {v(T + 3)}')


def g3_waddr(C, vregs, KS, wbase):
    A = C.A
    NS = KS // 8
    A('s_lshl_b32 s30, s26, 8')
    A(f'v_xor_b32 {v(vregs[0])}, s30, v3')
    A(f's_mul_i32 s31, s20, {NS * KB}')
    A(f's_add_u32 s31, s31, {wbase}')
    A('s_xor_b32 s30, s28, 1')
    A(f's_mul_i32 s30, s30, {KS * KB}')
    A('s_add_u32 s30, s30, s31')
    A(f'v_add_u32 {v(vregs[1])}, s30, {v(vregs[0])}')
    A(f's_mul_i32 s30, s28, {KS * KB}')
    A('s_add_u32 s30, s30, s31')
    A(f'v_add_u32 {v(vregs[0])}, s30, {v(vregs[0])}')


def g3_wload(C, vregs, idx, wreg0, tag='w'):
    st, jj = idx // 2, idx % 2
    so, im = soff(st)
    C.vmem(f'buffer_load_dwordx4 {v(wreg0 + 4 * idx, 4)}, {v(vregs[jj])}, s[8:11], {so} offen offset:{im}', tag)


def g3_ex(mode, KS):
    return 252 if KS == 112 else (112 if mode == 'qkv' else 116)


def g3_pre(C, mode, KS, xbase, resbase=None, raw=False):
    A = C.A
    NS = KS // 8
    EX = g3_ex(mode, KS)
    A(f's_mul_i32 s31, s20, {NS * KB}')
    A(f's_add_u32 s31, s31, {xbase}')
    A('s_add_u32 s30, s27, s29')
    A(f's_mul_i32 s32, s30, {KS * KB}')
    A('s_add_u32 s32, s32, s31')
    A('v_add_u32 v6, s32, v3')
    A('s_xor_b32 s30, s30, 1')
    A(f's_mul_i32 s32, s30, {KS * KB}')
    A('s_add_u32 s32, s32, s31')
    A('v_add_u32 v5, s32, v3')
    A('s_lshl_b32 s30, s20, 11')
    A('v_add_u32 v8, s30, v3')
    A('v_add_u32 v7, 0x10000, v8')
    for b in range(1, 8):
        A(f's_xor_b32 s30, s20, {b}')
        A('s_lshl_b32 s30, s30, 11')
        A(f's_add_u32 s30, s30, {(b - 1) * 16 * KB}')
        A(f'v_add_u32 {v(8 + b)}, s30, v3')
    if raw:
        return
    if mode == 'qkv':
        A('v_lshrrev_b32 v2, 5, v1')
        A('v_lshlrev_b32 v4, 4, v2')
        A('s_lshl_b32 s31, s28, 7')
        A('s_lshl_b32 s30, s26, 6')
        A('s_add_u32 s31, s31, s30')
        A(f's_add_u32 s31, s31, {CSQKV}')
        C.vmem(f'buffer_load_dwordx4 {v(EX, 4)}, v4, s[8:11], s31 offen', 'ex')
        C.vmem(f'buffer_load_dwordx4 {v(EX + 4, 4)}, v4, s[8:11], s31 offen offset:32', 'ex')
        A('s_bfe_u32 s30, s20, 0x10001')
        A('s_lshl_b32 s30, s30, 6')
        A('s_lshl_b32 s31, s26, 5')
        A('s_add_u32 s30, s30, s31')
        A(f's_add_u32 s31, s30, {CSQKV + 2048}')
        C.vmem(f'buffer_load_dwordx4 {v(EX + 8, 4)}, v4, s[8:11], s31 offen', 'ex')
        A(f'v_and_b32 {v(QSX + 8)}, 31, v1')
        A(f'v_lshlrev_b32 {v(QSX + 8)}, 3, {v(QSX + 8)}')
        A(f'v_lshl_add_u32 {v(QSX + 8)}, v2, 13, {v(QSX + 8)}')
        A('s_lshl_b32 s30, s27, 13')
        A('s_lshl_b32 s31, s20, 10')
        A('s_add_u32 s30, s30, s31')
        A(f's_add_u32 s30, s30, {resbase}')
        A(f'v_add_u32 {v(QSX + 8)}, s30, {v(QSX + 8)}')
    elif resbase is None:
        A('v_and_b32 v2, 31, v1')
        A('v_lshlrev_b32 v2, 10, v2')
        A('v_lshrrev_b32 v4, 5, v1')
        A('v_lshl_add_u32 v2, v4, 3, v2')
        A('s_add_u32 s30, s27, s29')
        A('s_lshl_b32 s30, s30, 15')
        A('s_lshl_b32 s31, s28, 6')
        A('s_add_u32 s30, s30, s31')
        A('s_lshl_b32 s31, s26, 5')
        A('s_add_u32 s30, s30, s31')
        C.vmem(f'buffer_load_dwordx2 {v(EX, 2)}, v2, s[12:15], s30 offen', 'ex')
        C.vmem(f'buffer_load_dwordx2 {v(EX + 2, 2)}, v2, s[12:15], s30 offen offset:16', 'ex')
    else:
        A(f's_add_u32 s31, s49, {resbase}')
        C.vmem(f'buffer_load_dwordx4 {v(EX, 4)}, v3, s[8:11], s31 offen', 'ex')


def g3_main(C, mode, KS, wreg0, outbase=None, kvf=None, after_store=None, sxout=None, hook_b=None, raw=False, hook_red=None):
    A = C.A
    NS = KS // 8
    EX = g3_ex(mode, KS)
    if NS == 4:
        xreg = {(hh, st): 80 + (hh * 4 + st) * 4 for hh in range(2) for st in range(4)}
    else:
        slot = [80 + 4 * k for k in range(12)] + [240, 244]
        xreg = {(hh, st): slot[st] for hh in range(2) for st in range(NS)}

    def xload(hh, st):
        so, im = soff(st)
        C.vmem(f'buffer_load_dwordx4 {v(xreg[hh, st], 4)}, {v(5 + hh)}, s[8:11], {so} offen offset:{im}', f'x{hh}_{st}')

    seq = [(hh, st) for hh in range(2) for st in range(NS)]
    PR = G3_PR4 if NS == 4 else G3_PR14
    if raw:
        seq, PR = [], 0
    for x in seq[:PR]:
        xload(*x)
    nxt = PR
    C.wait('w')

    def wr(b):
        base = (ACCA if b & 1 else ACCB) + ((b >> 1) & 1) * 16 + (b >> 2) * 8
        return [f'ds_write_b128 {v(8 + b)}, {v(base + h2 * 4, 4)} offset:{h2 * 1024}' for h2 in range(2)]

    pend = []
    for hh in range(2):
        acc = ACCA if hh == 0 else ACCB
        for st in range(NS):
            C.wait(f'x{hh}_{st}')
            if hh == 0 and st == 0:
                C.stamp()
            for jj in range(2):
                c = '0' if st == 0 else v(acc + jj * 16, 16)
                A(f'v_mfma_f32_32x32x16_bf16 {v(acc + jj * 16, 16)}, {v(wreg0 + 4 * (2 * st + jj), 4)}, {v(xreg[hh, st], 4)}, {c}')
                if hh == 1 and (st >= 3 or (NS == 4 and st >= 2)):
                    for _ in range(2 if NS == 4 else 1):
                        if pend:
                            A(pend.pop(0))
            if nxt < len(seq):
                xload(*seq[nxt])
                nxt += 1
                if nxt == len(seq):
                    if mode == 'qkv':
                        for e in range(4):
                            C.vmem(f'buffer_load_dwordx2 {v(QSX + 2 * e, 2)}, {v(QSX + 8)}, s[8:11], 0 offen offset:{e * 256}', 'sx')
                    flag_b(C)
                    hb = 0
            elif hook_b:
                hb += 1
            if hook_b and nxt == len(seq):
                hook_b(hb, PR)
            if hh == 1 and NS == 4 and st == 1:
                A('s_nop 7' if raw else 's_nop 5')
            if hh == 1 and NS != 4 and st == 2:
                A('s_nop 2')
        if hh == 0:
            pend = wr(1) + wr(5) + wr(3) + wr(7)
    assert not pend
    C.stamp()
    lkv = C.lab('nokv')
    if mode == 'qkv':
        la, lb = C.lab('ka'), C.lab('kb')
        A('s_cmp_ge_u32 s24, 2')
        A(f's_cbranch_scc1 {lb}')
        A('s_cmp_eq_u32 s24, s29')
        A(f's_cbranch_scc0 {la}')
        for hh in (1, 0):
            for st in range(4):
                c = '0' if st == 0 else v(KACC, 16)
                A(f'v_mfma_f32_32x32x16_bf16 {v(KACC, 16)}, {v(KVW + 4 * st, 4)}, {v(xreg[hh, st], 4)}, {c}')
            if hh == 1:
                A(f's_branch {lb}')
                A.label(la)
        A.label(lb)
        A('v_lshlrev_b32 v4, 3, v1')
        if not raw:
            C.wait('sx')
            for e in range(4):
                A(f'v_add_f32 {v(QSX + e)}, {v(QSX + e)}, {v(QSX + 4 + e)}')
            for e in range(2):
                A(f'v_add_f32 {v(QSX + e)}, {v(QSX + e)}, {v(QSX + 2 + e)}')
            A('s_lshl_b32 s30, s20, 9')
            A(f's_add_u32 s30, s30, {STAT}')
            A('v_add_u32 v2, s30, v4')
            A(f'ds_write_b64 v2, {v(QSX, 2)}')
        else:
            A('v_lshrrev_b32 v112, 5, v1')
            A('v_lshlrev_b32 v112, 4, v112')
            A('s_and_b32 s30, s28, 1')
            A('s_lshl_b32 s30, s30, 7')
            A('s_lshl_b32 s31, s26, 6')
            A('s_add_u32 s30, s30, s31')
            A(f's_add_u32 s30, s30, {CSK}')
            A('v_add_u32 v113, s30, v112')
            A('s_nop 3')
        A('v_and_b32 v4, 0xf8, v4')
        A('s_lshl_b32 s30, s29, 8')
        A(f's_add_u32 s30, s30, {STAT}')
        A('v_add_u32 v4, s30, v4')
    else:
        A('s_nop 10')
    for b in (4, 2, 6):
        for x in wr(b):
            A(x)
    if mode == 'qkv':
        A('s_cmp_ge_u32 s24, 2')
        A(f's_cbranch_scc1 {lkv}')
        A(f'v_add_u32 v2, {KVRED}, v8')
        for k4 in range(4):
            A(f'ds_write_b128 v2, {v(KACC + k4 * 4, 4)} offset:{(k4 >> 1) * 16 * KB + (k4 & 1) * 1024}')
        A.label(lkv)
    if hook_red:
        hook_red()
    A('s_waitcnt lgkmcnt(0)')
    A('s_barrier')
    for b in range(1, 8):
        for h2 in range(2):
            base, off = ('v8', (b - 1) * 16 * KB) if b <= 4 else ('v7', (b - 5) * 16 * KB)
            A(f'ds_read_b128 {v(ACCB + b * 8 + h2 * 4, 4)}, {base} offset:{off + h2 * 1024}')
    T = 80

    def red(base, waits):
        for stp in (32, 16, 8):
            for r in range(stp):
                A(f'v_add_f32 {v(base + r)}, {v(base + r)}, {v(base + stp + r)}')
    if mode == 'qkv':
        A('s_waitcnt lgkmcnt(6)')
        for ww in range(8):
            A(f'ds_read_b64 {v(T + ww * 2, 2)}, v4 offset:{ww * 512}')
        A('s_waitcnt lgkmcnt(8)')
        if raw:
            EX = 192
            for h2 in range(2):
                A(f'ds_read_b128 {v(EX + h2 * 4, 4)}, v113 offset:{h2 * 32}')
    else:
        C.wait('ex')
        for m in range(4):
            A(f'v_lshlrev_b32 {v(T + 2 * m)}, 16, {v(EX + m)}')
            A(f'v_and_b32 {v(T + 2 * m + 1)}, 0xffff0000, {v(EX + m)}')
        for r in range(8):
            A(f'v_add_f32 {v(ACCB + r)}, {v(ACCB + r)}, {v(T + r)}')
        A('s_waitcnt lgkmcnt(0)')
    red(ACCB, None)
    P = ACCB + 8
    if mode == 'qkv':
        A('s_waitcnt lgkmcnt(0)')
        for stp in (8, 4, 2):
            for e in range(stp):
                A(f'v_add_f32 {v(T + e)}, {v(T + e)}, {v(T + e + stp)}')
        A(f'v_mul_f32 {v(T)}, {f32(1.0 / 512)}, {v(T)}')
        A(f'v_mul_f32 {v(T + 1)}, {f32(1.0 / 512)}, {v(T + 1)}')
        A(f'v_fma_f32 {v(T + 1)}, -{v(T)}, {v(T)}, {v(T + 1)}')
        A(f'v_max_f32 {v(T + 1)}, 0, {v(T + 1)}')
        A(f'v_add_f32 {v(T + 1)}, {f32(1e-5)}, {v(T + 1)}')
        A(f'v_rsq_f32 {v(T + 1)}, {v(T + 1)}')
        C.wait('ex')
        for r in range(8):
            A(f'v_fma_f32 {v(ACCB + r)}, -{v(T)}, {v(EX + r)}, {v(ACCB + r)}')
        A(f'v_mul_f32 {v(T + 2)}, {f32(QSCALE)}, {v(T + 1)}')
        for r in range(8):
            A(f'v_mul_f32 {v(ACCB + r)}, {v(T + 2)}, {v(ACCB + r)}')
        for m in range(4):
            A(f'v_cvt_pk_bf16_f32 {v(P + m)}, {v(ACCB + 2 * m)}, {v(ACCB + 2 * m + 1)}')
        A(f's_add_u32 s31, s49, {C.qf}')
        C.vmem(f'buffer_store_dwordx4 {v(P, 4)}, v3, s[8:11], s31 offen{QWT}', 'st')
        le, lv = C.lab('ke'), C.lab('v')
        A('s_cmp_lg_u32 s29, s24')
        A(f's_cbranch_scc1 {le}')
        A('s_bfe_u32 s34, s20, 0x10001')
        A('s_lshl_b32 s30, s34, 14')
        A('s_lshl_b32 s31, s26, 10')
        A('s_add_u32 s30, s30, s31')
        A(f's_add_u32 s30, s30, {KVRED}')
        A('v_add_u32 v4, s30, v3')
        KR = 208
        for ww in range(8):
            A(f'ds_read_b128 {v(KR + ww * 4, 4)}, v4 offset:{ww * 2048}')
        KX = EX + 8
        if raw:
            A('s_lshl_b32 s30, s34, 6')
            A('s_lshl_b32 s31, s26, 5')
            A('s_add_u32 s30, s30, s31')
            A(f's_add_u32 s30, s30, {CSK + 256}')
            A('v_add_u32 v113, s30, v112')
            A(f'ds_read_b128 {v(KX, 4)}, v113')
        A('s_add_u32 s30, s27, s29')
        A(f's_mul_i32 s30, s30, {KVG}')
        A(f's_add_u32 s30, s30, {kvf}')
        A('v_bfe_u32 v4, v1, 4, 1')
        A(f'v_mul_u32_u24 v4, {VBS}, v4')
        A('v_bfe_u32 v5, v1, 2, 1')
        A('v_lshl_add_u32 v4, v5, 8, v4')
        A('v_and_b32 v5, 3, v1')
        A('v_lshl_add_u32 v4, v5, 1, v4')
        A('v_bfe_u32 v5, v1, 3, 1')
        A('v_lshl_add_u32 v4, v5, 3, v4')
        A('v_lshrrev_b32 v5, 5, v1')
        A('v_lshl_add_u32 v4, v5, 6, v4')
        A('s_waitcnt lgkmcnt(0)')
        for stp in (16, 8, 4):
            for r in range(stp):
                A(f'v_add_f32 {v(KR + r)}, {v(KR + r)}, {v(KR + stp + r)}')
        for r in range(4):
            A(f'v_fma_f32 {v(KR + r)}, -{v(T)}, {v(KX + r)}, {v(KR + r)}')
        for r in range(4):
            A(f'v_mul_f32 {v(KR + r)}, {v(T + 1)}, {v(KR + r)}')
        KP = KR + 8
        for m in range(2):
            A(f'v_cvt_pk_bf16_f32 {v(KP + m)}, {v(KR + 2 * m)}, {v(KR + 2 * m + 1)}')
        A('s_cmp_lg_u32 s34, 0')
        A(f's_cbranch_scc1 {lv}')
        A('s_lshl_b32 s31, s26, 3')
        A('s_add_u32 s31, s31, s30')
        A(f'buffer_store_dwordx2 {v(KP, 2)}, v3, s[8:11], s31 offen{QWT}')
        A(f's_branch {le}')
        A.label(lv)
        A('s_lshl_b32 s31, s26, 7')
        A('s_add_u32 s31, s31, s30')
        for r in range(4):
            op = 'buffer_store_short' if r % 2 == 0 else 'buffer_store_short_d16_hi'
            A(f'{op} {v(KP + r // 2)}, v4, s[8:11], s31 offen offset:{1024 + r * 16}{QWT}')
        A.label(le)
    else:
        for m in range(4):
            A(f'v_cvt_pk_bf16_f32 {v(P + m)}, {v(ACCB + 2 * m)}, {v(ACCB + 2 * m + 1)}')
        if mode == 'res':
            A(f's_add_u32 s31, s49, {outbase}')
            C.vmem(f'buffer_store_dwordx4 {v(P, 4)}, v3, s[8:11], s31 offen{WT}', 'st')
            blk_stats(C, P, T)
            A('s_lshr_b32 s31, s49, 2')
            A(f's_add_u32 s31, s31, {sxout}')
            A('v_lshlrev_b32 v4, 3, v1')
            A('s_mov_b32 exec_hi, 0')
            C.vmem(f'buffer_store_dwordx2 {v(T, 2)}, v4, s[8:11], s31 offen{WT}', 'st')
            A('s_mov_b64 exec, -1')
            if after_store:
                after_store()
        else:
            A('v_and_b32 v4, 31, v1')
            A('v_lshlrev_b32 v4, 10, v4')
            A('v_lshrrev_b32 v5, 5, v1')
            A('v_lshl_add_u32 v4, v5, 4, v4')
            A('s_add_u32 s30, s27, s29')
            A('s_lshl_b32 s30, s30, 15')
            A('s_lshl_b32 s31, s28, 6')
            A('s_add_u32 s30, s30, s31')
            A('s_lshl_b32 s31, s26, 5')
            A('s_add_u32 s30, s30, s31')
            A(f'v_permlane32_swap_b32 {v(P)}, {v(P + 2)}')
            A(f'v_permlane32_swap_b32 {v(P + 1)}, {v(P + 3)}')
            C.vmem(f'buffer_store_dwordx4 {v(P, 4)}, v4, s[12:15], s30 offen', 'st')


def qkv_wstep(C, st, n=1):
    A = C.A
    if st == 0:
        g3_waddr(C, (5, 6), 32, WQKVP)
    per = -(-8 // n)
    for i in range(st * per, min(8, (st + 1) * per)):
        g3_wload(C, (5, 6), i, 128)
    if st == n:
        A('s_lshl_b32 s30, s20, 12')
        A(f's_add_u32 s30, s30, {WQKVP + 16 * 32 * KB}')
        l = C.lab('kw')
        A('s_cmp_ge_u32 s24, 2')
        A(f's_cbranch_scc1 {l}')
        for k in range(4):
            A(f'buffer_load_dwordx4 {v(KVW + 4 * k, 4)}, v3, s[8:11], s30 offen offset:{k * 1024}')
        A.label(l)


def qkv_wloads(C):
    qkv_wstep(C, 0)
    qkv_wstep(C, 1)


KVR4, XF0, ST4, RED4 = 0, 36 * KB, 68 * KB, 80 * KB
G4_ORD = [0, 1, 4, 5, 8, 9, 12, 13, 2, 3, 6, 7, 10, 11, 14, 15]


def g4_ids(C):
    A = C.A
    A('s_and_b32 s18, s22, 3')
    A('s_lshl_b32 s30, s21, 2')
    A('s_add_u32 s18, s18, s30')
    A('s_and_b32 s30, s22, 12')
    A('s_add_u32 s30, s30, s25')
    A('s_lshl_b32 s30, s30, 1')
    A('s_add_u32 s30, s30, s26')
    A('s_lshl_b32 s19, s18, 5')
    A('s_add_u32 s19, s19, s30')
    A('s_lshl_b32 s19, s19, 10')
    A('s_lshr_b32 s3, s22, 2')
    A('s_and_b32 s30, s21, 3')
    A('s_xor_b32 s3, s3, s30')


def g4_waddr(C, vreg, wbase):
    A = C.A
    A('s_lshl_b32 s30, s26, 8')
    A(f'v_xor_b32 {v(vreg)}, s30, v3')
    A('s_and_b32 s30, s19, 0x7fff')
    A('s_lshl_b32 s30, s30, 4')
    A(f's_add_u32 s30, s30, {wbase}')
    A(f'v_add_u32 {v(vreg)}, s30, {v(vreg)}')


def g4_wreg(mode, i):
    if mode == 'qkv':
        return 128 + 4 * i
    return 224 + 4 * i if i < 8 else 64 + 4 * (i - 8)


def g4_wload(C, vreg, i, mode):
    so, im = soff(G4_ORD[i])
    C.vmem(f'buffer_load_dwordx4 {v(g4_wreg(mode, i), 4)}, {v(vreg)}, s[8:11], {so} offen offset:{im}', 'w')


def g4_pre(C, mode, xbase, resbase=None, raw=False):
    A = C.A
    EX = 96
    A('s_lshl_b32 s30, s18, 15')
    A('s_lshl_b32 s48, s20, 12')
    A('s_add_u32 s30, s30, s48')
    A(f's_add_u32 s30, s30, {xbase}')
    A('v_add_u32 v5, s30, v3')
    A('s_lshl_b32 s30, s26, 14')
    A(f's_add_u32 s30, s30, {XF0}')
    A('v_add_u32 v6, s30, v3')
    A(f'v_add_u32 v14, s48, v3')
    A(f's_add_u32 s48, s48, {XF0}')
    A('s_lshl_b32 s30, s20, 11')
    A(f's_add_u32 s30, s30, {RED4}')
    A('v_add_u32 v8, s30, v3')
    A('v_xor_b32 v7, 0x2000, v8')
    if mode == 'qkv':
        A('v_lshrrev_b32 v2, 5, v1')
        if not raw:
            A('v_lshlrev_b32 v4, 4, v2')
            A('s_and_b32 s31, s19, 0x7fff')
            A('s_lshr_b32 s31, s31, 4')
            A(f's_add_u32 s31, s31, {CSQKV}')
            C.vmem(f'buffer_load_dwordx4 {v(EX, 4)}, v4, s[8:11], s31 offen', 'ex')
            C.vmem(f'buffer_load_dwordx4 {v(EX + 4, 4)}, v4, s[8:11], s31 offen offset:32', 'ex')
            A('s_lshl_b32 s31, s25, 5')
            A(f's_add_u32 s31, s31, {CSQKV + 2048}')
            C.vmem(f'buffer_load_dwordx4 {v(EX + 8, 4)}, v4, s[8:11], s31 offen', 'ex')
        A('v_and_b32 v9, 31, v1')
        A('v_lshlrev_b32 v9, 3, v9')
        A(f'v_add_u32 v11, {ST4}, v9')
        A('s_lshl_b32 s30, s20, 8')
        A('v_add_u32 v10, s30, v11')
        A('v_lshl_add_u32 v9, v2, 9, v9')
        A('s_lshl_b32 s30, s18, 13')
        A('s_lshl_b32 s31, s20, 10')
        A('s_add_u32 s30, s30, s31')
        A(f's_add_u32 s30, s30, {resbase}')
        A('v_add_u32 v9, s30, v9')
        A('v_add_u32 v12, s48, v3')
        A('s_lshl_b32 s30, s25, 10')
        A(f's_add_u32 s30, s30, {KVR4}')
        A('v_add_u32 v13, s30, v3')
        A('v_bfe_u32 v15, v1, 4, 1')
        A('v_lshlrev_b32 v15, 9, v15')
        A('v_bfe_u32 v4, v1, 2, 1')
        A('v_lshl_add_u32 v15, v4, 8, v15')
        A('v_and_b32 v4, 3, v1')
        A('v_lshl_add_u32 v15, v4, 1, v15')
        A('v_bfe_u32 v4, v1, 3, 1')
        A('v_lshl_add_u32 v15, v4, 3, v15')
        A('v_lshl_add_u32 v15, v2, 6, v15')
    elif resbase is None:
        A('v_and_b32 v2, 31, v1')
        A('v_lshlrev_b32 v2, 10, v2')
        A('v_lshrrev_b32 v4, 5, v1')
        A('v_lshl_add_u32 v2, v4, 3, v2')
        A('s_lshl_b32 s30, s18, 15')
        A('s_and_b32 s31, s19, 0x7fff')
        A('s_lshr_b32 s31, s31, 5')
        A('s_add_u32 s30, s30, s31')
        C.vmem(f'buffer_load_dwordx2 {v(EX, 2)}, v2, s[12:15], s30 offen', 'ex')
        C.vmem(f'buffer_load_dwordx2 {v(EX + 2, 2)}, v2, s[12:15], s30 offen offset:16', 'ex')
    else:
        A(f's_add_u32 s31, s19, {resbase}')
        C.vmem(f'buffer_load_dwordx4 {v(EX, 4)}, v3, s[8:11], s31 offen', 'ex')


def ln_stats(A, T):
    for stp in (8, 4, 2):
        for e in range(stp):
            A(f'v_add_f32 {v(T + e)}, {v(T + e)}, {v(T + e + stp)}')
    A(f'v_mul_f32 {v(T)}, {f32(1.0 / 512)}, {v(T)}')
    A(f'v_mul_f32 {v(T + 1)}, {f32(1.0 / 512)}, {v(T + 1)}')
    A(f'v_fma_f32 {v(T + 1)}, -{v(T)}, {v(T)}, {v(T + 1)}')
    A(f'v_max_f32 {v(T + 1)}, 0, {v(T + 1)}')
    A(f'v_add_f32 {v(T + 1)}, {f32(1e-5)}, {v(T + 1)}')
    A(f'v_rsq_f32 {v(T + 1)}, {v(T + 1)}')


def g4_main(C, mode, outbase=None, sxout=None, kvf=None, kfl=None, hook_red=None, raw=None, endlab=None):
    A = C.A
    ACC, XR, EX = 16, 32, 96
    KW, KA, KR, T = 192, 208, 224, 108
    if not raw:
        A('s_mov_b32 m0, s48')
        A('s_nop 0')
        for k in range(4):
            C.vmem(f'buffer_load_dwordx4 v5, s[8:11], 0 offen offset:{k * 1024} lds', f'x{k}')

    def rd(i):
        A(f'ds_read_b128 {v(XR + 4 * (i % 8), 4)}, v6 offset:{G4_ORD[i] * 1024}')

    def mf(i):
        c = '0' if i == 0 else v(ACC, 16)
        A(f'v_mfma_f32_32x32x16_bf16 {v(ACC, 16)}, {v(g4_wreg(mode, i), 4)}, {v(XR + 4 * (i % 8), 4)}, {c}')

    def wq_loads():
        for i in range(16):
            so, im = soff(G4_ORD[i])
            A(f'buffer_load_dwordx4 {v(128 + 4 * i, 4)}, v64, s[8:11], {so} offen offset:{im}')

    if mode == 'qkv':
        A('s_add_u32 s35, s3, s26')
        if raw:
            raw['front']()
        else:
            for e in range(2):
                C.vmem(f'buffer_load_dwordx2 {v(T + 2 * e, 2)}, v9, s[8:11], 0 offen offset:{e * 256}', 'sx')
            l1, l2 = C.lab('w1'), C.lab('w2')
            A('s_cmp_eq_u32 s3, 0')
            A(f's_cbranch_scc1 {l1}')
            flag_b(C)
            wq_loads()
            A('s_waitcnt vmcnt(16)')
            A(f's_branch {l2}')
            A.label(l1)
            A('s_waitcnt vmcnt(0)')
            A.label(l2)
            C.vm = []
            C.stamp()
        lk = C.lab('k4')
        A('s_cmp_lg_u32 s3, 0')
        A(f's_cbranch_scc1 {lk}')
        if raw:
            raw['kvw']()
        else:
            for k in range(4):
                A(f'ds_read_b128 {v(KR + 4 * k, 4)}, v12 offset:{k * 1024}')
        for k in range(4):
            if not raw:
                A(f's_waitcnt lgkmcnt({3 - k})')
            A(f'v_mfma_f32_32x32x16_bf16 {v(KA, 16)}, {v(KW + 4 * k, 4)}, {v(KR + 4 * k, 4)}, {"0" if k == 0 else v(KA, 16)}')
        A.label(lk)
        A(f'v_add_f32 {v(T)}, {v(T)}, {v(T + 2)}')
        A(f'v_add_f32 {v(T + 1)}, {v(T + 1)}, {v(T + 3)}')
        A(f'v_mov_b32 {v(T + 2)}, {v(T)}')
        A(f'v_mov_b32 {v(T + 3)}, {v(T + 1)}')
        A('s_nop 1')
        swap_add(A, T, T + 2)
        swap_add(A, T + 1, T + 3)
        A(f'ds_write_b64 v10, {v(T, 2)}')
        A(f'v_mov_b32 {v(T + 2)}, 0')
        A(f'v_mov_b32 v9, {ST4 + 8192}')
        A(f'ds_write_b32 v9, {v(T + 2)}')
        lk = C.lab('k5')
        A('s_cmp_lg_u32 s3, 0')
        A(f's_cbranch_scc1 {lk}')
        for k in range(4):
            A(f'ds_write_b128 v14, {v(KA + 4 * k, 4)} offset:{k * 1024}')
        A.label(lk)
        A('s_waitcnt lgkmcnt(0)')
        A('s_barrier')
        for ww in range(8):
            A(f'ds_read_b64 {v(T + 2 * ww, 2)}, v11 offset:{ww * 256}')
        lv, le, lf = C.lab('v6'), C.lab('e6'), C.lab('f6')
        A('s_cmp_lg_u32 s35, 0')
        A(f's_cbranch_scc1 {le}')
        A('s_setprio 3')
        if FINE == 3:
            C.stamp()
        A('s_waitcnt lgkmcnt(4)')
        for ww in range(8):
            A(f'ds_read_b128 {v(KR + 4 * ww, 4)}, v13 offset:{ww * 4096}')
        A('s_waitcnt lgkmcnt(8)')
        for r in range(16):
            A(f'v_mov_b32 {v(KA + r)}, {v(T + r)}')
        ln_stats(A, KA)
        A('s_lshl_b32 s30, s18, 11')
        A(f's_add_u32 s30, s30, {kvf}')
        A('s_waitcnt lgkmcnt(0)')
        if raw:
            raw['kvcs0']()
        for stp in (16, 8, 4):
            for r in range(stp):
                A(f'v_add_f32 {v(KR + r)}, {v(KR + r)}, {v(KR + stp + r)}')
        if raw:
            raw['kvcs1']()
        for r in range(4):
            A(f'v_fma_f32 {v(KR + r)}, -{v(KA)}, {v(EX + 8 + r)}, {v(KR + r)}')
        for r in range(4):
            A(f'v_mul_f32 {v(KR + r)}, {v(KA + 1)}, {v(KR + r)}')
        for m in range(2):
            A(f'v_cvt_pk_bf16_f32 {v(KR + 8 + m)}, {v(KR + 2 * m)}, {v(KR + 2 * m + 1)}')
        A('s_cmp_ge_u32 s20, 2')
        A(f's_cbranch_scc1 {lv}')
        A('s_lshl_b32 s31, s20, 3')
        A('s_add_u32 s31, s31, s30')
        A(f'buffer_store_dwordx2 {v(KR + 8, 2)}, v3, s[8:11], s31 offen sc0 sc1')
        A(f's_branch {lf}')
        A.label(lv)
        A('s_lshl_b32 s31, s29, 10')
        A(f's_add_u32 s31, s31, {ST4 + 4096}')
        A('v_add_u32 v15, s31, v15')
        for r in range(4):
            op = 'ds_write_b16' if r % 2 == 0 else 'ds_write_b16_d16_hi'
            A(f'{op} v15, {v(KR + 8 + r // 2)} offset:{r * 16}')
        A('v_lshrrev_b32 v2, 3, v1')
        A('v_lshlrev_b32 v2, 8, v2')
        A(f'v_and_b32 {v(KR)}, 7, v1')
        A(f'v_lshl_add_u32 v2, {v(KR)}, 4, v2')
        A('v_add_u32 v15, s31, v2')
        A('s_mov_b32 exec_hi, 0')
        A(f'ds_read_b128 {v(KR + 12, 4)}, v15')
        A('s_lshl_b32 s31, s29, 7')
        A('s_add_u32 s31, s31, s30')
        A('s_waitcnt lgkmcnt(0)')
        A(f'buffer_store_dwordx4 {v(KR + 12, 4)}, v2, s[8:11], s31 offen offset:1024 sc0 sc1')
        A('s_mov_b64 exec, -1')
        A.label(lf)
        lg = C.lab('g6')
        if FINE == 3:
            C.stamp()
        A('s_lshl_b32 s30, s18, 7')
        A(f's_add_u32 s30, s30, {kfl}')
        if raw:
            raw['zchk']()
        A('s_mov_b64 exec, 1')
        A('s_waitcnt vmcnt(0)')
        A('ds_add_rtn_u32 v2, v9, v4')
        A('s_waitcnt lgkmcnt(0)')
        A('v_cmp_eq_u32 vcc, 3, v2')
        A('s_cbranch_vccz ' + lg)
        A('buffer_store_dword v4, v0, s[8:11], s30 offen sc0 sc1')
        A.label(lg)
        A('s_mov_b64 exec, -1')
        A('s_setprio 0')
        if FINE == 3:
            C.stamp()
        A.label(le)
        flag_b(C)
        A('s_waitcnt lgkmcnt(0)')
        if raw:
            raw['wprep']()
        else:
            l3 = C.lab('w3')
            A('s_cmp_lg_u32 s3, 0')
            A(f's_cbranch_scc1 {l3}')
            C.flagb = True
            flag_b(C)
            wq_loads()
            A.label(l3)
        if raw:
            raw['loop'](rd, mf)
        else:
            for i in range(8):
                rd(i)
            ln_stats(A, T)
            for i in range(16):
                A(f's_waitcnt lgkmcnt({7 if i < 8 else 15 - i}) vmcnt({15 - i})')
                mf(i)
                if i < 8:
                    rd(i + 8)
    else:
        def wl(i):
            so, im = soff(G4_ORD[i])
            C.vmem(f'buffer_load_dwordx4 {v(g4_wreg(mode, i), 4)}, v116, s[8:11], {so} offen offset:{im}', f'w{i}')
        if WO_LATE:
            for i in range(8, 8 + WO_L0):
                wl(i)
        C.wait('x1')
        A('s_barrier')
        C.stamp()
        for i in range(8):
            rd(i)
        if WO_LATE:
            for i in range(8 + WO_L0, 16):
                wl(i)
        for i in range(4):
            A(f's_waitcnt lgkmcnt({7 - i})')
            mf(i)
        C.wait('x3')
        A('s_barrier')
        for i in range(8, 12):
            rd(i)
        for i in range(4, 8):
            A('s_waitcnt lgkmcnt(7)')
            mf(i)
            rd(i + 8)
        flag_b(C)
        for i in range(8, 16):
            C.wait(f'w{i}', f'lgkmcnt({15 - i})')
            mf(i)
            if hook_red and i >= 8:
                hook_red(i - 8)
    C.stamp()
    if mode == 'qkv':
        kv_setup(C, kvf, kfl)
        A(f'v_mul_f32 {v(T + 2)}, {f32(QSCALE)}, {v(T + 1)}')
        if raw:
            raw['cs0']()
    else:
        C.wait('ex')
        TT = XR
        for m in range(4):
            A(f'v_lshlrev_b32 {v(TT + 2 * m)}, 16, {v(EX + m)}')
            A(f'v_and_b32 {v(TT + 2 * m + 1)}, 0xffff0000, {v(EX + m)}')
        A('s_nop 3')
    for h2 in range(2):
        A(f'ds_write_b128 v7, {v(ACC + 8 + 4 * h2, 4)} offset:{h2 * 1024}')
    if mode == 'qkv':
        if not raw:
            for r in range(8):
                A(f'v_fma_f32 {v(ACC + r)}, -{v(T)}, {v(EX + r)}, {v(ACC + r)}')
    else:
        for r in range(8):
            A(f'v_add_f32 {v(ACC + r)}, {v(ACC + r)}, {v(XR + r)}')
    A('s_waitcnt lgkmcnt(0)')
    A('s_barrier')
    for h2 in range(2):
        A(f'ds_read_b128 {v(ACC + 8 + 4 * h2, 4)}, v8 offset:{h2 * 1024}')
    if mode == 'qkv':
        if FINE == 3:
            C.stamp()
        kv_wait(C, 1, endlab)
        if FINE == 3:
            C.stamp()
        att_kvdma(C, 0)
        kv_flagload(C)
    if raw:
        raw['cs']()
        for r in range(8):
            A(f'v_fma_f32 {v(ACC + r)}, -{v(T)}, {v(EX + r)}, {v(ACC + r)}')
    A('s_waitcnt lgkmcnt(0)')
    for r in range(8):
        A(f'v_add_f32 {v(ACC + r)}, {v(ACC + r)}, {v(ACC + 8 + r)}')
    if mode == 'qkv':
        for r in range(8):
            A(f'v_mul_f32 {v(ACC + r)}, {v(T + 2)}, {v(ACC + r)}')
        for m in range(4):
            A(f'v_cvt_pk_bf16_f32 {v(124 + m)}, {v(ACC + 2 * m)}, {v(ACC + 2 * m + 1)}')
        A('s_barrier')
    else:
        P = ACC + 8
        for m in range(4):
            A(f'v_cvt_pk_bf16_f32 {v(P + m)}, {v(ACC + 2 * m)}, {v(ACC + 2 * m + 1)}')
        A(f's_add_u32 s31, s19, {outbase}')
        C.vmem(f'buffer_store_dwordx4 {v(P, 4)}, v3, s[8:11], s31 offen{WT}', 'st')
        blk_stats(C, P, XR)
        A('s_lshr_b32 s31, s19, 2')
        A(f's_add_u32 s31, s31, {sxout}')
        A('v_lshlrev_b32 v4, 3, v1')
        A('s_mov_b32 exec_hi, 0')
        C.vmem(f'buffer_store_dwordx2 {v(XR, 2)}, v4, s[8:11], s31 offen{WT}', 'st')
        A('s_mov_b64 exec, -1')


def qkv4_wstep(C, st, n):
    pass


def qkv4_wrest(C):
    A = C.A
    l = C.lab('kw')
    A('s_lshl_b32 s30, s20, 12')
    A(f's_add_u32 s30, s30, {WQKVP + 16 * 32 * KB}')
    A('s_cmp_lg_u32 s3, 0')
    A(f's_cbranch_scc1 {l}')
    for k in range(4):
        A(f'buffer_load_dwordx4 {v(192 + 4 * k, 4)}, v3, s[8:11], s30 offen offset:{k * 1024}')
    A.label(l)


def att_kvdma(C, r):
    A = C.A
    A(f's_add_u32 s30, s39, {r * 16384}')
    A('s_and_b32 s30, s30, 0x1ffff')
    A(f's_add_u32 m0, s37, {r * 8 * KVT}')
    A('s_add_u32 s30, s30, s38')
    A('buffer_load_dwordx4 v3, s[8:11], s30 offen lds')
    A('buffer_load_dwordx4 v3, s[8:11], s30 offen offset:1024 lds')


def kv_flagload(C):
    A = C.A
    A('s_mov_b64 exec, 0xff')
    A('buffer_load_dword v2, v0, s[8:11], s33 offen sc1')
    A('s_mov_b64 exec, -1')


def kv_setup(C, kvf, kfl):
    A = C.A
    A(f's_mul_i32 s37, s20, {KVT}')
    A('s_lshl_b32 s38, s20, 11')
    A(f's_add_u32 s38, s38, {kvf}')
    A('s_lshr_b32 s30, s21, 1')
    A('s_lshl_b32 s39, s30, 14')
    A('v_add_u32 v0, s30, v1')
    A('v_and_b32 v0, 7, v0')
    A('v_lshlrev_b32 v0, 10, v0')
    A('s_lshl_b32 s33, s20, 7')
    A(f's_add_u32 s33, s33, {kfl}')
    kv_flagload(C)


def kv_wait(C, mask, endlab):
    A = C.A
    lp, lpd = C.lab('kp'), C.lab('kpd')
    A('s_mov_b32 s31, 0')
    A('s_mov_b64 exec, 0xff')
    A.label(lp)
    A('s_add_u32 s31, s31, 1')
    A('s_waitcnt vmcnt(0)')
    A('v_cmp_ne_u32 vcc, 0, v2')
    A(f's_and_b32 s30, vcc_lo, {mask}')
    A(f's_cmp_eq_u32 s30, {mask}')
    A(f's_cbranch_scc1 {lpd}')
    A(f's_sleep {KV_SLEEP}')
    A('buffer_load_dword v2, v0, s[8:11], s33 offen sc1')
    A(f's_cmp_lt_u32 s31, {1 << 21}')
    A(f's_cbranch_scc1 {lp}')
    A(f's_branch {endlab}')
    A.label(lpd)
    A('s_mov_b64 exec, -1')


def att_phase(C, kvf, kfl, endlab, stubs, fixed={}, pf0=None, pre_hook=None, loadq=True, early=False):
    A = C.A
    tg = C.tag
    Q, CN, S0, S1, O, P, KF, VF, VK, VV, T = 124, 8, 24, 40, 56, 72, 80, 88, 104, 105, 106
    VV1 = 111
    S = [S0, S1]
    A(f's_add_u32 s36, s19, {C.B["OF"]}')
    if loadq:
        A(f's_add_u32 s31, s19, {C.B["QF"]}')
        C.vmem(f'buffer_load_dwordx4 {v(Q, 4)}, v3, s[8:11], s31 offen', 'q')
        flag_b(C)
    def kvdma(r):
        att_kvdma(C, r)
    if pre_hook:
        pre_hook()
    A(f'v_mov_b32 {v(VK)}, v3')
    A(f'v_and_b32 {v(T)}, 15, v1')
    A(f'v_lshrrev_b32 {v(T + 1)}, 5, v1')
    A(f'v_lshl_add_u32 {v(T)}, {v(T + 1)}, 4, {v(T)}')
    A(f'v_lshlrev_b32 {v(T)}, 4, {v(T)}')
    A(f'v_add_u32 {v(VV)}, 1024, {v(T)}')
    A(f'v_add_u32 {v(VV1)}, 1536, {v(T)}')
    A(f'v_and_b32 {v(T + 1)}, 31, v1')
    A(f'v_cmp_eq_u32 vcc, 16, {v(T + 1)}')
    A(f'v_mov_b32 {v(T + 2)}, 2048')
    A('s_nop 0')
    A(f'v_cndmask_b32 {v(VV)}, {v(VV)}, {v(T + 2)}, vcc')
    A(f'v_cndmask_b32 {v(VV1)}, {v(VV1)}, {v(T + 2)}, vcc')
    A(f'v_cmp_lt_u32 vcc, 16, {v(T + 1)}')
    A(f'v_mov_b32 {v(T + 2)}, 2064')
    A('s_nop 0')
    A(f'v_cndmask_b32 {v(VV)}, {v(VV)}, {v(T + 2)}, vcc')
    A(f'v_cndmask_b32 {v(VV1)}, {v(VV1)}, {v(T + 2)}, vcc')
    for r in range(16):
        A(f'v_mov_b32 {v(O + r)}, 0')
    for m in range(4, 8):
        A(f'v_mov_b32 {v(P + m)}, 0')
    for m in range(4):
        A(f'v_mov_b32 {v(VF + 12 + m)}, 0')
        A(f'v_mov_b32 {v(P + m)}, 0x3f803f80')
    A(f'v_mul_u32_u24 {v(T)}, {KVT}, v1')
    lcw = C.lab('cw')
    A('s_cmp_lg_u32 s20, 7')
    A(f's_cbranch_scc1 {lcw}')
    A(f'ds_write_b128 {v(T)}, {v(P, 4)} offset:2048')
    A(f'ds_write_b128 {v(T)}, {v(P + 4, 4)} offset:2064')
    A.label(lcw)
    lnd = C.lab('nd')
    A('s_waitcnt vmcnt(0) lgkmcnt(0)')
    A('v_cmp_ne_u32 vcc, 0, v2')
    A('s_barrier')
    A('s_and_b32 s32, vcc_lo, 0xff')
    A('s_cmp_lg_u32 s32, 0xff')
    A(f's_cbranch_scc1 {lnd}')
    for r in range(1, 4):
        kvdma(r)
    A.label(lnd)
    C.vm = []
    C.stamp()

    def rdK(buf, t):
        A(f'ds_read_b128 {v(KF + buf * 4, 4)}, {v(VK)} offset:{t * KVT}')

    def rdV(buf, t):
        A(f'ds_read_b128 {v(VF + buf * 8, 4)}, {v(VV)} offset:{t * KVT}')
        A(f'ds_read_b128 {v(VF + buf * 8 + 4, 4)}, {v(VV1)} offset:{t * KVT}')

    rdK(0, 0)
    rdK(1, 1)
    rdV(0, 0)
    A('s_waitcnt lgkmcnt(3)')
    A(f'v_mfma_f32_32x32x16_bf16 {v(S0, 16)}, {v(KF, 4)}, {v(Q, 4)}, 0')
    A('s_nop 11')
    A(f'v_max3_f32 {v(T)}, {v(S0)}, {v(S0 + 1)}, {v(S0 + 2)}')
    for r in range(3, 15, 2):
        A(f'v_max3_f32 {v(T)}, {v(T)}, {v(S0 + r)}, {v(S0 + r + 1)}')
    A(f'v_max_f32 {v(T)}, {v(T)}, {v(S0 + 15)}')
    A(f'v_mov_b32 {v(T + 1)}, {v(T)}')
    A('s_nop 1')
    A(f'v_permlane32_swap_b32 {v(T)}, {v(T + 1)}')
    A(f'v_max_f32 {v(T)}, {v(T)}, {v(T + 1)}')
    for r in range(16):
        A(f'v_sub_f32 {v(CN + r)}, 0, {v(T)}')
    for r in range(16):
        A(f'v_sub_f32 {v(S0 + r)}, {v(S0 + r)}, {v(T)}')
    A('s_setprio 3')
    C.stamp()
    def tile(t, off, extra=None):
        cur, nxt = t & 1, (t + 1) & 1
        Sc, Sn = S[cur], S[nxt]
        if not ONEWAIT:
            A('s_waitcnt lgkmcnt(2)')
        A(f'v_mfma_f32_32x32x16_bf16 {v(Sn, 16)}, {v(KF + nxt * 4, 4)}, {v(Q, 4)}, {v(CN, 16)}')
        rdK(cur, off + 2)
        for r in range(6):
            A(f'v_exp_f32 {v(Sc + r)}, {v(Sc + r)}')
        A(f'v_mfma_f32_32x32x16_bf16 {v(O, 16)}, {v(VF + nxt * 8 + 4, 4)}, {v(P + 4, 4)}, {v(O, 16)}')
        if extra:
            extra()
        for r in range(6, 8):
            A(f'v_exp_f32 {v(Sc + r)}, {v(Sc + r)}')
        for m in range(4):
            A(f'v_cvt_pk_bf16_f32 {v(P + m)}, {v(Sc + 2 * m)}, {v(Sc + 2 * m + 1)}')
        A(f'v_exp_f32 {v(Sc + 8)}, {v(Sc + 8)}')
        A(f'v_exp_f32 {v(Sc + 9)}, {v(Sc + 9)}')
        A('s_waitcnt lgkmcnt(0)' if ONEWAIT else 's_waitcnt lgkmcnt(1)')
        A(f'v_mfma_f32_32x32x16_bf16 {v(O, 16)}, {v(VF + cur * 8, 4)}, {v(P, 4)}, {v(O, 16)}')
        rdV(nxt, off + 1)
        for r in range(10, 16):
            A(f'v_exp_f32 {v(Sc + r)}, {v(Sc + r)}')
        for m in range(4, 8):
            A(f'v_cvt_pk_bf16_f32 {v(P + m)}, {v(Sc + 2 * m)}, {v(Sc + 2 * m + 1)}')

    def bump(n):
        for rg in (VK, VV, VV1):
            A(f'v_add_u32 {v(rg)}, {n * KVT}, {v(rg)}')
    if ONEWAIT:
        A('s_waitcnt lgkmcnt(0)')
    queue = list(stubs)
    nq = len(queue)
    tpf0 = pf0 if pf0 else TB2
    ntl = 64 - TPFEND - tpf0
    prio = {TP2: 2, TP1: 1, TP0: 0}
    dq = list(range(4, 8))
    for t in range(64):
        if t == TCHK:
            ld = C.lab('dn')
            A('s_cmp_eq_u32 s32, 0xff')
            A(f's_cbranch_scc1 {ld}')
            kv_flagload(C)
            kv_wait(C, 0xff, endlab)
            for r in range(1, 4):
                kvdma(r)
            A.label(ld)
        if t == 6 and TB2 != 6:
            assert not dq
            A('s_waitcnt vmcnt(12)')
            A('s_barrier')
        if t == TB2:
            assert not dq
            A('s_waitcnt vmcnt(0)')
            A('s_barrier')
        if t in prio:
            A(f's_setprio {prio[t]}')
        if t in fixed:
            fixed[t]()
        fs = []
        if t >= TCHK:
            for _ in range(DPT):
                if dq:
                    fs.append(lambda r=dq.pop(0): kvdma(r))
        if t >= tpf0 and queue:
            k = t - tpf0
            n = (nq * (k + 1)) // ntl - (nq * k) // ntl
            fs += [queue.pop(0) for _ in range(min(n, len(queue)))]
        tile(t, t % 24 if t < 48 else t - 48, lambda fs=fs: [f() for f in fs])
        if t in (23, 47):
            bump(24)
        if t == 63:
            bump(16)
    assert not queue
    A(f'v_mfma_f32_32x32x16_bf16 {v(O, 16)}, {v(VF + 8 + 4, 4)}, {v(P + 4, 4)}, {v(O, 16)}')
    A('s_mov_b32 s39, 0')
    C.stamp()
    A('s_waitcnt lgkmcnt(0)')
    A('s_nop 10')
    A.label(f'{tg}_fin')
    A(f'v_mov_b32 {v(T)}, {v(O + 8)}')
    A(f'v_mov_b32 {v(T + 1)}, {v(O + 8)}')
    A(f'v_mul_f32 {v(T + 2)}, 0, {v(O)}')
    A(f'v_fma_f32 {v(T + 2)}, {v(O + 1)}, 0, {v(T + 2)}')
    A(f'v_permlane32_swap_b32 {v(T)}, {v(T + 1)}')
    for r in range(2, 8):
        A(f'v_fma_f32 {v(T + 2)}, {v(O + r)}, 0, {v(T + 2)}')
    A(f'v_add_f32 {v(T + 2)}, {v(T + 2)}, {v(T)}')
    A(f'v_mov_b32 {v(T + 3)}, {f32(2.0 ** 30)}')
    A(f'v_cmp_nle_f32 vcc, {v(T + 2)}, {v(T + 3)}')
    A(f'v_rcp_f32 {v(T)}, {v(T)}')
    A('s_cmp_eq_u32 s39, 99')
    A(f's_cbranch_scc1 {tg}_store')
    A(f's_cbranch_vccnz {tg}_slow')
    A.label(f'{tg}_store')
    for r in range(8):
        A(f'v_mul_f32 {v(O + r)}, {v(T)}, {v(O + r)}')
    for m in range(4):
        A(f'v_cvt_pk_bf16_f32 {v(P + m)}, {v(O + 2 * m)}, {v(O + 2 * m + 1)}')
    C.vmem(f'buffer_store_dwordx4 {v(P, 4)}, v3, s[8:11], s36 offen{WT}', 'st')

    def tail(with_body):
        A.label(f'{tg}_slow')
        A(f'v_subrev_u32 {v(VK)}, {64 * KVT}, {v(VK)}')
        A(f'v_subrev_u32 {v(VV)}, {64 * KVT}, {v(VV)}')
        A(f'v_subrev_u32 {v(VV1)}, {64 * KVT}, {v(VV1)}')
        for r in range(16):
            A(f'v_mov_b32 {v(O + r)}, 0')
        M = T + 4
        A(f'v_sub_f32 {v(M)}, 0, {v(CN)}')
        A.label(f'{tg}_sloop')
        rdK(0, 0)
        rdV(0, 0)
        A('s_waitcnt lgkmcnt(0)')
        A(f'v_mfma_f32_32x32x16_bf16 {v(S0, 16)}, {v(KF, 4)}, {v(Q, 4)}, 0')
        A('s_nop 11')
        A(f'v_max3_f32 {v(T)}, {v(S0)}, {v(S0 + 1)}, {v(S0 + 2)}')
        for r in range(3, 15, 2):
            A(f'v_max3_f32 {v(T)}, {v(T)}, {v(S0 + r)}, {v(S0 + r + 1)}')
        A(f'v_max3_f32 {v(T)}, {v(T)}, {v(S0 + 15)}, {v(M)}')
        A(f'v_mov_b32 {v(T + 1)}, {v(T)}')
        A('s_nop 1')
        A(f'v_permlane32_swap_b32 {v(T)}, {v(T + 1)}')
        A(f'v_max_f32 {v(T)}, {v(T)}, {v(T + 1)}')
        A(f'v_sub_f32 {v(T + 1)}, {v(M)}, {v(T)}')
        A(f'v_exp_f32 {v(T + 1)}, {v(T + 1)}')
        A(f'v_mov_b32 {v(M)}, {v(T)}')
        for r in range(16):
            A(f'v_sub_f32 {v(S0 + r)}, {v(S0 + r)}, {v(T)}')
        for r in range(16):
            A(f'v_exp_f32 {v(S0 + r)}, {v(S0 + r)}')
        for r in range(16):
            A(f'v_mul_f32 {v(O + r)}, {v(T + 1)}, {v(O + r)}')
        for m in range(8):
            A(f'v_cvt_pk_bf16_f32 {v(P + m)}, {v(S0 + 2 * m)}, {v(S0 + 2 * m + 1)}')
        A('s_nop 1')
        A(f'v_mfma_f32_32x32x16_bf16 {v(O, 16)}, {v(VF, 4)}, {v(P, 4)}, {v(O, 16)}')
        A(f'v_mfma_f32_32x32x16_bf16 {v(O, 16)}, {v(VF + 4, 4)}, {v(P + 4, 4)}, {v(O, 16)}')
        A(f'v_add_u32 {v(VK)}, {KVT}, {v(VK)}')
        A(f'v_add_u32 {v(VV)}, {KVT}, {v(VV)}')
        A(f'v_add_u32 {v(VV1)}, {KVT}, {v(VV1)}')
        A('s_nop 11')
        A('s_add_u32 s39, s39, 1')
        A('s_cmp_lt_u32 s39, 64')
        A(f's_cbranch_scc1 {tg}_sloop')
        A('s_mov_b32 s39, 99')
        A(f's_branch {tg}_fin')
    return tail


V_WGU = 112


def gu_waddr(C):
    A = C.A
    A('s_mul_i32 s30, s22, 7')
    A('s_min_u32 s31, s20, 6')
    A('s_add_u32 s40, s30, s31')
    A('s_lshl_b32 s30, s40, 15')
    A(f's_add_u32 s30, s30, {WGUP}')
    A(f'v_add_u32 {v(V_WGU)}, s30, v3')


def gu_wload(C, ks):
    so, im = soff(ks)
    C.vmem(f'buffer_load_dwordx4 {v(128 + 4 * ks, 4)}, {v(V_WGU)}, s[8:11], {so} offen offset:{im}', 'wg')


def gu_pre(C):
    A = C.A
    CS = 112
    A('v_mov_b32 v15, v113')
    A('v_mov_b32 v9, v114')
    A(f'v_mov_b32 v14, {v(V_WGU)}')
    A('s_lshl_b32 s30, s21, 2')
    A('s_add_u32 s30, s30, s25')
    A('s_lshl_b32 s30, s30, 15')
    A('s_lshl_b32 s31, s26, 11')
    A('s_add_u32 s30, s30, s31')
    A(f's_add_u32 s30, s30, {C.B["XB"]}')
    A('v_add_u32 v13, s30, v3')
    A('s_lshl_b32 s48, s25, 15')
    A('s_add_u32 s48, s48, s31')
    A('v_add_u32 v7, 0x10000, v3')
    A('v_lshrrev_b32 v11, 5, v1')
    A('v_lshlrev_b32 v11, 4, v11')
    A('s_min_u32 s30, s20, 6')
    A('s_lshl_b32 s30, s30, 7')
    A(f's_add_u32 s30, s30, {132 * KB}')
    A('v_add_u32 v10, s30, v11')
    A('v_and_b32 v12, 31, v1')
    A('v_lshlrev_b32 v12, 3, v12')
    A('v_lshl_add_u32 v12, v11, 8, v12')
    A('s_lshl_b32 s30, s21, 15')
    A(f's_add_u32 s30, s30, {C.B["SXB"]}')
    A('v_add_u32 v12, s30, v12')
    A(f'v_add_u32 v8, {128 * KB}, v3')


def gu_main(C, after_store=None):
    A = C.A
    ACC, XF, CS = 16, 80, 112
    STR = [4, 10, 240, 244]

    def dma(c):
        A(f's_add_u32 m0, s48, {c * 4096}')
        so = '0' if c == 0 else s(40 + c)
        A('s_nop 0')
        for k in range(2):
            C.vmem(f'buffer_load_dwordx4 v13, s[8:11], {so} offen offset:{k * 1024} lds', f'x{c}')
    dma(0)
    dma(1)

    def rd(ks):
        buf = ks & 1
        for i in range(4):
            base = 'v3' if i < 2 else 'v7'
            A(f'ds_read_b128 {v(XF + buf * 16 + i * 4, 4)}, {base} offset:{(i & 1) * 32768 + ks * 1024}')

    def stats_load(i):
        for e in range(16):
            C.vmem(f'buffer_load_dwordx2 {v(ACC + (i & 1) * 32 + 2 * e, 2)}, v12, s[8:11], {"0" if i == 0 else s(40 + 2 * i)} offen offset:{e * 256}', f's{i}')

    def stats_sum(i):
        b = ACC + (i & 1) * 32
        C.wait(f's{i}')
        for stp in (16, 8, 4, 2):
            for e in range(stp):
                A(f'v_add_f32 {v(b + e)}, {v(b + e)}, {v(b + e + stp)}')
        A(f'v_mov_b32 {v(b + 2)}, {v(b)}')
        A(f'v_mov_b32 {v(b + 3)}, {v(b + 1)}')
        A('s_nop 1')
        A(f'v_permlane32_swap_b32 {v(b)}, {v(b + 2)}')
        A(f'v_permlane32_swap_b32 {v(b + 1)}, {v(b + 3)}')
        A(f'v_add_f32 {v(b)}, {v(b)}, {v(b + 2)}')
        A(f'v_add_f32 {v(b + 1)}, {v(b + 1)}, {v(b + 3)}')
        A(f'v_mul_f32 {v(b)}, {f32(-1.0 / 512)}, {v(b)}')
        A(f'v_mul_f32 {v(b + 1)}, {f32(1.0 / 512)}, {v(b + 1)}')
        A(f'v_fma_f32 {v(b + 1)}, -{v(b)}, {v(b)}, {v(b + 1)}')
        A(f'v_max_f32 {v(b + 1)}, 0, {v(b + 1)}')
        A(f'v_add_f32 {v(b + 1)}, {f32(1e-5)}, {v(b + 1)}')
        A(f'v_rcp_f32 {v(b + 2)}, {v(b + 1)}')
        A(f'v_mov_b32 {v(b + 1)}, {v(b)}')
        A(f'v_mov_b32 {v(b + 3)}, {v(b + 2)}')
        A(f'ds_write_b128 v8, {v(b, 4)} offset:{i * 1024}')
        A('s_waitcnt lgkmcnt(0)')

    def loop(idle):
        C.wait('x0')
        A('s_barrier')
        C.stamp()
        if not idle:
            rd(0)
        for ks in range(32):
            if ks + 1 < 32:
                if (ks + 1) in GU_BARS:
                    C.wait(f'x{GU_BARS[ks + 1]}')
                    A('s_barrier')
                if not idle:
                    rd(ks + 1)
                    if ks == 28:
                        for g in range(4):
                            A(f'ds_read_b128 {v(CS + g * 4, 4)}, v10 offset:{g * 32}')
                        A('s_waitcnt lgkmcnt(8)')
                    elif ks == 30:
                        for i in range(4):
                            A(f'ds_read_b128 {v(STR[i], 4)}, v8 offset:{i * 1024}')
                        A('s_waitcnt lgkmcnt(8)')
                    else:
                        A('s_waitcnt lgkmcnt(4)')
            elif not idle:
                A('s_waitcnt lgkmcnt(0)')
            buf = ks & 1
            todo = []
            if ks == 10:
                C.flagb = True
                flag_b(C)
            if ks < 6:
                todo.append(lambda: dma(ks + 2))
            if ks == 16 + WO_TAIL and not idle:
                C.wait('wg')
            if 6 <= ks < 6 + 16 - WO_TAIL and not idle:
                k2 = 16 + WO_TAIL + ks - 6
                so, im = soff(k2)
                todo.append(lambda k2=k2, so=so, im=im: C.vmem(f'buffer_load_dwordx4 {v(128 + 4 * k2, 4)}, v14, s[8:11], {so} offen offset:{im}', 'wg'))
            if ks >= GU_WD0:
                nleft = 28 - len(wdone)
                for st in [st for st in range(28) if st < ks and st not in wdone][:(2 if nleft > 31 - ks else 1)]:
                    todo.append(lambda st=st: g3_wload(C, (15, 9), st, 128))
                    wdone.add(st)
            for i in range(4):
                if not idle and not (GU_TAIL and (ks == 31 or (ks == 30 and i >= 2))):
                    c = '0' if ks == 0 else v(ACC + i * 16, 16)
                    if GU16:
                        for t2 in range(2):
                            aa = ACC + i * 16 + ((ks & 1) * 2 + t2) * 4
                            A(f'v_mfma_f32_16x16x32_bf16 {v(aa, 4)}, {v(128 + 4 * (ks ^ t2 if ks > 1 else ks), 4)}, {v(XF + buf * 16 + i * 4, 4)}, {"0" if ks < 2 else v(aa, 4)}')
                    else:
                        A(f'v_mfma_f32_32x32x16_bf16 {v(ACC + i * 16, 16)}, {v(128 + 4 * ks, 4)}, {v(XF + buf * 16 + i * 4, 4)}, {c}')
                if i < 3 and todo:
                    f_ = todo.pop(0)
                    if not (GU_NOW and ks >= 6):
                        f_()
            if idle:
                if ks == 6:
                    stats_load(0)
                    stats_load(1)
                if ks == 8:
                    stats_sum(0)
                    stats_load(2)
                    stats_sum(1)
                    stats_load(3)
                if ks == 12:
                    stats_sum(2)
                    stats_sum(3)
                    A(f's_mul_i32 s30, s22, {7 * 128}')
                    A(f's_add_u32 s30, s30, {CSP}')
                    for kp in range(8):
                        C.vmem(f'buffer_load_dwordx4 {v(ACC + 4 * kp, 4)}, v3, s[8:11], s30 offen', 'cp')
                        if kp < 7:
                            A(f's_add_u32 s30, s30, {3584 * 4}')
                if ks == 16:
                    C.wait('cp')
                    for stp in (16, 8, 4):
                        for e in range(stp):
                            A(f'v_add_f32 {v(ACC + e)}, {v(ACC + e)}, {v(ACC + e + stp)}')
                    A(f'v_add_u32 v10, {132 * KB}, v3')
                    A(f'ds_write_b128 v10, {v(ACC, 4)}')
                    A('s_waitcnt lgkmcnt(0)')
        assert len(wdone) == 28
        C.stamp()
        if idle:
            if after_store:
                after_store()
            return
        P = XF

        def epi(i):
            acc = ACC + i * 16
            for r in range(0, 16, 2):
                A(f'v_pk_fma_f32 {v(acc + r, 2)}, {v(STR[i], 2)}, {v(CS + r, 2)}, {v(acc + r, 2)}')
            for r in range(0, 8, 2):
                A(f'v_pk_mul_f32 {v(acc + r, 2)}, {v(acc + r, 2)}, {v(acc + 8 + r, 2)}')
            for r in range(0, 8, 2):
                A(f'v_pk_mul_f32 {v(acc + r, 2)}, {v(acc + r, 2)}, {v(STR[i] + 2, 2)}')
            pp = acc + 8
            for m in range(4):
                A(f'v_cvt_pk_bf16_f32 {v(pp + m)}, {v(acc + 2 * m)}, {v(acc + 2 * m + 1)}')
            C.vmem(f'buffer_store_dwordx4 {v(pp, 4)}, v3, s[8:11], s30 offen{WT}', 'st')
            if i < 3:
                A(f's_add_u32 s30, s30, {112 * KB}')

        def mm(i, ks):
            A(f'v_mfma_f32_32x32x16_bf16 {v(ACC + i * 16, 16)}, {v(128 + 4 * ks, 4)}, {v(XF + (ks & 1) * 16 + i * 4, 4)}, {v(ACC + i * 16, 16)}')
        A(f's_mul_i32 s30, s21, {4 * 112}')
        A('s_add_u32 s30, s30, s40')
        A('s_lshl_b32 s30, s30, 10')
        A(f's_add_u32 s30, s30, {C.B["HF"]}')
        if GU_TAIL:
            A('s_waitcnt lgkmcnt(0)')
            mm(0, 31)
            mm(2, 30)
            mm(1, 31)
            mm(3, 30)
            A('s_nop 8')
            epi(0)
            mm(2, 31)
            mm(3, 31)
            epi(1)
            epi(2)
            epi(3)
        else:
            A('s_nop 4')
            for i in range(4):
                epi(i)
        if after_store:
            after_store()

    ls, le = C.lab('gs'), C.lab('ge')
    A('s_cmp_eq_u32 s20, 7')
    A(f's_cbranch_scc1 {ls}')
    save, ns = list(C.vm), C.nstamp
    wdone = set()
    loop(False)
    A(f's_branch {le}')
    A.label(ls)
    C.vm, C.nstamp = list(save), ns
    wdone = set()
    loop(True)
    A.label(le)
    C.vm = ['st']


def flag_addr(C, sreg, sync):
    C.A(f's_lshl_b32 {s(sreg)}, s21, 8')
    C.A(f's_add_u32 {s(sreg)}, {s(sreg)}, {FLG + sync * 4096}')


GCNT = 134 * KB


def arrive(C, k, sync):
    A = C.A
    l = C.lab('p7')
    A('s_mov_b64 exec, 1')
    A(f'v_mov_b32 v14, {GCNT + 4 * k}')
    A('ds_add_rtn_u32 v14, v14, v4')
    A('s_waitcnt lgkmcnt(0)')
    C.lds = []
    A('v_cmp_eq_u32 vcc, 6, v14')
    A(f's_cbranch_vccz {l}')
    flag_addr(C, 30, sync)
    A('s_lshl_b32 s31, s22, 2')
    A('s_add_u32 s30, s30, s31')
    A('buffer_store_dword v4, v0, s[8:11], s30 offen')
    A('buffer_store_dword v4, v0, s[8:11], s30 offen offset:128 sc0 sc1')
    A.label(l)
    A('s_mov_b64 exec, -1')


def publish7(C, sync):
    A = C.A
    l = C.lab('p7')
    A('s_cmp_lg_u32 s20, 7')
    A(f's_cbranch_scc1 {l}')
    flag_addr(C, 30, sync)
    A('s_lshl_b32 s31, s22, 2')
    A('s_add_u32 s30, s30, s31')
    A('s_mov_b64 exec, 1')
    A('buffer_store_dword v4, v0, s[8:11], s30 offen')
    A('buffer_store_dword v4, v0, s[8:11], s30 offen offset:128 sc0 sc1')
    A('s_mov_b64 exec, -1')
    A.label(l)


def poll_issue(C, sync, tag):
    A = C.A
    flag_addr(C, 35, sync)
    A('s_mov_b64 exec, s[32:33]')
    C.vmem('buffer_load_dword v2, v0, s[8:11], s35 offen sc1', tag)
    A('s_mov_b64 exec, -1')


def poll_check(C, tag, endlab):
    A = C.A
    l1, l2, ld = C.lab('qa'), C.lab('qb'), C.lab('qd')
    C.wait(tag)
    A('s_mov_b64 exec, s[32:33]')
    A('s_mov_b32 s31, 0')
    A.label(l1)
    A('v_cmp_ne_u32 vcc, 0, v2')
    A('s_cmp_eq_u64 vcc, s[32:33]')
    A(f's_cbranch_scc1 {ld}')
    A('buffer_load_dword v2, v0, s[8:11], s35 offen sc1')
    A('s_add_u32 s31, s31, 1')
    A('s_waitcnt vmcnt(0)')
    A('s_cmp_lt_u32 s31, 64')
    A(f's_cbranch_scc1 {l1}')
    A.label(l2)
    A('buffer_load_dword v2, v0, s[8:11], s35 offen sc1')
    A('s_waitcnt vmcnt(0)')
    A('v_cmp_ne_u32 s[36:37], 0, v2')
    A('buffer_load_dword v2, v0, s[8:11], s35 offen offset:128 sc0 sc1')
    A('s_waitcnt vmcnt(0)')
    A('v_cmp_ne_u32 vcc, 0, v2')
    A('s_add_u32 s31, s31, 1')
    A('s_or_b64 vcc, vcc, s[36:37]')
    A('s_cmp_eq_u64 vcc, s[32:33]')
    A(f's_cbranch_scc1 {ld}')
    A('s_sleep 4')
    A(f's_cmp_lt_u32 s31, {1 << 20}')
    A(f's_cbranch_scc1 {l2}')
    A(f's_branch {endlab}')
    A.label(ld)
    A('s_mov_b64 exec, -1')


def gu2_pre(C):
    A = C.A
    A('v_mov_b32 v15, v113')
    A('v_mov_b32 v9, v114')
    A('s_lshl_b32 s30, s21, 2')
    A('s_add_u32 s30, s30, s29')
    A('s_lshl_b32 s30, s30, 15')
    A('s_lshr_b32 s31, s20, 1')
    A('s_lshl_b32 s31, s31, 11')
    A('s_add_u32 s30, s30, s31')
    A(f's_add_u32 s30, s30, {C.B["XB"]}')
    A('v_add_u32 v13, s30, v3')
    A('v_add_u32 v14, 0x10000, v13')
    A('s_lshl_b32 s48, s29, 15')
    A('s_add_u32 s48, s48, s31')
    A('v_add_u32 v7, 0x10000, v3')
    A('v_lshrrev_b32 v11, 5, v1')
    A('v_lshlrev_b32 v11, 4, v11')
    A('s_min_u32 s30, s20, 6')
    A('s_lshl_b32 s30, s30, 7')
    A(f's_add_u32 s30, s30, {132 * KB}')
    A('v_add_u32 v10, s30, v11')
    A('v_and_b32 v12, 31, v1')
    A('v_lshlrev_b32 v12, 3, v12')
    A('v_lshl_add_u32 v12, v11, 8, v12')
    A('s_lshl_b32 s30, s21, 15')
    A(f's_add_u32 s30, s30, {C.B["SXB"]}')
    A('v_add_u32 v12, s30, v12')
    A(f'v_add_u32 v8, {128 * KB}, v3')
    A(f's_mul_i32 s31, s20, {14 * KB}')
    A(f's_mul_i32 s30, s27, {112 * KB}')
    A('s_add_u32 s30, s30, s31')
    A(f's_add_u32 s30, s30, {C.B["HF"]}')
    A('v_add_u32 v5, s30, v3')
    A(f'v_add_u32 v6, {224 * KB}, v5')


def dn_slot(n):
    return 24 + 4 * n if n < 6 else 80 + 4 * ((n - 6) % 12)


def dn_xload(C, n):
    hh, st = divmod(n, 14)
    so, im = soff(st)
    C.vmem(f'buffer_load_dwordx4 {v(dn_slot(n), 4)}, {v(5 + hh)}, s[8:11], {so} offen offset:{im}', f'x{n}')


def gu2_main(C, sync1, endlab):
    A = C.A
    ACC, XF, CS = 16, 80, 112
    STR = [10, 10, ACC, ACC + 4]
    D = GU_D
    H = D // 2
    NSTEP = 32
    SE = 32 - H

    def dma(late, c):
        A(f's_add_u32 m0, s48, {late * 65536 + c * 8192}')
        so = '0' if c == 0 else s(40 + 2 * c)
        A('s_nop 0')
        for k in range(2):
            C.vmem(f'buffer_load_dwordx4 {"v14" if late else "v13"}, s[8:11], {so} offen offset:{k * 1024} lds', f'{"l" if late else "e"}{c}')
    dma(0, 0)
    dma(0, 1)

    def parts(st):
        if st < H:
            return [(0, 2 * st), (1, 2 * st), (0, 2 * st + 1), (1, 2 * st + 1)]
        if st < SE:
            return [(0, st + H), (1, st + H), (2, st - H), (3, st - H)]
        k = 32 - D + 2 * (st - SE)
        return [(2, k), (3, k), (2, k + 1), (3, k + 1)]

    def rd(st):
        for n, (i, ks) in enumerate(parts(st)):
            base = 'v3' if i < 2 else 'v7'
            C.ds(f'ds_read_b128 {v(XF + (st & 1) * 16 + n * 4, 4)}, {base} offset:{(i & 1) * 32768 + ks * 1024}', f'r{st}')

    def stats_load(i):
        for e in range(16):
            C.vmem(f'buffer_load_dwordx2 {v(ACC + (i & 1) * 32 + 2 * e, 2)}, v12, s[8:11], {"0" if i == 0 else s(40 + 2 * i)} offen offset:{e * 256}', f's{i}')

    def stats_sum(i):
        b = ACC + (i & 1) * 32
        C.wait(f's{i}')
        for stp in (16, 8, 4, 2):
            for e in range(stp):
                A(f'v_add_f32 {v(b + e)}, {v(b + e)}, {v(b + e + stp)}')
        A(f'v_mov_b32 {v(b + 2)}, {v(b)}')
        A(f'v_mov_b32 {v(b + 3)}, {v(b + 1)}')
        A('s_nop 1')
        A(f'v_permlane32_swap_b32 {v(b)}, {v(b + 2)}')
        A(f'v_permlane32_swap_b32 {v(b + 1)}, {v(b + 3)}')
        A(f'v_add_f32 {v(b)}, {v(b)}, {v(b + 2)}')
        A(f'v_add_f32 {v(b + 1)}, {v(b + 1)}, {v(b + 3)}')
        A(f'v_mul_f32 {v(b)}, {f32(-1.0 / 512)}, {v(b)}')
        A(f'v_mul_f32 {v(b + 1)}, {f32(1.0 / 512)}, {v(b + 1)}')
        A(f'v_fma_f32 {v(b + 1)}, -{v(b)}, {v(b)}, {v(b + 1)}')
        A(f'v_max_f32 {v(b + 1)}, 0, {v(b + 1)}')
        A(f'v_add_f32 {v(b + 1)}, {f32(1e-5)}, {v(b + 1)}')
        A(f'v_rcp_f32 {v(b + 2)}, {v(b + 1)}')
        A(f'v_mov_b32 {v(b + 1)}, {v(b)}')
        A(f'v_mov_b32 {v(b + 3)}, {v(b + 2)}')
        A(f'ds_write_b128 v8, {v(b, 4)} offset:{i * 1024}')
        A('s_waitcnt lgkmcnt(0)')

    def epi(i):
        acc = ACC + i * 16
        for r in range(0, 16, 2):
            A(f'v_pk_fma_f32 {v(acc + r, 2)}, {v(STR[i], 2)}, {v(CS + r, 2)}, {v(acc + r, 2)}')
        for r in range(0, 8, 2):
            A(f'v_pk_mul_f32 {v(acc + r, 2)}, {v(acc + r, 2)}, {v(acc + 8 + r, 2)}')
        for r in range(0, 8, 2):
            A(f'v_pk_mul_f32 {v(acc + r, 2)}, {v(acc + r, 2)}, {v(STR[i] + 2, 2)}')
        pp = acc + 8
        for m in range(4):
            A(f'v_cvt_pk_bf16_f32 {v(pp + m)}, {v(acc + 2 * m)}, {v(acc + 2 * m + 1)}')
        C.vmem(f'buffer_store_dwordx4 {v(pp, 4)}, v3, s[8:11], s39 offen{WT}', 'st')
        if i < 3:
            A(f's_add_u32 s39, s39, {112 * KB}')

    SF1 = SE + GU_SF1
    dorder = [(0, 2), (1, 0), (0, 3), (1, 1), (1, 2), (1, 3)]
    bars = {4: 'e1', 8: 'l0', 12: 'l3', min(20, SE - 2): None}
    if F1BAR:
        bars[SF1] = 'st'
    avail = {0: {'e0'}, 4: {'e0', 'e1'}, 8: {'e0', 'e1', 'l0', 'e2'}}
    for st in range(12):
        have = avail[st // 4 * 4]
        for i, ks in parts(st):
            assert ('l' if i >= 2 else 'e') + str(ks // 8) in have, (st, i, ks)

    def loop(idle):
        C.lds = []
        A(f's_mul_i32 s39, s21, {4 * 112}')
        A('s_add_u32 s39, s39, s40')
        A('s_lshl_b32 s39, s39, 10')
        A(f's_add_u32 s39, s39, {C.B["HF"]}')
        C.wait('e0')
        A('s_barrier')
        C.stamp()
        if not idle:
            rd(0)
        dq = list(dorder)
        wdone = 0
        for st in range(NSTEP):
            if st + 1 in bars:
                if bars[st + 1]:
                    C.wait(bars[st + 1])
                A('s_barrier')
                if F1BAR and st + 1 == SF1 and idle:
                    publish7(C, sync1)
            if not idle:
                if st + 1 < NSTEP:
                    rd(st + 1)
                if st == min(20, SE - 2):
                    for g in range(4):
                        C.ds(f'ds_read_b128 {v(CS + g * 4, 4)}, v10 offset:{g * 32}', 'cs')
                if st == SE - 1:
                    C.ds(f'ds_read_b128 {v(STR[0], 4)}, v8', 'sa')
                if st == SE + 3:
                    for i in range(2, 4):
                        C.ds(f'ds_read_b128 {v(STR[i], 4)}, v8 offset:{i * 1024}', 'sb')
                C.dwait(f'r{st}')
            if FINE == 5 and st in (8, 16, SE, SF1 - 1, SF1):
                C.stamp()
                C.lds = []
            todo = []
            if GU_PRIO and not idle and st in (12, SE + 2, SF1 + 1):
                A(f's_setprio {dict([(12, 3), (SE + 2, 2), (SF1 + 1, 0)])[st]}')
            if st == 10:
                C.flagb = True
                flag_b(C)
            if dq:
                todo.append(lambda x=dq.pop(0): dma(*x))
            freed = min([ks for i, ks in parts(st) if i >= 2] or [0])
            lim = 28 if idle and st >= 8 else min(28, freed)
            for _ in range(2):
                if wdone < lim:
                    todo.append(lambda k=wdone: g3_wload(C, (15, 9), k, 128))
                    wdone += 1
            for n, (i, ks) in enumerate(parts(st)):
                if not idle:
                    c = '0' if ks == 0 else v(ACC + i * 16, 16)
                    A(f'v_mfma_f32_32x32x16_bf16 {v(ACC + i * 16, 16)}, {v(128 + 4 * ks, 4)}, {v(XF + (st & 1) * 16 + n * 4, 4)}, {c}')
                if todo:
                    todo.pop(0)()
            assert not todo
            if not idle and st == SE:
                C.dwait('sa')
                A('s_nop 3')
                epi(0)
                C.ds(f'ds_read_b128 {v(STR[1], 4)}, v8 offset:1024', 'sa')
            if not idle and st == SE + 1:
                C.dwait('sa')
                epi(1)
            if not idle and st == SF1 and not F1BAR:
                C.wait('st')
                A('s_mov_b64 exec, 1')
                A(f'v_mov_b32 v14, {GCNT}')
                C.ds('ds_add_u32 v14, v4', 'ar')
                A('s_mov_b64 exec, -1')
            if idle and st == SF1 and not F1BAR:
                lsp, lsd = C.lab('sp'), C.lab('sd')
                A(f'v_mov_b32 v14, {GCNT}')
                A('s_mov_b32 s31, 0')
                A.label(lsp)
                A('ds_read_b32 v13, v14')
                A('s_add_u32 s31, s31, 1')
                A('s_waitcnt lgkmcnt(0)')
                A('v_cmp_eq_u32 vcc, 7, v13')
                A(f's_cbranch_vccnz {lsd}')
                A('s_sleep 1')
                A(f's_cmp_lt_u32 s31, {1 << 22}')
                A(f's_cbranch_scc1 {lsp}')
                A(f's_branch {endlab}')
                A.label(lsd)
                publish7(C, sync1)
            if st == NSTEP - 1 - GU_PO:
                A('s_lshl_b32 s30, s20, 1')
                A('s_lshl_b32 s32, 3, s30')
                poll_issue(C, sync1, 'f1')
            if idle:
                if st == 6:
                    A(f'v_mov_b32 {v(XF)}, 0')
                    A(f'v_mov_b32 {v(XF + 1)}, 0')
                    A(f'v_mov_b32 {v(XF + 2)}, {GCNT}')
                    A(f'ds_write_b64 {v(XF + 2)}, {v(XF, 2)}')
                    stats_load(0)
                    stats_load(1)
                if st == 9:
                    stats_sum(0)
                    A(f's_mul_i32 s30, s22, {7 * 128}')
                    A(f's_add_u32 s30, s30, {CSP}')
                    for kp in range(8):
                        C.vmem(f'buffer_load_dwordx4 {v(ACC + 4 * kp, 4)}, v3, s[8:11], s30 offen', 'cp')
                        if kp < 7:
                            A(f's_add_u32 s30, s30, {3584 * 4}')
                    stats_sum(1)
                    stats_load(3)
                if st == 13:
                    C.wait('cp')
                    for stp in (16, 8, 4):
                        for e in range(stp):
                            A(f'v_add_f32 {v(ACC + e)}, {v(ACC + e)}, {v(ACC + e + stp)}')
                    A(f'v_add_u32 v10, {132 * KB}, v3')
                    A(f'ds_write_b128 v10, {v(ACC, 4)}')
                    A('s_waitcnt lgkmcnt(0)')
                    stats_load(2)
                    stats_sum(3)
                    stats_sum(2)
        assert wdone == 28
        C.stamp()

        def prime():
            poll_check(C, 'f1', endlab)
            for n in range(6):
                dn_xload(C, n)
        if PRIME_LATE == 0:
            prime()
        if not idle:
            A('s_waitcnt lgkmcnt(0)')
            A('s_nop 11')
            epi(2)
        if PRIME_LATE == 1:
            prime()
        if not idle:
            epi(3)
        if PRIME_LATE == 2:
            prime()

    ls, le = C.lab('gs'), C.lab('ge')
    A('s_cmp_eq_u32 s20, 7')
    A(f's_cbranch_scc1 {ls}')
    save, ns = list(C.vm), C.nstamp
    loop(False)
    A(f's_branch {le}')
    A.label(ls)
    C.vm, C.nstamp = list(save), ns
    loop(True)
    A.label(le)
    C.vm = [f'x{n}' for n in range(6)]


def dn_main(C, mode, sync2, endlab, resbase, outbase=None, sxout=None, hook_red=None):
    A = C.A
    NS, EX, WR = 14, 252, 128
    AC = [48, 16]
    nxt = 6
    A(f's_add_u32 s31, s49, {resbase}')
    C.vmem(f'buffer_load_dwordx4 {v(EX, 4)}, v3, s[8:11], s31 offen', 'ex')
    A('s_lshl_b32 s30, s20, 11')
    A('v_add_u32 v8, s30, v3')
    A('v_add_u32 v7, 0x10000, v8')
    A('s_and_b32 s31, s20, 6')
    for c in range(4):
        A(f's_xor_b32 s30, s31, {c << 1}')
        A('s_lshl_b32 s30, s30, 11')
        A('s_lshl_b32 s34, s20, 14')
        A('s_add_u32 s30, s30, s34')
        A(f'v_add_u32 {v(9 + c)}, s30, v3')
    C.stamp()

    def wr(hh):
        out = []
        for c in (0, 2, 1, 3):
            base = AC[hh] + (c & 1) * 16 + (c >> 1) * 8
            out += [f'ds_write_b128 {v(9 + c)}, {v(base + h2 * 4, 4)} offset:{hh * 2048 + h2 * 1024}' for h2 in range(2)]
        return out
    pend = []
    for hh in range(2):
        for st in range(NS):
            n = hh * NS + st
            C.wait(f'x{n}')
            for jj in range(2):
                c = '0' if st == 0 else v(AC[hh] + jj * 16, 16)
                A(f'v_mfma_f32_32x32x16_bf16 {v(AC[hh] + jj * 16, 16)}, {v(WR + 4 * (2 * st + jj), 4)}, {v(dn_slot(n), 4)}, {c}')
                if hh == 1 and st >= 3 and pend:
                    A(pend.pop(0))
            if n == DN_AR and F2BAR:
                if PRIME_LATE < 2:
                    C.wait('ex')
                A('s_barrier')
                publish7(C, sync2)
            if n == DN_AR and not F2BAR:
                C.wait('ex')
                lh = C.lab('h7')
                A('s_cmp_eq_u32 s20, 7')
                A(f's_cbranch_scc1 {lh}')
                arrive(C, 1, sync2)
                A.label(lh)
            if FINE == 5 and n in (0, 1, 7, 8, 14):
                C.stamp()
            if n == DN_PI:
                poll_issue(C, sync2, 'f2')
            if nxt == NS:
                poll_check(C, 'f2', endlab)
            if nxt < 2 * NS:
                dn_xload(C, nxt)
                nxt += 1
            if hh == 1 and st == 2:
                A('s_nop 2' if F2BAR else 's_barrier')
        if hh == 0:
            pend = wr(0)
    assert not pend
    C.stamp()
    T = 80
    C.wait('ex')
    for m in range(4):
        A(f'v_lshlrev_b32 {v(T + 2 * m)}, 16, {v(EX + m)}')
        A(f'v_and_b32 {v(T + 2 * m + 1)}, 0xffff0000, {v(EX + m)}')
    A('s_nop 2')
    for x in wr(1):
        A(x)
    if hook_red:
        hook_red()
    A('s_waitcnt lgkmcnt(0)')
    A('s_barrier')
    for b in range(8):
        for h2 in range(2):
            base, off = ('v8', b * 16 * KB) if b < 4 else ('v7', (b - 4) * 16 * KB)
            A(f'ds_read_b128 {v(16 + b * 8 + h2 * 4, 4)}, {base} offset:{off + h2 * 1024}')
        if b == 6:
            A('s_waitcnt lgkmcnt(10)')
            for r in range(8):
                A(f'v_add_f32 {v(16 + r)}, {v(16 + r)}, {v(T + r)}')
    A('s_waitcnt lgkmcnt(0)')
    for stp in (32, 16, 8):
        for r in range(stp):
            A(f'v_add_f32 {v(16 + r)}, {v(16 + r)}, {v(16 + stp + r)}')
    P = 24
    for m in range(4):
        A(f'v_cvt_pk_bf16_f32 {v(P + m)}, {v(16 + 2 * m)}, {v(16 + 2 * m + 1)}')
    if mode == 'res':
        A(f's_add_u32 s31, s49, {outbase}')
        C.vmem(f'buffer_store_dwordx4 {v(P, 4)}, v3, s[8:11], s31 offen{WT}', 'st')
        blk_stats(C, P, T)
        A('s_lshr_b32 s31, s49, 2')
        A(f's_add_u32 s31, s31, {sxout}')
        A('v_lshlrev_b32 v4, 3, v1')
        A('s_mov_b32 exec_hi, 0')
        C.vmem(f'buffer_store_dwordx2 {v(T, 2)}, v4, s[8:11], s31 offen{WT}', 'st')
        A('s_mov_b64 exec, -1')
    else:
        A('v_and_b32 v4, 31, v1')
        A('v_lshlrev_b32 v4, 10, v4')
        A('v_lshrrev_b32 v5, 5, v1')
        A('v_lshl_add_u32 v4, v5, 4, v4')
        A('s_and_b32 s30, s49, 0xffff8000')
        A('s_and_b32 s31, s49, 0x7fff')
        A('s_lshr_b32 s31, s31, 5')
        A('s_add_u32 s30, s30, s31')
        A(f'v_permlane32_swap_b32 {v(P)}, {v(P + 2)}')
        A(f'v_permlane32_swap_b32 {v(P + 1)}, {v(P + 3)}')
        C.vmem(f'buffer_store_dwordx4 {v(P, 4)}, v4, s[12:15], s30 offen', 'st')


def swap_add(A, ra, rb):
    A(f'v_permlane32_swap_b32 {v(ra)}, {v(rb)}')
    A(f'v_add_f32 {v(ra)}, {v(ra)}, {v(rb)}')


def pre_part(C, end):
    A = C.A
    A('s_cmp_ge_u32 s2, 256')
    A(f's_cbranch_scc1 {end}')
    A('s_load_dwordx2 s[12:13], s[0:1], 0')
    A('s_load_dwordx2 s[16:17], s[0:1], 8')
    A('s_load_dwordx2 s[52:53], s[0:1], 16')
    A('s_load_dwordx2 s[56:57], s[0:1], 24')
    A('s_load_dwordx2 s[4:5], s[0:1], 80')
    for d, sz in ((12, 2048 * 1024), (16, 512 * 1024), (52, 512 * 32), (56, 512 * 32), (4, 256)):
        A(f's_mov_b32 {s(d + 2)}, {sz}')
        A(f's_mov_b32 {s(d + 3)}, 0x20000')
    setup(C, False, end)
    C.stamp()
    if TLBW:
        A('s_lshl_b32 s30, s20, 3')
        A(f's_add_u32 s30, s30, 32')
        A('s_cmp_eq_u32 s20, 1')
        A('s_cselect_b32 s30, 8, s30')
        A('s_load_dwordx2 s[32:33], s[0:1], s30')
        A('s_mov_b32 s31, 8192')
        A('s_cmp_ge_u32 s20, 2')
        A('s_cselect_b32 s31, 28672, s31')
        A('s_cmp_eq_u32 s20, 6')
        A('s_cselect_b32 s31, 4, s31')
        A('s_cmp_eq_u32 s20, 7')
        A(f's_cselect_b32 s31, {TLBW}, s31')
        A('v_mul_lo_u32 v4, v1, s31')
        A('s_waitcnt lgkmcnt(0)')
        A('global_load_dword v127, v4, s[32:33]')
    A('s_add_u32 s30, s21, 1')
    A('s_and_b32 s30, s30, 3')
    A('s_lshl_b32 s30, s30, 2')
    A('s_xor_b32 s30, s30, s22')
    A('s_add_u32 s30, s30, s20')
    A('s_cmp_lg_u32 s30, 0')
    A('s_cbranch_scc1 pr_z0')
    for r in range(4):
        A(f'v_mov_b32 {v(8 + r)}, 0')
    A('v_lshrrev_b32 v4, 4, v1')
    A('v_and_b32 v5, 15, v1')
    A('v_lshlrev_b32 v5, 4, v5')
    A('v_lshl_add_u32 v4, v4, 12, v5')
    A('s_lshl_b32 s30, s21, 8')
    A(f's_add_u32 s30, s30, {FLG}')
    for k in range(3):
        A('buffer_store_dwordx4 v[8:11], v4, s[8:11], s30 offen sc0 sc1')
        A('s_add_u32 s30, s30, 16384')
    A('v_lshlrev_b32 v4, 7, v1')
    A(f's_mul_i32 s30, s21, {64 * 128}')
    A(f's_add_u32 s30, s30, {PFL}')
    A('buffer_store_dwordx4 v[8:11], v4, s[8:11], s30 offen sc0 sc1')
    A('v_mov_b32 v5, 1')
    A('s_mov_b64 exec, 1')
    A('s_waitcnt vmcnt(0)')
    A('buffer_atomic_add v5, v8, s[4:7], 0 offen sc1')
    A('s_mov_b64 exec, -1')
    A('s_nop 1')
    A.label('pr_z0')
    KST, KW, KR, T, EX, XR = 240, 192, 224, 108, 96, 32
    WST, CSQ, CSKV = 96 * KB, ST4 + 9 * KB, ST4 + 10 * KB
    A('s_mov_b64 s[36:37], s[16:17]')
    A(f's_mov_b32 s38, {512 * 1024}')
    A('s_mov_b32 s39, 0x20000')
    g4_ids(C)
    A('s_lshl_b32 s30, s20, 11')
    A('s_cmp_lg_u32 s3, 0')
    A('s_cbranch_scc1 pr_k0')
    for k in range(4):
        A(f'buffer_load_dwordx4 {v(KST + 4 * k, 4)}, v3, {"s[52:55]" if k < 2 else "s[56:59]"}, s30 offen offset:{(k & 1) * 1024}')
    A.label('pr_k0')
    A('v_lshrrev_b32 v4, 3, v1')
    A('v_and_b32 v5, 7, v1')
    A('v_lshrrev_b32 v6, 4, v1')
    A('v_xor_b32 v6, v6, v5')
    A('v_lshlrev_b32 v7, 10, v4')
    A('v_lshl_add_u32 v8, v6, 4, v7')
    A('v_xor_b32 v9, 64, v8')
    A('s_lshl_b32 s30, s18, 15')
    A('s_lshl_b32 s31, s20, 7')
    A('s_add_u32 s30, s30, s31')
    A('s_lshl_b32 s32, s20, 12')
    for i in range(4):
        A(f's_add_u32 m0, s32, {KVR4 + i * 1024}')
        A('s_nop 0')
        C.vmem(f'buffer_load_dwordx4 {v(8 + (i & 1))}, s[12:15], s30 offen lds', 'x')
        A('s_add_u32 s30, s30, 8192')
    A('v_lshrrev_b32 v4, 2, v1')
    A('v_and_b32 v5, 3, v1')
    A('v_lshlrev_b32 v10, 10, v4')
    A('v_lshl_add_u32 v10, v5, 4, v10')
    A('s_lshl_b32 s31, s26, 18')
    A('s_bfe_u32 s30, s19, 0x4000b')
    A('s_lshl_b32 s30, s30, 6')
    A('s_add_u32 s31, s31, s30')
    A('s_lshl_b32 s51, s20, 13')
    A(f's_add_u32 s51, s51, {WST}')
    A('s_mov_b32 s50, s31')
    A('v_mov_b32 v88, v10')
    A('s_and_b32 s33, s22, 3')
    A(f's_lshl_b32 s33, s33, 16' if WROT else 's_mov_b32 s33, 0')

    def wloads():
        for i in range(16):
            A(f's_xor_b32 s30, s33, {G4_ORD[i] * 16384}')
            A('s_add_u32 s30, s30, s50')
            if i < 8:
                A(f's_add_u32 m0, s51, {i * 1024}')
                A('s_nop 0')
                A('buffer_load_dwordx4 v88, s[36:39], s30 offen lds')
            else:
                A(f'buffer_load_dwordx4 {v(128 + 4 * i, 4)}, v88, s[36:39], s30 offen')
    A('s_cmp_eq_u32 s3, 0')
    A('s_cbranch_scc1 pr_w1')
    A('s_barrier')
    wloads()
    A('s_waitcnt vmcnt(16)')
    A.label('pr_w1')
    C.stamp()
    A('v_and_b32 v64, 31, v1')
    A('v_lshrrev_b32 v65, 5, v1')
    A('v_lshlrev_b32 v66, 7, v64')
    A('v_lshl_add_u32 v66, v65, 3, v66')
    A('v_bfe_u32 v67, v1, 1, 3')
    A('v_lshl_add_u32 v66, v67, 4, v66')
    A(f's_add_u32 s30, s32, {KVR4}')
    A('v_add_u32 v66, s30, v66')
    A('v_bfe_u32 v67, v1, 2, 2')
    A('v_lshl_add_u32 v67, v65, 2, v67')
    A('v_lshlrev_b32 v68, 3, v5')
    A('v_bfe_u32 v69, v1, 4, 1')
    A('v_lshl_add_u32 v70, v67, 5, v68')
    A('v_lshl_add_u32 v70, v69, 11, v70')
    A('v_add_u32 v70, s30, v70')
    A('v_lshl_add_u32 v71, v67, 6, v68')
    A('v_lshl_add_u32 v71, v69, 5, v71')
    A('s_lshl_b32 s30, s26, 5')
    A('v_xor_b32 v71, s30, v71')
    A('v_add_u32 v71, s51, v71')
    A('v_add_u32 v72, s51, v3')
    A('v_mov_b32 v73, 0x3f803f80')
    A('v_lshlrev_b32 v74, 2, v64')
    A('s_lshl_b32 s30, s20, 7')
    A(f's_add_u32 s31, s30, {CSKV}')
    A('v_add_u32 v75, s31, v74')
    A('s_lshl_b32 s31, s26, 6')
    A('v_xor_b32 v74, s31, v74')
    A(f's_add_u32 s30, s30, {CSQ}')
    A('v_add_u32 v74, s30, v74')
    A('v_lshlrev_b32 v76, 4, v65')
    A('s_add_u32 s30, s30, s31')
    A('v_add_u32 v77, s30, v76')
    A('v_xor_b32 v78, 512, v77')
    A('s_lshl_b32 s30, s25, 5')
    A(f's_add_u32 s30, s30, {CSKV}')
    A('v_add_u32 v79, s30, v76')
    g4_pre(C, 'qkv', XA, resbase=0, raw=True)
    A('s_lshr_b32 s30, s33, 4')
    A('s_lshl_b32 s31, s20, 12')
    A('s_xor_b32 s30, s30, s31')
    A(f's_add_u32 s30, s30, {XF0}')
    A('v_add_u32 v12, s30, v3')
    A('v_mov_b32 v0, 0')
    A('v_mov_b32 v4, 1')
    for ch in range(8):
        A(f'v_xor_b32 {v(80 + ch)}, {ch << 4}, v66')

    def front():
        A('s_cmp_lg_u32 s3, 0')
        A('s_cbranch_scc1 pr_w2')
        A('s_waitcnt vmcnt(0)')
        A.label('pr_w2')
        C.vm = []
        C.stamp()
        for ch in range(8):
            A(f'ds_read_b64 {v(KR + 2 * ch, 2)}, {v(80 + ch)}')
        A('s_waitcnt lgkmcnt(0)')
        for k in range(4):
            A(f'ds_write_b128 v12, {v(KR + 4 * k, 4)} offset:{k * 1024}')
        for r in range(8):
            for e in range(2):
                x = v(KR + 2 * r + e)
                A(f'v_dot2_f32_bf16 {v(T + 2 * e)}, {x}, v73, {"0" if r == 0 else v(T + 2 * e)}')
                A(f'v_dot2_f32_bf16 {v(T + 2 * e + 1)}, {x}, {x}, {"0" if r == 0 else v(T + 2 * e + 1)}')
        A('s_nop 0')

    def kvw():
        for k in range(4):
            A(f'ds_write_b128 v14, {v(KST + 4 * k, 4)} offset:{k * 1024}')
        A('s_waitcnt lgkmcnt(4)')
        for st in range(4):
            for h2 in range(2):
                A(f'ds_read_b64_tr_b16 {v(KW + 4 * st + 2 * h2, 2)}, v70 offset:{st * 512 + h2 * 256}')
        A('s_waitcnt lgkmcnt(0)')
        for r in range(8):
            for e in range(2):
                A(f'v_dot2_f32_bf16 {v(80 + e)}, {v(KW + 2 * r + e)}, v73, {"0" if r == 0 else v(80 + e)}')
        A('s_nop 2')
        A('v_add_f32 v80, v80, v81')
        A('v_mov_b32 v81, v80')
        A('s_nop 1')
        swap_add(A, 80, 81)
        A('ds_write_b32 v75, v80')

    def kvcs0():
        for ww in range(8):
            A(f'ds_read_b128 {v(XR + 4 * ww, 4)}, v79 offset:{ww * 128}')

    def kvcs1():
        A('s_waitcnt lgkmcnt(0)')
        for stp in (16, 8):
            for r in range(stp):
                A(f'v_add_f32 {v(XR + r)}, {v(XR + r)}, {v(XR + stp + r)}')
        for r in range(4):
            A(f'v_add_f32 {v(EX + 8 + r)}, {v(XR + r)}, {v(XR + 4 + r)}')

    def zchk():
        lz, lzd = C.lab('z'), C.lab('zd')
        A('s_mov_b32 s31, 0')
        A('s_mov_b64 exec, 1')
        A.label(lz)
        A('buffer_load_dword v2, v0, s[4:7], 0 offen sc1')
        A('s_waitcnt vmcnt(0)')
        A('v_cmp_le_u32 vcc, 16, v2')
        A('s_add_u32 s31, s31, 1')
        A('s_cmp_eq_u64 vcc, 1')
        A(f's_cbranch_scc1 {lzd}')
        A('s_sleep 8')
        A(f's_cmp_lt_u32 s31, {1 << 20}')
        A(f's_cbranch_scc1 {lz}')
        A(f's_branch {end}')
        A.label(lzd)
        A('s_mov_b64 exec, -1')

    def wprep():
        A('s_cmp_lg_u32 s3, 0')
        A('s_cbranch_scc1 pr_w3')
        wloads()
        A.label('pr_w3')
        zchk()
        C.vm = []
        C.stamp()


    def tr(i):
        for h2 in range(2):
            A(f'ds_read_b64_tr_b16 {v(128 + 4 * i + 2 * h2, 2)}, v71 offset:{(i % 8) * 1024 + h2 * 512}')

    def csdot(r0, r1):
        for r in range(r0, r1):
            for e in range(4):
                A(f'v_dot2_f32_bf16 {v(80 + e)}, {v(128 + 4 * r + e)}, v73, {"0" if r == 0 else v(80 + e)}')

    def loop(rd, mf):
        for i in range(8):
            tr(i)
            if i == 5:
                A('s_waitcnt lgkmcnt(6)')
        ln_stats(A, T)
        A('s_waitcnt lgkmcnt(0)')
        for i in range(4):
            rd(i)
        for i in range(8):
            A(f'ds_write_b128 v72, {v(160 + 4 * i, 4)} offset:{i * 1024}')
        csdot(0, 8)
        A('s_waitcnt lgkmcnt(0)')
        for i in range(4, 8):
            rd(i)
        for i in range(8):
            if i == 4:
                A('s_waitcnt lgkmcnt(8)')
            mf(i)
            if i < 4:
                tr(8 + i)
            else:
                A('s_waitcnt lgkmcnt(9)')
                tr(8 + i)
                rd(4 + i)
        for i in range(8, 16):
            if i == 8:
                A('s_waitcnt lgkmcnt(9)')
            elif i < 12:
                A(f's_waitcnt lgkmcnt({9 - 2 * (i - 8)})')
            else:
                A(f's_waitcnt lgkmcnt({15 - i})')
            mf(i)
            if i < 12:
                rd(4 + i)

    def cs0():
        csdot(8, 16)
        A('s_nop 2')
        A('v_add_f32 v80, v80, v81')
        A('v_add_f32 v82, v82, v83')
        A('v_add_f32 v80, v80, v82')
        A('v_mov_b32 v81, v80')
        A('s_nop 1')
        swap_add(A, 80, 81)
        A('ds_write_b32 v74, v80')

    def cs():
        for h2 in range(2):
            A(f'ds_read_b128 {v(EX + 4 * h2, 4)}, v77 offset:{h2 * 32}')
            A(f'ds_read_b128 {v(XR + 4 * h2, 4)}, v78 offset:{h2 * 32}')
        A('s_waitcnt lgkmcnt(0)')
        for r in range(8):
            A(f'v_add_f32 {v(EX + r)}, {v(EX + r)}, {v(XR + r)}')
        for r in range(12):
            A(f'v_mov_b32 {v(208 + r)}, {v(EX + r)}')

    g4_main(C, 'qkv', kvf=KVF, kfl=KFL, raw=dict(front=front, kvw=kvw, kvcs0=kvcs0, kvcs1=kvcs1, zchk=zchk, wprep=wprep, cs=cs, cs0=cs0, loop=loop), endlab=end)
    C.stamp()


def wq_store(C):
    A = C.A
    A('s_and_b32 s30, s18, 0x33')
    A('s_cmp_lg_u32 s30, 0')
    A('s_cbranch_scc1 pr_w0')
    g4_waddr(C, 112, WQKVP)
    for q4 in (3, 2, 1, 0):
        if q4:
            A(f's_cmp_lg_u32 s21, {q4}')
            A(f's_cbranch_scc1 pr_ws{q4}')
        for i in range(4 * q4, 4 * q4 + 4):
            so, im = soff(G4_ORD[i])
            A(f'buffer_store_dwordx4 {v(128 + 4 * i, 4)}, v112, s[8:11], {so} offen offset:{im} sc0 sc1')
        if q4:
            A('s_branch pr_w0')
            A.label(f'pr_ws{q4}')
    A('v_lshrrev_b32 v113, 5, v1')
    A('v_lshlrev_b32 v113, 4, v113')
    A('s_lshr_b32 s31, s19, 4')
    A(f's_add_u32 s31, s31, {CSQKV}')
    A('s_mov_b32 exec_lo, 1')
    A('s_mov_b32 exec_hi, 1')
    A('buffer_store_dwordx4 v[208:211], v113, s[8:11], s31 offen sc0 sc1')
    A('buffer_store_dwordx4 v[212:215], v113, s[8:11], s31 offen offset:32 sc0 sc1')
    A('s_mov_b64 exec, -1')
    A('s_cmp_lg_u32 s22, 0')
    A('s_cbranch_scc1 pr_w0')
    A('s_lshl_b32 s30, s20, 12')
    A(f's_add_u32 s30, s30, {WQKVP + 16 * 32 * KB}')
    for k in range(4):
        A(f'buffer_store_dwordx4 {v(192 + 4 * k, 4)}, v3, s[8:11], s30 offen offset:{k * 1024} sc0 sc1')
    A('s_cmp_ge_u32 s20, 4')
    A('s_cbranch_scc1 pr_w0')
    A('s_lshl_b32 s31, s20, 5')
    A(f's_add_u32 s31, s31, {CSQKV + 2048}')
    A('s_mov_b32 exec_lo, 1')
    A('s_mov_b32 exec_hi, 1')
    A('buffer_store_dwordx4 v[216:219], v113, s[8:11], s31 offen sc0 sc1')
    A('s_mov_b64 exec, -1')
    A.label('pr_w0')


def pack_ptrs(A):
    A('s_load_dwordx2 s[4:5], s[0:1], 32')
    A('s_load_dwordx4 s[52:55], s[0:1], 48')
    A('s_load_dwordx2 s[16:17], s[0:1], 64')


def pack_issue(C):
    A = C.A
    A('s_mul_i32 s30, s2, 3')
    A('s_add_u32 s30, s30, s20')
    A('s_mov_b32 s58, s30')
    A('s_cmp_lt_u32 s20, 3')
    A('s_cselect_b32 s57, 1, 0')
    A('s_cmp_lt_u32 s30, 736')
    A('s_cselect_b32 s57, s57, 0')
    A('s_cmp_eq_u32 s57, 0')
    A('s_cselect_b32 s30, 0, s30')
    A('s_cmp_lt_u32 s30, 64')
    A('s_cbranch_scc1 pk_jwo')
    A('s_cmp_lt_u32 s30, 512')
    A('s_cbranch_scc1 pk_jgu')
    A('s_sub_u32 s30, s30, 512')
    A('s_mov_b64 s[4:5], s[16:17]')
    A(f's_mov_b32 s6, {1792 * 1024}')
    A('s_mov_b32 s50, 1024')
    A('s_and_b32 s31, s30, 7')
    A('s_lshr_b32 s30, s30, 3')
    A('s_lshl_b32 s51, s30, 16')
    A('s_lshl_b32 s56, s31, 7')
    A('s_add_u32 s51, s51, s56')
    A(f's_mul_i32 s56, s31, {2 * 112 * KB}')
    A('s_lshl_b32 s30, s30, 12')
    A('s_add_u32 s56, s56, s30')
    A(f's_add_u32 s56, s56, {WDP}')
    A(f's_mov_b32 s52, {112 * KB}')
    A('s_mov_b32 s53, 256')
    A(f's_mov_b32 s54, {G1.CSDUMMY}')
    A('s_branch pk_jgo')
    A.label('pk_jwo')
    A(f's_mov_b32 s6, {512 * 1024}')
    A('s_mov_b32 s50, 1024')
    A('s_lshr_b32 s31, s30, 3')
    A('s_and_b32 s30, s30, 7')
    A('s_lshl_b32 s51, s30, 16')
    A('s_lshl_b32 s56, s31, 7')
    A('s_add_u32 s51, s51, s56')
    A('s_lshl_b32 s56, s31, 16')
    A('s_lshl_b32 s30, s30, 12')
    A('s_add_u32 s56, s56, s30')
    A(f's_add_u32 s56, s56, {WOP}')
    A(f's_mov_b32 s52, {32 * KB}')
    A('s_mov_b32 s53, 256')
    A(f's_mov_b32 s54, {G1.CSDUMMY}')
    A('s_branch pk_jgo')
    A.label('pk_jgu')
    A('s_sub_u32 s30, s30, 64')
    A('s_cmp_ge_u32 s30, 224')
    A('s_cselect_b32 s4, s54, s52')
    A('s_cselect_b32 s5, s55, s53')
    A('s_cselect_b32 s16, 1, 0')
    A('s_cselect_b32 s31, 224, 0')
    A('s_sub_u32 s30, s30, s31')
    A(f's_mov_b32 s6, {512 * 3584}')
    A('s_mov_b32 s50, 3584')
    A('s_lshr_b32 s31, s30, 3')
    A('s_and_b32 s30, s30, 7')
    A(f's_mul_i32 s51, s30, {64 * 3584}')
    A('s_lshl_b32 s56, s31, 7')
    A('s_add_u32 s51, s51, s56')
    A('s_lshl_b32 s56, s31, 17')
    A('s_lshl_b32 s17, s30, 12')
    A('s_add_u32 s56, s56, s17')
    A('s_lshl_b32 s17, s16, 8')
    A('s_add_u32 s56, s56, s17')
    A(f's_add_u32 s56, s56, {WGUP}')
    A(f's_mov_b32 s52, {64 * KB}')
    A(f's_mov_b32 s53, {32 * KB}')
    A(f's_mul_i32 s54, s30, {3584 * 4}')
    A('s_lshl_b32 s17, s31, 9')
    A('s_add_u32 s54, s54, s17')
    A('s_lshl_b32 s17, s16, 6')
    A('s_add_u32 s54, s54, s17')
    A(f's_add_u32 s54, s54, {CSP}')
    A.label('pk_jgo')
    A('v_lshrrev_b32 v112, 3, v1')
    A('v_and_b32 v113, 7, v1')
    A('v_mul_lo_u32 v112, v112, s50')
    A('v_lshl_add_u32 v112, v113, 4, v112')
    A('s_lshl_b32 s50, s50, 3')
    A('s_min_u32 s59, s20, 2')
    A('s_lshl_b32 s59, s59, 13')
    A(f's_add_u32 s59, s59, {136 * KB}')
    A('s_cmp_eq_u32 s57, 0')
    A('s_cbranch_scc1 pk_i_end')
    for i in range(8):
        A(f's_add_u32 m0, s59, {i * 1024}')
        A('s_nop 0')
        A('buffer_load_dwordx4 v112, s[4:7], s51 offen lds')
        A('s_add_u32 s51, s51, s50')
    A.label('pk_i_end')


def pack_convert(C):
    A = C.A
    A('s_cmp_eq_u32 s57, 0')
    A('s_cbranch_scc1 pk_c_end')
    A('v_lshrrev_b32 v112, 5, v1')
    A('v_bfe_u32 v113, v1, 2, 2')
    A('v_lshl_add_u32 v113, v112, 2, v113')
    A('v_and_b32 v114, 3, v1')
    A('v_lshlrev_b32 v114, 3, v114')
    A('v_lshl_add_u32 v113, v113, 7, v114')
    A('v_bfe_u32 v114, v1, 4, 1')
    A('v_lshl_add_u32 v113, v114, 5, v113')
    A('v_add_u32 v113, s59, v113')
    A('v_mul_lo_u32 v114, v114, s53')
    A('v_and_b32 v115, 15, v1')
    A('v_lshl_add_u32 v114, v115, 4, v114')
    A('v_lshl_add_u32 v114, v112, 9, v114')
    A('v_lshrrev_b32 v112, 4, v1')
    A('v_lshlrev_b32 v112, 7, v112')
    A('v_lshl_add_u32 v112, v115, 2, v112')
    A('v_mov_b32 v115, 0x3f803f80')
    A('s_add_u32 s52, s52, s56')
    A('s_waitcnt vmcnt(0)')
    for jj in range(2):
        for st in range(4):
            for h2 in range(2):
                A(f'ds_read_b64_tr_b16 {v(128 + 4 * (4 * jj + st) + 2 * h2, 2)}, v113 offset:{st * 2048 + h2 * 1024 + jj * 64}')
        A('s_waitcnt lgkmcnt(0)')
        for st in range(4):
            A(f'buffer_store_dwordx4 {v(128 + 4 * (4 * jj + st), 4)}, v114, s[8:11], {"s56" if jj == 0 else "s52"} offen offset:{st * 1024} sc0 sc1')
    A('s_cmp_eq_u32 s53, 256')
    A('s_cbranch_scc1 pk_c_end')
    for r in range(16):
        for jj in range(2):
            A(f'v_dot2_f32_bf16 {v(116 + jj)}, {v(128 + 16 * jj + r)}, v115, {"0" if r == 0 else v(116 + jj)}')
    A('s_nop 2')
    swap_add(A, 116, 117)
    A('buffer_store_dword v116, v112, s[8:11], s54 offen sc0 sc1')
    A.label('pk_c_end')


def pack_flag(C):
    A = C.A
    A('v_mov_b32 v112, 0')
    A('v_mov_b32 v113, 1')
    A('s_cmp_eq_u32 s57, 0')
    A('s_cbranch_scc1 pk_f_1')
    A('s_lshl_b32 s30, s58, 7')
    A(f's_add_u32 s30, s30, {PFL}')
    A('s_waitcnt vmcnt(0)')
    A('s_mov_b64 exec, 1')
    A('buffer_store_dword v113, v112, s[8:11], s30 offen sc0 sc1')
    A('s_mov_b64 exec, -1')
    A.label('pk_f_1')
    A('s_and_b32 s30, s18, 0x33')
    A('s_cmp_lg_u32 s30, 0')
    A('s_cbranch_scc1 pk_f_end')
    A('s_lshl_b32 s30, s22, 1')
    A('s_add_u32 s30, s30, s20')
    A('s_lshl_b32 s31, s21, 5')
    A('s_add_u32 s30, s30, s31')
    A('s_lshl_b32 s30, s30, 7')
    A(f's_add_u32 s30, s30, {PFL + 768 * 128}')
    A('s_waitcnt vmcnt(0)')
    A('s_mov_b64 exec, 1')
    A('buffer_store_dword v113, v112, s[8:11], s30 offen sc0 sc1')
    A('s_mov_b64 exec, -1')
    A.label('pk_f_end')


def pack_poll(C, endlab):
    A = C.A
    A('s_mul_i32 s30, s22, 7')
    A('s_lshr_b32 s30, s30, 2')
    A('v_lshrrev_b32 v112, 4, v1')
    A('v_add_u32 v112, s30, v112')
    A('v_min_u32 v112, 27, v112')
    A('v_and_b32 v113, 7, v1')
    A('v_lshl_add_u32 v112, v112, 3, v113')
    A('v_bfe_u32 v114, v1, 3, 1')
    A('v_mul_u32_u24 v114, 224, v114')
    A('v_add3_u32 v112, v112, v114, 64')
    A('s_mul_i32 s30, s20, 7')
    A('s_lshr_b32 s30, s30, 1')
    A('v_min_u32 v114, 4, v113')
    A('v_add_u32 v114, s30, v114')
    A('v_min_u32 v114, 27, v114')
    A('s_add_u32 s30, s24, 512')
    A('v_lshl_add_u32 v114, v114, 3, s30')
    A('v_cmp_le_u32 vcc, 48, v1')
    A('s_lshl_b32 s30, s24, 3')
    A('s_add_u32 s30, s30, s20')
    A('v_cndmask_b32 v112, v112, v114, vcc')
    A('v_mov_b32 v114, s30')
    A('v_cmp_le_u32 vcc, 56, v1')
    A('s_add_u32 s31, s20, 768')
    A('s_and_b32 s30, s22, 12')
    A('s_lshl_b32 s30, s30, 1')
    A('s_add_u32 s30, s30, s31')
    A('v_cndmask_b32 v112, v112, v114, vcc')
    for q4 in range(4):
        A(f'v_writelane_b32 v112, s30, {59 + q4}')
        A('s_add_u32 s30, s30, 32')
    A('v_writelane_b32 v112, s31, 63')
    A(f's_mov_b32 s30, {PFL}')
    A('s_mov_b32 s31, 0')
    A('v_lshlrev_b32 v112, 7, v112')
    A('s_bfe_u32 s32, s19, 0x3000c')
    A('s_lshl_b32 s32, s32, 3')
    A('s_lshl_b32 s33, s26, 2')
    A('s_add_u32 s32, s32, s33')
    A('v_and_b32 v114, 3, v1')
    A('v_add_u32 v114, s32, v114')
    A('v_lshlrev_b32 v114, 7, v114')
    A('buffer_load_dword v113, v112, s[8:11], s30 offen sc1')
    A('buffer_load_dword v115, v114, s[8:11], s30 offen sc1')


def pack_poll2(C, endlab):
    A = C.A
    A(f's_mov_b32 s30, {PFL}')
    A('s_mov_b32 s31, 0')
    A.label('pk_p')
    A('s_waitcnt vmcnt(0)')
    A('v_and_b32 v113, v113, v115')
    A('v_cmp_eq_u32 vcc, 1, v113')
    A('s_add_u32 s31, s31, 1')
    A('s_cmp_eq_u64 vcc, -1')
    A('s_cbranch_scc1 pk_pd')
    A('s_sleep 16')
    A('buffer_load_dword v113, v112, s[8:11], s30 offen sc1')
    A('buffer_load_dword v115, v114, s[8:11], s30 offen sc1')
    A(f's_cmp_lt_u32 s31, {1 << 19}')
    A('s_cbranch_scc1 pk_p')
    A(f's_branch {endlab}')
    A.label('pk_pd')
    C.vm = []


def layer_part(C, layer, end):
    A = C.A
    C.tag = f'l{layer}'
    last = layer == 1
    xin = None if layer == 0 else XC
    kvf = KVF if layer == 0 else KVF2
    kfl = KFL + layer * 64 * 128
    sy = 5 * layer + 1
    C.B = dict(QF=QF, OF=OF, XB=XB, SXB=SXB, HF=HF) if layer == 0 else dict(QF=QF2, OF=OF2, XB=XB2, SXB=SXB2, HF=HF2)
    B = C.B

    def pre_addr():
        gu_waddr(C)
        g3_waddr(C, (113, 114), 112, WDP)
        g4_waddr(C, 116, WOP)

    stubs = [lambda: (pre_addr(), gu_wload(C, 0))]
    stubs += [lambda ks=ks: gu_wload(C, ks) for ks in range(1, 24)]
    stubs += [lambda i=i: g4_wload(C, 116, i, 'res') for i in range(8)]
    if TOUCH2:
        def touch2():
            A('s_and_b32 s30, s18, 7')
            A('s_lshr_b32 s31, s30, 1')
            A('s_lshl_b32 s31, s31, 2')
            A('s_and_b32 s30, s30, 1')
            A('s_add_u32 s30, s30, s31')
            A('s_lshl_b32 s30, s30, 10')
            C.vmem('buffer_load_dwordx4 v[120:123], v116, s[8:11], s30 offen offset:2048', 'tc')
            if layer == 0:
                A(f's_add_u32 s30, s30, {WQKVP - WOP + (1 << 32) if WQKVP < WOP else WQKVP - WOP}')
                A('v_add_u32 v117, s30, v116')
                C.vmem('buffer_load_dwordx4 v[120:123], v117, s[8:11], 0 offen', 'tc')
                C.vmem('buffer_load_dwordx4 v[120:123], v117, s[8:11], 0 offen offset:2048', 'tc')
        stubs += [touch2]
    if TOUCH3 & 1:
        def t3a(k):
            if k == 0:
                A('s_and_b32 s30, s21, 1')
                A('s_lshl_b32 s30, s30, 12')
                A(f's_add_u32 s30, s30, {24 * KB}')
                A(f'v_add_u32 v118, s30, {v(V_WGU)}')
            C.vmem(f'buffer_load_dwordx4 v[120:123], v118, s[8:11], 0 offen offset:{k * 1024}', 'tc')
        stubs += [lambda k=k: t3a(k) for k in range(4)]
    if TOUCH3 & 2:
        def t3b(k):
            if k == 0:
                A('s_and_b32 s30, s21, 1')
                A(f's_mul_i32 s30, s30, {7 * KB}')
                A('s_cmp_eq_u32 s23, 0')
                A('s_cselect_b64 vcc, -1, 0')
                A('v_cndmask_b32 v119, v114, v113, vcc')
                A('v_add_u32 v119, s30, v119')
            so, im = soff(k)
            C.vmem(f'buffer_load_dwordx4 v[120:123], v119, s[8:11], {so} offen offset:{im}', 'tc')
        stubs += [lambda k=k: t3b(k) for k in range(7)]
    if TOUCH and layer == 1:
        def t_addr():
            A('s_lshr_b32 s30, s2, 3')
            A('s_lshl_b32 s30, s30, 3')
            A('s_add_u32 s30, s30, s20')
            A(f's_mul_i32 s31, s30, {7 * KB}')
            A(f's_add_u32 s31, s31, {WDP}')
            A('v_add_u32 v118, s31, v3')
            A('s_lshl_b32 s31, s30, 11')
            A(f's_add_u32 s31, s31, {WQKVP}')
            A('v_add_u32 v119, s31, v3')

        def tch(vr, k):
            so, im = soff(k)
            C.vmem(f'buffer_load_dwordx4 v[120:123], {v(vr)}, s[8:11], {so} offen offset:{im}', 'tc')
        stubs += [lambda: (t_addr(), tch(V_WGU, 24))]
        stubs += [lambda ks=ks: tch(V_WGU, ks) for ks in range(25, 32)]
        stubs += [lambda k=k: tch(118, k) for k in range(7)]
        if not last:
            stubs += [lambda k=k: tch(119, k) for k in range(2)]

    def need_wo():
        A('s_lshr_b32 s30, s20, 1')
        A('s_lshl_b32 s30, s30, 2')
        A('s_and_b32 s31, s22, 3')
        A('s_add_u32 s30, s30, s31')
        A('s_lshl_b32 s32, 1, s30')

    def need_gu():
        A('s_lshl_b32 s32, 0x5555, s29')
        A('s_cmp_eq_u32 s20, 7')
        A('s_cselect_b32 s32, 0xffff, s32')

    def need_dn():
        A('s_lshl_b32 s30, s20, 1')
        A('s_lshl_b32 s32, 3, s30')

    def need_qkv():
        A('s_lshl_b32 s30, s20, 1')
        A('s_add_u32 s30, s30, s23')
        A('s_lshl_b32 s32, 1, s30')

    if layer == 0:
        fixed = {PK_I: lambda: (wq_store(C), pack_issue(C)), PK_C: lambda: pack_convert(C), PK_F: lambda: pack_flag(C), PK_P - 3: lambda: pack_poll(C, end), PK_P: lambda: pack_poll2(C, end)}
        tail = att_phase(C, kvf, kfl, end, stubs, fixed, PK_P, pre_hook=lambda: pack_ptrs(A), loadq=False, early=True)
    else:
        tail = att_phase(C, kvf, kfl, end, stubs, pre_hook=lambda: A('s_load_dwordx2 s[12:13], s[0:1], 72'), loadq=False)
    C.stamp()
    if not WO_LATE:
        A('s_nop 1')
        for i in range(8, 16):
            g4_wload(C, 116, i, 'res')
    g4_pre(C, 'res', B['OF'], resbase=xin)
    handoff(C, sy + 0, end, need_wo)
    C.stamp()
    g4_main(C, 'res', outbase=B['XB'], sxout=B['SXB'], hook_red=lambda k: gu_wload(C, 24 + k))
    C.stamp()
    gu2_pre(C)
    handoff(C, sy + 1, end, need_gu)
    C.stamp()
    gu2_main(C, sy + 2, end)
    C.stamp()
    if last:
        dn_main(C, 'out', sy - 1, end, B['XB'])
        C.stamp()
    else:
        dn_main(C, 'res', sy - 1, end, B['XB'], outbase=XC, sxout=SXC, hook_red=lambda: qkv4_wrest(C))
        C.stamp()
        g4_pre(C, 'qkv', XC, resbase=SXC)
        g4_waddr(C, 64, WQKVP)
        handoff(C, sy + 3, end, need_qkv)
        C.stamp()
        g4_main(C, 'qkv', kvf=KVF2, kfl=KFL + 64 * 128, endlab=end)
        C.stamp()
    return tail


def build():
    A = Asm()
    name = NAME + '_kernel'
    C = Ctx(A, 'pr')
    C.qf = QF
    end = 'k_end'
    kernel_begin(A, name)
    pre_part(C, end)
    t0 = layer_part(C, 0, end)
    t1 = layer_part(C, 1, end)
    A('s_add_u32 s30, s2, s20')
    A('s_cmp_lg_u32 s30, 0')
    A('s_cbranch_scc1 k_fin')
    A('s_load_dwordx2 s[4:5], s[0:1], 80')
    A('s_mov_b32 s6, 256')
    A('v_mov_b32 v2, 0')
    A('s_mov_b64 exec, 1')
    A('s_waitcnt lgkmcnt(0)')
    A('buffer_store_dword v2, v2, s[4:7], 0 offen sc0 sc1')
    A('s_mov_b64 exec, -1')
    A.label('k_fin')
    if DBGD:
        A('s_cmp_lg_u32 s2, 77')
        A('s_cbranch_scc1 k_fin2')
        A('s_cmp_lg_u32 s20, 1')
        A('s_cbranch_scc1 k_fin2')
        A('s_load_dwordx2 s[4:5], s[0:1], 80')
        A('s_memrealtime s[60:61]')
        A('s_mov_b32 s6, 256')
        A('v_mov_b32 v2, 0')
        A('s_mov_b64 exec, 1')
        A('s_waitcnt lgkmcnt(0)')
        sel = [int(x) for x in DBGD.split()]
        for k, i in enumerate(sel + [-1]):
            A(f's_sub_u32 s30, {s(64 + i) if i >= 0 else "s60"}, s64')
            A('v_mov_b32 v4, s30')
            A(f'buffer_store_dword v4, v2, s[4:7], 0 offen offset:{4 + 4 * k}')
        A('s_mov_b64 exec, -1')
        A.label('k_fin2')
    stamp_end(C, 1)
    A.label(end)
    A('s_endpgm')
    t0(True)
    t1(False)
    body = A.text()
    probs = lint(body)
    for p in probs:
        print('LINT:', p, file=sys.stderr)
    head = '; generated by gen/gen3.py\n'
    head += f"; @launch grid=(256,1,1) block=(512,1,1) lds={LDS_BYTES}\n"
    head += '.amdgcn_target "amdgcn-amd-amdhsa--gfx950"\n.text\n'
    tail = '.section .rodata,"a"\n.p2align 6\n' + descriptor(name, 256, 0, nsgpr=100)
    print('stamps:', C.nstamp, file=sys.stderr)
    return head + body + tail


if __name__ == '__main__':
    if 'stamp' in sys.argv:
        STAMP = True
    for arg in sys.argv[2:]:
        if '=' in arg:
            k, val = arg.split('=')
            globals()[k] = int(val) if val.lstrip('-').isdigit() else val.replace('_', ' ')
    out = sys.argv[1] if len(sys.argv) > 1 else f'cdna_kernels/{NAME}.s'
    open(out, 'w').write(build())
    print('wrote', out)
```

```python
import sys
import math
import struct
from asmlib import Asm, v, a, s, lint
import gen as G1
from gen import f32, kernel_begin, descriptor, ws_srd, KB

NAME = G1.NAME
WQKVP, WOP, WGUP, WDP, CSQKV, CSGU = G1.WQKVP, G1.WOP, G1.WGUP, G1.WDP, G1.CSQKV, G1.CSGU
KVF, XA, XB, QF, OF, HF = G1.KVF, G1.XA, G1.XB, G1.QF, G1.OF, G1.HF
WS_SIZE, QSCALE = G1.WS_SIZE, G1.QSCALE
KVG = 2048
KVT = 2128
VBS = 512
XC = G1.WS_END
KVF2 = XC + 2048 * KB
FLG = KVF2 + 144 * KB
SXA = FLG + 64 * KB
SXB = SXA + 512 * KB
SXC = SXB + 512 * KB
CSP = SXC + 512 * KB
PFL = CSP + 128 * KB
KFL = PFL + 112 * KB
QF2 = KFL + 16 * KB
OF2 = QF2 + 2048 * KB
XB2 = OF2 + 2048 * KB
SXB2 = XB2 + 2048 * KB
HF2 = SXB2 + 512 * KB
WS_END = HF2 + 64 * 112 * KB
STAMPS = G1.STAMPS

STAMP = False
WT = ' sc0 sc1'
LDS_BYTES = 160 * KB
FINE = 0
W7OFF = 1
PSLEEP = 0
GU_D = 20
F1BAR = 1
F2BAR = 1
GU_XB = 0
PRIME_LATE = 2
GU_PO = 0
GU_PRIO = 1
GU_SF1 = 6
DN_PI = 4
DN_AR = 0
TCHK = 2
TB2 = 6
DPT = 4
TPFEND = 8
TP2 = 28
TP1 = 46
TP0 = 58
ONEWAIT = 1
INLINE = 0
ATT_NB = 4
TOUCH3 = 0
PRIOV = 0
DBGD = ''
ATT_B2 = 2
WO_L0 = 3
WROT = 1
GU_TAIL = 1
ATT_R0 = 4
EXPT = 0
TLBW = 0
KV_SLEEP = 2
QKV_PER = 1
WO_TAIL = 16
SLO = 0
QWT = ' sc0 sc1'
GU16 = 0
GU_NOW = 0
GU_WD0 = 3
GU_BARS = {4: 1, 8: 2, 12: 7, 24: 7}
PK_I = 6
PK_C = 18
PK_F = 22
PK_P = 36
RT = 0
TOUCH = 0
TOUCH2 = 1
WO_LATE = 0
ATT_UN = 4
ATT_PFEND = 1
G3_PR4 = 7
G3_PR14 = 6
G2_ST8 = [2, 2, 2, 2]
G2_ST28 = [2, 2, 4, 4, 4, 4, 4, 4]
G2_PRE8 = 4
G2_PRE28 = 6


class Ctx:
    def __init__(self, A, tag):
        self.A = A
        self.tag = tag
        self.vm = []
        self.lds = []
        self.nlab = 0
        self.nstamp = 1

    def lab(self, base):
        self.nlab += 1
        return f'{self.tag}_{base}{self.nlab}'

    def vmem(self, text, tag):
        self.A(text)
        self.vm.append(tag)
        assert len(self.vm) <= 63, 'vmcnt overflow'

    def wait(self, tag, extra=''):
        idx = [i for i, t in enumerate(self.vm) if t == tag]
        if not idx:
            if extra:
                self.A(f's_waitcnt {extra}')
            return
        n = len(self.vm) - 1 - idx[-1]
        self.A(f's_waitcnt vmcnt({n}) {extra}'.strip())
        self.vm = self.vm[idx[-1] + 1:]

    def ds(self, text, tag):
        self.A(text)
        self.lds.append(tag)
        assert len(self.lds) <= 15, 'lgkmcnt overflow'

    def dwait(self, tag):
        idx = [i for i, t in enumerate(self.lds) if t == tag]
        if idx:
            self.A(f's_waitcnt lgkmcnt({len(self.lds) - 1 - idx[-1]})')
            self.lds = self.lds[idx[-1] + 1:]

    def stamp(self):
        if STAMP:
            i = self.nstamp - SLO
            self.nstamp += 1
            if i < 1 or i >= 28:
                return
            A = self.A
            A('s_waitcnt lgkmcnt(0)')
            A('s_memrealtime s[60:61]' if RT else 's_memtime s[60:61]')
            A('s_waitcnt lgkmcnt(0)')
            A(f's_mov_b32 {s(64 + i)}, s60')


def stamp_begin(C):
    if STAMP:
        A = C.A
        A('s_memrealtime s[62:63]')
        A('s_memtime s[60:61]')
        for i in range(1, 30):
            A(f's_mov_b32 {s(64 + i)}, 0')
        A('s_waitcnt lgkmcnt(0)')
        A('s_mov_b32 s64, s62' if RT else 's_mov_b32 s64, s60')
        A('s_mov_b32 s95, s62')


def stamp_end(C, kidx):
    if STAMP:
        A = C.A
        A('s_waitcnt vmcnt(0) lgkmcnt(0)')
        A('s_memtime s[60:61]')
        A('s_memrealtime s[62:63]')
        A('s_waitcnt lgkmcnt(0)')
        A('s_mov_b32 s93, s62' if RT else 's_mov_b32 s93, s60')
        A('s_mov_b32 s94, s62')
        A('s_mov_b64 exec, 1')
        A('s_lshl_b32 s60, s2, 10')
        A('s_lshl_b32 s61, s20, 7')
        A('s_add_u32 s60, s60, s61')
        A(f's_add_u32 s60, s60, {STAMPS + kidx * (1 << 20)}')
        A('v_mov_b32 v0, 0')
        for i in range(32):
            A(f'v_mov_b32 v1, {s(64 + i)}')
            A(f'buffer_store_dword v1, v0, s[8:11], s60 offen offset:{i * 4}')
        A('s_waitcnt vmcnt(0)')


def setup(C, need_out, endlab):
    A = C.A
    A('s_cmp_ge_u32 s2, 256')
    A(f's_cbranch_scc1 {endlab}')
    stamp_begin(C)
    ws_srd(A, 8)
    if need_out:
        A('s_load_dwordx2 s[12:13], s[0:1], 72')
        A(f's_mov_b32 s14, {2048 * 512 * 2}')
        A('s_mov_b32 s15, 0x20000')
    A('v_and_b32 v1, 63, v0')
    A('v_lshrrev_b32 v2, 6, v0')
    A('v_lshlrev_b32 v3, 4, v1')
    A('v_readfirstlane_b32 s20, v2')
    A('s_and_b32 s21, s2, 7')
    A('s_lshl_b32 s21, s21, 1')
    A('s_bfe_u32 s22, s2, 0x10003')
    A('s_add_u32 s21, s21, s22')
    A('s_lshr_b32 s22, s2, 4')
    A('s_and_b32 s23, s22, 1')
    A('s_lshr_b32 s24, s22, 1')
    A('s_and_b32 s25, s20, 3')
    A('s_lshr_b32 s26, s20, 2')
    A('s_lshl_b32 s27, s21, 2')
    A('s_add_u32 s27, s27, s23')
    A('s_lshl_b32 s28, s24, 1')
    A('s_bfe_u32 s30, s20, 0x10001')
    A('s_add_u32 s28, s28, s30')
    A('s_and_b32 s29, s20, 1')
    A('s_lshl_b32 s30, s29, 1')
    A('s_add_u32 s30, s30, s27')
    A('s_lshl_b32 s49, s30, 15')
    A('s_lshl_b32 s31, s28, 11')
    A('s_add_u32 s49, s49, s31')
    A('s_lshl_b32 s31, s26, 10')
    A('s_add_u32 s49, s49, s31')
    for g in range(1, 8):
        A(f's_mov_b32 {s(40 + g)}, {g * 4096}')
    A('s_waitcnt lgkmcnt(0)')


def soff(i):
    return ('0' if i // 4 == 0 else s(40 + i // 4)), (i % 4) * 1024


def handoff(C, sync, endlab, need, kvflag=None, first=False):
    A = C.A
    l1, l2, ld = C.lab('pa'), C.lab('pb'), C.lab('pd')
    need()
    A('s_mov_b32 s33, 0')
    A('v_lshlrev_b32 v0, 2, v1')
    A('s_lshl_b32 s30, s21, 8')
    A(f's_add_u32 s30, s30, {FLG + sync * 4096}')
    A('s_lshl_b32 s34, s22, 2')
    A('s_add_u32 s34, s34, s30')
    A('v_mov_b32 v4, 1')
    if first:
        lz, lzd = C.lab('z'), C.lab('zd')
        A('s_cmp_lg_u32 s20, 0')
        A(f's_cbranch_scc1 {lzd}')
        A('s_mov_b32 s31, 0')
        A('s_mov_b64 exec, 1')
        A.label(lz)
        A('buffer_load_dword v2, v0, s[4:7], 0 offen sc0 sc1')
        A('s_waitcnt vmcnt(0)')
        A('v_cmp_le_u32 vcc, 16, v2')
        A('s_add_u32 s31, s31, 1')
        A('s_cmp_eq_u64 vcc, 1')
        A(f's_cbranch_scc1 {lzd}')
        A('s_sleep 8')
        A(f's_cmp_lt_u32 s31, {1 << 20}')
        A(f's_cbranch_scc1 {lz}')
        A(f's_branch {endlab}')
        A.label(lzd)
        A('s_mov_b64 exec, -1')
    if kvflag is not None:
        A('s_waitcnt vmcnt(0) lgkmcnt(0)')
        C.vm = []
    else:
        C.wait('st', 'lgkmcnt(0)')
    A('s_cmp_lg_u32 s20, 0')
    A('s_barrier')
    l, lb, lb2 = C.lab('sig'), C.lab('sb'), C.lab('sc')
    A(f's_cbranch_scc1 {l}')
    A('s_mov_b64 exec, 1')
    if kvflag is not None:
        lk = C.lab('kf')
        A('s_cmp_ge_u32 s24, 2')
        A(f's_cbranch_scc1 {lk}')
        A('s_add_u32 s31, s27, s24')
        A('s_lshl_b32 s31, s31, 7')
        A(f's_add_u32 s31, s31, {kvflag}')
        A('s_mov_b64 exec, 15')
        A('buffer_store_dword v4, v0, s[8:11], s31 offen sc0 sc1')
        A('s_mov_b64 exec, 1')
        A.label(lk)
    A('buffer_store_dword v4, v0, s[8:11], s34 offen')
    A.label(l)
    A('s_mov_b32 s31, 0')
    A('s_mov_b64 exec, s[32:33]')
    A.label(l1)
    A('buffer_load_dword v2, v0, s[8:11], s30 offen sc1')
    A('s_add_u32 s31, s31, 1')
    A('s_waitcnt vmcnt(0)')
    A('v_cmp_ne_u32 vcc, 0, v2')
    A('s_cmp_eq_u64 vcc, s[32:33]')
    A(f's_cbranch_scc1 {ld}')
    if PSLEEP:
        A(f's_sleep {PSLEEP}')
    A('s_cmp_lt_u32 s31, 64')
    A(f's_cbranch_scc1 {l1}')
    A('s_mov_b64 exec, 1')
    A('buffer_store_dword v4, v0, s[8:11], s34 offen offset:128 sc0 sc1')
    A('s_mov_b64 exec, s[32:33]')
    A.label(l2)
    A('buffer_load_dword v2, v0, s[8:11], s30 offen sc1')
    A('s_waitcnt vmcnt(0)')
    A('v_cmp_ne_u32 s[36:37], 0, v2')
    A('buffer_load_dword v2, v0, s[8:11], s30 offen offset:128 sc0 sc1')
    A('s_waitcnt vmcnt(0)')
    A('v_cmp_ne_u32 vcc, 0, v2')
    A('s_add_u32 s31, s31, 1')
    A('s_or_b64 vcc, vcc, s[36:37]')
    A('s_cmp_eq_u64 vcc, s[32:33]')
    A(f's_cbranch_scc1 {ld}')
    A('s_sleep 4')
    A(f's_cmp_lt_u32 s31, {1 << 20}')
    A(f's_cbranch_scc1 {l2}')
    A(f's_branch {endlab}')
    A.label(ld)
    A('s_mov_b64 exec, -1')
    C.vm = []
    C.flagb = True


def flag_b(C):
    if getattr(C, 'flagb', False):
        A = C.A
        l = C.lab('fb')
        A('s_cmp_lg_u32 s20, 0')
        A(f's_cbranch_scc1 {l}')
        A('s_mov_b64 exec, 1')
        A('buffer_store_dword v4, v0, s[8:11], s34 offen offset:128 sc0 sc1')
        A('s_mov_b64 exec, -1')
        A.label(l)
        C.flagb = False


ACCB, ACCA = 16, 48
KVW, KACC, QSX = 160, 176, 240
KVRED, STAT, CSX, CSK = 112 * KB, 144 * KB, 148 * KB, 152 * KB


def blk_stats(C, P, T):
    A = C.A
    A(f'v_mov_b32 {v(T + 4)}, 0x3f803f80')
    A(f'v_dot2_f32_bf16 {v(T + 1)}, {v(P)}, {v(P)}, 0')
    A(f'v_dot2_f32_bf16 {v(T)}, {v(P)}, {v(T + 4)}, 0')
    for m in range(1, 4):
        A(f'v_dot2_f32_bf16 {v(T + 1)}, {v(P + m)}, {v(P + m)}, {v(T + 1)}')
        A(f'v_dot2_f32_bf16 {v(T)}, {v(P + m)}, {v(T + 4)}, {v(T)}')
    A('s_nop 2')
    A(f'v_mov_b32 {v(T + 2)}, {v(T)}')
    A(f'v_mov_b32 {v(T + 3)}, {v(T + 1)}')
    A('s_nop 1')
    A(f'v_permlane32_swap_b32 {v(T)}, {v(T + 2)}')
    A(f'v_permlane32_swap_b32 {v(T + 1)}, {v(T + 3)}')
    A(f'v_add_f32 {v(T)}, {v(T)}, {v(T + 2)}')
    A(f'v_add_f32 {v(T + 1)}, {v(T + 1)}, {v(T + 3)}')


def g3_waddr(C, vregs, KS, wbase):
    A = C.A
    NS = KS // 8
    A('s_lshl_b32 s30, s26, 8')
    A(f'v_xor_b32 {v(vregs[0])}, s30, v3')
    A(f's_mul_i32 s31, s20, {NS * KB}')
    A(f's_add_u32 s31, s31, {wbase}')
    A('s_xor_b32 s30, s28, 1')
    A(f's_mul_i32 s30, s30, {KS * KB}')
    A('s_add_u32 s30, s30, s31')
    A(f'v_add_u32 {v(vregs[1])}, s30, {v(vregs[0])}')
    A(f's_mul_i32 s30, s28, {KS * KB}')
    A('s_add_u32 s30, s30, s31')
    A(f'v_add_u32 {v(vregs[0])}, s30, {v(vregs[0])}')


def g3_wload(C, vregs, idx, wreg0, tag='w'):
    st, jj = idx // 2, idx % 2
    so, im = soff(st)
    C.vmem(f'buffer_load_dwordx4 {v(wreg0 + 4 * idx, 4)}, {v(vregs[jj])}, s[8:11], {so} offen offset:{im}', tag)


def g3_ex(mode, KS):
    return 252 if KS == 112 else (112 if mode == 'qkv' else 116)


def g3_pre(C, mode, KS, xbase, resbase=None, raw=False):
    A = C.A
    NS = KS // 8
    EX = g3_ex(mode, KS)
    A(f's_mul_i32 s31, s20, {NS * KB}')
    A(f's_add_u32 s31, s31, {xbase}')
    A('s_add_u32 s30, s27, s29')
    A(f's_mul_i32 s32, s30, {KS * KB}')
    A('s_add_u32 s32, s32, s31')
    A('v_add_u32 v6, s32, v3')
    A('s_xor_b32 s30, s30, 1')
    A(f's_mul_i32 s32, s30, {KS * KB}')
    A('s_add_u32 s32, s32, s31')
    A('v_add_u32 v5, s32, v3')
    A('s_lshl_b32 s30, s20, 11')
    A('v_add_u32 v8, s30, v3')
    A('v_add_u32 v7, 0x10000, v8')
    for b in range(1, 8):
        A(f's_xor_b32 s30, s20, {b}')
        A('s_lshl_b32 s30, s30, 11')
        A(f's_add_u32 s30, s30, {(b - 1) * 16 * KB}')
        A(f'v_add_u32 {v(8 + b)}, s30, v3')
    if raw:
        return
    if mode == 'qkv':
        A('v_lshrrev_b32 v2, 5, v1')
        A('v_lshlrev_b32 v4, 4, v2')
        A('s_lshl_b32 s31, s28, 7')
        A('s_lshl_b32 s30, s26, 6')
        A('s_add_u32 s31, s31, s30')
        A(f's_add_u32 s31, s31, {CSQKV}')
        C.vmem(f'buffer_load_dwordx4 {v(EX, 4)}, v4, s[8:11], s31 offen', 'ex')
        C.vmem(f'buffer_load_dwordx4 {v(EX + 4, 4)}, v4, s[8:11], s31 offen offset:32', 'ex')
        A('s_bfe_u32 s30, s20, 0x10001')
        A('s_lshl_b32 s30, s30, 6')
        A('s_lshl_b32 s31, s26, 5')
        A('s_add_u32 s30, s30, s31')
        A(f's_add_u32 s31, s30, {CSQKV + 2048}')
        C.vmem(f'buffer_load_dwordx4 {v(EX + 8, 4)}, v4, s[8:11], s31 offen', 'ex')
        A(f'v_and_b32 {v(QSX + 8)}, 31, v1')
        A(f'v_lshlrev_b32 {v(QSX + 8)}, 3, {v(QSX + 8)}')
        A(f'v_lshl_add_u32 {v(QSX + 8)}, v2, 13, {v(QSX + 8)}')
        A('s_lshl_b32 s30, s27, 13')
        A('s_lshl_b32 s31, s20, 10')
        A('s_add_u32 s30, s30, s31')
        A(f's_add_u32 s30, s30, {resbase}')
        A(f'v_add_u32 {v(QSX + 8)}, s30, {v(QSX + 8)}')
    elif resbase is None:
        A('v_and_b32 v2, 31, v1')
        A('v_lshlrev_b32 v2, 10, v2')
        A('v_lshrrev_b32 v4, 5, v1')
        A('v_lshl_add_u32 v2, v4, 3, v2')
        A('s_add_u32 s30, s27, s29')
        A('s_lshl_b32 s30, s30, 15')
        A('s_lshl_b32 s31, s28, 6')
        A('s_add_u32 s30, s30, s31')
        A('s_lshl_b32 s31, s26, 5')
        A('s_add_u32 s30, s30, s31')
        C.vmem(f'buffer_load_dwordx2 {v(EX, 2)}, v2, s[12:15], s30 offen', 'ex')
        C.vmem(f'buffer_load_dwordx2 {v(EX + 2, 2)}, v2, s[12:15], s30 offen offset:16', 'ex')
    else:
        A(f's_add_u32 s31, s49, {resbase}')
        C.vmem(f'buffer_load_dwordx4 {v(EX, 4)}, v3, s[8:11], s31 offen', 'ex')


def g3_main(C, mode, KS, wreg0, outbase=None, kvf=None, after_store=None, sxout=None, hook_b=None, raw=False, hook_red=None):
    A = C.A
    NS = KS // 8
    EX = g3_ex(mode, KS)
    if NS == 4:
        xreg = {(hh, st): 80 + (hh * 4 + st) * 4 for hh in range(2) for st in range(4)}
    else:
        slot = [80 + 4 * k for k in range(12)] + [240, 244]
        xreg = {(hh, st): slot[st] for hh in range(2) for st in range(NS)}

    def xload(hh, st):
        so, im = soff(st)
        C.vmem(f'buffer_load_dwordx4 {v(xreg[hh, st], 4)}, {v(5 + hh)}, s[8:11], {so} offen offset:{im}', f'x{hh}_{st}')

    seq = [(hh, st) for hh in range(2) for st in range(NS)]
    PR = G3_PR4 if NS == 4 else G3_PR14
    if raw:
        seq, PR = [], 0
    for x in seq[:PR]:
        xload(*x)
    nxt = PR
    C.wait('w')

    def wr(b):
        base = (ACCA if b & 1 else ACCB) + ((b >> 1) & 1) * 16 + (b >> 2) * 8
        return [f'ds_write_b128 {v(8 + b)}, {v(base + h2 * 4, 4)} offset:{h2 * 1024}' for h2 in range(2)]

    pend = []
    for hh in range(2):
        acc = ACCA if hh == 0 else ACCB
        for st in range(NS):
            C.wait(f'x{hh}_{st}')
            if hh == 0 and st == 0:
                C.stamp()
            for jj in range(2):
                c = '0' if st == 0 else v(acc + jj * 16, 16)
                A(f'v_mfma_f32_32x32x16_bf16 {v(acc + jj * 16, 16)}, {v(wreg0 + 4 * (2 * st + jj), 4)}, {v(xreg[hh, st], 4)}, {c}')
                if hh == 1 and (st >= 3 or (NS == 4 and st >= 2)):
                    for _ in range(2 if NS == 4 else 1):
                        if pend:
                            A(pend.pop(0))
            if nxt < len(seq):
                xload(*seq[nxt])
                nxt += 1
                if nxt == len(seq):
                    if mode == 'qkv':
                        for e in range(4):
                            C.vmem(f'buffer_load_dwordx2 {v(QSX + 2 * e, 2)}, {v(QSX + 8)}, s[8:11], 0 offen offset:{e * 256}', 'sx')
                    flag_b(C)
                    hb = 0
            elif hook_b:
                hb += 1
            if hook_b and nxt == len(seq):
                hook_b(hb, PR)
            if hh == 1 and NS == 4 and st == 1:
                A('s_nop 7' if raw else 's_nop 5')
            if hh == 1 and NS != 4 and st == 2:
                A('s_nop 2')
        if hh == 0:
            pend = wr(1) + wr(5) + wr(3) + wr(7)
    assert not pend
    C.stamp()
    lkv = C.lab('nokv')
    if mode == 'qkv':
        la, lb = C.lab('ka'), C.lab('kb')
        A('s_cmp_ge_u32 s24, 2')
        A(f's_cbranch_scc1 {lb}')
        A('s_cmp_eq_u32 s24, s29')
        A(f's_cbranch_scc0 {la}')
        for hh in (1, 0):
            for st in range(4):
                c = '0' if st == 0 else v(KACC, 16)
                A(f'v_mfma_f32_32x32x16_bf16 {v(KACC, 16)}, {v(KVW + 4 * st, 4)}, {v(xreg[hh, st], 4)}, {c}')
            if hh == 1:
                A(f's_branch {lb}')
                A.label(la)
        A.label(lb)
        A('v_lshlrev_b32 v4, 3, v1')
        if not raw:
            C.wait('sx')
            for e in range(4):
                A(f'v_add_f32 {v(QSX + e)}, {v(QSX + e)}, {v(QSX + 4 + e)}')
            for e in range(2):
                A(f'v_add_f32 {v(QSX + e)}, {v(QSX + e)}, {v(QSX + 2 + e)}')
            A('s_lshl_b32 s30, s20, 9')
            A(f's_add_u32 s30, s30, {STAT}')
            A('v_add_u32 v2, s30, v4')
            A(f'ds_write_b64 v2, {v(QSX, 2)}')
        else:
            A('v_lshrrev_b32 v112, 5, v1')
            A('v_lshlrev_b32 v112, 4, v112')
            A('s_and_b32 s30, s28, 1')
            A('s_lshl_b32 s30, s30, 7')
            A('s_lshl_b32 s31, s26, 6')
            A('s_add_u32 s30, s30, s31')
            A(f's_add_u32 s30, s30, {CSK}')
            A('v_add_u32 v113, s30, v112')
            A('s_nop 3')
        A('v_and_b32 v4, 0xf8, v4')
        A('s_lshl_b32 s30, s29, 8')
        A(f's_add_u32 s30, s30, {STAT}')
        A('v_add_u32 v4, s30, v4')
    else:
        A('s_nop 10')
    for b in (4, 2, 6):
        for x in wr(b):
            A(x)
    if mode == 'qkv':
        A('s_cmp_ge_u32 s24, 2')
        A(f's_cbranch_scc1 {lkv}')
        A(f'v_add_u32 v2, {KVRED}, v8')
        for k4 in range(4):
            A(f'ds_write_b128 v2, {v(KACC + k4 * 4, 4)} offset:{(k4 >> 1) * 16 * KB + (k4 & 1) * 1024}')
        A.label(lkv)
    if hook_red:
        hook_red()
    A('s_waitcnt lgkmcnt(0)')
    A('s_barrier')
    for b in range(1, 8):
        for h2 in range(2):
            base, off = ('v8', (b - 1) * 16 * KB) if b <= 4 else ('v7', (b - 5) * 16 * KB)
            A(f'ds_read_b128 {v(ACCB + b * 8 + h2 * 4, 4)}, {base} offset:{off + h2 * 1024}')
    T = 80

    def red(base, waits):
        for stp in (32, 16, 8):
            for r in range(stp):
                A(f'v_add_f32 {v(base + r)}, {v(base + r)}, {v(base + stp + r)}')
    if mode == 'qkv':
        A('s_waitcnt lgkmcnt(6)')
        for ww in range(8):
            A(f'ds_read_b64 {v(T + ww * 2, 2)}, v4 offset:{ww * 512}')
        A('s_waitcnt lgkmcnt(8)')
        if raw:
            EX = 192
            for h2 in range(2):
                A(f'ds_read_b128 {v(EX + h2 * 4, 4)}, v113 offset:{h2 * 32}')
    else:
        C.wait('ex')
        for m in range(4):
            A(f'v_lshlrev_b32 {v(T + 2 * m)}, 16, {v(EX + m)}')
            A(f'v_and_b32 {v(T + 2 * m + 1)}, 0xffff0000, {v(EX + m)}')
        for r in range(8):
            A(f'v_add_f32 {v(ACCB + r)}, {v(ACCB + r)}, {v(T + r)}')
        A('s_waitcnt lgkmcnt(0)')
    red(ACCB, None)
    P = ACCB + 8
    if mode == 'qkv':
        A('s_waitcnt lgkmcnt(0)')
        for stp in (8, 4, 2):
            for e in range(stp):
                A(f'v_add_f32 {v(T + e)}, {v(T + e)}, {v(T + e + stp)}')
        A(f'v_mul_f32 {v(T)}, {f32(1.0 / 512)}, {v(T)}')
        A(f'v_mul_f32 {v(T + 1)}, {f32(1.0 / 512)}, {v(T + 1)}')
        A(f'v_fma_f32 {v(T + 1)}, -{v(T)}, {v(T)}, {v(T + 1)}')
        A(f'v_max_f32 {v(T + 1)}, 0, {v(T + 1)}')
        A(f'v_add_f32 {v(T + 1)}, {f32(1e-5)}, {v(T + 1)}')
        A(f'v_rsq_f32 {v(T + 1)}, {v(T + 1)}')
        C.wait('ex')
        for r in range(8):
            A(f'v_fma_f32 {v(ACCB + r)}, -{v(T)}, {v(EX + r)}, {v(ACCB + r)}')
        A(f'v_mul_f32 {v(T + 2)}, {f32(QSCALE)}, {v(T + 1)}')
        for r in range(8):
            A(f'v_mul_f32 {v(ACCB + r)}, {v(T + 2)}, {v(ACCB + r)}')
        for m in range(4):
            A(f'v_cvt_pk_bf16_f32 {v(P + m)}, {v(ACCB + 2 * m)}, {v(ACCB + 2 * m + 1)}')
        A(f's_add_u32 s31, s49, {C.qf}')
        C.vmem(f'buffer_store_dwordx4 {v(P, 4)}, v3, s[8:11], s31 offen{QWT}', 'st')
        le, lv = C.lab('ke'), C.lab('v')
        A('s_cmp_lg_u32 s29, s24')
        A(f's_cbranch_scc1 {le}')
        A('s_bfe_u32 s34, s20, 0x10001')
        A('s_lshl_b32 s30, s34, 14')
        A('s_lshl_b32 s31, s26, 10')
        A('s_add_u32 s30, s30, s31')
        A(f's_add_u32 s30, s30, {KVRED}')
        A('v_add_u32 v4, s30, v3')
        KR = 208
        for ww in range(8):
            A(f'ds_read_b128 {v(KR + ww * 4, 4)}, v4 offset:{ww * 2048}')
        KX = EX + 8
        if raw:
            A('s_lshl_b32 s30, s34, 6')
            A('s_lshl_b32 s31, s26, 5')
            A('s_add_u32 s30, s30, s31')
            A(f's_add_u32 s30, s30, {CSK + 256}')
            A('v_add_u32 v113, s30, v112')
            A(f'ds_read_b128 {v(KX, 4)}, v113')
        A('s_add_u32 s30, s27, s29')
        A(f's_mul_i32 s30, s30, {KVG}')
        A(f's_add_u32 s30, s30, {kvf}')
        A('v_bfe_u32 v4, v1, 4, 1')
        A(f'v_mul_u32_u24 v4, {VBS}, v4')
        A('v_bfe_u32 v5, v1, 2, 1')
        A('v_lshl_add_u32 v4, v5, 8, v4')
        A('v_and_b32 v5, 3, v1')
        A('v_lshl_add_u32 v4, v5, 1, v4')
        A('v_bfe_u32 v5, v1, 3, 1')
        A('v_lshl_add_u32 v4, v5, 3, v4')
        A('v_lshrrev_b32 v5, 5, v1')
        A('v_lshl_add_u32 v4, v5, 6, v4')
        A('s_waitcnt lgkmcnt(0)')
        for stp in (16, 8, 4):
            for r in range(stp):
                A(f'v_add_f32 {v(KR + r)}, {v(KR + r)}, {v(KR + stp + r)}')
        for r in range(4):
            A(f'v_fma_f32 {v(KR + r)}, -{v(T)}, {v(KX + r)}, {v(KR + r)}')
        for r in range(4):
            A(f'v_mul_f32 {v(KR + r)}, {v(T + 1)}, {v(KR + r)}')
        KP = KR + 8
        for m in range(2):
            A(f'v_cvt_pk_bf16_f32 {v(KP + m)}, {v(KR + 2 * m)}, {v(KR + 2 * m + 1)}')
        A('s_cmp_lg_u32 s34, 0')
        A(f's_cbranch_scc1 {lv}')
        A('s_lshl_b32 s31, s26, 3')
        A('s_add_u32 s31, s31, s30')
        A(f'buffer_store_dwordx2 {v(KP, 2)}, v3, s[8:11], s31 offen{QWT}')
        A(f's_branch {le}')
        A.label(lv)
        A('s_lshl_b32 s31, s26, 7')
        A('s_add_u32 s31, s31, s30')
        for r in range(4):
            op = 'buffer_store_short' if r % 2 == 0 else 'buffer_store_short_d16_hi'
            A(f'{op} {v(KP + r // 2)}, v4, s[8:11], s31 offen offset:{1024 + r * 16}{QWT}')
        A.label(le)
    else:
        for m in range(4):
            A(f'v_cvt_pk_bf16_f32 {v(P + m)}, {v(ACCB + 2 * m)}, {v(ACCB + 2 * m + 1)}')
        if mode == 'res':
            A(f's_add_u32 s31, s49, {outbase}')
            C.vmem(f'buffer_store_dwordx4 {v(P, 4)}, v3, s[8:11], s31 offen{WT}', 'st')
            blk_stats(C, P, T)
            A('s_lshr_b32 s31, s49, 2')
            A(f's_add_u32 s31, s31, {sxout}')
            A('v_lshlrev_b32 v4, 3, v1')
            A('s_mov_b32 exec_hi, 0')
            C.vmem(f'buffer_store_dwordx2 {v(T, 2)}, v4, s[8:11], s31 offen{WT}', 'st')
            A('s_mov_b64 exec, -1')
            if after_store:
                after_store()
        else:
            A('v_and_b32 v4, 31, v1')
            A('v_lshlrev_b32 v4, 10, v4')
            A('v_lshrrev_b32 v5, 5, v1')
            A('v_lshl_add_u32 v4, v5, 4, v4')
            A('s_add_u32 s30, s27, s29')
            A('s_lshl_b32 s30, s30, 15')
            A('s_lshl_b32 s31, s28, 6')
            A('s_add_u32 s30, s30, s31')
            A('s_lshl_b32 s31, s26, 5')
            A('s_add_u32 s30, s30, s31')
            A(f'v_permlane32_swap_b32 {v(P)}, {v(P + 2)}')
            A(f'v_permlane32_swap_b32 {v(P + 1)}, {v(P + 3)}')
            C.vmem(f'buffer_store_dwordx4 {v(P, 4)}, v4, s[12:15], s30 offen', 'st')


def qkv_wstep(C, st, n=1):
    A = C.A
    if st == 0:
        g3_waddr(C, (5, 6), 32, WQKVP)
    per = -(-8 // n)
    for i in range(st * per, min(8, (st + 1) * per)):
        g3_wload(C, (5, 6), i, 128)
    if st == n:
        A('s_lshl_b32 s30, s20, 12')
        A(f's_add_u32 s30, s30, {WQKVP + 16 * 32 * KB}')
        l = C.lab('kw')
        A('s_cmp_ge_u32 s24, 2')
        A(f's_cbranch_scc1 {l}')
        for k in range(4):
            A(f'buffer_load_dwordx4 {v(KVW + 4 * k, 4)}, v3, s[8:11], s30 offen offset:{k * 1024}')
        A.label(l)


def qkv_wloads(C):
    qkv_wstep(C, 0)
    qkv_wstep(C, 1)


KVR4, XF0, ST4, RED4 = 0, 36 * KB, 68 * KB, 80 * KB
G4_ORD = [0, 1, 4, 5, 8, 9, 12, 13, 2, 3, 6, 7, 10, 11, 14, 15]


def g4_ids(C):
    A = C.A
    A('s_and_b32 s18, s22, 3')
    A('s_lshl_b32 s30, s21, 2')
    A('s_add_u32 s18, s18, s30')
    A('s_and_b32 s30, s22, 12')
    A('s_add_u32 s30, s30, s25')
    A('s_lshl_b32 s30, s30, 1')
    A('s_add_u32 s30, s30, s26')
    A('s_lshl_b32 s19, s18, 5')
    A('s_add_u32 s19, s19, s30')
    A('s_lshl_b32 s19, s19, 10')
    A('s_lshr_b32 s3, s22, 2')
    A('s_and_b32 s30, s21, 3')
    A('s_xor_b32 s3, s3, s30')


def g4_waddr(C, vreg, wbase):
    A = C.A
    A('s_lshl_b32 s30, s26, 8')
    A(f'v_xor_b32 {v(vreg)}, s30, v3')
    A('s_and_b32 s30, s19, 0x7fff')
    A('s_lshl_b32 s30, s30, 4')
    A(f's_add_u32 s30, s30, {wbase}')
    A(f'v_add_u32 {v(vreg)}, s30, {v(vreg)}')


def g4_wreg(mode, i):
    if mode == 'qkv':
        return 128 + 4 * i
    return 224 + 4 * i if i < 8 else 64 + 4 * (i - 8)


def g4_wload(C, vreg, i, mode):
    so, im = soff(G4_ORD[i])
    C.vmem(f'buffer_load_dwordx4 {v(g4_wreg(mode, i), 4)}, {v(vreg)}, s[8:11], {so} offen offset:{im}', 'w')


def g4_pre(C, mode, xbase, resbase=None, raw=False):
    A = C.A
    EX = 96
    A('s_lshl_b32 s30, s18, 15')
    A('s_lshl_b32 s48, s20, 12')
    A('s_add_u32 s30, s30, s48')
    A(f's_add_u32 s30, s30, {xbase}')
    A('v_add_u32 v5, s30, v3')
    A('s_lshl_b32 s30, s26, 14')
    A(f's_add_u32 s30, s30, {XF0}')
    A('v_add_u32 v6, s30, v3')
    A(f'v_add_u32 v14, s48, v3')
    A(f's_add_u32 s48, s48, {XF0}')
    A('s_lshl_b32 s30, s20, 11')
    A(f's_add_u32 s30, s30, {RED4}')
    A('v_add_u32 v8, s30, v3')
    A('v_xor_b32 v7, 0x2000, v8')
    if mode == 'qkv':
        A('v_lshrrev_b32 v2, 5, v1')
        if not raw:
            A('v_lshlrev_b32 v4, 4, v2')
            A('s_and_b32 s31, s19, 0x7fff')
            A('s_lshr_b32 s31, s31, 4')
            A(f's_add_u32 s31, s31, {CSQKV}')
            C.vmem(f'buffer_load_dwordx4 {v(EX, 4)}, v4, s[8:11], s31 offen', 'ex')
            C.vmem(f'buffer_load_dwordx4 {v(EX + 4, 4)}, v4, s[8:11], s31 offen offset:32', 'ex')
            A('s_lshl_b32 s31, s25, 5')
            A(f's_add_u32 s31, s31, {CSQKV + 2048}')
            C.vmem(f'buffer_load_dwordx4 {v(EX + 8, 4)}, v4, s[8:11], s31 offen', 'ex')
        A('v_and_b32 v9, 31, v1')
        A('v_lshlrev_b32 v9, 3, v9')
        A(f'v_add_u32 v11, {ST4}, v9')
        A('s_lshl_b32 s30, s20, 8')
        A('v_add_u32 v10, s30, v11')
        A('v_lshl_add_u32 v9, v2, 9, v9')
        A('s_lshl_b32 s30, s18, 13')
        A('s_lshl_b32 s31, s20, 10')
        A('s_add_u32 s30, s30, s31')
        A(f's_add_u32 s30, s30, {resbase}')
        A('v_add_u32 v9, s30, v9')
        A('v_add_u32 v12, s48, v3')
        A('s_lshl_b32 s30, s25, 10')
        A(f's_add_u32 s30, s30, {KVR4}')
        A('v_add_u32 v13, s30, v3')
        A('v_bfe_u32 v15, v1, 4, 1')
        A('v_lshlrev_b32 v15, 9, v15')
        A('v_bfe_u32 v4, v1, 2, 1')
        A('v_lshl_add_u32 v15, v4, 8, v15')
        A('v_and_b32 v4, 3, v1')
        A('v_lshl_add_u32 v15, v4, 1, v15')
        A('v_bfe_u32 v4, v1, 3, 1')
        A('v_lshl_add_u32 v15, v4, 3, v15')
        A('v_lshl_add_u32 v15, v2, 6, v15')
    elif resbase is None:
        A('v_and_b32 v2, 31, v1')
        A('v_lshlrev_b32 v2, 10, v2')
        A('v_lshrrev_b32 v4, 5, v1')
        A('v_lshl_add_u32 v2, v4, 3, v2')
        A('s_lshl_b32 s30, s18, 15')
        A('s_and_b32 s31, s19, 0x7fff')
        A('s_lshr_b32 s31, s31, 5')
        A('s_add_u32 s30, s30, s31')
        C.vmem(f'buffer_load_dwordx2 {v(EX, 2)}, v2, s[12:15], s30 offen', 'ex')
        C.vmem(f'buffer_load_dwordx2 {v(EX + 2, 2)}, v2, s[12:15], s30 offen offset:16', 'ex')
    else:
        A(f's_add_u32 s31, s19, {resbase}')
        C.vmem(f'buffer_load_dwordx4 {v(EX, 4)}, v3, s[8:11], s31 offen', 'ex')


def ln_stats(A, T):
    for stp in (8, 4, 2):
        for e in range(stp):
            A(f'v_add_f32 {v(T + e)}, {v(T + e)}, {v(T + e + stp)}')
    A(f'v_mul_f32 {v(T)}, {f32(1.0 / 512)}, {v(T)}')
    A(f'v_mul_f32 {v(T + 1)}, {f32(1.0 / 512)}, {v(T + 1)}')
    A(f'v_fma_f32 {v(T + 1)}, -{v(T)}, {v(T)}, {v(T + 1)}')
    A(f'v_max_f32 {v(T + 1)}, 0, {v(T + 1)}')
    A(f'v_add_f32 {v(T + 1)}, {f32(1e-5)}, {v(T + 1)}')
    A(f'v_rsq_f32 {v(T + 1)}, {v(T + 1)}')


def g4_main(C, mode, outbase=None, sxout=None, kvf=None, kfl=None, hook_red=None, raw=None, endlab=None):
    A = C.A
    ACC, XR, EX = 16, 32, 96
    KW, KA, KR, T = 192, 208, 224, 108
    if not raw:
        A('s_mov_b32 m0, s48')
        A('s_nop 0')
        for k in range(4):
            C.vmem(f'buffer_load_dwordx4 v5, s[8:11], 0 offen offset:{k * 1024} lds', f'x{k}')

    def rd(i):
        A(f'ds_read_b128 {v(XR + 4 * (i % 8), 4)}, v6 offset:{G4_ORD[i] * 1024}')

    def mf(i):
        c = '0' if i == 0 else v(ACC, 16)
        A(f'v_mfma_f32_32x32x16_bf16 {v(ACC, 16)}, {v(g4_wreg(mode, i), 4)}, {v(XR + 4 * (i % 8), 4)}, {c}')

    def wq_loads():
        for i in range(16):
            so, im = soff(G4_ORD[i])
            A(f'buffer_load_dwordx4 {v(128 + 4 * i, 4)}, v64, s[8:11], {so} offen offset:{im}')

    if mode == 'qkv':
        A('s_add_u32 s35, s3, s26')
        if raw:
            raw['front']()
        else:
            for e in range(2):
                C.vmem(f'buffer_load_dwordx2 {v(T + 2 * e, 2)}, v9, s[8:11], 0 offen offset:{e * 256}', 'sx')
            l1, l2 = C.lab('w1'), C.lab('w2')
            A('s_cmp_eq_u32 s3, 0')
            A(f's_cbranch_scc1 {l1}')
            flag_b(C)
            wq_loads()
            A('s_waitcnt vmcnt(16)')
            A(f's_branch {l2}')
            A.label(l1)
            A('s_waitcnt vmcnt(0)')
            A.label(l2)
            C.vm = []
            C.stamp()
        lk = C.lab('k4')
        A('s_cmp_lg_u32 s3, 0')
        A(f's_cbranch_scc1 {lk}')
        if raw:
            raw['kvw']()
        else:
            for k in range(4):
                A(f'ds_read_b128 {v(KR + 4 * k, 4)}, v12 offset:{k * 1024}')
        for k in range(4):
            if not raw:
                A(f's_waitcnt lgkmcnt({3 - k})')
            A(f'v_mfma_f32_32x32x16_bf16 {v(KA, 16)}, {v(KW + 4 * k, 4)}, {v(KR + 4 * k, 4)}, {"0" if k == 0 else v(KA, 16)}')
        A.label(lk)
        A(f'v_add_f32 {v(T)}, {v(T)}, {v(T + 2)}')
        A(f'v_add_f32 {v(T + 1)}, {v(T + 1)}, {v(T + 3)}')
        A(f'v_mov_b32 {v(T + 2)}, {v(T)}')
        A(f'v_mov_b32 {v(T + 3)}, {v(T + 1)}')
        A('s_nop 1')
        swap_add(A, T, T + 2)
        swap_add(A, T + 1, T + 3)
        A(f'ds_write_b64 v10, {v(T, 2)}')
        A(f'v_mov_b32 {v(T + 2)}, 0')
        A(f'v_mov_b32 v9, {ST4 + 8192}')
        A(f'ds_write_b32 v9, {v(T + 2)}')
        lk = C.lab('k5')
        A('s_cmp_lg_u32 s3, 0')
        A(f's_cbranch_scc1 {lk}')
        for k in range(4):
            A(f'ds_write_b128 v14, {v(KA + 4 * k, 4)} offset:{k * 1024}')
        A.label(lk)
        A('s_waitcnt lgkmcnt(0)')
        A('s_barrier')
        for ww in range(8):
            A(f'ds_read_b64 {v(T + 2 * ww, 2)}, v11 offset:{ww * 256}')
        lv, le, lf = C.lab('v6'), C.lab('e6'), C.lab('f6')
        A('s_cmp_lg_u32 s35, 0')
        A(f's_cbranch_scc1 {le}')
        A('s_setprio 3')
        if FINE == 3:
            C.stamp()
        A('s_waitcnt lgkmcnt(4)')
        for ww in range(8):
            A(f'ds_read_b128 {v(KR + 4 * ww, 4)}, v13 offset:{ww * 4096}')
        A('s_waitcnt lgkmcnt(8)')
        for r in range(16):
            A(f'v_mov_b32 {v(KA + r)}, {v(T + r)}')
        ln_stats(A, KA)
        A('s_lshl_b32 s30, s18, 11')
        A(f's_add_u32 s30, s30, {kvf}')
        A('s_waitcnt lgkmcnt(0)')
        if raw:
            raw['kvcs0']()
        for stp in (16, 8, 4):
            for r in range(stp):
                A(f'v_add_f32 {v(KR + r)}, {v(KR + r)}, {v(KR + stp + r)}')
        if raw:
            raw['kvcs1']()
        for r in range(4):
            A(f'v_fma_f32 {v(KR + r)}, -{v(KA)}, {v(EX + 8 + r)}, {v(KR + r)}')
        for r in range(4):
            A(f'v_mul_f32 {v(KR + r)}, {v(KA + 1)}, {v(KR + r)}')
        for m in range(2):
            A(f'v_cvt_pk_bf16_f32 {v(KR + 8 + m)}, {v(KR + 2 * m)}, {v(KR + 2 * m + 1)}')
        A('s_cmp_ge_u32 s20, 2')
        A(f's_cbranch_scc1 {lv}')
        A('s_lshl_b32 s31, s20, 3')
        A('s_add_u32 s31, s31, s30')
        A(f'buffer_store_dwordx2 {v(KR + 8, 2)}, v3, s[8:11], s31 offen sc0 sc1')
        A(f's_branch {lf}')
        A.label(lv)
        A('s_lshl_b32 s31, s29, 10')
        A(f's_add_u32 s31, s31, {ST4 + 4096}')
        A('v_add_u32 v15, s31, v15')
        for r in range(4):
            op = 'ds_write_b16' if r % 2 == 0 else 'ds_write_b16_d16_hi'
            A(f'{op} v15, {v(KR + 8 + r // 2)} offset:{r * 16}')
        A('v_lshrrev_b32 v2, 3, v1')
        A('v_lshlrev_b32 v2, 8, v2')
        A(f'v_and_b32 {v(KR)}, 7, v1')
        A(f'v_lshl_add_u32 v2, {v(KR)}, 4, v2')
        A('v_add_u32 v15, s31, v2')
        A('s_mov_b32 exec_hi, 0')
        A(f'ds_read_b128 {v(KR + 12, 4)}, v15')
        A('s_lshl_b32 s31, s29, 7')
        A('s_add_u32 s31, s31, s30')
        A('s_waitcnt lgkmcnt(0)')
        A(f'buffer_store_dwordx4 {v(KR + 12, 4)}, v2, s[8:11], s31 offen offset:1024 sc0 sc1')
        A('s_mov_b64 exec, -1')
        A.label(lf)
        lg = C.lab('g6')
        if FINE == 3:
            C.stamp()
        A('s_lshl_b32 s30, s18, 7')
        A(f's_add_u32 s30, s30, {kfl}')
        if raw:
            raw['zchk']()
        A('s_mov_b64 exec, 1')
        A('s_waitcnt vmcnt(0)')
        A('ds_add_rtn_u32 v2, v9, v4')
        A('s_waitcnt lgkmcnt(0)')
        A('v_cmp_eq_u32 vcc, 3, v2')
        A('s_cbranch_vccz ' + lg)
        A('buffer_store_dword v4, v0, s[8:11], s30 offen sc0 sc1')
        A.label(lg)
        A('s_mov_b64 exec, -1')
        A('s_setprio 0')
        if FINE == 3:
            C.stamp()
        A.label(le)
        flag_b(C)
        A('s_waitcnt lgkmcnt(0)')
        if raw:
            raw['wprep']()
        else:
            l3 = C.lab('w3')
            A('s_cmp_lg_u32 s3, 0')
            A(f's_cbranch_scc1 {l3}')
            C.flagb = True
            flag_b(C)
            wq_loads()
            A.label(l3)
        if raw:
            raw['loop'](rd, mf)
        else:
            for i in range(8):
                rd(i)
            ln_stats(A, T)
            for i in range(16):
                A(f's_waitcnt lgkmcnt({7 if i < 8 else 15 - i}) vmcnt({15 - i})')
                mf(i)
                if i < 8:
                    rd(i + 8)
    else:
        def wl(i):
            so, im = soff(G4_ORD[i])
            C.vmem(f'buffer_load_dwordx4 {v(g4_wreg(mode, i), 4)}, v116, s[8:11], {so} offen offset:{im}', f'w{i}')
        if WO_LATE:
            for i in range(8, 8 + WO_L0):
                wl(i)
        C.wait('x1')
        A('s_barrier')
        C.stamp()
        for i in range(8):
            rd(i)
        if WO_LATE:
            for i in range(8 + WO_L0, 16):
                wl(i)
        for i in range(4):
            A(f's_waitcnt lgkmcnt({7 - i})')
            mf(i)
        C.wait('x3')
        A('s_barrier')
        for i in range(8, 12):
            rd(i)
        for i in range(4, 8):
            A('s_waitcnt lgkmcnt(7)')
            mf(i)
            rd(i + 8)
        flag_b(C)
        for i in range(8, 16):
            C.wait(f'w{i}', f'lgkmcnt({15 - i})')
            mf(i)
            if hook_red and i >= 8:
                hook_red(i - 8)
    C.stamp()
    if mode == 'qkv':
        kv_setup(C, kvf, kfl)
        A(f'v_mul_f32 {v(T + 2)}, {f32(QSCALE)}, {v(T + 1)}')
        if raw:
            raw['cs0']()
    else:
        C.wait('ex')
        TT = XR
        for m in range(4):
            A(f'v_lshlrev_b32 {v(TT + 2 * m)}, 16, {v(EX + m)}')
            A(f'v_and_b32 {v(TT + 2 * m + 1)}, 0xffff0000, {v(EX + m)}')
        A('s_nop 3')
    for h2 in range(2):
        A(f'ds_write_b128 v7, {v(ACC + 8 + 4 * h2, 4)} offset:{h2 * 1024}')
    if mode == 'qkv':
        if not raw:
            for r in range(8):
                A(f'v_fma_f32 {v(ACC + r)}, -{v(T)}, {v(EX + r)}, {v(ACC + r)}')
    else:
        for r in range(8):
            A(f'v_add_f32 {v(ACC + r)}, {v(ACC + r)}, {v(XR + r)}')
    A('s_waitcnt lgkmcnt(0)')
    A('s_barrier')
    for h2 in range(2):
        A(f'ds_read_b128 {v(ACC + 8 + 4 * h2, 4)}, v8 offset:{h2 * 1024}')
    if mode == 'qkv':
        if FINE == 3:
            C.stamp()
        kv_wait(C, 1, endlab)
        if FINE == 3:
            C.stamp()
        att_kvdma(C, 0)
        kv_flagload(C)
    if raw:
        raw['cs']()
        for r in range(8):
            A(f'v_fma_f32 {v(ACC + r)}, -{v(T)}, {v(EX + r)}, {v(ACC + r)}')
    A('s_waitcnt lgkmcnt(0)')
    for r in range(8):
        A(f'v_add_f32 {v(ACC + r)}, {v(ACC + r)}, {v(ACC + 8 + r)}')
    if mode == 'qkv':
        for r in range(8):
            A(f'v_mul_f32 {v(ACC + r)}, {v(T + 2)}, {v(ACC + r)}')
        for m in range(4):
            A(f'v_cvt_pk_bf16_f32 {v(124 + m)}, {v(ACC + 2 * m)}, {v(ACC + 2 * m + 1)}')
        A('s_barrier')
    else:
        P = ACC + 8
        for m in range(4):
            A(f'v_cvt_pk_bf16_f32 {v(P + m)}, {v(ACC + 2 * m)}, {v(ACC + 2 * m + 1)}')
        A(f's_add_u32 s31, s19, {outbase}')
        C.vmem(f'buffer_store_dwordx4 {v(P, 4)}, v3, s[8:11], s31 offen{WT}', 'st')
        blk_stats(C, P, XR)
        A('s_lshr_b32 s31, s19, 2')
        A(f's_add_u32 s31, s31, {sxout}')
        A('v_lshlrev_b32 v4, 3, v1')
        A('s_mov_b32 exec_hi, 0')
        C.vmem(f'buffer_store_dwordx2 {v(XR, 2)}, v4, s[8:11], s31 offen{WT}', 'st')
        A('s_mov_b64 exec, -1')


def qkv4_wstep(C, st, n):
    pass


def qkv4_wrest(C):
    A = C.A
    l = C.lab('kw')
    A('s_lshl_b32 s30, s20, 12')
    A(f's_add_u32 s30, s30, {WQKVP + 16 * 32 * KB}')
    A('s_cmp_lg_u32 s3, 0')
    A(f's_cbranch_scc1 {l}')
    for k in range(4):
        A(f'buffer_load_dwordx4 {v(192 + 4 * k, 4)}, v3, s[8:11], s30 offen offset:{k * 1024}')
    A.label(l)


def att_kvdma(C, r):
    A = C.A
    A(f's_add_u32 s30, s39, {r * 16384}')
    A('s_and_b32 s30, s30, 0x1ffff')
    A(f's_add_u32 m0, s37, {r * 8 * KVT}')
    A('s_add_u32 s30, s30, s38')
    A('buffer_load_dwordx4 v3, s[8:11], s30 offen lds')
    A('buffer_load_dwordx4 v3, s[8:11], s30 offen offset:1024 lds')


def kv_flagload(C):
    A = C.A
    A('s_mov_b64 exec, 0xff')
    A('buffer_load_dword v2, v0, s[8:11], s33 offen sc1')
    A('s_mov_b64 exec, -1')


def kv_setup(C, kvf, kfl):
    A = C.A
    A(f's_mul_i32 s37, s20, {KVT}')
    A('s_lshl_b32 s38, s20, 11')
    A(f's_add_u32 s38, s38, {kvf}')
    A('s_lshr_b32 s30, s21, 1')
    A('s_lshl_b32 s39, s30, 14')
    A('v_add_u32 v0, s30, v1')
    A('v_and_b32 v0, 7, v0')
    A('v_lshlrev_b32 v0, 10, v0')
    A('s_lshl_b32 s33, s20, 7')
    A(f's_add_u32 s33, s33, {kfl}')
    kv_flagload(C)


def kv_wait(C, mask, endlab):
    A = C.A
    lp, lpd = C.lab('kp'), C.lab('kpd')
    A('s_mov_b32 s31, 0')
    A('s_mov_b64 exec, 0xff')
    A.label(lp)
    A('s_add_u32 s31, s31, 1')
    A('s_waitcnt vmcnt(0)')
    A('v_cmp_ne_u32 vcc, 0, v2')
    A(f's_and_b32 s30, vcc_lo, {mask}')
    A(f's_cmp_eq_u32 s30, {mask}')
    A(f's_cbranch_scc1 {lpd}')
    A(f's_sleep {KV_SLEEP}')
    A('buffer_load_dword v2, v0, s[8:11], s33 offen sc1')
    A(f's_cmp_lt_u32 s31, {1 << 21}')
    A(f's_cbranch_scc1 {lp}')
    A(f's_branch {endlab}')
    A.label(lpd)
    A('s_mov_b64 exec, -1')


def att_phase(C, kvf, kfl, endlab, stubs, fixed={}, pf0=None, pre_hook=None, loadq=True, early=False):
    A = C.A
    tg = C.tag
    Q, CN, S0, S1, O, P, KF, VF, VK, VV, T = 124, 8, 24, 40, 56, 72, 80, 88, 104, 105, 106
    VV1 = 111
    S = [S0, S1]
    A(f's_add_u32 s36, s19, {C.B["OF"]}')
    if loadq:
        A(f's_add_u32 s31, s19, {C.B["QF"]}')
        C.vmem(f'buffer_load_dwordx4 {v(Q, 4)}, v3, s[8:11], s31 offen', 'q')
        flag_b(C)
    def kvdma(r):
        att_kvdma(C, r)
    if pre_hook:
        pre_hook()
    A(f'v_mov_b32 {v(VK)}, v3')
    A(f'v_and_b32 {v(T)}, 15, v1')
    A(f'v_lshrrev_b32 {v(T + 1)}, 5, v1')
    A(f'v_lshl_add_u32 {v(T)}, {v(T + 1)}, 4, {v(T)}')
    A(f'v_lshlrev_b32 {v(T)}, 4, {v(T)}')
    A(f'v_add_u32 {v(VV)}, 1024, {v(T)}')
    A(f'v_add_u32 {v(VV1)}, 1536, {v(T)}')
    A(f'v_and_b32 {v(T + 1)}, 31, v1')
    A(f'v_cmp_eq_u32 vcc, 16, {v(T + 1)}')
    A(f'v_mov_b32 {v(T + 2)}, 2048')
    A('s_nop 0')
    A(f'v_cndmask_b32 {v(VV)}, {v(VV)}, {v(T + 2)}, vcc')
    A(f'v_cndmask_b32 {v(VV1)}, {v(VV1)}, {v(T + 2)}, vcc')
    A(f'v_cmp_lt_u32 vcc, 16, {v(T + 1)}')
    A(f'v_mov_b32 {v(T + 2)}, 2064')
    A('s_nop 0')
    A(f'v_cndmask_b32 {v(VV)}, {v(VV)}, {v(T + 2)}, vcc')
    A(f'v_cndmask_b32 {v(VV1)}, {v(VV1)}, {v(T + 2)}, vcc')
    A(f'v_subrev_u32 {v(T + 1)}, 20, {v(T + 1)}')
    A(f'v_cmp_gt_u32 vcc, 8, {v(T + 1)}')
    A(f'v_mov_b32 {v(T + 2)}, 2112')
    A('s_nop 0')
    A(f'v_cndmask_b32 {v(VV)}, {v(VV)}, {v(T + 2)}, vcc')
    A(f'v_cndmask_b32 {v(VV1)}, {v(VV1)}, {v(T + 2)}, vcc')
    for r in range(16):
        A(f'v_mov_b32 {v(O + r)}, 0')
    for m in range(4, 8):
        A(f'v_mov_b32 {v(P + m)}, 0')
    for m in range(4):
        A(f'v_mov_b32 {v(VF + 12 + m)}, 0')
        A(f'v_mov_b32 {v(P + m)}, 0x3f803f80')
    A(f'v_mul_u32_u24 {v(T)}, {KVT}, v1')
    lcw = C.lab('cw')
    A('s_cmp_lg_u32 s20, 7')
    A(f's_cbranch_scc1 {lcw}')
    A(f'ds_write_b128 {v(T)}, {v(P, 4)} offset:2048')
    A(f'ds_write_b128 {v(T)}, {v(P + 4, 4)} offset:2064')
    A(f'ds_write_b128 {v(T)}, {v(P + 4, 4)} offset:2112')
    A.label(lcw)
    lnd = C.lab('nd')
    A('s_waitcnt vmcnt(0) lgkmcnt(0)')
    A('v_cmp_ne_u32 vcc, 0, v2')
    A('s_barrier')
    A('s_and_b32 s32, vcc_lo, 0xff')
    A('s_cmp_lg_u32 s32, 0xff')
    A(f's_cbranch_scc1 {lnd}')
    for r in range(1, 4):
        kvdma(r)
    A.label(lnd)
    C.vm = []
    C.stamp()

    def rdK(buf, t):
        A(f'ds_read_b128 {v(KF + buf * 4, 4)}, {v(VK)} offset:{t * KVT}')

    def rdV(buf, t):
        A(f'ds_read_b128 {v(VF + buf * 8, 4)}, {v(VV)} offset:{t * KVT}')
        A(f'ds_read_b128 {v(VF + buf * 8 + 4, 4)}, {v(VV1)} offset:{t * KVT}')

    rdK(0, 0)
    rdK(1, 1)
    rdV(0, 0)
    A('s_waitcnt lgkmcnt(3)')
    A(f'v_mfma_f32_32x32x16_bf16 {v(S0, 16)}, {v(KF, 4)}, {v(Q, 4)}, 0')
    A('s_nop 11')
    A(f'v_max3_f32 {v(T)}, {v(S0)}, {v(S0 + 1)}, {v(S0 + 2)}')
    for r in range(3, 15, 2):
        A(f'v_max3_f32 {v(T)}, {v(T)}, {v(S0 + r)}, {v(S0 + r + 1)}')
    A(f'v_max_f32 {v(T)}, {v(T)}, {v(S0 + 15)}')
    A(f'v_mov_b32 {v(T + 1)}, {v(T)}')
    A('s_nop 1')
    A(f'v_permlane32_swap_b32 {v(T)}, {v(T + 1)}')
    A(f'v_max_f32 {v(T)}, {v(T)}, {v(T + 1)}')
    for r in range(16):
        A(f'v_sub_f32 {v(CN + r)}, 0, {v(T)}')
    for r in range(16):
        A(f'v_sub_f32 {v(S0 + r)}, {v(S0 + r)}, {v(T)}')
    A('s_setprio 3')
    C.stamp()
    def tile(t, off, extra=None):
        cur, nxt = t & 1, (t + 1) & 1
        Sc, Sn = S[cur], S[nxt]
        if not ONEWAIT:
            A('s_waitcnt lgkmcnt(2)')
        A(f'v_mfma_f32_32x32x16_bf16 {v(Sn, 16)}, {v(KF + nxt * 4, 4)}, {v(Q, 4)}, {v(CN, 16)}')
        rdK(cur, off + 2)
        for r in range(6):
            A(f'v_exp_f32 {v(Sc + r)}, {v(Sc + r)}')
        A(f'v_mfma_f32_32x32x16_bf16 {v(O, 16)}, {v(VF + nxt * 8 + 4, 4)}, {v(P + 4, 4)}, {v(O, 16)}')
        if extra:
            extra()
        for r in range(6, 8):
            A(f'v_exp_f32 {v(Sc + r)}, {v(Sc + r)}')
        for m in range(4):
            A(f'v_cvt_pk_bf16_f32 {v(P + m)}, {v(Sc + 2 * m)}, {v(Sc + 2 * m + 1)}')
        A(f'v_exp_f32 {v(Sc + 8)}, {v(Sc + 8)}')
        A(f'v_exp_f32 {v(Sc + 9)}, {v(Sc + 9)}')
        A('s_waitcnt lgkmcnt(0)' if ONEWAIT else 's_waitcnt lgkmcnt(1)')
        A(f'v_mfma_f32_32x32x16_bf16 {v(O, 16)}, {v(VF + cur * 8, 4)}, {v(P, 4)}, {v(O, 16)}')
        rdV(nxt, off + 1)
        for r in range(10, 16):
            A(f'v_exp_f32 {v(Sc + r)}, {v(Sc + r)}')
        for m in range(4, 8):
            A(f'v_cvt_pk_bf16_f32 {v(P + m)}, {v(Sc + 2 * m)}, {v(Sc + 2 * m + 1)}')

    def bump(n):
        for rg in (VK, VV, VV1):
            A(f'v_add_u32 {v(rg)}, {n * KVT}, {v(rg)}')
    if ONEWAIT:
        A('s_waitcnt lgkmcnt(0)')
    queue = list(stubs)
    nq = len(queue)
    tpf0 = pf0 if pf0 else TB2
    ntl = 64 - TPFEND - tpf0
    prio = {TP2: 2, TP1: 1, TP0: 0}
    dq = list(range(4, 8))
    for t in range(64):
        if t == TCHK:
            ld = C.lab('dn')
            A('s_cmp_eq_u32 s32, 0xff')
            A(f's_cbranch_scc1 {ld}')
            kv_flagload(C)
            kv_wait(C, 0xff, endlab)
            for r in range(1, 4):
                kvdma(r)
            A.label(ld)
        if t == 6 and TB2 != 6:
            assert not dq
            A('s_waitcnt vmcnt(12)')
            A('s_barrier')
        if t == TB2:
            assert not dq
            A('s_waitcnt vmcnt(0)')
            A('s_barrier')
        if t in prio:
            A(f's_setprio {prio[t]}')
        if t in fixed:
            fixed[t]()
        fs = []
        if t >= TCHK:
            for _ in range(DPT):
                if dq:
                    fs.append(lambda r=dq.pop(0): kvdma(r))
        if t >= tpf0 and queue:
            k = t - tpf0
            n = (nq * (k + 1)) // ntl - (nq * k) // ntl
            fs += [queue.pop(0) for _ in range(min(n, len(queue)))]
        tile(t, t % 24 if t < 48 else t - 48, lambda fs=fs: [f() for f in fs])
        if t in (23, 47):
            bump(24)
        if t == 63:
            bump(16)
    assert not queue
    A(f'v_mfma_f32_32x32x16_bf16 {v(O, 16)}, {v(VF + 8 + 4, 4)}, {v(P + 4, 4)}, {v(O, 16)}')
    A('s_mov_b32 s39, 0')
    C.stamp()
    A('s_waitcnt lgkmcnt(0)')
    A('s_nop 10')
    A.label(f'{tg}_fin')
    A(f'v_mov_b32 {v(T)}, {v(O + 8)}')
    A(f'v_mov_b32 {v(T + 1)}, {v(O + 8)}')
    A(f'v_mul_f32 {v(T + 2)}, 0, {v(O)}')
    A(f'v_fma_f32 {v(T + 2)}, {v(O + 1)}, 0, {v(T + 2)}')
    A(f'v_permlane32_swap_b32 {v(T)}, {v(T + 1)}')
    for r in range(2, 8):
        A(f'v_fma_f32 {v(T + 2)}, {v(O + r)}, 0, {v(T + 2)}')
    A(f'v_add_f32 {v(T + 2)}, {v(T + 2)}, {v(T)}')
    A(f'v_mov_b32 {v(T + 3)}, {f32(2.0 ** 30)}')
    A(f'v_cmp_nle_f32 vcc, {v(T + 2)}, {v(T + 3)}')
    A(f'v_rcp_f32 {v(T)}, {v(T)}')
    A('s_cmp_eq_u32 s39, 99')
    A(f's_cbranch_scc1 {tg}_store')
    A(f's_cbranch_vccnz {tg}_slow')
    A.label(f'{tg}_store')
    for r in range(8):
        A(f'v_mul_f32 {v(O + r)}, {v(T)}, {v(O + r)}')
    for m in range(4):
        A(f'v_cvt_pk_bf16_f32 {v(P + m)}, {v(O + 2 * m)}, {v(O + 2 * m + 1)}')
    C.vmem(f'buffer_store_dwordx4 {v(P, 4)}, v3, s[8:11], s36 offen{WT}', 'st')

    def tail(with_body):
        A.label(f'{tg}_slow')
        A(f'v_subrev_u32 {v(VK)}, {64 * KVT}, {v(VK)}')
        A(f'v_subrev_u32 {v(VV)}, {64 * KVT}, {v(VV)}')
        A(f'v_subrev_u32 {v(VV1)}, {64 * KVT}, {v(VV1)}')
        for r in range(16):
            A(f'v_mov_b32 {v(O + r)}, 0')
        M = T + 4
        A(f'v_sub_f32 {v(M)}, 0, {v(CN)}')
        A.label(f'{tg}_sloop')
        rdK(0, 0)
        rdV(0, 0)
        A('s_waitcnt lgkmcnt(0)')
        A(f'v_mfma_f32_32x32x16_bf16 {v(S0, 16)}, {v(KF, 4)}, {v(Q, 4)}, 0')
        A('s_nop 11')
        A(f'v_max3_f32 {v(T)}, {v(S0)}, {v(S0 + 1)}, {v(S0 + 2)}')
        for r in range(3, 15, 2):
            A(f'v_max3_f32 {v(T)}, {v(T)}, {v(S0 + r)}, {v(S0 + r + 1)}')
        A(f'v_max3_f32 {v(T)}, {v(T)}, {v(S0 + 15)}, {v(M)}')
        A(f'v_mov_b32 {v(T + 1)}, {v(T)}')
        A('s_nop 1')
        A(f'v_permlane32_swap_b32 {v(T)}, {v(T + 1)}')
        A(f'v_max_f32 {v(T)}, {v(T)}, {v(T + 1)}')
        A(f'v_sub_f32 {v(T + 1)}, {v(M)}, {v(T)}')
        A(f'v_exp_f32 {v(T + 1)}, {v(T + 1)}')
        A(f'v_mov_b32 {v(M)}, {v(T)}')
        for r in range(16):
            A(f'v_sub_f32 {v(S0 + r)}, {v(S0 + r)}, {v(T)}')
        for r in range(16):
            A(f'v_exp_f32 {v(S0 + r)}, {v(S0 + r)}')
        for r in range(16):
            A(f'v_mul_f32 {v(O + r)}, {v(T + 1)}, {v(O + r)}')
        for m in range(8):
            A(f'v_cvt_pk_bf16_f32 {v(P + m)}, {v(S0 + 2 * m)}, {v(S0 + 2 * m + 1)}')
        A('s_nop 1')
        A(f'v_mfma_f32_32x32x16_bf16 {v(O, 16)}, {v(VF, 4)}, {v(P, 4)}, {v(O, 16)}')
        A(f'v_mfma_f32_32x32x16_bf16 {v(O, 16)}, {v(VF + 4, 4)}, {v(P + 4, 4)}, {v(O, 16)}')
        A(f'v_add_u32 {v(VK)}, {KVT}, {v(VK)}')
        A(f'v_add_u32 {v(VV)}, {KVT}, {v(VV)}')
        A(f'v_add_u32 {v(VV1)}, {KVT}, {v(VV1)}')
        A('s_nop 11')
        A('s_add_u32 s39, s39, 1')
        A('s_cmp_lt_u32 s39, 64')
        A(f's_cbranch_scc1 {tg}_sloop')
        A('s_mov_b32 s39, 99')
        A(f's_branch {tg}_fin')
    return tail


V_WGU = 112


def gu_waddr(C):
    A = C.A
    A('s_mul_i32 s30, s22, 7')
    A('s_min_u32 s31, s20, 6')
    A('s_add_u32 s40, s30, s31')
    A('s_lshl_b32 s30, s40, 15')
    A(f's_add_u32 s30, s30, {WGUP}')
    if W7OFF:
        A('s_cmp_eq_u32 s20, 7')
        A('s_cselect_b32 s30, 0x70000000, s30')
    A(f'v_add_u32 {v(V_WGU)}, s30, v3')


def gu_wload(C, ks):
    so, im = soff(ks)
    C.vmem(f'buffer_load_dwordx4 {v(128 + 4 * ks, 4)}, {v(V_WGU)}, s[8:11], {so} offen offset:{im}', 'wg')


def gu_pre(C):
    A = C.A
    CS = 112
    A('v_mov_b32 v15, v113')
    A('v_mov_b32 v9, v114')
    A(f'v_mov_b32 v14, {v(V_WGU)}')
    A('s_lshl_b32 s30, s21, 2')
    A('s_add_u32 s30, s30, s25')
    A('s_lshl_b32 s30, s30, 15')
    A('s_lshl_b32 s31, s26, 11')
    A('s_add_u32 s30, s30, s31')
    A(f's_add_u32 s30, s30, {C.B["XB"]}')
    A('v_add_u32 v13, s30, v3')
    A('s_lshl_b32 s48, s25, 15')
    A('s_add_u32 s48, s48, s31')
    A('v_add_u32 v7, 0x10000, v3')
    A('v_lshrrev_b32 v11, 5, v1')
    A('v_lshlrev_b32 v11, 4, v11')
    A('s_min_u32 s30, s20, 6')
    A('s_lshl_b32 s30, s30, 7')
    A(f's_add_u32 s30, s30, {132 * KB}')
    A('v_add_u32 v10, s30, v11')
    A('v_and_b32 v12, 31, v1')
    A('v_lshlrev_b32 v12, 3, v12')
    A('v_lshl_add_u32 v12, v11, 8, v12')
    A('s_lshl_b32 s30, s21, 15')
    A(f's_add_u32 s30, s30, {C.B["SXB"]}')
    A('v_add_u32 v12, s30, v12')
    A(f'v_add_u32 v8, {128 * KB}, v3')


def gu_main(C, after_store=None):
    A = C.A
    ACC, XF, CS = 16, 80, 112
    STR = [4, 10, 240, 244]

    def dma(c):
        A(f's_add_u32 m0, s48, {c * 4096}')
        so = '0' if c == 0 else s(40 + c)
        A('s_nop 0')
        for k in range(2):
            C.vmem(f'buffer_load_dwordx4 v13, s[8:11], {so} offen offset:{k * 1024} lds', f'x{c}')
    dma(0)
    dma(1)

    def rd(ks):
        buf = ks & 1
        for i in range(4):
            base = 'v3' if i < 2 else 'v7'
            A(f'ds_read_b128 {v(XF + buf * 16 + i * 4, 4)}, {base} offset:{(i & 1) * 32768 + ks * 1024}')

    def stats_load(i):
        for e in range(16):
            C.vmem(f'buffer_load_dwordx2 {v(ACC + (i & 1) * 32 + 2 * e, 2)}, v12, s[8:11], {"0" if i == 0 else s(40 + 2 * i)} offen offset:{e * 256}', f's{i}')

    def stats_sum(i):
        b = ACC + (i & 1) * 32
        C.wait(f's{i}')
        for stp in (16, 8, 4, 2):
            for e in range(stp):
                A(f'v_add_f32 {v(b + e)}, {v(b + e)}, {v(b + e + stp)}')
        A(f'v_mov_b32 {v(b + 2)}, {v(b)}')
        A(f'v_mov_b32 {v(b + 3)}, {v(b + 1)}')
        A('s_nop 1')
        A(f'v_permlane32_swap_b32 {v(b)}, {v(b + 2)}')
        A(f'v_permlane32_swap_b32 {v(b + 1)}, {v(b + 3)}')
        A(f'v_add_f32 {v(b)}, {v(b)}, {v(b + 2)}')
        A(f'v_add_f32 {v(b + 1)}, {v(b + 1)}, {v(b + 3)}')
        A(f'v_mul_f32 {v(b)}, {f32(-1.0 / 512)}, {v(b)}')
        A(f'v_mul_f32 {v(b + 1)}, {f32(1.0 / 512)}, {v(b + 1)}')
        A(f'v_fma_f32 {v(b + 1)}, -{v(b)}, {v(b)}, {v(b + 1)}')
        A(f'v_max_f32 {v(b + 1)}, 0, {v(b + 1)}')
        A(f'v_add_f32 {v(b + 1)}, {f32(1e-5)}, {v(b + 1)}')
        A(f'v_rcp_f32 {v(b + 2)}, {v(b + 1)}')
        A(f'v_mov_b32 {v(b + 1)}, {v(b)}')
        A(f'v_mov_b32 {v(b + 3)}, {v(b + 2)}')
        A(f'ds_write_b128 v8, {v(b, 4)} offset:{i * 1024}')
        A('s_waitcnt lgkmcnt(0)')

    def loop(idle):
        C.wait('x0')
        A('s_barrier')
        C.stamp()
        if not idle:
            rd(0)
        for ks in range(32):
            if ks + 1 < 32:
                if (ks + 1) in GU_BARS:
                    C.wait(f'x{GU_BARS[ks + 1]}')
                    A('s_barrier')
                if not idle:
                    rd(ks + 1)
                    if ks == 28:
                        for g in range(4):
                            A(f'ds_read_b128 {v(CS + g * 4, 4)}, v10 offset:{g * 32}')
                        A('s_waitcnt lgkmcnt(8)')
                    elif ks == 30:
                        for i in range(4):
                            A(f'ds_read_b128 {v(STR[i], 4)}, v8 offset:{i * 1024}')
                        A('s_waitcnt lgkmcnt(8)')
                    else:
                        A('s_waitcnt lgkmcnt(4)')
            elif not idle:
                A('s_waitcnt lgkmcnt(0)')
            buf = ks & 1
            todo = []
            if ks == 10:
                C.flagb = True
                flag_b(C)
            if ks < 6:
                todo.append(lambda: dma(ks + 2))
            if ks == 16 + WO_TAIL and not idle:
                C.wait('wg')
            if 6 <= ks < 6 + 16 - WO_TAIL and not idle:
                k2 = 16 + WO_TAIL + ks - 6
                so, im = soff(k2)
                todo.append(lambda k2=k2, so=so, im=im: C.vmem(f'buffer_load_dwordx4 {v(128 + 4 * k2, 4)}, v14, s[8:11], {so} offen offset:{im}', 'wg'))
            if ks >= GU_WD0:
                nleft = 28 - len(wdone)
                for st in [st for st in range(28) if st < ks and st not in wdone][:(2 if nleft > 31 - ks else 1)]:
                    todo.append(lambda st=st: g3_wload(C, (15, 9), st, 128))
                    wdone.add(st)
            for i in range(4):
                if not idle and not (GU_TAIL and (ks == 31 or (ks == 30 and i >= 2))):
                    c = '0' if ks == 0 else v(ACC + i * 16, 16)
                    if GU16:
                        for t2 in range(2):
                            aa = ACC + i * 16 + ((ks & 1) * 2 + t2) * 4
                            A(f'v_mfma_f32_16x16x32_bf16 {v(aa, 4)}, {v(128 + 4 * (ks ^ t2 if ks > 1 else ks), 4)}, {v(XF + buf * 16 + i * 4, 4)}, {"0" if ks < 2 else v(aa, 4)}')
                    else:
                        A(f'v_mfma_f32_32x32x16_bf16 {v(ACC + i * 16, 16)}, {v(128 + 4 * ks, 4)}, {v(XF + buf * 16 + i * 4, 4)}, {c}')
                if i < 3 and todo:
                    f_ = todo.pop(0)
                    if not (GU_NOW and ks >= 6):
                        f_()
            if idle:
                if ks == 6:
                    stats_load(0)
                    stats_load(1)
                if ks == 8:
                    stats_sum(0)
                    stats_load(2)
                    stats_sum(1)
                    stats_load(3)
                if ks == 12:
                    stats_sum(2)
                    stats_sum(3)
                    A(f's_mul_i32 s30, s22, {7 * 128}')
                    A(f's_add_u32 s30, s30, {CSP}')
                    for kp in range(8):
                        C.vmem(f'buffer_load_dwordx4 {v(ACC + 4 * kp, 4)}, v3, s[8:11], s30 offen', 'cp')
                        if kp < 7:
                            A(f's_add_u32 s30, s30, {3584 * 4}')
                if ks == 16:
                    C.wait('cp')
                    for stp in (16, 8, 4):
                        for e in range(stp):
                            A(f'v_add_f32 {v(ACC + e)}, {v(ACC + e)}, {v(ACC + e + stp)}')
                    A(f'v_add_u32 v10, {132 * KB}, v3')
                    A(f'ds_write_b128 v10, {v(ACC, 4)}')
                    A('s_waitcnt lgkmcnt(0)')
        assert len(wdone) == 28
        C.stamp()
        if idle:
            if after_store:
                after_store()
            return
        P = XF

        def epi(i):
            acc = ACC + i * 16
            for r in range(0, 16, 2):
                A(f'v_pk_fma_f32 {v(acc + r, 2)}, {v(STR[i], 2)}, {v(CS + r, 2)}, {v(acc + r, 2)}')
            for r in range(0, 8, 2):
                A(f'v_pk_mul_f32 {v(acc + r, 2)}, {v(acc + r, 2)}, {v(acc + 8 + r, 2)}')
            for r in range(0, 8, 2):
                A(f'v_pk_mul_f32 {v(acc + r, 2)}, {v(acc + r, 2)}, {v(STR[i] + 2, 2)}')
            pp = acc + 8
            for m in range(4):
                A(f'v_cvt_pk_bf16_f32 {v(pp + m)}, {v(acc + 2 * m)}, {v(acc + 2 * m + 1)}')
            C.vmem(f'buffer_store_dwordx4 {v(pp, 4)}, v3, s[8:11], s30 offen{WT}', 'st')
            if i < 3:
                A(f's_add_u32 s30, s30, {112 * KB}')

        def mm(i, ks):
            A(f'v_mfma_f32_32x32x16_bf16 {v(ACC + i * 16, 16)}, {v(128 + 4 * ks, 4)}, {v(XF + (ks & 1) * 16 + i * 4, 4)}, {v(ACC + i * 16, 16)}')
        A(f's_mul_i32 s30, s21, {4 * 112}')
        A('s_add_u32 s30, s30, s40')
        A('s_lshl_b32 s30, s30, 10')
        A(f's_add_u32 s30, s30, {C.B["HF"]}')
        if GU_TAIL:
            A('s_waitcnt lgkmcnt(0)')
            mm(0, 31)
            mm(2, 30)
            mm(1, 31)
            mm(3, 30)
            A('s_nop 8')
            epi(0)
            mm(2, 31)
            mm(3, 31)
            epi(1)
            epi(2)
            epi(3)
        else:
            A('s_nop 4')
            for i in range(4):
                epi(i)
        if after_store:
            after_store()

    ls, le = C.lab('gs'), C.lab('ge')
    A('s_cmp_eq_u32 s20, 7')
    A(f's_cbranch_scc1 {ls}')
    save, ns = list(C.vm), C.nstamp
    wdone = set()
    loop(False)
    A(f's_branch {le}')
    A.label(ls)
    C.vm, C.nstamp = list(save), ns
    wdone = set()
    loop(True)
    A.label(le)
    C.vm = ['st']


def flag_addr(C, sreg, sync):
    C.A(f's_lshl_b32 {s(sreg)}, s21, 8')
    C.A(f's_add_u32 {s(sreg)}, {s(sreg)}, {FLG + sync * 4096}')


GCNT = 134 * KB


def arrive(C, k, sync):
    A = C.A
    l = C.lab('p7')
    A('s_mov_b64 exec, 1')
    A(f'v_mov_b32 v14, {GCNT + 4 * k}')
    A('ds_add_rtn_u32 v14, v14, v4')
    A('s_waitcnt lgkmcnt(0)')
    C.lds = []
    A('v_cmp_eq_u32 vcc, 6, v14')
    A(f's_cbranch_vccz {l}')
    flag_addr(C, 30, sync)
    A('s_lshl_b32 s31, s22, 2')
    A('s_add_u32 s30, s30, s31')
    A('buffer_store_dword v4, v0, s[8:11], s30 offen')
    A('buffer_store_dword v4, v0, s[8:11], s30 offen offset:128 sc0 sc1')
    A.label(l)
    A('s_mov_b64 exec, -1')


def publish7(C, sync):
    A = C.A
    l = C.lab('p7')
    A('s_cmp_lg_u32 s20, 7')
    A(f's_cbranch_scc1 {l}')
    flag_addr(C, 30, sync)
    A('s_lshl_b32 s31, s22, 2')
    A('s_add_u32 s30, s30, s31')
    A('s_mov_b64 exec, 1')
    A('buffer_store_dword v4, v0, s[8:11], s30 offen')
    A('buffer_store_dword v4, v0, s[8:11], s30 offen offset:128 sc0 sc1')
    A('s_mov_b64 exec, -1')
    A.label(l)


def poll_issue(C, sync, tag):
    A = C.A
    flag_addr(C, 35, sync)
    A('s_mov_b64 exec, s[32:33]')
    C.vmem('buffer_load_dword v2, v0, s[8:11], s35 offen sc1', tag)
    A('s_mov_b64 exec, -1')


def poll_check(C, tag, endlab):
    A = C.A
    l1, l2, ld = C.lab('qa'), C.lab('qb'), C.lab('qd')
    C.wait(tag)
    A('s_mov_b64 exec, s[32:33]')
    A('s_mov_b32 s31, 0')
    A.label(l1)
    A('v_cmp_ne_u32 vcc, 0, v2')
    A('s_cmp_eq_u64 vcc, s[32:33]')
    A(f's_cbranch_scc1 {ld}')
    A('buffer_load_dword v2, v0, s[8:11], s35 offen sc1')
    A('s_add_u32 s31, s31, 1')
    A('s_waitcnt vmcnt(0)')
    A('s_cmp_lt_u32 s31, 64')
    A(f's_cbranch_scc1 {l1}')
    A.label(l2)
    A('buffer_load_dword v2, v0, s[8:11], s35 offen sc1')
    A('s_waitcnt vmcnt(0)')
    A('v_cmp_ne_u32 s[36:37], 0, v2')
    A('buffer_load_dword v2, v0, s[8:11], s35 offen offset:128 sc0 sc1')
    A('s_waitcnt vmcnt(0)')
    A('v_cmp_ne_u32 vcc, 0, v2')
    A('s_add_u32 s31, s31, 1')
    A('s_or_b64 vcc, vcc, s[36:37]')
    A('s_cmp_eq_u64 vcc, s[32:33]')
    A(f's_cbranch_scc1 {ld}')
    A('s_sleep 4')
    A(f's_cmp_lt_u32 s31, {1 << 20}')
    A(f's_cbranch_scc1 {l2}')
    A(f's_branch {endlab}')
    A.label(ld)
    A('s_mov_b64 exec, -1')


def gu2_pre(C):
    A = C.A
    A('v_mov_b32 v15, v113')
    A('v_mov_b32 v9, v114')
    A('s_lshl_b32 s30, s21, 2')
    A('s_add_u32 s30, s30, s29')
    A('s_lshl_b32 s30, s30, 15')
    A('s_lshr_b32 s31, s20, 1')
    A('s_lshl_b32 s31, s31, 11')
    A('s_add_u32 s30, s30, s31')
    A(f's_add_u32 s30, s30, {C.B["XB"]}')
    A('v_add_u32 v13, s30, v3')
    A('v_add_u32 v14, 0x10000, v13')
    A('s_lshl_b32 s48, s29, 15')
    A('s_add_u32 s48, s48, s31')
    A('v_add_u32 v7, 0x10000, v3')
    A('v_lshrrev_b32 v11, 5, v1')
    A('v_lshlrev_b32 v11, 4, v11')
    A('s_min_u32 s30, s20, 6')
    A('s_lshl_b32 s30, s30, 7')
    A(f's_add_u32 s30, s30, {132 * KB}')
    A('v_add_u32 v10, s30, v11')
    A('v_and_b32 v12, 31, v1')
    A('v_lshlrev_b32 v12, 3, v12')
    A('v_lshl_add_u32 v12, v11, 8, v12')
    A('s_lshl_b32 s30, s21, 15')
    A(f's_add_u32 s30, s30, {C.B["SXB"]}')
    A('v_add_u32 v12, s30, v12')
    A(f'v_add_u32 v8, {128 * KB}, v3')
    A(f's_mul_i32 s31, s20, {14 * KB}')
    A(f's_mul_i32 s30, s27, {112 * KB}')
    A('s_add_u32 s30, s30, s31')
    A(f's_add_u32 s30, s30, {C.B["HF"]}')
    A('v_add_u32 v5, s30, v3')
    A(f'v_add_u32 v6, {224 * KB}, v5')


def dn_slot(n):
    return 24 + 4 * n if n < 6 else 80 + 4 * ((n - 6) % 12)


def dn_xload(C, n):
    hh, st = divmod(n, 14)
    so, im = soff(st)
    C.vmem(f'buffer_load_dwordx4 {v(dn_slot(n), 4)}, {v(5 + hh)}, s[8:11], {so} offen offset:{im}', f'x{n}')


def gu2_main(C, sync1, endlab):
    A = C.A
    ACC, XF, CS = 16, 80, 112
    STR = [10, 10, ACC, ACC + 4]
    D = GU_D
    H = D // 2
    NSTEP = 32
    SE = 32 - H

    def dma(late, c):
        A(f's_add_u32 m0, s48, {late * 65536 + c * 8192}')
        so = '0' if c == 0 else s(40 + 2 * c)
        A('s_nop 0')
        for k in range(2):
            C.vmem(f'buffer_load_dwordx4 {"v14" if late else "v13"}, s[8:11], {so} offen offset:{k * 1024} lds', f'{"l" if late else "e"}{c}')
    dma(0, 0)
    dma(0, 1)

    def parts(st):
        if st < H:
            return [(0, 2 * st), (1, 2 * st), (0, 2 * st + 1), (1, 2 * st + 1)]
        if st < SE:
            return [(0, st + H), (1, st + H), (2, st - H), (3, st - H)]
        k = 32 - D + 2 * (st - SE)
        return [(2, k), (3, k), (2, k + 1), (3, k + 1)]

    def rd(st):
        for n, (i, ks) in enumerate(parts(st)):
            base = 'v3' if i < 2 else 'v7'
            C.ds(f'ds_read_b128 {v(XF + (st & 1) * 16 + n * 4, 4)}, {base} offset:{(i & 1) * 32768 + ks * 1024}', f'r{st}')

    def stats_load(i):
        for e in range(16):
            C.vmem(f'buffer_load_dwordx2 {v(ACC + (i & 1) * 32 + 2 * e, 2)}, v12, s[8:11], {"0" if i == 0 else s(40 + 2 * i)} offen offset:{e * 256}', f's{i}')

    def stats_sum(i):
        b = ACC + (i & 1) * 32
        C.wait(f's{i}')
        for stp in (16, 8, 4, 2):
            for e in range(stp):
                A(f'v_add_f32 {v(b + e)}, {v(b + e)}, {v(b + e + stp)}')
        A(f'v_mov_b32 {v(b + 2)}, {v(b)}')
        A(f'v_mov_b32 {v(b + 3)}, {v(b + 1)}')
        A('s_nop 1')
        A(f'v_permlane32_swap_b32 {v(b)}, {v(b + 2)}')
        A(f'v_permlane32_swap_b32 {v(b + 1)}, {v(b + 3)}')
        A(f'v_add_f32 {v(b)}, {v(b)}, {v(b + 2)}')
        A(f'v_add_f32 {v(b + 1)}, {v(b + 1)}, {v(b + 3)}')
        A(f'v_mul_f32 {v(b)}, {f32(-1.0 / 512)}, {v(b)}')
        A(f'v_mul_f32 {v(b + 1)}, {f32(1.0 / 512)}, {v(b + 1)}')
        A(f'v_fma_f32 {v(b + 1)}, -{v(b)}, {v(b)}, {v(b + 1)}')
        A(f'v_max_f32 {v(b + 1)}, 0, {v(b + 1)}')
        A(f'v_add_f32 {v(b + 1)}, {f32(1e-5)}, {v(b + 1)}')
        A(f'v_rcp_f32 {v(b + 2)}, {v(b + 1)}')
        A(f'v_mov_b32 {v(b + 1)}, {v(b)}')
        A(f'v_mov_b32 {v(b + 3)}, {v(b + 2)}')
        A(f'ds_write_b128 v8, {v(b, 4)} offset:{i * 1024}')
        A('s_waitcnt lgkmcnt(0)')

    def epi(i):
        acc = ACC + i * 16
        for r in range(0, 16, 2):
            A(f'v_pk_fma_f32 {v(acc + r, 2)}, {v(STR[i], 2)}, {v(CS + r, 2)}, {v(acc + r, 2)}')
        for r in range(0, 8, 2):
            A(f'v_pk_mul_f32 {v(acc + r, 2)}, {v(acc + r, 2)}, {v(acc + 8 + r, 2)}')
        for r in range(0, 8, 2):
            A(f'v_pk_mul_f32 {v(acc + r, 2)}, {v(acc + r, 2)}, {v(STR[i] + 2, 2)}')
        pp = acc + 8
        for m in range(4):
            A(f'v_cvt_pk_bf16_f32 {v(pp + m)}, {v(acc + 2 * m)}, {v(acc + 2 * m + 1)}')
        C.vmem(f'buffer_store_dwordx4 {v(pp, 4)}, v3, s[8:11], s39 offen{WT}', 'st')
        if i < 3:
            A(f's_add_u32 s39, s39, {112 * KB}')

    SF1 = SE + GU_SF1
    assert SE - 2 >= 15
    dorder = [(0, 2), (1, 0), (0, 3), (1, 1), (1, 2), (1, 3)]
    bars = {4: 'e1', 8: 'l0', 12: 'l3', min(20, SE - 2): None}
    if F1BAR:
        bars[SF1] = 'st'
    avail = {0: {'e0'}, 4: {'e0', 'e1'}, 8: {'e0', 'e1', 'l0', 'e2'}}
    for st in range(12):
        have = avail[st // 4 * 4]
        for i, ks in parts(st):
            assert ('l' if i >= 2 else 'e') + str(ks // 8) in have, (st, i, ks)

    def loop(idle):
        C.lds = []
        A(f's_mul_i32 s39, s21, {4 * 112}')
        A('s_add_u32 s39, s39, s40')
        A('s_lshl_b32 s39, s39, 10')
        A(f's_add_u32 s39, s39, {C.B["HF"]}')
        C.wait('e0')
        A('s_barrier')
        C.stamp()
        if not idle:
            rd(0)
        dq = list(dorder)
        wdone = 0
        for st in range(NSTEP):
            if st + 1 in bars:
                if bars[st + 1]:
                    C.wait(bars[st + 1])
                A('s_barrier')
                if F1BAR and st + 1 == SF1 and idle:
                    publish7(C, sync1)
            if not idle:
                if st + 1 < NSTEP:
                    rd(st + 1)
                if st == min(20, SE - 2):
                    for g in range(4):
                        C.ds(f'ds_read_b128 {v(CS + g * 4, 4)}, v10 offset:{g * 32}', 'cs')
                if st == SE - 1:
                    C.ds(f'ds_read_b128 {v(STR[0], 4)}, v8', 'sa')
                if st == SE + 3:
                    for i in range(2, 4):
                        C.ds(f'ds_read_b128 {v(STR[i], 4)}, v8 offset:{i * 1024}', 'sb')
                C.dwait(f'r{st}')
            if FINE == 5 and st in (8, 16, SE, SF1 - 1, SF1):
                C.stamp()
                C.lds = []
            todo = []
            if GU_PRIO and not idle and st in (12, SE + 2, SF1 + 1):
                A(f's_setprio {dict([(12, 3), (SE + 2, 2), (SF1 + 1, 0)])[st]}')
            if st == 10:
                C.flagb = True
                flag_b(C)
            if dq:
                todo.append(lambda x=dq.pop(0): dma(*x))
            freed = min([ks for i, ks in parts(st) if i >= 2] or [0])
            lim = 28 if idle and st >= 8 else min(28, freed)
            for _ in range(2):
                if wdone < lim:
                    todo.append(lambda k=wdone: g3_wload(C, (15, 9), k, 128))
                    wdone += 1
            for n, (i, ks) in enumerate(parts(st)):
                if not idle:
                    c = '0' if ks == 0 else v(ACC + i * 16, 16)
                    A(f'v_mfma_f32_32x32x16_bf16 {v(ACC + i * 16, 16)}, {v(128 + 4 * ks, 4)}, {v(XF + (st & 1) * 16 + n * 4, 4)}, {c}')
                if todo:
                    todo.pop(0)()
            assert not todo
            if not idle and st == SE:
                C.dwait('sa')
                A('s_nop 3')
                epi(0)
                C.ds(f'ds_read_b128 {v(STR[1], 4)}, v8 offset:1024', 'sa')
            if not idle and st == SE + 1:
                C.dwait('sa')
                epi(1)
            if not idle and st == SF1 and not F1BAR:
                C.wait('st')
                A('s_mov_b64 exec, 1')
                A(f'v_mov_b32 v14, {GCNT}')
                C.ds('ds_add_u32 v14, v4', 'ar')
                A('s_mov_b64 exec, -1')
            if idle and st == SF1 and not F1BAR:
                lsp, lsd = C.lab('sp'), C.lab('sd')
                A(f'v_mov_b32 v14, {GCNT}')
                A('s_mov_b32 s31, 0')
                A.label(lsp)
                A('ds_read_b32 v13, v14')
                A('s_add_u32 s31, s31, 1')
                A('s_waitcnt lgkmcnt(0)')
                A('v_cmp_eq_u32 vcc, 7, v13')
                A(f's_cbranch_vccnz {lsd}')
                A('s_sleep 1')
                A(f's_cmp_lt_u32 s31, {1 << 22}')
                A(f's_cbranch_scc1 {lsp}')
                A(f's_branch {endlab}')
                A.label(lsd)
                publish7(C, sync1)
            if st == NSTEP - 1 - GU_PO:
                A('s_lshl_b32 s30, s20, 1')
                A('s_lshl_b32 s32, 3, s30')
                poll_issue(C, sync1, 'f1')
            if idle:
                if st == 6:
                    A(f'v_mov_b32 {v(XF)}, 0')
                    A(f'v_mov_b32 {v(XF + 1)}, 0')
                    A(f'v_mov_b32 {v(XF + 2)}, {GCNT}')
                    A(f'ds_write_b64 {v(XF + 2)}, {v(XF, 2)}')
                    stats_load(0)
                    stats_load(1)
                if st == 9:
                    stats_sum(0)
                    A(f's_mul_i32 s30, s22, {7 * 128}')
                    A(f's_add_u32 s30, s30, {CSP}')
                    for kp in range(8):
                        C.vmem(f'buffer_load_dwordx4 {v(ACC + 4 * kp, 4)}, v3, s[8:11], s30 offen', 'cp')
                        if kp < 7:
                            A(f's_add_u32 s30, s30, {3584 * 4}')
                    stats_sum(1)
                    stats_load(3)
                if st == 13:
                    C.wait('cp')
                    for stp in (16, 8, 4):
                        for e in range(stp):
                            A(f'v_add_f32 {v(ACC + e)}, {v(ACC + e)}, {v(ACC + e + stp)}')
                    A(f'v_add_u32 v10, {132 * KB}, v3')
                    A(f'ds_write_b128 v10, {v(ACC, 4)}')
                    A('s_waitcnt lgkmcnt(0)')
                    stats_load(2)
                    stats_sum(3)
                    stats_sum(2)
        assert wdone == 28
        C.stamp()

        def prime():
            poll_check(C, 'f1', endlab)
            for n in range(6):
                dn_xload(C, n)
        if PRIME_LATE == 0:
            prime()
        if not idle:
            A('s_waitcnt lgkmcnt(0)')
            A('s_nop 11')
            epi(2)
        if PRIME_LATE == 1:
            prime()
        if not idle:
            epi(3)
        if PRIME_LATE == 2:
            prime()

    ls, le = C.lab('gs'), C.lab('ge')
    A('s_cmp_eq_u32 s20, 7')
    A(f's_cbranch_scc1 {ls}')
    save, ns = list(C.vm), C.nstamp
    loop(False)
    A(f's_branch {le}')
    A.label(ls)
    C.vm, C.nstamp = list(save), ns
    loop(True)
    A.label(le)
    C.vm = [f'x{n}' for n in range(6)]


def dn_main(C, mode, sync2, endlab, resbase, outbase=None, sxout=None, hook_red=None):
    A = C.A
    NS, EX, WR = 14, 252, 128
    AC = [48, 16]
    nxt = 6
    A(f's_add_u32 s31, s49, {resbase}')
    C.vmem(f'buffer_load_dwordx4 {v(EX, 4)}, v3, s[8:11], s31 offen', 'ex')
    A('s_lshl_b32 s30, s20, 11')
    A('v_add_u32 v8, s30, v3')
    A('v_add_u32 v7, 0x10000, v8')
    A('s_and_b32 s31, s20, 6')
    for c in range(4):
        A(f's_xor_b32 s30, s31, {c << 1}')
        A('s_lshl_b32 s30, s30, 11')
        A('s_lshl_b32 s34, s20, 14')
        A('s_add_u32 s30, s30, s34')
        A(f'v_add_u32 {v(9 + c)}, s30, v3')
    C.stamp()

    def wr(hh):
        out = []
        for c in (0, 2, 1, 3):
            base = AC[hh] + (c & 1) * 16 + (c >> 1) * 8
            out += [f'ds_write_b128 {v(9 + c)}, {v(base + h2 * 4, 4)} offset:{hh * 2048 + h2 * 1024}' for h2 in range(2)]
        return out
    pend = []
    for hh in range(2):
        for st in range(NS):
            n = hh * NS + st
            C.wait(f'x{n}')
            for jj in range(2):
                c = '0' if st == 0 else v(AC[hh] + jj * 16, 16)
                A(f'v_mfma_f32_32x32x16_bf16 {v(AC[hh] + jj * 16, 16)}, {v(WR + 4 * (2 * st + jj), 4)}, {v(dn_slot(n), 4)}, {c}')
                if hh == 1 and st >= 3 and pend:
                    A(pend.pop(0))
            if n == DN_AR and F2BAR:
                if PRIME_LATE < 2:
                    C.wait('ex')
                A('s_barrier')
                publish7(C, sync2)
            if n == DN_AR and not F2BAR:
                C.wait('ex')
                lh = C.lab('h7')
                A('s_cmp_eq_u32 s20, 7')
                A(f's_cbranch_scc1 {lh}')
                arrive(C, 1, sync2)
                A.label(lh)
            if FINE == 5 and n in (0, 1, 7, 8, 14):
                C.stamp()
            if n == DN_PI:
                poll_issue(C, sync2, 'f2')
            if nxt == NS:
                poll_check(C, 'f2', endlab)
            if nxt < 2 * NS:
                dn_xload(C, nxt)
                nxt += 1
            if hh == 1 and st == 2:
                A('s_nop 2' if F2BAR else 's_barrier')
        if hh == 0:
            pend = wr(0)
    assert not pend
    C.stamp()
    T = 80
    C.wait('ex')
    for m in range(4):
        A(f'v_lshlrev_b32 {v(T + 2 * m)}, 16, {v(EX + m)}')
        A(f'v_and_b32 {v(T + 2 * m + 1)}, 0xffff0000, {v(EX + m)}')
    A('s_nop 2')
    for x in wr(1):
        A(x)
    if hook_red:
        hook_red()
    A('s_waitcnt lgkmcnt(0)')
    A('s_barrier')
    for b in range(8):
        for h2 in range(2):
            base, off = ('v8', b * 16 * KB) if b < 4 else ('v7', (b - 4) * 16 * KB)
            A(f'ds_read_b128 {v(16 + b * 8 + h2 * 4, 4)}, {base} offset:{off + h2 * 1024}')
        if b == 6:
            A('s_waitcnt lgkmcnt(10)')
            for r in range(8):
                A(f'v_add_f32 {v(16 + r)}, {v(16 + r)}, {v(T + r)}')
    A('s_waitcnt lgkmcnt(0)')
    for stp in (32, 16, 8):
        for r in range(stp):
            A(f'v_add_f32 {v(16 + r)}, {v(16 + r)}, {v(16 + stp + r)}')
    P = 24
    for m in range(4):
        A(f'v_cvt_pk_bf16_f32 {v(P + m)}, {v(16 + 2 * m)}, {v(16 + 2 * m + 1)}')
    if mode == 'res':
        A(f's_add_u32 s31, s49, {outbase}')
        C.vmem(f'buffer_store_dwordx4 {v(P, 4)}, v3, s[8:11], s31 offen{WT}', 'st')
        blk_stats(C, P, T)
        A('s_lshr_b32 s31, s49, 2')
        A(f's_add_u32 s31, s31, {sxout}')
        A('v_lshlrev_b32 v4, 3, v1')
        A('s_mov_b32 exec_hi, 0')
        C.vmem(f'buffer_store_dwordx2 {v(T, 2)}, v4, s[8:11], s31 offen{WT}', 'st')
        A('s_mov_b64 exec, -1')
    else:
        A('v_and_b32 v4, 31, v1')
        A('v_lshlrev_b32 v4, 10, v4')
        A('v_lshrrev_b32 v5, 5, v1')
        A('v_lshl_add_u32 v4, v5, 4, v4')
        A('s_and_b32 s30, s49, 0xffff8000')
        A('s_and_b32 s31, s49, 0x7fff')
        A('s_lshr_b32 s31, s31, 5')
        A('s_add_u32 s30, s30, s31')
        A(f'v_permlane32_swap_b32 {v(P)}, {v(P + 2)}')
        A(f'v_permlane32_swap_b32 {v(P + 1)}, {v(P + 3)}')
        C.vmem(f'buffer_store_dwordx4 {v(P, 4)}, v4, s[12:15], s30 offen', 'st')


def swap_add(A, ra, rb):
    A(f'v_permlane32_swap_b32 {v(ra)}, {v(rb)}')
    A(f'v_add_f32 {v(ra)}, {v(ra)}, {v(rb)}')


def pre_part(C, end):
    A = C.A
    A('s_cmp_ge_u32 s2, 256')
    A(f's_cbranch_scc1 {end}')
    A('s_load_dwordx2 s[12:13], s[0:1], 0')
    A('s_load_dwordx2 s[16:17], s[0:1], 8')
    A('s_load_dwordx2 s[52:53], s[0:1], 16')
    A('s_load_dwordx2 s[56:57], s[0:1], 24')
    A('s_load_dwordx2 s[4:5], s[0:1], 80')
    for d, sz in ((12, 2048 * 1024), (16, 512 * 1024), (52, 512 * 32), (56, 512 * 32), (4, 256)):
        A(f's_mov_b32 {s(d + 2)}, {sz}')
        A(f's_mov_b32 {s(d + 3)}, 0x20000')
    setup(C, False, end)
    C.stamp()
    if TLBW:
        A('s_lshl_b32 s30, s20, 3')
        A(f's_add_u32 s30, s30, 32')
        A('s_cmp_eq_u32 s20, 1')
        A('s_cselect_b32 s30, 8, s30')
        A('s_load_dwordx2 s[32:33], s[0:1], s30')
        A('s_mov_b32 s31, 8192')
        A('s_cmp_ge_u32 s20, 2')
        A('s_cselect_b32 s31, 28672, s31')
        A('s_cmp_eq_u32 s20, 6')
        A('s_cselect_b32 s31, 4, s31')
        A('s_cmp_eq_u32 s20, 7')
        A(f's_cselect_b32 s31, {TLBW}, s31')
        A('v_mul_lo_u32 v4, v1, s31')
        A('s_waitcnt lgkmcnt(0)')
        A('global_load_dword v127, v4, s[32:33]')
    A('s_add_u32 s30, s21, 1')
    A('s_and_b32 s30, s30, 3')
    A('s_lshl_b32 s30, s30, 2')
    A('s_xor_b32 s30, s30, s22')
    A('s_add_u32 s30, s30, s20')
    A('s_cmp_lg_u32 s30, 0')
    A('s_cbranch_scc1 pr_z0')
    for r in range(4):
        A(f'v_mov_b32 {v(8 + r)}, 0')
    A('v_lshrrev_b32 v4, 4, v1')
    A('v_and_b32 v5, 15, v1')
    A('v_lshlrev_b32 v5, 4, v5')
    A('v_lshl_add_u32 v4, v4, 12, v5')
    A('s_lshl_b32 s30, s21, 8')
    A(f's_add_u32 s30, s30, {FLG}')
    for k in range(3):
        A('buffer_store_dwordx4 v[8:11], v4, s[8:11], s30 offen sc0 sc1')
        A('s_add_u32 s30, s30, 16384')
    A('v_lshlrev_b32 v4, 7, v1')
    A(f's_mul_i32 s30, s21, {64 * 128}')
    A(f's_add_u32 s30, s30, {PFL}')
    A('buffer_store_dwordx4 v[8:11], v4, s[8:11], s30 offen sc0 sc1')
    A('v_mov_b32 v5, 1')
    A('s_mov_b64 exec, 1')
    A('s_waitcnt vmcnt(0)')
    A('buffer_atomic_add v5, v8, s[4:7], 0 offen sc1')
    A('s_mov_b64 exec, -1')
    A('s_nop 1')
    A.label('pr_z0')
    KST, KW, KR, T, EX, XR = 240, 192, 224, 108, 96, 32
    WST, CSQ, CSKV = 96 * KB, ST4 + 9 * KB, ST4 + 10 * KB
    A('s_mov_b64 s[36:37], s[16:17]')
    A(f's_mov_b32 s38, {512 * 1024}')
    A('s_mov_b32 s39, 0x20000')
    g4_ids(C)
    A('s_lshl_b32 s30, s20, 11')
    A('s_cmp_lg_u32 s3, 0')
    A('s_cbranch_scc1 pr_k0')
    for k in range(4):
        A(f'buffer_load_dwordx4 {v(KST + 4 * k, 4)}, v3, {"s[52:55]" if k < 2 else "s[56:59]"}, s30 offen offset:{(k & 1) * 1024}')
    A.label('pr_k0')
    A('v_lshrrev_b32 v4, 3, v1')
    A('v_and_b32 v5, 7, v1')
    A('v_lshrrev_b32 v6, 4, v1')
    A('v_xor_b32 v6, v6, v5')
    A('v_lshlrev_b32 v7, 10, v4')
    A('v_lshl_add_u32 v8, v6, 4, v7')
    A('v_xor_b32 v9, 64, v8')
    A('s_lshl_b32 s30, s18, 15')
    A('s_lshl_b32 s31, s20, 7')
    A('s_add_u32 s30, s30, s31')
    A('s_lshl_b32 s32, s20, 12')
    for i in range(4):
        A(f's_add_u32 m0, s32, {KVR4 + i * 1024}')
        A('s_nop 0')
        C.vmem(f'buffer_load_dwordx4 {v(8 + (i & 1))}, s[12:15], s30 offen lds', 'x')
        A('s_add_u32 s30, s30, 8192')
    A('v_lshrrev_b32 v4, 2, v1')
    A('v_and_b32 v5, 3, v1')
    A('v_lshlrev_b32 v10, 10, v4')
    A('v_lshl_add_u32 v10, v5, 4, v10')
    A('s_lshl_b32 s31, s26, 18')
    A('s_bfe_u32 s30, s19, 0x4000b')
    A('s_lshl_b32 s30, s30, 6')
    A('s_add_u32 s31, s31, s30')
    A('s_lshl_b32 s51, s20, 13')
    A(f's_add_u32 s51, s51, {WST}')
    A('s_mov_b32 s50, s31')
    A('v_mov_b32 v88, v10')
    A('s_and_b32 s33, s22, 3')
    A(f's_lshl_b32 s33, s33, 16' if WROT else 's_mov_b32 s33, 0')

    def wloads():
        for i in range(16):
            A(f's_xor_b32 s30, s33, {G4_ORD[i] * 16384}')
            A('s_add_u32 s30, s30, s50')
            if i < 8:
                A(f's_add_u32 m0, s51, {i * 1024}')
                A('s_nop 0')
                A('buffer_load_dwordx4 v88, s[36:39], s30 offen lds')
            else:
                A(f'buffer_load_dwordx4 {v(128 + 4 * i, 4)}, v88, s[36:39], s30 offen')
    A('s_cmp_eq_u32 s3, 0')
    A('s_cbranch_scc1 pr_w1')
    A('s_barrier')
    wloads()
    A('s_waitcnt vmcnt(16)')
    A.label('pr_w1')
    C.stamp()
    A('v_and_b32 v64, 31, v1')
    A('v_lshrrev_b32 v65, 5, v1')
    A('v_lshlrev_b32 v66, 7, v64')
    A('v_lshl_add_u32 v66, v65, 3, v66')
    A('v_bfe_u32 v67, v1, 1, 3')
    A('v_lshl_add_u32 v66, v67, 4, v66')
    A(f's_add_u32 s30, s32, {KVR4}')
    A('v_add_u32 v66, s30, v66')
    A('v_bfe_u32 v67, v1, 2, 2')
    A('v_lshl_add_u32 v67, v65, 2, v67')
    A('v_lshlrev_b32 v68, 3, v5')
    A('v_bfe_u32 v69, v1, 4, 1')
    A('v_lshl_add_u32 v70, v67, 5, v68')
    A('v_lshl_add_u32 v70, v69, 11, v70')
    A('v_add_u32 v70, s30, v70')
    A('v_lshl_add_u32 v71, v67, 6, v68')
    A('v_lshl_add_u32 v71, v69, 5, v71')
    A('s_lshl_b32 s30, s26, 5')
    A('v_xor_b32 v71, s30, v71')
    A('v_add_u32 v71, s51, v71')
    A('v_add_u32 v72, s51, v3')
    A('v_mov_b32 v73, 0x3f803f80')
    A('v_lshlrev_b32 v74, 2, v64')
    A('s_lshl_b32 s30, s20, 7')
    A(f's_add_u32 s31, s30, {CSKV}')
    A('v_add_u32 v75, s31, v74')
    A('s_lshl_b32 s31, s26, 6')
    A('v_xor_b32 v74, s31, v74')
    A(f's_add_u32 s30, s30, {CSQ}')
    A('v_add_u32 v74, s30, v74')
    A('v_lshlrev_b32 v76, 4, v65')
    A('s_add_u32 s30, s30, s31')
    A('v_add_u32 v77, s30, v76')
    A('v_xor_b32 v78, 512, v77')
    A('s_lshl_b32 s30, s25, 5')
    A(f's_add_u32 s30, s30, {CSKV}')
    A('v_add_u32 v79, s30, v76')
    g4_pre(C, 'qkv', XA, resbase=0, raw=True)
    A('s_lshr_b32 s30, s33, 4')
    A('s_lshl_b32 s31, s20, 12')
    A('s_xor_b32 s30, s30, s31')
    A(f's_add_u32 s30, s30, {XF0}')
    A('v_add_u32 v12, s30, v3')
    A('v_mov_b32 v0, 0')
    A('v_mov_b32 v4, 1')
    for ch in range(8):
        A(f'v_xor_b32 {v(80 + ch)}, {ch << 4}, v66')

    def front():
        A('s_cmp_lg_u32 s3, 0')
        A('s_cbranch_scc1 pr_w2')
        A('s_waitcnt vmcnt(0)')
        A.label('pr_w2')
        C.vm = []
        C.stamp()
        for ch in range(8):
            A(f'ds_read_b64 {v(KR + 2 * ch, 2)}, {v(80 + ch)}')
        A('s_waitcnt lgkmcnt(0)')
        for k in range(4):
            A(f'ds_write_b128 v12, {v(KR + 4 * k, 4)} offset:{k * 1024}')
        for r in range(8):
            for e in range(2):
                x = v(KR + 2 * r + e)
                A(f'v_dot2_f32_bf16 {v(T + 2 * e)}, {x}, v73, {"0" if r == 0 else v(T + 2 * e)}')
                A(f'v_dot2_f32_bf16 {v(T + 2 * e + 1)}, {x}, {x}, {"0" if r == 0 else v(T + 2 * e + 1)}')
        A('s_nop 0')

    def kvw():
        for k in range(4):
            A(f'ds_write_b128 v14, {v(KST + 4 * k, 4)} offset:{k * 1024}')
        A('s_waitcnt lgkmcnt(4)')
        for st in range(4):
            for h2 in range(2):
                A(f'ds_read_b64_tr_b16 {v(KW + 4 * st + 2 * h2, 2)}, v70 offset:{st * 512 + h2 * 256}')
        A('s_waitcnt lgkmcnt(0)')
        for r in range(8):
            for e in range(2):
                A(f'v_dot2_f32_bf16 {v(80 + e)}, {v(KW + 2 * r + e)}, v73, {"0" if r == 0 else v(80 + e)}')
        A('s_nop 2')
        A('v_add_f32 v80, v80, v81')
        A('v_mov_b32 v81, v80')
        A('s_nop 1')
        swap_add(A, 80, 81)
        A('ds_write_b32 v75, v80')

    def kvcs0():
        for ww in range(8):
            A(f'ds_read_b128 {v(XR + 4 * ww, 4)}, v79 offset:{ww * 128}')

    def kvcs1():
        A('s_waitcnt lgkmcnt(0)')
        for stp in (16, 8):
            for r in range(stp):
                A(f'v_add_f32 {v(XR + r)}, {v(XR + r)}, {v(XR + stp + r)}')
        for r in range(4):
            A(f'v_add_f32 {v(EX + 8 + r)}, {v(XR + r)}, {v(XR + 4 + r)}')

    def zchk():
        lz, lzd = C.lab('z'), C.lab('zd')
        A('s_mov_b32 s31, 0')
        A('s_mov_b64 exec, 1')
        A.label(lz)
        A('buffer_load_dword v2, v0, s[4:7], 0 offen sc1')
        A('s_waitcnt vmcnt(0)')
        A('v_cmp_le_u32 vcc, 16, v2')
        A('s_add_u32 s31, s31, 1')
        A('s_cmp_eq_u64 vcc, 1')
        A(f's_cbranch_scc1 {lzd}')
        A('s_sleep 8')
        A(f's_cmp_lt_u32 s31, {1 << 20}')
        A(f's_cbranch_scc1 {lz}')
        A(f's_branch {end}')
        A.label(lzd)
        A('s_mov_b64 exec, -1')

    def wprep():
        A('s_cmp_lg_u32 s3, 0')
        A('s_cbranch_scc1 pr_w3')
        wloads()
        A.label('pr_w3')
        zchk()
        C.vm = []
        C.stamp()


    def tr(i):
        for h2 in range(2):
            A(f'ds_read_b64_tr_b16 {v(128 + 4 * i + 2 * h2, 2)}, v71 offset:{(i % 8) * 1024 + h2 * 512}')

    def csdot(r0, r1):
        for r in range(r0, r1):
            for e in range(4):
                A(f'v_dot2_f32_bf16 {v(80 + e)}, {v(128 + 4 * r + e)}, v73, {"0" if r == 0 else v(80 + e)}')

    def loop(rd, mf):
        for i in range(8):
            tr(i)
            if i == 5:
                A('s_waitcnt lgkmcnt(6)')
        ln_stats(A, T)
        A('s_waitcnt lgkmcnt(0)')
        for i in range(4):
            rd(i)
        for i in range(8):
            A(f'ds_write_b128 v72, {v(160 + 4 * i, 4)} offset:{i * 1024}')
        csdot(0, 8)
        A('s_waitcnt lgkmcnt(0)')
        for i in range(4, 8):
            rd(i)
        for i in range(8):
            if i == 4:
                A('s_waitcnt lgkmcnt(8)')
            mf(i)
            if i < 4:
                tr(8 + i)
            else:
                A('s_waitcnt lgkmcnt(9)')
                tr(8 + i)
                rd(4 + i)
        for i in range(8, 16):
            if i == 8:
                A('s_waitcnt lgkmcnt(9)')
            elif i < 12:
                A(f's_waitcnt lgkmcnt({9 - 2 * (i - 8)})')
            else:
                A(f's_waitcnt lgkmcnt({15 - i})')
            mf(i)
            if i < 12:
                rd(4 + i)

    def cs0():
        csdot(8, 16)
        A('s_nop 2')
        A('v_add_f32 v80, v80, v81')
        A('v_add_f32 v82, v82, v83')
        A('v_add_f32 v80, v80, v82')
        A('v_mov_b32 v81, v80')
        A('s_nop 1')
        swap_add(A, 80, 81)
        A('ds_write_b32 v74, v80')

    def cs():
        for h2 in range(2):
            A(f'ds_read_b128 {v(EX + 4 * h2, 4)}, v77 offset:{h2 * 32}')
            A(f'ds_read_b128 {v(XR + 4 * h2, 4)}, v78 offset:{h2 * 32}')
        A('s_waitcnt lgkmcnt(0)')
        for r in range(8):
            A(f'v_add_f32 {v(EX + r)}, {v(EX + r)}, {v(XR + r)}')
        for r in range(12):
            A(f'v_mov_b32 {v(208 + r)}, {v(EX + r)}')

    g4_main(C, 'qkv', kvf=KVF, kfl=KFL, raw=dict(front=front, kvw=kvw, kvcs0=kvcs0, kvcs1=kvcs1, zchk=zchk, wprep=wprep, cs=cs, cs0=cs0, loop=loop), endlab=end)
    C.stamp()


def wq_store(C):
    A = C.A
    A('s_and_b32 s30, s18, 0x33')
    A('s_cmp_lg_u32 s30, 0')
    A('s_cbranch_scc1 pr_w0')
    g4_waddr(C, 112, WQKVP)
    for q4 in (3, 2, 1, 0):
        if q4:
            A(f's_cmp_lg_u32 s21, {q4}')
            A(f's_cbranch_scc1 pr_ws{q4}')
        for i in range(4 * q4, 4 * q4 + 4):
            so, im = soff(G4_ORD[i])
            A(f'buffer_store_dwordx4 {v(128 + 4 * i, 4)}, v112, s[8:11], {so} offen offset:{im} sc0 sc1')
        if q4:
            A('s_branch pr_w0')
            A.label(f'pr_ws{q4}')
    A('v_lshrrev_b32 v113, 5, v1')
    A('v_lshlrev_b32 v113, 4, v113')
    A('s_lshr_b32 s31, s19, 4')
    A(f's_add_u32 s31, s31, {CSQKV}')
    A('s_mov_b32 exec_lo, 1')
    A('s_mov_b32 exec_hi, 1')
    A('buffer_store_dwordx4 v[208:211], v113, s[8:11], s31 offen sc0 sc1')
    A('buffer_store_dwordx4 v[212:215], v113, s[8:11], s31 offen offset:32 sc0 sc1')
    A('s_mov_b64 exec, -1')
    A('s_cmp_lg_u32 s22, 0')
    A('s_cbranch_scc1 pr_w0')
    A('s_lshl_b32 s30, s20, 12')
    A(f's_add_u32 s30, s30, {WQKVP + 16 * 32 * KB}')
    for k in range(4):
        A(f'buffer_store_dwordx4 {v(192 + 4 * k, 4)}, v3, s[8:11], s30 offen offset:{k * 1024} sc0 sc1')
    A('s_cmp_ge_u32 s20, 4')
    A('s_cbranch_scc1 pr_w0')
    A('s_lshl_b32 s31, s20, 5')
    A(f's_add_u32 s31, s31, {CSQKV + 2048}')
    A('s_mov_b32 exec_lo, 1')
    A('s_mov_b32 exec_hi, 1')
    A('buffer_store_dwordx4 v[216:219], v113, s[8:11], s31 offen sc0 sc1')
    A('s_mov_b64 exec, -1')
    A.label('pr_w0')


def pack_ptrs(A):
    A('s_load_dwordx2 s[4:5], s[0:1], 32')
    A('s_load_dwordx4 s[52:55], s[0:1], 48')
    A('s_load_dwordx2 s[16:17], s[0:1], 64')


def pack_issue(C):
    A = C.A
    A('s_mul_i32 s30, s2, 3')
    A('s_add_u32 s30, s30, s20')
    A('s_mov_b32 s58, s30')
    A('s_cmp_lt_u32 s20, 3')
    A('s_cselect_b32 s57, 1, 0')
    A('s_cmp_lt_u32 s30, 736')
    A('s_cselect_b32 s57, s57, 0')
    A('s_cmp_eq_u32 s57, 0')
    A('s_cselect_b32 s30, 0, s30')
    A('s_cmp_lt_u32 s30, 64')
    A('s_cbranch_scc1 pk_jwo')
    A('s_cmp_lt_u32 s30, 512')
    A('s_cbranch_scc1 pk_jgu')
    A('s_sub_u32 s30, s30, 512')
    A('s_mov_b64 s[4:5], s[16:17]')
    A(f's_mov_b32 s6, {1792 * 1024}')
    A('s_mov_b32 s50, 1024')
    A('s_and_b32 s31, s30, 7')
    A('s_lshr_b32 s30, s30, 3')
    A('s_lshl_b32 s51, s30, 16')
    A('s_lshl_b32 s56, s31, 7')
    A('s_add_u32 s51, s51, s56')
    A(f's_mul_i32 s56, s31, {2 * 112 * KB}')
    A('s_lshl_b32 s30, s30, 12')
    A('s_add_u32 s56, s56, s30')
    A(f's_add_u32 s56, s56, {WDP}')
    A(f's_mov_b32 s52, {112 * KB}')
    A('s_mov_b32 s53, 256')
    A(f's_mov_b32 s54, {G1.CSDUMMY}')
    A('s_branch pk_jgo')
    A.label('pk_jwo')
    A(f's_mov_b32 s6, {512 * 1024}')
    A('s_mov_b32 s50, 1024')
    A('s_lshr_b32 s31, s30, 3')
    A('s_and_b32 s30, s30, 7')
    A('s_lshl_b32 s51, s30, 16')
    A('s_lshl_b32 s56, s31, 7')
    A('s_add_u32 s51, s51, s56')
    A('s_lshl_b32 s56, s31, 16')
    A('s_lshl_b32 s30, s30, 12')
    A('s_add_u32 s56, s56, s30')
    A(f's_add_u32 s56, s56, {WOP}')
    A(f's_mov_b32 s52, {32 * KB}')
    A('s_mov_b32 s53, 256')
    A(f's_mov_b32 s54, {G1.CSDUMMY}')
    A('s_branch pk_jgo')
    A.label('pk_jgu')
    A('s_sub_u32 s30, s30, 64')
    A('s_cmp_ge_u32 s30, 224')
    A('s_cselect_b32 s4, s54, s52')
    A('s_cselect_b32 s5, s55, s53')
    A('s_cselect_b32 s16, 1, 0')
    A('s_cselect_b32 s31, 224, 0')
    A('s_sub_u32 s30, s30, s31')
    A(f's_mov_b32 s6, {512 * 3584}')
    A('s_mov_b32 s50, 3584')
    A('s_lshr_b32 s31, s30, 3')
    A('s_and_b32 s30, s30, 7')
    A(f's_mul_i32 s51, s30, {64 * 3584}')
    A('s_lshl_b32 s56, s31, 7')
    A('s_add_u32 s51, s51, s56')
    A('s_lshl_b32 s56, s31, 17')
    A('s_lshl_b32 s17, s30, 12')
    A('s_add_u32 s56, s56, s17')
    A('s_lshl_b32 s17, s16, 8')
    A('s_add_u32 s56, s56, s17')
    A(f's_add_u32 s56, s56, {WGUP}')
    A(f's_mov_b32 s52, {64 * KB}')
    A(f's_mov_b32 s53, {32 * KB}')
    A(f's_mul_i32 s54, s30, {3584 * 4}')
    A('s_lshl_b32 s17, s31, 9')
    A('s_add_u32 s54, s54, s17')
    A('s_lshl_b32 s17, s16, 6')
    A('s_add_u32 s54, s54, s17')
    A(f's_add_u32 s54, s54, {CSP}')
    A.label('pk_jgo')
    A('v_lshrrev_b32 v112, 3, v1')
    A('v_and_b32 v113, 7, v1')
    A('v_mul_lo_u32 v112, v112, s50')
    A('v_lshl_add_u32 v112, v113, 4, v112')
    A('s_lshl_b32 s50, s50, 3')
    A('s_min_u32 s59, s20, 2')
    A('s_lshl_b32 s59, s59, 13')
    A(f's_add_u32 s59, s59, {136 * KB}')
    A('s_cmp_eq_u32 s57, 0')
    A('s_cbranch_scc1 pk_i_end')
    for i in range(8):
        A(f's_add_u32 m0, s59, {i * 1024}')
        A('s_nop 0')
        A('buffer_load_dwordx4 v112, s[4:7], s51 offen lds')
        A('s_add_u32 s51, s51, s50')
    A.label('pk_i_end')


def pack_convert(C):
    A = C.A
    A('s_cmp_eq_u32 s57, 0')
    A('s_cbranch_scc1 pk_c_end')
    A('v_lshrrev_b32 v112, 5, v1')
    A('v_bfe_u32 v113, v1, 2, 2')
    A('v_lshl_add_u32 v113, v112, 2, v113')
    A('v_and_b32 v114, 3, v1')
    A('v_lshlrev_b32 v114, 3, v114')
    A('v_lshl_add_u32 v113, v113, 7, v114')
    A('v_bfe_u32 v114, v1, 4, 1')
    A('v_lshl_add_u32 v113, v114, 5, v113')
    A('v_add_u32 v113, s59, v113')
    A('v_mul_lo_u32 v114, v114, s53')
    A('v_and_b32 v115, 15, v1')
    A('v_lshl_add_u32 v114, v115, 4, v114')
    A('v_lshl_add_u32 v114, v112, 9, v114')
    A('v_lshrrev_b32 v112, 4, v1')
    A('v_lshlrev_b32 v112, 7, v112')
    A('v_lshl_add_u32 v112, v115, 2, v112')
    A('v_mov_b32 v115, 0x3f803f80')
    A('s_add_u32 s52, s52, s56')
    A('s_waitcnt vmcnt(0)')
    for jj in range(2):
        for st in range(4):
            for h2 in range(2):
                A(f'ds_read_b64_tr_b16 {v(128 + 4 * (4 * jj + st) + 2 * h2, 2)}, v113 offset:{st * 2048 + h2 * 1024 + jj * 64}')
        A('s_waitcnt lgkmcnt(0)')
        for st in range(4):
            A(f'buffer_store_dwordx4 {v(128 + 4 * (4 * jj + st), 4)}, v114, s[8:11], {"s56" if jj == 0 else "s52"} offen offset:{st * 1024} sc0 sc1')
    A('s_cmp_eq_u32 s53, 256')
    A('s_cbranch_scc1 pk_c_end')
    for r in range(16):
        for jj in range(2):
            A(f'v_dot2_f32_bf16 {v(116 + jj)}, {v(128 + 16 * jj + r)}, v115, {"0" if r == 0 else v(116 + jj)}')
    A('s_nop 2')
    swap_add(A, 116, 117)
    A('buffer_store_dword v116, v112, s[8:11], s54 offen sc0 sc1')
    A.label('pk_c_end')


def pack_flag(C):
    A = C.A
    A('v_mov_b32 v112, 0')
    A('v_mov_b32 v113, 1')
    A('s_cmp_eq_u32 s57, 0')
    A('s_cbranch_scc1 pk_f_1')
    A('s_lshl_b32 s30, s58, 7')
    A(f's_add_u32 s30, s30, {PFL}')
    A('s_waitcnt vmcnt(0)')
    A('s_mov_b64 exec, 1')
    A('buffer_store_dword v113, v112, s[8:11], s30 offen sc0 sc1')
    A('s_mov_b64 exec, -1')
    A.label('pk_f_1')
    A('s_and_b32 s30, s18, 0x33')
    A('s_cmp_lg_u32 s30, 0')
    A('s_cbranch_scc1 pk_f_end')
    A('s_lshl_b32 s30, s22, 1')
    A('s_add_u32 s30, s30, s20')
    A('s_lshl_b32 s31, s21, 5')
    A('s_add_u32 s30, s30, s31')
    A('s_lshl_b32 s30, s30, 7')
    A(f's_add_u32 s30, s30, {PFL + 768 * 128}')
    A('s_waitcnt vmcnt(0)')
    A('s_mov_b64 exec, 1')
    A('buffer_store_dword v113, v112, s[8:11], s30 offen sc0 sc1')
    A('s_mov_b64 exec, -1')
    A.label('pk_f_end')


def pack_poll(C, endlab):
    A = C.A
    A('s_mul_i32 s30, s22, 7')
    A('s_lshr_b32 s30, s30, 2')
    A('v_lshrrev_b32 v112, 4, v1')
    A('v_add_u32 v112, s30, v112')
    A('v_min_u32 v112, 27, v112')
    A('v_and_b32 v113, 7, v1')
    A('v_lshl_add_u32 v112, v112, 3, v113')
    A('v_bfe_u32 v114, v1, 3, 1')
    A('v_mul_u32_u24 v114, 224, v114')
    A('v_add3_u32 v112, v112, v114, 64')
    A('s_mul_i32 s30, s20, 7')
    A('s_lshr_b32 s30, s30, 1')
    A('v_min_u32 v114, 4, v113')
    A('v_add_u32 v114, s30, v114')
    A('v_min_u32 v114, 27, v114')
    A('s_add_u32 s30, s24, 512')
    A('v_lshl_add_u32 v114, v114, 3, s30')
    A('v_cmp_le_u32 vcc, 48, v1')
    A('s_lshl_b32 s30, s24, 3')
    A('s_add_u32 s30, s30, s20')
    A('v_cndmask_b32 v112, v112, v114, vcc')
    A('v_mov_b32 v114, s30')
    A('v_cmp_le_u32 vcc, 56, v1')
    A('s_add_u32 s31, s20, 768')
    A('s_and_b32 s30, s22, 12')
    A('s_lshl_b32 s30, s30, 1')
    A('s_add_u32 s30, s30, s31')
    A('v_cndmask_b32 v112, v112, v114, vcc')
    for q4 in range(4):
        A(f'v_writelane_b32 v112, s30, {59 + q4}')
        A('s_add_u32 s30, s30, 32')
    A('v_writelane_b32 v112, s31, 63')
    A(f's_mov_b32 s30, {PFL}')
    A('s_mov_b32 s31, 0')
    A('v_lshlrev_b32 v112, 7, v112')
    A('s_bfe_u32 s32, s19, 0x3000c')
    A('s_lshl_b32 s32, s32, 3')
    A('s_lshl_b32 s33, s26, 2')
    A('s_add_u32 s32, s32, s33')
    A('v_and_b32 v114, 3, v1')
    A('v_add_u32 v114, s32, v114')
    A('v_lshlrev_b32 v114, 7, v114')
    A('buffer_load_dword v113, v112, s[8:11], s30 offen sc1')
    A('buffer_load_dword v115, v114, s[8:11], s30 offen sc1')


def pack_poll2(C, endlab):
    A = C.A
    A(f's_mov_b32 s30, {PFL}')
    A('s_mov_b32 s31, 0')
    A.label('pk_p')
    A('s_waitcnt vmcnt(0)')
    A('v_and_b32 v113, v113, v115')
    A('v_cmp_eq_u32 vcc, 1, v113')
    A('s_add_u32 s31, s31, 1')
    A('s_cmp_eq_u64 vcc, -1')
    A('s_cbranch_scc1 pk_pd')
    A('s_sleep 16')
    A('buffer_load_dword v113, v112, s[8:11], s30 offen sc1')
    A('buffer_load_dword v115, v114, s[8:11], s30 offen sc1')
    A(f's_cmp_lt_u32 s31, {1 << 19}')
    A('s_cbranch_scc1 pk_p')
    A(f's_branch {endlab}')
    A.label('pk_pd')
    C.vm = []


def layer_part(C, layer, end):
    A = C.A
    C.tag = f'l{layer}'
    last = layer == 1
    xin = None if layer == 0 else XC
    kvf = KVF if layer == 0 else KVF2
    kfl = KFL + layer * 64 * 128
    sy = 5 * layer + 1
    C.B = dict(QF=QF, OF=OF, XB=XB, SXB=SXB, HF=HF) if layer == 0 else dict(QF=QF2, OF=OF2, XB=XB2, SXB=SXB2, HF=HF2)
    B = C.B

    def pre_addr():
        gu_waddr(C)
        g3_waddr(C, (113, 114), 112, WDP)
        g4_waddr(C, 116, WOP)

    stubs = [lambda: (pre_addr(), gu_wload(C, 0))]
    stubs += [lambda ks=ks: gu_wload(C, ks) for ks in range(1, 24)]
    stubs += [lambda i=i: g4_wload(C, 116, i, 'res') for i in range(8)]
    if TOUCH2:
        def touch2():
            A('s_and_b32 s30, s18, 7')
            A('s_lshr_b32 s31, s30, 1')
            A('s_lshl_b32 s31, s31, 2')
            A('s_and_b32 s30, s30, 1')
            A('s_add_u32 s30, s30, s31')
            A('s_lshl_b32 s30, s30, 10')
            C.vmem('buffer_load_dwordx4 v[120:123], v116, s[8:11], s30 offen offset:2048', 'tc')
            if layer == 0:
                A(f's_add_u32 s30, s30, {WQKVP - WOP + (1 << 32) if WQKVP < WOP else WQKVP - WOP}')
                A('v_add_u32 v117, s30, v116')
                C.vmem('buffer_load_dwordx4 v[120:123], v117, s[8:11], 0 offen', 'tc')
                C.vmem('buffer_load_dwordx4 v[120:123], v117, s[8:11], 0 offen offset:2048', 'tc')
        stubs += [touch2]
    if TOUCH3 & 1:
        def t3a(k):
            if k == 0:
                A('s_and_b32 s30, s21, 1')
                A('s_lshl_b32 s30, s30, 12')
                A(f's_add_u32 s30, s30, {24 * KB}')
                A(f'v_add_u32 v118, s30, {v(V_WGU)}')
            C.vmem(f'buffer_load_dwordx4 v[120:123], v118, s[8:11], 0 offen offset:{k * 1024}', 'tc')
        stubs += [lambda k=k: t3a(k) for k in range(4)]
    if TOUCH3 & 2:
        def t3b(k):
            if k == 0:
                A('s_and_b32 s30, s21, 1')
                A(f's_mul_i32 s30, s30, {7 * KB}')
                A('s_cmp_eq_u32 s23, 0')
                A('s_cselect_b64 vcc, -1, 0')
                A('v_cndmask_b32 v119, v114, v113, vcc')
                A('v_add_u32 v119, s30, v119')
            so, im = soff(k)
            C.vmem(f'buffer_load_dwordx4 v[120:123], v119, s[8:11], {so} offen offset:{im}', 'tc')
        stubs += [lambda k=k: t3b(k) for k in range(7)]
    if TOUCH and layer == 1:
        def t_addr():
            A('s_lshr_b32 s30, s2, 3')
            A('s_lshl_b32 s30, s30, 3')
            A('s_add_u32 s30, s30, s20')
            A(f's_mul_i32 s31, s30, {7 * KB}')
            A(f's_add_u32 s31, s31, {WDP}')
            A('v_add_u32 v118, s31, v3')
            A('s_lshl_b32 s31, s30, 11')
            A(f's_add_u32 s31, s31, {WQKVP}')
            A('v_add_u32 v119, s31, v3')

        def tch(vr, k):
            so, im = soff(k)
            C.vmem(f'buffer_load_dwordx4 v[120:123], {v(vr)}, s[8:11], {so} offen offset:{im}', 'tc')
        stubs += [lambda: (t_addr(), tch(V_WGU, 24))]
        stubs += [lambda ks=ks: tch(V_WGU, ks) for ks in range(25, 32)]
        stubs += [lambda k=k: tch(118, k) for k in range(7)]
        if not last:
            stubs += [lambda k=k: tch(119, k) for k in range(2)]

    def need_wo():
        A('s_lshr_b32 s30, s20, 1')
        A('s_lshl_b32 s30, s30, 2')
        A('s_and_b32 s31, s22, 3')
        A('s_add_u32 s30, s30, s31')
        A('s_lshl_b32 s32, 1, s30')

    def need_gu():
        A('s_lshl_b32 s32, 0x5555, s29')
        A('s_cmp_eq_u32 s20, 7')
        A('s_cselect_b32 s32, 0xffff, s32')

    def need_dn():
        A('s_lshl_b32 s30, s20, 1')
        A('s_lshl_b32 s32, 3, s30')

    def need_qkv():
        A('s_lshl_b32 s30, s20, 1')
        A('s_add_u32 s30, s30, s23')
        A('s_lshl_b32 s32, 1, s30')

    if layer == 0:
        fixed = {PK_I: lambda: (wq_store(C), pack_issue(C)), PK_C: lambda: pack_convert(C), PK_F: lambda: pack_flag(C), PK_P - 3: lambda: pack_poll(C, end), PK_P: lambda: pack_poll2(C, end)}
        tail = att_phase(C, kvf, kfl, end, stubs, fixed, PK_P, pre_hook=lambda: pack_ptrs(A), loadq=False, early=True)
    else:
        tail = att_phase(C, kvf, kfl, end, stubs, pre_hook=lambda: A('s_load_dwordx2 s[12:13], s[0:1], 72'), loadq=False)
    C.stamp()
    if not WO_LATE:
        A('s_nop 1')
        for i in range(8, 16):
            g4_wload(C, 116, i, 'res')
    g4_pre(C, 'res', B['OF'], resbase=xin)
    handoff(C, sy + 0, end, need_wo)
    C.stamp()
    g4_main(C, 'res', outbase=B['XB'], sxout=B['SXB'], hook_red=lambda k: gu_wload(C, 24 + k))
    C.stamp()
    gu2_pre(C)
    handoff(C, sy + 1, end, need_gu)
    C.stamp()
    gu2_main(C, sy + 2, end)
    C.stamp()
    if last:
        dn_main(C, 'out', sy - 1, end, B['XB'])
        C.stamp()
    else:
        dn_main(C, 'res', sy - 1, end, B['XB'], outbase=XC, sxout=SXC, hook_red=lambda: qkv4_wrest(C))
        C.stamp()
        g4_pre(C, 'qkv', XC, resbase=SXC)
        g4_waddr(C, 64, WQKVP)
        handoff(C, sy + 3, end, need_qkv)
        C.stamp()
        g4_main(C, 'qkv', kvf=KVF2, kfl=KFL + 64 * 128, endlab=end)
        C.stamp()
    return tail


def build():
    A = Asm()
    name = NAME + '_kernel'
    C = Ctx(A, 'pr')
    C.qf = QF
    end = 'k_end'
    kernel_begin(A, name)
    pre_part(C, end)
    t0 = layer_part(C, 0, end)
    t1 = layer_part(C, 1, end)
    A('s_add_u32 s30, s2, s20')
    A('s_cmp_lg_u32 s30, 0')
    A('s_cbranch_scc1 k_fin')
    A('s_load_dwordx2 s[4:5], s[0:1], 80')
    A('s_mov_b32 s6, 256')
    A('v_mov_b32 v2, 0')
    A('s_mov_b64 exec, 1')
    A('s_waitcnt lgkmcnt(0)')
    A('buffer_store_dword v2, v2, s[4:7], 0 offen sc0 sc1')
    A('s_mov_b64 exec, -1')
    A.label('k_fin')
    if DBGD:
        A('s_cmp_lg_u32 s2, 77')
        A('s_cbranch_scc1 k_fin2')
        A('s_cmp_lg_u32 s20, 1')
        A('s_cbranch_scc1 k_fin2')
        A('s_load_dwordx2 s[4:5], s[0:1], 80')
        A('s_memrealtime s[60:61]')
        A('s_mov_b32 s6, 256')
        A('v_mov_b32 v2, 0')
        A('s_mov_b64 exec, 1')
        A('s_waitcnt lgkmcnt(0)')
        sel = [int(x) for x in DBGD.split()]
        for k, i in enumerate(sel + [-1]):
            A(f's_sub_u32 s30, {s(64 + i) if i >= 0 else "s60"}, s64')
            A('v_mov_b32 v4, s30')
            A(f'buffer_store_dword v4, v2, s[4:7], 0 offen offset:{4 + 4 * k}')
        A('s_mov_b64 exec, -1')
        A.label('k_fin2')
    stamp_end(C, 1)
    A.label(end)
    A('s_endpgm')
    t0(True)
    t1(False)
    body = A.text()
    probs = lint(body)
    for p in probs:
        print('LINT:', p, file=sys.stderr)
    head = '; generated by gen/gen3.py\n'
    head += f"; @launch grid=(256,1,1) block=(512,1,1) lds={LDS_BYTES}\n"
    head += '.amdgcn_target "amdgcn-amd-amdhsa--gfx950"\n.text\n'
    tail = '.section .rodata,"a"\n.p2align 6\n' + descriptor(name, 256, 0, nsgpr=100)
    print('stamps:', C.nstamp, file=sys.stderr)
    return head + body + tail


if __name__ == '__main__':
    if 'stamp' in sys.argv:
        STAMP = True
    for arg in sys.argv[2:]:
        if '=' in arg:
            k, val = arg.split('=')
            globals()[k] = int(val) if val.lstrip('-').isdigit() else val.replace('_', ' ')
    out = sys.argv[1] if len(sys.argv) > 1 else f'cdna_kernels/{NAME}.s'
    open(out, 'w').write(build())
    print('wrote', out)
```

```python
import sys
import math
import struct
from asmlib import Asm, v, a, s, lint
import gen as G1
from gen import f32, kernel_begin, descriptor, ws_srd, KB

NAME = G1.NAME
WQKVP, WOP, WGUP, WDP, CSQKV, CSGU = G1.WQKVP, G1.WOP, G1.WGUP, G1.WDP, G1.CSQKV, G1.CSGU
KVF, XA, XB, QF, OF, HF = G1.KVF, G1.XA, G1.XB, G1.QF, G1.OF, G1.HF
WS_SIZE, QSCALE = G1.WS_SIZE, G1.QSCALE
KVG = 2048
KVT = 2128
VBS = 512
XC = G1.WS_END
KVF2 = XC + 2048 * KB
FLG = KVF2 + 144 * KB
SXA = FLG + 64 * KB
SXB = SXA + 512 * KB
SXC = SXB + 512 * KB
CSP = SXC + 512 * KB
PFL = CSP + 128 * KB
KFL = PFL + 112 * KB
QF2 = KFL + 16 * KB
OF2 = QF2 + 2048 * KB
XB2 = OF2 + 2048 * KB
SXB2 = XB2 + 2048 * KB
HF2 = SXB2 + 512 * KB
WS_END = HF2 + 64 * 112 * KB
STAMPS = G1.STAMPS

STAMP = False
WT = ' sc0 sc1'
LDS_BYTES = 160 * KB
FINE = 0
OWT = ''
FR2 = 0
ZEARLY = 1
HACKW = 0
W7OFF = 1
PSLEEP = 0
GU_D = 20
F1BAR = 1
F2BAR = 1
GU_XB = 0
PRIME_LATE = 2
GU_PO = 0
GU_PRIO = 1
GU_SF1 = 6
DN_PI = 4
DN_AR = 0
TCHK = 2
TB2 = 6
DPT = 4
TPFEND = 8
TP2 = 28
TP1 = 46
TP0 = 58
ONEWAIT = 1
INLINE = 0
ATT_NB = 4
TOUCH3 = 0
PRIOV = 0
DBGD = ''
ATT_B2 = 2
WO_L0 = 3
WROT = 1
GU_TAIL = 1
ATT_R0 = 4
EXPT = 0
TLBW = 0
KV_SLEEP = 2
QKV_PER = 1
WO_TAIL = 16
SLO = 0
QWT = ' sc0 sc1'
GU16 = 0
GU_NOW = 0
GU_WD0 = 3
GU_BARS = {4: 1, 8: 2, 12: 7, 24: 7}
PK_I = 6
PK_C = 18
PK_F = 22
PK_P = 36
RT = 0
TOUCH = 0
TOUCH2 = 1
WO_LATE = 0
ATT_UN = 4
ATT_PFEND = 1
G3_PR4 = 7
G3_PR14 = 6
G2_ST8 = [2, 2, 2, 2]
G2_ST28 = [2, 2, 4, 4, 4, 4, 4, 4]
G2_PRE8 = 4
G2_PRE28 = 6


class Ctx:
    def __init__(self, A, tag):
        self.A = A
        self.tag = tag
        self.vm = []
        self.lds = []
        self.nlab = 0
        self.nstamp = 1

    def lab(self, base):
        self.nlab += 1
        return f'{self.tag}_{base}{self.nlab}'

    def vmem(self, text, tag):
        self.A(text)
        self.vm.append(tag)
        assert len(self.vm) <= 63, 'vmcnt overflow'

    def wait(self, tag, extra=''):
        idx = [i for i, t in enumerate(self.vm) if t == tag]
        if not idx:
            if extra:
                self.A(f's_waitcnt {extra}')
            return
        n = len(self.vm) - 1 - idx[-1]
        self.A(f's_waitcnt vmcnt({n}) {extra}'.strip())
        self.vm = self.vm[idx[-1] + 1:]

    def ds(self, text, tag):
        self.A(text)
        self.lds.append(tag)
        assert len(self.lds) <= 15, 'lgkmcnt overflow'

    def dwait(self, tag):
        idx = [i for i, t in enumerate(self.lds) if t == tag]
        if idx:
            self.A(f's_waitcnt lgkmcnt({len(self.lds) - 1 - idx[-1]})')
            self.lds = self.lds[idx[-1] + 1:]

    def stamp(self):
        if STAMP:
            i = self.nstamp - SLO
            self.nstamp += 1
            if i < 1 or i >= 28:
                return
            A = self.A
            A('s_waitcnt lgkmcnt(0)')
            A('s_memrealtime s[60:61]' if RT else 's_memtime s[60:61]')
            A('s_waitcnt lgkmcnt(0)')
            A(f's_mov_b32 {s(64 + i)}, s60')


def stamp_begin(C):
    if STAMP:
        A = C.A
        A('s_memrealtime s[62:63]')
        A('s_memtime s[60:61]')
        for i in range(1, 30):
            A(f's_mov_b32 {s(64 + i)}, 0')
        A('s_waitcnt lgkmcnt(0)')
        A('s_mov_b32 s64, s62' if RT else 's_mov_b32 s64, s60')
        A('s_mov_b32 s95, s62')


def stamp_end(C, kidx):
    if STAMP:
        A = C.A
        A('s_waitcnt vmcnt(0) lgkmcnt(0)')
        A('s_memtime s[60:61]')
        A('s_memrealtime s[62:63]')
        A('s_waitcnt lgkmcnt(0)')
        A('s_mov_b32 s93, s62' if RT else 's_mov_b32 s93, s60')
        A('s_mov_b32 s94, s62')
        A('s_mov_b64 exec, 1')
        A('s_lshl_b32 s60, s2, 10')
        A('s_lshl_b32 s61, s20, 7')
        A('s_add_u32 s60, s60, s61')
        A(f's_add_u32 s60, s60, {STAMPS + kidx * (1 << 20)}')
        A('v_mov_b32 v0, 0')
        for i in range(32):
            A(f'v_mov_b32 v1, {s(64 + i)}')
            A(f'buffer_store_dword v1, v0, s[8:11], s60 offen offset:{i * 4}')
        A('s_waitcnt vmcnt(0)')


def setup(C, need_out, endlab):
    A = C.A
    A('s_cmp_ge_u32 s2, 256')
    A(f's_cbranch_scc1 {endlab}')
    stamp_begin(C)
    ws_srd(A, 8)
    if need_out:
        A('s_load_dwordx2 s[12:13], s[0:1], 72')
        A(f's_mov_b32 s14, {2048 * 512 * 2}')
        A('s_mov_b32 s15, 0x20000')
    A('v_and_b32 v1, 63, v0')
    A('v_lshrrev_b32 v2, 6, v0')
    A('v_lshlrev_b32 v3, 4, v1')
    A('v_readfirstlane_b32 s20, v2')
    A('s_and_b32 s21, s2, 7')
    A('s_lshl_b32 s21, s21, 1')
    A('s_bfe_u32 s22, s2, 0x10003')
    A('s_add_u32 s21, s21, s22')
    A('s_lshr_b32 s22, s2, 4')
    A('s_and_b32 s23, s22, 1')
    A('s_lshr_b32 s24, s22, 1')
    A('s_and_b32 s25, s20, 3')
    A('s_lshr_b32 s26, s20, 2')
    A('s_lshl_b32 s27, s21, 2')
    A('s_add_u32 s27, s27, s23')
    A('s_lshl_b32 s28, s24, 1')
    A('s_bfe_u32 s30, s20, 0x10001')
    A('s_add_u32 s28, s28, s30')
    A('s_and_b32 s29, s20, 1')
    A('s_lshl_b32 s30, s29, 1')
    A('s_add_u32 s30, s30, s27')
    A('s_lshl_b32 s49, s30, 15')
    A('s_lshl_b32 s31, s28, 11')
    A('s_add_u32 s49, s49, s31')
    A('s_lshl_b32 s31, s26, 10')
    A('s_add_u32 s49, s49, s31')
    for g in range(1, 8):
        A(f's_mov_b32 {s(40 + g)}, {g * 4096}')
    A('s_waitcnt lgkmcnt(0)')


def soff(i):
    return ('0' if i // 4 == 0 else s(40 + i // 4)), (i % 4) * 1024


def handoff(C, sync, endlab, need, kvflag=None, first=False):
    A = C.A
    l1, l2, ld = C.lab('pa'), C.lab('pb'), C.lab('pd')
    need()
    A('s_mov_b32 s33, 0')
    A('v_lshlrev_b32 v0, 2, v1')
    A('s_lshl_b32 s30, s21, 8')
    A(f's_add_u32 s30, s30, {FLG + sync * 4096}')
    A('s_lshl_b32 s34, s22, 2')
    A('s_add_u32 s34, s34, s30')
    A('v_mov_b32 v4, 1')
    if first:
        lz, lzd = C.lab('z'), C.lab('zd')
        A('s_cmp_lg_u32 s20, 0')
        A(f's_cbranch_scc1 {lzd}')
        A('s_mov_b32 s31, 0')
        A('s_mov_b64 exec, 1')
        A.label(lz)
        A('buffer_load_dword v2, v0, s[4:7], 0 offen sc0 sc1')
        A('s_waitcnt vmcnt(0)')
        A('v_cmp_le_u32 vcc, 16, v2')
        A('s_add_u32 s31, s31, 1')
        A('s_cmp_eq_u64 vcc, 1')
        A(f's_cbranch_scc1 {lzd}')
        A('s_sleep 8')
        A(f's_cmp_lt_u32 s31, {1 << 20}')
        A(f's_cbranch_scc1 {lz}')
        A(f's_branch {endlab}')
        A.label(lzd)
        A('s_mov_b64 exec, -1')
    if kvflag is not None:
        A('s_waitcnt vmcnt(0) lgkmcnt(0)')
        C.vm = []
    else:
        C.wait('st', 'lgkmcnt(0)')
    A('s_cmp_lg_u32 s20, 0')
    A('s_barrier')
    l, lb, lb2 = C.lab('sig'), C.lab('sb'), C.lab('sc')
    A(f's_cbranch_scc1 {l}')
    A('s_mov_b64 exec, 1')
    if kvflag is not None:
        lk = C.lab('kf')
        A('s_cmp_ge_u32 s24, 2')
        A(f's_cbranch_scc1 {lk}')
        A('s_add_u32 s31, s27, s24')
        A('s_lshl_b32 s31, s31, 7')
        A(f's_add_u32 s31, s31, {kvflag}')
        A('s_mov_b64 exec, 15')
        A('buffer_store_dword v4, v0, s[8:11], s31 offen sc0 sc1')
        A('s_mov_b64 exec, 1')
        A.label(lk)
    A('buffer_store_dword v4, v0, s[8:11], s34 offen')
    A.label(l)
    A('s_mov_b32 s31, 0')
    A('s_mov_b64 exec, s[32:33]')
    A.label(l1)
    A('buffer_load_dword v2, v0, s[8:11], s30 offen sc1')
    A('s_add_u32 s31, s31, 1')
    A('s_waitcnt vmcnt(0)')
    A('v_cmp_ne_u32 vcc, 0, v2')
    A('s_cmp_eq_u64 vcc, s[32:33]')
    A(f's_cbranch_scc1 {ld}')
    if PSLEEP:
        A(f's_sleep {PSLEEP}')
    A('s_cmp_lt_u32 s31, 64')
    A(f's_cbranch_scc1 {l1}')
    A('s_mov_b64 exec, 1')
    A('buffer_store_dword v4, v0, s[8:11], s34 offen offset:128 sc0 sc1')
    A('s_mov_b64 exec, s[32:33]')
    A.label(l2)
    A('buffer_load_dword v2, v0, s[8:11], s30 offen sc1')
    A('s_waitcnt vmcnt(0)')
    A('v_cmp_ne_u32 s[36:37], 0, v2')
    A('buffer_load_dword v2, v0, s[8:11], s30 offen offset:128 sc0 sc1')
    A('s_waitcnt vmcnt(0)')
    A('v_cmp_ne_u32 vcc, 0, v2')
    A('s_add_u32 s31, s31, 1')
    A('s_or_b64 vcc, vcc, s[36:37]')
    A('s_cmp_eq_u64 vcc, s[32:33]')
    A(f's_cbranch_scc1 {ld}')
    A('s_sleep 4')
    A(f's_cmp_lt_u32 s31, {1 << 20}')
    A(f's_cbranch_scc1 {l2}')
    A(f's_branch {endlab}')
    A.label(ld)
    A('s_mov_b64 exec, -1')
    C.vm = []
    C.flagb = True


def flag_b(C):
    if getattr(C, 'flagb', False):
        A = C.A
        l = C.lab('fb')
        A('s_cmp_lg_u32 s20, 0')
        A(f's_cbranch_scc1 {l}')
        A('s_mov_b64 exec, 1')
        A('buffer_store_dword v4, v0, s[8:11], s34 offen offset:128 sc0 sc1')
        A('s_mov_b64 exec, -1')
        A.label(l)
        C.flagb = False


ACCB, ACCA = 16, 48
KVW, KACC, QSX = 160, 176, 240
KVRED, STAT, CSX, CSK = 112 * KB, 144 * KB, 148 * KB, 152 * KB


def blk_stats(C, P, T):
    A = C.A
    A(f'v_mov_b32 {v(T + 4)}, 0x3f803f80')
    A(f'v_dot2_f32_bf16 {v(T + 1)}, {v(P)}, {v(P)}, 0')
    A(f'v_dot2_f32_bf16 {v(T)}, {v(P)}, {v(T + 4)}, 0')
    for m in range(1, 4):
        A(f'v_dot2_f32_bf16 {v(T + 1)}, {v(P + m)}, {v(P + m)}, {v(T + 1)}')
        A(f'v_dot2_f32_bf16 {v(T)}, {v(P + m)}, {v(T + 4)}, {v(T)}')
    A('s_nop 2')
    A(f'v_mov_b32 {v(T + 2)}, {v(T)}')
    A(f'v_mov_b32 {v(T + 3)}, {v(T + 1)}')
    A('s_nop 1')
    A(f'v_permlane32_swap_b32 {v(T)}, {v(T + 2)}')
    A(f'v_permlane32_swap_b32 {v(T + 1)}, {v(T + 3)}')
    A(f'v_add_f32 {v(T)}, {v(T)}, {v(T + 2)}')
    A(f'v_add_f32 {v(T + 1)}, {v(T + 1)}, {v(T + 3)}')


def g3_waddr(C, vregs, KS, wbase):
    A = C.A
    NS = KS // 8
    A('s_lshl_b32 s30, s26, 8')
    A(f'v_xor_b32 {v(vregs[0])}, s30, v3')
    A(f's_mul_i32 s31, s20, {NS * KB}')
    A(f's_add_u32 s31, s31, {wbase}')
    A('s_xor_b32 s30, s28, 1')
    A(f's_mul_i32 s30, s30, {KS * KB}')
    A('s_add_u32 s30, s30, s31')
    A(f'v_add_u32 {v(vregs[1])}, s30, {v(vregs[0])}')
    A(f's_mul_i32 s30, s28, {KS * KB}')
    A('s_add_u32 s30, s30, s31')
    A(f'v_add_u32 {v(vregs[0])}, s30, {v(vregs[0])}')


def g3_wload(C, vregs, idx, wreg0, tag='w'):
    st, jj = idx // 2, idx % 2
    so, im = soff(st)
    C.vmem(f'buffer_load_dwordx4 {v(wreg0 + 4 * idx, 4)}, {v(vregs[jj])}, s[8:11], {so} offen offset:{im}', tag)


def g3_ex(mode, KS):
    return 252 if KS == 112 else (112 if mode == 'qkv' else 116)


def g3_pre(C, mode, KS, xbase, resbase=None, raw=False):
    A = C.A
    NS = KS // 8
    EX = g3_ex(mode, KS)
    A(f's_mul_i32 s31, s20, {NS * KB}')
    A(f's_add_u32 s31, s31, {xbase}')
    A('s_add_u32 s30, s27, s29')
    A(f's_mul_i32 s32, s30, {KS * KB}')
    A('s_add_u32 s32, s32, s31')
    A('v_add_u32 v6, s32, v3')
    A('s_xor_b32 s30, s30, 1')
    A(f's_mul_i32 s32, s30, {KS * KB}')
    A('s_add_u32 s32, s32, s31')
    A('v_add_u32 v5, s32, v3')
    A('s_lshl_b32 s30, s20, 11')
    A('v_add_u32 v8, s30, v3')
    A('v_add_u32 v7, 0x10000, v8')
    for b in range(1, 8):
        A(f's_xor_b32 s30, s20, {b}')
        A('s_lshl_b32 s30, s30, 11')
        A(f's_add_u32 s30, s30, {(b - 1) * 16 * KB}')
        A(f'v_add_u32 {v(8 + b)}, s30, v3')
    if raw:
        return
    if mode == 'qkv':
        A('v_lshrrev_b32 v2, 5, v1')
        A('v_lshlrev_b32 v4, 4, v2')
        A('s_lshl_b32 s31, s28, 7')
        A('s_lshl_b32 s30, s26, 6')
        A('s_add_u32 s31, s31, s30')
        A(f's_add_u32 s31, s31, {CSQKV}')
        C.vmem(f'buffer_load_dwordx4 {v(EX, 4)}, v4, s[8:11], s31 offen', 'ex')
        C.vmem(f'buffer_load_dwordx4 {v(EX + 4, 4)}, v4, s[8:11], s31 offen offset:32', 'ex')
        A('s_bfe_u32 s30, s20, 0x10001')
        A('s_lshl_b32 s30, s30, 6')
        A('s_lshl_b32 s31, s26, 5')
        A('s_add_u32 s30, s30, s31')
        A(f's_add_u32 s31, s30, {CSQKV + 2048}')
        C.vmem(f'buffer_load_dwordx4 {v(EX + 8, 4)}, v4, s[8:11], s31 offen', 'ex')
        A(f'v_and_b32 {v(QSX + 8)}, 31, v1')
        A(f'v_lshlrev_b32 {v(QSX + 8)}, 3, {v(QSX + 8)}')
        A(f'v_lshl_add_u32 {v(QSX + 8)}, v2, 13, {v(QSX + 8)}')
        A('s_lshl_b32 s30, s27, 13')
        A('s_lshl_b32 s31, s20, 10')
        A('s_add_u32 s30, s30, s31')
        A(f's_add_u32 s30, s30, {resbase}')
        A(f'v_add_u32 {v(QSX + 8)}, s30, {v(QSX + 8)}')
    elif resbase is None:
        A('v_and_b32 v2, 31, v1')
        A('v_lshlrev_b32 v2, 10, v2')
        A('v_lshrrev_b32 v4, 5, v1')
        A('v_lshl_add_u32 v2, v4, 3, v2')
        A('s_add_u32 s30, s27, s29')
        A('s_lshl_b32 s30, s30, 15')
        A('s_lshl_b32 s31, s28, 6')
        A('s_add_u32 s30, s30, s31')
        A('s_lshl_b32 s31, s26, 5')
        A('s_add_u32 s30, s30, s31')
        C.vmem(f'buffer_load_dwordx2 {v(EX, 2)}, v2, s[12:15], s30 offen', 'ex')
        C.vmem(f'buffer_load_dwordx2 {v(EX + 2, 2)}, v2, s[12:15], s30 offen offset:16', 'ex')
    else:
        A(f's_add_u32 s31, s49, {resbase}')
        C.vmem(f'buffer_load_dwordx4 {v(EX, 4)}, v3, s[8:11], s31 offen', 'ex')


def g3_main(C, mode, KS, wreg0, outbase=None, kvf=None, after_store=None, sxout=None, hook_b=None, raw=False, hook_red=None):
    A = C.A
    NS = KS // 8
    EX = g3_ex(mode, KS)
    if NS == 4:
        xreg = {(hh, st): 80 + (hh * 4 + st) * 4 for hh in range(2) for st in range(4)}
    else:
        slot = [80 + 4 * k for k in range(12)] + [240, 244]
        xreg = {(hh, st): slot[st] for hh in range(2) for st in range(NS)}

    def xload(hh, st):
        so, im = soff(st)
        C.vmem(f'buffer_load_dwordx4 {v(xreg[hh, st], 4)}, {v(5 + hh)}, s[8:11], {so} offen offset:{im}', f'x{hh}_{st}')

    seq = [(hh, st) for hh in range(2) for st in range(NS)]
    PR = G3_PR4 if NS == 4 else G3_PR14
    if raw:
        seq, PR = [], 0
    for x in seq[:PR]:
        xload(*x)
    nxt = PR
    C.wait('w')

    def wr(b):
        base = (ACCA if b & 1 else ACCB) + ((b >> 1) & 1) * 16 + (b >> 2) * 8
        return [f'ds_write_b128 {v(8 + b)}, {v(base + h2 * 4, 4)} offset:{h2 * 1024}' for h2 in range(2)]

    pend = []
    for hh in range(2):
        acc = ACCA if hh == 0 else ACCB
        for st in range(NS):
            C.wait(f'x{hh}_{st}')
            if hh == 0 and st == 0:
                C.stamp()
            for jj in range(2):
                c = '0' if st == 0 else v(acc + jj * 16, 16)
                A(f'v_mfma_f32_32x32x16_bf16 {v(acc + jj * 16, 16)}, {v(wreg0 + 4 * (2 * st + jj), 4)}, {v(xreg[hh, st], 4)}, {c}')
                if hh == 1 and (st >= 3 or (NS == 4 and st >= 2)):
                    for _ in range(2 if NS == 4 else 1):
                        if pend:
                            A(pend.pop(0))
            if nxt < len(seq):
                xload(*seq[nxt])
                nxt += 1
                if nxt == len(seq):
                    if mode == 'qkv':
                        for e in range(4):
                            C.vmem(f'buffer_load_dwordx2 {v(QSX + 2 * e, 2)}, {v(QSX + 8)}, s[8:11], 0 offen offset:{e * 256}', 'sx')
                    flag_b(C)
                    hb = 0
            elif hook_b:
                hb += 1
            if hook_b and nxt == len(seq):
                hook_b(hb, PR)
            if hh == 1 and NS == 4 and st == 1:
                A('s_nop 7' if raw else 's_nop 5')
            if hh == 1 and NS != 4 and st == 2:
                A('s_nop 2')
        if hh == 0:
            pend = wr(1) + wr(5) + wr(3) + wr(7)
    assert not pend
    C.stamp()
    lkv = C.lab('nokv')
    if mode == 'qkv':
        la, lb = C.lab('ka'), C.lab('kb')
        A('s_cmp_ge_u32 s24, 2')
        A(f's_cbranch_scc1 {lb}')
        A('s_cmp_eq_u32 s24, s29')
        A(f's_cbranch_scc0 {la}')
        for hh in (1, 0):
            for st in range(4):
                c = '0' if st == 0 else v(KACC, 16)
                A(f'v_mfma_f32_32x32x16_bf16 {v(KACC, 16)}, {v(KVW + 4 * st, 4)}, {v(xreg[hh, st], 4)}, {c}')
            if hh == 1:
                A(f's_branch {lb}')
                A.label(la)
        A.label(lb)
        A('v_lshlrev_b32 v4, 3, v1')
        if not raw:
            C.wait('sx')
            for e in range(4):
                A(f'v_add_f32 {v(QSX + e)}, {v(QSX + e)}, {v(QSX + 4 + e)}')
            for e in range(2):
                A(f'v_add_f32 {v(QSX + e)}, {v(QSX + e)}, {v(QSX + 2 + e)}')
            A('s_lshl_b32 s30, s20, 9')
            A(f's_add_u32 s30, s30, {STAT}')
            A('v_add_u32 v2, s30, v4')
            A(f'ds_write_b64 v2, {v(QSX, 2)}')
        else:
            A('v_lshrrev_b32 v112, 5, v1')
            A('v_lshlrev_b32 v112, 4, v112')
            A('s_and_b32 s30, s28, 1')
            A('s_lshl_b32 s30, s30, 7')
            A('s_lshl_b32 s31, s26, 6')
            A('s_add_u32 s30, s30, s31')
            A(f's_add_u32 s30, s30, {CSK}')
            A('v_add_u32 v113, s30, v112')
            A('s_nop 3')
        A('v_and_b32 v4, 0xf8, v4')
        A('s_lshl_b32 s30, s29, 8')
        A(f's_add_u32 s30, s30, {STAT}')
        A('v_add_u32 v4, s30, v4')
    else:
        A('s_nop 10')
    for b in (4, 2, 6):
        for x in wr(b):
            A(x)
    if mode == 'qkv':
        A('s_cmp_ge_u32 s24, 2')
        A(f's_cbranch_scc1 {lkv}')
        A(f'v_add_u32 v2, {KVRED}, v8')
        for k4 in range(4):
            A(f'ds_write_b128 v2, {v(KACC + k4 * 4, 4)} offset:{(k4 >> 1) * 16 * KB + (k4 & 1) * 1024}')
        A.label(lkv)
    if hook_red:
        hook_red()
    A('s_waitcnt lgkmcnt(0)')
    A('s_barrier')
    for b in range(1, 8):
        for h2 in range(2):
            base, off = ('v8', (b - 1) * 16 * KB) if b <= 4 else ('v7', (b - 5) * 16 * KB)
            A(f'ds_read_b128 {v(ACCB + b * 8 + h2 * 4, 4)}, {base} offset:{off + h2 * 1024}')
    T = 80

    def red(base, waits):
        for stp in (32, 16, 8):
            for r in range(stp):
                A(f'v_add_f32 {v(base + r)}, {v(base + r)}, {v(base + stp + r)}')
    if mode == 'qkv':
        A('s_waitcnt lgkmcnt(6)')
        for ww in range(8):
            A(f'ds_read_b64 {v(T + ww * 2, 2)}, v4 offset:{ww * 512}')
        A('s_waitcnt lgkmcnt(8)')
        if raw:
            EX = 192
            for h2 in range(2):
                A(f'ds_read_b128 {v(EX + h2 * 4, 4)}, v113 offset:{h2 * 32}')
    else:
        C.wait('ex')
        for m in range(4):
            A(f'v_lshlrev_b32 {v(T + 2 * m)}, 16, {v(EX + m)}')
            A(f'v_and_b32 {v(T + 2 * m + 1)}, 0xffff0000, {v(EX + m)}')
        for r in range(8):
            A(f'v_add_f32 {v(ACCB + r)}, {v(ACCB + r)}, {v(T + r)}')
        A('s_waitcnt lgkmcnt(0)')
    red(ACCB, None)
    P = ACCB + 8
    if mode == 'qkv':
        A('s_waitcnt lgkmcnt(0)')
        for stp in (8, 4, 2):
            for e in range(stp):
                A(f'v_add_f32 {v(T + e)}, {v(T + e)}, {v(T + e + stp)}')
        A(f'v_mul_f32 {v(T)}, {f32(1.0 / 512)}, {v(T)}')
        A(f'v_mul_f32 {v(T + 1)}, {f32(1.0 / 512)}, {v(T + 1)}')
        A(f'v_fma_f32 {v(T + 1)}, -{v(T)}, {v(T)}, {v(T + 1)}')
        A(f'v_max_f32 {v(T + 1)}, 0, {v(T + 1)}')
        A(f'v_add_f32 {v(T + 1)}, {f32(1e-5)}, {v(T + 1)}')
        A(f'v_rsq_f32 {v(T + 1)}, {v(T + 1)}')
        C.wait('ex')
        for r in range(8):
            A(f'v_fma_f32 {v(ACCB + r)}, -{v(T)}, {v(EX + r)}, {v(ACCB + r)}')
        A(f'v_mul_f32 {v(T + 2)}, {f32(QSCALE)}, {v(T + 1)}')
        for r in range(8):
            A(f'v_mul_f32 {v(ACCB + r)}, {v(T + 2)}, {v(ACCB + r)}')
        for m in range(4):
            A(f'v_cvt_pk_bf16_f32 {v(P + m)}, {v(ACCB + 2 * m)}, {v(ACCB + 2 * m + 1)}')
        A(f's_add_u32 s31, s49, {C.qf}')
        C.vmem(f'buffer_store_dwordx4 {v(P, 4)}, v3, s[8:11], s31 offen{QWT}', 'st')
        le, lv = C.lab('ke'), C.lab('v')
        A('s_cmp_lg_u32 s29, s24')
        A(f's_cbranch_scc1 {le}')
        A('s_bfe_u32 s34, s20, 0x10001')
        A('s_lshl_b32 s30, s34, 14')
        A('s_lshl_b32 s31, s26, 10')
        A('s_add_u32 s30, s30, s31')
        A(f's_add_u32 s30, s30, {KVRED}')
        A('v_add_u32 v4, s30, v3')
        KR = 208
        for ww in range(8):
            A(f'ds_read_b128 {v(KR + ww * 4, 4)}, v4 offset:{ww * 2048}')
        KX = EX + 8
        if raw:
            A('s_lshl_b32 s30, s34, 6')
            A('s_lshl_b32 s31, s26, 5')
            A('s_add_u32 s30, s30, s31')
            A(f's_add_u32 s30, s30, {CSK + 256}')
            A('v_add_u32 v113, s30, v112')
            A(f'ds_read_b128 {v(KX, 4)}, v113')
        A('s_add_u32 s30, s27, s29')
        A(f's_mul_i32 s30, s30, {KVG}')
        A(f's_add_u32 s30, s30, {kvf}')
        A('v_bfe_u32 v4, v1, 4, 1')
        A(f'v_mul_u32_u24 v4, {VBS}, v4')
        A('v_bfe_u32 v5, v1, 2, 1')
        A('v_lshl_add_u32 v4, v5, 8, v4')
        A('v_and_b32 v5, 3, v1')
        A('v_lshl_add_u32 v4, v5, 1, v4')
        A('v_bfe_u32 v5, v1, 3, 1')
        A('v_lshl_add_u32 v4, v5, 3, v4')
        A('v_lshrrev_b32 v5, 5, v1')
        A('v_lshl_add_u32 v4, v5, 6, v4')
        A('s_waitcnt lgkmcnt(0)')
        for stp in (16, 8, 4):
            for r in range(stp):
                A(f'v_add_f32 {v(KR + r)}, {v(KR + r)}, {v(KR + stp + r)}')
        for r in range(4):
            A(f'v_fma_f32 {v(KR + r)}, -{v(T)}, {v(KX + r)}, {v(KR + r)}')
        for r in range(4):
            A(f'v_mul_f32 {v(KR + r)}, {v(T + 1)}, {v(KR + r)}')
        KP = KR + 8
        for m in range(2):
            A(f'v_cvt_pk_bf16_f32 {v(KP + m)}, {v(KR + 2 * m)}, {v(KR + 2 * m + 1)}')
        A('s_cmp_lg_u32 s34, 0')
        A(f's_cbranch_scc1 {lv}')
        A('s_lshl_b32 s31, s26, 3')
        A('s_add_u32 s31, s31, s30')
        A(f'buffer_store_dwordx2 {v(KP, 2)}, v3, s[8:11], s31 offen{QWT}')
        A(f's_branch {le}')
        A.label(lv)
        A('s_lshl_b32 s31, s26, 7')
        A('s_add_u32 s31, s31, s30')
        for r in range(4):
            op = 'buffer_store_short' if r % 2 == 0 else 'buffer_store_short_d16_hi'
            A(f'{op} {v(KP + r // 2)}, v4, s[8:11], s31 offen offset:{1024 + r * 16}{QWT}')
        A.label(le)
    else:
        for m in range(4):
            A(f'v_cvt_pk_bf16_f32 {v(P + m)}, {v(ACCB + 2 * m)}, {v(ACCB + 2 * m + 1)}')
        if mode == 'res':
            A(f's_add_u32 s31, s49, {outbase}')
            C.vmem(f'buffer_store_dwordx4 {v(P, 4)}, v3, s[8:11], s31 offen{WT}', 'st')
            blk_stats(C, P, T)
            A('s_lshr_b32 s31, s49, 2')
            A(f's_add_u32 s31, s31, {sxout}')
            A('v_lshlrev_b32 v4, 3, v1')
            A('s_mov_b32 exec_hi, 0')
            C.vmem(f'buffer_store_dwordx2 {v(T, 2)}, v4, s[8:11], s31 offen{WT}', 'st')
            A('s_mov_b64 exec, -1')
            if after_store:
                after_store()
        else:
            A('v_and_b32 v4, 31, v1')
            A('v_lshlrev_b32 v4, 10, v4')
            A('v_lshrrev_b32 v5, 5, v1')
            A('v_lshl_add_u32 v4, v5, 4, v4')
            A('s_add_u32 s30, s27, s29')
            A('s_lshl_b32 s30, s30, 15')
            A('s_lshl_b32 s31, s28, 6')
            A('s_add_u32 s30, s30, s31')
            A('s_lshl_b32 s31, s26, 5')
            A('s_add_u32 s30, s30, s31')
            A(f'v_permlane32_swap_b32 {v(P)}, {v(P + 2)}')
            A(f'v_permlane32_swap_b32 {v(P + 1)}, {v(P + 3)}')
            C.vmem(f'buffer_store_dwordx4 {v(P, 4)}, v4, s[12:15], s30 offen{OWT}', 'st')


def qkv_wstep(C, st, n=1):
    A = C.A
    if st == 0:
        g3_waddr(C, (5, 6), 32, WQKVP)
    per = -(-8 // n)
    for i in range(st * per, min(8, (st + 1) * per)):
        g3_wload(C, (5, 6), i, 128)
    if st == n:
        A('s_lshl_b32 s30, s20, 12')
        A(f's_add_u32 s30, s30, {WQKVP + 16 * 32 * KB}')
        l = C.lab('kw')
        A('s_cmp_ge_u32 s24, 2')
        A(f's_cbranch_scc1 {l}')
        for k in range(4):
            A(f'buffer_load_dwordx4 {v(KVW + 4 * k, 4)}, v3, s[8:11], s30 offen offset:{k * 1024}')
        A.label(l)


def qkv_wloads(C):
    qkv_wstep(C, 0)
    qkv_wstep(C, 1)


KVR4, XF0, ST4, RED4 = 0, 36 * KB, 68 * KB, 80 * KB
G4_ORD = [0, 1, 4, 5, 8, 9, 12, 13, 2, 3, 6, 7, 10, 11, 14, 15]


def g4_ids(C):
    A = C.A
    A('s_and_b32 s18, s22, 3')
    A('s_lshl_b32 s30, s21, 2')
    A('s_add_u32 s18, s18, s30')
    A('s_and_b32 s30, s22, 12')
    A('s_add_u32 s30, s30, s25')
    A('s_lshl_b32 s30, s30, 1')
    A('s_add_u32 s30, s30, s26')
    A('s_lshl_b32 s19, s18, 5')
    A('s_add_u32 s19, s19, s30')
    A('s_lshl_b32 s19, s19, 10')
    A('s_lshr_b32 s3, s22, 2')
    A('s_and_b32 s30, s21, 3')
    A('s_xor_b32 s3, s3, s30')


def g4_waddr(C, vreg, wbase):
    A = C.A
    A('s_lshl_b32 s30, s26, 8')
    A(f'v_xor_b32 {v(vreg)}, s30, v3')
    A('s_and_b32 s30, s19, 0x7fff')
    A('s_lshl_b32 s30, s30, 4')
    A(f's_add_u32 s30, s30, {wbase}')
    A(f'v_add_u32 {v(vreg)}, s30, {v(vreg)}')


def g4_wreg(mode, i):
    if mode == 'qkv':
        return 128 + 4 * i
    return 224 + 4 * i if i < 8 else 64 + 4 * (i - 8)


def g4_wload(C, vreg, i, mode):
    so, im = soff(G4_ORD[i])
    C.vmem(f'buffer_load_dwordx4 {v(g4_wreg(mode, i), 4)}, {v(vreg)}, s[8:11], {so} offen offset:{im}', 'w')


def g4_pre(C, mode, xbase, resbase=None, raw=False):
    A = C.A
    EX = 96
    A('s_lshl_b32 s30, s18, 15')
    A('s_lshl_b32 s48, s20, 12')
    A('s_add_u32 s30, s30, s48')
    A(f's_add_u32 s30, s30, {xbase}')
    A('v_add_u32 v5, s30, v3')
    A('s_lshl_b32 s30, s26, 14')
    A(f's_add_u32 s30, s30, {XF0}')
    A('v_add_u32 v6, s30, v3')
    A(f'v_add_u32 v14, s48, v3')
    A(f's_add_u32 s48, s48, {XF0}')
    A('s_lshl_b32 s30, s20, 11')
    A(f's_add_u32 s30, s30, {RED4}')
    A('v_add_u32 v8, s30, v3')
    A('v_xor_b32 v7, 0x2000, v8')
    if mode == 'qkv':
        A('v_lshrrev_b32 v2, 5, v1')
        if not raw:
            A('v_lshlrev_b32 v4, 4, v2')
            A('s_and_b32 s31, s19, 0x7fff')
            A('s_lshr_b32 s31, s31, 4')
            A(f's_add_u32 s31, s31, {CSQKV}')
            C.vmem(f'buffer_load_dwordx4 {v(EX, 4)}, v4, s[8:11], s31 offen', 'ex')
            C.vmem(f'buffer_load_dwordx4 {v(EX + 4, 4)}, v4, s[8:11], s31 offen offset:32', 'ex')
            A('s_lshl_b32 s31, s25, 5')
            A(f's_add_u32 s31, s31, {CSQKV + 2048}')
            C.vmem(f'buffer_load_dwordx4 {v(EX + 8, 4)}, v4, s[8:11], s31 offen', 'ex')
        A('v_and_b32 v9, 31, v1')
        A('v_lshlrev_b32 v9, 3, v9')
        A(f'v_add_u32 v11, {ST4}, v9')
        A('s_lshl_b32 s30, s20, 8')
        A('v_add_u32 v10, s30, v11')
        A('v_lshl_add_u32 v9, v2, 9, v9')
        A('s_lshl_b32 s30, s18, 13')
        A('s_lshl_b32 s31, s20, 10')
        A('s_add_u32 s30, s30, s31')
        A(f's_add_u32 s30, s30, {resbase}')
        A('v_add_u32 v9, s30, v9')
        A('v_add_u32 v12, s48, v3')
        A('s_lshl_b32 s30, s25, 10')
        A(f's_add_u32 s30, s30, {KVR4}')
        A('v_add_u32 v13, s30, v3')
        A('v_bfe_u32 v15, v1, 4, 1')
        A('v_lshlrev_b32 v15, 9, v15')
        A('v_bfe_u32 v4, v1, 2, 1')
        A('v_lshl_add_u32 v15, v4, 8, v15')
        A('v_and_b32 v4, 3, v1')
        A('v_lshl_add_u32 v15, v4, 1, v15')
        A('v_bfe_u32 v4, v1, 3, 1')
        A('v_lshl_add_u32 v15, v4, 3, v15')
        A('v_lshl_add_u32 v15, v2, 6, v15')
    elif resbase is None:
        A('v_and_b32 v2, 31, v1')
        A('v_lshlrev_b32 v2, 10, v2')
        A('v_lshrrev_b32 v4, 5, v1')
        A('v_lshl_add_u32 v2, v4, 3, v2')
        A('s_lshl_b32 s30, s18, 15')
        A('s_and_b32 s31, s19, 0x7fff')
        A('s_lshr_b32 s31, s31, 5')
        A('s_add_u32 s30, s30, s31')
        C.vmem(f'buffer_load_dwordx2 {v(EX, 2)}, v2, s[12:15], s30 offen', 'ex')
        C.vmem(f'buffer_load_dwordx2 {v(EX + 2, 2)}, v2, s[12:15], s30 offen offset:16', 'ex')
    else:
        A(f's_add_u32 s31, s19, {resbase}')
        C.vmem(f'buffer_load_dwordx4 {v(EX, 4)}, v3, s[8:11], s31 offen', 'ex')


def ln_stats(A, T):
    for stp in (8, 4, 2):
        for e in range(stp):
            A(f'v_add_f32 {v(T + e)}, {v(T + e)}, {v(T + e + stp)}')
    A(f'v_mul_f32 {v(T)}, {f32(1.0 / 512)}, {v(T)}')
    A(f'v_mul_f32 {v(T + 1)}, {f32(1.0 / 512)}, {v(T + 1)}')
    A(f'v_fma_f32 {v(T + 1)}, -{v(T)}, {v(T)}, {v(T + 1)}')
    A(f'v_max_f32 {v(T + 1)}, 0, {v(T + 1)}')
    A(f'v_add_f32 {v(T + 1)}, {f32(1e-5)}, {v(T + 1)}')
    A(f'v_rsq_f32 {v(T + 1)}, {v(T + 1)}')


def g4_main(C, mode, outbase=None, sxout=None, kvf=None, kfl=None, hook_red=None, raw=None, endlab=None):
    A = C.A
    ACC, XR, EX = 16, 32, 96
    KW, KA, KR, T = 192, 208, 224, 108
    if not raw:
        A('s_mov_b32 m0, s48')
        A('s_nop 0')
        for k in range(4):
            C.vmem(f'buffer_load_dwordx4 v5, s[8:11], 0 offen offset:{k * 1024} lds', f'x{k}')

    def rd(i):
        A(f'ds_read_b128 {v(XR + 4 * (i % 8), 4)}, v6 offset:{G4_ORD[i] * 1024}')

    def mf(i):
        c = '0' if i == 0 else v(ACC, 16)
        A(f'v_mfma_f32_32x32x16_bf16 {v(ACC, 16)}, {v(g4_wreg(mode, i), 4)}, {v(XR + 4 * (i % 8), 4)}, {c}')

    def wq_loads():
        for i in range(16):
            so, im = soff(G4_ORD[i])
            A(f'buffer_load_dwordx4 {v(128 + 4 * i, 4)}, v64, s[8:11], {so} offen offset:{im}')

    if mode == 'qkv':
        A('s_add_u32 s35, s3, s26')
        if raw:
            raw['front']()
        else:
            for e in range(2):
                C.vmem(f'buffer_load_dwordx2 {v(T + 2 * e, 2)}, v9, s[8:11], 0 offen offset:{e * 256}', 'sx')
            l1, l2 = C.lab('w1'), C.lab('w2')
            A('s_cmp_eq_u32 s3, 0')
            A(f's_cbranch_scc1 {l1}')
            flag_b(C)
            wq_loads()
            A('s_waitcnt vmcnt(16)')
            A(f's_branch {l2}')
            A.label(l1)
            A('s_waitcnt vmcnt(0)')
            A.label(l2)
            C.vm = []
            C.stamp()
        lk = C.lab('k4')
        A('s_cmp_lg_u32 s3, 0')
        A(f's_cbranch_scc1 {lk}')
        if raw:
            raw['kvw']()
        else:
            for k in range(4):
                A(f'ds_read_b128 {v(KR + 4 * k, 4)}, v12 offset:{k * 1024}')
        for k in range(4):
            if not raw:
                A(f's_waitcnt lgkmcnt({3 - k})')
            A(f'v_mfma_f32_32x32x16_bf16 {v(KA, 16)}, {v(KW + 4 * k, 4)}, {v(KR + 4 * k, 4)}, {"0" if k == 0 else v(KA, 16)}')
        A.label(lk)
        if raw:
            raw['front2']()
        A(f'v_add_f32 {v(T)}, {v(T)}, {v(T + 2)}')
        A(f'v_add_f32 {v(T + 1)}, {v(T + 1)}, {v(T + 3)}')
        A(f'v_mov_b32 {v(T + 2)}, {v(T)}')
        A(f'v_mov_b32 {v(T + 3)}, {v(T + 1)}')
        A('s_nop 1')
        swap_add(A, T, T + 2)
        swap_add(A, T + 1, T + 3)
        A(f'ds_write_b64 v10, {v(T, 2)}')
        A(f'v_mov_b32 {v(T + 2)}, 0')
        A(f'v_mov_b32 v9, {ST4 + 8192}')
        A(f'ds_write_b32 v9, {v(T + 2)}')
        lk = C.lab('k5')
        A('s_cmp_lg_u32 s3, 0')
        A(f's_cbranch_scc1 {lk}')
        for k in range(4):
            A(f'ds_write_b128 v14, {v(KA + 4 * k, 4)} offset:{k * 1024}')
        A.label(lk)
        if raw and FR2:
            raw['wloads'](FR2, 16)
        A('s_waitcnt lgkmcnt(0)')
        A('s_barrier')
        for ww in range(8):
            A(f'ds_read_b64 {v(T + 2 * ww, 2)}, v11 offset:{ww * 256}')
        lv, le, lf = C.lab('v6'), C.lab('e6'), C.lab('f6')
        A('s_cmp_lg_u32 s35, 0')
        A(f's_cbranch_scc1 {le}')
        A('s_setprio 3')
        if FINE == 3:
            C.stamp()
        A('s_waitcnt lgkmcnt(4)')
        for ww in range(8):
            A(f'ds_read_b128 {v(KR + 4 * ww, 4)}, v13 offset:{ww * 4096}')
        A('s_waitcnt lgkmcnt(8)')
        for r in range(16):
            A(f'v_mov_b32 {v(KA + r)}, {v(T + r)}')
        ln_stats(A, KA)
        A('s_lshl_b32 s30, s18, 11')
        A(f's_add_u32 s30, s30, {kvf}')
        A('s_waitcnt lgkmcnt(0)')
        if raw:
            raw['kvcs0']()
        for stp in (16, 8, 4):
            for r in range(stp):
                A(f'v_add_f32 {v(KR + r)}, {v(KR + r)}, {v(KR + stp + r)}')
        if raw:
            raw['kvcs1']()
        for r in range(4):
            A(f'v_fma_f32 {v(KR + r)}, -{v(KA)}, {v(EX + 8 + r)}, {v(KR + r)}')
        for r in range(4):
            A(f'v_mul_f32 {v(KR + r)}, {v(KA + 1)}, {v(KR + r)}')
        for m in range(2):
            A(f'v_cvt_pk_bf16_f32 {v(KR + 8 + m)}, {v(KR + 2 * m)}, {v(KR + 2 * m + 1)}')
        A('s_cmp_ge_u32 s20, 2')
        A(f's_cbranch_scc1 {lv}')
        A('s_lshl_b32 s31, s20, 3')
        A('s_add_u32 s31, s31, s30')
        A(f'buffer_store_dwordx2 {v(KR + 8, 2)}, v3, s[8:11], s31 offen sc0 sc1')
        A(f's_branch {lf}')
        A.label(lv)
        A('s_lshl_b32 s31, s29, 10')
        A(f's_add_u32 s31, s31, {ST4 + 4096}')
        A('v_add_u32 v15, s31, v15')
        for r in range(4):
            op = 'ds_write_b16' if r % 2 == 0 else 'ds_write_b16_d16_hi'
            A(f'{op} v15, {v(KR + 8 + r // 2)} offset:{r * 16}')
        A('v_lshrrev_b32 v2, 3, v1')
        A('v_lshlrev_b32 v2, 8, v2')
        A(f'v_and_b32 {v(KR)}, 7, v1')
        A(f'v_lshl_add_u32 v2, {v(KR)}, 4, v2')
        A('v_add_u32 v15, s31, v2')
        A('s_mov_b32 exec_hi, 0')
        A(f'ds_read_b128 {v(KR + 12, 4)}, v15')
        A('s_lshl_b32 s31, s29, 7')
        A('s_add_u32 s31, s31, s30')
        A('s_waitcnt lgkmcnt(0)')
        A(f'buffer_store_dwordx4 {v(KR + 12, 4)}, v2, s[8:11], s31 offen offset:1024 sc0 sc1')
        A('s_mov_b64 exec, -1')
        A.label(lf)
        lg = C.lab('g6')
        if FINE == 3:
            C.stamp()
        A('s_lshl_b32 s30, s18, 7')
        A(f's_add_u32 s30, s30, {kfl}')
        if raw:
            raw['zchk']()
        A('s_mov_b64 exec, 1')
        A('s_waitcnt vmcnt(0)')
        A('ds_add_rtn_u32 v2, v9, v4')
        A('s_waitcnt lgkmcnt(0)')
        A('v_cmp_eq_u32 vcc, 3, v2')
        A('s_cbranch_vccz ' + lg)
        A('buffer_store_dword v4, v0, s[8:11], s30 offen sc0 sc1')
        A.label(lg)
        A('s_mov_b64 exec, -1')
        A('s_setprio 0')
        if FINE == 3:
            C.stamp()
        A.label(le)
        flag_b(C)
        A('s_waitcnt lgkmcnt(0)')
        if raw:
            raw['wprep']()
        else:
            l3 = C.lab('w3')
            A('s_cmp_lg_u32 s3, 0')
            A(f's_cbranch_scc1 {l3}')
            C.flagb = True
            flag_b(C)
            wq_loads()
            A.label(l3)
        if raw:
            raw['loop'](rd, mf)
        else:
            for i in range(8):
                rd(i)
            ln_stats(A, T)
            for i in range(16):
                A(f's_waitcnt lgkmcnt({7 if i < 8 else 15 - i}) vmcnt({15 - i})')
                mf(i)
                if i < 8:
                    rd(i + 8)
    else:
        def wl(i):
            so, im = soff(G4_ORD[i])
            C.vmem(f'buffer_load_dwordx4 {v(g4_wreg(mode, i), 4)}, v116, s[8:11], {so} offen offset:{im}', f'w{i}')
        if WO_LATE:
            for i in range(8, 8 + WO_L0):
                wl(i)
        C.wait('x1')
        A('s_barrier')
        C.stamp()
        for i in range(8):
            rd(i)
        if WO_LATE:
            for i in range(8 + WO_L0, 16):
                wl(i)
        for i in range(4):
            A(f's_waitcnt lgkmcnt({7 - i})')
            mf(i)
        C.wait('x3')
        A('s_barrier')
        for i in range(8, 12):
            rd(i)
        for i in range(4, 8):
            A('s_waitcnt lgkmcnt(7)')
            mf(i)
            rd(i + 8)
        flag_b(C)
        for i in range(8, 16):
            C.wait(f'w{i}', f'lgkmcnt({15 - i})')
            mf(i)
            if hook_red and i >= 8:
                hook_red(i - 8)
    C.stamp()
    if mode == 'qkv':
        kv_setup(C, kvf, kfl)
        A(f'v_mul_f32 {v(T + 2)}, {f32(QSCALE)}, {v(T + 1)}')
        if raw:
            raw['cs0']()
    else:
        C.wait('ex')
        TT = XR
        for m in range(4):
            A(f'v_lshlrev_b32 {v(TT + 2 * m)}, 16, {v(EX + m)}')
            A(f'v_and_b32 {v(TT + 2 * m + 1)}, 0xffff0000, {v(EX + m)}')
        A('s_nop 3')
    for h2 in range(2):
        A(f'ds_write_b128 v7, {v(ACC + 8 + 4 * h2, 4)} offset:{h2 * 1024}')
    if mode == 'qkv':
        if not raw:
            for r in range(8):
                A(f'v_fma_f32 {v(ACC + r)}, -{v(T)}, {v(EX + r)}, {v(ACC + r)}')
    else:
        for r in range(8):
            A(f'v_add_f32 {v(ACC + r)}, {v(ACC + r)}, {v(XR + r)}')
    A('s_waitcnt lgkmcnt(0)')
    A('s_barrier')
    for h2 in range(2):
        A(f'ds_read_b128 {v(ACC + 8 + 4 * h2, 4)}, v8 offset:{h2 * 1024}')
    if mode == 'qkv':
        if FINE == 3:
            C.stamp()
        kv_wait(C, 1, endlab)
        if FINE == 3:
            C.stamp()
        att_kvdma(C, 0)
        kv_flagload(C)
    if raw:
        raw['cs']()
        for r in range(8):
            A(f'v_fma_f32 {v(ACC + r)}, -{v(T)}, {v(EX + r)}, {v(ACC + r)}')
    A('s_waitcnt lgkmcnt(0)')
    for r in range(8):
        A(f'v_add_f32 {v(ACC + r)}, {v(ACC + r)}, {v(ACC + 8 + r)}')
    if mode == 'qkv':
        for r in range(8):
            A(f'v_mul_f32 {v(ACC + r)}, {v(T + 2)}, {v(ACC + r)}')
        for m in range(4):
            A(f'v_cvt_pk_bf16_f32 {v(124 + m)}, {v(ACC + 2 * m)}, {v(ACC + 2 * m + 1)}')
        A('s_barrier')
    else:
        P = ACC + 8
        for m in range(4):
            A(f'v_cvt_pk_bf16_f32 {v(P + m)}, {v(ACC + 2 * m)}, {v(ACC + 2 * m + 1)}')
        A(f's_add_u32 s31, s19, {outbase}')
        C.vmem(f'buffer_store_dwordx4 {v(P, 4)}, v3, s[8:11], s31 offen{WT}', 'st')
        blk_stats(C, P, XR)
        A('s_lshr_b32 s31, s19, 2')
        A(f's_add_u32 s31, s31, {sxout}')
        A('v_lshlrev_b32 v4, 3, v1')
        A('s_mov_b32 exec_hi, 0')
        C.vmem(f'buffer_store_dwordx2 {v(XR, 2)}, v4, s[8:11], s31 offen{WT}', 'st')
        A('s_mov_b64 exec, -1')


def qkv4_wstep(C, st, n):
    pass


def qkv4_wrest(C):
    A = C.A
    l = C.lab('kw')
    A('s_lshl_b32 s30, s20, 12')
    A(f's_add_u32 s30, s30, {WQKVP + 16 * 32 * KB}')
    A('s_cmp_lg_u32 s3, 0')
    A(f's_cbranch_scc1 {l}')
    for k in range(4):
        A(f'buffer_load_dwordx4 {v(192 + 4 * k, 4)}, v3, s[8:11], s30 offen offset:{k * 1024}')
    A.label(l)


def att_kvdma(C, r):
    A = C.A
    A(f's_add_u32 s30, s39, {r * 16384}')
    A('s_and_b32 s30, s30, 0x1ffff')
    A(f's_add_u32 m0, s37, {r * 8 * KVT}')
    A('s_add_u32 s30, s30, s38')
    A('buffer_load_dwordx4 v3, s[8:11], s30 offen lds')
    A('buffer_load_dwordx4 v3, s[8:11], s30 offen offset:1024 lds')


def kv_flagload(C):
    A = C.A
    A('s_mov_b64 exec, 0xff')
    A('buffer_load_dword v2, v0, s[8:11], s33 offen sc1')
    A('s_mov_b64 exec, -1')


def kv_setup(C, kvf, kfl):
    A = C.A
    A(f's_mul_i32 s37, s20, {KVT}')
    A('s_lshl_b32 s38, s20, 11')
    A(f's_add_u32 s38, s38, {kvf}')
    A('s_lshr_b32 s30, s21, 1')
    A('s_lshl_b32 s39, s30, 14')
    A('v_add_u32 v0, s30, v1')
    A('v_and_b32 v0, 7, v0')
    A('v_lshlrev_b32 v0, 10, v0')
    A('s_lshl_b32 s33, s20, 7')
    A(f's_add_u32 s33, s33, {kfl}')
    kv_flagload(C)


def kv_wait(C, mask, endlab):
    A = C.A
    lp, lpd = C.lab('kp'), C.lab('kpd')
    A('s_mov_b32 s31, 0')
    A('s_mov_b64 exec, 0xff')
    A.label(lp)
    A('s_add_u32 s31, s31, 1')
    A('s_waitcnt vmcnt(0)')
    A('v_cmp_ne_u32 vcc, 0, v2')
    A(f's_and_b32 s30, vcc_lo, {mask}')
    A(f's_cmp_eq_u32 s30, {mask}')
    A(f's_cbranch_scc1 {lpd}')
    A(f's_sleep {KV_SLEEP}')
    A('buffer_load_dword v2, v0, s[8:11], s33 offen sc1')
    A(f's_cmp_lt_u32 s31, {1 << 21}')
    A(f's_cbranch_scc1 {lp}')
    A(f's_branch {endlab}')
    A.label(lpd)
    A('s_mov_b64 exec, -1')


def att_phase(C, kvf, kfl, endlab, stubs, fixed={}, pf0=None, pre_hook=None, loadq=True, early=False):
    A = C.A
    tg = C.tag
    Q, CN, S0, S1, O, P, KF, VF, VK, VV, T = 124, 8, 24, 40, 56, 72, 80, 88, 104, 105, 106
    VV1 = 111
    S = [S0, S1]
    A(f's_add_u32 s36, s19, {C.B["OF"]}')
    if loadq:
        A(f's_add_u32 s31, s19, {C.B["QF"]}')
        C.vmem(f'buffer_load_dwordx4 {v(Q, 4)}, v3, s[8:11], s31 offen', 'q')
        flag_b(C)
    def kvdma(r):
        att_kvdma(C, r)
    if pre_hook:
        pre_hook()
    A(f'v_mov_b32 {v(VK)}, v3')
    A(f'v_and_b32 {v(T)}, 15, v1')
    A(f'v_lshrrev_b32 {v(T + 1)}, 5, v1')
    A(f'v_lshl_add_u32 {v(T)}, {v(T + 1)}, 4, {v(T)}')
    A(f'v_lshlrev_b32 {v(T)}, 4, {v(T)}')
    A(f'v_add_u32 {v(VV)}, 1024, {v(T)}')
    A(f'v_add_u32 {v(VV1)}, 1536, {v(T)}')
    A(f'v_and_b32 {v(T + 1)}, 31, v1')
    A(f'v_cmp_eq_u32 vcc, 16, {v(T + 1)}')
    A(f'v_mov_b32 {v(T + 2)}, 2048')
    A('s_nop 0')
    A(f'v_cndmask_b32 {v(VV)}, {v(VV)}, {v(T + 2)}, vcc')
    A(f'v_cndmask_b32 {v(VV1)}, {v(VV1)}, {v(T + 2)}, vcc')
    A(f'v_cmp_lt_u32 vcc, 16, {v(T + 1)}')
    A(f'v_mov_b32 {v(T + 2)}, 2064')
    A('s_nop 0')
    A(f'v_cndmask_b32 {v(VV)}, {v(VV)}, {v(T + 2)}, vcc')
    A(f'v_cndmask_b32 {v(VV1)}, {v(VV1)}, {v(T + 2)}, vcc')
    A(f'v_subrev_u32 {v(T + 1)}, 20, {v(T + 1)}')
    A(f'v_cmp_gt_u32 vcc, 8, {v(T + 1)}')
    A(f'v_mov_b32 {v(T + 2)}, 2112')
    A('s_nop 0')
    A(f'v_cndmask_b32 {v(VV)}, {v(VV)}, {v(T + 2)}, vcc')
    A(f'v_cndmask_b32 {v(VV1)}, {v(VV1)}, {v(T + 2)}, vcc')
    for r in range(16):
        A(f'v_mov_b32 {v(O + r)}, 0')
    for m in range(4, 8):
        A(f'v_mov_b32 {v(P + m)}, 0')
    for m in range(4):
        A(f'v_mov_b32 {v(VF + 12 + m)}, 0')
        A(f'v_mov_b32 {v(P + m)}, 0x3f803f80')
    A(f'v_mul_u32_u24 {v(T)}, {KVT}, v1')
    lcw = C.lab('cw')
    A('s_cmp_lg_u32 s20, 7')
    A(f's_cbranch_scc1 {lcw}')
    A(f'ds_write_b128 {v(T)}, {v(P, 4)} offset:2048')
    A(f'ds_write_b128 {v(T)}, {v(P + 4, 4)} offset:2064')
    A(f'ds_write_b128 {v(T)}, {v(P + 4, 4)} offset:2112')
    A.label(lcw)
    lnd = C.lab('nd')
    A('s_waitcnt vmcnt(0) lgkmcnt(0)')
    A('v_cmp_ne_u32 vcc, 0, v2')
    A('s_barrier')
    A('s_and_b32 s32, vcc_lo, 0xff')
    A('s_cmp_lg_u32 s32, 0xff')
    A(f's_cbranch_scc1 {lnd}')
    for r in range(1, 4):
        kvdma(r)
    A.label(lnd)
    C.vm = []
    C.stamp()

    def rdK(buf, t):
        A(f'ds_read_b128 {v(KF + buf * 4, 4)}, {v(VK)} offset:{t * KVT}')

    def rdV(buf, t):
        A(f'ds_read_b128 {v(VF + buf * 8, 4)}, {v(VV)} offset:{t * KVT}')
        A(f'ds_read_b128 {v(VF + buf * 8 + 4, 4)}, {v(VV1)} offset:{t * KVT}')

    rdK(0, 0)
    rdK(1, 1)
    rdV(0, 0)
    A('s_waitcnt lgkmcnt(3)')
    A(f'v_mfma_f32_32x32x16_bf16 {v(S0, 16)}, {v(KF, 4)}, {v(Q, 4)}, 0')
    A('s_nop 11')
    A(f'v_max3_f32 {v(T)}, {v(S0)}, {v(S0 + 1)}, {v(S0 + 2)}')
    for r in range(3, 15, 2):
        A(f'v_max3_f32 {v(T)}, {v(T)}, {v(S0 + r)}, {v(S0 + r + 1)}')
    A(f'v_max_f32 {v(T)}, {v(T)}, {v(S0 + 15)}')
    A(f'v_mov_b32 {v(T + 1)}, {v(T)}')
    A('s_nop 1')
    A(f'v_permlane32_swap_b32 {v(T)}, {v(T + 1)}')
    A(f'v_max_f32 {v(T)}, {v(T)}, {v(T + 1)}')
    for r in range(16):
        A(f'v_sub_f32 {v(CN + r)}, 0, {v(T)}')
    for r in range(16):
        A(f'v_sub_f32 {v(S0 + r)}, {v(S0 + r)}, {v(T)}')
    A('s_setprio 3')
    C.stamp()
    def tile(t, off, extra=None):
        cur, nxt = t & 1, (t + 1) & 1
        Sc, Sn = S[cur], S[nxt]
        if not ONEWAIT:
            A('s_waitcnt lgkmcnt(2)')
        A(f'v_mfma_f32_32x32x16_bf16 {v(Sn, 16)}, {v(KF + nxt * 4, 4)}, {v(Q, 4)}, {v(CN, 16)}')
        rdK(cur, off + 2)
        for r in range(6):
            A(f'v_exp_f32 {v(Sc + r)}, {v(Sc + r)}')
        A(f'v_mfma_f32_32x32x16_bf16 {v(O, 16)}, {v(VF + nxt * 8 + 4, 4)}, {v(P + 4, 4)}, {v(O, 16)}')
        if extra:
            extra()
        for r in range(6, 8):
            A(f'v_exp_f32 {v(Sc + r)}, {v(Sc + r)}')
        for m in range(4):
            A(f'v_cvt_pk_bf16_f32 {v(P + m)}, {v(Sc + 2 * m)}, {v(Sc + 2 * m + 1)}')
        A(f'v_exp_f32 {v(Sc + 8)}, {v(Sc + 8)}')
        A(f'v_exp_f32 {v(Sc + 9)}, {v(Sc + 9)}')
        A('s_waitcnt lgkmcnt(0)' if ONEWAIT else 's_waitcnt lgkmcnt(1)')
        A(f'v_mfma_f32_32x32x16_bf16 {v(O, 16)}, {v(VF + cur * 8, 4)}, {v(P, 4)}, {v(O, 16)}')
        rdV(nxt, off + 1)
        for r in range(10, 16):
            A(f'v_exp_f32 {v(Sc + r)}, {v(Sc + r)}')
        for m in range(4, 8):
            A(f'v_cvt_pk_bf16_f32 {v(P + m)}, {v(Sc + 2 * m)}, {v(Sc + 2 * m + 1)}')

    def bump(n):
        for rg in (VK, VV, VV1):
            A(f'v_add_u32 {v(rg)}, {n * KVT}, {v(rg)}')
    if ONEWAIT:
        A('s_waitcnt lgkmcnt(0)')
    queue = list(stubs)
    nq = len(queue)
    tpf0 = pf0 if pf0 else TB2
    ntl = 64 - TPFEND - tpf0
    prio = {TP2: 2, TP1: 1, TP0: 0}
    dq = list(range(4, 8))
    for t in range(64):
        if t == TCHK:
            ld = C.lab('dn')
            A('s_cmp_eq_u32 s32, 0xff')
            A(f's_cbranch_scc1 {ld}')
            kv_flagload(C)
            kv_wait(C, 0xff, endlab)
            for r in range(1, 4):
                kvdma(r)
            A.label(ld)
        if t == 6 and TB2 != 6:
            assert not dq
            A('s_waitcnt vmcnt(12)')
            A('s_barrier')
        if t == TB2:
            assert not dq
            A('s_waitcnt vmcnt(0)')
            A('s_barrier')
        if t in prio:
            A(f's_setprio {prio[t]}')
        if t in fixed:
            fixed[t]()
        fs = []
        if t >= TCHK:
            for _ in range(DPT):
                if dq:
                    fs.append(lambda r=dq.pop(0): kvdma(r))
        if t >= tpf0 and queue:
            k = t - tpf0
            n = (nq * (k + 1)) // ntl - (nq * k) // ntl
            fs += [queue.pop(0) for _ in range(min(n, len(queue)))]
        tile(t, t % 24 if t < 48 else t - 48, lambda fs=fs: [f() for f in fs])
        if t in (23, 47):
            bump(24)
        if t == 63:
            bump(16)
    assert not queue
    A(f'v_mfma_f32_32x32x16_bf16 {v(O, 16)}, {v(VF + 8 + 4, 4)}, {v(P + 4, 4)}, {v(O, 16)}')
    A('s_mov_b32 s39, 0')
    C.stamp()
    A('s_waitcnt lgkmcnt(0)')
    A('s_nop 10')
    A.label(f'{tg}_fin')
    A(f'v_mov_b32 {v(T)}, {v(O + 8)}')
    A(f'v_mov_b32 {v(T + 1)}, {v(O + 8)}')
    A(f'v_mul_f32 {v(T + 2)}, 0, {v(O)}')
    A(f'v_fma_f32 {v(T + 2)}, {v(O + 1)}, 0, {v(T + 2)}')
    A(f'v_permlane32_swap_b32 {v(T)}, {v(T + 1)}')
    for r in range(2, 8):
        A(f'v_fma_f32 {v(T + 2)}, {v(O + r)}, 0, {v(T + 2)}')
    A(f'v_add_f32 {v(T + 2)}, {v(T + 2)}, {v(T)}')
    A(f'v_mov_b32 {v(T + 3)}, {f32(2.0 ** 30)}')
    A(f'v_cmp_nle_f32 vcc, {v(T + 2)}, {v(T + 3)}')
    A(f'v_rcp_f32 {v(T)}, {v(T)}')
    A('s_cmp_eq_u32 s39, 99')
    A(f's_cbranch_scc1 {tg}_store')
    A(f's_cbranch_vccnz {tg}_slow')
    A.label(f'{tg}_store')
    for r in range(8):
        A(f'v_mul_f32 {v(O + r)}, {v(T)}, {v(O + r)}')
    for m in range(4):
        A(f'v_cvt_pk_bf16_f32 {v(P + m)}, {v(O + 2 * m)}, {v(O + 2 * m + 1)}')
    C.vmem(f'buffer_store_dwordx4 {v(P, 4)}, v3, s[8:11], s36 offen{WT}', 'st')

    def tail(with_body):
        A.label(f'{tg}_slow')
        A(f'v_subrev_u32 {v(VK)}, {64 * KVT}, {v(VK)}')
        A(f'v_subrev_u32 {v(VV)}, {64 * KVT}, {v(VV)}')
        A(f'v_subrev_u32 {v(VV1)}, {64 * KVT}, {v(VV1)}')
        for r in range(16):
            A(f'v_mov_b32 {v(O + r)}, 0')
        M = T + 4
        A(f'v_sub_f32 {v(M)}, 0, {v(CN)}')
        A.label(f'{tg}_sloop')
        rdK(0, 0)
        rdV(0, 0)
        A('s_waitcnt lgkmcnt(0)')
        A(f'v_mfma_f32_32x32x16_bf16 {v(S0, 16)}, {v(KF, 4)}, {v(Q, 4)}, 0')
        A('s_nop 11')
        A(f'v_max3_f32 {v(T)}, {v(S0)}, {v(S0 + 1)}, {v(S0 + 2)}')
        for r in range(3, 15, 2):
            A(f'v_max3_f32 {v(T)}, {v(T)}, {v(S0 + r)}, {v(S0 + r + 1)}')
        A(f'v_max3_f32 {v(T)}, {v(T)}, {v(S0 + 15)}, {v(M)}')
        A(f'v_mov_b32 {v(T + 1)}, {v(T)}')
        A('s_nop 1')
        A(f'v_permlane32_swap_b32 {v(T)}, {v(T + 1)}')
        A(f'v_max_f32 {v(T)}, {v(T)}, {v(T + 1)}')
        A(f'v_sub_f32 {v(T + 1)}, {v(M)}, {v(T)}')
        A(f'v_exp_f32 {v(T + 1)}, {v(T + 1)}')
        A(f'v_mov_b32 {v(M)}, {v(T)}')
        for r in range(16):
            A(f'v_sub_f32 {v(S0 + r)}, {v(S0 + r)}, {v(T)}')
        for r in range(16):
            A(f'v_exp_f32 {v(S0 + r)}, {v(S0 + r)}')
        for r in range(16):
            A(f'v_mul_f32 {v(O + r)}, {v(T + 1)}, {v(O + r)}')
        for m in range(8):
            A(f'v_cvt_pk_bf16_f32 {v(P + m)}, {v(S0 + 2 * m)}, {v(S0 + 2 * m + 1)}')
        A('s_nop 1')
        A(f'v_mfma_f32_32x32x16_bf16 {v(O, 16)}, {v(VF, 4)}, {v(P, 4)}, {v(O, 16)}')
        A(f'v_mfma_f32_32x32x16_bf16 {v(O, 16)}, {v(VF + 4, 4)}, {v(P + 4, 4)}, {v(O, 16)}')
        A(f'v_add_u32 {v(VK)}, {KVT}, {v(VK)}')
        A(f'v_add_u32 {v(VV)}, {KVT}, {v(VV)}')
        A(f'v_add_u32 {v(VV1)}, {KVT}, {v(VV1)}')
        A('s_nop 11')
        A('s_add_u32 s39, s39, 1')
        A('s_cmp_lt_u32 s39, 64')
        A(f's_cbranch_scc1 {tg}_sloop')
        A('s_mov_b32 s39, 99')
        A(f's_branch {tg}_fin')
    return tail


V_WGU = 112


def gu_waddr(C):
    A = C.A
    A('s_mul_i32 s30, s22, 7')
    A('s_min_u32 s31, s20, 6')
    A('s_add_u32 s40, s30, s31')
    A('s_lshl_b32 s30, s40, 15')
    A(f's_add_u32 s30, s30, {WGUP}')
    if W7OFF:
        A('s_cmp_eq_u32 s20, 7')
        A('s_cselect_b32 s30, 0x70000000, s30')
    A(f'v_add_u32 {v(V_WGU)}, s30, v3')


def gu_wload(C, ks):
    so, im = soff(ks)
    C.vmem(f'buffer_load_dwordx4 {v(128 + 4 * ks, 4)}, {v(V_WGU)}, s[8:11], {so} offen offset:{im}', 'wg')


def gu_pre(C):
    A = C.A
    CS = 112
    A('v_mov_b32 v15, v113')
    A('v_mov_b32 v9, v114')
    A(f'v_mov_b32 v14, {v(V_WGU)}')
    A('s_lshl_b32 s30, s21, 2')
    A('s_add_u32 s30, s30, s25')
    A('s_lshl_b32 s30, s30, 15')
    A('s_lshl_b32 s31, s26, 11')
    A('s_add_u32 s30, s30, s31')
    A(f's_add_u32 s30, s30, {C.B["XB"]}')
    A('v_add_u32 v13, s30, v3')
    A('s_lshl_b32 s48, s25, 15')
    A('s_add_u32 s48, s48, s31')
    A('v_add_u32 v7, 0x10000, v3')
    A('v_lshrrev_b32 v11, 5, v1')
    A('v_lshlrev_b32 v11, 4, v11')
    A('s_min_u32 s30, s20, 6')
    A('s_lshl_b32 s30, s30, 7')
    A(f's_add_u32 s30, s30, {132 * KB}')
    A('v_add_u32 v10, s30, v11')
    A('v_and_b32 v12, 31, v1')
    A('v_lshlrev_b32 v12, 3, v12')
    A('v_lshl_add_u32 v12, v11, 8, v12')
    A('s_lshl_b32 s30, s21, 15')
    A(f's_add_u32 s30, s30, {C.B["SXB"]}')
    A('v_add_u32 v12, s30, v12')
    A(f'v_add_u32 v8, {128 * KB}, v3')


def gu_main(C, after_store=None):
    A = C.A
    ACC, XF, CS = 16, 80, 112
    STR = [4, 10, 240, 244]

    def dma(c):
        A(f's_add_u32 m0, s48, {c * 4096}')
        so = '0' if c == 0 else s(40 + c)
        A('s_nop 0')
        for k in range(2):
            C.vmem(f'buffer_load_dwordx4 v13, s[8:11], {so} offen offset:{k * 1024} lds', f'x{c}')
    dma(0)
    dma(1)

    def rd(ks):
        buf = ks & 1
        for i in range(4):
            base = 'v3' if i < 2 else 'v7'
            A(f'ds_read_b128 {v(XF + buf * 16 + i * 4, 4)}, {base} offset:{(i & 1) * 32768 + ks * 1024}')

    def stats_load(i):
        for e in range(16):
            C.vmem(f'buffer_load_dwordx2 {v(ACC + (i & 1) * 32 + 2 * e, 2)}, v12, s[8:11], {"0" if i == 0 else s(40 + 2 * i)} offen offset:{e * 256}', f's{i}')

    def stats_sum(i):
        b = ACC + (i & 1) * 32
        C.wait(f's{i}')
        for stp in (16, 8, 4, 2):
            for e in range(stp):
                A(f'v_add_f32 {v(b + e)}, {v(b + e)}, {v(b + e + stp)}')
        A(f'v_mov_b32 {v(b + 2)}, {v(b)}')
        A(f'v_mov_b32 {v(b + 3)}, {v(b + 1)}')
        A('s_nop 1')
        A(f'v_permlane32_swap_b32 {v(b)}, {v(b + 2)}')
        A(f'v_permlane32_swap_b32 {v(b + 1)}, {v(b + 3)}')
        A(f'v_add_f32 {v(b)}, {v(b)}, {v(b + 2)}')
        A(f'v_add_f32 {v(b + 1)}, {v(b + 1)}, {v(b + 3)}')
        A(f'v_mul_f32 {v(b)}, {f32(-1.0 / 512)}, {v(b)}')
        A(f'v_mul_f32 {v(b + 1)}, {f32(1.0 / 512)}, {v(b + 1)}')
        A(f'v_fma_f32 {v(b + 1)}, -{v(b)}, {v(b)}, {v(b + 1)}')
        A(f'v_max_f32 {v(b + 1)}, 0, {v(b + 1)}')
        A(f'v_add_f32 {v(b + 1)}, {f32(1e-5)}, {v(b + 1)}')
        A(f'v_rcp_f32 {v(b + 2)}, {v(b + 1)}')
        A(f'v_mov_b32 {v(b + 1)}, {v(b)}')
        A(f'v_mov_b32 {v(b + 3)}, {v(b + 2)}')
        A(f'ds_write_b128 v8, {v(b, 4)} offset:{i * 1024}')
        A('s_waitcnt lgkmcnt(0)')

    def loop(idle):
        C.wait('x0')
        A('s_barrier')
        C.stamp()
        if not idle:
            rd(0)
        for ks in range(32):
            if ks + 1 < 32:
                if (ks + 1) in GU_BARS:
                    C.wait(f'x{GU_BARS[ks + 1]}')
                    A('s_barrier')
                if not idle:
                    rd(ks + 1)
                    if ks == 28:
                        for g in range(4):
                            A(f'ds_read_b128 {v(CS + g * 4, 4)}, v10 offset:{g * 32}')
                        A('s_waitcnt lgkmcnt(8)')
                    elif ks == 30:
                        for i in range(4):
                            A(f'ds_read_b128 {v(STR[i], 4)}, v8 offset:{i * 1024}')
                        A('s_waitcnt lgkmcnt(8)')
                    else:
                        A('s_waitcnt lgkmcnt(4)')
            elif not idle:
                A('s_waitcnt lgkmcnt(0)')
            buf = ks & 1
            todo = []
            if ks == 10:
                C.flagb = True
                flag_b(C)
            if ks < 6:
                todo.append(lambda: dma(ks + 2))
            if ks == 16 + WO_TAIL and not idle:
                C.wait('wg')
            if 6 <= ks < 6 + 16 - WO_TAIL and not idle:
                k2 = 16 + WO_TAIL + ks - 6
                so, im = soff(k2)
                todo.append(lambda k2=k2, so=so, im=im: C.vmem(f'buffer_load_dwordx4 {v(128 + 4 * k2, 4)}, v14, s[8:11], {so} offen offset:{im}', 'wg'))
            if ks >= GU_WD0:
                nleft = 28 - len(wdone)
                for st in [st for st in range(28) if st < ks and st not in wdone][:(2 if nleft > 31 - ks else 1)]:
                    todo.append(lambda st=st: g3_wload(C, (15, 9), st, 128))
                    wdone.add(st)
            for i in range(4):
                if not idle and not (GU_TAIL and (ks == 31 or (ks == 30 and i >= 2))):
                    c = '0' if ks == 0 else v(ACC + i * 16, 16)
                    if GU16:
                        for t2 in range(2):
                            aa = ACC + i * 16 + ((ks & 1) * 2 + t2) * 4
                            A(f'v_mfma_f32_16x16x32_bf16 {v(aa, 4)}, {v(128 + 4 * (ks ^ t2 if ks > 1 else ks), 4)}, {v(XF + buf * 16 + i * 4, 4)}, {"0" if ks < 2 else v(aa, 4)}')
                    else:
                        A(f'v_mfma_f32_32x32x16_bf16 {v(ACC + i * 16, 16)}, {v(128 + 4 * ks, 4)}, {v(XF + buf * 16 + i * 4, 4)}, {c}')
                if i < 3 and todo:
                    f_ = todo.pop(0)
                    if not (GU_NOW and ks >= 6):
                        f_()
            if idle:
                if ks == 6:
                    stats_load(0)
                    stats_load(1)
                if ks == 8:
                    stats_sum(0)
                    stats_load(2)
                    stats_sum(1)
                    stats_load(3)
                if ks == 12:
                    stats_sum(2)
                    stats_sum(3)
                    A(f's_mul_i32 s30, s22, {7 * 128}')
                    A(f's_add_u32 s30, s30, {CSP}')
                    for kp in range(8):
                        C.vmem(f'buffer_load_dwordx4 {v(ACC + 4 * kp, 4)}, v3, s[8:11], s30 offen', 'cp')
                        if kp < 7:
                            A(f's_add_u32 s30, s30, {3584 * 4}')
                if ks == 16:
                    C.wait('cp')
                    for stp in (16, 8, 4):
                        for e in range(stp):
                            A(f'v_add_f32 {v(ACC + e)}, {v(ACC + e)}, {v(ACC + e + stp)}')
                    A(f'v_add_u32 v10, {132 * KB}, v3')
                    A(f'ds_write_b128 v10, {v(ACC, 4)}')
                    A('s_waitcnt lgkmcnt(0)')
        assert len(wdone) == 28
        C.stamp()
        if idle:
            if after_store:
                after_store()
            return
        P = XF

        def epi(i):
            acc = ACC + i * 16
            for r in range(0, 16, 2):
                A(f'v_pk_fma_f32 {v(acc + r, 2)}, {v(STR[i], 2)}, {v(CS + r, 2)}, {v(acc + r, 2)}')
            for r in range(0, 8, 2):
                A(f'v_pk_mul_f32 {v(acc + r, 2)}, {v(acc + r, 2)}, {v(acc + 8 + r, 2)}')
            for r in range(0, 8, 2):
                A(f'v_pk_mul_f32 {v(acc + r, 2)}, {v(acc + r, 2)}, {v(STR[i] + 2, 2)}')
            pp = acc + 8
            for m in range(4):
                A(f'v_cvt_pk_bf16_f32 {v(pp + m)}, {v(acc + 2 * m)}, {v(acc + 2 * m + 1)}')
            C.vmem(f'buffer_store_dwordx4 {v(pp, 4)}, v3, s[8:11], s30 offen{WT}', 'st')
            if i < 3:
                A(f's_add_u32 s30, s30, {112 * KB}')

        def mm(i, ks):
            A(f'v_mfma_f32_32x32x16_bf16 {v(ACC + i * 16, 16)}, {v(128 + 4 * ks, 4)}, {v(XF + (ks & 1) * 16 + i * 4, 4)}, {v(ACC + i * 16, 16)}')
        A(f's_mul_i32 s30, s21, {4 * 112}')
        A('s_add_u32 s30, s30, s40')
        A('s_lshl_b32 s30, s30, 10')
        A(f's_add_u32 s30, s30, {C.B["HF"]}')
        if GU_TAIL:
            A('s_waitcnt lgkmcnt(0)')
            mm(0, 31)
            mm(2, 30)
            mm(1, 31)
            mm(3, 30)
            A('s_nop 8')
            epi(0)
            mm(2, 31)
            mm(3, 31)
            epi(1)
            epi(2)
            epi(3)
        else:
            A('s_nop 4')
            for i in range(4):
                epi(i)
        if after_store:
            after_store()

    ls, le = C.lab('gs'), C.lab('ge')
    A('s_cmp_eq_u32 s20, 7')
    A(f's_cbranch_scc1 {ls}')
    save, ns = list(C.vm), C.nstamp
    wdone = set()
    loop(False)
    A(f's_branch {le}')
    A.label(ls)
    C.vm, C.nstamp = list(save), ns
    wdone = set()
    loop(True)
    A.label(le)
    C.vm = ['st']


def flag_addr(C, sreg, sync):
    C.A(f's_lshl_b32 {s(sreg)}, s21, 8')
    C.A(f's_add_u32 {s(sreg)}, {s(sreg)}, {FLG + sync * 4096}')


GCNT = 134 * KB


def arrive(C, k, sync):
    A = C.A
    l = C.lab('p7')
    A('s_mov_b64 exec, 1')
    A(f'v_mov_b32 v14, {GCNT + 4 * k}')
    A('ds_add_rtn_u32 v14, v14, v4')
    A('s_waitcnt lgkmcnt(0)')
    C.lds = []
    A('v_cmp_eq_u32 vcc, 6, v14')
    A(f's_cbranch_vccz {l}')
    flag_addr(C, 30, sync)
    A('s_lshl_b32 s31, s22, 2')
    A('s_add_u32 s30, s30, s31')
    A('buffer_store_dword v4, v0, s[8:11], s30 offen')
    A('buffer_store_dword v4, v0, s[8:11], s30 offen offset:128 sc0 sc1')
    A.label(l)
    A('s_mov_b64 exec, -1')


def publish7(C, sync):
    A = C.A
    l = C.lab('p7')
    A('s_cmp_lg_u32 s20, 7')
    A(f's_cbranch_scc1 {l}')
    flag_addr(C, 30, sync)
    A('s_lshl_b32 s31, s22, 2')
    A('s_add_u32 s30, s30, s31')
    A('s_mov_b64 exec, 1')
    A('buffer_store_dword v4, v0, s[8:11], s30 offen')
    A('buffer_store_dword v4, v0, s[8:11], s30 offen offset:128 sc0 sc1')
    A('s_mov_b64 exec, -1')
    A.label(l)


def poll_issue(C, sync, tag):
    A = C.A
    flag_addr(C, 35, sync)
    A('s_mov_b64 exec, s[32:33]')
    C.vmem('buffer_load_dword v2, v0, s[8:11], s35 offen sc1', tag)
    A('s_mov_b64 exec, -1')


def poll_check(C, tag, endlab):
    A = C.A
    l1, l2, ld = C.lab('qa'), C.lab('qb'), C.lab('qd')
    C.wait(tag)
    A('s_mov_b64 exec, s[32:33]')
    A('s_mov_b32 s31, 0')
    A.label(l1)
    A('v_cmp_ne_u32 vcc, 0, v2')
    A('s_cmp_eq_u64 vcc, s[32:33]')
    A(f's_cbranch_scc1 {ld}')
    A('buffer_load_dword v2, v0, s[8:11], s35 offen sc1')
    A('s_add_u32 s31, s31, 1')
    A('s_waitcnt vmcnt(0)')
    A('s_cmp_lt_u32 s31, 64')
    A(f's_cbranch_scc1 {l1}')
    A.label(l2)
    A('buffer_load_dword v2, v0, s[8:11], s35 offen sc1')
    A('s_waitcnt vmcnt(0)')
    A('v_cmp_ne_u32 s[36:37], 0, v2')
    A('buffer_load_dword v2, v0, s[8:11], s35 offen offset:128 sc0 sc1')
    A('s_waitcnt vmcnt(0)')
    A('v_cmp_ne_u32 vcc, 0, v2')
    A('s_add_u32 s31, s31, 1')
    A('s_or_b64 vcc, vcc, s[36:37]')
    A('s_cmp_eq_u64 vcc, s[32:33]')
    A(f's_cbranch_scc1 {ld}')
    A('s_sleep 4')
    A(f's_cmp_lt_u32 s31, {1 << 20}')
    A(f's_cbranch_scc1 {l2}')
    A(f's_branch {endlab}')
    A.label(ld)
    A('s_mov_b64 exec, -1')


def gu2_pre(C):
    A = C.A
    A('v_mov_b32 v15, v113')
    A('v_mov_b32 v9, v114')
    A('s_lshl_b32 s30, s21, 2')
    A('s_add_u32 s30, s30, s29')
    A('s_lshl_b32 s30, s30, 15')
    A('s_lshr_b32 s31, s20, 1')
    A('s_lshl_b32 s31, s31, 11')
    A('s_add_u32 s30, s30, s31')
    A(f's_add_u32 s30, s30, {C.B["XB"]}')
    A('v_add_u32 v13, s30, v3')
    A('v_add_u32 v14, 0x10000, v13')
    A('s_lshl_b32 s48, s29, 15')
    A('s_add_u32 s48, s48, s31')
    A('v_add_u32 v7, 0x10000, v3')
    A('v_lshrrev_b32 v11, 5, v1')
    A('v_lshlrev_b32 v11, 4, v11')
    A('s_min_u32 s30, s20, 6')
    A('s_lshl_b32 s30, s30, 7')
    A(f's_add_u32 s30, s30, {132 * KB}')
    A('v_add_u32 v10, s30, v11')
    A('v_and_b32 v12, 31, v1')
    A('v_lshlrev_b32 v12, 3, v12')
    A('v_lshl_add_u32 v12, v11, 8, v12')
    A('s_lshl_b32 s30, s21, 15')
    A(f's_add_u32 s30, s30, {C.B["SXB"]}')
    A('v_add_u32 v12, s30, v12')
    A(f'v_add_u32 v8, {128 * KB}, v3')
    A(f's_mul_i32 s31, s20, {14 * KB}')
    A(f's_mul_i32 s30, s27, {112 * KB}')
    A('s_add_u32 s30, s30, s31')
    A(f's_add_u32 s30, s30, {C.B["HF"]}')
    A('v_add_u32 v5, s30, v3')
    A(f'v_add_u32 v6, {224 * KB}, v5')


def dn_slot(n):
    return 24 + 4 * n if n < 6 else 80 + 4 * ((n - 6) % 12)


def dn_xload(C, n):
    hh, st = divmod(n, 14)
    so, im = soff(st)
    C.vmem(f'buffer_load_dwordx4 {v(dn_slot(n), 4)}, {v(5 + hh)}, s[8:11], {so} offen offset:{im}', f'x{n}')


def gu2_main(C, sync1, endlab):
    A = C.A
    ACC, XF, CS = 16, 80, 112
    STR = [10, 10, ACC, ACC + 4]
    D = GU_D
    H = D // 2
    NSTEP = 32
    SE = 32 - H

    def dma(late, c):
        A(f's_add_u32 m0, s48, {late * 65536 + c * 8192}')
        so = '0' if c == 0 else s(40 + 2 * c)
        A('s_nop 0')
        for k in range(2):
            C.vmem(f'buffer_load_dwordx4 {"v14" if late else "v13"}, s[8:11], {so} offen offset:{k * 1024} lds', f'{"l" if late else "e"}{c}')
    dma(0, 0)
    dma(0, 1)

    def parts(st):
        if st < H:
            return [(0, 2 * st), (1, 2 * st), (0, 2 * st + 1), (1, 2 * st + 1)]
        if st < SE:
            return [(0, st + H), (1, st + H), (2, st - H), (3, st - H)]
        k = 32 - D + 2 * (st - SE)
        return [(2, k), (3, k), (2, k + 1), (3, k + 1)]

    def rd(st):
        for n, (i, ks) in enumerate(parts(st)):
            base = 'v3' if i < 2 else 'v7'
            C.ds(f'ds_read_b128 {v(XF + (st & 1) * 16 + n * 4, 4)}, {base} offset:{(i & 1) * 32768 + ks * 1024}', f'r{st}')

    def stats_load(i):
        for e in range(16):
            C.vmem(f'buffer_load_dwordx2 {v(ACC + (i & 1) * 32 + 2 * e, 2)}, v12, s[8:11], {"0" if i == 0 else s(40 + 2 * i)} offen offset:{e * 256}', f's{i}')

    def stats_sum(i):
        b = ACC + (i & 1) * 32
        C.wait(f's{i}')
        for stp in (16, 8, 4, 2):
            for e in range(stp):
                A(f'v_add_f32 {v(b + e)}, {v(b + e)}, {v(b + e + stp)}')
        A(f'v_mov_b32 {v(b + 2)}, {v(b)}')
        A(f'v_mov_b32 {v(b + 3)}, {v(b + 1)}')
        A('s_nop 1')
        A(f'v_permlane32_swap_b32 {v(b)}, {v(b + 2)}')
        A(f'v_permlane32_swap_b32 {v(b + 1)}, {v(b + 3)}')
        A(f'v_add_f32 {v(b)}, {v(b)}, {v(b + 2)}')
        A(f'v_add_f32 {v(b + 1)}, {v(b + 1)}, {v(b + 3)}')
        A(f'v_mul_f32 {v(b)}, {f32(-1.0 / 512)}, {v(b)}')
        A(f'v_mul_f32 {v(b + 1)}, {f32(1.0 / 512)}, {v(b + 1)}')
        A(f'v_fma_f32 {v(b + 1)}, -{v(b)}, {v(b)}, {v(b + 1)}')
        A(f'v_max_f32 {v(b + 1)}, 0, {v(b + 1)}')
        A(f'v_add_f32 {v(b + 1)}, {f32(1e-5)}, {v(b + 1)}')
        A(f'v_rcp_f32 {v(b + 2)}, {v(b + 1)}')
        A(f'v_mov_b32 {v(b + 1)}, {v(b)}')
        A(f'v_mov_b32 {v(b + 3)}, {v(b + 2)}')
        A(f'ds_write_b128 v8, {v(b, 4)} offset:{i * 1024}')
        A('s_waitcnt lgkmcnt(0)')

    def epi(i):
        acc = ACC + i * 16
        for r in range(0, 16, 2):
            A(f'v_pk_fma_f32 {v(acc + r, 2)}, {v(STR[i], 2)}, {v(CS + r, 2)}, {v(acc + r, 2)}')
        for r in range(0, 8, 2):
            A(f'v_pk_mul_f32 {v(acc + r, 2)}, {v(acc + r, 2)}, {v(acc + 8 + r, 2)}')
        for r in range(0, 8, 2):
            A(f'v_pk_mul_f32 {v(acc + r, 2)}, {v(acc + r, 2)}, {v(STR[i] + 2, 2)}')
        pp = acc + 8
        for m in range(4):
            A(f'v_cvt_pk_bf16_f32 {v(pp + m)}, {v(acc + 2 * m)}, {v(acc + 2 * m + 1)}')
        C.vmem(f'buffer_store_dwordx4 {v(pp, 4)}, v3, s[8:11], s39 offen{WT}', 'st')
        if i < 3:
            A(f's_add_u32 s39, s39, {112 * KB}')

    SF1 = SE + GU_SF1
    assert SE - 2 >= 15
    dorder = [(0, 2), (1, 0), (0, 3), (1, 1), (1, 2), (1, 3)]
    bars = {4: 'e1', 8: 'l0', 12: 'l3', min(20, SE - 2): None}
    if F1BAR:
        bars[SF1] = 'st'
    avail = {0: {'e0'}, 4: {'e0', 'e1'}, 8: {'e0', 'e1', 'l0', 'e2'}}
    for st in range(12):
        have = avail[st // 4 * 4]
        for i, ks in parts(st):
            assert ('l' if i >= 2 else 'e') + str(ks // 8) in have, (st, i, ks)

    def loop(idle):
        C.lds = []
        A(f's_mul_i32 s39, s21, {4 * 112}')
        A('s_add_u32 s39, s39, s40')
        A('s_lshl_b32 s39, s39, 10')
        A(f's_add_u32 s39, s39, {C.B["HF"]}')
        C.wait('e0')
        A('s_barrier')
        C.stamp()
        if not idle:
            rd(0)
        dq = list(dorder)
        wdone = 0
        for st in range(NSTEP):
            if st + 1 in bars:
                if bars[st + 1]:
                    C.wait(bars[st + 1])
                A('s_barrier')
                if F1BAR and st + 1 == SF1 and idle:
                    publish7(C, sync1)
            if not idle:
                if st + 1 < NSTEP:
                    rd(st + 1)
                if st == min(20, SE - 2):
                    for g in range(4):
                        C.ds(f'ds_read_b128 {v(CS + g * 4, 4)}, v10 offset:{g * 32}', 'cs')
                if st == SE - 1:
                    C.ds(f'ds_read_b128 {v(STR[0], 4)}, v8', 'sa')
                if st == SE + 3:
                    for i in range(2, 4):
                        C.ds(f'ds_read_b128 {v(STR[i], 4)}, v8 offset:{i * 1024}', 'sb')
                C.dwait(f'r{st}')
            if FINE == 5 and st in (8, 16, SE, SF1 - 1, SF1):
                C.stamp()
                C.lds = []
            todo = []
            if GU_PRIO and not idle and st in (12, SE + 2, SF1 + 1):
                A(f's_setprio {dict([(12, 3), (SE + 2, 2), (SF1 + 1, 0)])[st]}')
            if st == 10:
                C.flagb = True
                flag_b(C)
            if dq:
                todo.append(lambda x=dq.pop(0): dma(*x))
            freed = min([ks for i, ks in parts(st) if i >= 2] or [0])
            lim = 28 if idle and st >= 8 else min(28, freed)
            for _ in range(2):
                if wdone < lim:
                    todo.append(lambda k=wdone: g3_wload(C, (15, 9), k, 128))
                    wdone += 1
            for n, (i, ks) in enumerate(parts(st)):
                if not idle:
                    c = '0' if ks == 0 else v(ACC + i * 16, 16)
                    A(f'v_mfma_f32_32x32x16_bf16 {v(ACC + i * 16, 16)}, {v(128 + 4 * ks, 4)}, {v(XF + (st & 1) * 16 + n * 4, 4)}, {c}')
                if todo:
                    todo.pop(0)()
            assert not todo
            if not idle and st == SE:
                C.dwait('sa')
                A('s_nop 3')
                epi(0)
                C.ds(f'ds_read_b128 {v(STR[1], 4)}, v8 offset:1024', 'sa')
            if not idle and st == SE + 1:
                C.dwait('sa')
                epi(1)
            if not idle and st == SF1 and not F1BAR:
                C.wait('st')
                A('s_mov_b64 exec, 1')
                A(f'v_mov_b32 v14, {GCNT}')
                C.ds('ds_add_u32 v14, v4', 'ar')
                A('s_mov_b64 exec, -1')
            if idle and st == SF1 and not F1BAR:
                lsp, lsd = C.lab('sp'), C.lab('sd')
                A(f'v_mov_b32 v14, {GCNT}')
                A('s_mov_b32 s31, 0')
                A.label(lsp)
                A('ds_read_b32 v13, v14')
                A('s_add_u32 s31, s31, 1')
                A('s_waitcnt lgkmcnt(0)')
                A('v_cmp_eq_u32 vcc, 7, v13')
                A(f's_cbranch_vccnz {lsd}')
                A('s_sleep 1')
                A(f's_cmp_lt_u32 s31, {1 << 22}')
                A(f's_cbranch_scc1 {lsp}')
                A(f's_branch {endlab}')
                A.label(lsd)
                publish7(C, sync1)
            if st == NSTEP - 1 - GU_PO:
                A('s_lshl_b32 s30, s20, 1')
                A('s_lshl_b32 s32, 3, s30')
                poll_issue(C, sync1, 'f1')
            if idle:
                if st == 6:
                    A(f'v_mov_b32 {v(XF)}, 0')
                    A(f'v_mov_b32 {v(XF + 1)}, 0')
                    A(f'v_mov_b32 {v(XF + 2)}, {GCNT}')
                    A(f'ds_write_b64 {v(XF + 2)}, {v(XF, 2)}')
                    stats_load(0)
                    stats_load(1)
                if st == 9:
                    stats_sum(0)
                    A(f's_mul_i32 s30, s22, {7 * 128}')
                    A(f's_add_u32 s30, s30, {CSP}')
                    for kp in range(8):
                        C.vmem(f'buffer_load_dwordx4 {v(ACC + 4 * kp, 4)}, v3, s[8:11], s30 offen', 'cp')
                        if kp < 7:
                            A(f's_add_u32 s30, s30, {3584 * 4}')
                    stats_sum(1)
                    stats_load(3)
                if st == 13:
                    C.wait('cp')
                    for stp in (16, 8, 4):
                        for e in range(stp):
                            A(f'v_add_f32 {v(ACC + e)}, {v(ACC + e)}, {v(ACC + e + stp)}')
                    A(f'v_add_u32 v10, {132 * KB}, v3')
                    A(f'ds_write_b128 v10, {v(ACC, 4)}')
                    A('s_waitcnt lgkmcnt(0)')
                    stats_load(2)
                    stats_sum(3)
                    stats_sum(2)
        assert wdone == 28
        C.stamp()

        def prime():
            poll_check(C, 'f1', endlab)
            for n in range(6):
                dn_xload(C, n)
        if PRIME_LATE == 0:
            prime()
        if not idle:
            A('s_waitcnt lgkmcnt(0)')
            A('s_nop 11')
            epi(2)
        if PRIME_LATE == 1:
            prime()
        if not idle:
            epi(3)
        if PRIME_LATE == 2:
            prime()

    ls, le = C.lab('gs'), C.lab('ge')
    A('s_cmp_eq_u32 s20, 7')
    A(f's_cbranch_scc1 {ls}')
    save, ns = list(C.vm), C.nstamp
    loop(False)
    A(f's_branch {le}')
    A.label(ls)
    C.vm, C.nstamp = list(save), ns
    loop(True)
    A.label(le)
    C.vm = [f'x{n}' for n in range(6)]


def dn_main(C, mode, sync2, endlab, resbase, outbase=None, sxout=None, hook_red=None):
    A = C.A
    NS, EX, WR = 14, 252, 128
    AC = [48, 16]
    nxt = 6
    A(f's_add_u32 s31, s49, {resbase}')
    C.vmem(f'buffer_load_dwordx4 {v(EX, 4)}, v3, s[8:11], s31 offen', 'ex')
    A('s_lshl_b32 s30, s20, 11')
    A('v_add_u32 v8, s30, v3')
    A('v_add_u32 v7, 0x10000, v8')
    A('s_and_b32 s31, s20, 6')
    for c in range(4):
        A(f's_xor_b32 s30, s31, {c << 1}')
        A('s_lshl_b32 s30, s30, 11')
        A('s_lshl_b32 s34, s20, 14')
        A('s_add_u32 s30, s30, s34')
        A(f'v_add_u32 {v(9 + c)}, s30, v3')
    C.stamp()

    def wr(hh):
        out = []
        for c in (0, 2, 1, 3):
            base = AC[hh] + (c & 1) * 16 + (c >> 1) * 8
            out += [f'ds_write_b128 {v(9 + c)}, {v(base + h2 * 4, 4)} offset:{hh * 2048 + h2 * 1024}' for h2 in range(2)]
        return out
    pend = []
    for hh in range(2):
        for st in range(NS):
            n = hh * NS + st
            C.wait(f'x{n}')
            for jj in range(2):
                c = '0' if st == 0 else v(AC[hh] + jj * 16, 16)
                A(f'v_mfma_f32_32x32x16_bf16 {v(AC[hh] + jj * 16, 16)}, {v(WR + 4 * (2 * st + jj), 4)}, {v(dn_slot(n), 4)}, {c}')
                if hh == 1 and st >= 3 and pend:
                    A(pend.pop(0))
            if n == DN_AR and F2BAR:
                if PRIME_LATE < 2:
                    C.wait('ex')
                A('s_barrier')
                publish7(C, sync2)
            if n == DN_AR and not F2BAR:
                C.wait('ex')
                lh = C.lab('h7')
                A('s_cmp_eq_u32 s20, 7')
                A(f's_cbranch_scc1 {lh}')
                arrive(C, 1, sync2)
                A.label(lh)
            if FINE == 5 and n in (0, 1, 7, 8, 14):
                C.stamp()
            if n == DN_PI:
                poll_issue(C, sync2, 'f2')
            if nxt == NS:
                poll_check(C, 'f2', endlab)
            if nxt < 2 * NS:
                dn_xload(C, nxt)
                nxt += 1
            if hh == 1 and st == 2:
                A('s_nop 2' if F2BAR else 's_barrier')
        if hh == 0:
            pend = wr(0)
    assert not pend
    C.stamp()
    T = 80
    C.wait('ex')
    for m in range(4):
        A(f'v_lshlrev_b32 {v(T + 2 * m)}, 16, {v(EX + m)}')
        A(f'v_and_b32 {v(T + 2 * m + 1)}, 0xffff0000, {v(EX + m)}')
    A('s_nop 2')
    for x in wr(1):
        A(x)
    if hook_red:
        hook_red()
    A('s_waitcnt lgkmcnt(0)')
    A('s_barrier')
    for b in range(8):
        for h2 in range(2):
            base, off = ('v8', b * 16 * KB) if b < 4 else ('v7', (b - 4) * 16 * KB)
            A(f'ds_read_b128 {v(16 + b * 8 + h2 * 4, 4)}, {base} offset:{off + h2 * 1024}')
        if b == 6:
            A('s_waitcnt lgkmcnt(10)')
            for r in range(8):
                A(f'v_add_f32 {v(16 + r)}, {v(16 + r)}, {v(T + r)}')
    A('s_waitcnt lgkmcnt(0)')
    for stp in (32, 16, 8):
        for r in range(stp):
            A(f'v_add_f32 {v(16 + r)}, {v(16 + r)}, {v(16 + stp + r)}')
    P = 24
    for m in range(4):
        A(f'v_cvt_pk_bf16_f32 {v(P + m)}, {v(16 + 2 * m)}, {v(16 + 2 * m + 1)}')
    if mode == 'res':
        A(f's_add_u32 s31, s49, {outbase}')
        C.vmem(f'buffer_store_dwordx4 {v(P, 4)}, v3, s[8:11], s31 offen{WT}', 'st')
        blk_stats(C, P, T)
        A('s_lshr_b32 s31, s49, 2')
        A(f's_add_u32 s31, s31, {sxout}')
        A('v_lshlrev_b32 v4, 3, v1')
        A('s_mov_b32 exec_hi, 0')
        C.vmem(f'buffer_store_dwordx2 {v(T, 2)}, v4, s[8:11], s31 offen{WT}', 'st')
        A('s_mov_b64 exec, -1')
    else:
        A('v_and_b32 v4, 31, v1')
        A('v_lshlrev_b32 v4, 10, v4')
        A('v_lshrrev_b32 v5, 5, v1')
        A('v_lshl_add_u32 v4, v5, 4, v4')
        A('s_and_b32 s30, s49, 0xffff8000')
        A('s_and_b32 s31, s49, 0x7fff')
        A('s_lshr_b32 s31, s31, 5')
        A('s_add_u32 s30, s30, s31')
        A(f'v_permlane32_swap_b32 {v(P)}, {v(P + 2)}')
        A(f'v_permlane32_swap_b32 {v(P + 1)}, {v(P + 3)}')
        C.vmem(f'buffer_store_dwordx4 {v(P, 4)}, v4, s[12:15], s30 offen{OWT}', 'st')


def swap_add(A, ra, rb):
    A(f'v_permlane32_swap_b32 {v(ra)}, {v(rb)}')
    A(f'v_add_f32 {v(ra)}, {v(ra)}, {v(rb)}')


def pre_part(C, end):
    A = C.A
    A('s_cmp_ge_u32 s2, 256')
    A(f's_cbranch_scc1 {end}')
    A('s_load_dwordx2 s[12:13], s[0:1], 0')
    A('s_load_dwordx2 s[16:17], s[0:1], 8')
    A('s_load_dwordx2 s[52:53], s[0:1], 16')
    A('s_load_dwordx2 s[56:57], s[0:1], 24')
    A('s_load_dwordx2 s[4:5], s[0:1], 80')
    for d, sz in ((12, 2048 * 1024), (16, 512 * 1024), (52, 512 * 32), (56, 512 * 32), (4, 256)):
        A(f's_mov_b32 {s(d + 2)}, {sz}')
        A(f's_mov_b32 {s(d + 3)}, 0x20000')
    setup(C, False, end)
    C.stamp()
    if TLBW:
        A('s_lshl_b32 s30, s20, 3')
        A(f's_add_u32 s30, s30, 32')
        A('s_cmp_eq_u32 s20, 1')
        A('s_cselect_b32 s30, 8, s30')
        A('s_load_dwordx2 s[32:33], s[0:1], s30')
        A('s_mov_b32 s31, 8192')
        A('s_cmp_ge_u32 s20, 2')
        A('s_cselect_b32 s31, 28672, s31')
        A('s_cmp_eq_u32 s20, 6')
        A('s_cselect_b32 s31, 4, s31')
        A('s_cmp_eq_u32 s20, 7')
        A(f's_cselect_b32 s31, {TLBW}, s31')
        A('v_mul_lo_u32 v4, v1, s31')
        A('s_waitcnt lgkmcnt(0)')
        A('global_load_dword v127, v4, s[32:33]')
    A('s_add_u32 s30, s21, 1')
    A('s_and_b32 s30, s30, 3')
    A('s_lshl_b32 s30, s30, 2')
    A('s_xor_b32 s30, s30, s22')
    A('s_add_u32 s30, s30, s20')
    A('s_cmp_lg_u32 s30, 0')
    A('s_cbranch_scc1 pr_z0')
    for r in range(4):
        A(f'v_mov_b32 {v(8 + r)}, 0')
    A('v_lshrrev_b32 v4, 4, v1')
    A('v_and_b32 v5, 15, v1')
    A('v_lshlrev_b32 v5, 4, v5')
    A('v_lshl_add_u32 v4, v4, 12, v5')
    A('s_lshl_b32 s30, s21, 8')
    A(f's_add_u32 s30, s30, {FLG}')
    for k in range(3):
        A('buffer_store_dwordx4 v[8:11], v4, s[8:11], s30 offen sc0 sc1')
        A('s_add_u32 s30, s30, 16384')
    A('v_lshlrev_b32 v4, 7, v1')
    A(f's_mul_i32 s30, s21, {64 * 128}')
    A(f's_add_u32 s30, s30, {PFL}')
    A('buffer_store_dwordx4 v[8:11], v4, s[8:11], s30 offen sc0 sc1')
    A('v_mov_b32 v5, 1')
    A('s_mov_b64 exec, 1')
    A('s_waitcnt vmcnt(0)')
    A('buffer_atomic_add v5, v8, s[4:7], 0 offen sc1')
    A('s_mov_b64 exec, -1')
    A('s_nop 1')
    A.label('pr_z0')
    KST, KW, KR, T, EX, XR = 240, 192, 224, 108, 96, 32
    WST, CSQ, CSKV = 96 * KB, ST4 + 9 * KB, ST4 + 10 * KB
    A('s_mov_b64 s[36:37], s[16:17]')
    A(f's_mov_b32 s38, {512 * 1024}')
    A('s_mov_b32 s39, 0x20000')
    g4_ids(C)
    A('s_lshl_b32 s30, s20, 11')
    A('s_cmp_lg_u32 s3, 0')
    A('s_cbranch_scc1 pr_k0')
    for k in range(4):
        A(f'buffer_load_dwordx4 {v(KST + 4 * k, 4)}, v3, {"s[52:55]" if k < 2 else "s[56:59]"}, s30 offen offset:{(k & 1) * 1024}')
    A.label('pr_k0')
    A('v_lshrrev_b32 v4, 3, v1')
    A('v_and_b32 v5, 7, v1')
    A('v_lshrrev_b32 v6, 4, v1')
    A('v_xor_b32 v6, v6, v5')
    A('v_lshlrev_b32 v7, 10, v4')
    A('v_lshl_add_u32 v8, v6, 4, v7')
    A('v_xor_b32 v9, 64, v8')
    A('s_lshl_b32 s30, s18, 15')
    A('s_lshl_b32 s31, s20, 7')
    A('s_add_u32 s30, s30, s31')
    A('s_lshl_b32 s32, s20, 12')
    for i in range(4):
        A(f's_add_u32 m0, s32, {KVR4 + i * 1024}')
        A('s_nop 0')
        C.vmem(f'buffer_load_dwordx4 {v(8 + (i & 1))}, s[12:15], s30 offen lds', 'x')
        A('s_add_u32 s30, s30, 8192')
    A('v_lshrrev_b32 v4, 2, v1')
    A('v_and_b32 v5, 3, v1')
    A('v_lshlrev_b32 v10, 10, v4')
    A('v_lshl_add_u32 v10, v5, 4, v10')
    A('s_lshl_b32 s31, s26, 18')
    A('s_bfe_u32 s30, s19, 0x4000b')
    A('s_lshl_b32 s30, s30, 6')
    A('s_add_u32 s31, s31, s30')
    A('s_lshl_b32 s51, s20, 13')
    A(f's_add_u32 s51, s51, {WST}')
    if HACKW:
        A('v_lshrrev_b32 v10, 3, v1')
        A('v_lshlrev_b32 v10, 10, v10')
        A('v_and_b32 v88, 7, v1')
        A('v_lshl_add_u32 v10, v88, 4, v10')
        A('s_and_b32 s31, s31, 0xffffffbf')
        A('s_lshl_b32 s30, s29, 13')
        A('s_add_u32 s31, s31, s30')
    A('s_mov_b32 s50, s31')
    A('v_mov_b32 v88, v10')
    A('s_and_b32 s33, s22, 3')
    A(f's_lshl_b32 s33, s33, 16' if WROT else 's_mov_b32 s33, 0')

    def wloads(lo=0, hi=16):
        for i in range(lo, hi):
            A(f's_xor_b32 s30, s33, {G4_ORD[i] * 16384}')
            A('s_add_u32 s30, s30, s50')
            if i < 8:
                A(f's_add_u32 m0, s51, {i * 1024}')
                A('s_nop 0')
                A('buffer_load_dwordx4 v88, s[36:39], s30 offen lds')
            else:
                A(f'buffer_load_dwordx4 {v(128 + 4 * i, 4)}, v88, s[36:39], s30 offen')
    if FR2:
        A('s_barrier')
        wloads(0, FR2)
    else:
        A('s_cmp_eq_u32 s3, 0')
        A('s_cbranch_scc1 pr_w1')
        A('s_barrier')
        wloads()
        A('s_waitcnt vmcnt(16)')
        A.label('pr_w1')
    C.stamp()
    A('v_and_b32 v64, 31, v1')
    A('v_lshrrev_b32 v65, 5, v1')
    A('v_lshlrev_b32 v66, 7, v64')
    A('v_lshl_add_u32 v66, v65, 3, v66')
    A('v_bfe_u32 v67, v1, 1, 3')
    A('v_lshl_add_u32 v66, v67, 4, v66')
    A(f's_add_u32 s30, s32, {KVR4}')
    A('v_add_u32 v66, s30, v66')
    A('v_bfe_u32 v67, v1, 2, 2')
    A('v_lshl_add_u32 v67, v65, 2, v67')
    A('v_lshlrev_b32 v68, 3, v5')
    A('v_bfe_u32 v69, v1, 4, 1')
    A('v_lshl_add_u32 v70, v67, 5, v68')
    A('v_lshl_add_u32 v70, v69, 11, v70')
    A('v_add_u32 v70, s51, v70')
    A('v_lshl_add_u32 v71, v67, 6, v68')
    A('v_lshl_add_u32 v71, v69, 5, v71')
    A('s_lshl_b32 s30, s26, 5')
    A('v_xor_b32 v71, s30, v71')
    A('v_add_u32 v71, s51, v71')
    A('v_add_u32 v72, s51, v3')
    A('v_mov_b32 v73, 0x3f803f80')
    A('v_lshlrev_b32 v74, 2, v64')
    A('s_lshl_b32 s30, s20, 7')
    A(f's_add_u32 s31, s30, {CSKV}')
    A('v_add_u32 v75, s31, v74')
    A('s_lshl_b32 s31, s26, 6')
    A('v_xor_b32 v74, s31, v74')
    A(f's_add_u32 s30, s30, {CSQ}')
    A('v_add_u32 v74, s30, v74')
    A('v_lshlrev_b32 v76, 4, v65')
    A('s_add_u32 s30, s30, s31')
    A('v_add_u32 v77, s30, v76')
    A('v_xor_b32 v78, 512, v77')
    A('s_lshl_b32 s30, s25, 5')
    A(f's_add_u32 s30, s30, {CSKV}')
    A('v_add_u32 v79, s30, v76')
    g4_pre(C, 'qkv', XA, resbase=0, raw=True)
    A('s_lshr_b32 s30, s33, 4')
    A('s_lshl_b32 s31, s20, 12')
    A('s_xor_b32 s30, s30, s31')
    A(f's_add_u32 s30, s30, {XF0}')
    A('v_add_u32 v12, s30, v3')
    A('v_mov_b32 v0, 0')
    A('v_mov_b32 v4, 1')
    for ch in range(8):
        A(f'v_xor_b32 {v(80 + ch)}, {ch << 4}, v66')

    def front():
        A('s_cmp_lg_u32 s3, 0')
        A('s_cbranch_scc1 pr_w2')
        A('s_waitcnt vmcnt(4)')
        for k in range(4):
            A(f'ds_write_b128 v72, {v(KST + 4 * k, 4)} offset:{k * 1024}')
        for st in range(4):
            for h2 in range(2):
                A(f'ds_read_b64_tr_b16 {v(KW + 4 * st + 2 * h2, 2)}, v70 offset:{st * 512 + h2 * 256}')
        A('s_waitcnt lgkmcnt(0)')
        for r in range(8):
            for e in range(2):
                A(f'v_dot2_f32_bf16 {v(90 + e)}, {v(KW + 2 * r + e)}, v73, {"0" if r == 0 else v(90 + e)}')
        A('s_nop 2')
        A('v_add_f32 v90, v90, v91')
        A('v_mov_b32 v91, v90')
        A('s_nop 1')
        swap_add(A, 90, 91)
        A('ds_write_b32 v75, v90')
        A('s_waitcnt vmcnt(0)')
        A.label('pr_w2')
        C.vm = []
        C.stamp()
        for ch in range(8):
            A(f'ds_read_b64 {v(KR + 2 * ch, 2)}, {v(80 + ch)}')
        if ZEARLY:
            A('buffer_load_dword v89, v0, s[4:7], 0 offen sc1')
        A('s_waitcnt lgkmcnt(0)')

    def kvw():
        pass

    def front2():
        for k in range(4):
            A(f'ds_write_b128 v12, {v(KR + 4 * k, 4)} offset:{k * 1024}')
        for r in range(8):
            for e in range(2):
                x = v(KR + 2 * r + e)
                A(f'v_dot2_f32_bf16 {v(T + 2 * e)}, {x}, v73, {"0" if r == 0 else v(T + 2 * e)}')
                A(f'v_dot2_f32_bf16 {v(T + 2 * e + 1)}, {x}, {x}, {"0" if r == 0 else v(T + 2 * e + 1)}')
        A('s_nop 2')

    def kvcs0():
        for ww in range(8):
            A(f'ds_read_b128 {v(XR + 4 * ww, 4)}, v79 offset:{ww * 128}')

    def kvcs1():
        A('s_waitcnt lgkmcnt(0)')
        for stp in (16, 8):
            for r in range(stp):
                A(f'v_add_f32 {v(XR + r)}, {v(XR + r)}, {v(XR + stp + r)}')
        for r in range(4):
            A(f'v_add_f32 {v(EX + 8 + r)}, {v(XR + r)}, {v(XR + 4 + r)}')

    def zchk():
        lz, lzd = C.lab('z'), C.lab('zd')
        if ZEARLY:
            A('s_waitcnt vmcnt(0)')
            A('v_cmp_le_u32 vcc, 16, v89')
            A('s_cmp_eq_u64 vcc, -1')
            A(f's_cbranch_scc1 {lzd}')
        A('s_mov_b32 s31, 0')
        A('s_mov_b64 exec, 1')
        A.label(lz)
        A('buffer_load_dword v2, v0, s[4:7], 0 offen sc1')
        A('s_waitcnt vmcnt(0)')
        A('v_cmp_le_u32 vcc, 16, v2')
        A('s_add_u32 s31, s31, 1')
        A('s_cmp_eq_u64 vcc, 1')
        A(f's_cbranch_scc1 {lzd}')
        A('s_sleep 8')
        A(f's_cmp_lt_u32 s31, {1 << 20}')
        A(f's_cbranch_scc1 {lz}')
        A(f's_branch {end}')
        A.label(lzd)
        A('s_mov_b64 exec, -1')

    def wprep():
        if not FR2:
            A('s_cmp_lg_u32 s3, 0')
            A('s_cbranch_scc1 pr_w3')
            wloads()
            A.label('pr_w3')
        zchk()
        C.vm = []
        C.stamp()


    def tr(i):
        for h2 in range(2):
            A(f'ds_read_b64_tr_b16 {v(128 + 4 * i + 2 * h2, 2)}, v71 offset:{(i % 8) * 1024 + h2 * 512}')

    def csdot(r0, r1):
        for r in range(r0, r1):
            for e in range(4):
                A(f'v_dot2_f32_bf16 {v(80 + e)}, {v(128 + 4 * r + e)}, v73, {"0" if r == 0 else v(80 + e)}')

    def loop(rd, mf):
        for i in range(8):
            tr(i)
            if i == 5:
                A('s_waitcnt lgkmcnt(6)')
        ln_stats(A, T)
        A('s_waitcnt lgkmcnt(0)')
        for i in range(4):
            rd(i)
        for i in range(8):
            A(f'ds_write_b128 v72, {v(160 + 4 * i, 4)} offset:{i * 1024}')
        csdot(0, 8)
        A('s_waitcnt lgkmcnt(0)')
        for i in range(4, 8):
            rd(i)
        for i in range(8):
            if i == 4:
                A('s_waitcnt lgkmcnt(8)')
            mf(i)
            if i < 4:
                tr(8 + i)
            else:
                A('s_waitcnt lgkmcnt(9)')
                tr(8 + i)
                rd(4 + i)
        for i in range(8, 16):
            if i == 8:
                A('s_waitcnt lgkmcnt(9)')
            elif i < 12:
                A(f's_waitcnt lgkmcnt({9 - 2 * (i - 8)})')
            else:
                A(f's_waitcnt lgkmcnt({15 - i})')
            mf(i)
            if i < 12:
                rd(4 + i)

    def cs0():
        csdot(8, 16)
        A('s_nop 2')
        A('v_add_f32 v80, v80, v81')
        A('v_add_f32 v82, v82, v83')
        A('v_add_f32 v80, v80, v82')
        A('v_mov_b32 v81, v80')
        A('s_nop 1')
        swap_add(A, 80, 81)
        A('ds_write_b32 v74, v80')

    def cs():
        for h2 in range(2):
            A(f'ds_read_b128 {v(EX + 4 * h2, 4)}, v77 offset:{h2 * 32}')
            A(f'ds_read_b128 {v(XR + 4 * h2, 4)}, v78 offset:{h2 * 32}')
        A('s_waitcnt lgkmcnt(0)')
        for r in range(8):
            A(f'v_add_f32 {v(EX + r)}, {v(EX + r)}, {v(XR + r)}')
        for r in range(12):
            A(f'v_mov_b32 {v(208 + r)}, {v(EX + r)}')

    g4_main(C, 'qkv', kvf=KVF, kfl=KFL, raw=dict(front=front, kvw=kvw, kvcs0=kvcs0, kvcs1=kvcs1, zchk=zchk, front2=front2, wloads=wloads, wprep=wprep, cs=cs, cs0=cs0, loop=loop), endlab=end)
    C.stamp()


def wq_store(C):
    A = C.A
    A('s_and_b32 s30, s18, 0x33')
    A('s_cmp_lg_u32 s30, 0')
    A('s_cbranch_scc1 pr_w0')
    g4_waddr(C, 112, WQKVP)
    for q4 in (3, 2, 1, 0):
        if q4:
            A(f's_cmp_lg_u32 s21, {q4}')
            A(f's_cbranch_scc1 pr_ws{q4}')
        for i in range(4 * q4, 4 * q4 + 4):
            so, im = soff(G4_ORD[i])
            A(f'buffer_store_dwordx4 {v(128 + 4 * i, 4)}, v112, s[8:11], {so} offen offset:{im} sc0 sc1')
        if q4:
            A('s_branch pr_w0')
            A.label(f'pr_ws{q4}')
    A('v_lshrrev_b32 v113, 5, v1')
    A('v_lshlrev_b32 v113, 4, v113')
    A('s_lshr_b32 s31, s19, 4')
    A(f's_add_u32 s31, s31, {CSQKV}')
    A('s_mov_b32 exec_lo, 1')
    A('s_mov_b32 exec_hi, 1')
    A('buffer_store_dwordx4 v[208:211], v113, s[8:11], s31 offen sc0 sc1')
    A('buffer_store_dwordx4 v[212:215], v113, s[8:11], s31 offen offset:32 sc0 sc1')
    A('s_mov_b64 exec, -1')
    A('s_cmp_lg_u32 s22, 0')
    A('s_cbranch_scc1 pr_w0')
    A('s_lshl_b32 s30, s20, 12')
    A(f's_add_u32 s30, s30, {WQKVP + 16 * 32 * KB}')
    for k in range(4):
        A(f'buffer_store_dwordx4 {v(192 + 4 * k, 4)}, v3, s[8:11], s30 offen offset:{k * 1024} sc0 sc1')
    A('s_cmp_ge_u32 s20, 4')
    A('s_cbranch_scc1 pr_w0')
    A('s_lshl_b32 s31, s20, 5')
    A(f's_add_u32 s31, s31, {CSQKV + 2048}')
    A('s_mov_b32 exec_lo, 1')
    A('s_mov_b32 exec_hi, 1')
    A('buffer_store_dwordx4 v[216:219], v113, s[8:11], s31 offen sc0 sc1')
    A('s_mov_b64 exec, -1')
    A.label('pr_w0')


def pack_ptrs(A):
    A('s_load_dwordx2 s[4:5], s[0:1], 32')
    A('s_load_dwordx4 s[52:55], s[0:1], 48')
    A('s_load_dwordx2 s[16:17], s[0:1], 64')


def pack_issue(C):
    A = C.A
    A('s_mul_i32 s30, s2, 3')
    A('s_add_u32 s30, s30, s20')
    A('s_mov_b32 s58, s30')
    A('s_cmp_lt_u32 s20, 3')
    A('s_cselect_b32 s57, 1, 0')
    A('s_cmp_lt_u32 s30, 736')
    A('s_cselect_b32 s57, s57, 0')
    A('s_cmp_eq_u32 s57, 0')
    A('s_cselect_b32 s30, 0, s30')
    A('s_cmp_lt_u32 s30, 64')
    A('s_cbranch_scc1 pk_jwo')
    A('s_cmp_lt_u32 s30, 512')
    A('s_cbranch_scc1 pk_jgu')
    A('s_sub_u32 s30, s30, 512')
    A('s_mov_b64 s[4:5], s[16:17]')
    A(f's_mov_b32 s6, {1792 * 1024}')
    A('s_mov_b32 s50, 1024')
    A('s_and_b32 s31, s30, 7')
    A('s_lshr_b32 s30, s30, 3')
    A('s_lshl_b32 s51, s30, 16')
    A('s_lshl_b32 s56, s31, 7')
    A('s_add_u32 s51, s51, s56')
    A(f's_mul_i32 s56, s31, {2 * 112 * KB}')
    A('s_lshl_b32 s30, s30, 12')
    A('s_add_u32 s56, s56, s30')
    A(f's_add_u32 s56, s56, {WDP}')
    A(f's_mov_b32 s52, {112 * KB}')
    A('s_mov_b32 s53, 256')
    A(f's_mov_b32 s54, {G1.CSDUMMY}')
    A('s_branch pk_jgo')
    A.label('pk_jwo')
    A(f's_mov_b32 s6, {512 * 1024}')
    A('s_mov_b32 s50, 1024')
    A('s_lshr_b32 s31, s30, 3')
    A('s_and_b32 s30, s30, 7')
    A('s_lshl_b32 s51, s30, 16')
    A('s_lshl_b32 s56, s31, 7')
    A('s_add_u32 s51, s51, s56')
    A('s_lshl_b32 s56, s31, 16')
    A('s_lshl_b32 s30, s30, 12')
    A('s_add_u32 s56, s56, s30')
    A(f's_add_u32 s56, s56, {WOP}')
    A(f's_mov_b32 s52, {32 * KB}')
    A('s_mov_b32 s53, 256')
    A(f's_mov_b32 s54, {G1.CSDUMMY}')
    A('s_branch pk_jgo')
    A.label('pk_jgu')
    A('s_sub_u32 s30, s30, 64')
    A('s_cmp_ge_u32 s30, 224')
    A('s_cselect_b32 s4, s54, s52')
    A('s_cselect_b32 s5, s55, s53')
    A('s_cselect_b32 s16, 1, 0')
    A('s_cselect_b32 s31, 224, 0')
    A('s_sub_u32 s30, s30, s31')
    A(f's_mov_b32 s6, {512 * 3584}')
    A('s_mov_b32 s50, 3584')
    A('s_lshr_b32 s31, s30, 3')
    A('s_and_b32 s30, s30, 7')
    A(f's_mul_i32 s51, s30, {64 * 3584}')
    A('s_lshl_b32 s56, s31, 7')
    A('s_add_u32 s51, s51, s56')
    A('s_lshl_b32 s56, s31, 17')
    A('s_lshl_b32 s17, s30, 12')
    A('s_add_u32 s56, s56, s17')
    A('s_lshl_b32 s17, s16, 8')
    A('s_add_u32 s56, s56, s17')
    A(f's_add_u32 s56, s56, {WGUP}')
    A(f's_mov_b32 s52, {64 * KB}')
    A(f's_mov_b32 s53, {32 * KB}')
    A(f's_mul_i32 s54, s30, {3584 * 4}')
    A('s_lshl_b32 s17, s31, 9')
    A('s_add_u32 s54, s54, s17')
    A('s_lshl_b32 s17, s16, 6')
    A('s_add_u32 s54, s54, s17')
    A(f's_add_u32 s54, s54, {CSP}')
    A.label('pk_jgo')
    A('v_lshrrev_b32 v112, 3, v1')
    A('v_and_b32 v113, 7, v1')
    A('v_mul_lo_u32 v112, v112, s50')
    A('v_lshl_add_u32 v112, v113, 4, v112')
    A('s_lshl_b32 s50, s50, 3')
    A('s_min_u32 s59, s20, 2')
    A('s_lshl_b32 s59, s59, 13')
    A(f's_add_u32 s59, s59, {136 * KB}')
    A('s_cmp_eq_u32 s57, 0')
    A('s_cbranch_scc1 pk_i_end')
    for i in range(8):
        A(f's_add_u32 m0, s59, {i * 1024}')
        A('s_nop 0')
        A('buffer_load_dwordx4 v112, s[4:7], s51 offen lds')
        A('s_add_u32 s51, s51, s50')
    A.label('pk_i_end')


def pack_convert(C):
    A = C.A
    A('s_cmp_eq_u32 s57, 0')
    A('s_cbranch_scc1 pk_c_end')
    A('v_lshrrev_b32 v112, 5, v1')
    A('v_bfe_u32 v113, v1, 2, 2')
    A('v_lshl_add_u32 v113, v112, 2, v113')
    A('v_and_b32 v114, 3, v1')
    A('v_lshlrev_b32 v114, 3, v114')
    A('v_lshl_add_u32 v113, v113, 7, v114')
    A('v_bfe_u32 v114, v1, 4, 1')
    A('v_lshl_add_u32 v113, v114, 5, v113')
    A('v_add_u32 v113, s59, v113')
    A('v_mul_lo_u32 v114, v114, s53')
    A('v_and_b32 v115, 15, v1')
    A('v_lshl_add_u32 v114, v115, 4, v114')
    A('v_lshl_add_u32 v114, v112, 9, v114')
    A('v_lshrrev_b32 v112, 4, v1')
    A('v_lshlrev_b32 v112, 7, v112')
    A('v_lshl_add_u32 v112, v115, 2, v112')
    A('v_mov_b32 v115, 0x3f803f80')
    A('s_add_u32 s52, s52, s56')
    A('s_waitcnt vmcnt(0)')
    for jj in range(2):
        for st in range(4):
            for h2 in range(2):
                A(f'ds_read_b64_tr_b16 {v(128 + 4 * (4 * jj + st) + 2 * h2, 2)}, v113 offset:{st * 2048 + h2 * 1024 + jj * 64}')
        A('s_waitcnt lgkmcnt(0)')
        for st in range(4):
            A(f'buffer_store_dwordx4 {v(128 + 4 * (4 * jj + st), 4)}, v114, s[8:11], {"s56" if jj == 0 else "s52"} offen offset:{st * 1024} sc0 sc1')
    A('s_cmp_eq_u32 s53, 256')
    A('s_cbranch_scc1 pk_c_end')
    for r in range(16):
        for jj in range(2):
            A(f'v_dot2_f32_bf16 {v(116 + jj)}, {v(128 + 16 * jj + r)}, v115, {"0" if r == 0 else v(116 + jj)}')
    A('s_nop 2')
    swap_add(A, 116, 117)
    A('buffer_store_dword v116, v112, s[8:11], s54 offen sc0 sc1')
    A.label('pk_c_end')


def pack_flag(C):
    A = C.A
    A('v_mov_b32 v112, 0')
    A('v_mov_b32 v113, 1')
    A('s_cmp_eq_u32 s57, 0')
    A('s_cbranch_scc1 pk_f_1')
    A('s_lshl_b32 s30, s58, 7')
    A(f's_add_u32 s30, s30, {PFL}')
    A('s_waitcnt vmcnt(0)')
    A('s_mov_b64 exec, 1')
    A('buffer_store_dword v113, v112, s[8:11], s30 offen sc0 sc1')
    A('s_mov_b64 exec, -1')
    A.label('pk_f_1')
    A('s_and_b32 s30, s18, 0x33')
    A('s_cmp_lg_u32 s30, 0')
    A('s_cbranch_scc1 pk_f_end')
    A('s_lshl_b32 s30, s22, 1')
    A('s_add_u32 s30, s30, s20')
    A('s_lshl_b32 s31, s21, 5')
    A('s_add_u32 s30, s30, s31')
    A('s_lshl_b32 s30, s30, 7')
    A(f's_add_u32 s30, s30, {PFL + 768 * 128}')
    A('s_waitcnt vmcnt(0)')
    A('s_mov_b64 exec, 1')
    A('buffer_store_dword v113, v112, s[8:11], s30 offen sc0 sc1')
    A('s_mov_b64 exec, -1')
    A.label('pk_f_end')


def pack_poll(C, endlab):
    A = C.A
    A('s_mul_i32 s30, s22, 7')
    A('s_lshr_b32 s30, s30, 2')
    A('v_lshrrev_b32 v112, 4, v1')
    A('v_add_u32 v112, s30, v112')
    A('v_min_u32 v112, 27, v112')
    A('v_and_b32 v113, 7, v1')
    A('v_lshl_add_u32 v112, v112, 3, v113')
    A('v_bfe_u32 v114, v1, 3, 1')
    A('v_mul_u32_u24 v114, 224, v114')
    A('v_add3_u32 v112, v112, v114, 64')
    A('s_mul_i32 s30, s20, 7')
    A('s_lshr_b32 s30, s30, 1')
    A('v_min_u32 v114, 4, v113')
    A('v_add_u32 v114, s30, v114')
    A('v_min_u32 v114, 27, v114')
    A('s_add_u32 s30, s24, 512')
    A('v_lshl_add_u32 v114, v114, 3, s30')
    A('v_cmp_le_u32 vcc, 48, v1')
    A('s_lshl_b32 s30, s24, 3')
    A('s_add_u32 s30, s30, s20')
    A('v_cndmask_b32 v112, v112, v114, vcc')
    A('v_mov_b32 v114, s30')
    A('v_cmp_le_u32 vcc, 56, v1')
    A('s_add_u32 s31, s20, 768')
    A('s_and_b32 s30, s22, 12')
    A('s_lshl_b32 s30, s30, 1')
    A('s_add_u32 s30, s30, s31')
    A('v_cndmask_b32 v112, v112, v114, vcc')
    for q4 in range(4):
        A(f'v_writelane_b32 v112, s30, {59 + q4}')
        A('s_add_u32 s30, s30, 32')
    A('v_writelane_b32 v112, s31, 63')
    A(f's_mov_b32 s30, {PFL}')
    A('s_mov_b32 s31, 0')
    A('v_lshlrev_b32 v112, 7, v112')
    A('s_bfe_u32 s32, s19, 0x3000c')
    A('s_lshl_b32 s32, s32, 3')
    A('s_lshl_b32 s33, s26, 2')
    A('s_add_u32 s32, s32, s33')
    A('v_and_b32 v114, 3, v1')
    A('v_add_u32 v114, s32, v114')
    A('v_lshlrev_b32 v114, 7, v114')
    A('buffer_load_dword v113, v112, s[8:11], s30 offen sc1')
    A('buffer_load_dword v115, v114, s[8:11], s30 offen sc1')


def pack_poll2(C, endlab):
    A = C.A
    A(f's_mov_b32 s30, {PFL}')
    A('s_mov_b32 s31, 0')
    A.label('pk_p')
    A('s_waitcnt vmcnt(0)')
    A('v_and_b32 v113, v113, v115')
    A('v_cmp_eq_u32 vcc, 1, v113')
    A('s_add_u32 s31, s31, 1')
    A('s_cmp_eq_u64 vcc, -1')
    A('s_cbranch_scc1 pk_pd')
    A('s_sleep 16')
    A('buffer_load_dword v113, v112, s[8:11], s30 offen sc1')
    A('buffer_load_dword v115, v114, s[8:11], s30 offen sc1')
    A(f's_cmp_lt_u32 s31, {1 << 19}')
    A('s_cbranch_scc1 pk_p')
    A(f's_branch {endlab}')
    A.label('pk_pd')
    C.vm = []


def layer_part(C, layer, end):
    A = C.A
    C.tag = f'l{layer}'
    last = layer == 1
    xin = None if layer == 0 else XC
    kvf = KVF if layer == 0 else KVF2
    kfl = KFL + layer * 64 * 128
    sy = 5 * layer + 1
    C.B = dict(QF=QF, OF=OF, XB=XB, SXB=SXB, HF=HF) if layer == 0 else dict(QF=QF2, OF=OF2, XB=XB2, SXB=SXB2, HF=HF2)
    B = C.B

    def pre_addr():
        gu_waddr(C)
        g3_waddr(C, (113, 114), 112, WDP)
        g4_waddr(C, 116, WOP)

    stubs = [lambda: (pre_addr(), gu_wload(C, 0))]
    stubs += [lambda ks=ks: gu_wload(C, ks) for ks in range(1, 24)]
    stubs += [lambda i=i: g4_wload(C, 116, i, 'res') for i in range(8)]
    if TOUCH2:
        def touch2():
            A('s_and_b32 s30, s18, 7')
            A('s_lshr_b32 s31, s30, 1')
            A('s_lshl_b32 s31, s31, 2')
            A('s_and_b32 s30, s30, 1')
            A('s_add_u32 s30, s30, s31')
            A('s_lshl_b32 s30, s30, 10')
            C.vmem('buffer_load_dwordx4 v[120:123], v116, s[8:11], s30 offen offset:2048', 'tc')
            if layer == 0:
                A(f's_add_u32 s30, s30, {WQKVP - WOP + (1 << 32) if WQKVP < WOP else WQKVP - WOP}')
                A('v_add_u32 v117, s30, v116')
                C.vmem('buffer_load_dwordx4 v[120:123], v117, s[8:11], 0 offen', 'tc')
                C.vmem('buffer_load_dwordx4 v[120:123], v117, s[8:11], 0 offen offset:2048', 'tc')
        stubs += [touch2]
    if TOUCH3 & 1:
        def t3a(k):
            if k == 0:
                A('s_and_b32 s30, s21, 1')
                A('s_lshl_b32 s30, s30, 12')
                A(f's_add_u32 s30, s30, {24 * KB}')
                A(f'v_add_u32 v118, s30, {v(V_WGU)}')
            C.vmem(f'buffer_load_dwordx4 v[120:123], v118, s[8:11], 0 offen offset:{k * 1024}', 'tc')
        stubs += [lambda k=k: t3a(k) for k in range(4)]
    if TOUCH3 & 2:
        def t3b(k):
            if k == 0:
                A('s_and_b32 s30, s21, 1')
                A(f's_mul_i32 s30, s30, {7 * KB}')
                A('s_cmp_eq_u32 s23, 0')
                A('s_cselect_b64 vcc, -1, 0')
                A('v_cndmask_b32 v119, v114, v113, vcc')
                A('v_add_u32 v119, s30, v119')
            so, im = soff(k)
            C.vmem(f'buffer_load_dwordx4 v[120:123], v119, s[8:11], {so} offen offset:{im}', 'tc')
        stubs += [lambda k=k: t3b(k) for k in range(7)]
    if TOUCH and layer == 1:
        def t_addr():
            A('s_lshr_b32 s30, s2, 3')
            A('s_lshl_b32 s30, s30, 3')
            A('s_add_u32 s30, s30, s20')
            A(f's_mul_i32 s31, s30, {7 * KB}')
            A(f's_add_u32 s31, s31, {WDP}')
            A('v_add_u32 v118, s31, v3')
            A('s_lshl_b32 s31, s30, 11')
            A(f's_add_u32 s31, s31, {WQKVP}')
            A('v_add_u32 v119, s31, v3')

        def tch(vr, k):
            so, im = soff(k)
            C.vmem(f'buffer_load_dwordx4 v[120:123], {v(vr)}, s[8:11], {so} offen offset:{im}', 'tc')
        stubs += [lambda: (t_addr(), tch(V_WGU, 24))]
        stubs += [lambda ks=ks: tch(V_WGU, ks) for ks in range(25, 32)]
        stubs += [lambda k=k: tch(118, k) for k in range(7)]
        if not last:
            stubs += [lambda k=k: tch(119, k) for k in range(2)]

    def need_wo():
        A('s_lshr_b32 s30, s20, 1')
        A('s_lshl_b32 s30, s30, 2')
        A('s_and_b32 s31, s22, 3')
        A('s_add_u32 s30, s30, s31')
        A('s_lshl_b32 s32, 1, s30')

    def need_gu():
        A('s_lshl_b32 s32, 0x5555, s29')
        A('s_cmp_eq_u32 s20, 7')
        A('s_cselect_b32 s32, 0xffff, s32')

    def need_dn():
        A('s_lshl_b32 s30, s20, 1')
        A('s_lshl_b32 s32, 3, s30')

    def need_qkv():
        A('s_lshl_b32 s30, s20, 1')
        A('s_add_u32 s30, s30, s23')
        A('s_lshl_b32 s32, 1, s30')

    if layer == 0:
        fixed = {PK_I: lambda: (wq_store(C), pack_issue(C)), PK_C: lambda: pack_convert(C), PK_F: lambda: pack_flag(C), PK_P - 3: lambda: pack_poll(C, end), PK_P: lambda: pack_poll2(C, end)}
        tail = att_phase(C, kvf, kfl, end, stubs, fixed, PK_P, pre_hook=lambda: pack_ptrs(A), loadq=False, early=True)
    else:
        tail = att_phase(C, kvf, kfl, end, stubs, pre_hook=lambda: A('s_load_dwordx2 s[12:13], s[0:1], 72'), loadq=False)
    C.stamp()
    if not WO_LATE:
        A('s_nop 1')
        for i in range(8, 16):
            g4_wload(C, 116, i, 'res')
    g4_pre(C, 'res', B['OF'], resbase=xin)
    handoff(C, sy + 0, end, need_wo)
    C.stamp()
    g4_main(C, 'res', outbase=B['XB'], sxout=B['SXB'], hook_red=lambda k: gu_wload(C, 24 + k))
    C.stamp()
    gu2_pre(C)
    handoff(C, sy + 1, end, need_gu)
    C.stamp()
    gu2_main(C, sy + 2, end)
    C.stamp()
    if last:
        dn_main(C, 'out', sy - 1, end, B['XB'])
        C.stamp()
    else:
        dn_main(C, 'res', sy - 1, end, B['XB'], outbase=XC, sxout=SXC, hook_red=lambda: qkv4_wrest(C))
        C.stamp()
        g4_pre(C, 'qkv', XC, resbase=SXC)
        g4_waddr(C, 64, WQKVP)
        handoff(C, sy + 3, end, need_qkv)
        C.stamp()
        g4_main(C, 'qkv', kvf=KVF2, kfl=KFL + 64 * 128, endlab=end)
        C.stamp()
    return tail


def build():
    A = Asm()
    name = NAME + '_kernel'
    C = Ctx(A, 'pr')
    C.qf = QF
    end = 'k_end'
    kernel_begin(A, name)
    pre_part(C, end)
    t0 = layer_part(C, 0, end)
    t1 = layer_part(C, 1, end)
    A('s_add_u32 s30, s2, s20')
    A('s_cmp_lg_u32 s30, 0')
    A('s_cbranch_scc1 k_fin')
    A('s_load_dwordx2 s[4:5], s[0:1], 80')
    A('s_mov_b32 s6, 256')
    A('v_mov_b32 v2, 0')
    A('s_mov_b64 exec, 1')
    A('s_waitcnt lgkmcnt(0)')
    A('buffer_store_dword v2, v2, s[4:7], 0 offen sc0 sc1')
    A('s_mov_b64 exec, -1')
    A.label('k_fin')
    if DBGD:
        A('s_cmp_lg_u32 s2, 77')
        A('s_cbranch_scc1 k_fin2')
        A('s_cmp_lg_u32 s20, 1')
        A('s_cbranch_scc1 k_fin2')
        A('s_load_dwordx2 s[4:5], s[0:1], 80')
        A('s_memrealtime s[60:61]')
        A('s_mov_b32 s6, 256')
        A('v_mov_b32 v2, 0')
        A('s_mov_b64 exec, 1')
        A('s_waitcnt lgkmcnt(0)')
        sel = [int(x) for x in DBGD.split()]
        for k, i in enumerate(sel + [-1]):
            A(f's_sub_u32 s30, {s(64 + i) if i >= 0 else "s60"}, s64')
            A('v_mov_b32 v4, s30')
            A(f'buffer_store_dword v4, v2, s[4:7], 0 offen offset:{4 + 4 * k}')
        A('s_mov_b64 exec, -1')
        A.label('k_fin2')
    stamp_end(C, 1)
    A.label(end)
    A('s_endpgm')
    t0(True)
    t1(False)
    body = A.text()
    probs = lint(body)
    for p in probs:
        print('LINT:', p, file=sys.stderr)
    head = '; generated by gen/gen3.py\n'
    head += f"; @launch grid=(256,1,1) block=(512,1,1) lds={LDS_BYTES}\n"
    head += '.amdgcn_target "amdgcn-amd-amdhsa--gfx950"\n.text\n'
    tail = '.section .rodata,"a"\n.p2align 6\n' + descriptor(name, 256, 0, nsgpr=100)
    print('stamps:', C.nstamp, file=sys.stderr)
    return head + body + tail


if __name__ == '__main__':
    if 'stamp' in sys.argv:
        STAMP = True
    for arg in sys.argv[2:]:
        if '=' in arg:
            k, val = arg.split('=')
            globals()[k] = int(val) if val.lstrip('-').isdigit() else val.replace('_', ' ')
    out = sys.argv[1] if len(sys.argv) > 1 else f'cdna_kernels/{NAME}.s'
    open(out, 'w').write(build())
    print('wrote', out)
```

```python
import sys
import math
import struct
from asmlib import Asm, v, a, s, lint
import gen as G1
from gen import f32, kernel_begin, descriptor, ws_srd, KB

NAME = G1.NAME
WQKVP, WOP, WGUP, WDP, CSQKV, CSGU = G1.WQKVP, G1.WOP, G1.WGUP, G1.WDP, G1.CSQKV, G1.CSGU
KVF, XA, XB, QF, OF, HF = G1.KVF, G1.XA, G1.XB, G1.QF, G1.OF, G1.HF
WS_SIZE, QSCALE = G1.WS_SIZE, G1.QSCALE
KVG = 2048
KVT = 2128
VBS = 512
XC = G1.WS_END
KVF2 = XC + 2048 * KB
FLG = KVF2 + 144 * KB
SXA = FLG + 64 * KB
SXB = SXA + 512 * KB
SXC = SXB + 512 * KB
CSP = SXC + 512 * KB
PFL = CSP + 128 * KB
KFL = PFL + 112 * KB
QF2 = KFL + 16 * KB
OF2 = QF2 + 2048 * KB
XB2 = OF2 + 2048 * KB
SXB2 = XB2 + 2048 * KB
HF2 = SXB2 + 512 * KB
WS_END = HF2 + 64 * 112 * KB
STAMPS = G1.STAMPS

STAMP = False
WT = ' sc0 sc1'
LDS_BYTES = 160 * KB
FINE = 0
KVLOC = 0
OWT = ''
FR2 = 0
ZEARLY = 1
HACKW = 0
W7OFF = 1
PSLEEP = 0
GU_D = 20
F1BAR = 1
F2BAR = 1
GU_XB = 0
PRIME_LATE = 2
GU_PO = 0
GU_PRIO = 1
GU_SF1 = 6
DN_PI = 4
DN_AR = 0
TCHK = 2
TB2 = 6
DPT = 4
TPFEND = 8
TP2 = 28
TP1 = 46
TP0 = 58
ONEWAIT = 1
INLINE = 0
ATT_NB = 4
TOUCH3 = 0
PRIOV = 0
DBGD = ''
ATT_B2 = 2
WO_L0 = 3
WROT = 1
GU_TAIL = 1
ATT_R0 = 4
EXPT = 0
TLBW = 0
KV_SLEEP = 2
QKV_PER = 1
WO_TAIL = 16
SLO = 0
QWT = ' sc0 sc1'
GU16 = 0
GU_NOW = 0
GU_WD0 = 3
GU_BARS = {4: 1, 8: 2, 12: 7, 24: 7}
PK_I = 6
PK_C = 18
PK_F = 22
PK_P = 36
RT = 0
TOUCH = 0
TOUCH2 = 1
WO_LATE = 0
ATT_UN = 4
ATT_PFEND = 1
G3_PR4 = 7
G3_PR14 = 6
G2_ST8 = [2, 2, 2, 2]
G2_ST28 = [2, 2, 4, 4, 4, 4, 4, 4]
G2_PRE8 = 4
G2_PRE28 = 6


class Ctx:
    def __init__(self, A, tag):
        self.A = A
        self.tag = tag
        self.vm = []
        self.lds = []
        self.nlab = 0
        self.nstamp = 1

    def lab(self, base):
        self.nlab += 1
        return f'{self.tag}_{base}{self.nlab}'

    def vmem(self, text, tag):
        self.A(text)
        self.vm.append(tag)
        assert len(self.vm) <= 63, 'vmcnt overflow'

    def wait(self, tag, extra=''):
        idx = [i for i, t in enumerate(self.vm) if t == tag]
        if not idx:
            if extra:
                self.A(f's_waitcnt {extra}')
            return
        n = len(self.vm) - 1 - idx[-1]
        self.A(f's_waitcnt vmcnt({n}) {extra}'.strip())
        self.vm = self.vm[idx[-1] + 1:]

    def ds(self, text, tag):
        self.A(text)
        self.lds.append(tag)
        assert len(self.lds) <= 15, 'lgkmcnt overflow'

    def dwait(self, tag):
        idx = [i for i, t in enumerate(self.lds) if t == tag]
        if idx:
            self.A(f's_waitcnt lgkmcnt({len(self.lds) - 1 - idx[-1]})')
            self.lds = self.lds[idx[-1] + 1:]

    def stamp(self):
        if STAMP:
            i = self.nstamp - SLO
            self.nstamp += 1
            if i < 1 or i >= 28:
                return
            A = self.A
            A('s_waitcnt lgkmcnt(0)')
            A('s_memrealtime s[60:61]' if RT else 's_memtime s[60:61]')
            A('s_waitcnt lgkmcnt(0)')
            A(f's_mov_b32 {s(64 + i)}, s60')


def stamp_begin(C):
    if STAMP:
        A = C.A
        A('s_memrealtime s[62:63]')
        A('s_memtime s[60:61]')
        for i in range(1, 30):
            A(f's_mov_b32 {s(64 + i)}, 0')
        A('s_waitcnt lgkmcnt(0)')
        A('s_mov_b32 s64, s62' if RT else 's_mov_b32 s64, s60')
        A('s_mov_b32 s95, s62')


def stamp_end(C, kidx):
    if STAMP:
        A = C.A
        A('s_waitcnt vmcnt(0) lgkmcnt(0)')
        A('s_memtime s[60:61]')
        A('s_memrealtime s[62:63]')
        A('s_waitcnt lgkmcnt(0)')
        A('s_mov_b32 s93, s62' if RT else 's_mov_b32 s93, s60')
        A('s_mov_b32 s94, s62')
        A('s_mov_b64 exec, 1')
        A('s_lshl_b32 s60, s2, 10')
        A('s_lshl_b32 s61, s20, 7')
        A('s_add_u32 s60, s60, s61')
        A(f's_add_u32 s60, s60, {STAMPS + kidx * (1 << 20)}')
        A('v_mov_b32 v0, 0')
        for i in range(32):
            A(f'v_mov_b32 v1, {s(64 + i)}')
            A(f'buffer_store_dword v1, v0, s[8:11], s60 offen offset:{i * 4}')
        A('s_waitcnt vmcnt(0)')


def setup(C, need_out, endlab):
    A = C.A
    A('s_cmp_ge_u32 s2, 256')
    A(f's_cbranch_scc1 {endlab}')
    stamp_begin(C)
    ws_srd(A, 8)
    if need_out:
        A('s_load_dwordx2 s[12:13], s[0:1], 72')
        A(f's_mov_b32 s14, {2048 * 512 * 2}')
        A('s_mov_b32 s15, 0x20000')
    A('v_and_b32 v1, 63, v0')
    A('v_lshrrev_b32 v2, 6, v0')
    A('v_lshlrev_b32 v3, 4, v1')
    A('v_readfirstlane_b32 s20, v2')
    A('s_and_b32 s21, s2, 7')
    A('s_lshl_b32 s21, s21, 1')
    A('s_bfe_u32 s22, s2, 0x10003')
    A('s_add_u32 s21, s21, s22')
    A('s_lshr_b32 s22, s2, 4')
    A('s_and_b32 s23, s22, 1')
    A('s_lshr_b32 s24, s22, 1')
    A('s_and_b32 s25, s20, 3')
    A('s_lshr_b32 s26, s20, 2')
    A('s_lshl_b32 s27, s21, 2')
    A('s_add_u32 s27, s27, s23')
    A('s_lshl_b32 s28, s24, 1')
    A('s_bfe_u32 s30, s20, 0x10001')
    A('s_add_u32 s28, s28, s30')
    A('s_and_b32 s29, s20, 1')
    A('s_lshl_b32 s30, s29, 1')
    A('s_add_u32 s30, s30, s27')
    A('s_lshl_b32 s49, s30, 15')
    A('s_lshl_b32 s31, s28, 11')
    A('s_add_u32 s49, s49, s31')
    A('s_lshl_b32 s31, s26, 10')
    A('s_add_u32 s49, s49, s31')
    for g in range(1, 8):
        A(f's_mov_b32 {s(40 + g)}, {g * 4096}')
    A('s_waitcnt lgkmcnt(0)')


def soff(i):
    return ('0' if i // 4 == 0 else s(40 + i // 4)), (i % 4) * 1024


def handoff(C, sync, endlab, need, kvflag=None, first=False):
    A = C.A
    l1, l2, ld = C.lab('pa'), C.lab('pb'), C.lab('pd')
    need()
    A('s_mov_b32 s33, 0')
    A('v_lshlrev_b32 v0, 2, v1')
    A('s_lshl_b32 s30, s21, 8')
    A(f's_add_u32 s30, s30, {FLG + sync * 4096}')
    A('s_lshl_b32 s34, s22, 2')
    A('s_add_u32 s34, s34, s30')
    A('v_mov_b32 v4, 1')
    if first:
        lz, lzd = C.lab('z'), C.lab('zd')
        A('s_cmp_lg_u32 s20, 0')
        A(f's_cbranch_scc1 {lzd}')
        A('s_mov_b32 s31, 0')
        A('s_mov_b64 exec, 1')
        A.label(lz)
        A('buffer_load_dword v2, v0, s[4:7], 0 offen sc0 sc1')
        A('s_waitcnt vmcnt(0)')
        A('v_cmp_le_u32 vcc, 16, v2')
        A('s_add_u32 s31, s31, 1')
        A('s_cmp_eq_u64 vcc, 1')
        A(f's_cbranch_scc1 {lzd}')
        A('s_sleep 8')
        A(f's_cmp_lt_u32 s31, {1 << 20}')
        A(f's_cbranch_scc1 {lz}')
        A(f's_branch {endlab}')
        A.label(lzd)
        A('s_mov_b64 exec, -1')
    if kvflag is not None:
        A('s_waitcnt vmcnt(0) lgkmcnt(0)')
        C.vm = []
    else:
        C.wait('st', 'lgkmcnt(0)')
    A('s_cmp_lg_u32 s20, 0')
    A('s_barrier')
    l, lb, lb2 = C.lab('sig'), C.lab('sb'), C.lab('sc')
    A(f's_cbranch_scc1 {l}')
    A('s_mov_b64 exec, 1')
    if kvflag is not None:
        lk = C.lab('kf')
        A('s_cmp_ge_u32 s24, 2')
        A(f's_cbranch_scc1 {lk}')
        A('s_add_u32 s31, s27, s24')
        A('s_lshl_b32 s31, s31, 7')
        A(f's_add_u32 s31, s31, {kvflag}')
        A('s_mov_b64 exec, 15')
        A('buffer_store_dword v4, v0, s[8:11], s31 offen sc0 sc1')
        A('s_mov_b64 exec, 1')
        A.label(lk)
    A('buffer_store_dword v4, v0, s[8:11], s34 offen')
    A.label(l)
    A('s_mov_b32 s31, 0')
    A('s_mov_b64 exec, s[32:33]')
    A.label(l1)
    A('buffer_load_dword v2, v0, s[8:11], s30 offen sc1')
    A('s_add_u32 s31, s31, 1')
    A('s_waitcnt vmcnt(0)')
    A('v_cmp_ne_u32 vcc, 0, v2')
    A('s_cmp_eq_u64 vcc, s[32:33]')
    A(f's_cbranch_scc1 {ld}')
    if PSLEEP:
        A(f's_sleep {PSLEEP}')
    A('s_cmp_lt_u32 s31, 64')
    A(f's_cbranch_scc1 {l1}')
    A('s_mov_b64 exec, 1')
    A('buffer_store_dword v4, v0, s[8:11], s34 offen offset:128 sc0 sc1')
    A('s_mov_b64 exec, s[32:33]')
    A.label(l2)
    A('buffer_load_dword v2, v0, s[8:11], s30 offen sc1')
    A('s_waitcnt vmcnt(0)')
    A('v_cmp_ne_u32 s[36:37], 0, v2')
    A('buffer_load_dword v2, v0, s[8:11], s30 offen offset:128 sc0 sc1')
    A('s_waitcnt vmcnt(0)')
    A('v_cmp_ne_u32 vcc, 0, v2')
    A('s_add_u32 s31, s31, 1')
    A('s_or_b64 vcc, vcc, s[36:37]')
    A('s_cmp_eq_u64 vcc, s[32:33]')
    A(f's_cbranch_scc1 {ld}')
    A('s_sleep 4')
    A(f's_cmp_lt_u32 s31, {1 << 20}')
    A(f's_cbranch_scc1 {l2}')
    A(f's_branch {endlab}')
    A.label(ld)
    A('s_mov_b64 exec, -1')
    C.vm = []
    C.flagb = True


def flag_b(C):
    if getattr(C, 'flagb', False):
        A = C.A
        l = C.lab('fb')
        A('s_cmp_lg_u32 s20, 0')
        A(f's_cbranch_scc1 {l}')
        A('s_mov_b64 exec, 1')
        A('buffer_store_dword v4, v0, s[8:11], s34 offen offset:128 sc0 sc1')
        A('s_mov_b64 exec, -1')
        A.label(l)
        C.flagb = False


ACCB, ACCA = 16, 48
KVW, KACC, QSX = 160, 176, 240
KVRED, STAT, CSX, CSK = 112 * KB, 144 * KB, 148 * KB, 152 * KB


def blk_stats(C, P, T):
    A = C.A
    A(f'v_mov_b32 {v(T + 4)}, 0x3f803f80')
    A(f'v_dot2_f32_bf16 {v(T + 1)}, {v(P)}, {v(P)}, 0')
    A(f'v_dot2_f32_bf16 {v(T)}, {v(P)}, {v(T + 4)}, 0')
    for m in range(1, 4):
        A(f'v_dot2_f32_bf16 {v(T + 1)}, {v(P + m)}, {v(P + m)}, {v(T + 1)}')
        A(f'v_dot2_f32_bf16 {v(T)}, {v(P + m)}, {v(T + 4)}, {v(T)}')
    A('s_nop 2')
    A(f'v_mov_b32 {v(T + 2)}, {v(T)}')
    A(f'v_mov_b32 {v(T + 3)}, {v(T + 1)}')
    A('s_nop 1')
    A(f'v_permlane32_swap_b32 {v(T)}, {v(T + 2)}')
    A(f'v_permlane32_swap_b32 {v(T + 1)}, {v(T + 3)}')
    A(f'v_add_f32 {v(T)}, {v(T)}, {v(T + 2)}')
    A(f'v_add_f32 {v(T + 1)}, {v(T + 1)}, {v(T + 3)}')


def g3_waddr(C, vregs, KS, wbase):
    A = C.A
    NS = KS // 8
    A('s_lshl_b32 s30, s26, 8')
    A(f'v_xor_b32 {v(vregs[0])}, s30, v3')
    A(f's_mul_i32 s31, s20, {NS * KB}')
    A(f's_add_u32 s31, s31, {wbase}')
    A('s_xor_b32 s30, s28, 1')
    A(f's_mul_i32 s30, s30, {KS * KB}')
    A('s_add_u32 s30, s30, s31')
    A(f'v_add_u32 {v(vregs[1])}, s30, {v(vregs[0])}')
    A(f's_mul_i32 s30, s28, {KS * KB}')
    A('s_add_u32 s30, s30, s31')
    A(f'v_add_u32 {v(vregs[0])}, s30, {v(vregs[0])}')


def g3_wload(C, vregs, idx, wreg0, tag='w'):
    st, jj = idx // 2, idx % 2
    so, im = soff(st)
    C.vmem(f'buffer_load_dwordx4 {v(wreg0 + 4 * idx, 4)}, {v(vregs[jj])}, s[8:11], {so} offen offset:{im}', tag)


def g3_ex(mode, KS):
    return 252 if KS == 112 else (112 if mode == 'qkv' else 116)


def g3_pre(C, mode, KS, xbase, resbase=None, raw=False):
    A = C.A
    NS = KS // 8
    EX = g3_ex(mode, KS)
    A(f's_mul_i32 s31, s20, {NS * KB}')
    A(f's_add_u32 s31, s31, {xbase}')
    A('s_add_u32 s30, s27, s29')
    A(f's_mul_i32 s32, s30, {KS * KB}')
    A('s_add_u32 s32, s32, s31')
    A('v_add_u32 v6, s32, v3')
    A('s_xor_b32 s30, s30, 1')
    A(f's_mul_i32 s32, s30, {KS * KB}')
    A('s_add_u32 s32, s32, s31')
    A('v_add_u32 v5, s32, v3')
    A('s_lshl_b32 s30, s20, 11')
    A('v_add_u32 v8, s30, v3')
    A('v_add_u32 v7, 0x10000, v8')
    for b in range(1, 8):
        A(f's_xor_b32 s30, s20, {b}')
        A('s_lshl_b32 s30, s30, 11')
        A(f's_add_u32 s30, s30, {(b - 1) * 16 * KB}')
        A(f'v_add_u32 {v(8 + b)}, s30, v3')
    if raw:
        return
    if mode == 'qkv':
        A('v_lshrrev_b32 v2, 5, v1')
        A('v_lshlrev_b32 v4, 4, v2')
        A('s_lshl_b32 s31, s28, 7')
        A('s_lshl_b32 s30, s26, 6')
        A('s_add_u32 s31, s31, s30')
        A(f's_add_u32 s31, s31, {CSQKV}')
        C.vmem(f'buffer_load_dwordx4 {v(EX, 4)}, v4, s[8:11], s31 offen', 'ex')
        C.vmem(f'buffer_load_dwordx4 {v(EX + 4, 4)}, v4, s[8:11], s31 offen offset:32', 'ex')
        A('s_bfe_u32 s30, s20, 0x10001')
        A('s_lshl_b32 s30, s30, 6')
        A('s_lshl_b32 s31, s26, 5')
        A('s_add_u32 s30, s30, s31')
        A(f's_add_u32 s31, s30, {CSQKV + 2048}')
        C.vmem(f'buffer_load_dwordx4 {v(EX + 8, 4)}, v4, s[8:11], s31 offen', 'ex')
        A(f'v_and_b32 {v(QSX + 8)}, 31, v1')
        A(f'v_lshlrev_b32 {v(QSX + 8)}, 3, {v(QSX + 8)}')
        A(f'v_lshl_add_u32 {v(QSX + 8)}, v2, 13, {v(QSX + 8)}')
        A('s_lshl_b32 s30, s27, 13')
        A('s_lshl_b32 s31, s20, 10')
        A('s_add_u32 s30, s30, s31')
        A(f's_add_u32 s30, s30, {resbase}')
        A(f'v_add_u32 {v(QSX + 8)}, s30, {v(QSX + 8)}')
    elif resbase is None:
        A('v_and_b32 v2, 31, v1')
        A('v_lshlrev_b32 v2, 10, v2')
        A('v_lshrrev_b32 v4, 5, v1')
        A('v_lshl_add_u32 v2, v4, 3, v2')
        A('s_add_u32 s30, s27, s29')
        A('s_lshl_b32 s30, s30, 15')
        A('s_lshl_b32 s31, s28, 6')
        A('s_add_u32 s30, s30, s31')
        A('s_lshl_b32 s31, s26, 5')
        A('s_add_u32 s30, s30, s31')
        C.vmem(f'buffer_load_dwordx2 {v(EX, 2)}, v2, s[12:15], s30 offen', 'ex')
        C.vmem(f'buffer_load_dwordx2 {v(EX + 2, 2)}, v2, s[12:15], s30 offen offset:16', 'ex')
    else:
        A(f's_add_u32 s31, s49, {resbase}')
        C.vmem(f'buffer_load_dwordx4 {v(EX, 4)}, v3, s[8:11], s31 offen', 'ex')


def g3_main(C, mode, KS, wreg0, outbase=None, kvf=None, after_store=None, sxout=None, hook_b=None, raw=False, hook_red=None):
    A = C.A
    NS = KS // 8
    EX = g3_ex(mode, KS)
    if NS == 4:
        xreg = {(hh, st): 80 + (hh * 4 + st) * 4 for hh in range(2) for st in range(4)}
    else:
        slot = [80 + 4 * k for k in range(12)] + [240, 244]
        xreg = {(hh, st): slot[st] for hh in range(2) for st in range(NS)}

    def xload(hh, st):
        so, im = soff(st)
        C.vmem(f'buffer_load_dwordx4 {v(xreg[hh, st], 4)}, {v(5 + hh)}, s[8:11], {so} offen offset:{im}', f'x{hh}_{st}')

    seq = [(hh, st) for hh in range(2) for st in range(NS)]
    PR = G3_PR4 if NS == 4 else G3_PR14
    if raw:
        seq, PR = [], 0
    for x in seq[:PR]:
        xload(*x)
    nxt = PR
    C.wait('w')

    def wr(b):
        base = (ACCA if b & 1 else ACCB) + ((b >> 1) & 1) * 16 + (b >> 2) * 8
        return [f'ds_write_b128 {v(8 + b)}, {v(base + h2 * 4, 4)} offset:{h2 * 1024}' for h2 in range(2)]

    pend = []
    for hh in range(2):
        acc = ACCA if hh == 0 else ACCB
        for st in range(NS):
            C.wait(f'x{hh}_{st}')
            if hh == 0 and st == 0:
                C.stamp()
            for jj in range(2):
                c = '0' if st == 0 else v(acc + jj * 16, 16)
                A(f'v_mfma_f32_32x32x16_bf16 {v(acc + jj * 16, 16)}, {v(wreg0 + 4 * (2 * st + jj), 4)}, {v(xreg[hh, st], 4)}, {c}')
                if hh == 1 and (st >= 3 or (NS == 4 and st >= 2)):
                    for _ in range(2 if NS == 4 else 1):
                        if pend:
                            A(pend.pop(0))
            if nxt < len(seq):
                xload(*seq[nxt])
                nxt += 1
                if nxt == len(seq):
                    if mode == 'qkv':
                        for e in range(4):
                            C.vmem(f'buffer_load_dwordx2 {v(QSX + 2 * e, 2)}, {v(QSX + 8)}, s[8:11], 0 offen offset:{e * 256}', 'sx')
                    flag_b(C)
                    hb = 0
            elif hook_b:
                hb += 1
            if hook_b and nxt == len(seq):
                hook_b(hb, PR)
            if hh == 1 and NS == 4 and st == 1:
                A('s_nop 7' if raw else 's_nop 5')
            if hh == 1 and NS != 4 and st == 2:
                A('s_nop 2')
        if hh == 0:
            pend = wr(1) + wr(5) + wr(3) + wr(7)
    assert not pend
    C.stamp()
    lkv = C.lab('nokv')
    if mode == 'qkv':
        la, lb = C.lab('ka'), C.lab('kb')
        A('s_cmp_ge_u32 s24, 2')
        A(f's_cbranch_scc1 {lb}')
        A('s_cmp_eq_u32 s24, s29')
        A(f's_cbranch_scc0 {la}')
        for hh in (1, 0):
            for st in range(4):
                c = '0' if st == 0 else v(KACC, 16)
                A(f'v_mfma_f32_32x32x16_bf16 {v(KACC, 16)}, {v(KVW + 4 * st, 4)}, {v(xreg[hh, st], 4)}, {c}')
            if hh == 1:
                A(f's_branch {lb}')
                A.label(la)
        A.label(lb)
        A('v_lshlrev_b32 v4, 3, v1')
        if not raw:
            C.wait('sx')
            for e in range(4):
                A(f'v_add_f32 {v(QSX + e)}, {v(QSX + e)}, {v(QSX + 4 + e)}')
            for e in range(2):
                A(f'v_add_f32 {v(QSX + e)}, {v(QSX + e)}, {v(QSX + 2 + e)}')
            A('s_lshl_b32 s30, s20, 9')
            A(f's_add_u32 s30, s30, {STAT}')
            A('v_add_u32 v2, s30, v4')
            A(f'ds_write_b64 v2, {v(QSX, 2)}')
        else:
            A('v_lshrrev_b32 v112, 5, v1')
            A('v_lshlrev_b32 v112, 4, v112')
            A('s_and_b32 s30, s28, 1')
            A('s_lshl_b32 s30, s30, 7')
            A('s_lshl_b32 s31, s26, 6')
            A('s_add_u32 s30, s30, s31')
            A(f's_add_u32 s30, s30, {CSK}')
            A('v_add_u32 v113, s30, v112')
            A('s_nop 3')
        A('v_and_b32 v4, 0xf8, v4')
        A('s_lshl_b32 s30, s29, 8')
        A(f's_add_u32 s30, s30, {STAT}')
        A('v_add_u32 v4, s30, v4')
    else:
        A('s_nop 10')
    for b in (4, 2, 6):
        for x in wr(b):
            A(x)
    if mode == 'qkv':
        A('s_cmp_ge_u32 s24, 2')
        A(f's_cbranch_scc1 {lkv}')
        A(f'v_add_u32 v2, {KVRED}, v8')
        for k4 in range(4):
            A(f'ds_write_b128 v2, {v(KACC + k4 * 4, 4)} offset:{(k4 >> 1) * 16 * KB + (k4 & 1) * 1024}')
        A.label(lkv)
    if hook_red:
        hook_red()
    A('s_waitcnt lgkmcnt(0)')
    A('s_barrier')
    for b in range(1, 8):
        for h2 in range(2):
            base, off = ('v8', (b - 1) * 16 * KB) if b <= 4 else ('v7', (b - 5) * 16 * KB)
            A(f'ds_read_b128 {v(ACCB + b * 8 + h2 * 4, 4)}, {base} offset:{off + h2 * 1024}')
    T = 80

    def red(base, waits):
        for stp in (32, 16, 8):
            for r in range(stp):
                A(f'v_add_f32 {v(base + r)}, {v(base + r)}, {v(base + stp + r)}')
    if mode == 'qkv':
        A('s_waitcnt lgkmcnt(6)')
        for ww in range(8):
            A(f'ds_read_b64 {v(T + ww * 2, 2)}, v4 offset:{ww * 512}')
        A('s_waitcnt lgkmcnt(8)')
        if raw:
            EX = 192
            for h2 in range(2):
                A(f'ds_read_b128 {v(EX + h2 * 4, 4)}, v113 offset:{h2 * 32}')
    else:
        C.wait('ex')
        for m in range(4):
            A(f'v_lshlrev_b32 {v(T + 2 * m)}, 16, {v(EX + m)}')
            A(f'v_and_b32 {v(T + 2 * m + 1)}, 0xffff0000, {v(EX + m)}')
        for r in range(8):
            A(f'v_add_f32 {v(ACCB + r)}, {v(ACCB + r)}, {v(T + r)}')
        A('s_waitcnt lgkmcnt(0)')
    red(ACCB, None)
    P = ACCB + 8
    if mode == 'qkv':
        A('s_waitcnt lgkmcnt(0)')
        for stp in (8, 4, 2):
            for e in range(stp):
                A(f'v_add_f32 {v(T + e)}, {v(T + e)}, {v(T + e + stp)}')
        A(f'v_mul_f32 {v(T)}, {f32(1.0 / 512)}, {v(T)}')
        A(f'v_mul_f32 {v(T + 1)}, {f32(1.0 / 512)}, {v(T + 1)}')
        A(f'v_fma_f32 {v(T + 1)}, -{v(T)}, {v(T)}, {v(T + 1)}')
        A(f'v_max_f32 {v(T + 1)}, 0, {v(T + 1)}')
        A(f'v_add_f32 {v(T + 1)}, {f32(1e-5)}, {v(T + 1)}')
        A(f'v_rsq_f32 {v(T + 1)}, {v(T + 1)}')
        C.wait('ex')
        for r in range(8):
            A(f'v_fma_f32 {v(ACCB + r)}, -{v(T)}, {v(EX + r)}, {v(ACCB + r)}')
        A(f'v_mul_f32 {v(T + 2)}, {f32(QSCALE)}, {v(T + 1)}')
        for r in range(8):
            A(f'v_mul_f32 {v(ACCB + r)}, {v(T + 2)}, {v(ACCB + r)}')
        for m in range(4):
            A(f'v_cvt_pk_bf16_f32 {v(P + m)}, {v(ACCB + 2 * m)}, {v(ACCB + 2 * m + 1)}')
        A(f's_add_u32 s31, s49, {C.qf}')
        C.vmem(f'buffer_store_dwordx4 {v(P, 4)}, v3, s[8:11], s31 offen{QWT}', 'st')
        le, lv = C.lab('ke'), C.lab('v')
        A('s_cmp_lg_u32 s29, s24')
        A(f's_cbranch_scc1 {le}')
        A('s_bfe_u32 s34, s20, 0x10001')
        A('s_lshl_b32 s30, s34, 14')
        A('s_lshl_b32 s31, s26, 10')
        A('s_add_u32 s30, s30, s31')
        A(f's_add_u32 s30, s30, {KVRED}')
        A('v_add_u32 v4, s30, v3')
        KR = 208
        for ww in range(8):
            A(f'ds_read_b128 {v(KR + ww * 4, 4)}, v4 offset:{ww * 2048}')
        KX = EX + 8
        if raw:
            A('s_lshl_b32 s30, s34, 6')
            A('s_lshl_b32 s31, s26, 5')
            A('s_add_u32 s30, s30, s31')
            A(f's_add_u32 s30, s30, {CSK + 256}')
            A('v_add_u32 v113, s30, v112')
            A(f'ds_read_b128 {v(KX, 4)}, v113')
        A('s_add_u32 s30, s27, s29')
        A(f's_mul_i32 s30, s30, {KVG}')
        A(f's_add_u32 s30, s30, {kvf}')
        A('v_bfe_u32 v4, v1, 4, 1')
        A(f'v_mul_u32_u24 v4, {VBS}, v4')
        A('v_bfe_u32 v5, v1, 2, 1')
        A('v_lshl_add_u32 v4, v5, 8, v4')
        A('v_and_b32 v5, 3, v1')
        A('v_lshl_add_u32 v4, v5, 1, v4')
        A('v_bfe_u32 v5, v1, 3, 1')
        A('v_lshl_add_u32 v4, v5, 3, v4')
        A('v_lshrrev_b32 v5, 5, v1')
        A('v_lshl_add_u32 v4, v5, 6, v4')
        A('s_waitcnt lgkmcnt(0)')
        for stp in (16, 8, 4):
            for r in range(stp):
                A(f'v_add_f32 {v(KR + r)}, {v(KR + r)}, {v(KR + stp + r)}')
        for r in range(4):
            A(f'v_fma_f32 {v(KR + r)}, -{v(T)}, {v(KX + r)}, {v(KR + r)}')
        for r in range(4):
            A(f'v_mul_f32 {v(KR + r)}, {v(T + 1)}, {v(KR + r)}')
        KP = KR + 8
        for m in range(2):
            A(f'v_cvt_pk_bf16_f32 {v(KP + m)}, {v(KR + 2 * m)}, {v(KR + 2 * m + 1)}')
        A('s_cmp_lg_u32 s34, 0')
        A(f's_cbranch_scc1 {lv}')
        A('s_lshl_b32 s31, s26, 3')
        A('s_add_u32 s31, s31, s30')
        A(f'buffer_store_dwordx2 {v(KP, 2)}, v3, s[8:11], s31 offen{QWT}')
        A(f's_branch {le}')
        A.label(lv)
        A('s_lshl_b32 s31, s26, 7')
        A('s_add_u32 s31, s31, s30')
        for r in range(4):
            op = 'buffer_store_short' if r % 2 == 0 else 'buffer_store_short_d16_hi'
            A(f'{op} {v(KP + r // 2)}, v4, s[8:11], s31 offen offset:{1024 + r * 16}{QWT}')
        A.label(le)
    else:
        for m in range(4):
            A(f'v_cvt_pk_bf16_f32 {v(P + m)}, {v(ACCB + 2 * m)}, {v(ACCB + 2 * m + 1)}')
        if mode == 'res':
            A(f's_add_u32 s31, s49, {outbase}')
            C.vmem(f'buffer_store_dwordx4 {v(P, 4)}, v3, s[8:11], s31 offen{WT}', 'st')
            blk_stats(C, P, T)
            A('s_lshr_b32 s31, s49, 2')
            A(f's_add_u32 s31, s31, {sxout}')
            A('v_lshlrev_b32 v4, 3, v1')
            A('s_mov_b32 exec_hi, 0')
            C.vmem(f'buffer_store_dwordx2 {v(T, 2)}, v4, s[8:11], s31 offen{WT}', 'st')
            A('s_mov_b64 exec, -1')
            if after_store:
                after_store()
        else:
            A('v_and_b32 v4, 31, v1')
            A('v_lshlrev_b32 v4, 10, v4')
            A('v_lshrrev_b32 v5, 5, v1')
            A('v_lshl_add_u32 v4, v5, 4, v4')
            A('s_add_u32 s30, s27, s29')
            A('s_lshl_b32 s30, s30, 15')
            A('s_lshl_b32 s31, s28, 6')
            A('s_add_u32 s30, s30, s31')
            A('s_lshl_b32 s31, s26, 5')
            A('s_add_u32 s30, s30, s31')
            A(f'v_permlane32_swap_b32 {v(P)}, {v(P + 2)}')
            A(f'v_permlane32_swap_b32 {v(P + 1)}, {v(P + 3)}')
            C.vmem(f'buffer_store_dwordx4 {v(P, 4)}, v4, s[12:15], s30 offen{OWT}', 'st')


def qkv_wstep(C, st, n=1):
    A = C.A
    if st == 0:
        g3_waddr(C, (5, 6), 32, WQKVP)
    per = -(-8 // n)
    for i in range(st * per, min(8, (st + 1) * per)):
        g3_wload(C, (5, 6), i, 128)
    if st == n:
        A('s_lshl_b32 s30, s20, 12')
        A(f's_add_u32 s30, s30, {WQKVP + 16 * 32 * KB}')
        l = C.lab('kw')
        A('s_cmp_ge_u32 s24, 2')
        A(f's_cbranch_scc1 {l}')
        for k in range(4):
            A(f'buffer_load_dwordx4 {v(KVW + 4 * k, 4)}, v3, s[8:11], s30 offen offset:{k * 1024}')
        A.label(l)


def qkv_wloads(C):
    qkv_wstep(C, 0)
    qkv_wstep(C, 1)


KVR4, XF0, ST4, RED4 = 0, 36 * KB, 68 * KB, 80 * KB
G4_ORD = [0, 1, 4, 5, 8, 9, 12, 13, 2, 3, 6, 7, 10, 11, 14, 15]


def g4_ids(C):
    A = C.A
    A('s_and_b32 s18, s22, 3')
    A('s_lshl_b32 s30, s21, 2')
    A('s_add_u32 s18, s18, s30')
    A('s_and_b32 s30, s22, 12')
    A('s_add_u32 s30, s30, s25')
    A('s_lshl_b32 s30, s30, 1')
    A('s_add_u32 s30, s30, s26')
    A('s_lshl_b32 s19, s18, 5')
    A('s_add_u32 s19, s19, s30')
    A('s_lshl_b32 s19, s19, 10')
    A('s_lshr_b32 s3, s22, 2')
    A('s_and_b32 s30, s21, 3')
    A('s_xor_b32 s3, s3, s30')


def g4_waddr(C, vreg, wbase):
    A = C.A
    A('s_lshl_b32 s30, s26, 8')
    A(f'v_xor_b32 {v(vreg)}, s30, v3')
    A('s_and_b32 s30, s19, 0x7fff')
    A('s_lshl_b32 s30, s30, 4')
    A(f's_add_u32 s30, s30, {wbase}')
    A(f'v_add_u32 {v(vreg)}, s30, {v(vreg)}')


def g4_wreg(mode, i):
    if mode == 'qkv':
        return 128 + 4 * i
    return 224 + 4 * i if i < 8 else 64 + 4 * (i - 8)


def g4_wload(C, vreg, i, mode):
    so, im = soff(G4_ORD[i])
    C.vmem(f'buffer_load_dwordx4 {v(g4_wreg(mode, i), 4)}, {v(vreg)}, s[8:11], {so} offen offset:{im}', 'w')


def g4_pre(C, mode, xbase, resbase=None, raw=False):
    A = C.A
    EX = 96
    A('s_lshl_b32 s30, s18, 15')
    A('s_lshl_b32 s48, s20, 12')
    A('s_add_u32 s30, s30, s48')
    A(f's_add_u32 s30, s30, {xbase}')
    A('v_add_u32 v5, s30, v3')
    A('s_lshl_b32 s30, s26, 14')
    A(f's_add_u32 s30, s30, {XF0}')
    A('v_add_u32 v6, s30, v3')
    A(f'v_add_u32 v14, s48, v3')
    A(f's_add_u32 s48, s48, {XF0}')
    A('s_lshl_b32 s30, s20, 11')
    A(f's_add_u32 s30, s30, {RED4}')
    A('v_add_u32 v8, s30, v3')
    A('v_xor_b32 v7, 0x2000, v8')
    if mode == 'qkv':
        A('v_lshrrev_b32 v2, 5, v1')
        if not raw:
            A('v_lshlrev_b32 v4, 4, v2')
            A('s_and_b32 s31, s19, 0x7fff')
            A('s_lshr_b32 s31, s31, 4')
            A(f's_add_u32 s31, s31, {CSQKV}')
            C.vmem(f'buffer_load_dwordx4 {v(EX, 4)}, v4, s[8:11], s31 offen', 'ex')
            C.vmem(f'buffer_load_dwordx4 {v(EX + 4, 4)}, v4, s[8:11], s31 offen offset:32', 'ex')
            A('s_lshl_b32 s31, s25, 5')
            A(f's_add_u32 s31, s31, {CSQKV + 2048}')
            C.vmem(f'buffer_load_dwordx4 {v(EX + 8, 4)}, v4, s[8:11], s31 offen', 'ex')
        A('v_and_b32 v9, 31, v1')
        A('v_lshlrev_b32 v9, 3, v9')
        A(f'v_add_u32 v11, {ST4}, v9')
        A('s_lshl_b32 s30, s20, 8')
        A('v_add_u32 v10, s30, v11')
        A('v_lshl_add_u32 v9, v2, 9, v9')
        A('s_lshl_b32 s30, s18, 13')
        A('s_lshl_b32 s31, s20, 10')
        A('s_add_u32 s30, s30, s31')
        A(f's_add_u32 s30, s30, {resbase}')
        A('v_add_u32 v9, s30, v9')
        A('v_add_u32 v12, s48, v3')
        A('s_lshl_b32 s30, s25, 10')
        A(f's_add_u32 s30, s30, {KVR4}')
        A('v_add_u32 v13, s30, v3')
        A('v_bfe_u32 v15, v1, 4, 1')
        A('v_lshlrev_b32 v15, 9, v15')
        A('v_bfe_u32 v4, v1, 2, 1')
        A('v_lshl_add_u32 v15, v4, 8, v15')
        A('v_and_b32 v4, 3, v1')
        A('v_lshl_add_u32 v15, v4, 1, v15')
        A('v_bfe_u32 v4, v1, 3, 1')
        A('v_lshl_add_u32 v15, v4, 3, v15')
        A('v_lshl_add_u32 v15, v2, 6, v15')
    elif resbase is None:
        A('v_and_b32 v2, 31, v1')
        A('v_lshlrev_b32 v2, 10, v2')
        A('v_lshrrev_b32 v4, 5, v1')
        A('v_lshl_add_u32 v2, v4, 3, v2')
        A('s_lshl_b32 s30, s18, 15')
        A('s_and_b32 s31, s19, 0x7fff')
        A('s_lshr_b32 s31, s31, 5')
        A('s_add_u32 s30, s30, s31')
        C.vmem(f'buffer_load_dwordx2 {v(EX, 2)}, v2, s[12:15], s30 offen', 'ex')
        C.vmem(f'buffer_load_dwordx2 {v(EX + 2, 2)}, v2, s[12:15], s30 offen offset:16', 'ex')
    else:
        A(f's_add_u32 s31, s19, {resbase}')
        C.vmem(f'buffer_load_dwordx4 {v(EX, 4)}, v3, s[8:11], s31 offen', 'ex')


def ln_stats(A, T):
    for stp in (8, 4, 2):
        for e in range(stp):
            A(f'v_add_f32 {v(T + e)}, {v(T + e)}, {v(T + e + stp)}')
    A(f'v_mul_f32 {v(T)}, {f32(1.0 / 512)}, {v(T)}')
    A(f'v_mul_f32 {v(T + 1)}, {f32(1.0 / 512)}, {v(T + 1)}')
    A(f'v_fma_f32 {v(T + 1)}, -{v(T)}, {v(T)}, {v(T + 1)}')
    A(f'v_max_f32 {v(T + 1)}, 0, {v(T + 1)}')
    A(f'v_add_f32 {v(T + 1)}, {f32(1e-5)}, {v(T + 1)}')
    A(f'v_rsq_f32 {v(T + 1)}, {v(T + 1)}')


def g4_main(C, mode, outbase=None, sxout=None, kvf=None, kfl=None, hook_red=None, raw=None, endlab=None):
    A = C.A
    ACC, XR, EX = 16, 32, 96
    KW, KA, KR, T = 192, 208, 224, 108
    if not raw:
        A('s_mov_b32 m0, s48')
        A('s_nop 0')
        for k in range(4):
            C.vmem(f'buffer_load_dwordx4 v5, s[8:11], 0 offen offset:{k * 1024} lds', f'x{k}')

    def rd(i):
        A(f'ds_read_b128 {v(XR + 4 * (i % 8), 4)}, v6 offset:{G4_ORD[i] * 1024}')

    def mf(i):
        c = '0' if i == 0 else v(ACC, 16)
        A(f'v_mfma_f32_32x32x16_bf16 {v(ACC, 16)}, {v(g4_wreg(mode, i), 4)}, {v(XR + 4 * (i % 8), 4)}, {c}')

    def wq_loads():
        for i in range(16):
            so, im = soff(G4_ORD[i])
            A(f'buffer_load_dwordx4 {v(128 + 4 * i, 4)}, v64, s[8:11], {so} offen offset:{im}')

    if mode == 'qkv':
        A('s_add_u32 s35, s3, s26')
        if raw:
            raw['front']()
        else:
            for e in range(2):
                C.vmem(f'buffer_load_dwordx2 {v(T + 2 * e, 2)}, v9, s[8:11], 0 offen offset:{e * 256}', 'sx')
            l1, l2 = C.lab('w1'), C.lab('w2')
            A('s_cmp_eq_u32 s3, 0')
            A(f's_cbranch_scc1 {l1}')
            flag_b(C)
            wq_loads()
            A('s_waitcnt vmcnt(16)')
            A(f's_branch {l2}')
            A.label(l1)
            A('s_waitcnt vmcnt(0)')
            A.label(l2)
            C.vm = []
            C.stamp()
        lk = C.lab('k4')
        A('s_cmp_lg_u32 s3, 0')
        A(f's_cbranch_scc1 {lk}')
        if raw:
            raw['kvw']()
        else:
            for k in range(4):
                A(f'ds_read_b128 {v(KR + 4 * k, 4)}, v12 offset:{k * 1024}')
        for k in range(4):
            if not raw:
                A(f's_waitcnt lgkmcnt({3 - k})')
            A(f'v_mfma_f32_32x32x16_bf16 {v(KA, 16)}, {v(KW + 4 * k, 4)}, {v(KR + 4 * k, 4)}, {"0" if k == 0 else v(KA, 16)}')
        A.label(lk)
        if raw:
            raw['front2']()
        A(f'v_add_f32 {v(T)}, {v(T)}, {v(T + 2)}')
        A(f'v_add_f32 {v(T + 1)}, {v(T + 1)}, {v(T + 3)}')
        A(f'v_mov_b32 {v(T + 2)}, {v(T)}')
        A(f'v_mov_b32 {v(T + 3)}, {v(T + 1)}')
        A('s_nop 1')
        swap_add(A, T, T + 2)
        swap_add(A, T + 1, T + 3)
        A(f'ds_write_b64 v10, {v(T, 2)}')
        A(f'v_mov_b32 {v(T + 2)}, 0')
        A(f'v_mov_b32 v9, {ST4 + 8192}')
        A(f'ds_write_b32 v9, {v(T + 2)}')
        lk = C.lab('k5')
        A('s_cmp_lg_u32 s3, 0')
        A(f's_cbranch_scc1 {lk}')
        for k in range(4):
            A(f'ds_write_b128 v14, {v(KA + 4 * k, 4)} offset:{k * 1024}')
        A.label(lk)
        if raw and FR2:
            raw['wloads'](FR2, 16)
        A('s_waitcnt lgkmcnt(0)')
        A('s_barrier')
        for ww in range(8):
            A(f'ds_read_b64 {v(T + 2 * ww, 2)}, v11 offset:{ww * 256}')
        lv, le, lf = C.lab('v6'), C.lab('e6'), C.lab('f6')
        A('s_cmp_lg_u32 s35, 0')
        A(f's_cbranch_scc1 {le}')
        A('s_setprio 3')
        if FINE == 3:
            C.stamp()
        A('s_waitcnt lgkmcnt(4)')
        for ww in range(8):
            A(f'ds_read_b128 {v(KR + 4 * ww, 4)}, v13 offset:{ww * 4096}')
        A('s_waitcnt lgkmcnt(8)')
        for r in range(16):
            A(f'v_mov_b32 {v(KA + r)}, {v(T + r)}')
        ln_stats(A, KA)
        A('s_lshl_b32 s30, s18, 11')
        A(f's_add_u32 s30, s30, {kvf}')
        A('s_waitcnt lgkmcnt(0)')
        if raw:
            raw['kvcs0']()
        for stp in (16, 8, 4):
            for r in range(stp):
                A(f'v_add_f32 {v(KR + r)}, {v(KR + r)}, {v(KR + stp + r)}')
        if raw:
            raw['kvcs1']()
        for r in range(4):
            A(f'v_fma_f32 {v(KR + r)}, -{v(KA)}, {v(EX + 8 + r)}, {v(KR + r)}')
        for r in range(4):
            A(f'v_mul_f32 {v(KR + r)}, {v(KA + 1)}, {v(KR + r)}')
        for m in range(2):
            A(f'v_cvt_pk_bf16_f32 {v(KR + 8 + m)}, {v(KR + 2 * m)}, {v(KR + 2 * m + 1)}')
        A('s_cmp_ge_u32 s20, 2')
        A(f's_cbranch_scc1 {lv}')
        A('s_lshl_b32 s31, s20, 3')
        A('s_add_u32 s31, s31, s30')
        A(f'buffer_store_dwordx2 {v(KR + 8, 2)}, v3, s[8:11], s31 offen sc0 sc1')
        A(f's_branch {lf}')
        A.label(lv)
        A('s_lshl_b32 s31, s29, 10')
        A(f's_add_u32 s31, s31, {ST4 + 4096}')
        A('v_add_u32 v15, s31, v15')
        for r in range(4):
            op = 'ds_write_b16' if r % 2 == 0 else 'ds_write_b16_d16_hi'
            A(f'{op} v15, {v(KR + 8 + r // 2)} offset:{r * 16}')
        A('v_lshrrev_b32 v2, 3, v1')
        A('v_lshlrev_b32 v2, 8, v2')
        A(f'v_and_b32 {v(KR)}, 7, v1')
        A(f'v_lshl_add_u32 v2, {v(KR)}, 4, v2')
        A('v_add_u32 v15, s31, v2')
        A('s_mov_b32 exec_hi, 0')
        A(f'ds_read_b128 {v(KR + 12, 4)}, v15')
        A('s_lshl_b32 s31, s29, 7')
        A('s_add_u32 s31, s31, s30')
        A('s_waitcnt lgkmcnt(0)')
        A(f'buffer_store_dwordx4 {v(KR + 12, 4)}, v2, s[8:11], s31 offen offset:1024 sc0 sc1')
        A('s_mov_b64 exec, -1')
        A.label(lf)
        lg = C.lab('g6')
        if FINE == 3:
            C.stamp()
        A('s_lshl_b32 s30, s18, 7')
        A(f's_add_u32 s30, s30, {kfl}')
        if raw:
            raw['zchk']()
        A('s_mov_b64 exec, 1')
        A('s_waitcnt vmcnt(0)')
        A('ds_add_rtn_u32 v2, v9, v4')
        A('s_waitcnt lgkmcnt(0)')
        A('v_cmp_eq_u32 vcc, 3, v2')
        A('s_cbranch_vccz ' + lg)
        if KVLOC:
            A('s_lshl_b32 s31, s21, 8')
            A('s_and_b32 s32, s22, 3')
            A('s_lshl_b32 s32, s32, 2')
            A('s_add_u32 s31, s31, s32')
            A(f's_add_u32 s31, s31, {FLG + (9 if raw else 10) * 4096}')
            A('buffer_store_dword v4, v0, s[8:11], s31 offen')
        A('buffer_store_dword v4, v0, s[8:11], s30 offen sc0 sc1')
        A.label(lg)
        A('s_mov_b64 exec, -1')
        A('s_setprio 0')
        if FINE == 3:
            C.stamp()
        A.label(le)
        flag_b(C)
        A('s_waitcnt lgkmcnt(0)')
        if raw:
            raw['wprep']()
        else:
            l3 = C.lab('w3')
            A('s_cmp_lg_u32 s3, 0')
            A(f's_cbranch_scc1 {l3}')
            C.flagb = True
            flag_b(C)
            wq_loads()
            A.label(l3)
        if raw:
            raw['loop'](rd, mf)
        else:
            for i in range(8):
                rd(i)
            ln_stats(A, T)
            for i in range(16):
                A(f's_waitcnt lgkmcnt({7 if i < 8 else 15 - i}) vmcnt({15 - i})')
                mf(i)
                if i < 8:
                    rd(i + 8)
    else:
        def wl(i):
            so, im = soff(G4_ORD[i])
            C.vmem(f'buffer_load_dwordx4 {v(g4_wreg(mode, i), 4)}, v116, s[8:11], {so} offen offset:{im}', f'w{i}')
        if WO_LATE:
            for i in range(8, 8 + WO_L0):
                wl(i)
        C.wait('x1')
        A('s_barrier')
        C.stamp()
        for i in range(8):
            rd(i)
        if WO_LATE:
            for i in range(8 + WO_L0, 16):
                wl(i)
        for i in range(4):
            A(f's_waitcnt lgkmcnt({7 - i})')
            mf(i)
        C.wait('x3')
        A('s_barrier')
        for i in range(8, 12):
            rd(i)
        for i in range(4, 8):
            A('s_waitcnt lgkmcnt(7)')
            mf(i)
            rd(i + 8)
        flag_b(C)
        for i in range(8, 16):
            C.wait(f'w{i}', f'lgkmcnt({15 - i})')
            mf(i)
            if hook_red and i >= 8:
                hook_red(i - 8)
    C.stamp()
    if mode == 'qkv':
        kv_setup(C, kvf, kfl, 9 if raw else 10)
        A(f'v_mul_f32 {v(T + 2)}, {f32(QSCALE)}, {v(T + 1)}')
        if raw:
            raw['cs0']()
    else:
        C.wait('ex')
        TT = XR
        for m in range(4):
            A(f'v_lshlrev_b32 {v(TT + 2 * m)}, 16, {v(EX + m)}')
            A(f'v_and_b32 {v(TT + 2 * m + 1)}, 0xffff0000, {v(EX + m)}')
        A('s_nop 3')
    for h2 in range(2):
        A(f'ds_write_b128 v7, {v(ACC + 8 + 4 * h2, 4)} offset:{h2 * 1024}')
    if mode == 'qkv':
        if not raw:
            for r in range(8):
                A(f'v_fma_f32 {v(ACC + r)}, -{v(T)}, {v(EX + r)}, {v(ACC + r)}')
    else:
        for r in range(8):
            A(f'v_add_f32 {v(ACC + r)}, {v(ACC + r)}, {v(XR + r)}')
    A('s_waitcnt lgkmcnt(0)')
    A('s_barrier')
    for h2 in range(2):
        A(f'ds_read_b128 {v(ACC + 8 + 4 * h2, 4)}, v8 offset:{h2 * 1024}')
    if mode == 'qkv':
        if FINE == 3:
            C.stamp()
        kv_wait(C, 1, endlab)
        if FINE == 3:
            C.stamp()
        att_kvdma(C, 0)
        kv_flagload(C)
    if raw:
        raw['cs']()
        for r in range(8):
            A(f'v_fma_f32 {v(ACC + r)}, -{v(T)}, {v(EX + r)}, {v(ACC + r)}')
    A('s_waitcnt lgkmcnt(0)')
    for r in range(8):
        A(f'v_add_f32 {v(ACC + r)}, {v(ACC + r)}, {v(ACC + 8 + r)}')
    if mode == 'qkv':
        for r in range(8):
            A(f'v_mul_f32 {v(ACC + r)}, {v(T + 2)}, {v(ACC + r)}')
        for m in range(4):
            A(f'v_cvt_pk_bf16_f32 {v(124 + m)}, {v(ACC + 2 * m)}, {v(ACC + 2 * m + 1)}')
        A('s_barrier')
    else:
        P = ACC + 8
        for m in range(4):
            A(f'v_cvt_pk_bf16_f32 {v(P + m)}, {v(ACC + 2 * m)}, {v(ACC + 2 * m + 1)}')
        A(f's_add_u32 s31, s19, {outbase}')
        C.vmem(f'buffer_store_dwordx4 {v(P, 4)}, v3, s[8:11], s31 offen{WT}', 'st')
        blk_stats(C, P, XR)
        A('s_lshr_b32 s31, s19, 2')
        A(f's_add_u32 s31, s31, {sxout}')
        A('v_lshlrev_b32 v4, 3, v1')
        A('s_mov_b32 exec_hi, 0')
        C.vmem(f'buffer_store_dwordx2 {v(XR, 2)}, v4, s[8:11], s31 offen{WT}', 'st')
        A('s_mov_b64 exec, -1')


def qkv4_wstep(C, st, n):
    pass


def qkv4_wrest(C):
    A = C.A
    l = C.lab('kw')
    A('s_lshl_b32 s30, s20, 12')
    A(f's_add_u32 s30, s30, {WQKVP + 16 * 32 * KB}')
    A('s_cmp_lg_u32 s3, 0')
    A(f's_cbranch_scc1 {l}')
    for k in range(4):
        A(f'buffer_load_dwordx4 {v(192 + 4 * k, 4)}, v3, s[8:11], s30 offen offset:{k * 1024}')
    A.label(l)


def att_kvdma(C, r):
    A = C.A
    A(f's_add_u32 s30, s39, {r * 16384}')
    A('s_and_b32 s30, s30, 0x1ffff')
    A(f's_add_u32 m0, s37, {r * 8 * KVT}')
    A('s_add_u32 s30, s30, s38')
    A('buffer_load_dwordx4 v3, s[8:11], s30 offen lds')
    A('buffer_load_dwordx4 v3, s[8:11], s30 offen offset:1024 lds')


def kv_flagload(C):
    A = C.A
    A('s_mov_b64 exec, 0x1ff' if KVLOC else 's_mov_b64 exec, 0xff')
    A('buffer_load_dword v2, v0, s[8:11], s33 offen sc1')
    A('s_mov_b64 exec, -1')


def kv_setup(C, kvf, kfl, lsync):
    A = C.A
    A(f's_mul_i32 s37, s20, {KVT}')
    A('s_lshl_b32 s38, s20, 11')
    A(f's_add_u32 s38, s38, {kvf}')
    A('s_lshr_b32 s30, s21, 1')
    A('s_lshl_b32 s39, s30, 14')
    A('v_add_u32 v0, s30, v1')
    A('v_and_b32 v0, 7, v0')
    A('v_lshlrev_b32 v0, 10, v0')
    A('s_lshl_b32 s33, s20, 7')
    A(f's_add_u32 s33, s33, {kfl}')
    if KVLOC:
        A('s_lshl_b32 s30, s30, 9')
        A('s_lshl_b32 s31, s26, 8')
        A('s_add_u32 s30, s30, s31')
        A('s_lshl_b32 s31, s25, 2')
        A('s_add_u32 s30, s30, s31')
        A(f's_add_u32 s30, s30, {FLG + lsync * 4096}')
        A('v_add_u32 v0, s33, v0')
        A('s_mov_b32 s33, 0')
        A('v_writelane_b32 v0, s30, 8')
    kv_flagload(C)


def kv_wait(C, mask, endlab):
    A = C.A
    lp, lpd = C.lab('kp'), C.lab('kpd')
    anyof = KVLOC and mask == 1
    A('s_mov_b32 s31, 0')
    A('s_mov_b64 exec, 0x101' if anyof else 's_mov_b64 exec, 0xff')
    A.label(lp)
    A('s_add_u32 s31, s31, 1')
    A('s_waitcnt vmcnt(0)')
    A('v_cmp_ne_u32 vcc, 0, v2')
    if anyof:
        A('s_cmp_lg_u32 vcc_lo, 0')
    else:
        A(f's_and_b32 s30, vcc_lo, {mask}')
        A(f's_cmp_eq_u32 s30, {mask}')
    A(f's_cbranch_scc1 {lpd}')
    A(f's_sleep {KV_SLEEP}')
    A('buffer_load_dword v2, v0, s[8:11], s33 offen sc1')
    A(f's_cmp_lt_u32 s31, {1 << 21}')
    A(f's_cbranch_scc1 {lp}')
    A(f's_branch {endlab}')
    A.label(lpd)
    A('s_mov_b64 exec, -1')


def att_phase(C, kvf, kfl, endlab, stubs, fixed={}, pf0=None, pre_hook=None, loadq=True, early=False):
    A = C.A
    tg = C.tag
    Q, CN, S0, S1, O, P, KF, VF, VK, VV, T = 124, 8, 24, 40, 56, 72, 80, 88, 104, 105, 106
    VV1 = 111
    S = [S0, S1]
    A(f's_add_u32 s36, s19, {C.B["OF"]}')
    if loadq:
        A(f's_add_u32 s31, s19, {C.B["QF"]}')
        C.vmem(f'buffer_load_dwordx4 {v(Q, 4)}, v3, s[8:11], s31 offen', 'q')
        flag_b(C)
    def kvdma(r):
        att_kvdma(C, r)
    if pre_hook:
        pre_hook()
    A(f'v_mov_b32 {v(VK)}, v3')
    A(f'v_and_b32 {v(T)}, 15, v1')
    A(f'v_lshrrev_b32 {v(T + 1)}, 5, v1')
    A(f'v_lshl_add_u32 {v(T)}, {v(T + 1)}, 4, {v(T)}')
    A(f'v_lshlrev_b32 {v(T)}, 4, {v(T)}')
    A(f'v_add_u32 {v(VV)}, 1024, {v(T)}')
    A(f'v_add_u32 {v(VV1)}, 1536, {v(T)}')
    A(f'v_and_b32 {v(T + 1)}, 31, v1')
    A(f'v_cmp_eq_u32 vcc, 16, {v(T + 1)}')
    A(f'v_mov_b32 {v(T + 2)}, 2048')
    A('s_nop 0')
    A(f'v_cndmask_b32 {v(VV)}, {v(VV)}, {v(T + 2)}, vcc')
    A(f'v_cndmask_b32 {v(VV1)}, {v(VV1)}, {v(T + 2)}, vcc')
    A(f'v_cmp_lt_u32 vcc, 16, {v(T + 1)}')
    A(f'v_mov_b32 {v(T + 2)}, 2064')
    A('s_nop 0')
    A(f'v_cndmask_b32 {v(VV)}, {v(VV)}, {v(T + 2)}, vcc')
    A(f'v_cndmask_b32 {v(VV1)}, {v(VV1)}, {v(T + 2)}, vcc')
    A(f'v_subrev_u32 {v(T + 1)}, 20, {v(T + 1)}')
    A(f'v_cmp_gt_u32 vcc, 8, {v(T + 1)}')
    A(f'v_mov_b32 {v(T + 2)}, 2112')
    A('s_nop 0')
    A(f'v_cndmask_b32 {v(VV)}, {v(VV)}, {v(T + 2)}, vcc')
    A(f'v_cndmask_b32 {v(VV1)}, {v(VV1)}, {v(T + 2)}, vcc')
    for r in range(16):
        A(f'v_mov_b32 {v(O + r)}, 0')
    for m in range(4, 8):
        A(f'v_mov_b32 {v(P + m)}, 0')
    for m in range(4):
        A(f'v_mov_b32 {v(VF + 12 + m)}, 0')
        A(f'v_mov_b32 {v(P + m)}, 0x3f803f80')
    A(f'v_mul_u32_u24 {v(T)}, {KVT}, v1')
    lcw = C.lab('cw')
    A('s_cmp_lg_u32 s20, 7')
    A(f's_cbranch_scc1 {lcw}')
    A(f'ds_write_b128 {v(T)}, {v(P, 4)} offset:2048')
    A(f'ds_write_b128 {v(T)}, {v(P + 4, 4)} offset:2064')
    A(f'ds_write_b128 {v(T)}, {v(P + 4, 4)} offset:2112')
    A.label(lcw)
    lnd = C.lab('nd')
    A('s_waitcnt vmcnt(0) lgkmcnt(0)')
    A('v_cmp_ne_u32 vcc, 0, v2')
    A('s_barrier')
    A('s_and_b32 s32, vcc_lo, 0xff')
    A('s_cmp_lg_u32 s32, 0xff')
    A(f's_cbranch_scc1 {lnd}')
    for r in range(1, 4):
        kvdma(r)
    A.label(lnd)
    C.vm = []
    C.stamp()

    def rdK(buf, t):
        A(f'ds_read_b128 {v(KF + buf * 4, 4)}, {v(VK)} offset:{t * KVT}')

    def rdV(buf, t):
        A(f'ds_read_b128 {v(VF + buf * 8, 4)}, {v(VV)} offset:{t * KVT}')
        A(f'ds_read_b128 {v(VF + buf * 8 + 4, 4)}, {v(VV1)} offset:{t * KVT}')

    rdK(0, 0)
    rdK(1, 1)
    rdV(0, 0)
    A('s_waitcnt lgkmcnt(3)')
    A(f'v_mfma_f32_32x32x16_bf16 {v(S0, 16)}, {v(KF, 4)}, {v(Q, 4)}, 0')
    A('s_nop 11')
    A(f'v_max3_f32 {v(T)}, {v(S0)}, {v(S0 + 1)}, {v(S0 + 2)}')
    for r in range(3, 15, 2):
        A(f'v_max3_f32 {v(T)}, {v(T)}, {v(S0 + r)}, {v(S0 + r + 1)}')
    A(f'v_max_f32 {v(T)}, {v(T)}, {v(S0 + 15)}')
    A(f'v_mov_b32 {v(T + 1)}, {v(T)}')
    A('s_nop 1')
    A(f'v_permlane32_swap_b32 {v(T)}, {v(T + 1)}')
    A(f'v_max_f32 {v(T)}, {v(T)}, {v(T + 1)}')
    for r in range(16):
        A(f'v_sub_f32 {v(CN + r)}, 0, {v(T)}')
    for r in range(16):
        A(f'v_sub_f32 {v(S0 + r)}, {v(S0 + r)}, {v(T)}')
    A('s_setprio 3')
    C.stamp()
    def tile(t, off, extra=None):
        cur, nxt = t & 1, (t + 1) & 1
        Sc, Sn = S[cur], S[nxt]
        if not ONEWAIT:
            A('s_waitcnt lgkmcnt(2)')
        A(f'v_mfma_f32_32x32x16_bf16 {v(Sn, 16)}, {v(KF + nxt * 4, 4)}, {v(Q, 4)}, {v(CN, 16)}')
        rdK(cur, off + 2)
        for r in range(6):
            A(f'v_exp_f32 {v(Sc + r)}, {v(Sc + r)}')
        A(f'v_mfma_f32_32x32x16_bf16 {v(O, 16)}, {v(VF + nxt * 8 + 4, 4)}, {v(P + 4, 4)}, {v(O, 16)}')
        if extra:
            extra()
        for r in range(6, 8):
            A(f'v_exp_f32 {v(Sc + r)}, {v(Sc + r)}')
        for m in range(4):
            A(f'v_cvt_pk_bf16_f32 {v(P + m)}, {v(Sc + 2 * m)}, {v(Sc + 2 * m + 1)}')
        A(f'v_exp_f32 {v(Sc + 8)}, {v(Sc + 8)}')
        A(f'v_exp_f32 {v(Sc + 9)}, {v(Sc + 9)}')
        A('s_waitcnt lgkmcnt(0)' if ONEWAIT else 's_waitcnt lgkmcnt(1)')
        A(f'v_mfma_f32_32x32x16_bf16 {v(O, 16)}, {v(VF + cur * 8, 4)}, {v(P, 4)}, {v(O, 16)}')
        rdV(nxt, off + 1)
        for r in range(10, 16):
            A(f'v_exp_f32 {v(Sc + r)}, {v(Sc + r)}')
        for m in range(4, 8):
            A(f'v_cvt_pk_bf16_f32 {v(P + m)}, {v(Sc + 2 * m)}, {v(Sc + 2 * m + 1)}')

    def bump(n):
        for rg in (VK, VV, VV1):
            A(f'v_add_u32 {v(rg)}, {n * KVT}, {v(rg)}')
    if ONEWAIT:
        A('s_waitcnt lgkmcnt(0)')
    queue = list(stubs)
    nq = len(queue)
    tpf0 = pf0 if pf0 else TB2
    ntl = 64 - TPFEND - tpf0
    prio = {TP2: 2, TP1: 1, TP0: 0}
    dq = list(range(4, 8))
    for t in range(64):
        if t == TCHK:
            ld = C.lab('dn')
            A('s_cmp_eq_u32 s32, 0xff')
            A(f's_cbranch_scc1 {ld}')
            kv_flagload(C)
            kv_wait(C, 0xff, endlab)
            for r in range(1, 4):
                kvdma(r)
            A.label(ld)
        if t == 6 and TB2 != 6:
            assert not dq
            A('s_waitcnt vmcnt(12)')
            A('s_barrier')
        if t == TB2:
            assert not dq
            A('s_waitcnt vmcnt(0)')
            A('s_barrier')
        if t in prio:
            A(f's_setprio {prio[t]}')
        if t in fixed:
            fixed[t]()
        fs = []
        if t >= TCHK:
            for _ in range(DPT):
                if dq:
                    fs.append(lambda r=dq.pop(0): kvdma(r))
        if t >= tpf0 and queue:
            k = t - tpf0
            n = (nq * (k + 1)) // ntl - (nq * k) // ntl
            fs += [queue.pop(0) for _ in range(min(n, len(queue)))]
        tile(t, t % 24 if t < 48 else t - 48, lambda fs=fs: [f() for f in fs])
        if t in (23, 47):
            bump(24)
        if t == 63:
            bump(16)
    assert not queue
    A(f'v_mfma_f32_32x32x16_bf16 {v(O, 16)}, {v(VF + 8 + 4, 4)}, {v(P + 4, 4)}, {v(O, 16)}')
    A('s_mov_b32 s39, 0')
    C.stamp()
    A('s_waitcnt lgkmcnt(0)')
    A('s_nop 10')
    A.label(f'{tg}_fin')
    A(f'v_mov_b32 {v(T)}, {v(O + 8)}')
    A(f'v_mov_b32 {v(T + 1)}, {v(O + 8)}')
    A(f'v_mul_f32 {v(T + 2)}, 0, {v(O)}')
    A(f'v_fma_f32 {v(T + 2)}, {v(O + 1)}, 0, {v(T + 2)}')
    A(f'v_permlane32_swap_b32 {v(T)}, {v(T + 1)}')
    for r in range(2, 8):
        A(f'v_fma_f32 {v(T + 2)}, {v(O + r)}, 0, {v(T + 2)}')
    A(f'v_add_f32 {v(T + 2)}, {v(T + 2)}, {v(T)}')
    A(f'v_mov_b32 {v(T + 3)}, {f32(2.0 ** 30)}')
    A(f'v_cmp_nle_f32 vcc, {v(T + 2)}, {v(T + 3)}')
    A(f'v_rcp_f32 {v(T)}, {v(T)}')
    A('s_cmp_eq_u32 s39, 99')
    A(f's_cbranch_scc1 {tg}_store')
    A(f's_cbranch_vccnz {tg}_slow')
    A.label(f'{tg}_store')
    for r in range(8):
        A(f'v_mul_f32 {v(O + r)}, {v(T)}, {v(O + r)}')
    for m in range(4):
        A(f'v_cvt_pk_bf16_f32 {v(P + m)}, {v(O + 2 * m)}, {v(O + 2 * m + 1)}')
    C.vmem(f'buffer_store_dwordx4 {v(P, 4)}, v3, s[8:11], s36 offen{WT}', 'st')

    def tail(with_body):
        A.label(f'{tg}_slow')
        A(f'v_subrev_u32 {v(VK)}, {64 * KVT}, {v(VK)}')
        A(f'v_subrev_u32 {v(VV)}, {64 * KVT}, {v(VV)}')
        A(f'v_subrev_u32 {v(VV1)}, {64 * KVT}, {v(VV1)}')
        for r in range(16):
            A(f'v_mov_b32 {v(O + r)}, 0')
        M = T + 4
        A(f'v_sub_f32 {v(M)}, 0, {v(CN)}')
        A.label(f'{tg}_sloop')
        rdK(0, 0)
        rdV(0, 0)
        A('s_waitcnt lgkmcnt(0)')
        A(f'v_mfma_f32_32x32x16_bf16 {v(S0, 16)}, {v(KF, 4)}, {v(Q, 4)}, 0')
        A('s_nop 11')
        A(f'v_max3_f32 {v(T)}, {v(S0)}, {v(S0 + 1)}, {v(S0 + 2)}')
        for r in range(3, 15, 2):
            A(f'v_max3_f32 {v(T)}, {v(T)}, {v(S0 + r)}, {v(S0 + r + 1)}')
        A(f'v_max3_f32 {v(T)}, {v(T)}, {v(S0 + 15)}, {v(M)}')
        A(f'v_mov_b32 {v(T + 1)}, {v(T)}')
        A('s_nop 1')
        A(f'v_permlane32_swap_b32 {v(T)}, {v(T + 1)}')
        A(f'v_max_f32 {v(T)}, {v(T)}, {v(T + 1)}')
        A(f'v_sub_f32 {v(T + 1)}, {v(M)}, {v(T)}')
        A(f'v_exp_f32 {v(T + 1)}, {v(T + 1)}')
        A(f'v_mov_b32 {v(M)}, {v(T)}')
        for r in range(16):
            A(f'v_sub_f32 {v(S0 + r)}, {v(S0 + r)}, {v(T)}')
        for r in range(16):
            A(f'v_exp_f32 {v(S0 + r)}, {v(S0 + r)}')
        for r in range(16):
            A(f'v_mul_f32 {v(O + r)}, {v(T + 1)}, {v(O + r)}')
        for m in range(8):
            A(f'v_cvt_pk_bf16_f32 {v(P + m)}, {v(S0 + 2 * m)}, {v(S0 + 2 * m + 1)}')
        A('s_nop 1')
        A(f'v_mfma_f32_32x32x16_bf16 {v(O, 16)}, {v(VF, 4)}, {v(P, 4)}, {v(O, 16)}')
        A(f'v_mfma_f32_32x32x16_bf16 {v(O, 16)}, {v(VF + 4, 4)}, {v(P + 4, 4)}, {v(O, 16)}')
        A(f'v_add_u32 {v(VK)}, {KVT}, {v(VK)}')
        A(f'v_add_u32 {v(VV)}, {KVT}, {v(VV)}')
        A(f'v_add_u32 {v(VV1)}, {KVT}, {v(VV1)}')
        A('s_nop 11')
        A('s_add_u32 s39, s39, 1')
        A('s_cmp_lt_u32 s39, 64')
        A(f's_cbranch_scc1 {tg}_sloop')
        A('s_mov_b32 s39, 99')
        A(f's_branch {tg}_fin')
    return tail


V_WGU = 112


def gu_waddr(C):
    A = C.A
    A('s_mul_i32 s30, s22, 7')
    A('s_min_u32 s31, s20, 6')
    A('s_add_u32 s40, s30, s31')
    A('s_lshl_b32 s30, s40, 15')
    A(f's_add_u32 s30, s30, {WGUP}')
    if W7OFF:
        A('s_cmp_eq_u32 s20, 7')
        A('s_cselect_b32 s30, 0x70000000, s30')
    A(f'v_add_u32 {v(V_WGU)}, s30, v3')


def gu_wload(C, ks):
    so, im = soff(ks)
    C.vmem(f'buffer_load_dwordx4 {v(128 + 4 * ks, 4)}, {v(V_WGU)}, s[8:11], {so} offen offset:{im}', 'wg')


def gu_pre(C):
    A = C.A
    CS = 112
    A('v_mov_b32 v15, v113')
    A('v_mov_b32 v9, v114')
    A(f'v_mov_b32 v14, {v(V_WGU)}')
    A('s_lshl_b32 s30, s21, 2')
    A('s_add_u32 s30, s30, s25')
    A('s_lshl_b32 s30, s30, 15')
    A('s_lshl_b32 s31, s26, 11')
    A('s_add_u32 s30, s30, s31')
    A(f's_add_u32 s30, s30, {C.B["XB"]}')
    A('v_add_u32 v13, s30, v3')
    A('s_lshl_b32 s48, s25, 15')
    A('s_add_u32 s48, s48, s31')
    A('v_add_u32 v7, 0x10000, v3')
    A('v_lshrrev_b32 v11, 5, v1')
    A('v_lshlrev_b32 v11, 4, v11')
    A('s_min_u32 s30, s20, 6')
    A('s_lshl_b32 s30, s30, 7')
    A(f's_add_u32 s30, s30, {132 * KB}')
    A('v_add_u32 v10, s30, v11')
    A('v_and_b32 v12, 31, v1')
    A('v_lshlrev_b32 v12, 3, v12')
    A('v_lshl_add_u32 v12, v11, 8, v12')
    A('s_lshl_b32 s30, s21, 15')
    A(f's_add_u32 s30, s30, {C.B["SXB"]}')
    A('v_add_u32 v12, s30, v12')
    A(f'v_add_u32 v8, {128 * KB}, v3')


def gu_main(C, after_store=None):
    A = C.A
    ACC, XF, CS = 16, 80, 112
    STR = [4, 10, 240, 244]

    def dma(c):
        A(f's_add_u32 m0, s48, {c * 4096}')
        so = '0' if c == 0 else s(40 + c)
        A('s_nop 0')
        for k in range(2):
            C.vmem(f'buffer_load_dwordx4 v13, s[8:11], {so} offen offset:{k * 1024} lds', f'x{c}')
    dma(0)
    dma(1)

    def rd(ks):
        buf = ks & 1
        for i in range(4):
            base = 'v3' if i < 2 else 'v7'
            A(f'ds_read_b128 {v(XF + buf * 16 + i * 4, 4)}, {base} offset:{(i & 1) * 32768 + ks * 1024}')

    def stats_load(i):
        for e in range(16):
            C.vmem(f'buffer_load_dwordx2 {v(ACC + (i & 1) * 32 + 2 * e, 2)}, v12, s[8:11], {"0" if i == 0 else s(40 + 2 * i)} offen offset:{e * 256}', f's{i}')

    def stats_sum(i):
        b = ACC + (i & 1) * 32
        C.wait(f's{i}')
        for stp in (16, 8, 4, 2):
            for e in range(stp):
                A(f'v_add_f32 {v(b + e)}, {v(b + e)}, {v(b + e + stp)}')
        A(f'v_mov_b32 {v(b + 2)}, {v(b)}')
        A(f'v_mov_b32 {v(b + 3)}, {v(b + 1)}')
        A('s_nop 1')
        A(f'v_permlane32_swap_b32 {v(b)}, {v(b + 2)}')
        A(f'v_permlane32_swap_b32 {v(b + 1)}, {v(b + 3)}')
        A(f'v_add_f32 {v(b)}, {v(b)}, {v(b + 2)}')
        A(f'v_add_f32 {v(b + 1)}, {v(b + 1)}, {v(b + 3)}')
        A(f'v_mul_f32 {v(b)}, {f32(-1.0 / 512)}, {v(b)}')
        A(f'v_mul_f32 {v(b + 1)}, {f32(1.0 / 512)}, {v(b + 1)}')
        A(f'v_fma_f32 {v(b + 1)}, -{v(b)}, {v(b)}, {v(b + 1)}')
        A(f'v_max_f32 {v(b + 1)}, 0, {v(b + 1)}')
        A(f'v_add_f32 {v(b + 1)}, {f32(1e-5)}, {v(b + 1)}')
        A(f'v_rcp_f32 {v(b + 2)}, {v(b + 1)}')
        A(f'v_mov_b32 {v(b + 1)}, {v(b)}')
        A(f'v_mov_b32 {v(b + 3)}, {v(b + 2)}')
        A(f'ds_write_b128 v8, {v(b, 4)} offset:{i * 1024}')
        A('s_waitcnt lgkmcnt(0)')

    def loop(idle):
        C.wait('x0')
        A('s_barrier')
        C.stamp()
        if not idle:
            rd(0)
        for ks in range(32):
            if ks + 1 < 32:
                if (ks + 1) in GU_BARS:
                    C.wait(f'x{GU_BARS[ks + 1]}')
                    A('s_barrier')
                if not idle:
                    rd(ks + 1)
                    if ks == 28:
                        for g in range(4):
                            A(f'ds_read_b128 {v(CS + g * 4, 4)}, v10 offset:{g * 32}')
                        A('s_waitcnt lgkmcnt(8)')
                    elif ks == 30:
                        for i in range(4):
                            A(f'ds_read_b128 {v(STR[i], 4)}, v8 offset:{i * 1024}')
                        A('s_waitcnt lgkmcnt(8)')
                    else:
                        A('s_waitcnt lgkmcnt(4)')
            elif not idle:
                A('s_waitcnt lgkmcnt(0)')
            buf = ks & 1
            todo = []
            if ks == 10:
                C.flagb = True
                flag_b(C)
            if ks < 6:
                todo.append(lambda: dma(ks + 2))
            if ks == 16 + WO_TAIL and not idle:
                C.wait('wg')
            if 6 <= ks < 6 + 16 - WO_TAIL and not idle:
                k2 = 16 + WO_TAIL + ks - 6
                so, im = soff(k2)
                todo.append(lambda k2=k2, so=so, im=im: C.vmem(f'buffer_load_dwordx4 {v(128 + 4 * k2, 4)}, v14, s[8:11], {so} offen offset:{im}', 'wg'))
            if ks >= GU_WD0:
                nleft = 28 - len(wdone)
                for st in [st for st in range(28) if st < ks and st not in wdone][:(2 if nleft > 31 - ks else 1)]:
                    todo.append(lambda st=st: g3_wload(C, (15, 9), st, 128))
                    wdone.add(st)
            for i in range(4):
                if not idle and not (GU_TAIL and (ks == 31 or (ks == 30 and i >= 2))):
                    c = '0' if ks == 0 else v(ACC + i * 16, 16)
                    if GU16:
                        for t2 in range(2):
                            aa = ACC + i * 16 + ((ks & 1) * 2 + t2) * 4
                            A(f'v_mfma_f32_16x16x32_bf16 {v(aa, 4)}, {v(128 + 4 * (ks ^ t2 if ks > 1 else ks), 4)}, {v(XF + buf * 16 + i * 4, 4)}, {"0" if ks < 2 else v(aa, 4)}')
                    else:
                        A(f'v_mfma_f32_32x32x16_bf16 {v(ACC + i * 16, 16)}, {v(128 + 4 * ks, 4)}, {v(XF + buf * 16 + i * 4, 4)}, {c}')
                if i < 3 and todo:
                    f_ = todo.pop(0)
                    if not (GU_NOW and ks >= 6):
                        f_()
            if idle:
                if ks == 6:
                    stats_load(0)
                    stats_load(1)
                if ks == 8:
                    stats_sum(0)
                    stats_load(2)
                    stats_sum(1)
                    stats_load(3)
                if ks == 12:
                    stats_sum(2)
                    stats_sum(3)
                    A(f's_mul_i32 s30, s22, {7 * 128}')
                    A(f's_add_u32 s30, s30, {CSP}')
                    for kp in range(8):
                        C.vmem(f'buffer_load_dwordx4 {v(ACC + 4 * kp, 4)}, v3, s[8:11], s30 offen', 'cp')
                        if kp < 7:
                            A(f's_add_u32 s30, s30, {3584 * 4}')
                if ks == 16:
                    C.wait('cp')
                    for stp in (16, 8, 4):
                        for e in range(stp):
                            A(f'v_add_f32 {v(ACC + e)}, {v(ACC + e)}, {v(ACC + e + stp)}')
                    A(f'v_add_u32 v10, {132 * KB}, v3')
                    A(f'ds_write_b128 v10, {v(ACC, 4)}')
                    A('s_waitcnt lgkmcnt(0)')
        assert len(wdone) == 28
        C.stamp()
        if idle:
            if after_store:
                after_store()
            return
        P = XF

        def epi(i):
            acc = ACC + i * 16
            for r in range(0, 16, 2):
                A(f'v_pk_fma_f32 {v(acc + r, 2)}, {v(STR[i], 2)}, {v(CS + r, 2)}, {v(acc + r, 2)}')
            for r in range(0, 8, 2):
                A(f'v_pk_mul_f32 {v(acc + r, 2)}, {v(acc + r, 2)}, {v(acc + 8 + r, 2)}')
            for r in range(0, 8, 2):
                A(f'v_pk_mul_f32 {v(acc + r, 2)}, {v(acc + r, 2)}, {v(STR[i] + 2, 2)}')
            pp = acc + 8
            for m in range(4):
                A(f'v_cvt_pk_bf16_f32 {v(pp + m)}, {v(acc + 2 * m)}, {v(acc + 2 * m + 1)}')
            C.vmem(f'buffer_store_dwordx4 {v(pp, 4)}, v3, s[8:11], s30 offen{WT}', 'st')
            if i < 3:
                A(f's_add_u32 s30, s30, {112 * KB}')

        def mm(i, ks):
            A(f'v_mfma_f32_32x32x16_bf16 {v(ACC + i * 16, 16)}, {v(128 + 4 * ks, 4)}, {v(XF + (ks & 1) * 16 + i * 4, 4)}, {v(ACC + i * 16, 16)}')
        A(f's_mul_i32 s30, s21, {4 * 112}')
        A('s_add_u32 s30, s30, s40')
        A('s_lshl_b32 s30, s30, 10')
        A(f's_add_u32 s30, s30, {C.B["HF"]}')
        if GU_TAIL:
            A('s_waitcnt lgkmcnt(0)')
            mm(0, 31)
            mm(2, 30)
            mm(1, 31)
            mm(3, 30)
            A('s_nop 8')
            epi(0)
            mm(2, 31)
            mm(3, 31)
            epi(1)
            epi(2)
            epi(3)
        else:
            A('s_nop 4')
            for i in range(4):
                epi(i)
        if after_store:
            after_store()

    ls, le = C.lab('gs'), C.lab('ge')
    A('s_cmp_eq_u32 s20, 7')
    A(f's_cbranch_scc1 {ls}')
    save, ns = list(C.vm), C.nstamp
    wdone = set()
    loop(False)
    A(f's_branch {le}')
    A.label(ls)
    C.vm, C.nstamp = list(save), ns
    wdone = set()
    loop(True)
    A.label(le)
    C.vm = ['st']


def flag_addr(C, sreg, sync):
    C.A(f's_lshl_b32 {s(sreg)}, s21, 8')
    C.A(f's_add_u32 {s(sreg)}, {s(sreg)}, {FLG + sync * 4096}')


GCNT = 134 * KB


def arrive(C, k, sync):
    A = C.A
    l = C.lab('p7')
    A('s_mov_b64 exec, 1')
    A(f'v_mov_b32 v14, {GCNT + 4 * k}')
    A('ds_add_rtn_u32 v14, v14, v4')
    A('s_waitcnt lgkmcnt(0)')
    C.lds = []
    A('v_cmp_eq_u32 vcc, 6, v14')
    A(f's_cbranch_vccz {l}')
    flag_addr(C, 30, sync)
    A('s_lshl_b32 s31, s22, 2')
    A('s_add_u32 s30, s30, s31')
    A('buffer_store_dword v4, v0, s[8:11], s30 offen')
    A('buffer_store_dword v4, v0, s[8:11], s30 offen offset:128 sc0 sc1')
    A.label(l)
    A('s_mov_b64 exec, -1')


def publish7(C, sync):
    A = C.A
    l = C.lab('p7')
    A('s_cmp_lg_u32 s20, 7')
    A(f's_cbranch_scc1 {l}')
    flag_addr(C, 30, sync)
    A('s_lshl_b32 s31, s22, 2')
    A('s_add_u32 s30, s30, s31')
    A('s_mov_b64 exec, 1')
    A('buffer_store_dword v4, v0, s[8:11], s30 offen')
    A('buffer_store_dword v4, v0, s[8:11], s30 offen offset:128 sc0 sc1')
    A('s_mov_b64 exec, -1')
    A.label(l)


def poll_issue(C, sync, tag):
    A = C.A
    flag_addr(C, 35, sync)
    A('s_mov_b64 exec, s[32:33]')
    C.vmem('buffer_load_dword v2, v0, s[8:11], s35 offen sc1', tag)
    A('s_mov_b64 exec, -1')


def poll_check(C, tag, endlab):
    A = C.A
    l1, l2, ld = C.lab('qa'), C.lab('qb'), C.lab('qd')
    C.wait(tag)
    A('s_mov_b64 exec, s[32:33]')
    A('s_mov_b32 s31, 0')
    A.label(l1)
    A('v_cmp_ne_u32 vcc, 0, v2')
    A('s_cmp_eq_u64 vcc, s[32:33]')
    A(f's_cbranch_scc1 {ld}')
    A('buffer_load_dword v2, v0, s[8:11], s35 offen sc1')
    A('s_add_u32 s31, s31, 1')
    A('s_waitcnt vmcnt(0)')
    A('s_cmp_lt_u32 s31, 64')
    A(f's_cbranch_scc1 {l1}')
    A.label(l2)
    A('buffer_load_dword v2, v0, s[8:11], s35 offen sc1')
    A('s_waitcnt vmcnt(0)')
    A('v_cmp_ne_u32 s[36:37], 0, v2')
    A('buffer_load_dword v2, v0, s[8:11], s35 offen offset:128 sc0 sc1')
    A('s_waitcnt vmcnt(0)')
    A('v_cmp_ne_u32 vcc, 0, v2')
    A('s_add_u32 s31, s31, 1')
    A('s_or_b64 vcc, vcc, s[36:37]')
    A('s_cmp_eq_u64 vcc, s[32:33]')
    A(f's_cbranch_scc1 {ld}')
    A('s_sleep 4')
    A(f's_cmp_lt_u32 s31, {1 << 20}')
    A(f's_cbranch_scc1 {l2}')
    A(f's_branch {endlab}')
    A.label(ld)
    A('s_mov_b64 exec, -1')


def gu2_pre(C):
    A = C.A
    A('v_mov_b32 v15, v113')
    A('v_mov_b32 v9, v114')
    A('s_lshl_b32 s30, s21, 2')
    A('s_add_u32 s30, s30, s29')
    A('s_lshl_b32 s30, s30, 15')
    A('s_lshr_b32 s31, s20, 1')
    A('s_lshl_b32 s31, s31, 11')
    A('s_add_u32 s30, s30, s31')
    A(f's_add_u32 s30, s30, {C.B["XB"]}')
    A('v_add_u32 v13, s30, v3')
    A('v_add_u32 v14, 0x10000, v13')
    A('s_lshl_b32 s48, s29, 15')
    A('s_add_u32 s48, s48, s31')
    A('v_add_u32 v7, 0x10000, v3')
    A('v_lshrrev_b32 v11, 5, v1')
    A('v_lshlrev_b32 v11, 4, v11')
    A('s_min_u32 s30, s20, 6')
    A('s_lshl_b32 s30, s30, 7')
    A(f's_add_u32 s30, s30, {132 * KB}')
    A('v_add_u32 v10, s30, v11')
    A('v_and_b32 v12, 31, v1')
    A('v_lshlrev_b32 v12, 3, v12')
    A('v_lshl_add_u32 v12, v11, 8, v12')
    A('s_lshl_b32 s30, s21, 15')
    A(f's_add_u32 s30, s30, {C.B["SXB"]}')
    A('v_add_u32 v12, s30, v12')
    A(f'v_add_u32 v8, {128 * KB}, v3')
    A(f's_mul_i32 s31, s20, {14 * KB}')
    A(f's_mul_i32 s30, s27, {112 * KB}')
    A('s_add_u32 s30, s30, s31')
    A(f's_add_u32 s30, s30, {C.B["HF"]}')
    A('v_add_u32 v5, s30, v3')
    A(f'v_add_u32 v6, {224 * KB}, v5')


def dn_slot(n):
    return 24 + 4 * n if n < 6 else 80 + 4 * ((n - 6) % 12)


def dn_xload(C, n):
    hh, st = divmod(n, 14)
    so, im = soff(st)
    C.vmem(f'buffer_load_dwordx4 {v(dn_slot(n), 4)}, {v(5 + hh)}, s[8:11], {so} offen offset:{im}', f'x{n}')


def gu2_main(C, sync1, endlab):
    A = C.A
    ACC, XF, CS = 16, 80, 112
    STR = [10, 10, ACC, ACC + 4]
    D = GU_D
    H = D // 2
    NSTEP = 32
    SE = 32 - H

    def dma(late, c):
        A(f's_add_u32 m0, s48, {late * 65536 + c * 8192}')
        so = '0' if c == 0 else s(40 + 2 * c)
        A('s_nop 0')
        for k in range(2):
            C.vmem(f'buffer_load_dwordx4 {"v14" if late else "v13"}, s[8:11], {so} offen offset:{k * 1024} lds', f'{"l" if late else "e"}{c}')
    dma(0, 0)
    dma(0, 1)

    def parts(st):
        if st < H:
            return [(0, 2 * st), (1, 2 * st), (0, 2 * st + 1), (1, 2 * st + 1)]
        if st < SE:
            return [(0, st + H), (1, st + H), (2, st - H), (3, st - H)]
        k = 32 - D + 2 * (st - SE)
        return [(2, k), (3, k), (2, k + 1), (3, k + 1)]

    def rd(st):
        for n, (i, ks) in enumerate(parts(st)):
            base = 'v3' if i < 2 else 'v7'
            C.ds(f'ds_read_b128 {v(XF + (st & 1) * 16 + n * 4, 4)}, {base} offset:{(i & 1) * 32768 + ks * 1024}', f'r{st}')

    def stats_load(i):
        for e in range(16):
            C.vmem(f'buffer_load_dwordx2 {v(ACC + (i & 1) * 32 + 2 * e, 2)}, v12, s[8:11], {"0" if i == 0 else s(40 + 2 * i)} offen offset:{e * 256}', f's{i}')

    def stats_sum(i):
        b = ACC + (i & 1) * 32
        C.wait(f's{i}')
        for stp in (16, 8, 4, 2):
            for e in range(stp):
                A(f'v_add_f32 {v(b + e)}, {v(b + e)}, {v(b + e + stp)}')
        A(f'v_mov_b32 {v(b + 2)}, {v(b)}')
        A(f'v_mov_b32 {v(b + 3)}, {v(b + 1)}')
        A('s_nop 1')
        A(f'v_permlane32_swap_b32 {v(b)}, {v(b + 2)}')
        A(f'v_permlane32_swap_b32 {v(b + 1)}, {v(b + 3)}')
        A(f'v_add_f32 {v(b)}, {v(b)}, {v(b + 2)}')
        A(f'v_add_f32 {v(b + 1)}, {v(b + 1)}, {v(b + 3)}')
        A(f'v_mul_f32 {v(b)}, {f32(-1.0 / 512)}, {v(b)}')
        A(f'v_mul_f32 {v(b + 1)}, {f32(1.0 / 512)}, {v(b + 1)}')
        A(f'v_fma_f32 {v(b + 1)}, -{v(b)}, {v(b)}, {v(b + 1)}')
        A(f'v_max_f32 {v(b + 1)}, 0, {v(b + 1)}')
        A(f'v_add_f32 {v(b + 1)}, {f32(1e-5)}, {v(b + 1)}')
        A(f'v_rcp_f32 {v(b + 2)}, {v(b + 1)}')
        A(f'v_mov_b32 {v(b + 1)}, {v(b)}')
        A(f'v_mov_b32 {v(b + 3)}, {v(b + 2)}')
        A(f'ds_write_b128 v8, {v(b, 4)} offset:{i * 1024}')
        A('s_waitcnt lgkmcnt(0)')

    def epi(i):
        acc = ACC + i * 16
        for r in range(0, 16, 2):
            A(f'v_pk_fma_f32 {v(acc + r, 2)}, {v(STR[i], 2)}, {v(CS + r, 2)}, {v(acc + r, 2)}')
        for r in range(0, 8, 2):
            A(f'v_pk_mul_f32 {v(acc + r, 2)}, {v(acc + r, 2)}, {v(acc + 8 + r, 2)}')
        for r in range(0, 8, 2):
            A(f'v_pk_mul_f32 {v(acc + r, 2)}, {v(acc + r, 2)}, {v(STR[i] + 2, 2)}')
        pp = acc + 8
        for m in range(4):
            A(f'v_cvt_pk_bf16_f32 {v(pp + m)}, {v(acc + 2 * m)}, {v(acc + 2 * m + 1)}')
        C.vmem(f'buffer_store_dwordx4 {v(pp, 4)}, v3, s[8:11], s39 offen{WT}', 'st')
        if i < 3:
            A(f's_add_u32 s39, s39, {112 * KB}')

    SF1 = SE + GU_SF1
    assert SE - 2 >= 15
    dorder = [(0, 2), (1, 0), (0, 3), (1, 1), (1, 2), (1, 3)]
    bars = {4: 'e1', 8: 'l0', 12: 'l3', min(20, SE - 2): None}
    if F1BAR:
        bars[SF1] = 'st'
    avail = {0: {'e0'}, 4: {'e0', 'e1'}, 8: {'e0', 'e1', 'l0', 'e2'}}
    for st in range(12):
        have = avail[st // 4 * 4]
        for i, ks in parts(st):
            assert ('l' if i >= 2 else 'e') + str(ks // 8) in have, (st, i, ks)

    def loop(idle):
        C.lds = []
        A(f's_mul_i32 s39, s21, {4 * 112}')
        A('s_add_u32 s39, s39, s40')
        A('s_lshl_b32 s39, s39, 10')
        A(f's_add_u32 s39, s39, {C.B["HF"]}')
        C.wait('e0')
        A('s_barrier')
        C.stamp()
        if not idle:
            rd(0)
        dq = list(dorder)
        wdone = 0
        for st in range(NSTEP):
            if st + 1 in bars:
                if bars[st + 1]:
                    C.wait(bars[st + 1])
                A('s_barrier')
                if F1BAR and st + 1 == SF1 and idle:
                    publish7(C, sync1)
            if not idle:
                if st + 1 < NSTEP:
                    rd(st + 1)
                if st == min(20, SE - 2):
                    for g in range(4):
                        C.ds(f'ds_read_b128 {v(CS + g * 4, 4)}, v10 offset:{g * 32}', 'cs')
                if st == SE - 1:
                    C.ds(f'ds_read_b128 {v(STR[0], 4)}, v8', 'sa')
                if st == SE + 3:
                    for i in range(2, 4):
                        C.ds(f'ds_read_b128 {v(STR[i], 4)}, v8 offset:{i * 1024}', 'sb')
                C.dwait(f'r{st}')
            if FINE == 5 and st in (8, 16, SE, SF1 - 1, SF1):
                C.stamp()
                C.lds = []
            todo = []
            if GU_PRIO and not idle and st in (12, SE + 2, SF1 + 1):
                A(f's_setprio {dict([(12, 3), (SE + 2, 2), (SF1 + 1, 0)])[st]}')
            if st == 10:
                C.flagb = True
                flag_b(C)
            if dq:
                todo.append(lambda x=dq.pop(0): dma(*x))
            freed = min([ks for i, ks in parts(st) if i >= 2] or [0])
            lim = 28 if idle and st >= 8 else min(28, freed)
            for _ in range(2):
                if wdone < lim:
                    todo.append(lambda k=wdone: g3_wload(C, (15, 9), k, 128))
                    wdone += 1
            for n, (i, ks) in enumerate(parts(st)):
                if not idle:
                    c = '0' if ks == 0 else v(ACC + i * 16, 16)
                    A(f'v_mfma_f32_32x32x16_bf16 {v(ACC + i * 16, 16)}, {v(128 + 4 * ks, 4)}, {v(XF + (st & 1) * 16 + n * 4, 4)}, {c}')
                if todo:
                    todo.pop(0)()
            assert not todo
            if not idle and st == SE:
                C.dwait('sa')
                A('s_nop 3')
                epi(0)
                C.ds(f'ds_read_b128 {v(STR[1], 4)}, v8 offset:1024', 'sa')
            if not idle and st == SE + 1:
                C.dwait('sa')
                epi(1)
            if not idle and st == SF1 and not F1BAR:
                C.wait('st')
                A('s_mov_b64 exec, 1')
                A(f'v_mov_b32 v14, {GCNT}')
                C.ds('ds_add_u32 v14, v4', 'ar')
                A('s_mov_b64 exec, -1')
            if idle and st == SF1 and not F1BAR:
                lsp, lsd = C.lab('sp'), C.lab('sd')
                A(f'v_mov_b32 v14, {GCNT}')
                A('s_mov_b32 s31, 0')
                A.label(lsp)
                A('ds_read_b32 v13, v14')
                A('s_add_u32 s31, s31, 1')
                A('s_waitcnt lgkmcnt(0)')
                A('v_cmp_eq_u32 vcc, 7, v13')
                A(f's_cbranch_vccnz {lsd}')
                A('s_sleep 1')
                A(f's_cmp_lt_u32 s31, {1 << 22}')
                A(f's_cbranch_scc1 {lsp}')
                A(f's_branch {endlab}')
                A.label(lsd)
                publish7(C, sync1)
            if st == NSTEP - 1 - GU_PO:
                A('s_lshl_b32 s30, s20, 1')
                A('s_lshl_b32 s32, 3, s30')
                poll_issue(C, sync1, 'f1')
            if idle:
                if st == 6:
                    A(f'v_mov_b32 {v(XF)}, 0')
                    A(f'v_mov_b32 {v(XF + 1)}, 0')
                    A(f'v_mov_b32 {v(XF + 2)}, {GCNT}')
                    A(f'ds_write_b64 {v(XF + 2)}, {v(XF, 2)}')
                    stats_load(0)
                    stats_load(1)
                if st == 9:
                    stats_sum(0)
                    A(f's_mul_i32 s30, s22, {7 * 128}')
                    A(f's_add_u32 s30, s30, {CSP}')
                    for kp in range(8):
                        C.vmem(f'buffer_load_dwordx4 {v(ACC + 4 * kp, 4)}, v3, s[8:11], s30 offen', 'cp')
                        if kp < 7:
                            A(f's_add_u32 s30, s30, {3584 * 4}')
                    stats_sum(1)
                    stats_load(3)
                if st == 13:
                    C.wait('cp')
                    for stp in (16, 8, 4):
                        for e in range(stp):
                            A(f'v_add_f32 {v(ACC + e)}, {v(ACC + e)}, {v(ACC + e + stp)}')
                    A(f'v_add_u32 v10, {132 * KB}, v3')
                    A(f'ds_write_b128 v10, {v(ACC, 4)}')
                    A('s_waitcnt lgkmcnt(0)')
                    stats_load(2)
                    stats_sum(3)
                    stats_sum(2)
        assert wdone == 28
        C.stamp()

        def prime():
            poll_check(C, 'f1', endlab)
            for n in range(6):
                dn_xload(C, n)
        if PRIME_LATE == 0:
            prime()
        if not idle:
            A('s_waitcnt lgkmcnt(0)')
            A('s_nop 11')
            epi(2)
        if PRIME_LATE == 1:
            prime()
        if not idle:
            epi(3)
        if PRIME_LATE == 2:
            prime()

    ls, le = C.lab('gs'), C.lab('ge')
    A('s_cmp_eq_u32 s20, 7')
    A(f's_cbranch_scc1 {ls}')
    save, ns = list(C.vm), C.nstamp
    loop(False)
    A(f's_branch {le}')
    A.label(ls)
    C.vm, C.nstamp = list(save), ns
    loop(True)
    A.label(le)
    C.vm = [f'x{n}' for n in range(6)]


def dn_main(C, mode, sync2, endlab, resbase, outbase=None, sxout=None, hook_red=None):
    A = C.A
    NS, EX, WR = 14, 252, 128
    AC = [48, 16]
    nxt = 6
    A(f's_add_u32 s31, s49, {resbase}')
    C.vmem(f'buffer_load_dwordx4 {v(EX, 4)}, v3, s[8:11], s31 offen', 'ex')
    A('s_lshl_b32 s30, s20, 11')
    A('v_add_u32 v8, s30, v3')
    A('v_add_u32 v7, 0x10000, v8')
    A('s_and_b32 s31, s20, 6')
    for c in range(4):
        A(f's_xor_b32 s30, s31, {c << 1}')
        A('s_lshl_b32 s30, s30, 11')
        A('s_lshl_b32 s34, s20, 14')
        A('s_add_u32 s30, s30, s34')
        A(f'v_add_u32 {v(9 + c)}, s30, v3')
    C.stamp()

    def wr(hh):
        out = []
        for c in (0, 2, 1, 3):
            base = AC[hh] + (c & 1) * 16 + (c >> 1) * 8
            out += [f'ds_write_b128 {v(9 + c)}, {v(base + h2 * 4, 4)} offset:{hh * 2048 + h2 * 1024}' for h2 in range(2)]
        return out
    pend = []
    for hh in range(2):
        for st in range(NS):
            n = hh * NS + st
            C.wait(f'x{n}')
            for jj in range(2):
                c = '0' if st == 0 else v(AC[hh] + jj * 16, 16)
                A(f'v_mfma_f32_32x32x16_bf16 {v(AC[hh] + jj * 16, 16)}, {v(WR + 4 * (2 * st + jj), 4)}, {v(dn_slot(n), 4)}, {c}')
                if hh == 1 and st >= 3 and pend:
                    A(pend.pop(0))
            if n == DN_AR and F2BAR:
                if PRIME_LATE < 2:
                    C.wait('ex')
                A('s_barrier')
                publish7(C, sync2)
            if n == DN_AR and not F2BAR:
                C.wait('ex')
                lh = C.lab('h7')
                A('s_cmp_eq_u32 s20, 7')
                A(f's_cbranch_scc1 {lh}')
                arrive(C, 1, sync2)
                A.label(lh)
            if FINE == 5 and n in (0, 1, 7, 8, 14):
                C.stamp()
            if n == DN_PI:
                poll_issue(C, sync2, 'f2')
            if nxt == NS:
                poll_check(C, 'f2', endlab)
            if nxt < 2 * NS:
                dn_xload(C, nxt)
                nxt += 1
            if hh == 1 and st == 2:
                A('s_nop 2' if F2BAR else 's_barrier')
        if hh == 0:
            pend = wr(0)
    assert not pend
    C.stamp()
    T = 80
    C.wait('ex')
    for m in range(4):
        A(f'v_lshlrev_b32 {v(T + 2 * m)}, 16, {v(EX + m)}')
        A(f'v_and_b32 {v(T + 2 * m + 1)}, 0xffff0000, {v(EX + m)}')
    A('s_nop 2')
    for x in wr(1):
        A(x)
    if hook_red:
        hook_red()
    A('s_waitcnt lgkmcnt(0)')
    A('s_barrier')
    for b in range(8):
        for h2 in range(2):
            base, off = ('v8', b * 16 * KB) if b < 4 else ('v7', (b - 4) * 16 * KB)
            A(f'ds_read_b128 {v(16 + b * 8 + h2 * 4, 4)}, {base} offset:{off + h2 * 1024}')
        if b == 6:
            A('s_waitcnt lgkmcnt(10)')
            for r in range(8):
                A(f'v_add_f32 {v(16 + r)}, {v(16 + r)}, {v(T + r)}')
    A('s_waitcnt lgkmcnt(0)')
    for stp in (32, 16, 8):
        for r in range(stp):
            A(f'v_add_f32 {v(16 + r)}, {v(16 + r)}, {v(16 + stp + r)}')
    P = 24
    for m in range(4):
        A(f'v_cvt_pk_bf16_f32 {v(P + m)}, {v(16 + 2 * m)}, {v(16 + 2 * m + 1)}')
    if mode == 'res':
        A(f's_add_u32 s31, s49, {outbase}')
        C.vmem(f'buffer_store_dwordx4 {v(P, 4)}, v3, s[8:11], s31 offen{WT}', 'st')
        blk_stats(C, P, T)
        A('s_lshr_b32 s31, s49, 2')
        A(f's_add_u32 s31, s31, {sxout}')
        A('v_lshlrev_b32 v4, 3, v1')
        A('s_mov_b32 exec_hi, 0')
        C.vmem(f'buffer_store_dwordx2 {v(T, 2)}, v4, s[8:11], s31 offen{WT}', 'st')
        A('s_mov_b64 exec, -1')
    else:
        A('v_and_b32 v4, 31, v1')
        A('v_lshlrev_b32 v4, 10, v4')
        A('v_lshrrev_b32 v5, 5, v1')
        A('v_lshl_add_u32 v4, v5, 4, v4')
        A('s_and_b32 s30, s49, 0xffff8000')
        A('s_and_b32 s31, s49, 0x7fff')
        A('s_lshr_b32 s31, s31, 5')
        A('s_add_u32 s30, s30, s31')
        A(f'v_permlane32_swap_b32 {v(P)}, {v(P + 2)}')
        A(f'v_permlane32_swap_b32 {v(P + 1)}, {v(P + 3)}')
        C.vmem(f'buffer_store_dwordx4 {v(P, 4)}, v4, s[12:15], s30 offen{OWT}', 'st')


def swap_add(A, ra, rb):
    A(f'v_permlane32_swap_b32 {v(ra)}, {v(rb)}')
    A(f'v_add_f32 {v(ra)}, {v(ra)}, {v(rb)}')


def pre_part(C, end):
    A = C.A
    A('s_cmp_ge_u32 s2, 256')
    A(f's_cbranch_scc1 {end}')
    A('s_load_dwordx2 s[12:13], s[0:1], 0')
    A('s_load_dwordx2 s[16:17], s[0:1], 8')
    A('s_load_dwordx2 s[52:53], s[0:1], 16')
    A('s_load_dwordx2 s[56:57], s[0:1], 24')
    A('s_load_dwordx2 s[4:5], s[0:1], 80')
    for d, sz in ((12, 2048 * 1024), (16, 512 * 1024), (52, 512 * 32), (56, 512 * 32), (4, 256)):
        A(f's_mov_b32 {s(d + 2)}, {sz}')
        A(f's_mov_b32 {s(d + 3)}, 0x20000')
    setup(C, False, end)
    C.stamp()
    if TLBW:
        A('s_lshl_b32 s30, s20, 3')
        A(f's_add_u32 s30, s30, 32')
        A('s_cmp_eq_u32 s20, 1')
        A('s_cselect_b32 s30, 8, s30')
        A('s_load_dwordx2 s[32:33], s[0:1], s30')
        A('s_mov_b32 s31, 8192')
        A('s_cmp_ge_u32 s20, 2')
        A('s_cselect_b32 s31, 28672, s31')
        A('s_cmp_eq_u32 s20, 6')
        A('s_cselect_b32 s31, 4, s31')
        A('s_cmp_eq_u32 s20, 7')
        A(f's_cselect_b32 s31, {TLBW}, s31')
        A('v_mul_lo_u32 v4, v1, s31')
        A('s_waitcnt lgkmcnt(0)')
        A('global_load_dword v127, v4, s[32:33]')
    A('s_add_u32 s30, s21, 1')
    A('s_and_b32 s30, s30, 3')
    A('s_lshl_b32 s30, s30, 2')
    A('s_xor_b32 s30, s30, s22')
    A('s_add_u32 s30, s30, s20')
    A('s_cmp_lg_u32 s30, 0')
    A('s_cbranch_scc1 pr_z0')
    for r in range(4):
        A(f'v_mov_b32 {v(8 + r)}, 0')
    A('v_lshrrev_b32 v4, 4, v1')
    A('v_and_b32 v5, 15, v1')
    A('v_lshlrev_b32 v5, 4, v5')
    A('v_lshl_add_u32 v4, v4, 12, v5')
    A('s_lshl_b32 s30, s21, 8')
    A(f's_add_u32 s30, s30, {FLG}')
    for k in range(3):
        A('buffer_store_dwordx4 v[8:11], v4, s[8:11], s30 offen sc0 sc1')
        A('s_add_u32 s30, s30, 16384')
    A('v_lshlrev_b32 v4, 7, v1')
    A(f's_mul_i32 s30, s21, {64 * 128}')
    A(f's_add_u32 s30, s30, {PFL}')
    A('buffer_store_dwordx4 v[8:11], v4, s[8:11], s30 offen sc0 sc1')
    A('v_mov_b32 v5, 1')
    A('s_mov_b64 exec, 1')
    A('s_waitcnt vmcnt(0)')
    A('buffer_atomic_add v5, v8, s[4:7], 0 offen sc1')
    A('s_mov_b64 exec, -1')
    A('s_nop 1')
    A.label('pr_z0')
    KST, KW, KR, T, EX, XR = 240, 192, 224, 108, 96, 32
    WST, CSQ, CSKV = 96 * KB, ST4 + 9 * KB, ST4 + 10 * KB
    A('s_mov_b64 s[36:37], s[16:17]')
    A(f's_mov_b32 s38, {512 * 1024}')
    A('s_mov_b32 s39, 0x20000')
    g4_ids(C)
    A('s_lshl_b32 s30, s20, 11')
    A('s_cmp_lg_u32 s3, 0')
    A('s_cbranch_scc1 pr_k0')
    for k in range(4):
        A(f'buffer_load_dwordx4 {v(KST + 4 * k, 4)}, v3, {"s[52:55]" if k < 2 else "s[56:59]"}, s30 offen offset:{(k & 1) * 1024}')
    A.label('pr_k0')
    A('v_lshrrev_b32 v4, 3, v1')
    A('v_and_b32 v5, 7, v1')
    A('v_lshrrev_b32 v6, 4, v1')
    A('v_xor_b32 v6, v6, v5')
    A('v_lshlrev_b32 v7, 10, v4')
    A('v_lshl_add_u32 v8, v6, 4, v7')
    A('v_xor_b32 v9, 64, v8')
    A('s_lshl_b32 s30, s18, 15')
    A('s_lshl_b32 s31, s20, 7')
    A('s_add_u32 s30, s30, s31')
    A('s_lshl_b32 s32, s20, 12')
    for i in range(4):
        A(f's_add_u32 m0, s32, {KVR4 + i * 1024}')
        A('s_nop 0')
        C.vmem(f'buffer_load_dwordx4 {v(8 + (i & 1))}, s[12:15], s30 offen lds', 'x')
        A('s_add_u32 s30, s30, 8192')
    A('v_lshrrev_b32 v4, 2, v1')
    A('v_and_b32 v5, 3, v1')
    A('v_lshlrev_b32 v10, 10, v4')
    A('v_lshl_add_u32 v10, v5, 4, v10')
    A('s_lshl_b32 s31, s26, 18')
    A('s_bfe_u32 s30, s19, 0x4000b')
    A('s_lshl_b32 s30, s30, 6')
    A('s_add_u32 s31, s31, s30')
    A('s_lshl_b32 s51, s20, 13')
    A(f's_add_u32 s51, s51, {WST}')
    if HACKW:
        A('v_lshrrev_b32 v10, 3, v1')
        A('v_lshlrev_b32 v10, 10, v10')
        A('v_and_b32 v88, 7, v1')
        A('v_lshl_add_u32 v10, v88, 4, v10')
        A('s_and_b32 s31, s31, 0xffffffbf')
        A('s_lshl_b32 s30, s29, 13')
        A('s_add_u32 s31, s31, s30')
    A('s_mov_b32 s50, s31')
    A('v_mov_b32 v88, v10')
    A('s_and_b32 s33, s22, 3')
    A(f's_lshl_b32 s33, s33, 16' if WROT else 's_mov_b32 s33, 0')

    def wloads(lo=0, hi=16):
        for i in range(lo, hi):
            A(f's_xor_b32 s30, s33, {G4_ORD[i] * 16384}')
            A('s_add_u32 s30, s30, s50')
            if i < 8:
                A(f's_add_u32 m0, s51, {i * 1024}')
                A('s_nop 0')
                A('buffer_load_dwordx4 v88, s[36:39], s30 offen lds')
            else:
                A(f'buffer_load_dwordx4 {v(128 + 4 * i, 4)}, v88, s[36:39], s30 offen')
    if FR2:
        A('s_barrier')
        wloads(0, FR2)
    else:
        A('s_cmp_eq_u32 s3, 0')
        A('s_cbranch_scc1 pr_w1')
        A('s_barrier')
        wloads()
        A('s_waitcnt vmcnt(16)')
        A.label('pr_w1')
    C.stamp()
    A('v_and_b32 v64, 31, v1')
    A('v_lshrrev_b32 v65, 5, v1')
    A('v_lshlrev_b32 v66, 7, v64')
    A('v_lshl_add_u32 v66, v65, 3, v66')
    A('v_bfe_u32 v67, v1, 1, 3')
    A('v_lshl_add_u32 v66, v67, 4, v66')
    A(f's_add_u32 s30, s32, {KVR4}')
    A('v_add_u32 v66, s30, v66')
    A('v_bfe_u32 v67, v1, 2, 2')
    A('v_lshl_add_u32 v67, v65, 2, v67')
    A('v_lshlrev_b32 v68, 3, v5')
    A('v_bfe_u32 v69, v1, 4, 1')
    A('v_lshl_add_u32 v70, v67, 5, v68')
    A('v_lshl_add_u32 v70, v69, 11, v70')
    A('v_add_u32 v70, s51, v70')
    A('v_lshl_add_u32 v71, v67, 6, v68')
    A('v_lshl_add_u32 v71, v69, 5, v71')
    A('s_lshl_b32 s30, s26, 5')
    A('v_xor_b32 v71, s30, v71')
    A('v_add_u32 v71, s51, v71')
    A('v_add_u32 v72, s51, v3')
    A('v_mov_b32 v73, 0x3f803f80')
    A('v_lshlrev_b32 v74, 2, v64')
    A('s_lshl_b32 s30, s20, 7')
    A(f's_add_u32 s31, s30, {CSKV}')
    A('v_add_u32 v75, s31, v74')
    A('s_lshl_b32 s31, s26, 6')
    A('v_xor_b32 v74, s31, v74')
    A(f's_add_u32 s30, s30, {CSQ}')
    A('v_add_u32 v74, s30, v74')
    A('v_lshlrev_b32 v76, 4, v65')
    A('s_add_u32 s30, s30, s31')
    A('v_add_u32 v77, s30, v76')
    A('v_xor_b32 v78, 512, v77')
    A('s_lshl_b32 s30, s25, 5')
    A(f's_add_u32 s30, s30, {CSKV}')
    A('v_add_u32 v79, s30, v76')
    g4_pre(C, 'qkv', XA, resbase=0, raw=True)
    A('s_lshr_b32 s30, s33, 4')
    A('s_lshl_b32 s31, s20, 12')
    A('s_xor_b32 s30, s30, s31')
    A(f's_add_u32 s30, s30, {XF0}')
    A('v_add_u32 v12, s30, v3')
    A('v_mov_b32 v0, 0')
    A('v_mov_b32 v4, 1')
    for ch in range(8):
        A(f'v_xor_b32 {v(80 + ch)}, {ch << 4}, v66')

    def front():
        A('s_cmp_lg_u32 s3, 0')
        A('s_cbranch_scc1 pr_w2')
        A('s_waitcnt vmcnt(4)')
        for k in range(4):
            A(f'ds_write_b128 v72, {v(KST + 4 * k, 4)} offset:{k * 1024}')
        for st in range(4):
            for h2 in range(2):
                A(f'ds_read_b64_tr_b16 {v(KW + 4 * st + 2 * h2, 2)}, v70 offset:{st * 512 + h2 * 256}')
        A('s_waitcnt lgkmcnt(0)')
        for r in range(8):
            for e in range(2):
                A(f'v_dot2_f32_bf16 {v(90 + e)}, {v(KW + 2 * r + e)}, v73, {"0" if r == 0 else v(90 + e)}')
        A('s_nop 2')
        A('v_add_f32 v90, v90, v91')
        A('v_mov_b32 v91, v90')
        A('s_nop 1')
        swap_add(A, 90, 91)
        A('ds_write_b32 v75, v90')
        A('s_waitcnt vmcnt(0)')
        A.label('pr_w2')
        C.vm = []
        C.stamp()
        for ch in range(8):
            A(f'ds_read_b64 {v(KR + 2 * ch, 2)}, {v(80 + ch)}')
        if ZEARLY:
            A('buffer_load_dword v89, v0, s[4:7], 0 offen sc1')
        A('s_waitcnt lgkmcnt(0)')

    def kvw():
        pass

    def front2():
        for k in range(4):
            A(f'ds_write_b128 v12, {v(KR + 4 * k, 4)} offset:{k * 1024}')
        for r in range(8):
            for e in range(2):
                x = v(KR + 2 * r + e)
                A(f'v_dot2_f32_bf16 {v(T + 2 * e)}, {x}, v73, {"0" if r == 0 else v(T + 2 * e)}')
                A(f'v_dot2_f32_bf16 {v(T + 2 * e + 1)}, {x}, {x}, {"0" if r == 0 else v(T + 2 * e + 1)}')
        A('s_nop 2')

    def kvcs0():
        for ww in range(8):
            A(f'ds_read_b128 {v(XR + 4 * ww, 4)}, v79 offset:{ww * 128}')

    def kvcs1():
        A('s_waitcnt lgkmcnt(0)')
        for stp in (16, 8):
            for r in range(stp):
                A(f'v_add_f32 {v(XR + r)}, {v(XR + r)}, {v(XR + stp + r)}')
        for r in range(4):
            A(f'v_add_f32 {v(EX + 8 + r)}, {v(XR + r)}, {v(XR + 4 + r)}')

    def zchk():
        lz, lzd = C.lab('z'), C.lab('zd')
        if ZEARLY:
            A('s_waitcnt vmcnt(0)')
            A('v_cmp_le_u32 vcc, 16, v89')
            A('s_cmp_eq_u64 vcc, -1')
            A(f's_cbranch_scc1 {lzd}')
        A('s_mov_b32 s31, 0')
        A('s_mov_b64 exec, 1')
        A.label(lz)
        A('buffer_load_dword v2, v0, s[4:7], 0 offen sc1')
        A('s_waitcnt vmcnt(0)')
        A('v_cmp_le_u32 vcc, 16, v2')
        A('s_add_u32 s31, s31, 1')
        A('s_cmp_eq_u64 vcc, 1')
        A(f's_cbranch_scc1 {lzd}')
        A('s_sleep 8')
        A(f's_cmp_lt_u32 s31, {1 << 20}')
        A(f's_cbranch_scc1 {lz}')
        A(f's_branch {end}')
        A.label(lzd)
        A('s_mov_b64 exec, -1')

    def wprep():
        if not FR2:
            A('s_cmp_lg_u32 s3, 0')
            A('s_cbranch_scc1 pr_w3')
            wloads()
            A.label('pr_w3')
        zchk()
        C.vm = []
        C.stamp()


    def tr(i):
        for h2 in range(2):
            A(f'ds_read_b64_tr_b16 {v(128 + 4 * i + 2 * h2, 2)}, v71 offset:{(i % 8) * 1024 + h2 * 512}')

    def csdot(r0, r1):
        for r in range(r0, r1):
            for e in range(4):
                A(f'v_dot2_f32_bf16 {v(80 + e)}, {v(128 + 4 * r + e)}, v73, {"0" if r == 0 else v(80 + e)}')

    def loop(rd, mf):
        for i in range(8):
            tr(i)
            if i == 5:
                A('s_waitcnt lgkmcnt(6)')
        ln_stats(A, T)
        A('s_waitcnt lgkmcnt(0)')
        for i in range(4):
            rd(i)
        for i in range(8):
            A(f'ds_write_b128 v72, {v(160 + 4 * i, 4)} offset:{i * 1024}')
        csdot(0, 8)
        A('s_waitcnt lgkmcnt(0)')
        for i in range(4, 8):
            rd(i)
        for i in range(8):
            if i == 4:
                A('s_waitcnt lgkmcnt(8)')
            mf(i)
            if i < 4:
                tr(8 + i)
            else:
                A('s_waitcnt lgkmcnt(9)')
                tr(8 + i)
                rd(4 + i)
        for i in range(8, 16):
            if i == 8:
                A('s_waitcnt lgkmcnt(9)')
            elif i < 12:
                A(f's_waitcnt lgkmcnt({9 - 2 * (i - 8)})')
            else:
                A(f's_waitcnt lgkmcnt({15 - i})')
            mf(i)
            if i < 12:
                rd(4 + i)

    def cs0():
        csdot(8, 16)
        A('s_nop 2')
        A('v_add_f32 v80, v80, v81')
        A('v_add_f32 v82, v82, v83')
        A('v_add_f32 v80, v80, v82')
        A('v_mov_b32 v81, v80')
        A('s_nop 1')
        swap_add(A, 80, 81)
        A('ds_write_b32 v74, v80')

    def cs():
        for h2 in range(2):
            A(f'ds_read_b128 {v(EX + 4 * h2, 4)}, v77 offset:{h2 * 32}')
            A(f'ds_read_b128 {v(XR + 4 * h2, 4)}, v78 offset:{h2 * 32}')
        A('s_waitcnt lgkmcnt(0)')
        for r in range(8):
            A(f'v_add_f32 {v(EX + r)}, {v(EX + r)}, {v(XR + r)}')
        for r in range(12):
            A(f'v_mov_b32 {v(208 + r)}, {v(EX + r)}')

    g4_main(C, 'qkv', kvf=KVF, kfl=KFL, raw=dict(front=front, kvw=kvw, kvcs0=kvcs0, kvcs1=kvcs1, zchk=zchk, front2=front2, wloads=wloads, wprep=wprep, cs=cs, cs0=cs0, loop=loop), endlab=end)
    C.stamp()


def wq_store(C):
    A = C.A
    A('s_and_b32 s30, s18, 0x33')
    A('s_cmp_lg_u32 s30, 0')
    A('s_cbranch_scc1 pr_w0')
    g4_waddr(C, 112, WQKVP)
    for q4 in (3, 2, 1, 0):
        if q4:
            A(f's_cmp_lg_u32 s21, {q4}')
            A(f's_cbranch_scc1 pr_ws{q4}')
        for i in range(4 * q4, 4 * q4 + 4):
            so, im = soff(G4_ORD[i])
            A(f'buffer_store_dwordx4 {v(128 + 4 * i, 4)}, v112, s[8:11], {so} offen offset:{im} sc0 sc1')
        if q4:
            A('s_branch pr_w0')
            A.label(f'pr_ws{q4}')
    A('v_lshrrev_b32 v113, 5, v1')
    A('v_lshlrev_b32 v113, 4, v113')
    A('s_lshr_b32 s31, s19, 4')
    A(f's_add_u32 s31, s31, {CSQKV}')
    A('s_mov_b32 exec_lo, 1')
    A('s_mov_b32 exec_hi, 1')
    A('buffer_store_dwordx4 v[208:211], v113, s[8:11], s31 offen sc0 sc1')
    A('buffer_store_dwordx4 v[212:215], v113, s[8:11], s31 offen offset:32 sc0 sc1')
    A('s_mov_b64 exec, -1')
    A('s_cmp_lg_u32 s22, 0')
    A('s_cbranch_scc1 pr_w0')
    A('s_lshl_b32 s30, s20, 12')
    A(f's_add_u32 s30, s30, {WQKVP + 16 * 32 * KB}')
    for k in range(4):
        A(f'buffer_store_dwordx4 {v(192 + 4 * k, 4)}, v3, s[8:11], s30 offen offset:{k * 1024} sc0 sc1')
    A('s_cmp_ge_u32 s20, 4')
    A('s_cbranch_scc1 pr_w0')
    A('s_lshl_b32 s31, s20, 5')
    A(f's_add_u32 s31, s31, {CSQKV + 2048}')
    A('s_mov_b32 exec_lo, 1')
    A('s_mov_b32 exec_hi, 1')
    A('buffer_store_dwordx4 v[216:219], v113, s[8:11], s31 offen sc0 sc1')
    A('s_mov_b64 exec, -1')
    A.label('pr_w0')


def pack_ptrs(A):
    A('s_load_dwordx2 s[4:5], s[0:1], 32')
    A('s_load_dwordx4 s[52:55], s[0:1], 48')
    A('s_load_dwordx2 s[16:17], s[0:1], 64')


def pack_issue(C):
    A = C.A
    A('s_mul_i32 s30, s2, 3')
    A('s_add_u32 s30, s30, s20')
    A('s_mov_b32 s58, s30')
    A('s_cmp_lt_u32 s20, 3')
    A('s_cselect_b32 s57, 1, 0')
    A('s_cmp_lt_u32 s30, 736')
    A('s_cselect_b32 s57, s57, 0')
    A('s_cmp_eq_u32 s57, 0')
    A('s_cselect_b32 s30, 0, s30')
    A('s_cmp_lt_u32 s30, 64')
    A('s_cbranch_scc1 pk_jwo')
    A('s_cmp_lt_u32 s30, 512')
    A('s_cbranch_scc1 pk_jgu')
    A('s_sub_u32 s30, s30, 512')
    A('s_mov_b64 s[4:5], s[16:17]')
    A(f's_mov_b32 s6, {1792 * 1024}')
    A('s_mov_b32 s50, 1024')
    A('s_and_b32 s31, s30, 7')
    A('s_lshr_b32 s30, s30, 3')
    A('s_lshl_b32 s51, s30, 16')
    A('s_lshl_b32 s56, s31, 7')
    A('s_add_u32 s51, s51, s56')
    A(f's_mul_i32 s56, s31, {2 * 112 * KB}')
    A('s_lshl_b32 s30, s30, 12')
    A('s_add_u32 s56, s56, s30')
    A(f's_add_u32 s56, s56, {WDP}')
    A(f's_mov_b32 s52, {112 * KB}')
    A('s_mov_b32 s53, 256')
    A(f's_mov_b32 s54, {G1.CSDUMMY}')
    A('s_branch pk_jgo')
    A.label('pk_jwo')
    A(f's_mov_b32 s6, {512 * 1024}')
    A('s_mov_b32 s50, 1024')
    A('s_lshr_b32 s31, s30, 3')
    A('s_and_b32 s30, s30, 7')
    A('s_lshl_b32 s51, s30, 16')
    A('s_lshl_b32 s56, s31, 7')
    A('s_add_u32 s51, s51, s56')
    A('s_lshl_b32 s56, s31, 16')
    A('s_lshl_b32 s30, s30, 12')
    A('s_add_u32 s56, s56, s30')
    A(f's_add_u32 s56, s56, {WOP}')
    A(f's_mov_b32 s52, {32 * KB}')
    A('s_mov_b32 s53, 256')
    A(f's_mov_b32 s54, {G1.CSDUMMY}')
    A('s_branch pk_jgo')
    A.label('pk_jgu')
    A('s_sub_u32 s30, s30, 64')
    A('s_cmp_ge_u32 s30, 224')
    A('s_cselect_b32 s4, s54, s52')
    A('s_cselect_b32 s5, s55, s53')
    A('s_cselect_b32 s16, 1, 0')
    A('s_cselect_b32 s31, 224, 0')
    A('s_sub_u32 s30, s30, s31')
    A(f's_mov_b32 s6, {512 * 3584}')
    A('s_mov_b32 s50, 3584')
    A('s_lshr_b32 s31, s30, 3')
    A('s_and_b32 s30, s30, 7')
    A(f's_mul_i32 s51, s30, {64 * 3584}')
    A('s_lshl_b32 s56, s31, 7')
    A('s_add_u32 s51, s51, s56')
    A('s_lshl_b32 s56, s31, 17')
    A('s_lshl_b32 s17, s30, 12')
    A('s_add_u32 s56, s56, s17')
    A('s_lshl_b32 s17, s16, 8')
    A('s_add_u32 s56, s56, s17')
    A(f's_add_u32 s56, s56, {WGUP}')
    A(f's_mov_b32 s52, {64 * KB}')
    A(f's_mov_b32 s53, {32 * KB}')
    A(f's_mul_i32 s54, s30, {3584 * 4}')
    A('s_lshl_b32 s17, s31, 9')
    A('s_add_u32 s54, s54, s17')
    A('s_lshl_b32 s17, s16, 6')
    A('s_add_u32 s54, s54, s17')
    A(f's_add_u32 s54, s54, {CSP}')
    A.label('pk_jgo')
    A('v_lshrrev_b32 v112, 3, v1')
    A('v_and_b32 v113, 7, v1')
    A('v_mul_lo_u32 v112, v112, s50')
    A('v_lshl_add_u32 v112, v113, 4, v112')
    A('s_lshl_b32 s50, s50, 3')
    A('s_min_u32 s59, s20, 2')
    A('s_lshl_b32 s59, s59, 13')
    A(f's_add_u32 s59, s59, {136 * KB}')
    A('s_cmp_eq_u32 s57, 0')
    A('s_cbranch_scc1 pk_i_end')
    for i in range(8):
        A(f's_add_u32 m0, s59, {i * 1024}')
        A('s_nop 0')
        A('buffer_load_dwordx4 v112, s[4:7], s51 offen lds')
        A('s_add_u32 s51, s51, s50')
    A.label('pk_i_end')


def pack_convert(C):
    A = C.A
    A('s_cmp_eq_u32 s57, 0')
    A('s_cbranch_scc1 pk_c_end')
    A('v_lshrrev_b32 v112, 5, v1')
    A('v_bfe_u32 v113, v1, 2, 2')
    A('v_lshl_add_u32 v113, v112, 2, v113')
    A('v_and_b32 v114, 3, v1')
    A('v_lshlrev_b32 v114, 3, v114')
    A('v_lshl_add_u32 v113, v113, 7, v114')
    A('v_bfe_u32 v114, v1, 4, 1')
    A('v_lshl_add_u32 v113, v114, 5, v113')
    A('v_add_u32 v113, s59, v113')
    A('v_mul_lo_u32 v114, v114, s53')
    A('v_and_b32 v115, 15, v1')
    A('v_lshl_add_u32 v114, v115, 4, v114')
    A('v_lshl_add_u32 v114, v112, 9, v114')
    A('v_lshrrev_b32 v112, 4, v1')
    A('v_lshlrev_b32 v112, 7, v112')
    A('v_lshl_add_u32 v112, v115, 2, v112')
    A('v_mov_b32 v115, 0x3f803f80')
    A('s_add_u32 s52, s52, s56')
    A('s_waitcnt vmcnt(0)')
    for jj in range(2):
        for st in range(4):
            for h2 in range(2):
                A(f'ds_read_b64_tr_b16 {v(128 + 4 * (4 * jj + st) + 2 * h2, 2)}, v113 offset:{st * 2048 + h2 * 1024 + jj * 64}')
        A('s_waitcnt lgkmcnt(0)')
        for st in range(4):
            A(f'buffer_store_dwordx4 {v(128 + 4 * (4 * jj + st), 4)}, v114, s[8:11], {"s56" if jj == 0 else "s52"} offen offset:{st * 1024} sc0 sc1')
    A('s_cmp_eq_u32 s53, 256')
    A('s_cbranch_scc1 pk_c_end')
    for r in range(16):
        for jj in range(2):
            A(f'v_dot2_f32_bf16 {v(116 + jj)}, {v(128 + 16 * jj + r)}, v115, {"0" if r == 0 else v(116 + jj)}')
    A('s_nop 2')
    swap_add(A, 116, 117)
    A('buffer_store_dword v116, v112, s[8:11], s54 offen sc0 sc1')
    A.label('pk_c_end')


def pack_flag(C):
    A = C.A
    A('v_mov_b32 v112, 0')
    A('v_mov_b32 v113, 1')
    A('s_cmp_eq_u32 s57, 0')
    A('s_cbranch_scc1 pk_f_1')
    A('s_lshl_b32 s30, s58, 7')
    A(f's_add_u32 s30, s30, {PFL}')
    A('s_waitcnt vmcnt(0)')
    A('s_mov_b64 exec, 1')
    A('buffer_store_dword v113, v112, s[8:11], s30 offen sc0 sc1')
    A('s_mov_b64 exec, -1')
    A.label('pk_f_1')
    A('s_and_b32 s30, s18, 0x33')
    A('s_cmp_lg_u32 s30, 0')
    A('s_cbranch_scc1 pk_f_end')
    A('s_lshl_b32 s30, s22, 1')
    A('s_add_u32 s30, s30, s20')
    A('s_lshl_b32 s31, s21, 5')
    A('s_add_u32 s30, s30, s31')
    A('s_lshl_b32 s30, s30, 7')
    A(f's_add_u32 s30, s30, {PFL + 768 * 128}')
    A('s_waitcnt vmcnt(0)')
    A('s_mov_b64 exec, 1')
    A('buffer_store_dword v113, v112, s[8:11], s30 offen sc0 sc1')
    A('s_mov_b64 exec, -1')
    A.label('pk_f_end')


def pack_poll(C, endlab):
    A = C.A
    A('s_mul_i32 s30, s22, 7')
    A('s_lshr_b32 s30, s30, 2')
    A('v_lshrrev_b32 v112, 4, v1')
    A('v_add_u32 v112, s30, v112')
    A('v_min_u32 v112, 27, v112')
    A('v_and_b32 v113, 7, v1')
    A('v_lshl_add_u32 v112, v112, 3, v113')
    A('v_bfe_u32 v114, v1, 3, 1')
    A('v_mul_u32_u24 v114, 224, v114')
    A('v_add3_u32 v112, v112, v114, 64')
    A('s_mul_i32 s30, s20, 7')
    A('s_lshr_b32 s30, s30, 1')
    A('v_min_u32 v114, 4, v113')
    A('v_add_u32 v114, s30, v114')
    A('v_min_u32 v114, 27, v114')
    A('s_add_u32 s30, s24, 512')
    A('v_lshl_add_u32 v114, v114, 3, s30')
    A('v_cmp_le_u32 vcc, 48, v1')
    A('s_lshl_b32 s30, s24, 3')
    A('s_add_u32 s30, s30, s20')
    A('v_cndmask_b32 v112, v112, v114, vcc')
    A('v_mov_b32 v114, s30')
    A('v_cmp_le_u32 vcc, 56, v1')
    A('s_add_u32 s31, s20, 768')
    A('s_and_b32 s30, s22, 12')
    A('s_lshl_b32 s30, s30, 1')
    A('s_add_u32 s30, s30, s31')
    A('v_cndmask_b32 v112, v112, v114, vcc')
    for q4 in range(4):
        A(f'v_writelane_b32 v112, s30, {59 + q4}')
        A('s_add_u32 s30, s30, 32')
    A('v_writelane_b32 v112, s31, 63')
    A(f's_mov_b32 s30, {PFL}')
    A('s_mov_b32 s31, 0')
    A('v_lshlrev_b32 v112, 7, v112')
    A('s_bfe_u32 s32, s19, 0x3000c')
    A('s_lshl_b32 s32, s32, 3')
    A('s_lshl_b32 s33, s26, 2')
    A('s_add_u32 s32, s32, s33')
    A('v_and_b32 v114, 3, v1')
    A('v_add_u32 v114, s32, v114')
    A('v_lshlrev_b32 v114, 7, v114')
    A('buffer_load_dword v113, v112, s[8:11], s30 offen sc1')
    A('buffer_load_dword v115, v114, s[8:11], s30 offen sc1')


def pack_poll2(C, endlab):
    A = C.A
    A(f's_mov_b32 s30, {PFL}')
    A('s_mov_b32 s31, 0')
    A.label('pk_p')
    A('s_waitcnt vmcnt(0)')
    A('v_and_b32 v113, v113, v115')
    A('v_cmp_eq_u32 vcc, 1, v113')
    A('s_add_u32 s31, s31, 1')
    A('s_cmp_eq_u64 vcc, -1')
    A('s_cbranch_scc1 pk_pd')
    A('s_sleep 16')
    A('buffer_load_dword v113, v112, s[8:11], s30 offen sc1')
    A('buffer_load_dword v115, v114, s[8:11], s30 offen sc1')
    A(f's_cmp_lt_u32 s31, {1 << 19}')
    A('s_cbranch_scc1 pk_p')
    A(f's_branch {endlab}')
    A.label('pk_pd')
    C.vm = []


def layer_part(C, layer, end):
    A = C.A
    C.tag = f'l{layer}'
    last = layer == 1
    xin = None if layer == 0 else XC
    kvf = KVF if layer == 0 else KVF2
    kfl = KFL + layer * 64 * 128
    sy = 5 * layer + 1
    C.B = dict(QF=QF, OF=OF, XB=XB, SXB=SXB, HF=HF) if layer == 0 else dict(QF=QF2, OF=OF2, XB=XB2, SXB=SXB2, HF=HF2)
    B = C.B

    def pre_addr():
        gu_waddr(C)
        g3_waddr(C, (113, 114), 112, WDP)
        g4_waddr(C, 116, WOP)

    stubs = [lambda: (pre_addr(), gu_wload(C, 0))]
    stubs += [lambda ks=ks: gu_wload(C, ks) for ks in range(1, 24)]
    stubs += [lambda i=i: g4_wload(C, 116, i, 'res') for i in range(8)]
    if TOUCH2:
        def touch2():
            A('s_and_b32 s30, s18, 7')
            A('s_lshr_b32 s31, s30, 1')
            A('s_lshl_b32 s31, s31, 2')
            A('s_and_b32 s30, s30, 1')
            A('s_add_u32 s30, s30, s31')
            A('s_lshl_b32 s30, s30, 10')
            C.vmem('buffer_load_dwordx4 v[120:123], v116, s[8:11], s30 offen offset:2048', 'tc')
            if layer == 0:
                A(f's_add_u32 s30, s30, {WQKVP - WOP + (1 << 32) if WQKVP < WOP else WQKVP - WOP}')
                A('v_add_u32 v117, s30, v116')
                C.vmem('buffer_load_dwordx4 v[120:123], v117, s[8:11], 0 offen', 'tc')
                C.vmem('buffer_load_dwordx4 v[120:123], v117, s[8:11], 0 offen offset:2048', 'tc')
        stubs += [touch2]
    if TOUCH3 & 1:
        def t3a(k):
            if k == 0:
                A('s_and_b32 s30, s21, 1')
                A('s_lshl_b32 s30, s30, 12')
                A(f's_add_u32 s30, s30, {24 * KB}')
                A(f'v_add_u32 v118, s30, {v(V_WGU)}')
            C.vmem(f'buffer_load_dwordx4 v[120:123], v118, s[8:11], 0 offen offset:{k * 1024}', 'tc')
        stubs += [lambda k=k: t3a(k) for k in range(4)]
    if TOUCH3 & 2:
        def t3b(k):
            if k == 0:
                A('s_and_b32 s30, s21, 1')
                A(f's_mul_i32 s30, s30, {7 * KB}')
                A('s_cmp_eq_u32 s23, 0')
                A('s_cselect_b64 vcc, -1, 0')
                A('v_cndmask_b32 v119, v114, v113, vcc')
                A('v_add_u32 v119, s30, v119')
            so, im = soff(k)
            C.vmem(f'buffer_load_dwordx4 v[120:123], v119, s[8:11], {so} offen offset:{im}', 'tc')
        stubs += [lambda k=k: t3b(k) for k in range(7)]
    if TOUCH and layer == 1:
        def t_addr():
            A('s_lshr_b32 s30, s2, 3')
            A('s_lshl_b32 s30, s30, 3')
            A('s_add_u32 s30, s30, s20')
            A(f's_mul_i32 s31, s30, {7 * KB}')
            A(f's_add_u32 s31, s31, {WDP}')
            A('v_add_u32 v118, s31, v3')
            A('s_lshl_b32 s31, s30, 11')
            A(f's_add_u32 s31, s31, {WQKVP}')
            A('v_add_u32 v119, s31, v3')

        def tch(vr, k):
            so, im = soff(k)
            C.vmem(f'buffer_load_dwordx4 v[120:123], {v(vr)}, s[8:11], {so} offen offset:{im}', 'tc')
        stubs += [lambda: (t_addr(), tch(V_WGU, 24))]
        stubs += [lambda ks=ks: tch(V_WGU, ks) for ks in range(25, 32)]
        stubs += [lambda k=k: tch(118, k) for k in range(7)]
        if not last:
            stubs += [lambda k=k: tch(119, k) for k in range(2)]

    def need_wo():
        A('s_lshr_b32 s30, s20, 1')
        A('s_lshl_b32 s30, s30, 2')
        A('s_and_b32 s31, s22, 3')
        A('s_add_u32 s30, s30, s31')
        A('s_lshl_b32 s32, 1, s30')

    def need_gu():
        A('s_lshl_b32 s32, 0x5555, s29')
        A('s_cmp_eq_u32 s20, 7')
        A('s_cselect_b32 s32, 0xffff, s32')

    def need_dn():
        A('s_lshl_b32 s30, s20, 1')
        A('s_lshl_b32 s32, 3, s30')

    def need_qkv():
        A('s_lshl_b32 s30, s20, 1')
        A('s_add_u32 s30, s30, s23')
        A('s_lshl_b32 s32, 1, s30')

    if layer == 0:
        fixed = {PK_I: lambda: (wq_store(C), pack_issue(C)), PK_C: lambda: pack_convert(C), PK_F: lambda: pack_flag(C), PK_P - 3: lambda: pack_poll(C, end), PK_P: lambda: pack_poll2(C, end)}
        tail = att_phase(C, kvf, kfl, end, stubs, fixed, PK_P, pre_hook=lambda: pack_ptrs(A), loadq=False, early=True)
    else:
        tail = att_phase(C, kvf, kfl, end, stubs, pre_hook=lambda: A('s_load_dwordx2 s[12:13], s[0:1], 72'), loadq=False)
    C.stamp()
    if not WO_LATE:
        A('s_nop 1')
        for i in range(8, 16):
            g4_wload(C, 116, i, 'res')
    g4_pre(C, 'res', B['OF'], resbase=xin)
    handoff(C, sy + 0, end, need_wo)
    C.stamp()
    g4_main(C, 'res', outbase=B['XB'], sxout=B['SXB'], hook_red=lambda k: gu_wload(C, 24 + k))
    C.stamp()
    gu2_pre(C)
    handoff(C, sy + 1, end, need_gu)
    C.stamp()
    gu2_main(C, sy + 2, end)
    C.stamp()
    if last:
        dn_main(C, 'out', sy - 1, end, B['XB'])
        C.stamp()
    else:
        dn_main(C, 'res', sy - 1, end, B['XB'], outbase=XC, sxout=SXC, hook_red=lambda: qkv4_wrest(C))
        C.stamp()
        g4_pre(C, 'qkv', XC, resbase=SXC)
        g4_waddr(C, 64, WQKVP)
        handoff(C, sy + 3, end, need_qkv)
        C.stamp()
        g4_main(C, 'qkv', kvf=KVF2, kfl=KFL + 64 * 128, endlab=end)
        C.stamp()
    return tail


def build():
    A = Asm()
    name = NAME + '_kernel'
    C = Ctx(A, 'pr')
    C.qf = QF
    end = 'k_end'
    kernel_begin(A, name)
    pre_part(C, end)
    t0 = layer_part(C, 0, end)
    t1 = layer_part(C, 1, end)
    A('s_add_u32 s30, s2, s20')
    A('s_cmp_lg_u32 s30, 0')
    A('s_cbranch_scc1 k_fin')
    A('s_load_dwordx2 s[4:5], s[0:1], 80')
    A('s_mov_b32 s6, 256')
    A('v_mov_b32 v2, 0')
    A('s_mov_b64 exec, 1')
    A('s_waitcnt lgkmcnt(0)')
    A('buffer_store_dword v2, v2, s[4:7], 0 offen sc0 sc1')
    A('s_mov_b64 exec, -1')
    A.label('k_fin')
    if DBGD:
        A('s_cmp_lg_u32 s2, 77')
        A('s_cbranch_scc1 k_fin2')
        A('s_cmp_lg_u32 s20, 1')
        A('s_cbranch_scc1 k_fin2')
        A('s_load_dwordx2 s[4:5], s[0:1], 80')
        A('s_memrealtime s[60:61]')
        A('s_mov_b32 s6, 256')
        A('v_mov_b32 v2, 0')
        A('s_mov_b64 exec, 1')
        A('s_waitcnt lgkmcnt(0)')
        sel = [int(x) for x in DBGD.split()]
        for k, i in enumerate(sel + [-1]):
            A(f's_sub_u32 s30, {s(64 + i) if i >= 0 else "s60"}, s64')
            A('v_mov_b32 v4, s30')
            A(f'buffer_store_dword v4, v2, s[4:7], 0 offen offset:{4 + 4 * k}')
        A('s_mov_b64 exec, -1')
        A.label('k_fin2')
    stamp_end(C, 1)
    A.label(end)
    A('s_endpgm')
    t0(True)
    t1(False)
    body = A.text()
    probs = lint(body)
    for p in probs:
        print('LINT:', p, file=sys.stderr)
    head = f"; @launch grid=(256,1,1) block=(512,1,1) lds={LDS_BYTES}\n"
    head += """; Two (MQA attention + bilinear GLU) layers in ONE persistent launch, 256 workgroups x 8 waves, one per CU.
; Phases per layer: QKV -> attention -> Wo(+res) -> gate/up -> down(+res).  16 workgroups own 128 rows.
"""
    head += '.amdgcn_target "amdgcn-amd-amdhsa--gfx950"\n.text\n'
    tail = '.section .rodata,"a"\n.p2align 6\n' + descriptor(name, 256, 0, nsgpr=100)
    print('stamps:', C.nstamp, file=sys.stderr)
    return head + body + tail


if __name__ == '__main__':
    if 'stamp' in sys.argv:
        STAMP = True
    for arg in sys.argv[2:]:
        if '=' in arg:
            k, val = arg.split('=')
            globals()[k] = int(val) if val.lstrip('-').isdigit() else val.replace('_', ' ')
    out = sys.argv[1] if len(sys.argv) > 1 else f'cdna_kernels/{NAME}.s'
    open(out, 'w').write(build())
    print('wrote', out)
```

```python
import sys
import math
import struct
from asmlib import Asm, v, a, s, lint
import gen as G1
from gen import f32, kernel_begin, descriptor, ws_srd, KB

NAME = G1.NAME
WQKVP, WOP, WGUP, WDP, CSQKV, CSGU = G1.WQKVP, G1.WOP, G1.WGUP, G1.WDP, G1.CSQKV, G1.CSGU
KVF, XA, XB, QF, OF, HF = G1.KVF, G1.XA, G1.XB, G1.QF, G1.OF, G1.HF
WS_SIZE, QSCALE = G1.WS_SIZE, G1.QSCALE
KVG = 2048
KVT = 2128
VBS = 512
XC = G1.WS_END
KVF2 = XC + 2048 * KB
FLG = KVF2 + 144 * KB
SXA = FLG + 64 * KB
SXB = SXA + 512 * KB
SXC = SXB + 512 * KB
CSP = SXC + 512 * KB
PFL = CSP + 128 * KB
KFL = PFL + 112 * KB
QF2 = KFL + 16 * KB
OF2 = QF2 + 2048 * KB
XB2 = OF2 + 2048 * KB
SXB2 = XB2 + 2048 * KB
HF2 = SXB2 + 512 * KB
WS_END = HF2 + 64 * 112 * KB
STAMPS = G1.STAMPS

STAMP = False
WT = ' sc0 sc1'
LDS_BYTES = 160 * KB
FINE = 0
WQT = 0
KVLOC = 0
OWT = ''
FR2 = 0
ZEARLY = 1
HACKW = 0
W7OFF = 1
PSLEEP = 0
GU_D = 20
F1BAR = 1
F2BAR = 1
GU_XB = 0
PRIME_LATE = 2
GU_PO = 0
GU_PRIO = 1
GU_SF1 = 6
DN_PI = 4
DN_AR = 0
TCHK = 2
TB2 = 6
DPT = 4
TPFEND = 8
TP2 = 28
TP1 = 46
TP0 = 58
ONEWAIT = 1
INLINE = 0
ATT_NB = 4
TOUCH3 = 0
PRIOV = 0
DBGD = ''
ATT_B2 = 2
WO_L0 = 3
WROT = 1
GU_TAIL = 1
ATT_R0 = 4
EXPT = 0
TLBW = 0
KV_SLEEP = 2
QKV_PER = 1
WO_TAIL = 16
SLO = 0
QWT = ' sc0 sc1'
GU16 = 0
GU_NOW = 0
GU_WD0 = 3
GU_BARS = {4: 1, 8: 2, 12: 7, 24: 7}
PK_I = 6
PK_C = 18
PK_F = 22
PK_P = 36
RT = 0
TOUCH = 0
TOUCH2 = 1
WO_LATE = 0
ATT_UN = 4
ATT_PFEND = 1
G3_PR4 = 7
G3_PR14 = 6
G2_ST8 = [2, 2, 2, 2]
G2_ST28 = [2, 2, 4, 4, 4, 4, 4, 4]
G2_PRE8 = 4
G2_PRE28 = 6


class Ctx:
    def __init__(self, A, tag):
        self.A = A
        self.tag = tag
        self.vm = []
        self.lds = []
        self.nlab = 0
        self.nstamp = 1

    def lab(self, base):
        self.nlab += 1
        return f'{self.tag}_{base}{self.nlab}'

    def vmem(self, text, tag):
        self.A(text)
        self.vm.append(tag)
        assert len(self.vm) <= 63, 'vmcnt overflow'

    def wait(self, tag, extra=''):
        idx = [i for i, t in enumerate(self.vm) if t == tag]
        if not idx:
            if extra:
                self.A(f's_waitcnt {extra}')
            return
        n = len(self.vm) - 1 - idx[-1]
        self.A(f's_waitcnt vmcnt({n}) {extra}'.strip())
        self.vm = self.vm[idx[-1] + 1:]

    def ds(self, text, tag):
        self.A(text)
        self.lds.append(tag)
        assert len(self.lds) <= 15, 'lgkmcnt overflow'

    def dwait(self, tag):
        idx = [i for i, t in enumerate(self.lds) if t == tag]
        if idx:
            self.A(f's_waitcnt lgkmcnt({len(self.lds) - 1 - idx[-1]})')
            self.lds = self.lds[idx[-1] + 1:]

    def stamp(self):
        if STAMP:
            i = self.nstamp - SLO
            self.nstamp += 1
            if i < 1 or i >= 28:
                return
            A = self.A
            A('s_waitcnt lgkmcnt(0)')
            A('s_memrealtime s[60:61]' if RT else 's_memtime s[60:61]')
            A('s_waitcnt lgkmcnt(0)')
            A(f's_mov_b32 {s(64 + i)}, s60')


def stamp_begin(C):
    if STAMP:
        A = C.A
        A('s_memrealtime s[62:63]')
        A('s_memtime s[60:61]')
        for i in range(1, 30):
            A(f's_mov_b32 {s(64 + i)}, 0')
        A('s_waitcnt lgkmcnt(0)')
        A('s_mov_b32 s64, s62' if RT else 's_mov_b32 s64, s60')
        A('s_mov_b32 s95, s62')


def stamp_end(C, kidx):
    if STAMP:
        A = C.A
        A('s_waitcnt vmcnt(0) lgkmcnt(0)')
        A('s_memtime s[60:61]')
        A('s_memrealtime s[62:63]')
        A('s_waitcnt lgkmcnt(0)')
        A('s_mov_b32 s93, s62' if RT else 's_mov_b32 s93, s60')
        A('s_mov_b32 s94, s62')
        A('s_mov_b64 exec, 1')
        A('s_lshl_b32 s60, s2, 10')
        A('s_lshl_b32 s61, s20, 7')
        A('s_add_u32 s60, s60, s61')
        A(f's_add_u32 s60, s60, {STAMPS + kidx * (1 << 20)}')
        A('v_mov_b32 v0, 0')
        for i in range(32):
            A(f'v_mov_b32 v1, {s(64 + i)}')
            A(f'buffer_store_dword v1, v0, s[8:11], s60 offen offset:{i * 4}')
        A('s_waitcnt vmcnt(0)')


def setup(C, need_out, endlab):
    A = C.A
    A('s_cmp_ge_u32 s2, 256')
    A(f's_cbranch_scc1 {endlab}')
    stamp_begin(C)
    ws_srd(A, 8)
    if need_out:
        A('s_load_dwordx2 s[12:13], s[0:1], 72')
        A(f's_mov_b32 s14, {2048 * 512 * 2}')
        A('s_mov_b32 s15, 0x20000')
    A('v_and_b32 v1, 63, v0')
    A('v_lshrrev_b32 v2, 6, v0')
    A('v_lshlrev_b32 v3, 4, v1')
    A('v_readfirstlane_b32 s20, v2')
    A('s_and_b32 s21, s2, 7')
    A('s_lshl_b32 s21, s21, 1')
    A('s_bfe_u32 s22, s2, 0x10003')
    A('s_add_u32 s21, s21, s22')
    A('s_lshr_b32 s22, s2, 4')
    A('s_and_b32 s23, s22, 1')
    A('s_lshr_b32 s24, s22, 1')
    A('s_and_b32 s25, s20, 3')
    A('s_lshr_b32 s26, s20, 2')
    A('s_lshl_b32 s27, s21, 2')
    A('s_add_u32 s27, s27, s23')
    A('s_lshl_b32 s28, s24, 1')
    A('s_bfe_u32 s30, s20, 0x10001')
    A('s_add_u32 s28, s28, s30')
    A('s_and_b32 s29, s20, 1')
    A('s_lshl_b32 s30, s29, 1')
    A('s_add_u32 s30, s30, s27')
    A('s_lshl_b32 s49, s30, 15')
    A('s_lshl_b32 s31, s28, 11')
    A('s_add_u32 s49, s49, s31')
    A('s_lshl_b32 s31, s26, 10')
    A('s_add_u32 s49, s49, s31')
    for g in range(1, 8):
        A(f's_mov_b32 {s(40 + g)}, {g * 4096}')
    A('s_waitcnt lgkmcnt(0)')


def soff(i):
    return ('0' if i // 4 == 0 else s(40 + i // 4)), (i % 4) * 1024


def handoff(C, sync, endlab, need, kvflag=None, first=False):
    A = C.A
    l1, l2, ld = C.lab('pa'), C.lab('pb'), C.lab('pd')
    need()
    A('s_mov_b32 s33, 0')
    A('v_lshlrev_b32 v0, 2, v1')
    A('s_lshl_b32 s30, s21, 8')
    A(f's_add_u32 s30, s30, {FLG + sync * 4096}')
    A('s_lshl_b32 s34, s22, 2')
    A('s_add_u32 s34, s34, s30')
    A('v_mov_b32 v4, 1')
    if first:
        lz, lzd = C.lab('z'), C.lab('zd')
        A('s_cmp_lg_u32 s20, 0')
        A(f's_cbranch_scc1 {lzd}')
        A('s_mov_b32 s31, 0')
        A('s_mov_b64 exec, 1')
        A.label(lz)
        A('buffer_load_dword v2, v0, s[4:7], 0 offen sc0 sc1')
        A('s_waitcnt vmcnt(0)')
        A('v_cmp_le_u32 vcc, 16, v2')
        A('s_add_u32 s31, s31, 1')
        A('s_cmp_eq_u64 vcc, 1')
        A(f's_cbranch_scc1 {lzd}')
        A('s_sleep 8')
        A(f's_cmp_lt_u32 s31, {1 << 20}')
        A(f's_cbranch_scc1 {lz}')
        A(f's_branch {endlab}')
        A.label(lzd)
        A('s_mov_b64 exec, -1')
    if kvflag is not None:
        A('s_waitcnt vmcnt(0) lgkmcnt(0)')
        C.vm = []
    else:
        C.wait('st', 'lgkmcnt(0)')
    A('s_cmp_lg_u32 s20, 0')
    A('s_barrier')
    l, lb, lb2 = C.lab('sig'), C.lab('sb'), C.lab('sc')
    A(f's_cbranch_scc1 {l}')
    A('s_mov_b64 exec, 1')
    if kvflag is not None:
        lk = C.lab('kf')
        A('s_cmp_ge_u32 s24, 2')
        A(f's_cbranch_scc1 {lk}')
        A('s_add_u32 s31, s27, s24')
        A('s_lshl_b32 s31, s31, 7')
        A(f's_add_u32 s31, s31, {kvflag}')
        A('s_mov_b64 exec, 15')
        A('buffer_store_dword v4, v0, s[8:11], s31 offen sc0 sc1')
        A('s_mov_b64 exec, 1')
        A.label(lk)
    A('buffer_store_dword v4, v0, s[8:11], s34 offen')
    A.label(l)
    A('s_mov_b32 s31, 0')
    A('s_mov_b64 exec, s[32:33]')
    A.label(l1)
    A('buffer_load_dword v2, v0, s[8:11], s30 offen sc1')
    A('s_add_u32 s31, s31, 1')
    A('s_waitcnt vmcnt(0)')
    A('v_cmp_ne_u32 vcc, 0, v2')
    A('s_cmp_eq_u64 vcc, s[32:33]')
    A(f's_cbranch_scc1 {ld}')
    if PSLEEP:
        A(f's_sleep {PSLEEP}')
    A('s_cmp_lt_u32 s31, 64')
    A(f's_cbranch_scc1 {l1}')
    A('s_mov_b64 exec, 1')
    A('buffer_store_dword v4, v0, s[8:11], s34 offen offset:128 sc0 sc1')
    A('s_mov_b64 exec, s[32:33]')
    A.label(l2)
    A('buffer_load_dword v2, v0, s[8:11], s30 offen sc1')
    A('s_waitcnt vmcnt(0)')
    A('v_cmp_ne_u32 s[36:37], 0, v2')
    A('buffer_load_dword v2, v0, s[8:11], s30 offen offset:128 sc0 sc1')
    A('s_waitcnt vmcnt(0)')
    A('v_cmp_ne_u32 vcc, 0, v2')
    A('s_add_u32 s31, s31, 1')
    A('s_or_b64 vcc, vcc, s[36:37]')
    A('s_cmp_eq_u64 vcc, s[32:33]')
    A(f's_cbranch_scc1 {ld}')
    A('s_sleep 4')
    A(f's_cmp_lt_u32 s31, {1 << 20}')
    A(f's_cbranch_scc1 {l2}')
    A(f's_branch {endlab}')
    A.label(ld)
    A('s_mov_b64 exec, -1')
    C.vm = []
    C.flagb = True


def flag_b(C):
    if getattr(C, 'flagb', False):
        A = C.A
        l = C.lab('fb')
        A('s_cmp_lg_u32 s20, 0')
        A(f's_cbranch_scc1 {l}')
        A('s_mov_b64 exec, 1')
        A('buffer_store_dword v4, v0, s[8:11], s34 offen offset:128 sc0 sc1')
        A('s_mov_b64 exec, -1')
        A.label(l)
        C.flagb = False


ACCB, ACCA = 16, 48
KVW, KACC, QSX = 160, 176, 240
KVRED, STAT, CSX, CSK = 112 * KB, 144 * KB, 148 * KB, 152 * KB


def blk_stats(C, P, T):
    A = C.A
    A(f'v_mov_b32 {v(T + 4)}, 0x3f803f80')
    A(f'v_dot2_f32_bf16 {v(T + 1)}, {v(P)}, {v(P)}, 0')
    A(f'v_dot2_f32_bf16 {v(T)}, {v(P)}, {v(T + 4)}, 0')
    for m in range(1, 4):
        A(f'v_dot2_f32_bf16 {v(T + 1)}, {v(P + m)}, {v(P + m)}, {v(T + 1)}')
        A(f'v_dot2_f32_bf16 {v(T)}, {v(P + m)}, {v(T + 4)}, {v(T)}')
    A('s_nop 2')
    A(f'v_mov_b32 {v(T + 2)}, {v(T)}')
    A(f'v_mov_b32 {v(T + 3)}, {v(T + 1)}')
    A('s_nop 1')
    A(f'v_permlane32_swap_b32 {v(T)}, {v(T + 2)}')
    A(f'v_permlane32_swap_b32 {v(T + 1)}, {v(T + 3)}')
    A(f'v_add_f32 {v(T)}, {v(T)}, {v(T + 2)}')
    A(f'v_add_f32 {v(T + 1)}, {v(T + 1)}, {v(T + 3)}')


def g3_waddr(C, vregs, KS, wbase):
    A = C.A
    NS = KS // 8
    A('s_lshl_b32 s30, s26, 8')
    A(f'v_xor_b32 {v(vregs[0])}, s30, v3')
    A(f's_mul_i32 s31, s20, {NS * KB}')
    A(f's_add_u32 s31, s31, {wbase}')
    A('s_xor_b32 s30, s28, 1')
    A(f's_mul_i32 s30, s30, {KS * KB}')
    A('s_add_u32 s30, s30, s31')
    A(f'v_add_u32 {v(vregs[1])}, s30, {v(vregs[0])}')
    A(f's_mul_i32 s30, s28, {KS * KB}')
    A('s_add_u32 s30, s30, s31')
    A(f'v_add_u32 {v(vregs[0])}, s30, {v(vregs[0])}')


def g3_wload(C, vregs, idx, wreg0, tag='w'):
    st, jj = idx // 2, idx % 2
    so, im = soff(st)
    C.vmem(f'buffer_load_dwordx4 {v(wreg0 + 4 * idx, 4)}, {v(vregs[jj])}, s[8:11], {so} offen offset:{im}', tag)


def g3_ex(mode, KS):
    return 252 if KS == 112 else (112 if mode == 'qkv' else 116)


def g3_pre(C, mode, KS, xbase, resbase=None, raw=False):
    A = C.A
    NS = KS // 8
    EX = g3_ex(mode, KS)
    A(f's_mul_i32 s31, s20, {NS * KB}')
    A(f's_add_u32 s31, s31, {xbase}')
    A('s_add_u32 s30, s27, s29')
    A(f's_mul_i32 s32, s30, {KS * KB}')
    A('s_add_u32 s32, s32, s31')
    A('v_add_u32 v6, s32, v3')
    A('s_xor_b32 s30, s30, 1')
    A(f's_mul_i32 s32, s30, {KS * KB}')
    A('s_add_u32 s32, s32, s31')
    A('v_add_u32 v5, s32, v3')
    A('s_lshl_b32 s30, s20, 11')
    A('v_add_u32 v8, s30, v3')
    A('v_add_u32 v7, 0x10000, v8')
    for b in range(1, 8):
        A(f's_xor_b32 s30, s20, {b}')
        A('s_lshl_b32 s30, s30, 11')
        A(f's_add_u32 s30, s30, {(b - 1) * 16 * KB}')
        A(f'v_add_u32 {v(8 + b)}, s30, v3')
    if raw:
        return
    if mode == 'qkv':
        A('v_lshrrev_b32 v2, 5, v1')
        A('v_lshlrev_b32 v4, 4, v2')
        A('s_lshl_b32 s31, s28, 7')
        A('s_lshl_b32 s30, s26, 6')
        A('s_add_u32 s31, s31, s30')
        A(f's_add_u32 s31, s31, {CSQKV}')
        C.vmem(f'buffer_load_dwordx4 {v(EX, 4)}, v4, s[8:11], s31 offen', 'ex')
        C.vmem(f'buffer_load_dwordx4 {v(EX + 4, 4)}, v4, s[8:11], s31 offen offset:32', 'ex')
        A('s_bfe_u32 s30, s20, 0x10001')
        A('s_lshl_b32 s30, s30, 6')
        A('s_lshl_b32 s31, s26, 5')
        A('s_add_u32 s30, s30, s31')
        A(f's_add_u32 s31, s30, {CSQKV + 2048}')
        C.vmem(f'buffer_load_dwordx4 {v(EX + 8, 4)}, v4, s[8:11], s31 offen', 'ex')
        A(f'v_and_b32 {v(QSX + 8)}, 31, v1')
        A(f'v_lshlrev_b32 {v(QSX + 8)}, 3, {v(QSX + 8)}')
        A(f'v_lshl_add_u32 {v(QSX + 8)}, v2, 13, {v(QSX + 8)}')
        A('s_lshl_b32 s30, s27, 13')
        A('s_lshl_b32 s31, s20, 10')
        A('s_add_u32 s30, s30, s31')
        A(f's_add_u32 s30, s30, {resbase}')
        A(f'v_add_u32 {v(QSX + 8)}, s30, {v(QSX + 8)}')
    elif resbase is None:
        A('v_and_b32 v2, 31, v1')
        A('v_lshlrev_b32 v2, 10, v2')
        A('v_lshrrev_b32 v4, 5, v1')
        A('v_lshl_add_u32 v2, v4, 3, v2')
        A('s_add_u32 s30, s27, s29')
        A('s_lshl_b32 s30, s30, 15')
        A('s_lshl_b32 s31, s28, 6')
        A('s_add_u32 s30, s30, s31')
        A('s_lshl_b32 s31, s26, 5')
        A('s_add_u32 s30, s30, s31')
        C.vmem(f'buffer_load_dwordx2 {v(EX, 2)}, v2, s[12:15], s30 offen', 'ex')
        C.vmem(f'buffer_load_dwordx2 {v(EX + 2, 2)}, v2, s[12:15], s30 offen offset:16', 'ex')
    else:
        A(f's_add_u32 s31, s49, {resbase}')
        C.vmem(f'buffer_load_dwordx4 {v(EX, 4)}, v3, s[8:11], s31 offen', 'ex')


def g3_main(C, mode, KS, wreg0, outbase=None, kvf=None, after_store=None, sxout=None, hook_b=None, raw=False, hook_red=None):
    A = C.A
    NS = KS // 8
    EX = g3_ex(mode, KS)
    if NS == 4:
        xreg = {(hh, st): 80 + (hh * 4 + st) * 4 for hh in range(2) for st in range(4)}
    else:
        slot = [80 + 4 * k for k in range(12)] + [240, 244]
        xreg = {(hh, st): slot[st] for hh in range(2) for st in range(NS)}

    def xload(hh, st):
        so, im = soff(st)
        C.vmem(f'buffer_load_dwordx4 {v(xreg[hh, st], 4)}, {v(5 + hh)}, s[8:11], {so} offen offset:{im}', f'x{hh}_{st}')

    seq = [(hh, st) for hh in range(2) for st in range(NS)]
    PR = G3_PR4 if NS == 4 else G3_PR14
    if raw:
        seq, PR = [], 0
    for x in seq[:PR]:
        xload(*x)
    nxt = PR
    C.wait('w')

    def wr(b):
        base = (ACCA if b & 1 else ACCB) + ((b >> 1) & 1) * 16 + (b >> 2) * 8
        return [f'ds_write_b128 {v(8 + b)}, {v(base + h2 * 4, 4)} offset:{h2 * 1024}' for h2 in range(2)]

    pend = []
    for hh in range(2):
        acc = ACCA if hh == 0 else ACCB
        for st in range(NS):
            C.wait(f'x{hh}_{st}')
            if hh == 0 and st == 0:
                C.stamp()
            for jj in range(2):
                c = '0' if st == 0 else v(acc + jj * 16, 16)
                A(f'v_mfma_f32_32x32x16_bf16 {v(acc + jj * 16, 16)}, {v(wreg0 + 4 * (2 * st + jj), 4)}, {v(xreg[hh, st], 4)}, {c}')
                if hh == 1 and (st >= 3 or (NS == 4 and st >= 2)):
                    for _ in range(2 if NS == 4 else 1):
                        if pend:
                            A(pend.pop(0))
            if nxt < len(seq):
                xload(*seq[nxt])
                nxt += 1
                if nxt == len(seq):
                    if mode == 'qkv':
                        for e in range(4):
                            C.vmem(f'buffer_load_dwordx2 {v(QSX + 2 * e, 2)}, {v(QSX + 8)}, s[8:11], 0 offen offset:{e * 256}', 'sx')
                    flag_b(C)
                    hb = 0
            elif hook_b:
                hb += 1
            if hook_b and nxt == len(seq):
                hook_b(hb, PR)
            if hh == 1 and NS == 4 and st == 1:
                A('s_nop 7' if raw else 's_nop 5')
            if hh == 1 and NS != 4 and st == 2:
                A('s_nop 2')
        if hh == 0:
            pend = wr(1) + wr(5) + wr(3) + wr(7)
    assert not pend
    C.stamp()
    lkv = C.lab('nokv')
    if mode == 'qkv':
        la, lb = C.lab('ka'), C.lab('kb')
        A('s_cmp_ge_u32 s24, 2')
        A(f's_cbranch_scc1 {lb}')
        A('s_cmp_eq_u32 s24, s29')
        A(f's_cbranch_scc0 {la}')
        for hh in (1, 0):
            for st in range(4):
                c = '0' if st == 0 else v(KACC, 16)
                A(f'v_mfma_f32_32x32x16_bf16 {v(KACC, 16)}, {v(KVW + 4 * st, 4)}, {v(xreg[hh, st], 4)}, {c}')
            if hh == 1:
                A(f's_branch {lb}')
                A.label(la)
        A.label(lb)
        A('v_lshlrev_b32 v4, 3, v1')
        if not raw:
            C.wait('sx')
            for e in range(4):
                A(f'v_add_f32 {v(QSX + e)}, {v(QSX + e)}, {v(QSX + 4 + e)}')
            for e in range(2):
                A(f'v_add_f32 {v(QSX + e)}, {v(QSX + e)}, {v(QSX + 2 + e)}')
            A('s_lshl_b32 s30, s20, 9')
            A(f's_add_u32 s30, s30, {STAT}')
            A('v_add_u32 v2, s30, v4')
            A(f'ds_write_b64 v2, {v(QSX, 2)}')
        else:
            A('v_lshrrev_b32 v112, 5, v1')
            A('v_lshlrev_b32 v112, 4, v112')
            A('s_and_b32 s30, s28, 1')
            A('s_lshl_b32 s30, s30, 7')
            A('s_lshl_b32 s31, s26, 6')
            A('s_add_u32 s30, s30, s31')
            A(f's_add_u32 s30, s30, {CSK}')
            A('v_add_u32 v113, s30, v112')
            A('s_nop 3')
        A('v_and_b32 v4, 0xf8, v4')
        A('s_lshl_b32 s30, s29, 8')
        A(f's_add_u32 s30, s30, {STAT}')
        A('v_add_u32 v4, s30, v4')
    else:
        A('s_nop 10')
    for b in (4, 2, 6):
        for x in wr(b):
            A(x)
    if mode == 'qkv':
        A('s_cmp_ge_u32 s24, 2')
        A(f's_cbranch_scc1 {lkv}')
        A(f'v_add_u32 v2, {KVRED}, v8')
        for k4 in range(4):
            A(f'ds_write_b128 v2, {v(KACC + k4 * 4, 4)} offset:{(k4 >> 1) * 16 * KB + (k4 & 1) * 1024}')
        A.label(lkv)
    if hook_red:
        hook_red()
    A('s_waitcnt lgkmcnt(0)')
    A('s_barrier')
    for b in range(1, 8):
        for h2 in range(2):
            base, off = ('v8', (b - 1) * 16 * KB) if b <= 4 else ('v7', (b - 5) * 16 * KB)
            A(f'ds_read_b128 {v(ACCB + b * 8 + h2 * 4, 4)}, {base} offset:{off + h2 * 1024}')
    T = 80

    def red(base, waits):
        for stp in (32, 16, 8):
            for r in range(stp):
                A(f'v_add_f32 {v(base + r)}, {v(base + r)}, {v(base + stp + r)}')
    if mode == 'qkv':
        A('s_waitcnt lgkmcnt(6)')
        for ww in range(8):
            A(f'ds_read_b64 {v(T + ww * 2, 2)}, v4 offset:{ww * 512}')
        A('s_waitcnt lgkmcnt(8)')
        if raw:
            EX = 192
            for h2 in range(2):
                A(f'ds_read_b128 {v(EX + h2 * 4, 4)}, v113 offset:{h2 * 32}')
    else:
        C.wait('ex')
        for m in range(4):
            A(f'v_lshlrev_b32 {v(T + 2 * m)}, 16, {v(EX + m)}')
            A(f'v_and_b32 {v(T + 2 * m + 1)}, 0xffff0000, {v(EX + m)}')
        for r in range(8):
            A(f'v_add_f32 {v(ACCB + r)}, {v(ACCB + r)}, {v(T + r)}')
        A('s_waitcnt lgkmcnt(0)')
    red(ACCB, None)
    P = ACCB + 8
    if mode == 'qkv':
        A('s_waitcnt lgkmcnt(0)')
        for stp in (8, 4, 2):
            for e in range(stp):
                A(f'v_add_f32 {v(T + e)}, {v(T + e)}, {v(T + e + stp)}')
        A(f'v_mul_f32 {v(T)}, {f32(1.0 / 512)}, {v(T)}')
        A(f'v_mul_f32 {v(T + 1)}, {f32(1.0 / 512)}, {v(T + 1)}')
        A(f'v_fma_f32 {v(T + 1)}, -{v(T)}, {v(T)}, {v(T + 1)}')
        A(f'v_max_f32 {v(T + 1)}, 0, {v(T + 1)}')
        A(f'v_add_f32 {v(T + 1)}, {f32(1e-5)}, {v(T + 1)}')
        A(f'v_rsq_f32 {v(T + 1)}, {v(T + 1)}')
        C.wait('ex')
        for r in range(8):
            A(f'v_fma_f32 {v(ACCB + r)}, -{v(T)}, {v(EX + r)}, {v(ACCB + r)}')
        A(f'v_mul_f32 {v(T + 2)}, {f32(QSCALE)}, {v(T + 1)}')
        for r in range(8):
            A(f'v_mul_f32 {v(ACCB + r)}, {v(T + 2)}, {v(ACCB + r)}')
        for m in range(4):
            A(f'v_cvt_pk_bf16_f32 {v(P + m)}, {v(ACCB + 2 * m)}, {v(ACCB + 2 * m + 1)}')
        A(f's_add_u32 s31, s49, {C.qf}')
        C.vmem(f'buffer_store_dwordx4 {v(P, 4)}, v3, s[8:11], s31 offen{QWT}', 'st')
        le, lv = C.lab('ke'), C.lab('v')
        A('s_cmp_lg_u32 s29, s24')
        A(f's_cbranch_scc1 {le}')
        A('s_bfe_u32 s34, s20, 0x10001')
        A('s_lshl_b32 s30, s34, 14')
        A('s_lshl_b32 s31, s26, 10')
        A('s_add_u32 s30, s30, s31')
        A(f's_add_u32 s30, s30, {KVRED}')
        A('v_add_u32 v4, s30, v3')
        KR = 208
        for ww in range(8):
            A(f'ds_read_b128 {v(KR + ww * 4, 4)}, v4 offset:{ww * 2048}')
        KX = EX + 8
        if raw:
            A('s_lshl_b32 s30, s34, 6')
            A('s_lshl_b32 s31, s26, 5')
            A('s_add_u32 s30, s30, s31')
            A(f's_add_u32 s30, s30, {CSK + 256}')
            A('v_add_u32 v113, s30, v112')
            A(f'ds_read_b128 {v(KX, 4)}, v113')
        A('s_add_u32 s30, s27, s29')
        A(f's_mul_i32 s30, s30, {KVG}')
        A(f's_add_u32 s30, s30, {kvf}')
        A('v_bfe_u32 v4, v1, 4, 1')
        A(f'v_mul_u32_u24 v4, {VBS}, v4')
        A('v_bfe_u32 v5, v1, 2, 1')
        A('v_lshl_add_u32 v4, v5, 8, v4')
        A('v_and_b32 v5, 3, v1')
        A('v_lshl_add_u32 v4, v5, 1, v4')
        A('v_bfe_u32 v5, v1, 3, 1')
        A('v_lshl_add_u32 v4, v5, 3, v4')
        A('v_lshrrev_b32 v5, 5, v1')
        A('v_lshl_add_u32 v4, v5, 6, v4')
        A('s_waitcnt lgkmcnt(0)')
        for stp in (16, 8, 4):
            for r in range(stp):
                A(f'v_add_f32 {v(KR + r)}, {v(KR + r)}, {v(KR + stp + r)}')
        for r in range(4):
            A(f'v_fma_f32 {v(KR + r)}, -{v(T)}, {v(KX + r)}, {v(KR + r)}')
        for r in range(4):
            A(f'v_mul_f32 {v(KR + r)}, {v(T + 1)}, {v(KR + r)}')
        KP = KR + 8
        for m in range(2):
            A(f'v_cvt_pk_bf16_f32 {v(KP + m)}, {v(KR + 2 * m)}, {v(KR + 2 * m + 1)}')
        A('s_cmp_lg_u32 s34, 0')
        A(f's_cbranch_scc1 {lv}')
        A('s_lshl_b32 s31, s26, 3')
        A('s_add_u32 s31, s31, s30')
        A(f'buffer_store_dwordx2 {v(KP, 2)}, v3, s[8:11], s31 offen{QWT}')
        A(f's_branch {le}')
        A.label(lv)
        A('s_lshl_b32 s31, s26, 7')
        A('s_add_u32 s31, s31, s30')
        for r in range(4):
            op = 'buffer_store_short' if r % 2 == 0 else 'buffer_store_short_d16_hi'
            A(f'{op} {v(KP + r // 2)}, v4, s[8:11], s31 offen offset:{1024 + r * 16}{QWT}')
        A.label(le)
    else:
        for m in range(4):
            A(f'v_cvt_pk_bf16_f32 {v(P + m)}, {v(ACCB + 2 * m)}, {v(ACCB + 2 * m + 1)}')
        if mode == 'res':
            A(f's_add_u32 s31, s49, {outbase}')
            C.vmem(f'buffer_store_dwordx4 {v(P, 4)}, v3, s[8:11], s31 offen{WT}', 'st')
            blk_stats(C, P, T)
            A('s_lshr_b32 s31, s49, 2')
            A(f's_add_u32 s31, s31, {sxout}')
            A('v_lshlrev_b32 v4, 3, v1')
            A('s_mov_b32 exec_hi, 0')
            C.vmem(f'buffer_store_dwordx2 {v(T, 2)}, v4, s[8:11], s31 offen{WT}', 'st')
            A('s_mov_b64 exec, -1')
            if after_store:
                after_store()
        else:
            A('v_and_b32 v4, 31, v1')
            A('v_lshlrev_b32 v4, 10, v4')
            A('v_lshrrev_b32 v5, 5, v1')
            A('v_lshl_add_u32 v4, v5, 4, v4')
            A('s_add_u32 s30, s27, s29')
            A('s_lshl_b32 s30, s30, 15')
            A('s_lshl_b32 s31, s28, 6')
            A('s_add_u32 s30, s30, s31')
            A('s_lshl_b32 s31, s26, 5')
            A('s_add_u32 s30, s30, s31')
            A(f'v_permlane32_swap_b32 {v(P)}, {v(P + 2)}')
            A(f'v_permlane32_swap_b32 {v(P + 1)}, {v(P + 3)}')
            C.vmem(f'buffer_store_dwordx4 {v(P, 4)}, v4, s[12:15], s30 offen{OWT}', 'st')


def qkv_wstep(C, st, n=1):
    A = C.A
    if st == 0:
        g3_waddr(C, (5, 6), 32, WQKVP)
    per = -(-8 // n)
    for i in range(st * per, min(8, (st + 1) * per)):
        g3_wload(C, (5, 6), i, 128)
    if st == n:
        A('s_lshl_b32 s30, s20, 12')
        A(f's_add_u32 s30, s30, {WQKVP + 16 * 32 * KB}')
        l = C.lab('kw')
        A('s_cmp_ge_u32 s24, 2')
        A(f's_cbranch_scc1 {l}')
        for k in range(4):
            A(f'buffer_load_dwordx4 {v(KVW + 4 * k, 4)}, v3, s[8:11], s30 offen offset:{k * 1024}')
        A.label(l)


def qkv_wloads(C):
    qkv_wstep(C, 0)
    qkv_wstep(C, 1)


KVR4, XF0, ST4, RED4 = 0, 36 * KB, 68 * KB, 80 * KB
G4_ORD = [0, 1, 4, 5, 8, 9, 12, 13, 2, 3, 6, 7, 10, 11, 14, 15]


def g4_ids(C):
    A = C.A
    A('s_and_b32 s18, s22, 3')
    A('s_lshl_b32 s30, s21, 2')
    A('s_add_u32 s18, s18, s30')
    A('s_and_b32 s30, s22, 12')
    A('s_add_u32 s30, s30, s25')
    A('s_lshl_b32 s30, s30, 1')
    A('s_add_u32 s30, s30, s26')
    A('s_lshl_b32 s19, s18, 5')
    A('s_add_u32 s19, s19, s30')
    A('s_lshl_b32 s19, s19, 10')
    A('s_lshr_b32 s3, s22, 2')
    A('s_and_b32 s30, s21, 3')
    A('s_xor_b32 s3, s3, s30')


def g4_waddr(C, vreg, wbase):
    A = C.A
    A('s_lshl_b32 s30, s26, 8')
    A(f'v_xor_b32 {v(vreg)}, s30, v3')
    A('s_and_b32 s30, s19, 0x7fff')
    A('s_lshl_b32 s30, s30, 4')
    A(f's_add_u32 s30, s30, {wbase}')
    A(f'v_add_u32 {v(vreg)}, s30, {v(vreg)}')


def g4_wreg(mode, i):
    if mode == 'qkv':
        return 128 + 4 * i
    return 224 + 4 * i if i < 8 else 64 + 4 * (i - 8)


def g4_wload(C, vreg, i, mode):
    so, im = soff(G4_ORD[i])
    C.vmem(f'buffer_load_dwordx4 {v(g4_wreg(mode, i), 4)}, {v(vreg)}, s[8:11], {so} offen offset:{im}', 'w')


def g4_pre(C, mode, xbase, resbase=None, raw=False):
    A = C.A
    EX = 96
    A('s_lshl_b32 s30, s18, 15')
    A('s_lshl_b32 s48, s20, 12')
    A('s_add_u32 s30, s30, s48')
    A(f's_add_u32 s30, s30, {xbase}')
    A('v_add_u32 v5, s30, v3')
    A('s_lshl_b32 s30, s26, 14')
    A(f's_add_u32 s30, s30, {XF0}')
    A('v_add_u32 v6, s30, v3')
    A(f'v_add_u32 v14, s48, v3')
    A(f's_add_u32 s48, s48, {XF0}')
    A('s_lshl_b32 s30, s20, 11')
    A(f's_add_u32 s30, s30, {RED4}')
    A('v_add_u32 v8, s30, v3')
    A('v_xor_b32 v7, 0x2000, v8')
    if mode == 'qkv':
        A('v_lshrrev_b32 v2, 5, v1')
        if not raw:
            A('v_lshlrev_b32 v4, 4, v2')
            A('s_and_b32 s31, s19, 0x7fff')
            A('s_lshr_b32 s31, s31, 4')
            A(f's_add_u32 s31, s31, {CSQKV}')
            C.vmem(f'buffer_load_dwordx4 {v(EX, 4)}, v4, s[8:11], s31 offen', 'ex')
            C.vmem(f'buffer_load_dwordx4 {v(EX + 4, 4)}, v4, s[8:11], s31 offen offset:32', 'ex')
            A('s_lshl_b32 s31, s25, 5')
            A(f's_add_u32 s31, s31, {CSQKV + 2048}')
            C.vmem(f'buffer_load_dwordx4 {v(EX + 8, 4)}, v4, s[8:11], s31 offen', 'ex')
        A('v_and_b32 v9, 31, v1')
        A('v_lshlrev_b32 v9, 3, v9')
        A(f'v_add_u32 v11, {ST4}, v9')
        A('s_lshl_b32 s30, s20, 8')
        A('v_add_u32 v10, s30, v11')
        A('v_lshl_add_u32 v9, v2, 9, v9')
        A('s_lshl_b32 s30, s18, 13')
        A('s_lshl_b32 s31, s20, 10')
        A('s_add_u32 s30, s30, s31')
        A(f's_add_u32 s30, s30, {resbase}')
        A('v_add_u32 v9, s30, v9')
        A('v_add_u32 v12, s48, v3')
        A('s_lshl_b32 s30, s25, 10')
        A(f's_add_u32 s30, s30, {KVR4}')
        A('v_add_u32 v13, s30, v3')
        A('v_bfe_u32 v15, v1, 4, 1')
        A('v_lshlrev_b32 v15, 9, v15')
        A('v_bfe_u32 v4, v1, 2, 1')
        A('v_lshl_add_u32 v15, v4, 8, v15')
        A('v_and_b32 v4, 3, v1')
        A('v_lshl_add_u32 v15, v4, 1, v15')
        A('v_bfe_u32 v4, v1, 3, 1')
        A('v_lshl_add_u32 v15, v4, 3, v15')
        A('v_lshl_add_u32 v15, v2, 6, v15')
    elif resbase is None:
        A('v_and_b32 v2, 31, v1')
        A('v_lshlrev_b32 v2, 10, v2')
        A('v_lshrrev_b32 v4, 5, v1')
        A('v_lshl_add_u32 v2, v4, 3, v2')
        A('s_lshl_b32 s30, s18, 15')
        A('s_and_b32 s31, s19, 0x7fff')
        A('s_lshr_b32 s31, s31, 5')
        A('s_add_u32 s30, s30, s31')
        C.vmem(f'buffer_load_dwordx2 {v(EX, 2)}, v2, s[12:15], s30 offen', 'ex')
        C.vmem(f'buffer_load_dwordx2 {v(EX + 2, 2)}, v2, s[12:15], s30 offen offset:16', 'ex')
    else:
        A(f's_add_u32 s31, s19, {resbase}')
        C.vmem(f'buffer_load_dwordx4 {v(EX, 4)}, v3, s[8:11], s31 offen', 'ex')


def ln_stats(A, T):
    for stp in (8, 4, 2):
        for e in range(stp):
            A(f'v_add_f32 {v(T + e)}, {v(T + e)}, {v(T + e + stp)}')
    A(f'v_mul_f32 {v(T)}, {f32(1.0 / 512)}, {v(T)}')
    A(f'v_mul_f32 {v(T + 1)}, {f32(1.0 / 512)}, {v(T + 1)}')
    A(f'v_fma_f32 {v(T + 1)}, -{v(T)}, {v(T)}, {v(T + 1)}')
    A(f'v_max_f32 {v(T + 1)}, 0, {v(T + 1)}')
    A(f'v_add_f32 {v(T + 1)}, {f32(1e-5)}, {v(T + 1)}')
    A(f'v_rsq_f32 {v(T + 1)}, {v(T + 1)}')


def g4_main(C, mode, outbase=None, sxout=None, kvf=None, kfl=None, hook_red=None, raw=None, endlab=None):
    A = C.A
    ACC, XR, EX = 16, 32, 96
    KW, KA, KR, T = 192, 208, 224, 108
    if not raw:
        A('s_mov_b32 m0, s48')
        A('s_nop 0')
        for k in range(4):
            C.vmem(f'buffer_load_dwordx4 v5, s[8:11], 0 offen offset:{k * 1024} lds', f'x{k}')

    def rd(i):
        A(f'ds_read_b128 {v(XR + 4 * (i % 8), 4)}, v6 offset:{G4_ORD[i] * 1024}')

    def mf(i):
        c = '0' if i == 0 else v(ACC, 16)
        A(f'v_mfma_f32_32x32x16_bf16 {v(ACC, 16)}, {v(g4_wreg(mode, i), 4)}, {v(XR + 4 * (i % 8), 4)}, {c}')

    def wq_loads():
        for i in range(16):
            so, im = soff(G4_ORD[i])
            A(f'buffer_load_dwordx4 {v(128 + 4 * i, 4)}, v64, s[8:11], {so} offen offset:{im}')

    if mode == 'qkv':
        A('s_add_u32 s35, s3, s26')
        if raw:
            raw['front']()
        else:
            for e in range(2):
                C.vmem(f'buffer_load_dwordx2 {v(T + 2 * e, 2)}, v9, s[8:11], 0 offen offset:{e * 256}', 'sx')
            l1, l2 = C.lab('w1'), C.lab('w2')
            A('s_cmp_eq_u32 s3, 0')
            A(f's_cbranch_scc1 {l1}')
            flag_b(C)
            wq_loads()
            A('s_waitcnt vmcnt(16)')
            A(f's_branch {l2}')
            A.label(l1)
            A('s_waitcnt vmcnt(0)')
            A.label(l2)
            C.vm = []
            C.stamp()
        lk = C.lab('k4')
        A('s_cmp_lg_u32 s3, 0')
        A(f's_cbranch_scc1 {lk}')
        if raw:
            raw['kvw']()
        else:
            for k in range(4):
                A(f'ds_read_b128 {v(KR + 4 * k, 4)}, v12 offset:{k * 1024}')
        for k in range(4):
            if not raw:
                A(f's_waitcnt lgkmcnt({3 - k})')
            A(f'v_mfma_f32_32x32x16_bf16 {v(KA, 16)}, {v(KW + 4 * k, 4)}, {v(KR + 4 * k, 4)}, {"0" if k == 0 else v(KA, 16)}')
        A.label(lk)
        if raw:
            raw['front2']()
        A(f'v_add_f32 {v(T)}, {v(T)}, {v(T + 2)}')
        A(f'v_add_f32 {v(T + 1)}, {v(T + 1)}, {v(T + 3)}')
        A(f'v_mov_b32 {v(T + 2)}, {v(T)}')
        A(f'v_mov_b32 {v(T + 3)}, {v(T + 1)}')
        A('s_nop 1')
        swap_add(A, T, T + 2)
        swap_add(A, T + 1, T + 3)
        A(f'ds_write_b64 v10, {v(T, 2)}')
        A(f'v_mov_b32 {v(T + 2)}, 0')
        A(f'v_mov_b32 v9, {ST4 + 8192}')
        A(f'ds_write_b32 v9, {v(T + 2)}')
        lk = C.lab('k5')
        A('s_cmp_lg_u32 s3, 0')
        A(f's_cbranch_scc1 {lk}')
        for k in range(4):
            A(f'ds_write_b128 v14, {v(KA + 4 * k, 4)} offset:{k * 1024}')
        A.label(lk)
        if raw and FR2:
            raw['wloads'](FR2, 16)
        A('s_waitcnt lgkmcnt(0)')
        A('s_barrier')
        for ww in range(8):
            A(f'ds_read_b64 {v(T + 2 * ww, 2)}, v11 offset:{ww * 256}')
        lv, le, lf = C.lab('v6'), C.lab('e6'), C.lab('f6')
        A('s_cmp_lg_u32 s35, 0')
        A(f's_cbranch_scc1 {le}')
        A('s_setprio 3')
        if FINE == 3:
            C.stamp()
        A('s_waitcnt lgkmcnt(4)')
        for ww in range(8):
            A(f'ds_read_b128 {v(KR + 4 * ww, 4)}, v13 offset:{ww * 4096}')
        A('s_waitcnt lgkmcnt(8)')
        for r in range(16):
            A(f'v_mov_b32 {v(KA + r)}, {v(T + r)}')
        ln_stats(A, KA)
        A('s_lshl_b32 s30, s18, 11')
        A(f's_add_u32 s30, s30, {kvf}')
        A('s_waitcnt lgkmcnt(0)')
        if raw:
            raw['kvcs0']()
        for stp in (16, 8, 4):
            for r in range(stp):
                A(f'v_add_f32 {v(KR + r)}, {v(KR + r)}, {v(KR + stp + r)}')
        if raw:
            raw['kvcs1']()
        for r in range(4):
            A(f'v_fma_f32 {v(KR + r)}, -{v(KA)}, {v(EX + 8 + r)}, {v(KR + r)}')
        for r in range(4):
            A(f'v_mul_f32 {v(KR + r)}, {v(KA + 1)}, {v(KR + r)}')
        for m in range(2):
            A(f'v_cvt_pk_bf16_f32 {v(KR + 8 + m)}, {v(KR + 2 * m)}, {v(KR + 2 * m + 1)}')
        A('s_cmp_ge_u32 s20, 2')
        A(f's_cbranch_scc1 {lv}')
        A('s_lshl_b32 s31, s20, 3')
        A('s_add_u32 s31, s31, s30')
        A(f'buffer_store_dwordx2 {v(KR + 8, 2)}, v3, s[8:11], s31 offen sc0 sc1')
        A(f's_branch {lf}')
        A.label(lv)
        A('s_lshl_b32 s31, s29, 10')
        A(f's_add_u32 s31, s31, {ST4 + 4096}')
        A('v_add_u32 v15, s31, v15')
        for r in range(4):
            op = 'ds_write_b16' if r % 2 == 0 else 'ds_write_b16_d16_hi'
            A(f'{op} v15, {v(KR + 8 + r // 2)} offset:{r * 16}')
        A('v_lshrrev_b32 v2, 3, v1')
        A('v_lshlrev_b32 v2, 8, v2')
        A(f'v_and_b32 {v(KR)}, 7, v1')
        A(f'v_lshl_add_u32 v2, {v(KR)}, 4, v2')
        A('v_add_u32 v15, s31, v2')
        A('s_mov_b32 exec_hi, 0')
        A(f'ds_read_b128 {v(KR + 12, 4)}, v15')
        A('s_lshl_b32 s31, s29, 7')
        A('s_add_u32 s31, s31, s30')
        A('s_waitcnt lgkmcnt(0)')
        A(f'buffer_store_dwordx4 {v(KR + 12, 4)}, v2, s[8:11], s31 offen offset:1024 sc0 sc1')
        A('s_mov_b64 exec, -1')
        A.label(lf)
        lg = C.lab('g6')
        if FINE == 3:
            C.stamp()
        A('s_lshl_b32 s30, s18, 7')
        A(f's_add_u32 s30, s30, {kfl}')
        if raw:
            raw['zchk']()
        A('s_mov_b64 exec, 1')
        A('s_waitcnt vmcnt(0)')
        A('ds_add_rtn_u32 v2, v9, v4')
        A('s_waitcnt lgkmcnt(0)')
        A('v_cmp_eq_u32 vcc, 3, v2')
        A('s_cbranch_vccz ' + lg)
        if KVLOC:
            A('s_lshl_b32 s31, s21, 8')
            A('s_and_b32 s32, s22, 3')
            A('s_lshl_b32 s32, s32, 2')
            A('s_add_u32 s31, s31, s32')
            A(f's_add_u32 s31, s31, {FLG + (9 if raw else 10) * 4096}')
            A('buffer_store_dword v4, v0, s[8:11], s31 offen')
        A('buffer_store_dword v4, v0, s[8:11], s30 offen sc0 sc1')
        A.label(lg)
        A('s_mov_b64 exec, -1')
        A('s_setprio 0')
        if FINE == 3:
            C.stamp()
        A.label(le)
        flag_b(C)
        A('s_waitcnt lgkmcnt(0)')
        if raw:
            raw['wprep']()
        else:
            l3 = C.lab('w3')
            A('s_cmp_lg_u32 s3, 0')
            A(f's_cbranch_scc1 {l3}')
            C.flagb = True
            flag_b(C)
            wq_loads()
            A.label(l3)
        if raw:
            raw['loop'](rd, mf)
        else:
            for i in range(8):
                rd(i)
            ln_stats(A, T)
            for i in range(16):
                A(f's_waitcnt lgkmcnt({7 if i < 8 else 15 - i}) vmcnt({15 - i})')
                mf(i)
                if i < 8:
                    rd(i + 8)
    else:
        def wl(i):
            so, im = soff(G4_ORD[i])
            C.vmem(f'buffer_load_dwordx4 {v(g4_wreg(mode, i), 4)}, v116, s[8:11], {so} offen offset:{im}', f'w{i}')
        if WO_LATE:
            for i in range(8, 8 + WO_L0):
                wl(i)
        C.wait('x1')
        A('s_barrier')
        C.stamp()
        for i in range(8):
            rd(i)
        if WO_LATE:
            for i in range(8 + WO_L0, 16):
                wl(i)
        for i in range(4):
            A(f's_waitcnt lgkmcnt({7 - i})')
            mf(i)
        C.wait('x3')
        A('s_barrier')
        for i in range(8, 12):
            rd(i)
        for i in range(4, 8):
            A('s_waitcnt lgkmcnt(7)')
            mf(i)
            rd(i + 8)
        flag_b(C)
        for i in range(8, 16):
            C.wait(f'w{i}', f'lgkmcnt({15 - i})')
            mf(i)
            if hook_red and i >= 8:
                hook_red(i - 8)
    C.stamp()
    if mode == 'qkv':
        kv_setup(C, kvf, kfl, 9 if raw else 10)
        A(f'v_mul_f32 {v(T + 2)}, {f32(QSCALE)}, {v(T + 1)}')
        if raw:
            raw['cs0']()
    else:
        C.wait('ex')
        TT = XR
        for m in range(4):
            A(f'v_lshlrev_b32 {v(TT + 2 * m)}, 16, {v(EX + m)}')
            A(f'v_and_b32 {v(TT + 2 * m + 1)}, 0xffff0000, {v(EX + m)}')
        A('s_nop 3')
    for h2 in range(2):
        A(f'ds_write_b128 v7, {v(ACC + 8 + 4 * h2, 4)} offset:{h2 * 1024}')
    if mode == 'qkv':
        if not raw:
            for r in range(8):
                A(f'v_fma_f32 {v(ACC + r)}, -{v(T)}, {v(EX + r)}, {v(ACC + r)}')
    else:
        for r in range(8):
            A(f'v_add_f32 {v(ACC + r)}, {v(ACC + r)}, {v(XR + r)}')
    A('s_waitcnt lgkmcnt(0)')
    A('s_barrier')
    for h2 in range(2):
        A(f'ds_read_b128 {v(ACC + 8 + 4 * h2, 4)}, v8 offset:{h2 * 1024}')
    if mode == 'qkv':
        if FINE == 3:
            C.stamp()
        kv_wait(C, 1, endlab)
        if FINE == 3:
            C.stamp()
        att_kvdma(C, 0)
        kv_flagload(C)
    if raw:
        raw['cs']()
        for r in range(8):
            A(f'v_fma_f32 {v(ACC + r)}, -{v(T)}, {v(EX + r)}, {v(ACC + r)}')
    A('s_waitcnt lgkmcnt(0)')
    for r in range(8):
        A(f'v_add_f32 {v(ACC + r)}, {v(ACC + r)}, {v(ACC + 8 + r)}')
    if mode == 'qkv':
        for r in range(8):
            A(f'v_mul_f32 {v(ACC + r)}, {v(T + 2)}, {v(ACC + r)}')
        for m in range(4):
            A(f'v_cvt_pk_bf16_f32 {v(124 + m)}, {v(ACC + 2 * m)}, {v(ACC + 2 * m + 1)}')
        A('s_barrier')
    else:
        P = ACC + 8
        for m in range(4):
            A(f'v_cvt_pk_bf16_f32 {v(P + m)}, {v(ACC + 2 * m)}, {v(ACC + 2 * m + 1)}')
        A(f's_add_u32 s31, s19, {outbase}')
        C.vmem(f'buffer_store_dwordx4 {v(P, 4)}, v3, s[8:11], s31 offen{WT}', 'st')
        blk_stats(C, P, XR)
        A('s_lshr_b32 s31, s19, 2')
        A(f's_add_u32 s31, s31, {sxout}')
        A('v_lshlrev_b32 v4, 3, v1')
        A('s_mov_b32 exec_hi, 0')
        C.vmem(f'buffer_store_dwordx2 {v(XR, 2)}, v4, s[8:11], s31 offen{WT}', 'st')
        A('s_mov_b64 exec, -1')


def qkv4_wstep(C, st, n):
    pass


def qkv4_wrest(C):
    A = C.A
    l = C.lab('kw')
    A('s_lshl_b32 s30, s20, 12')
    A(f's_add_u32 s30, s30, {WQKVP + 16 * 32 * KB}')
    A('s_cmp_lg_u32 s3, 0')
    A(f's_cbranch_scc1 {l}')
    for k in range(4):
        A(f'buffer_load_dwordx4 {v(192 + 4 * k, 4)}, v3, s[8:11], s30 offen offset:{k * 1024}')
    A.label(l)


def att_kvdma(C, r):
    A = C.A
    A(f's_add_u32 s30, s39, {r * 16384}')
    A('s_and_b32 s30, s30, 0x1ffff')
    A(f's_add_u32 m0, s37, {r * 8 * KVT}')
    A('s_add_u32 s30, s30, s38')
    A('buffer_load_dwordx4 v3, s[8:11], s30 offen lds')
    A('buffer_load_dwordx4 v3, s[8:11], s30 offen offset:1024 lds')


def kv_flagload(C):
    A = C.A
    A('s_mov_b64 exec, 0x1ff' if KVLOC else 's_mov_b64 exec, 0xff')
    A('buffer_load_dword v2, v0, s[8:11], s33 offen sc1')
    A('s_mov_b64 exec, -1')


def kv_setup(C, kvf, kfl, lsync):
    A = C.A
    A(f's_mul_i32 s37, s20, {KVT}')
    A('s_lshl_b32 s38, s20, 11')
    A(f's_add_u32 s38, s38, {kvf}')
    A('s_lshr_b32 s30, s21, 1')
    A('s_lshl_b32 s39, s30, 14')
    A('v_add_u32 v0, s30, v1')
    A('v_and_b32 v0, 7, v0')
    A('v_lshlrev_b32 v0, 10, v0')
    A('s_lshl_b32 s33, s20, 7')
    A(f's_add_u32 s33, s33, {kfl}')
    if KVLOC:
        A('s_lshl_b32 s30, s30, 9')
        A('s_lshl_b32 s31, s26, 8')
        A('s_add_u32 s30, s30, s31')
        A('s_lshl_b32 s31, s25, 2')
        A('s_add_u32 s30, s30, s31')
        A(f's_add_u32 s30, s30, {FLG + lsync * 4096}')
        A('v_add_u32 v0, s33, v0')
        A('s_mov_b32 s33, 0')
        A('v_writelane_b32 v0, s30, 8')
    kv_flagload(C)


def kv_wait(C, mask, endlab):
    A = C.A
    lp, lpd = C.lab('kp'), C.lab('kpd')
    anyof = KVLOC and mask == 1
    A('s_mov_b32 s31, 0')
    A('s_mov_b64 exec, 0x101' if anyof else 's_mov_b64 exec, 0xff')
    A.label(lp)
    A('s_add_u32 s31, s31, 1')
    A('s_waitcnt vmcnt(0)')
    A('v_cmp_ne_u32 vcc, 0, v2')
    if anyof:
        A('s_cmp_lg_u32 vcc_lo, 0')
    else:
        A(f's_and_b32 s30, vcc_lo, {mask}')
        A(f's_cmp_eq_u32 s30, {mask}')
    A(f's_cbranch_scc1 {lpd}')
    A(f's_sleep {KV_SLEEP}')
    A('buffer_load_dword v2, v0, s[8:11], s33 offen sc1')
    A(f's_cmp_lt_u32 s31, {1 << 21}')
    A(f's_cbranch_scc1 {lp}')
    A(f's_branch {endlab}')
    A.label(lpd)
    A('s_mov_b64 exec, -1')


def att_phase(C, kvf, kfl, endlab, stubs, fixed={}, pf0=None, pre_hook=None, loadq=True, early=False):
    A = C.A
    tg = C.tag
    Q, CN, S0, S1, O, P, KF, VF, VK, VV, T = 124, 8, 24, 40, 56, 72, 80, 88, 104, 105, 106
    VV1 = 111
    S = [S0, S1]
    A(f's_add_u32 s36, s19, {C.B["OF"]}')
    if loadq:
        A(f's_add_u32 s31, s19, {C.B["QF"]}')
        C.vmem(f'buffer_load_dwordx4 {v(Q, 4)}, v3, s[8:11], s31 offen', 'q')
        flag_b(C)
    def kvdma(r):
        att_kvdma(C, r)
    if pre_hook:
        pre_hook()
    A(f'v_mov_b32 {v(VK)}, v3')
    A(f'v_and_b32 {v(T)}, 15, v1')
    A(f'v_lshrrev_b32 {v(T + 1)}, 5, v1')
    A(f'v_lshl_add_u32 {v(T)}, {v(T + 1)}, 4, {v(T)}')
    A(f'v_lshlrev_b32 {v(T)}, 4, {v(T)}')
    A(f'v_add_u32 {v(VV)}, 1024, {v(T)}')
    A(f'v_add_u32 {v(VV1)}, 1536, {v(T)}')
    A(f'v_and_b32 {v(T + 1)}, 31, v1')
    A(f'v_cmp_eq_u32 vcc, 16, {v(T + 1)}')
    A(f'v_mov_b32 {v(T + 2)}, 2048')
    A('s_nop 0')
    A(f'v_cndmask_b32 {v(VV)}, {v(VV)}, {v(T + 2)}, vcc')
    A(f'v_cndmask_b32 {v(VV1)}, {v(VV1)}, {v(T + 2)}, vcc')
    A(f'v_cmp_lt_u32 vcc, 16, {v(T + 1)}')
    A(f'v_mov_b32 {v(T + 2)}, 2064')
    A('s_nop 0')
    A(f'v_cndmask_b32 {v(VV)}, {v(VV)}, {v(T + 2)}, vcc')
    A(f'v_cndmask_b32 {v(VV1)}, {v(VV1)}, {v(T + 2)}, vcc')
    A(f'v_subrev_u32 {v(T + 1)}, 20, {v(T + 1)}')
    A(f'v_cmp_gt_u32 vcc, 8, {v(T + 1)}')
    A(f'v_mov_b32 {v(T + 2)}, 2112')
    A('s_nop 0')
    A(f'v_cndmask_b32 {v(VV)}, {v(VV)}, {v(T + 2)}, vcc')
    A(f'v_cndmask_b32 {v(VV1)}, {v(VV1)}, {v(T + 2)}, vcc')
    for r in range(16):
        A(f'v_mov_b32 {v(O + r)}, 0')
    for m in range(4, 8):
        A(f'v_mov_b32 {v(P + m)}, 0')
    for m in range(4):
        A(f'v_mov_b32 {v(VF + 12 + m)}, 0')
        A(f'v_mov_b32 {v(P + m)}, 0x3f803f80')
    A(f'v_mul_u32_u24 {v(T)}, {KVT}, v1')
    lcw = C.lab('cw')
    A('s_cmp_lg_u32 s20, 7')
    A(f's_cbranch_scc1 {lcw}')
    A(f'ds_write_b128 {v(T)}, {v(P, 4)} offset:2048')
    A(f'ds_write_b128 {v(T)}, {v(P + 4, 4)} offset:2064')
    A(f'ds_write_b128 {v(T)}, {v(P + 4, 4)} offset:2112')
    A.label(lcw)
    lnd = C.lab('nd')
    A('s_waitcnt vmcnt(0) lgkmcnt(0)')
    A('v_cmp_ne_u32 vcc, 0, v2')
    A('s_barrier')
    A('s_and_b32 s32, vcc_lo, 0xff')
    A('s_cmp_lg_u32 s32, 0xff')
    A(f's_cbranch_scc1 {lnd}')
    for r in range(1, 4):
        kvdma(r)
    A.label(lnd)
    C.vm = []
    C.stamp()

    def rdK(buf, t):
        A(f'ds_read_b128 {v(KF + buf * 4, 4)}, {v(VK)} offset:{t * KVT}')

    def rdV(buf, t):
        A(f'ds_read_b128 {v(VF + buf * 8, 4)}, {v(VV)} offset:{t * KVT}')
        A(f'ds_read_b128 {v(VF + buf * 8 + 4, 4)}, {v(VV1)} offset:{t * KVT}')

    rdK(0, 0)
    rdK(1, 1)
    rdV(0, 0)
    A('s_waitcnt lgkmcnt(3)')
    A(f'v_mfma_f32_32x32x16_bf16 {v(S0, 16)}, {v(KF, 4)}, {v(Q, 4)}, 0')
    A('s_nop 11')
    A(f'v_max3_f32 {v(T)}, {v(S0)}, {v(S0 + 1)}, {v(S0 + 2)}')
    for r in range(3, 15, 2):
        A(f'v_max3_f32 {v(T)}, {v(T)}, {v(S0 + r)}, {v(S0 + r + 1)}')
    A(f'v_max_f32 {v(T)}, {v(T)}, {v(S0 + 15)}')
    A(f'v_mov_b32 {v(T + 1)}, {v(T)}')
    A('s_nop 1')
    A(f'v_permlane32_swap_b32 {v(T)}, {v(T + 1)}')
    A(f'v_max_f32 {v(T)}, {v(T)}, {v(T + 1)}')
    for r in range(16):
        A(f'v_sub_f32 {v(CN + r)}, 0, {v(T)}')
    for r in range(16):
        A(f'v_sub_f32 {v(S0 + r)}, {v(S0 + r)}, {v(T)}')
    A('s_setprio 3')
    C.stamp()
    def tile(t, off, extra=None):
        cur, nxt = t & 1, (t + 1) & 1
        Sc, Sn = S[cur], S[nxt]
        if not ONEWAIT:
            A('s_waitcnt lgkmcnt(2)')
        A(f'v_mfma_f32_32x32x16_bf16 {v(Sn, 16)}, {v(KF + nxt * 4, 4)}, {v(Q, 4)}, {v(CN, 16)}')
        rdK(cur, off + 2)
        for r in range(6):
            A(f'v_exp_f32 {v(Sc + r)}, {v(Sc + r)}')
        A(f'v_mfma_f32_32x32x16_bf16 {v(O, 16)}, {v(VF + nxt * 8 + 4, 4)}, {v(P + 4, 4)}, {v(O, 16)}')
        if extra:
            extra()
        for r in range(6, 8):
            A(f'v_exp_f32 {v(Sc + r)}, {v(Sc + r)}')
        for m in range(4):
            A(f'v_cvt_pk_bf16_f32 {v(P + m)}, {v(Sc + 2 * m)}, {v(Sc + 2 * m + 1)}')
        A(f'v_exp_f32 {v(Sc + 8)}, {v(Sc + 8)}')
        A(f'v_exp_f32 {v(Sc + 9)}, {v(Sc + 9)}')
        A('s_waitcnt lgkmcnt(0)' if ONEWAIT else 's_waitcnt lgkmcnt(1)')
        A(f'v_mfma_f32_32x32x16_bf16 {v(O, 16)}, {v(VF + cur * 8, 4)}, {v(P, 4)}, {v(O, 16)}')
        rdV(nxt, off + 1)
        for r in range(10, 16):
            A(f'v_exp_f32 {v(Sc + r)}, {v(Sc + r)}')
        for m in range(4, 8):
            A(f'v_cvt_pk_bf16_f32 {v(P + m)}, {v(Sc + 2 * m)}, {v(Sc + 2 * m + 1)}')

    def bump(n):
        for rg in (VK, VV, VV1):
            A(f'v_add_u32 {v(rg)}, {n * KVT}, {v(rg)}')
    if ONEWAIT:
        A('s_waitcnt lgkmcnt(0)')
    queue = list(stubs)
    nq = len(queue)
    tpf0 = pf0 if pf0 else TB2
    ntl = 64 - TPFEND - tpf0
    prio = {TP2: 2, TP1: 1, TP0: 0}
    dq = list(range(4, 8))
    for t in range(64):
        if t == TCHK:
            ld = C.lab('dn')
            A('s_cmp_eq_u32 s32, 0xff')
            A(f's_cbranch_scc1 {ld}')
            kv_flagload(C)
            kv_wait(C, 0xff, endlab)
            for r in range(1, 4):
                kvdma(r)
            A.label(ld)
        if t == 6 and TB2 != 6:
            assert not dq
            A('s_waitcnt vmcnt(12)')
            A('s_barrier')
        if t == TB2:
            assert not dq
            A('s_waitcnt vmcnt(0)')
            A('s_barrier')
        if t in prio:
            A(f's_setprio {prio[t]}')
        if t in fixed:
            fixed[t]()
        fs = []
        if t >= TCHK:
            for _ in range(DPT):
                if dq:
                    fs.append(lambda r=dq.pop(0): kvdma(r))
        if t >= tpf0 and queue:
            k = t - tpf0
            n = (nq * (k + 1)) // ntl - (nq * k) // ntl
            fs += [queue.pop(0) for _ in range(min(n, len(queue)))]
        tile(t, t % 24 if t < 48 else t - 48, lambda fs=fs: [f() for f in fs])
        if t in (23, 47):
            bump(24)
        if t == 63:
            bump(16)
    assert not queue
    A(f'v_mfma_f32_32x32x16_bf16 {v(O, 16)}, {v(VF + 8 + 4, 4)}, {v(P + 4, 4)}, {v(O, 16)}')
    A('s_mov_b32 s39, 0')
    C.stamp()
    A('s_waitcnt lgkmcnt(0)')
    A('s_nop 10')
    A.label(f'{tg}_fin')
    A(f'v_mov_b32 {v(T)}, {v(O + 8)}')
    A(f'v_mov_b32 {v(T + 1)}, {v(O + 8)}')
    A(f'v_mul_f32 {v(T + 2)}, 0, {v(O)}')
    A(f'v_fma_f32 {v(T + 2)}, {v(O + 1)}, 0, {v(T + 2)}')
    A(f'v_permlane32_swap_b32 {v(T)}, {v(T + 1)}')
    for r in range(2, 8):
        A(f'v_fma_f32 {v(T + 2)}, {v(O + r)}, 0, {v(T + 2)}')
    A(f'v_add_f32 {v(T + 2)}, {v(T + 2)}, {v(T)}')
    A(f'v_mov_b32 {v(T + 3)}, {f32(2.0 ** 30)}')
    A(f'v_cmp_nle_f32 vcc, {v(T + 2)}, {v(T + 3)}')
    A(f'v_rcp_f32 {v(T)}, {v(T)}')
    A('s_cmp_eq_u32 s39, 99')
    A(f's_cbranch_scc1 {tg}_store')
    A(f's_cbranch_vccnz {tg}_slow')
    A.label(f'{tg}_store')
    for r in range(8):
        A(f'v_mul_f32 {v(O + r)}, {v(T)}, {v(O + r)}')
    for m in range(4):
        A(f'v_cvt_pk_bf16_f32 {v(P + m)}, {v(O + 2 * m)}, {v(O + 2 * m + 1)}')
    C.vmem(f'buffer_store_dwordx4 {v(P, 4)}, v3, s[8:11], s36 offen{WT}', 'st')

    def tail(with_body):
        A.label(f'{tg}_slow')
        A(f'v_subrev_u32 {v(VK)}, {64 * KVT}, {v(VK)}')
        A(f'v_subrev_u32 {v(VV)}, {64 * KVT}, {v(VV)}')
        A(f'v_subrev_u32 {v(VV1)}, {64 * KVT}, {v(VV1)}')
        for r in range(16):
            A(f'v_mov_b32 {v(O + r)}, 0')
        M = T + 4
        A(f'v_sub_f32 {v(M)}, 0, {v(CN)}')
        A.label(f'{tg}_sloop')
        rdK(0, 0)
        rdV(0, 0)
        A('s_waitcnt lgkmcnt(0)')
        A(f'v_mfma_f32_32x32x16_bf16 {v(S0, 16)}, {v(KF, 4)}, {v(Q, 4)}, 0')
        A('s_nop 11')
        A(f'v_max3_f32 {v(T)}, {v(S0)}, {v(S0 + 1)}, {v(S0 + 2)}')
        for r in range(3, 15, 2):
            A(f'v_max3_f32 {v(T)}, {v(T)}, {v(S0 + r)}, {v(S0 + r + 1)}')
        A(f'v_max3_f32 {v(T)}, {v(T)}, {v(S0 + 15)}, {v(M)}')
        A(f'v_mov_b32 {v(T + 1)}, {v(T)}')
        A('s_nop 1')
        A(f'v_permlane32_swap_b32 {v(T)}, {v(T + 1)}')
        A(f'v_max_f32 {v(T)}, {v(T)}, {v(T + 1)}')
        A(f'v_sub_f32 {v(T + 1)}, {v(M)}, {v(T)}')
        A(f'v_exp_f32 {v(T + 1)}, {v(T + 1)}')
        A(f'v_mov_b32 {v(M)}, {v(T)}')
        for r in range(16):
            A(f'v_sub_f32 {v(S0 + r)}, {v(S0 + r)}, {v(T)}')
        for r in range(16):
            A(f'v_exp_f32 {v(S0 + r)}, {v(S0 + r)}')
        for r in range(16):
            A(f'v_mul_f32 {v(O + r)}, {v(T + 1)}, {v(O + r)}')
        for m in range(8):
            A(f'v_cvt_pk_bf16_f32 {v(P + m)}, {v(S0 + 2 * m)}, {v(S0 + 2 * m + 1)}')
        A('s_nop 1')
        A(f'v_mfma_f32_32x32x16_bf16 {v(O, 16)}, {v(VF, 4)}, {v(P, 4)}, {v(O, 16)}')
        A(f'v_mfma_f32_32x32x16_bf16 {v(O, 16)}, {v(VF + 4, 4)}, {v(P + 4, 4)}, {v(O, 16)}')
        A(f'v_add_u32 {v(VK)}, {KVT}, {v(VK)}')
        A(f'v_add_u32 {v(VV)}, {KVT}, {v(VV)}')
        A(f'v_add_u32 {v(VV1)}, {KVT}, {v(VV1)}')
        A('s_nop 11')
        A('s_add_u32 s39, s39, 1')
        A('s_cmp_lt_u32 s39, 64')
        A(f's_cbranch_scc1 {tg}_sloop')
        A('s_mov_b32 s39, 99')
        A(f's_branch {tg}_fin')
    return tail


V_WGU = 112


def gu_waddr(C):
    A = C.A
    A('s_mul_i32 s30, s22, 7')
    A('s_min_u32 s31, s20, 6')
    A('s_add_u32 s40, s30, s31')
    A('s_lshl_b32 s30, s40, 15')
    A(f's_add_u32 s30, s30, {WGUP}')
    if W7OFF:
        A('s_cmp_eq_u32 s20, 7')
        A('s_cselect_b32 s30, 0x70000000, s30')
    A(f'v_add_u32 {v(V_WGU)}, s30, v3')


def gu_wload(C, ks):
    so, im = soff(ks)
    C.vmem(f'buffer_load_dwordx4 {v(128 + 4 * ks, 4)}, {v(V_WGU)}, s[8:11], {so} offen offset:{im}', 'wg')


def gu_pre(C):
    A = C.A
    CS = 112
    A('v_mov_b32 v15, v113')
    A('v_mov_b32 v9, v114')
    A(f'v_mov_b32 v14, {v(V_WGU)}')
    A('s_lshl_b32 s30, s21, 2')
    A('s_add_u32 s30, s30, s25')
    A('s_lshl_b32 s30, s30, 15')
    A('s_lshl_b32 s31, s26, 11')
    A('s_add_u32 s30, s30, s31')
    A(f's_add_u32 s30, s30, {C.B["XB"]}')
    A('v_add_u32 v13, s30, v3')
    A('s_lshl_b32 s48, s25, 15')
    A('s_add_u32 s48, s48, s31')
    A('v_add_u32 v7, 0x10000, v3')
    A('v_lshrrev_b32 v11, 5, v1')
    A('v_lshlrev_b32 v11, 4, v11')
    A('s_min_u32 s30, s20, 6')
    A('s_lshl_b32 s30, s30, 7')
    A(f's_add_u32 s30, s30, {132 * KB}')
    A('v_add_u32 v10, s30, v11')
    A('v_and_b32 v12, 31, v1')
    A('v_lshlrev_b32 v12, 3, v12')
    A('v_lshl_add_u32 v12, v11, 8, v12')
    A('s_lshl_b32 s30, s21, 15')
    A(f's_add_u32 s30, s30, {C.B["SXB"]}')
    A('v_add_u32 v12, s30, v12')
    A(f'v_add_u32 v8, {128 * KB}, v3')


def gu_main(C, after_store=None):
    A = C.A
    ACC, XF, CS = 16, 80, 112
    STR = [4, 10, 240, 244]

    def dma(c):
        A(f's_add_u32 m0, s48, {c * 4096}')
        so = '0' if c == 0 else s(40 + c)
        A('s_nop 0')
        for k in range(2):
            C.vmem(f'buffer_load_dwordx4 v13, s[8:11], {so} offen offset:{k * 1024} lds', f'x{c}')
    dma(0)
    dma(1)

    def rd(ks):
        buf = ks & 1
        for i in range(4):
            base = 'v3' if i < 2 else 'v7'
            A(f'ds_read_b128 {v(XF + buf * 16 + i * 4, 4)}, {base} offset:{(i & 1) * 32768 + ks * 1024}')

    def stats_load(i):
        for e in range(16):
            C.vmem(f'buffer_load_dwordx2 {v(ACC + (i & 1) * 32 + 2 * e, 2)}, v12, s[8:11], {"0" if i == 0 else s(40 + 2 * i)} offen offset:{e * 256}', f's{i}')

    def stats_sum(i):
        b = ACC + (i & 1) * 32
        C.wait(f's{i}')
        for stp in (16, 8, 4, 2):
            for e in range(stp):
                A(f'v_add_f32 {v(b + e)}, {v(b + e)}, {v(b + e + stp)}')
        A(f'v_mov_b32 {v(b + 2)}, {v(b)}')
        A(f'v_mov_b32 {v(b + 3)}, {v(b + 1)}')
        A('s_nop 1')
        A(f'v_permlane32_swap_b32 {v(b)}, {v(b + 2)}')
        A(f'v_permlane32_swap_b32 {v(b + 1)}, {v(b + 3)}')
        A(f'v_add_f32 {v(b)}, {v(b)}, {v(b + 2)}')
        A(f'v_add_f32 {v(b + 1)}, {v(b + 1)}, {v(b + 3)}')
        A(f'v_mul_f32 {v(b)}, {f32(-1.0 / 512)}, {v(b)}')
        A(f'v_mul_f32 {v(b + 1)}, {f32(1.0 / 512)}, {v(b + 1)}')
        A(f'v_fma_f32 {v(b + 1)}, -{v(b)}, {v(b)}, {v(b + 1)}')
        A(f'v_max_f32 {v(b + 1)}, 0, {v(b + 1)}')
        A(f'v_add_f32 {v(b + 1)}, {f32(1e-5)}, {v(b + 1)}')
        A(f'v_rcp_f32 {v(b + 2)}, {v(b + 1)}')
        A(f'v_mov_b32 {v(b + 1)}, {v(b)}')
        A(f'v_mov_b32 {v(b + 3)}, {v(b + 2)}')
        A(f'ds_write_b128 v8, {v(b, 4)} offset:{i * 1024}')
        A('s_waitcnt lgkmcnt(0)')

    def loop(idle):
        C.wait('x0')
        A('s_barrier')
        C.stamp()
        if not idle:
            rd(0)
        for ks in range(32):
            if ks + 1 < 32:
                if (ks + 1) in GU_BARS:
                    C.wait(f'x{GU_BARS[ks + 1]}')
                    A('s_barrier')
                if not idle:
                    rd(ks + 1)
                    if ks == 28:
                        for g in range(4):
                            A(f'ds_read_b128 {v(CS + g * 4, 4)}, v10 offset:{g * 32}')
                        A('s_waitcnt lgkmcnt(8)')
                    elif ks == 30:
                        for i in range(4):
                            A(f'ds_read_b128 {v(STR[i], 4)}, v8 offset:{i * 1024}')
                        A('s_waitcnt lgkmcnt(8)')
                    else:
                        A('s_waitcnt lgkmcnt(4)')
            elif not idle:
                A('s_waitcnt lgkmcnt(0)')
            buf = ks & 1
            todo = []
            if ks == 10:
                C.flagb = True
                flag_b(C)
            if ks < 6:
                todo.append(lambda: dma(ks + 2))
            if ks == 16 + WO_TAIL and not idle:
                C.wait('wg')
            if 6 <= ks < 6 + 16 - WO_TAIL and not idle:
                k2 = 16 + WO_TAIL + ks - 6
                so, im = soff(k2)
                todo.append(lambda k2=k2, so=so, im=im: C.vmem(f'buffer_load_dwordx4 {v(128 + 4 * k2, 4)}, v14, s[8:11], {so} offen offset:{im}', 'wg'))
            if ks >= GU_WD0:
                nleft = 28 - len(wdone)
                for st in [st for st in range(28) if st < ks and st not in wdone][:(2 if nleft > 31 - ks else 1)]:
                    todo.append(lambda st=st: g3_wload(C, (15, 9), st, 128))
                    wdone.add(st)
            for i in range(4):
                if not idle and not (GU_TAIL and (ks == 31 or (ks == 30 and i >= 2))):
                    c = '0' if ks == 0 else v(ACC + i * 16, 16)
                    if GU16:
                        for t2 in range(2):
                            aa = ACC + i * 16 + ((ks & 1) * 2 + t2) * 4
                            A(f'v_mfma_f32_16x16x32_bf16 {v(aa, 4)}, {v(128 + 4 * (ks ^ t2 if ks > 1 else ks), 4)}, {v(XF + buf * 16 + i * 4, 4)}, {"0" if ks < 2 else v(aa, 4)}')
                    else:
                        A(f'v_mfma_f32_32x32x16_bf16 {v(ACC + i * 16, 16)}, {v(128 + 4 * ks, 4)}, {v(XF + buf * 16 + i * 4, 4)}, {c}')
                if i < 3 and todo:
                    f_ = todo.pop(0)
                    if not (GU_NOW and ks >= 6):
                        f_()
            if idle:
                if ks == 6:
                    stats_load(0)
                    stats_load(1)
                if ks == 8:
                    stats_sum(0)
                    stats_load(2)
                    stats_sum(1)
                    stats_load(3)
                if ks == 12:
                    stats_sum(2)
                    stats_sum(3)
                    A(f's_mul_i32 s30, s22, {7 * 128}')
                    A(f's_add_u32 s30, s30, {CSP}')
                    for kp in range(8):
                        C.vmem(f'buffer_load_dwordx4 {v(ACC + 4 * kp, 4)}, v3, s[8:11], s30 offen', 'cp')
                        if kp < 7:
                            A(f's_add_u32 s30, s30, {3584 * 4}')
                if ks == 16:
                    C.wait('cp')
                    for stp in (16, 8, 4):
                        for e in range(stp):
                            A(f'v_add_f32 {v(ACC + e)}, {v(ACC + e)}, {v(ACC + e + stp)}')
                    A(f'v_add_u32 v10, {132 * KB}, v3')
                    A(f'ds_write_b128 v10, {v(ACC, 4)}')
                    A('s_waitcnt lgkmcnt(0)')
        assert len(wdone) == 28
        C.stamp()
        if idle:
            if after_store:
                after_store()
            return
        P = XF

        def epi(i):
            acc = ACC + i * 16
            for r in range(0, 16, 2):
                A(f'v_pk_fma_f32 {v(acc + r, 2)}, {v(STR[i], 2)}, {v(CS + r, 2)}, {v(acc + r, 2)}')
            for r in range(0, 8, 2):
                A(f'v_pk_mul_f32 {v(acc + r, 2)}, {v(acc + r, 2)}, {v(acc + 8 + r, 2)}')
            for r in range(0, 8, 2):
                A(f'v_pk_mul_f32 {v(acc + r, 2)}, {v(acc + r, 2)}, {v(STR[i] + 2, 2)}')
            pp = acc + 8
            for m in range(4):
                A(f'v_cvt_pk_bf16_f32 {v(pp + m)}, {v(acc + 2 * m)}, {v(acc + 2 * m + 1)}')
            C.vmem(f'buffer_store_dwordx4 {v(pp, 4)}, v3, s[8:11], s30 offen{WT}', 'st')
            if i < 3:
                A(f's_add_u32 s30, s30, {112 * KB}')

        def mm(i, ks):
            A(f'v_mfma_f32_32x32x16_bf16 {v(ACC + i * 16, 16)}, {v(128 + 4 * ks, 4)}, {v(XF + (ks & 1) * 16 + i * 4, 4)}, {v(ACC + i * 16, 16)}')
        A(f's_mul_i32 s30, s21, {4 * 112}')
        A('s_add_u32 s30, s30, s40')
        A('s_lshl_b32 s30, s30, 10')
        A(f's_add_u32 s30, s30, {C.B["HF"]}')
        if GU_TAIL:
            A('s_waitcnt lgkmcnt(0)')
            mm(0, 31)
            mm(2, 30)
            mm(1, 31)
            mm(3, 30)
            A('s_nop 8')
            epi(0)
            mm(2, 31)
            mm(3, 31)
            epi(1)
            epi(2)
            epi(3)
        else:
            A('s_nop 4')
            for i in range(4):
                epi(i)
        if after_store:
            after_store()

    ls, le = C.lab('gs'), C.lab('ge')
    A('s_cmp_eq_u32 s20, 7')
    A(f's_cbranch_scc1 {ls}')
    save, ns = list(C.vm), C.nstamp
    wdone = set()
    loop(False)
    A(f's_branch {le}')
    A.label(ls)
    C.vm, C.nstamp = list(save), ns
    wdone = set()
    loop(True)
    A.label(le)
    C.vm = ['st']


def flag_addr(C, sreg, sync):
    C.A(f's_lshl_b32 {s(sreg)}, s21, 8')
    C.A(f's_add_u32 {s(sreg)}, {s(sreg)}, {FLG + sync * 4096}')


GCNT = 134 * KB


def arrive(C, k, sync):
    A = C.A
    l = C.lab('p7')
    A('s_mov_b64 exec, 1')
    A(f'v_mov_b32 v14, {GCNT + 4 * k}')
    A('ds_add_rtn_u32 v14, v14, v4')
    A('s_waitcnt lgkmcnt(0)')
    C.lds = []
    A('v_cmp_eq_u32 vcc, 6, v14')
    A(f's_cbranch_vccz {l}')
    flag_addr(C, 30, sync)
    A('s_lshl_b32 s31, s22, 2')
    A('s_add_u32 s30, s30, s31')
    A('buffer_store_dword v4, v0, s[8:11], s30 offen')
    A('buffer_store_dword v4, v0, s[8:11], s30 offen offset:128 sc0 sc1')
    A.label(l)
    A('s_mov_b64 exec, -1')


def publish7(C, sync):
    A = C.A
    l = C.lab('p7')
    A('s_cmp_lg_u32 s20, 7')
    A(f's_cbranch_scc1 {l}')
    flag_addr(C, 30, sync)
    A('s_lshl_b32 s31, s22, 2')
    A('s_add_u32 s30, s30, s31')
    A('s_mov_b64 exec, 1')
    A('buffer_store_dword v4, v0, s[8:11], s30 offen')
    A('buffer_store_dword v4, v0, s[8:11], s30 offen offset:128 sc0 sc1')
    A('s_mov_b64 exec, -1')
    A.label(l)


def poll_issue(C, sync, tag):
    A = C.A
    flag_addr(C, 35, sync)
    A('s_mov_b64 exec, s[32:33]')
    C.vmem('buffer_load_dword v2, v0, s[8:11], s35 offen sc1', tag)
    A('s_mov_b64 exec, -1')


def poll_check(C, tag, endlab):
    A = C.A
    l1, l2, ld = C.lab('qa'), C.lab('qb'), C.lab('qd')
    C.wait(tag)
    A('s_mov_b64 exec, s[32:33]')
    A('s_mov_b32 s31, 0')
    A.label(l1)
    A('v_cmp_ne_u32 vcc, 0, v2')
    A('s_cmp_eq_u64 vcc, s[32:33]')
    A(f's_cbranch_scc1 {ld}')
    A('buffer_load_dword v2, v0, s[8:11], s35 offen sc1')
    A('s_add_u32 s31, s31, 1')
    A('s_waitcnt vmcnt(0)')
    A('s_cmp_lt_u32 s31, 64')
    A(f's_cbranch_scc1 {l1}')
    A.label(l2)
    A('buffer_load_dword v2, v0, s[8:11], s35 offen sc1')
    A('s_waitcnt vmcnt(0)')
    A('v_cmp_ne_u32 s[36:37], 0, v2')
    A('buffer_load_dword v2, v0, s[8:11], s35 offen offset:128 sc0 sc1')
    A('s_waitcnt vmcnt(0)')
    A('v_cmp_ne_u32 vcc, 0, v2')
    A('s_add_u32 s31, s31, 1')
    A('s_or_b64 vcc, vcc, s[36:37]')
    A('s_cmp_eq_u64 vcc, s[32:33]')
    A(f's_cbranch_scc1 {ld}')
    A('s_sleep 4')
    A(f's_cmp_lt_u32 s31, {1 << 20}')
    A(f's_cbranch_scc1 {l2}')
    A(f's_branch {endlab}')
    A.label(ld)
    A('s_mov_b64 exec, -1')


def gu2_pre(C):
    A = C.A
    A('v_mov_b32 v15, v113')
    A('v_mov_b32 v9, v114')
    A('s_lshl_b32 s30, s21, 2')
    A('s_add_u32 s30, s30, s29')
    A('s_lshl_b32 s30, s30, 15')
    A('s_lshr_b32 s31, s20, 1')
    A('s_lshl_b32 s31, s31, 11')
    A('s_add_u32 s30, s30, s31')
    A(f's_add_u32 s30, s30, {C.B["XB"]}')
    A('v_add_u32 v13, s30, v3')
    A('v_add_u32 v14, 0x10000, v13')
    A('s_lshl_b32 s48, s29, 15')
    A('s_add_u32 s48, s48, s31')
    A('v_add_u32 v7, 0x10000, v3')
    A('v_lshrrev_b32 v11, 5, v1')
    A('v_lshlrev_b32 v11, 4, v11')
    A('s_min_u32 s30, s20, 6')
    A('s_lshl_b32 s30, s30, 7')
    A(f's_add_u32 s30, s30, {132 * KB}')
    A('v_add_u32 v10, s30, v11')
    A('v_and_b32 v12, 31, v1')
    A('v_lshlrev_b32 v12, 3, v12')
    A('v_lshl_add_u32 v12, v11, 8, v12')
    A('s_lshl_b32 s30, s21, 15')
    A(f's_add_u32 s30, s30, {C.B["SXB"]}')
    A('v_add_u32 v12, s30, v12')
    A(f'v_add_u32 v8, {128 * KB}, v3')
    A(f's_mul_i32 s31, s20, {14 * KB}')
    A(f's_mul_i32 s30, s27, {112 * KB}')
    A('s_add_u32 s30, s30, s31')
    A(f's_add_u32 s30, s30, {C.B["HF"]}')
    A('v_add_u32 v5, s30, v3')
    A(f'v_add_u32 v6, {224 * KB}, v5')


def dn_slot(n):
    return 24 + 4 * n if n < 6 else 80 + 4 * ((n - 6) % 12)


def dn_xload(C, n):
    hh, st = divmod(n, 14)
    so, im = soff(st)
    C.vmem(f'buffer_load_dwordx4 {v(dn_slot(n), 4)}, {v(5 + hh)}, s[8:11], {so} offen offset:{im}', f'x{n}')


def gu2_main(C, sync1, endlab):
    A = C.A
    ACC, XF, CS = 16, 80, 112
    STR = [10, 10, ACC, ACC + 4]
    D = GU_D
    H = D // 2
    NSTEP = 32
    SE = 32 - H

    def dma(late, c):
        A(f's_add_u32 m0, s48, {late * 65536 + c * 8192}')
        so = '0' if c == 0 else s(40 + 2 * c)
        A('s_nop 0')
        for k in range(2):
            C.vmem(f'buffer_load_dwordx4 {"v14" if late else "v13"}, s[8:11], {so} offen offset:{k * 1024} lds', f'{"l" if late else "e"}{c}')
    dma(0, 0)
    dma(0, 1)

    def parts(st):
        if st < H:
            return [(0, 2 * st), (1, 2 * st), (0, 2 * st + 1), (1, 2 * st + 1)]
        if st < SE:
            return [(0, st + H), (1, st + H), (2, st - H), (3, st - H)]
        k = 32 - D + 2 * (st - SE)
        return [(2, k), (3, k), (2, k + 1), (3, k + 1)]

    def rd(st):
        for n, (i, ks) in enumerate(parts(st)):
            base = 'v3' if i < 2 else 'v7'
            C.ds(f'ds_read_b128 {v(XF + (st & 1) * 16 + n * 4, 4)}, {base} offset:{(i & 1) * 32768 + ks * 1024}', f'r{st}')

    def stats_load(i):
        for e in range(16):
            C.vmem(f'buffer_load_dwordx2 {v(ACC + (i & 1) * 32 + 2 * e, 2)}, v12, s[8:11], {"0" if i == 0 else s(40 + 2 * i)} offen offset:{e * 256}', f's{i}')

    def stats_sum(i):
        b = ACC + (i & 1) * 32
        C.wait(f's{i}')
        for stp in (16, 8, 4, 2):
            for e in range(stp):
                A(f'v_add_f32 {v(b + e)}, {v(b + e)}, {v(b + e + stp)}')
        A(f'v_mov_b32 {v(b + 2)}, {v(b)}')
        A(f'v_mov_b32 {v(b + 3)}, {v(b + 1)}')
        A('s_nop 1')
        A(f'v_permlane32_swap_b32 {v(b)}, {v(b + 2)}')
        A(f'v_permlane32_swap_b32 {v(b + 1)}, {v(b + 3)}')
        A(f'v_add_f32 {v(b)}, {v(b)}, {v(b + 2)}')
        A(f'v_add_f32 {v(b + 1)}, {v(b + 1)}, {v(b + 3)}')
        A(f'v_mul_f32 {v(b)}, {f32(-1.0 / 512)}, {v(b)}')
        A(f'v_mul_f32 {v(b + 1)}, {f32(1.0 / 512)}, {v(b + 1)}')
        A(f'v_fma_f32 {v(b + 1)}, -{v(b)}, {v(b)}, {v(b + 1)}')
        A(f'v_max_f32 {v(b + 1)}, 0, {v(b + 1)}')
        A(f'v_add_f32 {v(b + 1)}, {f32(1e-5)}, {v(b + 1)}')
        A(f'v_rcp_f32 {v(b + 2)}, {v(b + 1)}')
        A(f'v_mov_b32 {v(b + 1)}, {v(b)}')
        A(f'v_mov_b32 {v(b + 3)}, {v(b + 2)}')
        A(f'ds_write_b128 v8, {v(b, 4)} offset:{i * 1024}')
        A('s_waitcnt lgkmcnt(0)')

    def epi(i):
        acc = ACC + i * 16
        for r in range(0, 16, 2):
            A(f'v_pk_fma_f32 {v(acc + r, 2)}, {v(STR[i], 2)}, {v(CS + r, 2)}, {v(acc + r, 2)}')
        for r in range(0, 8, 2):
            A(f'v_pk_mul_f32 {v(acc + r, 2)}, {v(acc + r, 2)}, {v(acc + 8 + r, 2)}')
        for r in range(0, 8, 2):
            A(f'v_pk_mul_f32 {v(acc + r, 2)}, {v(acc + r, 2)}, {v(STR[i] + 2, 2)}')
        pp = acc + 8
        for m in range(4):
            A(f'v_cvt_pk_bf16_f32 {v(pp + m)}, {v(acc + 2 * m)}, {v(acc + 2 * m + 1)}')
        C.vmem(f'buffer_store_dwordx4 {v(pp, 4)}, v3, s[8:11], s39 offen{WT}', 'st')
        if i < 3:
            A(f's_add_u32 s39, s39, {112 * KB}')

    SF1 = SE + GU_SF1
    assert SE - 2 >= 15
    dorder = [(0, 2), (1, 0), (0, 3), (1, 1), (1, 2), (1, 3)]
    bars = {4: 'e1', 8: 'l0', 12: 'l3', min(20, SE - 2): None}
    if F1BAR:
        bars[SF1] = 'st'
    avail = {0: {'e0'}, 4: {'e0', 'e1'}, 8: {'e0', 'e1', 'l0', 'e2'}}
    for st in range(12):
        have = avail[st // 4 * 4]
        for i, ks in parts(st):
            assert ('l' if i >= 2 else 'e') + str(ks // 8) in have, (st, i, ks)

    def loop(idle):
        C.lds = []
        A(f's_mul_i32 s39, s21, {4 * 112}')
        A('s_add_u32 s39, s39, s40')
        A('s_lshl_b32 s39, s39, 10')
        A(f's_add_u32 s39, s39, {C.B["HF"]}')
        C.wait('e0')
        A('s_barrier')
        C.stamp()
        if not idle:
            rd(0)
        dq = list(dorder)
        wdone = 0
        for st in range(NSTEP):
            if st + 1 in bars:
                if bars[st + 1]:
                    C.wait(bars[st + 1])
                A('s_barrier')
                if F1BAR and st + 1 == SF1 and idle:
                    publish7(C, sync1)
            if not idle:
                if st + 1 < NSTEP:
                    rd(st + 1)
                if st == min(20, SE - 2):
                    for g in range(4):
                        C.ds(f'ds_read_b128 {v(CS + g * 4, 4)}, v10 offset:{g * 32}', 'cs')
                if st == SE - 1:
                    C.ds(f'ds_read_b128 {v(STR[0], 4)}, v8', 'sa')
                if st == SE + 3:
                    for i in range(2, 4):
                        C.ds(f'ds_read_b128 {v(STR[i], 4)}, v8 offset:{i * 1024}', 'sb')
                C.dwait(f'r{st}')
            if FINE == 5 and st in (8, 16, SE, SF1 - 1, SF1):
                C.stamp()
                C.lds = []
            todo = []
            if GU_PRIO and not idle and st in (12, SE + 2, SF1 + 1):
                A(f's_setprio {dict([(12, 3), (SE + 2, 2), (SF1 + 1, 0)])[st]}')
            if st == 10:
                C.flagb = True
                flag_b(C)
            if dq:
                todo.append(lambda x=dq.pop(0): dma(*x))
            freed = min([ks for i, ks in parts(st) if i >= 2] or [0])
            lim = 28 if idle and st >= 8 else min(28, freed)
            for _ in range(2):
                if wdone < lim:
                    todo.append(lambda k=wdone: g3_wload(C, (15, 9), k, 128))
                    wdone += 1
            for n, (i, ks) in enumerate(parts(st)):
                if not idle:
                    c = '0' if ks == 0 else v(ACC + i * 16, 16)
                    A(f'v_mfma_f32_32x32x16_bf16 {v(ACC + i * 16, 16)}, {v(128 + 4 * ks, 4)}, {v(XF + (st & 1) * 16 + n * 4, 4)}, {c}')
                if todo:
                    todo.pop(0)()
            assert not todo
            if not idle and st == SE:
                C.dwait('sa')
                A('s_nop 3')
                epi(0)
                C.ds(f'ds_read_b128 {v(STR[1], 4)}, v8 offset:1024', 'sa')
            if not idle and st == SE + 1:
                C.dwait('sa')
                epi(1)
            if not idle and st == SF1 and not F1BAR:
                C.wait('st')
                A('s_mov_b64 exec, 1')
                A(f'v_mov_b32 v14, {GCNT}')
                C.ds('ds_add_u32 v14, v4', 'ar')
                A('s_mov_b64 exec, -1')
            if idle and st == SF1 and not F1BAR:
                lsp, lsd = C.lab('sp'), C.lab('sd')
                A(f'v_mov_b32 v14, {GCNT}')
                A('s_mov_b32 s31, 0')
                A.label(lsp)
                A('ds_read_b32 v13, v14')
                A('s_add_u32 s31, s31, 1')
                A('s_waitcnt lgkmcnt(0)')
                A('v_cmp_eq_u32 vcc, 7, v13')
                A(f's_cbranch_vccnz {lsd}')
                A('s_sleep 1')
                A(f's_cmp_lt_u32 s31, {1 << 22}')
                A(f's_cbranch_scc1 {lsp}')
                A(f's_branch {endlab}')
                A.label(lsd)
                publish7(C, sync1)
            if st == NSTEP - 1 - GU_PO:
                A('s_lshl_b32 s30, s20, 1')
                A('s_lshl_b32 s32, 3, s30')
                poll_issue(C, sync1, 'f1')
            if idle:
                if st == 6:
                    A(f'v_mov_b32 {v(XF)}, 0')
                    A(f'v_mov_b32 {v(XF + 1)}, 0')
                    A(f'v_mov_b32 {v(XF + 2)}, {GCNT}')
                    A(f'ds_write_b64 {v(XF + 2)}, {v(XF, 2)}')
                    stats_load(0)
                    stats_load(1)
                if st == 9:
                    stats_sum(0)
                    A(f's_mul_i32 s30, s22, {7 * 128}')
                    A(f's_add_u32 s30, s30, {CSP}')
                    for kp in range(8):
                        C.vmem(f'buffer_load_dwordx4 {v(ACC + 4 * kp, 4)}, v3, s[8:11], s30 offen', 'cp')
                        if kp < 7:
                            A(f's_add_u32 s30, s30, {3584 * 4}')
                    stats_sum(1)
                    stats_load(3)
                if st == 13:
                    C.wait('cp')
                    for stp in (16, 8, 4):
                        for e in range(stp):
                            A(f'v_add_f32 {v(ACC + e)}, {v(ACC + e)}, {v(ACC + e + stp)}')
                    A(f'v_add_u32 v10, {132 * KB}, v3')
                    A(f'ds_write_b128 v10, {v(ACC, 4)}')
                    A('s_waitcnt lgkmcnt(0)')
                    stats_load(2)
                    stats_sum(3)
                    stats_sum(2)
        assert wdone == 28
        C.stamp()

        def prime():
            poll_check(C, 'f1', endlab)
            for n in range(6):
                dn_xload(C, n)
        if PRIME_LATE == 0:
            prime()
        if not idle:
            A('s_waitcnt lgkmcnt(0)')
            A('s_nop 11')
            epi(2)
        if PRIME_LATE == 1:
            prime()
        if not idle:
            epi(3)
        if PRIME_LATE == 2:
            prime()

    ls, le = C.lab('gs'), C.lab('ge')
    A('s_cmp_eq_u32 s20, 7')
    A(f's_cbranch_scc1 {ls}')
    save, ns = list(C.vm), C.nstamp
    loop(False)
    A(f's_branch {le}')
    A.label(ls)
    C.vm, C.nstamp = list(save), ns
    loop(True)
    A.label(le)
    C.vm = [f'x{n}' for n in range(6)]


def dn_main(C, mode, sync2, endlab, resbase, outbase=None, sxout=None, hook_red=None):
    A = C.A
    NS, EX, WR = 14, 252, 128
    AC = [48, 16]
    nxt = 6
    A(f's_add_u32 s31, s49, {resbase}')
    C.vmem(f'buffer_load_dwordx4 {v(EX, 4)}, v3, s[8:11], s31 offen', 'ex')
    A('s_lshl_b32 s30, s20, 11')
    A('v_add_u32 v8, s30, v3')
    A('v_add_u32 v7, 0x10000, v8')
    A('s_and_b32 s31, s20, 6')
    for c in range(4):
        A(f's_xor_b32 s30, s31, {c << 1}')
        A('s_lshl_b32 s30, s30, 11')
        A('s_lshl_b32 s34, s20, 14')
        A('s_add_u32 s30, s30, s34')
        A(f'v_add_u32 {v(9 + c)}, s30, v3')
    C.stamp()

    def wr(hh):
        out = []
        for c in (0, 2, 1, 3):
            base = AC[hh] + (c & 1) * 16 + (c >> 1) * 8
            out += [f'ds_write_b128 {v(9 + c)}, {v(base + h2 * 4, 4)} offset:{hh * 2048 + h2 * 1024}' for h2 in range(2)]
        return out
    pend = []
    for hh in range(2):
        for st in range(NS):
            n = hh * NS + st
            C.wait(f'x{n}')
            for jj in range(2):
                c = '0' if st == 0 else v(AC[hh] + jj * 16, 16)
                A(f'v_mfma_f32_32x32x16_bf16 {v(AC[hh] + jj * 16, 16)}, {v(WR + 4 * (2 * st + jj), 4)}, {v(dn_slot(n), 4)}, {c}')
                if hh == 1 and st >= 3 and pend:
                    A(pend.pop(0))
            if n == DN_AR and F2BAR:
                if PRIME_LATE < 2:
                    C.wait('ex')
                A('s_barrier')
                publish7(C, sync2)
            if n == DN_AR and not F2BAR:
                C.wait('ex')
                lh = C.lab('h7')
                A('s_cmp_eq_u32 s20, 7')
                A(f's_cbranch_scc1 {lh}')
                arrive(C, 1, sync2)
                A.label(lh)
            if FINE == 5 and n in (0, 1, 7, 8, 14):
                C.stamp()
            if n == DN_PI:
                poll_issue(C, sync2, 'f2')
            if nxt == NS:
                poll_check(C, 'f2', endlab)
            if nxt < 2 * NS:
                dn_xload(C, nxt)
                nxt += 1
            if hh == 1 and st == 2:
                A('s_nop 2' if F2BAR else 's_barrier')
        if hh == 0:
            pend = wr(0)
    assert not pend
    C.stamp()
    T = 80
    C.wait('ex')
    for m in range(4):
        A(f'v_lshlrev_b32 {v(T + 2 * m)}, 16, {v(EX + m)}')
        A(f'v_and_b32 {v(T + 2 * m + 1)}, 0xffff0000, {v(EX + m)}')
    A('s_nop 2')
    for x in wr(1):
        A(x)
    if hook_red:
        hook_red()
    A('s_waitcnt lgkmcnt(0)')
    A('s_barrier')
    for b in range(8):
        for h2 in range(2):
            base, off = ('v8', b * 16 * KB) if b < 4 else ('v7', (b - 4) * 16 * KB)
            A(f'ds_read_b128 {v(16 + b * 8 + h2 * 4, 4)}, {base} offset:{off + h2 * 1024}')
        if b == 6:
            A('s_waitcnt lgkmcnt(10)')
            for r in range(8):
                A(f'v_add_f32 {v(16 + r)}, {v(16 + r)}, {v(T + r)}')
    A('s_waitcnt lgkmcnt(0)')
    for stp in (32, 16, 8):
        for r in range(stp):
            A(f'v_add_f32 {v(16 + r)}, {v(16 + r)}, {v(16 + stp + r)}')
    P = 24
    for m in range(4):
        A(f'v_cvt_pk_bf16_f32 {v(P + m)}, {v(16 + 2 * m)}, {v(16 + 2 * m + 1)}')
    if mode == 'res':
        A(f's_add_u32 s31, s49, {outbase}')
        C.vmem(f'buffer_store_dwordx4 {v(P, 4)}, v3, s[8:11], s31 offen{WT}', 'st')
        blk_stats(C, P, T)
        A('s_lshr_b32 s31, s49, 2')
        A(f's_add_u32 s31, s31, {sxout}')
        A('v_lshlrev_b32 v4, 3, v1')
        A('s_mov_b32 exec_hi, 0')
        C.vmem(f'buffer_store_dwordx2 {v(T, 2)}, v4, s[8:11], s31 offen{WT}', 'st')
        A('s_mov_b64 exec, -1')
    else:
        A('v_and_b32 v4, 31, v1')
        A('v_lshlrev_b32 v4, 10, v4')
        A('v_lshrrev_b32 v5, 5, v1')
        A('v_lshl_add_u32 v4, v5, 4, v4')
        A('s_and_b32 s30, s49, 0xffff8000')
        A('s_and_b32 s31, s49, 0x7fff')
        A('s_lshr_b32 s31, s31, 5')
        A('s_add_u32 s30, s30, s31')
        A(f'v_permlane32_swap_b32 {v(P)}, {v(P + 2)}')
        A(f'v_permlane32_swap_b32 {v(P + 1)}, {v(P + 3)}')
        C.vmem(f'buffer_store_dwordx4 {v(P, 4)}, v4, s[12:15], s30 offen{OWT}', 'st')


def swap_add(A, ra, rb):
    A(f'v_permlane32_swap_b32 {v(ra)}, {v(rb)}')
    A(f'v_add_f32 {v(ra)}, {v(ra)}, {v(rb)}')


def pre_part(C, end):
    A = C.A
    A('s_cmp_ge_u32 s2, 256')
    A(f's_cbranch_scc1 {end}')
    A('s_load_dwordx2 s[12:13], s[0:1], 0')
    A('s_load_dwordx2 s[16:17], s[0:1], 8')
    A('s_load_dwordx2 s[52:53], s[0:1], 16')
    A('s_load_dwordx2 s[56:57], s[0:1], 24')
    A('s_load_dwordx2 s[4:5], s[0:1], 80')
    for d, sz in ((12, 2048 * 1024), (16, 512 * 1024), (52, 512 * 32), (56, 512 * 32), (4, 256)):
        A(f's_mov_b32 {s(d + 2)}, {sz}')
        A(f's_mov_b32 {s(d + 3)}, 0x20000')
    setup(C, False, end)
    C.stamp()
    if TLBW:
        A('s_lshl_b32 s30, s20, 3')
        A(f's_add_u32 s30, s30, 32')
        A('s_cmp_eq_u32 s20, 1')
        A('s_cselect_b32 s30, 8, s30')
        A('s_load_dwordx2 s[32:33], s[0:1], s30')
        A('s_mov_b32 s31, 8192')
        A('s_cmp_ge_u32 s20, 2')
        A('s_cselect_b32 s31, 28672, s31')
        A('s_cmp_eq_u32 s20, 6')
        A('s_cselect_b32 s31, 4, s31')
        A('s_cmp_eq_u32 s20, 7')
        A(f's_cselect_b32 s31, {TLBW}, s31')
        A('v_mul_lo_u32 v4, v1, s31')
        A('s_waitcnt lgkmcnt(0)')
        A('global_load_dword v127, v4, s[32:33]')
    A('s_add_u32 s30, s21, 1')
    A('s_and_b32 s30, s30, 3')
    A('s_lshl_b32 s30, s30, 2')
    A('s_xor_b32 s30, s30, s22')
    A('s_add_u32 s30, s30, s20')
    A('s_cmp_lg_u32 s30, 0')
    A('s_cbranch_scc1 pr_z0')
    for r in range(4):
        A(f'v_mov_b32 {v(8 + r)}, 0')
    A('v_lshrrev_b32 v4, 4, v1')
    A('v_and_b32 v5, 15, v1')
    A('v_lshlrev_b32 v5, 4, v5')
    A('v_lshl_add_u32 v4, v4, 12, v5')
    A('s_lshl_b32 s30, s21, 8')
    A(f's_add_u32 s30, s30, {FLG}')
    for k in range(3):
        A('buffer_store_dwordx4 v[8:11], v4, s[8:11], s30 offen sc0 sc1')
        A('s_add_u32 s30, s30, 16384')
    A('v_lshlrev_b32 v4, 7, v1')
    A(f's_mul_i32 s30, s21, {64 * 128}')
    A(f's_add_u32 s30, s30, {PFL}')
    A('buffer_store_dwordx4 v[8:11], v4, s[8:11], s30 offen sc0 sc1')
    A('v_mov_b32 v5, 1')
    A('s_mov_b64 exec, 1')
    A('s_waitcnt vmcnt(0)')
    A('buffer_atomic_add v5, v8, s[4:7], 0 offen sc1')
    A('s_mov_b64 exec, -1')
    A('s_nop 1')
    A.label('pr_z0')
    KST, KW, KR, T, EX, XR = 240, 192, 224, 108, 96, 32
    WST, CSQ, CSKV = 96 * KB, ST4 + 9 * KB, ST4 + 10 * KB
    A('s_mov_b64 s[36:37], s[16:17]')
    A(f's_mov_b32 s38, {512 * 1024}')
    A('s_mov_b32 s39, 0x20000')
    if WQT:
        A('s_lshr_b32 s30, s2, 3')
        A('s_lshl_b32 s30, s30, 3')
        A('s_add_u32 s30, s30, s20')
        A('s_lshl_b32 s30, s30, 11')
        A('buffer_load_dwordx4 v[120:123], v3, s[36:39], s30 offen')
        A('buffer_load_dwordx4 v[124:127], v3, s[36:39], s30 offen offset:1024')
    g4_ids(C)
    A('s_lshl_b32 s30, s20, 11')
    A('s_cmp_lg_u32 s3, 0')
    A('s_cbranch_scc1 pr_k0')
    for k in range(4):
        A(f'buffer_load_dwordx4 {v(KST + 4 * k, 4)}, v3, {"s[52:55]" if k < 2 else "s[56:59]"}, s30 offen offset:{(k & 1) * 1024}')
    A.label('pr_k0')
    A('v_lshrrev_b32 v4, 3, v1')
    A('v_and_b32 v5, 7, v1')
    A('v_lshrrev_b32 v6, 4, v1')
    A('v_xor_b32 v6, v6, v5')
    A('v_lshlrev_b32 v7, 10, v4')
    A('v_lshl_add_u32 v8, v6, 4, v7')
    A('v_xor_b32 v9, 64, v8')
    A('s_lshl_b32 s30, s18, 15')
    A('s_lshl_b32 s31, s20, 7')
    A('s_add_u32 s30, s30, s31')
    A('s_lshl_b32 s32, s20, 12')
    for i in range(4):
        A(f's_add_u32 m0, s32, {KVR4 + i * 1024}')
        A('s_nop 0')
        C.vmem(f'buffer_load_dwordx4 {v(8 + (i & 1))}, s[12:15], s30 offen lds', 'x')
        A('s_add_u32 s30, s30, 8192')
    A('v_lshrrev_b32 v4, 2, v1')
    A('v_and_b32 v5, 3, v1')
    A('v_lshlrev_b32 v10, 10, v4')
    A('v_lshl_add_u32 v10, v5, 4, v10')
    A('s_lshl_b32 s31, s26, 18')
    A('s_bfe_u32 s30, s19, 0x4000b')
    A('s_lshl_b32 s30, s30, 6')
    A('s_add_u32 s31, s31, s30')
    A('s_lshl_b32 s51, s20, 13')
    A(f's_add_u32 s51, s51, {WST}')
    if HACKW:
        A('v_lshrrev_b32 v10, 3, v1')
        A('v_lshlrev_b32 v10, 10, v10')
        A('v_and_b32 v88, 7, v1')
        A('v_lshl_add_u32 v10, v88, 4, v10')
        A('s_and_b32 s31, s31, 0xffffffbf')
        A('s_lshl_b32 s30, s29, 13')
        A('s_add_u32 s31, s31, s30')
    A('s_mov_b32 s50, s31')
    A('v_mov_b32 v88, v10')
    A('s_and_b32 s33, s22, 3')
    A(f's_lshl_b32 s33, s33, 16' if WROT else 's_mov_b32 s33, 0')

    def wloads(lo=0, hi=16):
        for i in range(lo, hi):
            A(f's_xor_b32 s30, s33, {G4_ORD[i] * 16384}')
            A('s_add_u32 s30, s30, s50')
            if i < 8:
                A(f's_add_u32 m0, s51, {i * 1024}')
                A('s_nop 0')
                A('buffer_load_dwordx4 v88, s[36:39], s30 offen lds')
            else:
                A(f'buffer_load_dwordx4 {v(128 + 4 * i, 4)}, v88, s[36:39], s30 offen')
    if FR2:
        A('s_barrier')
        wloads(0, FR2)
    else:
        A('s_cmp_eq_u32 s3, 0')
        A('s_cbranch_scc1 pr_w1')
        A('s_barrier')
        wloads()
        A('s_waitcnt vmcnt(16)')
        A.label('pr_w1')
    C.stamp()
    A('v_and_b32 v64, 31, v1')
    A('v_lshrrev_b32 v65, 5, v1')
    A('v_lshlrev_b32 v66, 7, v64')
    A('v_lshl_add_u32 v66, v65, 3, v66')
    A('v_bfe_u32 v67, v1, 1, 3')
    A('v_lshl_add_u32 v66, v67, 4, v66')
    A(f's_add_u32 s30, s32, {KVR4}')
    A('v_add_u32 v66, s30, v66')
    A('v_bfe_u32 v67, v1, 2, 2')
    A('v_lshl_add_u32 v67, v65, 2, v67')
    A('v_lshlrev_b32 v68, 3, v5')
    A('v_bfe_u32 v69, v1, 4, 1')
    A('v_lshl_add_u32 v70, v67, 5, v68')
    A('v_lshl_add_u32 v70, v69, 11, v70')
    A('v_add_u32 v70, s51, v70')
    A('v_lshl_add_u32 v71, v67, 6, v68')
    A('v_lshl_add_u32 v71, v69, 5, v71')
    A('s_lshl_b32 s30, s26, 5')
    A('v_xor_b32 v71, s30, v71')
    A('v_add_u32 v71, s51, v71')
    A('v_add_u32 v72, s51, v3')
    A('v_mov_b32 v73, 0x3f803f80')
    A('v_lshlrev_b32 v74, 2, v64')
    A('s_lshl_b32 s30, s20, 7')
    A(f's_add_u32 s31, s30, {CSKV}')
    A('v_add_u32 v75, s31, v74')
    A('s_lshl_b32 s31, s26, 6')
    A('v_xor_b32 v74, s31, v74')
    A(f's_add_u32 s30, s30, {CSQ}')
    A('v_add_u32 v74, s30, v74')
    A('v_lshlrev_b32 v76, 4, v65')
    A('s_add_u32 s30, s30, s31')
    A('v_add_u32 v77, s30, v76')
    A('v_xor_b32 v78, 512, v77')
    A('s_lshl_b32 s30, s25, 5')
    A(f's_add_u32 s30, s30, {CSKV}')
    A('v_add_u32 v79, s30, v76')
    g4_pre(C, 'qkv', XA, resbase=0, raw=True)
    A('s_lshr_b32 s30, s33, 4')
    A('s_lshl_b32 s31, s20, 12')
    A('s_xor_b32 s30, s30, s31')
    A(f's_add_u32 s30, s30, {XF0}')
    A('v_add_u32 v12, s30, v3')
    A('v_mov_b32 v0, 0')
    A('v_mov_b32 v4, 1')
    for ch in range(8):
        A(f'v_xor_b32 {v(80 + ch)}, {ch << 4}, v66')

    def front():
        A('s_cmp_lg_u32 s3, 0')
        A('s_cbranch_scc1 pr_w2')
        A('s_waitcnt vmcnt(4)')
        for k in range(4):
            A(f'ds_write_b128 v72, {v(KST + 4 * k, 4)} offset:{k * 1024}')
        for st in range(4):
            for h2 in range(2):
                A(f'ds_read_b64_tr_b16 {v(KW + 4 * st + 2 * h2, 2)}, v70 offset:{st * 512 + h2 * 256}')
        A('s_waitcnt lgkmcnt(0)')
        for r in range(8):
            for e in range(2):
                A(f'v_dot2_f32_bf16 {v(90 + e)}, {v(KW + 2 * r + e)}, v73, {"0" if r == 0 else v(90 + e)}')
        A('s_nop 2')
        A('v_add_f32 v90, v90, v91')
        A('v_mov_b32 v91, v90')
        A('s_nop 1')
        swap_add(A, 90, 91)
        A('ds_write_b32 v75, v90')
        A('s_waitcnt vmcnt(0)')
        A.label('pr_w2')
        C.vm = []
        C.stamp()
        for ch in range(8):
            A(f'ds_read_b64 {v(KR + 2 * ch, 2)}, {v(80 + ch)}')
        if ZEARLY:
            A('buffer_load_dword v89, v0, s[4:7], 0 offen sc1')
        A('s_waitcnt lgkmcnt(0)')

    def kvw():
        pass

    def front2():
        for k in range(4):
            A(f'ds_write_b128 v12, {v(KR + 4 * k, 4)} offset:{k * 1024}')
        for r in range(8):
            for e in range(2):
                x = v(KR + 2 * r + e)
                A(f'v_dot2_f32_bf16 {v(T + 2 * e)}, {x}, v73, {"0" if r == 0 else v(T + 2 * e)}')
                A(f'v_dot2_f32_bf16 {v(T + 2 * e + 1)}, {x}, {x}, {"0" if r == 0 else v(T + 2 * e + 1)}')
        A('s_nop 2')

    def kvcs0():
        for ww in range(8):
            A(f'ds_read_b128 {v(XR + 4 * ww, 4)}, v79 offset:{ww * 128}')

    def kvcs1():
        A('s_waitcnt lgkmcnt(0)')
        for stp in (16, 8):
            for r in range(stp):
                A(f'v_add_f32 {v(XR + r)}, {v(XR + r)}, {v(XR + stp + r)}')
        for r in range(4):
            A(f'v_add_f32 {v(EX + 8 + r)}, {v(XR + r)}, {v(XR + 4 + r)}')

    def zchk():
        lz, lzd = C.lab('z'), C.lab('zd')
        if ZEARLY:
            A('s_waitcnt vmcnt(0)')
            A('v_cmp_le_u32 vcc, 16, v89')
            A('s_cmp_eq_u64 vcc, -1')
            A(f's_cbranch_scc1 {lzd}')
        A('s_mov_b32 s31, 0')
        A('s_mov_b64 exec, 1')
        A.label(lz)
        A('buffer_load_dword v2, v0, s[4:7], 0 offen sc1')
        A('s_waitcnt vmcnt(0)')
        A('v_cmp_le_u32 vcc, 16, v2')
        A('s_add_u32 s31, s31, 1')
        A('s_cmp_eq_u64 vcc, 1')
        A(f's_cbranch_scc1 {lzd}')
        A('s_sleep 8')
        A(f's_cmp_lt_u32 s31, {1 << 20}')
        A(f's_cbranch_scc1 {lz}')
        A(f's_branch {end}')
        A.label(lzd)
        A('s_mov_b64 exec, -1')

    def wprep():
        if not FR2:
            A('s_cmp_lg_u32 s3, 0')
            A('s_cbranch_scc1 pr_w3')
            wloads()
            A.label('pr_w3')
        zchk()
        C.vm = []
        C.stamp()


    def tr(i):
        for h2 in range(2):
            A(f'ds_read_b64_tr_b16 {v(128 + 4 * i + 2 * h2, 2)}, v71 offset:{(i % 8) * 1024 + h2 * 512}')

    def csdot(r0, r1):
        for r in range(r0, r1):
            for e in range(4):
                A(f'v_dot2_f32_bf16 {v(80 + e)}, {v(128 + 4 * r + e)}, v73, {"0" if r == 0 else v(80 + e)}')

    def loop(rd, mf):
        for i in range(8):
            tr(i)
            if i == 5:
                A('s_waitcnt lgkmcnt(6)')
        ln_stats(A, T)
        A('s_waitcnt lgkmcnt(0)')
        for i in range(4):
            rd(i)
        for i in range(8):
            A(f'ds_write_b128 v72, {v(160 + 4 * i, 4)} offset:{i * 1024}')
        csdot(0, 8)
        A('s_waitcnt lgkmcnt(0)')
        for i in range(4, 8):
            rd(i)
        for i in range(8):
            if i == 4:
                A('s_waitcnt lgkmcnt(8)')
            mf(i)
            if i < 4:
                tr(8 + i)
            else:
                A('s_waitcnt lgkmcnt(9)')
                tr(8 + i)
                rd(4 + i)
        for i in range(8, 16):
            if i == 8:
                A('s_waitcnt lgkmcnt(9)')
            elif i < 12:
                A(f's_waitcnt lgkmcnt({9 - 2 * (i - 8)})')
            else:
                A(f's_waitcnt lgkmcnt({15 - i})')
            mf(i)
            if i < 12:
                rd(4 + i)

    def cs0():
        csdot(8, 16)
        A('s_nop 2')
        A('v_add_f32 v80, v80, v81')
        A('v_add_f32 v82, v82, v83')
        A('v_add_f32 v80, v80, v82')
        A('v_mov_b32 v81, v80')
        A('s_nop 1')
        swap_add(A, 80, 81)
        A('ds_write_b32 v74, v80')

    def cs():
        for h2 in range(2):
            A(f'ds_read_b128 {v(EX + 4 * h2, 4)}, v77 offset:{h2 * 32}')
            A(f'ds_read_b128 {v(XR + 4 * h2, 4)}, v78 offset:{h2 * 32}')
        A('s_waitcnt lgkmcnt(0)')
        for r in range(8):
            A(f'v_add_f32 {v(EX + r)}, {v(EX + r)}, {v(XR + r)}')
        for r in range(12):
            A(f'v_mov_b32 {v(208 + r)}, {v(EX + r)}')

    g4_main(C, 'qkv', kvf=KVF, kfl=KFL, raw=dict(front=front, kvw=kvw, kvcs0=kvcs0, kvcs1=kvcs1, zchk=zchk, front2=front2, wloads=wloads, wprep=wprep, cs=cs, cs0=cs0, loop=loop), endlab=end)
    C.stamp()


def wq_store(C):
    A = C.A
    A('s_and_b32 s30, s18, 0x33')
    A('s_cmp_lg_u32 s30, 0')
    A('s_cbranch_scc1 pr_w0')
    g4_waddr(C, 112, WQKVP)
    for q4 in (3, 2, 1, 0):
        if q4:
            A(f's_cmp_lg_u32 s21, {q4}')
            A(f's_cbranch_scc1 pr_ws{q4}')
        for i in range(4 * q4, 4 * q4 + 4):
            so, im = soff(G4_ORD[i])
            A(f'buffer_store_dwordx4 {v(128 + 4 * i, 4)}, v112, s[8:11], {so} offen offset:{im} sc0 sc1')
        if q4:
            A('s_branch pr_w0')
            A.label(f'pr_ws{q4}')
    A('v_lshrrev_b32 v113, 5, v1')
    A('v_lshlrev_b32 v113, 4, v113')
    A('s_lshr_b32 s31, s19, 4')
    A(f's_add_u32 s31, s31, {CSQKV}')
    A('s_mov_b32 exec_lo, 1')
    A('s_mov_b32 exec_hi, 1')
    A('buffer_store_dwordx4 v[208:211], v113, s[8:11], s31 offen sc0 sc1')
    A('buffer_store_dwordx4 v[212:215], v113, s[8:11], s31 offen offset:32 sc0 sc1')
    A('s_mov_b64 exec, -1')
    A('s_cmp_lg_u32 s22, 0')
    A('s_cbranch_scc1 pr_w0')
    A('s_lshl_b32 s30, s20, 12')
    A(f's_add_u32 s30, s30, {WQKVP + 16 * 32 * KB}')
    for k in range(4):
        A(f'buffer_store_dwordx4 {v(192 + 4 * k, 4)}, v3, s[8:11], s30 offen offset:{k * 1024} sc0 sc1')
    A('s_cmp_ge_u32 s20, 4')
    A('s_cbranch_scc1 pr_w0')
    A('s_lshl_b32 s31, s20, 5')
    A(f's_add_u32 s31, s31, {CSQKV + 2048}')
    A('s_mov_b32 exec_lo, 1')
    A('s_mov_b32 exec_hi, 1')
    A('buffer_store_dwordx4 v[216:219], v113, s[8:11], s31 offen sc0 sc1')
    A('s_mov_b64 exec, -1')
    A.label('pr_w0')


def pack_ptrs(A):
    A('s_load_dwordx2 s[4:5], s[0:1], 32')
    A('s_load_dwordx4 s[52:55], s[0:1], 48')
    A('s_load_dwordx2 s[16:17], s[0:1], 64')


def pack_issue(C):
    A = C.A
    A('s_mul_i32 s30, s2, 3')
    A('s_add_u32 s30, s30, s20')
    A('s_mov_b32 s58, s30')
    A('s_cmp_lt_u32 s20, 3')
    A('s_cselect_b32 s57, 1, 0')
    A('s_cmp_lt_u32 s30, 736')
    A('s_cselect_b32 s57, s57, 0')
    A('s_cmp_eq_u32 s57, 0')
    A('s_cselect_b32 s30, 0, s30')
    A('s_cmp_lt_u32 s30, 64')
    A('s_cbranch_scc1 pk_jwo')
    A('s_cmp_lt_u32 s30, 512')
    A('s_cbranch_scc1 pk_jgu')
    A('s_sub_u32 s30, s30, 512')
    A('s_mov_b64 s[4:5], s[16:17]')
    A(f's_mov_b32 s6, {1792 * 1024}')
    A('s_mov_b32 s50, 1024')
    A('s_and_b32 s31, s30, 7')
    A('s_lshr_b32 s30, s30, 3')
    A('s_lshl_b32 s51, s30, 16')
    A('s_lshl_b32 s56, s31, 7')
    A('s_add_u32 s51, s51, s56')
    A(f's_mul_i32 s56, s31, {2 * 112 * KB}')
    A('s_lshl_b32 s30, s30, 12')
    A('s_add_u32 s56, s56, s30')
    A(f's_add_u32 s56, s56, {WDP}')
    A(f's_mov_b32 s52, {112 * KB}')
    A('s_mov_b32 s53, 256')
    A(f's_mov_b32 s54, {G1.CSDUMMY}')
    A('s_branch pk_jgo')
    A.label('pk_jwo')
    A(f's_mov_b32 s6, {512 * 1024}')
    A('s_mov_b32 s50, 1024')
    A('s_lshr_b32 s31, s30, 3')
    A('s_and_b32 s30, s30, 7')
    A('s_lshl_b32 s51, s30, 16')
    A('s_lshl_b32 s56, s31, 7')
    A('s_add_u32 s51, s51, s56')
    A('s_lshl_b32 s56, s31, 16')
    A('s_lshl_b32 s30, s30, 12')
    A('s_add_u32 s56, s56, s30')
    A(f's_add_u32 s56, s56, {WOP}')
    A(f's_mov_b32 s52, {32 * KB}')
    A('s_mov_b32 s53, 256')
    A(f's_mov_b32 s54, {G1.CSDUMMY}')
    A('s_branch pk_jgo')
    A.label('pk_jgu')
    A('s_sub_u32 s30, s30, 64')
    A('s_cmp_ge_u32 s30, 224')
    A('s_cselect_b32 s4, s54, s52')
    A('s_cselect_b32 s5, s55, s53')
    A('s_cselect_b32 s16, 1, 0')
    A('s_cselect_b32 s31, 224, 0')
    A('s_sub_u32 s30, s30, s31')
    A(f's_mov_b32 s6, {512 * 3584}')
    A('s_mov_b32 s50, 3584')
    A('s_lshr_b32 s31, s30, 3')
    A('s_and_b32 s30, s30, 7')
    A(f's_mul_i32 s51, s30, {64 * 3584}')
    A('s_lshl_b32 s56, s31, 7')
    A('s_add_u32 s51, s51, s56')
    A('s_lshl_b32 s56, s31, 17')
    A('s_lshl_b32 s17, s30, 12')
    A('s_add_u32 s56, s56, s17')
    A('s_lshl_b32 s17, s16, 8')
    A('s_add_u32 s56, s56, s17')
    A(f's_add_u32 s56, s56, {WGUP}')
    A(f's_mov_b32 s52, {64 * KB}')
    A(f's_mov_b32 s53, {32 * KB}')
    A(f's_mul_i32 s54, s30, {3584 * 4}')
    A('s_lshl_b32 s17, s31, 9')
    A('s_add_u32 s54, s54, s17')
    A('s_lshl_b32 s17, s16, 6')
    A('s_add_u32 s54, s54, s17')
    A(f's_add_u32 s54, s54, {CSP}')
    A.label('pk_jgo')
    A('v_lshrrev_b32 v112, 3, v1')
    A('v_and_b32 v113, 7, v1')
    A('v_mul_lo_u32 v112, v112, s50')
    A('v_lshl_add_u32 v112, v113, 4, v112')
    A('s_lshl_b32 s50, s50, 3')
    A('s_min_u32 s59, s20, 2')
    A('s_lshl_b32 s59, s59, 13')
    A(f's_add_u32 s59, s59, {136 * KB}')
    A('s_cmp_eq_u32 s57, 0')
    A('s_cbranch_scc1 pk_i_end')
    for i in range(8):
        A(f's_add_u32 m0, s59, {i * 1024}')
        A('s_nop 0')
        A('buffer_load_dwordx4 v112, s[4:7], s51 offen lds')
        A('s_add_u32 s51, s51, s50')
    A.label('pk_i_end')


def pack_convert(C):
    A = C.A
    A('s_cmp_eq_u32 s57, 0')
    A('s_cbranch_scc1 pk_c_end')
    A('v_lshrrev_b32 v112, 5, v1')
    A('v_bfe_u32 v113, v1, 2, 2')
    A('v_lshl_add_u32 v113, v112, 2, v113')
    A('v_and_b32 v114, 3, v1')
    A('v_lshlrev_b32 v114, 3, v114')
    A('v_lshl_add_u32 v113, v113, 7, v114')
    A('v_bfe_u32 v114, v1, 4, 1')
    A('v_lshl_add_u32 v113, v114, 5, v113')
    A('v_add_u32 v113, s59, v113')
    A('v_mul_lo_u32 v114, v114, s53')
    A('v_and_b32 v115, 15, v1')
    A('v_lshl_add_u32 v114, v115, 4, v114')
    A('v_lshl_add_u32 v114, v112, 9, v114')
    A('v_lshrrev_b32 v112, 4, v1')
    A('v_lshlrev_b32 v112, 7, v112')
    A('v_lshl_add_u32 v112, v115, 2, v112')
    A('v_mov_b32 v115, 0x3f803f80')
    A('s_add_u32 s52, s52, s56')
    A('s_waitcnt vmcnt(0)')
    for jj in range(2):
        for st in range(4):
            for h2 in range(2):
                A(f'ds_read_b64_tr_b16 {v(128 + 4 * (4 * jj + st) + 2 * h2, 2)}, v113 offset:{st * 2048 + h2 * 1024 + jj * 64}')
        A('s_waitcnt lgkmcnt(0)')
        for st in range(4):
            A(f'buffer_store_dwordx4 {v(128 + 4 * (4 * jj + st), 4)}, v114, s[8:11], {"s56" if jj == 0 else "s52"} offen offset:{st * 1024} sc0 sc1')
    A('s_cmp_eq_u32 s53, 256')
    A('s_cbranch_scc1 pk_c_end')
    for r in range(16):
        for jj in range(2):
            A(f'v_dot2_f32_bf16 {v(116 + jj)}, {v(128 + 16 * jj + r)}, v115, {"0" if r == 0 else v(116 + jj)}')
    A('s_nop 2')
    swap_add(A, 116, 117)
    A('buffer_store_dword v116, v112, s[8:11], s54 offen sc0 sc1')
    A.label('pk_c_end')


def pack_flag(C):
    A = C.A
    A('v_mov_b32 v112, 0')
    A('v_mov_b32 v113, 1')
    A('s_cmp_eq_u32 s57, 0')
    A('s_cbranch_scc1 pk_f_1')
    A('s_lshl_b32 s30, s58, 7')
    A(f's_add_u32 s30, s30, {PFL}')
    A('s_waitcnt vmcnt(0)')
    A('s_mov_b64 exec, 1')
    A('buffer_store_dword v113, v112, s[8:11], s30 offen sc0 sc1')
    A('s_mov_b64 exec, -1')
    A.label('pk_f_1')
    A('s_and_b32 s30, s18, 0x33')
    A('s_cmp_lg_u32 s30, 0')
    A('s_cbranch_scc1 pk_f_end')
    A('s_lshl_b32 s30, s22, 1')
    A('s_add_u32 s30, s30, s20')
    A('s_lshl_b32 s31, s21, 5')
    A('s_add_u32 s30, s30, s31')
    A('s_lshl_b32 s30, s30, 7')
    A(f's_add_u32 s30, s30, {PFL + 768 * 128}')
    A('s_waitcnt vmcnt(0)')
    A('s_mov_b64 exec, 1')
    A('buffer_store_dword v113, v112, s[8:11], s30 offen sc0 sc1')
    A('s_mov_b64 exec, -1')
    A.label('pk_f_end')


def pack_poll(C, endlab):
    A = C.A
    A('s_mul_i32 s30, s22, 7')
    A('s_lshr_b32 s30, s30, 2')
    A('v_lshrrev_b32 v112, 4, v1')
    A('v_add_u32 v112, s30, v112')
    A('v_min_u32 v112, 27, v112')
    A('v_and_b32 v113, 7, v1')
    A('v_lshl_add_u32 v112, v112, 3, v113')
    A('v_bfe_u32 v114, v1, 3, 1')
    A('v_mul_u32_u24 v114, 224, v114')
    A('v_add3_u32 v112, v112, v114, 64')
    A('s_mul_i32 s30, s20, 7')
    A('s_lshr_b32 s30, s30, 1')
    A('v_min_u32 v114, 4, v113')
    A('v_add_u32 v114, s30, v114')
    A('v_min_u32 v114, 27, v114')
    A('s_add_u32 s30, s24, 512')
    A('v_lshl_add_u32 v114, v114, 3, s30')
    A('v_cmp_le_u32 vcc, 48, v1')
    A('s_lshl_b32 s30, s24, 3')
    A('s_add_u32 s30, s30, s20')
    A('v_cndmask_b32 v112, v112, v114, vcc')
    A('v_mov_b32 v114, s30')
    A('v_cmp_le_u32 vcc, 56, v1')
    A('s_add_u32 s31, s20, 768')
    A('s_and_b32 s30, s22, 12')
    A('s_lshl_b32 s30, s30, 1')
    A('s_add_u32 s30, s30, s31')
    A('v_cndmask_b32 v112, v112, v114, vcc')
    for q4 in range(4):
        A(f'v_writelane_b32 v112, s30, {59 + q4}')
        A('s_add_u32 s30, s30, 32')
    A('v_writelane_b32 v112, s31, 63')
    A(f's_mov_b32 s30, {PFL}')
    A('s_mov_b32 s31, 0')
    A('v_lshlrev_b32 v112, 7, v112')
    A('s_bfe_u32 s32, s19, 0x3000c')
    A('s_lshl_b32 s32, s32, 3')
    A('s_lshl_b32 s33, s26, 2')
    A('s_add_u32 s32, s32, s33')
    A('v_and_b32 v114, 3, v1')
    A('v_add_u32 v114, s32, v114')
    A('v_lshlrev_b32 v114, 7, v114')
    A('buffer_load_dword v113, v112, s[8:11], s30 offen sc1')
    A('buffer_load_dword v115, v114, s[8:11], s30 offen sc1')


def pack_poll2(C, endlab):
    A = C.A
    A(f's_mov_b32 s30, {PFL}')
    A('s_mov_b32 s31, 0')
    A.label('pk_p')
    A('s_waitcnt vmcnt(0)')
    A('v_and_b32 v113, v113, v115')
    A('v_cmp_eq_u32 vcc, 1, v113')
    A('s_add_u32 s31, s31, 1')
    A('s_cmp_eq_u64 vcc, -1')
    A('s_cbranch_scc1 pk_pd')
    A('s_sleep 16')
    A('buffer_load_dword v113, v112, s[8:11], s30 offen sc1')
    A('buffer_load_dword v115, v114, s[8:11], s30 offen sc1')
    A(f's_cmp_lt_u32 s31, {1 << 19}')
    A('s_cbranch_scc1 pk_p')
    A(f's_branch {endlab}')
    A.label('pk_pd')
    C.vm = []


def layer_part(C, layer, end):
    A = C.A
    C.tag = f'l{layer}'
    last = layer == 1
    xin = None if layer == 0 else XC
    kvf = KVF if layer == 0 else KVF2
    kfl = KFL + layer * 64 * 128
    sy = 5 * layer + 1
    C.B = dict(QF=QF, OF=OF, XB=XB, SXB=SXB, HF=HF) if layer == 0 else dict(QF=QF2, OF=OF2, XB=XB2, SXB=SXB2, HF=HF2)
    B = C.B

    def pre_addr():
        gu_waddr(C)
        g3_waddr(C, (113, 114), 112, WDP)
        g4_waddr(C, 116, WOP)

    stubs = [lambda: (pre_addr(), gu_wload(C, 0))]
    stubs += [lambda ks=ks: gu_wload(C, ks) for ks in range(1, 24)]
    stubs += [lambda i=i: g4_wload(C, 116, i, 'res') for i in range(8)]
    if TOUCH2:
        def touch2():
            A('s_and_b32 s30, s18, 7')
            A('s_lshr_b32 s31, s30, 1')
            A('s_lshl_b32 s31, s31, 2')
            A('s_and_b32 s30, s30, 1')
            A('s_add_u32 s30, s30, s31')
            A('s_lshl_b32 s30, s30, 10')
            C.vmem('buffer_load_dwordx4 v[120:123], v116, s[8:11], s30 offen offset:2048', 'tc')
            if layer == 0:
                A(f's_add_u32 s30, s30, {WQKVP - WOP + (1 << 32) if WQKVP < WOP else WQKVP - WOP}')
                A('v_add_u32 v117, s30, v116')
                C.vmem('buffer_load_dwordx4 v[120:123], v117, s[8:11], 0 offen', 'tc')
                C.vmem('buffer_load_dwordx4 v[120:123], v117, s[8:11], 0 offen offset:2048', 'tc')
        stubs += [touch2]
    if TOUCH3 & 1:
        def t3a(k):
            if k == 0:
                A('s_and_b32 s30, s21, 1')
                A('s_lshl_b32 s30, s30, 12')
                A(f's_add_u32 s30, s30, {24 * KB}')
                A(f'v_add_u32 v118, s30, {v(V_WGU)}')
            C.vmem(f'buffer_load_dwordx4 v[120:123], v118, s[8:11], 0 offen offset:{k * 1024}', 'tc')
        stubs += [lambda k=k: t3a(k) for k in range(4)]
    if TOUCH3 & 2:
        def t3b(k):
            if k == 0:
                A('s_and_b32 s30, s21, 1')
                A(f's_mul_i32 s30, s30, {7 * KB}')
                A('s_cmp_eq_u32 s23, 0')
                A('s_cselect_b64 vcc, -1, 0')
                A('v_cndmask_b32 v119, v114, v113, vcc')
                A('v_add_u32 v119, s30, v119')
            so, im = soff(k)
            C.vmem(f'buffer_load_dwordx4 v[120:123], v119, s[8:11], {so} offen offset:{im}', 'tc')
        stubs += [lambda k=k: t3b(k) for k in range(7)]
    if TOUCH and layer == 1:
        def t_addr():
            A('s_lshr_b32 s30, s2, 3')
            A('s_lshl_b32 s30, s30, 3')
            A('s_add_u32 s30, s30, s20')
            A(f's_mul_i32 s31, s30, {7 * KB}')
            A(f's_add_u32 s31, s31, {WDP}')
            A('v_add_u32 v118, s31, v3')
            A('s_lshl_b32 s31, s30, 11')
            A(f's_add_u32 s31, s31, {WQKVP}')
            A('v_add_u32 v119, s31, v3')

        def tch(vr, k):
            so, im = soff(k)
            C.vmem(f'buffer_load_dwordx4 v[120:123], {v(vr)}, s[8:11], {so} offen offset:{im}', 'tc')
        stubs += [lambda: (t_addr(), tch(V_WGU, 24))]
        stubs += [lambda ks=ks: tch(V_WGU, ks) for ks in range(25, 32)]
        stubs += [lambda k=k: tch(118, k) for k in range(7)]
        if not last:
            stubs += [lambda k=k: tch(119, k) for k in range(2)]

    def need_wo():
        A('s_lshr_b32 s30, s20, 1')
        A('s_lshl_b32 s30, s30, 2')
        A('s_and_b32 s31, s22, 3')
        A('s_add_u32 s30, s30, s31')
        A('s_lshl_b32 s32, 1, s30')

    def need_gu():
        A('s_lshl_b32 s32, 0x5555, s29')
        A('s_cmp_eq_u32 s20, 7')
        A('s_cselect_b32 s32, 0xffff, s32')

    def need_dn():
        A('s_lshl_b32 s30, s20, 1')
        A('s_lshl_b32 s32, 3, s30')

    def need_qkv():
        A('s_lshl_b32 s30, s20, 1')
        A('s_add_u32 s30, s30, s23')
        A('s_lshl_b32 s32, 1, s30')

    if layer == 0:
        fixed = {PK_I: lambda: (wq_store(C), pack_issue(C)), PK_C: lambda: pack_convert(C), PK_F: lambda: pack_flag(C), PK_P - 3: lambda: pack_poll(C, end), PK_P: lambda: pack_poll2(C, end)}
        tail = att_phase(C, kvf, kfl, end, stubs, fixed, PK_P, pre_hook=lambda: pack_ptrs(A), loadq=False, early=True)
    else:
        tail = att_phase(C, kvf, kfl, end, stubs, pre_hook=lambda: A('s_load_dwordx2 s[12:13], s[0:1], 72'), loadq=False)
    C.stamp()
    if not WO_LATE:
        A('s_nop 1')
        for i in range(8, 16):
            g4_wload(C, 116, i, 'res')
    g4_pre(C, 'res', B['OF'], resbase=xin)
    handoff(C, sy + 0, end, need_wo)
    C.stamp()
    g4_main(C, 'res', outbase=B['XB'], sxout=B['SXB'], hook_red=lambda k: gu_wload(C, 24 + k))
    C.stamp()
    gu2_pre(C)
    handoff(C, sy + 1, end, need_gu)
    C.stamp()
    gu2_main(C, sy + 2, end)
    C.stamp()
    if last:
        dn_main(C, 'out', sy - 1, end, B['XB'])
        C.stamp()
    else:
        dn_main(C, 'res', sy - 1, end, B['XB'], outbase=XC, sxout=SXC, hook_red=lambda: qkv4_wrest(C))
        C.stamp()
        g4_pre(C, 'qkv', XC, resbase=SXC)
        g4_waddr(C, 64, WQKVP)
        handoff(C, sy + 3, end, need_qkv)
        C.stamp()
        g4_main(C, 'qkv', kvf=KVF2, kfl=KFL + 64 * 128, endlab=end)
        C.stamp()
    return tail


def build():
    A = Asm()
    name = NAME + '_kernel'
    C = Ctx(A, 'pr')
    C.qf = QF
    end = 'k_end'
    kernel_begin(A, name)
    pre_part(C, end)
    t0 = layer_part(C, 0, end)
    t1 = layer_part(C, 1, end)
    A('s_add_u32 s30, s2, s20')
    A('s_cmp_lg_u32 s30, 0')
    A('s_cbranch_scc1 k_fin')
    A('s_load_dwordx2 s[4:5], s[0:1], 80')
    A('s_mov_b32 s6, 256')
    A('v_mov_b32 v2, 0')
    A('s_mov_b64 exec, 1')
    A('s_waitcnt lgkmcnt(0)')
    A('buffer_store_dword v2, v2, s[4:7], 0 offen sc0 sc1')
    A('s_mov_b64 exec, -1')
    A.label('k_fin')
    if DBGD:
        A('s_cmp_lg_u32 s2, 77')
        A('s_cbranch_scc1 k_fin2')
        A('s_cmp_lg_u32 s20, 1')
        A('s_cbranch_scc1 k_fin2')
        A('s_load_dwordx2 s[4:5], s[0:1], 80')
        A('s_memrealtime s[60:61]')
        A('s_mov_b32 s6, 256')
        A('v_mov_b32 v2, 0')
        A('s_mov_b64 exec, 1')
        A('s_waitcnt lgkmcnt(0)')
        sel = [int(x) for x in DBGD.split()]
        for k, i in enumerate(sel + [-1]):
            A(f's_sub_u32 s30, {s(64 + i) if i >= 0 else "s60"}, s64')
            A('v_mov_b32 v4, s30')
            A(f'buffer_store_dword v4, v2, s[4:7], 0 offen offset:{4 + 4 * k}')
        A('s_mov_b64 exec, -1')
        A.label('k_fin2')
    stamp_end(C, 1)
    A.label(end)
    A('s_endpgm')
    t0(True)
    t1(False)
    body = A.text()
    probs = lint(body)
    for p in probs:
        print('LINT:', p, file=sys.stderr)
    head = f"; @launch grid=(256,1,1) block=(512,1,1) lds={LDS_BYTES}\n"
    head += """; Two (MQA attention + bilinear GLU) layers in ONE persistent launch, 256 workgroups x 8 waves, one per CU.
; Phases per layer: QKV -> attention -> Wo(+res) -> gate/up -> down(+res).  16 workgroups own 128 rows.
"""
    head += '.amdgcn_target "amdgcn-amd-amdhsa--gfx950"\n.text\n'
    tail = '.section .rodata,"a"\n.p2align 6\n' + descriptor(name, 256, 0, nsgpr=100)
    print('stamps:', C.nstamp, file=sys.stderr)
    return head + body + tail


if __name__ == '__main__':
    if 'stamp' in sys.argv:
        STAMP = True
    for arg in sys.argv[2:]:
        if '=' in arg:
            k, val = arg.split('=')
            globals()[k] = int(val) if val.lstrip('-').isdigit() else val.replace('_', ' ')
    out = sys.argv[1] if len(sys.argv) > 1 else f'cdna_kernels/{NAME}.s'
    open(out, 'w').write(build())
    print('wrote', out)
```
